```python
import torch

def _softmax(x, axis=-1):
    return torch.softmax(x, dim=axis)
def _gelu(x):
    return torch.nn.functional.gelu(x, approximate="tanh")
def _silu(x):
    return torch.nn.functional.silu(x)
def _sigmoid(x):
    return torch.sigmoid(x)
def _layernorm(x, axis=-1, eps=1e-5):
    m = x.mean(dim=axis, keepdim=True)
    v = x.var(dim=axis, keepdim=True, unbiased=False)
    return (x - m) / torch.sqrt(v + eps)
def _scatter_add(tgt, idx, src, axis=0):
    return tgt.clone().index_add_(axis, idx, src)
def _segment_sum(src, seg, n):
    out = torch.zeros((n,) + src.shape[1:], dtype=src.dtype)
    return out.index_add_(0, seg, src)
def _pad(x, pw):
    flat = tuple(v for pair in reversed(pw) for v in pair)
    return torch.nn.functional.pad(x, flat)

kernel_name = 'gather_scatter__edge_featured_mpnn_gatedgcn__graph'

def setup_inputs():

    _w = (lambda a: (lambda t: t.to(torch.bfloat16) if t.is_floating_point() else t)(torch.as_tensor(a)))
    N, deg, D, De = 12500, 32, 128, max(16, 1)
    E = N * deg
    return {
        "x": _w((lambda *s: torch.randn(*s, dtype=torch.bfloat16) * 0.4)(N, D)),
        "e_attr": _w((lambda *s: torch.randn(*s, dtype=torch.bfloat16) * 0.8)(E, De)),
        "src": _w((lambda lo, hi, *s: torch.randint(lo, hi, s))(0, N, E).to(torch.int64)),
        "dst": _w((lambda lo, hi, *s: torch.randint(lo, hi, s))(0, N, E).to(torch.int64)),
        "w_a": _w((lambda *s: torch.randn(*s, dtype=torch.bfloat16) * 0.4)(D, D)),
        "w_b": _w((lambda *s: torch.randn(*s, dtype=torch.bfloat16) * 0.4)(D, D)),
        "w_c": _w((lambda *s: torch.randn(*s, dtype=torch.bfloat16) * 0.8)(De, D)),
        "w_u": _w((lambda *s: torch.randn(*s, dtype=torch.bfloat16) * 0.05)(D, D)),
        "w_v": _w((lambda *s: torch.randn(*s, dtype=torch.bfloat16) * 0.05)(D, D)),
    }

def reference(x, e_attr, src, dst, w_a, w_b, w_c, w_u, w_v):
    N, D = x.shape
    hv = x @ w_v
    g = x[dst] @ w_a + x[src] @ w_b + e_attr @ w_c
    eta = _sigmoid(g)
    denom = _segment_sum(eta, dst, N) + 1e-6
    eta_n = eta / denom[dst]
    agg = _segment_sum(eta_n * hv[src], dst, N)
    z = x @ w_u + agg
    relu_z = torch.where(z > 0, z, 0 * z)
    return x + relu_z
```

```python
import math
import struct
import sys

NAME = "gather_scatter__edge_featured_mpnn_gatedgcn__graph"
N, E = 12500, 400000
NPB = 49
CH = 3136
NCH = 128
NGEMM = 196
TAB_OFF = 0
AU_OFF = 0x700000
REC_OFF = 0xE00000
OFF_OFF = 0x1000000
TAB_BYTES = N * 512
BIAS = 33.25


def f32(x):
    return struct.unpack("<I", struct.pack("<f", x))[0]


class Asm:
    def __init__(self):
        self.lines = []

    def __call__(self, s):
        for ln in s.strip("\n").split("\n"):
            ln = ln.strip()
            if not ln:
                continue
            self.lines.append(ln if ln.endswith(":") else "    " + ln)

    def text(self):
        return "\n".join(self.lines) + "\n"


def vr(a, n=1):
    return f"v{a}" if n == 1 else f"v[{a}:{a + n - 1}]"


def sr(a, n=1):
    return f"s{a}" if n == 1 else f"s[{a}:{a + n - 1}]"


def srd(A, d, base, nbytes, off=0):
    if off:
        A(f"s_add_u32 s{d}, s{base}, {hex(off)}")
        A(f"s_addc_u32 s{d + 1}, s{base + 1}, 0")
    else:
        A(f"s_mov_b32 s{d}, s{base}")
        A(f"s_mov_b32 s{d + 1}, s{base + 1}")
    A(f"s_mov_b32 s{d + 2}, {hex(nbytes)}")
    A(f"s_mov_b32 s{d + 3}, 0x20000")


P_X, P_EA, P_SRC, P_DST, P_WA, P_WB, P_WC, P_WU = 4, 6, 8, 10, 12, 14, 16, 18
P_WV, P_OUT, P_DBG, P_WS = 20, 22, 24, 26


def load_kernargs(A):
    A("s_load_dwordx16 s[4:19], s[0:1], 0")
    A("s_load_dwordx8 s[20:27], s[0:1], 64")


def gen_k1(A, opt):
    st = opt.get("k1_store", "")
    ld = opt.get("k1_load", "")
    A("prep_kernel:")
    A(f"s_cmp_ge_u32 s2, {NCH + NGEMM}")
    A("s_cbranch_scc1 Lk1_done")
    load_kernargs(A)
    A(f"s_cmp_ge_u32 s2, {NCH}")
    A("s_cbranch_scc1 Lk1_gemm")

    S_SRC, S_DST, S_REC, S_OFFS = 28, 32, 36, 40
    sB0, sB1, sLim, sMagic, sM49, sM0, sM1 = 44, 45, 46, 47, 48, 50, 52
    vOff, vD, vS, vE, vA, vR, vT, vOne = 1, 4, 12, 20, 28, 36, 44, 2
    L_CNT, L_BASE, L_SORT = 0, 1024, 2048
    A(f"s_mul_i32 s{sB0}, s2, {CH * 4}")
    A(f"s_add_u32 s{sB1}, s{sB0}, 8192")
    A(f"s_movk_i32 s{sLim}, {CH // 4}")
    A(f"s_cmp_eq_u32 s2, {NCH - 1}")
    A(f"s_cselect_b32 s{sLim}, {(E - (NCH - 1) * CH) // 4}, s{sLim}")
    A(f"v_lshlrev_b32 v{vOff}, 4, v0")
    A(f"v_cmp_gt_u32_e64 {sr(sM0, 2)}, s{sLim}, v0")
    A(f"v_add_u32 v3, 512, v0")
    A(f"v_cmp_gt_u32_e64 {sr(sM1, 2)}, s{sLim}, v3")
    A("s_waitcnt lgkmcnt(0)")
    srd(A, S_DST, P_DST, E * 4)
    srd(A, S_SRC, P_SRC, E * 4)
    A(f"buffer_load_dwordx4 {vr(vD, 4)}, v{vOff}, {sr(S_DST, 4)}, s{sB0} offen {ld}")
    A(f"buffer_load_dwordx4 {vr(vS, 4)}, v{vOff}, {sr(S_SRC, 4)}, s{sB0} offen {ld}")
    A(f"s_mov_b64 exec, {sr(sM1, 2)}")
    A("s_cbranch_execz Lp_nold1")
    A(f"buffer_load_dwordx4 {vr(vD + 4, 4)}, v{vOff}, {sr(S_DST, 4)}, s{sB1} offen {ld}")
    A(f"buffer_load_dwordx4 {vr(vS + 4, 4)}, v{vOff}, {sr(S_SRC, 4)}, s{sB1} offen {ld}")
    A("Lp_nold1:")
    A("s_mov_b64 exec, -1")
    srd(A, S_REC, P_WS, NCH * CH * 4, REC_OFF)
    srd(A, S_OFFS, P_WS, NCH * 1024, OFF_OFF)
    A(f"s_mov_b32 s{sMagic}, 85599")
    A(f"s_mov_b32 s{sM49}, {-NPB}")
    A(f"v_mov_b32 v{vOne}, 1")
    A(f"v_mov_b32 v{vT}, 0")
    A(f"v_lshlrev_b32 v{vT + 1}, 2, v0")
    A(f"ds_write_b32 v{vT + 1}, v{vT} offset:{L_CNT}")
    A(f"v_lshlrev_b32 v{vE}, 8, v0")
    for i in range(1, 8):
        A(f"v_add_u32 v{vE + i}, {(i & 3) * 64 + (i >> 2) * 512 * 256}, v{vE}")
    A("s_cmp_lg_u32 s2, 0")
    A("s_cbranch_scc1 Lp_nopad")
    srd(A, 56, P_WS, 512, TAB_OFF + TAB_BYTES)
    A(f"v_mov_b32 v{vT + 2}, 0x7c00")
    A(f"buffer_store_dword v{vT + 2}, v{vT + 1}, s[56:59], 0 offen")
    A("Lp_nopad:")
    A("s_waitcnt lgkmcnt(0)")
    A("s_barrier")
    A("s_waitcnt vmcnt(0)")
    for r in range(2):
        A(f"s_mov_b64 exec, {sr((sM0, sM1)[r], 2)}")
        A(f"s_cbranch_execz Lp_p1_{r}")
        for i in range(4 * r, 4 * r + 4):
            A(f"v_mul_u32_u24 v{vT}, s{sMagic}, v{vD + i}")
            A(f"v_lshl_or_b32 v{vS + i}, v{vS + i}, 18, v{vE + i}")
            A(f"v_lshrrev_b32 v{vT}, 22, v{vT}")
            A(f"v_add_u32 v{vS + i}, v{vS + i}, v{vD + i}")
            A(f"v_lshlrev_b32 v{vA + i}, 2, v{vT}")
            A(f"v_mad_i32_i24 v{vS + i}, v{vT}, s{sM49}, v{vS + i}")
            A(f"ds_add_rtn_u32 v{vR + i}, v{vA + i}, v{vOne} offset:{L_CNT}")
        A(f"Lp_p1_{r}:")
    A("s_mov_b64 exec, -1")
    A("s_waitcnt lgkmcnt(0)")
    A("s_barrier")
    A("v_cmp_gt_u32 vcc, 64, v0")
    A("s_cbranch_vccz Lp_noscan")
    c, b = vD, vD + 4
    A(f"ds_read_b128 {vr(c, 4)}, v{vOff} offset:{L_CNT}")
    A("s_waitcnt lgkmcnt(0)")
    A(f"v_add_u32 v{b + 2}, v{c}, v{c + 1}")
    A(f"v_add_u32 v{b + 3}, v{b + 2}, v{c + 2}")
    A(f"v_add_u32 v{vT}, v{b + 3}, v{c + 3}")
    A(f"v_mov_b32 v{vT + 1}, v{vT}")
    for d in ("row_shr:1 row_mask:0xf", "row_shr:2 row_mask:0xf", "row_shr:4 row_mask:0xf",
              "row_shr:8 row_mask:0xf", "row_bcast:15 row_mask:0xa", "row_bcast:31 row_mask:0xc"):
        A("s_nop 1")
        A(f"v_add_u32_dpp v{vT + 1}, v{vT + 1}, v{vT + 1} {d} bank_mask:0xf")
    A(f"v_sub_u32 v{b}, v{vT + 1}, v{vT}")
    A(f"v_add_u32 v{b + 1}, v{b}, v{c}")
    A(f"v_add_u32 v{b + 2}, v{b}, v{b + 2}")
    A(f"v_add_u32 v{b + 3}, v{b}, v{b + 3}")
    A(f"ds_write_b128 v{vOff}, {vr(b, 4)} offset:{L_BASE}")
    for i in range(4):
        A(f"v_lshl_or_b32 v{c + i}, v{c + i}, 16, v{b + i}")
    A("s_lshl_b32 s3, s2, 10")
    A(f"buffer_store_dwordx4 {vr(c, 4)}, v{vOff}, {sr(S_OFFS, 4)}, s3 offen {st}")
    A("s_waitcnt lgkmcnt(0)")
    A("Lp_noscan:")
    A("s_barrier")
    for r in range(2):
        A(f"s_mov_b64 exec, {sr((sM0, sM1)[r], 2)}")
        A(f"s_cbranch_execz Lp_p2_{r}")
        for i in range(4 * r, 4 * r + 4):
            A(f"ds_read_b32 v{vA + i}, v{vA + i} offset:{L_BASE}")
        for i in range(4 * r, 4 * r + 4):
            A(f"s_waitcnt lgkmcnt({3})")
            A(f"v_add_lshl_u32 v{vA + i}, v{vA + i}, v{vR + i}, 2")
            A(f"ds_write_b32 v{vA + i}, v{vS + i} offset:{L_SORT}")
        A(f"Lp_p2_{r}:")
    A("s_mov_b64 exec, -1")
    A("s_waitcnt lgkmcnt(0)")
    A("s_barrier")
    for r in range(2):
        A(f"s_mov_b64 exec, {sr((sM0, sM1)[r], 2)}")
        A(f"s_cbranch_execz Lk1_done")
        A(f"ds_read_b128 {vr(vE + 4 * r, 4)}, v{vOff} offset:{L_SORT + 8192 * r}")
        A("s_waitcnt lgkmcnt(0)")
        A(f"buffer_store_dwordx4 {vr(vE + 4 * r, 4)}, v{vOff}, {sr(S_REC, 4)}, s{(sB0, sB1)[r]} offen {st}")
    A("s_endpgm")

    A("Lk1_gemm:")
    S_X, S_W, S_T = 28, 32, 48
    sRt, sHalf, sW0, sW1, sX0, sX1, sO0, sO1, sNl = 56, 57, 58, 59, 60, 61, 62, 63, 64
    vWo, vXo, vLw, vTr0, vTr1, vSo = 1, 2, 3, 4, 5, 6
    vW, vX, vAcc, vF = 8, 40, 72, 8
    PAIR = 16 * 2432
    A(f"s_sub_u32 s3, s2, {NCH}")
    A(f"s_lshr_b32 s{sRt}, s3, 1")
    A(f"s_and_b32 s{sHalf}, s3, 1")
    A(f"s_lshl_b32 s{sW0}, s{sHalf}, 7")
    A(f"s_add_u32 s{sW1}, s{sW0}, 16384")
    A(f"s_lshl_b32 s{sX0}, s{sRt}, 15")
    A(f"s_add_u32 s{sX1}, s{sX0}, 4096")
    A(f"""
    v_lshrrev_b32 v10, 3, v0
    v_and_b32 v11, 7, v0
    v_lshlrev_b32 v11, 4, v11
    v_lshl_add_u32 v{vWo}, v10, 8, v11
    v_lshrrev_b32 v12, 6, v0
    v_and_b32 v10, 7, v10
    v_mul_u32_u24 v13, 2432, v12
    v_mul_u32_u24 v10, 288, v10
    v_add3_u32 v{vLw}, v13, v10, v11
    v_lshrrev_b32 v13, 1, v12
    v_and_b32 v14, 15, v0
    v_lshl_add_u32 v13, v13, 5, v14
    v_bfe_u32 v15, v0, 4, 2
    v_lshlrev_b32 v16, 4, v15
    v_lshl_add_u32 v{vXo}, v13, 8, v16
    v_and_b32 v12, 1, v12
    v_lshl_add_u32 v16, v12, 7, v16
    v_lshl_add_u32 v{vSo}, v13, 9, v16
    v_mul_u32_u24 v15, 2432, v15
    v_lshrrev_b32 v16, 2, v14
    v_mul_u32_u24 v16, 288, v16
    v_and_b32 v14, 3, v14
    v_lshlrev_b32 v14, 3, v14
    v_lshl_add_u32 v14, v12, 6, v14
    v_add3_u32 v{vTr0}, v15, v16, v14
    v_add_u32 v{vTr1}, {PAIR}, v{vTr0}
    """)
    A("s_waitcnt lgkmcnt(0)")
    srd(A, S_X, P_X, N * 256)
    for m, p in enumerate((P_WB, P_WV, P_WA, P_WU)):
        srd(A, S_W + 4 * m, p, 32768)
    for m in range(2):
        for z in range(2):
            A(f"buffer_load_dwordx4 {vr(vW + 8 * m + 4 * z, 4)}, v{vWo}, {sr(S_W + 4 * m, 4)}, s{(sW0, sW1)[z]} offen")
    for nb in range(2):
        for s in range(4):
            A(f"buffer_load_dwordx4 {vr(vX + 16 * nb + 4 * s, 4)}, v{vXo}, {sr(S_X, 4)}, s{(sX0, sX1)[nb]} offen offset:{64 * s}")
    for m in range(2, 4):
        for z in range(2):
            A(f"buffer_load_dwordx4 {vr(vW + 8 * m + 4 * z, 4)}, v{vWo}, {sr(S_W + 4 * m, 4)}, s{(sW0, sW1)[z]} offen")
    srd(A, S_T, P_WS, TAB_BYTES, TAB_OFF)
    srd(A, S_T + 4, P_WS, TAB_BYTES, AU_OFF)
    A(f"s_lshl_b32 s{sO0}, s{sRt}, 16")
    A(f"s_lshl_b32 s3, s{sHalf}, 8")
    A(f"s_add_u32 s{sO0}, s{sO0}, s3")
    A(f"s_add_u32 s{sO1}, s{sO0}, 8192")
    A(f"s_mov_b32 s{sNl}, {hex(f32(-math.log2(math.e)))}")
    for m in range(4):
        for z in range(2):
            k = 2 * m + z
            A(f"s_waitcnt vmcnt({15 - k if m < 2 else 7 - k})")
            A(f"ds_write_b128 v{vLw}, {vr(vW + 8 * m + 4 * z, 4)} offset:{(m >> 1) * PAIR + z * 8 * 2432 + (m & 1) * 128}")
    A("s_waitcnt lgkmcnt(0)")
    A("s_barrier")

    def frag_reads(pair, s, buf):
        for m in range(2):
            for be in range(2):
                for z in range(2):
                    A(f"ds_read_b64_tr_b16 {vr(vF + 16 * buf + 8 * m + 4 * be + 2 * z, 2)}, v{(vTr0, vTr1)[pair]} "
                      f"offset:{s * 4 * 2432 + z * 4 * 288 + m * 128 + be * 32}")

    steps = [(p, s) for p in range(2) for s in range(4)]
    frag_reads(0, 0, 0)
    for idx, (p, s) in enumerate(steps):
        buf = idx & 1
        if idx + 1 < len(steps):
            frag_reads(*steps[idx + 1], buf ^ 1)
            A("s_waitcnt lgkmcnt(8)")
        else:
            A("s_waitcnt lgkmcnt(0)")
        for m in range(2):
            for be in range(2):
                for nb in range(2):
                    d = vAcc + 16 * m + 8 * nb + 4 * be
                    cc = "0" if s == 0 else vr(d, 4)
                    A(f"v_mfma_f32_16x16x32_bf16 {vr(d, 4)}, {vr(vF + 16 * buf + 8 * m + 4 * be, 4)}, "
                      f"{vr(vX + 16 * nb + 4 * s, 4)}, {cc}")
        if s == 3:
            A("s_nop 7")
            for nb in range(2):
                for be in range(2):
                    lo = vAcc + 8 * nb + 4 * be
                    hi = lo + 16
                    for i in range(4):
                        if p == 0:
                            A(f"v_fma_mixlo_f16 v{hi + i}, v{lo + i}, s{sNl}, 0")
                        else:
                            A(f"v_cvt_pk_bf16_f32 v{hi + i}, v{lo + i}, v{hi + i}")
                    A(f"buffer_store_dwordx4 {vr(hi, 4)}, v{vSo}, {sr(S_T + 4 * p, 4)}, s{(sO0, sO1)[nb]} offen offset:{64 * be} {st}")
            A("s_nop 1")
    A("Lk1_done:")
    A("s_endpgm")


def gen_k2(A, opt):
    ea_pol = opt.get("ea_load", "")
    S_TAB, S_EA, S_REC, S_OFFS, S_AU, S_WC, S_X, S_OUT = 28, 32, 36, 40, 44, 48, 52, 56
    sW, sBk, sN0, sW0, sT, sTi, sInc, sNl = 60, 61, 62, 63, 64, 65, 66, 67
    sC0, sCur, sNext, sMore, sTmp = 68, 70, 72, 74, 76
    sMask = 78
    sOvf, sMor, sQ1, sQ2, sQ3 = 94, 95, 96, 97, 98
    L_CNT, L_BASE, L_FLAG, L_SO = 0, 2048, 4096, 4608
    L_EO = L_SO + 16384 + 256
    NU = 7
    vAcc, vL, vD, vWC, vAT, vSel, vEA, vT = 0, 56, 112, 176, 192, 208, 212, 216
    vP, vSo = 224, 232
    vLaneOff, vEp, vErr, vQ, vEo, vH16, vOffs, vTid, vCaddr, vUaddr = 231, 236, 237, 238, 239, 240, 241, 242, 243, 244
    vRec, vKey, vRank, vSoff, vEoff = vD, vD + 8, vD + 16, vD + 24, vD + 32
    vX = vD + 40
    vRaw = vL

    A(f"{NAME}_kernel:")
    A("s_cmp_ge_u32 s2, 256")
    A("s_cbranch_scc1 Lk2_done")
    load_kernargs(A)
    A(f"""
    s_and_b32 s3, s2, 7
    s_lshl_b32 s3, s3, 5
    s_lshr_b32 s{sBk}, s2, 3
    s_add_u32 s{sBk}, s{sBk}, s3
    s_mul_i32 s{sN0}, s{sBk}, {NPB}
    v_mov_b32 v{vTid}, v0
    v_lshrrev_b32 v{vX}, 6, v0
    v_lshrrev_b32 v{vX + 1}, 2, v0
    v_readfirstlane_b32 s{sW}, v{vX}
    v_lshlrev_b32 v{vX + 1}, 10, v{vX + 1}
    v_and_b32 v{vX + 2}, 31, v0
    v_bfe_u32 v{vX + 3}, v0, 5, 1
    v_lshlrev_b32 v{vLaneOff}, 4, v{vX + 2}
    v_lshlrev_b32 v{vH16}, 4, v{vX + 3}
    v_lshlrev_b32 v{vX + 4}, 3, v{vX + 2}
    v_lshl_add_u32 v{vX + 4}, v{vX + 3}, 11, v{vX + 4}
    v_lshl_add_u32 v{vX + 5}, v{vX + 3}, 14, v{vLaneOff}
    s_lshl_b32 s3, s{sBk}, 2
    s_waitcnt lgkmcnt(0)
    """)
    srd(A, S_OFFS, P_WS, NCH * 1024, OFF_OFF)
    A(f"buffer_load_dword v{vOffs}, v{vX + 1}, {sr(S_OFFS, 4)}, s3 offen")
    srd(A, S_WC, P_WC, 4096)
    srd(A, S_AU, P_WS, TAB_BYTES, AU_OFF)
    for i in range(8):
        A(f"buffer_load_dwordx2 {vr(vRaw + 2 * i, 2)}, v{vX + 4}, {sr(S_WC, 4)}, 0 offen offset:{256 * i}")
    A(f"s_add_u32 s3, s{sN0}, s{sW}")
    A("s_lshl_b32 s3, s3, 9")
    for i in range(4):
        A(f"buffer_load_dwordx4 {vr(vRaw + 16 + 4 * i, 4)}, v{vX + 5}, {sr(S_AU, 4)}, s3 offen")
        if i < 3:
            A("s_add_u32 s3, s3, 4096")
    srd(A, S_REC, P_WS, NCH * CH * 4, REC_OFF)
    srd(A, S_TAB, P_WS, TAB_BYTES + 512, TAB_OFF)
    srd(A, S_EA, P_EA, E * 32)
    srd(A, S_X, P_X, N * 256)
    srd(A, S_OUT, P_OUT, N * 256)
    c0 = math.exp(-BIAS)
    A(f"s_mov_b32 s{sNl}, {hex(f32(-math.log2(math.e)))}")
    A(f"s_mov_b32 s{sC0}, {hex(f32(c0))}")
    A(f"s_mov_b32 s{sC0 + 1}, {hex(f32(c0))}")
    A(f"s_mov_b32 s{sW0}, 0")
    A(f"""
    v_mov_b32 v{vX + 6}, 0
    v_lshlrev_b32 v{vX + 7}, 2, v{vTid}
    ds_write_b32 v{vX + 7}, v{vX + 6} offset:{L_CNT}
    ds_write_b32 v{vX + 6}, v{vX + 6} offset:{L_FLAG}
    ds_write_b32 v{vX + 6}, v{vX + 6} offset:{L_FLAG + 4}
    """)
    for i in range(0, 8 * NU, 2):
        A(f"v_mov_b64 {vr(vAcc + i, 2)}, 0")
    A(f"""
    v_bfe_u32 v{vX + 8}, v{vTid}, 3, 3
    v_and_b32 v{vX + 9}, 7, v{vTid}
    v_lshlrev_b32 v{vX + 9}, 2, v{vX + 9}
    v_lshl_add_u32 v{vX + 9}, v{vX + 8}, 8, v{vX + 9}
    v_lshl_add_u32 v{vCaddr}, v{vX}, 5, v{vX + 9}
    """)
    A(f"""
    v_lshrrev_b32 v{vX + 8}, 3, v{vX + 2}
    v_bfe_u32 v{vX + 9}, v{vX + 2}, 1, 1
    v_lshl_add_u32 v{vX + 8}, v{vX + 8}, 1, v{vX + 9}
    v_lshlrev_b32 v{vUaddr}, 5, v{vX + 8}
    v_lshlrev_b32 v{vX + 9}, 2, v{vX + 3}
    v_sub_u32 v{vX + 9}, v{vX + 8}, v{vX + 9}
    v_mov_b32 v{vX + 10}, 0x3f80
    """)
    for i in range(4):
        A(f"v_cmp_eq_u32 vcc, {i}, v{vX + 9}")
        A("s_nop 1")
        A(f"v_cndmask_b32 v{vSel + i}, 0, v{vX + 10}, vcc")
    A(f"v_cmp_eq_u32 vcc, 1, v{vX + 3}")
    A("s_nop 1")
    A(f"v_cndmask_b32 v{vSel + 3}, v{vSel + 3}, v{vX + 10}, vcc")

    def batch_masks():
        A(f"""
        v_lshrrev_b32 v{vX}, 16, v{vOffs}
        v_and_b32 v{vX + 1}, 3, v{vTid}
        v_subrev_u32 v{vX}, s{sW0}, v{vX}
        v_lshlrev_b32 v{vX + 1}, 2, v{vX + 1}
        v_cmp_lt_i32_e64 {sr(sMore, 2)}, 32, v{vX}
        v_sub_u32 v{vX}, v{vX}, v{vX + 1}
        """)
        for i in range(8):
            A(f"v_cmp_lt_i32_e64 {sr(sMask + 2 * i, 2)}, {(i & 3) + 16 * (i >> 2)}, v{vX}")

    def rec_loads():
        A(f"""
        v_lshrrev_b32 v{vX + 2}, 2, v{vTid}
        v_and_b32 v{vX + 1}, 3, v{vTid}
        v_mul_u32_u24 v{vX + 2}, {CH}, v{vX + 2}
        v_and_b32 v{vX + 3}, 0xffff, v{vOffs}
        v_lshl_add_u32 v{vX + 1}, v{vX + 1}, 2, s{sW0}
        v_add3_u32 v{vX + 3}, v{vX + 3}, v{vX + 2}, v{vX + 1}
        v_lshlrev_b32 v{vX + 3}, 2, v{vX + 3}
        buffer_load_dwordx4 {vr(vRec, 4)}, v{vX + 3}, {sr(S_REC, 4)}, 0 offen
        buffer_load_dwordx4 {vr(vRec + 4, 4)}, v{vX + 3}, {sr(S_REC, 4)}, 0 offen offset:64
        v_lshlrev_b32 v{vX + 2}, 5, v{vX + 2}
        """)

    A("s_waitcnt vmcnt(12)")
    rec_loads()
    batch_masks()
    A("s_mov_b32 s3, 0x05040100")
    A(f"s_mov_b32 s{sTmp}, 0x07060302")
    A("s_waitcnt vmcnt(6)")
    for j in range(4):
        for i in range(4):
            A(f"v_perm_b32 v{vWC + 4 * j + i}, v{vRaw + 2 * (2 * i + 1) + (j >> 1)}, v{vRaw + 2 * (2 * i) + (j >> 1)}, "
              f"s{(3, sTmp)[j & 1]}")
    A("s_waitcnt vmcnt(2)")
    bias_bits = f32(BIAS) >> 16
    A(f"v_mov_b32 v{vX + 4}, {hex(bias_bits)}")
    A(f"v_cmp_lt_u32 vcc, 0, v{vH16}")
    for j in range(4):
        for i in range(3):
            A(f"v_mov_b32 v{vAT + 4 * j + i}, v{vRaw + 16 + 4 * i + j}")
        A(f"v_cndmask_b32 v{vAT + 4 * j + 3}, v{vRaw + 16 + 12 + j}, v{vX + 4}, vcc")

    A("Lround:")
    A(f"v_mov_b32 v{vX + 4}, 1")
    A(f"v_mov_b32 v{vX + 5}, 0")
    A("s_waitcnt lgkmcnt(0)")
    A("s_barrier")
    A(f"s_mov_b64 exec, {sr(sMore, 2)}")
    A(f"ds_write_b32 v{vX + 5}, v{vX + 4} offset:{L_FLAG + 4}")
    A("s_mov_b64 exec, -1")
    A("s_waitcnt vmcnt(0)")
    for i in range(8):
        A(f"v_alignbit_b32 v{vKey + i}, v{vRec + i}, v{vRec + i}, 27")
        A(f"v_and_b32 v{vKey + i}, 0x7fc, v{vKey + i}")
        A(f"s_mov_b64 exec, {sr(sMask + 2 * i, 2)}")
        A(f"ds_add_rtn_u32 v{vRank + i}, v{vKey + i}, v{vX + 4} offset:{L_CNT}")
        A("s_mov_b64 exec, -1")
    for i in range(8):
        A(f"v_lshrrev_b32 v{vSoff + i}, 18, v{vRec + i}")
        A(f"v_bfe_u32 v{vEoff + i}, v{vRec + i}, 6, 12")
        A(f"v_lshlrev_b32 v{vSoff + i}, 9, v{vSoff + i}")
        A(f"v_lshl_add_u32 v{vEoff + i}, v{vEoff + i}, 5, v{vX + 2}")
    A("s_waitcnt lgkmcnt(0)")
    A("s_barrier")
    c, inc, deg, q, t0, t1 = vX + 6, vX + 7, vX + 8, vX + 9, vX + 10, vX + 11
    A(f"ds_read_b32 v{c}, v{vCaddr} offset:{L_CNT}")
    A(f"v_lshrrev_b32 v{t0}, 5, v{vCaddr}")
    A(f"v_lshlrev_b32 v{t0}, 6, v{t0}")
    A("s_waitcnt lgkmcnt(0)")
    A(f"ds_write_b32 v{vCaddr}, v{vX + 5} offset:{L_CNT}")
    A(f"v_mov_b32 v{inc}, v{c}")
    for d in (1, 2, 4, 8):
        A("s_nop 1")
        A(f"v_add_u32_dpp v{inc}, v{inc}, v{inc} row_shr:{d} row_mask:0xf bank_mask:0xf")
    A(f"v_mov_b32 v{t1}, 0")
    A("s_nop 0")
    A(f"v_mov_b32_dpp v{deg}, v{inc} row_newbcast:7 row_mask:0xf bank_mask:0x3")
    A(f"v_mov_b32_dpp v{t1}, v{inc} row_newbcast:7 row_mask:0xf bank_mask:0xc")
    A(f"v_mov_b32_dpp v{deg}, v{inc} row_newbcast:15 row_mask:0xf bank_mask:0xc")
    A(f"v_sub_u32 v{inc}, v{inc}, v{t1}")
    A(f"v_sub_u32 v{deg}, v{deg}, v{t1}")
    A(f"v_sub_u32 v{inc}, v{inc}, v{c}")
    A(f"v_add_u32 v{inc}, v{inc}, v{t0}")
    A(f"ds_write_b32 v{vCaddr}, v{inc} offset:{L_BASE}")
    A(f"v_cmp_lt_u32 vcc, 64, v{deg}")
    A(f"v_min_u32 v{deg}, 64, v{deg}")
    A(f"v_add_u32 v{q}, 3, v{deg}")
    A(f"v_lshrrev_b32 v{q}, 2, v{q}")
    A("s_mov_b64 exec, vcc")
    A(f"ds_write_b32 v{vX + 5}, v{vX + 4} offset:{L_FLAG}")
    A("s_mov_b64 exec, -1")
    A(f"ds_bpermute_b32 v{vQ}, v{vUaddr}, v{q}")
    A(f"v_and_b32 v{c}, 7, v{vTid}")
    A(f"v_add_u32 v{c}, v{c}, v{deg}")
    A(f"v_lshlrev_b32 v{t1}, 2, v{q}")
    A(f"v_cmp_lt_u32 vcc, v{c}, v{t1}")
    A(f"v_add_lshl_u32 v{c}, v{c}, v{t0}, 2")
    A(f"v_mov_b32 v{t0}, {TAB_BYTES}")
    A(f"v_mov_b32 v{t1}, 0x40000000")
    A("s_mov_b64 exec, vcc")
    A(f"ds_write_b32 v{c}, v{t0} offset:{L_SO}")
    A(f"ds_write_b32 v{c}, v{t1} offset:{L_EO}")
    A("s_mov_b64 exec, -1")
    A(f"v_max_u32_dpp v{q}, v{q}, v{q} row_ror:8 row_mask:0xf bank_mask:0xf")
    A("s_nop 0")
    A(f"v_readlane_b32 s{sT}, v{q}, 0")
    A(f"v_readlane_b32 s3, v{q}, 16")
    A(f"v_readlane_b32 s{sTmp}, v{q}, 32")
    A(f"v_readlane_b32 s{sTmp + 1}, v{q}, 48")
    A("s_waitcnt lgkmcnt(0)")
    A("s_barrier")
    A(f"ds_read_b64 {vr(vX + 6, 2)}, v{vX + 5} offset:{L_FLAG}")
    for i in range(8):
        A(f"ds_read_b32 v{vKey + i}, v{vKey + i} offset:{L_BASE}")
    A(f"s_max_u32 s{sT}, s{sT}, s3")
    A(f"s_max_u32 s{sTmp}, s{sTmp}, s{sTmp + 1}")
    A(f"s_max_u32 s{sT}, s{sT}, s{sTmp}")
    A("s_waitcnt lgkmcnt(8)")
    A(f"v_readfirstlane_b32 s{sOvf}, v{vX + 6}")
    A(f"v_readfirstlane_b32 s{sMor}, v{vX + 7}")
    A("s_waitcnt lgkmcnt(0)")
    A(f"s_cmp_lg_u32 s{sOvf}, 0")
    A("s_cbranch_scc1 Lplace_checked")
    for i in range(8):
        A(f"v_add_lshl_u32 v{vKey + i}, v{vKey + i}, v{vRank + i}, 2")
        A(f"s_mov_b64 exec, {sr(sMask + 2 * i, 2)}")
        A(f"ds_write_b32 v{vKey + i}, v{vSoff + i} offset:{L_SO}")
        A(f"ds_write_b32 v{vKey + i}, v{vEoff + i} offset:{L_EO}")
        A("s_mov_b64 exec, -1")
    A("Lplaced:")
    A(f"""
    s_lshl_b32 s3, s{sW}, 8
    v_lshrrev_b32 v{vX + 6}, 1, v{vH16}
    v_add_u32 v{vP}, s3, v{vX + 6}
    v_and_b32 v{vX + 6}, 1, v{vTid}
    v_bfe_u32 v{vX + 7}, v{vTid}, 2, 1
    v_lshl_add_u32 v{vX + 6}, v{vX + 7}, 1, v{vX + 6}
    v_lshl_add_u32 v{vX + 6}, v{vX + 6}, 2, s3
    v_lshl_add_u32 v{vEp}, v{vUaddr}, 6, v{vX + 6}
    s_lshr_b32 s3, s{sT}, 1
    v_mov_b32 v{vErr}, s3
    s_lshr_b32 s{sQ1}, s{sT}, 2
    s_lshr_b32 s{sQ2}, s{sT}, 1
    s_add_u32 s{sQ3}, s{sQ1}, s{sQ2}
    s_mov_b64 {sr(sCur, 2)}, 0
    s_mov_b32 s{sTi}, 0
    """)
    for u in range(1, NU):
        A(f"v_mov_b32 v{vP + u}, v{vP}")
    A("s_waitcnt lgkmcnt(0)")
    A("s_barrier")
    A(f"s_cmp_eq_u32 s{sT}, 0")
    A("s_cbranch_scc1 Lmain_done")
    A("s_setprio 3")
    A("s_branch Lentry")

    A(".p2align 6")
    A("Ltile:")
    for k, sq in enumerate((sQ1, sQ2, sQ3)):
        A(f"s_cmp_gt_u32 s{sTi}, s{sq}")
        A(f"s_cbranch_scc0 Lprio_done")
        A(f"s_setprio {2 - k}")
    A("Lprio_done:")
    for j in range(4):
        A(f"v_mfma_f32_32x32x16_bf16 {vr(vD + 16 * j, 16)}, {vr(vSel, 4)}, {vr(vAT + 4 * j, 4)}, 0")
    A(f"s_waitcnt vmcnt({2 * NU})")
    for j in range(4):
        A(f"v_mfma_f32_32x32x16_bf16 {vr(vD + 16 * j, 16)}, {vr(vEA, 4)}, {vr(vWC + 4 * j, 4)}, {vr(vD + 16 * j, 16)}")
    A("Lentry:")
    A(f"""
    v_add_u32 v{vErr}, v{vQ}, v{vErr}
    ds_read_b32 v{vEo}, v{vEp} offset:{L_EO}
    ds_read_b64 {vr(vSo, 2)}, v{vP} offset:{L_SO}
    v_cmp_le_u32_e64 {sr(sNext, 2)}, s{sT}, v{vErr}
    s_cmp_lt_u32 s{sTi}, s{sT}
    s_cselect_b64 {sr(sNext, 2)}, {sr(sNext, 2)}, 1
    s_mov_b64 exec, {sr(sNext, 2)}
    v_subrev_u32 v{vErr}, s{sT}, v{vErr}
    v_add_u32 v{vEp}, 16, v{vEp}
    s_waitcnt lgkmcnt(1)
    v_add_u32 v{vEo}, v{vEo}, v{vH16}
    buffer_load_dwordx4 {vr(vEA, 4)}, v{vEo}, {sr(S_EA, 4)}, 0 offen {ea_pol}
    s_mov_b64 exec, -1
    """)
    for u in range(NU):
        bit = 8 * (u >> 1) + 2 * (u & 1) + 1
        so = vSo + 2 * (u & 1)
        La, Lb = vL + 8 * u, vL + 8 * u + 4
        a, b = vT, vT + 4
        num, den = vAcc + 8 * u, vAcc + 8 * u + 4
        if u + 1 < NU:
            A(f"ds_read_b64 {vr(vSo + 2 * ((u + 1) & 1), 2)}, v{vP + u + 1} offset:{L_SO + 2048 * (u + 1)}")
        A(f"s_bitcmp1_b32 s{sCur}, {bit}")
        A(f"s_cbranch_scc0 Lskip{u}")
        A(f"s_waitcnt vmcnt({2 * NU - 1})")
        for j in range(4):
            A(f"v_fma_mix_f32 v{a + j}, v{vD + 16 * j + 2 * u}, s{sNl}, v{La + j} op_sel_hi:[0,0,1]")
        for j in range(4):
            A(f"v_fma_mix_f32 v{b + j}, v{vD + 16 * j + 2 * u + 1}, s{sNl}, v{Lb + j} op_sel_hi:[0,0,1]")
        for j in range(8):
            A(f"v_exp_f32_e64 v{a + j}, v{a + j} clamp")
        for j in range(0, 8, 2):
            A(f"v_pk_add_f32 {vr(a + j, 2)}, {vr(a + j, 2)}, {sr(sC0, 2)}")
        for j in (0, 2):
            A(f"v_pk_mul_f32 {vr(La + j, 2)}, {vr(La + j, 2)}, {vr(b + j, 2)}")
        for j in (0, 2):
            A(f"v_pk_fma_f32 {vr(La + j, 2)}, {vr(Lb + j, 2)}, {vr(a + j, 2)}, {vr(La + j, 2)}")
        for j in (0, 2):
            A(f"v_pk_add_f32 {vr(Lb + j, 2)}, {vr(a + j, 2)}, {vr(b + j, 2)}")
        for j in (0, 2):
            A(f"v_pk_mul_f32 {vr(a + j, 2)}, {vr(a + j, 2)}, {vr(b + j, 2)}")
        for j in range(4):
            A(f"v_rcp_f32 v{a + j}, v{a + j}")
        for j in (0, 2):
            A(f"v_pk_fma_f32 {vr(num + j, 2)}, {vr(La + j, 2)}, {vr(a + j, 2)}, {vr(num + j, 2)}")
            A(f"v_pk_fma_f32 {vr(den + j, 2)}, {vr(Lb + j, 2)}, {vr(a + j, 2)}, {vr(den + j, 2)}")
        A(f"Lskip{u}:")
        A(f"s_bitcmp1_b32 s{sNext}, {bit}")
        A("s_cselect_b64 exec, -1, 1")
        A(f"s_cselect_b32 s{sInc}, 16, 0")
        A(f"s_waitcnt lgkmcnt({1 if u + 1 < NU else 0})")
        A(f"v_add_u32 v{so}, v{so}, v{vLaneOff}")
        A(f"v_add_u32 v{so + 1}, v{so + 1}, v{vLaneOff}")
        A(f"buffer_load_dwordx4 {vr(La, 4)}, v{so}, {sr(S_TAB, 4)}, 0 offen")
        A(f"buffer_load_dwordx4 {vr(Lb, 4)}, v{so + 1}, {sr(S_TAB, 4)}, 0 offen")
        A("s_mov_b64 exec, -1")
        A(f"v_add_u32 v{vP + u}, s{sInc}, v{vP + u}")
    A(f"s_mov_b64 {sr(sCur, 2)}, {sr(sNext, 2)}")
    A(f"s_add_u32 s{sTi}, s{sTi}, 1")
    A(f"s_cmp_le_u32 s{sTi}, s{sT}")
    A("s_cbranch_scc1 Ltile")
    A("Lmain_done:")
    A(f"s_or_b32 s3, s{sOvf}, s{sMor}")
    A("s_cbranch_scc1 Lslow")

    vU, vXr, vAo, vXo, vDum = vD, vD + 16, vD + 24, vD + 25, vD + 32
    A(f"""
    s_add_u32 s3, s{sN0}, s{sW}
    s_lshl_b32 s{sTmp}, s3, 9
    s_lshl_b32 s{sTmp + 1}, s3, 8
    v_lshl_add_u32 v{vAo}, v{vH16}, 8, v{vLaneOff}
    v_lshrrev_b32 v{vXo}, 1, v{vAo}
    s_mov_b32 s{sQ1}, s{sTmp + 1}
    """)
    for p in range(4):
        A(f"buffer_load_dwordx4 {vr(vU + 4 * p, 4)}, v{vAo}, {sr(S_AU, 4)}, s{sTmp} offen")
        A(f"buffer_load_dwordx2 {vr(vXr + 2 * p, 2)}, v{vXo}, {sr(S_X, 4)}, s{sTmp + 1} offen")
        if p < 3:
            A(f"s_add_u32 s{sTmp}, s{sTmp}, 8192")
            A(f"s_add_u32 s{sTmp + 1}, s{sTmp + 1}, 4096")
    eps = f32(1e-6 / c0)
    A(f"s_mov_b32 s{sC0}, {hex(eps)}")
    A(f"s_mov_b32 s{sC0 + 1}, {hex(eps)}")
    for p in range(4):
        a0 = vAcc + 16 * p
        a1 = a0 + 8 if p < 3 else vDum
        if p == 3:
            A(f"s_cmp_lg_u32 s{sW}, 0")
            A("s_cbranch_scc1 Lk2_done")
        for j in range(8):
            A(f"v_permlane32_swap_b32 v{a0 + j}, v{a1 + j}")
        if p == 3:
            A("s_mov_b32 exec_hi, 0")
        for j in range(0, 8, 2):
            A(f"v_pk_add_f32 {vr(a0 + j, 2)}, {vr(a0 + j, 2)}, {vr(a1 + j, 2)}")
        for j in (4, 6):
            A(f"v_pk_add_f32 {vr(a0 + j, 2)}, {vr(a0 + j, 2)}, {sr(sC0, 2)}")
        for j in range(4, 8):
            A(f"v_rcp_f32 v{a0 + j}, v{a0 + j}")
        A(f"s_waitcnt vmcnt({6 - p})")
        u0, x0 = vU + 4 * p, vXr + 2 * p
        for j in range(4):
            A(f"v_and_b32 v{u0 + j}, 0xffff0000, v{u0 + j}")
        for j in (0, 2):
            A(f"v_pk_fma_f32 {vr(a0 + j, 2)}, {vr(a0 + j, 2)}, {vr(a0 + 4 + j, 2)}, {vr(u0 + j, 2)}")
        A(f"v_lshlrev_b32 v{u0}, 16, v{x0}")
        A(f"v_and_b32 v{u0 + 1}, 0xffff0000, v{x0}")
        A(f"v_lshlrev_b32 v{u0 + 2}, 16, v{x0 + 1}")
        A(f"v_and_b32 v{u0 + 3}, 0xffff0000, v{x0 + 1}")
        for j in range(4):
            A(f"v_max_f32 v{a0 + j}, 0, v{a0 + j}")
        for j in (0, 2):
            A(f"v_pk_add_f32 {vr(a0 + j, 2)}, {vr(a0 + j, 2)}, {vr(u0 + j, 2)}")
        A(f"v_cvt_pk_bf16_f32 v{a0}, v{a0}, v{a0 + 1}")
        A(f"v_cvt_pk_bf16_f32 v{a0 + 1}, v{a0 + 2}, v{a0 + 3}")
        A(f"buffer_store_dwordx2 {vr(a0, 2)}, v{vXo}, {sr(S_OUT, 4)}, s{sQ1} offen")
        if p < 3:
            A(f"s_add_u32 s{sQ1}, s{sQ1}, 4096")
    A("Lk2_done:")
    A("s_endpgm")

    A("Lplace_checked:")
    for i in range(8):
        A(f"v_and_b32 v{vX + 6}, 63, v{vRec + i}")
        A(f"v_add_u32 v{vKey + i}, v{vKey + i}, v{vRank + i}")
        A(f"v_lshl_add_u32 v{vX + 6}, v{vX + 6}, 6, 64")
        A(f"v_cmp_lt_u32 vcc, v{vKey + i}, v{vX + 6}")
        A(f"v_lshlrev_b32 v{vKey + i}, 2, v{vKey + i}")
        A(f"s_and_b64 exec, vcc, {sr(sMask + 2 * i, 2)}")
        A(f"ds_write_b32 v{vKey + i}, v{vSoff + i} offset:{L_SO}")
        A(f"ds_write_b32 v{vKey + i}, v{vEoff + i} offset:{L_EO}")
        A(f"s_andn2_b64 {sr(sMask + 2 * i, 2)}, {sr(sMask + 2 * i, 2)}, vcc")
        A("s_mov_b64 exec, -1")
    A("s_branch Lplaced")
    A("Lslow:")
    A("s_waitcnt vmcnt(0)")
    A(f"v_mov_b32 v{vX + 5}, 0")
    A(f"ds_write_b32 v{vX + 5}, v{vX + 5} offset:{L_FLAG}")
    A(f"ds_write_b32 v{vX + 5}, v{vX + 5} offset:{L_FLAG + 4}")
    A(f"s_cmp_lg_u32 s{sOvf}, 0")
    A("s_cbranch_scc1 Lretry")
    A(f"s_add_u32 s{sW0}, s{sW0}, 32")
    batch_masks()
    A("Lretry:")
    rec_loads()
    A("s_branch Lround")
    return L_EO + 16384 + 256


def descriptor(name, vgpr, extra=""):
    return f""".amdhsa_kernel {name}
  .amdhsa_next_free_vgpr {vgpr}
  .amdhsa_next_free_sgpr 100
  .amdhsa_accum_offset {(vgpr + 3) // 4 * 4}
  .amdhsa_group_segment_fixed_size 0
  .amdhsa_kernarg_size 96
  .amdhsa_user_sgpr_count 2
  .amdhsa_user_sgpr_kernarg_segment_ptr 1
  .amdhsa_system_sgpr_workgroup_id_x 1
{extra}.end_amdhsa_kernel
"""


def generate(opt):
    A1, A2 = Asm(), Asm()
    gen_k1(A1, opt)
    lds2 = gen_k2(A2, opt)
    lds1 = 2 * 16 * 2432
    head = f"""; GatedGCN layer: prep_kernel builds the node tables and buckets the edges by destination;
; @launch kernel=prep_kernel grid=({NCH + NGEMM},1,1) block=(512,1,1) lds={lds1}
; @launch kernel={NAME}_kernel grid=(256,1,1) block=(512,1,1) lds={lds2}
.amdgcn_target "amdgcn-amd-amdhsa--gfx950"
.text
.globl prep_kernel
.p2align 8
.type prep_kernel,@function
"""
    mid = f""".globl {NAME}_kernel
.p2align 8
.type {NAME}_kernel,@function
"""
    tail = (".section .rodata,\"a\"\n.p2align 6\n" + descriptor("prep_kernel", 104, "  .amdhsa_fp16_overflow 1\n")
            + ".p2align 6\n" + descriptor(f"{NAME}_kernel", 248))
    return head + A1.text() + mid + A2.text() + tail


if __name__ == "__main__":
    out = sys.argv[1] if len(sys.argv) > 1 else f"cdna_kernels/{NAME}.s"
    opt = dict(a.split("=", 1) for a in sys.argv[2:])
    opt = {k: v.replace("+", " ") for k, v in opt.items()}
    open(out, "w").write(generate(opt))
```

```python
import math
import struct
import sys

NAME = "gather_scatter__edge_featured_mpnn_gatedgcn__graph"
N, E = 12500, 400000
NPB = 49
CH = 3136
NCH = 128
NGEMM = 196
TAB_OFF = 0
AU_OFF = 0x700000
REC_OFF = 0xE00000
OFF_OFF = 0x1000000
TAB_BYTES = N * 512
BIAS = 33.25


def f32(x):
    return struct.unpack("<I", struct.pack("<f", x))[0]


class Asm:
    def __init__(self):
        self.lines = []

    def __call__(self, s):
        for ln in s.strip("\n").split("\n"):
            ln = ln.strip()
            if not ln:
                continue
            self.lines.append(ln if ln.endswith(":") else "    " + ln)

    def text(self):
        return "\n".join(self.lines) + "\n"


def vr(a, n=1):
    return f"v{a}" if n == 1 else f"v[{a}:{a + n - 1}]"


def sr(a, n=1):
    return f"s{a}" if n == 1 else f"s[{a}:{a + n - 1}]"


def srd(A, d, base, nbytes, off=0):
    if off:
        A(f"s_add_u32 s{d}, s{base}, {hex(off)}")
        A(f"s_addc_u32 s{d + 1}, s{base + 1}, 0")
    else:
        A(f"s_mov_b32 s{d}, s{base}")
        A(f"s_mov_b32 s{d + 1}, s{base + 1}")
    A(f"s_mov_b32 s{d + 2}, {hex(nbytes)}")
    A(f"s_mov_b32 s{d + 3}, 0x20000")


P_X, P_EA, P_SRC, P_DST, P_WA, P_WB, P_WC, P_WU = 4, 6, 8, 10, 12, 14, 16, 18
P_WV, P_OUT, P_DBG, P_WS = 20, 22, 24, 26


def load_kernargs(A):
    A("s_load_dwordx16 s[4:19], s[0:1], 0")
    A("s_load_dwordx8 s[20:27], s[0:1], 64")


STAMP_OFF = 0x2000000


def stamp(A, opt, i):
    if opt.get("stamp"):
        A(f"{'s_memtime' if opt.get('cyc') else 's_memrealtime'} s[{100 if i == 0 else 2 + 2 * i}:{101 if i == 0 else 3 + 2 * i}]")


def stamp_flush(A, opt, n, base, vtid):
    if not opt.get("stamp"):
        return
    A("s_mov_b64 exec, -1")
    A("s_waitcnt vmcnt(0)")
    stamp(A, opt, n - 1)
    srd(A, 20, P_WS, 0x80000, STAMP_OFF + base)
    A(f"v_lshrrev_b32 v1, 6, v{vtid}")
    A("s_lshl_b32 s3, s2, 3")
    A("v_add_u32 v1, s3, v1")
    A(f"v_mul_u32_u24 v1, {8 * n}, v1")
    A("s_mov_b64 exec, 1")
    A("s_waitcnt lgkmcnt(0)")
    for i in range(n):
        r = 100 if i == 0 else 2 + 2 * i
        A(f"v_mov_b32 v2, s{r}")
        A(f"v_mov_b32 v3, s{r + 1}")
        A(f"buffer_store_dwordx2 v[2:3], v1, s[20:23], 0 offen offset:{8 * i}")
        A("s_nop 1")


def gen_k1(A, opt):
    st = opt.get("k1_store", "")
    ld = opt.get("k1_load", "")
    A("prep_kernel:")
    A(f"s_cmp_ge_u32 s2, {NCH + NGEMM}")
    A("s_cbranch_scc1 Lk1_exit")
    stamp(A, opt, 0)
    load_kernargs(A)
    A(f"s_cmp_ge_u32 s2, {NCH}")
    A("s_cbranch_scc1 Lk1_gemm")

    S_SRC, S_DST, S_REC, S_OFFS = 28, 32, 36, 40
    sB0, sB1, sLim, sMagic, sM49, sM0, sM1 = 44, 45, 46, 47, 48, 50, 52
    vOff, vD, vS, vE, vA, vR, vT, vOne = 1, 4, 12, 20, 28, 36, 44, 2
    L_CNT, L_BASE, L_SORT = 0, 1024, 2048
    A(f"s_mul_i32 s{sB0}, s2, {CH * 4}")
    A(f"s_add_u32 s{sB1}, s{sB0}, 8192")
    A(f"s_movk_i32 s{sLim}, {CH // 4}")
    A(f"s_cmp_eq_u32 s2, {NCH - 1}")
    A(f"s_cselect_b32 s{sLim}, {(E - (NCH - 1) * CH) // 4}, s{sLim}")
    A(f"v_lshlrev_b32 v{vOff}, 4, v0")
    A(f"v_cmp_gt_u32_e64 {sr(sM0, 2)}, s{sLim}, v0")
    A(f"v_add_u32 v3, 512, v0")
    A(f"v_cmp_gt_u32_e64 {sr(sM1, 2)}, s{sLim}, v3")
    A("s_waitcnt lgkmcnt(0)")
    srd(A, S_DST, P_DST, E * 4)
    srd(A, S_SRC, P_SRC, E * 4)
    A(f"buffer_load_dwordx4 {vr(vD, 4)}, v{vOff}, {sr(S_DST, 4)}, s{sB0} offen {ld}")
    A(f"buffer_load_dwordx4 {vr(vS, 4)}, v{vOff}, {sr(S_SRC, 4)}, s{sB0} offen {ld}")
    A(f"s_mov_b64 exec, {sr(sM1, 2)}")
    A("s_cbranch_execz Lp_nold1")
    A(f"buffer_load_dwordx4 {vr(vD + 4, 4)}, v{vOff}, {sr(S_DST, 4)}, s{sB1} offen {ld}")
    A(f"buffer_load_dwordx4 {vr(vS + 4, 4)}, v{vOff}, {sr(S_SRC, 4)}, s{sB1} offen {ld}")
    A("Lp_nold1:")
    A("s_mov_b64 exec, -1")
    srd(A, S_REC, P_WS, NCH * CH * 4, REC_OFF)
    srd(A, S_OFFS, P_WS, NCH * 1024, OFF_OFF)
    A(f"s_mov_b32 s{sMagic}, 85599")
    A(f"s_mov_b32 s{sM49}, {-NPB}")
    A(f"v_mov_b32 v{vOne}, 1")
    A(f"v_mov_b32 v{vT}, 0")
    A(f"v_lshlrev_b32 v{vT + 1}, 2, v0")
    A(f"ds_write_b32 v{vT + 1}, v{vT} offset:{L_CNT}")
    A(f"v_lshlrev_b32 v{vE}, 8, v0")
    for i in range(1, 8):
        A(f"v_add_u32 v{vE + i}, {(i & 3) * 64 + (i >> 2) * 512 * 256}, v{vE}")
    A("s_cmp_lg_u32 s2, 0")
    A("s_cbranch_scc1 Lp_nopad")
    srd(A, 56, P_WS, 512, TAB_OFF + TAB_BYTES)
    A(f"v_mov_b32 v{vT + 2}, 0x7c00")
    A(f"buffer_store_dword v{vT + 2}, v{vT + 1}, s[56:59], 0 offen")
    A("Lp_nopad:")
    A("s_waitcnt lgkmcnt(0)")
    A("s_barrier")
    A("s_waitcnt vmcnt(0)")
    for r in range(2):
        A(f"s_mov_b64 exec, {sr((sM0, sM1)[r], 2)}")
        A(f"s_cbranch_execz Lp_p1_{r}")
        for i in range(4 * r, 4 * r + 4):
            A(f"v_mul_u32_u24 v{vT}, s{sMagic}, v{vD + i}")
            A(f"v_lshl_or_b32 v{vS + i}, v{vS + i}, 18, v{vE + i}")
            A(f"v_lshrrev_b32 v{vT}, 22, v{vT}")
            A(f"v_add_u32 v{vS + i}, v{vS + i}, v{vD + i}")
            A(f"v_lshlrev_b32 v{vA + i}, 2, v{vT}")
            A(f"v_mad_i32_i24 v{vS + i}, v{vT}, s{sM49}, v{vS + i}")
            A(f"ds_add_rtn_u32 v{vR + i}, v{vA + i}, v{vOne} offset:{L_CNT}")
        A(f"Lp_p1_{r}:")
    A("s_mov_b64 exec, -1")
    A("s_waitcnt lgkmcnt(0)")
    A("s_barrier")
    A("v_cmp_gt_u32 vcc, 64, v0")
    A("s_cbranch_vccz Lp_noscan")
    c, b = vD, vD + 4
    A(f"ds_read_b128 {vr(c, 4)}, v{vOff} offset:{L_CNT}")
    A("s_waitcnt lgkmcnt(0)")
    A(f"v_add_u32 v{b + 2}, v{c}, v{c + 1}")
    A(f"v_add_u32 v{b + 3}, v{b + 2}, v{c + 2}")
    A(f"v_add_u32 v{vT}, v{b + 3}, v{c + 3}")
    A(f"v_mov_b32 v{vT + 1}, v{vT}")
    for d in ("row_shr:1 row_mask:0xf", "row_shr:2 row_mask:0xf", "row_shr:4 row_mask:0xf",
              "row_shr:8 row_mask:0xf", "row_bcast:15 row_mask:0xa", "row_bcast:31 row_mask:0xc"):
        A("s_nop 1")
        A(f"v_add_u32_dpp v{vT + 1}, v{vT + 1}, v{vT + 1} {d} bank_mask:0xf")
    A(f"v_sub_u32 v{b}, v{vT + 1}, v{vT}")
    A(f"v_add_u32 v{b + 1}, v{b}, v{c}")
    A(f"v_add_u32 v{b + 2}, v{b}, v{b + 2}")
    A(f"v_add_u32 v{b + 3}, v{b}, v{b + 3}")
    A(f"ds_write_b128 v{vOff}, {vr(b, 4)} offset:{L_BASE}")
    for i in range(4):
        A(f"v_lshl_or_b32 v{c + i}, v{c + i}, 16, v{b + i}")
    A("s_lshl_b32 s3, s2, 10")
    A(f"buffer_store_dwordx4 {vr(c, 4)}, v{vOff}, {sr(S_OFFS, 4)}, s3 offen {st}")
    A("s_waitcnt lgkmcnt(0)")
    A("Lp_noscan:")
    A("s_barrier")
    for r in range(2):
        A(f"s_mov_b64 exec, {sr((sM0, sM1)[r], 2)}")
        A(f"s_cbranch_execz Lp_p2_{r}")
        for i in range(4 * r, 4 * r + 4):
            A(f"ds_read_b32 v{vA + i}, v{vA + i} offset:{L_BASE}")
        for i in range(4 * r, 4 * r + 4):
            A(f"s_waitcnt lgkmcnt({3})")
            A(f"v_add_lshl_u32 v{vA + i}, v{vA + i}, v{vR + i}, 2")
            A(f"ds_write_b32 v{vA + i}, v{vS + i} offset:{L_SORT}")
        A(f"Lp_p2_{r}:")
    A("s_mov_b64 exec, -1")
    A("s_waitcnt lgkmcnt(0)")
    A("s_barrier")
    for r in range(2):
        A(f"s_mov_b64 exec, {sr((sM0, sM1)[r], 2)}")
        A(f"s_cbranch_execz Lk1_done")
        A(f"ds_read_b128 {vr(vE + 4 * r, 4)}, v{vOff} offset:{L_SORT + 8192 * r}")
        A("s_waitcnt lgkmcnt(0)")
        A(f"buffer_store_dwordx4 {vr(vE + 4 * r, 4)}, v{vOff}, {sr(S_REC, 4)}, s{(sB0, sB1)[r]} offen {st}")
    A("s_branch Lk1_done")

    A("Lk1_gemm:")
    S_X, S_W, S_T = 28, 32, 48
    sRt, sHalf, sW0, sW1, sX0, sX1, sO0, sO1, sNl = 56, 57, 58, 59, 60, 61, 62, 63, 64
    vWo, vXo, vLw, vTr0, vTr1, vSo = 1, 2, 3, 4, 5, 6
    vW, vX, vAcc, vF = 8, 40, 72, 8
    PAIR = 16 * 2432
    A(f"s_sub_u32 s3, s2, {NCH}")
    A(f"s_lshr_b32 s{sRt}, s3, 1")
    A(f"s_and_b32 s{sHalf}, s3, 1")
    A(f"s_lshl_b32 s{sW0}, s{sHalf}, 7")
    A(f"s_add_u32 s{sW1}, s{sW0}, 16384")
    A(f"s_lshl_b32 s{sX0}, s{sRt}, 15")
    A(f"s_add_u32 s{sX1}, s{sX0}, 4096")
    A(f"""
    v_lshrrev_b32 v10, 3, v0
    v_and_b32 v11, 7, v0
    v_lshlrev_b32 v11, 4, v11
    v_lshl_add_u32 v{vWo}, v10, 8, v11
    v_lshrrev_b32 v12, 6, v0
    v_and_b32 v10, 7, v10
    v_mul_u32_u24 v13, 2432, v12
    v_mul_u32_u24 v10, 288, v10
    v_add3_u32 v{vLw}, v13, v10, v11
    v_lshrrev_b32 v13, 1, v12
    v_and_b32 v14, 15, v0
    v_lshl_add_u32 v13, v13, 5, v14
    v_bfe_u32 v15, v0, 4, 2
    v_lshlrev_b32 v16, 4, v15
    v_lshl_add_u32 v{vXo}, v13, 8, v16
    v_and_b32 v12, 1, v12
    v_lshl_add_u32 v16, v12, 7, v16
    v_lshl_add_u32 v{vSo}, v13, 9, v16
    v_mul_u32_u24 v15, 2432, v15
    v_lshrrev_b32 v16, 2, v14
    v_mul_u32_u24 v16, 288, v16
    v_and_b32 v14, 3, v14
    v_lshlrev_b32 v14, 3, v14
    v_lshl_add_u32 v14, v12, 6, v14
    v_add3_u32 v{vTr0}, v15, v16, v14
    v_add_u32 v{vTr1}, {PAIR}, v{vTr0}
    """)
    A("s_waitcnt lgkmcnt(0)")
    srd(A, S_X, P_X, N * 256)
    for m, p in enumerate((P_WB, P_WV, P_WA, P_WU)):
        srd(A, S_W + 4 * m, p, 32768)
    for m in range(2):
        for z in range(2):
            A(f"buffer_load_dwordx4 {vr(vW + 8 * m + 4 * z, 4)}, v{vWo}, {sr(S_W + 4 * m, 4)}, s{(sW0, sW1)[z]} offen")
    for nb in range(2):
        for s in range(4):
            A(f"buffer_load_dwordx4 {vr(vX + 16 * nb + 4 * s, 4)}, v{vXo}, {sr(S_X, 4)}, s{(sX0, sX1)[nb]} offen offset:{64 * s}")
    for m in range(2, 4):
        for z in range(2):
            A(f"buffer_load_dwordx4 {vr(vW + 8 * m + 4 * z, 4)}, v{vWo}, {sr(S_W + 4 * m, 4)}, s{(sW0, sW1)[z]} offen")
    srd(A, S_T, P_WS, TAB_BYTES, TAB_OFF)
    srd(A, S_T + 4, P_WS, TAB_BYTES, AU_OFF)
    A(f"s_lshl_b32 s{sO0}, s{sRt}, 16")
    A(f"s_lshl_b32 s3, s{sHalf}, 8")
    A(f"s_add_u32 s{sO0}, s{sO0}, s3")
    A(f"s_add_u32 s{sO1}, s{sO0}, 8192")
    A(f"s_mov_b32 s{sNl}, {hex(f32(-math.log2(math.e)))}")
    for m in range(4):
        for z in range(2):
            k = 2 * m + z
            A(f"s_waitcnt vmcnt({15 - k if m < 2 else 7 - k})")
            A(f"ds_write_b128 v{vLw}, {vr(vW + 8 * m + 4 * z, 4)} offset:{(m >> 1) * PAIR + z * 8 * 2432 + (m & 1) * 128}")
    A("s_waitcnt lgkmcnt(0)")
    A("s_barrier")

    def frag_reads(pair, s, buf):
        for m in range(2):
            for be in range(2):
                for z in range(2):
                    A(f"ds_read_b64_tr_b16 {vr(vF + 16 * buf + 8 * m + 4 * be + 2 * z, 2)}, v{(vTr0, vTr1)[pair]} "
                      f"offset:{s * 4 * 2432 + z * 4 * 288 + m * 128 + be * 32}")

    steps = [(p, s) for p in range(2) for s in range(4)]
    frag_reads(0, 0, 0)
    for idx, (p, s) in enumerate(steps):
        buf = idx & 1
        if idx + 1 < len(steps):
            frag_reads(*steps[idx + 1], buf ^ 1)
            A("s_waitcnt lgkmcnt(8)")
        else:
            A("s_waitcnt lgkmcnt(0)")
        for m in range(2):
            for be in range(2):
                for nb in range(2):
                    d = vAcc + 16 * m + 8 * nb + 4 * be
                    cc = "0" if s == 0 else vr(d, 4)
                    A(f"v_mfma_f32_16x16x32_bf16 {vr(d, 4)}, {vr(vF + 16 * buf + 8 * m + 4 * be, 4)}, "
                      f"{vr(vX + 16 * nb + 4 * s, 4)}, {cc}")
        if s == 3:
            A("s_nop 7")
            for nb in range(2):
                for be in range(2):
                    lo = vAcc + 8 * nb + 4 * be
                    hi = lo + 16
                    for i in range(4):
                        if p == 0:
                            A(f"v_fma_mixlo_f16 v{hi + i}, v{lo + i}, s{sNl}, 0")
                        else:
                            A(f"v_cvt_pk_bf16_f32 v{hi + i}, v{lo + i}, v{hi + i}")
                    A(f"buffer_store_dwordx4 {vr(hi, 4)}, v{vSo}, {sr(S_T + 4 * p, 4)}, s{(sO0, sO1)[nb]} offen offset:{64 * be} {st}")
            A("s_nop 1")
    A("Lk1_done:")
    stamp_flush(A, opt, 2, 0, 0)
    A("Lk1_exit:")
    A("s_endpgm")


def gen_k2(A, opt):
    ea_pol = opt.get("ea_load", "")
    S_TAB, S_EA, S_REC, S_OFFS, S_AU, S_WC, S_X, S_OUT = 28, 32, 36, 40, 44, 48, 52, 56
    sW, sBk, sN0, sW0, sT, sTi, sInc, sNl = 60, 61, 62, 63, 64, 65, 66, 67
    sC0, sCur, sNext, sMore, sTmp = 68, 70, 72, 74, 76
    sMask = 78
    sOvf, sMor, sQ1, sQ2, sQ3 = 94, 95, 96, 97, 98
    L_CNT, L_BASE, L_FLAG, L_SO = 0, 2048, 4096, 4608
    L_EO = L_SO + 16384 + 256
    NU = 7
    vAcc, vL, vD, vWC, vAT, vSel, vEA, vT = 0, 56, 112, 176, 192, 208, 212, 216
    vP, vSo = 224, 232
    vLaneOff, vEp, vErr, vQ, vEo, vH16, vOffs, vTid, vCaddr, vUaddr = 231, 236, 237, 238, 239, 240, 241, 242, 243, 244
    vRec, vKey, vRank, vSoff, vEoff = vD, vD + 8, vD + 16, vD + 24, vD + 32
    vX = vD + 40
    vRaw = vL

    A(f"{NAME}_kernel:")
    A("s_cmp_ge_u32 s2, 256")
    A("s_cbranch_scc1 Lk2_exit")
    stamp(A, opt, 0)
    load_kernargs(A)
    A(f"""
    s_and_b32 s3, s2, 7
    s_lshl_b32 s3, s3, 5
    s_lshr_b32 s{sBk}, s2, 3
    s_add_u32 s{sBk}, s{sBk}, s3
    s_mul_i32 s{sN0}, s{sBk}, {NPB}
    v_mov_b32 v{vTid}, v0
    v_lshrrev_b32 v{vX}, 6, v0
    v_lshrrev_b32 v{vX + 1}, 2, v0
    v_readfirstlane_b32 s{sW}, v{vX}
    v_lshlrev_b32 v{vX + 1}, 10, v{vX + 1}
    v_and_b32 v{vX + 2}, 31, v0
    v_bfe_u32 v{vX + 3}, v0, 5, 1
    v_lshlrev_b32 v{vLaneOff}, 4, v{vX + 2}
    v_lshlrev_b32 v{vH16}, 4, v{vX + 3}
    v_lshlrev_b32 v{vX + 4}, 3, v{vX + 2}
    v_lshl_add_u32 v{vX + 4}, v{vX + 3}, 11, v{vX + 4}
    v_lshl_add_u32 v{vX + 5}, v{vX + 3}, 14, v{vLaneOff}
    s_lshl_b32 s3, s{sBk}, 2
    s_waitcnt lgkmcnt(0)
    """)
    srd(A, S_OFFS, P_WS, NCH * 1024, OFF_OFF)
    A(f"buffer_load_dword v{vOffs}, v{vX + 1}, {sr(S_OFFS, 4)}, s3 offen")
    srd(A, S_WC, P_WC, 4096)
    srd(A, S_AU, P_WS, TAB_BYTES, AU_OFF)
    for i in range(8):
        A(f"buffer_load_dwordx2 {vr(vRaw + 2 * i, 2)}, v{vX + 4}, {sr(S_WC, 4)}, 0 offen offset:{256 * i}")
    A(f"s_add_u32 s3, s{sN0}, s{sW}")
    A("s_lshl_b32 s3, s3, 9")
    for i in range(4):
        A(f"buffer_load_dwordx4 {vr(vRaw + 16 + 4 * i, 4)}, v{vX + 5}, {sr(S_AU, 4)}, s3 offen")
        if i < 3:
            A("s_add_u32 s3, s3, 4096")
    srd(A, S_REC, P_WS, NCH * CH * 4, REC_OFF)
    srd(A, S_TAB, P_WS, 0 if opt.get("notab") else TAB_BYTES + 512, TAB_OFF)
    srd(A, S_EA, P_EA, 0 if opt.get("noea") else E * 32)
    srd(A, S_X, P_X, N * 256)
    srd(A, S_OUT, P_OUT, N * 256)
    c0 = math.exp(-BIAS)
    A(f"s_mov_b32 s{sNl}, {hex(f32(-math.log2(math.e)))}")
    A(f"s_mov_b32 s{sC0}, {hex(f32(c0))}")
    A(f"s_mov_b32 s{sC0 + 1}, {hex(f32(c0))}")
    A(f"s_mov_b32 s{sW0}, 0")
    A(f"""
    v_mov_b32 v{vX + 6}, 0
    v_lshlrev_b32 v{vX + 7}, 2, v{vTid}
    ds_write_b32 v{vX + 7}, v{vX + 6} offset:{L_CNT}
    ds_write_b32 v{vX + 6}, v{vX + 6} offset:{L_FLAG}
    ds_write_b32 v{vX + 6}, v{vX + 6} offset:{L_FLAG + 4}
    """)
    for i in range(0, 8 * NU, 2):
        A(f"v_mov_b64 {vr(vAcc + i, 2)}, 0")
    A(f"""
    v_bfe_u32 v{vX + 8}, v{vTid}, 3, 3
    v_and_b32 v{vX + 9}, 7, v{vTid}
    v_lshlrev_b32 v{vX + 9}, 2, v{vX + 9}
    v_lshl_add_u32 v{vX + 9}, v{vX + 8}, 8, v{vX + 9}
    v_lshl_add_u32 v{vCaddr}, v{vX}, 5, v{vX + 9}
    """)
    A(f"""
    v_lshrrev_b32 v{vX + 8}, 3, v{vX + 2}
    v_bfe_u32 v{vX + 9}, v{vX + 2}, 1, 1
    v_lshl_add_u32 v{vX + 8}, v{vX + 8}, 1, v{vX + 9}
    v_lshlrev_b32 v{vUaddr}, 5, v{vX + 8}
    v_lshlrev_b32 v{vX + 9}, 2, v{vX + 3}
    v_sub_u32 v{vX + 9}, v{vX + 8}, v{vX + 9}
    v_mov_b32 v{vX + 10}, 0x3f80
    """)
    for i in range(4):
        A(f"v_cmp_eq_u32 vcc, {i}, v{vX + 9}")
        A("s_nop 1")
        A(f"v_cndmask_b32 v{vSel + i}, 0, v{vX + 10}, vcc")
    A(f"v_cmp_eq_u32 vcc, 1, v{vX + 3}")
    A("s_nop 1")
    A(f"v_cndmask_b32 v{vSel + 3}, v{vSel + 3}, v{vX + 10}, vcc")

    def batch_masks():
        A(f"""
        v_lshrrev_b32 v{vX}, 16, v{vOffs}
        v_and_b32 v{vX + 1}, 3, v{vTid}
        v_subrev_u32 v{vX}, s{sW0}, v{vX}
        v_lshlrev_b32 v{vX + 1}, 2, v{vX + 1}
        v_cmp_lt_i32_e64 {sr(sMore, 2)}, 32, v{vX}
        v_sub_u32 v{vX}, v{vX}, v{vX + 1}
        """)
        for i in range(8):
            A(f"v_cmp_lt_i32_e64 {sr(sMask + 2 * i, 2)}, {(i & 3) + 16 * (i >> 2)}, v{vX}")

    def rec_loads():
        A(f"""
        v_lshrrev_b32 v{vX + 2}, 2, v{vTid}
        v_and_b32 v{vX + 1}, 3, v{vTid}
        v_mul_u32_u24 v{vX + 2}, {CH}, v{vX + 2}
        v_and_b32 v{vX + 3}, 0xffff, v{vOffs}
        v_lshl_add_u32 v{vX + 1}, v{vX + 1}, 2, s{sW0}
        v_add3_u32 v{vX + 3}, v{vX + 3}, v{vX + 2}, v{vX + 1}
        v_lshlrev_b32 v{vX + 3}, 2, v{vX + 3}
        buffer_load_dwordx4 {vr(vRec, 4)}, v{vX + 3}, {sr(S_REC, 4)}, 0 offen
        buffer_load_dwordx4 {vr(vRec + 4, 4)}, v{vX + 3}, {sr(S_REC, 4)}, 0 offen offset:64
        v_lshlrev_b32 v{vX + 2}, 5, v{vX + 2}
        """)

    A("s_waitcnt vmcnt(12)")
    stamp(A, opt, 1)
    rec_loads()
    batch_masks()
    A("s_mov_b32 s3, 0x05040100")
    A(f"s_mov_b32 s{sTmp}, 0x07060302")
    A("s_waitcnt vmcnt(6)")
    for j in range(4):
        for i in range(4):
            A(f"v_perm_b32 v{vWC + 4 * j + i}, v{vRaw + 2 * (2 * i + 1) + (j >> 1)}, v{vRaw + 2 * (2 * i) + (j >> 1)}, "
              f"s{(3, sTmp)[j & 1]}")
    A("s_waitcnt vmcnt(2)")
    bias_bits = f32(BIAS) >> 16
    A(f"v_mov_b32 v{vX + 4}, {hex(bias_bits)}")
    A(f"v_cmp_lt_u32 vcc, 0, v{vH16}")
    for j in range(4):
        for i in range(3):
            A(f"v_mov_b32 v{vAT + 4 * j + i}, v{vRaw + 16 + 4 * i + j}")
        A(f"v_cndmask_b32 v{vAT + 4 * j + 3}, v{vRaw + 16 + 12 + j}, v{vX + 4}, vcc")

    A("Lround:")
    A(f"v_mov_b32 v{vX + 4}, 1")
    A(f"v_mov_b32 v{vX + 5}, 0")
    A("s_waitcnt lgkmcnt(0)")
    A("s_barrier")
    A(f"s_mov_b64 exec, {sr(sMore, 2)}")
    A(f"ds_write_b32 v{vX + 5}, v{vX + 4} offset:{L_FLAG + 4}")
    A("s_mov_b64 exec, -1")
    A("s_waitcnt vmcnt(0)")
    stamp(A, opt, 2)
    for i in range(8):
        A(f"v_alignbit_b32 v{vKey + i}, v{vRec + i}, v{vRec + i}, 27")
        A(f"v_and_b32 v{vKey + i}, 0x7fc, v{vKey + i}")
        A(f"s_mov_b64 exec, {sr(sMask + 2 * i, 2)}")
        A(f"ds_add_rtn_u32 v{vRank + i}, v{vKey + i}, v{vX + 4} offset:{L_CNT}")
        A("s_mov_b64 exec, -1")
    for i in range(8):
        A(f"v_lshrrev_b32 v{vSoff + i}, 18, v{vRec + i}")
        A(f"v_bfe_u32 v{vEoff + i}, v{vRec + i}, 6, 12")
        if opt.get("smalltab"):
            A(f"v_and_b32 v{vSoff + i}, {opt['smalltab']}, v{vSoff + i}")
        A(f"v_lshlrev_b32 v{vSoff + i}, 9, v{vSoff + i}")
        A(f"v_lshl_add_u32 v{vEoff + i}, v{vEoff + i}, 5, v{vX + 2}")
    A("s_waitcnt lgkmcnt(0)")
    A("s_barrier")
    c, inc, deg, q, t0, t1 = vX + 6, vX + 7, vX + 8, vX + 9, vX + 10, vX + 11
    A(f"ds_read_b32 v{c}, v{vCaddr} offset:{L_CNT}")
    A(f"v_lshrrev_b32 v{t0}, 5, v{vCaddr}")
    A(f"v_lshlrev_b32 v{t0}, 6, v{t0}")
    A("s_waitcnt lgkmcnt(0)")
    A(f"ds_write_b32 v{vCaddr}, v{vX + 5} offset:{L_CNT}")
    A(f"v_mov_b32 v{inc}, v{c}")
    for d in (1, 2, 4, 8):
        A("s_nop 1")
        A(f"v_add_u32_dpp v{inc}, v{inc}, v{inc} row_shr:{d} row_mask:0xf bank_mask:0xf")
    A(f"v_mov_b32 v{t1}, 0")
    A("s_nop 0")
    A(f"v_mov_b32_dpp v{deg}, v{inc} row_newbcast:7 row_mask:0xf bank_mask:0x3")
    A(f"v_mov_b32_dpp v{t1}, v{inc} row_newbcast:7 row_mask:0xf bank_mask:0xc")
    A(f"v_mov_b32_dpp v{deg}, v{inc} row_newbcast:15 row_mask:0xf bank_mask:0xc")
    A(f"v_sub_u32 v{inc}, v{inc}, v{t1}")
    A(f"v_sub_u32 v{deg}, v{deg}, v{t1}")
    A(f"v_sub_u32 v{inc}, v{inc}, v{c}")
    A(f"v_add_u32 v{inc}, v{inc}, v{t0}")
    A(f"ds_write_b32 v{vCaddr}, v{inc} offset:{L_BASE}")
    A(f"v_cmp_lt_u32 vcc, 64, v{deg}")
    A(f"v_min_u32 v{deg}, 64, v{deg}")
    A(f"v_add_u32 v{q}, 3, v{deg}")
    A(f"v_lshrrev_b32 v{q}, 2, v{q}")
    A("s_mov_b64 exec, vcc")
    A(f"ds_write_b32 v{vX + 5}, v{vX + 4} offset:{L_FLAG}")
    A("s_mov_b64 exec, -1")
    A(f"ds_bpermute_b32 v{vQ}, v{vUaddr}, v{q}")
    A(f"v_and_b32 v{c}, 7, v{vTid}")
    A(f"v_add_u32 v{c}, v{c}, v{deg}")
    A(f"v_lshlrev_b32 v{t1}, 2, v{q}")
    A(f"v_cmp_lt_u32 vcc, v{c}, v{t1}")
    A(f"v_add_lshl_u32 v{c}, v{c}, v{t0}, 2")
    A(f"v_mov_b32 v{t0}, {TAB_BYTES}")
    A(f"v_mov_b32 v{t1}, 0x40000000")
    A("s_mov_b64 exec, vcc")
    A(f"ds_write_b32 v{c}, v{t0} offset:{L_SO}")
    A(f"ds_write_b32 v{c}, v{t1} offset:{L_EO}")
    A("s_mov_b64 exec, -1")
    A(f"v_max_u32_dpp v{q}, v{q}, v{q} row_ror:8 row_mask:0xf bank_mask:0xf")
    A("s_nop 0")
    A(f"v_readlane_b32 s{sT}, v{q}, 0")
    A(f"v_readlane_b32 s3, v{q}, 16")
    A(f"v_readlane_b32 s{sTmp}, v{q}, 32")
    A(f"v_readlane_b32 s{sTmp + 1}, v{q}, 48")
    A("s_waitcnt lgkmcnt(0)")
    A("s_barrier")
    A(f"ds_read_b64 {vr(vX + 6, 2)}, v{vX + 5} offset:{L_FLAG}")
    for i in range(8):
        A(f"ds_read_b32 v{vKey + i}, v{vKey + i} offset:{L_BASE}")
    A(f"s_max_u32 s{sT}, s{sT}, s3")
    A(f"s_max_u32 s{sTmp}, s{sTmp}, s{sTmp + 1}")
    A(f"s_max_u32 s{sT}, s{sT}, s{sTmp}")
    A("s_waitcnt lgkmcnt(8)")
    A(f"v_readfirstlane_b32 s{sOvf}, v{vX + 6}")
    A(f"v_readfirstlane_b32 s{sMor}, v{vX + 7}")
    A("s_waitcnt lgkmcnt(0)")
    A(f"s_cmp_lg_u32 s{sOvf}, 0")
    A("s_cbranch_scc1 Lplace_checked")
    for i in range(8):
        A(f"v_add_lshl_u32 v{vKey + i}, v{vKey + i}, v{vRank + i}, 2")
        A(f"s_mov_b64 exec, {sr(sMask + 2 * i, 2)}")
        A(f"ds_write_b32 v{vKey + i}, v{vSoff + i} offset:{L_SO}")
        A(f"ds_write_b32 v{vKey + i}, v{vEoff + i} offset:{L_EO}")
        A("s_mov_b64 exec, -1")
    A("Lplaced:")
    A(f"""
    s_lshl_b32 s3, s{sW}, 8
    v_lshrrev_b32 v{vX + 6}, 1, v{vH16}
    v_add_u32 v{vP}, s3, v{vX + 6}
    v_and_b32 v{vX + 6}, 1, v{vTid}
    v_bfe_u32 v{vX + 7}, v{vTid}, 2, 1
    v_lshl_add_u32 v{vX + 6}, v{vX + 7}, 1, v{vX + 6}
    v_lshl_add_u32 v{vX + 6}, v{vX + 6}, 2, s3
    v_lshl_add_u32 v{vEp}, v{vUaddr}, 6, v{vX + 6}
    s_lshr_b32 s3, s{sT}, 1
    v_mov_b32 v{vErr}, s3
    s_lshr_b32 s{sQ1}, s{sT}, 2
    s_lshr_b32 s{sQ2}, s{sT}, 1
    s_add_u32 s{sQ3}, s{sQ1}, s{sQ2}
    s_mov_b64 {sr(sCur, 2)}, 0
    s_mov_b32 s{sTi}, 0
    """)
    for u in range(1, NU):
        A(f"v_mov_b32 v{vP + u}, v{vP}")
    A("s_waitcnt lgkmcnt(0)")
    A("s_barrier")
    stamp(A, opt, 3)
    A(f"s_cmp_eq_u32 s{sT}, 0")
    A("s_cbranch_scc1 Lmain_done")
    A("s_setprio 3")
    A("s_branch Lentry")

    A(".p2align 6")
    A("Ltile:")
    for k, sq in enumerate((sQ1, sQ2, sQ3)):
        A(f"s_cmp_gt_u32 s{sTi}, s{sq}")
        A(f"s_cbranch_scc0 Lprio_done")
        A(f"s_setprio {2 - k}" if not opt.get("noprio") else "s_nop 0")
    A("Lprio_done:")
    for j in range(4 if int(opt.get("nomfma", 0)) < 1 else 0):
        A(f"v_mfma_f32_32x32x16_bf16 {vr(vD + 16 * j, 16)}, {vr(vSel, 4)}, {vr(vAT + 4 * j, 4)}, 0")
    A(f"s_waitcnt vmcnt({2 * NU})")
    if opt.get("stamp"):
        A(f"s_cmp_lg_u32 s{sTi}, 1")
        A("s_cbranch_scc1 Lst4")
        stamp(A, opt, 4)
        A("Lst4:")
        A(f"s_cmp_lg_u32 s{sTi}, s{sQ2}")
        A("s_cbranch_scc1 Lst5")
        stamp(A, opt, 5)
        A("Lst5:")
    for j in range(4 if int(opt.get("nomfma", 0)) < 2 else 0):
        A(f"v_mfma_f32_32x32x16_bf16 {vr(vD + 16 * j, 16)}, {vr(vEA, 4)}, {vr(vWC + 4 * j, 4)}, {vr(vD + 16 * j, 16) if not opt.get('nomfma') else 0}")
    A("Lentry:")
    A(f"""
    v_add_u32 v{vErr}, v{vQ}, v{vErr}
    ds_read_b32 v{vEo}, v{vEp} offset:{L_EO}
    ds_read_b64 {vr(vSo, 2)}, v{vP} offset:{L_SO}
    v_cmp_le_u32_e64 {sr(sNext, 2)}, s{sT}, v{vErr}
    s_cmp_lt_u32 s{sTi}, s{sT}
    s_cselect_b64 {sr(sNext, 2)}, {sr(sNext, 2)}, 1
    s_mov_b64 exec, {sr(sNext, 2)}
    v_subrev_u32 v{vErr}, s{sT}, v{vErr}
    v_add_u32 v{vEp}, 16, v{vEp}
    s_waitcnt lgkmcnt(1)
    v_add_u32 v{vEo}, v{vEo}, v{vH16}
    buffer_load_dwordx4 {vr(vEA, 4)}, v{vEo}, {sr(S_EA, 4)}, 0 offen {ea_pol}
    s_mov_b64 exec, -1
    """)
    for u in range(NU):
        bit = 8 * (u >> 1) + 2 * (u & 1) + 1
        so = vSo + 2 * (u & 1)
        La, Lb = vL + 8 * u, vL + 8 * u + 4
        a, b = vT, vT + 4
        num, den = vAcc + 8 * u, vAcc + 8 * u + 4
        if u + 1 < NU:
            A(f"ds_read_b64 {vr(vSo + 2 * ((u + 1) & 1), 2)}, v{vP + u + 1} offset:{L_SO + 2048 * (u + 1)}")
        A(f"s_bitcmp1_b32 s{sCur}, {bit}")
        A(f"s_cbranch_scc0 Lskip{u}")
        A(f"s_waitcnt vmcnt({2 * NU - 1})")
        for j in range(4):
            A(f"v_fma_mix_f32 v{a + j}, v{vD + 16 * j + 2 * u}, s{sNl}, v{La + j} op_sel_hi:[0,0,1]")
        for j in range(4):
            A(f"v_fma_mix_f32 v{b + j}, v{vD + 16 * j + 2 * u + 1}, s{sNl}, v{Lb + j} op_sel_hi:[0,0,1]")
        for j in range(8):
            A(f"v_exp_f32_e64 v{a + j}, v{a + j} clamp")
        for j in range(0, 8, 2):
            A(f"v_pk_add_f32 {vr(a + j, 2)}, {vr(a + j, 2)}, {sr(sC0, 2)}")
        for j in (0, 2):
            A(f"v_pk_mul_f32 {vr(La + j, 2)}, {vr(La + j, 2)}, {vr(b + j, 2)}")
        for j in (0, 2):
            A(f"v_pk_fma_f32 {vr(La + j, 2)}, {vr(Lb + j, 2)}, {vr(a + j, 2)}, {vr(La + j, 2)}")
        for j in (0, 2):
            A(f"v_pk_add_f32 {vr(Lb + j, 2)}, {vr(a + j, 2)}, {vr(b + j, 2)}")
        for j in (0, 2):
            A(f"v_pk_mul_f32 {vr(a + j, 2)}, {vr(a + j, 2)}, {vr(b + j, 2)}")
        for j in range(4):
            A(f"v_rcp_f32 v{a + j}, v{a + j}")
        for j in (0, 2):
            A(f"v_pk_fma_f32 {vr(num + j, 2)}, {vr(La + j, 2)}, {vr(a + j, 2)}, {vr(num + j, 2)}")
            A(f"v_pk_fma_f32 {vr(den + j, 2)}, {vr(Lb + j, 2)}, {vr(a + j, 2)}, {vr(den + j, 2)}")
        A(f"Lskip{u}:")
        A(f"s_bitcmp1_b32 s{sNext}, {bit}")
        A("s_cselect_b64 exec, -1, 1")
        A(f"s_cselect_b32 s{sInc}, 16, 0")
        A(f"s_waitcnt lgkmcnt({1 if u + 1 < NU else 0})")
        A(f"v_add_u32 v{so}, v{so}, v{vLaneOff}")
        A(f"v_add_u32 v{so + 1}, v{so + 1}, v{vLaneOff}")
        if not opt.get("noload"):
            A(f"buffer_load_dwordx4 {vr(La, 4)}, v{so}, {sr(S_TAB, 4)}, 0 offen")
            A(f"buffer_load_dwordx4 {vr(Lb, 4)}, v{so + 1}, {sr(S_TAB, 4)}, 0 offen")
        A("s_mov_b64 exec, -1")
        A(f"v_add_u32 v{vP + u}, s{sInc}, v{vP + u}")
    A(f"s_mov_b64 {sr(sCur, 2)}, {sr(sNext, 2)}")
    A(f"s_add_u32 s{sTi}, s{sTi}, 1")
    A(f"s_cmp_le_u32 s{sTi}, s{sT}")
    A("s_cbranch_scc1 Ltile")
    A("Lmain_done:")
    stamp(A, opt, 6)
    A(f"s_or_b32 s3, s{sOvf}, s{sMor}")
    A("s_cbranch_scc1 Lslow")

    vU, vXr, vAo, vXo, vDum = vD, vD + 16, vD + 24, vD + 25, vD + 32
    A(f"""
    s_add_u32 s3, s{sN0}, s{sW}
    s_lshl_b32 s{sTmp}, s3, 9
    s_lshl_b32 s{sTmp + 1}, s3, 8
    v_lshl_add_u32 v{vAo}, v{vH16}, 8, v{vLaneOff}
    v_lshrrev_b32 v{vXo}, 1, v{vAo}
    s_mov_b32 s{sQ1}, s{sTmp + 1}
    """)
    for p in range(4):
        A(f"buffer_load_dwordx4 {vr(vU + 4 * p, 4)}, v{vAo}, {sr(S_AU, 4)}, s{sTmp} offen")
        A(f"buffer_load_dwordx2 {vr(vXr + 2 * p, 2)}, v{vXo}, {sr(S_X, 4)}, s{sTmp + 1} offen")
        if p < 3:
            A(f"s_add_u32 s{sTmp}, s{sTmp}, 8192")
            A(f"s_add_u32 s{sTmp + 1}, s{sTmp + 1}, 4096")
    eps = f32(1e-6 / c0)
    A(f"s_mov_b32 s{sC0}, {hex(eps)}")
    A(f"s_mov_b32 s{sC0 + 1}, {hex(eps)}")
    for p in range(4):
        a0 = vAcc + 16 * p
        a1 = a0 + 8 if p < 3 else vDum
        if p == 3:
            A(f"s_cmp_lg_u32 s{sW}, 0")
            A("s_cbranch_scc1 Lk2_done")
        for j in range(8):
            A(f"v_permlane32_swap_b32 v{a0 + j}, v{a1 + j}")
        if p == 3:
            A("s_mov_b32 exec_hi, 0")
        for j in range(0, 8, 2):
            A(f"v_pk_add_f32 {vr(a0 + j, 2)}, {vr(a0 + j, 2)}, {vr(a1 + j, 2)}")
        for j in (4, 6):
            A(f"v_pk_add_f32 {vr(a0 + j, 2)}, {vr(a0 + j, 2)}, {sr(sC0, 2)}")
        for j in range(4, 8):
            A(f"v_rcp_f32 v{a0 + j}, v{a0 + j}")
        A(f"s_waitcnt vmcnt({6 - p})")
        u0, x0 = vU + 4 * p, vXr + 2 * p
        for j in range(4):
            A(f"v_and_b32 v{u0 + j}, 0xffff0000, v{u0 + j}")
        for j in (0, 2):
            A(f"v_pk_fma_f32 {vr(a0 + j, 2)}, {vr(a0 + j, 2)}, {vr(a0 + 4 + j, 2)}, {vr(u0 + j, 2)}")
        A(f"v_lshlrev_b32 v{u0}, 16, v{x0}")
        A(f"v_and_b32 v{u0 + 1}, 0xffff0000, v{x0}")
        A(f"v_lshlrev_b32 v{u0 + 2}, 16, v{x0 + 1}")
        A(f"v_and_b32 v{u0 + 3}, 0xffff0000, v{x0 + 1}")
        for j in range(4):
            A(f"v_max_f32 v{a0 + j}, 0, v{a0 + j}")
        for j in (0, 2):
            A(f"v_pk_add_f32 {vr(a0 + j, 2)}, {vr(a0 + j, 2)}, {vr(u0 + j, 2)}")
        A(f"v_cvt_pk_bf16_f32 v{a0}, v{a0}, v{a0 + 1}")
        A(f"v_cvt_pk_bf16_f32 v{a0 + 1}, v{a0 + 2}, v{a0 + 3}")
        A(f"buffer_store_dwordx2 {vr(a0, 2)}, v{vXo}, {sr(S_OUT, 4)}, s{sQ1} offen")
        if p < 3:
            A(f"s_add_u32 s{sQ1}, s{sQ1}, 4096")
    A("Lk2_done:")
    stamp_flush(A, opt, 8, 0x20000, vTid)
    A("Lk2_exit:")
    A("s_endpgm")

    A("Lplace_checked:")
    for i in range(8):
        A(f"v_and_b32 v{vX + 6}, 63, v{vRec + i}")
        A(f"v_add_u32 v{vKey + i}, v{vKey + i}, v{vRank + i}")
        A(f"v_lshl_add_u32 v{vX + 6}, v{vX + 6}, 6, 64")
        A(f"v_cmp_lt_u32 vcc, v{vKey + i}, v{vX + 6}")
        A(f"v_lshlrev_b32 v{vKey + i}, 2, v{vKey + i}")
        A(f"s_and_b64 exec, vcc, {sr(sMask + 2 * i, 2)}")
        A(f"ds_write_b32 v{vKey + i}, v{vSoff + i} offset:{L_SO}")
        A(f"ds_write_b32 v{vKey + i}, v{vEoff + i} offset:{L_EO}")
        A(f"s_andn2_b64 {sr(sMask + 2 * i, 2)}, {sr(sMask + 2 * i, 2)}, vcc")
        A("s_mov_b64 exec, -1")
    A("s_branch Lplaced")
    A("Lslow:")
    A("s_waitcnt vmcnt(0)")
    A(f"v_mov_b32 v{vX + 5}, 0")
    A(f"ds_write_b32 v{vX + 5}, v{vX + 5} offset:{L_FLAG}")
    A(f"ds_write_b32 v{vX + 5}, v{vX + 5} offset:{L_FLAG + 4}")
    A(f"s_cmp_lg_u32 s{sOvf}, 0")
    A("s_cbranch_scc1 Lretry")
    A(f"s_add_u32 s{sW0}, s{sW0}, 32")
    batch_masks()
    A("Lretry:")
    rec_loads()
    A("s_branch Lround")
    return L_EO + 16384 + 256


def gen_report(A, opt, nk1):
    kind, kern, idx = opt["report"].split(",")
    idx = int(idx)
    A("report_kernel:")
    A("s_cmp_ge_u32 s2, 1")
    A("s_cbranch_scc1 Lr_exit")
    load_kernargs(A)
    A("s_waitcnt lgkmcnt(0)")
    srd(A, 28, P_WS, 0x80000, STAMP_OFF)

    def reduce(op, base, stride, lo, hi, dst, tag, sub):
        A(f"v_add_u32 v1, {lo}, v0")
        A(f"v_mov_b32 v3, {'-1' if op == 'min' else '0'}")
        A(f"Lr_{tag}:")
        A(f"v_min_u32 v2, {hi - 1}, v1")
        A(f"v_mul_u32_u24 v2, {stride}, v2")
        A(f"v_add_u32 v2, {base}, v2")
        A("buffer_load_dword v2, v2, s[28:31], 0 offen")
        A("s_waitcnt vmcnt(0)")
        if sub:
            A("v_subrev_u32 v2, s40, v2")
        A(f"v_{op}_u32 v3, v3, v2")
        A("v_add_u32 v1, 64, v1")
        A("s_nop 0")
        A("v_readfirstlane_b32 s3, v1")
        A(f"s_cmp_lt_u32 s3, {hi}")
        A(f"s_cbranch_scc1 Lr_{tag}")
        A(f"v_readlane_b32 s{dst}, v3, 0")
        for l in range(1, 64):
            A(f"v_readlane_b32 s3, v3, {l}")
            A("s_nop 0")
            A(f"s_{op}_u32 s{dst}, s{dst}, s3")

    reduce("min", 0, 16, 0, nk1 * 8, 40, "a", False)
    if kind == "none":
        A("s_mov_b32 s41, 0")
    elif kern == "p":
        reduce(kind, 8 * idx, 16, 0, NCH * 8, 41, "b", True)
    elif kern == "g":
        reduce(kind, 8 * idx, 16, NCH * 8, nk1 * 8, 41, "b", True)
    else:
        reduce(kind, 0x20000 + 8 * idx, 64, 0, 1920, 41, "b", True)
        if kind == "add":
            A(f"s_mul_hi_u32 s41, s41, {2 ** 32 // 1920}")
    A("s_min_u32 s41, s41, 20000")
    A("s_add_u32 s41, s41, 10000")
    A("Lr_spin:")
    A("s_memrealtime s[42:43]")
    A("s_waitcnt lgkmcnt(0)")
    A("s_sub_u32 s42, s42, s40")
    A("s_cmp_lt_u32 s42, s41")
    A("s_cbranch_scc1 Lr_spin")
    A("Lr_exit:")
    A("s_endpgm")


def descriptor(name, vgpr, extra=""):
    return f""".amdhsa_kernel {name}
  .amdhsa_next_free_vgpr {vgpr}
  .amdhsa_next_free_sgpr 102
  .amdhsa_accum_offset {(vgpr + 3) // 4 * 4}
  .amdhsa_group_segment_fixed_size 0
  .amdhsa_kernarg_size 96
  .amdhsa_user_sgpr_count 2
  .amdhsa_user_sgpr_kernarg_segment_ptr 1
  .amdhsa_system_sgpr_workgroup_id_x 1
{extra}.end_amdhsa_kernel
"""


def generate(opt):
    A1, A2 = Asm(), Asm()
    gen_k1(A1, opt)
    lds2 = gen_k2(A2, opt)
    lds1 = 2 * 16 * 2432
    head = f"""; GatedGCN layer: prep_kernel builds the node tables and buckets the edges by destination;
; @launch kernel=prep_kernel grid=({NCH + NGEMM},1,1) block=(512,1,1) lds={lds1}
; @launch kernel={NAME}_kernel grid=(256,1,1) block=(512,1,1) lds={lds2}
.amdgcn_target "amdgcn-amd-amdhsa--gfx950"
.text
.globl prep_kernel
.p2align 8
.type prep_kernel,@function
"""
    mid = f""".globl {NAME}_kernel
.p2align 8
.type {NAME}_kernel,@function
"""
    tail = (".section .rodata,\"a\"\n.p2align 6\n" + descriptor("prep_kernel", 104, "  .amdhsa_fp16_overflow 1\n")
            + ".p2align 6\n" + descriptor(f"{NAME}_kernel", 248))
    body = A1.text() + mid + A2.text()
    if opt.get("report"):
        A3 = Asm()
        gen_report(A3, opt, NCH + NGEMM)
        head = head.replace(".amdgcn_target", "; @launch kernel=report_kernel grid=(1,1,1) block=(64,1,1) lds=0\n.amdgcn_target")
        body += ".globl report_kernel\n.p2align 8\n.type report_kernel,@function\n" + A3.text()
        tail += ".p2align 6\n" + descriptor("report_kernel", 8)
    return head + body + tail


if __name__ == "__main__":
    out = sys.argv[1] if len(sys.argv) > 1 else f"cdna_kernels/{NAME}.s"
    opt = dict(a.split("=", 1) for a in sys.argv[2:])
    opt = {k: v.replace("+", " ") for k, v in opt.items()}
    open(out, "w").write(generate(opt))
```

```python
import math
import struct
import sys

NAME = "gather_scatter__edge_featured_mpnn_gatedgcn__graph"
N, E = 12500, 400000
NPB = 49
CH = 3136
NCH = 128
NGEMM = 196
NDUMP = 9
NK1 = NGEMM + NCH + NDUMP
TAB_OFF = 0
FR_OFF = 0x700000
REC_OFF = 0xE00000
OFF_OFF = 0x1000000
STAMP_OFF = 0x2000000
TAB_BYTES = N * 512
KSH = 48
AMAX = 52.0
NLOG2E = -math.log2(math.e)


def f32(x):
    return struct.unpack("<I", struct.pack("<f", x))[0]


class Asm:
    def __init__(self):
        self.lines = []

    def __call__(self, s):
        for ln in s.strip("\n").split("\n"):
            ln = ln.strip()
            if not ln:
                continue
            self.lines.append(ln if ln.endswith(":") else "    " + ln)

    def text(self):
        return "\n".join(self.lines) + "\n"


def vr(a, n=1):
    return f"v{a}" if n == 1 else f"v[{a}:{a + n - 1}]"


def sr(a, n=1):
    return f"s{a}" if n == 1 else f"s[{a}:{a + n - 1}]"


def srd(A, d, base, nbytes, off=0):
    if off:
        A(f"s_add_u32 s{d}, s{base}, {hex(off)}")
        A(f"s_addc_u32 s{d + 1}, s{base + 1}, 0")
    else:
        A(f"s_mov_b64 {sr(d, 2)}, {sr(base, 2)}")
    A(f"s_mov_b32 s{d + 2}, {hex(nbytes)}")
    A(f"s_mov_b32 s{d + 3}, 0x20000")


P_X, P_EA, P_SRC, P_DST, P_WA, P_WB, P_WC, P_WU = 4, 6, 8, 10, 12, 14, 16, 18
P_WV, P_OUT, P_DBG, P_WS = 20, 22, 24, 26


def load_kernargs(A):
    A("s_load_dwordx16 s[4:19], s[0:1], 0")
    A("s_load_dwordx8 s[20:27], s[0:1], 64")


STAMP_BASE = [2]


def stamp_reg(i):
    return 100 if i == 0 else STAMP_BASE[0] + 2 * i


def stamp(A, opt, i):
    if opt.get("stamp"):
        A(f"{'s_memtime' if opt.get('cyc') else 's_memrealtime'} s[{stamp_reg(i)}:{stamp_reg(i) + 1}]")


def stamp_flush(A, opt, n, base, vtid):
    if not opt.get("stamp"):
        return
    A("s_mov_b64 exec, -1")
    A("s_waitcnt vmcnt(0)")
    stamp(A, opt, n - 1)
    srd(A, 20, P_WS, 0x80000, STAMP_OFF + base)
    A(f"v_lshrrev_b32 v1, 6, v{vtid}")
    A("s_lshl_b32 s3, s2, 3")
    A("v_add_u32 v1, s3, v1")
    A(f"v_mul_u32_u24 v1, {8 * n}, v1")
    A("s_mov_b64 exec, 1")
    A("s_waitcnt lgkmcnt(0)")
    for i in range(n):
        r = stamp_reg(i)
        A(f"v_mov_b32 v2, s{r}")
        A(f"v_mov_b32 v3, s{r + 1}")
        A(f"buffer_store_dwordx2 v[2:3], v1, s[20:23], 0 offen offset:{8 * i}")
        A("s_nop 1")


WAVE_SCAN = ("row_shr:1 row_mask:0xf", "row_shr:2 row_mask:0xf", "row_shr:4 row_mask:0xf",
             "row_shr:8 row_mask:0xf", "row_bcast:15 row_mask:0xa", "row_bcast:31 row_mask:0xc")


def wave_scan(A, v):
    for d in WAVE_SCAN:
        A("s_nop 1")
        A(f"v_add_u32_dpp v{v}, v{v}, v{v} {d} bank_mask:0xf")


def gen_partition(A, opt):
    st = opt.get("k1_store", "")
    ld = opt.get("k1_load", "")
    S_SRC, S_DST, S_REC, S_OFFS = 28, 32, 36, 40
    sB0, sB1, sLim, sMagic, sM49, sM0, sM1, sC = 44, 45, 46, 47, 48, 50, 52, 70
    vOff, vD, vS, vE, vA, vR, vT, vOne = 1, 4, 12, 20, 28, 36, 44, 2
    L_CNT, L_BASE, L_SORT = 0, 1024, 2048
    A(f"s_mul_i32 s{sB0}, s{sC}, {CH * 4}")
    A(f"s_add_u32 s{sB1}, s{sB0}, 8192")
    A(f"s_movk_i32 s{sLim}, {CH // 4}")
    A(f"s_cmp_eq_u32 s{sC}, {NCH - 1}")
    A(f"s_cselect_b32 s{sLim}, {(E - (NCH - 1) * CH) // 4}, s{sLim}")
    A(f"v_lshlrev_b32 v{vOff}, 4, v0")
    A(f"v_cmp_gt_u32_e64 {sr(sM0, 2)}, s{sLim}, v0")
    A(f"v_add_u32 v3, 512, v0")
    A(f"v_cmp_gt_u32_e64 {sr(sM1, 2)}, s{sLim}, v3")
    A("s_waitcnt lgkmcnt(0)")
    stamp(A, opt, 1)
    srd(A, S_DST, P_DST, E * 4)
    srd(A, S_SRC, P_SRC, E * 4)
    A(f"buffer_load_dwordx4 {vr(vD, 4)}, v{vOff}, {sr(S_DST, 4)}, s{sB0} offen {ld}")
    A(f"buffer_load_dwordx4 {vr(vS, 4)}, v{vOff}, {sr(S_SRC, 4)}, s{sB0} offen {ld}")
    A(f"s_mov_b64 exec, {sr(sM1, 2)}")
    A("s_cbranch_execz Lp_nold1")
    A(f"buffer_load_dwordx4 {vr(vD + 4, 4)}, v{vOff}, {sr(S_DST, 4)}, s{sB1} offen {ld}")
    A(f"buffer_load_dwordx4 {vr(vS + 4, 4)}, v{vOff}, {sr(S_SRC, 4)}, s{sB1} offen {ld}")
    A("Lp_nold1:")
    A("s_mov_b64 exec, -1")
    srd(A, S_REC, P_WS, NCH * CH * 4, REC_OFF)
    srd(A, S_OFFS, P_WS, NCH * 1024, OFF_OFF)
    A(f"s_mov_b32 s{sMagic}, 85599")
    A(f"s_mov_b32 s{sM49}, {-NPB}")
    A(f"v_mov_b32 v{vOne}, 1")
    A(f"v_mov_b32 v{vT}, 0")
    A(f"v_lshlrev_b32 v{vT + 1}, 2, v0")
    A(f"ds_write_b32 v{vT + 1}, v{vT} offset:{L_CNT}")
    A(f"v_lshlrev_b32 v{vE}, 8, v0")
    for i in range(1, 8):
        A(f"v_add_u32 v{vE + i}, {(i & 3) * 64 + (i >> 2) * 512 * 256}, v{vE}")
    A("s_waitcnt lgkmcnt(0)")
    A("s_barrier")
    stamp(A, opt, 2)
    A("s_waitcnt vmcnt(0)")
    stamp(A, opt, 3)
    for r in range(2):
        A(f"s_mov_b64 exec, {sr((sM0, sM1)[r], 2)}")
        A(f"s_cbranch_execz Lp_p1_{r}")
        for i in range(4 * r, 4 * r + 4):
            A(f"v_mul_u32_u24 v{vT}, s{sMagic}, v{vD + i}")
            A(f"v_lshl_or_b32 v{vS + i}, v{vS + i}, 18, v{vE + i}")
            A(f"v_lshrrev_b32 v{vT}, 22, v{vT}")
            A(f"v_add_u32 v{vS + i}, v{vS + i}, v{vD + i}")
            A(f"v_lshlrev_b32 v{vA + i}, 2, v{vT}")
            A(f"v_mad_i32_i24 v{vS + i}, v{vT}, s{sM49}, v{vS + i}")
            A(f"ds_add_rtn_u32 v{vR + i}, v{vA + i}, v{vOne} offset:{L_CNT}")
        A(f"Lp_p1_{r}:")
    A("s_mov_b64 exec, -1")
    A("s_waitcnt lgkmcnt(0)")
    A("s_barrier")
    stamp(A, opt, 4)
    A("v_cmp_gt_u32 vcc, 64, v0")
    A("s_cbranch_vccz Lp_noscan")
    c, b = vD, vD + 4
    A(f"ds_read_b128 {vr(c, 4)}, v{vOff} offset:{L_CNT}")
    A("s_waitcnt lgkmcnt(0)")
    A(f"v_add_u32 v{b + 2}, v{c}, v{c + 1}")
    A(f"v_add_u32 v{b + 3}, v{b + 2}, v{c + 2}")
    A(f"v_add_u32 v{vT}, v{b + 3}, v{c + 3}")
    A(f"v_mov_b32 v{vT + 1}, v{vT}")
    wave_scan(A, vT + 1)
    A(f"v_sub_u32 v{b}, v{vT + 1}, v{vT}")
    A(f"v_add_u32 v{b + 1}, v{b}, v{c}")
    A(f"v_add_u32 v{b + 2}, v{b}, v{b + 2}")
    A(f"v_add_u32 v{b + 3}, v{b}, v{b + 3}")
    A(f"ds_write_b128 v{vOff}, {vr(b, 4)} offset:{L_BASE}")
    for i in range(4):
        A(f"v_lshl_or_b32 v{c + i}, v{c + i}, 16, v{b + i}")
    A(f"s_lshl_b32 s3, s{sC}, 10")
    A(f"buffer_store_dwordx4 {vr(c, 4)}, v{vOff}, {sr(S_OFFS, 4)}, s3 offen {st}")
    A("s_waitcnt lgkmcnt(0)")
    A("Lp_noscan:")
    A("s_barrier")
    stamp(A, opt, 5)
    for r in range(2):
        A(f"s_mov_b64 exec, {sr((sM0, sM1)[r], 2)}")
        A(f"s_cbranch_execz Lp_p2_{r}")
        for i in range(4 * r, 4 * r + 4):
            A(f"ds_read_b32 v{vA + i}, v{vA + i} offset:{L_BASE}")
        for i in range(4 * r, 4 * r + 4):
            A("s_waitcnt lgkmcnt(3)")
            A(f"v_add_lshl_u32 v{vA + i}, v{vA + i}, v{vR + i}, 2")
            A(f"ds_write_b32 v{vA + i}, v{vS + i} offset:{L_SORT}")
        A(f"Lp_p2_{r}:")
    A("s_mov_b64 exec, -1")
    A("s_waitcnt lgkmcnt(0)")
    A("s_barrier")
    stamp(A, opt, 6)
    for r in range(2):
        A(f"s_mov_b64 exec, {sr((sM0, sM1)[r], 2)}")
        A("s_cbranch_execz Lk1_done")
        A(f"ds_read_b128 {vr(vE + 4 * r, 4)}, v{vOff} offset:{L_SORT + 8192 * r}")
        A("s_waitcnt lgkmcnt(0)")
        A(f"buffer_store_dwordx4 {vr(vE + 4 * r, 4)}, v{vOff}, {sr(S_REC, 4)}, s{(sB0, sB1)[r]} offen {st}")
    A("s_branch Lk1_done")


def gen_dump(A, opt):
    A(f"""
    v_and_b32 v1, 31, v0
    v_bfe_u32 v2, v0, 5, 1
    v_lshrrev_b32 v3, 6, v0
    v_lshlrev_b32 v4, 4, v0
    s_lshl_b32 s3, s70, 13
    s_cmp_eq_u32 s70, 8
    s_waitcnt lgkmcnt(0)
    s_cbranch_scc1 Ld_wc
    s_cmp_lt_u32 s70, 4
    s_cselect_b32 s28, s{P_WA}, s{P_WU}
    s_cselect_b32 s29, s{P_WA + 1}, s{P_WU + 1}
    s_mov_b32 s30, 32768
    s_and_b32 s44, s70, 3
    s_lshl_b32 s44, s44, 6
    v_lshlrev_b32 v5, 12, v3
    v_lshl_add_u32 v5, v2, 11, v5
    v_lshl_add_u32 v5, v1, 1, v5
    s_branch Ld_go
    Ld_wc:
    """)
    srd(A, 36, P_WS, 512, TAB_OFF + TAB_BYTES)
    A(f"""
    v_lshlrev_b32 v5, 2, v0
    v_mov_b32 v6, 0x7c00
    buffer_store_dword v6, v5, s[36:39], 0 offen
    s_mov_b64 s[28:29], {sr(P_WC, 2)}
    s_mov_b32 s30, 4096
    s_mov_b32 s44, 0
    v_lshlrev_b32 v5, 11, v2
    v_lshl_add_u32 v5, v1, 3, v5
    v_lshl_add_u32 v5, v3, 1, v5
    Ld_go:
    s_mov_b32 s31, 0x20000
    """)
    srd(A, 32, P_WS, 65536 + 4096, FR_OFF)
    for i in range(8):
        A(f"buffer_load_ushort v{8 + i}, v5, s[28:31], s44 offen offset:{256 * i}")
    A("s_waitcnt vmcnt(0)")
    for i in range(4):
        A(f"v_lshl_or_b32 v{16 + i}, v{9 + 2 * i}, 16, v{8 + 2 * i}")
    A("buffer_store_dwordx4 v[16:19], v4, s[32:35], s3 offen")
    A("s_branch Lk1_done")


def gen_gemm(A, opt):
    st = opt.get("k1_store", "")
    S_X, S_W, S_T = 28, 32, 36
    sRt, sHalf, sW, sXo, sWo, sO0, sO1, sNl = 56, 57, 58, 59, 60, 62, 63, 64
    vXa, vWa, vXr, vTr, vSo = 4, 8, 12, 16, 18
    vX, vAcc, vF = 20, 52, 84
    A(f"""
    s_lshr_b32 s{sRt}, s2, 4
    s_lshl_b32 s{sRt}, s{sRt}, 3
    s_and_b32 s3, s2, 7
    s_add_u32 s{sRt}, s{sRt}, s3
    s_bfe_u32 s{sHalf}, s2, 0x10003
    s_cmp_lt_u32 s2, 192
    s_cbranch_scc1 Lg_map
    s_lshr_b32 s{sRt}, s2, 1
    s_and_b32 s{sHalf}, s2, 1
    Lg_map:
    v_lshrrev_b32 v1, 6, v0
    v_and_b32 v2, 15, v0
    v_readfirstlane_b32 s{sW}, v1
    v_bfe_u32 v3, v0, 4, 2
    v_xor_b32 v20, v2, v3
    v_lshlrev_b32 v20, 4, v20
    v_lshl_add_u32 v{vXa}, v3, 8, v20
    v_xor_b32 v{vXa + 1}, 64, v{vXa}
    v_xor_b32 v{vXa + 2}, 0x80, v{vXa}
    v_xor_b32 v{vXa + 3}, 0xc0, v{vXa}
    v_and_b32 v21, 7, v0
    v_and_b32 v22, 1, v3
    v_lshlrev_b32 v22, 1, v22
    v_xor_b32 v21, v21, v22
    v_lshlrev_b32 v21, 4, v21
    v_bfe_u32 v23, v0, 3, 3
    v_lshl_add_u32 v{vWa}, v23, 8, v21
    v_xor_b32 v{vWa + 1}, 64, v{vWa}
    v_add_u32 v{vWa + 2}, 2048, v{vWa}
    v_add_u32 v{vWa + 3}, 3072, v{vWa + 1}
    v_add_u32 v{vWa + 1}, 1024, v{vWa + 1}
    s_lshl_b32 s3, s{sW}, 12
    s_lshl_b32 s{sXo}, s{sRt}, 15
    s_add_u32 s{sXo}, s{sXo}, s3
    s_and_b32 s{sWo}, s{sW}, 3
    s_lshl_b32 s{sWo}, s{sWo}, 13
    s_lshl_b32 s61, s{sHalf}, 7
    s_add_u32 s{sWo}, s{sWo}, s61
    s_add_u32 m0, s3, 32768
    s_cmp_lt_u32 s{sW}, 4
    s_waitcnt lgkmcnt(0)
    s_cselect_b32 s{S_W}, s{P_WB}, s{P_WV}
    s_cselect_b32 s{S_W + 1}, s{P_WB + 1}, s{P_WV + 1}
    s_mov_b32 s{S_W + 2}, 32768
    s_mov_b32 s{S_W + 3}, 0x20000
    """)
    stamp(A, opt, 1)
    srd(A, S_X, P_X, N * 256)
    for i in range(4):
        A(f"buffer_load_dwordx4 v{vWa + i}, {sr(S_W, 4)}, s{sWo} offen offset:{1024 * i} lds")
    A("s_mov_b32 m0, s3")
    A("s_nop 0")
    for i in range(4):
        A(f"buffer_load_dwordx4 v{vXa + i}, {sr(S_X, 4)}, s{sXo} offen offset:{1024 * i} lds")
    stamp(A, opt, 2)
    srd(A, S_T, P_WS, TAB_BYTES, TAB_OFF)
    A(f"""
    s_lshl_b32 s{sO0}, s{sRt}, 16
    s_lshl_b32 s3, s{sHalf}, 8
    s_add_u32 s{sO0}, s{sO0}, s3
    s_add_u32 s{sO1}, s{sO0}, 8192
    s_mov_b32 s{sNl}, {hex(f32(NLOG2E))}
    v_lshrrev_b32 v24, 1, v1
    v_lshl_add_u32 v24, v24, 5, v2
    v_lshl_add_u32 v{vXr}, v24, 8, v20
    v_xor_b32 v{vXr + 1}, 64, v{vXr}
    v_xor_b32 v{vXr + 2}, 0x80, v{vXr}
    v_xor_b32 v{vXr + 3}, 0xc0, v{vXr}
    v_and_b32 v25, 1, v1
    v_lshlrev_b32 v26, 4, v3
    v_lshl_add_u32 v26, v25, 7, v26
    v_lshl_add_u32 v{vSo}, v24, 9, v26
    v_bfe_u32 v26, v0, 3, 1
    v_or_b32 v26, v26, v22
    v_lshlrev_b32 v25, 1, v25
    v_xor_b32 v26, v26, v25
    v_lshlrev_b32 v26, 5, v26
    v_and_b32 v27, 3, v0
    v_lshl_add_u32 v26, v27, 3, v26
    v_bfe_u32 v27, v0, 2, 2
    v_lshl_add_u32 v27, v3, 3, v27
    v_lshl_add_u32 v{vTr}, v27, 7, v26
    v_xor_b32 v{vTr + 1}, 32, v{vTr}
    s_waitcnt vmcnt(0)
    """)
    stamp(A, opt, 3)
    A("s_barrier")
    stamp(A, opt, 4)

    def frag_reads(s, buf):
        for nb in range(2):
            A(f"ds_read_b128 {vr(vX + 16 * nb + 4 * s, 4)}, v{vXr + s} offset:{4096 * nb}")
        for m in range(2):
            for be in range(2):
                for z in range(2):
                    A(f"ds_read_b64_tr_b16 {vr(vF + 16 * buf + 8 * m + 4 * be + 2 * z, 2)}, v{vTr + be} "
                      f"offset:{32768 + m * 16384 + s * 4096 + z * 512}")

    frag_reads(0, 0)
    for s in range(4):
        buf = s & 1
        if s < 3:
            frag_reads(s + 1, buf ^ 1)
            A("s_waitcnt lgkmcnt(10)")
        else:
            A("s_waitcnt lgkmcnt(0)")
        for be in range(2):
            for nb in range(2):
                for m in range(2):
                    d = vAcc + 16 * m + 8 * nb + 4 * be
                    cc = "0" if s == 0 else vr(d, 4)
                    A(f"v_mfma_f32_16x16x32_bf16 {vr(d, 4)}, {vr(vF + 16 * buf + 8 * m + 4 * be, 4)}, "
                      f"{vr(vX + 16 * nb + 4 * s, 4)}, {cc}")
    A("s_nop 1")
    stamp(A, opt, 5)
    for be in range(2):
        for nb in range(2):
            lo = vAcc + 8 * nb + 4 * be
            hi = lo + 16
            for i in range(4):
                A(f"v_fma_mixlo_f16 v{hi + i}, v{lo + i}, s{sNl}, 0")
            A(f"buffer_store_dwordx4 {vr(hi, 4)}, v{vSo}, {sr(S_T, 4)}, s{(sO0, sO1)[nb]} offen offset:{64 * be} {st}")
    stamp(A, opt, 6)


def gen_k1(A, opt):
    STAMP_BASE[0] = 80
    A("prep_kernel:")
    A(f"s_cmp_ge_u32 s2, {NK1}")
    A("s_cbranch_scc1 Lk1_exit")
    stamp(A, opt, 0)
    load_kernargs(A)
    A(f"s_cmp_ge_u32 s2, {NGEMM}")
    A("s_cbranch_scc1 Lk1_other")
    gen_gemm(A, opt)
    A("Lk1_done:")
    stamp_flush(A, opt, 8, 0x40000, 0)
    A("Lk1_exit:")
    A("s_endpgm")
    A("Lk1_other:")
    A(f"s_sub_u32 s70, s2, {NGEMM}")
    A(f"s_cmp_ge_u32 s70, {NCH}")
    A("s_cbranch_scc1 Lk1_dump")
    gen_partition(A, opt)
    A("Lk1_dump:")
    A(f"s_sub_u32 s70, s70, {NCH}")
    gen_dump(A, opt)


def gen_k2(A, opt):
    STAMP_BASE[0] = 2
    ea_pol = opt.get("ea_load", "")
    pf_lanes = int(opt.get("pf", 32))
    S_TAB, S_EA, S_REC, S_OFFS, S_FR, S_X, S_OUT = 28, 32, 36, 40, 44, 48, 52
    sW, sBk, sN0, sW0, sT, sTi, sInc, sNl = 56, 57, 58, 59, 60, 61, 62, 63
    sC0, sCur, sNext, sMore, sTmp = 64, 66, 68, 70, 72
    sMask = 74
    sOvf, sMor, sQ1, sQ2, sQ3 = 90, 91, 92, 93, 94
    sLw, sF0, sOwn, sRem, sSW = 95, 96, 97, 98, 99
    sSl0, sSl1, sLn = sCur, sCur + 1, sNext
    L_CNT, L_BASE, L_FLAG = 0, 2048, 4096
    L_SO = 4352
    LIST = 17152
    L_EO = L_SO + LIST
    L_STR = L_EO + LIST
    STRW = 2560
    L_X = L_STR + 8 * STRW
    L_TA = L_X + 64 * 272 + 1024
    L_TU = L_TA + 64 * 528
    L_END = L_TU + 64 * 528
    NS = 9
    vSl, vD, vL, vWC, vEA, vT, vSo, vLo = 0, 108, 172, 204, 220, 224, 232, 236
    vSp, vEp, vEo, vH16, vSb, vTid, vOffs = 238, 239, 240, 241, 242, 243, 244
    vWf, vG, vXf, vXs = 0, 32, 64, 96
    vRec, vKey, vRank, vSoff, vEoff, vX = vD, vD + 8, vD + 16, vD + 24, vD + 32, vD + 40
    c0 = 2.0 ** -KSH

    A(f"{NAME}_kernel:")
    A("s_cmp_ge_u32 s2, 256")
    A("s_cbranch_scc1 Lk2_exit")
    stamp(A, opt, 0)
    load_kernargs(A)
    A(f"""
    s_and_b32 s3, s2, 7
    s_lshl_b32 s3, s3, 5
    s_lshr_b32 s{sBk}, s2, 3
    s_add_u32 s{sBk}, s{sBk}, s3
    s_mul_i32 s{sN0}, s{sBk}, {NPB}
    v_mov_b32 v{vTid}, v0
    v_lshrrev_b32 v{vX}, 6, v0
    v_lshrrev_b32 v{vX + 1}, 2, v0
    v_readfirstlane_b32 s{sW}, v{vX}
    v_lshlrev_b32 v{vX + 1}, 10, v{vX + 1}
    v_lshlrev_b32 v{vX + 2}, 4, v0
    v_and_b32 v{vX + 3}, 0x3f0, v{vX + 2}
    v_and_b32 v{vLo}, 0x1f0, v{vX + 2}
    v_bfe_u32 v{vX + 4}, v0, 5, 1
    v_mov_b32 v{vLo + 1}, v{vLo}
    v_lshlrev_b32 v{vH16}, 4, v{vX + 4}
    s_lshl_b32 s3, s{sBk}, 2
    s_lshl_b32 s{sTmp}, s{sN0}, 8
    s_add_u32 s{sTmp + 1}, s{sTmp}, 8192
    s_lshl_b32 s{sQ1}, s{sW}, 13
    s_add_u32 s{sQ2}, s{sQ1}, 4096
    s_mov_b32 s{sQ3}, 65536
    s_waitcnt lgkmcnt(0)
    """)
    srd(A, S_OFFS, P_WS, NCH * 1024, OFF_OFF)
    A(f"buffer_load_dword v{vOffs}, v{vX + 1}, {sr(S_OFFS, 4)}, s3 offen")
    srd(A, S_X, P_X, N * 256)
    for i in range(2):
        A(f"buffer_load_dwordx4 {vr(vXs + 4 * i, 4)}, v{vX + 2}, {sr(S_X, 4)}, s{sTmp + i} offen")
    srd(A, S_FR, P_WS, 65536 + 4096, FR_OFF)
    for s in range(8):
        A(f"buffer_load_dwordx4 {vr(vWf + 4 * s, 4)}, v{vX + 3}, {sr(S_FR, 4)}, s{(sQ1, sQ2)[s >> 2]} offen offset:{1024 * (s & 3)}")
    for j in range(4):
        A(f"buffer_load_dwordx4 {vr(vWC + 4 * j, 4)}, v{vX + 3}, {sr(S_FR, 4)}, s{sQ3} offen offset:{1024 * j}")
    srd(A, S_REC, P_WS, NCH * CH * 4, REC_OFF)
    srd(A, S_TAB, P_WS, 0 if opt.get("notab") else TAB_BYTES + 512, TAB_OFF)
    srd(A, S_EA, P_EA, 0 if opt.get("noea") else E * 32)
    srd(A, S_OUT, P_OUT, N * 256)
    vZero, vOne, vXw, vXrd, vTw, vInv = vX + 5, vX + 6, vX + 7, vX + 8, vX + 9, vX + 10
    A(f"""
    s_mov_b32 s{sNl}, {hex(f32(NLOG2E))}
    s_mov_b32 s{sC0}, {hex(f32(c0))}
    s_mov_b32 s{sC0 + 1}, {hex(f32(c0))}
    s_mov_b32 s{sW0}, 0
    s_mul_i32 s{sSW}, s{sW}, {STRW}
    s_add_u32 s{sSW}, s{sSW}, {L_STR}
    v_mov_b32 v{vZero}, 0
    v_mov_b32 v{vOne}, 1
    v_lshlrev_b32 v{vX + 11}, 2, v{vTid}
    ds_write_b32 v{vX + 11}, v{vZero} offset:{L_CNT}
    ds_write_b32 v{vZero}, v{vZero} offset:{L_FLAG}
    v_lshrrev_b32 v{vX + 11}, 4, v{vTid}
    v_lshl_add_u32 v{vXw}, v{vX + 11}, 4, v{vX + 2}
    v_and_b32 v{vX + 11}, 31, v{vTid}
    v_mul_u32_u24 v{vXrd}, 272, v{vX + 11}
    v_add_u32 v{vXrd}, v{vXrd}, v{vH16}
    v_mul_u32_u24 v{vTw}, 528, v{vX + 11}
    s_and_b32 s3, s{sW}, 3
    s_lshl_b32 s3, s3, 7
    s_cmp_lt_u32 s{sW}, 4
    s_cselect_b32 s{sTmp}, 0, {L_TU - L_TA}
    s_add_u32 s3, s3, s{sTmp}
    s_add_u32 s3, s3, {L_TA}
    v_add3_u32 v{vTw}, v{vTw}, v{vH16}, s3
    v_lshl_add_u32 v{vX + 12}, v{vX + 11}, 2, s{sSW}
    v_bfrev_b32 v{vX + 13}, 2
    ds_write_b32 v{vX + 12}, v{vX + 13} offset:{1152 + 1024}
    v_add_u32 v{vSp}, s{sSW}, v{vH16}
    v_lshrrev_b32 v{vX + 12}, 3, v{vX + 11}
    v_bfe_u32 v{vX + 13}, v{vX + 11}, 1, 1
    v_lshl_add_u32 v{vX + 12}, v{vX + 12}, 1, v{vX + 13}
    v_bfe_u32 v{vX + 13}, v{vX + 11}, 2, 1
    v_lshl_add_u32 v{vX + 12}, v{vX + 12}, 1, v{vX + 13}
    v_and_b32 v{vX + 13}, 1, v{vX + 11}
    v_lshl_add_u32 v{vX + 12}, v{vX + 12}, 1, v{vX + 13}
    v_lshl_add_u32 v{vEp}, v{vX + 12}, 2, s{sSW}
    """)

    def batch_masks():
        A(f"""
        v_lshrrev_b32 v{vX}, 16, v{vOffs}
        v_and_b32 v{vX + 1}, 3, v{vTid}
        v_subrev_u32 v{vX}, s{sW0}, v{vX}
        v_lshlrev_b32 v{vX + 1}, 2, v{vX + 1}
        v_cmp_lt_i32_e64 {sr(sMore, 2)}, 32, v{vX}
        v_sub_u32 v{vX}, v{vX}, v{vX + 1}
        """)
        for i in range(8):
            A(f"v_cmp_lt_i32_e64 {sr(sMask + 2 * i, 2)}, {(i & 3) + 16 * (i >> 2)}, v{vX}")

    def rec_loads():
        A(f"""
        v_lshrrev_b32 v{vX + 2}, 2, v{vTid}
        v_and_b32 v{vX + 1}, 3, v{vTid}
        v_mul_u32_u24 v{vX + 2}, {CH}, v{vX + 2}
        v_and_b32 v{vX + 4}, 0xffff, v{vOffs}
        v_lshl_add_u32 v{vX + 1}, v{vX + 1}, 2, s{sW0}
        v_add3_u32 v{vX + 4}, v{vX + 4}, v{vX + 2}, v{vX + 1}
        v_lshlrev_b32 v{vX + 4}, 2, v{vX + 4}
        buffer_load_dwordx4 {vr(vRec, 4)}, v{vX + 4}, {sr(S_REC, 4)}, 0 offen
        buffer_load_dwordx4 {vr(vRec + 4, 4)}, v{vX + 4}, {sr(S_REC, 4)}, 0 offen offset:64
        v_lshlrev_b32 v{vX + 2}, 5, v{vX + 2}
        """)

    def histogram(keep_node):
        for i in range(8):
            A(f"v_alignbit_b32 v{vKey + i}, v{vRec + i}, v{vRec + i}, 27")
            A(f"v_and_b32 v{vKey + i}, 0x7fc, v{vKey + i}")
            A(f"s_mov_b64 exec, {sr(sMask + 2 * i, 2)}")
            A(f"ds_add_rtn_u32 v{vRank + i}, v{vKey + i}, v{vOne} offset:{L_CNT}")
            A("s_mov_b64 exec, -1")
        A("s_movk_i32 s3, 0x1ff")
        for i in range(8):
            A(f"v_lshrrev_b32 v{vSoff + i}, {9 if keep_node else 18}, v{vRec + i}")
            A(f"v_bfe_u32 v{vEoff + i}, v{vRec + i}, 6, 12")
            if keep_node:
                if opt.get("smalltab"):
                    A(f"v_and_b32 v{vSoff + i}, {int(opt['smalltab']) * 512}, v{vSoff + i}")
                A(f"v_bfi_b32 v{vSoff + i}, s3, v{vRec + i}, v{vSoff + i}")
            else:
                A(f"v_lshlrev_b32 v{vSoff + i}, 9, v{vSoff + i}")
            A(f"v_lshl_add_u32 v{vEoff + i}, v{vEoff + i}, 5, v{vX + 2}")

    def place():
        for i in range(8):
            A(f"v_add_lshl_u32 v{vKey + i}, v{vKey + i}, v{vRank + i}, 2")
            A(f"s_mov_b64 exec, {sr(sMask + 2 * i, 2)}")
            A(f"ds_write_b32 v{vKey + i}, v{vSoff + i} offset:{L_SO}")
            A(f"ds_write_b32 v{vKey + i}, v{vEoff + i} offset:{L_EO}")
            A("s_mov_b64 exec, -1")

    A("s_waitcnt vmcnt(14)")
    stamp(A, opt, 1)
    rec_loads()
    A("s_waitcnt vmcnt(14)")
    A(f"ds_write_b128 v{vXw}, {vr(vXs, 4)} offset:{L_X}")
    A(f"v_add_u32 v{vXw}, {32 * 272}, v{vXw}")
    A(f"ds_write_b128 v{vXw}, {vr(vXs + 4, 4)} offset:{L_X}")
    batch_masks()
    A("s_waitcnt lgkmcnt(0)")
    A("s_barrier")
    for s in range(8):
        A(f"ds_read_b128 {vr(vXf + 4 * s, 4)}, v{vXrd} offset:{L_X + 32 * s}")
    A(f"v_add_u32 v{vXrd}, {32 * 272}, v{vXrd}")
    A("s_waitcnt vmcnt(6)")
    for nb in range(2):
        for s in range(8):
            A(f"s_waitcnt lgkmcnt({7 if nb == 0 else 7 - s})")
            cc = "0" if s == 0 else vr(vG + 16 * nb, 16)
            A(f"v_mfma_f32_32x32x16_bf16 {vr(vG + 16 * nb, 16)}, {vr(vWf + 4 * s, 4)}, {vr(vXf + 4 * s, 4)}, {cc}")
            if nb == 0:
                A(f"ds_read_b128 {vr(vXf + 4 * s, 4)}, v{vXrd} offset:{L_X + 32 * s}")
    A(f"s_mov_b64 vcc, {sr(sMore, 2)}")
    A(f"s_cmp_ge_u32 s{sW}, 4")
    A("s_cbranch_scc1 Lu_wave")
    A(f"v_mov_b32 v{vXs}, {hex(f32(-float(KSH)))}")
    A(f"v_mov_b32 v{vXs + 1}, {hex(f32(-float(KSH)))}")
    A(f"v_mov_b32 v{vXs + 2}, 0")
    A(f"s_mov_b32 s{sTmp}, s{sNl}")
    A(f"s_mov_b32 s{sTmp + 1}, s{sNl}")
    for i in range(0, 32, 2):
        A(f"v_max3_f32 v{vXs + 2}, |v{vG + i}|, |v{vG + i + 1}|, v{vXs + 2}")
        A(f"v_pk_fma_f32 {vr(vG + i, 2)}, {vr(vG + i, 2)}, {sr(sTmp, 2)}, {vr(vXs, 2)}")
    A(f"v_cmp_lt_f32 vcc, {hex(f32(AMAX))}, v{vXs + 2}")
    A(f"s_or_b64 vcc, vcc, {sr(sMore, 2)}")
    A("Lu_wave:")
    for nb in range(2):
        if nb == 1:
            A("s_nop 7")
        for g in range(4):
            A(f"ds_write_b128 v{vTw}, {vr(vG + 16 * nb + 4 * g, 4)} offset:{32 * 528 * nb + 32 * g}")
    A("s_mov_b64 exec, vcc")
    A(f"ds_write_b32 v{vZero}, v{vOne} offset:{L_FLAG}")
    A("s_mov_b64 exec, -1")
    A("s_waitcnt vmcnt(0)")
    stamp(A, opt, 2)
    histogram(True)
    A("s_waitcnt lgkmcnt(0)")
    A("s_barrier")
    c, p, deg, q, inc, g4, la = vL, vL + 8, vL + 16, vL + 17, vL + 18, vL + 19, vL + 20
    A(f"v_lshlrev_b32 v{la}, 1, v{vX + 3}")
    A(f"ds_read_b128 {vr(c, 4)}, v{la} offset:{L_CNT}")
    A(f"ds_read_b128 {vr(c + 4, 4)}, v{la} offset:{L_CNT + 16}")
    if pf_lanes:
        A(f"""
        s_lshr_b32 s3, s2, 3
        s_lshl_b32 s3, s3, 3
        s_add_u32 s3, s3, s{sW}
        s_mul_i32 s3, s3, {pf_lanes * 128}
        v_lshlrev_b32 v{vL + 21}, 3, v{vX + 3}
        s_bfm_b64 exec, {pf_lanes & 63}, 0
        {'s_mov_b64 exec, -1' if pf_lanes == 64 else ''}
        buffer_load_dword v{vL + 22}, v{vL + 21}, {sr(S_TAB, 4)}, s3 offen
        s_mov_b64 exec, -1
        """)
    A("s_waitcnt lgkmcnt(1)")
    A(f"v_add_u32 v{p + 2}, v{c}, v{c + 1}")
    A(f"v_add_u32 v{p + 3}, v{p + 2}, v{c + 2}")
    A(f"v_add_u32 v{p + 4}, v{p + 3}, v{c + 3}")
    A("s_waitcnt lgkmcnt(0)")
    for i in range(5, 8):
        A(f"v_add_u32 v{p + i}, v{p + i - 1}, v{c + i - 1}")
    A(f"v_add_u32 v{deg}, v{p + 7}, v{c + 7}")
    A(f"v_add_u32 v{q}, 3, v{deg}")
    A(f"v_lshrrev_b32 v{q}, 2, v{q}")
    A(f"v_mov_b32 v{inc}, v{q}")
    wave_scan(A, inc)
    A(f"v_sub_u32 v{g4}, v{inc}, v{q}")
    A(f"v_readlane_b32 s3, v{inc}, 63")
    A(f"v_lshlrev_b32 v{p}, 2, v{g4}")
    A(f"v_add_u32 v{p + 1}, v{p}, v{c}")
    for i in range(2, 8):
        A(f"v_add_u32 v{p + i}, v{p}, v{p + i}")
    A(f"ds_write_b128 v{la}, {vr(p, 4)} offset:{L_BASE}")
    A(f"ds_write_b128 v{la}, {vr(p + 4, 4)} offset:{L_BASE + 16}")
    for i in range(8):
        A(f"ds_read_b32 v{vKey + i}, v{vKey + i} offset:{L_BASE}")
    A(f"""
    s_mul_i32 s{sLw}, s3, s{sW}
    s_add_u32 s{sRem}, s{sLw}, s3
    s_lshr_b32 s{sLw}, s{sLw}, 3
    s_lshr_b32 s{sRem}, s{sRem}, 3
    v_cmp_gt_u32_e64 {sr(sTmp, 2)}, s{sLw}, v{g4}
    v_cmp_gt_u32 vcc, s{sRem}, v{g4}
    v_add_u32 v{deg}, s{sW}, v{deg}
    v_lshlrev_b32 v{q}, 2, v{q}
    s_bcnt1_i32_b64 s{sF0}, {sr(sTmp, 2)}
    s_bcnt1_i32_b64 s{sOwn}, vcc
    v_cmp_lt_u32 vcc, v{deg}, v{q}
    v_add_lshl_u32 v{deg}, v{deg}, v{p}, 2
    v_mov_b32 v{c}, {TAB_BYTES}
    v_bfrev_b32 v{c + 1}, 2
    s_cmp_eq_u32 s{sW}, 7
    s_cselect_b32 s{sOwn}, {NPB}, s{sOwn}
    s_sub_u32 s{sOwn}, s{sOwn}, s{sF0}
    s_sub_u32 s{sRem}, s{sRem}, s{sLw}
    s_mov_b64 exec, vcc
    ds_write_b32 v{deg}, v{c} offset:{L_SO}
    ds_write_b32 v{deg}, v{c + 1} offset:{L_EO}
    s_sub_u32 s3, s{sOwn}, 1
    s_sub_u32 s{sTmp}, s{sRem}, 1
    s_lshr_b32 s3, s3, 3
    s_lshr_b32 s{sTmp}, s{sTmp}, 6
    s_or_b32 s3, s3, s{sTmp}
    s_cselect_b64 exec, 1, 0
    ds_write_b32 v{vZero}, v{vOne} offset:{L_FLAG}
    s_mov_b64 exec, -1
    s_waitcnt lgkmcnt(0)
    """)
    place()
    so, eo, key, less, eq, z, pos, t = vL, vL + 4, vL + 8, vL + 9, vL + 10, vL + 12, vL + 14, vL + 15
    A(f"""
    s_lshl_b32 s3, s{sLw}, 4
    v_add_u32 v{t}, s3, v{vX + 3}
    v_lshrrev_b32 v{t + 1}, 4, v{vX + 3}
    v_cmp_le_u32_e64 {sr(sTmp, 2)}, s{sRem}, v{t + 1}
    v_bfrev_b32 v{t + 2}, 2
    s_waitcnt lgkmcnt(0)
    s_barrier
    ds_read_b32 v{t + 3}, v{vZero} offset:{L_FLAG}
    ds_read_b128 {vr(so, 4)}, v{t} offset:{L_SO}
    ds_read_b128 {vr(eo, 4)}, v{t} offset:{L_EO}
    v_cndmask_b32_e64 v{vInv}, 0, v{t + 2}, {sr(sTmp, 2)}
    s_sub_u32 s{sQ1}, s{sF0}, 1
    s_mul_i32 s{sQ2}, s{sQ1}, 528
    s_add_u32 s{sQ2}, s{sQ2}, {L_TA}
    v_add_u32 v{t + 4}, s{sQ2}, v{vLo}
    s_mov_b32 s{sQ3}, 0xfffffe00
    s_waitcnt lgkmcnt(2)
    v_readfirstlane_b32 s3, v{t + 3}
    s_waitcnt lgkmcnt(1)
    v_lshrrev_b32 v{key}, 20, v{so + 1}
    v_and_b32 v{t + 3}, 63, v{so}
    s_cmp_lg_u32 s3, 0
    s_cbranch_scc1 Lslow_entry
    v_cndmask_b32_e64 v{key}, v{key}, 7, {sr(sTmp, 2)}
    v_subrev_u32 v{t + 3}, s{sQ1}, v{t + 3}
    v_mov_b32 v{less}, 0
    v_mov_b64 {vr(eq, 2)}, -1
    v_mul_u32_u24 v{t + 3}, 12, v{t + 3}
    """)
    stamp(A, opt, 3)
    for bit in (2, 1, 0):
        A(f"""
        v_and_b32 v{t}, {1 << bit}, v{key}
        v_cmp_eq_u32 vcc, 0, v{t}
        v_and_or_b32 v{so + bit}, v{so + bit}, s{sQ3}, v{vInv}
        s_nop 0
        v_and_b32 v{z}, vcc_lo, v{eq}
        v_and_b32 v{z + 1}, vcc_hi, v{eq + 1}
        v_bcnt_u32_b32 v{t}, v{z}, v{less}
        v_xor_b32 v{eq}, v{eq}, v{z}
        v_bcnt_u32_b32 v{t}, v{z + 1}, v{t}
        v_xor_b32 v{eq + 1}, v{eq + 1}, v{z + 1}
        v_cndmask_b32 v{eq}, v{eq}, v{z}, vcc
        v_cndmask_b32 v{eq + 1}, v{eq + 1}, v{z + 1}, vcc
        v_cndmask_b32 v{less}, v{t}, v{less}, vcc
        """)
    A(f"""
    v_and_or_b32 v{so + 3}, v{so + 3}, s{sQ3}, v{vInv}
    v_mbcnt_lo_u32_b32 v{pos}, v{eq}, v{less}
    v_mbcnt_hi_u32_b32 v{pos}, v{eq + 1}, v{pos}
    s_waitcnt lgkmcnt(0)
    v_or_b32 v{eo}, v{eo}, v{vInv}
    v_or_b32 v{eo + 1}, v{eo + 1}, v{vInv}
    v_or_b32 v{eo + 2}, v{eo + 2}, v{vInv}
    v_or_b32 v{eo + 3}, v{eo + 3}, v{vInv}
    v_lshl_add_u32 v{t}, v{pos}, 4, s{sSW}
    ds_write_b128 v{t}, {vr(eo, 4)} offset:1152
    v_and_b32 v{t + 1}, 1, v{pos}
    v_lshlrev_b32 v{t + 1}, 3, v{t + 1}
    v_sub_u32 v{t}, v{t}, v{t + 1}
    ds_write2_b64 v{t}, {vr(so, 2)}, {vr(so + 2, 2)} offset0:0 offset1:2
    v_add_u32 v{t + 1}, s{sSW}, v{pos}
    ds_write_b8 v{t + 1}, v{t + 3} offset:2304
    ds_read_b32 v{vEo}, v{vEp} offset:1152
    ds_read_b128 {vr(vSo, 4)}, v{vSp}
    ds_read_b128 {vr(vT, 4)}, v{vSp} offset:32
    ds_read_b32 v{vT + 4}, v{vEp} offset:{1152 + 128}
    v_lshrrev_b32 v{t + 1}, 2, v{vX + 3}
    v_add_u32 v{t + 1}, s{sSW}, v{t + 1}
    ds_read_b32 v{vSb}, v{t + 1} offset:2304
    v_mov_b32 v{vT + 5}, v{t + 4}
    s_waitcnt lgkmcnt(4)
    v_add_u32 v{vEo}, v{vEo}, v{vH16}
    buffer_load_dwordx4 {vr(vEA, 4)}, v{vEo}, {sr(S_EA, 4)}, 0 offen {ea_pol}
    """)
    for u in range(4):
        src = (vSo, vSo + 2, vT, vT + 2)[u]
        if u in (0, 2):
            A(f"s_waitcnt lgkmcnt({3 - u // 2})")
        A(f"v_lshl_add_u64 {vr(src, 2)}, {vr(src, 2)}, 0, {vr(vLo, 2)}")
        A(f"buffer_load_dwordx4 {vr(vL + 8 * u, 4)}, v{src}, {sr(S_TAB, 4)}, 0 offen")
        A(f"buffer_load_dwordx4 {vr(vL + 8 * u + 4, 4)}, v{src + 1}, {sr(S_TAB, 4)}, 0 offen")
    for s in range(NS):
        A(f"ds_read_b128 {vr(vSl + 12 * s + 8, 4)}, v{vT + 5} offset:{528 * s}")
    for s in range(NS):
        for j in range(0, 8, 2):
            A(f"v_mov_b64 {vr(vSl + 12 * s + j, 2)}, 0")
    A("s_waitcnt lgkmcnt(0)")
    for s in range(NS):
        for j in range(4):
            A(f"v_exp_f32 v{vSl + 12 * s + 8 + j}, v{vSl + 12 * s + 8 + j}")
    A(f"""
    v_add_u32 v{vEo}, v{vT + 4}, v{vH16}
    v_readlane_b32 s{sSl0}, v{vSb}, 0
    v_readlane_b32 s{sSl1}, v{vSb}, 1
    s_mov_b32 s{sLn}, 2
    s_mov_b32 s{sLn + 1}, 3
    s_mul_i32 s{sQ1}, s{sRem}, 3
    s_lshr_b32 s{sQ1}, s{sQ1}, 2
    s_lshr_b32 s{sQ2}, s{sRem}, 1
    s_lshr_b32 s{sQ3}, s{sRem}, 2
    s_setprio 3
    s_waitcnt vmcnt(8)
    """)
    stamp(A, opt, 4)

    def mfma(j):
        return f"v_mfma_f32_32x32x16_bf16 {vr(vD + 16 * j, 16)}, {vr(vEA, 4)}, {vr(vWC + 4 * j, 4)}, 0"

    for j in range(4):
        A(mfma(j))
    A(f"buffer_load_dwordx4 {vr(vEA, 4)}, v{vEo}, {sr(S_EA, 4)}, 0 offen {ea_pol}")
    A("s_nop 7")
    A("s_nop 1")
    A(f"s_cmp_gt_u32 s{sRem}, 8")
    A("s_cbranch_scc0 Llast")

    def step(u, last):
        La, Lb = vL + 8 * (u & 3), vL + 8 * (u & 3) + 4
        a, b = vT, vT + 4
        sl = (sSl0, sSl1)[u >> 2]
        prefetch = not (last and u >= 4)
        wait = 7 if u < 4 else (6 if not last else 2 * (7 - u))
        A(f"s_waitcnt vmcnt({wait})")
        if prefetch and u % 2 == 0:
            A(f"ds_read_b128 {vr(vSo, 4)}, v{vSp} offset:{16 * (u + 4)}")
        if u == 6 and not last:
            A(f"ds_read_b32 v{vEo}, v{vEp} offset:{1152 + 256}")

        def mix(j, hb):
            return (f"v_fma_mix_f32 v{(a, b)[hb] + j}, v{vD + 16 * j + 2 * u + hb}, s{sNl}, v{(La, Lb)[hb] + j} "
                    "op_sel_hi:[0,0,1]")

        wide = not (prefetch and u % 2 == 0)
        if u == 7 and not last:
            for j in range(4):
                A(mix(j, 0))
                A(mix(j, 1))
                if j:
                    A(f"v_exp_f32 v{a + j - 1}, v{a + j - 1}")
                    A(f"v_exp_f32 v{b + j - 1}, v{b + j - 1}")
                A(mfma(j))
            A(f"v_exp_f32_e64 v{a + 3}, v{a + 3}")
            A(f"v_exp_f32 v{b + 3}, v{b + 3}")
        else:
            for hb in range(2):
                for j in range(4):
                    A(mix(j, hb))
            for j in range(8):
                A(f"v_exp_f32{'_e64' if wide and j == 0 else ''} v{a + j}, v{a + j}")
        if not wide:
            A("s_waitcnt lgkmcnt(0)")
        A(f"s_set_gpr_idx_on s{sl}, gpr_idx(SRC1)")
        for j in range(0, 8, 2):
            A(f"v_pk_fma_f32 {vr(a + j, 2)}, {vr(a + j, 2)}, {vr(vSl + 8 + (j & 3), 2)}, {sr(sC0, 2)} clamp")
        A("s_set_gpr_idx_mode gpr_idx()")
        A(f"s_lshr_b32 s{sl}, s{sl}, 8")
        for j in (0, 2):
            A(f"v_pk_mul_f32 {vr(La + j, 2)}, {vr(La + j, 2)}, {vr(b + j, 2)}")
        so2 = vSo + 2 * (u & 1)
        if prefetch:
            A(f"v_lshl_add_u64 {vr(so2, 2)}, {vr(so2, 2)}, 0, {vr(vLo, 2)}")
        for j in (0, 2):
            A(f"v_pk_fma_f32 {vr(La + j, 2)}, {vr(Lb + j, 2)}, {vr(a + j, 2)}, {vr(La + j, 2)}")
        for j in (0, 2):
            A(f"v_pk_add_f32 {vr(Lb + j, 2)}, {vr(a + j, 2)}, {vr(b + j, 2)}")
        for j in (0, 2):
            A(f"v_pk_mul_f32 {vr(a + j, 2)}, {vr(a + j, 2)}, {vr(b + j, 2)}")
        for j in range(4):
            A(f"v_rcp_f32{'_e64' if j == 0 else ''} v{a + j}, v{a + j}")
        A("s_set_gpr_idx_mode gpr_idx(SRC2,DST)")
        for j in (0, 2):
            A(f"v_pk_fma_f32 {vr(vSl + j, 2)}, {vr(La + j, 2)}, {vr(a + j, 2)}, {vr(vSl + j, 2)}")
            A(f"v_pk_fma_f32 {vr(vSl + 4 + j, 2)}, {vr(Lb + j, 2)}, {vr(a + j, 2)}, {vr(vSl + 4 + j, 2)}")
        if prefetch and not opt.get("noload"):
            A(f"buffer_load_dwordx4 {vr(La, 4)}, v{so2}, {sr(S_TAB, 4)}, 0 offen")
            A(f"buffer_load_dwordx4 {vr(Lb, 4)}, v{so2 + 1}, {sr(S_TAB, 4)}, 0 offen")
        A("s_set_gpr_idx_off")

    A(".p2align 6")
    A("Ltile:")
    A(f"s_sub_u32 s{sRem}, s{sRem}, 8")
    for u in range(8):
        step(u, False)
    A(f"""
    v_add_u32 v{vEo}, v{vEo}, v{vH16}
    buffer_load_dwordx4 {vr(vEA, 4)}, v{vEo}, {sr(S_EA, 4)}, 0 offen {ea_pol}
    v_readlane_b32 s{sSl0}, v{vSb}, s{sLn}
    v_readlane_b32 s{sSl1}, v{vSb}, s{sLn + 1}
    v_add_u32 v{vSp}, 0x80, v{vSp}
    v_add_u32 v{vEp}, 0x80, v{vEp}
    s_add_u32 s{sLn}, s{sLn}, 2
    s_add_u32 s{sLn + 1}, s{sLn + 1}, 2
    """)
    if not opt.get("noprio"):
        for k, sq in enumerate((sQ1, sQ2, sQ3)):
            A(f"s_cmp_le_u32 s{sRem}, s{sq}")
            A("s_cbranch_scc0 Lprio_done")
            A(f"s_setprio {2 - k}")
        A("Lprio_done:")
    A(f"s_cmp_gt_u32 s{sRem}, 8")
    A("s_cbranch_scc1 Ltile")
    A(".p2align 3")
    A("Llast:")
    stamp(A, opt, 5)
    A("s_nop 0")
    for u in range(8):
        step(u, True)
        if u < 7:
            A(f"s_cmp_le_u32 s{sRem}, {u + 1}")
            A("s_cbranch_scc1 Lmain_done")
    A("Lmain_done:")
    stamp(A, opt, 6)

    def finalize(a0, o, a1, u0, x0, addr, soff, pre_store):
        for j in range(4):
            A(f"v_permlane32_swap_b32 v{a0 + j}, v{a1 + j}")
            A(f"v_permlane32_swap_b32 v{a0 + o + j}, v{a1 + o + j}")
        for j in (o, o + 2, 0, 2):
            A(f"v_pk_add_f32 {vr(a0 + j, 2)}, {vr(a0 + j, 2)}, {vr(a1 + j, 2)}")
        for j in (o, o + 2):
            A(f"v_pk_add_f32 {vr(a0 + j, 2)}, {vr(a0 + j, 2)}, {sr(sC0, 2)}")
        for j in range(4):
            A(f"v_rcp_f32 v{a0 + o + j}, v{a0 + o + j}")
        A(f"v_lshlrev_b32 v{a1}, 16, v{x0}")
        A(f"v_and_b32 v{a1 + 1}, 0xffff0000, v{x0}")
        A(f"v_lshlrev_b32 v{a1 + 2}, 16, v{x0 + 1}")
        A(f"v_and_b32 v{a1 + 3}, 0xffff0000, v{x0 + 1}")
        for j in (0, 2):
            A(f"v_pk_fma_f32 {vr(a0 + j, 2)}, {vr(a0 + j, 2)}, {vr(a0 + o + j, 2)}, {vr(u0 + j, 2)}")
        for j in range(4):
            A(f"v_max_f32 v{a0 + j}, 0, v{a0 + j}")
        for j in (0, 2):
            A(f"v_pk_add_f32 {vr(a0 + j, 2)}, {vr(a0 + j, 2)}, {vr(a1 + j, 2)}")
        A(f"v_cvt_pk_bf16_f32 v{a0}, v{a0}, v{a0 + 1}")
        A(f"v_cvt_pk_bf16_f32 v{a0 + 1}, v{a0 + 2}, v{a0 + 3}")
        A(pre_store)
        A(f"buffer_store_dwordx2 {vr(a0, 2)}, v{addr}, {sr(S_OUT, 4)}, s{soff} offen")

    eps = f32(1e-6 / c0)
    vU, vXr, vA1, vA2, vA3, vCy = vD, vD + 16, vD + 24, vD + 25, vD + 26, vD + 32
    A(f"""
    v_lshl_add_u32 v{vA1}, v{vH16}, 5, v{vLo}
    v_add_u32 v{vA1}, s{sSW}, v{vA1}
    ds_write_b128 v{vA1}, {vr(vSl, 4)}
    ds_write_b128 v{vA1}, {vr(vSl + 4, 4)} offset:1024
    s_mul_i32 s3, s{sF0}, 528
    s_add_u32 s3, s3, {L_TU}
    v_mul_u32_u24 v{vA2}, 33, v{vH16}
    v_add3_u32 v{vA2}, v{vA2}, v{vLo}, s3
    s_mul_i32 s3, s{sF0}, 272
    s_add_u32 s3, s3, {L_X}
    v_mul_u32_u24 v{vA3}, 17, v{vH16}
    v_lshrrev_b32 v{vLo + 1}, 1, v{vLo}
    v_add3_u32 v{vA3}, v{vA3}, v{vLo + 1}, s3
    """)
    for pr in range(4):
        A(f"ds_read_b128 {vr(vU + 4 * pr, 4)}, v{vA2} offset:{1056 * pr}")
        A(f"ds_read_b64 {vr(vXr + 2 * pr, 2)}, v{vA3} offset:{544 * pr}")
    A(f"""
    v_lshl_add_u32 v{vA2}, v{vH16}, 4, v{vLo + 1}
    s_add_u32 s{sQ1}, s{sN0}, s{sF0}
    s_lshl_b32 s{sQ1}, s{sQ1}, 8
    s_mov_b32 s{sC0}, {hex(eps)}
    s_mov_b32 s{sC0 + 1}, {hex(eps)}
    s_mul_i32 s{sQ2}, s{sOwn}, 12
    s_waitcnt lgkmcnt(0)
    """)
    for pr in range(4):
        if pr < 3:
            A(f"s_cmp_gt_u32 s{sOwn}, {2 * pr + 2}")
            A(f"s_cbranch_scc1 Lfin{pr}")
        A("s_barrier")
        A(f"s_cmp_eq_u32 s{sW}, 7")
        A(f"s_cbranch_scc1 Lfin{pr}")
        A(f"ds_read_b128 {vr(vCy, 4)}, v{vA1} offset:{STRW}")
        A(f"ds_read_b128 {vr(vCy + 4, 4)}, v{vA1} offset:{STRW + 1024}")
        A(f"s_set_gpr_idx_on s{sQ2}, gpr_idx(SRC0,DST)")
        A("s_waitcnt lgkmcnt(0)")
        for j in range(0, 8, 2):
            A(f"v_pk_add_f32 {vr(vSl + j, 2)}, {vr(vSl + j, 2)}, {vr(vCy + j, 2)}")
        A("s_set_gpr_idx_off")
        A("s_nop 1")
        A(f"Lfin{pr}:")
        finalize(vSl + 12 * (2 * pr + 1), 4, vSl + 12 * (2 * pr + 2), vU + 4 * pr, vXr + 2 * pr, vA2, sQ1,
                 f"s_cmp_gt_u32 s{sOwn}, {2 * pr + 1}\ns_cselect_b32 exec_hi, -1, 0")
        if pr < 3:
            A(f"s_add_u32 s{sQ1}, s{sQ1}, 512")
            A(f"s_cmp_gt_u32 s{sOwn}, {2 * pr + 2}")
            A("s_cbranch_scc0 Lk2_done")
    A("Lk2_done:")
    stamp_flush(A, opt, 8, 0x20000, vTid)
    A("Lk2_exit:")
    A("s_endpgm")

    NU = 7
    vAcc, vAn = 0, 56
    vLs = [vL + 8 * u for u in range(4)] + [84 + 8 * u for u in range(3)]
    vP, vErr, vQ, vCaddr, vUaddr = 245, 252, 253, 254, 255
    A("Lslow_entry:")
    A(f"""
    s_waitcnt vmcnt(0) lgkmcnt(0)
    s_barrier
    v_lshlrev_b32 v{vX + 11}, 2, v{vTid}
    ds_write_b32 v{vX + 11}, v{vZero} offset:{L_CNT}
    s_mul_i32 s3, s{sW}, 528
    s_add_u32 s3, s3, {L_TA}
    v_add_u32 v{vX + 11}, s3, v{vLo}
    """)
    for u in range(NU):
        A(f"ds_read_b128 {vr(vAn + 4 * u, 4)}, v{vX + 11} offset:{8 * 528 * u}")
    for i in range(0, 8 * NU, 2):
        A(f"v_mov_b64 {vr(vAcc + i, 2)}, 0")
    A(f"""
    v_bfe_u32 v{vX + 11}, v{vTid}, 3, 3
    v_and_b32 v{vX + 12}, 7, v{vTid}
    v_lshlrev_b32 v{vX + 12}, 2, v{vX + 12}
    v_lshl_add_u32 v{vX + 12}, v{vX + 11}, 8, v{vX + 12}
    s_lshl_b32 s3, s{sW}, 5
    v_add_u32 v{vCaddr}, s3, v{vX + 12}
    v_bfe_u32 v{vX + 11}, v{vTid}, 3, 2
    v_bfe_u32 v{vX + 12}, v{vTid}, 1, 1
    v_lshl_add_u32 v{vX + 11}, v{vX + 11}, 1, v{vX + 12}
    v_lshlrev_b32 v{vUaddr}, 5, v{vX + 11}
    Lbatch:
    """)
    batch_masks()
    A("Lround:")
    rec_loads()
    A(f"""
    v_mov_b32 v{vZero}, 0
    v_mov_b32 v{vOne}, 1
    ds_write_b32 v{vZero}, v{vZero} offset:{L_FLAG}
    ds_write_b32 v{vZero}, v{vZero} offset:{L_FLAG + 4}
    s_waitcnt lgkmcnt(0)
    s_barrier
    s_mov_b64 exec, {sr(sMore, 2)}
    ds_write_b32 v{vZero}, v{vOne} offset:{L_FLAG + 4}
    s_mov_b64 exec, -1
    s_waitcnt vmcnt(0)
    """)
    histogram(False)
    A("s_waitcnt lgkmcnt(0)")
    A("s_barrier")
    c, inc, deg, q, t0, t1 = vX + 12, vX + 13, vX + 14, vX + 15, vX + 16, vX + 17
    A(f"ds_read_b32 v{c}, v{vCaddr} offset:{L_CNT}")
    A(f"v_lshrrev_b32 v{t0}, 5, v{vCaddr}")
    A(f"v_lshlrev_b32 v{t0}, 6, v{t0}")
    A("s_waitcnt lgkmcnt(0)")
    A(f"ds_write_b32 v{vCaddr}, v{vZero} offset:{L_CNT}")
    A(f"v_mov_b32 v{inc}, v{c}")
    for d in (1, 2, 4, 8):
        A("s_nop 1")
        A(f"v_add_u32_dpp v{inc}, v{inc}, v{inc} row_shr:{d} row_mask:0xf bank_mask:0xf")
    A(f"""
    v_mov_b32 v{t1}, 0
    s_nop 0
    v_mov_b32_dpp v{deg}, v{inc} row_newbcast:7 row_mask:0xf bank_mask:0x3
    v_mov_b32_dpp v{t1}, v{inc} row_newbcast:7 row_mask:0xf bank_mask:0xc
    v_mov_b32_dpp v{deg}, v{inc} row_newbcast:15 row_mask:0xf bank_mask:0xc
    v_sub_u32 v{inc}, v{inc}, v{t1}
    v_sub_u32 v{deg}, v{deg}, v{t1}
    v_sub_u32 v{inc}, v{inc}, v{c}
    v_add_u32 v{inc}, v{inc}, v{t0}
    ds_write_b32 v{vCaddr}, v{inc} offset:{L_BASE}
    v_cmp_lt_u32 vcc, 64, v{deg}
    v_min_u32 v{deg}, 64, v{deg}
    v_add_u32 v{q}, 3, v{deg}
    v_lshrrev_b32 v{q}, 2, v{q}
    s_mov_b64 exec, vcc
    ds_write_b32 v{vZero}, v{vOne} offset:{L_FLAG}
    s_mov_b64 exec, -1
    ds_bpermute_b32 v{vQ}, v{vUaddr}, v{q}
    v_and_b32 v{c}, 7, v{vTid}
    v_add_u32 v{c}, v{c}, v{deg}
    v_lshlrev_b32 v{t1}, 2, v{q}
    v_cmp_lt_u32 vcc, v{c}, v{t1}
    v_add_lshl_u32 v{c}, v{c}, v{t0}, 2
    v_mov_b32 v{t0}, {TAB_BYTES}
    v_bfrev_b32 v{t1}, 2
    s_mov_b64 exec, vcc
    ds_write_b32 v{c}, v{t0} offset:{L_SO}
    ds_write_b32 v{c}, v{t1} offset:{L_EO}
    s_mov_b64 exec, -1
    v_max_u32_dpp v{q}, v{q}, v{q} row_ror:8 row_mask:0xf bank_mask:0xf
    s_nop 0
    v_readlane_b32 s{sT}, v{q}, 0
    v_readlane_b32 s3, v{q}, 16
    v_readlane_b32 s{sTmp}, v{q}, 32
    v_readlane_b32 s{sTmp + 1}, v{q}, 48
    s_waitcnt lgkmcnt(0)
    s_barrier
    ds_read_b64 {vr(vX + 12, 2)}, v{vZero} offset:{L_FLAG}
    """)
    for i in range(8):
        A(f"ds_read_b32 v{vKey + i}, v{vKey + i} offset:{L_BASE}")
    A(f"""
    s_max_u32 s{sT}, s{sT}, s3
    s_max_u32 s{sTmp}, s{sTmp}, s{sTmp + 1}
    s_max_u32 s{sT}, s{sT}, s{sTmp}
    s_waitcnt lgkmcnt(0)
    v_readfirstlane_b32 s{sOvf}, v{vX + 12}
    v_readfirstlane_b32 s{sMor}, v{vX + 13}
    """)
    for i in range(8):
        A(f"v_and_b32 v{vX + 12}, 63, v{vRec + i}")
        A(f"v_add_u32 v{vKey + i}, v{vKey + i}, v{vRank + i}")
        A(f"v_lshl_add_u32 v{vX + 12}, v{vX + 12}, 6, 64")
        A(f"v_cmp_lt_u32 vcc, v{vKey + i}, v{vX + 12}")
        A(f"v_lshlrev_b32 v{vKey + i}, 2, v{vKey + i}")
        A(f"s_and_b64 exec, vcc, {sr(sMask + 2 * i, 2)}")
        A(f"ds_write_b32 v{vKey + i}, v{vSoff + i} offset:{L_SO}")
        A(f"ds_write_b32 v{vKey + i}, v{vEoff + i} offset:{L_EO}")
        A(f"s_andn2_b64 {sr(sMask + 2 * i, 2)}, {sr(sMask + 2 * i, 2)}, vcc")
        A("s_mov_b64 exec, -1")
    A(f"""
    s_lshl_b32 s3, s{sW}, 8
    v_lshrrev_b32 v{vX + 12}, 1, v{vH16}
    v_add_u32 v{vP}, s3, v{vX + 12}
    v_and_b32 v{vX + 12}, 1, v{vTid}
    v_bfe_u32 v{vX + 13}, v{vTid}, 2, 1
    v_lshl_add_u32 v{vX + 12}, v{vX + 13}, 1, v{vX + 12}
    v_lshl_add_u32 v{vX + 12}, v{vX + 12}, 2, s3
    v_lshl_add_u32 v{vEp}, v{vUaddr}, 6, v{vX + 12}
    s_lshr_b32 s3, s{sT}, 1
    v_mov_b32 v{vErr}, s3
    s_mov_b64 {sr(sCur, 2)}, 0
    s_mov_b32 s{sTi}, 0
    """)
    for u in range(1, NU):
        A(f"v_mov_b32 v{vP + u}, v{vP}")
    A(f"""
    s_waitcnt lgkmcnt(0)
    s_barrier
    s_cmp_eq_u32 s{sT}, 0
    s_cbranch_scc1 Lg_done
    s_branch Lg_entry
    Lg_tile:
    s_waitcnt vmcnt({2 * NU})
    """)
    for j in range(4):
        A(mfma(j))
    A(f"""
    Lg_entry:
    v_add_u32 v{vErr}, v{vQ}, v{vErr}
    ds_read_b32 v{vEo}, v{vEp} offset:{L_EO}
    ds_read_b64 {vr(vSo, 2)}, v{vP} offset:{L_SO}
    v_cmp_le_u32_e64 {sr(sNext, 2)}, s{sT}, v{vErr}
    s_cmp_lt_u32 s{sTi}, s{sT}
    s_cselect_b64 {sr(sNext, 2)}, {sr(sNext, 2)}, 1
    s_mov_b64 exec, {sr(sNext, 2)}
    v_subrev_u32 v{vErr}, s{sT}, v{vErr}
    v_add_u32 v{vEp}, 16, v{vEp}
    s_waitcnt lgkmcnt(1)
    v_add_u32 v{vEo}, v{vEo}, v{vH16}
    buffer_load_dwordx4 {vr(vEA, 4)}, v{vEo}, {sr(S_EA, 4)}, 0 offen
    s_mov_b64 exec, -1
    """)
    for u in range(NU):
        bit = 8 * (u >> 1) + 2 * (u & 1) + 1
        so2 = vSo + 2 * (u & 1)
        La, Lb = vLs[u], vLs[u] + 4
        a, b = vT, vT + 4
        num, den = vAcc + 8 * u, vAcc + 8 * u + 4
        if u + 1 < NU:
            A(f"ds_read_b64 {vr(vSo + 2 * ((u + 1) & 1), 2)}, v{vP + u + 1} offset:{L_SO + 2048 * (u + 1)}")
        A(f"s_bitcmp1_b32 s{sCur}, {bit}")
        A(f"s_cbranch_scc0 Lg_skip{u}")
        A(f"s_waitcnt vmcnt({2 * NU - 1})")
        for j in range(4):
            A(f"v_fma_mix_f32 v{a + j}, v{vD + 16 * j + 2 * u}, s{sNl}, v{La + j} op_sel_hi:[0,0,1]")
        for j in range(4):
            A(f"v_fma_mix_f32 v{b + j}, v{vD + 16 * j + 2 * u + 1}, s{sNl}, v{Lb + j} op_sel_hi:[0,0,1]")
        for j in range(0, 8, 2):
            A(f"v_pk_add_f32 {vr(a + j, 2)}, {vr(a + j, 2)}, {vr(vAn + 4 * u + (j & 3), 2)}")
        for j in range(8):
            A(f"v_exp_f32_e64 v{a + j}, v{a + j} clamp")
        for j in range(0, 8, 2):
            A(f"v_pk_add_f32 {vr(a + j, 2)}, {vr(a + j, 2)}, {sr(sC0, 2)}")
        for j in (0, 2):
            A(f"v_pk_mul_f32 {vr(La + j, 2)}, {vr(La + j, 2)}, {vr(b + j, 2)}")
        for j in (0, 2):
            A(f"v_pk_fma_f32 {vr(La + j, 2)}, {vr(Lb + j, 2)}, {vr(a + j, 2)}, {vr(La + j, 2)}")
        for j in (0, 2):
            A(f"v_pk_add_f32 {vr(Lb + j, 2)}, {vr(a + j, 2)}, {vr(b + j, 2)}")
        for j in (0, 2):
            A(f"v_pk_mul_f32 {vr(a + j, 2)}, {vr(a + j, 2)}, {vr(b + j, 2)}")
        for j in range(4):
            A(f"v_rcp_f32 v{a + j}, v{a + j}")
        for j in (0, 2):
            A(f"v_pk_fma_f32 {vr(num + j, 2)}, {vr(La + j, 2)}, {vr(a + j, 2)}, {vr(num + j, 2)}")
            A(f"v_pk_fma_f32 {vr(den + j, 2)}, {vr(Lb + j, 2)}, {vr(a + j, 2)}, {vr(den + j, 2)}")
        A(f"Lg_skip{u}:")
        A(f"s_bitcmp1_b32 s{sNext}, {bit}")
        A("s_cselect_b64 exec, -1, 1")
        A(f"s_cselect_b32 s{sInc}, 16, 0")
        A(f"s_waitcnt lgkmcnt({1 if u + 1 < NU else 0})")
        A(f"v_add_u32 v{so2}, v{so2}, v{vLo}")
        A(f"v_add_u32 v{so2 + 1}, v{so2 + 1}, v{vLo}")
        A(f"buffer_load_dwordx4 {vr(La, 4)}, v{so2}, {sr(S_TAB, 4)}, 0 offen")
        A(f"buffer_load_dwordx4 {vr(Lb, 4)}, v{so2 + 1}, {sr(S_TAB, 4)}, 0 offen")
        A("s_mov_b64 exec, -1")
        A(f"v_add_u32 v{vP + u}, s{sInc}, v{vP + u}")
    A(f"""
    s_mov_b64 {sr(sCur, 2)}, {sr(sNext, 2)}
    s_add_u32 s{sTi}, s{sTi}, 1
    s_cmp_le_u32 s{sTi}, s{sT}
    s_cbranch_scc1 Lg_tile
    Lg_done:
    s_waitcnt vmcnt(0)
    s_cmp_lg_u32 s{sOvf}, 0
    s_cbranch_scc1 Lround
    s_add_u32 s{sW0}, s{sW0}, 32
    s_cmp_lg_u32 s{sMor}, 0
    s_cbranch_scc1 Lbatch
    s_mul_i32 s3, s{sW}, 528
    s_add_u32 s3, s3, {L_TU}
    v_mul_u32_u24 v{vA2}, {33 * 8}, v{vH16}
    v_add3_u32 v{vA2}, v{vA2}, v{vLo}, s3
    s_mul_i32 s3, s{sW}, 272
    s_add_u32 s3, s3, {L_X}
    v_mul_u32_u24 v{vA3}, {17 * 8}, v{vH16}
    v_lshrrev_b32 v{vLo + 1}, 1, v{vLo}
    v_add3_u32 v{vA3}, v{vA3}, v{vLo + 1}, s3
    """)
    for pr in range(4):
        A(f"ds_read_b128 {vr(vU + 4 * pr, 4)}, v{vA2} offset:{16 * 528 * pr}")
        A(f"ds_read_b64 {vr(vXr + 2 * pr, 2)}, v{vA3} offset:{16 * 272 * pr}")
    A(f"""
    v_lshl_add_u32 v{vA2}, v{vH16}, 7, v{vLo + 1}
    s_add_u32 s{sQ1}, s{sN0}, s{sW}
    s_lshl_b32 s{sQ1}, s{sQ1}, 8
    s_mov_b32 s{sC0}, {hex(eps)}
    s_mov_b32 s{sC0 + 1}, {hex(eps)}
    s_waitcnt lgkmcnt(0)
    """)
    for pr in range(4):
        if pr == 3:
            A(f"s_cmp_lg_u32 s{sW}, 0")
            A("s_cbranch_scc1 Lk2_done")
        finalize(vAcc + 16 * pr, 4, vAcc + 16 * pr + 8, vU + 4 * pr, vXr + 2 * pr, vA2, sQ1,
                 "s_mov_b32 exec_hi, 0" if pr == 3 else "s_nop 0")
        A(f"s_add_u32 s{sQ1}, s{sQ1}, 4096")
    A("s_branch Lk2_done")
    return L_END


def gen_report(A, opt):
    kind, kern, idx = opt["report"].split(",")
    idx = int(idx)
    A("report_kernel:")
    A("s_cmp_ge_u32 s2, 1")
    A("s_cbranch_scc1 Lr_exit")
    load_kernargs(A)
    A("s_waitcnt lgkmcnt(0)")
    srd(A, 28, P_WS, 0x80000, STAMP_OFF)

    def reduce(op, base, stride, lo, hi, dst, tag, sub):
        A(f"v_add_u32 v1, {lo}, v0")
        A(f"v_mov_b32 v3, {'-1' if op == 'min' else '0'}")
        A(f"Lr_{tag}:")
        A(f"v_min_u32 v2, {hi - 1}, v1")
        A(f"v_mul_u32_u24 v2, {stride}, v2")
        A(f"v_add_u32 v2, {base}, v2")
        A("buffer_load_dword v2, v2, s[28:31], 0 offen")
        A("s_waitcnt vmcnt(0)")
        if sub:
            A("v_subrev_u32 v2, s40, v2")
        A(f"v_{op}_u32 v3, v3, v2")
        A("v_add_u32 v1, 64, v1")
        A("s_nop 0")
        A("v_readfirstlane_b32 s3, v1")
        A(f"s_cmp_lt_u32 s3, {hi}")
        A(f"s_cbranch_scc1 Lr_{tag}")
        A(f"v_readlane_b32 s{dst}, v3, 0")
        for l in range(1, 64):
            A(f"v_readlane_b32 s3, v3, {l}")
            A("s_nop 0")
            A(f"s_{op}_u32 s{dst}, s{dst}, s3")

    reduce("min", 0x40000, 64, 0, NK1 * 8, 40, "a", False)
    if kind == "none":
        A("s_mov_b32 s41, 0")
    elif kern == "g":
        reduce(kind, 0x40000 + 8 * idx, 64, 0, NGEMM * 8, 41, "b", True)
    elif kern == "p":
        reduce(kind, 0x40000 + 8 * idx, 64, NGEMM * 8, (NGEMM + NCH - 1) * 8, 41, "b", True)
    else:
        reduce(kind, 0x20000 + 8 * idx, 64, 0, 1920, 41, "b", True)
        if kind == "add":
            A(f"s_mul_hi_u32 s41, s41, {2 ** 32 // 1920}")
    A("s_min_u32 s41, s41, 20000")
    A("s_add_u32 s41, s41, 10000")
    A("Lr_spin:")
    A("s_memrealtime s[42:43]")
    A("s_waitcnt lgkmcnt(0)")
    A("s_sub_u32 s42, s42, s40")
    A("s_cmp_lt_u32 s42, s41")
    A("s_cbranch_scc1 Lr_spin")
    A("Lr_exit:")
    A("s_endpgm")


def descriptor(name, vgpr, extra=""):
    return f""".amdhsa_kernel {name}
  .amdhsa_next_free_vgpr {vgpr}
  .amdhsa_next_free_sgpr 102
  .amdhsa_accum_offset {(vgpr + 3) // 4 * 4}
  .amdhsa_group_segment_fixed_size 0
  .amdhsa_kernarg_size 96
  .amdhsa_user_sgpr_count 2
  .amdhsa_user_sgpr_kernarg_segment_ptr 1
  .amdhsa_system_sgpr_workgroup_id_x 1
{extra}.end_amdhsa_kernel
"""


def generate(opt):
    A1, A2 = Asm(), Asm()
    gen_k1(A1, opt)
    lds2 = gen_k2(A2, opt)
    head = f"""; GatedGCN layer: prep_kernel builds the gather table and buckets the edges by destination;
; @launch kernel=prep_kernel grid=({NK1},1,1) block=(512,1,1) lds=65536
; @launch kernel={NAME}_kernel grid=(256,1,1) block=(512,1,1) lds={lds2}
.amdgcn_target "amdgcn-amd-amdhsa--gfx950"
.text
.globl prep_kernel
.p2align 8
.type prep_kernel,@function
"""
    mid = f""".globl {NAME}_kernel
.p2align 8
.type {NAME}_kernel,@function
"""
    tail = (".section .rodata,\"a\"\n.p2align 6\n" + descriptor("prep_kernel", 116, "  .amdhsa_fp16_overflow 1\n")
            + ".p2align 6\n" + descriptor(f"{NAME}_kernel", 256))
    body = A1.text() + mid + A2.text()
    if opt.get("report"):
        A3 = Asm()
        gen_report(A3, opt)
        head = head.replace(".amdgcn_target", "; @launch kernel=report_kernel grid=(1,1,1) block=(64,1,1) lds=0\n.amdgcn_target")
        body += ".globl report_kernel\n.p2align 8\n.type report_kernel,@function\n" + A3.text()
        tail += ".p2align 6\n" + descriptor("report_kernel", 8)
    return head + body + tail


if __name__ == "__main__":
    out = sys.argv[1] if len(sys.argv) > 1 else f"cdna_kernels/{NAME}.s"
    opt = dict(a.split("=", 1) for a in sys.argv[2:])
    opt = {k: v.replace("+", " ") for k, v in opt.items()}
    open(out, "w").write(generate(opt))
```

```python
import math
import struct
import sys

NAME = "gather_scatter__edge_featured_mpnn_gatedgcn__graph"
N, E = 12500, 400000
NPB = 49
CH = 3136
NCH = 128
NGEMM = 196
NDUMP = 9
NK1 = NGEMM + NCH + NDUMP
TAB_OFF = 0
FR_OFF = 0x700000
REC_OFF = 0xE00000
OFF_OFF = 0x1000000
STAMP_OFF = 0x2000000
TAB_BYTES = N * 512
KSH = 48
AMAX = 52.0
NLOG2E = -math.log2(math.e)


def f32(x):
    return struct.unpack("<I", struct.pack("<f", x))[0]


class Asm:
    def __init__(self):
        self.lines = []

    def __call__(self, s):
        for ln in s.strip("\n").split("\n"):
            ln = ln.strip()
            if not ln:
                continue
            self.lines.append(ln if ln.endswith(":") else "    " + ln)

    def text(self):
        return "\n".join(self.lines) + "\n"


def vr(a, n=1):
    return f"v{a}" if n == 1 else f"v[{a}:{a + n - 1}]"


def sr(a, n=1):
    return f"s{a}" if n == 1 else f"s[{a}:{a + n - 1}]"


def srd(A, d, base, nbytes, off=0):
    if off:
        A(f"s_add_u32 s{d}, s{base}, {hex(off)}")
        A(f"s_addc_u32 s{d + 1}, s{base + 1}, 0")
    else:
        A(f"s_mov_b64 {sr(d, 2)}, {sr(base, 2)}")
    A(f"s_mov_b32 s{d + 2}, {hex(nbytes)}")
    A(f"s_mov_b32 s{d + 3}, 0x20000")


P_X, P_EA, P_SRC, P_DST, P_WA, P_WB, P_WC, P_WU = 4, 6, 8, 10, 12, 14, 16, 18
P_WV, P_OUT, P_DBG, P_WS = 20, 22, 24, 26


def load_kernargs(A):
    A("s_load_dwordx16 s[4:19], s[0:1], 0")
    A("s_load_dwordx8 s[20:27], s[0:1], 64")


STAMP_BASE = [2]


def stamp_reg(i):
    return 100 if i == 0 else STAMP_BASE[0] + 2 * i


def stamp(A, opt, i):
    if opt.get("stamp"):
        A(f"{'s_memtime' if opt.get('cyc') else 's_memrealtime'} s[{stamp_reg(i)}:{stamp_reg(i) + 1}]")


def stamp_flush(A, opt, n, base, vtid):
    if not opt.get("stamp"):
        return
    A("s_mov_b64 exec, -1")
    A("s_waitcnt vmcnt(0)")
    stamp(A, opt, n - 1)
    srd(A, 20, P_WS, 0x80000, STAMP_OFF + base)
    A(f"v_lshrrev_b32 v1, 6, v{vtid}")
    A("s_lshl_b32 s3, s2, 3")
    A("v_add_u32 v1, s3, v1")
    A(f"v_mul_u32_u24 v1, {8 * n}, v1")
    A("s_mov_b64 exec, 1")
    A("s_waitcnt lgkmcnt(0)")
    for i in range(n):
        r = stamp_reg(i)
        A(f"v_mov_b32 v2, s{r}")
        A(f"v_mov_b32 v3, s{r + 1}")
        A(f"buffer_store_dwordx2 v[2:3], v1, s[20:23], 0 offen offset:{8 * i}")
        A("s_nop 1")


WAVE_SCAN = ("row_shr:1 row_mask:0xf", "row_shr:2 row_mask:0xf", "row_shr:4 row_mask:0xf",
             "row_shr:8 row_mask:0xf", "row_bcast:15 row_mask:0xa", "row_bcast:31 row_mask:0xc")


def wave_scan(A, v):
    for d in WAVE_SCAN:
        A("s_nop 1")
        A(f"v_add_u32_dpp v{v}, v{v}, v{v} {d} bank_mask:0xf")


def gen_partition(A, opt):
    st = opt.get("k1_store", "")
    ld = opt.get("k1_load", "")
    S_SRC, S_DST, S_REC, S_OFFS = 28, 32, 36, 40
    sB0, sB1, sLim, sMagic, sM49, sM0, sM1, sC = 44, 45, 46, 47, 48, 50, 52, 70
    vOff, vD, vS, vE, vA, vR, vT, vOne = 1, 4, 12, 20, 28, 36, 44, 2
    L_CNT, L_BASE, L_SORT = 0, 1024, 2048
    A(f"s_mul_i32 s{sB0}, s{sC}, {CH * 4}")
    A(f"s_add_u32 s{sB1}, s{sB0}, 8192")
    A(f"s_movk_i32 s{sLim}, {CH // 4}")
    A(f"s_cmp_eq_u32 s{sC}, {NCH - 1}")
    A(f"s_cselect_b32 s{sLim}, {(E - (NCH - 1) * CH) // 4}, s{sLim}")
    A(f"v_lshlrev_b32 v{vOff}, 4, v0")
    A(f"v_cmp_gt_u32_e64 {sr(sM0, 2)}, s{sLim}, v0")
    A(f"v_add_u32 v3, 512, v0")
    A(f"v_cmp_gt_u32_e64 {sr(sM1, 2)}, s{sLim}, v3")
    A("s_waitcnt lgkmcnt(0)")
    stamp(A, opt, 1)
    srd(A, S_DST, P_DST, E * 4)
    srd(A, S_SRC, P_SRC, E * 4)
    A(f"buffer_load_dwordx4 {vr(vD, 4)}, v{vOff}, {sr(S_DST, 4)}, s{sB0} offen {ld}")
    A(f"buffer_load_dwordx4 {vr(vS, 4)}, v{vOff}, {sr(S_SRC, 4)}, s{sB0} offen {ld}")
    A(f"s_mov_b64 exec, {sr(sM1, 2)}")
    A("s_cbranch_execz Lp_nold1")
    A(f"buffer_load_dwordx4 {vr(vD + 4, 4)}, v{vOff}, {sr(S_DST, 4)}, s{sB1} offen {ld}")
    A(f"buffer_load_dwordx4 {vr(vS + 4, 4)}, v{vOff}, {sr(S_SRC, 4)}, s{sB1} offen {ld}")
    A("Lp_nold1:")
    A("s_mov_b64 exec, -1")
    srd(A, S_REC, P_WS, NCH * CH * 4, REC_OFF)
    srd(A, S_OFFS, P_WS, NCH * 1024, OFF_OFF)
    A(f"s_mov_b32 s{sMagic}, 85599")
    A(f"s_mov_b32 s{sM49}, {-NPB}")
    A(f"v_mov_b32 v{vOne}, 1")
    A(f"v_mov_b32 v{vT}, 0")
    A(f"v_lshlrev_b32 v{vT + 1}, 2, v0")
    A(f"ds_write_b32 v{vT + 1}, v{vT} offset:{L_CNT}")
    A(f"v_lshlrev_b32 v{vE}, 8, v0")
    for i in range(1, 8):
        A(f"v_add_u32 v{vE + i}, {(i & 3) * 64 + (i >> 2) * 512 * 256}, v{vE}")
    A("s_waitcnt lgkmcnt(0)")
    A("s_barrier")
    stamp(A, opt, 2)
    A("s_waitcnt vmcnt(0)")
    stamp(A, opt, 3)
    for r in range(2):
        A(f"s_mov_b64 exec, {sr((sM0, sM1)[r], 2)}")
        A(f"s_cbranch_execz Lp_p1_{r}")
        for i in range(4 * r, 4 * r + 4):
            A(f"v_mul_u32_u24 v{vT}, s{sMagic}, v{vD + i}")
            A(f"v_lshl_or_b32 v{vS + i}, v{vS + i}, 18, v{vE + i}")
            A(f"v_lshrrev_b32 v{vT}, 22, v{vT}")
            A(f"v_add_u32 v{vS + i}, v{vS + i}, v{vD + i}")
            A(f"v_lshlrev_b32 v{vA + i}, 2, v{vT}")
            A(f"v_mad_i32_i24 v{vS + i}, v{vT}, s{sM49}, v{vS + i}")
            A(f"ds_add_rtn_u32 v{vR + i}, v{vA + i}, v{vOne} offset:{L_CNT}")
        A(f"Lp_p1_{r}:")
    A("s_mov_b64 exec, -1")
    A("s_waitcnt lgkmcnt(0)")
    A("s_barrier")
    stamp(A, opt, 4)
    A("v_cmp_gt_u32 vcc, 64, v0")
    A("s_cbranch_vccz Lp_noscan")
    c, b = vD, vD + 4
    A(f"ds_read_b128 {vr(c, 4)}, v{vOff} offset:{L_CNT}")
    A("s_waitcnt lgkmcnt(0)")
    A(f"v_add_u32 v{b + 2}, v{c}, v{c + 1}")
    A(f"v_add_u32 v{b + 3}, v{b + 2}, v{c + 2}")
    A(f"v_add_u32 v{vT}, v{b + 3}, v{c + 3}")
    A(f"v_mov_b32 v{vT + 1}, v{vT}")
    wave_scan(A, vT + 1)
    A(f"v_sub_u32 v{b}, v{vT + 1}, v{vT}")
    A(f"v_add_u32 v{b + 1}, v{b}, v{c}")
    A(f"v_add_u32 v{b + 2}, v{b}, v{b + 2}")
    A(f"v_add_u32 v{b + 3}, v{b}, v{b + 3}")
    A(f"ds_write_b128 v{vOff}, {vr(b, 4)} offset:{L_BASE}")
    for i in range(4):
        A(f"v_lshl_or_b32 v{c + i}, v{c + i}, 16, v{b + i}")
    A(f"s_lshl_b32 s3, s{sC}, 10")
    A(f"buffer_store_dwordx4 {vr(c, 4)}, v{vOff}, {sr(S_OFFS, 4)}, s3 offen {st}")
    A("s_waitcnt lgkmcnt(0)")
    A("Lp_noscan:")
    A("s_barrier")
    stamp(A, opt, 5)
    for r in range(2):
        A(f"s_mov_b64 exec, {sr((sM0, sM1)[r], 2)}")
        A(f"s_cbranch_execz Lp_p2_{r}")
        for i in range(4 * r, 4 * r + 4):
            A(f"ds_read_b32 v{vA + i}, v{vA + i} offset:{L_BASE}")
        for i in range(4 * r, 4 * r + 4):
            A("s_waitcnt lgkmcnt(3)")
            A(f"v_add_lshl_u32 v{vA + i}, v{vA + i}, v{vR + i}, 2")
            A(f"ds_write_b32 v{vA + i}, v{vS + i} offset:{L_SORT}")
        A(f"Lp_p2_{r}:")
    A("s_mov_b64 exec, -1")
    A("s_waitcnt lgkmcnt(0)")
    A("s_barrier")
    stamp(A, opt, 6)
    for r in range(2):
        A(f"s_mov_b64 exec, {sr((sM0, sM1)[r], 2)}")
        A("s_cbranch_execz Lk1_done")
        A(f"ds_read_b128 {vr(vE + 4 * r, 4)}, v{vOff} offset:{L_SORT + 8192 * r}")
        A("s_waitcnt lgkmcnt(0)")
        A(f"buffer_store_dwordx4 {vr(vE + 4 * r, 4)}, v{vOff}, {sr(S_REC, 4)}, s{(sB0, sB1)[r]} offen {st}")
    A("s_branch Lk1_done")


def gen_dump(A, opt):
    A(f"""
    v_and_b32 v1, 31, v0
    v_bfe_u32 v2, v0, 5, 1
    v_lshrrev_b32 v3, 6, v0
    v_lshlrev_b32 v4, 4, v0
    s_lshl_b32 s3, s70, 13
    s_cmp_eq_u32 s70, 8
    s_waitcnt lgkmcnt(0)
    s_cbranch_scc1 Ld_wc
    s_cmp_lt_u32 s70, 4
    s_cselect_b32 s28, s{P_WA}, s{P_WU}
    s_cselect_b32 s29, s{P_WA + 1}, s{P_WU + 1}
    s_mov_b32 s30, 32768
    s_and_b32 s44, s70, 3
    s_lshl_b32 s44, s44, 6
    v_lshlrev_b32 v5, 12, v3
    v_lshl_add_u32 v5, v2, 11, v5
    v_lshl_add_u32 v5, v1, 1, v5
    s_branch Ld_go
    Ld_wc:
    """)
    srd(A, 36, P_WS, 512, TAB_OFF + TAB_BYTES)
    A(f"""
    v_lshlrev_b32 v5, 2, v0
    v_mov_b32 v6, 0x7c00
    buffer_store_dword v6, v5, s[36:39], 0 offen
    s_mov_b64 s[28:29], {sr(P_WC, 2)}
    s_mov_b32 s30, 4096
    s_mov_b32 s44, 0
    v_lshlrev_b32 v5, 11, v2
    v_lshl_add_u32 v5, v1, 3, v5
    v_lshl_add_u32 v5, v3, 1, v5
    Ld_go:
    s_mov_b32 s31, 0x20000
    """)
    srd(A, 32, P_WS, 65536 + 4096, FR_OFF)
    for i in range(8):
        A(f"buffer_load_ushort v{8 + i}, v5, s[28:31], s44 offen offset:{256 * i}")
    A("s_waitcnt vmcnt(0)")
    for i in range(4):
        A(f"v_lshl_or_b32 v{16 + i}, v{9 + 2 * i}, 16, v{8 + 2 * i}")
    A("buffer_store_dwordx4 v[16:19], v4, s[32:35], s3 offen")
    A("s_branch Lk1_done")


def gen_gemm(A, opt):
    st = opt.get("k1_store", "")
    S_X, S_W, S_T = 28, 32, 36
    sRt, sHalf, sW, sXo, sWo, sO0, sO1, sNl = 56, 57, 58, 59, 60, 62, 63, 64
    vXa, vWa, vXr, vTr, vSo = 4, 8, 12, 16, 18
    vX, vAcc, vF = 20, 52, 84
    A(f"""
    s_lshr_b32 s{sRt}, s2, 4
    s_lshl_b32 s{sRt}, s{sRt}, 3
    s_and_b32 s3, s2, 7
    s_add_u32 s{sRt}, s{sRt}, s3
    s_bfe_u32 s{sHalf}, s2, 0x10003
    s_cmp_lt_u32 s2, 192
    s_cbranch_scc1 Lg_map
    s_lshr_b32 s{sRt}, s2, 1
    s_and_b32 s{sHalf}, s2, 1
    Lg_map:
    v_lshrrev_b32 v1, 6, v0
    v_and_b32 v2, 15, v0
    v_readfirstlane_b32 s{sW}, v1
    v_bfe_u32 v3, v0, 4, 2
    v_xor_b32 v20, v2, v3
    v_lshlrev_b32 v20, 4, v20
    v_lshl_add_u32 v{vXa}, v3, 8, v20
    v_xor_b32 v{vXa + 1}, 64, v{vXa}
    v_xor_b32 v{vXa + 2}, 0x80, v{vXa}
    v_xor_b32 v{vXa + 3}, 0xc0, v{vXa}
    v_and_b32 v21, 7, v0
    v_and_b32 v22, 1, v3
    v_lshlrev_b32 v22, 1, v22
    v_xor_b32 v21, v21, v22
    v_lshlrev_b32 v21, 4, v21
    v_bfe_u32 v23, v0, 3, 3
    v_lshl_add_u32 v{vWa}, v23, 8, v21
    v_xor_b32 v{vWa + 1}, 64, v{vWa}
    v_add_u32 v{vWa + 2}, 2048, v{vWa}
    v_add_u32 v{vWa + 3}, 3072, v{vWa + 1}
    v_add_u32 v{vWa + 1}, 1024, v{vWa + 1}
    s_lshl_b32 s3, s{sW}, 12
    s_lshl_b32 s{sXo}, s{sRt}, 15
    s_add_u32 s{sXo}, s{sXo}, s3
    s_and_b32 s{sWo}, s{sW}, 3
    s_lshl_b32 s{sWo}, s{sWo}, 13
    s_lshl_b32 s61, s{sHalf}, 7
    s_add_u32 s{sWo}, s{sWo}, s61
    s_add_u32 m0, s3, 32768
    s_cmp_lt_u32 s{sW}, 4
    s_waitcnt lgkmcnt(0)
    s_cselect_b32 s{S_W}, s{P_WB}, s{P_WV}
    s_cselect_b32 s{S_W + 1}, s{P_WB + 1}, s{P_WV + 1}
    s_mov_b32 s{S_W + 2}, 32768
    s_mov_b32 s{S_W + 3}, 0x20000
    """)
    stamp(A, opt, 1)
    srd(A, S_X, P_X, N * 256)
    for i in range(4):
        A(f"buffer_load_dwordx4 v{vWa + i}, {sr(S_W, 4)}, s{sWo} offen offset:{1024 * i} lds")
    A("s_mov_b32 m0, s3")
    A("s_nop 0")
    for i in range(4):
        A(f"buffer_load_dwordx4 v{vXa + i}, {sr(S_X, 4)}, s{sXo} offen offset:{1024 * i} lds")
    stamp(A, opt, 2)
    srd(A, S_T, P_WS, TAB_BYTES, TAB_OFF)
    A(f"""
    s_lshl_b32 s{sO0}, s{sRt}, 16
    s_lshl_b32 s3, s{sHalf}, 8
    s_add_u32 s{sO0}, s{sO0}, s3
    s_add_u32 s{sO1}, s{sO0}, 8192
    s_mov_b32 s{sNl}, {hex(f32(NLOG2E))}
    v_lshrrev_b32 v24, 1, v1
    v_lshl_add_u32 v24, v24, 5, v2
    v_lshl_add_u32 v{vXr}, v24, 8, v20
    v_xor_b32 v{vXr + 1}, 64, v{vXr}
    v_xor_b32 v{vXr + 2}, 0x80, v{vXr}
    v_xor_b32 v{vXr + 3}, 0xc0, v{vXr}
    v_and_b32 v25, 1, v1
    v_lshlrev_b32 v26, 4, v3
    v_lshl_add_u32 v26, v25, 7, v26
    v_lshl_add_u32 v{vSo}, v24, 9, v26
    v_bfe_u32 v26, v0, 3, 1
    v_or_b32 v26, v26, v22
    v_lshlrev_b32 v25, 1, v25
    v_xor_b32 v26, v26, v25
    v_lshlrev_b32 v26, 5, v26
    v_and_b32 v27, 3, v0
    v_lshl_add_u32 v26, v27, 3, v26
    v_bfe_u32 v27, v0, 2, 2
    v_lshl_add_u32 v27, v3, 3, v27
    v_lshl_add_u32 v{vTr}, v27, 7, v26
    v_xor_b32 v{vTr + 1}, 32, v{vTr}
    s_waitcnt vmcnt(0)
    """)
    stamp(A, opt, 3)
    A("s_barrier")
    stamp(A, opt, 4)

    def frag_reads(s, buf):
        for nb in range(2):
            A(f"ds_read_b128 {vr(vX + 16 * nb + 4 * s, 4)}, v{vXr + s} offset:{4096 * nb}")
        for m in range(2):
            for be in range(2):
                for z in range(2):
                    A(f"ds_read_b64_tr_b16 {vr(vF + 16 * buf + 8 * m + 4 * be + 2 * z, 2)}, v{vTr + be} "
                      f"offset:{32768 + m * 16384 + s * 4096 + z * 512}")

    frag_reads(0, 0)
    for s in range(4):
        buf = s & 1
        if s < 3:
            frag_reads(s + 1, buf ^ 1)
            A("s_waitcnt lgkmcnt(10)")
        else:
            A("s_waitcnt lgkmcnt(0)")
        for be in range(2):
            for nb in range(2):
                for m in range(2):
                    d = vAcc + 16 * m + 8 * nb + 4 * be
                    cc = "0" if s == 0 else vr(d, 4)
                    A(f"v_mfma_f32_16x16x32_bf16 {vr(d, 4)}, {vr(vF + 16 * buf + 8 * m + 4 * be, 4)}, "
                      f"{vr(vX + 16 * nb + 4 * s, 4)}, {cc}")
    A("s_nop 1")
    stamp(A, opt, 5)
    for be in range(2):
        for nb in range(2):
            lo = vAcc + 8 * nb + 4 * be
            hi = lo + 16
            for i in range(4):
                A(f"v_fma_mixlo_f16 v{hi + i}, v{lo + i}, s{sNl}, 0")
            A(f"buffer_store_dwordx4 {vr(hi, 4)}, v{vSo}, {sr(S_T, 4)}, s{(sO0, sO1)[nb]} offen offset:{64 * be} {st}")
    stamp(A, opt, 6)


def gen_k1(A, opt):
    STAMP_BASE[0] = 80
    A("prep_kernel:")
    A(f"s_cmp_ge_u32 s2, {NK1}")
    A("s_cbranch_scc1 Lk1_exit")
    stamp(A, opt, 0)
    load_kernargs(A)
    A(f"s_cmp_ge_u32 s2, {NGEMM}")
    A("s_cbranch_scc1 Lk1_other")
    gen_gemm(A, opt)
    A("Lk1_done:")
    stamp_flush(A, opt, 8, 0x40000, 0)
    A("Lk1_exit:")
    A("s_endpgm")
    A("Lk1_other:")
    A(f"s_sub_u32 s70, s2, {NGEMM}")
    A(f"s_cmp_ge_u32 s70, {NCH}")
    A("s_cbranch_scc1 Lk1_dump")
    gen_partition(A, opt)
    A("Lk1_dump:")
    A(f"s_sub_u32 s70, s70, {NCH}")
    gen_dump(A, opt)


def gen_fused_head(A, opt):
    A(f"""
    {NAME}_kernel:
    s_cmp_ge_u32 s2, 256
    s_cbranch_scc1 Lk2_exit
    s_memrealtime s[100:101]
    s_mov_b32 s99, s2
    """)
    load_kernargs(A)
    A("Lf_job:")
    A(f"s_cmp_ge_u32 s2, {NGEMM}")
    A("s_cbranch_scc1 Lk1_other")
    gen_gemm(A, opt)
    A(f"""
    Lk1_done:
    s_mov_b64 exec, -1
    s_waitcnt vmcnt(0) lgkmcnt(0)
    s_barrier
    s_add_u32 s2, s2, 256
    s_cmp_lt_u32 s2, {NK1}
    s_cbranch_scc1 Lf_job
    s_mov_b32 s2, s99
    v_cmp_gt_u32 vcc, 64, v0
    s_cbranch_vccz Lf_wait
    """)
    srd(A, 28, P_DBG, 256)
    A("""
    buffer_wbl2 sc1
    s_waitcnt vmcnt(0)
    v_mov_b32 v1, 0
    v_mov_b32 v2, 1
    s_mov_b64 exec, 1
    buffer_atomic_add v2, v1, s[28:31], 0 offen sc1
    s_mov_b32 s40, 0
    Lf_poll:
    buffer_load_dword v3, v1, s[28:31], 0 offen sc1
    s_add_u32 s40, s40, 1
    s_waitcnt vmcnt(0)
    v_readfirstlane_b32 s3, v3
    s_cmp_gt_u32 s40, 200000
    s_cbranch_scc1 Lf_out
    s_cmp_lt_u32 s3, 256
    s_cbranch_scc1 Lf_poll
    Lf_out:
    s_mov_b64 exec, -1
    buffer_inv sc1
    s_waitcnt vmcnt(0)
    Lf_wait:
    s_barrier
    s_branch Lf_main
    Lk1_other:
    """)
    A(f"s_sub_u32 s70, s2, {NGEMM}")
    A(f"s_cmp_ge_u32 s70, {NCH}")
    A("s_cbranch_scc1 Lk1_dump")
    gen_partition(A, opt)
    A("Lk1_dump:")
    A(f"s_sub_u32 s70, s70, {NCH}")
    gen_dump(A, opt)
    A("Lf_main:")


def gen_k2(A, opt):
    STAMP_BASE[0] = 2
    ea_pol = opt.get("ea_load", "")
    pf_lanes = int(opt.get("pf", 32))
    S_TAB, S_EA, S_REC, S_OFFS, S_FR, S_X, S_OUT = 28, 32, 36, 40, 44, 48, 52
    sW, sBk, sN0, sW0, sT, sTi, sInc, sNl = 56, 57, 58, 59, 60, 61, 62, 63
    sC0, sCur, sNext, sMore, sTmp = 64, 66, 68, 70, 72
    sMask = 74
    sOvf, sMor, sQ1, sQ2, sQ3 = 90, 91, 92, 93, 94
    sLw, sF0, sOwn, sRem, sSW = 95, 96, 97, 98, 99
    sSl0, sSl1, sLn = sCur, sCur + 1, sNext
    L_CNT, L_BASE, L_FLAG = 0, 2048, 4096
    L_SO = 4352
    LIST = 17152
    L_EO = L_SO + LIST
    L_STR = L_EO + LIST
    STRW = 2560
    L_X = L_STR + 8 * STRW
    L_TA = L_X + 64 * 272 + 1024
    L_TU = L_TA + 64 * 528
    L_END = L_TU + 64 * 528
    NS = 9
    vSl, vD, vL, vWC, vEA, vT, vSo, vLo = 0, 108, 172, 204, 220, 224, 232, 236
    vSp, vEp, vEo, vH16, vSb, vTid, vOffs = 238, 239, 240, 241, 242, 243, 244
    vWf, vG, vXf, vXs = 0, 32, 64, 96
    vRec, vKey, vRank, vSoff, vEoff, vX = vD, vD + 8, vD + 16, vD + 24, vD + 32, vD + 40
    c0 = 2.0 ** -KSH

    if opt.get("fuse"):
        gen_fused_head(A, opt)
    else:
        A(f"{NAME}_kernel:")
        A("s_cmp_ge_u32 s2, 256")
        A("s_cbranch_scc1 Lk2_exit")
        stamp(A, opt, 0)
        load_kernargs(A)
    A(f"""
    s_and_b32 s3, s2, 7
    s_lshl_b32 s3, s3, 5
    s_lshr_b32 s{sBk}, s2, 3
    s_add_u32 s{sBk}, s{sBk}, s3
    s_mul_i32 s{sN0}, s{sBk}, {NPB}
    v_mov_b32 v{vTid}, v0
    v_lshrrev_b32 v{vX}, 6, v0
    v_lshrrev_b32 v{vX + 1}, 2, v0
    v_readfirstlane_b32 s{sW}, v{vX}
    v_lshlrev_b32 v{vX + 1}, 10, v{vX + 1}
    v_lshlrev_b32 v{vX + 2}, 4, v0
    v_and_b32 v{vX + 3}, 0x3f0, v{vX + 2}
    v_and_b32 v{vLo}, 0x1f0, v{vX + 2}
    v_bfe_u32 v{vX + 4}, v0, 5, 1
    v_mov_b32 v{vLo + 1}, v{vLo}
    v_lshlrev_b32 v{vH16}, 4, v{vX + 4}
    s_lshl_b32 s3, s{sBk}, 2
    s_lshl_b32 s{sTmp}, s{sN0}, 8
    s_add_u32 s{sTmp + 1}, s{sTmp}, 8192
    s_lshl_b32 s{sQ1}, s{sW}, 13
    s_add_u32 s{sQ2}, s{sQ1}, 4096
    s_mov_b32 s{sQ3}, 65536
    s_waitcnt lgkmcnt(0)
    """)
    srd(A, S_OFFS, P_WS, NCH * 1024, OFF_OFF)
    A(f"buffer_load_dword v{vOffs}, v{vX + 1}, {sr(S_OFFS, 4)}, s3 offen")
    srd(A, S_X, P_X, N * 256)
    for i in range(2):
        A(f"buffer_load_dwordx4 {vr(vXs + 4 * i, 4)}, v{vX + 2}, {sr(S_X, 4)}, s{sTmp + i} offen")
    srd(A, S_FR, P_WS, 65536 + 4096, FR_OFF)
    for s in range(8):
        A(f"buffer_load_dwordx4 {vr(vWf + 4 * s, 4)}, v{vX + 3}, {sr(S_FR, 4)}, s{(sQ1, sQ2)[s >> 2]} offen offset:{1024 * (s & 3)}")
    for j in range(4):
        A(f"buffer_load_dwordx4 {vr(vWC + 4 * j, 4)}, v{vX + 3}, {sr(S_FR, 4)}, s{sQ3} offen offset:{1024 * j}")
    srd(A, S_REC, P_WS, NCH * CH * 4, REC_OFF)
    srd(A, S_TAB, P_WS, 0 if opt.get("notab") else TAB_BYTES + 512, TAB_OFF)
    srd(A, S_EA, P_EA, 0 if opt.get("noea") else E * 32)
    srd(A, S_OUT, P_OUT, N * 256)
    vZero, vOne, vXw, vXrd, vTw, vInv = vX + 5, vX + 6, vX + 7, vX + 8, vX + 9, vX + 10
    A(f"""
    s_mov_b32 s{sNl}, {hex(f32(NLOG2E))}
    s_mov_b32 s{sC0}, {hex(f32(c0))}
    s_mov_b32 s{sC0 + 1}, {hex(f32(c0))}
    s_mov_b32 s{sW0}, 0
    s_mul_i32 s{sSW}, s{sW}, {STRW}
    s_add_u32 s{sSW}, s{sSW}, {L_STR}
    v_mov_b32 v{vZero}, 0
    v_mov_b32 v{vOne}, 1
    v_lshlrev_b32 v{vX + 11}, 2, v{vTid}
    ds_write_b32 v{vX + 11}, v{vZero} offset:{L_CNT}
    ds_write_b32 v{vZero}, v{vZero} offset:{L_FLAG}
    v_lshrrev_b32 v{vX + 11}, 4, v{vTid}
    v_lshl_add_u32 v{vXw}, v{vX + 11}, 4, v{vX + 2}
    v_and_b32 v{vX + 11}, 31, v{vTid}
    v_mul_u32_u24 v{vXrd}, 272, v{vX + 11}
    v_add_u32 v{vXrd}, v{vXrd}, v{vH16}
    v_mul_u32_u24 v{vTw}, 528, v{vX + 11}
    s_and_b32 s3, s{sW}, 3
    s_lshl_b32 s3, s3, 7
    s_cmp_lt_u32 s{sW}, 4
    s_cselect_b32 s{sTmp}, 0, {L_TU - L_TA}
    s_add_u32 s3, s3, s{sTmp}
    s_add_u32 s3, s3, {L_TA}
    v_add3_u32 v{vTw}, v{vTw}, v{vH16}, s3
    v_lshl_add_u32 v{vX + 12}, v{vX + 11}, 2, s{sSW}
    v_bfrev_b32 v{vX + 13}, 2
    ds_write_b32 v{vX + 12}, v{vX + 13} offset:{1152 + 1024}
    v_add_u32 v{vSp}, s{sSW}, v{vH16}
    v_lshrrev_b32 v{vX + 12}, 3, v{vX + 11}
    v_bfe_u32 v{vX + 13}, v{vX + 11}, 1, 1
    v_lshl_add_u32 v{vX + 12}, v{vX + 12}, 1, v{vX + 13}
    v_bfe_u32 v{vX + 13}, v{vX + 11}, 2, 1
    v_lshl_add_u32 v{vX + 12}, v{vX + 12}, 1, v{vX + 13}
    v_and_b32 v{vX + 13}, 1, v{vX + 11}
    v_lshl_add_u32 v{vX + 12}, v{vX + 12}, 1, v{vX + 13}
    v_lshl_add_u32 v{vEp}, v{vX + 12}, 2, s{sSW}
    """)

    def batch_masks():
        A(f"""
        v_lshrrev_b32 v{vX}, 16, v{vOffs}
        v_and_b32 v{vX + 1}, 3, v{vTid}
        v_subrev_u32 v{vX}, s{sW0}, v{vX}
        v_lshlrev_b32 v{vX + 1}, 2, v{vX + 1}
        v_cmp_lt_i32_e64 {sr(sMore, 2)}, 32, v{vX}
        v_sub_u32 v{vX}, v{vX}, v{vX + 1}
        """)
        for i in range(8):
            A(f"v_cmp_lt_i32_e64 {sr(sMask + 2 * i, 2)}, {(i & 3) + 16 * (i >> 2)}, v{vX}")

    def rec_loads():
        A(f"""
        v_lshrrev_b32 v{vX + 2}, 2, v{vTid}
        v_and_b32 v{vX + 1}, 3, v{vTid}
        v_mul_u32_u24 v{vX + 2}, {CH}, v{vX + 2}
        v_and_b32 v{vX + 4}, 0xffff, v{vOffs}
        v_lshl_add_u32 v{vX + 1}, v{vX + 1}, 2, s{sW0}
        v_add3_u32 v{vX + 4}, v{vX + 4}, v{vX + 2}, v{vX + 1}
        v_lshlrev_b32 v{vX + 4}, 2, v{vX + 4}
        buffer_load_dwordx4 {vr(vRec, 4)}, v{vX + 4}, {sr(S_REC, 4)}, 0 offen
        buffer_load_dwordx4 {vr(vRec + 4, 4)}, v{vX + 4}, {sr(S_REC, 4)}, 0 offen offset:64
        v_lshlrev_b32 v{vX + 2}, 5, v{vX + 2}
        """)

    def histogram(keep_node):
        for i in range(8):
            A(f"v_alignbit_b32 v{vKey + i}, v{vRec + i}, v{vRec + i}, 27")
            A(f"v_and_b32 v{vKey + i}, 0x7fc, v{vKey + i}")
            A(f"s_mov_b64 exec, {sr(sMask + 2 * i, 2)}")
            A(f"ds_add_rtn_u32 v{vRank + i}, v{vKey + i}, v{vOne} offset:{L_CNT}")
            A("s_mov_b64 exec, -1")
        A("s_movk_i32 s3, 0x1ff")
        for i in range(8):
            A(f"v_lshrrev_b32 v{vSoff + i}, {9 if keep_node else 18}, v{vRec + i}")
            A(f"v_bfe_u32 v{vEoff + i}, v{vRec + i}, 6, 12")
            if keep_node:
                if opt.get("smalltab"):
                    A(f"v_and_b32 v{vSoff + i}, {int(opt['smalltab']) * 512}, v{vSoff + i}")
                A(f"v_bfi_b32 v{vSoff + i}, s3, v{vRec + i}, v{vSoff + i}")
            else:
                A(f"v_lshlrev_b32 v{vSoff + i}, 9, v{vSoff + i}")
            A(f"v_lshl_add_u32 v{vEoff + i}, v{vEoff + i}, 5, v{vX + 2}")

    def place():
        for i in range(8):
            A(f"v_add_lshl_u32 v{vKey + i}, v{vKey + i}, v{vRank + i}, 2")
            A(f"s_mov_b64 exec, {sr(sMask + 2 * i, 2)}")
            A(f"ds_write_b32 v{vKey + i}, v{vSoff + i} offset:{L_SO}")
            A(f"ds_write_b32 v{vKey + i}, v{vEoff + i} offset:{L_EO}")
            A("s_mov_b64 exec, -1")

    A("s_waitcnt vmcnt(14)")
    stamp(A, opt, 1)
    rec_loads()
    A("s_waitcnt vmcnt(14)")
    A(f"ds_write_b128 v{vXw}, {vr(vXs, 4)} offset:{L_X}")
    A(f"v_add_u32 v{vXw}, {32 * 272}, v{vXw}")
    A(f"ds_write_b128 v{vXw}, {vr(vXs + 4, 4)} offset:{L_X}")
    batch_masks()
    A("s_waitcnt lgkmcnt(0)")
    A("s_barrier")
    for s in range(8):
        A(f"ds_read_b128 {vr(vXf + 4 * s, 4)}, v{vXrd} offset:{L_X + 32 * s}")
    A(f"v_add_u32 v{vXrd}, {32 * 272}, v{vXrd}")
    A("s_waitcnt vmcnt(6)")
    for nb in range(2):
        for s in range(8):
            A(f"s_waitcnt lgkmcnt({7 if nb == 0 else 7 - s})")
            cc = "0" if s == 0 else vr(vG + 16 * nb, 16)
            A(f"v_mfma_f32_32x32x16_bf16 {vr(vG + 16 * nb, 16)}, {vr(vWf + 4 * s, 4)}, {vr(vXf + 4 * s, 4)}, {cc}")
            if nb == 0:
                A(f"ds_read_b128 {vr(vXf + 4 * s, 4)}, v{vXrd} offset:{L_X + 32 * s}")
    A(f"s_mov_b64 vcc, {sr(sMore, 2)}")
    A(f"s_cmp_ge_u32 s{sW}, 4")
    A("s_cbranch_scc1 Lu_wave")
    A(f"v_mov_b32 v{vXs}, {hex(f32(-float(KSH)))}")
    A(f"v_mov_b32 v{vXs + 1}, {hex(f32(-float(KSH)))}")
    A(f"v_mov_b32 v{vXs + 2}, 0")
    A(f"s_mov_b32 s{sTmp}, s{sNl}")
    A(f"s_mov_b32 s{sTmp + 1}, s{sNl}")
    for i in range(0, 32, 2):
        A(f"v_max3_f32 v{vXs + 2}, |v{vG + i}|, |v{vG + i + 1}|, v{vXs + 2}")
        A(f"v_pk_fma_f32 {vr(vG + i, 2)}, {vr(vG + i, 2)}, {sr(sTmp, 2)}, {vr(vXs, 2)}")
    A(f"v_cmp_lt_f32 vcc, {hex(f32(AMAX))}, v{vXs + 2}")
    A(f"s_or_b64 vcc, vcc, {sr(sMore, 2)}")
    A("Lu_wave:")
    for nb in range(2):
        if nb == 1:
            A("s_nop 7")
        for g in range(4):
            A(f"ds_write_b128 v{vTw}, {vr(vG + 16 * nb + 4 * g, 4)} offset:{32 * 528 * nb + 32 * g}")
    A("s_mov_b64 exec, vcc")
    A(f"ds_write_b32 v{vZero}, v{vOne} offset:{L_FLAG}")
    A("s_mov_b64 exec, -1")
    A("s_waitcnt vmcnt(0)")
    stamp(A, opt, 2)
    histogram(True)
    A("s_waitcnt lgkmcnt(0)")
    A("s_barrier")
    c, p, deg, q, inc, g4, la = vL, vL + 8, vL + 16, vL + 17, vL + 18, vL + 19, vL + 20
    A(f"v_lshlrev_b32 v{la}, 1, v{vX + 3}")
    A(f"ds_read_b128 {vr(c, 4)}, v{la} offset:{L_CNT}")
    A(f"ds_read_b128 {vr(c + 4, 4)}, v{la} offset:{L_CNT + 16}")
    if pf_lanes:
        A(f"""
        s_lshr_b32 s3, s2, 3
        s_lshl_b32 s3, s3, 3
        s_add_u32 s3, s3, s{sW}
        s_mul_i32 s3, s3, {pf_lanes * 128}
        v_lshlrev_b32 v{vL + 21}, 3, v{vX + 3}
        s_bfm_b64 exec, {pf_lanes & 63}, 0
        {'s_mov_b64 exec, -1' if pf_lanes == 64 else ''}
        buffer_load_dword v{vL + 22}, v{vL + 21}, {sr(S_TAB, 4)}, s3 offen
        s_mov_b64 exec, -1
        """)
    A("s_waitcnt lgkmcnt(1)")
    A(f"v_add_u32 v{p + 2}, v{c}, v{c + 1}")
    A(f"v_add_u32 v{p + 3}, v{p + 2}, v{c + 2}")
    A(f"v_add_u32 v{p + 4}, v{p + 3}, v{c + 3}")
    A("s_waitcnt lgkmcnt(0)")
    for i in range(5, 8):
        A(f"v_add_u32 v{p + i}, v{p + i - 1}, v{c + i - 1}")
    A(f"v_add_u32 v{deg}, v{p + 7}, v{c + 7}")
    A(f"v_add_u32 v{q}, 3, v{deg}")
    A(f"v_lshrrev_b32 v{q}, 2, v{q}")
    A(f"v_mov_b32 v{inc}, v{q}")
    wave_scan(A, inc)
    A(f"v_sub_u32 v{g4}, v{inc}, v{q}")
    A(f"v_readlane_b32 s3, v{inc}, 63")
    A(f"v_lshlrev_b32 v{p}, 2, v{g4}")
    A(f"v_add_u32 v{p + 1}, v{p}, v{c}")
    for i in range(2, 8):
        A(f"v_add_u32 v{p + i}, v{p}, v{p + i}")
    A(f"ds_write_b128 v{la}, {vr(p, 4)} offset:{L_BASE}")
    A(f"ds_write_b128 v{la}, {vr(p + 4, 4)} offset:{L_BASE + 16}")
    for i in range(8):
        A(f"ds_read_b32 v{vKey + i}, v{vKey + i} offset:{L_BASE}")
    A(f"""
    s_mul_i32 s{sLw}, s3, s{sW}
    s_add_u32 s{sRem}, s{sLw}, s3
    s_lshr_b32 s{sLw}, s{sLw}, 3
    s_lshr_b32 s{sRem}, s{sRem}, 3
    v_cmp_gt_u32_e64 {sr(sTmp, 2)}, s{sLw}, v{g4}
    v_cmp_gt_u32 vcc, s{sRem}, v{g4}
    v_add_u32 v{deg}, s{sW}, v{deg}
    v_lshlrev_b32 v{q}, 2, v{q}
    s_bcnt1_i32_b64 s{sF0}, {sr(sTmp, 2)}
    s_bcnt1_i32_b64 s{sOwn}, vcc
    v_cmp_lt_u32 vcc, v{deg}, v{q}
    v_add_lshl_u32 v{deg}, v{deg}, v{p}, 2
    v_mov_b32 v{c}, {TAB_BYTES}
    v_bfrev_b32 v{c + 1}, 2
    s_cmp_eq_u32 s{sW}, 7
    s_cselect_b32 s{sOwn}, {NPB}, s{sOwn}
    s_sub_u32 s{sOwn}, s{sOwn}, s{sF0}
    s_sub_u32 s{sRem}, s{sRem}, s{sLw}
    s_mov_b64 exec, vcc
    ds_write_b32 v{deg}, v{c} offset:{L_SO}
    ds_write_b32 v{deg}, v{c + 1} offset:{L_EO}
    s_sub_u32 s3, s{sOwn}, 1
    s_sub_u32 s{sTmp}, s{sRem}, 1
    s_lshr_b32 s3, s3, 3
    s_lshr_b32 s{sTmp}, s{sTmp}, 6
    s_or_b32 s3, s3, s{sTmp}
    s_cselect_b64 exec, 1, 0
    ds_write_b32 v{vZero}, v{vOne} offset:{L_FLAG}
    s_mov_b64 exec, -1
    s_waitcnt lgkmcnt(0)
    """)
    place()
    so, eo, key, less, eq, z, pos, t = vL, vL + 4, vL + 8, vL + 9, vL + 10, vL + 12, vL + 14, vL + 15
    A(f"""
    s_lshl_b32 s3, s{sLw}, 4
    v_add_u32 v{t}, s3, v{vX + 3}
    v_lshrrev_b32 v{t + 1}, 4, v{vX + 3}
    v_cmp_le_u32_e64 {sr(sTmp, 2)}, s{sRem}, v{t + 1}
    v_bfrev_b32 v{t + 2}, 2
    s_waitcnt lgkmcnt(0)
    s_barrier
    ds_read_b32 v{t + 3}, v{vZero} offset:{L_FLAG}
    ds_read_b128 {vr(so, 4)}, v{t} offset:{L_SO}
    ds_read_b128 {vr(eo, 4)}, v{t} offset:{L_EO}
    v_cndmask_b32_e64 v{vInv}, 0, v{t + 2}, {sr(sTmp, 2)}
    s_sub_u32 s{sQ1}, s{sF0}, 1
    s_mul_i32 s{sQ2}, s{sQ1}, 528
    s_add_u32 s{sQ2}, s{sQ2}, {L_TA}
    v_add_u32 v{t + 4}, s{sQ2}, v{vLo}
    s_mov_b32 s{sQ3}, 0xfffffe00
    s_waitcnt lgkmcnt(2)
    v_readfirstlane_b32 s3, v{t + 3}
    s_waitcnt lgkmcnt(1)
    v_lshrrev_b32 v{key}, 20, v{so + 1}
    v_and_b32 v{t + 3}, 63, v{so}
    s_cmp_lg_u32 s3, 0
    s_cbranch_scc1 Lslow_entry
    v_cndmask_b32_e64 v{key}, v{key}, 7, {sr(sTmp, 2)}
    v_subrev_u32 v{t + 3}, s{sQ1}, v{t + 3}
    v_mov_b32 v{less}, 0
    v_mov_b64 {vr(eq, 2)}, -1
    v_mul_u32_u24 v{t + 3}, 12, v{t + 3}
    """)
    stamp(A, opt, 3)
    for bit in (2, 1, 0):
        A(f"""
        v_and_b32 v{t}, {1 << bit}, v{key}
        v_cmp_eq_u32 vcc, 0, v{t}
        v_and_or_b32 v{so + bit}, v{so + bit}, s{sQ3}, v{vInv}
        s_nop 0
        v_and_b32 v{z}, vcc_lo, v{eq}
        v_and_b32 v{z + 1}, vcc_hi, v{eq + 1}
        v_bcnt_u32_b32 v{t}, v{z}, v{less}
        v_xor_b32 v{eq}, v{eq}, v{z}
        v_bcnt_u32_b32 v{t}, v{z + 1}, v{t}
        v_xor_b32 v{eq + 1}, v{eq + 1}, v{z + 1}
        v_cndmask_b32 v{eq}, v{eq}, v{z}, vcc
        v_cndmask_b32 v{eq + 1}, v{eq + 1}, v{z + 1}, vcc
        v_cndmask_b32 v{less}, v{t}, v{less}, vcc
        """)
    A(f"""
    v_and_or_b32 v{so + 3}, v{so + 3}, s{sQ3}, v{vInv}
    v_mbcnt_lo_u32_b32 v{pos}, v{eq}, v{less}
    v_mbcnt_hi_u32_b32 v{pos}, v{eq + 1}, v{pos}
    s_waitcnt lgkmcnt(0)
    v_or_b32 v{eo}, v{eo}, v{vInv}
    v_or_b32 v{eo + 1}, v{eo + 1}, v{vInv}
    v_or_b32 v{eo + 2}, v{eo + 2}, v{vInv}
    v_or_b32 v{eo + 3}, v{eo + 3}, v{vInv}
    v_lshl_add_u32 v{t}, v{pos}, 4, s{sSW}
    ds_write_b128 v{t}, {vr(eo, 4)} offset:1152
    v_and_b32 v{t + 1}, 1, v{pos}
    v_lshlrev_b32 v{t + 1}, 3, v{t + 1}
    v_sub_u32 v{t}, v{t}, v{t + 1}
    ds_write2_b64 v{t}, {vr(so, 2)}, {vr(so + 2, 2)} offset0:0 offset1:2
    v_add_u32 v{t + 1}, s{sSW}, v{pos}
    ds_write_b8 v{t + 1}, v{t + 3} offset:2304
    ds_read_b32 v{vEo}, v{vEp} offset:1152
    ds_read_b128 {vr(vSo, 4)}, v{vSp}
    ds_read_b128 {vr(vT, 4)}, v{vSp} offset:32
    ds_read_b32 v{vT + 4}, v{vEp} offset:{1152 + 128}
    v_lshrrev_b32 v{t + 1}, 2, v{vX + 3}
    v_add_u32 v{t + 1}, s{sSW}, v{t + 1}
    ds_read_b32 v{vSb}, v{t + 1} offset:2304
    v_mov_b32 v{vT + 5}, v{t + 4}
    s_waitcnt lgkmcnt(4)
    v_add_u32 v{vEo}, v{vEo}, v{vH16}
    buffer_load_dwordx4 {vr(vEA, 4)}, v{vEo}, {sr(S_EA, 4)}, 0 offen {ea_pol}
    """)
    for u in range(4):
        src = (vSo, vSo + 2, vT, vT + 2)[u]
        if u in (0, 2):
            A(f"s_waitcnt lgkmcnt({3 - u // 2})")
        A(f"v_lshl_add_u64 {vr(src, 2)}, {vr(src, 2)}, 0, {vr(vLo, 2)}")
        A(f"buffer_load_dwordx4 {vr(vL + 8 * u, 4)}, v{src}, {sr(S_TAB, 4)}, 0 offen")
        A(f"buffer_load_dwordx4 {vr(vL + 8 * u + 4, 4)}, v{src + 1}, {sr(S_TAB, 4)}, 0 offen")
    for s in range(NS):
        A(f"ds_read_b128 {vr(vSl + 12 * s + 8, 4)}, v{vT + 5} offset:{528 * s}")
    for s in range(NS):
        for j in range(0, 8, 2):
            A(f"v_mov_b64 {vr(vSl + 12 * s + j, 2)}, 0")
    A("s_waitcnt lgkmcnt(0)")
    for s in range(NS):
        for j in range(4):
            A(f"v_exp_f32 v{vSl + 12 * s + 8 + j}, v{vSl + 12 * s + 8 + j}")
    A(f"""
    v_add_u32 v{vEo}, v{vT + 4}, v{vH16}
    v_readlane_b32 s{sSl0}, v{vSb}, 0
    v_readlane_b32 s{sSl1}, v{vSb}, 1
    s_mov_b32 s{sLn}, 2
    s_mov_b32 s{sLn + 1}, 3
    s_mul_i32 s{sQ1}, s{sRem}, 3
    s_lshr_b32 s{sQ1}, s{sQ1}, 2
    s_lshr_b32 s{sQ2}, s{sRem}, 1
    s_lshr_b32 s{sQ3}, s{sRem}, 2
    s_setprio 3
    s_waitcnt vmcnt(8)
    """)
    stamp(A, opt, 4)

    def mfma(j):
        return f"v_mfma_f32_32x32x16_bf16 {vr(vD + 16 * j, 16)}, {vr(vEA, 4)}, {vr(vWC + 4 * j, 4)}, 0"

    for j in range(4):
        A(mfma(j))
    A(f"buffer_load_dwordx4 {vr(vEA, 4)}, v{vEo}, {sr(S_EA, 4)}, 0 offen {ea_pol}")
    A("s_nop 7")
    A("s_nop 1")
    A(f"s_cmp_gt_u32 s{sRem}, 8")
    A("s_cbranch_scc0 Llast")

    def step(u, last):
        La, Lb = vL + 8 * (u & 3), vL + 8 * (u & 3) + 4
        a, b = vT, vT + 4
        sl = (sSl0, sSl1)[u >> 2]
        prefetch = not (last and u >= 4)
        wait = 7 if u < 4 else (6 if not last else 2 * (7 - u))
        A(f"s_waitcnt vmcnt({wait})")
        if prefetch and u % 2 == 0:
            A(f"ds_read_b128 {vr(vSo, 4)}, v{vSp} offset:{16 * (u + 4)}")
        if u == 6 and not last:
            A(f"ds_read_b32 v{vEo}, v{vEp} offset:{1152 + 256}")

        def mix(j, hb):
            return (f"v_fma_mix_f32 v{(a, b)[hb] + j}, v{vD + 16 * j + 2 * u + hb}, s{sNl}, v{(La, Lb)[hb] + j} "
                    "op_sel_hi:[0,0,1]")

        wide = not (prefetch and u % 2 == 0)
        if u == 7 and not last:
            for j in range(4):
                A(mix(j, 0))
                A(mix(j, 1))
                if j:
                    A(f"v_exp_f32 v{a + j - 1}, v{a + j - 1}")
                    A(f"v_exp_f32 v{b + j - 1}, v{b + j - 1}")
                A(mfma(j))
            A(f"v_exp_f32_e64 v{a + 3}, v{a + 3}")
            A(f"v_exp_f32 v{b + 3}, v{b + 3}")
        else:
            for hb in range(2):
                for j in range(4):
                    A(mix(j, hb))
            for j in range(8):
                A(f"v_exp_f32{'_e64' if wide and j == 0 else ''} v{a + j}, v{a + j}")
        if not wide:
            A("s_waitcnt lgkmcnt(0)")
        A(f"s_set_gpr_idx_on s{sl}, gpr_idx(SRC1)")
        for j in range(0, 8, 2):
            A(f"v_pk_fma_f32 {vr(a + j, 2)}, {vr(a + j, 2)}, {vr(vSl + 8 + (j & 3), 2)}, {sr(sC0, 2)} clamp")
        A("s_set_gpr_idx_mode gpr_idx()")
        A(f"s_lshr_b32 s{sl}, s{sl}, 8")
        for j in (0, 2):
            A(f"v_pk_mul_f32 {vr(La + j, 2)}, {vr(La + j, 2)}, {vr(b + j, 2)}")
        so2 = vSo + 2 * (u & 1)
        if prefetch:
            A(f"v_lshl_add_u64 {vr(so2, 2)}, {vr(so2, 2)}, 0, {vr(vLo, 2)}")
        for j in (0, 2):
            A(f"v_pk_fma_f32 {vr(La + j, 2)}, {vr(Lb + j, 2)}, {vr(a + j, 2)}, {vr(La + j, 2)}")
        for j in (0, 2):
            A(f"v_pk_add_f32 {vr(Lb + j, 2)}, {vr(a + j, 2)}, {vr(b + j, 2)}")
        for j in (0, 2):
            A(f"v_pk_mul_f32 {vr(a + j, 2)}, {vr(a + j, 2)}, {vr(b + j, 2)}")
        for j in range(4):
            A(f"v_rcp_f32{'_e64' if j == 0 else ''} v{a + j}, v{a + j}")
        A("s_set_gpr_idx_mode gpr_idx(SRC2,DST)")
        for j in (0, 2):
            A(f"v_pk_fma_f32 {vr(vSl + j, 2)}, {vr(La + j, 2)}, {vr(a + j, 2)}, {vr(vSl + j, 2)}")
            A(f"v_pk_fma_f32 {vr(vSl + 4 + j, 2)}, {vr(Lb + j, 2)}, {vr(a + j, 2)}, {vr(vSl + 4 + j, 2)}")
        if prefetch and not opt.get("noload"):
            A(f"buffer_load_dwordx4 {vr(La, 4)}, v{so2}, {sr(S_TAB, 4)}, 0 offen")
            A(f"buffer_load_dwordx4 {vr(Lb, 4)}, v{so2 + 1}, {sr(S_TAB, 4)}, 0 offen")
        A("s_set_gpr_idx_off")

    A(".p2align 6")
    A("Ltile:")
    A(f"s_sub_u32 s{sRem}, s{sRem}, 8")
    for u in range(8):
        step(u, False)
    A(f"""
    v_add_u32 v{vEo}, v{vEo}, v{vH16}
    buffer_load_dwordx4 {vr(vEA, 4)}, v{vEo}, {sr(S_EA, 4)}, 0 offen {ea_pol}
    v_readlane_b32 s{sSl0}, v{vSb}, s{sLn}
    v_readlane_b32 s{sSl1}, v{vSb}, s{sLn + 1}
    v_add_u32 v{vSp}, 0x80, v{vSp}
    v_add_u32 v{vEp}, 0x80, v{vEp}
    s_add_u32 s{sLn}, s{sLn}, 2
    s_add_u32 s{sLn + 1}, s{sLn + 1}, 2
    """)
    if not opt.get("noprio"):
        for k, sq in enumerate((sQ1, sQ2, sQ3)):
            A(f"s_cmp_le_u32 s{sRem}, s{sq}")
            A("s_cbranch_scc0 Lprio_done")
            A(f"s_setprio {2 - k}")
        A("Lprio_done:")
    A(f"s_cmp_gt_u32 s{sRem}, 8")
    A("s_cbranch_scc1 Ltile")
    A(".p2align 3")
    A("Llast:")
    stamp(A, opt, 5)
    A("s_nop 0")
    for u in range(8):
        step(u, True)
        if u < 7:
            A(f"s_cmp_le_u32 s{sRem}, {u + 1}")
            A("s_cbranch_scc1 Lmain_done")
    A("Lmain_done:")
    stamp(A, opt, 6)

    def finalize(a0, o, a1, u0, x0, addr, soff, pre_store):
        for j in range(4):
            A(f"v_permlane32_swap_b32 v{a0 + j}, v{a1 + j}")
            A(f"v_permlane32_swap_b32 v{a0 + o + j}, v{a1 + o + j}")
        for j in (o, o + 2, 0, 2):
            A(f"v_pk_add_f32 {vr(a0 + j, 2)}, {vr(a0 + j, 2)}, {vr(a1 + j, 2)}")
        for j in (o, o + 2):
            A(f"v_pk_add_f32 {vr(a0 + j, 2)}, {vr(a0 + j, 2)}, {sr(sC0, 2)}")
        for j in range(4):
            A(f"v_rcp_f32 v{a0 + o + j}, v{a0 + o + j}")
        A(f"v_lshlrev_b32 v{a1}, 16, v{x0}")
        A(f"v_and_b32 v{a1 + 1}, 0xffff0000, v{x0}")
        A(f"v_lshlrev_b32 v{a1 + 2}, 16, v{x0 + 1}")
        A(f"v_and_b32 v{a1 + 3}, 0xffff0000, v{x0 + 1}")
        for j in (0, 2):
            A(f"v_pk_fma_f32 {vr(a0 + j, 2)}, {vr(a0 + j, 2)}, {vr(a0 + o + j, 2)}, {vr(u0 + j, 2)}")
        for j in range(4):
            A(f"v_max_f32 v{a0 + j}, 0, v{a0 + j}")
        for j in (0, 2):
            A(f"v_pk_add_f32 {vr(a0 + j, 2)}, {vr(a0 + j, 2)}, {vr(a1 + j, 2)}")
        A(f"v_cvt_pk_bf16_f32 v{a0}, v{a0}, v{a0 + 1}")
        A(f"v_cvt_pk_bf16_f32 v{a0 + 1}, v{a0 + 2}, v{a0 + 3}")
        A(pre_store)
        A(f"buffer_store_dwordx2 {vr(a0, 2)}, v{addr}, {sr(S_OUT, 4)}, s{soff} offen")

    eps = f32(1e-6 / c0)
    vU, vXr, vA1, vA2, vA3, vCy = vD, vD + 16, vD + 24, vD + 25, vD + 26, vD + 32
    A(f"""
    v_lshl_add_u32 v{vA1}, v{vH16}, 5, v{vLo}
    v_add_u32 v{vA1}, s{sSW}, v{vA1}
    ds_write_b128 v{vA1}, {vr(vSl, 4)}
    ds_write_b128 v{vA1}, {vr(vSl + 4, 4)} offset:1024
    s_mul_i32 s3, s{sF0}, 528
    s_add_u32 s3, s3, {L_TU}
    v_mul_u32_u24 v{vA2}, 33, v{vH16}
    v_add3_u32 v{vA2}, v{vA2}, v{vLo}, s3
    s_mul_i32 s3, s{sF0}, 272
    s_add_u32 s3, s3, {L_X}
    v_mul_u32_u24 v{vA3}, 17, v{vH16}
    v_lshrrev_b32 v{vLo + 1}, 1, v{vLo}
    v_add3_u32 v{vA3}, v{vA3}, v{vLo + 1}, s3
    """)
    for pr in range(4):
        A(f"ds_read_b128 {vr(vU + 4 * pr, 4)}, v{vA2} offset:{1056 * pr}")
        A(f"ds_read_b64 {vr(vXr + 2 * pr, 2)}, v{vA3} offset:{544 * pr}")
    A(f"""
    v_lshl_add_u32 v{vA2}, v{vH16}, 4, v{vLo + 1}
    s_add_u32 s{sQ1}, s{sN0}, s{sF0}
    s_lshl_b32 s{sQ1}, s{sQ1}, 8
    s_mov_b32 s{sC0}, {hex(eps)}
    s_mov_b32 s{sC0 + 1}, {hex(eps)}
    s_mul_i32 s{sQ2}, s{sOwn}, 12
    s_waitcnt lgkmcnt(0)
    """)
    for pr in range(4):
        if pr < 3:
            A(f"s_cmp_gt_u32 s{sOwn}, {2 * pr + 2}")
            A(f"s_cbranch_scc1 Lfin{pr}")
        A("s_barrier")
        A(f"s_cmp_eq_u32 s{sW}, 7")
        A(f"s_cbranch_scc1 Lfin{pr}")
        A(f"ds_read_b128 {vr(vCy, 4)}, v{vA1} offset:{STRW}")
        A(f"ds_read_b128 {vr(vCy + 4, 4)}, v{vA1} offset:{STRW + 1024}")
        A(f"s_set_gpr_idx_on s{sQ2}, gpr_idx(SRC0,DST)")
        A("s_waitcnt lgkmcnt(0)")
        for j in range(0, 8, 2):
            A(f"v_pk_add_f32 {vr(vSl + j, 2)}, {vr(vSl + j, 2)}, {vr(vCy + j, 2)}")
        A("s_set_gpr_idx_off")
        A("s_nop 1")
        A(f"Lfin{pr}:")
        finalize(vSl + 12 * (2 * pr + 1), 4, vSl + 12 * (2 * pr + 2), vU + 4 * pr, vXr + 2 * pr, vA2, sQ1,
                 f"s_cmp_gt_u32 s{sOwn}, {2 * pr + 1}\ns_cselect_b32 exec_hi, -1, 0")
        if pr < 3:
            A(f"s_add_u32 s{sQ1}, s{sQ1}, 512")
            A(f"s_cmp_gt_u32 s{sOwn}, {2 * pr + 2}")
            A("s_cbranch_scc0 Lk2_done")
    A("Lk2_done:")
    stamp_flush(A, opt, 8, 0x20000, vTid)
    if opt.get("spin"):
        A("""
        Lspin:
        s_memrealtime s[42:43]
        s_waitcnt lgkmcnt(0)
        s_sub_u32 s42, s42, s100
        s_cmp_lt_u32 s42, 10000
        s_cbranch_scc1 Lspin
        """)
    A("Lk2_exit:")
    A("s_endpgm")

    NU = 7
    vAcc, vAn = 0, 56
    vLs = [vL + 8 * u for u in range(4)] + [84 + 8 * u for u in range(3)]
    vP, vErr, vQ, vCaddr, vUaddr = 245, 252, 253, 254, 255
    A("Lslow_entry:")
    A(f"""
    s_waitcnt vmcnt(0) lgkmcnt(0)
    s_barrier
    v_lshlrev_b32 v{vX + 11}, 2, v{vTid}
    ds_write_b32 v{vX + 11}, v{vZero} offset:{L_CNT}
    s_mul_i32 s3, s{sW}, 528
    s_add_u32 s3, s3, {L_TA}
    v_add_u32 v{vX + 11}, s3, v{vLo}
    """)
    for u in range(NU):
        A(f"ds_read_b128 {vr(vAn + 4 * u, 4)}, v{vX + 11} offset:{8 * 528 * u}")
    for i in range(0, 8 * NU, 2):
        A(f"v_mov_b64 {vr(vAcc + i, 2)}, 0")
    A(f"""
    v_bfe_u32 v{vX + 11}, v{vTid}, 3, 3
    v_and_b32 v{vX + 12}, 7, v{vTid}
    v_lshlrev_b32 v{vX + 12}, 2, v{vX + 12}
    v_lshl_add_u32 v{vX + 12}, v{vX + 11}, 8, v{vX + 12}
    s_lshl_b32 s3, s{sW}, 5
    v_add_u32 v{vCaddr}, s3, v{vX + 12}
    v_bfe_u32 v{vX + 11}, v{vTid}, 3, 2
    v_bfe_u32 v{vX + 12}, v{vTid}, 1, 1
    v_lshl_add_u32 v{vX + 11}, v{vX + 11}, 1, v{vX + 12}
    v_lshlrev_b32 v{vUaddr}, 5, v{vX + 11}
    Lbatch:
    """)
    batch_masks()
    A("Lround:")
    rec_loads()
    A(f"""
    v_mov_b32 v{vZero}, 0
    v_mov_b32 v{vOne}, 1
    ds_write_b32 v{vZero}, v{vZero} offset:{L_FLAG}
    ds_write_b32 v{vZero}, v{vZero} offset:{L_FLAG + 4}
    s_waitcnt lgkmcnt(0)
    s_barrier
    s_mov_b64 exec, {sr(sMore, 2)}
    ds_write_b32 v{vZero}, v{vOne} offset:{L_FLAG + 4}
    s_mov_b64 exec, -1
    s_waitcnt vmcnt(0)
    """)
    histogram(False)
    A("s_waitcnt lgkmcnt(0)")
    A("s_barrier")
    c, inc, deg, q, t0, t1 = vX + 12, vX + 13, vX + 14, vX + 15, vX + 16, vX + 17
    A(f"ds_read_b32 v{c}, v{vCaddr} offset:{L_CNT}")
    A(f"v_lshrrev_b32 v{t0}, 5, v{vCaddr}")
    A(f"v_lshlrev_b32 v{t0}, 6, v{t0}")
    A("s_waitcnt lgkmcnt(0)")
    A(f"ds_write_b32 v{vCaddr}, v{vZero} offset:{L_CNT}")
    A(f"v_mov_b32 v{inc}, v{c}")
    for d in (1, 2, 4, 8):
        A("s_nop 1")
        A(f"v_add_u32_dpp v{inc}, v{inc}, v{inc} row_shr:{d} row_mask:0xf bank_mask:0xf")
    A(f"""
    v_mov_b32 v{t1}, 0
    s_nop 0
    v_mov_b32_dpp v{deg}, v{inc} row_newbcast:7 row_mask:0xf bank_mask:0x3
    v_mov_b32_dpp v{t1}, v{inc} row_newbcast:7 row_mask:0xf bank_mask:0xc
    v_mov_b32_dpp v{deg}, v{inc} row_newbcast:15 row_mask:0xf bank_mask:0xc
    v_sub_u32 v{inc}, v{inc}, v{t1}
    v_sub_u32 v{deg}, v{deg}, v{t1}
    v_sub_u32 v{inc}, v{inc}, v{c}
    v_add_u32 v{inc}, v{inc}, v{t0}
    ds_write_b32 v{vCaddr}, v{inc} offset:{L_BASE}
    v_cmp_lt_u32 vcc, 64, v{deg}
    v_min_u32 v{deg}, 64, v{deg}
    v_add_u32 v{q}, 3, v{deg}
    v_lshrrev_b32 v{q}, 2, v{q}
    s_mov_b64 exec, vcc
    ds_write_b32 v{vZero}, v{vOne} offset:{L_FLAG}
    s_mov_b64 exec, -1
    ds_bpermute_b32 v{vQ}, v{vUaddr}, v{q}
    v_and_b32 v{c}, 7, v{vTid}
    v_add_u32 v{c}, v{c}, v{deg}
    v_lshlrev_b32 v{t1}, 2, v{q}
    v_cmp_lt_u32 vcc, v{c}, v{t1}
    v_add_lshl_u32 v{c}, v{c}, v{t0}, 2
    v_mov_b32 v{t0}, {TAB_BYTES}
    v_bfrev_b32 v{t1}, 2
    s_mov_b64 exec, vcc
    ds_write_b32 v{c}, v{t0} offset:{L_SO}
    ds_write_b32 v{c}, v{t1} offset:{L_EO}
    s_mov_b64 exec, -1
    v_max_u32_dpp v{q}, v{q}, v{q} row_ror:8 row_mask:0xf bank_mask:0xf
    s_nop 0
    v_readlane_b32 s{sT}, v{q}, 0
    v_readlane_b32 s3, v{q}, 16
    v_readlane_b32 s{sTmp}, v{q}, 32
    v_readlane_b32 s{sTmp + 1}, v{q}, 48
    s_waitcnt lgkmcnt(0)
    s_barrier
    ds_read_b64 {vr(vX + 12, 2)}, v{vZero} offset:{L_FLAG}
    """)
    for i in range(8):
        A(f"ds_read_b32 v{vKey + i}, v{vKey + i} offset:{L_BASE}")
    A(f"""
    s_max_u32 s{sT}, s{sT}, s3
    s_max_u32 s{sTmp}, s{sTmp}, s{sTmp + 1}
    s_max_u32 s{sT}, s{sT}, s{sTmp}
    s_waitcnt lgkmcnt(0)
    v_readfirstlane_b32 s{sOvf}, v{vX + 12}
    v_readfirstlane_b32 s{sMor}, v{vX + 13}
    """)
    for i in range(8):
        A(f"v_and_b32 v{vX + 12}, 63, v{vRec + i}")
        A(f"v_add_u32 v{vKey + i}, v{vKey + i}, v{vRank + i}")
        A(f"v_lshl_add_u32 v{vX + 12}, v{vX + 12}, 6, 64")
        A(f"v_cmp_lt_u32 vcc, v{vKey + i}, v{vX + 12}")
        A(f"v_lshlrev_b32 v{vKey + i}, 2, v{vKey + i}")
        A(f"s_and_b64 exec, vcc, {sr(sMask + 2 * i, 2)}")
        A(f"ds_write_b32 v{vKey + i}, v{vSoff + i} offset:{L_SO}")
        A(f"ds_write_b32 v{vKey + i}, v{vEoff + i} offset:{L_EO}")
        A(f"s_andn2_b64 {sr(sMask + 2 * i, 2)}, {sr(sMask + 2 * i, 2)}, vcc")
        A("s_mov_b64 exec, -1")
    A(f"""
    s_lshl_b32 s3, s{sW}, 8
    v_lshrrev_b32 v{vX + 12}, 1, v{vH16}
    v_add_u32 v{vP}, s3, v{vX + 12}
    v_and_b32 v{vX + 12}, 1, v{vTid}
    v_bfe_u32 v{vX + 13}, v{vTid}, 2, 1
    v_lshl_add_u32 v{vX + 12}, v{vX + 13}, 1, v{vX + 12}
    v_lshl_add_u32 v{vX + 12}, v{vX + 12}, 2, s3
    v_lshl_add_u32 v{vEp}, v{vUaddr}, 6, v{vX + 12}
    s_lshr_b32 s3, s{sT}, 1
    v_mov_b32 v{vErr}, s3
    s_mov_b64 {sr(sCur, 2)}, 0
    s_mov_b32 s{sTi}, 0
    """)
    for u in range(1, NU):
        A(f"v_mov_b32 v{vP + u}, v{vP}")
    A(f"""
    s_waitcnt lgkmcnt(0)
    s_barrier
    s_cmp_eq_u32 s{sT}, 0
    s_cbranch_scc1 Lg_done
    s_branch Lg_entry
    Lg_tile:
    s_waitcnt vmcnt({2 * NU})
    """)
    for j in range(4):
        A(mfma(j))
    A(f"""
    Lg_entry:
    v_add_u32 v{vErr}, v{vQ}, v{vErr}
    ds_read_b32 v{vEo}, v{vEp} offset:{L_EO}
    ds_read_b64 {vr(vSo, 2)}, v{vP} offset:{L_SO}
    v_cmp_le_u32_e64 {sr(sNext, 2)}, s{sT}, v{vErr}
    s_cmp_lt_u32 s{sTi}, s{sT}
    s_cselect_b64 {sr(sNext, 2)}, {sr(sNext, 2)}, 1
    s_mov_b64 exec, {sr(sNext, 2)}
    v_subrev_u32 v{vErr}, s{sT}, v{vErr}
    v_add_u32 v{vEp}, 16, v{vEp}
    s_waitcnt lgkmcnt(1)
    v_add_u32 v{vEo}, v{vEo}, v{vH16}
    buffer_load_dwordx4 {vr(vEA, 4)}, v{vEo}, {sr(S_EA, 4)}, 0 offen
    s_mov_b64 exec, -1
    """)
    for u in range(NU):
        bit = 8 * (u >> 1) + 2 * (u & 1) + 1
        so2 = vSo + 2 * (u & 1)
        La, Lb = vLs[u], vLs[u] + 4
        a, b = vT, vT + 4
        num, den = vAcc + 8 * u, vAcc + 8 * u + 4
        if u + 1 < NU:
            A(f"ds_read_b64 {vr(vSo + 2 * ((u + 1) & 1), 2)}, v{vP + u + 1} offset:{L_SO + 2048 * (u + 1)}")
        A(f"s_bitcmp1_b32 s{sCur}, {bit}")
        A(f"s_cbranch_scc0 Lg_skip{u}")
        A(f"s_waitcnt vmcnt({2 * NU - 1})")
        for j in range(4):
            A(f"v_fma_mix_f32 v{a + j}, v{vD + 16 * j + 2 * u}, s{sNl}, v{La + j} op_sel_hi:[0,0,1]")
        for j in range(4):
            A(f"v_fma_mix_f32 v{b + j}, v{vD + 16 * j + 2 * u + 1}, s{sNl}, v{Lb + j} op_sel_hi:[0,0,1]")
        for j in range(0, 8, 2):
            A(f"v_pk_add_f32 {vr(a + j, 2)}, {vr(a + j, 2)}, {vr(vAn + 4 * u + (j & 3), 2)}")
        for j in range(8):
            A(f"v_exp_f32_e64 v{a + j}, v{a + j} clamp")
        for j in range(0, 8, 2):
            A(f"v_pk_add_f32 {vr(a + j, 2)}, {vr(a + j, 2)}, {sr(sC0, 2)}")
        for j in (0, 2):
            A(f"v_pk_mul_f32 {vr(La + j, 2)}, {vr(La + j, 2)}, {vr(b + j, 2)}")
        for j in (0, 2):
            A(f"v_pk_fma_f32 {vr(La + j, 2)}, {vr(Lb + j, 2)}, {vr(a + j, 2)}, {vr(La + j, 2)}")
        for j in (0, 2):
            A(f"v_pk_add_f32 {vr(Lb + j, 2)}, {vr(a + j, 2)}, {vr(b + j, 2)}")
        for j in (0, 2):
            A(f"v_pk_mul_f32 {vr(a + j, 2)}, {vr(a + j, 2)}, {vr(b + j, 2)}")
        for j in range(4):
            A(f"v_rcp_f32 v{a + j}, v{a + j}")
        for j in (0, 2):
            A(f"v_pk_fma_f32 {vr(num + j, 2)}, {vr(La + j, 2)}, {vr(a + j, 2)}, {vr(num + j, 2)}")
            A(f"v_pk_fma_f32 {vr(den + j, 2)}, {vr(Lb + j, 2)}, {vr(a + j, 2)}, {vr(den + j, 2)}")
        A(f"Lg_skip{u}:")
        A(f"s_bitcmp1_b32 s{sNext}, {bit}")
        A("s_cselect_b64 exec, -1, 1")
        A(f"s_cselect_b32 s{sInc}, 16, 0")
        A(f"s_waitcnt lgkmcnt({1 if u + 1 < NU else 0})")
        A(f"v_add_u32 v{so2}, v{so2}, v{vLo}")
        A(f"v_add_u32 v{so2 + 1}, v{so2 + 1}, v{vLo}")
        A(f"buffer_load_dwordx4 {vr(La, 4)}, v{so2}, {sr(S_TAB, 4)}, 0 offen")
        A(f"buffer_load_dwordx4 {vr(Lb, 4)}, v{so2 + 1}, {sr(S_TAB, 4)}, 0 offen")
        A("s_mov_b64 exec, -1")
        A(f"v_add_u32 v{vP + u}, s{sInc}, v{vP + u}")
    A(f"""
    s_mov_b64 {sr(sCur, 2)}, {sr(sNext, 2)}
    s_add_u32 s{sTi}, s{sTi}, 1
    s_cmp_le_u32 s{sTi}, s{sT}
    s_cbranch_scc1 Lg_tile
    Lg_done:
    s_waitcnt vmcnt(0)
    s_cmp_lg_u32 s{sOvf}, 0
    s_cbranch_scc1 Lround
    s_add_u32 s{sW0}, s{sW0}, 32
    s_cmp_lg_u32 s{sMor}, 0
    s_cbranch_scc1 Lbatch
    s_mul_i32 s3, s{sW}, 528
    s_add_u32 s3, s3, {L_TU}
    v_mul_u32_u24 v{vA2}, {33 * 8}, v{vH16}
    v_add3_u32 v{vA2}, v{vA2}, v{vLo}, s3
    s_mul_i32 s3, s{sW}, 272
    s_add_u32 s3, s3, {L_X}
    v_mul_u32_u24 v{vA3}, {17 * 8}, v{vH16}
    v_lshrrev_b32 v{vLo + 1}, 1, v{vLo}
    v_add3_u32 v{vA3}, v{vA3}, v{vLo + 1}, s3
    """)
    for pr in range(4):
        A(f"ds_read_b128 {vr(vU + 4 * pr, 4)}, v{vA2} offset:{16 * 528 * pr}")
        A(f"ds_read_b64 {vr(vXr + 2 * pr, 2)}, v{vA3} offset:{16 * 272 * pr}")
    A(f"""
    v_lshl_add_u32 v{vA2}, v{vH16}, 7, v{vLo + 1}
    s_add_u32 s{sQ1}, s{sN0}, s{sW}
    s_lshl_b32 s{sQ1}, s{sQ1}, 8
    s_mov_b32 s{sC0}, {hex(eps)}
    s_mov_b32 s{sC0 + 1}, {hex(eps)}
    s_waitcnt lgkmcnt(0)
    """)
    for pr in range(4):
        if pr == 3:
            A(f"s_cmp_lg_u32 s{sW}, 0")
            A("s_cbranch_scc1 Lk2_done")
        finalize(vAcc + 16 * pr, 4, vAcc + 16 * pr + 8, vU + 4 * pr, vXr + 2 * pr, vA2, sQ1,
                 "s_mov_b32 exec_hi, 0" if pr == 3 else "s_nop 0")
        A(f"s_add_u32 s{sQ1}, s{sQ1}, 4096")
    A("s_branch Lk2_done")
    return L_END


def gen_report(A, opt):
    kind, kern, idx = opt["report"].split(",")
    idx = int(idx)
    A("report_kernel:")
    A("s_cmp_ge_u32 s2, 1")
    A("s_cbranch_scc1 Lr_exit")
    load_kernargs(A)
    A("s_waitcnt lgkmcnt(0)")
    srd(A, 28, P_WS, 0x80000, STAMP_OFF)

    def reduce(op, base, stride, lo, hi, dst, tag, sub):
        A(f"v_add_u32 v1, {lo}, v0")
        A(f"v_mov_b32 v3, {'-1' if op == 'min' else '0'}")
        A(f"Lr_{tag}:")
        A(f"v_min_u32 v2, {hi - 1}, v1")
        A(f"v_mul_u32_u24 v2, {stride}, v2")
        A(f"v_add_u32 v2, {base}, v2")
        A("buffer_load_dword v2, v2, s[28:31], 0 offen")
        A("s_waitcnt vmcnt(0)")
        if sub:
            A("v_subrev_u32 v2, s40, v2")
        A(f"v_{op}_u32 v3, v3, v2")
        A("v_add_u32 v1, 64, v1")
        A("s_nop 0")
        A("v_readfirstlane_b32 s3, v1")
        A(f"s_cmp_lt_u32 s3, {hi}")
        A(f"s_cbranch_scc1 Lr_{tag}")
        A(f"v_readlane_b32 s{dst}, v3, 0")
        for l in range(1, 64):
            A(f"v_readlane_b32 s3, v3, {l}")
            A("s_nop 0")
            A(f"s_{op}_u32 s{dst}, s{dst}, s3")

    reduce("min", 0x40000, 64, 0, NK1 * 8, 40, "a", False)
    if kind == "none":
        A("s_mov_b32 s41, 0")
    elif kern == "g":
        reduce(kind, 0x40000 + 8 * idx, 64, 0, NGEMM * 8, 41, "b", True)
    elif kern == "p":
        reduce(kind, 0x40000 + 8 * idx, 64, NGEMM * 8, (NGEMM + NCH - 1) * 8, 41, "b", True)
    else:
        reduce(kind, 0x20000 + 8 * idx, 64, 0, 1920, 41, "b", True)
        if kind == "add":
            A(f"s_mul_hi_u32 s41, s41, {2 ** 32 // 1920}")
    A("s_min_u32 s41, s41, 20000")
    A("s_add_u32 s41, s41, 10000")
    A("Lr_spin:")
    A("s_memrealtime s[42:43]")
    A("s_waitcnt lgkmcnt(0)")
    A("s_sub_u32 s42, s42, s40")
    A("s_cmp_lt_u32 s42, s41")
    A("s_cbranch_scc1 Lr_spin")
    A("Lr_exit:")
    A("s_endpgm")


def descriptor(name, vgpr, extra=""):
    return f""".amdhsa_kernel {name}
  .amdhsa_next_free_vgpr {vgpr}
  .amdhsa_next_free_sgpr 102
  .amdhsa_accum_offset {(vgpr + 3) // 4 * 4}
  .amdhsa_group_segment_fixed_size 0
  .amdhsa_kernarg_size 96
  .amdhsa_user_sgpr_count 2
  .amdhsa_user_sgpr_kernarg_segment_ptr 1
  .amdhsa_system_sgpr_workgroup_id_x 1
{extra}.end_amdhsa_kernel
"""


def generate(opt):
    A1, A2 = Asm(), Asm()
    gen_k1(A1, opt)
    lds2 = gen_k2(A2, opt)
    head = f"""; GatedGCN layer: prep_kernel builds the gather table and buckets the edges by destination;
; @launch kernel=prep_kernel grid=({NK1},1,1) block=(512,1,1) lds=65536
; @launch kernel={NAME}_kernel grid=(256,1,1) block=(512,1,1) lds={lds2}
.amdgcn_target "amdgcn-amd-amdhsa--gfx950"
.text
.globl prep_kernel
.p2align 8
.type prep_kernel,@function
"""
    mid = f""".globl {NAME}_kernel
.p2align 8
.type {NAME}_kernel,@function
"""
    tail = (".section .rodata,\"a\"\n.p2align 6\n" + descriptor("prep_kernel", 116, "  .amdhsa_fp16_overflow 1\n")
            + ".p2align 6\n" + descriptor(f"{NAME}_kernel", 256))
    body = A1.text() + mid + A2.text()
    if opt.get("fuse"):
        lst = f"kernel={NAME}_kernel " if opt.get("aslist") else ""
        head = (f"; @launch {lst}grid=(256,1,1) block=(512,1,1) lds={lds2}\n"
                ".amdgcn_target \"amdgcn-amd-amdhsa--gfx950\"\n.text\n")
        body = mid + A2.text()
        tail = ".section .rodata,\"a\"\n.p2align 6\n" + descriptor(f"{NAME}_kernel", 256, "  .amdhsa_fp16_overflow 1\n")
    if opt.get("report"):
        A3 = Asm()
        gen_report(A3, opt)
        head = head.replace(".amdgcn_target", "; @launch kernel=report_kernel grid=(1,1,1) block=(64,1,1) lds=0\n.amdgcn_target")
        body += ".globl report_kernel\n.p2align 8\n.type report_kernel,@function\n" + A3.text()
        tail += ".p2align 6\n" + descriptor("report_kernel", 8)
    return head + body + tail


if __name__ == "__main__":
    out = sys.argv[1] if len(sys.argv) > 1 else f"cdna_kernels/{NAME}.s"
    opt = dict(a.split("=", 1) for a in sys.argv[2:])
    opt = {k: v.replace("+", " ") for k, v in opt.items()}
    open(out, "w").write(generate(opt))
```

```python
import math
import struct
import sys

NAME = "gather_scatter__edge_featured_mpnn_gatedgcn__graph"
N, E = 12500, 400000
NPB = 49
CH = 3136
NCH = 128
NGEMM = 196
NDUMP = 9
NK1 = NGEMM + NCH + NDUMP
NWARM = [0]
TAB_OFF = 0
FR_OFF = 0x700000
REC_OFF = 0xE00000
OFF_OFF = 0x1000000
STAMP_OFF = 0x2000000
TAB_BYTES = N * 512
KSH = 48
AMAX = 52.0
NLOG2E = -math.log2(math.e)


def f32(x):
    return struct.unpack("<I", struct.pack("<f", x))[0]


class Asm:
    def __init__(self):
        self.lines = []

    def __call__(self, s):
        for ln in s.strip("\n").split("\n"):
            ln = ln.strip()
            if not ln:
                continue
            self.lines.append(ln if ln.endswith(":") else "    " + ln)

    def text(self):
        return "\n".join(self.lines) + "\n"


def vr(a, n=1):
    return f"v{a}" if n == 1 else f"v[{a}:{a + n - 1}]"


def sr(a, n=1):
    return f"s{a}" if n == 1 else f"s[{a}:{a + n - 1}]"


def srd(A, d, base, nbytes, off=0):
    if off:
        A(f"s_add_u32 s{d}, s{base}, {hex(off)}")
        A(f"s_addc_u32 s{d + 1}, s{base + 1}, 0")
    else:
        A(f"s_mov_b64 {sr(d, 2)}, {sr(base, 2)}")
    A(f"s_mov_b32 s{d + 2}, {hex(nbytes)}")
    A(f"s_mov_b32 s{d + 3}, 0x20000")


P_X, P_EA, P_SRC, P_DST, P_WA, P_WB, P_WC, P_WU = 4, 6, 8, 10, 12, 14, 16, 18
P_WV, P_OUT, P_DBG, P_WS = 20, 22, 24, 26


def load_kernargs(A):
    A("s_load_dwordx16 s[4:19], s[0:1], 0")
    A("s_load_dwordx8 s[20:27], s[0:1], 64")


STAMP_BASE = [2]


def stamp_reg(i):
    return 100 if i == 0 else STAMP_BASE[0] + 2 * i


def stamp(A, opt, i):
    if opt.get("stamp"):
        A(f"{'s_memtime' if opt.get('cyc') else 's_memrealtime'} s[{stamp_reg(i)}:{stamp_reg(i) + 1}]")


def stamp_flush(A, opt, n, base, vtid):
    if not opt.get("stamp"):
        return
    A("s_mov_b64 exec, -1")
    A("s_waitcnt vmcnt(0)")
    stamp(A, opt, n - 1)
    srd(A, 20, P_WS, 0x80000, STAMP_OFF + base)
    A(f"v_lshrrev_b32 v1, 6, v{vtid}")
    A("s_lshl_b32 s3, s2, 3")
    A("v_add_u32 v1, s3, v1")
    A(f"v_mul_u32_u24 v1, {8 * n}, v1")
    A("s_mov_b64 exec, 1")
    A("s_waitcnt lgkmcnt(0)")
    for i in range(n):
        r = stamp_reg(i)
        A(f"v_mov_b32 v2, s{r}")
        A(f"v_mov_b32 v3, s{r + 1}")
        A(f"buffer_store_dwordx2 v[2:3], v1, s[20:23], 0 offen offset:{8 * i}")
        A("s_nop 1")


WAVE_SCAN = ("row_shr:1 row_mask:0xf", "row_shr:2 row_mask:0xf", "row_shr:4 row_mask:0xf",
             "row_shr:8 row_mask:0xf", "row_bcast:15 row_mask:0xa", "row_bcast:31 row_mask:0xc")


def wave_scan(A, v):
    for d in WAVE_SCAN:
        A("s_nop 1")
        A(f"v_add_u32_dpp v{v}, v{v}, v{v} {d} bank_mask:0xf")


def gen_partition(A, opt):
    st = opt.get("k1_store", "")
    ld = opt.get("k1_load", "")
    S_SRC, S_DST, S_REC, S_OFFS = 28, 32, 36, 40
    sB0, sB1, sLim, sMagic, sM49, sM0, sM1, sC = 44, 45, 46, 47, 48, 50, 52, 70
    vOff, vD, vS, vE, vA, vR, vT, vOne = 1, 4, 12, 20, 28, 36, 44, 2
    L_CNT, L_BASE, L_SORT = 0, 1024, 2048
    A(f"s_mul_i32 s{sB0}, s{sC}, {CH * 4}")
    A(f"s_add_u32 s{sB1}, s{sB0}, 8192")
    A(f"s_movk_i32 s{sLim}, {CH // 4}")
    A(f"s_cmp_eq_u32 s{sC}, {NCH - 1}")
    A(f"s_cselect_b32 s{sLim}, {(E - (NCH - 1) * CH) // 4}, s{sLim}")
    A(f"v_lshlrev_b32 v{vOff}, 4, v0")
    A(f"v_cmp_gt_u32_e64 {sr(sM0, 2)}, s{sLim}, v0")
    A(f"v_add_u32 v3, 512, v0")
    A(f"v_cmp_gt_u32_e64 {sr(sM1, 2)}, s{sLim}, v3")
    A("s_waitcnt lgkmcnt(0)")
    stamp(A, opt, 1)
    srd(A, S_DST, P_DST, E * 4)
    srd(A, S_SRC, P_SRC, E * 4)
    A(f"buffer_load_dwordx4 {vr(vD, 4)}, v{vOff}, {sr(S_DST, 4)}, s{sB0} offen {ld}")
    A(f"buffer_load_dwordx4 {vr(vS, 4)}, v{vOff}, {sr(S_SRC, 4)}, s{sB0} offen {ld}")
    A(f"s_mov_b64 exec, {sr(sM1, 2)}")
    A("s_cbranch_execz Lp_nold1")
    A(f"buffer_load_dwordx4 {vr(vD + 4, 4)}, v{vOff}, {sr(S_DST, 4)}, s{sB1} offen {ld}")
    A(f"buffer_load_dwordx4 {vr(vS + 4, 4)}, v{vOff}, {sr(S_SRC, 4)}, s{sB1} offen {ld}")
    A("Lp_nold1:")
    A("s_mov_b64 exec, -1")
    srd(A, S_REC, P_WS, NCH * CH * 4, REC_OFF)
    srd(A, S_OFFS, P_WS, NCH * 1024, OFF_OFF)
    A(f"s_mov_b32 s{sMagic}, 85599")
    A(f"s_mov_b32 s{sM49}, {-NPB}")
    A(f"v_mov_b32 v{vOne}, 1")
    A(f"v_mov_b32 v{vT}, 0")
    A(f"v_lshlrev_b32 v{vT + 1}, 2, v0")
    A(f"ds_write_b32 v{vT + 1}, v{vT} offset:{L_CNT}")
    A(f"v_lshlrev_b32 v{vE}, 8, v0")
    for i in range(1, 8):
        A(f"v_add_u32 v{vE + i}, {(i & 3) * 64 + (i >> 2) * 512 * 256}, v{vE}")
    A("s_waitcnt lgkmcnt(0)")
    A("s_barrier")
    stamp(A, opt, 2)
    A("s_waitcnt vmcnt(0)")
    stamp(A, opt, 3)
    for r in range(2):
        A(f"s_mov_b64 exec, {sr((sM0, sM1)[r], 2)}")
        A(f"s_cbranch_execz Lp_p1_{r}")
        for i in range(4 * r, 4 * r + 4):
            A(f"v_mul_u32_u24 v{vT}, s{sMagic}, v{vD + i}")
            A(f"v_lshl_or_b32 v{vS + i}, v{vS + i}, 18, v{vE + i}")
            A(f"v_lshrrev_b32 v{vT}, 22, v{vT}")
            A(f"v_add_u32 v{vS + i}, v{vS + i}, v{vD + i}")
            A(f"v_lshlrev_b32 v{vA + i}, 2, v{vT}")
            A(f"v_mad_i32_i24 v{vS + i}, v{vT}, s{sM49}, v{vS + i}")
            A(f"ds_add_rtn_u32 v{vR + i}, v{vA + i}, v{vOne} offset:{L_CNT}")
        A(f"Lp_p1_{r}:")
    A("s_mov_b64 exec, -1")
    A("s_waitcnt lgkmcnt(0)")
    A("s_barrier")
    stamp(A, opt, 4)
    A("v_cmp_gt_u32 vcc, 64, v0")
    A("s_cbranch_vccz Lp_noscan")
    c, b = vD, vD + 4
    A(f"ds_read_b128 {vr(c, 4)}, v{vOff} offset:{L_CNT}")
    A("s_waitcnt lgkmcnt(0)")
    A(f"v_add_u32 v{b + 2}, v{c}, v{c + 1}")
    A(f"v_add_u32 v{b + 3}, v{b + 2}, v{c + 2}")
    A(f"v_add_u32 v{vT}, v{b + 3}, v{c + 3}")
    A(f"v_mov_b32 v{vT + 1}, v{vT}")
    wave_scan(A, vT + 1)
    A(f"v_sub_u32 v{b}, v{vT + 1}, v{vT}")
    A(f"v_add_u32 v{b + 1}, v{b}, v{c}")
    A(f"v_add_u32 v{b + 2}, v{b}, v{b + 2}")
    A(f"v_add_u32 v{b + 3}, v{b}, v{b + 3}")
    A(f"ds_write_b128 v{vOff}, {vr(b, 4)} offset:{L_BASE}")
    for i in range(4):
        A(f"v_lshl_or_b32 v{c + i}, v{c + i}, 16, v{b + i}")
    A(f"s_lshl_b32 s3, s{sC}, 10")
    A(f"buffer_store_dwordx4 {vr(c, 4)}, v{vOff}, {sr(S_OFFS, 4)}, s3 offen {st}")
    A("s_waitcnt lgkmcnt(0)")
    A("Lp_noscan:")
    A("s_barrier")
    stamp(A, opt, 5)
    for r in range(2):
        A(f"s_mov_b64 exec, {sr((sM0, sM1)[r], 2)}")
        A(f"s_cbranch_execz Lp_p2_{r}")
        for i in range(4 * r, 4 * r + 4):
            A(f"ds_read_b32 v{vA + i}, v{vA + i} offset:{L_BASE}")
        for i in range(4 * r, 4 * r + 4):
            A("s_waitcnt lgkmcnt(3)")
            A(f"v_add_lshl_u32 v{vA + i}, v{vA + i}, v{vR + i}, 2")
            A(f"ds_write_b32 v{vA + i}, v{vS + i} offset:{L_SORT}")
        A(f"Lp_p2_{r}:")
    A("s_mov_b64 exec, -1")
    A("s_waitcnt lgkmcnt(0)")
    A("s_barrier")
    stamp(A, opt, 6)
    for r in range(2):
        A(f"s_mov_b64 exec, {sr((sM0, sM1)[r], 2)}")
        A("s_cbranch_execz Lk1_done")
        A(f"ds_read_b128 {vr(vE + 4 * r, 4)}, v{vOff} offset:{L_SORT + 8192 * r}")
        A("s_waitcnt lgkmcnt(0)")
        A(f"buffer_store_dwordx4 {vr(vE + 4 * r, 4)}, v{vOff}, {sr(S_REC, 4)}, s{(sB0, sB1)[r]} offen {st}")
    A("s_branch Lk1_done")


def gen_dump(A, opt):
    A(f"""
    v_and_b32 v1, 31, v0
    v_bfe_u32 v2, v0, 5, 1
    v_lshrrev_b32 v3, 6, v0
    v_lshlrev_b32 v4, 4, v0
    s_lshl_b32 s3, s70, 13
    s_cmp_eq_u32 s70, 8
    s_waitcnt lgkmcnt(0)
    s_cbranch_scc1 Ld_wc
    s_cmp_lt_u32 s70, 4
    s_cselect_b32 s28, s{P_WA}, s{P_WU}
    s_cselect_b32 s29, s{P_WA + 1}, s{P_WU + 1}
    s_mov_b32 s30, 32768
    s_and_b32 s44, s70, 3
    s_lshl_b32 s44, s44, 6
    v_lshlrev_b32 v5, 12, v3
    v_lshl_add_u32 v5, v2, 11, v5
    v_lshl_add_u32 v5, v1, 1, v5
    s_branch Ld_go
    Ld_wc:
    """)
    srd(A, 36, P_WS, 512, TAB_OFF + TAB_BYTES)
    A(f"""
    v_lshlrev_b32 v5, 2, v0
    v_mov_b32 v6, 0x7c00
    buffer_store_dword v6, v5, s[36:39], 0 offen
    s_mov_b64 s[28:29], {sr(P_WC, 2)}
    s_mov_b32 s30, 4096
    s_mov_b32 s44, 0
    v_lshlrev_b32 v5, 11, v2
    v_lshl_add_u32 v5, v1, 3, v5
    v_lshl_add_u32 v5, v3, 1, v5
    Ld_go:
    s_mov_b32 s31, 0x20000
    """)
    srd(A, 32, P_WS, 65536 + 4096, FR_OFF)
    for i in range(8):
        A(f"buffer_load_ushort v{8 + i}, v5, s[28:31], s44 offen offset:{256 * i}")
    A("s_waitcnt vmcnt(0)")
    for i in range(4):
        A(f"v_lshl_or_b32 v{16 + i}, v{9 + 2 * i}, 16, v{8 + 2 * i}")
    A("buffer_store_dwordx4 v[16:19], v4, s[32:35], s3 offen")
    A("s_branch Lk1_done")


def gen_gemm(A, opt):
    st = opt.get("k1_store", "")
    S_X, S_W, S_T = 28, 32, 36
    sRt, sHalf, sW, sXo, sWo, sO0, sO1, sNl = 56, 57, 58, 59, 60, 62, 63, 64
    vXa, vWa, vXr, vTr, vSo = 4, 8, 12, 16, 18
    vX, vAcc, vF = 20, 52, 84
    A(f"""
    s_lshr_b32 s{sRt}, s2, 4
    s_lshl_b32 s{sRt}, s{sRt}, 3
    s_and_b32 s3, s2, 7
    s_add_u32 s{sRt}, s{sRt}, s3
    s_bfe_u32 s{sHalf}, s2, 0x10003
    s_cmp_lt_u32 s2, 192
    s_cbranch_scc1 Lg_map
    s_lshr_b32 s{sRt}, s2, 1
    s_and_b32 s{sHalf}, s2, 1
    Lg_map:
    v_lshrrev_b32 v1, 6, v0
    v_and_b32 v2, 15, v0
    v_readfirstlane_b32 s{sW}, v1
    v_bfe_u32 v3, v0, 4, 2
    v_xor_b32 v20, v2, v3
    v_lshlrev_b32 v20, 4, v20
    v_lshl_add_u32 v{vXa}, v3, 8, v20
    v_xor_b32 v{vXa + 1}, 64, v{vXa}
    v_xor_b32 v{vXa + 2}, 0x80, v{vXa}
    v_xor_b32 v{vXa + 3}, 0xc0, v{vXa}
    v_and_b32 v21, 7, v0
    v_and_b32 v22, 1, v3
    v_lshlrev_b32 v22, 1, v22
    v_xor_b32 v21, v21, v22
    v_lshlrev_b32 v21, 4, v21
    v_bfe_u32 v23, v0, 3, 3
    v_lshl_add_u32 v{vWa}, v23, 8, v21
    v_xor_b32 v{vWa + 1}, 64, v{vWa}
    v_add_u32 v{vWa + 2}, 2048, v{vWa}
    v_add_u32 v{vWa + 3}, 3072, v{vWa + 1}
    v_add_u32 v{vWa + 1}, 1024, v{vWa + 1}
    s_lshl_b32 s3, s{sW}, 12
    s_lshl_b32 s{sXo}, s{sRt}, 15
    s_add_u32 s{sXo}, s{sXo}, s3
    s_and_b32 s{sWo}, s{sW}, 3
    s_lshl_b32 s{sWo}, s{sWo}, 13
    s_lshl_b32 s61, s{sHalf}, 7
    s_add_u32 s{sWo}, s{sWo}, s61
    s_add_u32 m0, s3, 32768
    s_cmp_lt_u32 s{sW}, 4
    s_waitcnt lgkmcnt(0)
    s_cselect_b32 s{S_W}, s{P_WB}, s{P_WV}
    s_cselect_b32 s{S_W + 1}, s{P_WB + 1}, s{P_WV + 1}
    s_mov_b32 s{S_W + 2}, 32768
    s_mov_b32 s{S_W + 3}, 0x20000
    """)
    stamp(A, opt, 1)
    srd(A, S_X, P_X, N * 256)
    for i in range(4):
        A(f"buffer_load_dwordx4 v{vWa + i}, {sr(S_W, 4)}, s{sWo} offen offset:{1024 * i} lds")
    A("s_mov_b32 m0, s3")
    A("s_nop 0")
    for i in range(4):
        A(f"buffer_load_dwordx4 v{vXa + i}, {sr(S_X, 4)}, s{sXo} offen offset:{1024 * i} lds")
    stamp(A, opt, 2)
    srd(A, S_T, P_WS, TAB_BYTES, TAB_OFF)
    A(f"""
    s_lshl_b32 s{sO0}, s{sRt}, 16
    s_lshl_b32 s3, s{sHalf}, 8
    s_add_u32 s{sO0}, s{sO0}, s3
    s_add_u32 s{sO1}, s{sO0}, 8192
    s_mov_b32 s{sNl}, {hex(f32(NLOG2E))}
    v_lshrrev_b32 v24, 1, v1
    v_lshl_add_u32 v24, v24, 5, v2
    v_lshl_add_u32 v{vXr}, v24, 8, v20
    v_xor_b32 v{vXr + 1}, 64, v{vXr}
    v_xor_b32 v{vXr + 2}, 0x80, v{vXr}
    v_xor_b32 v{vXr + 3}, 0xc0, v{vXr}
    v_and_b32 v25, 1, v1
    v_lshlrev_b32 v26, 4, v3
    v_lshl_add_u32 v26, v25, 7, v26
    v_lshl_add_u32 v{vSo}, v24, 9, v26
    v_bfe_u32 v26, v0, 3, 1
    v_or_b32 v26, v26, v22
    v_lshlrev_b32 v25, 1, v25
    v_xor_b32 v26, v26, v25
    v_lshlrev_b32 v26, 5, v26
    v_and_b32 v27, 3, v0
    v_lshl_add_u32 v26, v27, 3, v26
    v_bfe_u32 v27, v0, 2, 2
    v_lshl_add_u32 v27, v3, 3, v27
    v_lshl_add_u32 v{vTr}, v27, 7, v26
    v_xor_b32 v{vTr + 1}, 32, v{vTr}
    s_waitcnt vmcnt(0)
    """)
    stamp(A, opt, 3)
    A("s_barrier")
    stamp(A, opt, 4)

    def frag_reads(s, buf):
        for nb in range(2):
            A(f"ds_read_b128 {vr(vX + 16 * nb + 4 * s, 4)}, v{vXr + s} offset:{4096 * nb}")
        for m in range(2):
            for be in range(2):
                for z in range(2):
                    A(f"ds_read_b64_tr_b16 {vr(vF + 16 * buf + 8 * m + 4 * be + 2 * z, 2)}, v{vTr + be} "
                      f"offset:{32768 + m * 16384 + s * 4096 + z * 512}")

    frag_reads(0, 0)
    for s in range(4):
        buf = s & 1
        if s < 3:
            frag_reads(s + 1, buf ^ 1)
            A("s_waitcnt lgkmcnt(10)")
        else:
            A("s_waitcnt lgkmcnt(0)")
        for be in range(2):
            for nb in range(2):
                for m in range(2):
                    d = vAcc + 16 * m + 8 * nb + 4 * be
                    cc = "0" if s == 0 else vr(d, 4)
                    A(f"v_mfma_f32_16x16x32_bf16 {vr(d, 4)}, {vr(vF + 16 * buf + 8 * m + 4 * be, 4)}, "
                      f"{vr(vX + 16 * nb + 4 * s, 4)}, {cc}")
    A("s_nop 1")
    stamp(A, opt, 5)
    for be in range(2):
        for nb in range(2):
            lo = vAcc + 8 * nb + 4 * be
            hi = lo + 16
            for i in range(4):
                A(f"v_fma_mixlo_f16 v{hi + i}, v{lo + i}, s{sNl}, 0")
            A(f"buffer_store_dwordx4 {vr(hi, 4)}, v{vSo}, {sr(S_T, 4)}, s{(sO0, sO1)[nb]} offen offset:{64 * be} {st}")
    stamp(A, opt, 6)


def gen_k1(A, opt):
    STAMP_BASE[0] = 80
    nw = NWARM[0] = int(opt.get("warm", 0))
    A("prep_kernel:")
    A(f"s_cmp_ge_u32 s2, {NK1 + nw}")
    A("s_cbranch_scc1 Lk1_exit")
    stamp(A, opt, 0)
    load_kernargs(A)
    A(f"s_cmp_ge_u32 s2, {NGEMM}")
    A("s_cbranch_scc1 Lk1_other")
    gen_gemm(A, opt)
    A("Lk1_done:")
    stamp_flush(A, opt, 8, 0x40000, 0)
    A("Lk1_exit:")
    A("s_endpgm")
    A("Lk1_other:")
    A(f"s_sub_u32 s70, s2, {NGEMM}")
    A(f"s_cmp_ge_u32 s70, {NCH}")
    A("s_cbranch_scc1 Lk1_dump")
    gen_partition(A, opt)
    A("Lk1_dump:")
    A(f"s_sub_u32 s70, s70, {NCH}")
    if nw:
        A(f"s_cmp_ge_u32 s70, {NDUMP}")
        A("s_cbranch_scc1 Lk1_warm")
    gen_dump(A, opt)
    if nw:
        per = -(-(E // 4) // (nw * 512))
        A("Lk1_warm:")
        A(f"s_sub_u32 s70, s70, {NDUMP}")
        A(f"s_mul_i32 s3, s70, {per * 65536}")
        A("v_lshlrev_b32 v1, 7, v0")
        A("s_waitcnt lgkmcnt(0)")
        srd(A, 28, P_EA, E * 32)
        for i in range(per):
            A(f"buffer_load_dword v2, v1, s[28:31], s3 offen {opt.get('warm_pol', '')}")
            A("s_add_u32 s3, s3, 65536")
        A("s_endpgm")


def gen_fused_head(A, opt):
    A(f"""
    {NAME}_kernel:
    s_cmp_ge_u32 s2, 256
    s_cbranch_scc1 Lk2_exit
    s_memrealtime s[100:101]
    s_mov_b32 s99, s2
    """)
    load_kernargs(A)
    A("Lf_job:")
    A(f"s_cmp_ge_u32 s2, {NGEMM}")
    A("s_cbranch_scc1 Lk1_other")
    gen_gemm(A, opt)
    A(f"""
    Lk1_done:
    s_mov_b64 exec, -1
    s_waitcnt vmcnt(0) lgkmcnt(0)
    s_barrier
    s_add_u32 s2, s2, 256
    s_cmp_lt_u32 s2, {NK1}
    s_cbranch_scc1 Lf_job
    s_mov_b32 s2, s99
    v_cmp_gt_u32 vcc, 64, v0
    s_cbranch_vccz Lf_wait
    """)
    srd(A, 28, P_DBG, 256)
    A("""
    buffer_wbl2 sc1
    s_waitcnt vmcnt(0)
    v_mov_b32 v1, 0
    v_mov_b32 v2, 1
    s_mov_b64 exec, 1
    buffer_atomic_add v2, v1, s[28:31], 0 offen sc1
    s_mov_b32 s40, 0
    Lf_poll:
    buffer_load_dword v3, v1, s[28:31], 0 offen sc1
    s_add_u32 s40, s40, 1
    s_waitcnt vmcnt(0)
    v_readfirstlane_b32 s3, v3
    s_cmp_gt_u32 s40, 200000
    s_cbranch_scc1 Lf_out
    s_cmp_lt_u32 s3, 256
    s_cbranch_scc1 Lf_poll
    Lf_out:
    s_mov_b64 exec, -1
    buffer_inv sc1
    s_waitcnt vmcnt(0)
    Lf_wait:
    s_barrier
    s_branch Lf_main
    Lk1_other:
    """)
    A(f"s_sub_u32 s70, s2, {NGEMM}")
    A(f"s_cmp_ge_u32 s70, {NCH}")
    A("s_cbranch_scc1 Lk1_dump")
    gen_partition(A, opt)
    A("Lk1_dump:")
    A(f"s_sub_u32 s70, s70, {NCH}")
    gen_dump(A, opt)
    A("Lf_main:")


def gen_k2(A, opt):
    STAMP_BASE[0] = 2
    ea_pol = opt.get("ea_load", "")
    pf_lanes = int(opt.get("pf", 32))
    S_TAB, S_EA, S_REC, S_OFFS, S_FR, S_X, S_OUT = 28, 32, 36, 40, 44, 48, 52
    sW, sBk, sN0, sW0, sT, sTi, sInc, sNl = 56, 57, 58, 59, 60, 61, 62, 63
    sC0, sCur, sNext, sMore, sTmp = 64, 66, 68, 70, 72
    sMask = 74
    sOvf, sMor, sQ1, sQ2, sQ3 = 90, 91, 92, 93, 94
    sLw, sF0, sOwn, sRem, sSW = 95, 96, 97, 98, 99
    sSl0, sSl1, sLn = sCur, sCur + 1, sNext
    L_CNT, L_BASE, L_FLAG = 0, 2048, 4096
    L_SO = 4352
    LIST = 17152
    L_EO = L_SO + LIST
    L_STR = L_EO + LIST
    STRW = 2560
    L_X = L_STR + 8 * STRW
    L_TA = L_X + 64 * 272 + 1024
    L_TU = L_TA + 64 * 528
    L_END = L_TU + 64 * 528
    NS = 9
    vSl, vD, vL, vWC, vEA, vT, vSo, vLo = 0, 108, 172, 204, 220, 224, 232, 236
    vSp, vEp, vEo, vH16, vSb, vTid, vOffs = 238, 239, 240, 241, 242, 243, 244
    vWf, vG, vXf, vXs = 0, 32, 64, 96
    vRec, vKey, vRank, vSoff, vEoff, vX = vD, vD + 8, vD + 16, vD + 24, vD + 32, vD + 40
    c0 = 2.0 ** -KSH

    if opt.get("fuse"):
        gen_fused_head(A, opt)
    else:
        A(f"{NAME}_kernel:")
        A("s_cmp_ge_u32 s2, 256")
        A("s_cbranch_scc1 Lk2_exit")
        stamp(A, opt, 0)
        load_kernargs(A)
    A(f"""
    s_and_b32 s3, s2, 7
    s_lshl_b32 s3, s3, 5
    s_lshr_b32 s{sBk}, s2, 3
    s_add_u32 s{sBk}, s{sBk}, s3
    s_mul_i32 s{sN0}, s{sBk}, {NPB}
    v_mov_b32 v{vTid}, v0
    v_lshrrev_b32 v{vX}, 6, v0
    v_lshrrev_b32 v{vX + 1}, 2, v0
    v_readfirstlane_b32 s{sW}, v{vX}
    v_lshlrev_b32 v{vX + 1}, 10, v{vX + 1}
    v_lshlrev_b32 v{vX + 2}, 4, v0
    v_and_b32 v{vX + 3}, 0x3f0, v{vX + 2}
    v_and_b32 v{vLo}, 0x1f0, v{vX + 2}
    v_bfe_u32 v{vX + 4}, v0, 5, 1
    v_mov_b32 v{vLo + 1}, v{vLo}
    v_lshlrev_b32 v{vH16}, 4, v{vX + 4}
    s_lshl_b32 s3, s{sBk}, 2
    s_lshl_b32 s{sTmp}, s{sN0}, 8
    s_add_u32 s{sTmp + 1}, s{sTmp}, 8192
    s_lshl_b32 s{sQ1}, s{sW}, 13
    s_add_u32 s{sQ2}, s{sQ1}, 4096
    s_mov_b32 s{sQ3}, 65536
    s_waitcnt lgkmcnt(0)
    """)
    srd(A, S_OFFS, P_WS, NCH * 1024, OFF_OFF)
    A(f"buffer_load_dword v{vOffs}, v{vX + 1}, {sr(S_OFFS, 4)}, s3 offen")
    srd(A, S_X, P_X, N * 256)
    for i in range(2):
        A(f"buffer_load_dwordx4 {vr(vXs + 4 * i, 4)}, v{vX + 2}, {sr(S_X, 4)}, s{sTmp + i} offen")
    srd(A, S_FR, P_WS, 65536 + 4096, FR_OFF)
    for s in range(8):
        A(f"buffer_load_dwordx4 {vr(vWf + 4 * s, 4)}, v{vX + 3}, {sr(S_FR, 4)}, s{(sQ1, sQ2)[s >> 2]} offen offset:{1024 * (s & 3)}")
    for j in range(4):
        A(f"buffer_load_dwordx4 {vr(vWC + 4 * j, 4)}, v{vX + 3}, {sr(S_FR, 4)}, s{sQ3} offen offset:{1024 * j}")
    srd(A, S_REC, P_WS, NCH * CH * 4, REC_OFF)
    srd(A, S_TAB, P_WS, 0 if opt.get("notab") else TAB_BYTES + 512, TAB_OFF)
    srd(A, S_EA, P_EA, 0 if opt.get("noea") else E * 32)
    srd(A, S_OUT, P_OUT, N * 256)
    vZero, vOne, vXw, vXrd, vTw, vInv = vX + 5, vX + 6, vX + 7, vX + 8, vX + 9, vX + 10
    A(f"""
    s_mov_b32 s{sNl}, {hex(f32(NLOG2E))}
    s_mov_b32 s{sC0}, {hex(f32(c0))}
    s_mov_b32 s{sC0 + 1}, {hex(f32(c0))}
    s_mov_b32 s{sW0}, 0
    s_mul_i32 s{sSW}, s{sW}, {STRW}
    s_add_u32 s{sSW}, s{sSW}, {L_STR}
    v_mov_b32 v{vZero}, 0
    v_mov_b32 v{vOne}, 1
    v_lshlrev_b32 v{vX + 11}, 2, v{vTid}
    ds_write_b32 v{vX + 11}, v{vZero} offset:{L_CNT}
    ds_write_b32 v{vZero}, v{vZero} offset:{L_FLAG}
    v_lshrrev_b32 v{vX + 11}, 4, v{vTid}
    v_lshl_add_u32 v{vXw}, v{vX + 11}, 4, v{vX + 2}
    v_and_b32 v{vX + 11}, 31, v{vTid}
    v_mul_u32_u24 v{vXrd}, 272, v{vX + 11}
    v_add_u32 v{vXrd}, v{vXrd}, v{vH16}
    v_mul_u32_u24 v{vTw}, 528, v{vX + 11}
    s_and_b32 s3, s{sW}, 3
    s_lshl_b32 s3, s3, 7
    s_cmp_lt_u32 s{sW}, 4
    s_cselect_b32 s{sTmp}, 0, {L_TU - L_TA}
    s_add_u32 s3, s3, s{sTmp}
    s_add_u32 s3, s3, {L_TA}
    v_add3_u32 v{vTw}, v{vTw}, v{vH16}, s3
    v_lshl_add_u32 v{vX + 12}, v{vX + 11}, 2, s{sSW}
    v_bfrev_b32 v{vX + 13}, 2
    ds_write_b32 v{vX + 12}, v{vX + 13} offset:{1152 + 1024}
    v_add_u32 v{vSp}, s{sSW}, v{vH16}
    v_lshrrev_b32 v{vX + 12}, 3, v{vX + 11}
    v_bfe_u32 v{vX + 13}, v{vX + 11}, 1, 1
    v_lshl_add_u32 v{vX + 12}, v{vX + 12}, 1, v{vX + 13}
    v_bfe_u32 v{vX + 13}, v{vX + 11}, 2, 1
    v_lshl_add_u32 v{vX + 12}, v{vX + 12}, 1, v{vX + 13}
    v_and_b32 v{vX + 13}, 1, v{vX + 11}
    v_lshl_add_u32 v{vX + 12}, v{vX + 12}, 1, v{vX + 13}
    v_lshl_add_u32 v{vEp}, v{vX + 12}, 2, s{sSW}
    """)

    def batch_masks():
        A(f"""
        v_lshrrev_b32 v{vX}, 16, v{vOffs}
        v_and_b32 v{vX + 1}, 3, v{vTid}
        v_subrev_u32 v{vX}, s{sW0}, v{vX}
        v_lshlrev_b32 v{vX + 1}, 2, v{vX + 1}
        v_cmp_lt_i32_e64 {sr(sMore, 2)}, 32, v{vX}
        v_sub_u32 v{vX}, v{vX}, v{vX + 1}
        """)
        for i in range(8):
            A(f"v_cmp_lt_i32_e64 {sr(sMask + 2 * i, 2)}, {(i & 3) + 16 * (i >> 2)}, v{vX}")

    def rec_loads():
        A(f"""
        v_lshrrev_b32 v{vX + 2}, 2, v{vTid}
        v_and_b32 v{vX + 1}, 3, v{vTid}
        v_mul_u32_u24 v{vX + 2}, {CH}, v{vX + 2}
        v_and_b32 v{vX + 4}, 0xffff, v{vOffs}
        v_lshl_add_u32 v{vX + 1}, v{vX + 1}, 2, s{sW0}
        v_add3_u32 v{vX + 4}, v{vX + 4}, v{vX + 2}, v{vX + 1}
        v_lshlrev_b32 v{vX + 4}, 2, v{vX + 4}
        buffer_load_dwordx4 {vr(vRec, 4)}, v{vX + 4}, {sr(S_REC, 4)}, 0 offen
        buffer_load_dwordx4 {vr(vRec + 4, 4)}, v{vX + 4}, {sr(S_REC, 4)}, 0 offen offset:64
        v_lshlrev_b32 v{vX + 2}, 5, v{vX + 2}
        """)

    def histogram(keep_node):
        for i in range(8):
            A(f"v_alignbit_b32 v{vKey + i}, v{vRec + i}, v{vRec + i}, 27")
            A(f"v_and_b32 v{vKey + i}, 0x7fc, v{vKey + i}")
            A(f"s_mov_b64 exec, {sr(sMask + 2 * i, 2)}")
            A(f"ds_add_rtn_u32 v{vRank + i}, v{vKey + i}, v{vOne} offset:{L_CNT}")
            A("s_mov_b64 exec, -1")
        A("s_movk_i32 s3, 0x1ff")
        for i in range(8):
            A(f"v_lshrrev_b32 v{vSoff + i}, {9 if keep_node else 18}, v{vRec + i}")
            A(f"v_bfe_u32 v{vEoff + i}, v{vRec + i}, 6, 12")
            if keep_node:
                if opt.get("smalltab"):
                    A(f"v_and_b32 v{vSoff + i}, {int(opt['smalltab']) * 512}, v{vSoff + i}")
                A(f"v_bfi_b32 v{vSoff + i}, s3, v{vRec + i}, v{vSoff + i}")
            else:
                A(f"v_lshlrev_b32 v{vSoff + i}, 9, v{vSoff + i}")
            A(f"v_lshl_add_u32 v{vEoff + i}, v{vEoff + i}, 5, v{vX + 2}")

    def place():
        for i in range(8):
            A(f"v_add_lshl_u32 v{vKey + i}, v{vKey + i}, v{vRank + i}, 2")
            A(f"s_mov_b64 exec, {sr(sMask + 2 * i, 2)}")
            A(f"ds_write_b32 v{vKey + i}, v{vSoff + i} offset:{L_SO}")
            A(f"ds_write_b32 v{vKey + i}, v{vEoff + i} offset:{L_EO}")
            A("s_mov_b64 exec, -1")

    A("s_waitcnt vmcnt(14)")
    stamp(A, opt, 1)
    rec_loads()
    A("s_waitcnt vmcnt(14)")
    A(f"ds_write_b128 v{vXw}, {vr(vXs, 4)} offset:{L_X}")
    A(f"v_add_u32 v{vXw}, {32 * 272}, v{vXw}")
    A(f"ds_write_b128 v{vXw}, {vr(vXs + 4, 4)} offset:{L_X}")
    batch_masks()
    A("s_waitcnt lgkmcnt(0)")
    A("s_barrier")
    for s in range(8):
        A(f"ds_read_b128 {vr(vXf + 4 * s, 4)}, v{vXrd} offset:{L_X + 32 * s}")
    A(f"v_add_u32 v{vXrd}, {32 * 272}, v{vXrd}")
    A("s_waitcnt vmcnt(6)")
    for nb in range(2):
        for s in range(8):
            A(f"s_waitcnt lgkmcnt({7 if nb == 0 else 7 - s})")
            cc = "0" if s == 0 else vr(vG + 16 * nb, 16)
            A(f"v_mfma_f32_32x32x16_bf16 {vr(vG + 16 * nb, 16)}, {vr(vWf + 4 * s, 4)}, {vr(vXf + 4 * s, 4)}, {cc}")
            if nb == 0:
                A(f"ds_read_b128 {vr(vXf + 4 * s, 4)}, v{vXrd} offset:{L_X + 32 * s}")
    A(f"s_mov_b64 vcc, {sr(sMore, 2)}")
    A(f"s_cmp_ge_u32 s{sW}, 4")
    A("s_cbranch_scc1 Lu_wave")
    A(f"v_mov_b32 v{vXs}, {hex(f32(-float(KSH)))}")
    A(f"v_mov_b32 v{vXs + 1}, {hex(f32(-float(KSH)))}")
    A(f"v_mov_b32 v{vXs + 2}, 0")
    A(f"s_mov_b32 s{sTmp}, s{sNl}")
    A(f"s_mov_b32 s{sTmp + 1}, s{sNl}")
    for i in range(0, 32, 2):
        A(f"v_max3_f32 v{vXs + 2}, |v{vG + i}|, |v{vG + i + 1}|, v{vXs + 2}")
        A(f"v_pk_fma_f32 {vr(vG + i, 2)}, {vr(vG + i, 2)}, {sr(sTmp, 2)}, {vr(vXs, 2)}")
    A(f"v_cmp_lt_f32 vcc, {hex(f32(AMAX))}, v{vXs + 2}")
    A(f"s_or_b64 vcc, vcc, {sr(sMore, 2)}")
    A("Lu_wave:")
    for nb in range(2):
        if nb == 1:
            A("s_nop 7")
        for g in range(4):
            A(f"ds_write_b128 v{vTw}, {vr(vG + 16 * nb + 4 * g, 4)} offset:{32 * 528 * nb + 32 * g}")
    A("s_mov_b64 exec, vcc")
    A(f"ds_write_b32 v{vZero}, v{vOne} offset:{L_FLAG}")
    A("s_mov_b64 exec, -1")
    A("s_waitcnt vmcnt(0)")
    stamp(A, opt, 2)
    histogram(True)
    A("s_waitcnt lgkmcnt(0)")
    A("s_barrier")
    c, p, deg, q, inc, g4, la = vL, vL + 8, vL + 16, vL + 17, vL + 18, vL + 19, vL + 20
    A(f"v_lshlrev_b32 v{la}, 1, v{vX + 3}")
    A(f"ds_read_b128 {vr(c, 4)}, v{la} offset:{L_CNT}")
    A(f"ds_read_b128 {vr(c + 4, 4)}, v{la} offset:{L_CNT + 16}")
    if pf_lanes:
        A(f"""
        s_lshr_b32 s3, s2, 3
        s_lshl_b32 s3, s3, 3
        s_add_u32 s3, s3, s{sW}
        s_mul_i32 s3, s3, {pf_lanes * 128}
        v_lshlrev_b32 v{vL + 21}, 3, v{vX + 3}
        s_bfm_b64 exec, {pf_lanes & 63}, 0
        {'s_mov_b64 exec, -1' if pf_lanes == 64 else ''}
        buffer_load_dword v{vL + 22}, v{vL + 21}, {sr(S_TAB, 4)}, s3 offen
        s_mov_b64 exec, -1
        """)
    A("s_waitcnt lgkmcnt(1)")
    A(f"v_add_u32 v{p + 2}, v{c}, v{c + 1}")
    A(f"v_add_u32 v{p + 3}, v{p + 2}, v{c + 2}")
    A(f"v_add_u32 v{p + 4}, v{p + 3}, v{c + 3}")
    A("s_waitcnt lgkmcnt(0)")
    for i in range(5, 8):
        A(f"v_add_u32 v{p + i}, v{p + i - 1}, v{c + i - 1}")
    A(f"v_add_u32 v{deg}, v{p + 7}, v{c + 7}")
    A(f"v_add_u32 v{q}, 3, v{deg}")
    A(f"v_lshrrev_b32 v{q}, 2, v{q}")
    A(f"v_mov_b32 v{inc}, v{q}")
    wave_scan(A, inc)
    A(f"v_sub_u32 v{g4}, v{inc}, v{q}")
    A(f"v_readlane_b32 s3, v{inc}, 63")
    A(f"v_lshlrev_b32 v{p}, 2, v{g4}")
    A(f"v_add_u32 v{p + 1}, v{p}, v{c}")
    for i in range(2, 8):
        A(f"v_add_u32 v{p + i}, v{p}, v{p + i}")
    A(f"ds_write_b128 v{la}, {vr(p, 4)} offset:{L_BASE}")
    A(f"ds_write_b128 v{la}, {vr(p + 4, 4)} offset:{L_BASE + 16}")
    for i in range(8):
        A(f"ds_read_b32 v{vKey + i}, v{vKey + i} offset:{L_BASE}")
    A(f"""
    s_mul_i32 s{sLw}, s3, s{sW}
    s_add_u32 s{sRem}, s{sLw}, s3
    s_lshr_b32 s{sLw}, s{sLw}, 3
    s_lshr_b32 s{sRem}, s{sRem}, 3
    v_cmp_gt_u32_e64 {sr(sTmp, 2)}, s{sLw}, v{g4}
    v_cmp_gt_u32 vcc, s{sRem}, v{g4}
    v_add_u32 v{deg}, s{sW}, v{deg}
    v_lshlrev_b32 v{q}, 2, v{q}
    s_bcnt1_i32_b64 s{sF0}, {sr(sTmp, 2)}
    s_bcnt1_i32_b64 s{sOwn}, vcc
    v_cmp_lt_u32 vcc, v{deg}, v{q}
    v_add_lshl_u32 v{deg}, v{deg}, v{p}, 2
    v_mov_b32 v{c}, {TAB_BYTES}
    v_bfrev_b32 v{c + 1}, 2
    s_cmp_eq_u32 s{sW}, 7
    s_cselect_b32 s{sOwn}, {NPB}, s{sOwn}
    s_sub_u32 s{sOwn}, s{sOwn}, s{sF0}
    s_sub_u32 s{sRem}, s{sRem}, s{sLw}
    s_mov_b64 exec, vcc
    ds_write_b32 v{deg}, v{c} offset:{L_SO}
    ds_write_b32 v{deg}, v{c + 1} offset:{L_EO}
    s_sub_u32 s3, s{sOwn}, 1
    s_sub_u32 s{sTmp}, s{sRem}, 1
    s_lshr_b32 s3, s3, 3
    s_lshr_b32 s{sTmp}, s{sTmp}, 6
    s_or_b32 s3, s3, s{sTmp}
    s_cselect_b64 exec, 1, 0
    ds_write_b32 v{vZero}, v{vOne} offset:{L_FLAG}
    s_mov_b64 exec, -1
    s_waitcnt lgkmcnt(0)
    """)
    place()
    so, eo, key, less, eq, z, pos, t = vL, vL + 4, vL + 8, vL + 9, vL + 10, vL + 12, vL + 14, vL + 15
    A(f"""
    s_lshl_b32 s3, s{sLw}, 4
    v_add_u32 v{t}, s3, v{vX + 3}
    v_lshrrev_b32 v{t + 1}, 4, v{vX + 3}
    v_cmp_le_u32_e64 {sr(sTmp, 2)}, s{sRem}, v{t + 1}
    v_bfrev_b32 v{t + 2}, 2
    s_waitcnt lgkmcnt(0)
    s_barrier
    ds_read_b32 v{t + 3}, v{vZero} offset:{L_FLAG}
    ds_read_b128 {vr(so, 4)}, v{t} offset:{L_SO}
    ds_read_b128 {vr(eo, 4)}, v{t} offset:{L_EO}
    v_cndmask_b32_e64 v{vInv}, 0, v{t + 2}, {sr(sTmp, 2)}
    s_sub_u32 s{sQ1}, s{sF0}, 1
    s_mul_i32 s{sQ2}, s{sQ1}, 528
    s_add_u32 s{sQ2}, s{sQ2}, {L_TA}
    v_add_u32 v{t + 4}, s{sQ2}, v{vLo}
    s_mov_b32 s{sQ3}, 0xfffffe00
    s_waitcnt lgkmcnt(2)
    v_readfirstlane_b32 s3, v{t + 3}
    s_waitcnt lgkmcnt(1)
    v_lshrrev_b32 v{key}, 20, v{so + 1}
    v_and_b32 v{t + 3}, 63, v{so}
    s_cmp_lg_u32 s3, 0
    s_cbranch_scc1 Lslow_entry
    v_cndmask_b32_e64 v{key}, v{key}, 7, {sr(sTmp, 2)}
    v_subrev_u32 v{t + 3}, s{sQ1}, v{t + 3}
    v_mov_b32 v{less}, 0
    v_mov_b64 {vr(eq, 2)}, -1
    v_mul_u32_u24 v{t + 3}, 12, v{t + 3}
    """)
    stamp(A, opt, 3)
    for bit in (2, 1, 0):
        A(f"""
        v_and_b32 v{t}, {1 << bit}, v{key}
        v_cmp_eq_u32 vcc, 0, v{t}
        v_and_or_b32 v{so + bit}, v{so + bit}, s{sQ3}, v{vInv}
        s_nop 0
        v_and_b32 v{z}, vcc_lo, v{eq}
        v_and_b32 v{z + 1}, vcc_hi, v{eq + 1}
        v_bcnt_u32_b32 v{t}, v{z}, v{less}
        v_xor_b32 v{eq}, v{eq}, v{z}
        v_bcnt_u32_b32 v{t}, v{z + 1}, v{t}
        v_xor_b32 v{eq + 1}, v{eq + 1}, v{z + 1}
        v_cndmask_b32 v{eq}, v{eq}, v{z}, vcc
        v_cndmask_b32 v{eq + 1}, v{eq + 1}, v{z + 1}, vcc
        v_cndmask_b32 v{less}, v{t}, v{less}, vcc
        """)
    A(f"""
    v_and_or_b32 v{so + 3}, v{so + 3}, s{sQ3}, v{vInv}
    v_mbcnt_lo_u32_b32 v{pos}, v{eq}, v{less}
    v_mbcnt_hi_u32_b32 v{pos}, v{eq + 1}, v{pos}
    s_waitcnt lgkmcnt(0)
    v_or_b32 v{eo}, v{eo}, v{vInv}
    v_or_b32 v{eo + 1}, v{eo + 1}, v{vInv}
    v_or_b32 v{eo + 2}, v{eo + 2}, v{vInv}
    v_or_b32 v{eo + 3}, v{eo + 3}, v{vInv}
    v_lshl_add_u32 v{t}, v{pos}, 4, s{sSW}
    ds_write_b128 v{t}, {vr(eo, 4)} offset:1152
    v_and_b32 v{t + 1}, 1, v{pos}
    v_lshlrev_b32 v{t + 1}, 3, v{t + 1}
    v_sub_u32 v{t}, v{t}, v{t + 1}
    ds_write2_b64 v{t}, {vr(so, 2)}, {vr(so + 2, 2)} offset0:0 offset1:2
    v_add_u32 v{t + 1}, s{sSW}, v{pos}
    ds_write_b8 v{t + 1}, v{t + 3} offset:2304
    ds_read_b32 v{vEo}, v{vEp} offset:1152
    ds_read_b128 {vr(vSo, 4)}, v{vSp}
    ds_read_b128 {vr(vT, 4)}, v{vSp} offset:32
    ds_read_b32 v{vT + 4}, v{vEp} offset:{1152 + 128}
    v_lshrrev_b32 v{t + 1}, 2, v{vX + 3}
    v_add_u32 v{t + 1}, s{sSW}, v{t + 1}
    ds_read_b32 v{vSb}, v{t + 1} offset:2304
    v_mov_b32 v{vT + 5}, v{t + 4}
    s_waitcnt lgkmcnt(4)
    v_add_u32 v{vEo}, v{vEo}, v{vH16}
    buffer_load_dwordx4 {vr(vEA, 4)}, v{vEo}, {sr(S_EA, 4)}, 0 offen {ea_pol}
    """)
    for u in range(4):
        src = (vSo, vSo + 2, vT, vT + 2)[u]
        if u in (0, 2):
            A(f"s_waitcnt lgkmcnt({3 - u // 2})")
        A(f"v_lshl_add_u64 {vr(src, 2)}, {vr(src, 2)}, 0, {vr(vLo, 2)}")
        A(f"buffer_load_dwordx4 {vr(vL + 8 * u, 4)}, v{src}, {sr(S_TAB, 4)}, 0 offen")
        A(f"buffer_load_dwordx4 {vr(vL + 8 * u + 4, 4)}, v{src + 1}, {sr(S_TAB, 4)}, 0 offen")
    for s in range(NS):
        A(f"ds_read_b128 {vr(vSl + 12 * s + 8, 4)}, v{vT + 5} offset:{528 * s}")
    for s in range(NS):
        for j in range(0, 8, 2):
            A(f"v_mov_b64 {vr(vSl + 12 * s + j, 2)}, 0")
    A("s_waitcnt lgkmcnt(0)")
    for s in range(NS):
        for j in range(4):
            A(f"v_exp_f32 v{vSl + 12 * s + 8 + j}, v{vSl + 12 * s + 8 + j}")
    A(f"""
    v_add_u32 v{vEo}, v{vT + 4}, v{vH16}
    v_readlane_b32 s{sSl0}, v{vSb}, 0
    v_readlane_b32 s{sSl1}, v{vSb}, 1
    s_mov_b32 s{sLn}, 2
    s_mov_b32 s{sLn + 1}, 3
    s_mul_i32 s{sQ1}, s{sRem}, 3
    s_lshr_b32 s{sQ1}, s{sQ1}, 2
    s_lshr_b32 s{sQ2}, s{sRem}, 1
    s_lshr_b32 s{sQ3}, s{sRem}, 2
    s_setprio 3
    s_waitcnt vmcnt(8)
    """)
    stamp(A, opt, 4)

    def mfma(j):
        return f"v_mfma_f32_32x32x16_bf16 {vr(vD + 16 * j, 16)}, {vr(vEA, 4)}, {vr(vWC + 4 * j, 4)}, 0"

    for j in range(4):
        A(mfma(j))
    A(f"buffer_load_dwordx4 {vr(vEA, 4)}, v{vEo}, {sr(S_EA, 4)}, 0 offen {ea_pol}")
    A("s_nop 7")
    A("s_nop 1")
    A(f"s_cmp_gt_u32 s{sRem}, 8")
    A("s_cbranch_scc0 Llast")

    def step(u, last):
        La, Lb = vL + 8 * (u & 3), vL + 8 * (u & 3) + 4
        a, b = vT, vT + 4
        sl = (sSl0, sSl1)[u >> 2]
        prefetch = not (last and u >= 4)
        wait = 7 if u < 4 else (6 if not last else 2 * (7 - u))
        A(f"s_waitcnt vmcnt({wait})")
        if prefetch and u % 2 == 0:
            A(f"ds_read_b128 {vr(vSo, 4)}, v{vSp} offset:{16 * (u + 4)}")
        if u == 6 and not last:
            A(f"ds_read_b32 v{vEo}, v{vEp} offset:{1152 + 256}")

        def mix(j, hb):
            return (f"v_fma_mix_f32 v{(a, b)[hb] + j}, v{vD + 16 * j + 2 * u + hb}, s{sNl}, v{(La, Lb)[hb] + j} "
                    "op_sel_hi:[0,0,1]")

        wide = not (prefetch and u % 2 == 0)
        if u == 7 and not last:
            for j in range(4):
                A(mix(j, 0))
                A(mix(j, 1))
                if j:
                    A(f"v_exp_f32 v{a + j - 1}, v{a + j - 1}")
                    A(f"v_exp_f32 v{b + j - 1}, v{b + j - 1}")
                A(mfma(j))
            A(f"v_exp_f32_e64 v{a + 3}, v{a + 3}")
            A(f"v_exp_f32 v{b + 3}, v{b + 3}")
        else:
            for hb in range(2):
                for j in range(4):
                    A(mix(j, hb))
            for j in range(8):
                A(f"v_exp_f32{'_e64' if wide and j == 0 else ''} v{a + j}, v{a + j}")
        if not wide:
            A("s_waitcnt lgkmcnt(0)")
        A(f"s_set_gpr_idx_on s{sl}, gpr_idx(SRC1)")
        for j in range(0, 8, 2):
            A(f"v_pk_fma_f32 {vr(a + j, 2)}, {vr(a + j, 2)}, {vr(vSl + 8 + (j & 3), 2)}, {sr(sC0, 2)} clamp")
        A("s_set_gpr_idx_mode gpr_idx()")
        A(f"s_lshr_b32 s{sl}, s{sl}, 8")
        for j in (0, 2):
            A(f"v_pk_mul_f32 {vr(La + j, 2)}, {vr(La + j, 2)}, {vr(b + j, 2)}")
        so2 = vSo + 2 * (u & 1)
        if prefetch:
            A(f"v_lshl_add_u64 {vr(so2, 2)}, {vr(so2, 2)}, 0, {vr(vLo, 2)}")
        for j in (0, 2):
            A(f"v_pk_fma_f32 {vr(La + j, 2)}, {vr(Lb + j, 2)}, {vr(a + j, 2)}, {vr(La + j, 2)}")
        for j in (0, 2):
            A(f"v_pk_add_f32 {vr(Lb + j, 2)}, {vr(a + j, 2)}, {vr(b + j, 2)}")
        for j in (0, 2):
            A(f"v_pk_mul_f32 {vr(a + j, 2)}, {vr(a + j, 2)}, {vr(b + j, 2)}")
        for j in range(4):
            A(f"v_rcp_f32{'_e64' if j == 0 else ''} v{a + j}, v{a + j}")
        A("s_set_gpr_idx_mode gpr_idx(SRC2,DST)")
        for j in (0, 2):
            A(f"v_pk_fma_f32 {vr(vSl + j, 2)}, {vr(La + j, 2)}, {vr(a + j, 2)}, {vr(vSl + j, 2)}")
            A(f"v_pk_fma_f32 {vr(vSl + 4 + j, 2)}, {vr(Lb + j, 2)}, {vr(a + j, 2)}, {vr(vSl + 4 + j, 2)}")
        if prefetch and not opt.get("noload"):
            A(f"buffer_load_dwordx4 {vr(La, 4)}, v{so2}, {sr(S_TAB, 4)}, 0 offen")
            A(f"buffer_load_dwordx4 {vr(Lb, 4)}, v{so2 + 1}, {sr(S_TAB, 4)}, 0 offen")
        A("s_set_gpr_idx_off")

    A(".p2align 6")
    A("Ltile:")
    A(f"s_sub_u32 s{sRem}, s{sRem}, 8")
    for u in range(8):
        step(u, False)
    A(f"""
    v_add_u32 v{vEo}, v{vEo}, v{vH16}
    buffer_load_dwordx4 {vr(vEA, 4)}, v{vEo}, {sr(S_EA, 4)}, 0 offen {ea_pol}
    v_readlane_b32 s{sSl0}, v{vSb}, s{sLn}
    v_readlane_b32 s{sSl1}, v{vSb}, s{sLn + 1}
    v_add_u32 v{vSp}, 0x80, v{vSp}
    v_add_u32 v{vEp}, 0x80, v{vEp}
    s_add_u32 s{sLn}, s{sLn}, 2
    s_add_u32 s{sLn + 1}, s{sLn + 1}, 2
    """)
    if not opt.get("noprio"):
        for k, sq in enumerate((sQ1, sQ2, sQ3)):
            A(f"s_cmp_le_u32 s{sRem}, s{sq}")
            A("s_cbranch_scc0 Lprio_done")
            A(f"s_setprio {2 - k}")
        A("Lprio_done:")
    A(f"s_cmp_gt_u32 s{sRem}, 8")
    A("s_cbranch_scc1 Ltile")
    A(".p2align 3")
    A("Llast:")
    stamp(A, opt, 5)
    A("s_nop 0")
    for u in range(8):
        step(u, True)
        if u < 7:
            A(f"s_cmp_le_u32 s{sRem}, {u + 1}")
            A("s_cbranch_scc1 Lmain_done")
    A("Lmain_done:")
    stamp(A, opt, 6)

    def finalize(a0, o, a1, u0, x0, addr, soff, pre_store):
        for j in range(4):
            A(f"v_permlane32_swap_b32 v{a0 + j}, v{a1 + j}")
            A(f"v_permlane32_swap_b32 v{a0 + o + j}, v{a1 + o + j}")
        for j in (o, o + 2, 0, 2):
            A(f"v_pk_add_f32 {vr(a0 + j, 2)}, {vr(a0 + j, 2)}, {vr(a1 + j, 2)}")
        for j in (o, o + 2):
            A(f"v_pk_add_f32 {vr(a0 + j, 2)}, {vr(a0 + j, 2)}, {sr(sC0, 2)}")
        for j in range(4):
            A(f"v_rcp_f32 v{a0 + o + j}, v{a0 + o + j}")
        A(f"v_lshlrev_b32 v{a1}, 16, v{x0}")
        A(f"v_and_b32 v{a1 + 1}, 0xffff0000, v{x0}")
        A(f"v_lshlrev_b32 v{a1 + 2}, 16, v{x0 + 1}")
        A(f"v_and_b32 v{a1 + 3}, 0xffff0000, v{x0 + 1}")
        for j in (0, 2):
            A(f"v_pk_fma_f32 {vr(a0 + j, 2)}, {vr(a0 + j, 2)}, {vr(a0 + o + j, 2)}, {vr(u0 + j, 2)}")
        for j in range(4):
            A(f"v_max_f32 v{a0 + j}, 0, v{a0 + j}")
        for j in (0, 2):
            A(f"v_pk_add_f32 {vr(a0 + j, 2)}, {vr(a0 + j, 2)}, {vr(a1 + j, 2)}")
        A(f"v_cvt_pk_bf16_f32 v{a0}, v{a0}, v{a0 + 1}")
        A(f"v_cvt_pk_bf16_f32 v{a0 + 1}, v{a0 + 2}, v{a0 + 3}")
        A(pre_store)
        A(f"buffer_store_dwordx2 {vr(a0, 2)}, v{addr}, {sr(S_OUT, 4)}, s{soff} offen")

    eps = f32(1e-6 / c0)
    vU, vXr, vA1, vA2, vA3, vCy = vD, vD + 16, vD + 24, vD + 25, vD + 26, vD + 32
    A(f"""
    v_lshl_add_u32 v{vA1}, v{vH16}, 5, v{vLo}
    v_add_u32 v{vA1}, s{sSW}, v{vA1}
    ds_write_b128 v{vA1}, {vr(vSl, 4)}
    ds_write_b128 v{vA1}, {vr(vSl + 4, 4)} offset:1024
    s_mul_i32 s3, s{sF0}, 528
    s_add_u32 s3, s3, {L_TU}
    v_mul_u32_u24 v{vA2}, 33, v{vH16}
    v_add3_u32 v{vA2}, v{vA2}, v{vLo}, s3
    s_mul_i32 s3, s{sF0}, 272
    s_add_u32 s3, s3, {L_X}
    v_mul_u32_u24 v{vA3}, 17, v{vH16}
    v_lshrrev_b32 v{vLo + 1}, 1, v{vLo}
    v_add3_u32 v{vA3}, v{vA3}, v{vLo + 1}, s3
    """)
    for pr in range(4):
        A(f"ds_read_b128 {vr(vU + 4 * pr, 4)}, v{vA2} offset:{1056 * pr}")
        A(f"ds_read_b64 {vr(vXr + 2 * pr, 2)}, v{vA3} offset:{544 * pr}")
    A(f"""
    v_lshl_add_u32 v{vA2}, v{vH16}, 4, v{vLo + 1}
    s_add_u32 s{sQ1}, s{sN0}, s{sF0}
    s_lshl_b32 s{sQ1}, s{sQ1}, 8
    s_mov_b32 s{sC0}, {hex(eps)}
    s_mov_b32 s{sC0 + 1}, {hex(eps)}
    s_mul_i32 s{sQ2}, s{sOwn}, 12
    s_waitcnt lgkmcnt(0)
    """)
    for pr in range(4):
        if pr < 3:
            A(f"s_cmp_gt_u32 s{sOwn}, {2 * pr + 2}")
            A(f"s_cbranch_scc1 Lfin{pr}")
        A("s_barrier")
        A(f"s_cmp_eq_u32 s{sW}, 7")
        A(f"s_cbranch_scc1 Lfin{pr}")
        A(f"ds_read_b128 {vr(vCy, 4)}, v{vA1} offset:{STRW}")
        A(f"ds_read_b128 {vr(vCy + 4, 4)}, v{vA1} offset:{STRW + 1024}")
        A(f"s_set_gpr_idx_on s{sQ2}, gpr_idx(SRC0,DST)")
        A("s_waitcnt lgkmcnt(0)")
        for j in range(0, 8, 2):
            A(f"v_pk_add_f32 {vr(vSl + j, 2)}, {vr(vSl + j, 2)}, {vr(vCy + j, 2)}")
        A("s_set_gpr_idx_off")
        A("s_nop 1")
        A(f"Lfin{pr}:")
        finalize(vSl + 12 * (2 * pr + 1), 4, vSl + 12 * (2 * pr + 2), vU + 4 * pr, vXr + 2 * pr, vA2, sQ1,
                 f"s_cmp_gt_u32 s{sOwn}, {2 * pr + 1}\ns_cselect_b32 exec_hi, -1, 0")
        if pr < 3:
            A(f"s_add_u32 s{sQ1}, s{sQ1}, 512")
            A(f"s_cmp_gt_u32 s{sOwn}, {2 * pr + 2}")
            A("s_cbranch_scc0 Lk2_done")
    A("Lk2_done:")
    stamp_flush(A, opt, 8, 0x20000, vTid)
    if opt.get("spin"):
        A("""
        Lspin:
        s_memrealtime s[42:43]
        s_waitcnt lgkmcnt(0)
        s_sub_u32 s42, s42, s100
        s_cmp_lt_u32 s42, 10000
        s_cbranch_scc1 Lspin
        """)
    A("Lk2_exit:")
    A("s_endpgm")

    NU = 7
    vAcc, vAn = 0, 56
    vLs = [vL + 8 * u for u in range(4)] + [84 + 8 * u for u in range(3)]
    vP, vErr, vQ, vCaddr, vUaddr = 245, 252, 253, 254, 255
    A("Lslow_entry:")
    A(f"""
    s_waitcnt vmcnt(0) lgkmcnt(0)
    s_barrier
    v_lshlrev_b32 v{vX + 11}, 2, v{vTid}
    ds_write_b32 v{vX + 11}, v{vZero} offset:{L_CNT}
    s_mul_i32 s3, s{sW}, 528
    s_add_u32 s3, s3, {L_TA}
    v_add_u32 v{vX + 11}, s3, v{vLo}
    """)
    for u in range(NU):
        A(f"ds_read_b128 {vr(vAn + 4 * u, 4)}, v{vX + 11} offset:{8 * 528 * u}")
    for i in range(0, 8 * NU, 2):
        A(f"v_mov_b64 {vr(vAcc + i, 2)}, 0")
    A(f"""
    v_bfe_u32 v{vX + 11}, v{vTid}, 3, 3
    v_and_b32 v{vX + 12}, 7, v{vTid}
    v_lshlrev_b32 v{vX + 12}, 2, v{vX + 12}
    v_lshl_add_u32 v{vX + 12}, v{vX + 11}, 8, v{vX + 12}
    s_lshl_b32 s3, s{sW}, 5
    v_add_u32 v{vCaddr}, s3, v{vX + 12}
    v_bfe_u32 v{vX + 11}, v{vTid}, 3, 2
    v_bfe_u32 v{vX + 12}, v{vTid}, 1, 1
    v_lshl_add_u32 v{vX + 11}, v{vX + 11}, 1, v{vX + 12}
    v_lshlrev_b32 v{vUaddr}, 5, v{vX + 11}
    Lbatch:
    """)
    batch_masks()
    A("Lround:")
    rec_loads()
    A(f"""
    v_mov_b32 v{vZero}, 0
    v_mov_b32 v{vOne}, 1
    ds_write_b32 v{vZero}, v{vZero} offset:{L_FLAG}
    ds_write_b32 v{vZero}, v{vZero} offset:{L_FLAG + 4}
    s_waitcnt lgkmcnt(0)
    s_barrier
    s_mov_b64 exec, {sr(sMore, 2)}
    ds_write_b32 v{vZero}, v{vOne} offset:{L_FLAG + 4}
    s_mov_b64 exec, -1
    s_waitcnt vmcnt(0)
    """)
    histogram(False)
    A("s_waitcnt lgkmcnt(0)")
    A("s_barrier")
    c, inc, deg, q, t0, t1 = vX + 12, vX + 13, vX + 14, vX + 15, vX + 16, vX + 17
    A(f"ds_read_b32 v{c}, v{vCaddr} offset:{L_CNT}")
    A(f"v_lshrrev_b32 v{t0}, 5, v{vCaddr}")
    A(f"v_lshlrev_b32 v{t0}, 6, v{t0}")
    A("s_waitcnt lgkmcnt(0)")
    A(f"ds_write_b32 v{vCaddr}, v{vZero} offset:{L_CNT}")
    A(f"v_mov_b32 v{inc}, v{c}")
    for d in (1, 2, 4, 8):
        A("s_nop 1")
        A(f"v_add_u32_dpp v{inc}, v{inc}, v{inc} row_shr:{d} row_mask:0xf bank_mask:0xf")
    A(f"""
    v_mov_b32 v{t1}, 0
    s_nop 0
    v_mov_b32_dpp v{deg}, v{inc} row_newbcast:7 row_mask:0xf bank_mask:0x3
    v_mov_b32_dpp v{t1}, v{inc} row_newbcast:7 row_mask:0xf bank_mask:0xc
    v_mov_b32_dpp v{deg}, v{inc} row_newbcast:15 row_mask:0xf bank_mask:0xc
    v_sub_u32 v{inc}, v{inc}, v{t1}
    v_sub_u32 v{deg}, v{deg}, v{t1}
    v_sub_u32 v{inc}, v{inc}, v{c}
    v_add_u32 v{inc}, v{inc}, v{t0}
    ds_write_b32 v{vCaddr}, v{inc} offset:{L_BASE}
    v_cmp_lt_u32 vcc, 64, v{deg}
    v_min_u32 v{deg}, 64, v{deg}
    v_add_u32 v{q}, 3, v{deg}
    v_lshrrev_b32 v{q}, 2, v{q}
    s_mov_b64 exec, vcc
    ds_write_b32 v{vZero}, v{vOne} offset:{L_FLAG}
    s_mov_b64 exec, -1
    ds_bpermute_b32 v{vQ}, v{vUaddr}, v{q}
    v_and_b32 v{c}, 7, v{vTid}
    v_add_u32 v{c}, v{c}, v{deg}
    v_lshlrev_b32 v{t1}, 2, v{q}
    v_cmp_lt_u32 vcc, v{c}, v{t1}
    v_add_lshl_u32 v{c}, v{c}, v{t0}, 2
    v_mov_b32 v{t0}, {TAB_BYTES}
    v_bfrev_b32 v{t1}, 2
    s_mov_b64 exec, vcc
    ds_write_b32 v{c}, v{t0} offset:{L_SO}
    ds_write_b32 v{c}, v{t1} offset:{L_EO}
    s_mov_b64 exec, -1
    v_max_u32_dpp v{q}, v{q}, v{q} row_ror:8 row_mask:0xf bank_mask:0xf
    s_nop 0
    v_readlane_b32 s{sT}, v{q}, 0
    v_readlane_b32 s3, v{q}, 16
    v_readlane_b32 s{sTmp}, v{q}, 32
    v_readlane_b32 s{sTmp + 1}, v{q}, 48
    s_waitcnt lgkmcnt(0)
    s_barrier
    ds_read_b64 {vr(vX + 12, 2)}, v{vZero} offset:{L_FLAG}
    """)
    for i in range(8):
        A(f"ds_read_b32 v{vKey + i}, v{vKey + i} offset:{L_BASE}")
    A(f"""
    s_max_u32 s{sT}, s{sT}, s3
    s_max_u32 s{sTmp}, s{sTmp}, s{sTmp + 1}
    s_max_u32 s{sT}, s{sT}, s{sTmp}
    s_waitcnt lgkmcnt(0)
    v_readfirstlane_b32 s{sOvf}, v{vX + 12}
    v_readfirstlane_b32 s{sMor}, v{vX + 13}
    """)
    for i in range(8):
        A(f"v_and_b32 v{vX + 12}, 63, v{vRec + i}")
        A(f"v_add_u32 v{vKey + i}, v{vKey + i}, v{vRank + i}")
        A(f"v_lshl_add_u32 v{vX + 12}, v{vX + 12}, 6, 64")
        A(f"v_cmp_lt_u32 vcc, v{vKey + i}, v{vX + 12}")
        A(f"v_lshlrev_b32 v{vKey + i}, 2, v{vKey + i}")
        A(f"s_and_b64 exec, vcc, {sr(sMask + 2 * i, 2)}")
        A(f"ds_write_b32 v{vKey + i}, v{vSoff + i} offset:{L_SO}")
        A(f"ds_write_b32 v{vKey + i}, v{vEoff + i} offset:{L_EO}")
        A(f"s_andn2_b64 {sr(sMask + 2 * i, 2)}, {sr(sMask + 2 * i, 2)}, vcc")
        A("s_mov_b64 exec, -1")
    A(f"""
    s_lshl_b32 s3, s{sW}, 8
    v_lshrrev_b32 v{vX + 12}, 1, v{vH16}
    v_add_u32 v{vP}, s3, v{vX + 12}
    v_and_b32 v{vX + 12}, 1, v{vTid}
    v_bfe_u32 v{vX + 13}, v{vTid}, 2, 1
    v_lshl_add_u32 v{vX + 12}, v{vX + 13}, 1, v{vX + 12}
    v_lshl_add_u32 v{vX + 12}, v{vX + 12}, 2, s3
    v_lshl_add_u32 v{vEp}, v{vUaddr}, 6, v{vX + 12}
    s_lshr_b32 s3, s{sT}, 1
    v_mov_b32 v{vErr}, s3
    s_mov_b64 {sr(sCur, 2)}, 0
    s_mov_b32 s{sTi}, 0
    """)
    for u in range(1, NU):
        A(f"v_mov_b32 v{vP + u}, v{vP}")
    A(f"""
    s_waitcnt lgkmcnt(0)
    s_barrier
    s_cmp_eq_u32 s{sT}, 0
    s_cbranch_scc1 Lg_done
    s_branch Lg_entry
    Lg_tile:
    s_waitcnt vmcnt({2 * NU})
    """)
    for j in range(4):
        A(mfma(j))
    A(f"""
    Lg_entry:
    v_add_u32 v{vErr}, v{vQ}, v{vErr}
    ds_read_b32 v{vEo}, v{vEp} offset:{L_EO}
    ds_read_b64 {vr(vSo, 2)}, v{vP} offset:{L_SO}
    v_cmp_le_u32_e64 {sr(sNext, 2)}, s{sT}, v{vErr}
    s_cmp_lt_u32 s{sTi}, s{sT}
    s_cselect_b64 {sr(sNext, 2)}, {sr(sNext, 2)}, 1
    s_mov_b64 exec, {sr(sNext, 2)}
    v_subrev_u32 v{vErr}, s{sT}, v{vErr}
    v_add_u32 v{vEp}, 16, v{vEp}
    s_waitcnt lgkmcnt(1)
    v_add_u32 v{vEo}, v{vEo}, v{vH16}
    buffer_load_dwordx4 {vr(vEA, 4)}, v{vEo}, {sr(S_EA, 4)}, 0 offen
    s_mov_b64 exec, -1
    """)
    for u in range(NU):
        bit = 8 * (u >> 1) + 2 * (u & 1) + 1
        so2 = vSo + 2 * (u & 1)
        La, Lb = vLs[u], vLs[u] + 4
        a, b = vT, vT + 4
        num, den = vAcc + 8 * u, vAcc + 8 * u + 4
        if u + 1 < NU:
            A(f"ds_read_b64 {vr(vSo + 2 * ((u + 1) & 1), 2)}, v{vP + u + 1} offset:{L_SO + 2048 * (u + 1)}")
        A(f"s_bitcmp1_b32 s{sCur}, {bit}")
        A(f"s_cbranch_scc0 Lg_skip{u}")
        A(f"s_waitcnt vmcnt({2 * NU - 1})")
        for j in range(4):
            A(f"v_fma_mix_f32 v{a + j}, v{vD + 16 * j + 2 * u}, s{sNl}, v{La + j} op_sel_hi:[0,0,1]")
        for j in range(4):
            A(f"v_fma_mix_f32 v{b + j}, v{vD + 16 * j + 2 * u + 1}, s{sNl}, v{Lb + j} op_sel_hi:[0,0,1]")
        for j in range(0, 8, 2):
            A(f"v_pk_add_f32 {vr(a + j, 2)}, {vr(a + j, 2)}, {vr(vAn + 4 * u + (j & 3), 2)}")
        for j in range(8):
            A(f"v_exp_f32_e64 v{a + j}, v{a + j} clamp")
        for j in range(0, 8, 2):
            A(f"v_pk_add_f32 {vr(a + j, 2)}, {vr(a + j, 2)}, {sr(sC0, 2)}")
        for j in (0, 2):
            A(f"v_pk_mul_f32 {vr(La + j, 2)}, {vr(La + j, 2)}, {vr(b + j, 2)}")
        for j in (0, 2):
            A(f"v_pk_fma_f32 {vr(La + j, 2)}, {vr(Lb + j, 2)}, {vr(a + j, 2)}, {vr(La + j, 2)}")
        for j in (0, 2):
            A(f"v_pk_add_f32 {vr(Lb + j, 2)}, {vr(a + j, 2)}, {vr(b + j, 2)}")
        for j in (0, 2):
            A(f"v_pk_mul_f32 {vr(a + j, 2)}, {vr(a + j, 2)}, {vr(b + j, 2)}")
        for j in range(4):
            A(f"v_rcp_f32 v{a + j}, v{a + j}")
        for j in (0, 2):
            A(f"v_pk_fma_f32 {vr(num + j, 2)}, {vr(La + j, 2)}, {vr(a + j, 2)}, {vr(num + j, 2)}")
            A(f"v_pk_fma_f32 {vr(den + j, 2)}, {vr(Lb + j, 2)}, {vr(a + j, 2)}, {vr(den + j, 2)}")
        A(f"Lg_skip{u}:")
        A(f"s_bitcmp1_b32 s{sNext}, {bit}")
        A("s_cselect_b64 exec, -1, 1")
        A(f"s_cselect_b32 s{sInc}, 16, 0")
        A(f"s_waitcnt lgkmcnt({1 if u + 1 < NU else 0})")
        A(f"v_add_u32 v{so2}, v{so2}, v{vLo}")
        A(f"v_add_u32 v{so2 + 1}, v{so2 + 1}, v{vLo}")
        A(f"buffer_load_dwordx4 {vr(La, 4)}, v{so2}, {sr(S_TAB, 4)}, 0 offen")
        A(f"buffer_load_dwordx4 {vr(Lb, 4)}, v{so2 + 1}, {sr(S_TAB, 4)}, 0 offen")
        A("s_mov_b64 exec, -1")
        A(f"v_add_u32 v{vP + u}, s{sInc}, v{vP + u}")
    A(f"""
    s_mov_b64 {sr(sCur, 2)}, {sr(sNext, 2)}
    s_add_u32 s{sTi}, s{sTi}, 1
    s_cmp_le_u32 s{sTi}, s{sT}
    s_cbranch_scc1 Lg_tile
    Lg_done:
    s_waitcnt vmcnt(0)
    s_cmp_lg_u32 s{sOvf}, 0
    s_cbranch_scc1 Lround
    s_add_u32 s{sW0}, s{sW0}, 32
    s_cmp_lg_u32 s{sMor}, 0
    s_cbranch_scc1 Lbatch
    s_mul_i32 s3, s{sW}, 528
    s_add_u32 s3, s3, {L_TU}
    v_mul_u32_u24 v{vA2}, {33 * 8}, v{vH16}
    v_add3_u32 v{vA2}, v{vA2}, v{vLo}, s3
    s_mul_i32 s3, s{sW}, 272
    s_add_u32 s3, s3, {L_X}
    v_mul_u32_u24 v{vA3}, {17 * 8}, v{vH16}
    v_lshrrev_b32 v{vLo + 1}, 1, v{vLo}
    v_add3_u32 v{vA3}, v{vA3}, v{vLo + 1}, s3
    """)
    for pr in range(4):
        A(f"ds_read_b128 {vr(vU + 4 * pr, 4)}, v{vA2} offset:{16 * 528 * pr}")
        A(f"ds_read_b64 {vr(vXr + 2 * pr, 2)}, v{vA3} offset:{16 * 272 * pr}")
    A(f"""
    v_lshl_add_u32 v{vA2}, v{vH16}, 7, v{vLo + 1}
    s_add_u32 s{sQ1}, s{sN0}, s{sW}
    s_lshl_b32 s{sQ1}, s{sQ1}, 8
    s_mov_b32 s{sC0}, {hex(eps)}
    s_mov_b32 s{sC0 + 1}, {hex(eps)}
    s_waitcnt lgkmcnt(0)
    """)
    for pr in range(4):
        if pr == 3:
            A(f"s_cmp_lg_u32 s{sW}, 0")
            A("s_cbranch_scc1 Lk2_done")
        finalize(vAcc + 16 * pr, 4, vAcc + 16 * pr + 8, vU + 4 * pr, vXr + 2 * pr, vA2, sQ1,
                 "s_mov_b32 exec_hi, 0" if pr == 3 else "s_nop 0")
        A(f"s_add_u32 s{sQ1}, s{sQ1}, 4096")
    A("s_branch Lk2_done")
    return L_END


def gen_report(A, opt):
    kind, kern, idx = opt["report"].split(",")
    idx = int(idx)
    A("report_kernel:")
    A("s_cmp_ge_u32 s2, 1")
    A("s_cbranch_scc1 Lr_exit")
    load_kernargs(A)
    A("s_waitcnt lgkmcnt(0)")
    srd(A, 28, P_WS, 0x80000, STAMP_OFF)

    def reduce(op, base, stride, lo, hi, dst, tag, sub):
        A(f"v_add_u32 v1, {lo}, v0")
        A(f"v_mov_b32 v3, {'-1' if op == 'min' else '0'}")
        A(f"Lr_{tag}:")
        A(f"v_min_u32 v2, {hi - 1}, v1")
        A(f"v_mul_u32_u24 v2, {stride}, v2")
        A(f"v_add_u32 v2, {base}, v2")
        A("buffer_load_dword v2, v2, s[28:31], 0 offen")
        A("s_waitcnt vmcnt(0)")
        if sub:
            A("v_subrev_u32 v2, s40, v2")
        A(f"v_{op}_u32 v3, v3, v2")
        A("v_add_u32 v1, 64, v1")
        A("s_nop 0")
        A("v_readfirstlane_b32 s3, v1")
        A(f"s_cmp_lt_u32 s3, {hi}")
        A(f"s_cbranch_scc1 Lr_{tag}")
        A(f"v_readlane_b32 s{dst}, v3, 0")
        for l in range(1, 64):
            A(f"v_readlane_b32 s3, v3, {l}")
            A("s_nop 0")
            A(f"s_{op}_u32 s{dst}, s{dst}, s3")

    reduce("min", 0x40000, 64, 0, NK1 * 8, 40, "a", False)
    if kind == "none":
        A("s_mov_b32 s41, 0")
    elif kern == "g":
        reduce(kind, 0x40000 + 8 * idx, 64, 0, NGEMM * 8, 41, "b", True)
    elif kern == "p":
        reduce(kind, 0x40000 + 8 * idx, 64, NGEMM * 8, (NGEMM + NCH - 1) * 8, 41, "b", True)
    else:
        reduce(kind, 0x20000 + 8 * idx, 64, 0, 1920, 41, "b", True)
        if kind == "add":
            A(f"s_mul_hi_u32 s41, s41, {2 ** 32 // 1920}")
    A("s_min_u32 s41, s41, 20000")
    A("s_add_u32 s41, s41, 10000")
    A("Lr_spin:")
    A("s_memrealtime s[42:43]")
    A("s_waitcnt lgkmcnt(0)")
    A("s_sub_u32 s42, s42, s40")
    A("s_cmp_lt_u32 s42, s41")
    A("s_cbranch_scc1 Lr_spin")
    A("Lr_exit:")
    A("s_endpgm")


def descriptor(name, vgpr, extra=""):
    return f""".amdhsa_kernel {name}
  .amdhsa_next_free_vgpr {vgpr}
  .amdhsa_next_free_sgpr 102
  .amdhsa_accum_offset {(vgpr + 3) // 4 * 4}
  .amdhsa_group_segment_fixed_size 0
  .amdhsa_kernarg_size 96
  .amdhsa_user_sgpr_count 2
  .amdhsa_user_sgpr_kernarg_segment_ptr 1
  .amdhsa_system_sgpr_workgroup_id_x 1
{extra}.end_amdhsa_kernel
"""


def generate(opt):
    A1, A2 = Asm(), Asm()
    gen_k1(A1, opt)
    lds2 = gen_k2(A2, opt)
    head = f"""; GatedGCN layer: prep_kernel builds the gather table and buckets the edges by destination;
; @launch kernel=prep_kernel grid=({NK1 + NWARM[0]},1,1) block=(512,1,1) lds=65536
; @launch kernel={NAME}_kernel grid=(256,1,1) block=(512,1,1) lds={lds2}
.amdgcn_target "amdgcn-amd-amdhsa--gfx950"
.text
.globl prep_kernel
.p2align 8
.type prep_kernel,@function
"""
    mid = f""".globl {NAME}_kernel
.p2align 8
.type {NAME}_kernel,@function
"""
    tail = (".section .rodata,\"a\"\n.p2align 6\n" + descriptor("prep_kernel", 116, "  .amdhsa_fp16_overflow 1\n")
            + ".p2align 6\n" + descriptor(f"{NAME}_kernel", 256))
    body = A1.text() + mid + A2.text()
    if opt.get("fuse"):
        lst = f"kernel={NAME}_kernel " if opt.get("aslist") else ""
        head = (f"; @launch {lst}grid=(256,1,1) block=(512,1,1) lds={lds2}\n"
                ".amdgcn_target \"amdgcn-amd-amdhsa--gfx950\"\n.text\n")
        body = mid + A2.text()
        tail = ".section .rodata,\"a\"\n.p2align 6\n" + descriptor(f"{NAME}_kernel", 256, "  .amdhsa_fp16_overflow 1\n")
    if opt.get("report"):
        A3 = Asm()
        gen_report(A3, opt)
        head = head.replace(".amdgcn_target", "; @launch kernel=report_kernel grid=(1,1,1) block=(64,1,1) lds=0\n.amdgcn_target")
        body += ".globl report_kernel\n.p2align 8\n.type report_kernel,@function\n" + A3.text()
        tail += ".p2align 6\n" + descriptor("report_kernel", 8)
    return head + body + tail


if __name__ == "__main__":
    out = sys.argv[1] if len(sys.argv) > 1 else f"cdna_kernels/{NAME}.s"
    opt = dict(a.split("=", 1) for a in sys.argv[2:])
    opt = {k: v.replace("+", " ") for k, v in opt.items()}
    open(out, "w").write(generate(opt))
```

```python
import math
import struct
import sys

NAME = "gather_scatter__edge_featured_mpnn_gatedgcn__graph"
N, E = 12500, 400000
NPB = 49
CH = 1568
NCH = 256
TAB_OFF = 0
REC_OFF = 0xE00000
OFF_OFF = 0x1000000
SPIN_MAX = 20000
STAMP_OFF = 0x2000000
TAB_BYTES = N * 512
KSH = 48
AMAX = 52.0
NLOG2E = -math.log2(math.e)


def f32(x):
    return struct.unpack("<I", struct.pack("<f", x))[0]


class Asm:
    def __init__(self):
        self.lines = []

    def __call__(self, s):
        for ln in s.strip("\n").split("\n"):
            ln = ln.strip()
            if not ln:
                continue
            self.lines.append(ln if ln.endswith(":") else "    " + ln)

    def text(self):
        return "\n".join(self.lines) + "\n"


def vr(a, n=1):
    return f"v{a}" if n == 1 else f"v[{a}:{a + n - 1}]"


def sr(a, n=1):
    return f"s{a}" if n == 1 else f"s[{a}:{a + n - 1}]"


def srd(A, d, base, nbytes, off=0):
    if off:
        A(f"s_add_u32 s{d}, s{base}, {hex(off)}")
        A(f"s_addc_u32 s{d + 1}, s{base + 1}, 0")
    else:
        A(f"s_mov_b64 {sr(d, 2)}, {sr(base, 2)}")
    A(f"s_mov_b32 s{d + 2}, {hex(nbytes)}")
    A(f"s_mov_b32 s{d + 3}, 0x20000")


P_X, P_EA, P_SRC, P_DST, P_WA, P_WB, P_WC, P_WU = 4, 6, 8, 10, 12, 14, 16, 18
P_WV, P_OUT, P_DBG, P_WS = 20, 22, 24, 26


def load_kernargs(A):
    A("s_load_dwordx16 s[4:19], s[0:1], 0")
    A("s_load_dwordx8 s[20:27], s[0:1], 64")


STAMP_BASE = [2]


def stamp_reg(i):
    return 100 if i == 0 else STAMP_BASE[0] + 2 * i


def stamp(A, opt, i):
    if opt.get("stamp"):
        A(f"{'s_memtime' if opt.get('cyc') else 's_memrealtime'} s[{stamp_reg(i)}:{stamp_reg(i) + 1}]")


def stamp_flush(A, opt, n, base, vtid):
    if not opt.get("stamp"):
        return
    A("s_mov_b64 exec, -1")
    A("s_waitcnt vmcnt(0)")
    stamp(A, opt, n - 1)
    srd(A, 20, P_WS, 0x80000, STAMP_OFF + base)
    A(f"v_lshrrev_b32 v1, 6, v{vtid}")
    A("s_lshl_b32 s3, s2, 3")
    A("v_add_u32 v1, s3, v1")
    A(f"v_mul_u32_u24 v1, {8 * n}, v1")
    A("s_mov_b64 exec, 1")
    A("s_waitcnt lgkmcnt(0)")
    for i in range(n):
        r = stamp_reg(i)
        A(f"v_mov_b32 v2, s{r}")
        A(f"v_mov_b32 v3, s{r + 1}")
        A(f"buffer_store_dwordx2 v[2:3], v1, s[20:23], 0 offen offset:{8 * i}")
        A("s_nop 1")


WAVE_SCAN = ("row_shr:1 row_mask:0xf", "row_shr:2 row_mask:0xf", "row_shr:4 row_mask:0xf",
             "row_shr:8 row_mask:0xf", "row_bcast:15 row_mask:0xa", "row_bcast:31 row_mask:0xc")


def wave_scan(A, v):
    for d in WAVE_SCAN:
        A("s_nop 1")
        A(f"v_add_u32_dpp v{v}, v{v}, v{v} {d} bank_mask:0xf")


def gen_k2(A, opt):
    STAMP_BASE[0] = 2
    ea_pol = opt.get("ea_load", "")
    tab_pol = opt.get("tab_load", "sc1")
    pf_lanes = int(opt.get("pf", 32))
    poll_at = int(opt.get("poll_at", 8))
    S_TAB, S_EA, S_REC, S_OFFS, S_TW, S_X, S_OUT = 28, 32, 36, 40, 44, 48, 52
    sW, sBk, sN0, sW0, sT, sTi, sInc, sNl = 56, 57, 58, 59, 60, 61, 62, 63
    sC0, sCur, sNext, sMore, sTmp, sNon = 64, 66, 68, 70, 72, 74
    sMask = 76
    sMask2 = 18
    S_DST, S_SRC, S_W, S_W2, S_WC, S_DBG = 76, 80, 84, 88, 76, 80
    sOvf, sMor, sQ1, sQ2, sQ3, sLw, sF0, sOwn = 92, 93, 94, 95, 96, 97, 98, 99
    sRem, sSW, sSl0, sSl1, sLn, sPM = sT, sInc, sCur, sCur + 1, sNext, sCur
    L_CNT, L_BASE, L_FLAG, P_CNT, P_BASE, P_SORT = 0, 2048, 4096, 4352, 5376, 6400
    L_R2 = 12800
    L_SO = L_R2
    LIST = 25600
    L_EO = L_SO + LIST
    L_STR = L_SO + 8448
    STRW = 2560
    L_X = L_R2 + 65536
    L_R1 = L_X + 64 * 272
    L_TA = L_R1 + 528
    L_TU = L_TA + 52 * 528
    L_END = L_R1 + 65536
    TF_OFF = NCH * 2048
    NS = 9
    vSl, vD, vL, vWC, vEA, vT, vSo, vLo = 0, 108, 172, 204, 220, 224, 232, 236
    vSp, vEp, vEo, vH16, vSb, vTid, vOffs = 238, 239, 240, 241, 242, 243, 244
    vWf, vG, vXf, vXs = 0, 32, 64, 96
    vRec, vKey, vRank, vSoff, vEoff, vX = vD, vD + 8, vD + 16, vD + 24, vD + 32, vD + 40
    cand = [(vRec + i, vKey + i, vRank + i, vSoff + i, vEoff + i, sMask + 2 * i) for i in range(8)]
    cand2 = [(vEA + i, 246 + i, 250 + i, vT + i, vT + 4 + i, sMask2 + 2 * i) for i in range(4)]
    c0 = 2.0 ** -KSH
    vZero, vOne, vXw, vXrd, vTw, vInv = vX + 5, vX + 6, vX + 7, vX + 8, vX + 9, vX + 10
    vDa, vBx, vBt, vBs, vAt, vPa, vE = vX + 12, vX + 14, vX + 15, vX + 17, vX + 18, vX + 19, vX + 20
    pD, pS, pA, pR, pC, pB, pG = vD, vD + 4, vD + 8, vD + 12, vD + 16, vD + 20, vD + 24
    vRaw, vNon, vTf = vL, vL + 16, vL + 18

    def w_dma(S, region):
        A(f"s_lshl_b32 s3, s{sW}, 13")
        A(f"s_add_u32 m0, s3, {region}")
        A(f"s_and_b32 s3, s3, 0x7fff")
        for i in range(8):
            if i == 4:
                A("s_add_u32 m0, m0, 4096")
                A("s_add_u32 s3, s3, 4096")
            A(f"buffer_load_dwordx4 v{vDa + ((i >> 1) & 1)}, {sr(S, 4)}, s3 offen offset:{1024 * (i & 3)} lds")

    A(f"{NAME}_kernel:")
    A("s_cmp_ge_u32 s2, 256")
    A("s_cbranch_scc1 Lk2_exit")
    stamp(A, opt, 0)
    load_kernargs(A)
    A(f"""
    s_memrealtime {sr(sNon, 2)}
    s_and_b32 s3, s2, 7
    s_lshl_b32 s3, s3, 5
    s_lshr_b32 s{sBk}, s2, 3
    s_add_u32 s{sBk}, s{sBk}, s3
    s_mul_i32 s{sN0}, s{sBk}, {NPB}
    v_mov_b32 v{vTid}, v0
    v_lshrrev_b32 v{vX}, 6, v0
    v_lshlrev_b32 v{vX + 2}, 4, v0
    v_readfirstlane_b32 s{sW}, v{vX}
    s_movk_i32 s3, {CH // 4}
    s_cmp_eq_u32 s2, {NCH - 1}
    s_cselect_b32 s3, {(E - (NCH - 1) * CH) // 4}, s3
    v_cmp_gt_u32_e64 {sr(sPM, 2)}, s3, v0
    v_and_b32 v{vX + 3}, 0x3f0, v{vX + 2}
    v_bfe_u32 v{vX + 1}, v0, 4, 2
    v_lshlrev_b32 v{vX + 4}, 6, v{vX + 1}
    v_xor_b32 v{vDa}, v{vX + 3}, v{vX + 4}
    v_xor_b32 v{vDa + 1}, 32, v{vDa}
    v_mov_b32 v{vZero}, 0
    s_mul_i32 s{sQ1}, s2, {CH * 4}
    s_lshl_b32 s{sTmp}, s{sN0}, 8
    s_add_u32 s{sTmp + 1}, s{sTmp}, 8192
    s_or_b32 s3, s2, s{sW}
    s_waitcnt lgkmcnt(0)
    s_cbranch_scc1 Lno_nonce
    """)
    srd(A, S_DBG, P_DBG, 256)
    A(f"""
    s_or_b32 s3, s{sNon}, 1
    v_mov_b32 v{vNon}, s3
    v_mov_b32 v{vNon + 1}, s{sNon + 1}
    s_mov_b64 exec, 1
    buffer_store_dwordx2 {vr(vNon, 2)}, v{vZero}, {sr(S_DBG, 4)}, 0 offen sc1
    s_mov_b64 exec, -1
    Lno_nonce:
    """)
    srd(A, S_DST, P_DST, E * 4)
    srd(A, S_SRC, P_SRC, E * 4)
    A(f"""
    s_mov_b64 exec, {sr(sPM, 2)}
    s_cbranch_execz Lp_nold
    buffer_load_dwordx4 {vr(pD, 4)}, v{vX + 2}, {sr(S_DST, 4)}, s{sQ1} offen
    buffer_load_dwordx4 {vr(pS, 4)}, v{vX + 2}, {sr(S_SRC, 4)}, s{sQ1} offen
    Lp_nold:
    s_mov_b64 exec, -1
    """)
    srd(A, S_X, P_X, N * 256)
    for i in range(2):
        A(f"buffer_load_dwordx4 {vr(vXs + 4 * i, 4)}, v{vX + 2}, {sr(S_X, 4)}, s{sTmp + i} offen")
    A(f"""
    s_cmp_lt_u32 s{sW}, 4
    s_cselect_b32 s{S_W}, s{P_WB}, s{P_WV}
    s_cselect_b32 s{S_W + 1}, s{P_WB + 1}, s{P_WV + 1}
    s_cselect_b32 s{S_W2}, s{P_WA}, s{P_WU}
    s_cselect_b32 s{S_W2 + 1}, s{P_WA + 1}, s{P_WU + 1}
    s_mov_b32 s{S_W + 2}, 32768
    s_mov_b32 s{S_W + 3}, 0x20000
    s_mov_b32 s{S_W2 + 2}, 32768
    s_mov_b32 s{S_W2 + 3}, 0x20000
    """)
    w_dma(S_W, L_R1)
    A(f"""
    v_mov_b32 v{vOne}, 1
    v_lshlrev_b32 v{vX + 11}, 2, v{vTid}
    ds_write_b32 v{vX + 11}, v{vZero} offset:{L_CNT}
    ds_write_b32 v{vX + 11}, v{vZero} offset:{L_FLAG}
    """)
    srd(A, S_WC, P_WC, 4096)
    srd(A, S_DBG, P_DBG, 256)
    srd(A, S_REC, P_WS, NCH * CH * 4, REC_OFF)
    srd(A, S_OFFS, P_WS, TF_OFF + 2048, OFF_OFF)
    srd(A, S_TAB, P_WS, TAB_BYTES + 512, TAB_OFF)
    srd(A, S_EA, P_EA, 0 if opt.get("noea") else E * 32)
    srd(A, S_OUT, P_OUT, N * 256)
    A(f"""
    s_lshl_b32 s3, s{sN0}, 9
    s_add_u32 s{S_TW}, s{P_WS}, s3
    s_addc_u32 s{S_TW + 1}, s{P_WS + 1}, 0
    s_sub_u32 s3, {TAB_BYTES}, s3
    s_min_u32 s{S_TW + 2}, s3, {NPB * 512}
    s_mov_b32 s{S_TW + 3}, 0x20000
    s_mov_b32 s{sNl}, {hex(f32(NLOG2E))}
    s_mov_b32 s{sC0}, {hex(f32(c0))}
    s_mov_b32 s{sC0 + 1}, {hex(f32(c0))}
    s_mov_b32 s{sW0}, 0
    s_mov_b32 s{sQ2}, 85599
    s_mov_b32 s{sQ3}, {-NPB}
    v_lshlrev_b32 v{vE}, 8, v{vTid}
    v_add_u32 v{vE + 1}, 64, v{vE}
    v_add_u32 v{vE + 2}, 0x80, v{vE}
    v_add_u32 v{vE + 3}, 0xc0, v{vE}
    v_lshrrev_b32 v{vX + 11}, 4, v{vTid}
    v_lshl_add_u32 v{vXw}, v{vX + 11}, 4, v{vX + 2}
    v_add_u32 v{vXw}, {L_X}, v{vXw}
    s_waitcnt lgkmcnt(0)
    s_barrier
    s_mov_b64 exec, {sr(sPM, 2)}
    s_cbranch_execz Lp_p1
    s_waitcnt vmcnt(10)
    """)
    stamp(A, opt, 1)
    for i in range(4):
        t = pC + (i & 1)
        A(f"v_mul_u32_u24 v{t}, s{sQ2}, v{pD + i}")
        A(f"v_lshl_or_b32 v{pS + i}, v{pS + i}, 18, v{vE + i}")
        A(f"v_lshrrev_b32 v{t}, 22, v{t}")
        A(f"v_add_u32 v{pS + i}, v{pS + i}, v{pD + i}")
        A(f"v_lshlrev_b32 v{pA + i}, 2, v{t}")
        A(f"ds_add_rtn_u32 v{pR + i}, v{pA + i}, v{vOne} offset:{P_CNT}")
        A(f"v_mad_i32_i24 v{pS + i}, v{t}, s{sQ3}, v{pS + i}")
    A(f"""
    Lp_p1:
    s_mov_b64 exec, -1
    s_waitcnt vmcnt(8)
    ds_write_b128 v{vXw}, {vr(vXs, 4)}
    ds_write_b128 v{vXw}, {vr(vXs + 4, 4)} offset:{32 * 272}
    s_cmp_eq_u32 s{sW}, 7
    s_cbranch_scc1 Lp_scanner
    s_waitcnt lgkmcnt(2)
    s_barrier
    buffer_load_dwordx2 {vr(vNon, 2)}, v{vZero}, {sr(S_DBG, 4)}, 0 offen sc1
    """)
    w_dma(S_W2, L_R2)
    A("s_branch Lp_scanned")
    A("Lp_scanner:")
    A(f"buffer_load_dwordx2 {vr(vNon, 2)}, v{vZero}, {sr(S_DBG, 4)}, 0 offen sc1")
    w_dma(S_W2, L_R2)
    A(f"""
    s_barrier
    ds_read_b128 {vr(pC, 4)}, v{vX + 3} offset:{P_CNT}
    s_waitcnt lgkmcnt(0)
    v_add_u32 v{pB + 2}, v{pC}, v{pC + 1}
    v_add_u32 v{pB + 3}, v{pB + 2}, v{pC + 2}
    v_add_u32 v{pG}, v{pB + 3}, v{pC + 3}
    v_mov_b32 v{pG + 1}, v{pG}
    """)
    wave_scan(A, pG + 1)
    A(f"""
    v_sub_u32 v{pB}, v{pG + 1}, v{pG}
    v_add_u32 v{pB + 1}, v{pB}, v{pC}
    v_add_u32 v{pB + 2}, v{pB}, v{pB + 2}
    v_add_u32 v{pB + 3}, v{pB}, v{pB + 3}
    ds_write_b128 v{vX + 3}, {vr(pB, 4)} offset:{P_BASE}
    s_waitcnt lgkmcnt(0)
    Lp_scanned:
    s_barrier
    s_mov_b64 exec, {sr(sPM, 2)}
    s_cbranch_execz Lp_p2
    """)
    for i in range(4):
        A(f"ds_read_b32 v{pA + i}, v{pA + i} offset:{P_BASE}")
    for i in range(4):
        A("s_waitcnt lgkmcnt(3)")
        A(f"v_add_lshl_u32 v{pA + i}, v{pA + i}, v{pR + i}, 2")
        A(f"ds_write_b32 v{pA + i}, v{pS + i} offset:{P_SORT}")
    A(f"""
    Lp_p2:
    s_mov_b64 exec, -1
    v_lshrrev_b32 v{vX + 11}, 1, v{vX + 2}
    v_and_b32 v{vX + 11}, 0x3ff, v{vX + 11}
    ds_read_b64 {vr(pC, 2)}, v{vX + 11} offset:{P_CNT}
    ds_read_b64 {vr(pB, 2)}, v{vX + 11} offset:{P_BASE}
    v_and_b32 v{vLo}, 0x1f0, v{vX + 2}
    v_bfe_u32 v{vX + 4}, v{vTid}, 5, 1
    v_mov_b32 v{vLo + 1}, v{vLo}
    v_lshlrev_b32 v{vH16}, 4, v{vX + 4}
    s_lshr_b32 s{sTmp}, s{sW}, 2
    s_and_b32 s{sTmp + 1}, s{sW}, 3
    v_and_b32 v{vX + 11}, 15, v{vTid}
    s_lshl_b32 s3, s{sTmp}, 5
    v_add_u32 v{vX + 11}, s3, v{vX + 11}
    v_mul_u32_u24 v{vBx}, 272, v{vX + 11}
    v_lshl_add_u32 v{vBx}, v{vX + 1}, 4, v{vBx}
    v_add_u32 v{vBx}, {L_X}, v{vBx}
    s_lshl_b32 s3, s{sTmp + 1}, 7
    v_lshl_add_u32 v{vBs}, v{vX + 1}, 4, s3
    v_lshl_add_u32 v{vBs}, v{vX + 11}, 9, v{vBs}
    v_bfe_u32 v{vX + 11}, v{vTid}, 2, 2
    v_xor_b32 v{vE}, s{sTmp + 1}, v{vX + 11}
    v_lshlrev_b32 v{vE}, 6, v{vE}
    v_and_b32 v{vE + 1}, 3, v{vTid}
    v_lshl_add_u32 v{vE}, v{vE + 1}, 3, v{vE}
    v_lshl_add_u32 v{vE}, v{vX + 11}, 8, v{vE}
    v_and_b32 v{vE + 1}, 1, v{vX + 1}
    v_lshl_add_u32 v{vBt}, v{vE + 1}, 5, v{vE}
    v_lshl_add_u32 v{vBt}, v{vX + 1}, 11, v{vBt}
    v_add_u32 v{vBt}, {L_R1}, v{vBt}
    v_xor_b32 v{vBt + 1}, 32, v{vBt}
    v_xor_b32 v{vE + 1}, v{vE + 1}, v{vX + 4}
    v_lshl_add_u32 v{vAt}, v{vE + 1}, 5, v{vE}
    v_lshl_add_u32 v{vAt}, v{vX + 4}, 11, v{vAt}
    s_lshl_b32 s3, s{sTmp}, 15
    s_add_u32 s3, s3, {L_R2}
    v_add_u32 v{vAt}, s3, v{vAt}
    s_waitcnt vmcnt(9) lgkmcnt(0)
    s_barrier
    s_mov_b64 exec, {sr(sPM, 2)}
    s_cbranch_execz Lp_out
    ds_read_b128 {vr(pD, 4)}, v{vX + 2} offset:{P_SORT}
    s_waitcnt lgkmcnt(0)
    buffer_store_dwordx4 {vr(pD, 4)}, v{vX + 2}, {sr(S_REC, 4)}, s{sQ1} offen sc1
    Lp_out:
    s_mov_b64 exec, -1
    """)

    bX, bAcc, bF = 0, 32, 64

    def bv_reads(s, buf):
        for nb in range(2):
            A(f"ds_read_b128 {vr(bX + 16 * nb + 4 * s, 4)}, v{vBx} offset:{16 * 272 * nb + 64 * s}")
        for m in range(2):
            for be in range(2):
                for z in range(2):
                    A(f"ds_read_b64_tr_b16 {vr(bF + 16 * buf + 8 * m + 4 * be + 2 * z, 2)}, v{vBt + be} "
                      f"offset:{m * 32768 + s * 8192 + z * 1024}")

    bv_reads(0, 0)
    A(f"v_lshrrev_b32 v{vE + 2}, 1, v{vLo}")
    A(f"v_lshl_add_u32 v{vE + 2}, v{vX + 4}, 11, v{vE + 2}")
    for i in range(8):
        A(f"buffer_load_dwordx2 {vr(vRaw + 2 * i, 2)}, v{vE + 2}, {sr(S_WC, 4)}, 0 offen offset:{256 * i}")
    for s in range(4):
        buf = s & 1
        if s < 3:
            bv_reads(s + 1, buf ^ 1)
            A("s_waitcnt lgkmcnt(10)")
        else:
            A("s_waitcnt lgkmcnt(0)")
        for be in range(2):
            for nb in range(2):
                for m in range(2):
                    d = bAcc + 16 * m + 8 * nb + 4 * be
                    cc = "0" if s == 0 else vr(d, 4)
                    A(f"v_mfma_f32_16x16x32_bf16 {vr(d, 4)}, {vr(bF + 16 * buf + 8 * m + 4 * be, 4)}, "
                      f"{vr(bX + 16 * nb + 4 * s, 4)}, {cc}")
    A(f"""
    s_mov_b32 s{sTi}, 0
    s_waitcnt vmcnt(8)
    Lnonce_check:
    v_readfirstlane_b32 s{sNon}, v{vNon}
    v_readfirstlane_b32 s{sNon + 1}, v{vNon + 1}
    s_add_u32 s{sTi}, s{sTi}, 1
    s_cmp_lg_u32 s{sNon}, 0
    s_cbranch_scc1 Lnonce_ok
    buffer_load_dwordx2 {vr(vNon, 2)}, v{vZero}, {sr(S_DBG, 4)}, 0 offen sc1
    s_cmp_lt_u32 s{sTi}, {SPIN_MAX}
    s_waitcnt vmcnt(0)
    s_cbranch_scc1 Lnonce_check
    Lnonce_ok:
    s_and_b32 s{sNon + 1}, s{sNon + 1}, 0x3ff
    s_lshl_b32 s3, s{sNon + 1}, 22
    v_lshl_or_b32 v{pG}, v{pC}, 11, v{pB}
    v_lshl_or_b32 v{pG + 2}, v{pC + 1}, 11, v{pB + 1}
    v_or_b32 v{pG}, s3, v{pG}
    v_or_b32 v{pG + 2}, s3, v{pG + 2}
    v_mov_b32 v{pG + 1}, s{sNon}
    v_mov_b32 v{pG + 3}, s{sNon}
    s_lshl_b32 s3, s2, 11
    s_cmp_ge_u32 s{sW}, 2
    s_barrier
    s_cbranch_scc1 Lno_off
    buffer_store_dwordx4 {vr(pG, 4)}, v{vX + 2}, {sr(S_OFFS, 4)}, s3 offen sc1
    Lno_off:
    """)
    stamp(A, opt, 2)
    A(f"""
    v_and_b32 v{vX + 11}, 31, v{vTid}
    v_mul_u32_u24 v{vXrd}, 272, v{vX + 11}
    v_add_u32 v{vXrd}, v{vXrd}, v{vH16}
    v_add_u32 v{vXrd}, {L_X}, v{vXrd}
    """)
    for s in range(4):
        for z in range(2):
            A(f"ds_read_b64_tr_b16 {vr(vWf + 4 * s + 2 * z, 2)}, v{vAt} offset:{s * 4096 + z * 1024}")
        A(f"ds_read_b128 {vr(vXf + 4 * s, 4)}, v{vXrd} offset:{32 * s}")
    A(f"s_movk_i32 s3, 8192")
    for be in range(2):
        for nb in range(2):
            lo = bAcc + 8 * nb + 4 * be
            hi = lo + 16
            for i in range(4):
                A(f"v_fma_mixlo_f16 v{hi + i}, v{lo + i}, s{sNl}, 0")
            A(f"buffer_store_dwordx4 {vr(hi, 4)}, v{vBs}, {sr(S_TW, 4)}, {('0', 's3')[nb]} offen offset:{64 * be} sc1")
    A(f"""
    s_or_b32 s3, s2, s{sW}
    s_cbranch_scc1 Lno_pad
    v_mov_b32 v{vE}, 0x7c00
    v_mov_b32 v{vE + 1}, 0x7c00
    v_lshrrev_b32 v{vE + 2}, 1, v{vX + 3}
    s_mov_b32 s3, {TAB_BYTES}
    buffer_store_dwordx2 {vr(vE, 2)}, v{vE + 2}, {sr(S_TAB, 4)}, s3 offen sc1
    Lno_pad:
    v_lshrrev_b32 v{vPa}, 1, v{vTid}
    v_lshlrev_b32 v{vPa}, 11, v{vPa}
    s_lshl_b32 s{sQ1}, s{sBk}, 3
    """)
    if opt.get("notab"):
        A(f"s_mov_b32 s{S_TAB + 2}, 0")
    poll = f"buffer_load_dwordx2 {vr(vOffs, 2)}, v{vPa}, {sr(S_OFFS, 4)}, s{sQ1} offen sc1"

    for k in range(16):
        nb, s = k >> 3, k & 7
        if k == poll_at:
            A(poll)
        younger = {True: 9}.get(k < 5, None)
        A(f"s_waitcnt lgkmcnt({9 if k < 5 else (7, 5, 3)[k - 5] if k < 8 else min(3, 15 - k)})")
        cc = "0" if s == 0 else vr(vG + 16 * nb, 16)
        A(f"v_mfma_f32_32x32x16_bf16 {vr(vG + 16 * nb, 16)}, {vr(vWf + 4 * s, 4)}, {vr(vXf + 4 * (k & 7), 4)}, {cc}")
        kn = k + 4
        if kn < 8:
            for z in range(2):
                A(f"ds_read_b64_tr_b16 {vr(vWf + 4 * kn + 2 * z, 2)}, v{vAt} offset:{kn * 4096 + z * 1024}")
        if kn < 16:
            A(f"ds_read_b128 {vr(vXf + 4 * (kn & 7), 4)}, v{vXrd} offset:{32 * 272 * (kn >> 3) + 32 * (kn & 7)}")
    if poll_at >= 16:
        A(poll)
    A("s_mov_b32 s3, 0x05040100")
    A(f"s_mov_b32 s{sTmp}, 0x07060302")
    A("s_waitcnt vmcnt(1)")
    A("s_barrier")
    A(f"""
    s_cmp_lg_u32 s{sW}, 7
    s_cbranch_scc1 Lno_tf
    s_lshl_b32 s{sTmp + 1}, s2, 3
    s_add_u32 s{sTmp + 1}, s{sTmp + 1}, {TF_OFF}
    s_mov_b64 exec, 1
    buffer_store_dwordx2 {vr(pG, 2)}, v{vZero}, {sr(S_OFFS, 4)}, s{sTmp + 1} offen sc1
    s_mov_b64 exec, -1
    Lno_tf:
    """)
    for j in range(4):
        for i in range(4):
            A(f"v_perm_b32 v{vWC + 4 * j + i}, v{vRaw + 2 * (2 * i + 1) + (j >> 1)}, v{vRaw + 2 * (2 * i) + (j >> 1)}, "
              f"s{(3, sTmp)[j & 1]}")

    def tag_wait(name, v, reload):
        A(f"""
        s_mov_b32 s{sTi}, 0
        L{name}_check:
        v_lshrrev_b32 v{vX + 11}, 22, v{v}
        v_cmp_ne_u32_e64 {sr(sTmp, 2)}, s{sNon}, v{v + 1}
        v_cmp_ne_u32 vcc, s{sNon + 1}, v{vX + 11}
        s_add_u32 s{sTi}, s{sTi}, 1
        s_or_b64 vcc, vcc, {sr(sTmp, 2)}
        s_cbranch_scc0 L{name}_ok
        {reload}
        s_cmp_lt_u32 s{sTi}, {SPIN_MAX}
        s_waitcnt vmcnt(0)
        s_cbranch_scc1 L{name}_check
        L{name}_ok:
        """)

    def batch_masks(window):
        A(f"""
        v_bfe_u32 v{vX}, v{vOffs}, 11, 11
        v_and_b32 v{vX + 1}, 1, v{vTid}
        v_subrev_u32 v{vX}, s{sW0}, v{vX}
        v_lshlrev_b32 v{vX + 1}, 2, v{vX + 1}
        v_cmp_lt_i32_e64 {sr(sMore, 2)}, {window}, v{vX}
        v_sub_u32 v{vX}, v{vX}, v{vX + 1}
        """)
        for i in range(window // 2):
            A(f"v_cmp_lt_i32_e64 {sr((cand + cand2)[i][5], 2)}, {(i & 3) + 8 * (i >> 2)}, v{vX}")

    def rec_loads():
        A(f"""
        v_lshrrev_b32 v{vX + 2}, 1, v{vTid}
        v_and_b32 v{vX + 1}, 1, v{vTid}
        v_mul_u32_u24 v{vX + 2}, {CH}, v{vX + 2}
        v_and_b32 v{vX + 4}, 0x7ff, v{vOffs}
        v_lshl_add_u32 v{vX + 1}, v{vX + 1}, 2, s{sW0}
        v_add3_u32 v{vX + 4}, v{vX + 4}, v{vX + 2}, v{vX + 1}
        v_lshlrev_b32 v{vX + 4}, 2, v{vX + 4}
        buffer_load_dwordx4 {vr(vRec, 4)}, v{vX + 4}, {sr(S_REC, 4)}, 0 offen sc1
        buffer_load_dwordx4 {vr(vRec + 4, 4)}, v{vX + 4}, {sr(S_REC, 4)}, 0 offen offset:32 sc1
        v_lshlrev_b32 v{vX + 2}, 5, v{vX + 2}
        """)

    def histogram(cs, keep_node):
        for rec, key, rank, so_, eo_, m in cs:
            A(f"v_alignbit_b32 v{key}, v{rec}, v{rec}, 27")
            A(f"v_and_b32 v{key}, 0x7fc, v{key}")
            A(f"s_mov_b64 exec, {sr(m, 2)}")
            A(f"ds_add_rtn_u32 v{rank}, v{key}, v{vOne} offset:{L_CNT}")
            A("s_mov_b64 exec, -1")
        A("s_movk_i32 s3, 0x1ff")
        for rec, key, rank, so_, eo_, m in cs:
            A(f"v_lshrrev_b32 v{so_}, {9 if keep_node else 18}, v{rec}")
            A(f"v_bfe_u32 v{eo_}, v{rec}, 6, 12")
            if keep_node:
                if opt.get("smalltab"):
                    A(f"v_and_b32 v{so_}, {int(opt['smalltab']) * 512}, v{so_}")
                A(f"v_bfi_b32 v{so_}, s3, v{rec}, v{so_}")
            else:
                A(f"v_lshlrev_b32 v{so_}, 9, v{so_}")
            A(f"v_lshl_add_u32 v{eo_}, v{eo_}, 5, v{vX + 2}")

    def place(cs):
        for rec, key, rank, so_, eo_, m in cs:
            A(f"v_add_lshl_u32 v{key}, v{key}, v{rank}, 2")
            A(f"s_mov_b64 exec, {sr(m, 2)}")
            A(f"ds_write_b32 v{key}, v{so_} offset:{L_SO}")
            A(f"ds_write_b32 v{key}, v{eo_} offset:{L_EO}")
            A("s_mov_b64 exec, -1")

    A("s_waitcnt vmcnt(0)")
    tag_wait("off", vOffs, poll)
    stamp(A, opt, 3)
    rec_loads()
    batch_masks(24)
    tf_poll = f"buffer_load_dwordx2 {vr(vTf, 2)}, v{vPa}, {sr(S_OFFS, 4)}, s{sQ1} offen sc1"
    A(f"""
    s_cmp_eq_u64 {sr(sMask2, 2)}, 0
    s_cbranch_scc1 Lno_rec2
    buffer_load_dwordx4 {vr(cand2[0][0], 4)}, v{vX + 4}, {sr(S_REC, 4)}, 0 offen offset:64 sc1
    Lno_rec2:
    v_lshrrev_b32 v{vPa}, 1, v{vLo}
    s_lshl_b32 s{sQ1}, s{sW}, 8
    s_add_u32 s{sQ1}, s{sQ1}, {TF_OFF}
    v_and_b32 v{vX + 11}, 31, v{vTid}
    v_mul_u32_u24 v{vTw}, 528, v{vX + 11}
    s_and_b32 s3, s{sW}, 3
    s_lshl_b32 s3, s3, 7
    s_cmp_lt_u32 s{sW}, 4
    s_cselect_b32 s{sTmp}, 0, {L_TU - L_TA}
    s_add_u32 s3, s3, s{sTmp}
    s_add_u32 s3, s3, {L_TA}
    v_add3_u32 v{vTw}, v{vTw}, v{vH16}, s3
    s_mov_b64 vcc, {sr(sMore, 2)}
    s_cmp_ge_u32 s{sW}, 4
    s_cbranch_scc1 Lu_wave
    v_mov_b32 v{vXs}, {hex(f32(-float(KSH)))}
    v_mov_b32 v{vXs + 1}, {hex(f32(-float(KSH)))}
    v_mov_b32 v{vXs + 2}, 0
    s_mov_b32 s{sTmp}, s{sNl}
    s_mov_b32 s{sTmp + 1}, s{sNl}
    """)
    for i in range(0, 32, 2):
        A(f"v_max3_f32 v{vXs + 2}, |v{vG + i}|, |v{vG + i + 1}|, v{vXs + 2}")
        A(f"v_pk_fma_f32 {vr(vG + i, 2)}, {vr(vG + i, 2)}, {sr(sTmp, 2)}, {vr(vXs, 2)}")
    A(f"v_cmp_lt_f32 vcc, {hex(f32(AMAX))}, v{vXs + 2}")
    A(f"s_or_b64 vcc, vcc, {sr(sMore, 2)}")
    A("Lu_wave:")
    for nb in range(2):
        if nb == 1:
            A("s_mov_b32 exec_lo, 0xfffff")
            A("s_mov_b32 exec_hi, 0xfffff")
        for g in range(4):
            A(f"ds_write_b128 v{vTw}, {vr(vG + 16 * nb + 4 * g, 4)} offset:{32 * 528 * nb + 32 * g}")
    A("s_mov_b64 exec, vcc")
    A(f"ds_write_b32 v{vZero}, v{vOne} offset:{L_FLAG}")
    A("s_mov_b64 exec, -1")
    A(tf_poll)
    A(f"""
    s_mul_i32 s{sSW}, s{sW}, {STRW}
    s_cmp_lt_u32 s{sW}, 4
    s_cselect_b32 s3, 0, {LIST - 4 * STRW}
    s_add_u32 s{sSW}, s{sSW}, s3
    s_add_u32 s{sSW}, s{sSW}, {L_STR}
    v_add_u32 v{vSp}, s{sSW}, v{vH16}
    v_lshrrev_b32 v{vX + 12}, 3, v{vX + 11}
    v_bfe_u32 v{vX + 13}, v{vX + 11}, 1, 1
    v_lshl_add_u32 v{vX + 12}, v{vX + 12}, 1, v{vX + 13}
    v_bfe_u32 v{vX + 13}, v{vX + 11}, 2, 1
    v_lshl_add_u32 v{vX + 12}, v{vX + 12}, 1, v{vX + 13}
    v_and_b32 v{vX + 13}, 1, v{vX + 11}
    v_lshl_add_u32 v{vX + 12}, v{vX + 12}, 1, v{vX + 13}
    v_lshl_add_u32 v{vEp}, v{vX + 12}, 2, s{sSW}
    v_bfrev_b32 v{vX + 13}, 2
    ds_write_b32 v{vEp}, v{vX + 13} offset:{1152 + 1024}
    s_waitcnt lgkmcnt(0)
    """)
    for s in range(NS):
        for j in range(0, 8, 2):
            A(f"v_mov_b64 {vr(vSl + 12 * s + j, 2)}, 0")
    A("s_waitcnt vmcnt(1)")
    stamp(A, opt, 4)
    histogram(cand, True)
    A(f"s_cmp_eq_u64 {sr(sMask2, 2)}, 0")
    A("s_cbranch_scc1 Lno_hist2")
    histogram(cand2, True)
    A("Lno_hist2:")
    A("s_waitcnt vmcnt(0)")
    tag_wait("tf", vTf, tf_poll)
    A("s_waitcnt lgkmcnt(0)")
    A("s_barrier")
    c, p, deg, q, inc, g4, la = vL, vL + 8, vL + 16, vL + 17, vL + 18, vL + 19, vL + 20
    A(f"v_lshlrev_b32 v{la}, 1, v{vX + 3}")
    A(f"ds_read_b128 {vr(c, 4)}, v{la} offset:{L_CNT}")
    A(f"ds_read_b128 {vr(c + 4, 4)}, v{la} offset:{L_CNT + 16}")
    if pf_lanes:
        A(f"""
        s_lshr_b32 s3, s2, 3
        s_lshl_b32 s3, s3, 3
        s_add_u32 s3, s3, s{sW}
        s_mul_i32 s3, s3, {pf_lanes * 128}
        v_lshlrev_b32 v{vL + 21}, 3, v{vX + 3}
        s_bfm_b64 exec, {pf_lanes & 63}, 0
        {'s_mov_b64 exec, -1' if pf_lanes == 64 else ''}
        buffer_load_dword v{vL + 22}, v{vL + 21}, {sr(S_TAB, 4)}, s3 offen {tab_pol}
        s_mov_b64 exec, -1
        """)
    A("s_waitcnt lgkmcnt(1)")
    A(f"v_add_u32 v{p + 2}, v{c}, v{c + 1}")
    A(f"v_add_u32 v{p + 3}, v{p + 2}, v{c + 2}")
    A(f"v_add_u32 v{p + 4}, v{p + 3}, v{c + 3}")
    A("s_waitcnt lgkmcnt(0)")
    for i in range(5, 8):
        A(f"v_add_u32 v{p + i}, v{p + i - 1}, v{c + i - 1}")
    A(f"v_add_u32 v{deg}, v{p + 7}, v{c + 7}")
    A(f"v_add_u32 v{q}, 3, v{deg}")
    A(f"v_lshrrev_b32 v{q}, 2, v{q}")
    A(f"v_mov_b32 v{inc}, v{q}")
    wave_scan(A, inc)
    A(f"v_sub_u32 v{g4}, v{inc}, v{q}")
    A(f"v_readlane_b32 s3, v{inc}, 63")
    A(f"v_lshlrev_b32 v{p}, 2, v{g4}")
    A(f"v_add_u32 v{p + 1}, v{p}, v{c}")
    for i in range(2, 8):
        A(f"v_add_u32 v{p + i}, v{p}, v{p + i}")
    A(f"ds_write_b128 v{la}, {vr(p, 4)} offset:{L_BASE}")
    A(f"ds_write_b128 v{la}, {vr(p + 4, 4)} offset:{L_BASE + 16}")
    for i in range(8):
        A(f"ds_read_b32 v{vKey + i}, v{vKey + i} offset:{L_BASE}")
    A(f"""
    s_mul_i32 s{sLw}, s3, s{sW}
    s_add_u32 s{sRem}, s{sLw}, s3
    s_lshr_b32 s{sLw}, s{sLw}, 3
    s_lshr_b32 s{sRem}, s{sRem}, 3
    v_cmp_gt_u32_e64 {sr(sTmp, 2)}, s{sLw}, v{g4}
    v_cmp_gt_u32 vcc, s{sRem}, v{g4}
    v_add_u32 v{deg}, s{sW}, v{deg}
    v_lshlrev_b32 v{q}, 2, v{q}
    s_bcnt1_i32_b64 s{sF0}, {sr(sTmp, 2)}
    s_bcnt1_i32_b64 s{sOwn}, vcc
    v_cmp_lt_u32 vcc, v{deg}, v{q}
    v_add_lshl_u32 v{deg}, v{deg}, v{p}, 2
    v_mov_b32 v{c}, {TAB_BYTES}
    v_bfrev_b32 v{c + 1}, 2
    s_cmp_eq_u32 s{sW}, 7
    s_cselect_b32 s{sOwn}, {NPB}, s{sOwn}
    s_sub_u32 s{sOwn}, s{sOwn}, s{sF0}
    s_sub_u32 s{sRem}, s{sRem}, s{sLw}
    s_mov_b64 exec, vcc
    ds_write_b32 v{deg}, v{c} offset:{L_SO}
    ds_write_b32 v{deg}, v{c + 1} offset:{L_EO}
    s_sub_u32 s3, s{sOwn}, 1
    s_sub_u32 s{sTmp}, s{sRem}, 1
    s_lshr_b32 s3, s3, 3
    s_lshr_b32 s{sTmp}, s{sTmp}, 6
    s_or_b32 s3, s3, s{sTmp}
    s_cselect_b64 exec, 1, 0
    ds_write_b32 v{vZero}, v{vOne} offset:{L_FLAG}
    s_mov_b64 exec, -1
    s_waitcnt lgkmcnt(0)
    """)
    place(cand)
    A(f"s_cmp_eq_u64 {sr(sMask2, 2)}, 0")
    A("s_cbranch_scc1 Lno_place2")
    for cd in cand2:
        A(f"ds_read_b32 v{cd[1]}, v{cd[1]} offset:{L_BASE}")
    A("s_waitcnt lgkmcnt(0)")
    place(cand2)
    A("Lno_place2:")
    so, eo, key, less, eq, z, pos, t = vL, vL + 4, vL + 8, vL + 9, vL + 10, vL + 12, vL + 14, vL + 15
    A(f"""
    s_lshl_b32 s3, s{sLw}, 4
    v_add_u32 v{t}, s3, v{vX + 3}
    v_lshrrev_b32 v{t + 1}, 4, v{vX + 3}
    v_cmp_le_u32_e64 {sr(sTmp, 2)}, s{sRem}, v{t + 1}
    v_bfrev_b32 v{t + 2}, 2
    s_waitcnt lgkmcnt(0)
    s_barrier
    ds_read_b32 v{t + 3}, v{vZero} offset:{L_FLAG}
    ds_read_b128 {vr(so, 4)}, v{t} offset:{L_SO}
    ds_read_b128 {vr(eo, 4)}, v{t} offset:{L_EO}
    v_cndmask_b32_e64 v{vInv}, 0, v{t + 2}, {sr(sTmp, 2)}
    s_sub_u32 s{sQ1}, s{sF0}, 1
    s_mul_i32 s{sQ2}, s{sQ1}, 528
    s_add_u32 s{sQ2}, s{sQ2}, {L_TA}
    v_add_u32 v{t + 4}, s{sQ2}, v{vLo}
    s_mov_b32 s{sQ3}, 0xfffffe00
    s_waitcnt lgkmcnt(2)
    v_readfirstlane_b32 s3, v{t + 3}
    s_waitcnt lgkmcnt(1)
    v_lshrrev_b32 v{key}, 20, v{so + 1}
    v_and_b32 v{t + 3}, 63, v{so}
    s_cmp_lg_u32 s3, 0
    s_cbranch_scc1 Lslow_entry
    v_cndmask_b32_e64 v{key}, v{key}, 7, {sr(sTmp, 2)}
    v_subrev_u32 v{t + 3}, s{sQ1}, v{t + 3}
    v_mov_b32 v{less}, 0
    v_mov_b64 {vr(eq, 2)}, -1
    v_mul_u32_u24 v{t + 3}, 12, v{t + 3}
    """)
    for bit in (2, 1, 0):
        A(f"""
        v_and_b32 v{t}, {1 << bit}, v{key}
        v_cmp_eq_u32 vcc, 0, v{t}
        v_and_or_b32 v{so + bit}, v{so + bit}, s{sQ3}, v{vInv}
        s_nop 0
        v_and_b32 v{z}, vcc_lo, v{eq}
        v_and_b32 v{z + 1}, vcc_hi, v{eq + 1}
        v_bcnt_u32_b32 v{t}, v{z}, v{less}
        v_xor_b32 v{eq}, v{eq}, v{z}
        v_bcnt_u32_b32 v{t}, v{z + 1}, v{t}
        v_xor_b32 v{eq + 1}, v{eq + 1}, v{z + 1}
        v_cndmask_b32 v{eq}, v{eq}, v{z}, vcc
        v_cndmask_b32 v{eq + 1}, v{eq + 1}, v{z + 1}, vcc
        v_cndmask_b32 v{less}, v{t}, v{less}, vcc
        """)
    A(f"""
    v_and_or_b32 v{so + 3}, v{so + 3}, s{sQ3}, v{vInv}
    v_mbcnt_lo_u32_b32 v{pos}, v{eq}, v{less}
    v_mbcnt_hi_u32_b32 v{pos}, v{eq + 1}, v{pos}
    s_waitcnt lgkmcnt(0)
    v_or_b32 v{eo}, v{eo}, v{vInv}
    v_or_b32 v{eo + 1}, v{eo + 1}, v{vInv}
    v_or_b32 v{eo + 2}, v{eo + 2}, v{vInv}
    v_or_b32 v{eo + 3}, v{eo + 3}, v{vInv}
    v_lshl_add_u32 v{t}, v{pos}, 4, s{sSW}
    ds_write_b128 v{t}, {vr(eo, 4)} offset:1152
    v_and_b32 v{t + 1}, 1, v{pos}
    v_lshlrev_b32 v{t + 1}, 3, v{t + 1}
    v_sub_u32 v{t}, v{t}, v{t + 1}
    ds_write2_b64 v{t}, {vr(so, 2)}, {vr(so + 2, 2)} offset0:0 offset1:2
    v_add_u32 v{t + 1}, s{sSW}, v{pos}
    ds_write_b8 v{t + 1}, v{t + 3} offset:2304
    ds_read_b32 v{vEo}, v{vEp} offset:1152
    ds_read_b128 {vr(vSo, 4)}, v{vSp}
    ds_read_b128 {vr(vT, 4)}, v{vSp} offset:32
    ds_read_b32 v{vT + 4}, v{vEp} offset:{1152 + 128}
    v_lshrrev_b32 v{t + 1}, 2, v{vX + 3}
    v_add_u32 v{t + 1}, s{sSW}, v{t + 1}
    ds_read_b32 v{vSb}, v{t + 1} offset:2304
    v_mov_b32 v{vT + 5}, v{t + 4}
    s_waitcnt lgkmcnt(4)
    v_add_u32 v{vEo}, v{vEo}, v{vH16}
    buffer_load_dwordx4 {vr(vEA, 4)}, v{vEo}, {sr(S_EA, 4)}, 0 offen {ea_pol}
    """)
    for u in range(4):
        src = (vSo, vSo + 2, vT, vT + 2)[u]
        if u in (0, 2):
            A(f"s_waitcnt lgkmcnt({3 - u // 2})")
        A(f"v_lshl_add_u64 {vr(src, 2)}, {vr(src, 2)}, 0, {vr(vLo, 2)}")
        A(f"buffer_load_dwordx4 {vr(vL + 8 * u, 4)}, v{src}, {sr(S_TAB, 4)}, 0 offen {tab_pol}")
        A(f"buffer_load_dwordx4 {vr(vL + 8 * u + 4, 4)}, v{src + 1}, {sr(S_TAB, 4)}, 0 offen {tab_pol}")
    for s in range(NS):
        A(f"ds_read_b128 {vr(vSl + 12 * s + 8, 4)}, v{vT + 5} offset:{528 * s}")
    A("s_waitcnt lgkmcnt(0)")
    for s in range(NS):
        for j in range(4):
            A(f"v_exp_f32 v{vSl + 12 * s + 8 + j}, v{vSl + 12 * s + 8 + j}")
    A(f"""
    v_add_u32 v{vEo}, v{vT + 4}, v{vH16}
    v_readlane_b32 s{sSl0}, v{vSb}, 0
    v_readlane_b32 s{sSl1}, v{vSb}, 1
    s_mov_b32 s{sLn}, 2
    s_mov_b32 s{sLn + 1}, 3
    s_mul_i32 s{sQ1}, s{sRem}, 3
    s_lshr_b32 s{sQ1}, s{sQ1}, 2
    s_lshr_b32 s{sQ2}, s{sRem}, 1
    s_lshr_b32 s{sQ3}, s{sRem}, 2
    s_setprio 3
    s_waitcnt vmcnt(8)
    """)
    stamp(A, opt, 5)

    def mfma(j):
        return f"v_mfma_f32_32x32x16_bf16 {vr(vD + 16 * j, 16)}, {vr(vEA, 4)}, {vr(vWC + 4 * j, 4)}, 0"

    for j in range(4):
        A(mfma(j))
    A(f"buffer_load_dwordx4 {vr(vEA, 4)}, v{vEo}, {sr(S_EA, 4)}, 0 offen {ea_pol}")
    A("s_nop 7")
    A("s_nop 1")
    A(f"s_cmp_gt_u32 s{sRem}, 8")
    A("s_cbranch_scc0 Llast")

    def step(u, last):
        La, Lb = vL + 8 * (u & 3), vL + 8 * (u & 3) + 4
        a, b = vT, vT + 4
        sl = (sSl0, sSl1)[u >> 2]
        prefetch = not (last and u >= 4)
        wait = 7 if u < 4 else (6 if not last else 2 * (7 - u))
        A(f"s_waitcnt vmcnt({wait})")
        if prefetch and u % 2 == 0:
            A(f"ds_read_b128 {vr(vSo, 4)}, v{vSp} offset:{16 * (u + 4)}")
        if u == 6 and not last:
            A(f"ds_read_b32 v{vEo}, v{vEp} offset:{1152 + 256}")

        def mix(j, hb):
            return (f"v_fma_mix_f32 v{(a, b)[hb] + j}, v{vD + 16 * j + 2 * u + hb}, s{sNl}, v{(La, Lb)[hb] + j} "
                    "op_sel_hi:[0,0,1]")

        wide = not (prefetch and u % 2 == 0)
        if u == 7 and not last:
            for j in range(4):
                A(mix(j, 0))
                A(mix(j, 1))
                if j:
                    A(f"v_exp_f32 v{a + j - 1}, v{a + j - 1}")
                    A(f"v_exp_f32 v{b + j - 1}, v{b + j - 1}")
                A(mfma(j))
            A(f"v_exp_f32_e64 v{a + 3}, v{a + 3}")
            A(f"v_exp_f32 v{b + 3}, v{b + 3}")
        else:
            for hb in range(2):
                for j in range(4):
                    A(mix(j, hb))
            for j in range(8):
                A(f"v_exp_f32{'_e64' if wide and j == 0 else ''} v{a + j}, v{a + j}")
        if not wide:
            A("s_waitcnt lgkmcnt(0)")
        A(f"s_set_gpr_idx_on s{sl}, gpr_idx(SRC1)")
        for j in range(0, 8, 2):
            A(f"v_pk_fma_f32 {vr(a + j, 2)}, {vr(a + j, 2)}, {vr(vSl + 8 + (j & 3), 2)}, {sr(sC0, 2)} clamp")
        A("s_set_gpr_idx_mode gpr_idx()")
        A(f"s_lshr_b32 s{sl}, s{sl}, 8")
        for j in (0, 2):
            A(f"v_pk_mul_f32 {vr(La + j, 2)}, {vr(La + j, 2)}, {vr(b + j, 2)}")
        so2 = vSo + 2 * (u & 1)
        if prefetch:
            A(f"v_lshl_add_u64 {vr(so2, 2)}, {vr(so2, 2)}, 0, {vr(vLo, 2)}")
        for j in (0, 2):
            A(f"v_pk_fma_f32 {vr(La + j, 2)}, {vr(Lb + j, 2)}, {vr(a + j, 2)}, {vr(La + j, 2)}")
        for j in (0, 2):
            A(f"v_pk_add_f32 {vr(Lb + j, 2)}, {vr(a + j, 2)}, {vr(b + j, 2)}")
        for j in (0, 2):
            A(f"v_pk_mul_f32 {vr(a + j, 2)}, {vr(a + j, 2)}, {vr(b + j, 2)}")
        for j in range(4):
            A(f"v_rcp_f32{'_e64' if j == 0 else ''} v{a + j}, v{a + j}")
        A("s_set_gpr_idx_mode gpr_idx(SRC2,DST)")
        for j in (0, 2):
            A(f"v_pk_fma_f32 {vr(vSl + j, 2)}, {vr(La + j, 2)}, {vr(a + j, 2)}, {vr(vSl + j, 2)}")
            A(f"v_pk_fma_f32 {vr(vSl + 4 + j, 2)}, {vr(Lb + j, 2)}, {vr(a + j, 2)}, {vr(vSl + 4 + j, 2)}")
        if prefetch and not opt.get("noload"):
            A(f"buffer_load_dwordx4 {vr(La, 4)}, v{so2}, {sr(S_TAB, 4)}, 0 offen {tab_pol}")
            A(f"buffer_load_dwordx4 {vr(Lb, 4)}, v{so2 + 1}, {sr(S_TAB, 4)}, 0 offen {tab_pol}")
        A("s_set_gpr_idx_off")

    A(".p2align 6")
    A("Ltile:")
    A(f"s_sub_u32 s{sRem}, s{sRem}, 8")
    for u in range(8):
        step(u, False)
    A(f"""
    v_add_u32 v{vEo}, v{vEo}, v{vH16}
    buffer_load_dwordx4 {vr(vEA, 4)}, v{vEo}, {sr(S_EA, 4)}, 0 offen {ea_pol}
    v_readlane_b32 s{sSl0}, v{vSb}, s{sLn}
    v_readlane_b32 s{sSl1}, v{vSb}, s{sLn + 1}
    v_add_u32 v{vSp}, 0x80, v{vSp}
    v_add_u32 v{vEp}, 0x80, v{vEp}
    s_add_u32 s{sLn}, s{sLn}, 2
    s_add_u32 s{sLn + 1}, s{sLn + 1}, 2
    """)
    if not opt.get("noprio"):
        for k, sq in enumerate((sQ1, sQ2, sQ3)):
            A(f"s_cmp_le_u32 s{sRem}, s{sq}")
            A("s_cbranch_scc0 Lprio_done")
            A(f"s_setprio {2 - k}")
        A("Lprio_done:")
    A(f"s_cmp_gt_u32 s{sRem}, 8")
    A("s_cbranch_scc1 Ltile")
    A(".p2align 3")
    A("Llast:")
    A("s_nop 0")
    for u in range(8):
        step(u, True)
        if u < 7:
            A(f"s_cmp_le_u32 s{sRem}, {u + 1}")
            A("s_cbranch_scc1 Lmain_done")
    A("Lmain_done:")
    stamp(A, opt, 6)

    def finalize(a0, o, a1, u0, x0, addr, soff, pre_store):
        for j in range(4):
            A(f"v_permlane32_swap_b32 v{a0 + j}, v{a1 + j}")
            A(f"v_permlane32_swap_b32 v{a0 + o + j}, v{a1 + o + j}")
        for j in (o, o + 2, 0, 2):
            A(f"v_pk_add_f32 {vr(a0 + j, 2)}, {vr(a0 + j, 2)}, {vr(a1 + j, 2)}")
        for j in (o, o + 2):
            A(f"v_pk_add_f32 {vr(a0 + j, 2)}, {vr(a0 + j, 2)}, {sr(sC0, 2)}")
        for j in range(4):
            A(f"v_rcp_f32 v{a0 + o + j}, v{a0 + o + j}")
        A(f"v_lshlrev_b32 v{a1}, 16, v{x0}")
        A(f"v_and_b32 v{a1 + 1}, 0xffff0000, v{x0}")
        A(f"v_lshlrev_b32 v{a1 + 2}, 16, v{x0 + 1}")
        A(f"v_and_b32 v{a1 + 3}, 0xffff0000, v{x0 + 1}")
        for j in (0, 2):
            A(f"v_pk_fma_f32 {vr(a0 + j, 2)}, {vr(a0 + j, 2)}, {vr(a0 + o + j, 2)}, {vr(u0 + j, 2)}")
        for j in range(4):
            A(f"v_max_f32 v{a0 + j}, 0, v{a0 + j}")
        for j in (0, 2):
            A(f"v_pk_add_f32 {vr(a0 + j, 2)}, {vr(a0 + j, 2)}, {vr(a1 + j, 2)}")
        A(f"v_cvt_pk_bf16_f32 v{a0}, v{a0}, v{a0 + 1}")
        A(f"v_cvt_pk_bf16_f32 v{a0 + 1}, v{a0 + 2}, v{a0 + 3}")
        A(pre_store)
        A(f"buffer_store_dwordx2 {vr(a0, 2)}, v{addr}, {sr(S_OUT, 4)}, s{soff} offen")

    eps = f32(1e-6 / c0)
    vU, vXr, vA1, vA2, vA3, vCy = vD, vD + 16, vD + 24, vD + 25, vD + 26, vD + 32
    A(f"""
    v_lshl_add_u32 v{vA1}, v{vH16}, 5, v{vLo}
    v_add_u32 v{vA1}, s{sSW}, v{vA1}
    ds_write_b128 v{vA1}, {vr(vSl, 4)}
    ds_write_b128 v{vA1}, {vr(vSl + 4, 4)} offset:1024
    s_mul_i32 s3, s{sF0}, 528
    s_add_u32 s3, s3, {L_TU}
    v_mul_u32_u24 v{vA2}, 33, v{vH16}
    v_add3_u32 v{vA2}, v{vA2}, v{vLo}, s3
    s_mul_i32 s3, s{sF0}, 272
    s_add_u32 s3, s3, {L_X}
    v_mul_u32_u24 v{vA3}, 17, v{vH16}
    v_lshrrev_b32 v{vLo + 1}, 1, v{vLo}
    v_add3_u32 v{vA3}, v{vA3}, v{vLo + 1}, s3
    """)
    for pr in range(4):
        A(f"ds_read_b128 {vr(vU + 4 * pr, 4)}, v{vA2} offset:{1056 * pr}")
        A(f"ds_read_b64 {vr(vXr + 2 * pr, 2)}, v{vA3} offset:{544 * pr}")
    A(f"""
    v_lshl_add_u32 v{vA2}, v{vH16}, 4, v{vLo + 1}
    s_add_u32 s{sQ1}, s{sN0}, s{sF0}
    s_lshl_b32 s{sQ1}, s{sQ1}, 8
    s_mov_b32 s{sC0}, {hex(eps)}
    s_mov_b32 s{sC0 + 1}, {hex(eps)}
    s_mul_i32 s{sQ2}, s{sOwn}, 12
    s_cmp_eq_u32 s{sW}, 3
    s_cselect_b32 s3, {LIST - 4 * STRW}, 0
    v_add_u32 v{vA1}, s3, v{vA1}
    s_waitcnt lgkmcnt(0)
    """)
    for pr in range(4):
        if pr < 3:
            A(f"s_cmp_gt_u32 s{sOwn}, {2 * pr + 2}")
            A(f"s_cbranch_scc1 Lfin{pr}")
        A("s_barrier")
        A(f"s_cmp_eq_u32 s{sW}, 7")
        A(f"s_cbranch_scc1 Lfin{pr}")
        A(f"ds_read_b128 {vr(vCy, 4)}, v{vA1} offset:{STRW}")
        A(f"ds_read_b128 {vr(vCy + 4, 4)}, v{vA1} offset:{STRW + 1024}")
        A(f"s_set_gpr_idx_on s{sQ2}, gpr_idx(SRC0,DST)")
        A("s_waitcnt lgkmcnt(0)")
        for j in range(0, 8, 2):
            A(f"v_pk_add_f32 {vr(vSl + j, 2)}, {vr(vSl + j, 2)}, {vr(vCy + j, 2)}")
        A("s_set_gpr_idx_off")
        A("s_nop 1")
        A(f"Lfin{pr}:")
        finalize(vSl + 12 * (2 * pr + 1), 4, vSl + 12 * (2 * pr + 2), vU + 4 * pr, vXr + 2 * pr, vA2, sQ1,
                 f"s_cmp_gt_u32 s{sOwn}, {2 * pr + 1}\ns_cselect_b32 exec_hi, -1, 0")
        if pr < 3:
            A(f"s_add_u32 s{sQ1}, s{sQ1}, 512")
            A(f"s_cmp_gt_u32 s{sOwn}, {2 * pr + 2}")
            A("s_cbranch_scc0 Lk2_done")
    A("Lk2_done:")
    stamp_flush(A, opt, 8, 0x20000, vTid)
    if opt.get("spin"):
        A("""
        Lspin:
        s_memrealtime s[42:43]
        s_waitcnt lgkmcnt(0)
        s_sub_u32 s42, s42, s100
        s_cmp_lt_u32 s42, 10000
        s_cbranch_scc1 Lspin
        """)
    A("Lk2_exit:")
    A("s_endpgm")

    NU = 7
    vAcc, vAn = 0, 56
    vLs = [vL + 8 * u for u in range(4)] + [84 + 8 * u for u in range(3)]
    vP, vErr, vQ, vCaddr, vUaddr = 245, 252, 253, 254, 255
    A("Lslow_entry:")
    A(f"""
    s_waitcnt vmcnt(0) lgkmcnt(0)
    s_barrier
    v_lshlrev_b32 v{vX + 11}, 2, v{vTid}
    ds_write_b32 v{vX + 11}, v{vZero} offset:{L_CNT}
    s_mul_i32 s3, s{sW}, 528
    s_add_u32 s3, s3, {L_TA}
    v_add_u32 v{vX + 11}, s3, v{vLo}
    """)
    for u in range(NU):
        A(f"ds_read_b128 {vr(vAn + 4 * u, 4)}, v{vX + 11} offset:{8 * 528 * u}")
    for i in range(0, 8 * NU, 2):
        A(f"v_mov_b64 {vr(vAcc + i, 2)}, 0")
    A(f"""
    v_bfe_u32 v{vX + 11}, v{vTid}, 3, 3
    v_and_b32 v{vX + 12}, 7, v{vTid}
    v_lshlrev_b32 v{vX + 12}, 2, v{vX + 12}
    v_lshl_add_u32 v{vX + 12}, v{vX + 11}, 8, v{vX + 12}
    s_lshl_b32 s3, s{sW}, 5
    v_add_u32 v{vCaddr}, s3, v{vX + 12}
    v_bfe_u32 v{vX + 11}, v{vTid}, 3, 2
    v_bfe_u32 v{vX + 12}, v{vTid}, 1, 1
    v_lshl_add_u32 v{vX + 11}, v{vX + 11}, 1, v{vX + 12}
    v_lshlrev_b32 v{vUaddr}, 5, v{vX + 11}
    Lbatch:
    """)
    batch_masks(16)
    A("Lround:")
    rec_loads()
    A(f"""
    v_mov_b32 v{vZero}, 0
    v_mov_b32 v{vOne}, 1
    ds_write_b32 v{vZero}, v{vZero} offset:{L_FLAG}
    ds_write_b32 v{vZero}, v{vZero} offset:{L_FLAG + 4}
    s_waitcnt lgkmcnt(0)
    s_barrier
    s_mov_b64 exec, {sr(sMore, 2)}
    ds_write_b32 v{vZero}, v{vOne} offset:{L_FLAG + 4}
    s_mov_b64 exec, -1
    s_waitcnt vmcnt(0)
    """)
    histogram(cand, False)
    A("s_waitcnt lgkmcnt(0)")
    A("s_barrier")
    c, inc, deg, q, t0, t1 = vX + 12, vX + 13, vX + 14, vX + 15, vX + 16, vX + 17
    A(f"ds_read_b32 v{c}, v{vCaddr} offset:{L_CNT}")
    A(f"v_lshrrev_b32 v{t0}, 5, v{vCaddr}")
    A(f"v_lshlrev_b32 v{t0}, 6, v{t0}")
    A("s_waitcnt lgkmcnt(0)")
    A(f"ds_write_b32 v{vCaddr}, v{vZero} offset:{L_CNT}")
    A(f"v_mov_b32 v{inc}, v{c}")
    for d in (1, 2, 4, 8):
        A("s_nop 1")
        A(f"v_add_u32_dpp v{inc}, v{inc}, v{inc} row_shr:{d} row_mask:0xf bank_mask:0xf")
    A(f"""
    v_mov_b32 v{t1}, 0
    s_nop 0
    v_mov_b32_dpp v{deg}, v{inc} row_newbcast:7 row_mask:0xf bank_mask:0x3
    v_mov_b32_dpp v{t1}, v{inc} row_newbcast:7 row_mask:0xf bank_mask:0xc
    v_mov_b32_dpp v{deg}, v{inc} row_newbcast:15 row_mask:0xf bank_mask:0xc
    v_sub_u32 v{inc}, v{inc}, v{t1}
    v_sub_u32 v{deg}, v{deg}, v{t1}
    v_sub_u32 v{inc}, v{inc}, v{c}
    v_add_u32 v{inc}, v{inc}, v{t0}
    ds_write_b32 v{vCaddr}, v{inc} offset:{L_BASE}
    v_cmp_lt_u32 vcc, 64, v{deg}
    v_min_u32 v{deg}, 64, v{deg}
    v_add_u32 v{q}, 3, v{deg}
    v_lshrrev_b32 v{q}, 2, v{q}
    s_mov_b64 exec, vcc
    ds_write_b32 v{vZero}, v{vOne} offset:{L_FLAG}
    s_mov_b64 exec, -1
    ds_bpermute_b32 v{vQ}, v{vUaddr}, v{q}
    v_and_b32 v{c}, 7, v{vTid}
    v_add_u32 v{c}, v{c}, v{deg}
    v_lshlrev_b32 v{t1}, 2, v{q}
    v_cmp_lt_u32 vcc, v{c}, v{t1}
    v_add_lshl_u32 v{c}, v{c}, v{t0}, 2
    v_mov_b32 v{t0}, {TAB_BYTES}
    v_bfrev_b32 v{t1}, 2
    s_mov_b64 exec, vcc
    ds_write_b32 v{c}, v{t0} offset:{L_SO}
    ds_write_b32 v{c}, v{t1} offset:{L_EO}
    s_mov_b64 exec, -1
    v_max_u32_dpp v{q}, v{q}, v{q} row_ror:8 row_mask:0xf bank_mask:0xf
    s_nop 0
    v_readlane_b32 s{sT}, v{q}, 0
    v_readlane_b32 s3, v{q}, 16
    v_readlane_b32 s{sTmp}, v{q}, 32
    v_readlane_b32 s{sTmp + 1}, v{q}, 48
    s_waitcnt lgkmcnt(0)
    s_barrier
    ds_read_b64 {vr(vX + 12, 2)}, v{vZero} offset:{L_FLAG}
    """)
    for i in range(8):
        A(f"ds_read_b32 v{vKey + i}, v{vKey + i} offset:{L_BASE}")
    A(f"""
    s_max_u32 s{sT}, s{sT}, s3
    s_max_u32 s{sTmp}, s{sTmp}, s{sTmp + 1}
    s_max_u32 s{sT}, s{sT}, s{sTmp}
    s_waitcnt lgkmcnt(0)
    v_readfirstlane_b32 s{sOvf}, v{vX + 12}
    v_readfirstlane_b32 s{sMor}, v{vX + 13}
    """)
    for i in range(8):
        A(f"v_and_b32 v{vX + 12}, 63, v{vRec + i}")
        A(f"v_add_u32 v{vKey + i}, v{vKey + i}, v{vRank + i}")
        A(f"v_lshl_add_u32 v{vX + 12}, v{vX + 12}, 6, 64")
        A(f"v_cmp_lt_u32 vcc, v{vKey + i}, v{vX + 12}")
        A(f"v_lshlrev_b32 v{vKey + i}, 2, v{vKey + i}")
        A(f"s_and_b64 exec, vcc, {sr(sMask + 2 * i, 2)}")
        A(f"ds_write_b32 v{vKey + i}, v{vSoff + i} offset:{L_SO}")
        A(f"ds_write_b32 v{vKey + i}, v{vEoff + i} offset:{L_EO}")
        A(f"s_andn2_b64 {sr(sMask + 2 * i, 2)}, {sr(sMask + 2 * i, 2)}, vcc")
        A("s_mov_b64 exec, -1")
    A(f"""
    s_lshl_b32 s3, s{sW}, 8
    v_lshrrev_b32 v{vX + 12}, 1, v{vH16}
    v_add_u32 v{vP}, s3, v{vX + 12}
    v_and_b32 v{vX + 12}, 1, v{vTid}
    v_bfe_u32 v{vX + 13}, v{vTid}, 2, 1
    v_lshl_add_u32 v{vX + 12}, v{vX + 13}, 1, v{vX + 12}
    v_lshl_add_u32 v{vX + 12}, v{vX + 12}, 2, s3
    v_lshl_add_u32 v{vEp}, v{vUaddr}, 6, v{vX + 12}
    s_lshr_b32 s3, s{sT}, 1
    v_mov_b32 v{vErr}, s3
    s_mov_b64 {sr(sCur, 2)}, 0
    s_mov_b32 s{sTi}, 0
    """)
    for u in range(1, NU):
        A(f"v_mov_b32 v{vP + u}, v{vP}")
    A(f"""
    s_waitcnt lgkmcnt(0)
    s_barrier
    s_cmp_eq_u32 s{sT}, 0
    s_cbranch_scc1 Lg_done
    s_branch Lg_entry
    Lg_tile:
    s_waitcnt vmcnt({2 * NU})
    """)
    for j in range(4):
        A(mfma(j))
    A(f"""
    Lg_entry:
    v_add_u32 v{vErr}, v{vQ}, v{vErr}
    ds_read_b32 v{vEo}, v{vEp} offset:{L_EO}
    ds_read_b64 {vr(vSo, 2)}, v{vP} offset:{L_SO}
    v_cmp_le_u32_e64 {sr(sNext, 2)}, s{sT}, v{vErr}
    s_cmp_lt_u32 s{sTi}, s{sT}
    s_cselect_b64 {sr(sNext, 2)}, {sr(sNext, 2)}, 1
    s_mov_b64 exec, {sr(sNext, 2)}
    v_subrev_u32 v{vErr}, s{sT}, v{vErr}
    v_add_u32 v{vEp}, 16, v{vEp}
    s_waitcnt lgkmcnt(1)
    v_add_u32 v{vEo}, v{vEo}, v{vH16}
    buffer_load_dwordx4 {vr(vEA, 4)}, v{vEo}, {sr(S_EA, 4)}, 0 offen
    s_mov_b64 exec, -1
    """)
    for u in range(NU):
        bit = 8 * (u >> 1) + 2 * (u & 1) + 1
        so2 = vSo + 2 * (u & 1)
        La, Lb = vLs[u], vLs[u] + 4
        a, b = vT, vT + 4
        num, den = vAcc + 8 * u, vAcc + 8 * u + 4
        if u + 1 < NU:
            A(f"ds_read_b64 {vr(vSo + 2 * ((u + 1) & 1), 2)}, v{vP + u + 1} offset:{L_SO + 2048 * (u + 1)}")
        A(f"s_bitcmp1_b32 s{sCur}, {bit}")
        A(f"s_cbranch_scc0 Lg_skip{u}")
        A(f"s_waitcnt vmcnt({2 * NU - 1})")
        for j in range(4):
            A(f"v_fma_mix_f32 v{a + j}, v{vD + 16 * j + 2 * u}, s{sNl}, v{La + j} op_sel_hi:[0,0,1]")
        for j in range(4):
            A(f"v_fma_mix_f32 v{b + j}, v{vD + 16 * j + 2 * u + 1}, s{sNl}, v{Lb + j} op_sel_hi:[0,0,1]")
        for j in range(0, 8, 2):
            A(f"v_pk_add_f32 {vr(a + j, 2)}, {vr(a + j, 2)}, {vr(vAn + 4 * u + (j & 3), 2)}")
        for j in range(8):
            A(f"v_exp_f32_e64 v{a + j}, v{a + j} clamp")
        for j in range(0, 8, 2):
            A(f"v_pk_add_f32 {vr(a + j, 2)}, {vr(a + j, 2)}, {sr(sC0, 2)}")
        for j in (0, 2):
            A(f"v_pk_mul_f32 {vr(La + j, 2)}, {vr(La + j, 2)}, {vr(b + j, 2)}")
        for j in (0, 2):
            A(f"v_pk_fma_f32 {vr(La + j, 2)}, {vr(Lb + j, 2)}, {vr(a + j, 2)}, {vr(La + j, 2)}")
        for j in (0, 2):
            A(f"v_pk_add_f32 {vr(Lb + j, 2)}, {vr(a + j, 2)}, {vr(b + j, 2)}")
        for j in (0, 2):
            A(f"v_pk_mul_f32 {vr(a + j, 2)}, {vr(a + j, 2)}, {vr(b + j, 2)}")
        for j in range(4):
            A(f"v_rcp_f32 v{a + j}, v{a + j}")
        for j in (0, 2):
            A(f"v_pk_fma_f32 {vr(num + j, 2)}, {vr(La + j, 2)}, {vr(a + j, 2)}, {vr(num + j, 2)}")
            A(f"v_pk_fma_f32 {vr(den + j, 2)}, {vr(Lb + j, 2)}, {vr(a + j, 2)}, {vr(den + j, 2)}")
        A(f"Lg_skip{u}:")
        A(f"s_bitcmp1_b32 s{sNext}, {bit}")
        A("s_cselect_b64 exec, -1, 1")
        A(f"s_cselect_b32 s{sInc}, 16, 0")
        A(f"s_waitcnt lgkmcnt({1 if u + 1 < NU else 0})")
        A(f"v_add_u32 v{so2}, v{so2}, v{vLo}")
        A(f"v_add_u32 v{so2 + 1}, v{so2 + 1}, v{vLo}")
        A(f"buffer_load_dwordx4 {vr(La, 4)}, v{so2}, {sr(S_TAB, 4)}, 0 offen {tab_pol}")
        A(f"buffer_load_dwordx4 {vr(Lb, 4)}, v{so2 + 1}, {sr(S_TAB, 4)}, 0 offen {tab_pol}")
        A("s_mov_b64 exec, -1")
        A(f"v_add_u32 v{vP + u}, s{sInc}, v{vP + u}")
    A(f"""
    s_mov_b64 {sr(sCur, 2)}, {sr(sNext, 2)}
    s_add_u32 s{sTi}, s{sTi}, 1
    s_cmp_le_u32 s{sTi}, s{sT}
    s_cbranch_scc1 Lg_tile
    Lg_done:
    s_waitcnt vmcnt(0)
    s_cmp_lg_u32 s{sOvf}, 0
    s_cbranch_scc1 Lround
    s_add_u32 s{sW0}, s{sW0}, 16
    s_cmp_lg_u32 s{sMor}, 0
    s_cbranch_scc1 Lbatch
    s_mul_i32 s3, s{sW}, 528
    s_add_u32 s3, s3, {L_TU}
    v_mul_u32_u24 v{vA2}, {33 * 8}, v{vH16}
    v_add3_u32 v{vA2}, v{vA2}, v{vLo}, s3
    s_mul_i32 s3, s{sW}, 272
    s_add_u32 s3, s3, {L_X}
    v_mul_u32_u24 v{vA3}, {17 * 8}, v{vH16}
    v_lshrrev_b32 v{vLo + 1}, 1, v{vLo}
    v_add3_u32 v{vA3}, v{vA3}, v{vLo + 1}, s3
    """)
    for pr in range(4):
        A(f"ds_read_b128 {vr(vU + 4 * pr, 4)}, v{vA2} offset:{16 * 528 * pr}")
        A(f"ds_read_b64 {vr(vXr + 2 * pr, 2)}, v{vA3} offset:{16 * 272 * pr}")
    A(f"""
    v_lshl_add_u32 v{vA2}, v{vH16}, 7, v{vLo + 1}
    s_add_u32 s{sQ1}, s{sN0}, s{sW}
    s_lshl_b32 s{sQ1}, s{sQ1}, 8
    s_mov_b32 s{sC0}, {hex(eps)}
    s_mov_b32 s{sC0 + 1}, {hex(eps)}
    s_waitcnt lgkmcnt(0)
    """)
    for pr in range(4):
        if pr == 3:
            A(f"s_cmp_lg_u32 s{sW}, 0")
            A("s_cbranch_scc1 Lk2_done")
        finalize(vAcc + 16 * pr, 4, vAcc + 16 * pr + 8, vU + 4 * pr, vXr + 2 * pr, vA2, sQ1,
                 "s_mov_b32 exec_hi, 0" if pr == 3 else "s_nop 0")
        A(f"s_add_u32 s{sQ1}, s{sQ1}, 4096")
    A("s_branch Lk2_done")
    return L_END


def descriptor(name, vgpr, extra=""):
    return f""".amdhsa_kernel {name}
  .amdhsa_next_free_vgpr {vgpr}
  .amdhsa_next_free_sgpr 102
  .amdhsa_accum_offset {(vgpr + 3) // 4 * 4}
  .amdhsa_group_segment_fixed_size 0
  .amdhsa_kernarg_size 96
  .amdhsa_user_sgpr_count 2
  .amdhsa_user_sgpr_kernarg_segment_ptr 1
  .amdhsa_system_sgpr_workgroup_id_x 1
{extra}.end_amdhsa_kernel
"""


def generate(opt):
    A = Asm()
    lds = gen_k2(A, opt)
    lst = f"kernel={NAME}_kernel " if opt.get("aslist") else ""
    return (f"""; GatedGCN layer in one launch. Every workgroup buckets one chunk of edges by destination and builds its
; rows of the gather table, hands both over through d_ws, then sorts, gathers and reduces one bucket of nodes.
; @launch {lst}grid=(256,1,1) block=(512,1,1) lds={lds}
.amdgcn_target "amdgcn-amd-amdhsa--gfx950"
.text
.globl {NAME}_kernel
.p2align 8
.type {NAME}_kernel,@function
""" + A.text() + ".section .rodata,\"a\"\n.p2align 6\n"
            + descriptor(f"{NAME}_kernel", 256, "  .amdhsa_fp16_overflow 1\n"))


if __name__ == "__main__":
    out = sys.argv[1] if len(sys.argv) > 1 else f"cdna_kernels/{NAME}.s"
    opt = dict(a.split("=", 1) for a in sys.argv[2:])
    opt = {k: v.replace("+", " ") for k, v in opt.items()}
    open(out, "w").write(generate(opt))
```

```python
import math
import struct
import sys

NAME = "gather_scatter__edge_featured_mpnn_gatedgcn__graph"
N, E = 12500, 400000
NPB = 49
CH = 1568
NCH = 256
TAB_OFF = 0
REC_OFF = 0xE00000
OFF_OFF = 0x1000000
SPIN_MAX = 20000
STAMP_OFF = 0x2000000
TAB_BYTES = N * 512
KSH = 48
AMAX = 52.0
NLOG2E = -math.log2(math.e)


def f32(x):
    return struct.unpack("<I", struct.pack("<f", x))[0]


class Asm:
    def __init__(self):
        self.lines = []

    def __call__(self, s):
        for ln in s.strip("\n").split("\n"):
            ln = ln.strip()
            if not ln:
                continue
            self.lines.append(ln if ln.endswith(":") else "    " + ln)

    def text(self):
        return "\n".join(self.lines) + "\n"


def vr(a, n=1):
    return f"v{a}" if n == 1 else f"v[{a}:{a + n - 1}]"


def sr(a, n=1):
    return f"s{a}" if n == 1 else f"s[{a}:{a + n - 1}]"


def srd(A, d, base, nbytes, off=0):
    if off:
        A(f"s_add_u32 s{d}, s{base}, {hex(off)}")
        A(f"s_addc_u32 s{d + 1}, s{base + 1}, 0")
    else:
        A(f"s_mov_b64 {sr(d, 2)}, {sr(base, 2)}")
    A(f"s_mov_b32 s{d + 2}, {hex(nbytes)}")
    A(f"s_mov_b32 s{d + 3}, 0x20000")


P_X, P_EA, P_SRC, P_DST, P_WA, P_WB, P_WC, P_WU = 4, 6, 8, 10, 12, 14, 16, 18
P_WV, P_OUT, P_DBG, P_WS = 20, 22, 24, 26


def load_kernargs(A):
    A("s_load_dwordx16 s[4:19], s[0:1], 0")
    A("s_load_dwordx8 s[20:27], s[0:1], 64")


STAMP_BASE = [2]


def stamp_reg(i):
    return 100 if i == 0 else STAMP_BASE[0] + 2 * i


def stamp(A, opt, i):
    if not opt.get("stamp"):
        return
    if isinstance(i, str):
        names = opt["stamp"].split(",")
        if i not in names:
            return
        i = names.index(i) + 1
    A(f"{'s_memtime' if opt.get('cyc') else 's_memrealtime'} s[{stamp_reg(i)}:{stamp_reg(i) + 1}]")


def stamp_flush(A, opt, n, base, vtid):
    if not opt.get("stamp"):
        return
    A("s_mov_b64 exec, -1")
    A("s_waitcnt vmcnt(0)")
    stamp(A, opt, n - 1)
    srd(A, 20, P_WS, 0x80000, STAMP_OFF + base)
    A(f"v_lshrrev_b32 v1, 6, v{vtid}")
    A("s_lshl_b32 s3, s2, 3")
    A("v_add_u32 v1, s3, v1")
    A(f"v_mul_u32_u24 v1, {8 * n}, v1")
    A("s_mov_b64 exec, 1")
    A("s_waitcnt lgkmcnt(0)")
    for i in range(n):
        r = stamp_reg(i)
        A(f"v_mov_b32 v2, s{r}")
        A(f"v_mov_b32 v3, s{r + 1}")
        A(f"buffer_store_dwordx2 v[2:3], v1, s[20:23], 0 offen offset:{8 * i}")
        A("s_nop 1")


WAVE_SCAN = ("row_shr:1 row_mask:0xf", "row_shr:2 row_mask:0xf", "row_shr:4 row_mask:0xf",
             "row_shr:8 row_mask:0xf", "row_bcast:15 row_mask:0xa", "row_bcast:31 row_mask:0xc")


def wave_scan(A, v):
    for d in WAVE_SCAN:
        A("s_nop 1")
        A(f"v_add_u32_dpp v{v}, v{v}, v{v} {d} bank_mask:0xf")


def gen_k2(A, opt):
    STAMP_BASE[0] = 2
    ea_pol = opt.get("ea_load", "")
    tab_pol = opt.get("tab_load", "sc1")
    pf_lanes = int(opt.get("pf", 32))
    poll_at = int(opt.get("poll_at", 8))
    S_TAB, S_EA, S_REC, S_OFFS, S_TW, S_X, S_OUT = 28, 32, 36, 40, 44, 48, 52
    sW, sBk, sN0, sW0, sT, sTi, sInc, sNl = 56, 57, 58, 59, 60, 61, 62, 63
    sC0, sCur, sNext, sMore, sTmp, sNon = 64, 66, 68, 70, 72, 74
    sMask = 76
    sMask2 = 18
    S_DST, S_SRC, S_W, S_W2, S_WC, S_DBG = 76, 80, 84, 88, 76, 80
    sOvf, sMor, sQ1, sQ2, sQ3, sLw, sF0, sOwn = 92, 93, 94, 95, 96, 97, 98, 99
    sRem, sSW, sSl0, sSl1, sLn, sPM = sT, sInc, sCur, sCur + 1, sNext, sCur
    L_CNT, L_BASE, L_FLAG, P_CNT, P_BASE, P_SORT = 0, 2048, 4096, 4352, 5376, 6400
    L_R2 = 12800
    L_SO = L_R2
    LIST = 25600
    L_EO = L_SO + LIST
    L_STR = L_SO + 8448
    STRW = 2560
    L_X = L_R2 + 65536
    L_R1 = L_X + 64 * 272
    L_TA = L_R1 + 528
    L_TU = L_TA + 52 * 528
    L_END = L_R1 + 65536
    TF_OFF = NCH * 2048
    NS = 9
    vSl, vD, vL, vWC, vEA, vT, vSo, vLo = 0, 108, 172, 204, 220, 224, 232, 236
    vSp, vEp, vEo, vH16, vSb, vTid, vOffs = 238, 239, 240, 241, 242, 243, 244
    vWf, vG, vXf, vXs = 0, 32, 64, 96
    vRec, vKey, vRank, vSoff, vEoff, vX = vD, vD + 8, vD + 16, vD + 24, vD + 32, vD + 40
    cand = [(vRec + i, vKey + i, vRank + i, vSoff + i, vEoff + i, sMask + 2 * i) for i in range(8)]
    cand2 = [(vEA + i, 246 + i, 250 + i, vT + i, vT + 4 + i, sMask2 + 2 * i) for i in range(4)]
    c0 = 2.0 ** -KSH
    vZero, vOne, vXw, vXrd, vTw, vInv = vX + 5, vX + 6, vX + 7, vX + 8, vX + 9, vX + 10
    vDa, vBx, vBt, vBs, vAt, vPa, vE = vX + 12, vX + 14, vX + 15, vX + 17, vX + 18, vX + 19, vX + 20
    pD, pS, pA, pR, pC, pB, pG = vD, vD + 4, vD + 8, vD + 12, vD + 16, vD + 20, vD + 24
    vRaw, vNon, vTf = vL, vL + 16, vL + 18

    def w_dma(S, region):
        A(f"s_lshl_b32 s3, s{sW}, 13")
        A(f"s_add_u32 m0, s3, {region}")
        A(f"s_and_b32 s3, s3, 0x7fff")
        for i in range(8):
            if i == 4:
                A("s_add_u32 m0, m0, 4096")
                A("s_add_u32 s3, s3, 4096")
            A(f"buffer_load_dwordx4 v{vDa + ((i >> 1) & 1)}, {sr(S, 4)}, s3 offen offset:{1024 * (i & 3)} lds")

    A(f"{NAME}_kernel:")
    A("s_cmp_ge_u32 s2, 256")
    A("s_cbranch_scc1 Lk2_exit")
    stamp(A, opt, 0)
    load_kernargs(A)
    if opt.get("cpf"):
        A(f"""
        s_getpc_b64 s[{sTmp}:{sTmp + 1}]
        v_lshlrev_b32 v1, 7, v0
        v_cmp_gt_u32 vcc, Lslow_entry - {NAME}_kernel, v1
        s_and_saveexec_b64 {sr(sNext, 2)}, vcc
        s_cbranch_execz Lno_cpf
        global_load_dword v2, v1, s[{sTmp}:{sTmp + 1}]
        Lno_cpf:
        s_mov_b64 exec, -1
        """)
    A(f"""
    s_memrealtime {sr(sNon, 2)}
    s_and_b32 s3, s2, 7
    s_lshl_b32 s3, s3, 5
    s_lshr_b32 s{sBk}, s2, 3
    s_add_u32 s{sBk}, s{sBk}, s3
    s_mul_i32 s{sN0}, s{sBk}, {NPB}
    v_mov_b32 v{vTid}, v0
    v_lshrrev_b32 v{vX}, 6, v0
    v_lshlrev_b32 v{vX + 2}, 4, v0
    v_readfirstlane_b32 s{sW}, v{vX}
    s_movk_i32 s3, {CH // 4}
    s_cmp_eq_u32 s2, {NCH - 1}
    s_cselect_b32 s3, {(E - (NCH - 1) * CH) // 4}, s3
    v_cmp_gt_u32_e64 {sr(sPM, 2)}, s3, v0
    v_and_b32 v{vX + 3}, 0x3f0, v{vX + 2}
    v_bfe_u32 v{vX + 1}, v0, 4, 2
    v_lshlrev_b32 v{vX + 4}, 6, v{vX + 1}
    v_xor_b32 v{vDa}, v{vX + 3}, v{vX + 4}
    v_xor_b32 v{vDa + 1}, 32, v{vDa}
    v_mov_b32 v{vZero}, 0
    s_mul_i32 s{sQ1}, s2, {CH * 4}
    s_lshl_b32 s{sTmp}, s{sN0}, 8
    s_add_u32 s{sTmp + 1}, s{sTmp}, 8192
    s_or_b32 s3, s2, s{sW}
    s_waitcnt lgkmcnt(0)
    s_cbranch_scc1 Lno_nonce
    """)
    srd(A, S_DBG, P_DBG, 256)
    A(f"""
    s_or_b32 s3, s{sNon}, 1
    v_mov_b32 v{vNon}, s3
    v_mov_b32 v{vNon + 1}, s{sNon + 1}
    s_mov_b64 exec, 1
    buffer_store_dwordx2 {vr(vNon, 2)}, v{vZero}, {sr(S_DBG, 4)}, 0 offen sc1
    s_mov_b64 exec, -1
    Lno_nonce:
    """)
    srd(A, S_DST, P_DST, E * 4)
    srd(A, S_SRC, P_SRC, E * 4)
    A(f"""
    s_mov_b64 exec, {sr(sPM, 2)}
    s_cbranch_execz Lp_nold
    buffer_load_dwordx4 {vr(pD, 4)}, v{vX + 2}, {sr(S_DST, 4)}, s{sQ1} offen
    buffer_load_dwordx4 {vr(pS, 4)}, v{vX + 2}, {sr(S_SRC, 4)}, s{sQ1} offen
    Lp_nold:
    s_mov_b64 exec, -1
    """)
    srd(A, S_X, P_X, N * 256)
    for i in range(2):
        A(f"buffer_load_dwordx4 {vr(vXs + 4 * i, 4)}, v{vX + 2}, {sr(S_X, 4)}, s{sTmp + i} offen")
    A(f"""
    s_cmp_lt_u32 s{sW}, 4
    s_cselect_b32 s{S_W}, s{P_WB}, s{P_WV}
    s_cselect_b32 s{S_W + 1}, s{P_WB + 1}, s{P_WV + 1}
    s_cselect_b32 s{S_W2}, s{P_WA}, s{P_WU}
    s_cselect_b32 s{S_W2 + 1}, s{P_WA + 1}, s{P_WU + 1}
    s_mov_b32 s{S_W + 2}, 32768
    s_mov_b32 s{S_W + 3}, 0x20000
    s_mov_b32 s{S_W2 + 2}, 32768
    s_mov_b32 s{S_W2 + 3}, 0x20000
    """)
    w_dma(S_W, L_R1)
    A(f"""
    v_mov_b32 v{vOne}, 1
    v_lshlrev_b32 v{vX + 11}, 2, v{vTid}
    ds_write_b32 v{vX + 11}, v{vZero} offset:{L_CNT}
    ds_write_b32 v{vX + 11}, v{vZero} offset:{L_FLAG}
    """)
    srd(A, S_WC, P_WC, 4096)
    srd(A, S_DBG, P_DBG, 256)
    srd(A, S_REC, P_WS, NCH * CH * 4, REC_OFF)
    srd(A, S_OFFS, P_WS, TF_OFF + 2048, OFF_OFF)
    srd(A, S_TAB, P_WS, TAB_BYTES + 512, TAB_OFF)
    srd(A, S_EA, P_EA, 0 if opt.get("noea") else E * 32)
    srd(A, S_OUT, P_OUT, N * 256)
    A(f"""
    s_lshl_b32 s3, s{sN0}, 9
    s_add_u32 s{S_TW}, s{P_WS}, s3
    s_addc_u32 s{S_TW + 1}, s{P_WS + 1}, 0
    s_sub_u32 s3, {TAB_BYTES}, s3
    s_min_u32 s{S_TW + 2}, s3, {NPB * 512}
    s_mov_b32 s{S_TW + 3}, 0x20000
    s_mov_b32 s{sNl}, {hex(f32(NLOG2E))}
    s_mov_b32 s{sC0}, {hex(f32(c0))}
    s_mov_b32 s{sC0 + 1}, {hex(f32(c0))}
    s_mov_b32 s{sW0}, 0
    s_mov_b32 s{sQ2}, 85599
    s_mov_b32 s{sQ3}, {-NPB}
    v_lshlrev_b32 v{vE}, 8, v{vTid}
    v_add_u32 v{vE + 1}, 64, v{vE}
    v_add_u32 v{vE + 2}, 0x80, v{vE}
    v_add_u32 v{vE + 3}, 0xc0, v{vE}
    v_lshrrev_b32 v{vX + 11}, 4, v{vTid}
    v_lshl_add_u32 v{vXw}, v{vX + 11}, 4, v{vX + 2}
    v_add_u32 v{vXw}, {L_X}, v{vXw}
    s_waitcnt lgkmcnt(0)
    """)
    stamp(A, opt, "iss")
    A(f"""
    s_barrier
    s_mov_b64 exec, {sr(sPM, 2)}
    s_cbranch_execz Lp_p1
    s_waitcnt vmcnt(10)
    """)
    stamp(A, opt, "dst")
    for i in range(4):
        t = pC + (i & 1)
        A(f"v_mul_u32_u24 v{t}, s{sQ2}, v{pD + i}")
        A(f"v_lshl_or_b32 v{pS + i}, v{pS + i}, 18, v{vE + i}")
        A(f"v_lshrrev_b32 v{t}, 22, v{t}")
        A(f"v_add_u32 v{pS + i}, v{pS + i}, v{pD + i}")
        A(f"v_lshlrev_b32 v{pA + i}, 2, v{t}")
        A(f"ds_add_rtn_u32 v{pR + i}, v{pA + i}, v{vOne} offset:{P_CNT}")
        A(f"v_mad_i32_i24 v{pS + i}, v{t}, s{sQ3}, v{pS + i}")
    A(f"""
    Lp_p1:
    s_mov_b64 exec, -1
    s_waitcnt vmcnt(8)
    ds_write_b128 v{vXw}, {vr(vXs, 4)}
    ds_write_b128 v{vXw}, {vr(vXs + 4, 4)} offset:{32 * 272}
    s_cmp_eq_u32 s{sW}, 7
    s_cbranch_scc1 Lp_scanner
    s_waitcnt lgkmcnt(2)
    s_barrier
    """)
    stamp(A, opt, "b2")
    A(f"""
    buffer_load_dwordx2 {vr(vNon, 2)}, v{vZero}, {sr(S_DBG, 4)}, 0 offen sc1
    """)
    w_dma(S_W2, L_R2)
    A("s_branch Lp_scanned")
    A("Lp_scanner:")
    A(f"buffer_load_dwordx2 {vr(vNon, 2)}, v{vZero}, {sr(S_DBG, 4)}, 0 offen sc1")
    w_dma(S_W2, L_R2)
    A(f"""
    s_barrier
    ds_read_b128 {vr(pC, 4)}, v{vX + 3} offset:{P_CNT}
    s_waitcnt lgkmcnt(0)
    v_add_u32 v{pB + 2}, v{pC}, v{pC + 1}
    v_add_u32 v{pB + 3}, v{pB + 2}, v{pC + 2}
    v_add_u32 v{pG}, v{pB + 3}, v{pC + 3}
    v_mov_b32 v{pG + 1}, v{pG}
    """)
    wave_scan(A, pG + 1)
    A(f"""
    v_sub_u32 v{pB}, v{pG + 1}, v{pG}
    v_add_u32 v{pB + 1}, v{pB}, v{pC}
    v_add_u32 v{pB + 2}, v{pB}, v{pB + 2}
    v_add_u32 v{pB + 3}, v{pB}, v{pB + 3}
    ds_write_b128 v{vX + 3}, {vr(pB, 4)} offset:{P_BASE}
    s_waitcnt lgkmcnt(0)
    Lp_scanned:
    s_barrier
    """)
    stamp(A, opt, "scan")
    A(f"""
    s_mov_b64 exec, {sr(sPM, 2)}
    s_cbranch_execz Lp_p2
    """)
    for i in range(4):
        A(f"ds_read_b32 v{pA + i}, v{pA + i} offset:{P_BASE}")
    for i in range(4):
        A("s_waitcnt lgkmcnt(3)")
        A(f"v_add_lshl_u32 v{pA + i}, v{pA + i}, v{pR + i}, 2")
        A(f"ds_write_b32 v{pA + i}, v{pS + i} offset:{P_SORT}")
    A(f"""
    Lp_p2:
    s_mov_b64 exec, -1
    v_lshrrev_b32 v{vX + 11}, 1, v{vX + 2}
    v_and_b32 v{vX + 11}, 0x3ff, v{vX + 11}
    ds_read_b64 {vr(pC, 2)}, v{vX + 11} offset:{P_CNT}
    ds_read_b64 {vr(pB, 2)}, v{vX + 11} offset:{P_BASE}
    v_and_b32 v{vLo}, 0x1f0, v{vX + 2}
    v_bfe_u32 v{vX + 4}, v{vTid}, 5, 1
    v_mov_b32 v{vLo + 1}, v{vLo}
    v_lshlrev_b32 v{vH16}, 4, v{vX + 4}
    s_lshr_b32 s{sTmp}, s{sW}, 2
    s_and_b32 s{sTmp + 1}, s{sW}, 3
    v_and_b32 v{vX + 11}, 15, v{vTid}
    s_lshl_b32 s3, s{sTmp}, 5
    v_add_u32 v{vX + 11}, s3, v{vX + 11}
    v_mul_u32_u24 v{vBx}, 272, v{vX + 11}
    v_lshl_add_u32 v{vBx}, v{vX + 1}, 4, v{vBx}
    v_add_u32 v{vBx}, {L_X}, v{vBx}
    s_lshl_b32 s3, s{sTmp + 1}, 7
    v_lshl_add_u32 v{vBs}, v{vX + 1}, 4, s3
    v_lshl_add_u32 v{vBs}, v{vX + 11}, 9, v{vBs}
    v_bfe_u32 v{vX + 11}, v{vTid}, 2, 2
    v_xor_b32 v{vE}, s{sTmp + 1}, v{vX + 11}
    v_lshlrev_b32 v{vE}, 6, v{vE}
    v_and_b32 v{vE + 1}, 3, v{vTid}
    v_lshl_add_u32 v{vE}, v{vE + 1}, 3, v{vE}
    v_lshl_add_u32 v{vE}, v{vX + 11}, 8, v{vE}
    v_and_b32 v{vE + 1}, 1, v{vX + 1}
    v_lshl_add_u32 v{vBt}, v{vE + 1}, 5, v{vE}
    v_lshl_add_u32 v{vBt}, v{vX + 1}, 11, v{vBt}
    v_add_u32 v{vBt}, {L_R1}, v{vBt}
    v_xor_b32 v{vBt + 1}, 32, v{vBt}
    v_xor_b32 v{vE + 1}, v{vE + 1}, v{vX + 4}
    v_lshl_add_u32 v{vAt}, v{vE + 1}, 5, v{vE}
    v_lshl_add_u32 v{vAt}, v{vX + 4}, 11, v{vAt}
    s_lshl_b32 s3, s{sTmp}, 15
    s_add_u32 s3, s3, {L_R2}
    v_add_u32 v{vAt}, s3, v{vAt}
    s_waitcnt vmcnt(9) lgkmcnt(0)
    s_barrier
    """)
    stamp(A, opt, "b3")
    A(f"""
    s_mov_b64 exec, {sr(sPM, 2)}
    s_cbranch_execz Lp_out
    ds_read_b128 {vr(pD, 4)}, v{vX + 2} offset:{P_SORT}
    s_waitcnt lgkmcnt(0)
    buffer_store_dwordx4 {vr(pD, 4)}, v{vX + 2}, {sr(S_REC, 4)}, s{sQ1} offen sc1
    Lp_out:
    s_mov_b64 exec, -1
    """)

    bX, bAcc, bF = 0, 32, 64

    def bv_reads(s, buf):
        for nb in range(2):
            A(f"ds_read_b128 {vr(bX + 16 * nb + 4 * s, 4)}, v{vBx} offset:{16 * 272 * nb + 64 * s}")
        for m in range(2):
            for be in range(2):
                for z in range(2):
                    A(f"ds_read_b64_tr_b16 {vr(bF + 16 * buf + 8 * m + 4 * be + 2 * z, 2)}, v{vBt + be} "
                      f"offset:{m * 32768 + s * 8192 + z * 1024}")

    bv_reads(0, 0)
    A(f"v_lshrrev_b32 v{vE + 2}, 1, v{vLo}")
    A(f"v_lshl_add_u32 v{vE + 2}, v{vX + 4}, 11, v{vE + 2}")
    for i in range(8):
        A(f"buffer_load_dwordx2 {vr(vRaw + 2 * i, 2)}, v{vE + 2}, {sr(S_WC, 4)}, 0 offen offset:{256 * i}")
    for s in range(4):
        buf = s & 1
        if s < 3:
            bv_reads(s + 1, buf ^ 1)
            A("s_waitcnt lgkmcnt(10)")
        else:
            A("s_waitcnt lgkmcnt(0)")
        for be in range(2):
            for nb in range(2):
                for m in range(2):
                    d = bAcc + 16 * m + 8 * nb + 4 * be
                    cc = "0" if s == 0 else vr(d, 4)
                    A(f"v_mfma_f32_16x16x32_bf16 {vr(d, 4)}, {vr(bF + 16 * buf + 8 * m + 4 * be, 4)}, "
                      f"{vr(bX + 16 * nb + 4 * s, 4)}, {cc}")
    A(f"""
    """)
    stamp(A, opt, "bvm")
    A(f"""
    s_mov_b32 s{sTi}, 0
    s_waitcnt vmcnt(8)
    Lnonce_check:
    v_readfirstlane_b32 s{sNon}, v{vNon}
    v_readfirstlane_b32 s{sNon + 1}, v{vNon + 1}
    s_add_u32 s{sTi}, s{sTi}, 1
    s_cmp_lg_u32 s{sNon}, 0
    s_cbranch_scc1 Lnonce_ok
    buffer_load_dwordx2 {vr(vNon, 2)}, v{vZero}, {sr(S_DBG, 4)}, 0 offen sc1
    s_cmp_lt_u32 s{sTi}, {SPIN_MAX}
    s_waitcnt vmcnt(0)
    s_cbranch_scc1 Lnonce_check
    Lnonce_ok:
    s_and_b32 s{sNon + 1}, s{sNon + 1}, 0x3ff
    s_lshl_b32 s3, s{sNon + 1}, 22
    v_lshl_or_b32 v{pG}, v{pC}, 11, v{pB}
    v_lshl_or_b32 v{pG + 2}, v{pC + 1}, 11, v{pB + 1}
    v_or_b32 v{pG}, s3, v{pG}
    v_or_b32 v{pG + 2}, s3, v{pG + 2}
    v_mov_b32 v{pG + 1}, s{sNon}
    v_mov_b32 v{pG + 3}, s{sNon}
    s_lshl_b32 s3, s2, 11
    s_cmp_ge_u32 s{sW}, 2
    s_barrier
    s_cbranch_scc1 Lno_off
    buffer_store_dwordx4 {vr(pG, 4)}, v{vX + 2}, {sr(S_OFFS, 4)}, s3 offen sc1
    Lno_off:
    """)
    stamp(A, opt, "sig")
    A(f"""
    v_and_b32 v{vX + 11}, 31, v{vTid}
    v_mul_u32_u24 v{vXrd}, 272, v{vX + 11}
    v_add_u32 v{vXrd}, v{vXrd}, v{vH16}
    v_add_u32 v{vXrd}, {L_X}, v{vXrd}
    """)
    for s in range(4):
        for z in range(2):
            A(f"ds_read_b64_tr_b16 {vr(vWf + 4 * s + 2 * z, 2)}, v{vAt} offset:{s * 4096 + z * 1024}")
        A(f"ds_read_b128 {vr(vXf + 4 * s, 4)}, v{vXrd} offset:{32 * s}")
    A(f"s_movk_i32 s3, 8192")
    for be in range(2):
        for nb in range(2):
            lo = bAcc + 8 * nb + 4 * be
            hi = lo + 16
            for i in range(4):
                A(f"v_fma_mixlo_f16 v{hi + i}, v{lo + i}, s{sNl}, 0")
            A(f"buffer_store_dwordx4 {vr(hi, 4)}, v{vBs}, {sr(S_TW, 4)}, {('0', 's3')[nb]} offen offset:{64 * be} sc1")
    A(f"""
    s_or_b32 s3, s2, s{sW}
    s_cbranch_scc1 Lno_pad
    v_mov_b32 v{vE}, 0x7c00
    v_mov_b32 v{vE + 1}, 0x7c00
    v_lshrrev_b32 v{vE + 2}, 1, v{vX + 3}
    s_mov_b32 s3, {TAB_BYTES}
    buffer_store_dwordx2 {vr(vE, 2)}, v{vE + 2}, {sr(S_TAB, 4)}, s3 offen sc1
    Lno_pad:
    v_lshrrev_b32 v{vPa}, 1, v{vTid}
    v_lshlrev_b32 v{vPa}, 11, v{vPa}
    s_lshl_b32 s{sQ1}, s{sBk}, 3
    """)
    stamp(A, opt, "bve")
    A(f"""
    """)
    if opt.get("notab"):
        A(f"s_mov_b32 s{S_TAB + 2}, 0")
    poll = f"buffer_load_dwordx2 {vr(vOffs, 2)}, v{vPa}, {sr(S_OFFS, 4)}, s{sQ1} offen sc1"

    for k in range(16):
        nb, s = k >> 3, k & 7
        if k == poll_at:
            A(poll)
        younger = {True: 9}.get(k < 5, None)
        A(f"s_waitcnt lgkmcnt({9 if k < 5 else (7, 5, 3)[k - 5] if k < 8 else min(3, 15 - k)})")
        cc = "0" if s == 0 else vr(vG + 16 * nb, 16)
        A(f"v_mfma_f32_32x32x16_bf16 {vr(vG + 16 * nb, 16)}, {vr(vWf + 4 * s, 4)}, {vr(vXf + 4 * (k & 7), 4)}, {cc}")
        kn = k + 4
        if kn < 8:
            for z in range(2):
                A(f"ds_read_b64_tr_b16 {vr(vWf + 4 * kn + 2 * z, 2)}, v{vAt} offset:{kn * 4096 + z * 1024}")
        if kn < 16:
            A(f"ds_read_b128 {vr(vXf + 4 * (kn & 7), 4)}, v{vXrd} offset:{32 * 272 * (kn >> 3) + 32 * (kn & 7)}")
    if poll_at >= 16:
        A(poll)
    A("s_mov_b32 s3, 0x05040100")
    A(f"s_mov_b32 s{sTmp}, 0x07060302")
    stamp(A, opt, "aum")
    A("s_waitcnt vmcnt(1)")
    A("s_barrier")
    stamp(A, opt, "b5")
    A(f"""
    s_cmp_lg_u32 s{sW}, 7
    s_cbranch_scc1 Lno_tf
    s_lshl_b32 s{sTmp + 1}, s2, 3
    s_add_u32 s{sTmp + 1}, s{sTmp + 1}, {TF_OFF}
    s_mov_b64 exec, 1
    buffer_store_dwordx2 {vr(pG, 2)}, v{vZero}, {sr(S_OFFS, 4)}, s{sTmp + 1} offen sc1
    s_mov_b64 exec, -1
    Lno_tf:
    """)
    for j in range(4):
        for i in range(4):
            A(f"v_perm_b32 v{vWC + 4 * j + i}, v{vRaw + 2 * (2 * i + 1) + (j >> 1)}, v{vRaw + 2 * (2 * i) + (j >> 1)}, "
              f"s{(3, sTmp)[j & 1]}")

    def tag_wait(name, v, reload):
        A(f"""
        s_mov_b32 s{sTi}, 0
        L{name}_check:
        v_lshrrev_b32 v{vX + 11}, 22, v{v}
        v_cmp_ne_u32_e64 {sr(sTmp, 2)}, s{sNon}, v{v + 1}
        v_cmp_ne_u32 vcc, s{sNon + 1}, v{vX + 11}
        s_add_u32 s{sTi}, s{sTi}, 1
        s_or_b64 vcc, vcc, {sr(sTmp, 2)}
        s_cbranch_scc0 L{name}_ok
        {reload}
        s_cmp_lt_u32 s{sTi}, {SPIN_MAX}
        s_waitcnt vmcnt(0)
        s_cbranch_scc1 L{name}_check
        L{name}_ok:
        """)

    def batch_masks(window):
        A(f"""
        v_bfe_u32 v{vX}, v{vOffs}, 11, 11
        v_and_b32 v{vX + 1}, 1, v{vTid}
        v_subrev_u32 v{vX}, s{sW0}, v{vX}
        v_lshlrev_b32 v{vX + 1}, 2, v{vX + 1}
        v_cmp_lt_i32_e64 {sr(sMore, 2)}, {window}, v{vX}
        v_sub_u32 v{vX}, v{vX}, v{vX + 1}
        """)
        for i in range(window // 2):
            A(f"v_cmp_lt_i32_e64 {sr((cand + cand2)[i][5], 2)}, {(i & 3) + 8 * (i >> 2)}, v{vX}")

    def rec_loads():
        A(f"""
        v_lshrrev_b32 v{vX + 2}, 1, v{vTid}
        v_and_b32 v{vX + 1}, 1, v{vTid}
        v_mul_u32_u24 v{vX + 2}, {CH}, v{vX + 2}
        v_and_b32 v{vX + 4}, 0x7ff, v{vOffs}
        v_lshl_add_u32 v{vX + 1}, v{vX + 1}, 2, s{sW0}
        v_add3_u32 v{vX + 4}, v{vX + 4}, v{vX + 2}, v{vX + 1}
        v_lshlrev_b32 v{vX + 4}, 2, v{vX + 4}
        buffer_load_dwordx4 {vr(vRec, 4)}, v{vX + 4}, {sr(S_REC, 4)}, 0 offen sc1
        buffer_load_dwordx4 {vr(vRec + 4, 4)}, v{vX + 4}, {sr(S_REC, 4)}, 0 offen offset:32 sc1
        v_lshlrev_b32 v{vX + 2}, 5, v{vX + 2}
        """)

    def histogram(cs, keep_node):
        for rec, key, rank, so_, eo_, m in cs:
            A(f"v_alignbit_b32 v{key}, v{rec}, v{rec}, 27")
            A(f"v_and_b32 v{key}, 0x7fc, v{key}")
            A(f"s_mov_b64 exec, {sr(m, 2)}")
            A(f"ds_add_rtn_u32 v{rank}, v{key}, v{vOne} offset:{L_CNT}")
            A("s_mov_b64 exec, -1")
        A("s_movk_i32 s3, 0x1ff")
        for rec, key, rank, so_, eo_, m in cs:
            A(f"v_lshrrev_b32 v{so_}, {9 if keep_node else 18}, v{rec}")
            A(f"v_bfe_u32 v{eo_}, v{rec}, 6, 12")
            if keep_node:
                if opt.get("smalltab"):
                    A(f"v_and_b32 v{so_}, {int(opt['smalltab']) * 512}, v{so_}")
                A(f"v_bfi_b32 v{so_}, s3, v{rec}, v{so_}")
            else:
                A(f"v_lshlrev_b32 v{so_}, 9, v{so_}")
            A(f"v_lshl_add_u32 v{eo_}, v{eo_}, 5, v{vX + 2}")

    def place(cs):
        for rec, key, rank, so_, eo_, m in cs:
            A(f"v_add_lshl_u32 v{key}, v{key}, v{rank}, 2")
            A(f"s_mov_b64 exec, {sr(m, 2)}")
            A(f"ds_write_b32 v{key}, v{so_} offset:{L_SO}")
            A(f"ds_write_b32 v{key}, v{eo_} offset:{L_EO}")
            A("s_mov_b64 exec, -1")

    A("s_waitcnt vmcnt(0)")
    tag_wait("off", vOffs, poll)
    stamp(A, opt, "off")
    rec_loads()
    batch_masks(24)
    tf_poll = f"buffer_load_dwordx2 {vr(vTf, 2)}, v{vPa}, {sr(S_OFFS, 4)}, s{sQ1} offen sc1"
    A(f"""
    s_cmp_eq_u64 {sr(sMask2, 2)}, 0
    s_cbranch_scc1 Lno_rec2
    buffer_load_dwordx4 {vr(cand2[0][0], 4)}, v{vX + 4}, {sr(S_REC, 4)}, 0 offen offset:64 sc1
    Lno_rec2:
    v_lshrrev_b32 v{vPa}, 1, v{vLo}
    s_lshl_b32 s{sQ1}, s{sW}, 8
    s_add_u32 s{sQ1}, s{sQ1}, {TF_OFF}
    v_and_b32 v{vX + 11}, 31, v{vTid}
    v_mul_u32_u24 v{vTw}, 528, v{vX + 11}
    s_and_b32 s3, s{sW}, 3
    s_lshl_b32 s3, s3, 7
    s_cmp_lt_u32 s{sW}, 4
    s_cselect_b32 s{sTmp}, 0, {L_TU - L_TA}
    s_add_u32 s3, s3, s{sTmp}
    s_add_u32 s3, s3, {L_TA}
    v_add3_u32 v{vTw}, v{vTw}, v{vH16}, s3
    s_mov_b64 vcc, {sr(sMore, 2)}
    s_cmp_ge_u32 s{sW}, 4
    s_cbranch_scc1 Lu_wave
    v_mov_b32 v{vXs}, {hex(f32(-float(KSH)))}
    v_mov_b32 v{vXs + 1}, {hex(f32(-float(KSH)))}
    v_mov_b32 v{vXs + 2}, 0
    s_mov_b32 s{sTmp}, s{sNl}
    s_mov_b32 s{sTmp + 1}, s{sNl}
    """)
    for i in range(0, 32, 2):
        A(f"v_max3_f32 v{vXs + 2}, |v{vG + i}|, |v{vG + i + 1}|, v{vXs + 2}")
        A(f"v_pk_fma_f32 {vr(vG + i, 2)}, {vr(vG + i, 2)}, {sr(sTmp, 2)}, {vr(vXs, 2)}")
    A(f"v_cmp_lt_f32 vcc, {hex(f32(AMAX))}, v{vXs + 2}")
    A(f"s_or_b64 vcc, vcc, {sr(sMore, 2)}")
    A("Lu_wave:")
    for nb in range(2):
        if nb == 1:
            A("s_mov_b32 exec_lo, 0xfffff")
            A("s_mov_b32 exec_hi, 0xfffff")
        for g in range(4):
            A(f"ds_write_b128 v{vTw}, {vr(vG + 16 * nb + 4 * g, 4)} offset:{32 * 528 * nb + 32 * g}")
    A("s_mov_b64 exec, vcc")
    A(f"ds_write_b32 v{vZero}, v{vOne} offset:{L_FLAG}")
    A("s_mov_b64 exec, -1")
    A(tf_poll)
    A(f"""
    s_mul_i32 s{sSW}, s{sW}, {STRW}
    s_cmp_lt_u32 s{sW}, 4
    s_cselect_b32 s3, 0, {LIST - 4 * STRW}
    s_add_u32 s{sSW}, s{sSW}, s3
    s_add_u32 s{sSW}, s{sSW}, {L_STR}
    v_add_u32 v{vSp}, s{sSW}, v{vH16}
    v_lshrrev_b32 v{vX + 12}, 3, v{vX + 11}
    v_bfe_u32 v{vX + 13}, v{vX + 11}, 1, 1
    v_lshl_add_u32 v{vX + 12}, v{vX + 12}, 1, v{vX + 13}
    v_bfe_u32 v{vX + 13}, v{vX + 11}, 2, 1
    v_lshl_add_u32 v{vX + 12}, v{vX + 12}, 1, v{vX + 13}
    v_and_b32 v{vX + 13}, 1, v{vX + 11}
    v_lshl_add_u32 v{vX + 12}, v{vX + 12}, 1, v{vX + 13}
    v_lshl_add_u32 v{vEp}, v{vX + 12}, 2, s{sSW}
    v_bfrev_b32 v{vX + 13}, 2
    ds_write_b32 v{vEp}, v{vX + 13} offset:{1152 + 1024}
    s_waitcnt lgkmcnt(0)
    """)
    for s in range(NS):
        for j in range(0, 8, 2):
            A(f"v_mov_b64 {vr(vSl + 12 * s + j, 2)}, 0")
    A("s_waitcnt vmcnt(1)")
    stamp(A, opt, "rec")
    histogram(cand, True)
    A(f"s_cmp_eq_u64 {sr(sMask2, 2)}, 0")
    A("s_cbranch_scc1 Lno_hist2")
    histogram(cand2, True)
    A("Lno_hist2:")
    A("s_waitcnt vmcnt(0)")
    stamp(A, opt, "hist")
    tag_wait("tf", vTf, tf_poll)
    A("s_waitcnt lgkmcnt(0)")
    A("s_barrier")
    stamp(A, opt, "bB")
    c, p, deg, q, inc, g4, la = vL, vL + 8, vL + 16, vL + 17, vL + 18, vL + 19, vL + 20
    A(f"v_lshlrev_b32 v{la}, 1, v{vX + 3}")
    A(f"ds_read_b128 {vr(c, 4)}, v{la} offset:{L_CNT}")
    A(f"ds_read_b128 {vr(c + 4, 4)}, v{la} offset:{L_CNT + 16}")
    if pf_lanes:
        A(f"""
        s_lshr_b32 s3, s2, 3
        s_lshl_b32 s3, s3, 3
        s_add_u32 s3, s3, s{sW}
        s_mul_i32 s3, s3, {pf_lanes * 128}
        v_lshlrev_b32 v{vL + 21}, 3, v{vX + 3}
        s_bfm_b64 exec, {pf_lanes & 63}, 0
        {'s_mov_b64 exec, -1' if pf_lanes == 64 else ''}
        buffer_load_dword v{vL + 22}, v{vL + 21}, {sr(S_TAB, 4)}, s3 offen {tab_pol}
        s_mov_b64 exec, -1
        """)
    A("s_waitcnt lgkmcnt(1)")
    A(f"v_add_u32 v{p + 2}, v{c}, v{c + 1}")
    A(f"v_add_u32 v{p + 3}, v{p + 2}, v{c + 2}")
    A(f"v_add_u32 v{p + 4}, v{p + 3}, v{c + 3}")
    A("s_waitcnt lgkmcnt(0)")
    for i in range(5, 8):
        A(f"v_add_u32 v{p + i}, v{p + i - 1}, v{c + i - 1}")
    A(f"v_add_u32 v{deg}, v{p + 7}, v{c + 7}")
    A(f"v_add_u32 v{q}, 3, v{deg}")
    A(f"v_lshrrev_b32 v{q}, 2, v{q}")
    A(f"v_mov_b32 v{inc}, v{q}")
    wave_scan(A, inc)
    A(f"v_sub_u32 v{g4}, v{inc}, v{q}")
    A(f"v_readlane_b32 s3, v{inc}, 63")
    A(f"v_lshlrev_b32 v{p}, 2, v{g4}")
    A(f"v_add_u32 v{p + 1}, v{p}, v{c}")
    for i in range(2, 8):
        A(f"v_add_u32 v{p + i}, v{p}, v{p + i}")
    A(f"ds_write_b128 v{la}, {vr(p, 4)} offset:{L_BASE}")
    A(f"ds_write_b128 v{la}, {vr(p + 4, 4)} offset:{L_BASE + 16}")
    for i in range(8):
        A(f"ds_read_b32 v{vKey + i}, v{vKey + i} offset:{L_BASE}")
    A(f"""
    s_mul_i32 s{sLw}, s3, s{sW}
    s_add_u32 s{sRem}, s{sLw}, s3
    s_lshr_b32 s{sLw}, s{sLw}, 3
    s_lshr_b32 s{sRem}, s{sRem}, 3
    v_cmp_gt_u32_e64 {sr(sTmp, 2)}, s{sLw}, v{g4}
    v_cmp_gt_u32 vcc, s{sRem}, v{g4}
    v_add_u32 v{deg}, s{sW}, v{deg}
    v_lshlrev_b32 v{q}, 2, v{q}
    s_bcnt1_i32_b64 s{sF0}, {sr(sTmp, 2)}
    s_bcnt1_i32_b64 s{sOwn}, vcc
    v_cmp_lt_u32 vcc, v{deg}, v{q}
    v_add_lshl_u32 v{deg}, v{deg}, v{p}, 2
    v_mov_b32 v{c}, {TAB_BYTES}
    v_bfrev_b32 v{c + 1}, 2
    s_cmp_eq_u32 s{sW}, 7
    s_cselect_b32 s{sOwn}, {NPB}, s{sOwn}
    s_sub_u32 s{sOwn}, s{sOwn}, s{sF0}
    s_sub_u32 s{sRem}, s{sRem}, s{sLw}
    s_mov_b64 exec, vcc
    ds_write_b32 v{deg}, v{c} offset:{L_SO}
    ds_write_b32 v{deg}, v{c + 1} offset:{L_EO}
    s_sub_u32 s3, s{sOwn}, 1
    s_sub_u32 s{sTmp}, s{sRem}, 1
    s_lshr_b32 s3, s3, 3
    s_lshr_b32 s{sTmp}, s{sTmp}, 6
    s_or_b32 s3, s3, s{sTmp}
    s_cselect_b64 exec, 1, 0
    ds_write_b32 v{vZero}, v{vOne} offset:{L_FLAG}
    s_mov_b64 exec, -1
    s_waitcnt lgkmcnt(0)
    """)
    stamp(A, opt, "scan2")
    place(cand)
    A(f"s_cmp_eq_u64 {sr(sMask2, 2)}, 0")
    A("s_cbranch_scc1 Lno_place2")
    for cd in cand2:
        A(f"ds_read_b32 v{cd[1]}, v{cd[1]} offset:{L_BASE}")
    A("s_waitcnt lgkmcnt(0)")
    place(cand2)
    A("Lno_place2:")
    so, eo, key, less, eq, z, pos, t = vL, vL + 4, vL + 8, vL + 9, vL + 10, vL + 12, vL + 14, vL + 15
    A(f"""
    s_lshl_b32 s3, s{sLw}, 4
    v_add_u32 v{t}, s3, v{vX + 3}
    v_lshrrev_b32 v{t + 1}, 4, v{vX + 3}
    v_cmp_le_u32_e64 {sr(sTmp, 2)}, s{sRem}, v{t + 1}
    v_bfrev_b32 v{t + 2}, 2
    s_waitcnt lgkmcnt(0)
    s_barrier
    ds_read_b32 v{t + 3}, v{vZero} offset:{L_FLAG}
    ds_read_b128 {vr(so, 4)}, v{t} offset:{L_SO}
    ds_read_b128 {vr(eo, 4)}, v{t} offset:{L_EO}
    v_cndmask_b32_e64 v{vInv}, 0, v{t + 2}, {sr(sTmp, 2)}
    s_sub_u32 s{sQ1}, s{sF0}, 1
    s_mul_i32 s{sQ2}, s{sQ1}, 528
    s_add_u32 s{sQ2}, s{sQ2}, {L_TA}
    v_add_u32 v{t + 4}, s{sQ2}, v{vLo}
    s_mov_b32 s{sQ3}, 0xfffffe00
    s_waitcnt lgkmcnt(2)
    v_readfirstlane_b32 s3, v{t + 3}
    s_waitcnt lgkmcnt(1)
    v_lshrrev_b32 v{key}, 20, v{so + 1}
    v_and_b32 v{t + 3}, 63, v{so}
    s_cmp_lg_u32 s3, 0
    s_cbranch_scc1 Lslow_entry
    v_cndmask_b32_e64 v{key}, v{key}, 7, {sr(sTmp, 2)}
    v_subrev_u32 v{t + 3}, s{sQ1}, v{t + 3}
    v_mov_b32 v{less}, 0
    v_mov_b64 {vr(eq, 2)}, -1
    v_mul_u32_u24 v{t + 3}, 12, v{t + 3}
    """)
    stamp(A, opt, "bD")
    for bit in (2, 1, 0):
        A(f"""
        v_and_b32 v{t}, {1 << bit}, v{key}
        v_cmp_eq_u32 vcc, 0, v{t}
        v_and_or_b32 v{so + bit}, v{so + bit}, s{sQ3}, v{vInv}
        s_nop 0
        v_and_b32 v{z}, vcc_lo, v{eq}
        v_and_b32 v{z + 1}, vcc_hi, v{eq + 1}
        v_bcnt_u32_b32 v{t}, v{z}, v{less}
        v_xor_b32 v{eq}, v{eq}, v{z}
        v_bcnt_u32_b32 v{t}, v{z + 1}, v{t}
        v_xor_b32 v{eq + 1}, v{eq + 1}, v{z + 1}
        v_cndmask_b32 v{eq}, v{eq}, v{z}, vcc
        v_cndmask_b32 v{eq + 1}, v{eq + 1}, v{z + 1}, vcc
        v_cndmask_b32 v{less}, v{t}, v{less}, vcc
        """)
    A(f"""
    v_and_or_b32 v{so + 3}, v{so + 3}, s{sQ3}, v{vInv}
    v_mbcnt_lo_u32_b32 v{pos}, v{eq}, v{less}
    v_mbcnt_hi_u32_b32 v{pos}, v{eq + 1}, v{pos}
    s_waitcnt lgkmcnt(0)
    v_or_b32 v{eo}, v{eo}, v{vInv}
    v_or_b32 v{eo + 1}, v{eo + 1}, v{vInv}
    v_or_b32 v{eo + 2}, v{eo + 2}, v{vInv}
    v_or_b32 v{eo + 3}, v{eo + 3}, v{vInv}
    v_lshl_add_u32 v{t}, v{pos}, 4, s{sSW}
    ds_write_b128 v{t}, {vr(eo, 4)} offset:1152
    v_and_b32 v{t + 1}, 1, v{pos}
    v_lshlrev_b32 v{t + 1}, 3, v{t + 1}
    v_sub_u32 v{t}, v{t}, v{t + 1}
    ds_write2_b64 v{t}, {vr(so, 2)}, {vr(so + 2, 2)} offset0:0 offset1:2
    v_add_u32 v{t + 1}, s{sSW}, v{pos}
    ds_write_b8 v{t + 1}, v{t + 3} offset:2304
    ds_read_b32 v{vEo}, v{vEp} offset:1152
    ds_read_b128 {vr(vSo, 4)}, v{vSp}
    ds_read_b128 {vr(vT, 4)}, v{vSp} offset:32
    ds_read_b32 v{vT + 4}, v{vEp} offset:{1152 + 128}
    v_lshrrev_b32 v{t + 1}, 2, v{vX + 3}
    v_add_u32 v{t + 1}, s{sSW}, v{t + 1}
    ds_read_b32 v{vSb}, v{t + 1} offset:2304
    v_mov_b32 v{vT + 5}, v{t + 4}
    s_waitcnt lgkmcnt(4)
    v_add_u32 v{vEo}, v{vEo}, v{vH16}
    buffer_load_dwordx4 {vr(vEA, 4)}, v{vEo}, {sr(S_EA, 4)}, 0 offen {ea_pol}
    """)
    for u in range(4):
        src = (vSo, vSo + 2, vT, vT + 2)[u]
        if u in (0, 2):
            A(f"s_waitcnt lgkmcnt({3 - u // 2})")
        A(f"v_lshl_add_u64 {vr(src, 2)}, {vr(src, 2)}, 0, {vr(vLo, 2)}")
        A(f"buffer_load_dwordx4 {vr(vL + 8 * u, 4)}, v{src}, {sr(S_TAB, 4)}, 0 offen {tab_pol}")
        A(f"buffer_load_dwordx4 {vr(vL + 8 * u + 4, 4)}, v{src + 1}, {sr(S_TAB, 4)}, 0 offen {tab_pol}")
    stamp(A, opt, "prim")
    for s in range(NS):
        A(f"ds_read_b128 {vr(vSl + 12 * s + 8, 4)}, v{vT + 5} offset:{528 * s}")
    A("s_waitcnt lgkmcnt(0)")
    for s in range(NS):
        for j in range(4):
            A(f"v_exp_f32 v{vSl + 12 * s + 8 + j}, v{vSl + 12 * s + 8 + j}")
    A(f"""
    v_add_u32 v{vEo}, v{vT + 4}, v{vH16}
    v_readlane_b32 s{sSl0}, v{vSb}, 0
    v_readlane_b32 s{sSl1}, v{vSb}, 1
    s_mov_b32 s{sLn}, 2
    s_mov_b32 s{sLn + 1}, 3
    s_mul_i32 s{sQ1}, s{sRem}, 3
    s_lshr_b32 s{sQ1}, s{sQ1}, 2
    s_lshr_b32 s{sQ2}, s{sRem}, 1
    s_lshr_b32 s{sQ3}, s{sRem}, 2
    s_setprio 3
    s_waitcnt vmcnt(8)
    """)
    stamp(A, opt, "first")

    def mfma(j):
        return f"v_mfma_f32_32x32x16_bf16 {vr(vD + 16 * j, 16)}, {vr(vEA, 4)}, {vr(vWC + 4 * j, 4)}, 0"

    for j in range(4):
        A(mfma(j))
    A(f"buffer_load_dwordx4 {vr(vEA, 4)}, v{vEo}, {sr(S_EA, 4)}, 0 offen {ea_pol}")
    A("s_nop 7")
    A("s_nop 1")
    A(f"s_cmp_gt_u32 s{sRem}, 8")
    A("s_cbranch_scc0 Llast")

    def step(u, last):
        La, Lb = vL + 8 * (u & 3), vL + 8 * (u & 3) + 4
        a, b = vT, vT + 4
        sl = (sSl0, sSl1)[u >> 2]
        prefetch = not (last and u >= 4)
        wait = 7 if u < 4 else (6 if not last else 2 * (7 - u))
        A(f"s_waitcnt vmcnt({wait})")
        if prefetch and u % 2 == 0:
            A(f"ds_read_b128 {vr(vSo, 4)}, v{vSp} offset:{16 * (u + 4)}")
        if u == 6 and not last:
            A(f"ds_read_b32 v{vEo}, v{vEp} offset:{1152 + 256}")

        def mix(j, hb):
            return (f"v_fma_mix_f32 v{(a, b)[hb] + j}, v{vD + 16 * j + 2 * u + hb}, s{sNl}, v{(La, Lb)[hb] + j} "
                    "op_sel_hi:[0,0,1]")

        wide = not (prefetch and u % 2 == 0)
        if u == 7 and not last:
            for j in range(4):
                A(mix(j, 0))
                A(mix(j, 1))
                if j:
                    A(f"v_exp_f32 v{a + j - 1}, v{a + j - 1}")
                    A(f"v_exp_f32 v{b + j - 1}, v{b + j - 1}")
                A(mfma(j))
            A(f"v_exp_f32_e64 v{a + 3}, v{a + 3}")
            A(f"v_exp_f32 v{b + 3}, v{b + 3}")
        else:
            for hb in range(2):
                for j in range(4):
                    A(mix(j, hb))
            for j in range(8):
                A(f"v_exp_f32{'_e64' if wide and j == 0 else ''} v{a + j}, v{a + j}")
        if not wide:
            A("s_waitcnt lgkmcnt(0)")
        A(f"s_set_gpr_idx_on s{sl}, gpr_idx(SRC1)")
        for j in range(0, 8, 2):
            A(f"v_pk_fma_f32 {vr(a + j, 2)}, {vr(a + j, 2)}, {vr(vSl + 8 + (j & 3), 2)}, {sr(sC0, 2)} clamp")
        A("s_set_gpr_idx_mode gpr_idx()")
        A(f"s_lshr_b32 s{sl}, s{sl}, 8")
        for j in (0, 2):
            A(f"v_pk_mul_f32 {vr(La + j, 2)}, {vr(La + j, 2)}, {vr(b + j, 2)}")
        so2 = vSo + 2 * (u & 1)
        if prefetch:
            A(f"v_lshl_add_u64 {vr(so2, 2)}, {vr(so2, 2)}, 0, {vr(vLo, 2)}")
        for j in (0, 2):
            A(f"v_pk_fma_f32 {vr(La + j, 2)}, {vr(Lb + j, 2)}, {vr(a + j, 2)}, {vr(La + j, 2)}")
        for j in (0, 2):
            A(f"v_pk_add_f32 {vr(Lb + j, 2)}, {vr(a + j, 2)}, {vr(b + j, 2)}")
        for j in (0, 2):
            A(f"v_pk_mul_f32 {vr(a + j, 2)}, {vr(a + j, 2)}, {vr(b + j, 2)}")
        for j in range(4):
            A(f"v_rcp_f32{'_e64' if j == 0 else ''} v{a + j}, v{a + j}")
        A("s_set_gpr_idx_mode gpr_idx(SRC2,DST)")
        for j in (0, 2):
            A(f"v_pk_fma_f32 {vr(vSl + j, 2)}, {vr(La + j, 2)}, {vr(a + j, 2)}, {vr(vSl + j, 2)}")
            A(f"v_pk_fma_f32 {vr(vSl + 4 + j, 2)}, {vr(Lb + j, 2)}, {vr(a + j, 2)}, {vr(vSl + 4 + j, 2)}")
        if prefetch and not opt.get("noload"):
            A(f"buffer_load_dwordx4 {vr(La, 4)}, v{so2}, {sr(S_TAB, 4)}, 0 offen {tab_pol}")
            A(f"buffer_load_dwordx4 {vr(Lb, 4)}, v{so2 + 1}, {sr(S_TAB, 4)}, 0 offen {tab_pol}")
        A("s_set_gpr_idx_off")

    A(".p2align 6")
    A("Ltile:")
    A(f"s_sub_u32 s{sRem}, s{sRem}, 8")
    for u in range(8):
        step(u, False)
    A(f"""
    v_add_u32 v{vEo}, v{vEo}, v{vH16}
    buffer_load_dwordx4 {vr(vEA, 4)}, v{vEo}, {sr(S_EA, 4)}, 0 offen {ea_pol}
    v_readlane_b32 s{sSl0}, v{vSb}, s{sLn}
    v_readlane_b32 s{sSl1}, v{vSb}, s{sLn + 1}
    v_add_u32 v{vSp}, 0x80, v{vSp}
    v_add_u32 v{vEp}, 0x80, v{vEp}
    s_add_u32 s{sLn}, s{sLn}, 2
    s_add_u32 s{sLn + 1}, s{sLn + 1}, 2
    """)
    if not opt.get("noprio"):
        for k, sq in enumerate((sQ1, sQ2, sQ3)):
            A(f"s_cmp_le_u32 s{sRem}, s{sq}")
            A("s_cbranch_scc0 Lprio_done")
            A(f"s_setprio {2 - k}")
        A("Lprio_done:")
    A(f"s_cmp_gt_u32 s{sRem}, 8")
    A("s_cbranch_scc1 Ltile")
    A(".p2align 3")
    A("Llast:")
    A("s_nop 0")
    for u in range(8):
        step(u, True)
        if u < 7:
            A(f"s_cmp_le_u32 s{sRem}, {u + 1}")
            A("s_cbranch_scc1 Lmain_done")
    A("Lmain_done:")
    stamp(A, opt, "done")

    def finalize(a0, o, a1, u0, x0, addr, soff, pre_store):
        for j in range(4):
            A(f"v_permlane32_swap_b32 v{a0 + j}, v{a1 + j}")
            A(f"v_permlane32_swap_b32 v{a0 + o + j}, v{a1 + o + j}")
        for j in (o, o + 2, 0, 2):
            A(f"v_pk_add_f32 {vr(a0 + j, 2)}, {vr(a0 + j, 2)}, {vr(a1 + j, 2)}")
        for j in (o, o + 2):
            A(f"v_pk_add_f32 {vr(a0 + j, 2)}, {vr(a0 + j, 2)}, {sr(sC0, 2)}")
        for j in range(4):
            A(f"v_rcp_f32 v{a0 + o + j}, v{a0 + o + j}")
        A(f"v_lshlrev_b32 v{a1}, 16, v{x0}")
        A(f"v_and_b32 v{a1 + 1}, 0xffff0000, v{x0}")
        A(f"v_lshlrev_b32 v{a1 + 2}, 16, v{x0 + 1}")
        A(f"v_and_b32 v{a1 + 3}, 0xffff0000, v{x0 + 1}")
        for j in (0, 2):
            A(f"v_pk_fma_f32 {vr(a0 + j, 2)}, {vr(a0 + j, 2)}, {vr(a0 + o + j, 2)}, {vr(u0 + j, 2)}")
        for j in range(4):
            A(f"v_max_f32 v{a0 + j}, 0, v{a0 + j}")
        for j in (0, 2):
            A(f"v_pk_add_f32 {vr(a0 + j, 2)}, {vr(a0 + j, 2)}, {vr(a1 + j, 2)}")
        A(f"v_cvt_pk_bf16_f32 v{a0}, v{a0}, v{a0 + 1}")
        A(f"v_cvt_pk_bf16_f32 v{a0 + 1}, v{a0 + 2}, v{a0 + 3}")
        A(pre_store)
        A(f"buffer_store_dwordx2 {vr(a0, 2)}, v{addr}, {sr(S_OUT, 4)}, s{soff} offen")

    eps = f32(1e-6 / c0)
    vU, vXr, vA1, vA2, vA3, vCy = vD, vD + 16, vD + 24, vD + 25, vD + 26, vD + 32
    A(f"""
    v_lshl_add_u32 v{vA1}, v{vH16}, 5, v{vLo}
    v_add_u32 v{vA1}, s{sSW}, v{vA1}
    ds_write_b128 v{vA1}, {vr(vSl, 4)}
    ds_write_b128 v{vA1}, {vr(vSl + 4, 4)} offset:1024
    s_mul_i32 s3, s{sF0}, 528
    s_add_u32 s3, s3, {L_TU}
    v_mul_u32_u24 v{vA2}, 33, v{vH16}
    v_add3_u32 v{vA2}, v{vA2}, v{vLo}, s3
    s_mul_i32 s3, s{sF0}, 272
    s_add_u32 s3, s3, {L_X}
    v_mul_u32_u24 v{vA3}, 17, v{vH16}
    v_lshrrev_b32 v{vLo + 1}, 1, v{vLo}
    v_add3_u32 v{vA3}, v{vA3}, v{vLo + 1}, s3
    """)
    for pr in range(4):
        A(f"ds_read_b128 {vr(vU + 4 * pr, 4)}, v{vA2} offset:{1056 * pr}")
        A(f"ds_read_b64 {vr(vXr + 2 * pr, 2)}, v{vA3} offset:{544 * pr}")
    A(f"""
    v_lshl_add_u32 v{vA2}, v{vH16}, 4, v{vLo + 1}
    s_add_u32 s{sQ1}, s{sN0}, s{sF0}
    s_lshl_b32 s{sQ1}, s{sQ1}, 8
    s_mov_b32 s{sC0}, {hex(eps)}
    s_mov_b32 s{sC0 + 1}, {hex(eps)}
    s_mul_i32 s{sQ2}, s{sOwn}, 12
    s_cmp_eq_u32 s{sW}, 3
    s_cselect_b32 s3, {LIST - 4 * STRW}, 0
    v_add_u32 v{vA1}, s3, v{vA1}
    s_waitcnt lgkmcnt(0)
    """)
    for pr in range(4):
        if pr < 3:
            A(f"s_cmp_gt_u32 s{sOwn}, {2 * pr + 2}")
            A(f"s_cbranch_scc1 Lfin{pr}")
        A("s_barrier")
        A(f"s_cmp_eq_u32 s{sW}, 7")
        A(f"s_cbranch_scc1 Lfin{pr}")
        A(f"ds_read_b128 {vr(vCy, 4)}, v{vA1} offset:{STRW}")
        A(f"ds_read_b128 {vr(vCy + 4, 4)}, v{vA1} offset:{STRW + 1024}")
        A(f"s_set_gpr_idx_on s{sQ2}, gpr_idx(SRC0,DST)")
        A("s_waitcnt lgkmcnt(0)")
        for j in range(0, 8, 2):
            A(f"v_pk_add_f32 {vr(vSl + j, 2)}, {vr(vSl + j, 2)}, {vr(vCy + j, 2)}")
        A("s_set_gpr_idx_off")
        A("s_nop 1")
        A(f"Lfin{pr}:")
        finalize(vSl + 12 * (2 * pr + 1), 4, vSl + 12 * (2 * pr + 2), vU + 4 * pr, vXr + 2 * pr, vA2, sQ1,
                 f"s_cmp_gt_u32 s{sOwn}, {2 * pr + 1}\ns_cselect_b32 exec_hi, -1, 0")
        if pr < 3:
            A(f"s_add_u32 s{sQ1}, s{sQ1}, 512")
            A(f"s_cmp_gt_u32 s{sOwn}, {2 * pr + 2}")
            A("s_cbranch_scc0 Lk2_done")
    A("Lk2_done:")
    stamp_flush(A, opt, 8, 0x20000, vTid)
    if opt.get("spin"):
        A("""
        Lspin:
        s_memrealtime s[42:43]
        s_waitcnt lgkmcnt(0)
        s_sub_u32 s42, s42, s100
        s_cmp_lt_u32 s42, 10000
        s_cbranch_scc1 Lspin
        """)
    A("Lk2_exit:")
    A("s_endpgm")

    NU = 7
    vAcc, vAn = 0, 56
    vLs = [vL + 8 * u for u in range(4)] + [84 + 8 * u for u in range(3)]
    vP, vErr, vQ, vCaddr, vUaddr = 245, 252, 253, 254, 255
    A("Lslow_entry:")
    A(f"""
    s_waitcnt vmcnt(0) lgkmcnt(0)
    s_barrier
    v_lshlrev_b32 v{vX + 11}, 2, v{vTid}
    ds_write_b32 v{vX + 11}, v{vZero} offset:{L_CNT}
    s_mul_i32 s3, s{sW}, 528
    s_add_u32 s3, s3, {L_TA}
    v_add_u32 v{vX + 11}, s3, v{vLo}
    """)
    for u in range(NU):
        A(f"ds_read_b128 {vr(vAn + 4 * u, 4)}, v{vX + 11} offset:{8 * 528 * u}")
    for i in range(0, 8 * NU, 2):
        A(f"v_mov_b64 {vr(vAcc + i, 2)}, 0")
    A(f"""
    v_bfe_u32 v{vX + 11}, v{vTid}, 3, 3
    v_and_b32 v{vX + 12}, 7, v{vTid}
    v_lshlrev_b32 v{vX + 12}, 2, v{vX + 12}
    v_lshl_add_u32 v{vX + 12}, v{vX + 11}, 8, v{vX + 12}
    s_lshl_b32 s3, s{sW}, 5
    v_add_u32 v{vCaddr}, s3, v{vX + 12}
    v_bfe_u32 v{vX + 11}, v{vTid}, 3, 2
    v_bfe_u32 v{vX + 12}, v{vTid}, 1, 1
    v_lshl_add_u32 v{vX + 11}, v{vX + 11}, 1, v{vX + 12}
    v_lshlrev_b32 v{vUaddr}, 5, v{vX + 11}
    Lbatch:
    """)
    batch_masks(16)
    A("Lround:")
    rec_loads()
    A(f"""
    v_mov_b32 v{vZero}, 0
    v_mov_b32 v{vOne}, 1
    ds_write_b32 v{vZero}, v{vZero} offset:{L_FLAG}
    ds_write_b32 v{vZero}, v{vZero} offset:{L_FLAG + 4}
    s_waitcnt lgkmcnt(0)
    s_barrier
    s_mov_b64 exec, {sr(sMore, 2)}
    ds_write_b32 v{vZero}, v{vOne} offset:{L_FLAG + 4}
    s_mov_b64 exec, -1
    s_waitcnt vmcnt(0)
    """)
    histogram(cand, False)
    A("s_waitcnt lgkmcnt(0)")
    A("s_barrier")
    c, inc, deg, q, t0, t1 = vX + 12, vX + 13, vX + 14, vX + 15, vX + 16, vX + 17
    A(f"ds_read_b32 v{c}, v{vCaddr} offset:{L_CNT}")
    A(f"v_lshrrev_b32 v{t0}, 5, v{vCaddr}")
    A(f"v_lshlrev_b32 v{t0}, 6, v{t0}")
    A("s_waitcnt lgkmcnt(0)")
    A(f"ds_write_b32 v{vCaddr}, v{vZero} offset:{L_CNT}")
    A(f"v_mov_b32 v{inc}, v{c}")
    for d in (1, 2, 4, 8):
        A("s_nop 1")
        A(f"v_add_u32_dpp v{inc}, v{inc}, v{inc} row_shr:{d} row_mask:0xf bank_mask:0xf")
    A(f"""
    v_mov_b32 v{t1}, 0
    s_nop 0
    v_mov_b32_dpp v{deg}, v{inc} row_newbcast:7 row_mask:0xf bank_mask:0x3
    v_mov_b32_dpp v{t1}, v{inc} row_newbcast:7 row_mask:0xf bank_mask:0xc
    v_mov_b32_dpp v{deg}, v{inc} row_newbcast:15 row_mask:0xf bank_mask:0xc
    v_sub_u32 v{inc}, v{inc}, v{t1}
    v_sub_u32 v{deg}, v{deg}, v{t1}
    v_sub_u32 v{inc}, v{inc}, v{c}
    v_add_u32 v{inc}, v{inc}, v{t0}
    ds_write_b32 v{vCaddr}, v{inc} offset:{L_BASE}
    v_cmp_lt_u32 vcc, 64, v{deg}
    v_min_u32 v{deg}, 64, v{deg}
    v_add_u32 v{q}, 3, v{deg}
    v_lshrrev_b32 v{q}, 2, v{q}
    s_mov_b64 exec, vcc
    ds_write_b32 v{vZero}, v{vOne} offset:{L_FLAG}
    s_mov_b64 exec, -1
    ds_bpermute_b32 v{vQ}, v{vUaddr}, v{q}
    v_and_b32 v{c}, 7, v{vTid}
    v_add_u32 v{c}, v{c}, v{deg}
    v_lshlrev_b32 v{t1}, 2, v{q}
    v_cmp_lt_u32 vcc, v{c}, v{t1}
    v_add_lshl_u32 v{c}, v{c}, v{t0}, 2
    v_mov_b32 v{t0}, {TAB_BYTES}
    v_bfrev_b32 v{t1}, 2
    s_mov_b64 exec, vcc
    ds_write_b32 v{c}, v{t0} offset:{L_SO}
    ds_write_b32 v{c}, v{t1} offset:{L_EO}
    s_mov_b64 exec, -1
    v_max_u32_dpp v{q}, v{q}, v{q} row_ror:8 row_mask:0xf bank_mask:0xf
    s_nop 0
    v_readlane_b32 s{sT}, v{q}, 0
    v_readlane_b32 s3, v{q}, 16
    v_readlane_b32 s{sTmp}, v{q}, 32
    v_readlane_b32 s{sTmp + 1}, v{q}, 48
    s_waitcnt lgkmcnt(0)
    s_barrier
    ds_read_b64 {vr(vX + 12, 2)}, v{vZero} offset:{L_FLAG}
    """)
    for i in range(8):
        A(f"ds_read_b32 v{vKey + i}, v{vKey + i} offset:{L_BASE}")
    A(f"""
    s_max_u32 s{sT}, s{sT}, s3
    s_max_u32 s{sTmp}, s{sTmp}, s{sTmp + 1}
    s_max_u32 s{sT}, s{sT}, s{sTmp}
    s_waitcnt lgkmcnt(0)
    v_readfirstlane_b32 s{sOvf}, v{vX + 12}
    v_readfirstlane_b32 s{sMor}, v{vX + 13}
    """)
    for i in range(8):
        A(f"v_and_b32 v{vX + 12}, 63, v{vRec + i}")
        A(f"v_add_u32 v{vKey + i}, v{vKey + i}, v{vRank + i}")
        A(f"v_lshl_add_u32 v{vX + 12}, v{vX + 12}, 6, 64")
        A(f"v_cmp_lt_u32 vcc, v{vKey + i}, v{vX + 12}")
        A(f"v_lshlrev_b32 v{vKey + i}, 2, v{vKey + i}")
        A(f"s_and_b64 exec, vcc, {sr(sMask + 2 * i, 2)}")
        A(f"ds_write_b32 v{vKey + i}, v{vSoff + i} offset:{L_SO}")
        A(f"ds_write_b32 v{vKey + i}, v{vEoff + i} offset:{L_EO}")
        A(f"s_andn2_b64 {sr(sMask + 2 * i, 2)}, {sr(sMask + 2 * i, 2)}, vcc")
        A("s_mov_b64 exec, -1")
    A(f"""
    s_lshl_b32 s3, s{sW}, 8
    v_lshrrev_b32 v{vX + 12}, 1, v{vH16}
    v_add_u32 v{vP}, s3, v{vX + 12}
    v_and_b32 v{vX + 12}, 1, v{vTid}
    v_bfe_u32 v{vX + 13}, v{vTid}, 2, 1
    v_lshl_add_u32 v{vX + 12}, v{vX + 13}, 1, v{vX + 12}
    v_lshl_add_u32 v{vX + 12}, v{vX + 12}, 2, s3
    v_lshl_add_u32 v{vEp}, v{vUaddr}, 6, v{vX + 12}
    s_lshr_b32 s3, s{sT}, 1
    v_mov_b32 v{vErr}, s3
    s_mov_b64 {sr(sCur, 2)}, 0
    s_mov_b32 s{sTi}, 0
    """)
    for u in range(1, NU):
        A(f"v_mov_b32 v{vP + u}, v{vP}")
    A(f"""
    s_waitcnt lgkmcnt(0)
    s_barrier
    s_cmp_eq_u32 s{sT}, 0
    s_cbranch_scc1 Lg_done
    s_branch Lg_entry
    Lg_tile:
    s_waitcnt vmcnt({2 * NU})
    """)
    for j in range(4):
        A(mfma(j))
    A(f"""
    Lg_entry:
    v_add_u32 v{vErr}, v{vQ}, v{vErr}
    ds_read_b32 v{vEo}, v{vEp} offset:{L_EO}
    ds_read_b64 {vr(vSo, 2)}, v{vP} offset:{L_SO}
    v_cmp_le_u32_e64 {sr(sNext, 2)}, s{sT}, v{vErr}
    s_cmp_lt_u32 s{sTi}, s{sT}
    s_cselect_b64 {sr(sNext, 2)}, {sr(sNext, 2)}, 1
    s_mov_b64 exec, {sr(sNext, 2)}
    v_subrev_u32 v{vErr}, s{sT}, v{vErr}
    v_add_u32 v{vEp}, 16, v{vEp}
    s_waitcnt lgkmcnt(1)
    v_add_u32 v{vEo}, v{vEo}, v{vH16}
    buffer_load_dwordx4 {vr(vEA, 4)}, v{vEo}, {sr(S_EA, 4)}, 0 offen
    s_mov_b64 exec, -1
    """)
    for u in range(NU):
        bit = 8 * (u >> 1) + 2 * (u & 1) + 1
        so2 = vSo + 2 * (u & 1)
        La, Lb = vLs[u], vLs[u] + 4
        a, b = vT, vT + 4
        num, den = vAcc + 8 * u, vAcc + 8 * u + 4
        if u + 1 < NU:
            A(f"ds_read_b64 {vr(vSo + 2 * ((u + 1) & 1), 2)}, v{vP + u + 1} offset:{L_SO + 2048 * (u + 1)}")
        A(f"s_bitcmp1_b32 s{sCur}, {bit}")
        A(f"s_cbranch_scc0 Lg_skip{u}")
        A(f"s_waitcnt vmcnt({2 * NU - 1})")
        for j in range(4):
            A(f"v_fma_mix_f32 v{a + j}, v{vD + 16 * j + 2 * u}, s{sNl}, v{La + j} op_sel_hi:[0,0,1]")
        for j in range(4):
            A(f"v_fma_mix_f32 v{b + j}, v{vD + 16 * j + 2 * u + 1}, s{sNl}, v{Lb + j} op_sel_hi:[0,0,1]")
        for j in range(0, 8, 2):
            A(f"v_pk_add_f32 {vr(a + j, 2)}, {vr(a + j, 2)}, {vr(vAn + 4 * u + (j & 3), 2)}")
        for j in range(8):
            A(f"v_exp_f32_e64 v{a + j}, v{a + j} clamp")
        for j in range(0, 8, 2):
            A(f"v_pk_add_f32 {vr(a + j, 2)}, {vr(a + j, 2)}, {sr(sC0, 2)}")
        for j in (0, 2):
            A(f"v_pk_mul_f32 {vr(La + j, 2)}, {vr(La + j, 2)}, {vr(b + j, 2)}")
        for j in (0, 2):
            A(f"v_pk_fma_f32 {vr(La + j, 2)}, {vr(Lb + j, 2)}, {vr(a + j, 2)}, {vr(La + j, 2)}")
        for j in (0, 2):
            A(f"v_pk_add_f32 {vr(Lb + j, 2)}, {vr(a + j, 2)}, {vr(b + j, 2)}")
        for j in (0, 2):
            A(f"v_pk_mul_f32 {vr(a + j, 2)}, {vr(a + j, 2)}, {vr(b + j, 2)}")
        for j in range(4):
            A(f"v_rcp_f32 v{a + j}, v{a + j}")
        for j in (0, 2):
            A(f"v_pk_fma_f32 {vr(num + j, 2)}, {vr(La + j, 2)}, {vr(a + j, 2)}, {vr(num + j, 2)}")
            A(f"v_pk_fma_f32 {vr(den + j, 2)}, {vr(Lb + j, 2)}, {vr(a + j, 2)}, {vr(den + j, 2)}")
        A(f"Lg_skip{u}:")
        A(f"s_bitcmp1_b32 s{sNext}, {bit}")
        A("s_cselect_b64 exec, -1, 1")
        A(f"s_cselect_b32 s{sInc}, 16, 0")
        A(f"s_waitcnt lgkmcnt({1 if u + 1 < NU else 0})")
        A(f"v_add_u32 v{so2}, v{so2}, v{vLo}")
        A(f"v_add_u32 v{so2 + 1}, v{so2 + 1}, v{vLo}")
        A(f"buffer_load_dwordx4 {vr(La, 4)}, v{so2}, {sr(S_TAB, 4)}, 0 offen {tab_pol}")
        A(f"buffer_load_dwordx4 {vr(Lb, 4)}, v{so2 + 1}, {sr(S_TAB, 4)}, 0 offen {tab_pol}")
        A("s_mov_b64 exec, -1")
        A(f"v_add_u32 v{vP + u}, s{sInc}, v{vP + u}")
    A(f"""
    s_mov_b64 {sr(sCur, 2)}, {sr(sNext, 2)}
    s_add_u32 s{sTi}, s{sTi}, 1
    s_cmp_le_u32 s{sTi}, s{sT}
    s_cbranch_scc1 Lg_tile
    Lg_done:
    s_waitcnt vmcnt(0)
    s_cmp_lg_u32 s{sOvf}, 0
    s_cbranch_scc1 Lround
    s_add_u32 s{sW0}, s{sW0}, 16
    s_cmp_lg_u32 s{sMor}, 0
    s_cbranch_scc1 Lbatch
    s_mul_i32 s3, s{sW}, 528
    s_add_u32 s3, s3, {L_TU}
    v_mul_u32_u24 v{vA2}, {33 * 8}, v{vH16}
    v_add3_u32 v{vA2}, v{vA2}, v{vLo}, s3
    s_mul_i32 s3, s{sW}, 272
    s_add_u32 s3, s3, {L_X}
    v_mul_u32_u24 v{vA3}, {17 * 8}, v{vH16}
    v_lshrrev_b32 v{vLo + 1}, 1, v{vLo}
    v_add3_u32 v{vA3}, v{vA3}, v{vLo + 1}, s3
    """)
    for pr in range(4):
        A(f"ds_read_b128 {vr(vU + 4 * pr, 4)}, v{vA2} offset:{16 * 528 * pr}")
        A(f"ds_read_b64 {vr(vXr + 2 * pr, 2)}, v{vA3} offset:{16 * 272 * pr}")
    A(f"""
    v_lshl_add_u32 v{vA2}, v{vH16}, 7, v{vLo + 1}
    s_add_u32 s{sQ1}, s{sN0}, s{sW}
    s_lshl_b32 s{sQ1}, s{sQ1}, 8
    s_mov_b32 s{sC0}, {hex(eps)}
    s_mov_b32 s{sC0 + 1}, {hex(eps)}
    s_waitcnt lgkmcnt(0)
    """)
    for pr in range(4):
        if pr == 3:
            A(f"s_cmp_lg_u32 s{sW}, 0")
            A("s_cbranch_scc1 Lk2_done")
        finalize(vAcc + 16 * pr, 4, vAcc + 16 * pr + 8, vU + 4 * pr, vXr + 2 * pr, vA2, sQ1,
                 "s_mov_b32 exec_hi, 0" if pr == 3 else "s_nop 0")
        A(f"s_add_u32 s{sQ1}, s{sQ1}, 4096")
    A("s_branch Lk2_done")
    return L_END


def descriptor(name, vgpr, extra=""):
    return f""".amdhsa_kernel {name}
  .amdhsa_next_free_vgpr {vgpr}
  .amdhsa_next_free_sgpr 102
  .amdhsa_accum_offset {(vgpr + 3) // 4 * 4}
  .amdhsa_group_segment_fixed_size 0
  .amdhsa_kernarg_size 96
  .amdhsa_user_sgpr_count 2
  .amdhsa_user_sgpr_kernarg_segment_ptr 1
  .amdhsa_system_sgpr_workgroup_id_x 1
{extra}.end_amdhsa_kernel
"""


def generate(opt):
    A = Asm()
    lds = gen_k2(A, opt)
    lst = f"kernel={NAME}_kernel " if opt.get("aslist") else ""
    return (f"""; GatedGCN layer in one launch. Every workgroup buckets one chunk of edges by destination and builds its
; rows of the gather table, hands both over through d_ws, then sorts, gathers and reduces one bucket of nodes.
; @launch {lst}grid=(256,1,1) block=(512,1,1) lds={lds}
.amdgcn_target "amdgcn-amd-amdhsa--gfx950"
.text
.globl {NAME}_kernel
.p2align 8
.type {NAME}_kernel,@function
""" + A.text() + ".section .rodata,\"a\"\n.p2align 6\n"
            + descriptor(f"{NAME}_kernel", 256, "  .amdhsa_fp16_overflow 1\n"))


if __name__ == "__main__":
    out = sys.argv[1] if len(sys.argv) > 1 else f"cdna_kernels/{NAME}.s"
    opt = dict(a.split("=", 1) for a in sys.argv[2:])
    opt = {k: v.replace("+", " ") for k, v in opt.items()}
    open(out, "w").write(generate(opt))
```

```python
import math
import struct
import sys

NAME = "gather_scatter__edge_featured_mpnn_gatedgcn__graph"
N, E = 12500, 400000
NPB = 49
CH = 1568
NCH = 256
TAB_OFF = 0
REC_OFF = 0xE00000
OFF_OFF = 0x1000000
SPIN_MAX = 20000
STAMP_OFF = 0x2000000
TAB_BYTES = N * 512
KSH = 48
AMAX = 52.0
NLOG2E = -math.log2(math.e)


def f32(x):
    return struct.unpack("<I", struct.pack("<f", x))[0]


class Asm:
    def __init__(self):
        self.lines = []

    def __call__(self, s):
        for ln in s.strip("\n").split("\n"):
            ln = ln.strip()
            if not ln:
                continue
            self.lines.append(ln if ln.endswith(":") else "    " + ln)

    def text(self):
        return "\n".join(self.lines) + "\n"


def vr(a, n=1):
    return f"v{a}" if n == 1 else f"v[{a}:{a + n - 1}]"


def sr(a, n=1):
    return f"s{a}" if n == 1 else f"s[{a}:{a + n - 1}]"


def srd(A, d, base, nbytes, off=0):
    if off:
        A(f"s_add_u32 s{d}, s{base}, {hex(off)}")
        A(f"s_addc_u32 s{d + 1}, s{base + 1}, 0")
    else:
        A(f"s_mov_b64 {sr(d, 2)}, {sr(base, 2)}")
    A(f"s_mov_b32 s{d + 2}, {hex(nbytes)}")
    A(f"s_mov_b32 s{d + 3}, 0x20000")


P_X, P_EA, P_SRC, P_DST, P_WA, P_WB, P_WC, P_WU = 4, 6, 8, 10, 12, 14, 16, 18
P_WV, P_OUT, P_DBG, P_WS = 20, 22, 24, 26


def load_kernargs(A):
    A("s_load_dwordx16 s[4:19], s[0:1], 0")
    A("s_load_dwordx8 s[20:27], s[0:1], 64")


STAMP_BASE = [2]


def stamp_reg(i):
    return 100 if i == 0 else STAMP_BASE[0] + 2 * i


def stamp(A, opt, i):
    if not opt.get("stamp"):
        return
    if isinstance(i, str):
        names = opt["stamp"].split(",")
        if i not in names:
            return
        i = names.index(i) + 1
    A(f"{'s_memtime' if opt.get('cyc') else 's_memrealtime'} s[{stamp_reg(i)}:{stamp_reg(i) + 1}]")


def stamp_flush(A, opt, n, base, vtid):
    if not opt.get("stamp"):
        return
    A("s_mov_b64 exec, -1")
    A("s_waitcnt vmcnt(0)")
    stamp(A, opt, n - 1)
    srd(A, 20, P_WS, 0x80000, STAMP_OFF + base)
    A(f"v_lshrrev_b32 v1, 6, v{vtid}")
    A("s_lshl_b32 s3, s2, 3")
    A("v_add_u32 v1, s3, v1")
    A(f"v_mul_u32_u24 v1, {8 * n}, v1")
    A("s_mov_b64 exec, 1")
    A("s_waitcnt lgkmcnt(0)")
    for i in range(n):
        r = stamp_reg(i)
        A(f"v_mov_b32 v2, s{r}")
        A(f"v_mov_b32 v3, s{r + 1}")
        A(f"buffer_store_dwordx2 v[2:3], v1, s[20:23], 0 offen offset:{8 * i}")
        A("s_nop 1")


WAVE_SCAN = ("row_shr:1 row_mask:0xf", "row_shr:2 row_mask:0xf", "row_shr:4 row_mask:0xf",
             "row_shr:8 row_mask:0xf", "row_bcast:15 row_mask:0xa", "row_bcast:31 row_mask:0xc")


def wave_scan(A, v, first_nop=1, fill=()):
    for k, d in enumerate(WAVE_SCAN):
        if k < len(fill):
            A("\n".join(fill[k]))
        elif k or first_nop:
            A("s_nop 1")
        A(f"v_add_u32_dpp v{v}, v{v}, v{v} {d} bank_mask:0xf")


def gen_k2(A, opt):
    STAMP_BASE[0] = 2
    ea_pol = opt.get("ea_load", "")
    tab_pol = opt.get("tab_load", "sc1")
    pf_lanes = int(opt.get("pf", 32))
    poll_at = int(opt.get("poll_at", 8))
    n1 = int(opt.get("n1", 4))
    n2 = int(opt.get("n2", 10))
    n3 = int(opt.get("n3", 10))
    assert n1 < 8 and n1 <= n2 <= n3 <= 16
    S_TAB, S_EA, S_REC, S_OFFS, S_TW, S_X, S_OUT = 28, 32, 36, 40, 44, 48, 52
    sW, sBk, sN0, sW0, sT, sTi, sInc, sNl = 56, 57, 58, 59, 60, 61, 62, 63
    sC0, sCur, sNext, sMore, sTmp, sNon = 64, 66, 68, 70, 72, 74
    sMask = 76
    sMask2 = 18
    S_DST, S_SRC, S_W, S_W2, S_WC, S_DBG = 76, 80, 84, 88, 76, 80
    sOvf, sMor, sQ1, sQ2, sQ3, sLw, sF0, sOwn = 92, 93, 94, 95, 96, 97, 98, 99
    sRem, sSW, sSl0, sSl1, sLn, sPM = sT, sInc, sCur, sCur + 1, sNext, sCur
    sWo, sWm = sOvf, sLw
    L_CNT, L_BASE, L_FLAG, P_CNT, P_BASE, P_SORT = 0, 2048, 4096, 4352, 5376, 6400
    L_R2 = 12800
    L_SO = L_R2
    L_EO = L_SO + 25600
    L_STR = L_R2 + 16896
    STRW = 2560
    L_WCR = L_R2 + 65536
    L_X = L_WCR + 4096
    L_R1 = (L_X + 52 * 272 + 255) // 256 * 256
    L_TA = L_R1 + 528
    L_TU = L_TA + 52 * 528
    L_END = L_R1 + 65536
    TF_OFF = NCH * 2048
    NS = 9
    vSl, vD, vL, vWC, vEA, vT, vSo, vLo = 0, 108, 172, 204, 220, 224, 232, 236
    vSp, vEp, vEo, vH16, vSb, vTid, vOffs = 238, 239, 240, 241, 242, 243, 244
    vWf, vG, vXf, vXs, vNon, vTf = 0, 32, vL, 96, 104, 106
    vRec, vKey, vRank, vSoff, vEoff, vX = vD, vD + 8, vD + 16, vD + 24, vD + 32, vD + 40
    cand = [(vRec + i, vKey + i, vRank + i, vSoff + i, vEoff + i, sMask + 2 * i) for i in range(8)]
    cand2 = [(vEA + i, vT + i, vT + 4 + i, None, None, sMask2 + 2 * i) for i in range(4)]
    c0 = 2.0 ** -KSH
    vZero, vOne, vXw, vXrd, vTw, vInv = vX + 5, vX + 6, vX + 7, vX + 8, vX + 9, vX + 10
    vDa, vBx, vBt, vBs, vAt, vPa, vE = vX + 12, vX + 14, vX + 15, vX + 17, vX + 18, vX + 19, vX + 20
    vSw, vSr = vX + 16, vD + 39
    pD, pS, pA, pR, pC, pB, pG = vD, vD + 4, vD + 8, vD + 12, vD + 16, vD + 20, vD + 24
    vm = []

    def younger(name):
        return len(vm) - 1 - max(i for i, x in enumerate(vm) if x == name)

    def w_dma(lo, hi):
        for i in range(lo, hi):
            if i == lo or i % 4 == 0:
                A(f"s_add_u32 m0, s{sWm + ((i >> 2) & 1)}, {(L_R1, L_R2)[i >> 3]}")
                A("s_nop 0")
            A(f"buffer_load_dwordx4 v{vDa + ((i >> 1) & 1)}, {sr((S_W, S_W2)[i >> 3], 4)}, s{sWo + ((i >> 2) & 1)} "
              f"offen offset:{1024 * (i & 3)} lds")
            vm.append(("wbv", "wau")[i >> 3])

    A(f"{NAME}_kernel:")
    A("s_cmp_ge_u32 s2, 256")
    A("s_cbranch_scc1 Lk2_exit")
    stamp(A, opt, 0)
    load_kernargs(A)
    A(f"""
    s_memrealtime {sr(sNon, 2)}
    s_getpc_b64 s[{sTmp}:{sTmp + 1}]
    v_lshlrev_b32 v1, 7, v0
    v_cmp_gt_u32 vcc, Lslow_entry - {NAME}_kernel, v1
    s_and_saveexec_b64 {sr(sNext, 2)}, vcc
    s_cbranch_execz Lno_cpf
    global_load_dword v2, v1, s[{sTmp}:{sTmp + 1}]
    Lno_cpf:
    s_mov_b64 exec, -1
    v_mov_b32 v{vZero}, 0
    v_lshlrev_b32 v{vX + 11}, 2, v0
    ds_write_b32 v{vX + 11}, v{vZero} offset:{L_FLAG}
    ds_write_b32 v{vX + 11}, v{vZero} offset:{L_CNT}
    v_lshrrev_b32 v{vX}, 6, v0
    v_lshlrev_b32 v{vX + 2}, 4, v0
    v_readfirstlane_b32 s{sW}, v{vX}
    s_movk_i32 s3, {CH // 4}
    s_cmp_eq_u32 s2, {NCH - 1}
    s_cselect_b32 s3, {(E - (NCH - 1) * CH) // 4}, s3
    v_cmp_gt_u32_e64 {sr(sPM, 2)}, s3, v0
    s_mul_i32 s{sQ1}, s2, {CH * 4}
    s_mov_b32 s{S_DST + 2}, {E * 4}
    s_mov_b32 s{S_DST + 3}, 0x20000
    s_mov_b32 s{S_SRC + 2}, {E * 4}
    s_mov_b32 s{S_SRC + 3}, 0x20000
    s_and_b32 s3, s2, 7
    s_lshl_b32 s3, s3, 5
    s_lshr_b32 s{sBk}, s2, 3
    s_add_u32 s{sBk}, s{sBk}, s3
    s_mul_i32 s{sN0}, s{sBk}, {NPB}
    v_mov_b32 v{vTid}, v0
    v_and_b32 v{vX + 3}, 0x3f0, v{vX + 2}
    v_bfe_u32 v{vX + 1}, v0, 4, 2
    v_lshlrev_b32 v{vX + 4}, 6, v{vX + 1}
    v_xor_b32 v{vDa}, v{vX + 3}, v{vX + 4}
    v_xor_b32 v{vDa + 1}, 32, v{vDa}
    s_lshl_b32 s{sWm}, s{sW}, 13
    s_add_u32 s{sWm + 1}, s{sWm}, 4096
    s_and_b32 s{sWo}, s{sWm}, 0x7fff
    s_add_u32 s{sWo + 1}, s{sWo}, 4096
    s_lshl_b32 s{sTmp}, s{sN0}, 8
    s_add_u32 s{sTmp + 1}, s{sTmp}, 8192
    s_mov_b64 exec, {sr(sPM, 2)}
    s_waitcnt lgkmcnt(0)
    s_cbranch_execz Lp_nold
    s_mov_b64 {sr(S_DST, 2)}, {sr(P_DST, 2)}
    s_mov_b64 {sr(S_SRC, 2)}, {sr(P_SRC, 2)}
    buffer_load_dwordx4 {vr(pD, 4)}, v{vX + 2}, {sr(S_DST, 4)}, s{sQ1} offen
    buffer_load_dwordx4 {vr(pS, 4)}, v{vX + 2}, {sr(S_SRC, 4)}, s{sQ1} offen
    Lp_nold:
    s_mov_b64 exec, -1
    s_barrier
    """)
    vm.append("dst")
    srd(A, S_DBG, P_DBG, 256)
    A(f"""
    s_xor_b32 s3, s{sW}, 7
    s_or_b32 s3, s3, s2
    s_cbranch_scc1 Lno_nonce
    s_or_b32 s3, s{sNon}, 1
    v_mov_b32 v{vNon}, s3
    v_mov_b32 v{vNon + 1}, s{sNon + 1}
    s_mov_b64 exec, 1
    buffer_store_dwordx2 {vr(vNon, 2)}, v{vZero}, {sr(S_DBG, 4)}, 0 offen sc1
    s_mov_b64 exec, -1
    Lno_nonce:
    """)
    srd(A, S_X, P_X, N * 256)
    for i in range(2):
        A(f"buffer_load_dwordx4 {vr(vXs + 4 * i, 4)}, v{vX + 2}, {sr(S_X, 4)}, s{sTmp + i} offen")
        vm.append("x")
    A(f"""
    s_cmp_lt_u32 s{sW}, 4
    s_cselect_b32 s{S_W}, s{P_WB}, s{P_WV}
    s_cselect_b32 s{S_W + 1}, s{P_WB + 1}, s{P_WV + 1}
    s_cselect_b32 s{S_W2}, s{P_WA}, s{P_WU}
    s_cselect_b32 s{S_W2 + 1}, s{P_WA + 1}, s{P_WU + 1}
    s_mov_b32 s{S_W + 2}, 32768
    s_mov_b32 s{S_W + 3}, 0x20000
    s_mov_b32 s{S_W2 + 2}, 32768
    s_mov_b32 s{S_W2 + 3}, 0x20000
    """)
    w_dma(0, n1)
    srd(A, S_WC, P_WC, 4096)
    srd(A, S_REC, P_WS, NCH * CH * 4, REC_OFF)
    srd(A, S_OFFS, P_WS, TF_OFF + 2048, OFF_OFF)
    srd(A, S_TAB, P_WS, TAB_BYTES + 512, TAB_OFF)
    srd(A, S_EA, P_EA, 0 if opt.get("noea") else E * 32)
    srd(A, S_OUT, P_OUT, N * 256)
    A(f"""
    s_lshl_b32 s3, s{sN0}, 9
    s_add_u32 s{S_TW}, s{P_WS}, s3
    s_addc_u32 s{S_TW + 1}, s{P_WS + 1}, 0
    s_sub_u32 s3, {TAB_BYTES}, s3
    s_min_u32 s{S_TW + 2}, s3, {NPB * 512}
    s_mov_b32 s{S_TW + 3}, 0x20000
    s_mov_b32 s{sNl}, {hex(f32(NLOG2E))}
    s_mov_b32 s{sC0}, {hex(f32(c0))}
    s_mov_b32 s{sC0 + 1}, {hex(f32(c0))}
    s_mov_b32 s{sW0}, 0
    s_mov_b32 s{sQ2}, 85599
    s_mov_b32 s{sQ3}, {-NPB}
    v_mov_b32 v{vOne}, 1
    v_lshrrev_b32 v{vX + 11}, 4, v{vTid}
    v_lshl_add_u32 v{vXw}, v{vX + 11}, 4, v{vX + 2}
    v_add_u32 v{vXw}, {L_X}, v{vXw}
    v_and_b32 v{vLo}, 0x1f0, v{vX + 2}
    v_bfe_u32 v{vX + 4}, v{vTid}, 5, 1
    v_mov_b32 v{vLo + 1}, v{vLo}
    v_lshlrev_b32 v{vH16}, 4, v{vX + 4}
    s_lshr_b32 s{sTmp}, s{sW}, 2
    s_and_b32 s{sTmp + 1}, s{sW}, 3
    v_bfe_u32 v{vX + 11}, v{vTid}, 2, 2
    v_xor_b32 v{vE}, s{sTmp + 1}, v{vX + 11}
    v_lshlrev_b32 v{vE}, 6, v{vE}
    v_and_b32 v{vE + 1}, 3, v{vTid}
    v_lshl_add_u32 v{vE}, v{vE + 1}, 3, v{vE}
    v_lshl_add_u32 v{vE}, v{vX + 11}, 8, v{vE}
    v_and_b32 v{vE + 1}, 1, v{vX + 1}
    v_xor_b32 v{vE + 1}, v{vE + 1}, v{vX + 4}
    v_lshl_add_u32 v{vE}, v{vE + 1}, 5, v{vE}
    v_lshl_add_u32 v{vE}, v{vX + 4}, 11, v{vE}
    v_add_u32 v{vBt}, {L_R1}, v{vE}
    s_lshl_b32 s3, s{sTmp}, 15
    s_add_u32 s3, s3, {L_R2}
    v_add_u32 v{vAt}, s3, v{vE}
    v_and_b32 v{vX + 11}, 31, v{vTid}
    v_mul_u32_u24 v{vXrd}, 272, v{vX + 11}
    s_mov_b32 s3, {L_X}
    v_add3_u32 v{vXrd}, v{vXrd}, v{vH16}, s3
    s_mul_i32 s3, s{sTmp}, {32 * 272}
    v_add_u32 v{vBx}, s3, v{vXrd}
    s_mul_i32 s3, s{sW}, 4608
    s_add_u32 s3, s3, {L_R1}
    v_mul_u32_u24 v{vSw}, 144, v{vX + 11}
    v_add3_u32 v{vSw}, v{vSw}, v{vH16}, s3
    v_bfe_u32 v{vE}, v{vTid}, 3, 3
    v_lshl_add_u32 v{vSr}, v{vE}, 4, v{vX + 3}
    v_add_u32 v{vSr}, s3, v{vSr}
    v_and_b32 v{vE + 1}, 0x70, v{vX + 3}
    v_lshl_add_u32 v{vBs}, v{vE}, 9, v{vE + 1}
    s_lshl_b32 s3, s{sTmp}, 7
    s_add_u32 s3, s3, s{sTmp + 1}
    s_lshl_b32 s3, s3, 7
    v_add_u32 v{vBs}, s3, v{vBs}
    v_mul_u32_u24 v{vTw}, 528, v{vX + 11}
    s_mul_i32 s3, s{sTmp}, {L_TU - L_TA}
    s_lshl_b32 s{sTmp + 1}, s{sTmp + 1}, 7
    s_add_u32 s3, s3, s{sTmp + 1}
    s_add_u32 s3, s3, {L_TA}
    v_add3_u32 v{vTw}, v{vTw}, v{vH16}, s3
    v_lshrrev_b32 v{vPa}, 1, v{vTid}
    v_lshlrev_b32 v{vPa}, 11, v{vPa}
    v_lshlrev_b32 v{vE}, 8, v{vTid}
    v_add_u32 v{vE + 1}, 64, v{vE}
    v_add_u32 v{vE + 2}, 0x80, v{vE}
    v_add_u32 v{vE + 3}, 0xc0, v{vE}
    """)
    stamp(A, opt, "iss")

    def scan_wait_work():
        A(f"buffer_load_dwordx2 {vr(vNon, 2)}, v{vZero}, {sr(S_DBG, 4)}, 0 offen sc1")
        vm.append("non")
        w_dma(n1, n2)
        A(f"s_waitcnt vmcnt({younger('x')})")
        A(f"ds_write_b128 v{vXw}, {vr(vXs, 4)}")
        A(f"s_cmp_lt_u32 s{sW}, 5")
        A("s_cselect_b64 exec, -1, 0")
        A(f"ds_write_b128 v{vXw}, {vr(vXs + 4, 4)} offset:{32 * 272}")
        A("s_mov_b64 exec, -1")

    A(f"""
    s_cmp_eq_u32 s{sW}, 7
    s_cbranch_scc1 Lp_scanner
    s_mov_b64 exec, {sr(sPM, 2)}
    s_waitcnt vmcnt({younger('dst')})
    """)
    stamp(A, opt, "dst")
    for i in range(4):
        A(f"v_mul_u32_u24 v{pC + i}, s{sQ2}, v{pD + i}")
    for i in range(4):
        A(f"v_lshrrev_b32 v{pC + i}, 22, v{pC + i}")
        A(f"v_lshlrev_b32 v{pA + i}, 2, v{pC + i}")
        A(f"ds_add_rtn_u32 v{pR + i}, v{pA + i}, v{vOne} offset:{P_CNT}")
    for i in range(4):
        A(f"v_lshl_or_b32 v{pS + i}, v{pS + i}, 18, v{vE + i}")
        A(f"v_mad_i32_i24 v{pD + i}, v{pC + i}, s{sQ3}, v{pD + i}")
    A("s_waitcnt lgkmcnt(0)")
    A("s_barrier")
    stamp(A, opt, "b2")
    for i in range(4):
        A(f"v_or_b32 v{pS + i}, v{pS + i}, v{pD + i}")
    A("s_mov_b64 exec, -1")
    mark = list(vm)
    scan_wait_work()
    A("s_branch Lp_scanned")
    A("Lp_scanner:")
    vm[:] = mark
    scan_wait_work()
    A(f"""
    s_setprio 3
    s_barrier
    ds_read_b128 {vr(pC, 4)}, v{vX + 3} offset:{P_CNT}
    s_waitcnt lgkmcnt(0)
    v_add_u32 v{pB + 2}, v{pC}, v{pC + 1}
    v_add3_u32 v{pG + 1}, v{pB + 2}, v{pC + 2}, v{pC + 3}
    v_add_u32 v{pB + 3}, v{pB + 2}, v{pC + 2}
    v_mov_b32 v{pG}, v{pG + 1}
    """)
    wave_scan(A, pG + 1, first_nop=0)
    A(f"""
    v_sub_u32 v{pB}, v{pG + 1}, v{pG}
    v_add_u32 v{pB + 1}, v{pB}, v{pC}
    v_add_u32 v{pB + 2}, v{pB}, v{pB + 2}
    v_add_u32 v{pB + 3}, v{pB}, v{pB + 3}
    ds_write_b128 v{vX + 3}, {vr(pB, 4)} offset:{P_BASE}
    s_setprio 0
    s_waitcnt lgkmcnt(0)
    Lp_scanned:
    s_barrier
    """)
    stamp(A, opt, "scan")
    A(f"s_mov_b64 exec, {sr(sPM, 2)}")
    A("s_cbranch_execz Lp_p2")
    for i in range(4):
        A(f"ds_read_b32 v{pA + i}, v{pA + i} offset:{P_BASE}")
    for i in range(4):
        A("s_waitcnt lgkmcnt(3)")
        A(f"v_add_lshl_u32 v{pA + i}, v{pA + i}, v{pR + i}, 2")
        A(f"ds_write_b32 v{pA + i}, v{pS + i} offset:{P_SORT}")
    A("Lp_p2:")
    A("s_mov_b64 exec, -1")
    w_dma(n2, n3)
    A("s_waitcnt lgkmcnt(0)")
    A("s_barrier")
    stamp(A, opt, "b3")
    A(f"""
    ds_read_b128 {vr(pD, 4)}, v{vX + 2} offset:{P_SORT}
    v_lshrrev_b32 v{vX + 11}, 1, v{vX + 2}
    v_and_b32 v{vX + 11}, 0x3ff, v{vX + 11}
    ds_read_b64 {vr(pC, 2)}, v{vX + 11} offset:{P_CNT}
    ds_read_b64 {vr(pB, 2)}, v{vX + 11} offset:{P_BASE}
    s_mov_b64 exec, {sr(sPM, 2)}
    s_cbranch_execz Lp_out
    s_waitcnt lgkmcnt(2)
    buffer_store_dwordx4 {vr(pD, 4)}, v{vX + 2}, {sr(S_REC, 4)}, s{sQ1} offen sc1
    Lp_out:
    s_mov_b64 exec, -1
    """)
    wbv_wait = younger("wbv") if n3 >= 8 else None
    vm.append("rec")
    w_dma(n3, 16)
    A(f"""
    s_lshl_b32 s3, s{sW}, 9
    s_add_u32 m0, s3, {L_WCR}
    s_mov_b32 exec_hi, 0
    buffer_load_dwordx4 v{vX + 3}, {sr(S_WC, 4)}, s3 offen lds
    s_mov_b32 exec_hi, -1
    """)
    vm.append("wc")
    A(f"s_waitcnt vmcnt({younger('wbv') - (1 if wbv_wait is not None else 0)})")
    A("s_barrier")
    stamp(A, opt, "b3b")

    bB, bV, bO = 48, 64, 80

    def bv_reads(s):
        r = 12 * (s & 3)
        A(f"ds_read_b128 {vr(r + 8, 4)}, v{vBx} offset:{32 * s}")
        for m in range(2):
            for z in range(2):
                A(f"ds_read_b64_tr_b16 {vr(r + 4 * m + 2 * z, 2)}, v{vBt} offset:{m * 32768 + s * 4096 + z * 1024}")

    for s in range(3):
        bv_reads(s)
    for s in range(8):
        r = 12 * (s & 3)
        A(f"s_waitcnt lgkmcnt({5 * min(2, 7 - s)})")
        for m in range(2):
            d = (bB, bV)[m]
            A(f"v_mfma_f32_32x32x16_bf16 {vr(d, 16)}, {vr(r + 4 * m, 4)}, {vr(r + 8, 4)}, {'0' if s == 0 else vr(d, 16)}")
        if s + 3 < 8:
            bv_reads(s + 3)
    stamp(A, opt, "bvm")
    A(f"""
    s_mov_b32 s{sTi}, 0
    Lnonce_check:
    v_readfirstlane_b32 s{sNon}, v{vNon}
    v_readfirstlane_b32 s{sNon + 1}, v{vNon + 1}
    s_add_u32 s{sTi}, s{sTi}, 1
    s_cmp_lg_u32 s{sNon}, 0
    s_cbranch_scc1 Lnonce_ok
    buffer_load_dwordx2 {vr(vNon, 2)}, v{vZero}, {sr(S_DBG, 4)}, 0 offen sc1
    s_cmp_lt_u32 s{sTi}, {SPIN_MAX}
    s_waitcnt vmcnt(0)
    s_cbranch_scc1 Lnonce_check
    Lnonce_ok:
    s_and_b32 s{sNon + 1}, s{sNon + 1}, 0x3ff
    s_lshl_b32 s3, s{sNon + 1}, 22
    v_lshl_or_b32 v{pG}, v{pC}, 11, v{pB}
    v_lshl_or_b32 v{pG + 2}, v{pC + 1}, 11, v{pB + 1}
    v_or_b32 v{pG}, s3, v{pG}
    v_or_b32 v{pG + 2}, s3, v{pG + 2}
    v_mov_b32 v{pG + 1}, s{sNon}
    v_mov_b32 v{pG + 3}, s{sNon}
    s_lshl_b32 s3, s2, 11
    s_cmp_ge_u32 s{sW}, 2
    s_waitcnt vmcnt(0)
    s_barrier
    s_cbranch_scc1 Lno_off
    buffer_store_dwordx4 {vr(pG, 4)}, v{vX + 2}, {sr(S_OFFS, 4)}, s3 offen sc1
    Lno_off:
    """)
    stamp(A, opt, "sig")
    for g in range(4):
        for i in range(4 * g, 4 * g + 4):
            A(f"v_fma_mixlo_f16 v{bV + i}, v{bB + i}, s{sNl}, 0")
        A(f"ds_write_b128 v{vSw}, {vr(bV + 4 * g, 4)} offset:{32 * g}")
    for i in range(4):
        A(f"ds_read_b128 {vr(bO + 4 * i, 4)}, v{vSr} offset:{1152 * i}")
    A(f"""
    s_or_b32 s3, s2, s{sW}
    s_cbranch_scc1 Lno_pad
    v_mov_b32 v{vE}, 0x7c00
    v_mov_b32 v{vE + 1}, 0x7c00
    v_lshrrev_b32 v{vE + 2}, 1, v{vX + 3}
    s_mov_b32 s3, {TAB_BYTES}
    buffer_store_dwordx2 {vr(vE, 2)}, v{vE + 2}, {sr(S_TAB, 4)}, s3 offen sc1
    Lno_pad:
    s_mov_b32 s3, 0
    s_lshl_b32 s{sQ1}, s{sBk}, 3
    """)
    for s in range(4):
        A(f"s_waitcnt lgkmcnt({3 + 2 * s})")
        A(f"buffer_store_dwordx4 {vr(bO + 4 * s, 4)}, v{vBs}, {sr(S_TW, 4)}, s3 offen sc1")
        A("s_add_u32 s3, s3, 4096")
        for z in range(2):
            A(f"ds_read_b64_tr_b16 {vr(vWf + 4 * s + 2 * z, 2)}, v{vAt} offset:{s * 4096 + z * 1024}")
        A(f"ds_read_b128 {vr(vXf + 4 * s, 4)}, v{vXrd} offset:{32 * s}")
    stamp(A, opt, "bve")
    if opt.get("notab"):
        A(f"s_mov_b32 s{S_TAB + 2}, 0")
    poll = f"buffer_load_dwordx2 {vr(vOffs, 2)}, v{vPa}, {sr(S_OFFS, 4)}, s{sQ1} offen sc1"

    for k in range(16):
        nb, s = k >> 3, k & 7
        if k == poll_at:
            A(poll)
        A(f"s_waitcnt lgkmcnt({9 if k < 5 else (7, 5, 3)[k - 5] if k < 8 else min(3, 15 - k)})")
        cc = "0" if s == 0 else vr(vG + 16 * nb, 16)
        A(f"v_mfma_f32_32x32x16_bf16 {vr(vG + 16 * nb, 16)}, {vr(vWf + 4 * s, 4)}, {vr(vXf + 4 * (k & 7), 4)}, {cc}")
        kn = k + 4
        if kn < 8:
            for z in range(2):
                A(f"ds_read_b64_tr_b16 {vr(vWf + 4 * kn + 2 * z, 2)}, v{vAt} offset:{kn * 4096 + z * 1024}")
        if kn < 16:
            A(f"ds_read_b128 {vr(vXf + 4 * (kn & 7), 4)}, v{vXrd} offset:{32 * 272 * (kn >> 3) + 32 * (kn & 7)}")
    if poll_at >= 16:
        A(poll)
    stamp(A, opt, "aum")

    def tag_wait(name, v, reload):
        A(f"""
        s_mov_b32 s{sTi}, 0
        L{name}_check:
        v_lshrrev_b32 v{vX + 11}, 22, v{v}
        v_cmp_ne_u32_e64 {sr(sTmp, 2)}, s{sNon}, v{v + 1}
        v_cmp_ne_u32 vcc, s{sNon + 1}, v{vX + 11}
        s_add_u32 s{sTi}, s{sTi}, 1
        s_or_b64 vcc, vcc, {sr(sTmp, 2)}
        s_cbranch_scc0 L{name}_ok
        {reload}
        s_cmp_lt_u32 s{sTi}, {SPIN_MAX}
        s_waitcnt vmcnt(0)
        s_cbranch_scc1 L{name}_check
        L{name}_ok:
        """)

    def batch_masks(window):
        A(f"""
        v_bfe_u32 v{vX}, v{vOffs}, 11, 11
        v_and_b32 v{vX + 1}, 1, v{vTid}
        v_subrev_u32 v{vX}, s{sW0}, v{vX}
        v_lshlrev_b32 v{vX + 1}, 2, v{vX + 1}
        v_cmp_lt_i32_e64 {sr(sMore, 2)}, {window}, v{vX}
        v_sub_u32 v{vX}, v{vX}, v{vX + 1}
        """)
        for i in range(window // 2):
            A(f"v_cmp_lt_i32_e64 {sr((cand + cand2)[i][5], 2)}, {(i & 3) + 8 * (i >> 2)}, v{vX}")

    def rec_addr():
        A(f"""
        v_lshrrev_b32 v{vX + 2}, 1, v{vTid}
        v_and_b32 v{vX + 1}, 1, v{vTid}
        v_mul_u32_u24 v{vX + 2}, {CH}, v{vX + 2}
        v_lshl_add_u32 v{vX + 1}, v{vX + 1}, 2, s{sW0}
        v_add_u32 v{vX + 1}, v{vX + 1}, v{vX + 2}
        v_lshlrev_b32 v{vX + 2}, 5, v{vX + 2}
        """)
        for i in range(0, 8, 2):
            A(f"v_mov_b64 {vr(vKey + i, 2)}, 0")

    def rec_loads():
        A(f"""
        v_and_b32 v{vX + 4}, 0x7ff, v{vOffs}
        v_add_lshl_u32 v{vX + 4}, v{vX + 4}, v{vX + 1}, 2
        buffer_load_dwordx4 {vr(vRec, 4)}, v{vX + 4}, {sr(S_REC, 4)}, 0 offen sc1
        buffer_load_dwordx4 {vr(vRec + 4, 4)}, v{vX + 4}, {sr(S_REC, 4)}, 0 offen offset:32 sc1
        """)

    def histogram(cs):
        for rec, key, rank, so_, eo_, m in cs:
            A(f"s_mov_b64 exec, {sr(m, 2)}")
            A(f"v_alignbit_b32 v{key}, v{rec}, v{rec}, 27")
            A(f"v_and_b32 v{key}, 0x7fc, v{key}")
            A(f"ds_add_rtn_u32 v{rank}, v{key}, v{vOne} offset:{L_CNT}")
        A("s_mov_b64 exec, -1")

    def place(cs):
        for rec, key, rank, so_, eo_, m in cs:
            A(f"s_mov_b64 exec, {sr(m, 2)}")
            A(f"v_lshl_add_u32 v{key}, v{rank}, 3, v{key}")
            A(f"ds_write2_b32 v{key}, v{rec}, v{vX + 2} offset0:0 offset1:1")
        A("s_mov_b64 exec, -1")

    rec_addr()
    A("s_waitcnt vmcnt(1)")
    A("s_barrier")
    stamp(A, opt, "b5")
    A(f"""
    s_cmp_lg_u32 s{sW}, 7
    s_cbranch_scc1 Lno_tf
    s_lshl_b32 s{sTmp + 1}, s2, 3
    s_add_u32 s{sTmp + 1}, s{sTmp + 1}, {TF_OFF}
    s_mov_b64 exec, 1
    buffer_store_dwordx2 {vr(pG, 2)}, v{vZero}, {sr(S_OFFS, 4)}, s{sTmp + 1} offen sc1
    s_mov_b64 exec, -1
    s_waitcnt vmcnt(1)
    s_branch Ltf_sent
    Lno_tf:
    s_waitcnt vmcnt(0)
    Ltf_sent:
    """)
    tag_wait("off", vOffs, poll)
    stamp(A, opt, "off")
    rec_loads()
    batch_masks(24)
    tf_poll = f"buffer_load_dwordx2 {vr(vTf, 2)}, v{vPa}, {sr(S_OFFS, 4)}, s{sQ1} offen sc1"
    vRaw = vL
    A(f"""
    s_cmp_eq_u64 {sr(sMask2, 2)}, 0
    s_cbranch_scc1 Lno_rec2
    buffer_load_dwordx4 {vr(cand2[0][0], 4)}, v{vX + 4}, {sr(S_REC, 4)}, 0 offen offset:64 sc1
    v_mov_b64 {vr(cand2[0][1], 2)}, 0
    v_mov_b64 {vr(cand2[2][1], 2)}, 0
    Lno_rec2:
    v_lshrrev_b32 v{vPa}, 1, v{vLo}
    v_lshl_add_u32 v{vX + 11}, v{vH16}, 7, v{vPa}
    v_add_u32 v{vX + 11}, {L_WCR}, v{vX + 11}
    """)
    for i in range(8):
        A(f"ds_read_b64 {vr(vRaw + 2 * i, 2)}, v{vX + 11} offset:{256 * i}")
    A(f"""
    s_lshl_b32 s{sQ1}, s{sW}, 8
    s_add_u32 s{sQ1}, s{sQ1}, {TF_OFF}
    s_mov_b64 vcc, {sr(sMore, 2)}
    s_cmp_ge_u32 s{sW}, 4
    s_cbranch_scc1 Lu_wave
    v_mov_b32 v{vXs}, {hex(f32(-float(KSH)))}
    v_mov_b32 v{vXs + 1}, {hex(f32(-float(KSH)))}
    v_mov_b32 v{vXs + 2}, 0
    s_mov_b32 s{sTmp}, s{sNl}
    s_mov_b32 s{sTmp + 1}, s{sNl}
    """)
    for i in range(0, 32, 2):
        if i == 16:
            A("s_mov_b32 exec_lo, 0xfffff")
            A("s_mov_b32 exec_hi, 0xfffff")
        A(f"v_max3_f32 v{vXs + 2}, |v{vG + i}|, |v{vG + i + 1}|, v{vXs + 2}")
        A(f"v_pk_fma_f32 {vr(vG + i, 2)}, {vr(vG + i, 2)}, {sr(sTmp, 2)}, {vr(vXs, 2)}")
    A("s_mov_b64 exec, -1")
    A(f"v_cmp_lt_f32 vcc, {hex(f32(AMAX))}, v{vXs + 2}")
    A(f"s_or_b64 vcc, vcc, {sr(sMore, 2)}")
    A("Lu_wave:")
    for nb in range(2):
        if nb == 1:
            A("s_mov_b32 exec_lo, 0xfffff")
            A("s_mov_b32 exec_hi, 0xfffff")
        for g in range(4):
            A(f"ds_write_b128 v{vTw}, {vr(vG + 16 * nb + 4 * g, 4)} offset:{32 * 528 * nb + 32 * g}")
    A("s_mov_b64 exec, vcc")
    A(f"ds_write_b32 v{vZero}, v{vOne} offset:{L_FLAG}")
    A("s_mov_b64 exec, -1")
    A(tf_poll)
    la = vSoff
    A(f"""
    s_mul_i32 s{sSW}, s{sW}, {STRW}
    s_add_u32 s{sSW}, s{sSW}, {L_STR}
    v_add_u32 v{vSp}, s{sSW}, v{vH16}
    v_bfe_u32 v{vX + 12}, v{vTid}, 3, 2
    v_bfe_u32 v{vX + 13}, v{vTid}, 1, 1
    v_lshl_add_u32 v{vX + 12}, v{vX + 12}, 1, v{vX + 13}
    v_bfe_u32 v{vX + 13}, v{vTid}, 2, 1
    v_lshl_add_u32 v{vX + 12}, v{vX + 12}, 1, v{vX + 13}
    v_and_b32 v{vX + 13}, 1, v{vTid}
    v_lshl_add_u32 v{vX + 12}, v{vX + 12}, 1, v{vX + 13}
    v_lshl_add_u32 v{vEp}, v{vX + 12}, 2, s{sSW}
    v_bfrev_b32 v{vX + 13}, 2
    ds_write_b32 v{vEp}, v{vX + 13} offset:{1152 + 1024}
    v_mov_b32 v{vX + 12}, {N << 18}
    v_lshlrev_b32 v{la}, 1, v{vX + 3}
    v_lshlrev_b32 v{la + 1}, 3, v{vX + 3}
    v_lshrrev_b32 v{la + 2}, 4, v{vX + 3}
    v_lshl_add_u32 v{la + 3}, v{la + 2}, 2, s{sSW}
    s_mov_b32 s3, 0x05040100
    s_mov_b32 s{sTmp}, 0x07060302
    s_waitcnt lgkmcnt(0)
    """)
    for j in range(4):
        for i in range(4):
            A(f"v_perm_b32 v{vWC + 4 * j + i}, v{vRaw + 2 * (2 * i + 1) + (j >> 1)}, v{vRaw + 2 * (2 * i) + (j >> 1)}, "
              f"s{(3, sTmp)[j & 1]}")
    zero_ops = [f"v_mov_b64 {vr(vSl + 12 * s + j, 2)}, 0" for s in range(NS) for j in range(0, 8, 2)]
    nz = int(opt.get("nz", 0))
    for o in zero_ops[:nz]:
        A(o)
    A("s_waitcnt vmcnt(1)")
    stamp(A, opt, "rec")
    histogram(cand)
    A(f"s_cmp_eq_u64 {sr(sMask2, 2)}, 0")
    A("s_cbranch_scc1 Lno_hist2")
    histogram(cand2)
    A("Lno_hist2:")
    A("s_waitcnt vmcnt(0)")
    stamp(A, opt, "hist")
    tag_wait("tf", vTf, tf_poll)
    A("s_waitcnt lgkmcnt(0)")
    A("s_barrier")
    stamp(A, opt, "bB")
    c, p, deg, q, inc, g4 = vL, vL + 8, vL + 16, vL + 17, vL + 18, vL + 19
    A(f"ds_read_b128 {vr(c, 4)}, v{la} offset:{L_CNT}")
    A(f"ds_read_b128 {vr(c + 4, 4)}, v{la} offset:{L_CNT + 16}")
    if pf_lanes:
        A(f"""
        s_andn2_b32 s3, s2, 7
        s_add_u32 s3, s3, s{sW}
        s_mul_i32 s3, s3, {pf_lanes * 128}
        {'s_nop 0' if pf_lanes == 64 else f's_bfm_b64 exec, {pf_lanes}, 0'}
        buffer_load_dword v{vL + 22}, v{la + 1}, {sr(S_TAB, 4)}, s3 offen {tab_pol}
        s_mov_b64 exec, -1
        """)
    A(f"""
    s_mov_b32 s{sQ2}, {L_SO}
    s_waitcnt lgkmcnt(1)
    v_add_u32 v{p + 2}, v{c}, v{c + 1}
    v_add3_u32 v{p + 4}, v{p + 2}, v{c + 2}, v{c + 3}
    s_waitcnt lgkmcnt(0)
    v_add3_u32 v{p + 6}, v{p + 4}, v{c + 4}, v{c + 5}
    v_add3_u32 v{deg}, v{p + 6}, v{c + 6}, v{c + 7}
    v_add_u32 v{q}, 3, v{deg}
    v_lshrrev_b32 v{inc}, 2, v{q}
    """)
    wave_scan(A, inc, fill=[
        [f"v_lshrrev_b32 v{q}, 2, v{q}", f"v_add_u32 v{p + 3}, v{p + 2}, v{c + 2}"],
        [f"v_add_u32 v{p + 5}, v{p + 4}, v{c + 4}", f"v_add_u32 v{p + 7}, v{p + 6}, v{c + 6}"],
        [f"v_add_u32 v{deg}, s{sW}, v{deg}", f"v_lshlrev_b32 v{c + 1}, 2, v{q}"],
        [f"v_cmp_lt_u32_e64 {sr(sNext, 2)}, v{deg}, v{c + 1}", "s_nop 0"]])
    A(f"v_sub_u32 v{g4}, v{inc}, v{q}")
    A(f"v_readlane_b32 s3, v{inc}, 63")
    A(f"v_lshl_add_u32 v{p}, v{g4}, 5, s{sQ2}")
    A(f"v_lshl_add_u32 v{p + 1}, v{c}, 3, v{p}")
    for i in range(2, 8):
        A(f"v_lshl_add_u32 v{p + i}, v{p + i}, 3, v{p}")
        if i in (3, 7):
            A(f"ds_write_b128 v{la}, {vr(p + i - 3, 4)} offset:{L_BASE + 4 * (i - 3)}")
    for cd in cand:
        A(f"ds_read_b32 v{cd[1]}, v{cd[1]} offset:{L_BASE}")
    A(f"""
    s_mul_i32 s{sLw}, s3, s{sW}
    s_add_u32 s{sRem}, s{sLw}, s3
    s_lshr_b32 s{sLw}, s{sLw}, 3
    s_lshr_b32 s{sRem}, s{sRem}, 3
    v_cmp_gt_u32_e64 {sr(sTmp, 2)}, s{sLw}, v{g4}
    v_cmp_gt_u32 vcc, s{sRem}, v{g4}
    v_lshl_add_u32 v{deg}, v{deg}, 3, v{p}
    s_bcnt1_i32_b64 s{sF0}, {sr(sTmp, 2)}
    s_bcnt1_i32_b64 s{sOwn}, vcc
    s_cmp_eq_u32 s{sW}, 7
    s_cselect_b32 s{sOwn}, {NPB}, s{sOwn}
    s_sub_u32 s{sOwn}, s{sOwn}, s{sF0}
    s_sub_u32 s{sRem}, s{sRem}, s{sLw}
    s_waitcnt lgkmcnt(0)
    """)
    stamp(A, opt, "scan2")
    place(cand)
    A(f"s_cmp_eq_u64 {sr(sMask2, 2)}, 0")
    A("s_cbranch_scc1 Lno_place2")
    for cd in cand2:
        A(f"ds_read_b32 v{cd[1]}, v{cd[1]} offset:{L_BASE}")
    A("s_waitcnt lgkmcnt(0)")
    place(cand2)
    A("Lno_place2:")
    en, so, eo, key, cn, pos, t = vL, vL + 8, vL + 12, vL + 20, vL + 24, vL + 21, vL + 26
    A(f"""
    s_mov_b64 exec, {sr(sNext, 2)}
    ds_write_b64 v{deg}, {vr(vX + 12, 2)}
    s_sub_u32 s3, s{sOwn}, 1
    s_sub_u32 s{sTmp}, s{sRem}, 1
    s_lshr_b32 s3, s3, 3
    s_lshr_b32 s{sTmp}, s{sTmp}, 6
    s_or_b32 s3, s3, s{sTmp}
    s_cselect_b64 exec, 1, 0
    ds_write_b32 v{vZero}, v{vOne} offset:{L_FLAG}
    s_mov_b64 exec, -1
    s_lshl_b32 s3, s{sLw}, 5
    v_add_u32 v{t}, s3, v{la}
    v_cmp_le_u32_e64 {sr(sTmp, 2)}, s{sRem}, v{la + 2}
    s_sub_u32 s{sQ1}, s{sF0}, 1
    s_mul_i32 s{sQ2}, s{sQ1}, 528
    s_add_u32 s{sQ2}, s{sQ2}, {L_TA}
    s_mov_b32 s{sQ3}, 0xfffffe00
    s_waitcnt lgkmcnt(0)
    s_barrier
    ds_read_b128 {vr(en, 4)}, v{t} offset:{L_SO}
    ds_read_b32 v{t + 3}, v{vZero} offset:{L_FLAG}
    ds_read_b128 {vr(en + 4, 4)}, v{t} offset:{L_SO + 16}
    v_cndmask_b32_e64 v{vInv}, 0, v{vX + 13}, {sr(sTmp, 2)}
    v_add_u32 v{vT + 5}, s{sQ2}, v{vLo}
    v_mov_b64 {vr(cn, 2)}, 1
    s_waitcnt lgkmcnt(2)
    v_lshrrev_b32 v{key}, 26, v{en + 2}
    v_and_b32 v{key}, 56, v{key}
    v_cndmask_b32_e64 v{key}, v{key}, 56, {sr(sTmp, 2)}
    s_waitcnt lgkmcnt(1)
    v_readfirstlane_b32 s3, v{t + 3}
    v_lshlrev_b64 {vr(cn, 2)}, v{key}, {vr(cn, 2)}
    v_and_b32 v{t + 3}, 63, v{en}
    s_cmp_lg_u32 s3, 0
    s_cbranch_scc1 Lslow_entry
    s_waitcnt lgkmcnt(0)
    """)
    stamp(A, opt, "bD")
    fillers = [f"v_subrev_u32 v{t + 3}, s{sQ1}, v{t + 3}", f"v_mul_u32_u24 v{t + 3}, 12, v{t + 3}"]
    fillers += [f"v_lshrrev_b32 v{so + i}, 9, v{en + 2 * i}" for i in range(4)]
    for k, d in enumerate(WAVE_SCAN):
        A(f"v_add_u32_dpp v{cn}, v{cn}, v{cn} {d} bank_mask:0xf")
        A(f"v_add_u32_dpp v{cn + 1}, v{cn + 1}, v{cn + 1} {d} bank_mask:0xf")
        A(fillers[k])
    A(f"v_readlane_b32 s{sTmp}, v{cn}, 63")
    A(f"v_readlane_b32 s{sTmp + 1}, v{cn + 1}, 63")
    for i in range(4):
        A(f"v_bfe_u32 v{eo + i}, v{en + 2 * i}, 6, 12")
    A(f"""
    s_mul_i32 s3, s{sTmp}, 0x01010101
    s_mul_i32 s{sTmp + 1}, s{sTmp + 1}, 0x01010100
    s_lshl_b32 s{sTmp}, s3, 8
    s_lshr_b32 s3, s3, 24
    s_mul_i32 s3, s3, 0x01010101
    s_add_u32 s{sTmp + 1}, s{sTmp + 1}, s3
    v_lshl_add_u64 {vr(cn, 2)}, {vr(cn, 2)}, 0, {sr(sTmp, 2)}
    s_sub_u32 s3, s{sSW}, 16
    v_lshrrev_b64 {vr(cn, 2)}, v{key}, {vr(cn, 2)}
    """)
    for i in range(4):
        A(f"v_lshl_add_u32 v{eo + i}, v{eo + i}, 5, v{en + 2 * i + 1}")
    A(f"v_and_b32 v{pos}, 0xff, v{cn}")
    for i in range(4):
        A(f"v_or_b32 v{eo + i}, v{eo + i}, v{vInv}")
    A(f"v_lshl_add_u32 v{t}, v{pos}, 4, s3")
    A(f"ds_write_b128 v{t}, {vr(eo, 4)} offset:1152")
    A(f"ds_read_b32 v{vEo}, v{vEp} offset:1152")
    for i in range(4):
        A(f"v_and_or_b32 v{so + i}, v{so + i}, s{sQ3}, v{vInv}")
    A(f"""
    v_and_b32 v{t + 1}, 1, v{pos}
    v_lshl_add_u32 v{t + 1}, v{t + 1}, 3, v{t}
    v_subrev_u32 v{t + 1}, 8, v{t + 1}
    ds_write2_b64 v{t + 1}, {vr(so, 2)}, {vr(so + 2, 2)} offset0:0 offset1:2
    ds_read_b128 {vr(vSo, 4)}, v{vSp}
    ds_read_b128 {vr(vT, 4)}, v{vSp} offset:32
    v_add_u32 v{t + 2}, s{sSW}, v{pos}
    ds_write_b8 v{t + 2}, v{t + 3} offset:2303
    ds_read_b32 v{vT + 4}, v{vEp} offset:{1152 + 128}
    ds_read_b32 v{vSb}, v{la + 3} offset:2304
    s_waitcnt lgkmcnt(6)
    v_add_u32 v{vEo}, v{vEo}, v{vH16}
    buffer_load_dwordx4 {vr(vEA, 4)}, v{vEo}, {sr(S_EA, 4)}, 0 offen {ea_pol}
    """)
    for u in range(4):
        src = (vSo, vSo + 2, vT, vT + 2)[u]
        if u in (0, 2):
            A(f"s_waitcnt lgkmcnt({(4, 2)[u // 2]})")
        A(f"v_lshl_add_u64 {vr(src, 2)}, {vr(src, 2)}, 0, {vr(vLo, 2)}")
        A(f"buffer_load_dwordx4 {vr(vL + 8 * u, 4)}, v{src}, {sr(S_TAB, 4)}, 0 offen {tab_pol}")
        A(f"buffer_load_dwordx4 {vr(vL + 8 * u + 4, 4)}, v{src + 1}, {sr(S_TAB, 4)}, 0 offen {tab_pol}")
    stamp(A, opt, "prim")
    for s in range(NS):
        A(f"ds_read_b128 {vr(vSl + 12 * s + 8, 4)}, v{vT + 5} offset:{528 * s}")
    for o in zero_ops[nz:]:
        A(o)
    A("s_waitcnt lgkmcnt(0)")
    for s in range(NS):
        for j in range(4):
            A(f"v_exp_f32 v{vSl + 12 * s + 8 + j}, v{vSl + 12 * s + 8 + j}")
    A(f"""
    v_add_u32 v{vEo}, v{vT + 4}, v{vH16}
    v_readlane_b32 s{sSl0}, v{vSb}, 0
    v_readlane_b32 s{sSl1}, v{vSb}, 1
    s_mov_b32 s{sLn}, 2
    s_mov_b32 s{sLn + 1}, 3
    s_mul_i32 s{sQ1}, s{sRem}, 3
    s_lshr_b32 s{sQ1}, s{sQ1}, 2
    s_lshr_b32 s{sQ2}, s{sRem}, 1
    s_lshr_b32 s{sQ3}, s{sRem}, 2
    s_setprio 3
    s_waitcnt vmcnt(8)
    """)
    stamp(A, opt, "first")

    def mfma(j):
        return f"v_mfma_f32_32x32x16_bf16 {vr(vD + 16 * j, 16)}, {vr(vEA, 4)}, {vr(vWC + 4 * j, 4)}, 0"

    for j in range(4):
        A(mfma(j))
    A(f"buffer_load_dwordx4 {vr(vEA, 4)}, v{vEo}, {sr(S_EA, 4)}, 0 offen {ea_pol}")
    A("s_nop 7")
    A("s_nop 1")
    A(f"s_cmp_gt_u32 s{sRem}, 8")
    A("s_cbranch_scc0 Llast")

    def step(u, last):
        La, Lb = vL + 8 * (u & 3), vL + 8 * (u & 3) + 4
        a, b = vT, vT + 4
        sl = (sSl0, sSl1)[u >> 2]
        prefetch = not (last and u >= 4)
        wait = 7 if u < 4 else (6 if not last else 2 * (7 - u))
        A(f"s_waitcnt vmcnt({wait})")
        if prefetch and u % 2 == 0:
            A(f"ds_read_b128 {vr(vSo, 4)}, v{vSp} offset:{16 * (u + 4)}")
        if u == 6 and not last:
            A(f"ds_read_b32 v{vEo}, v{vEp} offset:{1152 + 256}")

        def mix(j, hb):
            return (f"v_fma_mix_f32 v{(a, b)[hb] + j}, v{vD + 16 * j + 2 * u + hb}, s{sNl}, v{(La, Lb)[hb] + j} "
                    "op_sel_hi:[0,0,1]")

        wide = not (prefetch and u % 2 == 0)
        if u == 7 and not last:
            for j in range(4):
                A(mix(j, 0))
                A(mix(j, 1))
                if j:
                    A(f"v_exp_f32 v{a + j - 1}, v{a + j - 1}")
                    A(f"v_exp_f32 v{b + j - 1}, v{b + j - 1}")
                A(mfma(j))
            A(f"v_exp_f32_e64 v{a + 3}, v{a + 3}")
            A(f"v_exp_f32 v{b + 3}, v{b + 3}")
        else:
            for hb in range(2):
                for j in range(4):
                    A(mix(j, hb))
            for j in range(8):
                A(f"v_exp_f32{'_e64' if wide and j == 0 else ''} v{a + j}, v{a + j}")
        if not wide:
            A("s_waitcnt lgkmcnt(0)")
        A(f"s_set_gpr_idx_on s{sl}, gpr_idx(SRC1)")
        for j in range(0, 8, 2):
            A(f"v_pk_fma_f32 {vr(a + j, 2)}, {vr(a + j, 2)}, {vr(vSl + 8 + (j & 3), 2)}, {sr(sC0, 2)} clamp")
        A("s_set_gpr_idx_mode gpr_idx()")
        A(f"s_lshr_b32 s{sl}, s{sl}, 8")
        for j in (0, 2):
            A(f"v_pk_mul_f32 {vr(La + j, 2)}, {vr(La + j, 2)}, {vr(b + j, 2)}")
        so2 = vSo + 2 * (u & 1)
        if prefetch:
            A(f"v_lshl_add_u64 {vr(so2, 2)}, {vr(so2, 2)}, 0, {vr(vLo, 2)}")
        for j in (0, 2):
            A(f"v_pk_fma_f32 {vr(La + j, 2)}, {vr(Lb + j, 2)}, {vr(a + j, 2)}, {vr(La + j, 2)}")
        for j in (0, 2):
            A(f"v_pk_add_f32 {vr(Lb + j, 2)}, {vr(a + j, 2)}, {vr(b + j, 2)}")
        for j in (0, 2):
            A(f"v_pk_mul_f32 {vr(a + j, 2)}, {vr(a + j, 2)}, {vr(b + j, 2)}")
        for j in range(4):
            A(f"v_rcp_f32{'_e64' if j == 0 else ''} v{a + j}, v{a + j}")
        A("s_set_gpr_idx_mode gpr_idx(SRC2,DST)")
        for j in (0, 2):
            A(f"v_pk_fma_f32 {vr(vSl + j, 2)}, {vr(La + j, 2)}, {vr(a + j, 2)}, {vr(vSl + j, 2)}")
            A(f"v_pk_fma_f32 {vr(vSl + 4 + j, 2)}, {vr(Lb + j, 2)}, {vr(a + j, 2)}, {vr(vSl + 4 + j, 2)}")
        if prefetch and not opt.get("noload"):
            A(f"buffer_load_dwordx4 {vr(La, 4)}, v{so2}, {sr(S_TAB, 4)}, 0 offen {tab_pol}")
            A(f"buffer_load_dwordx4 {vr(Lb, 4)}, v{so2 + 1}, {sr(S_TAB, 4)}, 0 offen {tab_pol}")
        A("s_set_gpr_idx_off")

    A(".p2align 6")
    A("Ltile:")
    A(f"s_sub_u32 s{sRem}, s{sRem}, 8")
    for u in range(8):
        step(u, False)
    A(f"""
    v_add_u32 v{vEo}, v{vEo}, v{vH16}
    buffer_load_dwordx4 {vr(vEA, 4)}, v{vEo}, {sr(S_EA, 4)}, 0 offen {ea_pol}
    v_readlane_b32 s{sSl0}, v{vSb}, s{sLn}
    v_readlane_b32 s{sSl1}, v{vSb}, s{sLn + 1}
    v_add_u32 v{vSp}, 0x80, v{vSp}
    v_add_u32 v{vEp}, 0x80, v{vEp}
    s_add_u32 s{sLn}, s{sLn}, 2
    s_add_u32 s{sLn + 1}, s{sLn + 1}, 2
    """)
    if not opt.get("noprio"):
        for k, sq in enumerate((sQ1, sQ2, sQ3)):
            A(f"s_cmp_le_u32 s{sRem}, s{sq}")
            A("s_cbranch_scc0 Lprio_done")
            A(f"s_setprio {2 - k}")
        A("Lprio_done:")
    A(f"s_cmp_gt_u32 s{sRem}, 8")
    A("s_cbranch_scc1 Ltile")
    A(".p2align 3")
    A("Llast:")
    A("s_nop 0")
    for u in range(8):
        step(u, True)
        if u < 7:
            A(f"s_cmp_le_u32 s{sRem}, {u + 1}")
            A("s_cbranch_scc1 Lmain_done")
    A("Lmain_done:")
    stamp(A, opt, "done")

    def finalize(a0, o, a1, u0, x0, addr, soff, pre_store):
        for j in range(4):
            A(f"v_permlane32_swap_b32 v{a0 + j}, v{a1 + j}")
            A(f"v_permlane32_swap_b32 v{a0 + o + j}, v{a1 + o + j}")
        for j in (o, o + 2, 0, 2):
            A(f"v_pk_add_f32 {vr(a0 + j, 2)}, {vr(a0 + j, 2)}, {vr(a1 + j, 2)}")
        for j in (o, o + 2):
            A(f"v_pk_add_f32 {vr(a0 + j, 2)}, {vr(a0 + j, 2)}, {sr(sC0, 2)}")
        for j in range(4):
            A(f"v_rcp_f32 v{a0 + o + j}, v{a0 + o + j}")
        A(f"v_lshlrev_b32 v{a1}, 16, v{x0}")
        A(f"v_and_b32 v{a1 + 1}, 0xffff0000, v{x0}")
        A(f"v_lshlrev_b32 v{a1 + 2}, 16, v{x0 + 1}")
        A(f"v_and_b32 v{a1 + 3}, 0xffff0000, v{x0 + 1}")
        for j in (0, 2):
            A(f"v_pk_fma_f32 {vr(a0 + j, 2)}, {vr(a0 + j, 2)}, {vr(a0 + o + j, 2)}, {vr(u0 + j, 2)}")
        for j in range(4):
            A(f"v_max_f32 v{a0 + j}, 0, v{a0 + j}")
        for j in (0, 2):
            A(f"v_pk_add_f32 {vr(a0 + j, 2)}, {vr(a0 + j, 2)}, {vr(a1 + j, 2)}")
        A(f"v_cvt_pk_bf16_f32 v{a0}, v{a0}, v{a0 + 1}")
        A(f"v_cvt_pk_bf16_f32 v{a0 + 1}, v{a0 + 2}, v{a0 + 3}")
        A(pre_store)
        A(f"buffer_store_dwordx2 {vr(a0, 2)}, v{addr}, {sr(S_OUT, 4)}, s{soff} offen")

    eps = f32(1e-6 / c0)
    vU, vXr, vA1, vA2, vA3, vCy = vD, vD + 16, vD + 24, vD + 25, vD + 26, vD + 32
    A(f"""
    v_lshl_add_u32 v{vA1}, v{vH16}, 5, v{vLo}
    v_add_u32 v{vA1}, s{sSW}, v{vA1}
    ds_write_b128 v{vA1}, {vr(vSl, 4)}
    ds_write_b128 v{vA1}, {vr(vSl + 4, 4)} offset:1024
    s_mul_i32 s3, s{sF0}, 528
    s_add_u32 s3, s3, {L_TU}
    v_mul_u32_u24 v{vA2}, 33, v{vH16}
    v_add3_u32 v{vA2}, v{vA2}, v{vLo}, s3
    s_mul_i32 s3, s{sF0}, 272
    s_add_u32 s3, s3, {L_X}
    v_mul_u32_u24 v{vA3}, 17, v{vH16}
    v_lshrrev_b32 v{vLo + 1}, 1, v{vLo}
    v_add3_u32 v{vA3}, v{vA3}, v{vLo + 1}, s3
    """)
    for pr in range(4):
        A(f"ds_read_b128 {vr(vU + 4 * pr, 4)}, v{vA2} offset:{1056 * pr}")
        A(f"ds_read_b64 {vr(vXr + 2 * pr, 2)}, v{vA3} offset:{544 * pr}")
    A(f"""
    v_lshl_add_u32 v{vA2}, v{vH16}, 4, v{vLo + 1}
    s_add_u32 s{sQ1}, s{sN0}, s{sF0}
    s_lshl_b32 s{sQ1}, s{sQ1}, 8
    s_mov_b32 s{sC0}, {hex(eps)}
    s_mov_b32 s{sC0 + 1}, {hex(eps)}
    s_mul_i32 s{sQ2}, s{sOwn}, 12
    s_waitcnt lgkmcnt(0)
    """)
    for pr in range(4):
        if pr < 3:
            A(f"s_cmp_gt_u32 s{sOwn}, {2 * pr + 2}")
            A(f"s_cbranch_scc1 Lfin{pr}")
        A("s_barrier")
        A(f"s_cmp_eq_u32 s{sW}, 7")
        A(f"s_cbranch_scc1 Lfin{pr}")
        A(f"ds_read_b128 {vr(vCy, 4)}, v{vA1} offset:{STRW}")
        A(f"ds_read_b128 {vr(vCy + 4, 4)}, v{vA1} offset:{STRW + 1024}")
        A(f"s_set_gpr_idx_on s{sQ2}, gpr_idx(SRC0,DST)")
        A("s_waitcnt lgkmcnt(0)")
        for j in range(0, 8, 2):
            A(f"v_pk_add_f32 {vr(vSl + j, 2)}, {vr(vSl + j, 2)}, {vr(vCy + j, 2)}")
        A("s_set_gpr_idx_off")
        A("s_nop 1")
        A(f"Lfin{pr}:")
        finalize(vSl + 12 * (2 * pr + 1), 4, vSl + 12 * (2 * pr + 2), vU + 4 * pr, vXr + 2 * pr, vA2, sQ1,
                 f"s_cmp_gt_u32 s{sOwn}, {2 * pr + 1}\ns_cselect_b32 exec_hi, -1, 0")
        if pr < 3:
            A(f"s_add_u32 s{sQ1}, s{sQ1}, 512")
            A(f"s_cmp_gt_u32 s{sOwn}, {2 * pr + 2}")
            A("s_cbranch_scc0 Lk2_done")
    A("Lk2_done:")
    stamp_flush(A, opt, 8, 0x20000, vTid)
    if opt.get("spin"):
        A("""
        Lspin:
        s_memrealtime s[42:43]
        s_waitcnt lgkmcnt(0)
        s_sub_u32 s42, s42, s100
        s_cmp_lt_u32 s42, 10000
        s_cbranch_scc1 Lspin
        """)
    A("Lk2_exit:")
    A("s_endpgm")

    NU = 7
    vAcc, vAn = 0, 56
    vLs = [vL + 8 * u for u in range(4)] + [84 + 8 * u for u in range(3)]
    vP, vErr, vQ, vCaddr, vUaddr = 245, 252, 253, 254, 255
    A("Lslow_entry:")
    A(f"""
    s_waitcnt vmcnt(0) lgkmcnt(0)
    s_barrier
    v_lshlrev_b32 v{vX + 11}, 2, v{vTid}
    ds_write_b32 v{vX + 11}, v{vZero} offset:{L_CNT}
    s_mul_i32 s3, s{sW}, 528
    s_add_u32 s3, s3, {L_TA}
    v_add_u32 v{vX + 11}, s3, v{vLo}
    """)
    for u in range(NU):
        A(f"ds_read_b128 {vr(vAn + 4 * u, 4)}, v{vX + 11} offset:{8 * 528 * u}")
    for i in range(0, 8 * NU, 2):
        A(f"v_mov_b64 {vr(vAcc + i, 2)}, 0")
    A(f"""
    v_bfe_u32 v{vX + 11}, v{vTid}, 3, 3
    v_and_b32 v{vX + 12}, 7, v{vTid}
    v_lshlrev_b32 v{vX + 12}, 2, v{vX + 12}
    v_lshl_add_u32 v{vX + 12}, v{vX + 11}, 8, v{vX + 12}
    s_lshl_b32 s3, s{sW}, 5
    v_add_u32 v{vCaddr}, s3, v{vX + 12}
    v_bfe_u32 v{vX + 11}, v{vTid}, 3, 2
    v_bfe_u32 v{vX + 12}, v{vTid}, 1, 1
    v_lshl_add_u32 v{vX + 11}, v{vX + 11}, 1, v{vX + 12}
    v_lshlrev_b32 v{vUaddr}, 5, v{vX + 11}
    Lbatch:
    """)
    batch_masks(16)
    A("Lround:")
    rec_addr()
    rec_loads()
    A(f"""
    v_mov_b32 v{vZero}, 0
    v_mov_b32 v{vOne}, 1
    ds_write_b32 v{vZero}, v{vZero} offset:{L_FLAG}
    ds_write_b32 v{vZero}, v{vZero} offset:{L_FLAG + 4}
    s_waitcnt lgkmcnt(0)
    s_barrier
    s_mov_b64 exec, {sr(sMore, 2)}
    ds_write_b32 v{vZero}, v{vOne} offset:{L_FLAG + 4}
    s_mov_b64 exec, -1
    s_waitcnt vmcnt(0)
    """)
    histogram(cand)
    for rec, key_, rank, so_, eo_, m in cand:
        A(f"v_lshrrev_b32 v{so_}, 18, v{rec}")
        A(f"v_bfe_u32 v{eo_}, v{rec}, 6, 12")
        A(f"v_lshlrev_b32 v{so_}, 9, v{so_}")
        A(f"v_lshl_add_u32 v{eo_}, v{eo_}, 5, v{vX + 2}")
    A("s_waitcnt lgkmcnt(0)")
    A("s_barrier")
    c, inc, deg, q, t0, t1 = vX + 12, vX + 13, vX + 14, vX + 15, vX + 16, vX + 17
    A(f"ds_read_b32 v{c}, v{vCaddr} offset:{L_CNT}")
    A(f"v_lshrrev_b32 v{t0}, 5, v{vCaddr}")
    A(f"v_lshlrev_b32 v{t0}, 6, v{t0}")
    A("s_waitcnt lgkmcnt(0)")
    A(f"ds_write_b32 v{vCaddr}, v{vZero} offset:{L_CNT}")
    A(f"v_mov_b32 v{inc}, v{c}")
    for d in (1, 2, 4, 8):
        A("s_nop 1")
        A(f"v_add_u32_dpp v{inc}, v{inc}, v{inc} row_shr:{d} row_mask:0xf bank_mask:0xf")
    A(f"""
    v_mov_b32 v{t1}, 0
    s_nop 0
    v_mov_b32_dpp v{deg}, v{inc} row_newbcast:7 row_mask:0xf bank_mask:0x3
    v_mov_b32_dpp v{t1}, v{inc} row_newbcast:7 row_mask:0xf bank_mask:0xc
    v_mov_b32_dpp v{deg}, v{inc} row_newbcast:15 row_mask:0xf bank_mask:0xc
    v_sub_u32 v{inc}, v{inc}, v{t1}
    v_sub_u32 v{deg}, v{deg}, v{t1}
    v_sub_u32 v{inc}, v{inc}, v{c}
    v_add_u32 v{inc}, v{inc}, v{t0}
    ds_write_b32 v{vCaddr}, v{inc} offset:{L_BASE}
    v_cmp_lt_u32 vcc, 64, v{deg}
    v_min_u32 v{deg}, 64, v{deg}
    v_add_u32 v{q}, 3, v{deg}
    v_lshrrev_b32 v{q}, 2, v{q}
    s_mov_b64 exec, vcc
    ds_write_b32 v{vZero}, v{vOne} offset:{L_FLAG}
    s_mov_b64 exec, -1
    ds_bpermute_b32 v{vQ}, v{vUaddr}, v{q}
    v_and_b32 v{c}, 7, v{vTid}
    v_add_u32 v{c}, v{c}, v{deg}
    v_lshlrev_b32 v{t1}, 2, v{q}
    v_cmp_lt_u32 vcc, v{c}, v{t1}
    v_add_lshl_u32 v{c}, v{c}, v{t0}, 2
    v_mov_b32 v{t0}, {TAB_BYTES}
    v_bfrev_b32 v{t1}, 2
    s_mov_b64 exec, vcc
    ds_write_b32 v{c}, v{t0} offset:{L_SO}
    ds_write_b32 v{c}, v{t1} offset:{L_EO}
    s_mov_b64 exec, -1
    v_max_u32_dpp v{q}, v{q}, v{q} row_ror:8 row_mask:0xf bank_mask:0xf
    s_nop 0
    v_readlane_b32 s{sT}, v{q}, 0
    v_readlane_b32 s3, v{q}, 16
    v_readlane_b32 s{sTmp}, v{q}, 32
    v_readlane_b32 s{sTmp + 1}, v{q}, 48
    s_waitcnt lgkmcnt(0)
    s_barrier
    ds_read_b64 {vr(vX + 12, 2)}, v{vZero} offset:{L_FLAG}
    """)
    for i in range(8):
        A(f"ds_read_b32 v{vKey + i}, v{vKey + i} offset:{L_BASE}")
    A(f"""
    s_max_u32 s{sT}, s{sT}, s3
    s_max_u32 s{sTmp}, s{sTmp}, s{sTmp + 1}
    s_max_u32 s{sT}, s{sT}, s{sTmp}
    s_waitcnt lgkmcnt(0)
    v_readfirstlane_b32 s{sOvf}, v{vX + 12}
    v_readfirstlane_b32 s{sMor}, v{vX + 13}
    """)
    for i in range(8):
        A(f"v_and_b32 v{vX + 12}, 63, v{vRec + i}")
        A(f"v_add_u32 v{vKey + i}, v{vKey + i}, v{vRank + i}")
        A(f"v_lshl_add_u32 v{vX + 12}, v{vX + 12}, 6, 64")
        A(f"v_cmp_lt_u32 vcc, v{vKey + i}, v{vX + 12}")
        A(f"v_lshlrev_b32 v{vKey + i}, 2, v{vKey + i}")
        A(f"s_and_b64 exec, vcc, {sr(sMask + 2 * i, 2)}")
        A(f"ds_write_b32 v{vKey + i}, v{vSoff + i} offset:{L_SO}")
        A(f"ds_write_b32 v{vKey + i}, v{vEoff + i} offset:{L_EO}")
        A(f"s_andn2_b64 {sr(sMask + 2 * i, 2)}, {sr(sMask + 2 * i, 2)}, vcc")
        A("s_mov_b64 exec, -1")
    A(f"""
    s_lshl_b32 s3, s{sW}, 8
    v_lshrrev_b32 v{vX + 12}, 1, v{vH16}
    v_add_u32 v{vP}, s3, v{vX + 12}
    v_and_b32 v{vX + 12}, 1, v{vTid}
    v_bfe_u32 v{vX + 13}, v{vTid}, 2, 1
    v_lshl_add_u32 v{vX + 12}, v{vX + 13}, 1, v{vX + 12}
    v_lshl_add_u32 v{vX + 12}, v{vX + 12}, 2, s3
    v_lshl_add_u32 v{vEp}, v{vUaddr}, 6, v{vX + 12}
    s_lshr_b32 s3, s{sT}, 1
    v_mov_b32 v{vErr}, s3
    s_mov_b64 {sr(sCur, 2)}, 0
    s_mov_b32 s{sTi}, 0
    """)
    for u in range(1, NU):
        A(f"v_mov_b32 v{vP + u}, v{vP}")
    A(f"""
    s_waitcnt lgkmcnt(0)
    s_barrier
    s_cmp_eq_u32 s{sT}, 0
    s_cbranch_scc1 Lg_done
    s_branch Lg_entry
    Lg_tile:
    s_waitcnt vmcnt({2 * NU})
    """)
    for j in range(4):
        A(mfma(j))
    A(f"""
    Lg_entry:
    v_add_u32 v{vErr}, v{vQ}, v{vErr}
    ds_read_b32 v{vEo}, v{vEp} offset:{L_EO}
    ds_read_b64 {vr(vSo, 2)}, v{vP} offset:{L_SO}
    v_cmp_le_u32_e64 {sr(sNext, 2)}, s{sT}, v{vErr}
    s_cmp_lt_u32 s{sTi}, s{sT}
    s_cselect_b64 {sr(sNext, 2)}, {sr(sNext, 2)}, 1
    s_mov_b64 exec, {sr(sNext, 2)}
    v_subrev_u32 v{vErr}, s{sT}, v{vErr}
    v_add_u32 v{vEp}, 16, v{vEp}
    s_waitcnt lgkmcnt(1)
    v_add_u32 v{vEo}, v{vEo}, v{vH16}
    buffer_load_dwordx4 {vr(vEA, 4)}, v{vEo}, {sr(S_EA, 4)}, 0 offen
    s_mov_b64 exec, -1
    """)
    for u in range(NU):
        bit = 8 * (u >> 1) + 2 * (u & 1) + 1
        so2 = vSo + 2 * (u & 1)
        La, Lb = vLs[u], vLs[u] + 4
        a, b = vT, vT + 4
        num, den = vAcc + 8 * u, vAcc + 8 * u + 4
        if u + 1 < NU:
            A(f"ds_read_b64 {vr(vSo + 2 * ((u + 1) & 1), 2)}, v{vP + u + 1} offset:{L_SO + 2048 * (u + 1)}")
        A(f"s_bitcmp1_b32 s{sCur}, {bit}")
        A(f"s_cbranch_scc0 Lg_skip{u}")
        A(f"s_waitcnt vmcnt({2 * NU - 1})")
        for j in range(4):
            A(f"v_fma_mix_f32 v{a + j}, v{vD + 16 * j + 2 * u}, s{sNl}, v{La + j} op_sel_hi:[0,0,1]")
        for j in range(4):
            A(f"v_fma_mix_f32 v{b + j}, v{vD + 16 * j + 2 * u + 1}, s{sNl}, v{Lb + j} op_sel_hi:[0,0,1]")
        for j in range(0, 8, 2):
            A(f"v_pk_add_f32 {vr(a + j, 2)}, {vr(a + j, 2)}, {vr(vAn + 4 * u + (j & 3), 2)}")
        for j in range(8):
            A(f"v_exp_f32_e64 v{a + j}, v{a + j} clamp")
        for j in range(0, 8, 2):
            A(f"v_pk_add_f32 {vr(a + j, 2)}, {vr(a + j, 2)}, {sr(sC0, 2)}")
        for j in (0, 2):
            A(f"v_pk_mul_f32 {vr(La + j, 2)}, {vr(La + j, 2)}, {vr(b + j, 2)}")
        for j in (0, 2):
            A(f"v_pk_fma_f32 {vr(La + j, 2)}, {vr(Lb + j, 2)}, {vr(a + j, 2)}, {vr(La + j, 2)}")
        for j in (0, 2):
            A(f"v_pk_add_f32 {vr(Lb + j, 2)}, {vr(a + j, 2)}, {vr(b + j, 2)}")
        for j in (0, 2):
            A(f"v_pk_mul_f32 {vr(a + j, 2)}, {vr(a + j, 2)}, {vr(b + j, 2)}")
        for j in range(4):
            A(f"v_rcp_f32 v{a + j}, v{a + j}")
        for j in (0, 2):
            A(f"v_pk_fma_f32 {vr(num + j, 2)}, {vr(La + j, 2)}, {vr(a + j, 2)}, {vr(num + j, 2)}")
            A(f"v_pk_fma_f32 {vr(den + j, 2)}, {vr(Lb + j, 2)}, {vr(a + j, 2)}, {vr(den + j, 2)}")
        A(f"Lg_skip{u}:")
        A(f"s_bitcmp1_b32 s{sNext}, {bit}")
        A("s_cselect_b64 exec, -1, 1")
        A(f"s_cselect_b32 s{sInc}, 16, 0")
        A(f"s_waitcnt lgkmcnt({1 if u + 1 < NU else 0})")
        A(f"v_add_u32 v{so2}, v{so2}, v{vLo}")
        A(f"v_add_u32 v{so2 + 1}, v{so2 + 1}, v{vLo}")
        A(f"buffer_load_dwordx4 {vr(La, 4)}, v{so2}, {sr(S_TAB, 4)}, 0 offen {tab_pol}")
        A(f"buffer_load_dwordx4 {vr(Lb, 4)}, v{so2 + 1}, {sr(S_TAB, 4)}, 0 offen {tab_pol}")
        A("s_mov_b64 exec, -1")
        A(f"v_add_u32 v{vP + u}, s{sInc}, v{vP + u}")
    A(f"""
    s_mov_b64 {sr(sCur, 2)}, {sr(sNext, 2)}
    s_add_u32 s{sTi}, s{sTi}, 1
    s_cmp_le_u32 s{sTi}, s{sT}
    s_cbranch_scc1 Lg_tile
    Lg_done:
    s_waitcnt vmcnt(0)
    s_cmp_lg_u32 s{sOvf}, 0
    s_cbranch_scc1 Lround
    s_add_u32 s{sW0}, s{sW0}, 16
    s_cmp_lg_u32 s{sMor}, 0
    s_cbranch_scc1 Lbatch
    s_mul_i32 s3, s{sW}, 528
    s_add_u32 s3, s3, {L_TU}
    v_mul_u32_u24 v{vA2}, {33 * 8}, v{vH16}
    v_add3_u32 v{vA2}, v{vA2}, v{vLo}, s3
    s_mul_i32 s3, s{sW}, 272
    s_add_u32 s3, s3, {L_X}
    v_mul_u32_u24 v{vA3}, {17 * 8}, v{vH16}
    v_lshrrev_b32 v{vLo + 1}, 1, v{vLo}
    v_add3_u32 v{vA3}, v{vA3}, v{vLo + 1}, s3
    """)
    for pr in range(4):
        A(f"ds_read_b128 {vr(vU + 4 * pr, 4)}, v{vA2} offset:{16 * 528 * pr}")
        A(f"ds_read_b64 {vr(vXr + 2 * pr, 2)}, v{vA3} offset:{16 * 272 * pr}")
    A(f"""
    v_lshl_add_u32 v{vA2}, v{vH16}, 7, v{vLo + 1}
    s_add_u32 s{sQ1}, s{sN0}, s{sW}
    s_lshl_b32 s{sQ1}, s{sQ1}, 8
    s_mov_b32 s{sC0}, {hex(eps)}
    s_mov_b32 s{sC0 + 1}, {hex(eps)}
    s_waitcnt lgkmcnt(0)
    """)
    for pr in range(4):
        if pr == 3:
            A(f"s_cmp_lg_u32 s{sW}, 0")
            A("s_cbranch_scc1 Lk2_done")
        finalize(vAcc + 16 * pr, 4, vAcc + 16 * pr + 8, vU + 4 * pr, vXr + 2 * pr, vA2, sQ1,
                 "s_mov_b32 exec_hi, 0" if pr == 3 else "s_nop 0")
        A(f"s_add_u32 s{sQ1}, s{sQ1}, 4096")
    A("s_branch Lk2_done")
    return L_END


def descriptor(name, vgpr, extra=""):
    return f""".amdhsa_kernel {name}
  .amdhsa_next_free_vgpr {vgpr}
  .amdhsa_next_free_sgpr 102
  .amdhsa_accum_offset {(vgpr + 3) // 4 * 4}
  .amdhsa_group_segment_fixed_size 0
  .amdhsa_kernarg_size 96
  .amdhsa_user_sgpr_count 2
  .amdhsa_user_sgpr_kernarg_segment_ptr 1
  .amdhsa_system_sgpr_workgroup_id_x 1
{extra}.end_amdhsa_kernel
"""


def generate(opt):
    A = Asm()
    lds = gen_k2(A, opt)
    lst = f"kernel={NAME}_kernel " if opt.get("aslist") else ""
    return (f"""; GatedGCN layer in one launch. Every workgroup buckets one chunk of edges by destination and builds its
; rows of the gather table, hands both over through d_ws, then sorts, gathers and reduces one bucket of nodes.
; @launch {lst}grid=(256,1,1) block=(512,1,1) lds={lds}
.amdgcn_target "amdgcn-amd-amdhsa--gfx950"
.text
.globl {NAME}_kernel
.p2align 8
.type {NAME}_kernel,@function
""" + A.text() + ".section .rodata,\"a\"\n.p2align 6\n"
            + descriptor(f"{NAME}_kernel", 256, "  .amdhsa_fp16_overflow 1\n"))


if __name__ == "__main__":
    out = sys.argv[1] if len(sys.argv) > 1 else f"cdna_kernels/{NAME}.s"
    opt = dict(a.split("=", 1) for a in sys.argv[2:])
    opt = {k: v.replace("+", " ") for k, v in opt.items()}
    open(out, "w").write(generate(opt))
```

```python
import math
import struct
import sys

NAME = "gather_scatter__edge_featured_mpnn_gatedgcn__graph"
N, E = 12500, 400000
BM, BS, SM, SC, SS = 171799, 23, 799999, 16330, 14
CH = 1568
NCH = 256
TAB_OFF = 0
REC_OFF = 0xE00000
OFF_OFF = 0x1000000
SPIN_MAX = 20000
EAP_OFF = 0x1200000
STAMP_OFF = 0x2000000
TAB_BYTES = N * 512
KSH = 48
AMAX = 52.0
NLOG2E = -math.log2(math.e)


def f32(x):
    return struct.unpack("<I", struct.pack("<f", x))[0]


class Asm:
    def __init__(self):
        self.lines = []

    def __call__(self, s):
        for ln in s.strip("\n").split("\n"):
            ln = ln.strip()
            if not ln:
                continue
            self.lines.append(ln if ln.endswith(":") else "    " + ln)

    def text(self):
        return "\n".join(self.lines) + "\n"


def vr(a, n=1):
    return f"v{a}" if n == 1 else f"v[{a}:{a + n - 1}]"


def sr(a, n=1):
    return f"s{a}" if n == 1 else f"s[{a}:{a + n - 1}]"


def srd(A, d, base, nbytes, off=0):
    if off:
        A(f"s_add_u32 s{d}, s{base}, {hex(off)}")
        A(f"s_addc_u32 s{d + 1}, s{base + 1}, 0")
    else:
        A(f"s_mov_b64 {sr(d, 2)}, {sr(base, 2)}")
    A(f"s_mov_b32 s{d + 2}, {hex(nbytes)}")
    A(f"s_mov_b32 s{d + 3}, 0x20000")


P_X, P_EA, P_SRC, P_DST, P_WA, P_WB, P_WC, P_WU = 4, 6, 8, 10, 12, 14, 16, 18
P_WV, P_OUT, P_DBG, P_WS = 20, 22, 24, 26


def load_kernargs(A):
    A("s_load_dwordx16 s[4:19], s[0:1], 0")
    A("s_load_dwordx8 s[20:27], s[0:1], 64")


STAMP_BASE = [2]


def stamp_reg(i):
    return 100 if i == 0 else STAMP_BASE[0] + 2 * i


def stamp(A, opt, i):
    if not opt.get("stamp"):
        return
    if isinstance(i, str):
        names = opt["stamp"].split(",")
        if i not in names:
            return
        i = names.index(i) + 1
    A(f"{'s_memtime' if opt.get('cyc') else 's_memrealtime'} s[{stamp_reg(i)}:{stamp_reg(i) + 1}]")


def stamp_flush(A, opt, n, base, vtid):
    if not opt.get("stamp"):
        return
    A("s_mov_b64 exec, -1")
    A("s_waitcnt vmcnt(0)")
    stamp(A, opt, n - 1)
    srd(A, 20, P_WS, 0x80000, STAMP_OFF + base)
    A(f"v_lshrrev_b32 v1, 6, v{vtid}")
    A("s_lshl_b32 s3, s2, 3")
    A("v_add_u32 v1, s3, v1")
    A(f"v_mul_u32_u24 v1, {8 * n}, v1")
    A("s_mov_b64 exec, 1")
    A("s_waitcnt lgkmcnt(0)")
    for i in range(n):
        r = stamp_reg(i)
        A(f"v_mov_b32 v2, s{r}")
        A(f"v_mov_b32 v3, s{r + 1}")
        A(f"buffer_store_dwordx2 v[2:3], v1, s[20:23], 0 offen offset:{8 * i}")
        A("s_nop 1")


WAVE_SCAN = ("row_shr:1 row_mask:0xf", "row_shr:2 row_mask:0xf", "row_shr:4 row_mask:0xf",
             "row_shr:8 row_mask:0xf", "row_bcast:15 row_mask:0xa", "row_bcast:31 row_mask:0xc")


def wave_scan(A, v, first_nop=1, fill=()):
    for k, d in enumerate(WAVE_SCAN):
        if k < len(fill):
            for ins in fill[k]:
                A(ins)
        elif k or first_nop:
            A("s_nop 1")
        A(f"v_add_u32_dpp v{v}, v{v}, v{v} {d} bank_mask:0xf")


def gen_k2(A, opt):
    STAMP_BASE[0] = 2
    NE = int(opt.get("ne", 4))
    assert 0 < NE <= 7
    ea_pol = opt.get("ea_load", "")
    tab_pol = opt.get("tab_load", "sc1")
    npf = int(opt.get("pf", 4))
    epf = int(opt.get("epf", 0))
    S_TAB, S_EA, S_REC, S_OFFS, S_TW, S_EB, S_OUT = 28, 32, 36, 40, 44, 48, 52
    sW, sBk, sN0, sW0, sT, sTi, sInc, sNl = 56, 57, 58, 59, 60, 61, 62, 63
    sC0, sCur, sNext, sMore, sTmp, sNon = 64, 66, 68, 70, 72, 74
    sMask = 76
    S_DST, S_SRC, S_W, S_W2, S_X, S_WC, S_DBG = 76, 80, 76, 80, 80, 84, 88
    sOvf, sMor, sQ1, sQ2, sQ3, sLw, sF0, sOwn = 92, 93, 94, 95, 96, 97, 98, 99
    sRem, sSW, sSl0, sSl1, sLn = sT, sInc, sCur, sCur + 1, sNext
    sPM0, sPM1, sNg, sNn = sCur, sNext, sMor, 0
    L_CNT, L_BASE, L_FLAG, P_CNT, P_BASE, P_SORT = 0, 2048, 4096, 4352, 5376, 6400
    C_S1, C_S2, C_S3, C_S4, C_T1, C_T2, C_T3, C_TF, C_AU, C_TA, C_E1, C_E2, C_WA, C_T0 = (L_FLAG + 8 + 4 * i for i in range(14))
    L_R2 = 12800
    L_SO = L_R2
    L_EO = L_SO + 25600
    L_STR = L_R2 + 16896
    STRW = 2560
    L_WCR = L_R2 + 65536
    L_X = L_WCR + 4096
    L_R1 = (L_X + 52 * 272 + 255) // 256 * 256
    L_TA = L_R1 + 528
    L_TU = L_TA + 52 * 528
    L_END = L_R1 + 65536
    TF_OFF = NCH * 2048
    NS = 9
    WIN = 24
    vSl, vD, vL, vWC, vEA, vT, vSo, vLo = 0, 108, 172, 204, 220, 224, 232, 236
    vSp, vEp, vEo, vH16, vSb, vTid, vOffs = 238, 239, 240, 241, 242, 243, 244
    vEB, vEo2 = 248, 246
    L_INV = L_R2 + 32768
    vRec, vKey, vRank, vSoff, vEoff, vX = vD, vD + 8, vD + 16, vD + 24, vD + 32, vD + 40
    cand = [(vRec + i, vKey + i, vRank + i, vSoff + i, vEoff + i, sMask + 2 * i) for i in range(8)]
    c0 = 2.0 ** -KSH
    vZero, vOne, vInv, vSy, vNon, la = vX + 5, vX + 6, vX + 10, vX + 11, vX + 14, vX + 16
    vPa, vCnt = vX + 7, vX + 8
    zero_ops = [f"v_mov_b64 {vr(vSl + 12 * s + j, 2)}, 0" for s in range(NS) for j in range(0, 8, 2)]

    def arrive(off):
        A("s_mov_b64 exec, 1")
        A(f"ds_add_u32 v{vZero}, v{vOne} offset:{off}")
        A("s_mov_b64 exec, -1")

    def spin(name, off, reads="", sleep=0):
        if sleep:
            A(f"s_branch L{name}_in")
        A(f"L{name}:")
        if sleep:
            A(f"s_sleep {sleep}")
            A(f"L{name}_in:")
        A(f"ds_read_b32 v{vSy}, v{vZero} offset:{off}")
        A(reads)
        A("s_waitcnt lgkmcnt(0)")
        A(f"v_cmp_gt_u32 vcc, 4, v{vSy}")
        A(f"s_cbranch_vccnz L{name}")

    nonce_load = f"buffer_load_dwordx2 {vr(vNon, 2)}, v{vZero}, {sr(S_DBG, 4)}, 0 offen sc1"

    def nonce_wait(name):
        A(f"""
        s_mov_b32 s{sTi}, 0
        L{name}_check:
        v_readfirstlane_b32 s{sNon}, v{vNon}
        v_readfirstlane_b32 s{sNon + 1}, v{vNon + 1}
        s_add_u32 s{sTi}, s{sTi}, 1
        s_cmp_lg_u32 s{sNon}, 0
        s_cbranch_scc1 L{name}_ok
        {nonce_load}
        s_cmp_lt_u32 s{sTi}, {SPIN_MAX}
        s_waitcnt vmcnt(0)
        s_cbranch_scc1 L{name}_check
        L{name}_ok:
        s_and_b32 s{sNon + 1}, s{sNon + 1}, 0x3ff
        """)

    def tag_wait(name, v, reload, sleep):
        A(f"""
        s_mov_b32 s{sTi}, 0
        L{name}_check:
        s_waitcnt vmcnt(0)
        v_lshrrev_b32 v{vSy}, 22, v{v}
        v_cmp_ne_u32_e64 {sr(sTmp, 2)}, s{sNon}, v{v + 1}
        v_cmp_ne_u32 vcc, s{sNon + 1}, v{vSy}
        s_add_u32 s{sTi}, s{sTi}, 1
        s_or_b64 exec, vcc, {sr(sTmp, 2)}
        s_cbranch_scc0 L{name}_ok
        {f's_sleep {sleep}' if sleep else ''}
        {reload}
        s_cmp_lt_u32 s{sTi}, {SPIN_MAX}
        s_cbranch_scc1 L{name}_check
        s_waitcnt vmcnt(0)
        L{name}_ok:
        s_mov_b64 exec, -1
        """)

    def common_setup():
        srd(A, S_REC, P_WS, NCH * CH * 4, REC_OFF)
        srd(A, S_OFFS, P_WS, TF_OFF + 32768, OFF_OFF)
        srd(A, S_TAB, P_WS, TAB_BYTES + 512, TAB_OFF)
        srd(A, S_EA, P_EA, E * 32)
        srd(A, S_EB, P_WS, NCH * CH * 32, EAP_OFF)
        srd(A, S_OUT, P_OUT, N * 256)
        A(f"""
        s_mov_b32 s{sNn}, s{sOwn}
        s_mov_b32 s{sNl}, {hex(f32(NLOG2E))}
        s_mov_b32 s{sC0}, {hex(f32(c0))}
        s_mov_b32 s{sC0 + 1}, {hex(f32(c0))}
        v_and_b32 v{vLo}, 0x1f0, v{vX + 2}
        v_bfe_u32 v{vX + 4}, v{vTid}, 5, 1
        v_mov_b32 v{vLo + 1}, v{vLo}
        v_lshlrev_b32 v{vH16}, 4, v{vX + 4}
        """)

    def late_setup(raw):
        A(f"""
        v_lshrrev_b32 v{vX + 12}, 1, v{vLo}
        v_lshl_add_u32 v{vX + 12}, v{vH16}, 7, v{vX + 12}
        v_add_u32 v{vX + 12}, {L_WCR}, v{vX + 12}
        """)
        for i in range(8):
            A(f"ds_read_b64 {vr(raw + 2 * i, 2)}, v{vX + 12} offset:{256 * i}")
        A(f"""
        s_mul_i32 s{sSW}, s{sW}, {STRW}
        s_add_u32 s{sSW}, s{sSW}, {L_STR}
        v_add_u32 v{vSp}, s{sSW}, v{vH16}
        v_bfe_u32 v{vX + 12}, v{vTid}, 3, 2
        v_bfe_u32 v{vX + 13}, v{vTid}, 1, 1
        v_lshl_add_u32 v{vX + 12}, v{vX + 12}, 1, v{vX + 13}
        v_bfe_u32 v{vX + 13}, v{vTid}, 2, 1
        v_lshl_add_u32 v{vX + 12}, v{vX + 12}, 1, v{vX + 13}
        v_and_b32 v{vX + 13}, 1, v{vTid}
        v_lshl_add_u32 v{vX + 12}, v{vX + 12}, 1, v{vX + 13}
        v_lshl_add_u32 v{vEp}, v{vX + 12}, 2, s{sSW}
        v_bfrev_b32 v{vX + 13}, 1
        v_mov_b32 v{vX + 12}, {N << 18}
        v_lshlrev_b32 v{la}, 1, v{vX + 3}
        v_lshrrev_b32 v{la + 2}, 4, v{vX + 3}
        v_lshl_add_u32 v{la + 3}, v{la + 2}, 2, s{sSW}
        s_mov_b32 s3, 0x05040100
        s_mov_b32 s{sTmp}, 0x07060302
        s_waitcnt lgkmcnt(0)
        """)
        for j in range(4):
            for i in range(4):
                A(f"v_perm_b32 v{vWC + 4 * j + i}, v{raw + 2 * (2 * i + 1) + (j >> 1)}, v{raw + 2 * (2 * i) + (j >> 1)}, "
                  f"s{(3, sTmp)[j & 1]}")

    c, p, deg, q, inc, g4 = vL, vL + 8, vL + 16, vL + 17, vL + 18, vL + 19

    def node_scan(name, bases, sleep):
        A(f"s_mov_b32 s{sQ2}, {L_SO}")
        spin(name, C_S4, f"ds_read_b128 {vr(c, 4)}, v{la} offset:{L_CNT}\nds_read_b128 {vr(c + 4, 4)}, v{la} offset:{L_CNT + 16}", sleep)
        if bases:
            stamp(A, opt, "bB")
        A(f"""
        v_add_u32 v{p + 2}, v{c}, v{c + 1}
        v_add3_u32 v{p + 4}, v{p + 2}, v{c + 2}, v{c + 3}
        v_add3_u32 v{p + 6}, v{p + 4}, v{c + 4}, v{c + 5}
        v_add3_u32 v{deg}, v{p + 6}, v{c + 6}, v{c + 7}
        v_add_u32 v{q}, 3, v{deg}
        v_lshrrev_b32 v{inc}, 2, v{q}
        """)
        fill = [[f"v_lshrrev_b32 v{q}, 2, v{q}", f"v_add_u32 v{p + 3}, v{p + 2}, v{c + 2}"]]
        if bases:
            fill += [[f"v_add_u32 v{p + 5}, v{p + 4}, v{c + 4}", f"v_add_u32 v{p + 7}, v{p + 6}, v{c + 6}"],
                     [f"v_add_u32 v{deg}, s{sW}, v{deg}", f"v_lshlrev_b32 v{c + 1}, 2, v{q}"],
                     [f"v_cmp_lt_u32_e64 {sr(sNext, 2)}, v{deg}, v{c + 1}", "s_nop 0"]]
        wave_scan(A, inc, fill=fill)
        A(f"v_sub_u32 v{g4}, v{inc}, v{q}")
        A(f"v_readlane_b32 s3, v{inc}, 63")
        if bases:
            A(f"v_lshl_add_u32 v{p}, v{g4}, 5, s{sQ2}")
            A(f"v_lshl_add_u32 v{p + 1}, v{c}, 3, v{p}")
            for i in range(2, 8):
                A(f"v_lshl_add_u32 v{p + i}, v{p + i}, 3, v{p}")
                if i in (3, 7):
                    A(f"ds_write_b128 v{la}, {vr(p + i - 3, 4)} offset:{L_BASE + 4 * (i - 3)}")
            bases()

    en, so, eo, key, cn, pos, t = vL, vL + 8, vL + 12, vL + 20, vL + 24, vL + 21, vL + 26

    def wave_range():
        A(f"""
        s_mul_i32 s{sLw}, s3, s{sW}
        s_add_u32 s{sRem}, s{sLw}, s3
        s_lshr_b32 s{sLw}, s{sLw}, 3
        s_lshr_b32 s{sRem}, s{sRem}, 3
        v_cmp_gt_u32_e64 {sr(sTmp, 2)}, s{sLw}, v{g4}
        v_cmp_gt_u32 vcc, s{sRem}, v{g4}
        s_lshl_b32 s3, s{sLw}, 5
        v_add_u32 v{t}, s3, v{la}
        s_bcnt1_i32_b64 s{sF0}, {sr(sTmp, 2)}
        s_bcnt1_i32_b64 s{sOwn}, vcc
        s_cmp_eq_u32 s{sW}, 7
        s_cselect_b32 s{sOwn}, s{sNn}, s{sOwn}
        s_sub_u32 s{sOwn}, s{sOwn}, s{sF0}
        s_sub_u32 s{sRem}, s{sRem}, s{sLw}
        s_sub_u32 s3, s{sOwn}, 1
        s_sub_u32 s{sTmp}, s{sRem}, 1
        s_lshr_b32 s3, s3, 3
        s_lshr_b32 s{sTmp}, s{sTmp}, 6
        s_or_b32 s3, s3, s{sTmp}
        s_cselect_b64 exec, 1, 0
        ds_write_b32 v{vZero}, v{vOne} offset:{L_FLAG}
        s_mov_b64 exec, -1
        v_cmp_le_u32_e64 {sr(sTmp, 2)}, s{sRem}, v{la + 2}
        s_sub_u32 s{sQ1}, s{sF0}, 1
        s_mul_i32 s{sQ2}, s{sQ1}, 528
        s_add_u32 s{sQ2}, s{sQ2}, {L_TA}
        s_mov_b32 s{sQ3}, 0xfffffe00
        v_add_u32 v{vT + 5}, s{sQ2}, v{vLo}
        v_cndmask_b32_e64 v{vInv}, 0, v{vX + 13}, {sr(sTmp, 2)}
        """)

    def slot_reads():
        for s in range(NS):
            A(f"ds_read_b128 {vr(vSl + 12 * s + 8, 4)}, v{vT + 5} offset:{528 * s}")

    def slot_exps():
        for s in range(NS):
            for j in range(4):
                A(f"v_exp_f32 v{vSl + 12 * s + 8 + j}, v{vSl + 12 * s + 8 + j}")

    vDa = vX + 20

    def w_dma(S, region):
        out = []
        for g in (0, 1, 4, 5):
            for i in range(4):
                pre = f"s_add_u32 m0, s{sQ3}, {region + 4096 * g}\ns_add_u32 s3, s{sQ2}, {4096 * g}\n" if i == 0 else ""
                out.append(pre + f"buffer_load_dwordx4 v{vDa + (i >> 1)}, {sr(S, 4)}, s3 offen offset:{1024 * i} lds")
        return out

    def w_offsets(sw):
        return f"""
        s_lshl_b32 s{sQ2}, s{sw}, 13
        s_and_b32 s{sQ2}, s{sQ2}, 0x2000
        s_lshl_b32 s{sQ3}, s{sw}, 14
        s_and_b32 s{sQ3}, s{sQ3}, 0x8000
        s_add_u32 s{sQ3}, s{sQ3}, s{sQ2}
        """

    def publish(name, data):
        return f"""
        s_lshl_b32 s3, s{sBk}, 7
        s_add_u32 s3, s3, {TF_OFF}
        s_mov_b64 exec, 1
        ds_add_rtn_u32 v{vSy}, v{vZero}, v{vOne} offset:{C_TF}
        s_waitcnt lgkmcnt(0)
        v_cmp_eq_u32 vcc, 7, v{vSy}
        s_cbranch_vccz L{name}
        buffer_store_dwordx2 {vr(data, 2)}, v{vZero}, {sr(S_OFFS, 4)}, s3 offen sc1
        L{name}:
        s_mov_b64 exec, -1
        """

    def ea_loads():
        return f"""
        v_add_u32 v{vEo}, v{vEo}, v{vH16}
        buffer_load_dwordx4 {vr(vEA, 4)}, v{vEo}, {sr(S_EA, 4)}, 0 offen {ea_pol}
        v_xor_b32 v{vEo2}, 2.0, v{vEo}
        s_nop 0
        buffer_load_dwordx4 {vr(vEB, 4)}, v{vEo2}, {sr(S_EB, 4)}, 0 offen sc1
        """

    def ea_merge():
        return "\n".join(f"v_or_b32 v{vEA + i}, v{vEA + i}, v{vEB + i}" for i in range(4))

    A(f"{NAME}_kernel:")
    A("s_cmp_ge_u32 s2, 256")
    A("s_cbranch_scc1 Lk2_exit")
    stamp(A, opt, 0)
    load_kernargs(A)
    A(f"""
    s_memrealtime {sr(sNon, 2)}
    v_mov_b32 v{vZero}, 0
    v_lshlrev_b32 v{vSy}, 2, v0
    ds_write_b32 v{vSy}, v{vZero} offset:{L_FLAG}
    ds_write_b32 v{vSy}, v{vZero} offset:{L_CNT}
    v_lshrrev_b32 v{vX}, 6, v0
    v_lshlrev_b32 v{vX + 2}, 4, v0
    v_readfirstlane_b32 s{sW}, v{vX}
    v_mov_b32 v{vTid}, v0
    v_and_b32 v{vX + 3}, 0x3f0, v{vX + 2}
    v_mov_b32 v{vOne}, 1
    s_and_b32 s3, s2, 7
    s_lshl_b32 s3, s3, 5
    s_lshr_b32 s{sBk}, s2, 3
    s_add_u32 s{sBk}, s{sBk}, s3
    s_mul_i32 s{sN0}, s{sBk}, {SM}
    s_add_u32 s{sOwn}, s{sN0}, {SM + SC}
    s_add_u32 s{sN0}, s{sN0}, {SC}
    s_lshr_b32 s{sOwn}, s{sOwn}, {SS}
    s_lshr_b32 s{sN0}, s{sN0}, {SS}
    s_sub_u32 s{sOwn}, s{sOwn}, s{sN0}
    s_mov_b32 s{S_DBG + 2}, 256
    s_mov_b32 s{S_DBG + 3}, 0x20000
    s_cmp_ge_u32 s{sW}, 4
    s_cbranch_scc1 Lteam_t
    """)

    pD, pS, pC, pA, pR, pE, pB, pG = 108, 116, 124, 132, 140, 0, 8, 16
    last = E - (NCH - 1) * CH
    A(f"""
    s_setprio 3
    s_cmp_eq_u32 s2, {NCH - 1}
    s_cselect_b32 s3, {last // 4}, 224
    s_cselect_b32 s{sTmp}, 0, 224
    v_cmp_gt_u32_e64 {sr(sPM0, 2)}, s3, v0
    v_cmp_gt_u32_e64 {sr(sPM1, 2)}, s{sTmp}, v0
    v_mul_u32_u24 v{vX + 1}, 12, v0
    s_mul_i32 s{sQ1}, s2, {CH * 4}
    s_add_u32 s{sQ2}, s{sQ1}, {CH * 4}
    s_min_u32 s{S_DST + 2}, s{sQ2}, {E * 4}
    s_mov_b32 s{S_DST + 3}, 0x20000
    s_mov_b32 s{S_SRC + 2}, s{S_DST + 2}
    s_mov_b32 s{S_SRC + 3}, 0x20000
    s_waitcnt lgkmcnt(0)
    s_mov_b64 {sr(S_DST, 2)}, {sr(P_DST, 2)}
    s_mov_b64 {sr(S_SRC, 2)}, {sr(P_SRC, 2)}
    buffer_load_dwordx4 {vr(pD, 4)}, v{vX + 2}, {sr(S_DST, 4)}, s{sQ1} offen
    buffer_load_dwordx3 {vr(pD + 4, 3)}, v{vX + 1}, {sr(S_DST, 4)}, s{sQ1} offen offset:3584
    buffer_load_dwordx4 {vr(pS, 4)}, v{vX + 2}, {sr(S_SRC, 4)}, s{sQ1} offen
    buffer_load_dwordx3 {vr(pS + 4, 3)}, v{vX + 1}, {sr(S_SRC, 4)}, s{sQ1} offen offset:3584
    s_barrier
    s_mov_b64 {sr(S_DBG, 2)}, {sr(P_DBG, 2)}
    """)
    common_setup()
    S_WP = S_WC
    A(f"""
    s_cmp_lt_u32 s{sW}, 2
    s_cselect_b32 s{S_WP}, s{P_WA}, s{P_WU}
    s_cselect_b32 s{S_WP + 1}, s{P_WA + 1}, s{P_WU + 1}
    s_mov_b32 s{S_WP + 2}, 32768
    s_mov_b32 s{S_WP + 3}, 0x20000
    s_mov_b32 s{sQ2}, {BM}
    s_mov_b32 s{sQ3}, {-SM}
    v_lshlrev_b32 v{pE}, 8, v{vTid}
    v_add_u32 v{pE + 1}, 64, v{pE}
    v_add_u32 v{pE + 2}, 0x80, v{pE}
    v_add_u32 v{pE + 3}, 0xc0, v{pE}
    v_lshlrev_b32 v{pE + 4}, 4, v{vX + 1}
    v_add_u32 v{pE + 5}, {896 * 64 + 64}, v{pE + 4}
    v_add_u32 v{pE + 6}, {896 * 64 + 128}, v{pE + 4}
    v_add_u32 v{pE + 4}, {896 * 64}, v{pE + 4}
    v_lshlrev_b32 v{vPa}, 11, v{vTid}
    v_lshrrev_b32 v{vX + 9}, 1, v{vX + 3}
    v_cmp_gt_u32 vcc, {32 * NE}, v{vTid}
    v_mov_b32 v{pE + 7}, 0x10001
    s_and_b64 {sr(sMore, 2)}, vcc, {sr(sPM0, 2)}
    v_cndmask_b32 v{pE + 7}, 1, v{pE + 7}, vcc
    s_mov_b64 exec, {sr(sPM0, 2)}
    s_waitcnt vmcnt(3)
    """)
    stamp(A, opt, "dst")
    for lo, hi in ((0, 4), (4, 7)):
        if lo:
            A(f"s_mov_b64 exec, {sr(sPM1, 2)}")
            A("s_waitcnt vmcnt(2)")
        for i in range(lo, hi):
            A(f"v_mul_u32_u24 v{pC + i}, s{sQ2}, v{pD + i}")
        for i in range(lo, hi):
            A(f"v_lshrrev_b32 v{pC + i}, {BS}, v{pC + i}")
            A(f"v_lshlrev_b32 v{pA + i}, 2, v{pC + i}")
            A(f"ds_add_rtn_u32 v{pR + i}, v{pA + i}, v{vOne if lo else pE + 7} offset:{P_CNT}")
    arrive(C_S1)
    for i in range(7):
        A(f"v_lshl_add_u32 v{pD + i}, v{pD + i}, {SS}, {(1 << SS) - 1 - SC}")
        A(f"v_mad_i32_i24 v{pD + i}, v{pC + i}, s{sQ3}, v{pD + i}")
        A(f"v_lshrrev_b32 v{pD + i}, {SS}, v{pD + i}")
    spin("s1", C_S1, f"ds_read_b128 {vr(pC, 4)}, v{vX + 3} offset:{P_CNT}")
    stamp(A, opt, "b2")
    A(f"""
    v_add_u32 v{pB + 2}, v{pC}, v{pC + 1}
    v_add3_u32 v{pG + 1}, v{pB + 2}, v{pC + 2}, v{pC + 3}
    v_add_u32 v{pB + 3}, v{pB + 2}, v{pC + 2}
    v_mov_b32 v{pG}, v{pG + 1}
    s_waitcnt vmcnt(0)
    """)
    rec_ops = []
    for i in range(7):
        rec_ops += [f"v_lshl_or_b32 v{pS + i}, v{pS + i}, 18, v{pE + i}", f"v_or_b32 v{pS + i}, v{pS + i}, v{pD + i}"]
    wave_scan(A, pG + 1, fill=[[]] + [rec_ops[2 * k: 2 * k + 2] for k in range(5)])
    A(f"""
    v_sub_u32 v{pB}, v{pG + 1}, v{pG}
    v_add_u32 v{pB + 1}, v{pB}, v{pC}
    v_add_u32 v{pB + 2}, v{pB}, v{pB + 2}
    v_add_u32 v{pB + 3}, v{pB}, v{pB + 3}
    ds_write_b128 v{vX + 3}, {vr(pB, 4)} offset:{P_BASE}
    s_mov_b64 exec, {sr(sPM0, 2)}
    """)
    for i in range(7):
        if i == 4:
            A(f"s_mov_b64 exec, {sr(sPM1, 2)}")
        A(f"ds_read_b32 v{pA + i}, v{pA + i} offset:{P_BASE}")
    for o in rec_ops[10:]:
        A(o)
    A("s_mov_b64 exec, -1")
    A(nonce_load)
    A(f"s_mov_b32 s{sQ2}, 0x3ffc0")
    A(f"s_mov_b32 s{sQ3}, 0x8000000")
    A(f"s_mov_b64 exec, {sr(sMore, 2)}")
    A("s_waitcnt lgkmcnt(0)")
    stamp(A, opt, "scan")
    for i in range(4):
        A(f"v_add3_u32 v{pC + i}, v{pA + i}, v{pR + i}, s{sQ3}")
        A(f"v_lshrrev_b32 v{pD + i}, 10, v{pC + i}")
        A(f"v_bfi_b32 v{pS + i}, s{sQ2}, v{pD + i}, v{pS + i}")
    A(f"s_mov_b64 exec, {sr(sPM0, 2)}")
    for i in range(7):
        if i == 4:
            A(f"s_mov_b64 exec, {sr(sPM1, 2)}")
        A(f"v_add_lshl_u32 v{pA + i}, v{pA + i}, v{pR + i}, 2")
        A(f"v_and_b32 v{pA + i}, 0xffff, v{pA + i}")
        A(f"ds_write_b32 v{pA + i}, v{pS + i} offset:{P_SORT}")
    arrive(C_S2)
    A(f"""
    s_add_u32 s{S_SRC}, s{S_REC}, s{sQ1}
    s_addc_u32 s{S_SRC + 1}, s{S_REC + 1}, 0
    s_movk_i32 s{S_SRC + 2}, {CH * 4}
    s_movk_i32 s3, 4096
    """)
    spin("s2", C_S2, f"ds_read_b128 {vr(pD, 4)}, v{vX + 2} offset:{P_SORT}\nds_read_b128 {vr(pD + 4, 4)}, v{vX + 2} offset:{P_SORT + 4096}")
    for k in range(2):
        A(f"buffer_store_dwordx4 {vr(pD + 4 * k, 4)}, v{vX + 2}, {sr(S_SRC, 4)}, {('0', 's3')[k]} offen sc1")
    A(f"s_mov_b64 exec, {sr(sMore, 2)}")
    for i in range(4):
        A(f"v_lshrrev_b32 v{pC + i}, 14, v{pC + i}")
        A(f"v_lshrrev_b32 v{pE + i}, 1, v{pE + i}")
        A(f"ds_write_b32 v{pC + i}, v{pE + i} offset:{L_INV - 8192}")
    A("s_mov_b64 exec, -1")
    stamp(A, opt, "b3")
    for k in range(2):
        A(f"ds_read_b64 {vr(pC + 2 * k, 2)}, v{vX + 9} offset:{P_CNT + 512 * k}")
        A(f"ds_read_b64 {vr(pB + 2 * k, 2)}, v{vX + 9} offset:{P_BASE + 512 * k}")
    A("s_waitcnt vmcnt(2)")
    nonce_wait("pnon")
    A(f"s_lshl_b32 s3, s{sNon + 1}, 22")
    A("s_waitcnt lgkmcnt(0)")
    for i in range(4):
        A(f"v_and_b32 v{pC + i}, 0x7ff, v{pC + i}")
        A(f"v_and_b32 v{pB + i}, 0x7ff, v{pB + i}")
        A(f"v_lshl_or_b32 v{pG + 2 * i}, v{pC + i}, 11, v{pB + i}")
        A(f"v_mov_b32 v{pG + 2 * i + 1}, s{sNon}")
        A(f"v_or_b32 v{pG + 2 * i}, s3, v{pG + 2 * i}")
    A(f"""
    v_mul_u32_u24 v{vX + 1}, {CH}, v{vTid}
    v_lshlrev_b32 v{vX + 2}, 5, v{vX + 1}
    v_bfe_u32 v{vDa}, v{vTid}, 4, 2
    v_lshlrev_b32 v{vDa}, 6, v{vDa}
    v_xor_b32 v{vDa}, v{vX + 3}, v{vDa}
    v_xor_b32 v{vDa + 1}, 32, v{vDa}
    {w_offsets(sW)}
    v_lshrrev_b32 v{pE}, 5, v{vX + 3}
    s_mul_i32 s3, s{sW}, {128 * NE}
    v_lshl_add_u32 v{pE}, v{pE}, 2, s3
    v_and_b32 v{pE + 1}, 16, v{vX + 3}
    s_mul_i32 s{sOvf}, s2, {CH * 32}
    s_lshl_b32 s3, s3, 3
    s_add_u32 s{sOvf}, s{sOvf}, s3
    s_lshl_b32 s3, s2, 11
    s_lshl_b32 s{sQ1}, s{sBk}, 3
    s_mov_b64 exec, 1
    s_waitcnt vmcnt(0)
    ds_add_rtn_u32 v{vSy}, v{vZero}, v{vOne} offset:{C_S3}
    s_waitcnt lgkmcnt(0)
    v_cmp_eq_u32 vcc, 3, v{vSy}
    s_mov_b64 exec, -1
    s_cbranch_vccz Lno_off
    buffer_store_dwordx4 {vr(pG, 4)}, v{vX + 3}, {sr(S_OFFS, 4)}, s3 offen sc1
    buffer_store_dwordx4 {vr(pG + 4, 4)}, v{vX + 3}, {sr(S_OFFS, 4)}, s3 offen offset:1024 sc1
    Lno_off:
    """)
    stamp(A, opt, "sig")
    spin("ps3", C_S3, "\n".join(f"ds_read_b32 v{pA + i}, v{pE} offset:{L_INV + 128 * i}" for i in range(NE)))
    for i in range(NE):
        A(f"v_and_b32 v{pA + i}, 0x7fe0, v{pA + i}")
        A(f"v_or_b32 v{pA + i}, v{pA + i}, v{pE + 1}")
    spin("pe1", C_E1, "\n".join(f"ds_read_b128 {vr(vL + 4 * i, 4)}, v{pA + i} offset:{L_R2}" for i in range(NE)), sleep=1)
    arrive(C_E2)
    stamp(A, opt, "e2")
    for i in range(NE):
        if i == 4:
            A(f"s_add_u32 s{sOvf}, s{sOvf}, 4096")
        A(f"buffer_store_dwordx4 {vr(vL + 4 * i, 4)}, v{vX + 3}, {sr(S_EB, 4)}, s{sOvf} offen offset:{1024 * (i & 3)} sc1")
    spin("pe2", C_E2)
    A("\n".join(w_dma(S_WP, L_R2)))
    stamp(A, opt, "wau")
    late_setup(vL)
    fRec, fKey, fRank = 24, 48, 72
    for i in range(0, WIN, 2):
        A(f"v_mov_b64 {vr(fKey + i, 2)}, 0")
    if int(opt.get("pdelay", 0)):
        A(f"s_sleep {opt['pdelay']}")
    poll = f"buffer_load_dwordx2 {vr(vOffs, 2)}, v{vPa}, {sr(S_OFFS, 4)}, s{sQ1} offen sc1"
    A(poll)
    A("s_waitcnt vmcnt(1)")
    arrive(C_WA)
    A(publish("no_tf_p", pG))
    tag_wait("off", vOffs, poll, int(opt.get("psleep", 0)))
    stamp(A, opt, "off")
    A(f"""
    v_and_b32 v{vX + 4}, 0x7ff, v{vOffs}
    v_bfe_u32 v{vCnt}, v{vOffs}, 11, 11
    v_add_lshl_u32 v{vX + 4}, v{vX + 4}, v{vX + 1}, 2
    s_mov_b32 s{sNg}, 1
    buffer_load_dwordx4 {vr(fRec, 4)}, v{vX + 4}, {sr(S_REC, 4)}, 0 offen sc1
    """)
    for g in range(1, WIN // 4):
        A(f"v_cmpx_lt_u32 vcc, {4 * g}, v{vCnt}")
        A("s_cbranch_execz Lrec_done")
        A(f"buffer_load_dwordx4 {vr(fRec + 4 * g, 4)}, v{vX + 4}, {sr(S_REC, 4)}, 0 offen offset:{16 * g} sc1")
        A(f"s_mov_b32 s{sNg}, {g + 1}")
    A(f"""
    v_cmpx_lt_u32 vcc, {WIN}, v{vCnt}
    ds_write_b32 v{vZero}, v{vOne} offset:{L_FLAG}
    Lrec_done:
    s_mov_b64 exec, -1
    s_waitcnt vmcnt(0)
    """)
    stamp(A, opt, "rec")
    for i in range(WIN):
        A(f"v_cmpx_lt_u32 vcc, {i}, v{vCnt}")
        if i >= 8:
            A("s_cbranch_execz Lhist_done")
        A(f"v_alignbit_b32 v{fKey + i}, v{fRec + i}, v{fRec + i}, 27")
        A(f"v_and_b32 v{fKey + i}, 0x7fc, v{fKey + i}")
        A(f"ds_add_rtn_u32 v{fRank + i}, v{fKey + i}, v{vOne} offset:{L_CNT}")
    A("Lhist_done:")
    arrive(C_S4)

    def base_reads():
        for g in range(WIN // 4):
            if g >= 2:
                A(f"s_cmp_le_u32 s{sNg}, {g}")
                A("s_cbranch_scc1 Lbase_done")
            for i in range(4 * g, 4 * g + 4):
                A(f"ds_read_b32 v{fKey + i}, v{fKey + i} offset:{L_BASE}")
        A("Lbase_done:")

    node_scan("s4p", base_reads, 0)
    A(f"v_lshl_add_u32 v{deg}, v{deg}, 3, v{p}")
    wave_range()
    spin("pau", C_AU)
    stamp(A, opt, "scan2")
    for i in range(WIN):
        A(f"v_cmpx_lt_u32 vcc, {i}, v{vCnt}")
        if i >= 8:
            A("s_cbranch_execz Lplace_done")
        A(f"v_lshl_add_u32 v{fKey + i}, v{fRank + i}, 3, v{fKey + i}")
        A(f"ds_write2_b32 v{fKey + i}, v{fRec + i}, v{vX + 2} offset0:0 offset1:1")
    A(f"""
    Lplace_done:
    s_mov_b64 exec, {sr(sNext, 2)}
    ds_write_b64 v{deg}, {vr(vX + 12, 2)}
    s_mov_b64 exec, -1
    s_branch Ljoin
    """)

    vXw, vXrd, vBt, vAt, vSw, vSr, vBs, vTw = 118, 119, 120, 121, 122, 123, 124, 125
    vXs, tE, tG = vL, 128, 132
    sCb = sW0
    A(f"""
    Lteam_t:
    s_getpc_b64 s[{sTmp}:{sTmp + 1}]
    Lpc:
    s_sub_u32 s{sTmp}, s{sTmp}, Lpc - {NAME}_kernel
    s_subb_u32 s{sTmp + 1}, s{sTmp + 1}, 0
    v_and_b32 v{vX + 2}, 0xff0, v{vX + 2}
    v_lshlrev_b32 v1, 3, v{vX + 2}
    v_cmp_gt_u32 vcc, Lslow_entry - {NAME}_kernel, v1
    s_and_saveexec_b64 {sr(sNext, 2)}, vcc
    s_cbranch_execz Lno_cpf
    global_load_dword v2, v1, s[{sTmp}:{sTmp + 1}]
    Lno_cpf:
    s_mov_b64 exec, -1
    s_and_b32 s{sCb}, s{sW}, 3
    v_bfe_u32 v{vX + 1}, v0, 4, 2
    v_lshlrev_b32 v{vX + 4}, 6, v{vX + 1}
    v_xor_b32 v{vDa}, v{vX + 3}, v{vX + 4}
    v_xor_b32 v{vDa + 1}, 32, v{vDa}
    v_lshlrev_b32 v1, 3, v{vX + 3}
    s_mov_b32 s{S_W + 2}, 32768
    s_mov_b32 s{S_W + 3}, 0x20000
    s_mov_b32 s{S_W2 + 2}, 32768
    s_mov_b32 s{S_W2 + 3}, 0x20000
    s_lshr_b32 s{sQ1}, s2, 3
    s_lshl_b32 s{sQ1}, s{sQ1}, 10
    s_and_b32 s3, s{sCb}, 1
    s_lshl_b32 s{sQ2}, s3, 9
    s_add_u32 s{sQ1}, s{sQ1}, s{sQ2}
    {w_offsets(sCb)}
    s_cmp_lt_u32 s{sCb}, 2
    s_waitcnt lgkmcnt(0)
    s_cselect_b32 s{S_W}, s{P_WB}, s{P_WV}
    s_cselect_b32 s{S_W + 1}, s{P_WB + 1}, s{P_WV + 1}
    s_cselect_b32 s{S_W2}, s{P_WA}, s{P_WU}
    s_cselect_b32 s{S_W2 + 1}, s{P_WA + 1}, s{P_WU + 1}
    s_mov_b64 {sr(S_DBG, 2)}, {sr(P_DBG, 2)}
    s_mov_b64 exec, 15
    buffer_load_dword v3, v1, {sr(S_W, 4)}, s{sQ1} offen
    buffer_load_dword v4, v1, {sr(S_W2, 4)}, s{sQ1} offen
    s_xor_b32 s3, s{sW}, 7
    s_or_b32 s3, s3, s2
    s_cbranch_scc1 Lno_nonce
    s_or_b32 s3, s{sNon}, 1
    v_mov_b32 v{vNon}, s3
    v_mov_b32 v{vNon + 1}, s{sNon + 1}
    s_mov_b64 exec, 1
    buffer_store_dwordx2 {vr(vNon, 2)}, v{vZero}, {sr(S_DBG, 4)}, 0 offen sc1
    Lno_nonce:
    s_mov_b64 exec, -1
    s_lshl_b32 s3, s{sN0}, 8
    s_add_u32 s{S_X}, s{P_X}, s3
    s_addc_u32 s{S_X + 1}, s{P_X + 1}, 0
    s_lshl_b32 s{S_X + 2}, s{sOwn}, 8
    s_mov_b32 s{S_X + 3}, 0x20000
    """)
    A("s_mov_b32 s3, 0")
    A("s_barrier")
    stamp(A, opt, "tb1")
    for i in range(4):
        A(f"buffer_load_dwordx4 {vr(vXs + 4 * i, 4)}, v{vX + 2}, {sr(S_X, 4)}, s3 offen")
        A("s_add_u32 s3, s3, 4096")
    wbv = w_dma(S_W, L_R1)
    A("\n".join(wbv[:4]))
    srd(A, S_WC, P_WC, 4096)
    common_setup()
    A(f"""
    s_lshl_b32 s3, s{sN0}, 9
    s_add_u32 s{S_TW}, s{P_WS}, s3
    s_addc_u32 s{S_TW + 1}, s{P_WS + 1}, 0
    s_lshl_b32 s{S_TW + 2}, s{S_X + 2}, 1
    s_mov_b32 s{S_TW + 3}, 0x20000
    v_lshrrev_b32 v{tE}, 8, v{vX + 2}
    v_lshl_add_u32 v{vXw}, v{tE}, 4, v{vX + 2}
    v_add_u32 v{vXw}, {L_X}, v{vXw}
    v_bfe_u32 v{tE + 2}, v{vTid}, 2, 2
    v_xor_b32 v{tE}, s{sCb}, v{tE + 2}
    v_lshlrev_b32 v{tE}, 6, v{tE}
    v_and_b32 v{tE + 1}, 3, v{vTid}
    v_lshl_add_u32 v{tE}, v{tE + 1}, 3, v{tE}
    v_lshl_add_u32 v{tE}, v{tE + 2}, 8, v{tE}
    v_and_b32 v{tE + 1}, 1, v{vX + 1}
    v_xor_b32 v{tE + 1}, v{tE + 1}, v{vX + 4}
    v_lshl_add_u32 v{tE}, v{tE + 1}, 5, v{tE}
    v_lshl_add_u32 v{tE}, v{vX + 4}, 11, v{tE}
    v_add_u32 v{vBt}, {L_R1}, v{tE}
    v_add_u32 v{vAt}, {L_R2}, v{tE}
    v_and_b32 v{tE + 2}, 31, v{vTid}
    v_mul_u32_u24 v{vXrd}, 272, v{tE + 2}
    s_mov_b32 s3, {L_X}
    v_add3_u32 v{vXrd}, v{vXrd}, v{vH16}, s3
    s_mul_i32 s3, s{sCb}, 9216
    s_add_u32 s3, s3, {L_R1}
    v_mul_u32_u24 v{vSw}, 144, v{tE + 2}
    v_add3_u32 v{vSw}, v{vSw}, v{vH16}, s3
    v_bfe_u32 v{tE}, v{vTid}, 3, 3
    v_lshl_add_u32 v{vSr}, v{tE}, 4, v{vX + 3}
    v_add_u32 v{vSr}, s3, v{vSr}
    v_and_b32 v{tE + 1}, 0x70, v{vX + 3}
    v_lshl_add_u32 v{vBs}, v{tE}, 9, v{tE + 1}
    s_lshl_b32 s3, s{sCb}, 7
    v_add_u32 v{vBs}, s3, v{vBs}
    v_mul_u32_u24 v{vTw}, 528, v{tE + 2}
    s_add_u32 s3, s3, {L_TA}
    v_add3_u32 v{vTw}, v{vTw}, v{vH16}, s3
    s_mul_i32 s{sQ1}, s2, {CH * 32}
    s_mul_i32 s{sTmp + 1}, s{sCb}, {1024 * NE}
    s_add_u32 s{sQ1}, s{sQ1}, s{sTmp + 1}
    s_lshl_b32 s{sTmp}, s{sCb}, 10
    """)
    A("\n".join(wbv[4:12]))
    A("s_waitcnt vmcnt(12)")
    for i in range(4):
        if i == 3:
            A(f"s_cmp_eq_u32 s{sCb}, 0")
            A("s_cselect_b64 exec, -1, 0")
        A(f"ds_write_b128 v{vXw}, {vr(vXs + 4 * i, 4)} offset:{16 * 272 * i}")
    A("s_mov_b64 exec, -1")
    A("\n".join(wbv[12:]))
    stamp(A, opt, "tiss")
    A("s_waitcnt vmcnt(8)")
    arrive(C_T0)
    epol = opt.get("e_in", "")
    ein = []
    for i in range(NE):
        pre = f"s_add_u32 m0, s{sTmp + 1}, {L_R2 + 4096 * (i >> 2)}\ns_add_u32 s3, s{sQ1}, {4096 * (i >> 2)}\n" if i % 4 == 0 else ""
        ein.append(pre + f"buffer_load_dwordx4 v{vX + 3}, {sr(S_EA, 4)}, s3 offen offset:{1024 * (i & 3)} {epol} lds")
    ein.append(f"s_add_u32 m0, s{sTmp}, {L_WCR}\ns_nop 0\nbuffer_load_dwordx4 v{vX + 3}, {sr(S_WC, 4)}, s{sTmp} offen lds")
    ein.append(nonce_load)
    ne0 = int(opt.get("ne0", 2))
    A("\n".join(ein[:ne0]))
    spin("t0", C_T0)
    stamp(A, opt, "t0")

    def gemm(vt, extra=(), hooks=None):
        def reads(s):
            r = 64 + 16 * (s % 3)
            for m in range(2):
                for z in range(2):
                    A(f"ds_read_b64_tr_b16 {vr(r + 4 * m + 2 * z, 2)}, v{vt} offset:{m * 32768 + s * 4096 + z * 1024}")
            for nb in range(2):
                A(f"ds_read_b128 {vr(r + 8 + 4 * nb, 4)}, v{vXrd} offset:{32 * 272 * nb + 32 * s}")
        reads(0)
        reads(1)
        for s in range(8):
            r = 64 + 16 * (s % 3)
            A(f"s_waitcnt lgkmcnt({6 if s < 7 else 0})")
            for nb in range(2):
                for m in range(2):
                    d = 32 * m + 16 * nb
                    A(f"v_mfma_f32_32x32x16_bf16 {vr(d, 16)}, {vr(r + 4 * m, 4)}, {vr(r + 8 + 4 * nb, 4)}, {'0' if s == 0 else vr(d, 16)}")
                if nb == 0 and s + 2 < 8:
                    if hooks and s in hooks:
                        hooks[s]()
                    reads(s + 2)
            if s < len(extra):
                A(extra[s])

    def second_half_landed():
        A(f"s_waitcnt vmcnt({ne0})")
        arrive(C_T1)

    def second_half_wait():
        spin("t1", C_T1)

    e1_at = int(opt.get("e1_at", 5))
    extra = [""] * 8
    extra[1] = "\n".join(ein[ne0:])
    extra[e1_at] = f"s_waitcnt vmcnt(0)\ns_mov_b64 exec, 1\nds_add_u32 v{vZero}, v{vOne} offset:{C_E1}\ns_mov_b64 exec, -1"
    gemm(vBt, extra, {1: second_half_landed, 2: second_half_wait})
    stamp(A, opt, "bvm")
    arrive(C_T2)
    nonce_wait("tnon")
    A(f"s_lshl_b32 s3, s{sNon + 1}, 22")
    A(f"v_mov_b32 v{tG}, s3")
    A(f"v_mov_b32 v{tG + 1}, s{sNon}")
    for i in range(32):
        A(f"v_fma_mixlo_f16 v{32 + i}, v{i}, s{sNl}, 0")
    spin("t2", C_T2)
    for nb in range(2):
        for g in range(4):
            A(f"ds_write_b128 v{vSw}, {vr(32 + 16 * nb + 4 * g, 4)} offset:{4608 * nb + 32 * g}")
    bO = vL
    for i in range(7):
        A(f"ds_read_b128 {vr(bO + 4 * i, 4)}, v{vSr} offset:{1152 * i}")
    stamp(A, opt, "stg")
    arrive(C_T3)
    A(f"""
    s_or_b32 s3, s2, s{sCb}
    s_cbranch_scc1 Lno_pad
    v_mov_b32 v{tE}, 0x7c00
    v_mov_b32 v{tE + 1}, 0x7c00
    v_lshrrev_b32 v{tE + 2}, 1, v{vX + 3}
    s_mov_b32 s3, {TAB_BYTES}
    buffer_store_dwordx2 {vr(tE, 2)}, v{tE + 2}, {sr(S_TAB, 4)}, s3 offen sc1
    Lno_pad:
    s_mov_b32 s3, 0
    s_waitcnt lgkmcnt(0)
    """)
    stores = [f"buffer_store_dwordx4 {vr(bO + 4 * i, 4)}, v{vBs}, {sr(S_TW, 4)}, s3 offen sc1\ns_add_u32 s3, s3, 4096" for i in range(7)]
    npre = int(opt.get("npre", 7))
    for o in stores[:npre]:
        A(o)
    stamp(A, opt, "bve")

    def table_signal():
        return "s_waitcnt vmcnt(0)\n" + publish("no_tf_t", tG)

    sig_at = int(opt.get("sig_at", 2))
    extra = stores[npre:] + [""] * 8
    assert sig_at >= 7 - npre
    if sig_at < 8:
        extra[sig_at] = table_signal()
    spin("twa", C_WA)
    gemm(vAt, extra[:8])
    arrive(C_AU)
    stamp(A, opt, "aum")
    A(f"""
    v_mov_b32 v{tE}, {hex(f32(-float(KSH)))}
    v_mov_b32 v{tE + 1}, {hex(f32(-float(KSH)))}
    v_mov_b32 v{tE + 2}, 0
    s_mov_b32 s{sTmp}, s{sNl}
    s_mov_b32 s{sTmp + 1}, s{sNl}
    """)
    spin("t3", C_T3)
    row_mask = "s_mov_b32 exec_lo, 0xfffff\ns_mov_b32 exec_hi, 0xfffff"
    for i in range(0, 32, 2):
        if i == 16:
            A(row_mask)
        A(f"v_max3_f32 v{tE + 2}, |v{i}|, |v{i + 1}|, v{tE + 2}")
        A(f"v_pk_fma_f32 {vr(i, 2)}, {vr(i, 2)}, {sr(sTmp, 2)}, {vr(tE, 2)}")
        if i % 4 == 2:
            off = 32 * 528 * (i >> 4) + 32 * ((i >> 2) & 3)
            A(f"ds_write_b128 v{vTw}, {vr(32 + i - 2, 4)} offset:{L_TU - L_TA + off}")
            A(f"ds_write_b128 v{vTw}, {vr(i - 2, 4)} offset:{off}")
    A("s_mov_b64 exec, -1")
    A(f"v_cmpx_lt_f32 vcc, {hex(f32(AMAX))}, v{tE + 2}")
    A(f"ds_write_b32 v{vZero}, v{vOne} offset:{L_FLAG}")
    arrive(C_TA)
    if sig_at >= 8:
        A(table_signal())
    stamp(A, opt, "tsig")
    late_setup(vL)
    for o in zero_ops:
        A(o)
    vTf = tE
    tf_poll = f"buffer_load_dwordx2 {vr(vTf, 2)}, v{vPa}, {sr(S_OFFS, 4)}, s{sQ1} offen sc1"
    A(f"""
    v_lshlrev_b32 v{vPa}, 3, v{vX + 2}
    s_mov_b32 s{sQ1}, {TF_OFF}
    {tf_poll}
    """)
    tag_wait("tf", vTf, tf_poll, int(opt.get("tsleep", 4)))
    stamp(A, opt, "tfok")
    if npf:
        A(f"""
        s_cmp_lg_u32 s{sCb}, 0
        s_cbranch_scc1 Lno_pf
        v_lshlrev_b32 v{tE + 2}, 3, v{vX + 3}
        s_lshr_b32 s3, s2, 3
        s_lshl_b32 s3, s3, 13
        """)
        for i in range(npf):
            A(f"buffer_load_dword v{tE + 3}, v{tE + 2}, {sr(S_TAB, 4)}, s3 offen {tab_pol}")
            A(f"s_add_u32 s3, s3, {32 * 8192}")
        A("Lno_pf:")
    node_scan("s4t", None, 2)
    A("s_nop 0")
    wave_range()
    spin("tta", C_TA)
    slot_reads()
    A("s_waitcnt lgkmcnt(0)")
    slot_exps()

    A(f"""
    Ljoin:
    {f's_mov_b32 s{S_TAB + 2}, 0' if opt.get('notab') else ''}
    v_mov_b64 {vr(cn, 2)}, 1
    s_waitcnt lgkmcnt(0)
    """)
    stamp(A, opt, "join")
    A(f"""
    s_barrier
    s_setprio 3
    ds_read_b128 {vr(en, 4)}, v{t} offset:{L_SO}
    ds_read_b32 v{t + 3}, v{vZero} offset:{L_FLAG}
    ds_read_b128 {vr(en + 4, 4)}, v{t} offset:{L_SO + 16}
    s_waitcnt lgkmcnt(2)
    v_lshrrev_b32 v{key}, 26, v{en + 2}
    v_and_b32 v{key}, 56, v{key}
    v_cndmask_b32_e64 v{key}, v{key}, 56, {sr(sTmp, 2)}
    s_waitcnt lgkmcnt(1)
    v_readfirstlane_b32 s3, v{t + 3}
    v_lshlrev_b64 {vr(cn, 2)}, v{key}, {vr(cn, 2)}
    v_and_b32 v{t + 3}, 63, v{en}
    s_cmp_lg_u32 s3, 0
    s_cbranch_scc1 Lslow_entry
    s_waitcnt lgkmcnt(0)
    ds_write_b32 v{vEp}, v{vX + 13} offset:{1152 + 1024}
    """)
    stamp(A, opt, "bD")
    fillers = [f"v_subrev_u32 v{t + 3}, s{sQ1}, v{t + 3}", f"v_mul_u32_u24 v{t + 3}, 12, v{t + 3}"]
    fillers += [f"v_lshrrev_b32 v{so + i}, 9, v{en + 2 * i}" for i in range(4)]
    for k, d in enumerate(WAVE_SCAN):
        A(f"v_add_u32_dpp v{cn}, v{cn}, v{cn} {d} bank_mask:0xf")
        A(f"v_add_u32_dpp v{cn + 1}, v{cn + 1}, v{cn + 1} {d} bank_mask:0xf")
        A(fillers[k])
    A(f"v_readlane_b32 s{sTmp}, v{cn}, 63")
    A(f"v_readlane_b32 s{sTmp + 1}, v{cn + 1}, 63")
    for i in range(4):
        A(f"v_bfe_u32 v{eo + i}, v{en + 2 * i}, 6, 11")
        A(f"v_lshlrev_b32 v{en + 2 * i}, 13, v{en + 2 * i}")
    A(f"""
    s_mul_i32 s3, s{sTmp}, 0x01010101
    s_mul_i32 s{sTmp + 1}, s{sTmp + 1}, 0x01010100
    s_lshl_b32 s{sTmp}, s3, 8
    s_lshr_b32 s3, s3, 24
    s_mul_i32 s3, s3, 0x01010101
    s_add_u32 s{sTmp + 1}, s{sTmp + 1}, s3
    v_lshl_add_u64 {vr(cn, 2)}, {vr(cn, 2)}, 0, {sr(sTmp, 2)}
    s_sub_u32 s3, s{sSW}, 16
    v_lshrrev_b64 {vr(cn, 2)}, v{key}, {vr(cn, 2)}
    """)
    for i in range(4):
        A(f"v_lshl_add_u32 v{eo + i}, v{eo + i}, 5, v{en + 2 * i + 1}")
    A(f"v_and_b32 v{pos}, 0xff, v{cn}")
    for i in range(4):
        A(f"v_and_or_b32 v{en + 2 * i}, v{en + 2 * i}, 2.0, v{vInv}")
        A(f"v_or_b32 v{eo + i}, v{eo + i}, v{en + 2 * i}")
    A(f"v_lshl_add_u32 v{t}, v{pos}, 4, s3")
    A(f"ds_write_b128 v{t}, {vr(eo, 4)} offset:1152")
    A(f"ds_read_b32 v{vEo}, v{vEp} offset:1152")
    for i in range(4):
        A(f"v_and_or_b32 v{so + i}, v{so + i}, s{sQ3}, v{vInv}")
    A(f"""
    v_and_b32 v{t + 1}, 1, v{pos}
    v_lshl_add_u32 v{t + 1}, v{t + 1}, 3, v{t}
    v_subrev_u32 v{t + 1}, 8, v{t + 1}
    ds_write2_b64 v{t + 1}, {vr(so, 2)}, {vr(so + 2, 2)} offset0:0 offset1:2
    ds_read_b128 {vr(vSo, 4)}, v{vSp}
    ds_read_b128 {vr(vT, 4)}, v{vSp} offset:32
    v_add_u32 v{t + 2}, s{sSW}, v{pos}
    ds_write_b8 v{t + 2}, v{t + 3} offset:2303
    ds_read_b32 v{vT + 4}, v{vEp} offset:{1152 + 128}
    ds_read_b32 v{vSb}, v{la + 3} offset:2304
    s_waitcnt lgkmcnt(6)
    {ea_loads()}
    """)
    stamp(A, opt, "str")
    for u in range(4):
        src = (vSo, vSo + 2, vT, vT + 2)[u]
        if u in (0, 2):
            A(f"s_waitcnt lgkmcnt({(4, 2)[u // 2]})")
        A(f"v_lshl_add_u64 {vr(src, 2)}, {vr(src, 2)}, 0, {vr(vLo, 2)}")
        A(f"buffer_load_dwordx4 {vr(vL + 8 * u, 4)}, v{src}, {sr(S_TAB, 4)}, 0 offen {tab_pol}")
        A(f"buffer_load_dwordx4 {vr(vL + 8 * u + 4, 4)}, v{src + 1}, {sr(S_TAB, 4)}, 0 offen {tab_pol}")
    stamp(A, opt, "prim")
    A(f"s_cmp_ge_u32 s{sW}, 4")
    A("s_cbranch_scc1 Lslots_done")
    slot_reads()
    for o in zero_ops:
        A(o)
    A("s_waitcnt lgkmcnt(0)")
    slot_exps()
    A(f"""
    Lslots_done:
    s_waitcnt lgkmcnt(0)
    v_mov_b32 v{vEo}, v{vT + 4}
    v_readlane_b32 s{sSl0}, v{vSb}, 0
    v_readlane_b32 s{sSl1}, v{vSb}, 1
    s_mov_b32 s{sLn}, 2
    s_mov_b32 s{sLn + 1}, 3
    s_mul_i32 s{sQ1}, s{sRem}, 3
    s_lshr_b32 s{sQ1}, s{sQ1}, 2
    s_lshr_b32 s{sQ2}, s{sRem}, 1
    s_lshr_b32 s{sQ3}, s{sRem}, 2
    s_waitcnt vmcnt(8)
    """)
    stamp(A, opt, "first")

    def batch_masks(window):
        A(f"""
        v_bfe_u32 v{vX}, v{vOffs}, 11, 11
        v_and_b32 v{vX + 1}, 1, v{vTid}
        v_subrev_u32 v{vX}, s{sW0}, v{vX}
        v_lshlrev_b32 v{vX + 1}, 2, v{vX + 1}
        v_cmp_lt_i32_e64 {sr(sMore, 2)}, {window}, v{vX}
        v_sub_u32 v{vX}, v{vX}, v{vX + 1}
        """)
        for i in range(window // 2):
            A(f"v_cmp_lt_i32_e64 {sr(cand[i][5], 2)}, {(i & 3) + 8 * (i >> 2)}, v{vX}")

    def rec_addr():
        A(f"""
        v_lshrrev_b32 v{vX + 2}, 1, v{vTid}
        v_and_b32 v{vX + 1}, 1, v{vTid}
        v_mul_u32_u24 v{vX + 2}, {CH}, v{vX + 2}
        v_lshl_add_u32 v{vX + 1}, v{vX + 1}, 2, s{sW0}
        v_add_u32 v{vX + 1}, v{vX + 1}, v{vX + 2}
        v_lshlrev_b32 v{vX + 2}, 5, v{vX + 2}
        """)
        for i in range(0, 8, 2):
            A(f"v_mov_b64 {vr(vKey + i, 2)}, 0")

    def rec_loads():
        A(f"""
        v_and_b32 v{vX + 4}, 0x7ff, v{vOffs}
        v_add_lshl_u32 v{vX + 4}, v{vX + 4}, v{vX + 1}, 2
        buffer_load_dwordx4 {vr(vRec, 4)}, v{vX + 4}, {sr(S_REC, 4)}, 0 offen sc1
        buffer_load_dwordx4 {vr(vRec + 4, 4)}, v{vX + 4}, {sr(S_REC, 4)}, 0 offen offset:32 sc1
        """)

    def histogram(cs):
        for rec, key_, rank, so_, eo_, m in cs:
            A(f"s_mov_b64 exec, {sr(m, 2)}")
            A(f"v_alignbit_b32 v{key_}, v{rec}, v{rec}, 27")
            A(f"v_and_b32 v{key_}, 0x7fc, v{key_}")
            A(f"ds_add_rtn_u32 v{rank}, v{key_}, v{vOne} offset:{L_CNT}")
        A("s_mov_b64 exec, -1")

    def mfma(j):
        return f"v_mfma_f32_32x32x16_bf16 {vr(vD + 16 * j, 16)}, {vr(vEA, 4)}, {vr(vWC + 4 * j, 4)}, 0"

    A(ea_merge())
    A("s_nop 1")
    for j in range(4):
        A(mfma(j))
    A(ea_loads())
    A("s_nop 7")
    A(f"s_cmp_gt_u32 s{sRem}, 8")
    A("s_cbranch_scc0 Llast")

    def step(u, last):
        La, Lb = vL + 8 * (u & 3), vL + 8 * (u & 3) + 4
        a, b = vT, vT + 4
        sl = (sSl0, sSl1)[u >> 2]
        prefetch = not (last and u >= 4)
        wait = 8 if u < 4 else (6 if not last else 2 * (7 - u))
        A(f"s_waitcnt vmcnt({wait})")
        if prefetch and u % 2 == 0:
            A(f"ds_read_b128 {vr(vSo, 4)}, v{vSp} offset:{16 * (u + 4)}")
        if u == 6 and not last:
            A(f"ds_read_b32 v{vEo}, v{vEp} offset:{1152 + 256}")
            A(ea_merge())

        def mix(j, hb):
            return (f"v_fma_mix_f32 v{(a, b)[hb] + j}, v{vD + 16 * j + 2 * u + hb}, s{sNl}, v{(La, Lb)[hb] + j} "
                    "op_sel_hi:[0,0,1]")

        wide = not (prefetch and u % 2 == 0)
        if u == 7 and not last:
            for j in range(4):
                A(mix(j, 0))
                A(mix(j, 1))
                if j:
                    A(f"v_exp_f32 v{a + j - 1}, v{a + j - 1}")
                    A(f"v_exp_f32 v{b + j - 1}, v{b + j - 1}")
                A(mfma(j))
            A(f"v_exp_f32_e64 v{a + 3}, v{a + 3}")
            A(f"v_exp_f32 v{b + 3}, v{b + 3}")
        else:
            for hb in range(2):
                for j in range(4):
                    A(mix(j, hb))
            for j in range(8):
                A(f"v_exp_f32{'_e64' if wide and j == 0 else ''} v{a + j}, v{a + j}")
        if not wide:
            A("s_waitcnt lgkmcnt(0)")
        A(f"s_set_gpr_idx_on s{sl}, gpr_idx(SRC1)")
        for j in range(0, 8, 2):
            A(f"v_pk_fma_f32 {vr(a + j, 2)}, {vr(a + j, 2)}, {vr(vSl + 8 + (j & 3), 2)}, {sr(sC0, 2)} clamp")
        A("s_set_gpr_idx_mode gpr_idx()")
        A(f"s_lshr_b32 s{sl}, s{sl}, 8")
        for j in (0, 2):
            A(f"v_pk_mul_f32 {vr(La + j, 2)}, {vr(La + j, 2)}, {vr(b + j, 2)}")
        so2 = vSo + 2 * (u & 1)
        if prefetch:
            A(f"v_lshl_add_u64 {vr(so2, 2)}, {vr(so2, 2)}, 0, {vr(vLo, 2)}")
        for j in (0, 2):
            A(f"v_pk_fma_f32 {vr(La + j, 2)}, {vr(Lb + j, 2)}, {vr(a + j, 2)}, {vr(La + j, 2)}")
        for j in (0, 2):
            A(f"v_pk_add_f32 {vr(Lb + j, 2)}, {vr(a + j, 2)}, {vr(b + j, 2)}")
        for j in (0, 2):
            A(f"v_pk_mul_f32 {vr(a + j, 2)}, {vr(a + j, 2)}, {vr(b + j, 2)}")
        for j in range(4):
            A(f"v_rcp_f32{'_e64' if j == 0 else ''} v{a + j}, v{a + j}")
        A("s_set_gpr_idx_mode gpr_idx(SRC2,DST)")
        for j in (0, 2):
            A(f"v_pk_fma_f32 {vr(vSl + j, 2)}, {vr(La + j, 2)}, {vr(a + j, 2)}, {vr(vSl + j, 2)}")
            A(f"v_pk_fma_f32 {vr(vSl + 4 + j, 2)}, {vr(Lb + j, 2)}, {vr(a + j, 2)}, {vr(vSl + 4 + j, 2)}")
        if prefetch and not opt.get("noload"):
            A(f"buffer_load_dwordx4 {vr(La, 4)}, v{so2}, {sr(S_TAB, 4)}, 0 offen {tab_pol}")
            A(f"buffer_load_dwordx4 {vr(Lb, 4)}, v{so2 + 1}, {sr(S_TAB, 4)}, 0 offen {tab_pol}")
        A("s_set_gpr_idx_off")

    A(".p2align 6")
    A("Ltile:")
    A(f"s_sub_u32 s{sRem}, s{sRem}, 8")
    for u in range(8):
        step(u, False)
    A(f"""
    {ea_loads()}
    v_readlane_b32 s{sSl0}, v{vSb}, s{sLn}
    v_readlane_b32 s{sSl1}, v{vSb}, s{sLn + 1}
    v_add_u32 v{vSp}, 0x80, v{vSp}
    v_add_u32 v{vEp}, 0x80, v{vEp}
    s_add_u32 s{sLn}, s{sLn}, 2
    s_add_u32 s{sLn + 1}, s{sLn + 1}, 2
    """)
    if not opt.get("noprio"):
        for k, sq in enumerate((sQ1, sQ2, sQ3)):
            A(f"s_cmp_le_u32 s{sRem}, s{sq}")
            A("s_cbranch_scc0 Lprio_done")
            A(f"s_setprio {2 - k}")
        A("Lprio_done:")
    A(f"s_cmp_gt_u32 s{sRem}, 8")
    A("s_cbranch_scc1 Ltile")
    A(".p2align 3")
    A("Llast:")
    A("s_nop 0")
    for u in range(8):
        step(u, True)
        if u < 7:
            A(f"s_cmp_le_u32 s{sRem}, {u + 1}")
            A("s_cbranch_scc1 Lmain_done")
    A("Lmain_done:")
    stamp(A, opt, "done")

    def finalize(a0, o, a1, u0, x0, addr, soff, pre_store):
        for j in range(4):
            A(f"v_permlane32_swap_b32 v{a0 + j}, v{a1 + j}")
            A(f"v_permlane32_swap_b32 v{a0 + o + j}, v{a1 + o + j}")
        for j in (o, o + 2, 0, 2):
            A(f"v_pk_add_f32 {vr(a0 + j, 2)}, {vr(a0 + j, 2)}, {vr(a1 + j, 2)}")
        for j in (o, o + 2):
            A(f"v_pk_add_f32 {vr(a0 + j, 2)}, {vr(a0 + j, 2)}, {sr(sC0, 2)}")
        for j in range(4):
            A(f"v_rcp_f32 v{a0 + o + j}, v{a0 + o + j}")
        A(f"v_lshlrev_b32 v{a1}, 16, v{x0}")
        A(f"v_and_b32 v{a1 + 1}, 0xffff0000, v{x0}")
        A(f"v_lshlrev_b32 v{a1 + 2}, 16, v{x0 + 1}")
        A(f"v_and_b32 v{a1 + 3}, 0xffff0000, v{x0 + 1}")
        for j in (0, 2):
            A(f"v_pk_fma_f32 {vr(a0 + j, 2)}, {vr(a0 + j, 2)}, {vr(a0 + o + j, 2)}, {vr(u0 + j, 2)}")
        for j in range(4):
            A(f"v_max_f32 v{a0 + j}, 0, v{a0 + j}")
        for j in (0, 2):
            A(f"v_pk_add_f32 {vr(a0 + j, 2)}, {vr(a0 + j, 2)}, {vr(a1 + j, 2)}")
        A(f"v_cvt_pk_bf16_f32 v{a0}, v{a0}, v{a0 + 1}")
        A(f"v_cvt_pk_bf16_f32 v{a0 + 1}, v{a0 + 2}, v{a0 + 3}")
        A(pre_store)
        A(f"buffer_store_dwordx2 {vr(a0, 2)}, v{addr}, {sr(S_OUT, 4)}, s{soff} offen")

    eps = f32(1e-6 / c0)
    vU, vXr, vA1, vA2, vA3, vCy = vD, vD + 16, vD + 24, vD + 25, vD + 26, vD + 32
    A(f"""
    v_lshl_add_u32 v{vA1}, v{vH16}, 5, v{vLo}
    v_add_u32 v{vA1}, s{sSW}, v{vA1}
    ds_write_b128 v{vA1}, {vr(vSl, 4)}
    ds_write_b128 v{vA1}, {vr(vSl + 4, 4)} offset:1024
    s_mul_i32 s3, s{sF0}, 528
    s_add_u32 s3, s3, {L_TU}
    v_mul_u32_u24 v{vA2}, 33, v{vH16}
    v_add3_u32 v{vA2}, v{vA2}, v{vLo}, s3
    s_mul_i32 s3, s{sF0}, 272
    s_add_u32 s3, s3, {L_X}
    v_mul_u32_u24 v{vA3}, 17, v{vH16}
    v_lshrrev_b32 v{vLo + 1}, 1, v{vLo}
    v_add3_u32 v{vA3}, v{vA3}, v{vLo + 1}, s3
    """)
    for pr in range(4):
        A(f"ds_read_b128 {vr(vU + 4 * pr, 4)}, v{vA2} offset:{1056 * pr}")
        A(f"ds_read_b64 {vr(vXr + 2 * pr, 2)}, v{vA3} offset:{544 * pr}")
    A(f"""
    v_lshl_add_u32 v{vA2}, v{vH16}, 4, v{vLo + 1}
    s_add_u32 s{sQ1}, s{sN0}, s{sF0}
    s_lshl_b32 s{sQ1}, s{sQ1}, 8
    s_mov_b32 s{sC0}, {hex(eps)}
    s_mov_b32 s{sC0 + 1}, {hex(eps)}
    s_mul_i32 s{sQ2}, s{sOwn}, 12
    s_waitcnt lgkmcnt(0)
    """)
    for pr in range(4):
        if pr < 3:
            A(f"s_cmp_gt_u32 s{sOwn}, {2 * pr + 2}")
            A(f"s_cbranch_scc1 Lfin{pr}")
        A("s_barrier")
        A(f"s_cmp_eq_u32 s{sW}, 7")
        A(f"s_cbranch_scc1 Lfin{pr}")
        A(f"ds_read_b128 {vr(vCy, 4)}, v{vA1} offset:{STRW}")
        A(f"ds_read_b128 {vr(vCy + 4, 4)}, v{vA1} offset:{STRW + 1024}")
        A(f"s_set_gpr_idx_on s{sQ2}, gpr_idx(SRC0,DST)")
        A("s_waitcnt lgkmcnt(0)")
        for j in range(0, 8, 2):
            A(f"v_pk_add_f32 {vr(vSl + j, 2)}, {vr(vSl + j, 2)}, {vr(vCy + j, 2)}")
        A("s_set_gpr_idx_off")
        A("s_nop 1")
        A(f"Lfin{pr}:")
        finalize(vSl + 12 * (2 * pr + 1), 4, vSl + 12 * (2 * pr + 2), vU + 4 * pr, vXr + 2 * pr, vA2, sQ1,
                 f"s_cmp_gt_u32 s{sOwn}, {2 * pr + 1}\ns_cselect_b32 exec_hi, -1, 0")
        if pr < 3:
            A(f"s_add_u32 s{sQ1}, s{sQ1}, 512")
            A(f"s_cmp_gt_u32 s{sOwn}, {2 * pr + 2}")
            A("s_cbranch_scc0 Lk2_done")
    A("Lk2_done:")
    stamp_flush(A, opt, 8, 0x20000, vTid)
    if opt.get("spin"):
        A("""
        Lspin:
        s_memrealtime s[42:43]
        s_waitcnt lgkmcnt(0)
        s_sub_u32 s42, s42, s100
        s_cmp_lt_u32 s42, 10000
        s_cbranch_scc1 Lspin
        """)
    A("Lk2_exit:")
    A("s_endpgm")

    NU = 7
    vAcc, vAn = 0, 56
    vLs = [vL + 8 * u for u in range(4)] + [84 + 8 * u for u in range(3)]
    vP, vErr, vQ, vCaddr, vUaddr = 245, 252, 253, 254, 255
    vEB, vEo2 = vT, vSp
    A("Lslow_entry:")
    A(f"""
    v_lshrrev_b32 v{vPa}, 1, v{vTid}
    v_lshlrev_b32 v{vPa}, 11, v{vPa}
    s_lshl_b32 s3, s{sBk}, 3
    s_mov_b32 s{sW0}, 0
    buffer_load_dword v{vOffs}, v{vPa}, {sr(S_OFFS, 4)}, s3 offen sc1
    s_waitcnt vmcnt(0) lgkmcnt(0)
    s_barrier
    v_lshlrev_b32 v{vX + 11}, 2, v{vTid}
    ds_write_b32 v{vX + 11}, v{vZero} offset:{L_CNT}
    s_mul_i32 s3, s{sW}, 528
    s_add_u32 s3, s3, {L_TA}
    v_add_u32 v{vX + 11}, s3, v{vLo}
    """)
    for u in range(NU):
        A(f"ds_read_b128 {vr(vAn + 4 * u, 4)}, v{vX + 11} offset:{8 * 528 * u}")
    for i in range(0, 8 * NU, 2):
        A(f"v_mov_b64 {vr(vAcc + i, 2)}, 0")
    A(f"""
    v_bfe_u32 v{vX + 11}, v{vTid}, 3, 3
    v_and_b32 v{vX + 12}, 7, v{vTid}
    v_lshlrev_b32 v{vX + 12}, 2, v{vX + 12}
    v_lshl_add_u32 v{vX + 12}, v{vX + 11}, 8, v{vX + 12}
    s_lshl_b32 s3, s{sW}, 5
    v_add_u32 v{vCaddr}, s3, v{vX + 12}
    v_bfe_u32 v{vX + 11}, v{vTid}, 3, 2
    v_bfe_u32 v{vX + 12}, v{vTid}, 1, 1
    v_lshl_add_u32 v{vX + 11}, v{vX + 11}, 1, v{vX + 12}
    v_lshlrev_b32 v{vUaddr}, 5, v{vX + 11}
    Lbatch:
    """)
    batch_masks(16)
    A("Lround:")
    rec_addr()
    rec_loads()
    A(f"""
    v_mov_b32 v{vZero}, 0
    v_mov_b32 v{vOne}, 1
    ds_write_b32 v{vZero}, v{vZero} offset:{L_FLAG}
    ds_write_b32 v{vZero}, v{vZero} offset:{L_FLAG + 4}
    s_waitcnt lgkmcnt(0)
    s_barrier
    s_mov_b64 exec, {sr(sMore, 2)}
    ds_write_b32 v{vZero}, v{vOne} offset:{L_FLAG + 4}
    s_mov_b64 exec, -1
    s_waitcnt vmcnt(0)
    """)
    histogram(cand)
    for rec, key_, rank, so_, eo_, m in cand:
        A(f"v_lshrrev_b32 v{so_}, 18, v{rec}")
        A(f"v_bfe_u32 v{eo_}, v{rec}, 6, 11")
        A(f"v_lshlrev_b32 v{vSy}, 13, v{rec}")
        A(f"v_lshlrev_b32 v{so_}, 9, v{so_}")
        A(f"v_lshl_add_u32 v{eo_}, v{eo_}, 5, v{vX + 2}")
        A(f"v_and_or_b32 v{eo_}, v{vSy}, 2.0, v{eo_}")
    A("s_waitcnt lgkmcnt(0)")
    A("s_barrier")
    c, inc, deg, q, t0, t1 = vX + 12, vX + 13, vX + 14, vX + 15, vX + 16, vX + 17
    A(f"ds_read_b32 v{c}, v{vCaddr} offset:{L_CNT}")
    A(f"v_lshrrev_b32 v{t0}, 5, v{vCaddr}")
    A(f"v_lshlrev_b32 v{t0}, 6, v{t0}")
    A("s_waitcnt lgkmcnt(0)")
    A(f"ds_write_b32 v{vCaddr}, v{vZero} offset:{L_CNT}")
    A(f"v_mov_b32 v{inc}, v{c}")
    for d in (1, 2, 4, 8):
        A("s_nop 1")
        A(f"v_add_u32_dpp v{inc}, v{inc}, v{inc} row_shr:{d} row_mask:0xf bank_mask:0xf")
    A(f"""
    v_mov_b32 v{t1}, 0
    s_nop 0
    v_mov_b32_dpp v{deg}, v{inc} row_newbcast:7 row_mask:0xf bank_mask:0x3
    v_mov_b32_dpp v{t1}, v{inc} row_newbcast:7 row_mask:0xf bank_mask:0xc
    v_mov_b32_dpp v{deg}, v{inc} row_newbcast:15 row_mask:0xf bank_mask:0xc
    v_sub_u32 v{inc}, v{inc}, v{t1}
    v_sub_u32 v{deg}, v{deg}, v{t1}
    v_sub_u32 v{inc}, v{inc}, v{c}
    v_add_u32 v{inc}, v{inc}, v{t0}
    ds_write_b32 v{vCaddr}, v{inc} offset:{L_BASE}
    v_cmp_lt_u32 vcc, 64, v{deg}
    v_min_u32 v{deg}, 64, v{deg}
    v_add_u32 v{q}, 3, v{deg}
    v_lshrrev_b32 v{q}, 2, v{q}
    s_mov_b64 exec, vcc
    ds_write_b32 v{vZero}, v{vOne} offset:{L_FLAG}
    s_mov_b64 exec, -1
    ds_bpermute_b32 v{vQ}, v{vUaddr}, v{q}
    v_and_b32 v{c}, 7, v{vTid}
    v_add_u32 v{c}, v{c}, v{deg}
    v_lshlrev_b32 v{t1}, 2, v{q}
    v_cmp_lt_u32 vcc, v{c}, v{t1}
    v_add_lshl_u32 v{c}, v{c}, v{t0}, 2
    v_mov_b32 v{t0}, {TAB_BYTES}
    v_bfrev_b32 v{t1}, 1
    s_mov_b64 exec, vcc
    ds_write_b32 v{c}, v{t0} offset:{L_SO}
    ds_write_b32 v{c}, v{t1} offset:{L_EO}
    s_mov_b64 exec, -1
    v_max_u32_dpp v{q}, v{q}, v{q} row_ror:8 row_mask:0xf bank_mask:0xf
    s_nop 0
    v_readlane_b32 s{sT}, v{q}, 0
    v_readlane_b32 s3, v{q}, 16
    v_readlane_b32 s{sTmp}, v{q}, 32
    v_readlane_b32 s{sTmp + 1}, v{q}, 48
    s_waitcnt lgkmcnt(0)
    s_barrier
    ds_read_b64 {vr(vX + 12, 2)}, v{vZero} offset:{L_FLAG}
    """)
    for i in range(8):
        A(f"ds_read_b32 v{vKey + i}, v{vKey + i} offset:{L_BASE}")
    A(f"""
    s_max_u32 s{sT}, s{sT}, s3
    s_max_u32 s{sTmp}, s{sTmp}, s{sTmp + 1}
    s_max_u32 s{sT}, s{sT}, s{sTmp}
    s_waitcnt lgkmcnt(0)
    v_readfirstlane_b32 s{sOvf}, v{vX + 12}
    v_readfirstlane_b32 s{sMor}, v{vX + 13}
    """)
    for i in range(8):
        A(f"v_and_b32 v{vX + 12}, 63, v{vRec + i}")
        A(f"v_add_u32 v{vKey + i}, v{vKey + i}, v{vRank + i}")
        A(f"v_lshl_add_u32 v{vX + 12}, v{vX + 12}, 6, 64")
        A(f"v_cmp_lt_u32 vcc, v{vKey + i}, v{vX + 12}")
        A(f"v_lshlrev_b32 v{vKey + i}, 2, v{vKey + i}")
        A(f"s_and_b64 exec, vcc, {sr(sMask + 2 * i, 2)}")
        A(f"ds_write_b32 v{vKey + i}, v{vSoff + i} offset:{L_SO}")
        A(f"ds_write_b32 v{vKey + i}, v{vEoff + i} offset:{L_EO}")
        A(f"s_andn2_b64 {sr(sMask + 2 * i, 2)}, {sr(sMask + 2 * i, 2)}, vcc")
        A("s_mov_b64 exec, -1")
    A(f"""
    s_lshl_b32 s3, s{sW}, 8
    v_lshrrev_b32 v{vX + 12}, 1, v{vH16}
    v_add_u32 v{vP}, s3, v{vX + 12}
    v_and_b32 v{vX + 12}, 1, v{vTid}
    v_bfe_u32 v{vX + 13}, v{vTid}, 2, 1
    v_lshl_add_u32 v{vX + 12}, v{vX + 13}, 1, v{vX + 12}
    v_lshl_add_u32 v{vX + 12}, v{vX + 12}, 2, s3
    v_lshl_add_u32 v{vEp}, v{vUaddr}, 6, v{vX + 12}
    s_lshr_b32 s3, s{sT}, 1
    v_mov_b32 v{vErr}, s3
    s_mov_b64 {sr(sCur, 2)}, 0
    s_mov_b32 s{sTi}, 0
    """)
    for u in range(1, NU):
        A(f"v_mov_b32 v{vP + u}, v{vP}")
    A(f"""
    s_waitcnt lgkmcnt(0)
    s_barrier
    s_cmp_eq_u32 s{sT}, 0
    s_cbranch_scc1 Lg_done
    s_branch Lg_entry
    Lg_tile:
    s_waitcnt vmcnt({2 * NU})
    """)
    for j in range(4):
        A(mfma(j))
    A(f"""
    Lg_entry:
    v_add_u32 v{vErr}, v{vQ}, v{vErr}
    ds_read_b32 v{vEo}, v{vEp} offset:{L_EO}
    ds_read_b64 {vr(vSo, 2)}, v{vP} offset:{L_SO}
    v_cmp_le_u32_e64 {sr(sNext, 2)}, s{sT}, v{vErr}
    s_cmp_lt_u32 s{sTi}, s{sT}
    s_cselect_b64 {sr(sNext, 2)}, {sr(sNext, 2)}, 1
    s_mov_b64 exec, {sr(sNext, 2)}
    v_subrev_u32 v{vErr}, s{sT}, v{vErr}
    v_add_u32 v{vEp}, 16, v{vEp}
    s_waitcnt lgkmcnt(1)
    {ea_loads()}
    s_waitcnt vmcnt(0)
    {ea_merge()}
    s_mov_b64 exec, -1
    """)
    for u in range(NU):
        bit = 8 * (u >> 1) + 2 * (u & 1) + 1
        so2 = vSo + 2 * (u & 1)
        La, Lb = vLs[u], vLs[u] + 4
        a, b = vT, vT + 4
        num, den = vAcc + 8 * u, vAcc + 8 * u + 4
        if u + 1 < NU:
            A(f"ds_read_b64 {vr(vSo + 2 * ((u + 1) & 1), 2)}, v{vP + u + 1} offset:{L_SO + 2048 * (u + 1)}")
        A(f"s_bitcmp1_b32 s{sCur}, {bit}")
        A(f"s_cbranch_scc0 Lg_skip{u}")
        A(f"s_waitcnt vmcnt({2 * NU - 1})")
        for j in range(4):
            A(f"v_fma_mix_f32 v{a + j}, v{vD + 16 * j + 2 * u}, s{sNl}, v{La + j} op_sel_hi:[0,0,1]")
        for j in range(4):
            A(f"v_fma_mix_f32 v{b + j}, v{vD + 16 * j + 2 * u + 1}, s{sNl}, v{Lb + j} op_sel_hi:[0,0,1]")
        for j in range(0, 8, 2):
            A(f"v_pk_add_f32 {vr(a + j, 2)}, {vr(a + j, 2)}, {vr(vAn + 4 * u + (j & 3), 2)}")
        for j in range(8):
            A(f"v_exp_f32_e64 v{a + j}, v{a + j} clamp")
        for j in range(0, 8, 2):
            A(f"v_pk_add_f32 {vr(a + j, 2)}, {vr(a + j, 2)}, {sr(sC0, 2)}")
        for j in (0, 2):
            A(f"v_pk_mul_f32 {vr(La + j, 2)}, {vr(La + j, 2)}, {vr(b + j, 2)}")
        for j in (0, 2):
            A(f"v_pk_fma_f32 {vr(La + j, 2)}, {vr(Lb + j, 2)}, {vr(a + j, 2)}, {vr(La + j, 2)}")
        for j in (0, 2):
            A(f"v_pk_add_f32 {vr(Lb + j, 2)}, {vr(a + j, 2)}, {vr(b + j, 2)}")
        for j in (0, 2):
            A(f"v_pk_mul_f32 {vr(a + j, 2)}, {vr(a + j, 2)}, {vr(b + j, 2)}")
        for j in range(4):
            A(f"v_rcp_f32 v{a + j}, v{a + j}")
        for j in (0, 2):
            A(f"v_pk_fma_f32 {vr(num + j, 2)}, {vr(La + j, 2)}, {vr(a + j, 2)}, {vr(num + j, 2)}")
            A(f"v_pk_fma_f32 {vr(den + j, 2)}, {vr(Lb + j, 2)}, {vr(a + j, 2)}, {vr(den + j, 2)}")
        A(f"Lg_skip{u}:")
        A(f"s_bitcmp1_b32 s{sNext}, {bit}")
        A("s_cselect_b64 exec, -1, 1")
        A(f"s_cselect_b32 s{sInc}, 16, 0")
        A(f"s_waitcnt lgkmcnt({1 if u + 1 < NU else 0})")
        A(f"v_add_u32 v{so2}, v{so2}, v{vLo}")
        A(f"v_add_u32 v{so2 + 1}, v{so2 + 1}, v{vLo}")
        A(f"buffer_load_dwordx4 {vr(La, 4)}, v{so2}, {sr(S_TAB, 4)}, 0 offen {tab_pol}")
        A(f"buffer_load_dwordx4 {vr(Lb, 4)}, v{so2 + 1}, {sr(S_TAB, 4)}, 0 offen {tab_pol}")
        A("s_mov_b64 exec, -1")
        A(f"v_add_u32 v{vP + u}, s{sInc}, v{vP + u}")
    A(f"""
    s_mov_b64 {sr(sCur, 2)}, {sr(sNext, 2)}
    s_add_u32 s{sTi}, s{sTi}, 1
    s_cmp_le_u32 s{sTi}, s{sT}
    s_cbranch_scc1 Lg_tile
    Lg_done:
    s_waitcnt vmcnt(0)
    s_cmp_lg_u32 s{sOvf}, 0
    s_cbranch_scc1 Lround
    s_add_u32 s{sW0}, s{sW0}, 16
    s_cmp_lg_u32 s{sMor}, 0
    s_cbranch_scc1 Lbatch
    s_mul_i32 s3, s{sW}, 528
    s_add_u32 s3, s3, {L_TU}
    v_mul_u32_u24 v{vA2}, {33 * 8}, v{vH16}
    v_add3_u32 v{vA2}, v{vA2}, v{vLo}, s3
    s_mul_i32 s3, s{sW}, 272
    s_add_u32 s3, s3, {L_X}
    v_mul_u32_u24 v{vA3}, {17 * 8}, v{vH16}
    v_lshrrev_b32 v{vLo + 1}, 1, v{vLo}
    v_add3_u32 v{vA3}, v{vA3}, v{vLo + 1}, s3
    """)
    for pr in range(4):
        A(f"ds_read_b128 {vr(vU + 4 * pr, 4)}, v{vA2} offset:{16 * 528 * pr}")
        A(f"ds_read_b64 {vr(vXr + 2 * pr, 2)}, v{vA3} offset:{16 * 272 * pr}")
    A(f"""
    v_lshl_add_u32 v{vA2}, v{vH16}, 7, v{vLo + 1}
    s_add_u32 s{sQ1}, s{sN0}, s{sW}
    s_lshl_b32 s{sQ1}, s{sQ1}, 8
    s_mov_b32 s{sC0}, {hex(eps)}
    s_mov_b32 s{sC0 + 1}, {hex(eps)}
    s_waitcnt lgkmcnt(0)
    """)
    for pr in range(4):
        if pr == 3:
            A(f"s_add_u32 s3, s{sW}, 48")
            A(f"s_cmp_ge_u32 s3, s{sNn}")
            A("s_cbranch_scc1 Lk2_done")
        finalize(vAcc + 16 * pr, 4, vAcc + 16 * pr + 8, vU + 4 * pr, vXr + 2 * pr, vA2, sQ1,
                 "s_mov_b32 exec_hi, 0" if pr == 3 else "s_nop 0")
        A(f"s_add_u32 s{sQ1}, s{sQ1}, 4096")
    A("s_branch Lk2_done")
    return L_END


def gen_report(A, opt):
    kind, team, idx = opt["report"].split(",")
    idx = int(idx)
    A("report_kernel:")
    A("s_cmp_ge_u32 s2, 1")
    A("s_cbranch_scc1 Lr_exit")
    load_kernargs(A)
    A("s_waitcnt lgkmcnt(0)")
    srd(A, 28, P_WS, 0x80000, STAMP_OFF + 0x20000)

    def reduce(op, base, dst, tag, sub):
        A("v_lshrrev_b32 v1, 2, v0")
        A("v_and_b32 v2, 3, v0")
        A("v_lshlrev_b32 v1, 9, v1")
        A("v_lshl_add_u32 v1, v2, 6, v1")
        A(f"v_mov_b32 v3, {'-1' if op == 'min' else '0'}")
        A("s_mov_b32 s44, 0")
        A(f"Lr_{tag}:")
        A(f"buffer_load_dword v2, v1, s[28:31], s44 offen offset:{base}")
        A("s_waitcnt vmcnt(0)")
        if sub:
            A("v_subrev_u32 v2, s40, v2")
        A(f"v_{op}_u32 v3, v3, v2")
        A("s_add_u32 s44, s44, 8192")
        A("s_cmp_lt_u32 s44, 131072")
        A(f"s_cbranch_scc1 Lr_{tag}")
        A(f"v_readlane_b32 s{dst}, v3, 0")
        for l in range(1, 64):
            A(f"v_readlane_b32 s3, v3, {l}")
            A("s_nop 0")
            A(f"s_{op}_u32 s{dst}, s{dst}, s3")

    reduce("min", 0, 40, "a", False)
    reduce(kind, 8 * idx + (256 if team == "t" else 0), 41, "b", True)
    A("s_lshr_b32 s41, s41, 8" if kind == "add" else "s_lshl_b32 s41, s41, 2")
    A("s_min_u32 s41, s41, 30000")
    A("s_add_u32 s41, s41, 10000")
    A("Lr_spin:")
    A("s_memrealtime s[42:43]")
    A("s_waitcnt lgkmcnt(0)")
    A("s_sub_u32 s42, s42, s40")
    A("s_cmp_lt_u32 s42, s41")
    A("s_cbranch_scc1 Lr_spin")
    A("Lr_exit:")
    A("s_endpgm")


def descriptor(name, vgpr, extra=""):
    return f""".amdhsa_kernel {name}
  .amdhsa_next_free_vgpr {vgpr}
  .amdhsa_next_free_sgpr 102
  .amdhsa_accum_offset {(vgpr + 3) // 4 * 4}
  .amdhsa_group_segment_fixed_size 0
  .amdhsa_kernarg_size 96
  .amdhsa_user_sgpr_count 2
  .amdhsa_user_sgpr_kernarg_segment_ptr 1
  .amdhsa_system_sgpr_workgroup_id_x 1
{extra}.end_amdhsa_kernel
"""


def generate(opt):
    A = Asm()
    lds = gen_k2(A, opt)
    lst = f"kernel={NAME}_kernel " if opt.get("report") else ""
    text = (f"""; GatedGCN layer in one launch. Every workgroup buckets one chunk of edges by destination and builds its
; rows of the gather table, hands both over through d_ws, then sorts, gathers and reduces one bucket of nodes.
; @launch {lst}grid=(256,1,1) block=(512,1,1) lds={lds}
.amdgcn_target "amdgcn-amd-amdhsa--gfx950"
.text
.globl {NAME}_kernel
.p2align 8
.type {NAME}_kernel,@function
""" + A.text() + ".section .rodata,\"a\"\n.p2align 6\n"
            + descriptor(f"{NAME}_kernel", 256, "  .amdhsa_fp16_overflow 1\n"))
    if opt.get("report"):
        R = Asm()
        gen_report(R, opt)
        text = text.replace(".amdgcn_target", "; @launch kernel=report_kernel grid=(1,1,1) block=(64,1,1) lds=0\n.amdgcn_target")
        text = text.replace(".section .rodata", ".globl report_kernel\n.p2align 8\n.type report_kernel,@function\n" + R.text() + ".section .rodata")
        text += ".p2align 6\n" + descriptor("report_kernel", 8)
    return text


if __name__ == "__main__":
    out = sys.argv[1] if len(sys.argv) > 1 else f"cdna_kernels/{NAME}.s"
    opt = dict(a.split("=", 1) for a in sys.argv[2:])
    opt = {k: v.replace("+", " ") for k, v in opt.items()}
    open(out, "w").write(generate(opt))
```

```python
import math
import struct
import sys

NAME = "gather_scatter__edge_featured_mpnn_gatedgcn__graph"
N, E = 12500, 400000
BM, BS, SM, SC, SS = 171799, 23, 799999, 16330, 14
CH = 1568
NCH = 256
TAB_OFF = 0
REC_OFF = 0xE00000
OFF_OFF = 0x1000000
SPIN_MAX = 20000
EAP_OFF = 0x1200000
STAMP_OFF = 0x2000000
TAB_BYTES = N * 512
KSH = 48
AMAX = 52.0
NLOG2E = -math.log2(math.e)


def f32(x):
    return struct.unpack("<I", struct.pack("<f", x))[0]


class Asm:
    def __init__(self):
        self.lines = []

    def __call__(self, s):
        for ln in s.strip("\n").split("\n"):
            ln = ln.strip()
            if not ln:
                continue
            self.lines.append(ln if ln.endswith(":") else "    " + ln)

    def text(self):
        return "\n".join(self.lines) + "\n"


def vr(a, n=1):
    return f"v{a}" if n == 1 else f"v[{a}:{a + n - 1}]"


def sr(a, n=1):
    return f"s{a}" if n == 1 else f"s[{a}:{a + n - 1}]"


def srd(A, d, base, nbytes, off=0):
    if off:
        A(f"s_add_u32 s{d}, s{base}, {hex(off)}")
        A(f"s_addc_u32 s{d + 1}, s{base + 1}, 0")
    else:
        A(f"s_mov_b64 {sr(d, 2)}, {sr(base, 2)}")
    A(f"s_mov_b32 s{d + 2}, {hex(nbytes)}")
    A(f"s_mov_b32 s{d + 3}, 0x20000")


P_X, P_EA, P_SRC, P_DST, P_WA, P_WB, P_WC, P_WU = 4, 6, 8, 10, 12, 14, 16, 18
P_WV, P_OUT, P_DBG, P_WS = 20, 22, 24, 26


def load_kernargs(A):
    A("s_load_dwordx16 s[4:19], s[0:1], 0")
    A("s_load_dwordx8 s[20:27], s[0:1], 64")


STAMP_BASE = [2]


def stamp_reg(i):
    return 100 if i == 0 else STAMP_BASE[0] + 2 * i


def stamp(A, opt, i):
    if not opt.get("stamp"):
        return
    if isinstance(i, str):
        names = opt["stamp"].split(",")
        if i not in names:
            return
        i = names.index(i) + 1
    A(f"{'s_memtime' if opt.get('cyc') and i else 's_memrealtime'} s[{stamp_reg(i)}:{stamp_reg(i) + 1}]")


def stamp_flush(A, opt, n, base, vtid):
    if not opt.get("stamp"):
        return
    A("s_mov_b64 exec, -1")
    A("s_waitcnt vmcnt(0)")
    stamp(A, opt, n - 1)
    srd(A, 20, P_WS, 0x80000, STAMP_OFF + base)
    A(f"v_lshrrev_b32 v1, 6, v{vtid}")
    A("s_lshl_b32 s3, s2, 3")
    A("v_add_u32 v1, s3, v1")
    A(f"v_mul_u32_u24 v1, {8 * n}, v1")
    A("s_mov_b64 exec, 1")
    A("s_waitcnt lgkmcnt(0)")
    for i in range(n):
        r = stamp_reg(i)
        A(f"v_mov_b32 v2, s{r}")
        A(f"v_mov_b32 v3, s{r + 1}")
        A(f"buffer_store_dwordx2 v[2:3], v1, s[20:23], 0 offen offset:{8 * i}")
        A("s_nop 1")


WAVE_SCAN = ("row_shr:1 row_mask:0xf", "row_shr:2 row_mask:0xf", "row_shr:4 row_mask:0xf",
             "row_shr:8 row_mask:0xf", "row_bcast:15 row_mask:0xa", "row_bcast:31 row_mask:0xc")


def wave_scan(A, v, first_nop=1, fill=()):
    for k, d in enumerate(WAVE_SCAN):
        if k < len(fill):
            for ins in fill[k]:
                A(ins)
        elif k or first_nop:
            A("s_nop 1")
        A(f"v_add_u32_dpp v{v}, v{v}, v{v} {d} bank_mask:0xf")


def gen_k2(A, opt):
    STAMP_BASE[0] = 2
    NE = int(opt.get("ne", 4))
    assert 0 < NE <= 7
    ea_pol = opt.get("ea_load", "")
    tab_pol = opt.get("tab_load", "sc1")
    npf = int(opt.get("pf", 4))
    epf = int(opt.get("epf", 0))
    S_TAB, S_EA, S_REC, S_OFFS, S_TW, S_EB, S_OUT = 28, 32, 36, 40, 44, 48, 52
    sW, sBk, sN0, sW0, sT, sTi, sInc, sNl = 56, 57, 58, 59, 60, 61, 62, 63
    sC0, sCur, sNext, sMore, sTmp, sNon = 64, 66, 68, 70, 72, 74
    sMask = 76
    S_DST, S_SRC, S_W, S_W2, S_X, S_WC, S_DBG = 76, 80, 76, 80, 80, 84, 88
    sOvf, sMor, sQ1, sQ2, sQ3, sLw, sF0, sOwn = 92, 93, 94, 95, 96, 97, 98, 99
    sRem, sSW, sSl0, sSl1, sLn = sT, sInc, sCur, sCur + 1, sNext
    sPM0, sPM1, sNg, sNn = sCur, sNext, sMor, 0
    L_CNT, L_BASE, L_FLAG, P_CNT, P_BASE, P_SORT = 0, 2048, 4096, 4352, 5376, 6400
    C_S1, C_S2, C_S3, C_S4, C_T1, C_T2, C_T3, C_TF, C_AU, C_TA, C_E1, C_E2, C_WA, C_T0 = (L_FLAG + 8 + 4 * i for i in range(14))
    L_R2 = 12800
    L_SO = L_R2
    L_EO = L_SO + 25600
    L_STR = L_R2 + 16896
    STRW = 2560
    L_WCR = L_R2 + 65536
    L_X = L_WCR + 4096
    L_R1 = (L_X + 52 * 272 + 255) // 256 * 256
    L_TA = L_R1 + 528
    L_TU = L_TA + 52 * 528
    L_END = L_R1 + 65536
    TF_OFF = NCH * 2048
    NS = 9
    WIN = 24
    vSl, vD, vL, vWC, vEA, vT, vSo, vLo = 0, 108, 172, 204, 220, 224, 232, 236
    vSp, vEp, vEo, vH16, vSb, vTid, vOffs = 238, 239, 240, 241, 242, 243, 244
    vEB, vEo2 = 248, 246
    L_INV = L_R2 + 32768
    vRec, vKey, vRank, vSoff, vEoff, vX = vD, vD + 8, vD + 16, vD + 24, vD + 32, vD + 40
    cand = [(vRec + i, vKey + i, vRank + i, vSoff + i, vEoff + i, sMask + 2 * i) for i in range(8)]
    c0 = 2.0 ** -KSH
    vZero, vOne, vInv, vSy, vNon, la = vX + 5, vX + 6, vX + 10, vX + 11, vX + 14, vX + 16
    vPa, vCnt = vX + 7, vX + 8
    zero_ops = [f"v_mov_b64 {vr(vSl + 12 * s + j, 2)}, 0" for s in range(NS) for j in range(0, 8, 2)]

    def arrive(off):
        A("s_mov_b64 exec, 1")
        A(f"ds_add_u32 v{vZero}, v{vOne} offset:{off}")
        A("s_mov_b64 exec, -1")

    def spin(name, off, reads="", sleep=0):
        if sleep:
            A(f"s_branch L{name}_in")
        A(f"L{name}:")
        if sleep:
            A(f"s_sleep {sleep}")
            A(f"L{name}_in:")
        A(f"ds_read_b32 v{vSy}, v{vZero} offset:{off}")
        A(reads)
        A("s_waitcnt lgkmcnt(0)")
        A(f"v_cmp_gt_u32 vcc, 4, v{vSy}")
        A(f"s_cbranch_vccnz L{name}")

    nonce_load = f"buffer_load_dwordx2 {vr(vNon, 2)}, v{vZero}, {sr(S_DBG, 4)}, 0 offen sc1"

    def nonce_wait(name):
        A(f"""
        s_mov_b32 s{sTi}, 0
        L{name}_check:
        v_readfirstlane_b32 s{sNon}, v{vNon}
        v_readfirstlane_b32 s{sNon + 1}, v{vNon + 1}
        s_add_u32 s{sTi}, s{sTi}, 1
        s_cmp_lg_u32 s{sNon}, 0
        s_cbranch_scc1 L{name}_ok
        {nonce_load}
        s_cmp_lt_u32 s{sTi}, {SPIN_MAX}
        s_waitcnt vmcnt(0)
        s_cbranch_scc1 L{name}_check
        L{name}_ok:
        s_and_b32 s{sNon + 1}, s{sNon + 1}, 0x3ff
        """)

    def tag_wait(name, v, reload, sleep):
        A(f"""
        s_mov_b32 s{sTi}, 0
        L{name}_check:
        s_waitcnt vmcnt(0)
        v_lshrrev_b32 v{vSy}, 22, v{v}
        v_cmp_ne_u32_e64 {sr(sTmp, 2)}, s{sNon}, v{v + 1}
        v_cmp_ne_u32 vcc, s{sNon + 1}, v{vSy}
        s_add_u32 s{sTi}, s{sTi}, 1
        s_or_b64 exec, vcc, {sr(sTmp, 2)}
        s_cbranch_scc0 L{name}_ok
        {f's_sleep {sleep}' if sleep else ''}
        {reload}
        s_cmp_lt_u32 s{sTi}, {SPIN_MAX}
        s_cbranch_scc1 L{name}_check
        s_waitcnt vmcnt(0)
        L{name}_ok:
        s_mov_b64 exec, -1
        """)

    def common_setup():
        srd(A, S_REC, P_WS, NCH * CH * 4, REC_OFF)
        srd(A, S_OFFS, P_WS, TF_OFF + 32768, OFF_OFF)
        srd(A, S_TAB, P_WS, TAB_BYTES + 512, TAB_OFF)
        srd(A, S_EA, P_EA, E * 32)
        srd(A, S_EB, P_WS, NCH * CH * 32, EAP_OFF)
        srd(A, S_OUT, P_OUT, N * 256)
        A(f"""
        s_mov_b32 s{sNn}, s{sOwn}
        s_mov_b32 s{sNl}, {hex(f32(NLOG2E))}
        s_mov_b32 s{sC0}, {hex(f32(c0))}
        s_mov_b32 s{sC0 + 1}, {hex(f32(c0))}
        v_and_b32 v{vLo}, 0x1f0, v{vX + 2}
        v_bfe_u32 v{vX + 4}, v{vTid}, 5, 1
        v_mov_b32 v{vLo + 1}, v{vLo}
        v_lshlrev_b32 v{vH16}, 4, v{vX + 4}
        """)

    def late_setup(raw):
        A(f"""
        v_lshrrev_b32 v{vX + 12}, 1, v{vLo}
        v_lshl_add_u32 v{vX + 12}, v{vH16}, 7, v{vX + 12}
        v_add_u32 v{vX + 12}, {L_WCR}, v{vX + 12}
        """)
        for i in range(8):
            A(f"ds_read_b64 {vr(raw + 2 * i, 2)}, v{vX + 12} offset:{256 * i}")
        A(f"""
        s_mul_i32 s{sSW}, s{sW}, {STRW}
        s_add_u32 s{sSW}, s{sSW}, {L_STR}
        v_add_u32 v{vSp}, s{sSW}, v{vH16}
        v_bfe_u32 v{vX + 12}, v{vTid}, 3, 2
        v_bfe_u32 v{vX + 13}, v{vTid}, 1, 1
        v_lshl_add_u32 v{vX + 12}, v{vX + 12}, 1, v{vX + 13}
        v_bfe_u32 v{vX + 13}, v{vTid}, 2, 1
        v_lshl_add_u32 v{vX + 12}, v{vX + 12}, 1, v{vX + 13}
        v_and_b32 v{vX + 13}, 1, v{vTid}
        v_lshl_add_u32 v{vX + 12}, v{vX + 12}, 1, v{vX + 13}
        v_lshl_add_u32 v{vEp}, v{vX + 12}, 2, s{sSW}
        v_bfrev_b32 v{vX + 13}, 1
        v_mov_b32 v{vX + 12}, {N << 18}
        v_lshlrev_b32 v{la}, 1, v{vX + 3}
        v_lshrrev_b32 v{la + 2}, 4, v{vX + 3}
        v_lshl_add_u32 v{la + 3}, v{la + 2}, 2, s{sSW}
        s_mov_b32 s3, 0x05040100
        s_mov_b32 s{sTmp}, 0x07060302
        s_waitcnt lgkmcnt(0)
        """)
        for j in range(4):
            for i in range(4):
                A(f"v_perm_b32 v{vWC + 4 * j + i}, v{raw + 2 * (2 * i + 1) + (j >> 1)}, v{raw + 2 * (2 * i) + (j >> 1)}, "
                  f"s{(3, sTmp)[j & 1]}")

    c, p, deg, q, inc, g4 = vL, vL + 8, vL + 16, vL + 17, vL + 18, vL + 19

    def node_scan(name, bases, sleep):
        A(f"s_mov_b32 s{sQ2}, {L_SO}")
        spin(name, C_S4, f"ds_read_b128 {vr(c, 4)}, v{la} offset:{L_CNT}\nds_read_b128 {vr(c + 4, 4)}, v{la} offset:{L_CNT + 16}", sleep)
        if bases:
            stamp(A, opt, "bB")
        A(f"""
        v_add_u32 v{p + 2}, v{c}, v{c + 1}
        v_add3_u32 v{p + 4}, v{p + 2}, v{c + 2}, v{c + 3}
        v_add3_u32 v{p + 6}, v{p + 4}, v{c + 4}, v{c + 5}
        v_add3_u32 v{deg}, v{p + 6}, v{c + 6}, v{c + 7}
        v_add_u32 v{q}, 3, v{deg}
        v_lshrrev_b32 v{inc}, 2, v{q}
        """)
        fill = [[f"v_lshrrev_b32 v{q}, 2, v{q}", f"v_add_u32 v{p + 3}, v{p + 2}, v{c + 2}"]]
        if bases:
            fill += [[f"v_add_u32 v{p + 5}, v{p + 4}, v{c + 4}", f"v_add_u32 v{p + 7}, v{p + 6}, v{c + 6}"],
                     [f"v_add_u32 v{deg}, s{sW}, v{deg}", f"v_lshlrev_b32 v{c + 1}, 2, v{q}"],
                     [f"v_cmp_lt_u32_e64 {sr(sNext, 2)}, v{deg}, v{c + 1}", "s_nop 0"]]
        wave_scan(A, inc, fill=fill)
        A(f"v_sub_u32 v{g4}, v{inc}, v{q}")
        A(f"v_readlane_b32 s3, v{inc}, 63")
        if bases:
            A(f"v_lshl_add_u32 v{p}, v{g4}, 5, s{sQ2}")
            A(f"v_lshl_add_u32 v{p + 1}, v{c}, 3, v{p}")
            for i in range(2, 8):
                A(f"v_lshl_add_u32 v{p + i}, v{p + i}, 3, v{p}")
                if i in (3, 7):
                    A(f"ds_write_b128 v{la}, {vr(p + i - 3, 4)} offset:{L_BASE + 4 * (i - 3)}")
            bases()

    en, so, eo, key, cn, pos, t = vL, vL + 8, vL + 12, vL + 20, vL + 24, vL + 21, vL + 26

    def wave_range():
        A(f"""
        s_mul_i32 s{sLw}, s3, s{sW}
        s_add_u32 s{sRem}, s{sLw}, s3
        s_lshr_b32 s{sLw}, s{sLw}, 3
        s_lshr_b32 s{sRem}, s{sRem}, 3
        v_cmp_gt_u32_e64 {sr(sTmp, 2)}, s{sLw}, v{g4}
        v_cmp_gt_u32 vcc, s{sRem}, v{g4}
        s_lshl_b32 s3, s{sLw}, 5
        v_add_u32 v{t}, s3, v{la}
        s_bcnt1_i32_b64 s{sF0}, {sr(sTmp, 2)}
        s_bcnt1_i32_b64 s{sOwn}, vcc
        s_cmp_eq_u32 s{sW}, 7
        s_cselect_b32 s{sOwn}, s{sNn}, s{sOwn}
        s_sub_u32 s{sOwn}, s{sOwn}, s{sF0}
        s_sub_u32 s{sRem}, s{sRem}, s{sLw}
        s_sub_u32 s3, s{sOwn}, 1
        s_sub_u32 s{sTmp}, s{sRem}, 1
        s_lshr_b32 s3, s3, 3
        s_lshr_b32 s{sTmp}, s{sTmp}, 6
        s_or_b32 s3, s3, s{sTmp}
        s_cselect_b64 exec, 1, 0
        ds_write_b32 v{vZero}, v{vOne} offset:{L_FLAG}
        s_mov_b64 exec, -1
        v_cmp_le_u32_e64 {sr(sTmp, 2)}, s{sRem}, v{la + 2}
        s_sub_u32 s{sQ1}, s{sF0}, 1
        s_mul_i32 s{sQ2}, s{sQ1}, 528
        s_add_u32 s{sQ2}, s{sQ2}, {L_TA}
        s_mov_b32 s{sQ3}, 0xfffffe00
        v_add_u32 v{vT + 5}, s{sQ2}, v{vLo}
        v_cndmask_b32_e64 v{vInv}, 0, v{vX + 13}, {sr(sTmp, 2)}
        """)

    def slot_reads():
        for s in range(NS):
            A(f"ds_read_b128 {vr(vSl + 12 * s + 8, 4)}, v{vT + 5} offset:{528 * s}")

    def slot_exps():
        for s in range(NS):
            for j in range(4):
                A(f"v_exp_f32 v{vSl + 12 * s + 8 + j}, v{vSl + 12 * s + 8 + j}")

    vDa = vX + 20

    def w_dma(S, region):
        out = []
        for g in (0, 1, 4, 5):
            for i in range(4):
                pre = f"s_add_u32 m0, s{sQ3}, {region + 4096 * g}\ns_add_u32 s3, s{sQ2}, {4096 * g}\n" if i == 0 else ""
                out.append(pre + f"buffer_load_dwordx4 v{vDa + (i >> 1)}, {sr(S, 4)}, s3 offen offset:{1024 * i} lds")
        return out

    def w_offsets(sw):
        return f"""
        s_lshl_b32 s{sQ2}, s{sw}, 13
        s_and_b32 s{sQ2}, s{sQ2}, 0x2000
        s_lshl_b32 s{sQ3}, s{sw}, 14
        s_and_b32 s{sQ3}, s{sQ3}, 0x8000
        s_add_u32 s{sQ3}, s{sQ3}, s{sQ2}
        """

    def publish(name, data):
        return f"""
        s_lshl_b32 s3, s{sBk}, 7
        s_add_u32 s3, s3, {TF_OFF}
        s_mov_b64 exec, 1
        ds_add_rtn_u32 v{vSy}, v{vZero}, v{vOne} offset:{C_TF}
        s_waitcnt lgkmcnt(0)
        v_cmp_eq_u32 vcc, 7, v{vSy}
        s_cbranch_vccz L{name}
        buffer_store_dwordx2 {vr(data, 2)}, v{vZero}, {sr(S_OFFS, 4)}, s3 offen sc1
        L{name}:
        s_mov_b64 exec, -1
        """

    def ea_loads():
        return f"""
        v_add_u32 v{vEo}, v{vEo}, v{vH16}
        buffer_load_dwordx4 {vr(vEA, 4)}, v{vEo}, {sr(S_EA, 4)}, 0 offen {ea_pol}
        v_xor_b32 v{vEo2}, 2.0, v{vEo}
        s_nop 0
        buffer_load_dwordx4 {vr(vEB, 4)}, v{vEo2}, {sr(S_EB, 4)}, 0 offen sc1
        """

    def ea_merge():
        return "\n".join(f"v_or_b32 v{vEA + i}, v{vEA + i}, v{vEB + i}" for i in range(4))

    A(f"{NAME}_kernel:")
    A("s_cmp_ge_u32 s2, 256")
    A("s_cbranch_scc1 Lk2_exit")
    stamp(A, opt, 0)
    load_kernargs(A)
    A(f"""
    s_memrealtime {sr(sNon, 2)}
    v_mov_b32 v{vZero}, 0
    v_lshlrev_b32 v{vSy}, 2, v0
    ds_write_b32 v{vSy}, v{vZero} offset:{L_FLAG}
    ds_write_b32 v{vSy}, v{vZero} offset:{L_CNT}
    v_lshrrev_b32 v{vX}, 6, v0
    v_lshlrev_b32 v{vX + 2}, 4, v0
    v_readfirstlane_b32 s{sW}, v{vX}
    v_mov_b32 v{vTid}, v0
    v_and_b32 v{vX + 3}, 0x3f0, v{vX + 2}
    v_mov_b32 v{vOne}, 1
    s_and_b32 s3, s2, 7
    s_lshl_b32 s3, s3, 5
    s_lshr_b32 s{sBk}, s2, 3
    s_add_u32 s{sBk}, s{sBk}, s3
    s_mul_i32 s{sN0}, s{sBk}, {SM}
    s_add_u32 s{sOwn}, s{sN0}, {SM + SC}
    s_add_u32 s{sN0}, s{sN0}, {SC}
    s_lshr_b32 s{sOwn}, s{sOwn}, {SS}
    s_lshr_b32 s{sN0}, s{sN0}, {SS}
    s_sub_u32 s{sOwn}, s{sOwn}, s{sN0}
    s_mov_b32 s{S_DBG + 2}, 256
    s_mov_b32 s{S_DBG + 3}, 0x20000
    s_cmp_ge_u32 s{sW}, 4
    s_cbranch_scc1 Lteam_t
    """)

    pD, pS, pC, pA, pR, pE, pB, pG = 108, 116, 124, 132, 140, 0, 8, 16
    last = E - (NCH - 1) * CH
    A(f"""
    s_setprio 3
    s_cmp_eq_u32 s2, {NCH - 1}
    s_cselect_b32 s3, {last // 4}, 224
    s_cselect_b32 s{sTmp}, 0, 224
    v_cmp_gt_u32_e64 {sr(sPM0, 2)}, s3, v0
    v_cmp_gt_u32_e64 {sr(sPM1, 2)}, s{sTmp}, v0
    v_mul_u32_u24 v{vX + 1}, 12, v0
    s_mul_i32 s{sQ1}, s2, {CH * 4}
    s_add_u32 s{sQ2}, s{sQ1}, {CH * 4}
    s_min_u32 s{S_DST + 2}, s{sQ2}, {E * 4}
    s_mov_b32 s{S_DST + 3}, 0x20000
    s_mov_b32 s{S_SRC + 2}, s{S_DST + 2}
    s_mov_b32 s{S_SRC + 3}, 0x20000
    s_waitcnt lgkmcnt(0)
    s_mov_b64 {sr(S_DST, 2)}, {sr(P_DST, 2)}
    s_mov_b64 {sr(S_SRC, 2)}, {sr(P_SRC, 2)}
    buffer_load_dwordx4 {vr(pD, 4)}, v{vX + 2}, {sr(S_DST, 4)}, s{sQ1} offen
    buffer_load_dwordx3 {vr(pD + 4, 3)}, v{vX + 1}, {sr(S_DST, 4)}, s{sQ1} offen offset:3584
    buffer_load_dwordx4 {vr(pS, 4)}, v{vX + 2}, {sr(S_SRC, 4)}, s{sQ1} offen
    buffer_load_dwordx3 {vr(pS + 4, 3)}, v{vX + 1}, {sr(S_SRC, 4)}, s{sQ1} offen offset:3584
    s_barrier
    s_mov_b64 {sr(S_DBG, 2)}, {sr(P_DBG, 2)}
    """)
    common_setup()
    S_WP = S_WC
    A(f"""
    s_cmp_lt_u32 s{sW}, 2
    s_cselect_b32 s{S_WP}, s{P_WA}, s{P_WU}
    s_cselect_b32 s{S_WP + 1}, s{P_WA + 1}, s{P_WU + 1}
    s_mov_b32 s{S_WP + 2}, 32768
    s_mov_b32 s{S_WP + 3}, 0x20000
    s_mov_b32 s{sQ2}, {BM}
    s_mov_b32 s{sQ3}, {-SM}
    v_lshlrev_b32 v{pE}, 8, v{vTid}
    v_add_u32 v{pE + 1}, 64, v{pE}
    v_add_u32 v{pE + 2}, 0x80, v{pE}
    v_add_u32 v{pE + 3}, 0xc0, v{pE}
    v_lshlrev_b32 v{pE + 4}, 4, v{vX + 1}
    v_add_u32 v{pE + 5}, {896 * 64 + 64}, v{pE + 4}
    v_add_u32 v{pE + 6}, {896 * 64 + 128}, v{pE + 4}
    v_add_u32 v{pE + 4}, {896 * 64}, v{pE + 4}
    v_lshlrev_b32 v{vPa}, 11, v{vTid}
    v_lshrrev_b32 v{vX + 9}, 1, v{vX + 3}
    v_cmp_gt_u32 vcc, {32 * NE}, v{vTid}
    v_mov_b32 v{pE + 7}, 0x10001
    s_and_b64 {sr(sMore, 2)}, vcc, {sr(sPM0, 2)}
    v_cndmask_b32 v{pE + 7}, 1, v{pE + 7}, vcc
    s_mov_b64 exec, {sr(sPM0, 2)}
    s_waitcnt vmcnt(3)
    """)
    stamp(A, opt, "dst")
    for lo, hi in ((0, 4), (4, 7)):
        if lo:
            A(f"s_mov_b64 exec, {sr(sPM1, 2)}")
            A("s_waitcnt vmcnt(2)")
        for i in range(lo, hi):
            A(f"v_mul_u32_u24 v{pC + i}, s{sQ2}, v{pD + i}")
        for i in range(lo, hi):
            A(f"v_lshrrev_b32 v{pC + i}, {BS}, v{pC + i}")
            A(f"v_lshlrev_b32 v{pA + i}, 2, v{pC + i}")
            A(f"ds_add_rtn_u32 v{pR + i}, v{pA + i}, v{vOne if lo else pE + 7} offset:{P_CNT}")
    arrive(C_S1)
    for i in range(7):
        A(f"v_lshl_add_u32 v{pD + i}, v{pD + i}, {SS}, {(1 << SS) - 1 - SC}")
        A(f"v_mad_i32_i24 v{pD + i}, v{pC + i}, s{sQ3}, v{pD + i}")
        A(f"v_lshrrev_b32 v{pD + i}, {SS}, v{pD + i}")
    spin("s1", C_S1, f"ds_read_b128 {vr(pC, 4)}, v{vX + 3} offset:{P_CNT}")
    stamp(A, opt, "b2")
    A(f"""
    v_add_u32 v{pB + 2}, v{pC}, v{pC + 1}
    v_add3_u32 v{pG + 1}, v{pB + 2}, v{pC + 2}, v{pC + 3}
    v_add_u32 v{pB + 3}, v{pB + 2}, v{pC + 2}
    v_mov_b32 v{pG}, v{pG + 1}
    s_waitcnt vmcnt(0)
    """)
    rec_ops = []
    for i in range(7):
        rec_ops += [f"v_lshl_or_b32 v{pS + i}, v{pS + i}, 18, v{pE + i}", f"v_or_b32 v{pS + i}, v{pS + i}, v{pD + i}"]
    wave_scan(A, pG + 1, fill=[[]] + [rec_ops[2 * k: 2 * k + 2] for k in range(5)])
    A(f"""
    v_sub_u32 v{pB}, v{pG + 1}, v{pG}
    v_add_u32 v{pB + 1}, v{pB}, v{pC}
    v_add_u32 v{pB + 2}, v{pB}, v{pB + 2}
    v_add_u32 v{pB + 3}, v{pB}, v{pB + 3}
    ds_write_b128 v{vX + 3}, {vr(pB, 4)} offset:{P_BASE}
    s_mov_b64 exec, {sr(sPM0, 2)}
    """)
    for i in range(7):
        if i == 4:
            A(f"s_mov_b64 exec, {sr(sPM1, 2)}")
        A(f"ds_read_b32 v{pA + i}, v{pA + i} offset:{P_BASE}")
    for o in rec_ops[10:]:
        A(o)
    A("s_mov_b64 exec, -1")
    A(nonce_load)
    A(f"s_mov_b32 s{sQ2}, 0x3ffc0")
    A(f"s_mov_b32 s{sQ3}, 0x8000000")
    A(f"s_mov_b64 exec, {sr(sMore, 2)}")
    A("s_waitcnt lgkmcnt(0)")
    stamp(A, opt, "scan")
    for i in range(4):
        A(f"v_add3_u32 v{pC + i}, v{pA + i}, v{pR + i}, s{sQ3}")
        A(f"v_lshrrev_b32 v{pD + i}, 10, v{pC + i}")
        A(f"v_bfi_b32 v{pS + i}, s{sQ2}, v{pD + i}, v{pS + i}")
    A(f"s_mov_b64 exec, {sr(sPM0, 2)}")
    for i in range(7):
        if i == 4:
            A(f"s_mov_b64 exec, {sr(sPM1, 2)}")
        A(f"v_add_lshl_u32 v{pA + i}, v{pA + i}, v{pR + i}, 2")
        A(f"v_and_b32 v{pA + i}, 0xffff, v{pA + i}")
        A(f"ds_write_b32 v{pA + i}, v{pS + i} offset:{P_SORT}")
    arrive(C_S2)
    A(f"""
    s_add_u32 s{S_SRC}, s{S_REC}, s{sQ1}
    s_addc_u32 s{S_SRC + 1}, s{S_REC + 1}, 0
    s_movk_i32 s{S_SRC + 2}, {CH * 4}
    s_movk_i32 s3, 4096
    """)
    spin("s2", C_S2, f"ds_read_b128 {vr(pD, 4)}, v{vX + 2} offset:{P_SORT}\nds_read_b128 {vr(pD + 4, 4)}, v{vX + 2} offset:{P_SORT + 4096}")
    for k in range(2):
        A(f"buffer_store_dwordx4 {vr(pD + 4 * k, 4)}, v{vX + 2}, {sr(S_SRC, 4)}, {('0', 's3')[k]} offen sc1")
    A(f"s_mov_b64 exec, {sr(sMore, 2)}")
    for i in range(4):
        A(f"v_lshrrev_b32 v{pC + i}, 14, v{pC + i}")
        A(f"v_lshrrev_b32 v{pE + i}, 1, v{pE + i}")
        A(f"ds_write_b32 v{pC + i}, v{pE + i} offset:{L_INV - 8192}")
    A("s_mov_b64 exec, -1")
    stamp(A, opt, "b3")
    for k in range(2):
        A(f"ds_read_b64 {vr(pC + 2 * k, 2)}, v{vX + 9} offset:{P_CNT + 512 * k}")
        A(f"ds_read_b64 {vr(pB + 2 * k, 2)}, v{vX + 9} offset:{P_BASE + 512 * k}")
    A("s_waitcnt vmcnt(2)")
    nonce_wait("pnon")
    A(f"s_lshl_b32 s3, s{sNon + 1}, 22")
    A("s_waitcnt lgkmcnt(0)")
    for i in range(4):
        A(f"v_and_b32 v{pC + i}, 0x7ff, v{pC + i}")
        A(f"v_and_b32 v{pB + i}, 0x7ff, v{pB + i}")
        A(f"v_lshl_or_b32 v{pG + 2 * i}, v{pC + i}, 11, v{pB + i}")
        A(f"v_mov_b32 v{pG + 2 * i + 1}, s{sNon}")
        A(f"v_or_b32 v{pG + 2 * i}, s3, v{pG + 2 * i}")
    A(f"""
    v_mul_u32_u24 v{vX + 1}, {CH}, v{vTid}
    v_lshlrev_b32 v{vX + 2}, 5, v{vX + 1}
    v_bfe_u32 v{vDa}, v{vTid}, 4, 2
    v_lshlrev_b32 v{vDa}, 6, v{vDa}
    v_xor_b32 v{vDa}, v{vX + 3}, v{vDa}
    v_xor_b32 v{vDa + 1}, 32, v{vDa}
    {w_offsets(sW)}
    v_lshrrev_b32 v{pE}, 5, v{vX + 3}
    s_mul_i32 s3, s{sW}, {128 * NE}
    v_lshl_add_u32 v{pE}, v{pE}, 2, s3
    v_and_b32 v{pE + 1}, 16, v{vX + 3}
    s_mul_i32 s{sOvf}, s2, {CH * 32}
    s_lshl_b32 s3, s3, 3
    s_add_u32 s{sOvf}, s{sOvf}, s3
    s_lshl_b32 s3, s2, 11
    s_lshl_b32 s{sQ1}, s{sBk}, 3
    s_mov_b64 exec, 1
    s_waitcnt vmcnt(0)
    ds_add_rtn_u32 v{vSy}, v{vZero}, v{vOne} offset:{C_S3}
    s_waitcnt lgkmcnt(0)
    v_cmp_eq_u32 vcc, 3, v{vSy}
    s_mov_b64 exec, -1
    s_cbranch_vccz Lno_off
    buffer_store_dwordx4 {vr(pG, 4)}, v{vX + 3}, {sr(S_OFFS, 4)}, s3 offen sc1
    buffer_store_dwordx4 {vr(pG + 4, 4)}, v{vX + 3}, {sr(S_OFFS, 4)}, s3 offen offset:1024 sc1
    Lno_off:
    """)
    stamp(A, opt, "sig")
    spin("ps3", C_S3, "\n".join(f"ds_read_b32 v{pA + i}, v{pE} offset:{L_INV + 128 * i}" for i in range(NE)))
    for i in range(NE):
        A(f"v_and_b32 v{pA + i}, 0x7fe0, v{pA + i}")
        A(f"v_or_b32 v{pA + i}, v{pA + i}, v{pE + 1}")
    spin("pe1", C_E1, "\n".join(f"ds_read_b128 {vr(vL + 4 * i, 4)}, v{pA + i} offset:{L_R2}" for i in range(NE)), sleep=1)
    arrive(C_E2)
    stamp(A, opt, "e2")
    for i in range(NE):
        if i == 4:
            A(f"s_add_u32 s{sOvf}, s{sOvf}, 4096")
        A(f"buffer_store_dwordx4 {vr(vL + 4 * i, 4)}, v{vX + 3}, {sr(S_EB, 4)}, s{sOvf} offen offset:{1024 * (i & 3)} sc1")
    spin("pe2", C_E2)
    A("\n".join(w_dma(S_WP, L_R2)))
    stamp(A, opt, "wau")
    late_setup(vL)
    fRec, fKey, fRank = 24, 48, 72
    for i in range(0, WIN, 2):
        A(f"v_mov_b64 {vr(fKey + i, 2)}, 0")
    if int(opt.get("pdelay", 0)):
        A(f"s_sleep {opt['pdelay']}")
    poll = f"buffer_load_dwordx2 {vr(vOffs, 2)}, v{vPa}, {sr(S_OFFS, 4)}, s{sQ1} offen sc1"
    A(poll)
    A("s_waitcnt vmcnt(1)")
    arrive(C_WA)
    A(publish("no_tf_p", pG))
    tag_wait("off", vOffs, poll, int(opt.get("psleep", 0)))
    stamp(A, opt, "off")
    A(f"""
    v_and_b32 v{vX + 4}, 0x7ff, v{vOffs}
    v_bfe_u32 v{vCnt}, v{vOffs}, 11, 11
    v_add_lshl_u32 v{vX + 4}, v{vX + 4}, v{vX + 1}, 2
    s_mov_b32 s{sNg}, 1
    buffer_load_dwordx4 {vr(fRec, 4)}, v{vX + 4}, {sr(S_REC, 4)}, 0 offen sc1
    """)
    for g in range(1, WIN // 4):
        A(f"v_cmpx_lt_u32 vcc, {4 * g}, v{vCnt}")
        A("s_cbranch_execz Lrec_done")
        A(f"buffer_load_dwordx4 {vr(fRec + 4 * g, 4)}, v{vX + 4}, {sr(S_REC, 4)}, 0 offen offset:{16 * g} sc1")
        A(f"s_mov_b32 s{sNg}, {g + 1}")
    A(f"""
    v_cmpx_lt_u32 vcc, {WIN}, v{vCnt}
    ds_write_b32 v{vZero}, v{vOne} offset:{L_FLAG}
    Lrec_done:
    s_mov_b64 exec, -1
    s_waitcnt vmcnt(0)
    """)
    stamp(A, opt, "rec")
    for i in range(WIN):
        A(f"v_cmpx_lt_u32 vcc, {i}, v{vCnt}")
        if i >= 8:
            A("s_cbranch_execz Lhist_done")
        A(f"v_alignbit_b32 v{fKey + i}, v{fRec + i}, v{fRec + i}, 27")
        A(f"v_and_b32 v{fKey + i}, 0x7fc, v{fKey + i}")
        A(f"ds_add_rtn_u32 v{fRank + i}, v{fKey + i}, v{vOne} offset:{L_CNT}")
    A("Lhist_done:")
    arrive(C_S4)

    def base_reads():
        for g in range(WIN // 4):
            if g >= 2:
                A(f"s_cmp_le_u32 s{sNg}, {g}")
                A("s_cbranch_scc1 Lbase_done")
            for i in range(4 * g, 4 * g + 4):
                A(f"ds_read_b32 v{fKey + i}, v{fKey + i} offset:{L_BASE}")
        A("Lbase_done:")

    node_scan("s4p", base_reads, 0)
    A(f"v_lshl_add_u32 v{deg}, v{deg}, 3, v{p}")
    wave_range()
    spin("pau", C_AU)
    stamp(A, opt, "scan2")
    for i in range(WIN):
        A(f"v_cmpx_lt_u32 vcc, {i}, v{vCnt}")
        if i >= 8:
            A("s_cbranch_execz Lplace_done")
        A(f"v_lshl_add_u32 v{fKey + i}, v{fRank + i}, 3, v{fKey + i}")
        A(f"ds_write2_b32 v{fKey + i}, v{fRec + i}, v{vX + 2} offset0:0 offset1:1")
    A(f"""
    Lplace_done:
    s_mov_b64 exec, {sr(sNext, 2)}
    ds_write_b64 v{deg}, {vr(vX + 12, 2)}
    s_mov_b64 exec, -1
    s_branch Ljoin
    """)

    vXw, vXrd, vBt, vAt, vSw, vSr, vBs, vTw = 118, 119, 120, 121, 122, 123, 124, 125
    vXs, tE, tG = vL, 128, 132
    sCb = sW0
    A(f"""
    Lteam_t:
    s_getpc_b64 s[{sTmp}:{sTmp + 1}]
    Lpc:
    s_sub_u32 s{sTmp}, s{sTmp}, Lpc - {NAME}_kernel
    s_subb_u32 s{sTmp + 1}, s{sTmp + 1}, 0
    v_and_b32 v{vX + 2}, 0xff0, v{vX + 2}
    v_lshlrev_b32 v1, 3, v{vX + 2}
    v_cmp_gt_u32 vcc, Lslow_entry - {NAME}_kernel, v1
    s_and_saveexec_b64 {sr(sNext, 2)}, vcc
    s_cbranch_execz Lno_cpf
    global_load_dword v2, v1, s[{sTmp}:{sTmp + 1}]
    Lno_cpf:
    s_mov_b64 exec, -1
    s_and_b32 s{sCb}, s{sW}, 3
    v_bfe_u32 v{vX + 1}, v0, 4, 2
    v_lshlrev_b32 v{vX + 4}, 6, v{vX + 1}
    v_xor_b32 v{vDa}, v{vX + 3}, v{vX + 4}
    v_xor_b32 v{vDa + 1}, 32, v{vDa}
    v_lshlrev_b32 v1, 3, v{vX + 3}
    s_mov_b32 s{S_W + 2}, 32768
    s_mov_b32 s{S_W + 3}, 0x20000
    s_mov_b32 s{S_W2 + 2}, 32768
    s_mov_b32 s{S_W2 + 3}, 0x20000
    s_lshr_b32 s{sQ1}, s2, 3
    s_lshl_b32 s{sQ1}, s{sQ1}, 10
    s_and_b32 s3, s{sCb}, 1
    s_lshl_b32 s{sQ2}, s3, 9
    s_add_u32 s{sQ1}, s{sQ1}, s{sQ2}
    {w_offsets(sCb)}
    s_cmp_lt_u32 s{sCb}, 2
    s_waitcnt lgkmcnt(0)
    s_cselect_b32 s{S_W}, s{P_WB}, s{P_WV}
    s_cselect_b32 s{S_W + 1}, s{P_WB + 1}, s{P_WV + 1}
    s_cselect_b32 s{S_W2}, s{P_WA}, s{P_WU}
    s_cselect_b32 s{S_W2 + 1}, s{P_WA + 1}, s{P_WU + 1}
    s_mov_b64 {sr(S_DBG, 2)}, {sr(P_DBG, 2)}
    s_mov_b64 exec, 15
    buffer_load_dword v3, v1, {sr(S_W, 4)}, s{sQ1} offen
    buffer_load_dword v4, v1, {sr(S_W2, 4)}, s{sQ1} offen
    s_xor_b32 s3, s{sW}, 7
    s_or_b32 s3, s3, s2
    s_cbranch_scc1 Lno_nonce
    s_or_b32 s3, s{sNon}, 1
    v_mov_b32 v{vNon}, s3
    v_mov_b32 v{vNon + 1}, s{sNon + 1}
    s_mov_b64 exec, 1
    buffer_store_dwordx2 {vr(vNon, 2)}, v{vZero}, {sr(S_DBG, 4)}, 0 offen sc1
    Lno_nonce:
    s_mov_b64 exec, -1
    s_lshl_b32 s3, s{sN0}, 8
    s_add_u32 s{S_X}, s{P_X}, s3
    s_addc_u32 s{S_X + 1}, s{P_X + 1}, 0
    s_lshl_b32 s{S_X + 2}, s{sOwn}, 8
    s_mov_b32 s{S_X + 3}, 0x20000
    """)
    A("s_mov_b32 s3, 0")
    A("s_barrier")
    stamp(A, opt, "tb1")
    for i in range(4):
        A(f"buffer_load_dwordx4 {vr(vXs + 4 * i, 4)}, v{vX + 2}, {sr(S_X, 4)}, s3 offen")
        A("s_add_u32 s3, s3, 4096")
    wbv = w_dma(S_W, L_R1)
    A("\n".join(wbv[:4]))
    srd(A, S_WC, P_WC, 4096)
    common_setup()
    A(f"""
    s_lshl_b32 s3, s{sN0}, 9
    s_add_u32 s{S_TW}, s{P_WS}, s3
    s_addc_u32 s{S_TW + 1}, s{P_WS + 1}, 0
    s_lshl_b32 s{S_TW + 2}, s{S_X + 2}, 1
    s_mov_b32 s{S_TW + 3}, 0x20000
    v_lshrrev_b32 v{tE}, 8, v{vX + 2}
    v_lshl_add_u32 v{vXw}, v{tE}, 4, v{vX + 2}
    v_add_u32 v{vXw}, {L_X}, v{vXw}
    v_bfe_u32 v{tE + 2}, v{vTid}, 2, 2
    v_xor_b32 v{tE}, s{sCb}, v{tE + 2}
    v_lshlrev_b32 v{tE}, 6, v{tE}
    v_and_b32 v{tE + 1}, 3, v{vTid}
    v_lshl_add_u32 v{tE}, v{tE + 1}, 3, v{tE}
    v_lshl_add_u32 v{tE}, v{tE + 2}, 8, v{tE}
    v_and_b32 v{tE + 1}, 1, v{vX + 1}
    v_xor_b32 v{tE + 1}, v{tE + 1}, v{vX + 4}
    v_lshl_add_u32 v{tE}, v{tE + 1}, 5, v{tE}
    v_lshl_add_u32 v{tE}, v{vX + 4}, 11, v{tE}
    v_add_u32 v{vBt}, {L_R1}, v{tE}
    v_add_u32 v{vAt}, {L_R2}, v{tE}
    v_and_b32 v{tE + 2}, 31, v{vTid}
    v_mul_u32_u24 v{vXrd}, 272, v{tE + 2}
    s_mov_b32 s3, {L_X}
    v_add3_u32 v{vXrd}, v{vXrd}, v{vH16}, s3
    s_mul_i32 s3, s{sCb}, 9216
    s_add_u32 s3, s3, {L_R1}
    v_mul_u32_u24 v{vSw}, 144, v{tE + 2}
    v_add3_u32 v{vSw}, v{vSw}, v{vH16}, s3
    v_bfe_u32 v{tE}, v{vTid}, 3, 3
    v_lshl_add_u32 v{vSr}, v{tE}, 4, v{vX + 3}
    v_add_u32 v{vSr}, s3, v{vSr}
    v_and_b32 v{tE + 1}, 0x70, v{vX + 3}
    v_lshl_add_u32 v{vBs}, v{tE}, 9, v{tE + 1}
    s_lshl_b32 s3, s{sCb}, 7
    v_add_u32 v{vBs}, s3, v{vBs}
    v_mul_u32_u24 v{vTw}, 528, v{tE + 2}
    s_add_u32 s3, s3, {L_TA}
    v_add3_u32 v{vTw}, v{vTw}, v{vH16}, s3
    s_mul_i32 s{sQ1}, s2, {CH * 32}
    s_mul_i32 s{sTmp + 1}, s{sCb}, {1024 * NE}
    s_add_u32 s{sQ1}, s{sQ1}, s{sTmp + 1}
    s_lshl_b32 s{sTmp}, s{sCb}, 10
    """)
    A("\n".join(wbv[4:12]))
    A("s_waitcnt vmcnt(12)")
    for i in range(4):
        if i == 3:
            A(f"s_cmp_eq_u32 s{sCb}, 0")
            A("s_cselect_b64 exec, -1, 0")
        A(f"ds_write_b128 v{vXw}, {vr(vXs + 4 * i, 4)} offset:{16 * 272 * i}")
    A("s_mov_b64 exec, -1")
    A("\n".join(wbv[12:]))
    stamp(A, opt, "tiss")
    A("s_waitcnt vmcnt(8)")
    arrive(C_T0)
    epol = opt.get("e_in", "")
    ein = []
    for i in range(NE):
        pre = f"s_add_u32 m0, s{sTmp + 1}, {L_R2 + 4096 * (i >> 2)}\ns_add_u32 s3, s{sQ1}, {4096 * (i >> 2)}\n" if i % 4 == 0 else ""
        ein.append(pre + f"buffer_load_dwordx4 v{vX + 3}, {sr(S_EA, 4)}, s3 offen offset:{1024 * (i & 3)} {epol} lds")
    ein.append(f"s_add_u32 m0, s{sTmp}, {L_WCR}\ns_nop 0\nbuffer_load_dwordx4 v{vX + 3}, {sr(S_WC, 4)}, s{sTmp} offen lds")
    ein.append(nonce_load)
    ne0 = int(opt.get("ne0", 2))
    A("\n".join(ein[:ne0]))
    spin("t0", C_T0)
    stamp(A, opt, "t0")

    def gemm(vt, extra=(), hooks=None):
        def reads(s):
            r = 64 + 16 * (s % 3)
            for m in range(2):
                for z in range(2):
                    A(f"ds_read_b64_tr_b16 {vr(r + 4 * m + 2 * z, 2)}, v{vt} offset:{m * 32768 + s * 4096 + z * 1024}")
            for nb in range(2):
                A(f"ds_read_b128 {vr(r + 8 + 4 * nb, 4)}, v{vXrd} offset:{32 * 272 * nb + 32 * s}")
        reads(0)
        reads(1)
        for s in range(8):
            r = 64 + 16 * (s % 3)
            A(f"s_waitcnt lgkmcnt({6 if s < 7 else 0})")
            for nb in range(2):
                for m in range(2):
                    d = 32 * m + 16 * nb
                    A(f"v_mfma_f32_32x32x16_bf16 {vr(d, 16)}, {vr(r + 4 * m, 4)}, {vr(r + 8 + 4 * nb, 4)}, {'0' if s == 0 else vr(d, 16)}")
                if nb == 0 and s + 2 < 8:
                    if hooks and s in hooks:
                        hooks[s]()
                    reads(s + 2)
            if s < len(extra):
                A(extra[s])

    def second_half_landed():
        A(f"s_waitcnt vmcnt({ne0})")
        arrive(C_T1)

    def second_half_wait():
        spin("t1", C_T1)

    e1_at = int(opt.get("e1_at", 5))
    extra = [""] * 8
    extra[1] = "\n".join(ein[ne0:])
    extra[e1_at] = f"s_waitcnt vmcnt(0)\ns_mov_b64 exec, 1\nds_add_u32 v{vZero}, v{vOne} offset:{C_E1}\ns_mov_b64 exec, -1"
    gemm(vBt, extra, {1: second_half_landed, 2: second_half_wait})
    stamp(A, opt, "bvm")
    arrive(C_T2)
    nonce_wait("tnon")
    A(f"s_lshl_b32 s3, s{sNon + 1}, 22")
    A(f"v_mov_b32 v{tG}, s3")
    A(f"v_mov_b32 v{tG + 1}, s{sNon}")
    for i in range(32):
        A(f"v_fma_mixlo_f16 v{32 + i}, v{i}, s{sNl}, 0")
    spin("t2", C_T2)
    for nb in range(2):
        for g in range(4):
            A(f"ds_write_b128 v{vSw}, {vr(32 + 16 * nb + 4 * g, 4)} offset:{4608 * nb + 32 * g}")
    bO = vL
    for i in range(7):
        A(f"ds_read_b128 {vr(bO + 4 * i, 4)}, v{vSr} offset:{1152 * i}")
    stamp(A, opt, "stg")
    arrive(C_T3)
    A(f"""
    s_or_b32 s3, s2, s{sCb}
    s_cbranch_scc1 Lno_pad
    v_mov_b32 v{tE}, 0x7c00
    v_mov_b32 v{tE + 1}, 0x7c00
    v_lshrrev_b32 v{tE + 2}, 1, v{vX + 3}
    s_mov_b32 s3, {TAB_BYTES}
    buffer_store_dwordx2 {vr(tE, 2)}, v{tE + 2}, {sr(S_TAB, 4)}, s3 offen sc1
    Lno_pad:
    s_mov_b32 s3, 0
    s_waitcnt lgkmcnt(0)
    """)
    stores = [f"buffer_store_dwordx4 {vr(bO + 4 * i, 4)}, v{vBs}, {sr(S_TW, 4)}, s3 offen sc1\ns_add_u32 s3, s3, 4096" for i in range(7)]
    npre = int(opt.get("npre", 7))
    for o in stores[:npre]:
        A(o)
    stamp(A, opt, "bve")

    def table_signal():
        return "s_waitcnt vmcnt(0)\n" + publish("no_tf_t", tG)

    sig_at = int(opt.get("sig_at", 2))
    extra = stores[npre:] + [""] * 8
    assert sig_at >= 7 - npre
    if sig_at < 8:
        extra[sig_at] = table_signal()
    spin("twa", C_WA)
    gemm(vAt, extra[:8])
    arrive(C_AU)
    stamp(A, opt, "aum")
    A(f"""
    v_mov_b32 v{tE}, {hex(f32(-float(KSH)))}
    v_mov_b32 v{tE + 1}, {hex(f32(-float(KSH)))}
    v_mov_b32 v{tE + 2}, 0
    s_mov_b32 s{sTmp}, s{sNl}
    s_mov_b32 s{sTmp + 1}, s{sNl}
    """)
    spin("t3", C_T3)
    row_mask = "s_mov_b32 exec_lo, 0xfffff\ns_mov_b32 exec_hi, 0xfffff"
    for i in range(0, 32, 2):
        if i == 16:
            A(row_mask)
        A(f"v_max3_f32 v{tE + 2}, |v{i}|, |v{i + 1}|, v{tE + 2}")
        A(f"v_pk_fma_f32 {vr(i, 2)}, {vr(i, 2)}, {sr(sTmp, 2)}, {vr(tE, 2)}")
        if i % 4 == 2:
            off = 32 * 528 * (i >> 4) + 32 * ((i >> 2) & 3)
            A(f"ds_write_b128 v{vTw}, {vr(32 + i - 2, 4)} offset:{L_TU - L_TA + off}")
            A(f"ds_write_b128 v{vTw}, {vr(i - 2, 4)} offset:{off}")
    A("s_mov_b64 exec, -1")
    A(f"v_cmpx_lt_f32 vcc, {hex(f32(AMAX))}, v{tE + 2}")
    A(f"ds_write_b32 v{vZero}, v{vOne} offset:{L_FLAG}")
    arrive(C_TA)
    if sig_at >= 8:
        A(table_signal())
    stamp(A, opt, "tsig")
    late_setup(vL)
    for o in zero_ops:
        A(o)
    vTf = tE
    tf_poll = f"buffer_load_dwordx2 {vr(vTf, 2)}, v{vPa}, {sr(S_OFFS, 4)}, s{sQ1} offen sc1"
    A(f"""
    v_lshlrev_b32 v{vPa}, 3, v{vX + 2}
    s_mov_b32 s{sQ1}, {TF_OFF}
    {tf_poll}
    """)
    tag_wait("tf", vTf, tf_poll, int(opt.get("tsleep", 4)))
    stamp(A, opt, "tfok")
    if npf:
        A(f"""
        s_cmp_lg_u32 s{sCb}, 0
        s_cbranch_scc1 Lno_pf
        v_lshlrev_b32 v{tE + 2}, 3, v{vX + 3}
        s_lshr_b32 s3, s2, 3
        s_lshl_b32 s3, s3, 13
        """)
        for i in range(npf):
            A(f"buffer_load_dword v{tE + 3}, v{tE + 2}, {sr(S_TAB, 4)}, s3 offen {tab_pol}")
            A(f"s_add_u32 s3, s3, {32 * 8192}")
        A("Lno_pf:")
    node_scan("s4t", None, 2)
    A("s_nop 0")
    wave_range()
    spin("tta", C_TA)
    slot_reads()
    A("s_waitcnt lgkmcnt(0)")
    slot_exps()

    A(f"""
    Ljoin:
    {f's_mov_b32 s{S_TAB + 2}, 0' if opt.get('notab') else ''}
    v_mov_b64 {vr(cn, 2)}, 1
    s_waitcnt lgkmcnt(0)
    """)
    stamp(A, opt, "join")
    A(f"""
    s_barrier
    s_setprio 3
    ds_read_b128 {vr(en, 4)}, v{t} offset:{L_SO}
    ds_read_b32 v{t + 3}, v{vZero} offset:{L_FLAG}
    ds_read_b128 {vr(en + 4, 4)}, v{t} offset:{L_SO + 16}
    s_waitcnt lgkmcnt(2)
    v_lshrrev_b32 v{key}, 26, v{en + 2}
    v_and_b32 v{key}, 56, v{key}
    v_cndmask_b32_e64 v{key}, v{key}, 56, {sr(sTmp, 2)}
    s_waitcnt lgkmcnt(1)
    v_readfirstlane_b32 s3, v{t + 3}
    v_lshlrev_b64 {vr(cn, 2)}, v{key}, {vr(cn, 2)}
    v_and_b32 v{t + 3}, 63, v{en}
    s_cmp_lg_u32 s3, 0
    s_cbranch_scc1 Lslow_entry
    s_waitcnt lgkmcnt(0)
    ds_write_b32 v{vEp}, v{vX + 13} offset:{1152 + 1024}
    """)
    stamp(A, opt, "bD")
    fillers = [f"v_subrev_u32 v{t + 3}, s{sQ1}, v{t + 3}", f"v_mul_u32_u24 v{t + 3}, 12, v{t + 3}"]
    fillers += [f"v_lshrrev_b32 v{so + i}, 9, v{en + 2 * i}" for i in range(4)]
    for k, d in enumerate(WAVE_SCAN):
        A(f"v_add_u32_dpp v{cn}, v{cn}, v{cn} {d} bank_mask:0xf")
        A(f"v_add_u32_dpp v{cn + 1}, v{cn + 1}, v{cn + 1} {d} bank_mask:0xf")
        A(fillers[k])
    A(f"v_readlane_b32 s{sTmp}, v{cn}, 63")
    A(f"v_readlane_b32 s{sTmp + 1}, v{cn + 1}, 63")
    for i in range(4):
        A(f"v_bfe_u32 v{eo + i}, v{en + 2 * i}, 6, 11")
        A(f"v_lshlrev_b32 v{en + 2 * i}, 13, v{en + 2 * i}")
    A(f"""
    s_mul_i32 s3, s{sTmp}, 0x01010101
    s_mul_i32 s{sTmp + 1}, s{sTmp + 1}, 0x01010100
    s_lshl_b32 s{sTmp}, s3, 8
    s_lshr_b32 s3, s3, 24
    s_mul_i32 s3, s3, 0x01010101
    s_add_u32 s{sTmp + 1}, s{sTmp + 1}, s3
    v_lshl_add_u64 {vr(cn, 2)}, {vr(cn, 2)}, 0, {sr(sTmp, 2)}
    s_sub_u32 s3, s{sSW}, 16
    v_lshrrev_b64 {vr(cn, 2)}, v{key}, {vr(cn, 2)}
    """)
    for i in range(4):
        A(f"v_lshl_add_u32 v{eo + i}, v{eo + i}, 5, v{en + 2 * i + 1}")
    A(f"v_and_b32 v{pos}, 0xff, v{cn}")
    for i in range(4):
        A(f"v_and_or_b32 v{en + 2 * i}, v{en + 2 * i}, 2.0, v{vInv}")
        A(f"v_or_b32 v{eo + i}, v{eo + i}, v{en + 2 * i}")
    A(f"v_lshl_add_u32 v{t}, v{pos}, 4, s3")
    A(f"ds_write_b128 v{t}, {vr(eo, 4)} offset:1152")
    A(f"ds_read_b32 v{vEo}, v{vEp} offset:1152")
    for i in range(4):
        A(f"v_and_or_b32 v{so + i}, v{so + i}, s{sQ3}, v{vInv}")
    A(f"""
    v_and_b32 v{t + 1}, 1, v{pos}
    v_lshl_add_u32 v{t + 1}, v{t + 1}, 3, v{t}
    v_subrev_u32 v{t + 1}, 8, v{t + 1}
    ds_write2_b64 v{t + 1}, {vr(so, 2)}, {vr(so + 2, 2)} offset0:0 offset1:2
    ds_read_b128 {vr(vSo, 4)}, v{vSp}
    ds_read_b128 {vr(vT, 4)}, v{vSp} offset:32
    v_add_u32 v{t + 2}, s{sSW}, v{pos}
    ds_write_b8 v{t + 2}, v{t + 3} offset:2303
    ds_read_b32 v{vT + 4}, v{vEp} offset:{1152 + 128}
    ds_read_b32 v{vSb}, v{la + 3} offset:2304
    s_waitcnt lgkmcnt(6)
    {ea_loads()}
    """)
    stamp(A, opt, "str")
    for u in range(4):
        src = (vSo, vSo + 2, vT, vT + 2)[u]
        if u in (0, 2):
            A(f"s_waitcnt lgkmcnt({(4, 2)[u // 2]})")
        A(f"v_lshl_add_u64 {vr(src, 2)}, {vr(src, 2)}, 0, {vr(vLo, 2)}")
        A(f"buffer_load_dwordx4 {vr(vL + 8 * u, 4)}, v{src}, {sr(S_TAB, 4)}, 0 offen {tab_pol}")
        A(f"buffer_load_dwordx4 {vr(vL + 8 * u + 4, 4)}, v{src + 1}, {sr(S_TAB, 4)}, 0 offen {tab_pol}")
    stamp(A, opt, "prim")
    A(f"s_cmp_ge_u32 s{sW}, 4")
    A("s_cbranch_scc1 Lslots_done")
    slot_reads()
    for o in zero_ops:
        A(o)
    A("s_waitcnt lgkmcnt(0)")
    slot_exps()
    A(f"""
    Lslots_done:
    s_waitcnt lgkmcnt(0)
    v_mov_b32 v{vEo}, v{vT + 4}
    v_readlane_b32 s{sSl0}, v{vSb}, 0
    v_readlane_b32 s{sSl1}, v{vSb}, 1
    s_mov_b32 s{sLn}, 2
    s_mov_b32 s{sLn + 1}, 3
    s_mul_i32 s{sQ1}, s{sRem}, 3
    s_lshr_b32 s{sQ1}, s{sQ1}, 2
    s_lshr_b32 s{sQ2}, s{sRem}, 1
    s_lshr_b32 s{sQ3}, s{sRem}, 2
    s_waitcnt vmcnt(8)
    """)
    stamp(A, opt, "first")

    def batch_masks(window):
        A(f"""
        v_bfe_u32 v{vX}, v{vOffs}, 11, 11
        v_and_b32 v{vX + 1}, 1, v{vTid}
        v_subrev_u32 v{vX}, s{sW0}, v{vX}
        v_lshlrev_b32 v{vX + 1}, 2, v{vX + 1}
        v_cmp_lt_i32_e64 {sr(sMore, 2)}, {window}, v{vX}
        v_sub_u32 v{vX}, v{vX}, v{vX + 1}
        """)
        for i in range(window // 2):
            A(f"v_cmp_lt_i32_e64 {sr(cand[i][5], 2)}, {(i & 3) + 8 * (i >> 2)}, v{vX}")

    def rec_addr():
        A(f"""
        v_lshrrev_b32 v{vX + 2}, 1, v{vTid}
        v_and_b32 v{vX + 1}, 1, v{vTid}
        v_mul_u32_u24 v{vX + 2}, {CH}, v{vX + 2}
        v_lshl_add_u32 v{vX + 1}, v{vX + 1}, 2, s{sW0}
        v_add_u32 v{vX + 1}, v{vX + 1}, v{vX + 2}
        v_lshlrev_b32 v{vX + 2}, 5, v{vX + 2}
        """)
        for i in range(0, 8, 2):
            A(f"v_mov_b64 {vr(vKey + i, 2)}, 0")

    def rec_loads():
        A(f"""
        v_and_b32 v{vX + 4}, 0x7ff, v{vOffs}
        v_add_lshl_u32 v{vX + 4}, v{vX + 4}, v{vX + 1}, 2
        buffer_load_dwordx4 {vr(vRec, 4)}, v{vX + 4}, {sr(S_REC, 4)}, 0 offen sc1
        buffer_load_dwordx4 {vr(vRec + 4, 4)}, v{vX + 4}, {sr(S_REC, 4)}, 0 offen offset:32 sc1
        """)

    def histogram(cs):
        for rec, key_, rank, so_, eo_, m in cs:
            A(f"s_mov_b64 exec, {sr(m, 2)}")
            A(f"v_alignbit_b32 v{key_}, v{rec}, v{rec}, 27")
            A(f"v_and_b32 v{key_}, 0x7fc, v{key_}")
            A(f"ds_add_rtn_u32 v{rank}, v{key_}, v{vOne} offset:{L_CNT}")
        A("s_mov_b64 exec, -1")

    def mfma(j):
        return f"v_mfma_f32_32x32x16_bf16 {vr(vD + 16 * j, 16)}, {vr(vEA, 4)}, {vr(vWC + 4 * j, 4)}, 0"

    A(ea_merge())
    A("s_nop 1")
    for j in range(4):
        A(mfma(j))
    A(ea_loads())
    A("s_nop 7")
    A(f"s_cmp_gt_u32 s{sRem}, 8")
    A("s_cbranch_scc0 Llast")

    def step(u, last):
        La, Lb = vL + 8 * (u & 3), vL + 8 * (u & 3) + 4
        a, b = vT, vT + 4
        sl = (sSl0, sSl1)[u >> 2]
        prefetch = not (last and u >= 4)
        wait = 8 if u < 4 else (6 if not last else 2 * (7 - u))
        A(f"s_waitcnt vmcnt({wait})")
        if prefetch and u % 2 == 0:
            A(f"ds_read_b128 {vr(vSo, 4)}, v{vSp} offset:{16 * (u + 4)}")
        if u == 6 and not last:
            A(f"ds_read_b32 v{vEo}, v{vEp} offset:{1152 + 256}")
            A(ea_merge())

        def mix(j, hb):
            return (f"v_fma_mix_f32 v{(a, b)[hb] + j}, v{vD + 16 * j + 2 * u + hb}, s{sNl}, v{(La, Lb)[hb] + j} "
                    "op_sel_hi:[0,0,1]")

        wide = not (prefetch and u % 2 == 0)
        if u == 7 and not last:
            for j in range(4):
                A(mix(j, 0))
                A(mix(j, 1))
                if j:
                    A(f"v_exp_f32 v{a + j - 1}, v{a + j - 1}")
                    A(f"v_exp_f32 v{b + j - 1}, v{b + j - 1}")
                A(mfma(j))
            A(f"v_exp_f32_e64 v{a + 3}, v{a + 3}")
            A(f"v_exp_f32 v{b + 3}, v{b + 3}")
        else:
            for hb in range(2):
                for j in range(4):
                    A(mix(j, hb))
            for j in range(8):
                A(f"v_exp_f32{'_e64' if wide and j == 0 else ''} v{a + j}, v{a + j}")
        if not wide:
            A("s_waitcnt lgkmcnt(0)")
        A(f"s_set_gpr_idx_on s{sl}, gpr_idx(SRC1)")
        for j in range(0, 8, 2):
            A(f"v_pk_fma_f32 {vr(a + j, 2)}, {vr(a + j, 2)}, {vr(vSl + 8 + (j & 3), 2)}, {sr(sC0, 2)} clamp")
        A("s_set_gpr_idx_mode gpr_idx()")
        A(f"s_lshr_b32 s{sl}, s{sl}, 8")
        for j in (0, 2):
            A(f"v_pk_mul_f32 {vr(La + j, 2)}, {vr(La + j, 2)}, {vr(b + j, 2)}")
        so2 = vSo + 2 * (u & 1)
        if prefetch:
            A(f"v_lshl_add_u64 {vr(so2, 2)}, {vr(so2, 2)}, 0, {vr(vLo, 2)}")
        for j in (0, 2):
            A(f"v_pk_fma_f32 {vr(La + j, 2)}, {vr(Lb + j, 2)}, {vr(a + j, 2)}, {vr(La + j, 2)}")
        for j in (0, 2):
            A(f"v_pk_add_f32 {vr(Lb + j, 2)}, {vr(a + j, 2)}, {vr(b + j, 2)}")
        for j in (0, 2):
            A(f"v_pk_mul_f32 {vr(a + j, 2)}, {vr(a + j, 2)}, {vr(b + j, 2)}")
        for j in range(4):
            A(f"v_rcp_f32{'_e64' if j == 0 else ''} v{a + j}, v{a + j}")
        A("s_set_gpr_idx_mode gpr_idx(SRC2,DST)")
        for j in (0, 2):
            A(f"v_pk_fma_f32 {vr(vSl + j, 2)}, {vr(La + j, 2)}, {vr(a + j, 2)}, {vr(vSl + j, 2)}")
            A(f"v_pk_fma_f32 {vr(vSl + 4 + j, 2)}, {vr(Lb + j, 2)}, {vr(a + j, 2)}, {vr(vSl + 4 + j, 2)}")
        if prefetch and not opt.get("noload"):
            A(f"buffer_load_dwordx4 {vr(La, 4)}, v{so2}, {sr(S_TAB, 4)}, 0 offen {tab_pol}")
            A(f"buffer_load_dwordx4 {vr(Lb, 4)}, v{so2 + 1}, {sr(S_TAB, 4)}, 0 offen {tab_pol}")
        A("s_set_gpr_idx_off")

    A(".p2align 6")
    A("Ltile:")
    A(f"s_sub_u32 s{sRem}, s{sRem}, 8")
    for u in range(8):
        step(u, False)
    A(f"""
    {ea_loads()}
    v_readlane_b32 s{sSl0}, v{vSb}, s{sLn}
    v_readlane_b32 s{sSl1}, v{vSb}, s{sLn + 1}
    v_add_u32 v{vSp}, 0x80, v{vSp}
    v_add_u32 v{vEp}, 0x80, v{vEp}
    s_add_u32 s{sLn}, s{sLn}, 2
    s_add_u32 s{sLn + 1}, s{sLn + 1}, 2
    """)
    if not opt.get("noprio"):
        for k, sq in enumerate((sQ1, sQ2, sQ3)):
            A(f"s_cmp_le_u32 s{sRem}, s{sq}")
            A("s_cbranch_scc0 Lprio_done")
            A(f"s_setprio {2 - k}")
        A("Lprio_done:")
    A(f"s_cmp_gt_u32 s{sRem}, 8")
    A("s_cbranch_scc1 Ltile")
    A(".p2align 3")
    A("Llast:")
    A("s_nop 0")
    for u in range(8):
        step(u, True)
        if u < 7:
            A(f"s_cmp_le_u32 s{sRem}, {u + 1}")
            A("s_cbranch_scc1 Lmain_done")
    A("Lmain_done:")
    stamp(A, opt, "done")

    def finalize(a0, o, a1, u0, x0, addr, soff, pre_store):
        for j in range(4):
            A(f"v_permlane32_swap_b32 v{a0 + j}, v{a1 + j}")
            A(f"v_permlane32_swap_b32 v{a0 + o + j}, v{a1 + o + j}")
        for j in (o, o + 2, 0, 2):
            A(f"v_pk_add_f32 {vr(a0 + j, 2)}, {vr(a0 + j, 2)}, {vr(a1 + j, 2)}")
        for j in (o, o + 2):
            A(f"v_pk_add_f32 {vr(a0 + j, 2)}, {vr(a0 + j, 2)}, {sr(sC0, 2)}")
        for j in range(4):
            A(f"v_rcp_f32 v{a0 + o + j}, v{a0 + o + j}")
        A(f"v_lshlrev_b32 v{a1}, 16, v{x0}")
        A(f"v_and_b32 v{a1 + 1}, 0xffff0000, v{x0}")
        A(f"v_lshlrev_b32 v{a1 + 2}, 16, v{x0 + 1}")
        A(f"v_and_b32 v{a1 + 3}, 0xffff0000, v{x0 + 1}")
        for j in (0, 2):
            A(f"v_pk_fma_f32 {vr(a0 + j, 2)}, {vr(a0 + j, 2)}, {vr(a0 + o + j, 2)}, {vr(u0 + j, 2)}")
        for j in range(4):
            A(f"v_max_f32 v{a0 + j}, 0, v{a0 + j}")
        for j in (0, 2):
            A(f"v_pk_add_f32 {vr(a0 + j, 2)}, {vr(a0 + j, 2)}, {vr(a1 + j, 2)}")
        A(f"v_cvt_pk_bf16_f32 v{a0}, v{a0}, v{a0 + 1}")
        A(f"v_cvt_pk_bf16_f32 v{a0 + 1}, v{a0 + 2}, v{a0 + 3}")
        A(pre_store)
        A(f"buffer_store_dwordx2 {vr(a0, 2)}, v{addr}, {sr(S_OUT, 4)}, s{soff} offen")

    eps = f32(1e-6 / c0)
    vU, vXr, vA1, vA2, vA3, vCy = vD, vD + 16, vD + 24, vD + 25, vD + 26, vD + 32
    A(f"""
    v_lshl_add_u32 v{vA1}, v{vH16}, 5, v{vLo}
    v_add_u32 v{vA1}, s{sSW}, v{vA1}
    ds_write_b128 v{vA1}, {vr(vSl, 4)}
    ds_write_b128 v{vA1}, {vr(vSl + 4, 4)} offset:1024
    s_mul_i32 s3, s{sF0}, 528
    s_add_u32 s3, s3, {L_TU}
    v_mul_u32_u24 v{vA2}, 33, v{vH16}
    v_add3_u32 v{vA2}, v{vA2}, v{vLo}, s3
    s_mul_i32 s3, s{sF0}, 272
    s_add_u32 s3, s3, {L_X}
    v_mul_u32_u24 v{vA3}, 17, v{vH16}
    v_lshrrev_b32 v{vLo + 1}, 1, v{vLo}
    v_add3_u32 v{vA3}, v{vA3}, v{vLo + 1}, s3
    """)
    for pr in range(4):
        A(f"ds_read_b128 {vr(vU + 4 * pr, 4)}, v{vA2} offset:{1056 * pr}")
        A(f"ds_read_b64 {vr(vXr + 2 * pr, 2)}, v{vA3} offset:{544 * pr}")
    A(f"""
    v_lshl_add_u32 v{vA2}, v{vH16}, 4, v{vLo + 1}
    s_add_u32 s{sQ1}, s{sN0}, s{sF0}
    s_lshl_b32 s{sQ1}, s{sQ1}, 8
    s_mov_b32 s{sC0}, {hex(eps)}
    s_mov_b32 s{sC0 + 1}, {hex(eps)}
    s_mul_i32 s{sQ2}, s{sOwn}, 12
    s_waitcnt lgkmcnt(0)
    """)
    for pr in range(4):
        if pr < 3:
            A(f"s_cmp_gt_u32 s{sOwn}, {2 * pr + 2}")
            A(f"s_cbranch_scc1 Lfin{pr}")
        A("s_barrier")
        A(f"s_cmp_eq_u32 s{sW}, 7")
        A(f"s_cbranch_scc1 Lfin{pr}")
        A(f"ds_read_b128 {vr(vCy, 4)}, v{vA1} offset:{STRW}")
        A(f"ds_read_b128 {vr(vCy + 4, 4)}, v{vA1} offset:{STRW + 1024}")
        A(f"s_set_gpr_idx_on s{sQ2}, gpr_idx(SRC0,DST)")
        A("s_waitcnt lgkmcnt(0)")
        for j in range(0, 8, 2):
            A(f"v_pk_add_f32 {vr(vSl + j, 2)}, {vr(vSl + j, 2)}, {vr(vCy + j, 2)}")
        A("s_set_gpr_idx_off")
        A("s_nop 1")
        A(f"Lfin{pr}:")
        finalize(vSl + 12 * (2 * pr + 1), 4, vSl + 12 * (2 * pr + 2), vU + 4 * pr, vXr + 2 * pr, vA2, sQ1,
                 f"s_cmp_gt_u32 s{sOwn}, {2 * pr + 1}\ns_cselect_b32 exec_hi, -1, 0")
        if pr < 3:
            A(f"s_add_u32 s{sQ1}, s{sQ1}, 512")
            A(f"s_cmp_gt_u32 s{sOwn}, {2 * pr + 2}")
            A("s_cbranch_scc0 Lk2_done")
    A("Lk2_done:")
    stamp_flush(A, opt, 8, 0x20000, vTid)
    if opt.get("spin"):
        A("""
        Lspin:
        s_memrealtime s[42:43]
        s_waitcnt lgkmcnt(0)
        s_sub_u32 s42, s42, s100
        s_cmp_lt_u32 s42, 10000
        s_cbranch_scc1 Lspin
        """)
    A("Lk2_exit:")
    A("s_endpgm")

    NU = 7
    vAcc, vAn = 0, 56
    vLs = [vL + 8 * u for u in range(4)] + [84 + 8 * u for u in range(3)]
    vP, vErr, vQ, vCaddr, vUaddr = 245, 252, 253, 254, 255
    vEB, vEo2 = vT, vSp
    A("Lslow_entry:")
    A(f"""
    v_lshrrev_b32 v{vPa}, 1, v{vTid}
    v_lshlrev_b32 v{vPa}, 11, v{vPa}
    s_lshl_b32 s3, s{sBk}, 3
    s_mov_b32 s{sW0}, 0
    buffer_load_dword v{vOffs}, v{vPa}, {sr(S_OFFS, 4)}, s3 offen sc1
    s_waitcnt vmcnt(0) lgkmcnt(0)
    s_barrier
    v_lshlrev_b32 v{vX + 11}, 2, v{vTid}
    ds_write_b32 v{vX + 11}, v{vZero} offset:{L_CNT}
    s_mul_i32 s3, s{sW}, 528
    s_add_u32 s3, s3, {L_TA}
    v_add_u32 v{vX + 11}, s3, v{vLo}
    """)
    for u in range(NU):
        A(f"ds_read_b128 {vr(vAn + 4 * u, 4)}, v{vX + 11} offset:{8 * 528 * u}")
    for i in range(0, 8 * NU, 2):
        A(f"v_mov_b64 {vr(vAcc + i, 2)}, 0")
    A(f"""
    v_bfe_u32 v{vX + 11}, v{vTid}, 3, 3
    v_and_b32 v{vX + 12}, 7, v{vTid}
    v_lshlrev_b32 v{vX + 12}, 2, v{vX + 12}
    v_lshl_add_u32 v{vX + 12}, v{vX + 11}, 8, v{vX + 12}
    s_lshl_b32 s3, s{sW}, 5
    v_add_u32 v{vCaddr}, s3, v{vX + 12}
    v_bfe_u32 v{vX + 11}, v{vTid}, 3, 2
    v_bfe_u32 v{vX + 12}, v{vTid}, 1, 1
    v_lshl_add_u32 v{vX + 11}, v{vX + 11}, 1, v{vX + 12}
    v_lshlrev_b32 v{vUaddr}, 5, v{vX + 11}
    Lbatch:
    """)
    batch_masks(16)
    A("Lround:")
    rec_addr()
    rec_loads()
    A(f"""
    v_mov_b32 v{vZero}, 0
    v_mov_b32 v{vOne}, 1
    ds_write_b32 v{vZero}, v{vZero} offset:{L_FLAG}
    ds_write_b32 v{vZero}, v{vZero} offset:{L_FLAG + 4}
    s_waitcnt lgkmcnt(0)
    s_barrier
    s_mov_b64 exec, {sr(sMore, 2)}
    ds_write_b32 v{vZero}, v{vOne} offset:{L_FLAG + 4}
    s_mov_b64 exec, -1
    s_waitcnt vmcnt(0)
    """)
    histogram(cand)
    for rec, key_, rank, so_, eo_, m in cand:
        A(f"v_lshrrev_b32 v{so_}, 18, v{rec}")
        A(f"v_bfe_u32 v{eo_}, v{rec}, 6, 11")
        A(f"v_lshlrev_b32 v{vSy}, 13, v{rec}")
        A(f"v_lshlrev_b32 v{so_}, 9, v{so_}")
        A(f"v_lshl_add_u32 v{eo_}, v{eo_}, 5, v{vX + 2}")
        A(f"v_and_or_b32 v{eo_}, v{vSy}, 2.0, v{eo_}")
    A("s_waitcnt lgkmcnt(0)")
    A("s_barrier")
    c, inc, deg, q, t0, t1 = vX + 12, vX + 13, vX + 14, vX + 15, vX + 16, vX + 17
    A(f"ds_read_b32 v{c}, v{vCaddr} offset:{L_CNT}")
    A(f"v_lshrrev_b32 v{t0}, 5, v{vCaddr}")
    A(f"v_lshlrev_b32 v{t0}, 6, v{t0}")
    A("s_waitcnt lgkmcnt(0)")
    A(f"ds_write_b32 v{vCaddr}, v{vZero} offset:{L_CNT}")
    A(f"v_mov_b32 v{inc}, v{c}")
    for d in (1, 2, 4, 8):
        A("s_nop 1")
        A(f"v_add_u32_dpp v{inc}, v{inc}, v{inc} row_shr:{d} row_mask:0xf bank_mask:0xf")
    A(f"""
    v_mov_b32 v{t1}, 0
    s_nop 0
    v_mov_b32_dpp v{deg}, v{inc} row_newbcast:7 row_mask:0xf bank_mask:0x3
    v_mov_b32_dpp v{t1}, v{inc} row_newbcast:7 row_mask:0xf bank_mask:0xc
    v_mov_b32_dpp v{deg}, v{inc} row_newbcast:15 row_mask:0xf bank_mask:0xc
    v_sub_u32 v{inc}, v{inc}, v{t1}
    v_sub_u32 v{deg}, v{deg}, v{t1}
    v_sub_u32 v{inc}, v{inc}, v{c}
    v_add_u32 v{inc}, v{inc}, v{t0}
    ds_write_b32 v{vCaddr}, v{inc} offset:{L_BASE}
    v_cmp_lt_u32 vcc, 64, v{deg}
    v_min_u32 v{deg}, 64, v{deg}
    v_add_u32 v{q}, 3, v{deg}
    v_lshrrev_b32 v{q}, 2, v{q}
    s_mov_b64 exec, vcc
    ds_write_b32 v{vZero}, v{vOne} offset:{L_FLAG}
    s_mov_b64 exec, -1
    ds_bpermute_b32 v{vQ}, v{vUaddr}, v{q}
    v_and_b32 v{c}, 7, v{vTid}
    v_add_u32 v{c}, v{c}, v{deg}
    v_lshlrev_b32 v{t1}, 2, v{q}
    v_cmp_lt_u32 vcc, v{c}, v{t1}
    v_add_lshl_u32 v{c}, v{c}, v{t0}, 2
    v_mov_b32 v{t0}, {TAB_BYTES}
    v_bfrev_b32 v{t1}, 1
    s_mov_b64 exec, vcc
    ds_write_b32 v{c}, v{t0} offset:{L_SO}
    ds_write_b32 v{c}, v{t1} offset:{L_EO}
    s_mov_b64 exec, -1
    v_max_u32_dpp v{q}, v{q}, v{q} row_ror:8 row_mask:0xf bank_mask:0xf
    s_nop 0
    v_readlane_b32 s{sT}, v{q}, 0
    v_readlane_b32 s3, v{q}, 16
    v_readlane_b32 s{sTmp}, v{q}, 32
    v_readlane_b32 s{sTmp + 1}, v{q}, 48
    s_waitcnt lgkmcnt(0)
    s_barrier
    ds_read_b64 {vr(vX + 12, 2)}, v{vZero} offset:{L_FLAG}
    """)
    for i in range(8):
        A(f"ds_read_b32 v{vKey + i}, v{vKey + i} offset:{L_BASE}")
    A(f"""
    s_max_u32 s{sT}, s{sT}, s3
    s_max_u32 s{sTmp}, s{sTmp}, s{sTmp + 1}
    s_max_u32 s{sT}, s{sT}, s{sTmp}
    s_waitcnt lgkmcnt(0)
    v_readfirstlane_b32 s{sOvf}, v{vX + 12}
    v_readfirstlane_b32 s{sMor}, v{vX + 13}
    """)
    for i in range(8):
        A(f"v_and_b32 v{vX + 12}, 63, v{vRec + i}")
        A(f"v_add_u32 v{vKey + i}, v{vKey + i}, v{vRank + i}")
        A(f"v_lshl_add_u32 v{vX + 12}, v{vX + 12}, 6, 64")
        A(f"v_cmp_lt_u32 vcc, v{vKey + i}, v{vX + 12}")
        A(f"v_lshlrev_b32 v{vKey + i}, 2, v{vKey + i}")
        A(f"s_and_b64 exec, vcc, {sr(sMask + 2 * i, 2)}")
        A(f"ds_write_b32 v{vKey + i}, v{vSoff + i} offset:{L_SO}")
        A(f"ds_write_b32 v{vKey + i}, v{vEoff + i} offset:{L_EO}")
        A(f"s_andn2_b64 {sr(sMask + 2 * i, 2)}, {sr(sMask + 2 * i, 2)}, vcc")
        A("s_mov_b64 exec, -1")
    A(f"""
    s_lshl_b32 s3, s{sW}, 8
    v_lshrrev_b32 v{vX + 12}, 1, v{vH16}
    v_add_u32 v{vP}, s3, v{vX + 12}
    v_and_b32 v{vX + 12}, 1, v{vTid}
    v_bfe_u32 v{vX + 13}, v{vTid}, 2, 1
    v_lshl_add_u32 v{vX + 12}, v{vX + 13}, 1, v{vX + 12}
    v_lshl_add_u32 v{vX + 12}, v{vX + 12}, 2, s3
    v_lshl_add_u32 v{vEp}, v{vUaddr}, 6, v{vX + 12}
    s_lshr_b32 s3, s{sT}, 1
    v_mov_b32 v{vErr}, s3
    s_mov_b64 {sr(sCur, 2)}, 0
    s_mov_b32 s{sTi}, 0
    """)
    for u in range(1, NU):
        A(f"v_mov_b32 v{vP + u}, v{vP}")
    A(f"""
    s_waitcnt lgkmcnt(0)
    s_barrier
    s_cmp_eq_u32 s{sT}, 0
    s_cbranch_scc1 Lg_done
    s_branch Lg_entry
    Lg_tile:
    s_waitcnt vmcnt({2 * NU})
    """)
    for j in range(4):
        A(mfma(j))
    A(f"""
    Lg_entry:
    v_add_u32 v{vErr}, v{vQ}, v{vErr}
    ds_read_b32 v{vEo}, v{vEp} offset:{L_EO}
    ds_read_b64 {vr(vSo, 2)}, v{vP} offset:{L_SO}
    v_cmp_le_u32_e64 {sr(sNext, 2)}, s{sT}, v{vErr}
    s_cmp_lt_u32 s{sTi}, s{sT}
    s_cselect_b64 {sr(sNext, 2)}, {sr(sNext, 2)}, 1
    s_mov_b64 exec, {sr(sNext, 2)}
    v_subrev_u32 v{vErr}, s{sT}, v{vErr}
    v_add_u32 v{vEp}, 16, v{vEp}
    s_waitcnt lgkmcnt(1)
    {ea_loads()}
    s_waitcnt vmcnt(0)
    {ea_merge()}
    s_mov_b64 exec, -1
    """)
    for u in range(NU):
        bit = 8 * (u >> 1) + 2 * (u & 1) + 1
        so2 = vSo + 2 * (u & 1)
        La, Lb = vLs[u], vLs[u] + 4
        a, b = vT, vT + 4
        num, den = vAcc + 8 * u, vAcc + 8 * u + 4
        if u + 1 < NU:
            A(f"ds_read_b64 {vr(vSo + 2 * ((u + 1) & 1), 2)}, v{vP + u + 1} offset:{L_SO + 2048 * (u + 1)}")
        A(f"s_bitcmp1_b32 s{sCur}, {bit}")
        A(f"s_cbranch_scc0 Lg_skip{u}")
        A(f"s_waitcnt vmcnt({2 * NU - 1})")
        for j in range(4):
            A(f"v_fma_mix_f32 v{a + j}, v{vD + 16 * j + 2 * u}, s{sNl}, v{La + j} op_sel_hi:[0,0,1]")
        for j in range(4):
            A(f"v_fma_mix_f32 v{b + j}, v{vD + 16 * j + 2 * u + 1}, s{sNl}, v{Lb + j} op_sel_hi:[0,0,1]")
        for j in range(0, 8, 2):
            A(f"v_pk_add_f32 {vr(a + j, 2)}, {vr(a + j, 2)}, {vr(vAn + 4 * u + (j & 3), 2)}")
        for j in range(8):
            A(f"v_exp_f32_e64 v{a + j}, v{a + j} clamp")
        for j in range(0, 8, 2):
            A(f"v_pk_add_f32 {vr(a + j, 2)}, {vr(a + j, 2)}, {sr(sC0, 2)}")
        for j in (0, 2):
            A(f"v_pk_mul_f32 {vr(La + j, 2)}, {vr(La + j, 2)}, {vr(b + j, 2)}")
        for j in (0, 2):
            A(f"v_pk_fma_f32 {vr(La + j, 2)}, {vr(Lb + j, 2)}, {vr(a + j, 2)}, {vr(La + j, 2)}")
        for j in (0, 2):
            A(f"v_pk_add_f32 {vr(Lb + j, 2)}, {vr(a + j, 2)}, {vr(b + j, 2)}")
        for j in (0, 2):
            A(f"v_pk_mul_f32 {vr(a + j, 2)}, {vr(a + j, 2)}, {vr(b + j, 2)}")
        for j in range(4):
            A(f"v_rcp_f32 v{a + j}, v{a + j}")
        for j in (0, 2):
            A(f"v_pk_fma_f32 {vr(num + j, 2)}, {vr(La + j, 2)}, {vr(a + j, 2)}, {vr(num + j, 2)}")
            A(f"v_pk_fma_f32 {vr(den + j, 2)}, {vr(Lb + j, 2)}, {vr(a + j, 2)}, {vr(den + j, 2)}")
        A(f"Lg_skip{u}:")
        A(f"s_bitcmp1_b32 s{sNext}, {bit}")
        A("s_cselect_b64 exec, -1, 1")
        A(f"s_cselect_b32 s{sInc}, 16, 0")
        A(f"s_waitcnt lgkmcnt({1 if u + 1 < NU else 0})")
        A(f"v_add_u32 v{so2}, v{so2}, v{vLo}")
        A(f"v_add_u32 v{so2 + 1}, v{so2 + 1}, v{vLo}")
        A(f"buffer_load_dwordx4 {vr(La, 4)}, v{so2}, {sr(S_TAB, 4)}, 0 offen {tab_pol}")
        A(f"buffer_load_dwordx4 {vr(Lb, 4)}, v{so2 + 1}, {sr(S_TAB, 4)}, 0 offen {tab_pol}")
        A("s_mov_b64 exec, -1")
        A(f"v_add_u32 v{vP + u}, s{sInc}, v{vP + u}")
    A(f"""
    s_mov_b64 {sr(sCur, 2)}, {sr(sNext, 2)}
    s_add_u32 s{sTi}, s{sTi}, 1
    s_cmp_le_u32 s{sTi}, s{sT}
    s_cbranch_scc1 Lg_tile
    Lg_done:
    s_waitcnt vmcnt(0)
    s_cmp_lg_u32 s{sOvf}, 0
    s_cbranch_scc1 Lround
    s_add_u32 s{sW0}, s{sW0}, 16
    s_cmp_lg_u32 s{sMor}, 0
    s_cbranch_scc1 Lbatch
    s_mul_i32 s3, s{sW}, 528
    s_add_u32 s3, s3, {L_TU}
    v_mul_u32_u24 v{vA2}, {33 * 8}, v{vH16}
    v_add3_u32 v{vA2}, v{vA2}, v{vLo}, s3
    s_mul_i32 s3, s{sW}, 272
    s_add_u32 s3, s3, {L_X}
    v_mul_u32_u24 v{vA3}, {17 * 8}, v{vH16}
    v_lshrrev_b32 v{vLo + 1}, 1, v{vLo}
    v_add3_u32 v{vA3}, v{vA3}, v{vLo + 1}, s3
    """)
    for pr in range(4):
        A(f"ds_read_b128 {vr(vU + 4 * pr, 4)}, v{vA2} offset:{16 * 528 * pr}")
        A(f"ds_read_b64 {vr(vXr + 2 * pr, 2)}, v{vA3} offset:{16 * 272 * pr}")
    A(f"""
    v_lshl_add_u32 v{vA2}, v{vH16}, 7, v{vLo + 1}
    s_add_u32 s{sQ1}, s{sN0}, s{sW}
    s_lshl_b32 s{sQ1}, s{sQ1}, 8
    s_mov_b32 s{sC0}, {hex(eps)}
    s_mov_b32 s{sC0 + 1}, {hex(eps)}
    s_waitcnt lgkmcnt(0)
    """)
    for pr in range(4):
        if pr == 3:
            A(f"s_add_u32 s3, s{sW}, 48")
            A(f"s_cmp_ge_u32 s3, s{sNn}")
            A("s_cbranch_scc1 Lk2_done")
        finalize(vAcc + 16 * pr, 4, vAcc + 16 * pr + 8, vU + 4 * pr, vXr + 2 * pr, vA2, sQ1,
                 "s_mov_b32 exec_hi, 0" if pr == 3 else "s_nop 0")
        A(f"s_add_u32 s{sQ1}, s{sQ1}, 4096")
    A("s_branch Lk2_done")
    return L_END


def gen_report(A, opt):
    kind, team, idx = opt["report"].split(",")
    idx, _, ref = idx.partition("-")
    idx = int(idx)
    A("report_kernel:")
    A("s_cmp_ge_u32 s2, 1")
    A("s_cbranch_scc1 Lr_exit")
    load_kernargs(A)
    A("s_waitcnt lgkmcnt(0)")
    srd(A, 28, P_WS, 0x80000, STAMP_OFF + 0x20000)

    def reduce(op, base, dst, tag, sub):
        A("v_lshrrev_b32 v1, 2, v0")
        A("v_and_b32 v2, 3, v0")
        A("v_lshlrev_b32 v1, 9, v1")
        A("v_lshl_add_u32 v1, v2, 6, v1")
        A(f"v_mov_b32 v3, {'-1' if op == 'min' else '0'}")
        A("s_mov_b32 s44, 0")
        A(f"Lr_{tag}:")
        A(f"buffer_load_dword v2, v1, s[28:31], s44 offen offset:{base}")
        A("s_waitcnt vmcnt(0)")
        if sub:
            A("v_subrev_u32 v2, s40, v2")
        A(f"v_{op}_u32 v3, v3, v2")
        A("s_add_u32 s44, s44, 8192")
        A("s_cmp_lt_u32 s44, 131072")
        A(f"s_cbranch_scc1 Lr_{tag}")
        A(f"v_readlane_b32 s{dst}, v3, 0")
        for l in range(1, 64):
            A(f"v_readlane_b32 s3, v3, {l}")
            A("s_nop 0")
            A(f"s_{op}_u32 s{dst}, s{dst}, s3")

    reduce("min", 0, 40, "a", False)
    reduce(kind, 8 * idx + (256 if team == "t" else 0), 41, "b", True)
    if ref:
        reduce(kind, 8 * int(ref) + (256 if team == "t" else 0), 45, "c", True)
        A("s_sub_u32 s41, s41, s45")
    A(f"s_lshr_b32 s41, s41, {12 if opt.get('cyc') else 8}" if kind == "add" else "s_lshl_b32 s41, s41, 2")
    A("s_min_u32 s41, s41, 30000")
    A("s_add_u32 s41, s41, 10000")
    A("Lr_spin:")
    A("s_memrealtime s[42:43]")
    A("s_waitcnt lgkmcnt(0)")
    A("s_sub_u32 s42, s42, s40")
    A("s_cmp_lt_u32 s42, s41")
    A("s_cbranch_scc1 Lr_spin")
    A("Lr_exit:")
    A("s_endpgm")


def descriptor(name, vgpr, extra=""):
    return f""".amdhsa_kernel {name}
  .amdhsa_next_free_vgpr {vgpr}
  .amdhsa_next_free_sgpr 102
  .amdhsa_accum_offset {(vgpr + 3) // 4 * 4}
  .amdhsa_group_segment_fixed_size 0
  .amdhsa_kernarg_size 96
  .amdhsa_user_sgpr_count 2
  .amdhsa_user_sgpr_kernarg_segment_ptr 1
  .amdhsa_system_sgpr_workgroup_id_x 1
{extra}.end_amdhsa_kernel
"""


def generate(opt):
    A = Asm()
    lds = gen_k2(A, opt)
    lst = f"kernel={NAME}_kernel " if opt.get("report") else ""
    text = (f"""; GatedGCN layer in one launch. Every workgroup buckets one chunk of edges by destination and builds its
; rows of the gather table, hands both over through d_ws, then sorts, gathers and reduces one bucket of nodes.
; @launch {lst}grid=(256,1,1) block=(512,1,1) lds={lds}
.amdgcn_target "amdgcn-amd-amdhsa--gfx950"
.text
.globl {NAME}_kernel
.p2align 8
.type {NAME}_kernel,@function
""" + A.text() + ".section .rodata,\"a\"\n.p2align 6\n"
            + descriptor(f"{NAME}_kernel", 256, "  .amdhsa_fp16_overflow 1\n"))
    if opt.get("report"):
        R = Asm()
        gen_report(R, opt)
        text = text.replace(".amdgcn_target", "; @launch kernel=report_kernel grid=(1,1,1) block=(64,1,1) lds=0\n.amdgcn_target")
        text = text.replace(".section .rodata", ".globl report_kernel\n.p2align 8\n.type report_kernel,@function\n" + R.text() + ".section .rodata")
        text += ".p2align 6\n" + descriptor("report_kernel", 8)
    return text


if __name__ == "__main__":
    out = sys.argv[1] if len(sys.argv) > 1 else f"cdna_kernels/{NAME}.s"
    opt = dict(a.split("=", 1) for a in sys.argv[2:])
    opt = {k: v.replace("+", " ") for k, v in opt.items()}
    open(out, "w").write(generate(opt))
```

```python
import math
import struct
import sys

NAME = "gather_scatter__edge_featured_mpnn_gatedgcn__graph"
N, E = 12500, 400000
BM, BS, SM, SC, SS = 171799, 23, 799999, 16330, 14
CH = 1568
NCH = 256
TAB_OFF = 0
REC_OFF = 0xE00000
OFF_OFF = 0x1000000
SPIN_MAX = 20000
STAMP_OFF = 0x2000000
TAB_BYTES = N * 512
KSH = 48
AMAX = 52.0
NLOG2E = -math.log2(math.e)


def f32(x):
    return struct.unpack("<I", struct.pack("<f", x))[0]


class Asm:
    def __init__(self):
        self.lines = []

    def __call__(self, s):
        for ln in s.strip("\n").split("\n"):
            ln = ln.strip()
            if not ln:
                continue
            self.lines.append(ln if ln.endswith(":") else "    " + ln)

    def text(self):
        return "\n".join(self.lines) + "\n"


def vr(a, n=1):
    return f"v{a}" if n == 1 else f"v[{a}:{a + n - 1}]"


def sr(a, n=1):
    return f"s{a}" if n == 1 else f"s[{a}:{a + n - 1}]"


def srd(A, d, base, nbytes, off=0):
    if off:
        A(f"s_add_u32 s{d}, s{base}, {hex(off)}")
        A(f"s_addc_u32 s{d + 1}, s{base + 1}, 0")
    else:
        A(f"s_mov_b64 {sr(d, 2)}, {sr(base, 2)}")
    A(f"s_mov_b32 s{d + 2}, {hex(nbytes)}")
    A(f"s_mov_b32 s{d + 3}, 0x20000")


P_X, P_EA, P_SRC, P_DST, P_WA, P_WB, P_WC, P_WU = 4, 6, 8, 10, 12, 14, 16, 18
P_WV, P_OUT, P_DBG, P_WS = 20, 22, 24, 26


def load_kernargs(A):
    A("s_load_dwordx16 s[4:19], s[0:1], 0")
    A("s_load_dwordx8 s[20:27], s[0:1], 64")


STAMP_BASE = [2]


def stamp_reg(i):
    return 100 if i == 0 else STAMP_BASE[0] + 2 * i


def stamp(A, opt, i):
    if not opt.get("stamp"):
        return
    if isinstance(i, str):
        names = opt["stamp"].split(",")
        if i not in names:
            return
        i = names.index(i) + 1
    A(f"{'s_memtime' if opt.get('cyc') else 's_memrealtime'} s[{stamp_reg(i)}:{stamp_reg(i) + 1}]")


def stamp_flush(A, opt, n, base, vtid):
    if not opt.get("stamp"):
        return
    A("s_mov_b64 exec, -1")
    A("s_waitcnt vmcnt(0)")
    stamp(A, opt, n - 1)
    srd(A, 20, P_WS, 0x80000, STAMP_OFF + base)
    A(f"v_lshrrev_b32 v1, 6, v{vtid}")
    A("s_lshl_b32 s3, s2, 3")
    A("v_add_u32 v1, s3, v1")
    A(f"v_mul_u32_u24 v1, {8 * n}, v1")
    A("s_mov_b64 exec, 1")
    A("s_waitcnt lgkmcnt(0)")
    for i in range(n):
        r = stamp_reg(i)
        A(f"v_mov_b32 v2, s{r}")
        A(f"v_mov_b32 v3, s{r + 1}")
        A(f"buffer_store_dwordx2 v[2:3], v1, s[20:23], 0 offen offset:{8 * i}")
        A("s_nop 1")


WAVE_SCAN = ("row_shr:1 row_mask:0xf", "row_shr:2 row_mask:0xf", "row_shr:4 row_mask:0xf",
             "row_shr:8 row_mask:0xf", "row_bcast:15 row_mask:0xa", "row_bcast:31 row_mask:0xc")


def wave_scan(A, v, first_nop=1, fill=()):
    for k, d in enumerate(WAVE_SCAN):
        if k < len(fill):
            A("\n".join(fill[k]))
        elif k or first_nop:
            A("s_nop 1")
        A(f"v_add_u32_dpp v{v}, v{v}, v{v} {d} bank_mask:0xf")


def gen_k2(A, opt):
    STAMP_BASE[0] = 2
    ea_pol = opt.get("ea_load", "")
    tab_pol = opt.get("tab_load", "")
    pf_lanes = int(opt.get("pf", 32))
    poll_at = int(opt.get("poll_at", 8))
    ld = [int(x) for x in opt.get("ld", "4,9,14").split(",")]
    S_TAB, S_EA, S_REC, S_OFFS, S_TW, S_X, S_OUT = 28, 32, 36, 40, 44, 48, 52
    sW, sBk, sN0, sW0, sT, sTi, sInc, sNl = 56, 57, 58, 59, 60, 61, 62, 63
    sC0, sCur, sNext, sMore, sTmp, sNon = 64, 66, 68, 70, 72, 74
    sMask = 76
    sMask2 = 18
    S_DST, S_SRC, S_W, S_W2, S_WC, S_DBG = 76, 80, 84, 88, 76, 80
    sOvf, sMor, sQ1, sQ2, sQ3, sLw, sF0, sOwn = 92, 93, 94, 95, 96, 97, 98, 99
    sRem, sSW, sSl0, sSl1, sLn, sPM = sT, sInc, sCur, sCur + 1, sNext, sCur
    sNn = 0
    sWo, sWm = sOvf, sLw
    L_CNT, L_BASE, L_FLAG, P_CNT, P_BASE, P_SORT = 0, 2048, 4096, 4352, 5376, 6400
    L_R2 = 12800
    L_SO = L_R2
    L_EO = L_SO + 25600
    L_STR = L_R2 + 16896
    STRW = 2560
    L_WCR = L_R2 + 65536
    L_X = L_WCR + 4096
    L_R1 = (L_X + 52 * 272 + 255) // 256 * 256
    L_TA = L_R1 + 528
    L_TU = L_TA + 52 * 528
    L_END = L_R1 + 65536
    TF_OFF = NCH * 2048
    NS = 9
    vSl, vD, vL, vWC, vEA, vT, vSo, vLo = 0, 108, 172, 204, 220, 224, 232, 236
    vSp, vEp, vEo, vH16, vSb, vTid, vOffs = 238, 239, 240, 241, 242, 243, 244
    vWf, vG, vXf, vXs, vNon, vTf = 0, 32, vL, 96, 104, 106
    vEn, vEb, vEad, vS2 = 104, 246, 247, 248
    Lbuf = [vL + 8 * u for u in range(4)] + [72 + 8 * u for u in range(4)]
    vRec, vKey, vRank, vSoff, vEoff, vX = vD, vD + 8, vD + 16, vD + 24, vD + 32, vD + 40
    cand = [(vRec + i, vKey + i, vRank + i, vSoff + i, vEoff + i, sMask + 2 * i) for i in range(8)]
    cand2 = [(vEA + i, vT + i, vT + 4 + i, None, None, sMask2 + 2 * i) for i in range(4)]
    c0 = 2.0 ** -KSH
    vZero, vOne, vXw, vXrd, vTw, vInv = vX + 5, vX + 6, vX + 7, vX + 8, vX + 9, vX + 10
    vDa, vBx, vBt, vBs, vAt, vPa, vE = vX + 12, vX + 14, vX + 15, vX + 17, vX + 18, vX + 19, vX + 20
    vSw, vSr = vX + 16, vD + 39
    pD, pS, pA, pR, pC, pB, pG = vD, vD + 4, vD + 8, vD + 12, vD + 16, vD + 20, vD + 24
    vm = []

    def younger(name):
        return len(vm) - 1 - max(i for i, x in enumerate(vm) if x == name)

    def dma_piece(S, soff, i):
        A(f"buffer_load_dwordx4 v{vDa + ((i >> 1) & 1)}, {sr(S, 4)}, s{soff} offen offset:{1024 * (i & 3)} lds")

    def loader(lo, hi):
        for g in range(lo, hi):
            A(f"s_mov_b32 m0, {L_R1 + 4096 * g}")
            A(f"s_movk_i32 s3, {4096 * (g & 7)}")
            if g == 8:
                A(f"s_mov_b64 {sr(S_W, 2)}, {sr(P_WV, 2)}")
            for i in range(4):
                dma_piece(S_W, 3, i)

    A(f"{NAME}_kernel:")
    A("s_cmp_ge_u32 s2, 256")
    A("s_cbranch_scc1 Lk2_exit")
    stamp(A, opt, 0)
    load_kernargs(A)
    A(f"""
    {"buffer_inv sc1" if opt.get("inv_at") == "0" else ""}
    s_memrealtime {sr(sNon, 2)}
    s_getpc_b64 s[{sTmp}:{sTmp + 1}]
    v_lshlrev_b32 v1, 7, v0
    v_cmp_gt_u32 vcc, Lcold_code - {NAME}_kernel, v1
    s_and_saveexec_b64 {sr(sNext, 2)}, vcc
    s_cbranch_execz Lno_cpf
    global_load_dword v2, v1, s[{sTmp}:{sTmp + 1}]
    Lno_cpf:
    s_mov_b64 exec, -1
    v_mov_b32 v{vZero}, 0
    v_lshlrev_b32 v{vX + 11}, 2, v0
    ds_write_b32 v{vX + 11}, v{vZero} offset:{L_FLAG}
    ds_write_b32 v{vX + 11}, v{vZero} offset:{L_CNT}
    v_lshrrev_b32 v{vX}, 6, v0
    v_lshlrev_b32 v{vX + 2}, 4, v0
    v_readfirstlane_b32 s{sW}, v{vX}
    s_movk_i32 s3, {CH // 4}
    s_cmp_eq_u32 s2, {NCH - 1}
    s_cselect_b32 s3, {(E - (NCH - 1) * CH) // 4}, s3
    v_cmp_gt_u32_e64 {sr(sPM, 2)}, s3, v0
    s_mul_i32 s{sQ1}, s2, {CH * 4}
    s_mov_b32 s{S_DST + 2}, {E * 4}
    s_mov_b32 s{S_DST + 3}, 0x20000
    s_mov_b32 s{S_SRC + 2}, {E * 4}
    s_mov_b32 s{S_SRC + 3}, 0x20000
    s_and_b32 s3, s2, 7
    s_lshl_b32 s3, s3, 5
    s_lshr_b32 s{sBk}, s2, 3
    s_add_u32 s{sBk}, s{sBk}, s3
    s_mul_i32 s{sN0}, s{sBk}, {SM}
    s_add_u32 s{sOwn}, s{sN0}, {SM + SC}
    s_add_u32 s{sN0}, s{sN0}, {SC}
    s_lshr_b32 s{sOwn}, s{sOwn}, {SS}
    s_lshr_b32 s{sN0}, s{sN0}, {SS}
    v_mov_b32 v{vTid}, v0
    v_and_b32 v{vX + 3}, 0x3f0, v{vX + 2}
    v_bfe_u32 v{vX + 1}, v0, 4, 2
    v_lshlrev_b32 v{vX + 4}, 6, v{vX + 1}
    v_xor_b32 v{vDa}, v{vX + 3}, v{vX + 4}
    v_xor_b32 v{vDa + 1}, 32, v{vDa}
    s_lshl_b32 s{sWm}, s{sW}, 13
    s_add_u32 s{sWm + 1}, s{sWm}, 4096
    s_and_b32 s{sWo}, s{sWm}, 0x7fff
    s_add_u32 s{sWo + 1}, s{sWo}, 4096
    s_lshl_b32 s{sTmp}, s{sN0}, 8
    s_add_u32 s{sTmp + 1}, s{sTmp}, 8192
    s_mov_b64 exec, {sr(sPM, 2)}
    s_waitcnt lgkmcnt(0)
    s_cbranch_execz Lp_nold
    s_mov_b64 {sr(S_DST, 2)}, {sr(P_DST, 2)}
    s_mov_b64 {sr(S_SRC, 2)}, {sr(P_SRC, 2)}
    buffer_load_dwordx4 {vr(pD, 4)}, v{vX + 2}, {sr(S_DST, 4)}, s{sQ1} offen
    buffer_load_dwordx4 {vr(pS, 4)}, v{vX + 2}, {sr(S_SRC, 4)}, s{sQ1} offen
    Lp_nold:
    s_mov_b64 exec, -1
    s_barrier
    """)
    vm.append("dst")
    srd(A, S_DBG, P_DBG, 256)
    A(f"""
    s_xor_b32 s3, s{sW}, 7
    {"s_cbranch_scc1 Lno_inv" if opt.get("inv_at") == "1" else ""}
    {"buffer_inv sc1" if opt.get("inv_at") == "1" else ""}
    Lno_inv:
    s_or_b32 s3, s3, s2
    s_cbranch_scc1 Lno_nonce
    s_or_b32 s3, s{sNon}, 1
    v_mov_b32 v{vNon}, s3
    v_mov_b32 v{vNon + 1}, s{sNon + 1}
    s_mov_b64 exec, 1
    buffer_store_dwordx2 {vr(vNon, 2)}, v{vZero}, {sr(S_DBG, 4)}, 0 offen sc1
    s_mov_b64 exec, -1
    Lno_nonce:
    """)
    A(f"""
    s_mov_b64 {sr(S_X, 2)}, {sr(P_X, 2)}
    s_lshl_b32 s{S_X + 2}, s{sOwn}, 8
    s_mov_b32 s{S_X + 3}, 0x20000
    s_sub_u32 s{sNn}, s{sOwn}, s{sN0}
    """)
    for i in range(2):
        A(f"buffer_load_dwordx4 {vr(vXs + 4 * i, 4)}, v{vX + 2}, {sr(S_X, 4)}, s{sTmp + i} offen")
        vm.append("x")
    A(f"""
    s_cmp_lt_u32 s{sW}, 4
    s_cselect_b32 s{S_W}, s{P_WB}, s{P_WV}
    s_cselect_b32 s{S_W + 1}, s{P_WB + 1}, s{P_WV + 1}
    s_cselect_b32 s{S_W2}, s{P_WA}, s{P_WU}
    s_cselect_b32 s{S_W2 + 1}, s{P_WA + 1}, s{P_WU + 1}
    s_mov_b32 s{S_W + 2}, 32768
    s_mov_b32 s{S_W + 3}, 0x20000
    s_mov_b32 s{S_W2 + 2}, 32768
    s_mov_b32 s{S_W2 + 3}, 0x20000
    """)
    if int(opt.get("wpf", 1)):
        A(f"""
        s_lshr_b32 s3, s2, 3
        s_lshl_b32 s3, s3, 2
        s_and_b32 s{sTmp}, s{sW}, 3
        s_add_u32 s3, s3, s{sTmp}
        s_lshl_b32 s3, s3, 8
        v_lshlrev_b32 v1, 3, v{vX + 3}
        s_mov_b64 exec, 3
        buffer_load_dword v3, v1, {sr(S_W, 4)}, s3 offen
        buffer_load_dword v4, v1, {sr(S_W2, 4)}, s3 offen
        s_mov_b64 exec, -1
        """)
    npf0 = 2 if int(opt.get("wpf", 1)) else 0
    A(f"s_cmp_lg_u32 s{sW}, 7")
    A("s_cbranch_scc1 Lno_ld0")
    A(f"s_mov_b64 {sr(S_W, 2)}, {sr(P_WB, 2)}")
    loader(0, 2)
    A("Lno_ld0:")
    srd(A, S_WC, P_WC, 4096)
    srd(A, S_REC, P_WS, NCH * CH * 4, REC_OFF)
    srd(A, S_OFFS, P_WS, TF_OFF + 2048, OFF_OFF)
    srd(A, S_TAB, P_WS, TAB_BYTES + 512, TAB_OFF)
    srd(A, S_EA, P_EA, 0 if opt.get("noea") else E * 32)
    srd(A, S_OUT, P_OUT, N * 256)
    A(f"""
    s_lshl_b32 s3, s{sN0}, 9
    s_add_u32 s{S_TW}, s{P_WS}, s3
    s_addc_u32 s{S_TW + 1}, s{P_WS + 1}, 0
    s_lshl_b32 s{S_TW + 2}, s{sNn}, 9
    s_mov_b32 s{S_TW + 3}, 0x20000
    s_mov_b32 s{sNl}, {hex(f32(NLOG2E))}
    s_mov_b32 s{sC0}, {hex(f32(c0))}
    s_mov_b32 s{sC0 + 1}, {hex(f32(c0))}
    s_mov_b32 s{sW0}, 0
    s_mov_b32 s{sQ2}, {BM}
    s_mov_b32 s{sQ3}, {-SM}
    v_mov_b32 v{vOne}, 1
    v_lshrrev_b32 v{vX + 11}, 4, v{vTid}
    v_lshl_add_u32 v{vXw}, v{vX + 11}, 4, v{vX + 2}
    v_add_u32 v{vXw}, {L_X}, v{vXw}
    v_and_b32 v{vLo}, 0x1f0, v{vX + 2}
    v_bfe_u32 v{vX + 4}, v{vTid}, 5, 1
    v_mov_b32 v{vLo + 1}, v{vLo}
    v_lshlrev_b32 v{vH16}, 4, v{vX + 4}
    s_lshr_b32 s{sTmp}, s{sW}, 2
    s_and_b32 s{sTmp + 1}, s{sW}, 3
    v_bfe_u32 v{vX + 11}, v{vTid}, 2, 2
    v_xor_b32 v{vE}, s{sTmp + 1}, v{vX + 11}
    v_lshlrev_b32 v{vE}, 6, v{vE}
    v_and_b32 v{vE + 1}, 3, v{vTid}
    v_lshl_add_u32 v{vE}, v{vE + 1}, 3, v{vE}
    v_lshl_add_u32 v{vE}, v{vX + 11}, 8, v{vE}
    v_and_b32 v{vE + 1}, 1, v{vX + 1}
    v_xor_b32 v{vE + 1}, v{vE + 1}, v{vX + 4}
    v_lshl_add_u32 v{vE}, v{vE + 1}, 5, v{vE}
    v_lshl_add_u32 v{vE}, v{vX + 4}, 11, v{vE}
    v_add_u32 v{vBt}, {L_R1}, v{vE}
    s_lshl_b32 s3, s{sTmp}, 15
    s_add_u32 s3, s3, {L_R2}
    v_add_u32 v{vAt}, s3, v{vE}
    v_and_b32 v{vX + 11}, 31, v{vTid}
    v_mul_u32_u24 v{vXrd}, 272, v{vX + 11}
    s_mov_b32 s3, {L_X}
    v_add3_u32 v{vXrd}, v{vXrd}, v{vH16}, s3
    s_mul_i32 s3, s{sTmp}, {32 * 272}
    v_add_u32 v{vBx}, s3, v{vXrd}
    s_mul_i32 s3, s{sW}, 4608
    s_add_u32 s3, s3, {L_R1}
    v_mul_u32_u24 v{vSw}, 144, v{vX + 11}
    v_add3_u32 v{vSw}, v{vSw}, v{vH16}, s3
    v_bfe_u32 v{vE}, v{vTid}, 3, 3
    v_lshl_add_u32 v{vSr}, v{vE}, 4, v{vX + 3}
    v_add_u32 v{vSr}, s3, v{vSr}
    v_and_b32 v{vE + 1}, 0x70, v{vX + 3}
    v_lshl_add_u32 v{vBs}, v{vE}, 9, v{vE + 1}
    s_lshl_b32 s3, s{sTmp}, 7
    s_add_u32 s3, s3, s{sTmp + 1}
    s_lshl_b32 s3, s3, 7
    v_add_u32 v{vBs}, s3, v{vBs}
    v_mul_u32_u24 v{vTw}, 528, v{vX + 11}
    s_mul_i32 s3, s{sTmp}, {L_TU - L_TA}
    s_lshl_b32 s{sTmp + 1}, s{sTmp + 1}, 7
    s_add_u32 s3, s3, s{sTmp + 1}
    s_add_u32 s3, s3, {L_TA}
    v_add3_u32 v{vTw}, v{vTw}, v{vH16}, s3
    v_lshrrev_b32 v{vPa}, 1, v{vTid}
    v_lshlrev_b32 v{vPa}, 11, v{vPa}
    v_lshlrev_b32 v{vE}, 8, v{vTid}
    v_add_u32 v{vE + 1}, 64, v{vE}
    v_add_u32 v{vE + 2}, 0x80, v{vE}
    v_add_u32 v{vE + 3}, 0xc0, v{vE}
    """)
    stamp(A, opt, "iss")

    def stage_x(wait):
        A(f"s_waitcnt vmcnt({wait})")
        A(f"ds_write_b128 v{vXw}, {vr(vXs, 4)}")
        A(f"s_cmp_lt_u32 s{sW}, 5")
        A("s_cselect_b64 exec, -1, 0")
        A(f"ds_write_b128 v{vXw}, {vr(vXs + 4, 4)} offset:{32 * 272}")
        A("s_mov_b64 exec, -1")

    nonce_load = f"buffer_load_dwordx2 {vr(vNon, 2)}, v{vZero}, {sr(S_DBG, 4)}, 0 offen sc1"
    A(f"""
    s_cmp_eq_u32 s{sW}, 7
    s_cbranch_scc1 Lp_loader
    s_mov_b64 exec, {sr(sPM, 2)}
    s_waitcnt vmcnt({2 + npf0})
    """)
    stamp(A, opt, "dst")
    for i in range(4):
        A(f"v_mul_u32_u24 v{pC + i}, s{sQ2}, v{pD + i}")
    for i in range(4):
        A(f"v_lshrrev_b32 v{pC + i}, {BS}, v{pC + i}")
        A(f"v_lshlrev_b32 v{pA + i}, 2, v{pC + i}")
        A(f"ds_add_rtn_u32 v{pR + i}, v{pA + i}, v{vOne} offset:{P_CNT}")
    for i in range(4):
        A(f"v_lshl_add_u32 v{pD + i}, v{pD + i}, {SS}, {(1 << SS) - 1 - SC}")
        A(f"v_mad_i32_i24 v{pD + i}, v{pC + i}, s{sQ3}, v{pD + i}")
    A("s_mov_b64 exec, -1")
    A(f"s_cmp_eq_u32 s{sW}, 3")
    A("s_waitcnt lgkmcnt(0)")
    A("s_barrier")
    stamp(A, opt, "b2")
    A(f"""
    s_cbranch_scc0 Lp_noscan
    ds_read_b128 {vr(pC, 4)}, v{vX + 3} offset:{P_CNT}
    s_waitcnt lgkmcnt(0)
    v_add_u32 v{pB + 2}, v{pC}, v{pC + 1}
    v_add3_u32 v{pG + 1}, v{pB + 2}, v{pC + 2}, v{pC + 3}
    v_add_u32 v{pB + 3}, v{pB + 2}, v{pC + 2}
    v_mov_b32 v{pG}, v{pG + 1}
    """)
    ors = []
    for i in range(4):
        ors += [f"v_lshl_or_b32 v{pS + i}, v{pS + i}, 18, v{vE + i}", f"v_lshrrev_b32 v{pD + i}, {SS}, v{pD + i}",
                f"v_or_b32 v{pS + i}, v{pS + i}, v{pD + i}"]
    wave_scan(A, pG + 1, fill=[[]] + [ors[2 * k: 2 * k + 2] for k in range(5)])
    A(f"""
    v_sub_u32 v{pB}, v{pG + 1}, v{pG}
    v_add_u32 v{pB + 1}, v{pB}, v{pC}
    v_add_u32 v{pB + 2}, v{pB}, v{pB + 2}
    v_add_u32 v{pB + 3}, v{pB}, v{pB + 3}
    ds_write_b128 v{vX + 3}, {vr(pB, 4)} offset:{P_BASE}
    {ors[10]}
    {ors[11]}
    s_waitcnt lgkmcnt(0)
    s_barrier
    """)
    stage_x(npf0)
    A("s_branch Lp_scanned")
    A("Lp_noscan:")
    A("\n".join(ors))
    stage_x(npf0)
    A("s_barrier")
    A("Lp_scanned:")
    stamp(A, opt, "scan")
    A(f"s_mov_b64 exec, {sr(sPM, 2)}")
    for i in range(4):
        A(f"ds_read_b32 v{pA + i}, v{pA + i} offset:{P_BASE}")
    A("s_waitcnt lgkmcnt(0)")
    for i in range(4):
        A(f"v_add_lshl_u32 v{pA + i}, v{pA + i}, v{pR + i}, 2")
        A(f"ds_write_b32 v{pA + i}, v{pS + i} offset:{P_SORT}")
    A("s_mov_b64 exec, -1")
    A(nonce_load)
    A("s_waitcnt lgkmcnt(0)")
    A("s_barrier")
    stamp(A, opt, "b3")
    A(f"""
    ds_read_b128 {vr(pD, 4)}, v{vX + 2} offset:{P_SORT}
    s_mov_b64 exec, {sr(sPM, 2)}
    s_cbranch_execz Lp_out
    s_waitcnt lgkmcnt(0)
    buffer_store_dwordx4 {vr(pD, 4)}, v{vX + 2}, {sr(S_REC, 4)}, s{sQ1} offen sc1
    s_branch Lp_out
    Lp_loader:
    """)
    loader(2, ld[0])
    A("s_barrier")
    stage_x(4 * ld[0])
    loader(ld[0], ld[1])
    A("s_barrier")
    loader(ld[1], ld[2])
    A("s_barrier")
    loader(ld[2], 16)
    A(nonce_load)
    A(f"""
    s_waitcnt vmcnt(1) lgkmcnt(0)
    Lp_out:
    s_mov_b64 exec, -1
    v_lshrrev_b32 v{vX + 11}, 1, v{vX + 2}
    v_and_b32 v{vX + 11}, 0x3ff, v{vX + 11}
    ds_read_b64 {vr(pC, 2)}, v{vX + 11} offset:{P_CNT}
    ds_read_b64 {vr(pB, 2)}, v{vX + 11} offset:{P_BASE}
    s_lshl_b32 s3, s{sW}, 9
    s_add_u32 m0, s3, {L_WCR}
    s_barrier
    """)
    stamp(A, opt, "b3b")

    bB, bV, bO = 48, 64, 80

    def bv_reads(s):
        r = 12 * (s & 3)
        A(f"ds_read_b128 {vr(r + 8, 4)}, v{vBx} offset:{32 * s}")
        for m in range(2):
            for z in range(2):
                A(f"ds_read_b64_tr_b16 {vr(r + 4 * m + 2 * z, 2)}, v{vBt} offset:{m * 32768 + s * 4096 + z * 1024}")

    for s in range(3):
        bv_reads(s)
    A(f"""
    s_mov_b32 exec_hi, 0
    buffer_load_dwordx4 v{vX + 3}, {sr(S_WC, 4)}, s3 offen lds
    s_mov_b32 exec_hi, -1
    """)
    wk = int(opt.get("wk", 1))
    for s in range(8):
        r = 12 * (s & 3)
        A(f"s_waitcnt lgkmcnt({5 * min(2, 7 - s)})")
        for m in range(2):
            d = (bB, bV)[m]
            A(f"v_mfma_f32_32x32x16_bf16 {vr(d, 16)}, {vr(r + 4 * m, 4)}, {vr(r + 8, 4)}, {'0' if s == 0 else vr(d, 16)}")
        if s + 3 < 8:
            bv_reads(s + 3)
        for i in range(wk * s, min(8, wk * s + wk)):
            if i % 4 == 0:
                A(f"s_add_u32 m0, s{sWm + i // 4}, {L_R2}")
                A("s_nop 0")
            dma_piece(S_W2, sWo + (i >> 2), i)
    stamp(A, opt, "bvm")
    A(f"""
    s_mov_b32 s{sTi}, 0
    s_waitcnt vmcnt(9)
    Lnonce_check:
    v_readfirstlane_b32 s{sNon}, v{vNon}
    v_readfirstlane_b32 s{sNon + 1}, v{vNon + 1}
    s_add_u32 s{sTi}, s{sTi}, 1
    s_cmp_lg_u32 s{sNon}, 0
    s_cbranch_scc1 Lnonce_ok
    buffer_load_dwordx2 {vr(vNon, 2)}, v{vZero}, {sr(S_DBG, 4)}, 0 offen sc1
    s_cmp_lt_u32 s{sTi}, {SPIN_MAX}
    s_waitcnt vmcnt(0)
    s_cbranch_scc1 Lnonce_check
    Lnonce_ok:
    s_and_b32 s{sNon + 1}, s{sNon + 1}, 0x3ff
    s_lshl_b32 s3, s{sNon + 1}, 22
    v_lshl_or_b32 v{pG}, v{pC}, 11, v{pB}
    v_lshl_or_b32 v{pG + 2}, v{pC + 1}, 11, v{pB + 1}
    v_or_b32 v{pG}, s3, v{pG}
    v_or_b32 v{pG + 2}, s3, v{pG + 2}
    v_mov_b32 v{pG + 1}, s{sNon}
    v_mov_b32 v{pG + 3}, s{sNon}
    s_lshl_b32 s3, s2, 11
    s_cmp_ge_u32 s{sW}, 2
    s_barrier
    s_cbranch_scc1 Lno_off
    buffer_store_dwordx4 {vr(pG, 4)}, v{vX + 2}, {sr(S_OFFS, 4)}, s3 offen sc1
    Lno_off:
    """)
    stamp(A, opt, "sig")
    for g in range(4):
        for i in range(4 * g, 4 * g + 4):
            A(f"v_fma_mixlo_f16 v{bV + i}, v{bB + i}, s{sNl}, 0")
        A(f"ds_write_b128 v{vSw}, {vr(bV + 4 * g, 4)} offset:{32 * g}")
    for i in range(4):
        A(f"ds_read_b128 {vr(bO + 4 * i, 4)}, v{vSr} offset:{1152 * i}")
    A(f"""
    s_or_b32 s3, s2, s{sW}
    s_cbranch_scc1 Lno_pad
    v_mov_b32 v{vE}, 0x7c00
    v_mov_b32 v{vE + 1}, 0x7c00
    v_lshrrev_b32 v{vE + 2}, 1, v{vX + 3}
    s_mov_b32 s3, {TAB_BYTES}
    buffer_store_dwordx2 {vr(vE, 2)}, v{vE + 2}, {sr(S_TAB, 4)}, s3 offen sc1
    Lno_pad:
    s_mov_b32 s3, 0
    s_lshl_b32 s{sQ1}, s{sBk}, 3
    """)
    for s in range(4):
        A(f"s_waitcnt lgkmcnt({3 - s})")
        A(f"buffer_store_dwordx4 {vr(bO + 4 * s, 4)}, v{vBs}, {sr(S_TW, 4)}, s3 offen sc1")
        A("s_add_u32 s3, s3, 4096")
    A(f"""
    s_cmp_ge_u32 s{sW}, 2
    s_cbranch_scc1 Lwau_0
    s_waitcnt vmcnt(5)
    s_branch Lwau_1
    Lwau_0:
    s_waitcnt vmcnt(4)
    Lwau_1:
    s_barrier
    """)
    for s in range(4):
        for z in range(2):
            A(f"ds_read_b64_tr_b16 {vr(vWf + 4 * s + 2 * z, 2)}, v{vAt} offset:{s * 4096 + z * 1024}")
        A(f"ds_read_b128 {vr(vXf + 4 * s, 4)}, v{vXrd} offset:{32 * s}")
    stamp(A, opt, "bve")
    if opt.get("notab"):
        A(f"s_mov_b32 s{S_TAB + 2}, 0")
    poll = f"buffer_load_dwordx2 {vr(vOffs, 2)}, v{vPa}, {sr(S_OFFS, 4)}, s{sQ1} offen sc1"

    for k in range(16):
        nb, s = k >> 3, k & 7
        if k == poll_at:
            A(poll)
        A(f"s_waitcnt lgkmcnt({9 if k < 5 else (7, 5, 3)[k - 5] if k < 8 else min(3, 15 - k)})")
        cc = "0" if s == 0 else vr(vG + 16 * nb, 16)
        A(f"v_mfma_f32_32x32x16_bf16 {vr(vG + 16 * nb, 16)}, {vr(vWf + 4 * s, 4)}, {vr(vXf + 4 * (k & 7), 4)}, {cc}")
        kn = k + 4
        if kn < 8:
            for z in range(2):
                A(f"ds_read_b64_tr_b16 {vr(vWf + 4 * kn + 2 * z, 2)}, v{vAt} offset:{kn * 4096 + z * 1024}")
        if kn < 16:
            A(f"ds_read_b128 {vr(vXf + 4 * (kn & 7), 4)}, v{vXrd} offset:{32 * 272 * (kn >> 3) + 32 * (kn & 7)}")
    if poll_at >= 16:
        A(poll)
    stamp(A, opt, "aum")

    def tag_wait(name, v, reload):
        A(f"""
        s_mov_b32 s{sTi}, 0
        L{name}_check:
        v_lshrrev_b32 v{vX + 11}, 22, v{v}
        v_cmp_ne_u32_e64 {sr(sTmp, 2)}, s{sNon}, v{v + 1}
        v_cmp_ne_u32 vcc, s{sNon + 1}, v{vX + 11}
        s_add_u32 s{sTi}, s{sTi}, 1
        s_or_b64 vcc, vcc, {sr(sTmp, 2)}
        s_cbranch_scc0 L{name}_ok
        {reload}
        s_cmp_lt_u32 s{sTi}, {SPIN_MAX}
        s_waitcnt vmcnt(0)
        s_cbranch_scc1 L{name}_check
        L{name}_ok:
        """)

    def batch_masks(window):
        A(f"""
        v_bfe_u32 v{vX}, v{vOffs}, 11, 11
        v_and_b32 v{vX + 1}, 1, v{vTid}
        v_subrev_u32 v{vX}, s{sW0}, v{vX}
        v_lshlrev_b32 v{vX + 1}, 2, v{vX + 1}
        v_cmp_lt_i32_e64 {sr(sMore, 2)}, {window}, v{vX}
        v_sub_u32 v{vX}, v{vX}, v{vX + 1}
        """)
        for i in range(window // 2):
            A(f"v_cmp_lt_i32_e64 {sr((cand + cand2)[i][5], 2)}, {(i & 3) + 8 * (i >> 2)}, v{vX}")

    def rec_addr():
        A(f"""
        v_lshrrev_b32 v{vX + 2}, 1, v{vTid}
        v_and_b32 v{vX + 1}, 1, v{vTid}
        v_mul_u32_u24 v{vX + 2}, {CH}, v{vX + 2}
        v_lshl_add_u32 v{vX + 1}, v{vX + 1}, 2, s{sW0}
        v_add_u32 v{vX + 1}, v{vX + 1}, v{vX + 2}
        v_lshlrev_b32 v{vX + 2}, 5, v{vX + 2}
        """)
        for i in range(0, 8, 2):
            A(f"v_mov_b64 {vr(vKey + i, 2)}, 0")

    def rec_loads():
        A(f"""
        v_and_b32 v{vX + 4}, 0x7ff, v{vOffs}
        v_add_lshl_u32 v{vX + 4}, v{vX + 4}, v{vX + 1}, 2
        buffer_load_dwordx4 {vr(vRec, 4)}, v{vX + 4}, {sr(S_REC, 4)}, 0 offen sc1
        buffer_load_dwordx4 {vr(vRec + 4, 4)}, v{vX + 4}, {sr(S_REC, 4)}, 0 offen offset:32 sc1
        """)

    def histogram(cs):
        for rec, key, rank, so_, eo_, m in cs:
            A(f"s_mov_b64 exec, {sr(m, 2)}")
            A(f"v_alignbit_b32 v{key}, v{rec}, v{rec}, 27")
            A(f"v_and_b32 v{key}, 0x7fc, v{key}")
            A(f"ds_add_rtn_u32 v{rank}, v{key}, v{vOne} offset:{L_CNT}")
        A("s_mov_b64 exec, -1")

    def place(cs):
        for rec, key, rank, so_, eo_, m in cs:
            A(f"s_mov_b64 exec, {sr(m, 2)}")
            A(f"v_lshl_add_u32 v{key}, v{rank}, 3, v{key}")
            A(f"ds_write2_b32 v{key}, v{rec}, v{vX + 2} offset0:0 offset1:1")
        A("s_mov_b64 exec, -1")

    rec_addr()
    A("s_waitcnt vmcnt(1)")
    A("s_barrier")
    stamp(A, opt, "b5")
    A(f"""
    s_cmp_lg_u32 s{sW}, 7
    s_cbranch_scc1 Lno_tf
    s_lshl_b32 s{sTmp + 1}, s2, 3
    s_add_u32 s{sTmp + 1}, s{sTmp + 1}, {TF_OFF}
    s_mov_b64 exec, 1
    buffer_store_dwordx2 {vr(pG, 2)}, v{vZero}, {sr(S_OFFS, 4)}, s{sTmp + 1} offen sc1
    s_mov_b64 exec, -1
    s_waitcnt vmcnt(1)
    s_branch Ltf_sent
    Lno_tf:
    s_waitcnt vmcnt(0)
    Ltf_sent:
    """)
    tag_wait("off", vOffs, poll)
    stamp(A, opt, "off")
    rec_loads()
    batch_masks(24)
    tf_poll = f"buffer_load_dwordx2 {vr(vTf, 2)}, v{vPa}, {sr(S_OFFS, 4)}, s{sQ1} offen sc1"
    vRaw = vL
    A(f"""
    s_cmp_eq_u64 {sr(sMask2, 2)}, 0
    s_cbranch_scc1 Lno_rec2
    buffer_load_dwordx4 {vr(cand2[0][0], 4)}, v{vX + 4}, {sr(S_REC, 4)}, 0 offen offset:64 sc1
    v_mov_b64 {vr(cand2[0][1], 2)}, 0
    v_mov_b64 {vr(cand2[2][1], 2)}, 0
    Lno_rec2:
    v_lshrrev_b32 v{vPa}, 1, v{vLo}
    v_lshl_add_u32 v{vX + 11}, v{vH16}, 7, v{vPa}
    v_add_u32 v{vX + 11}, {L_WCR}, v{vX + 11}
    """)
    for i in range(8):
        A(f"ds_read_b64 {vr(vRaw + 2 * i, 2)}, v{vX + 11} offset:{256 * i}")
    A(f"""
    s_lshl_b32 s{sQ1}, s{sW}, 8
    s_add_u32 s{sQ1}, s{sQ1}, {TF_OFF}
    s_mov_b64 vcc, {sr(sMore, 2)}
    s_cmp_ge_u32 s{sW}, 4
    s_cbranch_scc1 Lu_wave
    v_mov_b32 v{vXs}, {hex(f32(-float(KSH)))}
    v_mov_b32 v{vXs + 1}, {hex(f32(-float(KSH)))}
    v_mov_b32 v{vXs + 2}, 0
    s_mov_b32 s{sTmp}, s{sNl}
    s_mov_b32 s{sTmp + 1}, s{sNl}
    """)
    for i in range(0, 32, 2):
        if i == 16:
            A("s_mov_b32 exec_lo, 0xfffff")
            A("s_mov_b32 exec_hi, 0xfffff")
        A(f"v_max3_f32 v{vXs + 2}, |v{vG + i}|, |v{vG + i + 1}|, v{vXs + 2}")
        A(f"v_pk_fma_f32 {vr(vG + i, 2)}, {vr(vG + i, 2)}, {sr(sTmp, 2)}, {vr(vXs, 2)}")
    A("s_mov_b64 exec, -1")
    A(f"v_cmp_lt_f32 vcc, {hex(f32(AMAX))}, v{vXs + 2}")
    A("s_cbranch_vccnz Lwide_a")
    for i in range(32):
        A(f"v_exp_f32 v{vG + i}, v{vG + i}")
    A(f"s_mov_b64 vcc, {sr(sMore, 2)}")
    A("Lu_wave:")
    for nb in range(2):
        if nb == 1:
            A("s_mov_b32 exec_lo, 0xfffff")
            A("s_mov_b32 exec_hi, 0xfffff")
        for g in range(4):
            A(f"ds_write_b128 v{vTw}, {vr(vG + 16 * nb + 4 * g, 4)} offset:{32 * 528 * nb + 32 * g}")
    A("s_mov_b64 exec, vcc")
    A(f"ds_write_b32 v{vZero}, v{vOne} offset:{L_FLAG}")
    A("s_mov_b64 exec, -1")
    A(tf_poll)
    la = vSoff
    A(f"""
    s_mul_i32 s{sSW}, s{sW}, {STRW}
    s_add_u32 s{sSW}, s{sSW}, {L_STR}
    v_add_u32 v{vSp}, s{sSW}, v{vH16}
    v_bfe_u32 v{vX + 12}, v{vTid}, 3, 2
    v_bfe_u32 v{vX + 13}, v{vTid}, 1, 1
    v_lshl_add_u32 v{vX + 12}, v{vX + 12}, 1, v{vX + 13}
    v_bfe_u32 v{vX + 13}, v{vTid}, 2, 1
    v_lshl_add_u32 v{vX + 12}, v{vX + 12}, 1, v{vX + 13}
    v_and_b32 v{vX + 13}, 1, v{vTid}
    v_lshl_add_u32 v{vX + 12}, v{vX + 12}, 1, v{vX + 13}
    v_lshl_add_u32 v{vEp}, v{vX + 12}, 2, s{sSW}
    v_bfrev_b32 v{vX + 13}, 2
    ds_write_b32 v{vEp}, v{vX + 13} offset:{1152 + 1024}
    v_mov_b32 v{vX + 12}, {N << 18}
    v_lshlrev_b32 v{la}, 1, v{vX + 3}
    v_lshlrev_b32 v{la + 1}, 3, v{vX + 3}
    v_lshrrev_b32 v{la + 2}, 4, v{vX + 3}
    v_lshl_add_u32 v{la + 3}, v{la + 2}, 2, s{sSW}
    s_mov_b32 s3, 0x05040100
    s_mov_b32 s{sTmp}, 0x07060302
    s_waitcnt lgkmcnt(0)
    """)
    for j in range(4):
        for i in range(4):
            A(f"v_perm_b32 v{vWC + 4 * j + i}, v{vRaw + 2 * (2 * i + 1) + (j >> 1)}, v{vRaw + 2 * (2 * i) + (j >> 1)}, "
              f"s{(3, sTmp)[j & 1]}")
    zero_ops = [f"v_mov_b64 {vr(vSl + j, 2)}, 0" for j in range(0, 8 * NS, 2)]
    nz = int(opt.get("nz", 0))
    for o in zero_ops[:nz]:
        A(o)
    A("s_waitcnt vmcnt(1)")
    stamp(A, opt, "rec")
    histogram(cand)
    A(f"s_cmp_eq_u64 {sr(sMask2, 2)}, 0")
    A("s_cbranch_scc1 Lno_hist2")
    histogram(cand2)
    A("Lno_hist2:")
    A("s_waitcnt vmcnt(0)")
    stamp(A, opt, "hist")
    tag_wait("tf", vTf, tf_poll)
    A("s_waitcnt lgkmcnt(0)")
    A("s_barrier")
    stamp(A, opt, "bB")
    c, p, deg, q, inc, g4 = vL, vL + 8, vL + 16, vL + 17, vL + 18, vL + 19
    A(f"ds_read_b128 {vr(c, 4)}, v{la} offset:{L_CNT}")
    A(f"ds_read_b128 {vr(c + 4, 4)}, v{la} offset:{L_CNT + 16}")
    if pf_lanes:
        A(f"""
        s_andn2_b32 s3, s2, 7
        s_add_u32 s3, s3, s{sW}
        s_mul_i32 s3, s3, {pf_lanes * 128}
        {'s_nop 0' if pf_lanes == 64 else f's_bfm_b64 exec, {pf_lanes}, 0'}
        buffer_load_dword v{vL + 22}, v{la + 1}, {sr(S_TAB, 4)}, s3 offen {tab_pol}
        s_mov_b64 exec, -1
        """)
    A(f"""
    s_mov_b32 s{sQ2}, {L_SO}
    s_waitcnt lgkmcnt(1)
    v_add_u32 v{p + 2}, v{c}, v{c + 1}
    v_add3_u32 v{p + 4}, v{p + 2}, v{c + 2}, v{c + 3}
    s_waitcnt lgkmcnt(0)
    v_add3_u32 v{p + 6}, v{p + 4}, v{c + 4}, v{c + 5}
    v_add3_u32 v{deg}, v{p + 6}, v{c + 6}, v{c + 7}
    v_add_u32 v{q}, 3, v{deg}
    v_lshrrev_b32 v{inc}, 2, v{q}
    """)
    wave_scan(A, inc, fill=[
        [f"v_lshrrev_b32 v{q}, 2, v{q}", f"v_add_u32 v{p + 3}, v{p + 2}, v{c + 2}"],
        [f"v_add_u32 v{p + 5}, v{p + 4}, v{c + 4}", f"v_add_u32 v{p + 7}, v{p + 6}, v{c + 6}"],
        [f"v_add_u32 v{deg}, s{sW}, v{deg}", f"v_lshlrev_b32 v{c + 1}, 2, v{q}"],
        [f"v_cmp_lt_u32_e64 {sr(sNext, 2)}, v{deg}, v{c + 1}", "s_nop 0"]])
    A(f"v_sub_u32 v{g4}, v{inc}, v{q}")
    A(f"v_readlane_b32 s3, v{inc}, 63")
    A(f"v_lshl_add_u32 v{p}, v{g4}, 5, s{sQ2}")
    A(f"v_lshl_add_u32 v{p + 1}, v{c}, 3, v{p}")
    for i in range(2, 8):
        A(f"v_lshl_add_u32 v{p + i}, v{p + i}, 3, v{p}")
        if i in (3, 7):
            A(f"ds_write_b128 v{la}, {vr(p + i - 3, 4)} offset:{L_BASE + 4 * (i - 3)}")
    for cd in cand:
        A(f"ds_read_b32 v{cd[1]}, v{cd[1]} offset:{L_BASE}")
    A(f"""
    s_mul_i32 s{sLw}, s3, s{sW}
    s_add_u32 s{sRem}, s{sLw}, s3
    s_lshr_b32 s{sLw}, s{sLw}, 3
    s_lshr_b32 s{sRem}, s{sRem}, 3
    v_cmp_gt_u32_e64 {sr(sTmp, 2)}, s{sLw}, v{g4}
    v_cmp_gt_u32 vcc, s{sRem}, v{g4}
    v_lshl_add_u32 v{deg}, v{deg}, 3, v{p}
    s_bcnt1_i32_b64 s{sF0}, {sr(sTmp, 2)}
    s_bcnt1_i32_b64 s{sOwn}, vcc
    s_cmp_eq_u32 s{sW}, 7
    s_cselect_b32 s{sOwn}, s{sNn}, s{sOwn}
    s_sub_u32 s{sOwn}, s{sOwn}, s{sF0}
    s_sub_u32 s{sRem}, s{sRem}, s{sLw}
    s_waitcnt lgkmcnt(0)
    """)
    stamp(A, opt, "scan2")
    place(cand)
    A(f"s_cmp_eq_u64 {sr(sMask2, 2)}, 0")
    A("s_cbranch_scc1 Lno_place2")
    for cd in cand2:
        A(f"ds_read_b32 v{cd[1]}, v{cd[1]} offset:{L_BASE}")
    A("s_waitcnt lgkmcnt(0)")
    place(cand2)
    A("Lno_place2:")
    en, so, eo, key, cn, pos, t = vL, vL + 8, vL + 12, vL + 20, vL + 24, vL + 21, vL + 26
    A(f"""
    s_mov_b64 exec, {sr(sNext, 2)}
    ds_write_b64 v{deg}, {vr(vX + 12, 2)}
    s_sub_u32 s3, s{sOwn}, 1
    s_sub_u32 s{sTmp}, s{sRem}, 1
    s_cmp_gt_u32 s{sTmp}, 63
    s_cselect_b32 s3, 8, s3
    s_cmp_gt_u32 s3, 7
    s_cselect_b64 exec, 1, 0
    ds_write_b32 v{vZero}, v{vOne} offset:{L_FLAG}
    s_mov_b64 exec, -1
    s_lshl_b32 s3, s{sLw}, 5
    v_add_u32 v{t}, s3, v{la}
    v_cmp_le_u32_e64 {sr(sTmp, 2)}, s{sRem}, v{la + 2}
    s_sub_u32 s{sQ1}, s{sF0}, 1
    s_mul_i32 s{sQ2}, s{sQ1}, 528
    s_add_u32 s{sQ2}, s{sQ2}, {L_TA}
    s_mov_b32 s{sQ3}, 0xfffffe00
    s_waitcnt lgkmcnt(0)
    s_barrier
    ds_read_b128 {vr(en, 4)}, v{t} offset:{L_SO}
    ds_read_b32 v{t + 3}, v{vZero} offset:{L_FLAG}
    ds_read_b128 {vr(en + 4, 4)}, v{t} offset:{L_SO + 16}
    v_cndmask_b32_e64 v{vInv}, 0, v{vX + 13}, {sr(sTmp, 2)}
    v_add_u32 v{vEb}, s{sQ2}, v{vLo}
    v_mov_b64 {vr(cn, 2)}, 1
    s_waitcnt lgkmcnt(2)
    v_lshrrev_b32 v{key}, 26, v{en + 2}
    v_and_b32 v{key}, 56, v{key}
    v_cndmask_b32_e64 v{key}, v{key}, 56, {sr(sTmp, 2)}
    s_waitcnt lgkmcnt(1)
    v_readfirstlane_b32 s3, v{t + 3}
    v_lshlrev_b64 {vr(cn, 2)}, v{key}, {vr(cn, 2)}
    v_and_b32 v{t + 3}, 63, v{en}
    s_cmp_lg_u32 s3, 0
    s_cbranch_scc1 Lslow_entry
    s_waitcnt lgkmcnt(0)
    """)
    stamp(A, opt, "bD")
    fillers = [f"v_subrev_u32 v{t + 3}, s{sQ1}, v{t + 3}", f"v_lshlrev_b32 v{t + 3}, 3, v{t + 3}"]
    fillers += [f"v_lshrrev_b32 v{so + i}, 9, v{en + 2 * i}" for i in range(4)]
    for k, d in enumerate(WAVE_SCAN):
        A(f"v_add_u32_dpp v{cn}, v{cn}, v{cn} {d} bank_mask:0xf")
        A(f"v_add_u32_dpp v{cn + 1}, v{cn + 1}, v{cn + 1} {d} bank_mask:0xf")
        A(fillers[k])
    A(f"v_readlane_b32 s{sTmp}, v{cn}, 63")
    A(f"v_readlane_b32 s{sTmp + 1}, v{cn + 1}, 63")
    for i in range(4):
        A(f"v_bfe_u32 v{eo + i}, v{en + 2 * i}, 6, 12")
    A(f"""
    s_mul_i32 s3, s{sTmp}, 0x01010101
    s_mul_i32 s{sTmp + 1}, s{sTmp + 1}, 0x01010100
    s_lshl_b32 s{sTmp}, s3, 8
    s_lshr_b32 s3, s3, 24
    s_mul_i32 s3, s3, 0x01010101
    s_add_u32 s{sTmp + 1}, s{sTmp + 1}, s3
    v_lshl_add_u64 {vr(cn, 2)}, {vr(cn, 2)}, 0, {sr(sTmp, 2)}
    s_sub_u32 s3, s{sSW}, 16
    v_lshrrev_b64 {vr(cn, 2)}, v{key}, {vr(cn, 2)}
    """)
    for i in range(4):
        A(f"v_lshl_add_u32 v{eo + i}, v{eo + i}, 5, v{en + 2 * i + 1}")
    A(f"v_and_b32 v{pos}, 0xff, v{cn}")
    for i in range(4):
        A(f"v_or_b32 v{eo + i}, v{eo + i}, v{vInv}")
    A(f"v_lshl_add_u32 v{t}, v{pos}, 4, s3")
    A(f"ds_write_b128 v{t}, {vr(eo, 4)} offset:1152")
    A(f"ds_read_b32 v{vEo}, v{vEp} offset:1152")
    for i in range(4):
        A(f"v_and_or_b32 v{so + i}, v{so + i}, s{sQ3}, v{vInv}")
    A(f"""
    v_and_b32 v{t + 1}, 1, v{pos}
    v_lshl_add_u32 v{t + 1}, v{t + 1}, 3, v{t}
    v_subrev_u32 v{t + 1}, 8, v{t + 1}
    ds_write2_b64 v{t + 1}, {vr(so, 2)}, {vr(so + 2, 2)} offset0:0 offset1:2
    ds_read_b128 {vr(vSo, 4)}, v{vSp}
    ds_read_b128 {vr(vT, 4)}, v{vSp} offset:32
    v_add_u32 v{t + 2}, s{sSW}, v{pos}
    ds_write_b8 v{t + 2}, v{t + 3} offset:2303
    ds_read_b32 v{vT + 4}, v{vEp} offset:{1152 + 128}
    ds_read_b32 v{vSb}, v{la + 3} offset:2304
    s_waitcnt lgkmcnt(6)
    v_add_u32 v{vEo}, v{vEo}, v{vH16}
    buffer_load_dwordx4 {vr(vEA, 4)}, v{vEo}, {sr(S_EA, 4)}, 0 offen {ea_pol}
    """)
    for u in range(4):
        src = (vSo, vSo + 2, vT, vT + 2)[u]
        if u in (0, 2):
            A(f"s_waitcnt lgkmcnt({(4, 2)[u // 2]})")
        A(f"v_lshl_add_u64 {vr(src, 2)}, {vr(src, 2)}, 0, {vr(vLo, 2)}")
        A(f"buffer_load_dwordx4 {vr(vL + 8 * u, 4)}, v{src}, {sr(S_TAB, 4)}, 0 offen {tab_pol}")
        A(f"buffer_load_dwordx4 {vr(vL + 8 * u + 4, 4)}, v{src + 1}, {sr(S_TAB, 4)}, 0 offen {tab_pol}")
    stamp(A, opt, "prim")
    for o in zero_ops[nz:]:
        A(o)
    ea_at = int(opt.get("ea_at", 3))
    prio = opt.get("prio", "alt")
    A(f"""
    s_waitcnt lgkmcnt(0)
    v_readlane_b32 s{sSl0}, v{vSb}, 0
    v_readlane_b32 s{sSl1}, v{vSb}, 1
    s_mov_b32 s{sLn}, 2
    s_mov_b32 s{sLn + 1}, 3
    """)
    if prio == "quart":
        A(f"""
        s_mul_i32 s{sQ1}, s{sRem}, 3
        s_lshr_b32 s{sQ1}, s{sQ1}, 2
        s_lshr_b32 s{sQ2}, s{sRem}, 1
        s_lshr_b32 s{sQ3}, s{sRem}, 2
        """)
    else:
        first_drop = [int(x) for x in opt.get("drop", "8,16").split(",")]
        A(f"""
        s_cmp_lt_u32 s{sW}, 4
        s_cselect_b32 s3, {first_drop[0]}, {first_drop[1]}
        s_sub_i32 s{sQ1}, s{sRem}, s3
        s_sub_i32 s{sQ2}, s{sQ1}, 16
        s_sub_i32 s{sQ3}, s{sQ2}, 16
        """)
    A("s_setprio 3")
    A("s_waitcnt vmcnt(8)")
    stamp(A, opt, "first")

    def mfma(j):
        return f"v_mfma_f32_32x32x16_bf16 {vr(vD + 16 * j, 16)}, {vr(vEA, 4)}, {vr(vWC + 4 * j, 4)}, 0"

    for j in range(4):
        A(mfma(j))
    A("s_nop 7")
    A(f"s_cmp_gt_u32 s{sRem}, 8")
    A("s_cbranch_scc0 Llast")

    def step(u, last, q):
        La, Lb = vL + 8 * (u & 3), vL + 8 * (u & 3) + 4
        a, b = vT, vT + 4
        sl = (sSl0, sSl1)[u >> 2]
        prefetch = not (last and u >= 4)
        need = [u] + (["E"] if u == 7 and not last else [])
        A(f"s_waitcnt vmcnt({len(q) - 1 - max(i for i, x in enumerate(q) if x in need)})")
        A(f"s_sext_i32_i8 s3, s{sl}")
        A("s_mulk_i32 s3, 66")
        A(f"v_add_u32_e64 v{vEad}, s3, v{vEb}")
        A(f"ds_read_b128 {vr(vEn, 4)}, v{vEad}")
        if prefetch and u % 2 == 0:
            A(f"ds_read_b128 {vr(vSo, 4)}, v{vSp} offset:{16 * (u + 4)}")
        if u == ea_at and not last:
            A(f"ds_read_b32 v{vEo}, v{vEp} offset:{1152 + 128}")

        def mix(j, hb):
            return (f"v_fma_mix_f32 v{(a, b)[hb] + j}, v{vD + 16 * j + 2 * u + hb}, s{sNl}, v{(La, Lb)[hb] + j} "
                    "op_sel_hi:[0,0,1]")

        if u == 7 and not last:
            for j in range(4):
                A(mix(j, 0))
                A(mix(j, 1))
                if j:
                    A(f"v_exp_f32 v{a + j - 1}, v{a + j - 1}")
                    A(f"v_exp_f32 v{b + j - 1}, v{b + j - 1}")
                A(mfma(j))
            A(f"v_exp_f32_e64 v{a + 3}, v{a + 3}")
            A(f"v_exp_f32 v{b + 3}, v{b + 3}")
        else:
            for hb in range(2):
                for j in range(4):
                    A(mix(j, hb))
            for j in range(8):
                A(f"v_exp_f32{'_e64' if j == 0 else ''} v{a + j}, v{a + j}")
        A("s_waitcnt lgkmcnt(0)")
        if u == ea_at and not last:
            A(f"v_add_u32_e64 v{vEo}, v{vEo}, v{vH16}")
            A(f"buffer_load_dwordx4 {vr(vEA, 4)}, v{vEo}, {sr(S_EA, 4)}, 0 offen {ea_pol}")
            q.append("E")
        for j in range(0, 8, 2):
            A(f"v_pk_fma_f32 {vr(a + j, 2)}, {vr(a + j, 2)}, {vr(vEn + (j & 3), 2)}, {sr(sC0, 2)} clamp")
        for j in (0, 2):
            A(f"v_pk_mul_f32 {vr(La + j, 2)}, {vr(La + j, 2)}, {vr(b + j, 2)}")
        so2 = vSo + 2 * (u & 1)
        if prefetch:
            A(f"v_lshl_add_u64 {vr(so2, 2)}, {vr(so2, 2)}, 0, {vr(vLo, 2)}")
        for j in (0, 2):
            A(f"v_pk_fma_f32 {vr(La + j, 2)}, {vr(Lb + j, 2)}, {vr(a + j, 2)}, {vr(La + j, 2)}")
        for j in (0, 2):
            A(f"v_pk_add_f32 {vr(Lb + j, 2)}, {vr(a + j, 2)}, {vr(b + j, 2)}")
        for j in (0, 2):
            A(f"v_pk_mul_f32 {vr(a + j, 2)}, {vr(a + j, 2)}, {vr(b + j, 2)}")
        for j in range(4):
            A(f"v_rcp_f32 v{a + j}, v{a + j}")
        A(f"s_set_gpr_idx_on s{sl}, gpr_idx(SRC2,DST)")
        A(f"s_lshr_b32 s{sl}, s{sl}, 8")
        for j in (0, 2):
            A(f"v_pk_fma_f32 {vr(vSl + j, 2)}, {vr(La + j, 2)}, {vr(a + j, 2)}, {vr(vSl + j, 2)}")
            A(f"v_pk_fma_f32 {vr(vSl + 4 + j, 2)}, {vr(Lb + j, 2)}, {vr(a + j, 2)}, {vr(vSl + 4 + j, 2)}")
        if prefetch:
            A(f"buffer_load_dwordx4 {vr(La, 4)}, v{so2}, {sr(S_TAB, 4)}, 0 offen {tab_pol}")
            A(f"buffer_load_dwordx4 {vr(Lb, 4)}, v{so2 + 1}, {sr(S_TAB, 4)}, 0 offen {tab_pol}")
            q += [u + 4] * 2
        A("s_set_gpr_idx_off")

    assert 0 <= ea_at < 7
    A(".p2align 6")
    A("Ltile:")
    A(f"s_sub_u32 s{sRem}, s{sRem}, 8")
    q = [0, 0, 1, 1, 2, 2, 3, 3]
    for u in range(8):
        step(u, False, q)
    A(f"""
    s_nop 0
    v_readlane_b32 s{sSl0}, v{vSb}, s{sLn}
    v_readlane_b32 s{sSl1}, v{vSb}, s{sLn + 1}
    v_add_u32 v{vSp}, 0x80, v{vSp}
    v_add_u32 v{vEp}, 0x80, v{vEp}
    s_add_u32 s{sLn}, s{sLn}, 2
    s_add_u32 s{sLn + 1}, s{sLn + 1}, 2
    """)
    if opt.get("tilestamps"):
        for k in range(2, 6):
            A(f"s_cmp_lg_u32 s{sLn}, {2 * k + 2}")
            A(f"s_cbranch_scc1 Lts{k}")
            stamp(A, opt, f"tile{k}")
            A(f"Lts{k}:")
    if prio != "none":
        for k, sq in enumerate((sQ1, sQ2, sQ3)):
            A(f"s_cmp_le_i32 s{sRem}, s{sq}")
            A("s_cbranch_scc0 Lprio_done")
            A(f"s_setprio {2 - k}")
        A("Lprio_done:")
    A(f"s_cmp_gt_u32 s{sRem}, 8")
    A("s_cbranch_scc1 Ltile")
    A(".p2align 3")
    A("Llast:")
    A("s_nop 0")
    q = [0, 0, 1, 1, 2, 2, 3, 3]
    for u in range(8):
        step(u, True, q)
        if u < 7:
            A(f"s_cmp_le_u32 s{sRem}, {u + 1}")
            A("s_cbranch_scc1 Lmain_done")
    A("Lmain_done:")
    stamp(A, opt, "done")

    def finalize(a0, o, a1, u0, x0, addr, soff, pre_store):
        for j in range(4):
            A(f"v_permlane32_swap_b32 v{a0 + j}, v{a1 + j}")
            A(f"v_permlane32_swap_b32 v{a0 + o + j}, v{a1 + o + j}")
        for j in (o, o + 2, 0, 2):
            A(f"v_pk_add_f32 {vr(a0 + j, 2)}, {vr(a0 + j, 2)}, {vr(a1 + j, 2)}")
        for j in (o, o + 2):
            A(f"v_pk_add_f32 {vr(a0 + j, 2)}, {vr(a0 + j, 2)}, {sr(sC0, 2)}")
        for j in range(4):
            A(f"v_rcp_f32 v{a0 + o + j}, v{a0 + o + j}")
        A(f"v_lshlrev_b32 v{a1}, 16, v{x0}")
        A(f"v_and_b32 v{a1 + 1}, 0xffff0000, v{x0}")
        A(f"v_lshlrev_b32 v{a1 + 2}, 16, v{x0 + 1}")
        A(f"v_and_b32 v{a1 + 3}, 0xffff0000, v{x0 + 1}")
        for j in (0, 2):
            A(f"v_pk_fma_f32 {vr(a0 + j, 2)}, {vr(a0 + j, 2)}, {vr(a0 + o + j, 2)}, {vr(u0 + j, 2)}")
        for j in range(4):
            A(f"v_max_f32 v{a0 + j}, 0, v{a0 + j}")
        for j in (0, 2):
            A(f"v_pk_add_f32 {vr(a0 + j, 2)}, {vr(a0 + j, 2)}, {vr(a1 + j, 2)}")
        A(f"v_cvt_pk_bf16_f32 v{a0}, v{a0}, v{a0 + 1}")
        A(f"v_cvt_pk_bf16_f32 v{a0 + 1}, v{a0 + 2}, v{a0 + 3}")
        A(pre_store)
        A(f"buffer_store_dwordx2 {vr(a0, 2)}, v{addr}, {sr(S_OUT, 4)}, s{soff} offen")

    eps = f32(1e-6 / c0)
    vU, vXr, vA1, vA2, vA3, vCy = vD, vD + 16, vD + 24, vD + 25, vD + 26, vD + 32
    A(f"""
    v_lshl_add_u32 v{vA1}, v{vH16}, 5, v{vLo}
    v_add_u32 v{vA1}, s{sSW}, v{vA1}
    ds_write_b128 v{vA1}, {vr(vSl, 4)}
    ds_write_b128 v{vA1}, {vr(vSl + 4, 4)} offset:1024
    s_mul_i32 s3, s{sF0}, 528
    s_add_u32 s3, s3, {L_TU}
    v_mul_u32_u24 v{vA2}, 33, v{vH16}
    v_add3_u32 v{vA2}, v{vA2}, v{vLo}, s3
    s_mul_i32 s3, s{sF0}, 272
    s_add_u32 s3, s3, {L_X}
    v_mul_u32_u24 v{vA3}, 17, v{vH16}
    v_lshrrev_b32 v{vLo + 1}, 1, v{vLo}
    v_add3_u32 v{vA3}, v{vA3}, v{vLo + 1}, s3
    """)
    for pr in range(4):
        A(f"ds_read_b128 {vr(vU + 4 * pr, 4)}, v{vA2} offset:{1056 * pr}")
        A(f"ds_read_b64 {vr(vXr + 2 * pr, 2)}, v{vA3} offset:{544 * pr}")
    A(f"""
    v_lshl_add_u32 v{vA2}, v{vH16}, 4, v{vLo + 1}
    s_add_u32 s{sQ1}, s{sN0}, s{sF0}
    s_lshl_b32 s{sQ1}, s{sQ1}, 8
    s_mov_b32 s{sC0}, {hex(eps)}
    s_mov_b32 s{sC0 + 1}, {hex(eps)}
    s_lshl_b32 s{sQ2}, s{sOwn}, 3
    s_waitcnt lgkmcnt(0)
    """)
    for pr in range(4):
        if pr < 3:
            A(f"s_cmp_gt_u32 s{sOwn}, {2 * pr + 2}")
            A(f"s_cbranch_scc1 Lfin{pr}")
        A("s_barrier")
        A(f"s_cmp_eq_u32 s{sW}, 7")
        A(f"s_cbranch_scc1 Lfin{pr}")
        A(f"ds_read_b128 {vr(vCy, 4)}, v{vA1} offset:{STRW}")
        A(f"ds_read_b128 {vr(vCy + 4, 4)}, v{vA1} offset:{STRW + 1024}")
        A(f"s_set_gpr_idx_on s{sQ2}, gpr_idx(SRC0,DST)")
        A("s_waitcnt lgkmcnt(0)")
        for j in range(0, 8, 2):
            A(f"v_pk_add_f32 {vr(vSl + j, 2)}, {vr(vSl + j, 2)}, {vr(vCy + j, 2)}")
        A("s_set_gpr_idx_off")
        A("s_nop 1")
        A(f"Lfin{pr}:")
        finalize(vSl + 8 * (2 * pr + 1), 4, vSl + 8 * (2 * pr + 2), vU + 4 * pr, vXr + 2 * pr, vA2, sQ1,
                 f"s_cmp_gt_u32 s{sOwn}, {2 * pr + 1}\ns_cselect_b32 exec_hi, -1, 0")
        if pr < 3:
            A(f"s_add_u32 s{sQ1}, s{sQ1}, 512")
            A(f"s_cmp_gt_u32 s{sOwn}, {2 * pr + 2}")
            A("s_cbranch_scc0 Lk2_done")
    A("Lk2_done:")
    stamp_flush(A, opt, 8, 0x20000, vTid)
    if opt.get("spin"):
        A("""
        Lspin:
        s_memrealtime s[42:43]
        s_waitcnt lgkmcnt(0)
        s_sub_u32 s42, s42, s100
        s_cmp_lt_u32 s42, 10000
        s_cbranch_scc1 Lspin
        """)
    A("Lk2_exit:")
    A("s_endpgm")

    NU = 7
    vAcc, vAn = 0, 56
    vLs = [vL + 8 * u for u in range(4)] + [84 + 8 * u for u in range(3)]
    vP, vErr, vQ, vCaddr, vUaddr = 245, 252, 253, 254, 255
    lo_y, hi_y = AMAX * NLOG2E - KSH, -AMAX * NLOG2E - KSH
    A("Lcold_code:")
    A("Lwide_a:")
    for i in range(32):
        A(f"""
        v_exp_f32 v{vXs}, v{vG + i}
        v_rcp_f32_e64 v{vXs + 1}, -v{vG + i}
        v_cmp_gt_f32 vcc, {hex(f32(lo_y))}, v{vG + i}
        s_nop 1
        v_cndmask_b32 v{vXs}, v{vXs}, v{vG + i}, vcc
        v_cmp_lt_f32 vcc, {hex(f32(hi_y))}, v{vG + i}
        s_nop 1
        v_cndmask_b32 v{vG + i}, v{vXs}, v{vXs + 1}, vcc
        """)
    A("s_mov_b64 vcc, 1")
    A("s_branch Lu_wave")
    A("Lslow_entry:")
    A(f"""
    s_waitcnt vmcnt(0) lgkmcnt(0)
    s_barrier
    v_lshlrev_b32 v{vX + 11}, 2, v{vTid}
    ds_write_b32 v{vX + 11}, v{vZero} offset:{L_CNT}
    s_mul_i32 s3, s{sW}, 528
    s_add_u32 s3, s3, {L_TA}
    v_add_u32 v{vX + 11}, s3, v{vLo}
    """)
    for u in range(NU):
        A(f"ds_read_b128 {vr(vAn + 4 * u, 4)}, v{vX + 11} offset:{8 * 528 * u}")
    for i in range(0, 8 * NU, 2):
        A(f"v_mov_b64 {vr(vAcc + i, 2)}, 0")
    A("s_waitcnt lgkmcnt(0)")
    for i in range(vAn, vAn + 4 * NU):
        A(f"""
        v_log_f32 v{vT}, v{i}
        v_rcp_f32_e64 v{vT + 1}, -v{i}
        v_cmp_lt_f32 vcc, -1.0, v{i}
        s_nop 1
        v_cndmask_b32 v{vT + 1}, v{i}, v{vT + 1}, vcc
        v_cmp_lt_f32 vcc, 0, v{i}
        s_nop 1
        v_cndmask_b32 v{i}, v{vT + 1}, v{vT}, vcc
        """)
    A(f"""
    v_bfe_u32 v{vX + 11}, v{vTid}, 3, 3
    v_and_b32 v{vX + 12}, 7, v{vTid}
    v_lshlrev_b32 v{vX + 12}, 2, v{vX + 12}
    v_lshl_add_u32 v{vX + 12}, v{vX + 11}, 8, v{vX + 12}
    s_lshl_b32 s3, s{sW}, 5
    v_add_u32 v{vCaddr}, s3, v{vX + 12}
    v_bfe_u32 v{vX + 11}, v{vTid}, 3, 2
    v_bfe_u32 v{vX + 12}, v{vTid}, 1, 1
    v_lshl_add_u32 v{vX + 11}, v{vX + 11}, 1, v{vX + 12}
    v_lshlrev_b32 v{vUaddr}, 5, v{vX + 11}
    Lbatch:
    """)
    batch_masks(16)
    A("Lround:")
    rec_addr()
    rec_loads()
    A(f"""
    v_mov_b32 v{vZero}, 0
    v_mov_b32 v{vOne}, 1
    ds_write_b32 v{vZero}, v{vZero} offset:{L_FLAG}
    ds_write_b32 v{vZero}, v{vZero} offset:{L_FLAG + 4}
    s_waitcnt lgkmcnt(0)
    s_barrier
    s_mov_b64 exec, {sr(sMore, 2)}
    ds_write_b32 v{vZero}, v{vOne} offset:{L_FLAG + 4}
    s_mov_b64 exec, -1
    s_waitcnt vmcnt(0)
    """)
    histogram(cand)
    for rec, key_, rank, so_, eo_, m in cand:
        A(f"v_lshrrev_b32 v{so_}, 18, v{rec}")
        A(f"v_bfe_u32 v{eo_}, v{rec}, 6, 12")
        A(f"v_lshlrev_b32 v{so_}, 9, v{so_}")
        A(f"v_lshl_add_u32 v{eo_}, v{eo_}, 5, v{vX + 2}")
    A("s_waitcnt lgkmcnt(0)")
    A("s_barrier")
    c, inc, deg, q, t0, t1 = vX + 12, vX + 13, vX + 14, vX + 15, vX + 16, vX + 17
    A(f"ds_read_b32 v{c}, v{vCaddr} offset:{L_CNT}")
    A(f"v_lshrrev_b32 v{t0}, 5, v{vCaddr}")
    A(f"v_lshlrev_b32 v{t0}, 6, v{t0}")
    A("s_waitcnt lgkmcnt(0)")
    A(f"ds_write_b32 v{vCaddr}, v{vZero} offset:{L_CNT}")
    A(f"v_mov_b32 v{inc}, v{c}")
    for d in (1, 2, 4, 8):
        A("s_nop 1")
        A(f"v_add_u32_dpp v{inc}, v{inc}, v{inc} row_shr:{d} row_mask:0xf bank_mask:0xf")
    A(f"""
    v_mov_b32 v{t1}, 0
    s_nop 0
    v_mov_b32_dpp v{deg}, v{inc} row_newbcast:7 row_mask:0xf bank_mask:0x3
    v_mov_b32_dpp v{t1}, v{inc} row_newbcast:7 row_mask:0xf bank_mask:0xc
    v_mov_b32_dpp v{deg}, v{inc} row_newbcast:15 row_mask:0xf bank_mask:0xc
    v_sub_u32 v{inc}, v{inc}, v{t1}
    v_sub_u32 v{deg}, v{deg}, v{t1}
    v_sub_u32 v{inc}, v{inc}, v{c}
    v_add_u32 v{inc}, v{inc}, v{t0}
    ds_write_b32 v{vCaddr}, v{inc} offset:{L_BASE}
    v_cmp_lt_u32 vcc, 64, v{deg}
    v_min_u32 v{deg}, 64, v{deg}
    v_add_u32 v{q}, 3, v{deg}
    v_lshrrev_b32 v{q}, 2, v{q}
    s_mov_b64 exec, vcc
    ds_write_b32 v{vZero}, v{vOne} offset:{L_FLAG}
    s_mov_b64 exec, -1
    ds_bpermute_b32 v{vQ}, v{vUaddr}, v{q}
    v_and_b32 v{c}, 7, v{vTid}
    v_add_u32 v{c}, v{c}, v{deg}
    v_lshlrev_b32 v{t1}, 2, v{q}
    v_cmp_lt_u32 vcc, v{c}, v{t1}
    v_add_lshl_u32 v{c}, v{c}, v{t0}, 2
    v_mov_b32 v{t0}, {TAB_BYTES}
    v_bfrev_b32 v{t1}, 2
    s_mov_b64 exec, vcc
    ds_write_b32 v{c}, v{t0} offset:{L_SO}
    ds_write_b32 v{c}, v{t1} offset:{L_EO}
    s_mov_b64 exec, -1
    v_max_u32_dpp v{q}, v{q}, v{q} row_ror:8 row_mask:0xf bank_mask:0xf
    s_nop 0
    v_readlane_b32 s{sT}, v{q}, 0
    v_readlane_b32 s3, v{q}, 16
    v_readlane_b32 s{sTmp}, v{q}, 32
    v_readlane_b32 s{sTmp + 1}, v{q}, 48
    s_waitcnt lgkmcnt(0)
    s_barrier
    ds_read_b64 {vr(vX + 12, 2)}, v{vZero} offset:{L_FLAG}
    """)
    for i in range(8):
        A(f"ds_read_b32 v{vKey + i}, v{vKey + i} offset:{L_BASE}")
    A(f"""
    s_max_u32 s{sT}, s{sT}, s3
    s_max_u32 s{sTmp}, s{sTmp}, s{sTmp + 1}
    s_max_u32 s{sT}, s{sT}, s{sTmp}
    s_waitcnt lgkmcnt(0)
    v_readfirstlane_b32 s{sOvf}, v{vX + 12}
    v_readfirstlane_b32 s{sMor}, v{vX + 13}
    """)
    for i in range(8):
        A(f"v_and_b32 v{vX + 12}, 63, v{vRec + i}")
        A(f"v_add_u32 v{vKey + i}, v{vKey + i}, v{vRank + i}")
        A(f"v_lshl_add_u32 v{vX + 12}, v{vX + 12}, 6, 64")
        A(f"v_cmp_lt_u32 vcc, v{vKey + i}, v{vX + 12}")
        A(f"v_lshlrev_b32 v{vKey + i}, 2, v{vKey + i}")
        A(f"s_and_b64 exec, vcc, {sr(sMask + 2 * i, 2)}")
        A(f"ds_write_b32 v{vKey + i}, v{vSoff + i} offset:{L_SO}")
        A(f"ds_write_b32 v{vKey + i}, v{vEoff + i} offset:{L_EO}")
        A(f"s_andn2_b64 {sr(sMask + 2 * i, 2)}, {sr(sMask + 2 * i, 2)}, vcc")
        A("s_mov_b64 exec, -1")
    A(f"""
    s_lshl_b32 s3, s{sW}, 8
    v_lshrrev_b32 v{vX + 12}, 1, v{vH16}
    v_add_u32 v{vP}, s3, v{vX + 12}
    v_and_b32 v{vX + 12}, 1, v{vTid}
    v_bfe_u32 v{vX + 13}, v{vTid}, 2, 1
    v_lshl_add_u32 v{vX + 12}, v{vX + 13}, 1, v{vX + 12}
    v_lshl_add_u32 v{vX + 12}, v{vX + 12}, 2, s3
    v_lshl_add_u32 v{vEp}, v{vUaddr}, 6, v{vX + 12}
    s_lshr_b32 s3, s{sT}, 1
    v_mov_b32 v{vErr}, s3
    s_mov_b64 {sr(sCur, 2)}, 0
    s_mov_b32 s{sTi}, 0
    """)
    for u in range(1, NU):
        A(f"v_mov_b32 v{vP + u}, v{vP}")
    A(f"""
    s_waitcnt lgkmcnt(0)
    s_barrier
    s_cmp_eq_u32 s{sT}, 0
    s_cbranch_scc1 Lg_done
    s_branch Lg_entry
    Lg_tile:
    s_waitcnt vmcnt({2 * NU})
    """)
    for j in range(4):
        A(mfma(j))
    A(f"""
    Lg_entry:
    v_add_u32 v{vErr}, v{vQ}, v{vErr}
    ds_read_b32 v{vEo}, v{vEp} offset:{L_EO}
    ds_read_b64 {vr(vSo, 2)}, v{vP} offset:{L_SO}
    v_cmp_le_u32_e64 {sr(sNext, 2)}, s{sT}, v{vErr}
    s_cmp_lt_u32 s{sTi}, s{sT}
    s_cselect_b64 {sr(sNext, 2)}, {sr(sNext, 2)}, 1
    s_mov_b64 exec, {sr(sNext, 2)}
    v_subrev_u32 v{vErr}, s{sT}, v{vErr}
    v_add_u32 v{vEp}, 16, v{vEp}
    s_waitcnt lgkmcnt(1)
    v_add_u32 v{vEo}, v{vEo}, v{vH16}
    buffer_load_dwordx4 {vr(vEA, 4)}, v{vEo}, {sr(S_EA, 4)}, 0 offen
    s_mov_b64 exec, -1
    """)
    for u in range(NU):
        bit = 8 * (u >> 1) + 2 * (u & 1) + 1
        so2 = vSo + 2 * (u & 1)
        La, Lb = vLs[u], vLs[u] + 4
        a, b = vT, vT + 4
        num, den = vAcc + 8 * u, vAcc + 8 * u + 4
        if u + 1 < NU:
            A(f"ds_read_b64 {vr(vSo + 2 * ((u + 1) & 1), 2)}, v{vP + u + 1} offset:{L_SO + 2048 * (u + 1)}")
        A(f"s_bitcmp1_b32 s{sCur}, {bit}")
        A(f"s_cbranch_scc0 Lg_skip{u}")
        A(f"s_waitcnt vmcnt({2 * NU - 1})")
        for j in range(4):
            A(f"v_fma_mix_f32 v{a + j}, v{vD + 16 * j + 2 * u}, s{sNl}, v{La + j} op_sel_hi:[0,0,1]")
        for j in range(4):
            A(f"v_fma_mix_f32 v{b + j}, v{vD + 16 * j + 2 * u + 1}, s{sNl}, v{Lb + j} op_sel_hi:[0,0,1]")
        for j in range(0, 8, 2):
            A(f"v_pk_add_f32 {vr(a + j, 2)}, {vr(a + j, 2)}, {vr(vAn + 4 * u + (j & 3), 2)}")
        for j in range(8):
            A(f"v_exp_f32_e64 v{a + j}, v{a + j} clamp")
        for j in range(0, 8, 2):
            A(f"v_pk_add_f32 {vr(a + j, 2)}, {vr(a + j, 2)}, {sr(sC0, 2)}")
        for j in (0, 2):
            A(f"v_pk_mul_f32 {vr(La + j, 2)}, {vr(La + j, 2)}, {vr(b + j, 2)}")
        for j in (0, 2):
            A(f"v_pk_fma_f32 {vr(La + j, 2)}, {vr(Lb + j, 2)}, {vr(a + j, 2)}, {vr(La + j, 2)}")
        for j in (0, 2):
            A(f"v_pk_add_f32 {vr(Lb + j, 2)}, {vr(a + j, 2)}, {vr(b + j, 2)}")
        for j in (0, 2):
            A(f"v_pk_mul_f32 {vr(a + j, 2)}, {vr(a + j, 2)}, {vr(b + j, 2)}")
        for j in range(4):
            A(f"v_rcp_f32 v{a + j}, v{a + j}")
        for j in (0, 2):
            A(f"v_pk_fma_f32 {vr(num + j, 2)}, {vr(La + j, 2)}, {vr(a + j, 2)}, {vr(num + j, 2)}")
            A(f"v_pk_fma_f32 {vr(den + j, 2)}, {vr(Lb + j, 2)}, {vr(a + j, 2)}, {vr(den + j, 2)}")
        A(f"Lg_skip{u}:")
        A(f"s_bitcmp1_b32 s{sNext}, {bit}")
        A("s_cselect_b64 exec, -1, 1")
        A(f"s_cselect_b32 s{sInc}, 16, 0")
        A(f"s_waitcnt lgkmcnt({1 if u + 1 < NU else 0})")
        A(f"v_add_u32 v{so2}, v{so2}, v{vLo}")
        A(f"v_add_u32 v{so2 + 1}, v{so2 + 1}, v{vLo}")
        A(f"buffer_load_dwordx4 {vr(La, 4)}, v{so2}, {sr(S_TAB, 4)}, 0 offen {tab_pol}")
        A(f"buffer_load_dwordx4 {vr(Lb, 4)}, v{so2 + 1}, {sr(S_TAB, 4)}, 0 offen {tab_pol}")
        A("s_mov_b64 exec, -1")
        A(f"v_add_u32 v{vP + u}, s{sInc}, v{vP + u}")
    A(f"""
    s_mov_b64 {sr(sCur, 2)}, {sr(sNext, 2)}
    s_add_u32 s{sTi}, s{sTi}, 1
    s_cmp_le_u32 s{sTi}, s{sT}
    s_cbranch_scc1 Lg_tile
    Lg_done:
    s_waitcnt vmcnt(0)
    s_cmp_lg_u32 s{sOvf}, 0
    s_cbranch_scc1 Lround
    s_add_u32 s{sW0}, s{sW0}, 16
    s_cmp_lg_u32 s{sMor}, 0
    s_cbranch_scc1 Lbatch
    s_mul_i32 s3, s{sW}, 528
    s_add_u32 s3, s3, {L_TU}
    v_mul_u32_u24 v{vA2}, {33 * 8}, v{vH16}
    v_add3_u32 v{vA2}, v{vA2}, v{vLo}, s3
    s_mul_i32 s3, s{sW}, 272
    s_add_u32 s3, s3, {L_X}
    v_mul_u32_u24 v{vA3}, {17 * 8}, v{vH16}
    v_lshrrev_b32 v{vLo + 1}, 1, v{vLo}
    v_add3_u32 v{vA3}, v{vA3}, v{vLo + 1}, s3
    """)
    for pr in range(4):
        A(f"ds_read_b128 {vr(vU + 4 * pr, 4)}, v{vA2} offset:{16 * 528 * pr}")
        A(f"ds_read_b64 {vr(vXr + 2 * pr, 2)}, v{vA3} offset:{16 * 272 * pr}")
    A(f"""
    v_lshl_add_u32 v{vA2}, v{vH16}, 7, v{vLo + 1}
    s_add_u32 s{sQ1}, s{sN0}, s{sW}
    s_lshl_b32 s{sQ1}, s{sQ1}, 8
    s_mov_b32 s{sC0}, {hex(eps)}
    s_mov_b32 s{sC0 + 1}, {hex(eps)}
    s_waitcnt lgkmcnt(0)
    """)
    for pr in range(4):
        if pr == 3:
            A(f"s_add_u32 s3, s{sW}, 48")
            A(f"s_cmp_ge_u32 s3, s{sNn}")
            A("s_cbranch_scc1 Lk2_done")
        finalize(vAcc + 16 * pr, 4, vAcc + 16 * pr + 8, vU + 4 * pr, vXr + 2 * pr, vA2, sQ1,
                 "s_mov_b32 exec_hi, 0" if pr == 3 else "s_nop 0")
        A(f"s_add_u32 s{sQ1}, s{sQ1}, 4096")
    A("s_branch Lk2_done")
    return L_END


def descriptor(name, vgpr, extra=""):
    return f""".amdhsa_kernel {name}
  .amdhsa_next_free_vgpr {vgpr}
  .amdhsa_next_free_sgpr 102
  .amdhsa_accum_offset {(vgpr + 3) // 4 * 4}
  .amdhsa_group_segment_fixed_size 0
  .amdhsa_kernarg_size 96
  .amdhsa_user_sgpr_count 2
  .amdhsa_user_sgpr_kernarg_segment_ptr 1
  .amdhsa_system_sgpr_workgroup_id_x 1
{extra}.end_amdhsa_kernel
"""


def generate(opt):
    A = Asm()
    lds = gen_k2(A, opt)
    lst = f"kernel={NAME}_kernel " if opt.get("aslist") else ""
    return (f"""; GatedGCN layer in one launch. Every workgroup buckets one chunk of edges by destination and builds its
; rows of the gather table, hands both over through d_ws, then sorts, gathers and reduces one bucket of nodes.
; @launch {lst}grid=(256,1,1) block=(512,1,1) lds={lds}
.amdgcn_target "amdgcn-amd-amdhsa--gfx950"
.text
.globl {NAME}_kernel
.p2align 8
.type {NAME}_kernel,@function
""" + A.text() + ".section .rodata,\"a\"\n.p2align 6\n"
            + descriptor(f"{NAME}_kernel", 256, "  .amdhsa_fp16_overflow 1\n"))


if __name__ == "__main__":
    out = sys.argv[1] if len(sys.argv) > 1 else f"cdna_kernels/{NAME}.s"
    opt = dict(a.split("=", 1) for a in sys.argv[2:])
    opt = {k: v.replace("+", " ") for k, v in opt.items()}
    open(out, "w").write(generate(opt))
```

```python
import math
import struct
import sys

NAME = "gather_scatter__edge_featured_mpnn_gatedgcn__graph"
N, E = 12500, 400000
BM, BS, SM, SC, SS = 171799, 23, 799999, 16330, 14
CH = 1568
NCH = 256
TAB_OFF = 0
REC_OFF = 0xE00000
OFF_OFF = 0x1000000
SPIN_MAX = 20000
STAMP_OFF = 0x2000000
TAB_BYTES = N * 512
KSH = 48
AMAX = 52.0
NLOG2E = -math.log2(math.e)


def f32(x):
    return struct.unpack("<I", struct.pack("<f", x))[0]


class Asm:
    def __init__(self):
        self.lines = []

    def __call__(self, s):
        for ln in s.strip("\n").split("\n"):
            ln = ln.strip()
            if not ln:
                continue
            self.lines.append(ln if ln.endswith(":") else "    " + ln)

    def text(self):
        return "\n".join(self.lines) + "\n"


def vr(a, n=1):
    return f"v{a}" if n == 1 else f"v[{a}:{a + n - 1}]"


def sr(a, n=1):
    return f"s{a}" if n == 1 else f"s[{a}:{a + n - 1}]"


def srd(A, d, base, nbytes, off=0):
    if off:
        A(f"s_add_u32 s{d}, s{base}, {hex(off)}")
        A(f"s_addc_u32 s{d + 1}, s{base + 1}, 0")
    else:
        A(f"s_mov_b64 {sr(d, 2)}, {sr(base, 2)}")
    A(f"s_mov_b32 s{d + 2}, {hex(nbytes)}")
    A(f"s_mov_b32 s{d + 3}, 0x20000")


P_X, P_EA, P_SRC, P_DST, P_WA, P_WB, P_WC, P_WU = 4, 6, 8, 10, 12, 14, 16, 18
P_WV, P_OUT, P_DBG, P_WS = 20, 22, 24, 26


def load_kernargs(A):
    A("s_load_dwordx16 s[4:19], s[0:1], 0")
    A("s_load_dwordx8 s[20:27], s[0:1], 64")


STAMP_BASE = [2]


def stamp_reg(i):
    return 100 if i == 0 else STAMP_BASE[0] + 2 * i


def stamp(A, opt, i):
    if not opt.get("stamp"):
        return
    if isinstance(i, str):
        names = opt["stamp"].split(",")
        if i not in names:
            return
        i = names.index(i) + 1
    A(f"{'s_memtime' if opt.get('cyc') else 's_memrealtime'} s[{stamp_reg(i)}:{stamp_reg(i) + 1}]")


def stamp_flush(A, opt, n, base, vtid):
    if not opt.get("stamp"):
        return
    A("s_mov_b64 exec, -1")
    A("s_waitcnt vmcnt(0)")
    stamp(A, opt, n - 1)
    srd(A, 20, P_WS, 0x80000, STAMP_OFF + base)
    A(f"v_lshrrev_b32 v1, 6, v{vtid}")
    A("s_lshl_b32 s3, s2, 3")
    A("v_add_u32 v1, s3, v1")
    A(f"v_mul_u32_u24 v1, {8 * n}, v1")
    A("s_mov_b64 exec, 1")
    A("s_waitcnt lgkmcnt(0)")
    for i in range(n):
        r = stamp_reg(i)
        A(f"v_mov_b32 v2, s{r}")
        A(f"v_mov_b32 v3, s{r + 1}")
        A(f"buffer_store_dwordx2 v[2:3], v1, s[20:23], 0 offen offset:{8 * i}")
        A("s_nop 1")


WAVE_SCAN = ("row_shr:1 row_mask:0xf", "row_shr:2 row_mask:0xf", "row_shr:4 row_mask:0xf",
             "row_shr:8 row_mask:0xf", "row_bcast:15 row_mask:0xa", "row_bcast:31 row_mask:0xc")


def wave_scan(A, v, first_nop=1, fill=()):
    for k, d in enumerate(WAVE_SCAN):
        if k < len(fill):
            A("\n".join(fill[k]))
        elif k or first_nop:
            A("s_nop 1")
        A(f"v_add_u32_dpp v{v}, v{v}, v{v} {d} bank_mask:0xf")


def gen_k2(A, opt):
    STAMP_BASE[0] = 2
    ea_pol = opt.get("ea_load", "")
    tab_pol = opt.get("tab_load", "")
    pf_lanes = int(opt.get("pf", 0))
    poll_at = int(opt.get("poll_at", 0))
    ld = [int(x) for x in opt.get("ld", "6,11,16").split(",")]
    TS = int(opt.get("ts", 3))
    OB = int(opt.get("ob", 8))
    S_TAB, S_EA, S_REC, S_OFFS, S_TW, S_X, S_OUT = 28, 32, 36, 40, 44, 48, 52
    sW, sBk, sN0, sW0, sT, sTi, sInc, sNl = 56, 57, 58, 59, 60, 61, 62, 63
    sC0, sCur, sNext, sMore, sTmp, sNon = 64, 66, 68, 70, 72, 74
    sMask = 76
    sMask2 = 18
    S_DST, S_SRC, S_W, S_W2, S_WC, S_DBG = 76, 80, 84, 88, 76, 80
    sOvf, sMor, sQ1, sQ2, sQ3, sLw, sF0, sOwn = 92, 93, 94, 95, 96, 97, 98, 99
    sRem, sSW, sSl0, sSl1, sLn, sPM = sT, sInc, sCur, sCur + 1, sNext, sCur
    sNn = 0
    sWo, sWm = sOvf, sLw
    L_CNT, L_BASE, L_FLAG, P_CNT, P_BASE, P_SORT = 0, 2048, 4096, 4352, 5376, 6400
    L_R2 = 12800
    L_SO = L_R2
    L_EO = L_SO + 25600
    L_STR = L_R2 + 16896
    STRW = 2560
    L_WCR = L_R2 + 65536
    L_X = L_WCR + 4096
    L_R1 = (L_X + 52 * 272 + 255) // 256 * 256
    L_TA = L_R1 + 528
    L_TU = L_TA + 52 * 528
    L_END = L_R1 + 65536
    TF_OFF = NCH * 2048
    NS = 9
    vSl, vD, vL, vWC, vEA, vT, vSo, vLo = 0, 108, 172, 204, 220, 224, 232, 236
    vSp, vEp, vEo, vH16, vSb, vTid, vOffs = 238, 239, 240, 241, 242, 243, 244
    vWf, vG, vXf, vXs, vNon, vTf = 0, 32, vL, 96, 104, 106
    vEn, vEb, vEad, vS2 = 104, 246, 247, 248
    Lbuf = [vL + 8 * u for u in range(4)] + [72 + 8 * u for u in range(4)]
    vRec, vKey, vRank, vSoff, vEoff, vX = vD, vD + 8, vD + 16, vD + 24, vD + 32, vD + 40
    cand = [(vRec + i, vKey + i, vRank + i, vSoff + i, vEoff + i, sMask + 2 * i) for i in range(8)]
    cand2 = [(vEA + i, vT + i, vT + 4 + i, None, None, sMask2 + 2 * i) for i in range(4)]
    c0 = 2.0 ** -KSH
    vZero, vOne, vXw, vXrd, vTw, vInv = vX + 5, vX + 6, vX + 7, vX + 8, vX + 9, vX + 10
    vDa, vBx, vBt, vBs, vAt, vPa, vE = vX + 12, vX + 14, vX + 15, vX + 17, vX + 18, vX + 19, vX + 20
    vSw, vSr = vX + 16, vD + 39
    pD, pS, pA, pR, pC, pB, pG = vD, vD + 4, vD + 8, vD + 12, vD + 16, vD + 20, vD + 24
    vm = []

    def younger(name):
        return len(vm) - 1 - max(i for i, x in enumerate(vm) if x == name)

    def dma_piece(S, soff, i):
        A(f"buffer_load_dwordx4 v{vDa + ((i >> 1) & 1)}, {sr(S, 4)}, s{soff} offen offset:{1024 * (i & 3)} lds")

    def loader(lo, hi):
        for g in range(lo, hi):
            A(f"s_mov_b32 m0, {L_R1 + 4096 * g}")
            A(f"s_movk_i32 s3, {4096 * (g & 7)}")
            if g == 8:
                A(f"s_mov_b64 {sr(S_W, 2)}, {sr(P_WV, 2)}")
            for i in range(4):
                dma_piece(S_W, 3, i)

    A(f"{NAME}_kernel:")
    A("s_cmp_ge_u32 s2, 256")
    A("s_cbranch_scc1 Lk2_exit")
    stamp(A, opt, 0)
    load_kernargs(A)
    A(f"""
    s_memrealtime {sr(sNon, 2)}
    s_getpc_b64 s[{sTmp}:{sTmp + 1}]
    v_lshlrev_b32 v1, 7, v0
    v_cmp_gt_u32 vcc, Lcold_code - {NAME}_kernel, v1
    s_and_saveexec_b64 {sr(sNext, 2)}, vcc
    s_cbranch_execz Lno_cpf
    global_load_dword v2, v1, s[{sTmp}:{sTmp + 1}]
    Lno_cpf:
    s_mov_b64 exec, -1
    v_mov_b32 v{vZero}, 0
    v_lshlrev_b32 v{vX + 11}, 2, v0
    ds_write_b32 v{vX + 11}, v{vZero} offset:{L_FLAG}
    ds_write_b32 v{vX + 11}, v{vZero} offset:{L_CNT}
    v_lshrrev_b32 v{vX}, 6, v0
    v_lshlrev_b32 v{vX + 2}, 4, v0
    v_readfirstlane_b32 s{sW}, v{vX}
    s_movk_i32 s3, {CH // 4}
    s_cmp_eq_u32 s2, {NCH - 1}
    s_cselect_b32 s3, {(E - (NCH - 1) * CH) // 4}, s3
    v_cmp_gt_u32_e64 {sr(sPM, 2)}, s3, v0
    s_mul_i32 s{sQ1}, s2, {CH * 4}
    s_mov_b32 s{S_DST + 2}, {E * 4}
    s_mov_b32 s{S_DST + 3}, 0x20000
    s_mov_b32 s{S_SRC + 2}, {E * 4}
    s_mov_b32 s{S_SRC + 3}, 0x20000
    s_and_b32 s3, s2, 7
    s_lshl_b32 s3, s3, 5
    s_lshr_b32 s{sBk}, s2, 3
    s_add_u32 s{sBk}, s{sBk}, s3
    s_mul_i32 s{sN0}, s{sBk}, {SM}
    s_add_u32 s{sOwn}, s{sN0}, {SM + SC}
    s_add_u32 s{sN0}, s{sN0}, {SC}
    s_lshr_b32 s{sOwn}, s{sOwn}, {SS}
    s_lshr_b32 s{sN0}, s{sN0}, {SS}
    v_mov_b32 v{vTid}, v0
    v_and_b32 v{vX + 3}, 0x3f0, v{vX + 2}
    v_bfe_u32 v{vX + 1}, v0, 4, 2
    v_lshlrev_b32 v{vX + 4}, 6, v{vX + 1}
    v_xor_b32 v{vDa}, v{vX + 3}, v{vX + 4}
    v_xor_b32 v{vDa + 1}, 32, v{vDa}
    s_lshl_b32 s{sWm}, s{sW}, 13
    s_add_u32 s{sWm + 1}, s{sWm}, 4096
    s_and_b32 s{sWo}, s{sWm}, 0x7fff
    s_add_u32 s{sWo + 1}, s{sWo}, 4096
    s_lshl_b32 s{sTmp}, s{sN0}, 8
    s_add_u32 s{sTmp + 1}, s{sTmp}, 8192
    s_mov_b64 exec, {sr(sPM, 2)}
    s_waitcnt lgkmcnt(0)
    s_cbranch_execz Lp_nold
    s_mov_b64 {sr(S_DST, 2)}, {sr(P_DST, 2)}
    s_mov_b64 {sr(S_SRC, 2)}, {sr(P_SRC, 2)}
    buffer_load_dwordx4 {vr(pD, 4)}, v{vX + 2}, {sr(S_DST, 4)}, s{sQ1} offen
    buffer_load_dwordx4 {vr(pS, 4)}, v{vX + 2}, {sr(S_SRC, 4)}, s{sQ1} offen
    Lp_nold:
    """)
    if int(opt.get("wpf", 1)):
        A(f"""
        s_cmp_lg_u32 s{sW}, 7
        s_cbranch_scc1 Lno_wpf
        s_mov_b64 exec, 0xff
        s_lshr_b32 s3, s2, 3
        s_lshl_b32 s3, s3, 10
        v_lshl_add_u32 v1, v{vX + 3}, 3, s3
        global_load_dword v3, v1, {sr(P_WB, 2)}
        global_load_dword v4, v1, {sr(P_WV, 2)}
        global_load_dword v5, v1, {sr(P_WA, 2)}
        global_load_dword v6, v1, {sr(P_WU, 2)}
        Lno_wpf:
        """)
    A("s_mov_b64 exec, -1")
    A("s_barrier")
    vm.append("dst")
    srd(A, S_DBG, P_DBG, 256)
    A(f"""
    s_xor_b32 s3, s{sW}, 7
    s_or_b32 s3, s3, s2
    s_cbranch_scc1 Lno_nonce
    s_or_b32 s3, s{sNon}, 1
    v_mov_b32 v{vNon}, s3
    v_mov_b32 v{vNon + 1}, s{sNon + 1}
    s_mov_b64 exec, 1
    buffer_store_dwordx2 {vr(vNon, 2)}, v{vZero}, {sr(S_DBG, 4)}, 0 offen sc1
    s_mov_b64 exec, -1
    Lno_nonce:
    """)
    A(f"""
    s_mov_b64 {sr(S_X, 2)}, {sr(P_X, 2)}
    s_lshl_b32 s{S_X + 2}, s{sOwn}, 8
    s_mov_b32 s{S_X + 3}, 0x20000
    s_sub_u32 s{sNn}, s{sOwn}, s{sN0}
    """)
    for i in range(2):
        A(f"buffer_load_dwordx4 {vr(vXs + 4 * i, 4)}, v{vX + 2}, {sr(S_X, 4)}, s{sTmp + i} offen")
        vm.append("x")
    A(f"""
    s_cmp_lt_u32 s{sW}, 4
    s_cselect_b32 s{S_W}, s{P_WB}, s{P_WV}
    s_cselect_b32 s{S_W + 1}, s{P_WB + 1}, s{P_WV + 1}
    s_cselect_b32 s{S_W2}, s{P_WA}, s{P_WU}
    s_cselect_b32 s{S_W2 + 1}, s{P_WA + 1}, s{P_WU + 1}
    s_mov_b32 s{S_W + 2}, 32768
    s_mov_b32 s{S_W + 3}, 0x20000
    s_mov_b32 s{S_W2 + 2}, 32768
    s_mov_b32 s{S_W2 + 3}, 0x20000
    """)
    npf0 = 0
    A(f"s_cmp_lg_u32 s{sW}, 7")
    A("s_cbranch_scc1 Lno_ld0")
    A(f"s_mov_b64 {sr(S_W, 2)}, {sr(P_WB, 2)}")
    loader(0, 2)
    A("Lno_ld0:")
    srd(A, S_WC, P_WC, 4096)
    srd(A, S_REC, P_WS, NCH * CH * 4, REC_OFF)
    srd(A, S_OFFS, P_WS, TF_OFF + (256 << TS), OFF_OFF)
    srd(A, S_TAB, P_WS, TAB_BYTES + 512, TAB_OFF)
    srd(A, S_EA, P_EA, 0 if opt.get("noea") else E * 32)
    srd(A, S_OUT, P_OUT, N * 256)
    A(f"""
    s_lshl_b32 s3, s{sN0}, 9
    s_add_u32 s{S_TW}, s{P_WS}, s3
    s_addc_u32 s{S_TW + 1}, s{P_WS + 1}, 0
    s_lshl_b32 s{S_TW + 2}, s{sNn}, 9
    s_mov_b32 s{S_TW + 3}, 0x20000
    s_mov_b32 s{sNl}, {hex(f32(NLOG2E))}
    s_mov_b32 s{sC0}, {hex(f32(c0))}
    s_mov_b32 s{sC0 + 1}, {hex(f32(c0))}
    s_mov_b32 s{sW0}, 0
    s_mov_b32 s{sQ2}, {BM}
    s_mov_b32 s{sQ3}, {-SM}
    v_mov_b32 v{vOne}, 1
    v_lshrrev_b32 v{vX + 11}, 4, v{vTid}
    v_lshl_add_u32 v{vXw}, v{vX + 11}, 4, v{vX + 2}
    v_add_u32 v{vXw}, {L_X}, v{vXw}
    v_and_b32 v{vLo}, 0x1f0, v{vX + 2}
    v_bfe_u32 v{vX + 4}, v{vTid}, 5, 1
    v_mov_b32 v{vLo + 1}, v{vLo}
    v_lshlrev_b32 v{vH16}, 4, v{vX + 4}
    s_lshr_b32 s{sTmp}, s{sW}, 2
    s_and_b32 s{sTmp + 1}, s{sW}, 3
    v_bfe_u32 v{vX + 11}, v{vTid}, 2, 2
    v_xor_b32 v{vE}, s{sTmp + 1}, v{vX + 11}
    v_lshlrev_b32 v{vE}, 6, v{vE}
    v_and_b32 v{vE + 1}, 3, v{vTid}
    v_lshl_add_u32 v{vE}, v{vE + 1}, 3, v{vE}
    v_lshl_add_u32 v{vE}, v{vX + 11}, 8, v{vE}
    v_and_b32 v{vE + 1}, 1, v{vX + 1}
    v_xor_b32 v{vE + 1}, v{vE + 1}, v{vX + 4}
    v_lshl_add_u32 v{vE}, v{vE + 1}, 5, v{vE}
    v_lshl_add_u32 v{vE}, v{vX + 4}, 11, v{vE}
    v_add_u32 v{vBt}, {L_R1}, v{vE}
    s_lshl_b32 s3, s{sTmp}, 15
    s_add_u32 s3, s3, {L_R2}
    v_add_u32 v{vAt}, s3, v{vE}
    v_and_b32 v{vX + 11}, 31, v{vTid}
    v_mul_u32_u24 v{vXrd}, 272, v{vX + 11}
    s_mov_b32 s3, {L_X}
    v_add3_u32 v{vXrd}, v{vXrd}, v{vH16}, s3
    s_mul_i32 s3, s{sTmp}, {32 * 272}
    v_add_u32 v{vBx}, s3, v{vXrd}
    s_mul_i32 s3, s{sW}, 4608
    s_add_u32 s3, s3, {L_R1}
    v_mul_u32_u24 v{vSw}, 144, v{vX + 11}
    v_add3_u32 v{vSw}, v{vSw}, v{vH16}, s3
    v_bfe_u32 v{vE}, v{vTid}, 3, 3
    v_lshl_add_u32 v{vSr}, v{vE}, 4, v{vX + 3}
    v_add_u32 v{vSr}, s3, v{vSr}
    v_and_b32 v{vE + 1}, 0x70, v{vX + 3}
    v_lshl_add_u32 v{vBs}, v{vE}, 9, v{vE + 1}
    s_lshl_b32 s3, s{sTmp}, 7
    s_add_u32 s3, s3, s{sTmp + 1}
    s_lshl_b32 s3, s3, 7
    v_add_u32 v{vBs}, s3, v{vBs}
    v_mul_u32_u24 v{vTw}, 528, v{vX + 11}
    s_mul_i32 s3, s{sTmp}, {L_TU - L_TA}
    s_lshl_b32 s{sTmp + 1}, s{sTmp + 1}, 7
    s_add_u32 s3, s3, s{sTmp + 1}
    s_add_u32 s3, s3, {L_TA}
    v_add3_u32 v{vTw}, v{vTw}, v{vH16}, s3
    v_lshrrev_b32 v{vPa}, 1, v{vTid}
    v_lshlrev_b32 v{vPa}, {3 + OB}, v{vPa}
    v_lshlrev_b32 v{vE}, 8, v{vTid}
    v_add_u32 v{vE + 1}, 64, v{vE}
    v_add_u32 v{vE + 2}, 0x80, v{vE}
    v_add_u32 v{vE + 3}, 0xc0, v{vE}
    """)
    stamp(A, opt, "iss")

    def stage_x(wait):
        A(f"s_waitcnt vmcnt({wait})")
        A(f"ds_write_b128 v{vXw}, {vr(vXs, 4)}")
        A(f"s_cmp_lt_u32 s{sW}, 5")
        A("s_cselect_b64 exec, -1, 0")
        A(f"ds_write_b128 v{vXw}, {vr(vXs + 4, 4)} offset:{32 * 272}")
        A("s_mov_b64 exec, -1")

    nonce_load = f"buffer_load_dwordx2 {vr(vNon, 2)}, v{vZero}, {sr(S_DBG, 4)}, 0 offen sc1"
    A(f"""
    s_cmp_eq_u32 s{sW}, 7
    s_cbranch_scc1 Lp_loader
    s_mov_b64 exec, {sr(sPM, 2)}
    s_waitcnt vmcnt({2 + npf0})
    """)
    stamp(A, opt, "dst")
    for i in range(4):
        A(f"v_mul_u32_u24 v{pC + i}, s{sQ2}, v{pD + i}")
    for i in range(4):
        A(f"v_lshrrev_b32 v{pC + i}, {BS}, v{pC + i}")
        A(f"v_lshlrev_b32 v{pA + i}, 2, v{pC + i}")
        A(f"ds_add_rtn_u32 v{pR + i}, v{pA + i}, v{vOne} offset:{P_CNT}")
    for i in range(4):
        A(f"v_lshl_add_u32 v{pD + i}, v{pD + i}, {SS}, {(1 << SS) - 1 - SC}")
        A(f"v_mad_i32_i24 v{pD + i}, v{pC + i}, s{sQ3}, v{pD + i}")
    A("s_mov_b64 exec, -1")
    A(f"s_cmp_eq_u32 s{sW}, 3")
    A("s_waitcnt lgkmcnt(0)")
    A("s_barrier")
    stamp(A, opt, "b2")
    A(f"""
    s_cbranch_scc0 Lp_noscan
    ds_read_b128 {vr(pC, 4)}, v{vX + 3} offset:{P_CNT}
    s_waitcnt lgkmcnt(0)
    v_add_u32 v{pB + 2}, v{pC}, v{pC + 1}
    v_add3_u32 v{pG + 1}, v{pB + 2}, v{pC + 2}, v{pC + 3}
    v_add_u32 v{pB + 3}, v{pB + 2}, v{pC + 2}
    v_mov_b32 v{pG}, v{pG + 1}
    """)
    ors = []
    for i in range(4):
        ors += [f"v_lshl_or_b32 v{pS + i}, v{pS + i}, 18, v{vE + i}", f"v_lshrrev_b32 v{pD + i}, {SS}, v{pD + i}",
                f"v_or_b32 v{pS + i}, v{pS + i}, v{pD + i}"]
    wave_scan(A, pG + 1, fill=[[]] + [ors[2 * k: 2 * k + 2] for k in range(5)])
    A(f"""
    v_sub_u32 v{pB}, v{pG + 1}, v{pG}
    v_add_u32 v{pB + 1}, v{pB}, v{pC}
    v_add_u32 v{pB + 2}, v{pB}, v{pB + 2}
    v_add_u32 v{pB + 3}, v{pB}, v{pB + 3}
    ds_write_b128 v{vX + 3}, {vr(pB, 4)} offset:{P_BASE}
    {ors[10]}
    {ors[11]}
    s_waitcnt lgkmcnt(0)
    s_barrier
    """)
    stage_x(npf0)
    A("s_branch Lp_scanned")
    A("Lp_noscan:")
    A("\n".join(ors))
    stage_x(npf0)
    A("s_barrier")
    A("Lp_scanned:")
    stamp(A, opt, "scan")
    A(f"s_mov_b64 exec, {sr(sPM, 2)}")
    for i in range(4):
        A(f"ds_read_b32 v{pA + i}, v{pA + i} offset:{P_BASE}")
    A("s_waitcnt lgkmcnt(0)")
    for i in range(4):
        A(f"v_add_lshl_u32 v{pA + i}, v{pA + i}, v{pR + i}, 2")
        A(f"ds_write_b32 v{pA + i}, v{pS + i} offset:{P_SORT}")
    A("s_mov_b64 exec, -1")
    A(nonce_load)
    A("s_waitcnt lgkmcnt(0)")
    A("s_barrier")
    stamp(A, opt, "b3")
    A(f"""
    ds_read_b128 {vr(pD, 4)}, v{vX + 2} offset:{P_SORT}
    s_mov_b64 exec, {sr(sPM, 2)}
    s_cbranch_execz Lp_out
    s_waitcnt lgkmcnt(0)
    buffer_store_dwordx4 {vr(pD, 4)}, v{vX + 2}, {sr(S_REC, 4)}, s{sQ1} offen sc1
    s_branch Lp_out
    Lp_loader:
    """)
    loader(2, ld[0])
    A("s_barrier")
    stage_x(4 * ld[0])
    loader(ld[0], ld[1])
    A("s_barrier")
    loader(ld[1], ld[2])
    A("s_barrier")
    loader(ld[2], 16)
    A(nonce_load)
    A(f"""
    s_waitcnt vmcnt(1) lgkmcnt(0)
    Lp_out:
    s_mov_b64 exec, -1
    v_lshrrev_b32 v{vX + 11}, 1, v{vX + 2}
    v_and_b32 v{vX + 11}, 0x3ff, v{vX + 11}
    ds_read_b64 {vr(pC, 2)}, v{vX + 11} offset:{P_CNT}
    ds_read_b64 {vr(pB, 2)}, v{vX + 11} offset:{P_BASE}
    s_lshl_b32 s3, s{sW}, 9
    s_add_u32 m0, s3, {L_WCR}
    s_barrier
    """)
    stamp(A, opt, "b3b")

    bB, bV, bO = 48, 64, 80

    def bv_reads(s):
        r = 12 * (s & 3)
        A(f"ds_read_b128 {vr(r + 8, 4)}, v{vBx} offset:{32 * s}")
        for m in range(2):
            for z in range(2):
                A(f"ds_read_b64_tr_b16 {vr(r + 4 * m + 2 * z, 2)}, v{vBt} offset:{m * 32768 + s * 4096 + z * 1024}")

    for s in range(3):
        bv_reads(s)
    A(f"""
    s_mov_b32 exec_hi, 0
    buffer_load_dwordx4 v{vX + 3}, {sr(S_WC, 4)}, s3 offen lds
    s_mov_b32 exec_hi, -1
    """)
    wk = int(opt.get("wk", 2))
    for s in range(8):
        r = 12 * (s & 3)
        A(f"s_waitcnt lgkmcnt({5 * min(2, 7 - s)})")
        for m in range(2):
            d = (bB, bV)[m]
            A(f"v_mfma_f32_32x32x16_bf16 {vr(d, 16)}, {vr(r + 4 * m, 4)}, {vr(r + 8, 4)}, {'0' if s == 0 else vr(d, 16)}")
        if s + 3 < 8:
            bv_reads(s + 3)
        for i in range(wk * s, min(8, wk * s + wk)):
            if i % 4 == 0:
                A(f"s_add_u32 m0, s{sWm + i // 4}, {L_R2}")
                A("s_nop 0")
            dma_piece(S_W2, sWo + (i >> 2), i)
    stamp(A, opt, "bvm")
    A(f"""
    s_mov_b32 s{sTi}, 0
    s_waitcnt vmcnt(9)
    Lnonce_check:
    v_readfirstlane_b32 s{sNon}, v{vNon}
    v_readfirstlane_b32 s{sNon + 1}, v{vNon + 1}
    s_add_u32 s{sTi}, s{sTi}, 1
    s_cmp_lg_u32 s{sNon}, 0
    s_cbranch_scc1 Lnonce_ok
    buffer_load_dwordx2 {vr(vNon, 2)}, v{vZero}, {sr(S_DBG, 4)}, 0 offen sc1
    s_cmp_lt_u32 s{sTi}, {SPIN_MAX}
    s_waitcnt vmcnt(0)
    s_cbranch_scc1 Lnonce_check
    Lnonce_ok:
    s_and_b32 s{sNon + 1}, s{sNon + 1}, 0x3ff
    s_lshl_b32 s3, s{sNon + 1}, 22
    v_lshl_or_b32 v{pG}, v{pC}, 11, v{pB}
    v_lshl_or_b32 v{pG + 2}, v{pC + 1}, 11, v{pB + 1}
    v_or_b32 v{pG}, s3, v{pG}
    v_or_b32 v{pG + 2}, s3, v{pG + 2}
    v_mov_b32 v{pG + 1}, s{sNon}
    v_mov_b32 v{pG + 3}, s{sNon}
    v_lshrrev_b32 v{vE}, {3 + OB}, v{vX + 2}
    v_and_b32 v{vE + 1}, {(8 << OB) - 1}, v{vX + 2}
    v_lshl_add_u32 v{vE}, v{vE}, {11 + OB}, v{vE + 1}
    s_lshl_b32 s3, s2, {3 + OB}
    s_cmp_ge_u32 s{sW}, 2
    s_barrier
    s_cbranch_scc1 Lno_off
    buffer_store_dwordx4 {vr(pG, 4)}, v{vE}, {sr(S_OFFS, 4)}, s3 offen sc1
    Lno_off:
    """)
    stamp(A, opt, "sig")
    for g in range(4):
        for i in range(4 * g, 4 * g + 4):
            A(f"v_fma_mixlo_f16 v{bV + i}, v{bB + i}, s{sNl}, 0")
        A(f"ds_write_b128 v{vSw}, {vr(bV + 4 * g, 4)} offset:{32 * g}")
    for i in range(4):
        A(f"ds_read_b128 {vr(bO + 4 * i, 4)}, v{vSr} offset:{1152 * i}")
    A(f"""
    s_or_b32 s3, s2, s{sW}
    s_cbranch_scc1 Lno_pad
    v_mov_b32 v{vE}, 0x7c00
    v_mov_b32 v{vE + 1}, 0x7c00
    v_lshrrev_b32 v{vE + 2}, 1, v{vX + 3}
    s_mov_b32 s3, {TAB_BYTES}
    buffer_store_dwordx2 {vr(vE, 2)}, v{vE + 2}, {sr(S_TAB, 4)}, s3 offen sc1
    Lno_pad:
    s_lshr_b32 s3, s{sBk}, {OB}
    s_lshl_b32 s3, s3, {8 + OB}
    s_and_b32 s{sQ1}, s{sBk}, {(1 << OB) - 1}
    s_add_u32 s{sQ1}, s{sQ1}, s3
    s_lshl_b32 s{sQ1}, s{sQ1}, 3
    s_mov_b32 s3, 0
    """)
    for s in range(4):
        A(f"s_waitcnt lgkmcnt({3 - s})")
        A(f"buffer_store_dwordx4 {vr(bO + 4 * s, 4)}, v{vBs}, {sr(S_TW, 4)}, s3 offen sc1")
        A("s_add_u32 s3, s3, 4096")
    A(f"""
    s_cmp_ge_u32 s{sW}, 2
    s_cbranch_scc1 Lwau_0
    s_waitcnt vmcnt(5)
    s_branch Lwau_1
    Lwau_0:
    s_waitcnt vmcnt(4)
    Lwau_1:
    s_barrier
    """)
    for s in range(4):
        for z in range(2):
            A(f"ds_read_b64_tr_b16 {vr(vWf + 4 * s + 2 * z, 2)}, v{vAt} offset:{s * 4096 + z * 1024}")
        A(f"ds_read_b128 {vr(vXf + 4 * s, 4)}, v{vXrd} offset:{32 * s}")
    stamp(A, opt, "bve")
    if opt.get("notab"):
        A(f"s_mov_b32 s{S_TAB + 2}, 0")
    poll = f"buffer_load_dwordx2 {vr(vOffs, 2)}, v{vPa}, {sr(S_OFFS, 4)}, s{sQ1} offen sc1"

    for k in range(16):
        nb, s = k >> 3, k & 7
        if k == poll_at:
            A(poll)
        A(f"s_waitcnt lgkmcnt({9 if k < 5 else (7, 5, 3)[k - 5] if k < 8 else min(3, 15 - k)})")
        cc = "0" if s == 0 else vr(vG + 16 * nb, 16)
        A(f"v_mfma_f32_32x32x16_bf16 {vr(vG + 16 * nb, 16)}, {vr(vWf + 4 * s, 4)}, {vr(vXf + 4 * (k & 7), 4)}, {cc}")
        kn = k + 4
        if kn < 8:
            for z in range(2):
                A(f"ds_read_b64_tr_b16 {vr(vWf + 4 * kn + 2 * z, 2)}, v{vAt} offset:{kn * 4096 + z * 1024}")
        if kn < 16:
            A(f"ds_read_b128 {vr(vXf + 4 * (kn & 7), 4)}, v{vXrd} offset:{32 * 272 * (kn >> 3) + 32 * (kn & 7)}")
    if poll_at >= 16:
        A(poll)
    vId = 64
    A(f"""
    s_cmp_lt_u32 s{sW}, 4
    s_cbranch_scc1 Lno_ident
    s_and_b32 s3, s{sW}, 3
    s_lshl_b32 s3, s3, 6
    v_add_u32 v{vX + 11}, s3, v{vXrd}
    """)
    for nb in range(2):
        for z in range(2):
            A(f"ds_read_b128 {vr(vXf + 8 * nb + 4 * z, 4)}, v{vX + 11} offset:{32 * 272 * nb + 32 * z}")
    A(f"""
    v_lshrrev_b32 v{vX + 11}, 4, v{vLo}
    v_lshrrev_b32 v{vX + 12}, 1, v{vH16}
    v_sub_u32 v{vX + 11}, v{vX + 11}, v{vX + 12}
    v_and_b32 v{vX + 12}, 1, v{vX + 11}
    v_lshlrev_b32 v{vX + 12}, 4, v{vX + 12}
    v_mov_b32 v{vX + 13}, 0x3f80
    v_lshlrev_b32 v{vX + 12}, v{vX + 12}, v{vX + 13}
    v_ashrrev_i32 v{vX + 11}, 1, v{vX + 11}
    """)
    for i in range(8):
        A(f"v_cmp_eq_u32_e64 {sr((sTmp, sNext)[i & 1], 2)}, {8 * (i >> 2) + (i & 3)}, v{vX + 11}")
        if i:
            A("s_nop 0")
            A(f"v_cndmask_b32_e64 v{vId + i - 1}, 0, v{vX + 12}, {sr((sTmp, sNext)[(i - 1) & 1], 2)}")
    A("s_nop 0")
    A(f"v_cndmask_b32_e64 v{vId + 7}, 0, v{vX + 12}, {sr(sNext, 2)}")
    A("s_waitcnt lgkmcnt(0)")
    for z in range(2):
        for nb in range(2):
            A(f"v_mfma_f32_32x32x16_bf16 {vr(vG + 16 * nb, 16)}, {vr(vId + 4 * z, 4)}, {vr(vXf + 8 * nb + 4 * z, 4)}, {vr(vG + 16 * nb, 16)}")
    A("Lno_ident:")
    stamp(A, opt, "aum")

    def tag_wait(name, v, reload):
        A(f"""
        s_mov_b32 s{sTi}, 0
        L{name}_check:
        v_lshrrev_b32 v{vX + 11}, 22, v{v}
        v_cmp_ne_u32_e64 {sr(sTmp, 2)}, s{sNon}, v{v + 1}
        v_cmp_ne_u32 vcc, s{sNon + 1}, v{vX + 11}
        s_add_u32 s{sTi}, s{sTi}, 1
        s_or_b64 vcc, vcc, {sr(sTmp, 2)}
        s_cbranch_scc0 L{name}_ok
        {reload}
        s_cmp_lt_u32 s{sTi}, {SPIN_MAX}
        s_waitcnt vmcnt(0)
        s_cbranch_scc1 L{name}_check
        L{name}_ok:
        """)

    def batch_masks(window):
        A(f"""
        v_bfe_u32 v{vX}, v{vOffs}, 11, 11
        v_and_b32 v{vX + 1}, 1, v{vTid}
        v_subrev_u32 v{vX}, s{sW0}, v{vX}
        v_lshlrev_b32 v{vX + 1}, 2, v{vX + 1}
        v_cmp_lt_i32_e64 {sr(sMore, 2)}, {window}, v{vX}
        v_sub_u32 v{vX}, v{vX}, v{vX + 1}
        """)
        for i in range(window // 2):
            A(f"v_cmp_lt_i32_e64 {sr((cand + cand2)[i][5], 2)}, {(i & 3) + 8 * (i >> 2)}, v{vX}")

    def rec_addr():
        A(f"""
        v_lshrrev_b32 v{vX + 2}, 1, v{vTid}
        v_and_b32 v{vX + 1}, 1, v{vTid}
        v_mul_u32_u24 v{vX + 2}, {CH}, v{vX + 2}
        v_lshl_add_u32 v{vX + 1}, v{vX + 1}, 2, s{sW0}
        v_add_u32 v{vX + 1}, v{vX + 1}, v{vX + 2}
        v_lshlrev_b32 v{vX + 2}, 5, v{vX + 2}
        """)
        for i in range(0, 8, 2):
            A(f"v_mov_b64 {vr(vKey + i, 2)}, 0")

    def rec_loads(both=True):
        A(f"""
        v_and_b32 v{vX + 4}, 0x7ff, v{vOffs}
        v_add_lshl_u32 v{vX + 4}, v{vX + 4}, v{vX + 1}, 2
        buffer_load_dwordx4 {vr(vRec, 4)}, v{vX + 4}, {sr(S_REC, 4)}, 0 offen sc1
        """)
        if both:
            A(f"buffer_load_dwordx4 {vr(vRec + 4, 4)}, v{vX + 4}, {sr(S_REC, 4)}, 0 offen offset:32 sc1")

    def histogram(cs):
        for rec, key, rank, so_, eo_, m in cs:
            A(f"s_mov_b64 exec, {sr(m, 2)}")
            A(f"v_alignbit_b32 v{key}, v{rec}, v{rec}, 27")
            A(f"v_and_b32 v{key}, 0x7fc, v{key}")
            A(f"ds_add_rtn_u32 v{rank}, v{key}, v{vOne} offset:{L_CNT}")
        A("s_mov_b64 exec, -1")

    def place(cs):
        for rec, key, rank, so_, eo_, m in cs:
            A(f"s_mov_b64 exec, {sr(m, 2)}")
            A(f"v_lshl_add_u32 v{key}, v{rank}, 3, v{key}")
            A(f"ds_write2_b32 v{key}, v{rec}, v{vX + 2} offset0:0 offset1:1")
        A("s_mov_b64 exec, -1")

    rec_addr()
    A("s_waitcnt vmcnt(1)")
    A("s_barrier")
    stamp(A, opt, "b5")
    A(f"""
    s_cmp_lg_u32 s{sW}, 7
    s_cbranch_scc1 Lno_tf
    s_lshl_b32 s{sTmp + 1}, s2, {TS}
    s_add_u32 s{sTmp + 1}, s{sTmp + 1}, {TF_OFF}
    s_mov_b64 exec, 1
    buffer_store_dwordx2 {vr(pG, 2)}, v{vZero}, {sr(S_OFFS, 4)}, s{sTmp + 1} offen sc1
    s_mov_b64 exec, -1
    s_waitcnt vmcnt(1)
    s_branch Ltf_sent
    Lno_tf:
    s_waitcnt vmcnt(0)
    Ltf_sent:
    """)
    tag_wait("off", vOffs, poll)
    stamp(A, opt, "off")
    rmask = int(opt.get("rmask", 1))
    rec_loads(not rmask)
    batch_masks(24)
    if rmask:
        A(f"""
        s_mov_b64 exec, {sr(cand[4][5], 2)}
        s_cbranch_execz Lno_rec1
        buffer_load_dwordx4 {vr(vRec + 4, 4)}, v{vX + 4}, {sr(S_REC, 4)}, 0 offen offset:32 sc1
        Lno_rec1:
        s_mov_b64 exec, -1
        """)
    tf_poll = f"buffer_load_dwordx2 {vr(vTf, 2)}, v{vPa}, {sr(S_OFFS, 4)}, s{sQ1} offen sc1"
    vRaw = vD
    A(f"""
    s_cmp_eq_u64 {sr(sMask2, 2)}, 0
    s_cbranch_scc1 Lno_rec2
    buffer_load_dwordx4 {vr(cand2[0][0], 4)}, v{vX + 4}, {sr(S_REC, 4)}, 0 offen offset:64 sc1
    v_mov_b64 {vr(cand2[0][1], 2)}, 0
    v_mov_b64 {vr(cand2[2][1], 2)}, 0
    Lno_rec2:
    v_lshrrev_b32 v{vPa}, 1, v{vLo}
    {f'v_lshlrev_b32 v{vPa}, {TS - 3}, v{vPa}' if TS > 3 else ''}
    """)

    def wc_reads():
        A(f"""
        v_lshrrev_b32 v{vX + 11}, 1, v{vLo}
        v_lshl_add_u32 v{vX + 11}, v{vH16}, 7, v{vX + 11}
        v_add_u32 v{vX + 11}, {L_WCR}, v{vX + 11}
        """)
        for i in range(8):
            A(f"ds_read_b64 {vr(vRaw + 2 * i, 2)}, v{vX + 11} offset:{256 * i}")

    def wc_fragments():
        A("s_mov_b32 s3, 0x05040100")
        A(f"s_mov_b32 s{sTmp}, 0x07060302")
        for j in range(4):
            for i in range(4):
                A(f"v_perm_b32 v{vWC + 4 * j + i}, v{vRaw + 2 * (2 * i + 1) + (j >> 1)}, v{vRaw + 2 * (2 * i) + (j >> 1)}, "
                  f"s{(3, sTmp)[j & 1]}")

    A(f"""
    s_lshl_b32 s{sQ1}, s{sW}, {5 + TS}
    s_add_u32 s{sQ1}, s{sQ1}, {TF_OFF}
    s_mov_b64 vcc, {sr(sMore, 2)}
    s_cmp_ge_u32 s{sW}, 4
    s_cbranch_scc1 Lu_wave
    v_mov_b32 v{vXs + 2}, 0
    """)
    row_mask = "s_mov_b32 exec_lo, 0xfffff\ns_mov_b32 exec_hi, 0xfffff"
    for i in range(0, 32, 2):
        if i == 16:
            A(row_mask)
        A(f"v_max3_f32 v{vXs + 2}, |v{vG + i}|, |v{vG + i + 1}|, v{vXs + 2}")
    A("s_mov_b64 exec, -1")
    A(f"v_cmp_lt_f32 vcc, {hex(f32(AMAX))}, v{vXs + 2}")
    A(f"s_or_b64 vcc, vcc, {sr(sMore, 2)}")

    def node_rows():
        for nb in range(2):
            if nb == 1:
                A(row_mask)
            for g in range(4):
                A(f"ds_write_b128 v{vTw}, {vr(vG + 16 * nb + 4 * g, 4)} offset:{32 * 528 * nb + 32 * g}")
        A("s_mov_b64 exec, -1")

    def node_exponents():
        A(f"""
        v_mov_b32 v{vXs}, {hex(f32(-float(KSH)))}
        v_mov_b32 v{vXs + 1}, {hex(f32(-float(KSH)))}
        s_mov_b32 s{sTmp}, s{sNl}
        s_mov_b32 s{sTmp + 1}, s{sNl}
        """)
        for i in range(0, 32, 2):
            A(f"v_pk_fma_f32 {vr(vG + i, 2)}, {vr(vG + i, 2)}, {sr(sTmp, 2)}, {vr(vXs, 2)}")

    A("Lu_wave:")
    A("s_mov_b64 exec, vcc")
    A(f"ds_write_b32 v{vZero}, v{vOne} offset:{L_FLAG}")
    A("s_mov_b64 exec, -1")
    late_tf = int(opt.get("late_tf", 2))
    if late_tf < 2:
        A(tf_poll)
    la = vSoff
    A(f"""
    s_mul_i32 s{sSW}, s{sW}, {STRW}
    s_add_u32 s{sSW}, s{sSW}, {L_STR}
    v_add_u32 v{vSp}, s{sSW}, v{vH16}
    v_bfe_u32 v{vX + 12}, v{vTid}, 3, 2
    v_bfe_u32 v{vX + 13}, v{vTid}, 1, 1
    v_lshl_add_u32 v{vX + 12}, v{vX + 12}, 1, v{vX + 13}
    v_bfe_u32 v{vX + 13}, v{vTid}, 2, 1
    v_lshl_add_u32 v{vX + 12}, v{vX + 12}, 1, v{vX + 13}
    v_and_b32 v{vX + 13}, 1, v{vTid}
    v_lshl_add_u32 v{vX + 12}, v{vX + 12}, 1, v{vX + 13}
    v_lshl_add_u32 v{vEp}, v{vX + 12}, 2, s{sSW}
    v_bfrev_b32 v{vX + 13}, 2
    v_mov_b32 v{vX + 12}, {N << 18}
    v_lshlrev_b32 v{la}, 1, v{vX + 3}
    v_lshlrev_b32 v{la + 1}, 3, v{vX + 3}
    v_lshrrev_b32 v{la + 2}, 4, v{vX + 3}
    v_lshl_add_u32 v{la + 3}, v{la + 2}, 2, s{sSW}
    """)
    A(f"s_waitcnt vmcnt({1 if late_tf < 2 else 0})")
    stamp(A, opt, "rec")
    histogram(cand)
    A(f"s_cmp_eq_u64 {sr(sMask2, 2)}, 0")
    A("s_cbranch_scc1 Lno_hist2")
    histogram(cand2)
    A("Lno_hist2:")
    A("s_waitcnt vmcnt(0)")
    stamp(A, opt, "hist")
    epf = int(opt.get("epf", 2500))
    assert not (late_tf and pf_lanes)
    if late_tf == 2:
        A(tf_poll)
    elif late_tf:
        A(f"""
        v_lshrrev_b32 v{vX + 11}, 22, v{vTf}
        v_cmp_ne_u32_e64 {sr(sTmp, 2)}, s{sNon}, v{vTf + 1}
        v_cmp_ne_u32 vcc, s{sNon + 1}, v{vX + 11}
        s_or_b64 {sr(sMore, 2)}, vcc, {sr(sTmp, 2)}
        s_cbranch_scc0 Ltf_seen
        {tf_poll}
        Ltf_seen:
        """)
    else:
        tag_wait("tf", vTf, tf_poll)

    def early_features():
        A(f"s_mov_b32 s3, {epf << 18}")
        for rec, key_, rank, so_, eo_, m in cand[:4]:
            A(f"v_cmp_gt_u32 vcc, s3, v{rec}")
            A(f"v_bfe_u32 v{eo_}, v{rec}, 6, 12")
            A(f"v_lshl_add_u32 v{eo_}, v{eo_}, 5, v{vX + 2}")
            A(f"s_and_b64 vcc, vcc, {sr(m, 2)}")
            A("s_or_b64 exec, vcc, 1")
            A(f"buffer_load_dword v{vL + 22}, v{eo_}, {sr(S_EA, 4)}, 0 offen")
            A("s_mov_b64 exec, -1")

    if epf:
        early_features()
    A("s_waitcnt lgkmcnt(0)")
    A("s_barrier")
    stamp(A, opt, "bB")
    c, p, deg, q, inc, g4 = vL, vL + 8, vL + 16, vL + 17, vL + 18, vL + 19
    A(f"ds_read_b128 {vr(c, 4)}, v{la} offset:{L_CNT}")
    A(f"ds_read_b128 {vr(c + 4, 4)}, v{la} offset:{L_CNT + 16}")
    if pf_lanes:
        A(f"""
        s_andn2_b32 s3, s2, 7
        s_add_u32 s3, s3, s{sW}
        s_mul_i32 s3, s3, {pf_lanes * 128}
        {'s_nop 0' if pf_lanes == 64 else f's_bfm_b64 exec, {pf_lanes}, 0'}
        buffer_load_dword v{vL + 22}, v{la + 1}, {sr(S_TAB, 4)}, s3 offen {tab_pol}
        s_mov_b64 exec, -1
        """)
    A(f"""
    s_mov_b32 s{sQ2}, {L_SO}
    s_waitcnt lgkmcnt(1)
    v_add_u32 v{p + 2}, v{c}, v{c + 1}
    v_add3_u32 v{p + 4}, v{p + 2}, v{c + 2}, v{c + 3}
    s_waitcnt lgkmcnt(0)
    v_add3_u32 v{p + 6}, v{p + 4}, v{c + 4}, v{c + 5}
    v_add3_u32 v{deg}, v{p + 6}, v{c + 6}, v{c + 7}
    v_add_u32 v{q}, 3, v{deg}
    v_lshrrev_b32 v{inc}, 2, v{q}
    """)
    wave_scan(A, inc, fill=[
        [f"v_lshrrev_b32 v{q}, 2, v{q}", f"v_add_u32 v{p + 3}, v{p + 2}, v{c + 2}"],
        [f"v_add_u32 v{p + 5}, v{p + 4}, v{c + 4}", f"v_add_u32 v{p + 7}, v{p + 6}, v{c + 6}"],
        [f"v_add_u32 v{deg}, s{sW}, v{deg}", f"v_lshlrev_b32 v{c + 1}, 2, v{q}"],
        [f"v_cmp_lt_u32_e64 {sr(sNext, 2)}, v{deg}, v{c + 1}", "s_nop 0"]])
    A(f"v_sub_u32 v{g4}, v{inc}, v{q}")
    A(f"v_readlane_b32 s3, v{inc}, 63")
    A(f"v_lshl_add_u32 v{p}, v{g4}, 5, s{sQ2}")
    A(f"v_lshl_add_u32 v{p + 1}, v{c}, 3, v{p}")
    for i in range(2, 8):
        A(f"v_lshl_add_u32 v{p + i}, v{p + i}, 3, v{p}")
        if i in (3, 7):
            A(f"ds_write_b128 v{la}, {vr(p + i - 3, 4)} offset:{L_BASE + 4 * (i - 3)}")
    for cd in cand:
        A(f"ds_read_b32 v{cd[1]}, v{cd[1]} offset:{L_BASE}")
    A(f"""
    s_mul_i32 s{sLw}, s3, s{sW}
    s_add_u32 s{sRem}, s{sLw}, s3
    s_lshr_b32 s{sLw}, s{sLw}, 3
    s_lshr_b32 s{sRem}, s{sRem}, 3
    v_cmp_gt_u32_e64 {sr(sTmp, 2)}, s{sLw}, v{g4}
    v_cmp_gt_u32 vcc, s{sRem}, v{g4}
    v_lshl_add_u32 v{deg}, v{deg}, 3, v{p}
    s_bcnt1_i32_b64 s{sF0}, {sr(sTmp, 2)}
    s_bcnt1_i32_b64 s{sOwn}, vcc
    s_cmp_eq_u32 s{sW}, 7
    s_cselect_b32 s{sOwn}, s{sNn}, s{sOwn}
    s_sub_u32 s{sOwn}, s{sOwn}, s{sF0}
    s_sub_u32 s{sRem}, s{sRem}, s{sLw}
    s_waitcnt lgkmcnt(0)
    """)
    stamp(A, opt, "scan2")
    place(cand)
    A(f"s_cmp_eq_u64 {sr(sMask2, 2)}, 0")
    A("s_cbranch_scc1 Lno_place2")
    for cd in cand2:
        A(f"ds_read_b32 v{cd[1]}, v{cd[1]} offset:{L_BASE}")
    A("s_waitcnt lgkmcnt(0)")
    place(cand2)
    A("Lno_place2:")
    en, so, eo, key, cn, pos, t = vL, vL + 8, vL + 12, vL + 20, vL + 24, vL + 21, vL + 26
    A(f"""
    s_mov_b64 exec, {sr(sNext, 2)}
    ds_write_b64 v{deg}, {vr(vX + 12, 2)}
    s_mov_b64 exec, -1
    """)
    if late_tf:
        if late_tf < 2:
            A(f"s_cmp_eq_u64 {sr(sMore, 2)}, 0")
            A("s_cbranch_scc1 Ltf_ok")
        A(f"s_waitcnt vmcnt({4 if epf else 0})")
        tag_wait("tf", vTf, tf_poll)
    A(f"""
    s_sub_u32 s3, s{sOwn}, 1
    s_sub_u32 s{sTmp}, s{sRem}, 1
    s_cmp_gt_u32 s{sTmp}, 63
    s_cselect_b32 s3, 8, s3
    s_cmp_gt_u32 s3, 7
    s_cselect_b64 exec, 1, 0
    ds_write_b32 v{vZero}, v{vOne} offset:{L_FLAG}
    s_mov_b64 exec, -1
    s_lshl_b32 s3, s{sLw}, 5
    v_add_u32 v{t}, s3, v{la}
    v_cmp_le_u32_e64 {sr(sTmp, 2)}, s{sRem}, v{la + 2}
    s_sub_u32 s{sQ1}, s{sF0}, 1
    s_mul_i32 s{sQ2}, s{sQ1}, 528
    s_add_u32 s{sQ2}, s{sQ2}, {L_TA}
    s_mov_b32 s{sQ3}, 0xfffffe00
    s_waitcnt lgkmcnt(0)
    s_barrier
    ds_read_b128 {vr(en, 4)}, v{t} offset:{L_SO}
    ds_read_b32 v{t + 3}, v{vZero} offset:{L_FLAG}
    ds_read_b128 {vr(en + 4, 4)}, v{t} offset:{L_SO + 16}
    v_cndmask_b32_e64 v{vInv}, 0, v{vX + 13}, {sr(sTmp, 2)}
    v_add_u32 v{vEb}, s{sQ2}, v{vLo}
    v_mov_b64 {vr(cn, 2)}, 1
    s_waitcnt lgkmcnt(2)
    v_lshrrev_b32 v{key}, 26, v{en + 2}
    v_and_b32 v{key}, 56, v{key}
    v_cndmask_b32_e64 v{key}, v{key}, 56, {sr(sTmp, 2)}
    s_waitcnt lgkmcnt(1)
    v_readfirstlane_b32 s3, v{t + 3}
    v_lshlrev_b64 {vr(cn, 2)}, v{key}, {vr(cn, 2)}
    v_and_b32 v{t + 3}, 63, v{en}
    s_cmp_lg_u32 s3, 0
    s_cbranch_scc1 Lslow_entry
    s_waitcnt lgkmcnt(0)
    """)
    stamp(A, opt, "bD")
    fillers = [f"v_subrev_u32 v{t + 3}, s{sQ1}, v{t + 3}", f"v_mul_u32_u24 v{t + 3}, 12, v{t + 3}"]
    fillers += [f"v_lshrrev_b32 v{so + i}, 9, v{en + 2 * i}" for i in range(4)]
    for k, d in enumerate(WAVE_SCAN):
        A(f"v_add_u32_dpp v{cn}, v{cn}, v{cn} {d} bank_mask:0xf")
        A(f"v_add_u32_dpp v{cn + 1}, v{cn + 1}, v{cn + 1} {d} bank_mask:0xf")
        A(fillers[k])
    A(f"v_readlane_b32 s{sTmp}, v{cn}, 63")
    A(f"v_readlane_b32 s{sTmp + 1}, v{cn + 1}, 63")
    for i in range(4):
        A(f"v_bfe_u32 v{eo + i}, v{en + 2 * i}, 6, 12")
    A(f"""
    s_mul_i32 s3, s{sTmp}, 0x01010101
    s_mul_i32 s{sTmp + 1}, s{sTmp + 1}, 0x01010100
    s_lshl_b32 s{sTmp}, s3, 8
    s_lshr_b32 s3, s3, 24
    s_mul_i32 s3, s3, 0x01010101
    s_add_u32 s{sTmp + 1}, s{sTmp + 1}, s3
    v_lshl_add_u64 {vr(cn, 2)}, {vr(cn, 2)}, 0, {sr(sTmp, 2)}
    s_sub_u32 s3, s{sSW}, 16
    v_lshrrev_b64 {vr(cn, 2)}, v{key}, {vr(cn, 2)}
    """)
    for i in range(4):
        A(f"v_lshl_add_u32 v{eo + i}, v{eo + i}, 5, v{en + 2 * i + 1}")
    A(f"v_and_b32 v{pos}, 0xff, v{cn}")
    for i in range(4):
        A(f"v_or_b32 v{eo + i}, v{eo + i}, v{vInv}")
    A(f"v_lshl_add_u32 v{t}, v{pos}, 4, s3")
    A(f"ds_write_b128 v{t}, {vr(eo, 4)} offset:1152")
    A(f"ds_read_b32 v{vEo}, v{vEp} offset:1152")
    for i in range(4):
        A(f"v_and_or_b32 v{so + i}, v{so + i}, s{sQ3}, v{vInv}")
    A(f"""
    v_and_b32 v{t + 1}, 1, v{pos}
    v_lshl_add_u32 v{t + 1}, v{t + 1}, 3, v{t}
    v_subrev_u32 v{t + 1}, 8, v{t + 1}
    ds_write2_b64 v{t + 1}, {vr(so, 2)}, {vr(so + 2, 2)} offset0:0 offset1:2
    ds_read_b128 {vr(vSo, 4)}, v{vSp}
    ds_read_b128 {vr(vT, 4)}, v{vSp} offset:32
    v_add_u32 v{t + 2}, s{sSW}, v{pos}
    ds_write_b8 v{t + 2}, v{t + 3} offset:2303
    ds_read_b32 v{vSb}, v{la + 3} offset:2304
    s_waitcnt lgkmcnt(5)
    v_add_u32 v{vEo}, v{vEo}, v{vH16}
    buffer_load_dwordx4 {vr(vEA, 4)}, v{vEo}, {sr(S_EA, 4)}, 0 offen {ea_pol}
    """)
    for u in range(4):
        src = (vSo, vSo + 2, vT, vT + 2)[u]
        if u in (0, 2):
            A(f"s_waitcnt lgkmcnt({(3, 1)[u // 2]})")
        A(f"v_lshl_add_u64 {vr(src, 2)}, {vr(src, 2)}, 0, {vr(vLo, 2)}")
        A(f"buffer_load_dwordx4 {vr(vL + 8 * u, 4)}, v{src}, {sr(S_TAB, 4)}, 0 offen {tab_pol}")
        A(f"buffer_load_dwordx4 {vr(vL + 8 * u + 4, 4)}, v{src + 1}, {sr(S_TAB, 4)}, 0 offen {tab_pol}")
    stamp(A, opt, "prim")
    eps = 1e-6 / c0
    wc_reads()
    A(f"s_and_b32 s3, s{sW}, 4")
    A(f"v_mov_b32 v{vEad}, s3")
    A("s_cbranch_scc1 Lfactors_made")
    node_exponents()
    for i in range(32):
        A(f"v_exp_f32 v{vG + i}, v{vG + i}")
    A("Lfactors_made:")
    node_rows()
    A(f"""
    s_mov_b64 exec, 1
    ds_add_u32 v{vEad}, v{vOne} offset:{L_FLAG + 8}
    s_mov_b64 exec, -1
    s_waitcnt lgkmcnt(9)
    """)
    wc_fragments()
    A(f"""
    s_waitcnt lgkmcnt(0)
    s_mov_b32 s{sTmp}, {hex(f32(eps / 2))}
    s_mov_b32 s{sTmp + 1}, {hex(f32(eps / 2))}
    """)
    for sl_ in range(NS):
        for j in range(0, 8, 2):
            A(f"v_mov_b64 {vr(vSl + 12 * sl_ + j, 2)}, {sr(sTmp, 2) if sl_ and j >= 4 else 0}")
    A("Lfactors:")
    A(f"ds_read_b32 v{vEad}, v{vZero} offset:{L_FLAG + 8}")
    for sl_ in range(NS):
        A(f"ds_read_b128 {vr(vSl + 12 * sl_ + 8, 4)}, v{vEb} offset:{528 * sl_}")
    A("s_waitcnt lgkmcnt(0)")
    A(f"v_cmp_gt_u32 vcc, 4, v{vEad}")
    A("s_cbranch_vccnz Lfactors")
    ea_at = int(opt.get("ea_at", 3))
    prio = opt.get("prio", "alt")
    A(f"""
    s_waitcnt lgkmcnt(0)
    v_readlane_b32 s{sSl0}, v{vSb}, 0
    v_readlane_b32 s{sSl1}, v{vSb}, 1
    s_mov_b32 s{sLn}, 2
    s_mov_b32 s{sLn + 1}, 3
    """)
    if prio == "quart":
        A(f"""
        s_mul_i32 s{sQ1}, s{sRem}, 3
        s_lshr_b32 s{sQ1}, s{sQ1}, 2
        s_lshr_b32 s{sQ2}, s{sRem}, 1
        s_lshr_b32 s{sQ3}, s{sRem}, 2
        """)
    else:
        first_drop = [int(x) for x in opt.get("drop", "8,16").split(",")]
        A(f"""
        s_cmp_lt_u32 s{sW}, 4
        s_cselect_b32 s3, {first_drop[0]}, {first_drop[1]}
        s_sub_i32 s{sQ1}, s{sRem}, s3
        s_sub_i32 s{sQ2}, s{sQ1}, 16
        s_sub_i32 s{sQ3}, s{sQ2}, 16
        """)
    A("s_setprio 3")
    A("s_waitcnt vmcnt(8)")
    stamp(A, opt, "first")

    def mfma(j):
        return f"v_mfma_f32_32x32x16_bf16 {vr(vD + 16 * j, 16)}, {vr(vEA, 4)}, {vr(vWC + 4 * j, 4)}, 0"

    for j in range(4):
        A(mfma(j))
    A("s_nop 8")
    A(f"s_cmp_gt_u32 s{sRem}, 8")
    A("s_cbranch_scc0 Llast")

    def step(u, last, q):
        La, Lb = vL + 8 * (u & 3), vL + 8 * (u & 3) + 4
        a, b = vT, vT + 4
        sl = (sSl0, sSl1)[u >> 2]
        prefetch = not (last and u >= 4)
        need = [u] + (["E"] if u == 7 and not last else [])
        A(f"s_waitcnt vmcnt({len(q) - 1 - max(i for i, x in enumerate(q) if x in need)})")
        lds = (prefetch and u % 2 == 0) or (u == ea_at and not last)
        if prefetch and u % 2 == 0:
            A(f"ds_read_b128 {vr(vSo, 4)}, v{vSp} offset:{16 * (u + 4)}")
        if u == ea_at and not last:
            A(f"ds_read_b32 v{vEo}, v{vEp} offset:{1152 + 128}")

        def mix(j, hb):
            return (f"v_fma_mix_f32 v{(a, b)[hb] + j}, v{vD + 16 * j + 2 * u + hb}, s{sNl}, v{(La, Lb)[hb] + j} "
                    "op_sel_hi:[0,0,1]")

        if u == 7 and not last:
            for j in range(4):
                A(mix(j, 0))
                A(mix(j, 1))
                if j:
                    A(f"v_exp_f32 v{a + j - 1}, v{a + j - 1}")
                    A(f"v_exp_f32 v{b + j - 1}, v{b + j - 1}")
                A(mfma(j))
            A(f"v_exp_f32_e64 v{a + 3}, v{a + 3}")
            A(f"v_exp_f32 v{b + 3}, v{b + 3}")
        else:
            for hb in range(2):
                for j in range(4):
                    A(mix(j, hb))
            for j in range(8):
                A(f"v_exp_f32{'_e64' if j == 0 and not lds else ''} v{a + j}, v{a + j}")
        if lds:
            A("s_waitcnt lgkmcnt(0)")
        A(f"s_set_gpr_idx_on s{sl}, gpr_idx(SRC1)")
        for j in range(0, 8, 2):
            A(f"v_pk_fma_f32 {vr(a + j, 2)}, {vr(a + j, 2)}, {vr(vSl + 8 + (j & 3), 2)}, {sr(sC0, 2)} clamp")
        A("s_set_gpr_idx_mode gpr_idx()")
        A(f"s_lshr_b32 s{sl}, s{sl}, 8")
        if u == ea_at and not last:
            A(f"v_add_u32_e64 v{vEo}, v{vEo}, v{vH16}")
            A(f"buffer_load_dwordx4 {vr(vEA, 4)}, v{vEo}, {sr(S_EA, 4)}, 0 offen {ea_pol}")
            q.append("E")
        for j in (0, 2):
            A(f"v_pk_mul_f32 {vr(La + j, 2)}, {vr(La + j, 2)}, {vr(b + j, 2)}")
        so2 = vSo + 2 * (u & 1)
        if prefetch:
            A(f"v_lshl_add_u64 {vr(so2, 2)}, {vr(so2, 2)}, 0, {vr(vLo, 2)}")
        for j in (0, 2):
            A(f"v_pk_fma_f32 {vr(La + j, 2)}, {vr(Lb + j, 2)}, {vr(a + j, 2)}, {vr(La + j, 2)}")
        for j in (0, 2):
            A(f"v_pk_add_f32 {vr(Lb + j, 2)}, {vr(a + j, 2)}, {vr(b + j, 2)}")
        for j in (0, 2):
            A(f"v_pk_mul_f32 {vr(a + j, 2)}, {vr(a + j, 2)}, {vr(b + j, 2)}")
        for j in range(4):
            A(f"v_rcp_f32{'_e64' if j == 0 else ''} v{a + j}, v{a + j}")
        A("s_set_gpr_idx_mode gpr_idx(SRC2,DST)")
        for j in (0, 2):
            A(f"v_pk_fma_f32 {vr(vSl + j, 2)}, {vr(La + j, 2)}, {vr(a + j, 2)}, {vr(vSl + j, 2)}")
            A(f"v_pk_fma_f32 {vr(vSl + 4 + j, 2)}, {vr(Lb + j, 2)}, {vr(a + j, 2)}, {vr(vSl + 4 + j, 2)}")
        if prefetch:
            A(f"buffer_load_dwordx4 {vr(La, 4)}, v{so2}, {sr(S_TAB, 4)}, 0 offen {tab_pol}")
            A(f"buffer_load_dwordx4 {vr(Lb, 4)}, v{so2 + 1}, {sr(S_TAB, 4)}, 0 offen {tab_pol}")
            q += [u + 4] * 2
        A("s_set_gpr_idx_off")

    assert 0 <= ea_at < 7
    A(".p2align 6")
    A("Ltile:")
    A(f"s_sub_u32 s{sRem}, s{sRem}, 8")
    q = [0, 0, 1, 1, 2, 2, 3, 3]
    for u in range(8):
        step(u, False, q)
    A(f"""
    s_nop 0
    v_readlane_b32 s{sSl0}, v{vSb}, s{sLn}
    v_readlane_b32 s{sSl1}, v{vSb}, s{sLn + 1}
    v_add_u32 v{vSp}, 0x80, v{vSp}
    v_add_u32 v{vEp}, 0x80, v{vEp}
    s_add_u32 s{sLn}, s{sLn}, 2
    s_add_u32 s{sLn + 1}, s{sLn + 1}, 2
    """)
    if opt.get("tilestamps"):
        for k in range(2, 6):
            A(f"s_cmp_lg_u32 s{sLn}, {2 * k + 2}")
            A(f"s_cbranch_scc1 Lts{k}")
            stamp(A, opt, f"tile{k}")
            A(f"Lts{k}:")
    if prio != "none":
        for k, sq in enumerate((sQ1, sQ2, sQ3)):
            A(f"s_cmp_le_i32 s{sRem}, s{sq}")
            A("s_cbranch_scc0 Lprio_done")
            A(f"s_setprio {2 - k}")
        A("Lprio_done:")
    A(f"s_cmp_gt_u32 s{sRem}, 8")
    A("s_cbranch_scc1 Ltile")
    A(".p2align 3")
    A("Llast:")
    A("s_nop 0")
    q = [0, 0, 1, 1, 2, 2, 3, 3]
    for u in range(8):
        step(u, True, q)
        if u < 7:
            A(f"s_cmp_le_u32 s{sRem}, {u + 1}")
            A("s_cbranch_scc1 Lmain_done")
    A("Lmain_done:")
    stamp(A, opt, "done")

    def finalize(a0, o, a1, u0, x0, addr, soff, pre_store):
        for j in range(4):
            A(f"v_permlane32_swap_b32 v{a0 + j}, v{a1 + j}")
            A(f"v_permlane32_swap_b32 v{a0 + o + j}, v{a1 + o + j}")
        for j in (o, o + 2, 0, 2):
            A(f"v_pk_add_f32 {vr(a0 + j, 2)}, {vr(a0 + j, 2)}, {vr(a1 + j, 2)}")
        for j in range(4):
            A(f"v_rcp_f32 v{a0 + o + j}, v{a0 + o + j}")
        for j in (0, 2):
            A(f"v_pk_fma_f32 {vr(a0 + j, 2)}, {vr(a0 + j, 2)}, {vr(a0 + o + j, 2)}, {vr(u0 + j, 2)}")
        A(f"v_cvt_pk_bf16_f32 v{a0}, v{a0}, v{a0 + 1}")
        A(f"v_cvt_pk_bf16_f32 v{a0 + 1}, v{a0 + 2}, v{a0 + 3}")
        A(f"v_pk_max_f16 v{a0}, v{a0}, v{x0}")
        A(f"v_pk_max_f16 v{a0 + 1}, v{a0 + 1}, v{x0 + 1}")
        A(pre_store)
        A(f"buffer_store_dwordx2 {vr(a0, 2)}, v{addr}, {sr(S_OUT, 4)}, s{soff} offen {opt.get('out_pol', 'sc0 sc1')}")

    vU, vXr, vA1, vA2, vA3, vCy = vD, vD + 16, vD + 24, vD + 25, vD + 26, vD + 32
    A(f"""
    v_lshl_add_u32 v{vA1}, v{vH16}, 5, v{vLo}
    v_add_u32 v{vA1}, s{sSW}, v{vA1}
    ds_write_b128 v{vA1}, {vr(vSl, 4)}
    ds_write_b128 v{vA1}, {vr(vSl + 4, 4)} offset:1024
    s_mul_i32 s3, s{sF0}, 528
    s_add_u32 s3, s3, {L_TU}
    v_mul_u32_u24 v{vA2}, 33, v{vH16}
    v_add3_u32 v{vA2}, v{vA2}, v{vLo}, s3
    s_mul_i32 s3, s{sF0}, 272
    s_add_u32 s3, s3, {L_X}
    v_mul_u32_u24 v{vA3}, 17, v{vH16}
    v_lshrrev_b32 v{vLo + 1}, 1, v{vLo}
    v_add3_u32 v{vA3}, v{vA3}, v{vLo + 1}, s3
    """)
    A(f"v_mov_b32 v{vEb}, 0")
    A("Lrows:")
    A(f"ds_read_b32 v{vEad}, v{vEb} offset:{L_FLAG + 12}")
    for pr in range(4):
        A(f"ds_read_b128 {vr(vU + 4 * pr, 4)}, v{vA2} offset:{1056 * pr}")
        A(f"ds_read_b64 {vr(vXr + 2 * pr, 2)}, v{vA3} offset:{544 * pr}")
    A(f"""
    s_waitcnt lgkmcnt(8)
    v_cmp_gt_u32 vcc, 4, v{vEad}
    s_cbranch_vccnz Lrows
    v_lshl_add_u32 v{vA2}, v{vH16}, 4, v{vLo + 1}
    s_add_u32 s{sQ1}, s{sN0}, s{sF0}
    s_lshl_b32 s{sQ1}, s{sQ1}, 8
    s_mul_i32 s{sQ2}, s{sOwn}, 12
    s_waitcnt lgkmcnt(0)
    """)
    for pr in range(4):
        if pr < 3:
            A(f"s_cmp_gt_u32 s{sOwn}, {2 * pr + 2}")
            A(f"s_cbranch_scc1 Lfin{pr}")
        A("s_barrier")
        A(f"s_cmp_eq_u32 s{sW}, 7")
        A(f"s_cbranch_scc1 Lfin{pr}")
        A(f"ds_read_b128 {vr(vCy, 4)}, v{vA1} offset:{STRW}")
        A(f"ds_read_b128 {vr(vCy + 4, 4)}, v{vA1} offset:{STRW + 1024}")
        A(f"s_set_gpr_idx_on s{sQ2}, gpr_idx(SRC0,DST)")
        A("s_waitcnt lgkmcnt(0)")
        for j in range(0, 8, 2):
            A(f"v_pk_add_f32 {vr(vSl + j, 2)}, {vr(vSl + j, 2)}, {vr(vCy + j, 2)}")
        A("s_set_gpr_idx_off")
        A("s_nop 1")
        A(f"Lfin{pr}:")
        finalize(vSl + 12 * (2 * pr + 1), 4, vSl + 12 * (2 * pr + 2), vU + 4 * pr, vXr + 2 * pr, vA2, sQ1,
                 f"s_cmp_gt_u32 s{sOwn}, {2 * pr + 1}\ns_cselect_b32 exec_hi, -1, 0")
        if pr < 3:
            A(f"s_add_u32 s{sQ1}, s{sQ1}, 512")
            A(f"s_cmp_gt_u32 s{sOwn}, {2 * pr + 2}")
            A("s_cbranch_scc0 Lk2_done")
    A("Lk2_done:")
    stamp_flush(A, opt, 8, 0x20000, vTid)
    if opt.get("spin"):
        A("""
        Lspin:
        s_memrealtime s[42:43]
        s_waitcnt lgkmcnt(0)
        s_sub_u32 s42, s42, s100
        s_cmp_lt_u32 s42, 10000
        s_cbranch_scc1 Lspin
        """)
    A("Lk2_exit:")
    A("s_endpgm")

    NU = 7
    vAcc, vAn = 0, 56
    vLs = [vL + 8 * u for u in range(4)] + [84 + 8 * u for u in range(3)]
    vP, vErr, vQ, vCaddr, vUaddr = 245, 252, 253, 254, 255
    A("Lcold_code:")
    A("Lslow_entry:")
    A(f"s_cmp_ge_u32 s{sW}, 4")
    A("s_cbranch_scc1 Lg_rows")
    node_exponents()
    A("Lg_rows:")
    node_rows()
    wc_reads()
    A("s_waitcnt lgkmcnt(0)")
    wc_fragments()
    A(f"""
    s_waitcnt vmcnt(0) lgkmcnt(0)
    s_barrier
    v_lshlrev_b32 v{vX + 11}, 2, v{vTid}
    ds_write_b32 v{vX + 11}, v{vZero} offset:{L_CNT}
    s_mul_i32 s3, s{sW}, 528
    s_add_u32 s3, s3, {L_TA}
    v_add_u32 v{vX + 11}, s3, v{vLo}
    """)
    for u in range(NU):
        A(f"ds_read_b128 {vr(vAn + 4 * u, 4)}, v{vX + 11} offset:{8 * 528 * u}")
    A(f"s_mov_b32 s{sTmp}, {hex(f32(eps / 2))}")
    A(f"s_mov_b32 s{sTmp + 1}, {hex(f32(eps / 2))}")
    for i in range(0, 8 * NU, 2):
        A(f"v_mov_b64 {vr(vAcc + i, 2)}, {sr(sTmp, 2) if i & 4 else 0}")
    A(f"""
    v_bfe_u32 v{vX + 11}, v{vTid}, 3, 3
    v_and_b32 v{vX + 12}, 7, v{vTid}
    v_lshlrev_b32 v{vX + 12}, 2, v{vX + 12}
    v_lshl_add_u32 v{vX + 12}, v{vX + 11}, 8, v{vX + 12}
    s_lshl_b32 s3, s{sW}, 5
    v_add_u32 v{vCaddr}, s3, v{vX + 12}
    v_bfe_u32 v{vX + 11}, v{vTid}, 3, 2
    v_bfe_u32 v{vX + 12}, v{vTid}, 1, 1
    v_lshl_add_u32 v{vX + 11}, v{vX + 11}, 1, v{vX + 12}
    v_lshlrev_b32 v{vUaddr}, 5, v{vX + 11}
    Lbatch:
    """)
    batch_masks(16)
    A("Lround:")
    rec_addr()
    rec_loads()
    A(f"""
    v_mov_b32 v{vZero}, 0
    v_mov_b32 v{vOne}, 1
    ds_write_b32 v{vZero}, v{vZero} offset:{L_FLAG}
    ds_write_b32 v{vZero}, v{vZero} offset:{L_FLAG + 4}
    s_waitcnt lgkmcnt(0)
    s_barrier
    s_mov_b64 exec, {sr(sMore, 2)}
    ds_write_b32 v{vZero}, v{vOne} offset:{L_FLAG + 4}
    s_mov_b64 exec, -1
    s_waitcnt vmcnt(0)
    """)
    histogram(cand)
    for rec, key_, rank, so_, eo_, m in cand:
        A(f"v_lshrrev_b32 v{so_}, 18, v{rec}")
        A(f"v_bfe_u32 v{eo_}, v{rec}, 6, 12")
        A(f"v_lshlrev_b32 v{so_}, 9, v{so_}")
        A(f"v_lshl_add_u32 v{eo_}, v{eo_}, 5, v{vX + 2}")
    A("s_waitcnt lgkmcnt(0)")
    A("s_barrier")
    c, inc, deg, q, t0, t1 = vX + 12, vX + 13, vX + 14, vX + 15, vX + 16, vX + 17
    A(f"ds_read_b32 v{c}, v{vCaddr} offset:{L_CNT}")
    A(f"v_lshrrev_b32 v{t0}, 5, v{vCaddr}")
    A(f"v_lshlrev_b32 v{t0}, 6, v{t0}")
    A("s_waitcnt lgkmcnt(0)")
    A(f"ds_write_b32 v{vCaddr}, v{vZero} offset:{L_CNT}")
    A(f"v_mov_b32 v{inc}, v{c}")
    for d in (1, 2, 4, 8):
        A("s_nop 1")
        A(f"v_add_u32_dpp v{inc}, v{inc}, v{inc} row_shr:{d} row_mask:0xf bank_mask:0xf")
    A(f"""
    v_mov_b32 v{t1}, 0
    s_nop 0
    v_mov_b32_dpp v{deg}, v{inc} row_newbcast:7 row_mask:0xf bank_mask:0x3
    v_mov_b32_dpp v{t1}, v{inc} row_newbcast:7 row_mask:0xf bank_mask:0xc
    v_mov_b32_dpp v{deg}, v{inc} row_newbcast:15 row_mask:0xf bank_mask:0xc
    v_sub_u32 v{inc}, v{inc}, v{t1}
    v_sub_u32 v{deg}, v{deg}, v{t1}
    v_sub_u32 v{inc}, v{inc}, v{c}
    v_add_u32 v{inc}, v{inc}, v{t0}
    ds_write_b32 v{vCaddr}, v{inc} offset:{L_BASE}
    v_cmp_lt_u32 vcc, 64, v{deg}
    v_min_u32 v{deg}, 64, v{deg}
    v_add_u32 v{q}, 3, v{deg}
    v_lshrrev_b32 v{q}, 2, v{q}
    s_mov_b64 exec, vcc
    ds_write_b32 v{vZero}, v{vOne} offset:{L_FLAG}
    s_mov_b64 exec, -1
    ds_bpermute_b32 v{vQ}, v{vUaddr}, v{q}
    v_and_b32 v{c}, 7, v{vTid}
    v_add_u32 v{c}, v{c}, v{deg}
    v_lshlrev_b32 v{t1}, 2, v{q}
    v_cmp_lt_u32 vcc, v{c}, v{t1}
    v_add_lshl_u32 v{c}, v{c}, v{t0}, 2
    v_mov_b32 v{t0}, {TAB_BYTES}
    v_bfrev_b32 v{t1}, 2
    s_mov_b64 exec, vcc
    ds_write_b32 v{c}, v{t0} offset:{L_SO}
    ds_write_b32 v{c}, v{t1} offset:{L_EO}
    s_mov_b64 exec, -1
    v_max_u32_dpp v{q}, v{q}, v{q} row_ror:8 row_mask:0xf bank_mask:0xf
    s_nop 0
    v_readlane_b32 s{sT}, v{q}, 0
    v_readlane_b32 s3, v{q}, 16
    v_readlane_b32 s{sTmp}, v{q}, 32
    v_readlane_b32 s{sTmp + 1}, v{q}, 48
    s_waitcnt lgkmcnt(0)
    s_barrier
    ds_read_b64 {vr(vX + 12, 2)}, v{vZero} offset:{L_FLAG}
    """)
    for i in range(8):
        A(f"ds_read_b32 v{vKey + i}, v{vKey + i} offset:{L_BASE}")
    A(f"""
    s_max_u32 s{sT}, s{sT}, s3
    s_max_u32 s{sTmp}, s{sTmp}, s{sTmp + 1}
    s_max_u32 s{sT}, s{sT}, s{sTmp}
    s_waitcnt lgkmcnt(0)
    v_readfirstlane_b32 s{sOvf}, v{vX + 12}
    v_readfirstlane_b32 s{sMor}, v{vX + 13}
    """)
    for i in range(8):
        A(f"v_and_b32 v{vX + 12}, 63, v{vRec + i}")
        A(f"v_add_u32 v{vKey + i}, v{vKey + i}, v{vRank + i}")
        A(f"v_lshl_add_u32 v{vX + 12}, v{vX + 12}, 6, 64")
        A(f"v_cmp_lt_u32 vcc, v{vKey + i}, v{vX + 12}")
        A(f"v_lshlrev_b32 v{vKey + i}, 2, v{vKey + i}")
        A(f"s_and_b64 exec, vcc, {sr(sMask + 2 * i, 2)}")
        A(f"ds_write_b32 v{vKey + i}, v{vSoff + i} offset:{L_SO}")
        A(f"ds_write_b32 v{vKey + i}, v{vEoff + i} offset:{L_EO}")
        A(f"s_andn2_b64 {sr(sMask + 2 * i, 2)}, {sr(sMask + 2 * i, 2)}, vcc")
        A("s_mov_b64 exec, -1")
    A(f"""
    s_lshl_b32 s3, s{sW}, 8
    v_lshrrev_b32 v{vX + 12}, 1, v{vH16}
    v_add_u32 v{vP}, s3, v{vX + 12}
    v_and_b32 v{vX + 12}, 1, v{vTid}
    v_bfe_u32 v{vX + 13}, v{vTid}, 2, 1
    v_lshl_add_u32 v{vX + 12}, v{vX + 13}, 1, v{vX + 12}
    v_lshl_add_u32 v{vX + 12}, v{vX + 12}, 2, s3
    v_lshl_add_u32 v{vEp}, v{vUaddr}, 6, v{vX + 12}
    s_lshr_b32 s3, s{sT}, 1
    v_mov_b32 v{vErr}, s3
    s_mov_b64 {sr(sCur, 2)}, 0
    s_mov_b32 s{sTi}, 0
    """)
    for u in range(1, NU):
        A(f"v_mov_b32 v{vP + u}, v{vP}")
    A(f"""
    s_waitcnt lgkmcnt(0)
    s_barrier
    s_cmp_eq_u32 s{sT}, 0
    s_cbranch_scc1 Lg_done
    s_branch Lg_entry
    Lg_tile:
    s_waitcnt vmcnt({2 * NU})
    """)
    for j in range(4):
        A(mfma(j))
    A(f"""
    Lg_entry:
    v_add_u32 v{vErr}, v{vQ}, v{vErr}
    ds_read_b32 v{vEo}, v{vEp} offset:{L_EO}
    ds_read_b64 {vr(vSo, 2)}, v{vP} offset:{L_SO}
    v_cmp_le_u32_e64 {sr(sNext, 2)}, s{sT}, v{vErr}
    s_cmp_lt_u32 s{sTi}, s{sT}
    s_cselect_b64 {sr(sNext, 2)}, {sr(sNext, 2)}, 1
    s_mov_b64 exec, {sr(sNext, 2)}
    v_subrev_u32 v{vErr}, s{sT}, v{vErr}
    v_add_u32 v{vEp}, 16, v{vEp}
    s_waitcnt lgkmcnt(1)
    v_add_u32 v{vEo}, v{vEo}, v{vH16}
    buffer_load_dwordx4 {vr(vEA, 4)}, v{vEo}, {sr(S_EA, 4)}, 0 offen
    s_mov_b64 exec, -1
    """)
    for u in range(NU):
        bit = 8 * (u >> 1) + 2 * (u & 1) + 1
        so2 = vSo + 2 * (u & 1)
        La, Lb = vLs[u], vLs[u] + 4
        a, b = vT, vT + 4
        num, den = vAcc + 8 * u, vAcc + 8 * u + 4
        if u + 1 < NU:
            A(f"ds_read_b64 {vr(vSo + 2 * ((u + 1) & 1), 2)}, v{vP + u + 1} offset:{L_SO + 2048 * (u + 1)}")
        A(f"s_bitcmp1_b32 s{sCur}, {bit}")
        A(f"s_cbranch_scc0 Lg_skip{u}")
        A(f"s_waitcnt vmcnt({2 * NU - 1})")
        for j in range(4):
            A(f"v_fma_mix_f32 v{a + j}, v{vD + 16 * j + 2 * u}, s{sNl}, v{La + j} op_sel_hi:[0,0,1]")
        for j in range(4):
            A(f"v_fma_mix_f32 v{b + j}, v{vD + 16 * j + 2 * u + 1}, s{sNl}, v{Lb + j} op_sel_hi:[0,0,1]")
        for j in range(0, 8, 2):
            A(f"v_pk_add_f32 {vr(a + j, 2)}, {vr(a + j, 2)}, {vr(vAn + 4 * u + (j & 3), 2)}")
        for j in range(8):
            A(f"v_exp_f32_e64 v{a + j}, v{a + j} clamp")
        for j in range(0, 8, 2):
            A(f"v_pk_add_f32 {vr(a + j, 2)}, {vr(a + j, 2)}, {sr(sC0, 2)}")
        for j in (0, 2):
            A(f"v_pk_mul_f32 {vr(La + j, 2)}, {vr(La + j, 2)}, {vr(b + j, 2)}")
        for j in (0, 2):
            A(f"v_pk_fma_f32 {vr(La + j, 2)}, {vr(Lb + j, 2)}, {vr(a + j, 2)}, {vr(La + j, 2)}")
        for j in (0, 2):
            A(f"v_pk_add_f32 {vr(Lb + j, 2)}, {vr(a + j, 2)}, {vr(b + j, 2)}")
        for j in (0, 2):
            A(f"v_pk_mul_f32 {vr(a + j, 2)}, {vr(a + j, 2)}, {vr(b + j, 2)}")
        for j in range(4):
            A(f"v_rcp_f32 v{a + j}, v{a + j}")
        for j in (0, 2):
            A(f"v_pk_fma_f32 {vr(num + j, 2)}, {vr(La + j, 2)}, {vr(a + j, 2)}, {vr(num + j, 2)}")
            A(f"v_pk_fma_f32 {vr(den + j, 2)}, {vr(Lb + j, 2)}, {vr(a + j, 2)}, {vr(den + j, 2)}")
        A(f"Lg_skip{u}:")
        A(f"s_bitcmp1_b32 s{sNext}, {bit}")
        A("s_cselect_b64 exec, -1, 1")
        A(f"s_cselect_b32 s{sInc}, 16, 0")
        A(f"s_waitcnt lgkmcnt({1 if u + 1 < NU else 0})")
        A(f"v_add_u32 v{so2}, v{so2}, v{vLo}")
        A(f"v_add_u32 v{so2 + 1}, v{so2 + 1}, v{vLo}")
        A(f"buffer_load_dwordx4 {vr(La, 4)}, v{so2}, {sr(S_TAB, 4)}, 0 offen {tab_pol}")
        A(f"buffer_load_dwordx4 {vr(Lb, 4)}, v{so2 + 1}, {sr(S_TAB, 4)}, 0 offen {tab_pol}")
        A("s_mov_b64 exec, -1")
        A(f"v_add_u32 v{vP + u}, s{sInc}, v{vP + u}")
    A(f"""
    s_mov_b64 {sr(sCur, 2)}, {sr(sNext, 2)}
    s_add_u32 s{sTi}, s{sTi}, 1
    s_cmp_le_u32 s{sTi}, s{sT}
    s_cbranch_scc1 Lg_tile
    Lg_done:
    s_waitcnt vmcnt(0)
    s_cmp_lg_u32 s{sOvf}, 0
    s_cbranch_scc1 Lround
    s_add_u32 s{sW0}, s{sW0}, 16
    s_cmp_lg_u32 s{sMor}, 0
    s_cbranch_scc1 Lbatch
    s_mul_i32 s3, s{sW}, 528
    s_add_u32 s3, s3, {L_TU}
    v_mul_u32_u24 v{vA2}, {33 * 8}, v{vH16}
    v_add3_u32 v{vA2}, v{vA2}, v{vLo}, s3
    s_mul_i32 s3, s{sW}, 272
    s_add_u32 s3, s3, {L_X}
    v_mul_u32_u24 v{vA3}, {17 * 8}, v{vH16}
    v_lshrrev_b32 v{vLo + 1}, 1, v{vLo}
    v_add3_u32 v{vA3}, v{vA3}, v{vLo + 1}, s3
    """)
    for pr in range(4):
        A(f"ds_read_b128 {vr(vU + 4 * pr, 4)}, v{vA2} offset:{16 * 528 * pr}")
        A(f"ds_read_b64 {vr(vXr + 2 * pr, 2)}, v{vA3} offset:{16 * 272 * pr}")
    A(f"""
    v_lshl_add_u32 v{vA2}, v{vH16}, 7, v{vLo + 1}
    s_add_u32 s{sQ1}, s{sN0}, s{sW}
    s_lshl_b32 s{sQ1}, s{sQ1}, 8
    s_waitcnt lgkmcnt(0)
    """)
    for pr in range(4):
        if pr == 3:
            A(f"s_add_u32 s3, s{sW}, 48")
            A(f"s_cmp_ge_u32 s3, s{sNn}")
            A("s_cbranch_scc1 Lk2_done")
        finalize(vAcc + 16 * pr, 4, vAcc + 16 * pr + 8, vU + 4 * pr, vXr + 2 * pr, vA2, sQ1,
                 "s_mov_b32 exec_hi, 0" if pr == 3 else "s_nop 0")
        A(f"s_add_u32 s{sQ1}, s{sQ1}, 4096")
    A("s_branch Lk2_done")
    return L_END


def descriptor(name, vgpr, extra=""):
    return f""".amdhsa_kernel {name}
  .amdhsa_next_free_vgpr {vgpr}
  .amdhsa_next_free_sgpr 102
  .amdhsa_accum_offset {(vgpr + 3) // 4 * 4}
  .amdhsa_group_segment_fixed_size 0
  .amdhsa_kernarg_size 96
  .amdhsa_user_sgpr_count 2
  .amdhsa_user_sgpr_kernarg_segment_ptr 1
  .amdhsa_system_sgpr_workgroup_id_x 1
{extra}.end_amdhsa_kernel
"""


def generate(opt):
    A = Asm()
    lds = gen_k2(A, opt)
    lst = f"kernel={NAME}_kernel " if opt.get("aslist") else ""
    return (f"""; GatedGCN layer in one launch. Every workgroup buckets one chunk of edges by destination and builds its
; rows of the gather table, hands both over through d_ws, then sorts, gathers and reduces one bucket of nodes.
; @launch {lst}grid=(256,1,1) block=(512,1,1) lds={lds}
.amdgcn_target "amdgcn-amd-amdhsa--gfx950"
.text
.globl {NAME}_kernel
.p2align 8
.type {NAME}_kernel,@function
""" + A.text() + ".section .rodata,\"a\"\n.p2align 6\n"
            + descriptor(f"{NAME}_kernel", 256, "  .amdhsa_fp16_overflow 1\n"))


if __name__ == "__main__":
    out = sys.argv[1] if len(sys.argv) > 1 else f"cdna_kernels/{NAME}.s"
    opt = dict(a.split("=", 1) for a in sys.argv[2:])
    opt = {k: v.replace("+", " ") for k, v in opt.items()}
    open(out, "w").write(generate(opt))
```

```python
import math
import struct
import sys

NAME = "gather_scatter__edge_featured_mpnn_gatedgcn__graph"
N, E = 12500, 400000
BM, BS, SM, SC, SS = 171799, 23, 799999, 16330, 14
CH = 1568
NCH = 256
TAB_OFF = 0
REC_OFF = 0xE00000
OFF_OFF = 0x1000000
SPIN_MAX = 20000
STAMP_OFF = 0x2000000
TAB_BYTES = N * 512
KSH = 48
AMAX = 52.0
NLOG2E = -math.log2(math.e)


def f32(x):
    return struct.unpack("<I", struct.pack("<f", x))[0]


class Asm:
    def __init__(self):
        self.lines = []

    def __call__(self, s):
        for ln in s.strip("\n").split("\n"):
            ln = ln.strip()
            if not ln:
                continue
            self.lines.append(ln if ln.endswith(":") else "    " + ln)

    def note(self, s):
        self.lines += ["; " + ln.strip() for ln in s.strip().split("\n")]

    def text(self):
        return "\n".join(self.lines) + "\n"


def vr(a, n=1):
    return f"v{a}" if n == 1 else f"v[{a}:{a + n - 1}]"


def sr(a, n=1):
    return f"s{a}" if n == 1 else f"s[{a}:{a + n - 1}]"


def srd(A, d, base, nbytes, off=0):
    if off:
        A(f"s_add_u32 s{d}, s{base}, {hex(off)}")
        A(f"s_addc_u32 s{d + 1}, s{base + 1}, 0")
    else:
        A(f"s_mov_b64 {sr(d, 2)}, {sr(base, 2)}")
    A(f"s_mov_b32 s{d + 2}, {hex(nbytes)}")
    A(f"s_mov_b32 s{d + 3}, 0x20000")


P_X, P_EA, P_SRC, P_DST, P_WA, P_WB, P_WC, P_WU = 4, 6, 8, 10, 12, 14, 16, 18
P_WV, P_OUT, P_DBG, P_WS = 20, 22, 24, 26


def load_kernargs(A):
    A("s_load_dwordx16 s[4:19], s[0:1], 0")
    A("s_load_dwordx8 s[20:27], s[0:1], 64")


STAMP_BASE = [2]


def stamp_reg(i):
    return 100 if i == 0 else STAMP_BASE[0] + 2 * i


def stamp(A, opt, i):
    if not opt.get("stamp"):
        return
    if isinstance(i, str):
        names = opt["stamp"].split(",")
        if i not in names:
            return
        i = names.index(i) + 1
    A(f"{'s_memtime' if opt.get('cyc') else 's_memrealtime'} s[{stamp_reg(i)}:{stamp_reg(i) + 1}]")


def stamp_flush(A, opt, n, base, vtid):
    if not opt.get("stamp"):
        return
    A("s_mov_b64 exec, -1")
    A("s_waitcnt vmcnt(0)")
    stamp(A, opt, n - 1)
    srd(A, 20, P_WS, 0x80000, STAMP_OFF + base)
    A(f"v_lshrrev_b32 v1, 6, v{vtid}")
    A("s_lshl_b32 s3, s2, 3")
    A("v_add_u32 v1, s3, v1")
    A(f"v_mul_u32_u24 v1, {8 * n}, v1")
    A("s_mov_b64 exec, 1")
    A("s_waitcnt lgkmcnt(0)")
    for i in range(n):
        r = stamp_reg(i)
        A(f"v_mov_b32 v2, s{r}")
        A(f"v_mov_b32 v3, s{r + 1}")
        A(f"buffer_store_dwordx2 v[2:3], v1, s[20:23], 0 offen offset:{8 * i}")
        A("s_nop 1")


WAVE_SCAN = ("row_shr:1 row_mask:0xf", "row_shr:2 row_mask:0xf", "row_shr:4 row_mask:0xf",
             "row_shr:8 row_mask:0xf", "row_bcast:15 row_mask:0xa", "row_bcast:31 row_mask:0xc")


def wave_scan(A, v, first_nop=1, fill=()):
    for k, d in enumerate(WAVE_SCAN):
        if k < len(fill):
            A("\n".join(fill[k]))
        elif k or first_nop:
            A("s_nop 1")
        A(f"v_add_u32_dpp v{v}, v{v}, v{v} {d} bank_mask:0xf")


def gen_k2(A, opt):
    STAMP_BASE[0] = 2
    ea_pol = opt.get("ea_load", "")
    tab_pol = opt.get("tab_load", "sc1")
    pf_lanes = int(opt.get("pf", 0))
    poll_at = int(opt.get("poll_at", 0))
    ld = [int(x) for x in opt.get("ld", "6,11,16").split(",")]
    TS = int(opt.get("ts", 3))
    OB = int(opt.get("ob", 8))
    S_TAB, S_EA, S_REC, S_OFFS, S_TW, S_X, S_OUT = 28, 32, 36, 40, 44, 48, 52
    sW, sBk, sN0, sW0, sT, sTi, sInc, sNl = 56, 57, 58, 59, 60, 61, 62, 63
    sC0, sCur, sNext, sMore, sTmp, sNon = 64, 66, 68, 70, 72, 74
    sMask = 76
    sMask2 = 18
    S_DST, S_SRC, S_W, S_W2, S_WC, S_DBG = 76, 80, 84, 88, 76, 80
    sOvf, sMor, sQ1, sQ2, sQ3, sLw, sF0, sOwn = 92, 93, 94, 95, 96, 97, 98, 99
    sRem, sSW, sSl0, sSl1, sLn, sPM = sT, sInc, sCur, sCur + 1, sNext, sCur
    sNn = 0
    sWo, sWm = sOvf, sLw
    L_CNT, L_BASE, L_FLAG, P_CNT, P_BASE, P_SORT = 0, 2048, 4096, 4352, 5376, 6400
    L_R2 = 12800
    L_SO = L_R2
    L_EO = L_SO + 25600
    L_STR = L_R2 + 16896
    STRW = 2560
    L_WCR = L_R2 + 65536
    L_X = L_WCR + 4096
    L_R1 = (L_X + 52 * 272 + 255) // 256 * 256
    L_TA = L_R1 + 528
    L_TU = L_TA + 52 * 528
    L_END = L_R1 + 65536
    TF_OFF = NCH * 2048
    NS = 9
    vSl, vD, vL, vWC, vEA, vT, vSo, vLo = 0, 108, 172, 204, 220, 224, 232, 236
    vSp, vEp, vEo, vH16, vSb, vTid, vOffs = 238, 239, 240, 241, 242, 243, 244
    vWf, vG, vXf, vXs, vNon, vTf = 0, 32, vL, 96, 104, 106
    vEn, vEb, vEad, vS2 = 104, 246, 247, 248
    Lbuf = [vL + 8 * u for u in range(4)] + [72 + 8 * u for u in range(4)]
    vRec, vKey, vRank, vSoff, vEoff, vX = vD, vD + 8, vD + 16, vD + 24, vD + 32, vD + 40
    cand = [(vRec + i, vKey + i, vRank + i, vSoff + i, vEoff + i, sMask + 2 * i) for i in range(8)]
    cand2 = [(vEA + i, vT + i, vT + 4 + i, None, None, sMask2 + 2 * i) for i in range(4)]
    c0 = 2.0 ** -KSH
    vZero, vOne, vXw, vXrd, vTw, vInv = vX + 5, vX + 6, vX + 7, vX + 8, vX + 9, vX + 10
    vDa, vBx, vBt, vBs, vAt, vPa, vE = vX + 12, vX + 14, vX + 15, vX + 17, vX + 18, vX + 19, vX + 20
    vSw, vSr = vX + 16, vD + 39
    pD, pS, pA, pR, pC, pB, pG = vD, vD + 4, vD + 8, vD + 12, vD + 16, vD + 20, vD + 24
    vm = []

    def younger(name):
        return len(vm) - 1 - max(i for i, x in enumerate(vm) if x == name)

    def dma_piece(S, soff, i):
        A(f"buffer_load_dwordx4 v{vDa + ((i >> 1) & 1)}, {sr(S, 4)}, s{soff} offen offset:{1024 * (i & 3)} {opt.get('w_pol', '')} lds")

    def loader(lo, hi):
        for g in range(lo, hi):
            A(f"s_mov_b32 m0, {L_R1 + 4096 * g}")
            A(f"s_movk_i32 s3, {4096 * (g & 7)}")
            if g == 8:
                A(f"s_mov_b64 {sr(S_W, 2)}, {sr(P_WV, 2)}")
            for i in range(4):
                dma_piece(S_W, 3, i)

    A(f"{NAME}_kernel:")
    A("s_cmp_ge_u32 s2, 256")
    A("s_cbranch_scc1 Lk2_exit")
    stamp(A, opt, 0)
    load_kernargs(A)
    A(f"""
    s_memrealtime {sr(sNon, 2)}
    s_getpc_b64 s[{sTmp}:{sTmp + 1}]
    """)
    cpf_mode = int(opt.get("cpf", 8))
    if cpf_mode:
        A(f"""
        s_lshr_b32 s3, s2, 3
        s_and_b32 s3, s3, {128 // cpf_mode - 1}
        v_subrev_u32 v1, {512 - cpf_mode}, v0
        v_cmp_gt_u32 vcc, {cpf_mode}, v1
        v_mul_u32_u24 v1, {128 // cpf_mode}, v1
        v_add_lshl_u32 v1, v1, s3, 7
        """)
    else:
        A(f"""
        v_lshlrev_b32 v1, 7, v0
        v_cmp_gt_u32 vcc, Lcold_code - {NAME}_kernel, v1
        """)
    A(f"""
    s_and_saveexec_b64 {sr(sNext, 2)}, vcc
    s_cbranch_execz Lno_cpf
    global_load_dword v2, v1, s[{sTmp}:{sTmp + 1}] {opt.get('cpf_pol', '')}
    Lno_cpf:
    s_mov_b64 exec, -1
    v_mov_b32 v{vZero}, 0
    v_lshlrev_b32 v{vX + 11}, 2, v0
    ds_write_b32 v{vX + 11}, v{vZero} offset:{L_FLAG}
    ds_write_b32 v{vX + 11}, v{vZero} offset:{L_CNT}
    v_lshrrev_b32 v{vX}, 6, v0
    v_lshlrev_b32 v{vX + 2}, 4, v0
    v_readfirstlane_b32 s{sW}, v{vX}
    s_movk_i32 s3, {CH // 4}
    s_cmp_eq_u32 s2, {NCH - 1}
    s_cselect_b32 s3, {(E - (NCH - 1) * CH) // 4}, s3
    v_cmp_gt_u32_e64 {sr(sPM, 2)}, s3, v0
    s_mul_i32 s{sQ1}, s2, {CH * 4}
    s_mov_b32 s{S_DST + 2}, {E * 4}
    s_mov_b32 s{S_DST + 3}, 0x20000
    s_mov_b32 s{S_SRC + 2}, {E * 4}
    s_mov_b32 s{S_SRC + 3}, 0x20000
    s_and_b32 s3, s2, 7
    s_lshl_b32 s3, s3, 5
    s_lshr_b32 s{sBk}, s2, 3
    s_add_u32 s{sBk}, s{sBk}, s3
    s_mul_i32 s{sN0}, s{sBk}, {SM}
    s_add_u32 s{sOwn}, s{sN0}, {SM + SC}
    s_add_u32 s{sN0}, s{sN0}, {SC}
    s_lshr_b32 s{sOwn}, s{sOwn}, {SS}
    s_lshr_b32 s{sN0}, s{sN0}, {SS}
    v_mov_b32 v{vTid}, v0
    v_and_b32 v{vX + 3}, 0x3f0, v{vX + 2}
    v_bfe_u32 v{vX + 1}, v0, 4, 2
    v_lshlrev_b32 v{vX + 4}, 6, v{vX + 1}
    v_xor_b32 v{vDa}, v{vX + 3}, v{vX + 4}
    v_xor_b32 v{vDa + 1}, 32, v{vDa}
    s_lshl_b32 s{sWm}, s{sW}, 13
    s_add_u32 s{sWm + 1}, s{sWm}, 4096
    s_and_b32 s{sWo}, s{sWm}, 0x7fff
    s_add_u32 s{sWo + 1}, s{sWo}, 4096
    s_lshl_b32 s{sTmp}, s{sN0}, 8
    s_add_u32 s{sTmp + 1}, s{sTmp}, 8192
    s_mov_b64 exec, {sr(sPM, 2)}
    s_waitcnt lgkmcnt(0)
    s_cbranch_execz Lp_nold
    s_mov_b64 {sr(S_DST, 2)}, {sr(P_DST, 2)}
    s_mov_b64 {sr(S_SRC, 2)}, {sr(P_SRC, 2)}
    buffer_load_dwordx4 {vr(pD, 4)}, v{vX + 2}, {sr(S_DST, 4)}, s{sQ1} offen {opt.get("idx_pol", "nt")}
    buffer_load_dwordx4 {vr(pS, 4)}, v{vX + 2}, {sr(S_SRC, 4)}, s{sQ1} offen {opt.get("idx_pol", "nt")}
    Lp_nold:
    """)
    if int(opt.get("wpf", 1)):
        A(f"""
        s_cmp_lg_u32 s{sW}, 7
        s_cbranch_scc1 Lno_wpf
        s_mov_b64 exec, 0xff
        s_lshr_b32 s3, s2, 3
        s_lshl_b32 s3, s3, 10
        v_lshl_add_u32 v1, v{vX + 3}, 3, s3
        global_load_dword v3, v1, {sr(P_WB, 2)} {opt.get('wpf_pol', '')}
        global_load_dword v4, v1, {sr(P_WV, 2)} {opt.get('wpf_pol', '')}
        global_load_dword v5, v1, {sr(P_WA, 2)} {opt.get('wpf_pol', '')}
        global_load_dword v6, v1, {sr(P_WU, 2)} {opt.get('wpf_pol', '')}
        Lno_wpf:
        """)
    A("s_mov_b64 exec, -1")
    A("s_barrier")
    vm.append("dst")
    srd(A, S_DBG, P_DBG, 256)
    A(f"""
    s_xor_b32 s3, s{sW}, 7
    s_or_b32 s3, s3, s2
    s_cbranch_scc1 Lno_nonce
    s_or_b32 s3, s{sNon}, 1
    v_mov_b32 v{vNon}, s3
    v_mov_b32 v{vNon + 1}, s{sNon + 1}
    s_mov_b64 exec, 1
    buffer_store_dwordx2 {vr(vNon, 2)}, v{vZero}, {sr(S_DBG, 4)}, 0 offen sc1
    s_mov_b64 exec, -1
    Lno_nonce:
    """)
    A(f"""
    s_mov_b64 {sr(S_X, 2)}, {sr(P_X, 2)}
    s_lshl_b32 s{S_X + 2}, s{sOwn}, 8
    s_mov_b32 s{S_X + 3}, 0x20000
    s_sub_u32 s{sNn}, s{sOwn}, s{sN0}
    """)
    for i in range(2):
        A(f"buffer_load_dwordx4 {vr(vXs + 4 * i, 4)}, v{vX + 2}, {sr(S_X, 4)}, s{sTmp + i} offen {opt.get('x_pol', 'nt')}")
        vm.append("x")
    A(f"""
    s_cmp_lt_u32 s{sW}, 4
    s_cselect_b32 s{S_W}, s{P_WB}, s{P_WV}
    s_cselect_b32 s{S_W + 1}, s{P_WB + 1}, s{P_WV + 1}
    s_cselect_b32 s{S_W2}, s{P_WA}, s{P_WU}
    s_cselect_b32 s{S_W2 + 1}, s{P_WA + 1}, s{P_WU + 1}
    s_mov_b32 s{S_W + 2}, 32768
    s_mov_b32 s{S_W + 3}, 0x20000
    s_mov_b32 s{S_W2 + 2}, 32768
    s_mov_b32 s{S_W2 + 3}, 0x20000
    """)
    npf0 = 0
    A(f"s_cmp_lg_u32 s{sW}, 7")
    A("s_cbranch_scc1 Lno_ld0")
    A(f"s_mov_b64 {sr(S_W, 2)}, {sr(P_WB, 2)}")
    loader(0, 2)
    A("Lno_ld0:")
    srd(A, S_WC, P_WC, 4096)
    srd(A, S_REC, P_WS, NCH * CH * 4, REC_OFF)
    srd(A, S_OFFS, P_WS, TF_OFF + (256 << TS), OFF_OFF)
    srd(A, S_TAB, P_WS, TAB_BYTES + 512, TAB_OFF)
    srd(A, S_EA, P_EA, 0 if opt.get("noea") else E * 32)
    srd(A, S_OUT, P_OUT, N * 256)
    A(f"""
    s_lshl_b32 s3, s{sN0}, 9
    s_add_u32 s{S_TW}, s{P_WS}, s3
    s_addc_u32 s{S_TW + 1}, s{P_WS + 1}, 0
    s_lshl_b32 s{S_TW + 2}, s{sNn}, 9
    s_mov_b32 s{S_TW + 3}, 0x20000
    s_mov_b32 s{sNl}, {hex(f32(NLOG2E))}
    s_mov_b32 s{sC0}, {hex(f32(c0))}
    s_mov_b32 s{sC0 + 1}, {hex(f32(c0))}
    s_mov_b32 s{sW0}, 0
    s_mov_b32 s{sQ2}, {BM}
    s_mov_b32 s{sQ3}, {-SM}
    v_mov_b32 v{vOne}, 1
    v_lshrrev_b32 v{vX + 11}, 4, v{vTid}
    v_lshl_add_u32 v{vXw}, v{vX + 11}, 4, v{vX + 2}
    v_add_u32 v{vXw}, {L_X}, v{vXw}
    v_and_b32 v{vLo}, 0x1f0, v{vX + 2}
    v_bfe_u32 v{vX + 4}, v{vTid}, 5, 1
    v_mov_b32 v{vLo + 1}, v{vLo}
    v_lshlrev_b32 v{vH16}, 4, v{vX + 4}
    s_lshr_b32 s{sTmp}, s{sW}, 2
    s_and_b32 s{sTmp + 1}, s{sW}, 3
    v_bfe_u32 v{vX + 11}, v{vTid}, 2, 2
    v_xor_b32 v{vE}, s{sTmp + 1}, v{vX + 11}
    v_lshlrev_b32 v{vE}, 6, v{vE}
    v_and_b32 v{vE + 1}, 3, v{vTid}
    v_lshl_add_u32 v{vE}, v{vE + 1}, 3, v{vE}
    v_lshl_add_u32 v{vE}, v{vX + 11}, 8, v{vE}
    v_and_b32 v{vE + 1}, 1, v{vX + 1}
    v_xor_b32 v{vE + 1}, v{vE + 1}, v{vX + 4}
    v_lshl_add_u32 v{vE}, v{vE + 1}, 5, v{vE}
    v_lshl_add_u32 v{vE}, v{vX + 4}, 11, v{vE}
    v_add_u32 v{vBt}, {L_R1}, v{vE}
    s_lshl_b32 s3, s{sTmp}, 15
    s_add_u32 s3, s3, {L_R2}
    v_add_u32 v{vAt}, s3, v{vE}
    v_and_b32 v{vX + 11}, 31, v{vTid}
    v_mul_u32_u24 v{vXrd}, 272, v{vX + 11}
    s_mov_b32 s3, {L_X}
    v_add3_u32 v{vXrd}, v{vXrd}, v{vH16}, s3
    s_mul_i32 s3, s{sTmp}, {32 * 272}
    v_add_u32 v{vBx}, s3, v{vXrd}
    s_mul_i32 s3, s{sW}, 4608
    s_add_u32 s3, s3, {L_R1}
    v_mul_u32_u24 v{vSw}, 144, v{vX + 11}
    v_add3_u32 v{vSw}, v{vSw}, v{vH16}, s3
    v_bfe_u32 v{vE}, v{vTid}, 3, 3
    v_lshl_add_u32 v{vSr}, v{vE}, 4, v{vX + 3}
    v_add_u32 v{vSr}, s3, v{vSr}
    v_and_b32 v{vE + 1}, 0x70, v{vX + 3}
    v_lshl_add_u32 v{vBs}, v{vE}, 9, v{vE + 1}
    s_lshl_b32 s3, s{sTmp}, 7
    s_add_u32 s3, s3, s{sTmp + 1}
    s_lshl_b32 s3, s3, 7
    v_add_u32 v{vBs}, s3, v{vBs}
    v_mul_u32_u24 v{vTw}, 528, v{vX + 11}
    s_mul_i32 s3, s{sTmp}, {L_TU - L_TA}
    s_lshl_b32 s{sTmp + 1}, s{sTmp + 1}, 7
    s_add_u32 s3, s3, s{sTmp + 1}
    s_add_u32 s3, s3, {L_TA}
    v_add3_u32 v{vTw}, v{vTw}, v{vH16}, s3
    v_lshrrev_b32 v{vPa}, 1, v{vTid}
    v_lshlrev_b32 v{vPa}, {3 + OB}, v{vPa}
    v_lshlrev_b32 v{vE}, 8, v{vTid}
    v_add_u32 v{vE + 1}, 64, v{vE}
    v_add_u32 v{vE + 2}, 0x80, v{vE}
    v_add_u32 v{vE + 3}, 0xc0, v{vE}
    """)
    stamp(A, opt, "iss")

    def stage_x(wait):
        A(f"s_waitcnt vmcnt({wait})")
        A(f"ds_write_b128 v{vXw}, {vr(vXs, 4)}")
        A(f"s_cmp_lt_u32 s{sW}, 5")
        A("s_cselect_b64 exec, -1, 0")
        A(f"ds_write_b128 v{vXw}, {vr(vXs + 4, 4)} offset:{32 * 272}")
        A("s_mov_b64 exec, -1")

    nonce_load = f"buffer_load_dwordx2 {vr(vNon, 2)}, v{vZero}, {sr(S_DBG, 4)}, 0 offen sc1"
    A(f"""
    s_cmp_eq_u32 s{sW}, 7
    s_cbranch_scc1 Lp_loader
    s_mov_b64 exec, {sr(sPM, 2)}
    s_waitcnt vmcnt({2 + npf0})
    """)
    stamp(A, opt, "dst")
    for i in range(4):
        A(f"v_mul_u32_u24 v{pC + i}, s{sQ2}, v{pD + i}")
    for i in range(4):
        A(f"v_lshrrev_b32 v{pC + i}, {BS}, v{pC + i}")
        A(f"v_lshlrev_b32 v{pA + i}, 2, v{pC + i}")
        A(f"ds_add_rtn_u32 v{pR + i}, v{pA + i}, v{vOne} offset:{P_CNT}")
    for i in range(4):
        A(f"v_lshl_add_u32 v{pD + i}, v{pD + i}, {SS}, {(1 << SS) - 1 - SC}")
        A(f"v_mad_i32_i24 v{pD + i}, v{pC + i}, s{sQ3}, v{pD + i}")
    A("s_mov_b64 exec, -1")
    A(f"s_cmp_eq_u32 s{sW}, 3")
    A("s_waitcnt lgkmcnt(0)")
    A("s_barrier")
    stamp(A, opt, "b2")
    A(f"""
    s_cbranch_scc0 Lp_noscan
    ds_read_b128 {vr(pC, 4)}, v{vX + 3} offset:{P_CNT}
    s_waitcnt lgkmcnt(0)
    v_add_u32 v{pB + 2}, v{pC}, v{pC + 1}
    v_add3_u32 v{pG + 1}, v{pB + 2}, v{pC + 2}, v{pC + 3}
    v_add_u32 v{pB + 3}, v{pB + 2}, v{pC + 2}
    v_mov_b32 v{pG}, v{pG + 1}
    """)
    ors = []
    for i in range(4):
        ors += [f"v_lshl_or_b32 v{pS + i}, v{pS + i}, 18, v{vE + i}", f"v_lshrrev_b32 v{pD + i}, {SS}, v{pD + i}",
                f"v_or_b32 v{pS + i}, v{pS + i}, v{pD + i}"]
    wave_scan(A, pG + 1, fill=[[]] + [ors[2 * k: 2 * k + 2] for k in range(5)])
    A(f"""
    v_sub_u32 v{pB}, v{pG + 1}, v{pG}
    v_add_u32 v{pB + 1}, v{pB}, v{pC}
    v_add_u32 v{pB + 2}, v{pB}, v{pB + 2}
    v_add_u32 v{pB + 3}, v{pB}, v{pB + 3}
    ds_write_b128 v{vX + 3}, {vr(pB, 4)} offset:{P_BASE}
    {ors[10]}
    {ors[11]}
    s_waitcnt lgkmcnt(0)
    s_barrier
    """)
    A("s_branch Lp_scanned")
    A("Lp_noscan:")
    A("\n".join(ors))
    A("s_barrier")
    A("Lp_scanned:")
    stamp(A, opt, "scan")
    A(f"s_mov_b64 exec, {sr(sPM, 2)}")
    for i in range(4):
        A(f"ds_read_b32 v{pA + i}, v{pA + i} offset:{P_BASE}")
    A("s_waitcnt lgkmcnt(0)")
    for i in range(4):
        A(f"v_add_lshl_u32 v{pA + i}, v{pA + i}, v{pR + i}, 2")
        A(f"ds_write_b32 v{pA + i}, v{pS + i} offset:{P_SORT}")
    A("s_mov_b64 exec, -1")
    A(nonce_load)
    A("s_waitcnt lgkmcnt(0)")
    A("s_barrier")
    stamp(A, opt, "b3")
    A(f"""
    ds_read_b128 {vr(pD, 4)}, v{vX + 2} offset:{P_SORT}
    s_mov_b64 exec, {sr(sPM, 2)}
    s_cbranch_execz Lp_none
    s_waitcnt lgkmcnt(0)
    buffer_store_dwordx4 {vr(pD, 4)}, v{vX + 2}, {sr(S_REC, 4)}, s{sQ1} offen sc1
    s_branch Lp_out
    Lp_loader:
    """)
    loader(2, ld[0])
    A("s_barrier")
    loader(ld[0], ld[1])
    A("s_barrier")
    loader(ld[1], ld[2])
    A("s_barrier")
    loader(ld[2], 16)
    A(nonce_load)
    A(f"""
    Lp_none:
    s_waitcnt vmcnt(1)
    Lp_out:
    s_mov_b64 exec, -1
    """)
    stage_x(2)
    A(f"""
    v_lshrrev_b32 v{vX + 11}, 1, v{vX + 2}
    v_and_b32 v{vX + 11}, 0x3ff, v{vX + 11}
    ds_read_b64 {vr(pC, 2)}, v{vX + 11} offset:{P_CNT}
    ds_read_b64 {vr(pB, 2)}, v{vX + 11} offset:{P_BASE}
    s_lshl_b32 s3, s{sW}, 9
    s_add_u32 m0, s3, {L_WCR}
    s_waitcnt lgkmcnt(0)
    s_barrier
    """)
    stamp(A, opt, "b3b")

    bB, bV, bO = 48, 64, 80

    def bv_reads(s):
        r = 12 * (s & 3)
        A(f"ds_read_b128 {vr(r + 8, 4)}, v{vBx} offset:{32 * s}")
        for m in range(2):
            for z in range(2):
                A(f"ds_read_b64_tr_b16 {vr(r + 4 * m + 2 * z, 2)}, v{vBt} offset:{m * 32768 + s * 4096 + z * 1024}")

    for s in range(3):
        bv_reads(s)
    A(f"""
    s_mov_b32 exec_hi, 0
    buffer_load_dwordx4 v{vX + 3}, {sr(S_WC, 4)}, s3 offen lds
    s_mov_b32 exec_hi, -1
    """)
    b4b = int(opt.get("b4b", 1))
    wk = int(opt.get("wk", 2))
    for s in range(8):
        r = 12 * (s & 3)
        A(f"s_waitcnt lgkmcnt({5 * min(2, 7 - s)})")
        for m in range(2):
            d = (bB, bV)[m]
            A(f"v_mfma_f32_32x32x16_bf16 {vr(d, 16)}, {vr(r + 4 * m, 4)}, {vr(r + 8, 4)}, {'0' if s == 0 else vr(d, 16)}")
        if s + 3 < 8:
            bv_reads(s + 3)
        for i in range(wk * s, min(8, wk * s + wk)):
            if i % 4 == 0:
                A(f"s_add_u32 m0, s{sWm + i // 4}, {L_R2}")
                A("s_nop 0")
            dma_piece(S_W2, sWo + (i >> 2), i)
    stamp(A, opt, "bvm")
    A(f"""
    s_mov_b32 s{sTi}, 0
    s_waitcnt vmcnt(9)
    Lnonce_check:
    v_readfirstlane_b32 s{sNon}, v{vNon}
    v_readfirstlane_b32 s{sNon + 1}, v{vNon + 1}
    s_add_u32 s{sTi}, s{sTi}, 1
    s_cmp_lg_u32 s{sNon}, 0
    s_cbranch_scc1 Lnonce_ok
    buffer_load_dwordx2 {vr(vNon, 2)}, v{vZero}, {sr(S_DBG, 4)}, 0 offen sc1
    s_cmp_lt_u32 s{sTi}, {SPIN_MAX}
    s_waitcnt vmcnt(0)
    s_cbranch_scc1 Lnonce_check
    Lnonce_ok:
    s_and_b32 s{sNon + 1}, s{sNon + 1}, 0x3ff
    s_lshl_b32 s3, s{sNon + 1}, 22
    v_lshl_or_b32 v{pG}, v{pC}, 11, v{pB}
    v_lshl_or_b32 v{pG + 2}, v{pC + 1}, 11, v{pB + 1}
    v_or_b32 v{pG}, s3, v{pG}
    v_or_b32 v{pG + 2}, s3, v{pG + 2}
    v_mov_b32 v{pG + 1}, s{sNon}
    v_mov_b32 v{pG + 3}, s{sNon}
    v_lshrrev_b32 v{vE}, {3 + OB}, v{vX + 2}
    v_and_b32 v{vE + 1}, {(8 << OB) - 1}, v{vX + 2}
    v_lshl_add_u32 v{vE}, v{vE}, {11 + OB}, v{vE + 1}
    s_lshl_b32 s3, s2, {3 + OB}
    s_cmp_ge_u32 s{sW}, 2
    {'' if b4b else 's_waitcnt vmcnt(0)'}
    s_barrier
    s_cbranch_scc1 Lno_off
    buffer_store_dwordx4 {vr(pG, 4)}, v{vE}, {sr(S_OFFS, 4)}, s3 offen sc1
    Lno_off:
    """)
    stamp(A, opt, "sig")
    for g in range(4):
        for i in range(4 * g, 4 * g + 4):
            A(f"v_fma_mixlo_f16 v{bV + i}, v{bB + i}, s{sNl}, 0")
        A(f"ds_write_b128 v{vSw}, {vr(bV + 4 * g, 4)} offset:{32 * g}")
    for i in range(4):
        A(f"ds_read_b128 {vr(bO + 4 * i, 4)}, v{vSr} offset:{1152 * i}")
    A(f"""
    s_or_b32 s3, s2, s{sW}
    s_cbranch_scc1 Lno_pad
    v_mov_b32 v{vE}, 0x7c00
    v_mov_b32 v{vE + 1}, 0x7c00
    v_lshrrev_b32 v{vE + 2}, 1, v{vX + 3}
    s_mov_b32 s3, {TAB_BYTES}
    buffer_store_dwordx2 {vr(vE, 2)}, v{vE + 2}, {sr(S_TAB, 4)}, s3 offen sc1
    Lno_pad:
    s_lshr_b32 s3, s{sBk}, {OB}
    s_lshl_b32 s3, s3, {8 + OB}
    s_and_b32 s{sQ1}, s{sBk}, {(1 << OB) - 1}
    s_add_u32 s{sQ1}, s{sQ1}, s3
    s_lshl_b32 s{sQ1}, s{sQ1}, 3
    s_mov_b32 s3, 0
    """)
    def au_reads(s):
        for z in range(2):
            A(f"ds_read_b64_tr_b16 {vr(vWf + 4 * s + 2 * z, 2)}, v{vAt} offset:{s * 4096 + z * 1024}")
        A(f"ds_read_b128 {vr(vXf + 4 * s, 4)}, v{vXrd} offset:{32 * s}")

    for s in range(4):
        A(f"s_waitcnt lgkmcnt({3 - s if b4b else 3 + 2 * s})")
        A(f"buffer_store_dwordx4 {vr(bO + 4 * s, 4)}, v{vBs}, {sr(S_TW, 4)}, s3 offen sc1")
        A("s_add_u32 s3, s3, 4096")
        if not b4b:
            au_reads(s)
    if b4b:
        A(f"""
        s_cmp_ge_u32 s{sW}, 2
        s_cbranch_scc1 Lwau_0
        s_waitcnt vmcnt(5)
        s_branch Lwau_1
        Lwau_0:
        s_waitcnt vmcnt(4)
        Lwau_1:
        s_barrier
        """)
        for s in range(4):
            au_reads(s)
    stamp(A, opt, "bve")
    if opt.get("notab"):
        A(f"s_mov_b32 s{S_TAB + 2}, 0")
    poll = f"buffer_load_dwordx2 {vr(vOffs, 2)}, v{vPa}, {sr(S_OFFS, 4)}, s{sQ1} offen sc1"

    def tag_wait(name, v, reload):
        A(f"""
        s_mov_b32 s{sTi}, 0
        L{name}_check:
        v_lshrrev_b32 v{vX + 11}, 22, v{v}
        v_cmp_ne_u32_e64 {sr(sTmp, 2)}, s{sNon}, v{v + 1}
        v_cmp_ne_u32 vcc, s{sNon + 1}, v{vX + 11}
        s_add_u32 s{sTi}, s{sTi}, 1
        s_or_b64 vcc, vcc, {sr(sTmp, 2)}
        s_cbranch_scc0 L{name}_ok
        {reload}
        s_cmp_lt_u32 s{sTi}, {SPIN_MAX}
        s_waitcnt vmcnt(0)
        s_cbranch_scc1 L{name}_check
        L{name}_ok:
        """)

    def batch_masks(window):
        A(f"""
        v_bfe_u32 v{vX}, v{vOffs}, 11, 11
        v_and_b32 v{vX + 1}, 1, v{vTid}
        v_subrev_u32 v{vX}, s{sW0}, v{vX}
        v_lshlrev_b32 v{vX + 1}, 2, v{vX + 1}
        v_cmp_lt_i32_e64 {sr(sMore, 2)}, {window}, v{vX}
        v_sub_u32 v{vX}, v{vX}, v{vX + 1}
        """)
        for i in range(window // 2):
            A(f"v_cmp_lt_i32_e64 {sr((cand + cand2)[i][5], 2)}, {(i & 3) + 8 * (i >> 2)}, v{vX}")

    def rec_addr():
        A(f"""
        v_lshrrev_b32 v{vX + 2}, 1, v{vTid}
        v_and_b32 v{vX + 1}, 1, v{vTid}
        v_mul_u32_u24 v{vX + 2}, {CH}, v{vX + 2}
        v_lshl_add_u32 v{vX + 1}, v{vX + 1}, 2, s{sW0}
        v_add_u32 v{vX + 1}, v{vX + 1}, v{vX + 2}
        v_lshlrev_b32 v{vX + 2}, 5, v{vX + 2}
        """)
        for i in range(0, 8, 2):
            A(f"v_mov_b64 {vr(vKey + i, 2)}, 0")

    def rec_loads(both=True):
        A(f"""
        v_and_b32 v{vX + 4}, 0x7ff, v{vOffs}
        v_add_lshl_u32 v{vX + 4}, v{vX + 4}, v{vX + 1}, 2
        buffer_load_dwordx4 {vr(vRec, 4)}, v{vX + 4}, {sr(S_REC, 4)}, 0 offen sc1
        """)
        if both:
            A(f"buffer_load_dwordx4 {vr(vRec + 4, 4)}, v{vX + 4}, {sr(S_REC, 4)}, 0 offen offset:32 sc1")

    def histogram(cs):
        for rec, key, rank, so_, eo_, m in cs:
            A(f"s_mov_b64 exec, {sr(m, 2)}")
            A(f"v_alignbit_b32 v{key}, v{rec}, v{rec}, 27")
            A(f"v_and_b32 v{key}, 0x7fc, v{key}")
            A(f"ds_add_rtn_u32 v{rank}, v{key}, v{vOne} offset:{L_CNT}")
        A("s_mov_b64 exec, -1")

    def place(cs):
        for rec, key, rank, so_, eo_, m in cs:
            A(f"s_mov_b64 exec, {sr(m, 2)}")
            A(f"v_lshl_add_u32 v{key}, v{rank}, 3, v{key}")
            A(f"ds_write2_b32 v{key}, v{rec}, v{vX + 2} offset0:0 offset1:1")
        A("s_mov_b64 exec, -1")

    def hand_over():
        rec_addr()
        A("s_waitcnt vmcnt(1)")
        A("s_barrier")
        stamp(A, opt, "b5")
        A(f"""
        s_cmp_lg_u32 s{sW}, 7
        s_cbranch_scc1 Lno_tf
        s_lshl_b32 s{sTmp + 1}, s2, {TS}
        s_add_u32 s{sTmp + 1}, s{sTmp + 1}, {TF_OFF}
        s_mov_b64 exec, 1
        buffer_store_dwordx2 {vr(pG, 2)}, v{vZero}, {sr(S_OFFS, 4)}, s{sTmp + 1} offen sc1
        s_mov_b64 exec, -1
        s_waitcnt vmcnt(1)
        s_branch Ltf_sent
        Lno_tf:
        s_waitcnt vmcnt(0)
        Ltf_sent:
        """)
        tag_wait("off", vOffs, poll)
        stamp(A, opt, "off")
        rmask = int(opt.get("rmask", 1))
        rec_loads(not rmask)
        batch_masks(24)
        if rmask:
            A(f"""
            s_mov_b64 exec, {sr(cand[4][5], 2)}
            s_cbranch_execz Lno_rec1
            buffer_load_dwordx4 {vr(vRec + 4, 4)}, v{vX + 4}, {sr(S_REC, 4)}, 0 offen offset:32 sc1
            Lno_rec1:
            s_mov_b64 exec, -1
            """)
        A(f"""
        s_cmp_eq_u64 {sr(sMask2, 2)}, 0
        s_cbranch_scc1 Lno_rec2
        buffer_load_dwordx4 {vr(cand2[0][0], 4)}, v{vX + 4}, {sr(S_REC, 4)}, 0 offen offset:64 sc1
        v_mov_b64 {vr(cand2[0][1], 2)}, 0
        v_mov_b64 {vr(cand2[2][1], 2)}, 0
        Lno_rec2:
        """)

    b5_at = int(opt.get("b5_at", 16))
    assert poll_at <= b5_at
    for k in range(16):
        nb, s = k >> 3, k & 7
        if k == poll_at:
            A(poll)
        if k == b5_at:
            hand_over()
        A(f"s_waitcnt lgkmcnt({9 if k < 5 else (7, 5, 3)[k - 5] if k < 8 else min(3, 15 - k)})")
        cc = "0" if s == 0 else vr(vG + 16 * nb, 16)
        A(f"v_mfma_f32_32x32x16_bf16 {vr(vG + 16 * nb, 16)}, {vr(vWf + 4 * s, 4)}, {vr(vXf + 4 * (k & 7), 4)}, {cc}")
        kn = k + 4
        if kn < 8:
            for z in range(2):
                A(f"ds_read_b64_tr_b16 {vr(vWf + 4 * kn + 2 * z, 2)}, v{vAt} offset:{kn * 4096 + z * 1024}")
        if kn < 16:
            A(f"ds_read_b128 {vr(vXf + 4 * (kn & 7), 4)}, v{vXrd} offset:{32 * 272 * (kn >> 3) + 32 * (kn & 7)}")
    if b5_at == 16:
        hand_over()
    vId = 64
    A(f"""
    s_cmp_lt_u32 s{sW}, 4
    s_cbranch_scc1 Lno_ident
    s_and_b32 s3, s{sW}, 3
    s_lshl_b32 s3, s3, 6
    v_add_u32 v{vX + 11}, s3, v{vXrd}
    """)
    for nb in range(2):
        for z in range(2):
            A(f"ds_read_b128 {vr(vXf + 8 * nb + 4 * z, 4)}, v{vX + 11} offset:{32 * 272 * nb + 32 * z}")
    A(f"""
    v_lshrrev_b32 v{vX + 11}, 4, v{vLo}
    v_lshrrev_b32 v{vX + 12}, 1, v{vH16}
    v_sub_u32 v{vX + 11}, v{vX + 11}, v{vX + 12}
    v_and_b32 v{vX + 12}, 1, v{vX + 11}
    v_lshlrev_b32 v{vX + 12}, 4, v{vX + 12}
    v_mov_b32 v{vX + 13}, 0x3f80
    v_lshlrev_b32 v{vX + 12}, v{vX + 12}, v{vX + 13}
    v_ashrrev_i32 v{vX + 11}, 1, v{vX + 11}
    """)
    for i in range(8):
        A(f"v_cmp_eq_u32_e64 {sr((sTmp, sNext)[i & 1], 2)}, {8 * (i >> 2) + (i & 3)}, v{vX + 11}")
        if i:
            A("s_nop 0")
            A(f"v_cndmask_b32_e64 v{vId + i - 1}, 0, v{vX + 12}, {sr((sTmp, sNext)[(i - 1) & 1], 2)}")
    A("s_nop 0")
    A(f"v_cndmask_b32_e64 v{vId + 7}, 0, v{vX + 12}, {sr(sNext, 2)}")
    A("s_waitcnt lgkmcnt(0)")
    for z in range(2):
        for nb in range(2):
            A(f"v_mfma_f32_32x32x16_bf16 {vr(vG + 16 * nb, 16)}, {vr(vId + 4 * z, 4)}, {vr(vXf + 8 * nb + 4 * z, 4)}, {vr(vG + 16 * nb, 16)}")
    A("Lno_ident:")
    if b5_at == 17:
        hand_over()
    stamp(A, opt, "aum")

    tf_poll = f"buffer_load_dwordx2 {vr(vTf, 2)}, v{vPa}, {sr(S_OFFS, 4)}, s{sQ1} offen sc1"
    vRaw = vD
    A(f"""
    v_lshrrev_b32 v{vPa}, 1, v{vLo}
    {f'v_lshlrev_b32 v{vPa}, {TS - 3}, v{vPa}' if TS > 3 else ''}
    """)

    def wc_reads():
        A(f"""
        v_lshrrev_b32 v{vX + 11}, 1, v{vLo}
        v_lshl_add_u32 v{vX + 11}, v{vH16}, 7, v{vX + 11}
        v_add_u32 v{vX + 11}, {L_WCR}, v{vX + 11}
        """)
        for i in range(8):
            A(f"ds_read_b64 {vr(vRaw + 2 * i, 2)}, v{vX + 11} offset:{256 * i}")

    def wc_fragments():
        A("s_mov_b32 s3, 0x05040100")
        A(f"s_mov_b32 s{sTmp}, 0x07060302")
        for j in range(4):
            for i in range(4):
                A(f"v_perm_b32 v{vWC + 4 * j + i}, v{vRaw + 2 * (2 * i + 1) + (j >> 1)}, v{vRaw + 2 * (2 * i) + (j >> 1)}, "
                  f"s{(3, sTmp)[j & 1]}")

    A(f"""
    s_lshl_b32 s{sQ1}, s{sW}, {5 + TS}
    s_add_u32 s{sQ1}, s{sQ1}, {TF_OFF}
    s_mov_b64 vcc, {sr(sMore, 2)}
    s_cmp_ge_u32 s{sW}, 4
    s_cbranch_scc1 Lu_wave
    v_mov_b32 v{vXs + 2}, 0
    """)
    row_mask = "s_mov_b32 exec_lo, 0xfffff\ns_mov_b32 exec_hi, 0xfffff"
    for i in range(0, 32, 2):
        if i == 16:
            A(row_mask)
        A(f"v_max3_f32 v{vXs + 2}, |v{vG + i}|, |v{vG + i + 1}|, v{vXs + 2}")
    A("s_mov_b64 exec, -1")
    A(f"v_cmp_lt_f32 vcc, {hex(f32(AMAX))}, v{vXs + 2}")
    A(f"s_or_b64 vcc, vcc, {sr(sMore, 2)}")

    def node_rows():
        for nb in range(2):
            if nb == 1:
                A(row_mask)
            for g in range(4):
                A(f"ds_write_b128 v{vTw}, {vr(vG + 16 * nb + 4 * g, 4)} offset:{32 * 528 * nb + 32 * g}")
        A("s_mov_b64 exec, -1")

    def node_exponents():
        A(f"""
        v_mov_b32 v{vXs}, {hex(f32(-float(KSH)))}
        v_mov_b32 v{vXs + 1}, {hex(f32(-float(KSH)))}
        s_mov_b32 s{sTmp}, s{sNl}
        s_mov_b32 s{sTmp + 1}, s{sNl}
        """)
        for i in range(0, 32, 2):
            A(f"v_pk_fma_f32 {vr(vG + i, 2)}, {vr(vG + i, 2)}, {sr(sTmp, 2)}, {vr(vXs, 2)}")

    A("Lu_wave:")
    A("s_mov_b64 exec, vcc")
    A(f"ds_write_b32 v{vZero}, v{vOne} offset:{L_FLAG}")
    A("s_mov_b64 exec, -1")
    late_tf = int(opt.get("late_tf", 2))
    if late_tf < 2:
        A(tf_poll)
    la = vSoff
    A(f"""
    s_mul_i32 s{sSW}, s{sW}, {STRW}
    s_add_u32 s{sSW}, s{sSW}, {L_STR}
    v_add_u32 v{vSp}, s{sSW}, v{vH16}
    v_bfe_u32 v{vX + 12}, v{vTid}, 3, 2
    v_bfe_u32 v{vX + 13}, v{vTid}, 1, 1
    v_lshl_add_u32 v{vX + 12}, v{vX + 12}, 1, v{vX + 13}
    v_bfe_u32 v{vX + 13}, v{vTid}, 2, 1
    v_lshl_add_u32 v{vX + 12}, v{vX + 12}, 1, v{vX + 13}
    v_and_b32 v{vX + 13}, 1, v{vTid}
    v_lshl_add_u32 v{vX + 12}, v{vX + 12}, 1, v{vX + 13}
    v_lshl_add_u32 v{vEp}, v{vX + 12}, 2, s{sSW}
    v_bfrev_b32 v{vX + 13}, 2
    v_mov_b32 v{vX + 12}, {N << 18}
    v_lshlrev_b32 v{la}, 1, v{vX + 3}
    v_lshlrev_b32 v{la + 1}, 3, v{vX + 3}
    v_lshrrev_b32 v{la + 2}, 4, v{vX + 3}
    v_lshl_add_u32 v{la + 3}, v{la + 2}, 2, s{sSW}
    """)
    A(f"s_waitcnt vmcnt({1 if late_tf < 2 else 0})")
    stamp(A, opt, "rec")
    histogram(cand)
    A(f"s_cmp_eq_u64 {sr(sMask2, 2)}, 0")
    A("s_cbranch_scc1 Lno_hist2")
    histogram(cand2)
    A("Lno_hist2:")
    A("s_waitcnt vmcnt(0)")
    stamp(A, opt, "hist")
    epf = int(opt.get("epf", 2500))
    assert not (late_tf and pf_lanes)
    if late_tf == 2:
        A(tf_poll)
    elif late_tf:
        A(f"""
        v_lshrrev_b32 v{vX + 11}, 22, v{vTf}
        v_cmp_ne_u32_e64 {sr(sTmp, 2)}, s{sNon}, v{vTf + 1}
        v_cmp_ne_u32 vcc, s{sNon + 1}, v{vX + 11}
        s_or_b64 {sr(sMore, 2)}, vcc, {sr(sTmp, 2)}
        s_cbranch_scc0 Ltf_seen
        {tf_poll}
        Ltf_seen:
        """)
    else:
        tag_wait("tf", vTf, tf_poll)

    def early_features():
        A(f"s_mov_b32 s3, {epf << 18}")
        for rec, key_, rank, so_, eo_, m in cand[:4]:
            A(f"v_cmp_gt_u32 vcc, s3, v{rec}")
            A(f"v_bfe_u32 v{eo_}, v{rec}, 6, 12")
            A(f"v_lshl_add_u32 v{eo_}, v{eo_}, 5, v{vX + 2}")
            A(f"s_and_b64 vcc, vcc, {sr(m, 2)}")
            A("s_or_b64 exec, vcc, 1")
            A(f"buffer_load_dword v{vL + 22}, v{eo_}, {sr(S_EA, 4)}, 0 offen")
            A("s_mov_b64 exec, -1")

    if epf:
        early_features()
    A("s_waitcnt lgkmcnt(0)")
    A("s_barrier")
    stamp(A, opt, "bB")
    c, p, deg, q, inc, g4 = vL, vL + 8, vL + 16, vL + 17, vL + 18, vL + 19
    A(f"ds_read_b128 {vr(c, 4)}, v{la} offset:{L_CNT}")
    A(f"ds_read_b128 {vr(c + 4, 4)}, v{la} offset:{L_CNT + 16}")
    if pf_lanes:
        A(f"""
        s_andn2_b32 s3, s2, 7
        s_add_u32 s3, s3, s{sW}
        s_mul_i32 s3, s3, {pf_lanes * 128}
        {'s_nop 0' if pf_lanes == 64 else f's_bfm_b64 exec, {pf_lanes}, 0'}
        buffer_load_dword v{vL + 22}, v{la + 1}, {sr(S_TAB, 4)}, s3 offen {tab_pol}
        s_mov_b64 exec, -1
        """)
    A(f"""
    s_mov_b32 s{sQ2}, {L_SO}
    s_waitcnt lgkmcnt(1)
    v_add_u32 v{p + 2}, v{c}, v{c + 1}
    v_add3_u32 v{p + 4}, v{p + 2}, v{c + 2}, v{c + 3}
    s_waitcnt lgkmcnt(0)
    v_add3_u32 v{p + 6}, v{p + 4}, v{c + 4}, v{c + 5}
    v_add3_u32 v{deg}, v{p + 6}, v{c + 6}, v{c + 7}
    v_add_u32 v{q}, 3, v{deg}
    v_lshrrev_b32 v{inc}, 2, v{q}
    """)
    wave_scan(A, inc, fill=[
        [f"v_lshrrev_b32 v{q}, 2, v{q}", f"v_add_u32 v{p + 3}, v{p + 2}, v{c + 2}"],
        [f"v_add_u32 v{p + 5}, v{p + 4}, v{c + 4}", f"v_add_u32 v{p + 7}, v{p + 6}, v{c + 6}"],
        [f"v_add_u32 v{deg}, s{sW}, v{deg}", f"v_lshlrev_b32 v{c + 1}, 2, v{q}"],
        [f"v_cmp_lt_u32_e64 {sr(sNext, 2)}, v{deg}, v{c + 1}", "s_nop 0"]])
    A(f"v_sub_u32 v{g4}, v{inc}, v{q}")
    A(f"v_readlane_b32 s3, v{inc}, 63")
    A(f"v_lshl_add_u32 v{p}, v{g4}, 5, s{sQ2}")
    A(f"v_lshl_add_u32 v{p + 1}, v{c}, 3, v{p}")
    for i in range(2, 8):
        A(f"v_lshl_add_u32 v{p + i}, v{p + i}, 3, v{p}")
        if i in (3, 7):
            A(f"ds_write_b128 v{la}, {vr(p + i - 3, 4)} offset:{L_BASE + 4 * (i - 3)}")
    for cd in cand:
        A(f"ds_read_b32 v{cd[1]}, v{cd[1]} offset:{L_BASE}")
    A(f"""
    s_mul_i32 s{sLw}, s3, s{sW}
    s_add_u32 s{sRem}, s{sLw}, s3
    s_lshr_b32 s{sLw}, s{sLw}, 3
    s_lshr_b32 s{sRem}, s{sRem}, 3
    v_cmp_gt_u32_e64 {sr(sTmp, 2)}, s{sLw}, v{g4}
    v_cmp_gt_u32 vcc, s{sRem}, v{g4}
    v_lshl_add_u32 v{deg}, v{deg}, 3, v{p}
    s_bcnt1_i32_b64 s{sF0}, {sr(sTmp, 2)}
    s_bcnt1_i32_b64 s{sOwn}, vcc
    s_cmp_eq_u32 s{sW}, 7
    s_cselect_b32 s{sOwn}, s{sNn}, s{sOwn}
    s_sub_u32 s{sOwn}, s{sOwn}, s{sF0}
    s_sub_u32 s{sRem}, s{sRem}, s{sLw}
    s_waitcnt lgkmcnt(0)
    """)
    stamp(A, opt, "scan2")
    place(cand)
    A(f"s_cmp_eq_u64 {sr(sMask2, 2)}, 0")
    A("s_cbranch_scc1 Lno_place2")
    for cd in cand2:
        A(f"ds_read_b32 v{cd[1]}, v{cd[1]} offset:{L_BASE}")
    A("s_waitcnt lgkmcnt(0)")
    place(cand2)
    A("Lno_place2:")
    en, so, eo, key, cn, pos, t = vL, vL + 8, vL + 12, vL + 20, vL + 24, vL + 21, vL + 26
    A(f"""
    s_mov_b64 exec, {sr(sNext, 2)}
    ds_write_b64 v{deg}, {vr(vX + 12, 2)}
    s_mov_b64 exec, -1
    """)
    if late_tf:
        if late_tf < 2:
            A(f"s_cmp_eq_u64 {sr(sMore, 2)}, 0")
            A("s_cbranch_scc1 Ltf_ok")
        A(f"s_waitcnt vmcnt({4 if epf else 0})")
        tag_wait("tf", vTf, tf_poll)
    A(f"""
    s_sub_u32 s3, s{sOwn}, 1
    s_sub_u32 s{sTmp}, s{sRem}, 1
    s_cmp_gt_u32 s{sTmp}, 63
    s_cselect_b32 s3, 8, s3
    s_cmp_gt_u32 s3, 7
    s_cselect_b64 exec, 1, 0
    ds_write_b32 v{vZero}, v{vOne} offset:{L_FLAG}
    s_mov_b64 exec, -1
    s_lshl_b32 s3, s{sLw}, 5
    v_add_u32 v{t}, s3, v{la}
    v_cmp_le_u32_e64 {sr(sTmp, 2)}, s{sRem}, v{la + 2}
    s_sub_u32 s{sQ1}, s{sF0}, 1
    s_mul_i32 s{sQ2}, s{sQ1}, 528
    s_add_u32 s{sQ2}, s{sQ2}, {L_TA}
    s_mov_b32 s{sQ3}, 0xfffffe00
    s_waitcnt lgkmcnt(0)
    s_barrier
    ds_read_b128 {vr(en, 4)}, v{t} offset:{L_SO}
    ds_read_b32 v{t + 3}, v{vZero} offset:{L_FLAG}
    ds_read_b128 {vr(en + 4, 4)}, v{t} offset:{L_SO + 16}
    v_cndmask_b32_e64 v{vInv}, 0, v{vX + 13}, {sr(sTmp, 2)}
    v_add_u32 v{vEb}, s{sQ2}, v{vLo}
    v_mov_b64 {vr(cn, 2)}, 1
    s_waitcnt lgkmcnt({2 if int(opt.get("kent", 1)) < 2 else 0})
    v_lshrrev_b32 v{key}, 26, v{en + 2 * int(opt.get("kent", 1))}
    v_and_b32 v{key}, 56, v{key}
    v_cndmask_b32_e64 v{key}, v{key}, 56, {sr(sTmp, 2)}
    s_waitcnt lgkmcnt(1)
    v_readfirstlane_b32 s3, v{t + 3}
    v_lshlrev_b64 {vr(cn, 2)}, v{key}, {vr(cn, 2)}
    v_and_b32 v{t + 3}, 63, v{en}
    s_cmp_lg_u32 s3, 0
    s_cbranch_scc1 Lslow_entry
    s_waitcnt lgkmcnt(0)
    """)
    stamp(A, opt, "bD")
    fillers = [f"v_subrev_u32 v{t + 3}, s{sQ1}, v{t + 3}", f"v_mul_u32_u24 v{t + 3}, 12, v{t + 3}"]
    fillers += [f"v_lshrrev_b32 v{so + i}, 9, v{en + 2 * i}" for i in range(4)]
    for k, d in enumerate(WAVE_SCAN):
        A(f"v_add_u32_dpp v{cn}, v{cn}, v{cn} {d} bank_mask:0xf")
        A(f"v_add_u32_dpp v{cn + 1}, v{cn + 1}, v{cn + 1} {d} bank_mask:0xf")
        A(fillers[k])
    A(f"v_readlane_b32 s{sTmp}, v{cn}, 63")
    A(f"v_readlane_b32 s{sTmp + 1}, v{cn + 1}, 63")
    for i in range(4):
        A(f"v_bfe_u32 v{eo + i}, v{en + 2 * i}, 6, 12")
    A(f"""
    s_mul_i32 s3, s{sTmp}, 0x01010101
    s_mul_i32 s{sTmp + 1}, s{sTmp + 1}, 0x01010100
    s_lshl_b32 s{sTmp}, s3, 8
    s_lshr_b32 s3, s3, 24
    s_mul_i32 s3, s3, 0x01010101
    s_add_u32 s{sTmp + 1}, s{sTmp + 1}, s3
    v_lshl_add_u64 {vr(cn, 2)}, {vr(cn, 2)}, 0, {sr(sTmp, 2)}
    s_sub_u32 s3, s{sSW}, 16
    v_lshrrev_b64 {vr(cn, 2)}, v{key}, {vr(cn, 2)}
    """)
    for i in range(4):
        A(f"v_lshl_add_u32 v{eo + i}, v{eo + i}, 5, v{en + 2 * i + 1}")
    A(f"v_and_b32 v{pos}, 0xff, v{cn}")
    for i in range(4):
        A(f"v_or_b32 v{eo + i}, v{eo + i}, v{vInv}")
    A(f"v_lshl_add_u32 v{t}, v{pos}, 4, s3")
    A(f"ds_write_b128 v{t}, {vr(eo, 4)} offset:1152")
    A(f"ds_read_b32 v{vEo}, v{vEp} offset:1152")
    for i in range(4):
        A(f"v_and_or_b32 v{so + i}, v{so + i}, s{sQ3}, v{vInv}")
    A(f"""
    v_and_b32 v{t + 1}, 1, v{pos}
    v_lshl_add_u32 v{t + 1}, v{t + 1}, 3, v{t}
    v_subrev_u32 v{t + 1}, 8, v{t + 1}
    ds_write2_b64 v{t + 1}, {vr(so, 2)}, {vr(so + 2, 2)} offset0:0 offset1:2
    ds_read_b128 {vr(vT, 4)}, v{vSp}
    ds_read_b128 {vr(vSo, 4)}, v{vSp} offset:32
    v_add_u32 v{t + 2}, s{sSW}, v{pos}
    ds_write_b8 v{t + 2}, v{t + 3} offset:2303
    ds_read_b32 v{vSb}, v{la + 3} offset:2304
    s_waitcnt lgkmcnt(5)
    v_add_u32 v{vEo}, v{vEo}, v{vH16}
    buffer_load_dwordx4 {vr(vEA, 4)}, v{vEo}, {sr(S_EA, 4)}, 0 offen {ea_pol}
    """)
    dist = int(opt.get("dist", 4))
    for u in range(dist):
        src = (vT, vT + 2, vSo, vSo + 2)[u]
        if u in (0, 2):
            A(f"s_waitcnt lgkmcnt({(3, 1)[u // 2]})")
        A(f"v_lshl_add_u64 {vr(src, 2)}, {vr(src, 2)}, 0, {vr(vLo, 2)}")
        A(f"buffer_load_dwordx4 {vr(vL + 8 * u, 4)}, v{src}, {sr(S_TAB, 4)}, 0 offen {tab_pol}")
        A(f"buffer_load_dwordx4 {vr(vL + 8 * u + 4, 4)}, v{src + 1}, {sr(S_TAB, 4)}, 0 offen {tab_pol}")
    stamp(A, opt, "prim")
    eps = 1e-6 / c0
    wc_reads()
    A(f"s_and_b32 s3, s{sW}, 4")
    A(f"v_mov_b32 v{vEad}, s3")
    A("s_cbranch_scc1 Lfactors_made")
    node_exponents()
    for i in range(32):
        A(f"v_exp_f32 v{vG + i}, v{vG + i}")
    A("Lfactors_made:")
    node_rows()
    A(f"""
    s_mov_b64 exec, 1
    ds_add_u32 v{vEad}, v{vOne} offset:{L_FLAG + 8}
    s_mov_b64 exec, -1
    s_waitcnt lgkmcnt(9)
    """)
    wc_fragments()
    A(f"""
    s_waitcnt lgkmcnt(0)
    s_mov_b32 s{sTmp}, {hex(f32(eps / 2))}
    s_mov_b32 s{sTmp + 1}, {hex(f32(eps / 2))}
    """)
    for sl_ in range(NS):
        for j in range(0, 8, 2):
            A(f"v_mov_b64 {vr(vSl + 12 * sl_ + j, 2)}, {sr(sTmp, 2) if sl_ and j >= 4 else 0}")
    eA1, eA2, eA3, eA4, eFl, eOne = 248, 249, 250, 251, 252, 253
    sOut, sLast = sOvf, sMor
    A(f"""
    v_add_u32 v{eA1}, s{sSW}, v{vX + 3}
    s_mul_i32 s3, s{sF0}, 528
    s_add_u32 s3, s3, {L_TU}
    v_mul_u32_u24 v{eA2}, 33, v{vH16}
    v_add3_u32 v{eA2}, v{eA2}, v{vLo}, s3
    s_mul_i32 s3, s{sF0}, 272
    s_add_u32 s3, s3, {L_X}
    v_mul_u32_u24 v{eA3}, 17, v{vH16}
    v_lshrrev_b32 v{eA4}, 1, v{vLo}
    v_add3_u32 v{eA3}, v{eA3}, v{eA4}, s3
    v_lshl_add_u32 v{eA4}, v{vH16}, 4, v{eA4}
    s_lshl_b32 s3, s{sW}, 2
    v_mov_b32 v{eFl}, s3
    v_mov_b32 v{eOne}, {L_FLAG + 12}
    s_add_u32 s{sOut}, s{sN0}, s{sF0}
    s_lshl_b32 s{sOut}, s{sOut}, 8
    s_mul_i32 s{sLast}, s{sOwn}, 12
    """)
    A("Lfactors:")
    A(f"ds_read_b32 v{vEad}, v{vZero} offset:{L_FLAG + 8}")
    for sl_ in range(NS):
        A(f"ds_read_b128 {vr(vSl + 12 * sl_ + 8, 4)}, v{vEb} offset:{528 * sl_}")
    A("s_waitcnt lgkmcnt(0)")
    A(f"v_cmp_gt_u32 vcc, 4, v{vEad}")
    A("s_cbranch_vccnz Lfactors")
    ea_at = int(opt.get("ea_at", 3))
    prio = opt.get("prio", "alt")
    A(f"""
    s_waitcnt lgkmcnt(0)
    v_readlane_b32 s{sSl0}, v{vSb}, 0
    v_readlane_b32 s{sSl1}, v{vSb}, 1
    s_mov_b32 s{sLn}, 2
    s_mov_b32 s{sLn + 1}, 3
    """)
    if prio == "quart":
        A(f"""
        s_mul_i32 s{sQ1}, s{sRem}, 3
        s_lshr_b32 s{sQ1}, s{sQ1}, 2
        s_lshr_b32 s{sQ2}, s{sRem}, 1
        s_lshr_b32 s{sQ3}, s{sRem}, 2
        """)
    else:
        first_drop = [int(x) for x in opt.get("drop", "8,16").split(",")]
        A(f"""
        s_cmp_lt_u32 s{sW}, 4
        s_cselect_b32 s3, {first_drop[0]}, {first_drop[1]}
        s_sub_i32 s{sQ1}, s{sRem}, s3
        s_sub_i32 s{sQ2}, s{sQ1}, {int(opt.get("dstep", 16))}
        s_sub_i32 s{sQ3}, s{sQ2}, {int(opt.get("dstep", 16))}
        """)
        if opt.get("dend"):
            e0, e1 = (int(x) for x in opt["dend"].split(","))
            A(f"""
            s_cmp_lt_u32 s{sW}, 4
            s_cselect_b32 s{sQ3}, {e0}, {e1}
            s_add_u32 s{sQ2}, s{sQ3}, {int(opt.get("dstep", 16))}
            s_add_u32 s{sQ1}, s{sQ2}, {int(opt.get("dstep", 16))}
            """)
    thr_on = opt.get("thr")
    if thr_on:
        ref, mul, cut = (int(x) for x in thr_on.split(","))
        A(f"""
        s_sub_i32 s3, {ref}, s{sRem}
        s_mul_i32 s3, s3, {mul}
        s_sub_i32 s{sTi}, s{sRem}, s3
        """)
    fair = int(opt.get("fair", 0))
    vFa, vFi, vFr = 248, 249, 250
    if fair:
        A(f"""
        s_and_b32 s3, s{sW}, 3
        s_lshl_b32 s3, s3, 2
        v_mov_b32 v{vFa}, s3
        s_cmp_lt_u32 s{sW}, 4
        s_cselect_b32 s{sQ1}, 1, -1
        v_mov_b32 v{vFi}, s{sQ1}
        """)
    A("s_setprio 3")
    A(f"s_waitcnt vmcnt({2 * dist})")
    stamp(A, opt, "first")

    def mfma(j):
        return f"v_mfma_f32_32x32x16_bf16 {vr(vD + 16 * j, 16)}, {vr(vEA, 4)}, {vr(vWC + 4 * j, 4)}, 0"

    for j in range(4):
        A(mfma(j))
    A("s_nop 8")
    A(f"s_cmp_gt_u32 s{sRem}, 8")
    A("s_cbranch_scc0 Llast")

    def step(u, last, q):
        La, Lb = vL + 8 * (u & 3), vL + 8 * (u & 3) + 4
        a, b = vT, vT + 4
        sl = (sSl0, sSl1)[u >> 2]
        nv = u + dist
        prefetch = not (last and nv >= 8)
        check = fair and u % fair == 0
        need = [u] + (["E"] if u == 7 and not last else [])
        A(f"s_waitcnt vmcnt({len(q) - 1 - max(i for i, x in enumerate(q) if x in need)})")
        if thr_on and not last:
            A(f"s_cbranch_vccz Lthr{u}")
            A(f"s_waitcnt vmcnt({len(q) - 1 - max(i for i, x in enumerate(q) if x in need + [u + cut])})")
            A(f"Lthr{u}:")
        lds = (prefetch and nv % 2 == 0) or (u == ea_at and not last) or check
        if prefetch and nv % 2 == 0:
            A(f"ds_read_b128 {vr(vSo, 4)}, v{vSp} offset:{16 * nv}")
        if check:
            A("s_nop 0")
            A("s_mov_b64 exec, 1")
            A(f"ds_add_rtn_u32 v{vFr}, v{vFa}, v{vFi} offset:{L_FLAG + 32}")
            A("s_mov_b64 exec, -1")
            A("s_nop 0")
        if u == ea_at and not last:
            A(f"ds_read_b32 v{vEo}, v{vEp} offset:{1152 + 128}")

        def mix(j, hb):
            return (f"v_fma_mix_f32 v{(a, b)[hb] + j}, v{vD + 16 * j + 2 * u + hb}, s{sNl}, v{(La, Lb)[hb] + j} "
                    "op_sel_hi:[0,0,1]")

        if u == 7 and not last:
            for j in range(4):
                A(mix(j, 0))
                A(mix(j, 1))
                if j:
                    A(f"v_exp_f32 v{a + j - 1}, v{a + j - 1}")
                    A(f"v_exp_f32 v{b + j - 1}, v{b + j - 1}")
                A(mfma(j))
            A(f"v_exp_f32{'' if lds else '_e64'} v{a + 3}, v{a + 3}")
            A(f"v_exp_f32 v{b + 3}, v{b + 3}")
        else:
            for hb in range(2):
                for j in range(4):
                    A(mix(j, hb))
            for j in range(8):
                A(f"v_exp_f32{'_e64' if j == 0 and not lds else ''} v{a + j}, v{a + j}")
        if lds:
            A("s_waitcnt lgkmcnt(0)")
        A(f"s_set_gpr_idx_on s{sl}, gpr_idx(SRC1)")
        for j in range(0, 8, 2):
            A(f"v_pk_fma_f32 {vr(a + j, 2)}, {vr(a + j, 2)}, {vr(vSl + 8 + (j & 3), 2)}, {sr(sC0, 2)} clamp")
        A("s_set_gpr_idx_mode gpr_idx()")
        A(f"s_lshr_b32 s{sl}, s{sl}, 8")
        if check:
            A(f"v_readlane_b32 s3, v{vFr}, 0")
        if u == ea_at and not last:
            A(f"v_add_u32_e64 v{vEo}, v{vEo}, v{vH16}")
            A(f"buffer_load_dwordx4 {vr(vEA, 4)}, v{vEo}, {sr(S_EA, 4)}, 0 offen {ea_pol}")
            q.append("E")
        for j in (0, 2):
            A(f"v_pk_mul_f32 {vr(La + j, 2)}, {vr(La + j, 2)}, {vr(b + j, 2)}")
        if check:
            tag = f"Lfair{u}{'l' if last else ''}"
            A(f"""
            s_mul_i32 s3, s3, s{sQ1}
            s_setprio 0
            s_cmp_ge_i32 s3, 0
            s_cbranch_scc1 {tag}
            s_setprio 2
            s_nop 0
            {tag}:
            """)
        so2 = vSo + 2 * (nv & 1)
        if prefetch:
            A(f"v_lshl_add_u64 {vr(so2, 2)}, {vr(so2, 2)}, 0, {vr(vLo, 2)}")
        for j in (0, 2):
            A(f"v_pk_fma_f32 {vr(La + j, 2)}, {vr(Lb + j, 2)}, {vr(a + j, 2)}, {vr(La + j, 2)}")
        for j in (0, 2):
            A(f"v_pk_add_f32 {vr(Lb + j, 2)}, {vr(a + j, 2)}, {vr(b + j, 2)}")
        for j in (0, 2):
            A(f"v_pk_mul_f32 {vr(a + j, 2)}, {vr(a + j, 2)}, {vr(b + j, 2)}")
        for j in range(4):
            A(f"v_rcp_f32{'_e64' if j == 0 else ''} v{a + j}, v{a + j}")
        A("s_set_gpr_idx_mode gpr_idx(SRC2,DST)")
        for j in (0, 2):
            A(f"v_pk_fma_f32 {vr(vSl + j, 2)}, {vr(La + j, 2)}, {vr(a + j, 2)}, {vr(vSl + j, 2)}")
            A(f"v_pk_fma_f32 {vr(vSl + 4 + j, 2)}, {vr(Lb + j, 2)}, {vr(a + j, 2)}, {vr(vSl + 4 + j, 2)}")
        if prefetch:
            A(f"buffer_load_dwordx4 {vr(vL + 8 * (nv & 3), 4)}, v{so2}, {sr(S_TAB, 4)}, 0 offen {tab_pol}")
            A(f"buffer_load_dwordx4 {vr(vL + 8 * (nv & 3) + 4, 4)}, v{so2 + 1}, {sr(S_TAB, 4)}, 0 offen {tab_pol}")
            q += [nv] * 2
        A("s_set_gpr_idx_off")

    assert 0 <= ea_at < 7
    A.note("""main loop: eight groups per tile. a = min(2^-48 * (1 + exp(-gate)), 1) for edges a and b of each half-wave:
    num += (Va * b + Vb * a) / (a * b), den += (a + b) / (a * b)""")
    A(".p2align 6")
    A("Ltile:")
    A(f"s_sub_u32 s{sRem}, s{sRem}, 8")
    if thr_on:
        A(f"s_cmp_ge_i32 s{sRem}, s{sTi}")
        A("s_cselect_b64 vcc, -1, 0")
    q = [0, 0, 1, 1, 2, 2, 3, 3][:2 * dist]
    for u in range(8):
        step(u, False, q)
        if u == 3 and int(opt.get("pmid", 0)):
            A(f"s_add_u32 s3, s{sRem}, 4")
            for k, sq in enumerate((sQ1, sQ2, sQ3)):
                A(f"s_cmp_le_i32 s3, s{sq}")
                A("s_cbranch_scc0 Lprio_mid")
                A(f"s_setprio {2 - k}")
            A("Lprio_mid:")
    A(f"""
    s_nop 0
    v_readlane_b32 s{sSl0}, v{vSb}, s{sLn}
    v_readlane_b32 s{sSl1}, v{vSb}, s{sLn + 1}
    v_add_u32 v{vSp}, 0x80, v{vSp}
    v_add_u32 v{vEp}, 0x80, v{vEp}
    s_add_u32 s{sLn}, s{sLn}, 2
    s_add_u32 s{sLn + 1}, s{sLn + 1}, 2
    """)
    if opt.get("tilestamps"):
        for k in range(2, 6):
            A(f"s_cmp_lg_u32 s{sLn}, {2 * k + 2}")
            A(f"s_cbranch_scc1 Lts{k}")
            stamp(A, opt, f"tile{k}")
            A(f"Lts{k}:")
    if prio != "none" and not fair:
        for k, sq in enumerate((sQ1, sQ2, sQ3)):
            A(f"s_cmp_le_i32 s{sRem}, s{sq}")
            A("s_cbranch_scc0 Lprio_done")
            A(f"s_setprio {2 - k}")
        A("Lprio_done:")
    A(f"s_cmp_gt_u32 s{sRem}, 8")
    A("s_cbranch_scc1 Ltile")
    A(".p2align 3")
    A(f"""
    Llast:
    ds_read_b32 v{vEad}, v{eOne}
    s_waitcnt lgkmcnt(0)
    v_cmp_gt_u32 vcc, 4, v{vEad}
    s_cbranch_vccnz Llast
    """)
    q = [0, 0, 1, 1, 2, 2, 3, 3][:2 * dist]
    for u in range(8):
        step(u, True, q)
        if u < 7:
            A(f"s_cmp_le_u32 s{sRem}, {u + 1}")
            A("s_cbranch_scc1 Lmain_done")
    A("Lmain_done:")
    stamp(A, opt, "done")

    def finalize(a0, o, a1, u0, x0, addr, soff, pre_store, pre_rows=""):
        for j in range(4):
            A(f"v_permlane32_swap_b32 v{a0 + j}, v{a1 + j}")
            A(f"v_permlane32_swap_b32 v{a0 + o + j}, v{a1 + o + j}")
        for j in (o, o + 2, 0, 2):
            A(f"v_pk_add_f32 {vr(a0 + j, 2)}, {vr(a0 + j, 2)}, {vr(a1 + j, 2)}")
        for j in range(4):
            A(f"v_rcp_f32 v{a0 + o + j}, v{a0 + o + j}")
        A(pre_rows)
        for j in (0, 2):
            A(f"v_pk_fma_f32 {vr(a0 + j, 2)}, {vr(a0 + j, 2)}, {vr(a0 + o + j, 2)}, {vr(u0 + j, 2)}")
        A(f"v_cvt_pk_bf16_f32 v{a0}, v{a0}, v{a0 + 1}")
        A(f"v_cvt_pk_bf16_f32 v{a0 + 1}, v{a0 + 2}, v{a0 + 3}")
        A(f"v_pk_max_f16 v{a0}, v{a0}, v{x0}")
        A(f"v_pk_max_f16 v{a0 + 1}, v{a0 + 1}, v{x0 + 1}")
        A(pre_store)
        A(f"buffer_store_dwordx2 {vr(a0, 2)}, v{addr}, {sr(S_OUT, 4)}, s{soff} offen {opt.get('out_pol', 'sc1 nt')}")

    vU, vXr, vA1, vA2, vA3, vCy = vD, vD + 16, vD + 24, vD + 25, vD + 26, vD + 32
    carry_reads = f"""
    ds_read_b32 v{vEad}, v{eFl} offset:{L_FLAG + 64 + 4}
    ds_read_b128 {vr(vCy, 4)}, v{eA1} offset:{STRW}
    ds_read_b128 {vr(vCy + 4, 4)}, v{eA1} offset:{STRW + 1024}
    """
    A(f"""
    ds_write_b128 v{eA1}, {vr(vSl, 4)}
    ds_write_b128 v{eA1}, {vr(vSl + 4, 4)} offset:1024
    ds_write_b32 v{eFl}, v{eOne} offset:{L_FLAG + 64}
    """)
    for pr in range(4):
        A(f"ds_read_b128 {vr(vU + 4 * pr, 4)}, v{eA2} offset:{1056 * pr}")
        A(f"ds_read_b64 {vr(vXr + 2 * pr, 2)}, v{eA3} offset:{544 * pr}")
    A(carry_reads)
    for pr in range(4):
        if pr < 3:
            A(f"s_cmp_gt_u32 s{sOwn}, {2 * pr + 2}")
            A(f"s_cbranch_scc1 Lfin{pr}")
        A(f"""
        s_cmp_eq_u32 s{sW}, 7
        s_cbranch_scc1 Lfin{pr}
        Lcarry{pr}:
        s_waitcnt lgkmcnt(0)
        v_cmp_eq_u32 vcc, 0, v{vEad}
        s_cbranch_vccz Lcarried{pr}
        s_sleep 1
        {carry_reads}
        s_branch Lcarry{pr}
        Lcarried{pr}:
        s_set_gpr_idx_on s{sLast}, gpr_idx(SRC0,DST)
        """)
        for j in range(0, 8, 2):
            A(f"v_pk_add_f32 {vr(vSl + j, 2)}, {vr(vSl + j, 2)}, {vr(vCy + j, 2)}")
        A("s_set_gpr_idx_off")
        A("s_nop 1")
        A(f"Lfin{pr}:")
        finalize(vSl + 12 * (2 * pr + 1), 4, vSl + 12 * (2 * pr + 2), vU + 4 * pr, vXr + 2 * pr, eA4, sOut,
                 f"s_cmp_gt_u32 s{sOwn}, {2 * pr + 1}\ns_cselect_b32 exec_hi, -1, 0", "" if pr else "s_waitcnt lgkmcnt(0)")
        if pr < 3:
            A(f"s_add_u32 s{sOut}, s{sOut}, 512")
            A(f"s_cmp_gt_u32 s{sOwn}, {2 * pr + 2}")
            A("s_cbranch_scc0 Lk2_done")
    A("Lk2_done:")
    stamp_flush(A, opt, 8, 0x20000, vTid)
    if opt.get("spin"):
        A("""
        Lspin:
        s_memrealtime s[42:43]
        s_waitcnt lgkmcnt(0)
        s_sub_u32 s42, s42, s100
        s_cmp_lt_u32 s42, 10000
        s_cbranch_scc1 Lspin
        """)
    A("Lk2_exit:")
    A("s_endpgm")

    NU = 7
    vAcc, vAn = 0, 56
    vLs = [vL + 8 * u for u in range(4)] + [84 + 8 * u for u in range(3)]
    vP, vErr, vQ, vCaddr, vUaddr = 245, 252, 253, 254, 255
    A("Lcold_code:")
    A("Lslow_entry:")
    A(f"s_cmp_ge_u32 s{sW}, 4")
    A("s_cbranch_scc1 Lg_rows")
    node_exponents()
    A("Lg_rows:")
    node_rows()
    wc_reads()
    A("s_waitcnt lgkmcnt(0)")
    wc_fragments()
    A(f"""
    s_waitcnt vmcnt(0) lgkmcnt(0)
    s_barrier
    v_lshlrev_b32 v{vX + 11}, 2, v{vTid}
    ds_write_b32 v{vX + 11}, v{vZero} offset:{L_CNT}
    s_mul_i32 s3, s{sW}, 528
    s_add_u32 s3, s3, {L_TA}
    v_add_u32 v{vX + 11}, s3, v{vLo}
    """)
    for u in range(NU):
        A(f"ds_read_b128 {vr(vAn + 4 * u, 4)}, v{vX + 11} offset:{8 * 528 * u}")
    A(f"s_mov_b32 s{sTmp}, {hex(f32(eps / 2))}")
    A(f"s_mov_b32 s{sTmp + 1}, {hex(f32(eps / 2))}")
    for i in range(0, 8 * NU, 2):
        A(f"v_mov_b64 {vr(vAcc + i, 2)}, {sr(sTmp, 2) if i & 4 else 0}")
    A(f"""
    v_bfe_u32 v{vX + 11}, v{vTid}, 3, 3
    v_and_b32 v{vX + 12}, 7, v{vTid}
    v_lshlrev_b32 v{vX + 12}, 2, v{vX + 12}
    v_lshl_add_u32 v{vX + 12}, v{vX + 11}, 8, v{vX + 12}
    s_lshl_b32 s3, s{sW}, 5
    v_add_u32 v{vCaddr}, s3, v{vX + 12}
    v_bfe_u32 v{vX + 11}, v{vTid}, 3, 2
    v_bfe_u32 v{vX + 12}, v{vTid}, 1, 1
    v_lshl_add_u32 v{vX + 11}, v{vX + 11}, 1, v{vX + 12}
    v_lshlrev_b32 v{vUaddr}, 5, v{vX + 11}
    Lbatch:
    """)
    batch_masks(16)
    A("Lround:")
    rec_addr()
    rec_loads()
    A(f"""
    v_mov_b32 v{vZero}, 0
    v_mov_b32 v{vOne}, 1
    ds_write_b32 v{vZero}, v{vZero} offset:{L_FLAG}
    ds_write_b32 v{vZero}, v{vZero} offset:{L_FLAG + 4}
    s_waitcnt lgkmcnt(0)
    s_barrier
    s_mov_b64 exec, {sr(sMore, 2)}
    ds_write_b32 v{vZero}, v{vOne} offset:{L_FLAG + 4}
    s_mov_b64 exec, -1
    s_waitcnt vmcnt(0)
    """)
    histogram(cand)
    for rec, key_, rank, so_, eo_, m in cand:
        A(f"v_lshrrev_b32 v{so_}, 18, v{rec}")
        A(f"v_bfe_u32 v{eo_}, v{rec}, 6, 12")
        A(f"v_lshlrev_b32 v{so_}, 9, v{so_}")
        A(f"v_lshl_add_u32 v{eo_}, v{eo_}, 5, v{vX + 2}")
    A("s_waitcnt lgkmcnt(0)")
    A("s_barrier")
    c, inc, deg, q, t0, t1 = vX + 12, vX + 13, vX + 14, vX + 15, vX + 16, vX + 17
    A(f"ds_read_b32 v{c}, v{vCaddr} offset:{L_CNT}")
    A(f"v_lshrrev_b32 v{t0}, 5, v{vCaddr}")
    A(f"v_lshlrev_b32 v{t0}, 6, v{t0}")
    A("s_waitcnt lgkmcnt(0)")
    A(f"ds_write_b32 v{vCaddr}, v{vZero} offset:{L_CNT}")
    A(f"v_mov_b32 v{inc}, v{c}")
    for d in (1, 2, 4, 8):
        A("s_nop 1")
        A(f"v_add_u32_dpp v{inc}, v{inc}, v{inc} row_shr:{d} row_mask:0xf bank_mask:0xf")
    A(f"""
    v_mov_b32 v{t1}, 0
    s_nop 0
    v_mov_b32_dpp v{deg}, v{inc} row_newbcast:7 row_mask:0xf bank_mask:0x3
    v_mov_b32_dpp v{t1}, v{inc} row_newbcast:7 row_mask:0xf bank_mask:0xc
    v_mov_b32_dpp v{deg}, v{inc} row_newbcast:15 row_mask:0xf bank_mask:0xc
    v_sub_u32 v{inc}, v{inc}, v{t1}
    v_sub_u32 v{deg}, v{deg}, v{t1}
    v_sub_u32 v{inc}, v{inc}, v{c}
    v_add_u32 v{inc}, v{inc}, v{t0}
    ds_write_b32 v{vCaddr}, v{inc} offset:{L_BASE}
    v_cmp_lt_u32 vcc, 64, v{deg}
    v_min_u32 v{deg}, 64, v{deg}
    v_add_u32 v{q}, 3, v{deg}
    v_lshrrev_b32 v{q}, 2, v{q}
    s_mov_b64 exec, vcc
    ds_write_b32 v{vZero}, v{vOne} offset:{L_FLAG}
    s_mov_b64 exec, -1
    ds_bpermute_b32 v{vQ}, v{vUaddr}, v{q}
    v_and_b32 v{c}, 7, v{vTid}
    v_add_u32 v{c}, v{c}, v{deg}
    v_lshlrev_b32 v{t1}, 2, v{q}
    v_cmp_lt_u32 vcc, v{c}, v{t1}
    v_add_lshl_u32 v{c}, v{c}, v{t0}, 2
    v_mov_b32 v{t0}, {TAB_BYTES}
    v_bfrev_b32 v{t1}, 2
    s_mov_b64 exec, vcc
    ds_write_b32 v{c}, v{t0} offset:{L_SO}
    ds_write_b32 v{c}, v{t1} offset:{L_EO}
    s_mov_b64 exec, -1
    v_max_u32_dpp v{q}, v{q}, v{q} row_ror:8 row_mask:0xf bank_mask:0xf
    s_nop 0
    v_readlane_b32 s{sT}, v{q}, 0
    v_readlane_b32 s3, v{q}, 16
    v_readlane_b32 s{sTmp}, v{q}, 32
    v_readlane_b32 s{sTmp + 1}, v{q}, 48
    s_waitcnt lgkmcnt(0)
    s_barrier
    ds_read_b64 {vr(vX + 12, 2)}, v{vZero} offset:{L_FLAG}
    """)
    for i in range(8):
        A(f"ds_read_b32 v{vKey + i}, v{vKey + i} offset:{L_BASE}")
    A(f"""
    s_max_u32 s{sT}, s{sT}, s3
    s_max_u32 s{sTmp}, s{sTmp}, s{sTmp + 1}
    s_max_u32 s{sT}, s{sT}, s{sTmp}
    s_waitcnt lgkmcnt(0)
    v_readfirstlane_b32 s{sOvf}, v{vX + 12}
    v_readfirstlane_b32 s{sMor}, v{vX + 13}
    """)
    for i in range(8):
        A(f"v_and_b32 v{vX + 12}, 63, v{vRec + i}")
        A(f"v_add_u32 v{vKey + i}, v{vKey + i}, v{vRank + i}")
        A(f"v_lshl_add_u32 v{vX + 12}, v{vX + 12}, 6, 64")
        A(f"v_cmp_lt_u32 vcc, v{vKey + i}, v{vX + 12}")
        A(f"v_lshlrev_b32 v{vKey + i}, 2, v{vKey + i}")
        A(f"s_and_b64 exec, vcc, {sr(sMask + 2 * i, 2)}")
        A(f"ds_write_b32 v{vKey + i}, v{vSoff + i} offset:{L_SO}")
        A(f"ds_write_b32 v{vKey + i}, v{vEoff + i} offset:{L_EO}")
        A(f"s_andn2_b64 {sr(sMask + 2 * i, 2)}, {sr(sMask + 2 * i, 2)}, vcc")
        A("s_mov_b64 exec, -1")
    A(f"""
    s_lshl_b32 s3, s{sW}, 8
    v_lshrrev_b32 v{vX + 12}, 1, v{vH16}
    v_add_u32 v{vP}, s3, v{vX + 12}
    v_and_b32 v{vX + 12}, 1, v{vTid}
    v_bfe_u32 v{vX + 13}, v{vTid}, 2, 1
    v_lshl_add_u32 v{vX + 12}, v{vX + 13}, 1, v{vX + 12}
    v_lshl_add_u32 v{vX + 12}, v{vX + 12}, 2, s3
    v_lshl_add_u32 v{vEp}, v{vUaddr}, 6, v{vX + 12}
    s_lshr_b32 s3, s{sT}, 1
    v_mov_b32 v{vErr}, s3
    s_mov_b64 {sr(sCur, 2)}, 0
    s_mov_b32 s{sTi}, 0
    """)
    for u in range(1, NU):
        A(f"v_mov_b32 v{vP + u}, v{vP}")
    A(f"""
    s_waitcnt lgkmcnt(0)
    s_barrier
    s_cmp_eq_u32 s{sT}, 0
    s_cbranch_scc1 Lg_done
    s_branch Lg_entry
    Lg_tile:
    s_waitcnt vmcnt({2 * NU})
    """)
    for j in range(4):
        A(mfma(j))
    A(f"""
    Lg_entry:
    v_add_u32 v{vErr}, v{vQ}, v{vErr}
    ds_read_b32 v{vEo}, v{vEp} offset:{L_EO}
    ds_read_b64 {vr(vSo, 2)}, v{vP} offset:{L_SO}
    v_cmp_le_u32_e64 {sr(sNext, 2)}, s{sT}, v{vErr}
    s_cmp_lt_u32 s{sTi}, s{sT}
    s_cselect_b64 {sr(sNext, 2)}, {sr(sNext, 2)}, 1
    s_mov_b64 exec, {sr(sNext, 2)}
    v_subrev_u32 v{vErr}, s{sT}, v{vErr}
    v_add_u32 v{vEp}, 16, v{vEp}
    s_waitcnt lgkmcnt(1)
    v_add_u32 v{vEo}, v{vEo}, v{vH16}
    buffer_load_dwordx4 {vr(vEA, 4)}, v{vEo}, {sr(S_EA, 4)}, 0 offen
    s_mov_b64 exec, -1
    """)
    for u in range(NU):
        bit = 8 * (u >> 1) + 2 * (u & 1) + 1
        so2 = vSo + 2 * (u & 1)
        La, Lb = vLs[u], vLs[u] + 4
        a, b = vT, vT + 4
        num, den = vAcc + 8 * u, vAcc + 8 * u + 4
        if u + 1 < NU:
            A(f"ds_read_b64 {vr(vSo + 2 * ((u + 1) & 1), 2)}, v{vP + u + 1} offset:{L_SO + 2048 * (u + 1)}")
        A(f"s_bitcmp1_b32 s{sCur}, {bit}")
        A(f"s_cbranch_scc0 Lg_skip{u}")
        A(f"s_waitcnt vmcnt({2 * NU - 1})")
        for j in range(4):
            A(f"v_fma_mix_f32 v{a + j}, v{vD + 16 * j + 2 * u}, s{sNl}, v{La + j} op_sel_hi:[0,0,1]")
        for j in range(4):
            A(f"v_fma_mix_f32 v{b + j}, v{vD + 16 * j + 2 * u + 1}, s{sNl}, v{Lb + j} op_sel_hi:[0,0,1]")
        for j in range(0, 8, 2):
            A(f"v_pk_add_f32 {vr(a + j, 2)}, {vr(a + j, 2)}, {vr(vAn + 4 * u + (j & 3), 2)}")
        for j in range(8):
            A(f"v_exp_f32_e64 v{a + j}, v{a + j} clamp")
        for j in range(0, 8, 2):
            A(f"v_pk_add_f32 {vr(a + j, 2)}, {vr(a + j, 2)}, {sr(sC0, 2)}")
        for j in (0, 2):
            A(f"v_pk_mul_f32 {vr(La + j, 2)}, {vr(La + j, 2)}, {vr(b + j, 2)}")
        for j in (0, 2):
            A(f"v_pk_fma_f32 {vr(La + j, 2)}, {vr(Lb + j, 2)}, {vr(a + j, 2)}, {vr(La + j, 2)}")
        for j in (0, 2):
            A(f"v_pk_add_f32 {vr(Lb + j, 2)}, {vr(a + j, 2)}, {vr(b + j, 2)}")
        for j in (0, 2):
            A(f"v_pk_mul_f32 {vr(a + j, 2)}, {vr(a + j, 2)}, {vr(b + j, 2)}")
        for j in range(4):
            A(f"v_rcp_f32 v{a + j}, v{a + j}")
        for j in (0, 2):
            A(f"v_pk_fma_f32 {vr(num + j, 2)}, {vr(La + j, 2)}, {vr(a + j, 2)}, {vr(num + j, 2)}")
            A(f"v_pk_fma_f32 {vr(den + j, 2)}, {vr(Lb + j, 2)}, {vr(a + j, 2)}, {vr(den + j, 2)}")
        A(f"Lg_skip{u}:")
        A(f"s_bitcmp1_b32 s{sNext}, {bit}")
        A("s_cselect_b64 exec, -1, 1")
        A(f"s_cselect_b32 s{sInc}, 16, 0")
        A(f"s_waitcnt lgkmcnt({1 if u + 1 < NU else 0})")
        A(f"v_add_u32 v{so2}, v{so2}, v{vLo}")
        A(f"v_add_u32 v{so2 + 1}, v{so2 + 1}, v{vLo}")
        A(f"buffer_load_dwordx4 {vr(La, 4)}, v{so2}, {sr(S_TAB, 4)}, 0 offen {tab_pol}")
        A(f"buffer_load_dwordx4 {vr(Lb, 4)}, v{so2 + 1}, {sr(S_TAB, 4)}, 0 offen {tab_pol}")
        A("s_mov_b64 exec, -1")
        A(f"v_add_u32 v{vP + u}, s{sInc}, v{vP + u}")
    A(f"""
    s_mov_b64 {sr(sCur, 2)}, {sr(sNext, 2)}
    s_add_u32 s{sTi}, s{sTi}, 1
    s_cmp_le_u32 s{sTi}, s{sT}
    s_cbranch_scc1 Lg_tile
    Lg_done:
    s_waitcnt vmcnt(0)
    s_cmp_lg_u32 s{sOvf}, 0
    s_cbranch_scc1 Lround
    s_add_u32 s{sW0}, s{sW0}, 16
    s_cmp_lg_u32 s{sMor}, 0
    s_cbranch_scc1 Lbatch
    s_mul_i32 s3, s{sW}, 528
    s_add_u32 s3, s3, {L_TU}
    v_mul_u32_u24 v{vA2}, {33 * 8}, v{vH16}
    v_add3_u32 v{vA2}, v{vA2}, v{vLo}, s3
    s_mul_i32 s3, s{sW}, 272
    s_add_u32 s3, s3, {L_X}
    v_mul_u32_u24 v{vA3}, {17 * 8}, v{vH16}
    v_lshrrev_b32 v{vLo + 1}, 1, v{vLo}
    v_add3_u32 v{vA3}, v{vA3}, v{vLo + 1}, s3
    """)
    for pr in range(4):
        A(f"ds_read_b128 {vr(vU + 4 * pr, 4)}, v{vA2} offset:{16 * 528 * pr}")
        A(f"ds_read_b64 {vr(vXr + 2 * pr, 2)}, v{vA3} offset:{16 * 272 * pr}")
    A(f"""
    v_lshl_add_u32 v{vA2}, v{vH16}, 7, v{vLo + 1}
    s_add_u32 s{sQ1}, s{sN0}, s{sW}
    s_lshl_b32 s{sQ1}, s{sQ1}, 8
    s_waitcnt lgkmcnt(0)
    """)
    for pr in range(4):
        if pr == 3:
            A(f"s_add_u32 s3, s{sW}, 48")
            A(f"s_cmp_ge_u32 s3, s{sNn}")
            A("s_cbranch_scc1 Lk2_done")
        finalize(vAcc + 16 * pr, 4, vAcc + 16 * pr + 8, vU + 4 * pr, vXr + 2 * pr, vA2, sQ1,
                 "s_mov_b32 exec_hi, 0" if pr == 3 else "s_nop 0")
        A(f"s_add_u32 s{sQ1}, s{sQ1}, 4096")
    A("s_branch Lk2_done")
    return L_END


def descriptor(name, vgpr, extra=""):
    return f""".amdhsa_kernel {name}
  .amdhsa_next_free_vgpr {vgpr}
  .amdhsa_next_free_sgpr 102
  .amdhsa_accum_offset {(vgpr + 3) // 4 * 4}
  .amdhsa_group_segment_fixed_size 0
  .amdhsa_kernarg_size 96
  .amdhsa_user_sgpr_count 2
  .amdhsa_user_sgpr_kernarg_segment_ptr 1
  .amdhsa_system_sgpr_workgroup_id_x 1
{extra}.end_amdhsa_kernel
"""


def generate(opt):
    A = Asm()
    lds = gen_k2(A, opt)
    lst = f"kernel={NAME}_kernel " if opt.get("aslist") else ""
    return (f"""; GatedGCN layer in one launch of 256 co-resident workgroups (one per CU).
; Workgroup g owns chunk g of the edges (1568) and one bucket of 48 or 49 destination nodes.
;  1. counting sort of the chunk by destination bucket -> records in d_ws, published by tagged offset words
;  2. x @ w_b, x @ w_v of the bucket's rows -> gather table in d_ws (low half: f16 of -log2(e) * B, high half: V),
;     published by a tagged word; x @ w_a and x + x @ w_u stay in LDS
;  3. the bucket's records are sorted by (node, source range), padded to groups of four edges and split evenly
;     over the eight waves; every wave walks its groups in source order
;  4. per group: gate exponent from MFMA(e_attr, w_c) and the gathered row, sigmoid of two edges with one reciprocal,
;     numerator and denominator sums in indexed registers; out = max(x + x @ w_u + num / (den + 1e-6), x)
; The tag is published in d_debug by workgroup 0. Inputs outside the limits of the fast path (degree distribution,
; |x @ w_a| > 52) take the general path at the end of the file.
; @launch {lst}grid=(256,1,1) block=(512,1,1) lds={lds}
.amdgcn_target "amdgcn-amd-amdhsa--gfx950"
.text
.globl {NAME}_kernel
.p2align 8
.type {NAME}_kernel,@function
""" + A.text() + ".section .rodata,\"a\"\n.p2align 6\n"
            + descriptor(f"{NAME}_kernel", 256, "  .amdhsa_fp16_overflow 1\n"))


if __name__ == "__main__":
    out = sys.argv[1] if len(sys.argv) > 1 else f"cdna_kernels/{NAME}.s"
    opt = dict(a.split("=", 1) for a in sys.argv[2:])
    opt = {k: v.replace("+", " ") for k, v in opt.items()}
    open(out, "w").write(generate(opt))
```

```python
import math
import struct
import sys

NAME = "gather_scatter__edge_featured_mpnn_gatedgcn__graph"
N, E = 12500, 400000
BM, BS, SM, SC, SS = 171799, 23, 799999, 16330, 14
CH = 1568
NCH = 256
TAB_OFF = 0
REC_OFF = 0xE00000
OFF_OFF = 0x1000000
SPIN_MAX = 20000
STAMP_OFF = 0x2000000
TAB_BYTES = N * 512
KSH = 48
AMAX = 52.0
NLOG2E = -math.log2(math.e)


def f32(x):
    return struct.unpack("<I", struct.pack("<f", x))[0]


class Asm:
    def __init__(self):
        self.lines = []

    def __call__(self, s):
        for ln in s.strip("\n").split("\n"):
            ln = ln.strip()
            if not ln:
                continue
            self.lines.append(ln if ln.endswith(":") else "    " + ln)

    def note(self, s):
        self.lines += ["; " + ln.strip() for ln in s.strip().split("\n")]

    def text(self):
        return "\n".join(self.lines) + "\n"


def vr(a, n=1):
    return f"v{a}" if n == 1 else f"v[{a}:{a + n - 1}]"


def sr(a, n=1):
    return f"s{a}" if n == 1 else f"s[{a}:{a + n - 1}]"


def srd(A, d, base, nbytes, off=0):
    if off:
        A(f"s_add_u32 s{d}, s{base}, {hex(off)}")
        A(f"s_addc_u32 s{d + 1}, s{base + 1}, 0")
    else:
        A(f"s_mov_b64 {sr(d, 2)}, {sr(base, 2)}")
    A(f"s_mov_b32 s{d + 2}, {hex(nbytes)}")
    A(f"s_mov_b32 s{d + 3}, 0x20000")


P_X, P_EA, P_SRC, P_DST, P_WA, P_WB, P_WC, P_WU = 4, 6, 8, 10, 12, 14, 16, 18
P_WV, P_OUT, P_DBG, P_WS = 20, 22, 24, 26


def load_kernargs(A):
    A("s_load_dwordx16 s[4:19], s[0:1], 0")
    A("s_load_dwordx8 s[20:27], s[0:1], 64")


STAMP_BASE = [2]


def stamp_reg(i):
    return 100 if i == 0 else STAMP_BASE[0] + 2 * i


def stamp(A, opt, i):
    if not opt.get("stamp"):
        return
    if isinstance(i, str):
        names = opt["stamp"].split(",")
        if i not in names:
            return
        i = names.index(i) + 1
    A(f"{'s_memtime' if opt.get('cyc') else 's_memrealtime'} s[{stamp_reg(i)}:{stamp_reg(i) + 1}]")


def stamp_flush(A, opt, n, base, vtid):
    if not opt.get("stamp"):
        return
    A("s_mov_b64 exec, -1")
    A("s_waitcnt vmcnt(0)")
    stamp(A, opt, n - 1)
    srd(A, 20, P_WS, 0x80000, STAMP_OFF + base)
    A(f"v_lshrrev_b32 v1, 6, v{vtid}")
    A("s_lshl_b32 s3, s2, 3")
    A("v_add_u32 v1, s3, v1")
    A(f"v_mul_u32_u24 v1, {8 * n}, v1")
    A("s_mov_b64 exec, 1")
    A("s_waitcnt lgkmcnt(0)")
    for i in range(n):
        r = stamp_reg(i)
        A(f"v_mov_b32 v2, s{r}")
        A(f"v_mov_b32 v3, s{r + 1}")
        A(f"buffer_store_dwordx2 v[2:3], v1, s[20:23], 0 offen offset:{8 * i}")
        A("s_nop 1")


WAVE_SCAN = ("row_shr:1 row_mask:0xf", "row_shr:2 row_mask:0xf", "row_shr:4 row_mask:0xf",
             "row_shr:8 row_mask:0xf", "row_bcast:15 row_mask:0xa", "row_bcast:31 row_mask:0xc")


def wave_scan(A, v, first_nop=1, fill=()):
    for k, d in enumerate(WAVE_SCAN):
        if k < len(fill):
            A("\n".join(fill[k]))
        elif k or first_nop:
            A("s_nop 1")
        A(f"v_add_u32_dpp v{v}, v{v}, v{v} {d} bank_mask:0xf")


def gen_k2(A, opt):
    STAMP_BASE[0] = 2
    ea_pol = opt.get("ea_load", "")
    tab_pol = opt.get("tab_load", "sc1")
    pf_lanes = int(opt.get("pf", 0))
    poll_at = int(opt.get("poll_at", 0))
    ld = [int(x) for x in opt.get("ld", "6,11,16").split(",")]
    TS = int(opt.get("ts", 3))
    OB = int(opt.get("ob", 8))
    S_TAB, S_EA, S_REC, S_OFFS, S_TW, S_X, S_OUT = 28, 32, 36, 40, 44, 48, 52
    sW, sBk, sN0, sW0, sT, sTi, sInc, sNl = 56, 57, 58, 59, 60, 61, 62, 63
    sC0, sCur, sNext, sMore, sTmp, sNon = 64, 66, 68, 70, 72, 74
    sMask = 76
    sMask2 = 18
    S_DST, S_SRC, S_W, S_W2, S_WC, S_DBG = 76, 80, 84, 88, 76, 80
    sOvf, sMor, sQ1, sQ2, sQ3, sLw, sF0, sOwn = 92, 93, 94, 95, 96, 97, 98, 99
    sRem, sSW, sSl0, sSl1, sLn, sPM = sT, sInc, sCur, sCur + 1, sNext, sCur
    sNn = 0
    sWo, sWm = sOvf, sLw
    L_CNT, L_BASE, L_FLAG, P_CNT, P_BASE, P_SORT = 0, 2048, 4096, 4352, 5376, 6400
    L_R2 = 12800
    L_SO = L_R2
    L_EO = L_SO + 25600
    L_STR = L_R2 + 16896
    STRW = 2560
    L_WCR = L_R2 + 65536
    L_X = L_WCR + 4096
    L_R1 = (L_X + 52 * 272 + 255) // 256 * 256
    L_TA = L_R1 + 528
    L_TU = L_TA + 52 * 528
    L_END = L_R1 + 65536
    TF_OFF = NCH * 2048
    NS = 9
    vSl, vD, vL, vWC, vEA, vT, vSo, vLo = 0, 108, 172, 204, 220, 224, 232, 236
    vSp, vEp, vEo, vH16, vSb, vTid, vOffs = 238, 239, 240, 241, 242, 243, 244
    vWf, vG, vXf, vXs, vNon, vTf = 0, 32, vL, 96, 104, 106
    vEn, vEb, vEad, vS2 = 104, 246, 247, 248
    Lbuf = [vL + 8 * u for u in range(4)] + [72 + 8 * u for u in range(4)]
    vRec, vKey, vRank, vSoff, vEoff, vX = vD, vD + 8, vD + 16, vD + 24, vD + 32, vD + 40
    cand = [(vRec + i, vKey + i, vRank + i, vSoff + i, vEoff + i, sMask + 2 * i) for i in range(8)]
    cand2 = [(vEA + i, vT + i, vT + 4 + i, None, None, sMask2 + 2 * i) for i in range(4)]
    c0 = 2.0 ** -KSH
    vZero, vOne, vXw, vXrd, vTw, vInv = vX + 5, vX + 6, vX + 7, vX + 8, vX + 9, vX + 10
    vDa, vBx, vBt, vBs, vAt, vPa, vE = vX + 12, vX + 14, vX + 15, vX + 17, vX + 18, vX + 19, vX + 20
    vSw, vSr = vX + 16, vD + 39
    pD, pS, pA, pR, pC, pB, pG = vD, vD + 4, vD + 8, vD + 12, vD + 16, vD + 20, vD + 24
    vm = []

    def younger(name):
        return len(vm) - 1 - max(i for i, x in enumerate(vm) if x == name)

    def dma_piece(S, soff, i):
        A(f"buffer_load_dwordx4 v{vDa + ((i >> 1) & 1)}, {sr(S, 4)}, s{soff} offen offset:{1024 * (i & 3)} {opt.get('w_pol', '')} lds")

    def loader(lo, hi):
        for g in range(lo, hi):
            A(f"s_mov_b32 m0, {L_R1 + 4096 * g}")
            A(f"s_movk_i32 s3, {4096 * (g & 7)}")
            if g == 8:
                A(f"s_mov_b64 {sr(S_W, 2)}, {sr(P_WV, 2)}")
            for i in range(4):
                dma_piece(S_W, 3, i)

    A(f"{NAME}_kernel:")
    A("s_cmp_ge_u32 s2, 256")
    A("s_cbranch_scc1 Lk2_exit")
    stamp(A, opt, 0)
    load_kernargs(A)
    A(f"""
    s_memrealtime {sr(sNon, 2)}
    s_getpc_b64 s[{sTmp}:{sTmp + 1}]
    """)
    cpf_mode = int(opt.get("cpf", 8))
    if cpf_mode:
        A(f"""
        s_lshr_b32 s3, s2, 3
        s_and_b32 s3, s3, {128 // cpf_mode - 1}
        v_subrev_u32 v1, {512 - cpf_mode}, v0
        v_cmp_gt_u32 vcc, {cpf_mode}, v1
        v_mul_u32_u24 v1, {128 // cpf_mode}, v1
        v_add_lshl_u32 v1, v1, s3, 7
        """)
    else:
        A(f"""
        v_lshlrev_b32 v1, 7, v0
        v_cmp_gt_u32 vcc, Lcold_code - {NAME}_kernel, v1
        """)
    A(f"""
    s_and_saveexec_b64 {sr(sNext, 2)}, vcc
    s_cbranch_execz Lno_cpf
    global_load_dword v2, v1, s[{sTmp}:{sTmp + 1}] {opt.get('cpf_pol', '')}
    Lno_cpf:
    s_mov_b64 exec, -1
    v_mov_b32 v{vZero}, 0
    v_lshlrev_b32 v{vX + 11}, 2, v0
    ds_write_b32 v{vX + 11}, v{vZero} offset:{L_FLAG}
    ds_write_b32 v{vX + 11}, v{vZero} offset:{L_CNT}
    v_lshrrev_b32 v{vX}, 6, v0
    v_lshlrev_b32 v{vX + 2}, 4, v0
    v_readfirstlane_b32 s{sW}, v{vX}
    s_movk_i32 s3, {CH // 4}
    s_cmp_eq_u32 s2, {NCH - 1}
    s_cselect_b32 s3, {(E - (NCH - 1) * CH) // 4}, s3
    v_cmp_gt_u32_e64 {sr(sPM, 2)}, s3, v0
    s_mul_i32 s{sQ1}, s2, {CH * 4}
    s_mov_b32 s{S_DST + 2}, {E * 4}
    s_mov_b32 s{S_DST + 3}, 0x20000
    s_mov_b32 s{S_SRC + 2}, {E * 4}
    s_mov_b32 s{S_SRC + 3}, 0x20000
    s_and_b32 s3, s2, 7
    s_lshl_b32 s3, s3, 5
    s_lshr_b32 s{sBk}, s2, 3
    s_add_u32 s{sBk}, s{sBk}, s3
    s_mul_i32 s{sN0}, s{sBk}, {SM}
    s_add_u32 s{sOwn}, s{sN0}, {SM + SC}
    s_add_u32 s{sN0}, s{sN0}, {SC}
    s_lshr_b32 s{sOwn}, s{sOwn}, {SS}
    s_lshr_b32 s{sN0}, s{sN0}, {SS}
    v_mov_b32 v{vTid}, v0
    v_and_b32 v{vX + 3}, 0x3f0, v{vX + 2}
    v_bfe_u32 v{vX + 1}, v0, 4, 2
    v_lshlrev_b32 v{vX + 4}, 6, v{vX + 1}
    v_xor_b32 v{vDa}, v{vX + 3}, v{vX + 4}
    v_xor_b32 v{vDa + 1}, 32, v{vDa}
    s_lshl_b32 s{sWm}, s{sW}, 13
    s_add_u32 s{sWm + 1}, s{sWm}, 4096
    s_and_b32 s{sWo}, s{sWm}, 0x7fff
    s_add_u32 s{sWo + 1}, s{sWo}, 4096
    s_lshl_b32 s{sTmp}, s{sN0}, 8
    s_add_u32 s{sTmp + 1}, s{sTmp}, 8192
    s_mov_b64 exec, {sr(sPM, 2)}
    s_waitcnt lgkmcnt(0)
    s_cbranch_execz Lp_nold
    s_mov_b64 {sr(S_DST, 2)}, {sr(P_DST, 2)}
    s_mov_b64 {sr(S_SRC, 2)}, {sr(P_SRC, 2)}
    buffer_load_dwordx4 {vr(pD, 4)}, v{vX + 2}, {sr(S_DST, 4)}, s{sQ1} offen {opt.get("idx_pol", "nt")}
    buffer_load_dwordx4 {vr(pS, 4)}, v{vX + 2}, {sr(S_SRC, 4)}, s{sQ1} offen {opt.get("idx_pol", "nt")}
    Lp_nold:
    """)
    if int(opt.get("wpf", 1)):
        A(f"""
        s_cmp_lg_u32 s{sW}, 7
        s_cbranch_scc1 Lno_wpf
        s_mov_b64 exec, 0xff
        s_lshr_b32 s3, s2, 3
        s_lshl_b32 s3, s3, 10
        v_lshl_add_u32 v1, v{vX + 3}, 3, s3
        global_load_dword v3, v1, {sr(P_WB, 2)} {opt.get('wpf_pol', '')}
        global_load_dword v4, v1, {sr(P_WV, 2)} {opt.get('wpf_pol', '')}
        global_load_dword v5, v1, {sr(P_WA, 2)} {opt.get('wpf_pol', '')}
        global_load_dword v6, v1, {sr(P_WU, 2)} {opt.get('wpf_pol', '')}
        Lno_wpf:
        """)
    A("s_mov_b64 exec, -1")
    A("s_barrier")
    vm.append("dst")
    srd(A, S_DBG, P_DBG, 256)
    A(f"""
    s_xor_b32 s3, s{sW}, 7
    s_or_b32 s3, s3, s2
    s_cbranch_scc1 Lno_nonce
    s_or_b32 s3, s{sNon}, 1
    v_mov_b32 v{vNon}, s3
    v_mov_b32 v{vNon + 1}, s{sNon + 1}
    s_mov_b64 exec, 1
    buffer_store_dwordx2 {vr(vNon, 2)}, v{vZero}, {sr(S_DBG, 4)}, 0 offen sc1
    s_mov_b64 exec, -1
    Lno_nonce:
    """)
    A(f"""
    s_mov_b64 {sr(S_X, 2)}, {sr(P_X, 2)}
    s_lshl_b32 s{S_X + 2}, s{sOwn}, 8
    s_mov_b32 s{S_X + 3}, 0x20000
    s_sub_u32 s{sNn}, s{sOwn}, s{sN0}
    """)
    for i in range(2):
        A(f"buffer_load_dwordx4 {vr(vXs + 4 * i, 4)}, v{vX + 2}, {sr(S_X, 4)}, s{sTmp + i} offen {opt.get('x_pol', 'nt')}")
        vm.append("x")
    A(f"""
    s_cmp_lt_u32 s{sW}, 4
    s_cselect_b32 s{S_W}, s{P_WB}, s{P_WV}
    s_cselect_b32 s{S_W + 1}, s{P_WB + 1}, s{P_WV + 1}
    s_cselect_b32 s{S_W2}, s{P_WA}, s{P_WU}
    s_cselect_b32 s{S_W2 + 1}, s{P_WA + 1}, s{P_WU + 1}
    s_mov_b32 s{S_W + 2}, 32768
    s_mov_b32 s{S_W + 3}, 0x20000
    s_mov_b32 s{S_W2 + 2}, 32768
    s_mov_b32 s{S_W2 + 3}, 0x20000
    """)
    npf0 = 0
    A(f"s_cmp_lg_u32 s{sW}, 7")
    A("s_cbranch_scc1 Lno_ld0")
    A(f"s_mov_b64 {sr(S_W, 2)}, {sr(P_WB, 2)}")
    loader(0, 2)
    A("Lno_ld0:")
    srd(A, S_WC, P_WC, 4096)
    srd(A, S_REC, P_WS, NCH * CH * 4, REC_OFF)
    srd(A, S_OFFS, P_WS, TF_OFF + (256 << TS), OFF_OFF)
    srd(A, S_TAB, P_WS, TAB_BYTES + 512, TAB_OFF)
    srd(A, S_EA, P_EA, 0 if opt.get("noea") else E * 32)
    srd(A, S_OUT, P_OUT, N * 256)
    A(f"""
    s_lshl_b32 s3, s{sN0}, 9
    s_add_u32 s{S_TW}, s{P_WS}, s3
    s_addc_u32 s{S_TW + 1}, s{P_WS + 1}, 0
    s_lshl_b32 s{S_TW + 2}, s{sNn}, 9
    s_mov_b32 s{S_TW + 3}, 0x20000
    s_mov_b32 s{sNl}, {hex(f32(NLOG2E))}
    s_mov_b32 s{sC0}, {hex(f32(c0))}
    s_mov_b32 s{sC0 + 1}, {hex(f32(c0))}
    s_mov_b32 s{sW0}, 0
    s_mov_b32 s{sQ2}, {BM}
    s_mov_b32 s{sQ3}, {-SM}
    v_mov_b32 v{vOne}, 1
    v_lshrrev_b32 v{vX + 11}, 4, v{vTid}
    v_lshl_add_u32 v{vXw}, v{vX + 11}, 4, v{vX + 2}
    v_add_u32 v{vXw}, {L_X}, v{vXw}
    v_and_b32 v{vLo}, 0x1f0, v{vX + 2}
    v_bfe_u32 v{vX + 4}, v{vTid}, 5, 1
    v_mov_b32 v{vLo + 1}, v{vLo}
    v_lshlrev_b32 v{vH16}, 4, v{vX + 4}
    s_lshr_b32 s{sTmp}, s{sW}, 2
    s_and_b32 s{sTmp + 1}, s{sW}, 3
    v_bfe_u32 v{vX + 11}, v{vTid}, 2, 2
    v_xor_b32 v{vE}, s{sTmp + 1}, v{vX + 11}
    v_lshlrev_b32 v{vE}, 6, v{vE}
    v_and_b32 v{vE + 1}, 3, v{vTid}
    v_lshl_add_u32 v{vE}, v{vE + 1}, 3, v{vE}
    v_lshl_add_u32 v{vE}, v{vX + 11}, 8, v{vE}
    v_and_b32 v{vE + 1}, 1, v{vX + 1}
    v_xor_b32 v{vE + 1}, v{vE + 1}, v{vX + 4}
    v_lshl_add_u32 v{vE}, v{vE + 1}, 5, v{vE}
    v_lshl_add_u32 v{vE}, v{vX + 4}, 11, v{vE}
    v_add_u32 v{vBt}, {L_R1}, v{vE}
    s_lshl_b32 s3, s{sTmp}, 15
    s_add_u32 s3, s3, {L_R2}
    v_add_u32 v{vAt}, s3, v{vE}
    v_and_b32 v{vX + 11}, 31, v{vTid}
    v_mul_u32_u24 v{vXrd}, 272, v{vX + 11}
    s_mov_b32 s3, {L_X}
    v_add3_u32 v{vXrd}, v{vXrd}, v{vH16}, s3
    s_mul_i32 s3, s{sTmp}, {32 * 272}
    v_add_u32 v{vBx}, s3, v{vXrd}
    s_mul_i32 s3, s{sW}, 4608
    s_add_u32 s3, s3, {L_R1}
    v_mul_u32_u24 v{vSw}, 144, v{vX + 11}
    v_add3_u32 v{vSw}, v{vSw}, v{vH16}, s3
    v_bfe_u32 v{vE}, v{vTid}, 3, 3
    v_lshl_add_u32 v{vSr}, v{vE}, 4, v{vX + 3}
    v_add_u32 v{vSr}, s3, v{vSr}
    v_and_b32 v{vE + 1}, 0x70, v{vX + 3}
    v_lshl_add_u32 v{vBs}, v{vE}, 9, v{vE + 1}
    s_lshl_b32 s3, s{sTmp}, 7
    s_add_u32 s3, s3, s{sTmp + 1}
    s_lshl_b32 s3, s3, 7
    v_add_u32 v{vBs}, s3, v{vBs}
    v_mul_u32_u24 v{vTw}, 528, v{vX + 11}
    s_mul_i32 s3, s{sTmp}, {L_TU - L_TA}
    s_lshl_b32 s{sTmp + 1}, s{sTmp + 1}, 7
    s_add_u32 s3, s3, s{sTmp + 1}
    s_add_u32 s3, s3, {L_TA}
    v_add3_u32 v{vTw}, v{vTw}, v{vH16}, s3
    v_lshrrev_b32 v{vPa}, 1, v{vTid}
    v_lshlrev_b32 v{vPa}, {3 + OB}, v{vPa}
    v_lshlrev_b32 v{vE}, 8, v{vTid}
    v_add_u32 v{vE + 1}, 64, v{vE}
    v_add_u32 v{vE + 2}, 0x80, v{vE}
    v_add_u32 v{vE + 3}, 0xc0, v{vE}
    """)
    stamp(A, opt, "iss")

    def stage_x(wait):
        A(f"s_waitcnt vmcnt({wait})")
        A(f"ds_write_b128 v{vXw}, {vr(vXs, 4)}")
        A(f"s_cmp_lt_u32 s{sW}, 5")
        A("s_cselect_b64 exec, -1, 0")
        A(f"ds_write_b128 v{vXw}, {vr(vXs + 4, 4)} offset:{32 * 272}")
        A("s_mov_b64 exec, -1")

    nonce_load = f"buffer_load_dwordx2 {vr(vNon, 2)}, v{vZero}, {sr(S_DBG, 4)}, 0 offen sc1"
    A(f"""
    s_cmp_eq_u32 s{sW}, 7
    s_cbranch_scc1 Lp_loader
    s_mov_b64 exec, {sr(sPM, 2)}
    s_waitcnt vmcnt({2 + npf0})
    """)
    stamp(A, opt, "dst")
    for i in range(4):
        A(f"v_mul_u32_u24 v{pC + i}, s{sQ2}, v{pD + i}")
    for i in range(4):
        A(f"v_lshrrev_b32 v{pC + i}, {BS}, v{pC + i}")
        A(f"v_lshlrev_b32 v{pA + i}, 2, v{pC + i}")
        A(f"ds_add_rtn_u32 v{pR + i}, v{pA + i}, v{vOne} offset:{P_CNT}")
    for i in range(4):
        A(f"v_lshl_add_u32 v{pD + i}, v{pD + i}, {SS}, {(1 << SS) - 1 - SC}")
        A(f"v_mad_i32_i24 v{pD + i}, v{pC + i}, s{sQ3}, v{pD + i}")
    A("s_mov_b64 exec, -1")
    A(f"s_cmp_eq_u32 s{sW}, 3")
    A("s_waitcnt lgkmcnt(0)")
    A("s_barrier")
    stamp(A, opt, "b2")
    A(f"""
    s_cbranch_scc0 Lp_noscan
    ds_read_b128 {vr(pC, 4)}, v{vX + 3} offset:{P_CNT}
    s_waitcnt lgkmcnt(0)
    v_add_u32 v{pB + 2}, v{pC}, v{pC + 1}
    v_add3_u32 v{pG + 1}, v{pB + 2}, v{pC + 2}, v{pC + 3}
    v_add_u32 v{pB + 3}, v{pB + 2}, v{pC + 2}
    v_mov_b32 v{pG}, v{pG + 1}
    """)
    ors = []
    for i in range(4):
        ors += [f"v_lshl_or_b32 v{pS + i}, v{pS + i}, 18, v{vE + i}", f"v_lshrrev_b32 v{pD + i}, {SS}, v{pD + i}",
                f"v_or_b32 v{pS + i}, v{pS + i}, v{pD + i}"]
    wave_scan(A, pG + 1, fill=[[]] + [ors[2 * k: 2 * k + 2] for k in range(5)])
    A(f"""
    v_sub_u32 v{pB}, v{pG + 1}, v{pG}
    v_add_u32 v{pB + 1}, v{pB}, v{pC}
    v_add_u32 v{pB + 2}, v{pB}, v{pB + 2}
    v_add_u32 v{pB + 3}, v{pB}, v{pB + 3}
    ds_write_b128 v{vX + 3}, {vr(pB, 4)} offset:{P_BASE}
    {ors[10]}
    {ors[11]}
    s_waitcnt lgkmcnt(0)
    s_barrier
    """)
    A("s_branch Lp_scanned")
    A("Lp_noscan:")
    A("\n".join(ors))
    A("s_barrier")
    A("Lp_scanned:")
    stamp(A, opt, "scan")
    A(f"s_mov_b64 exec, {sr(sPM, 2)}")
    for i in range(4):
        A(f"ds_read_b32 v{pA + i}, v{pA + i} offset:{P_BASE}")
    A("s_waitcnt lgkmcnt(0)")
    for i in range(4):
        A(f"v_add_lshl_u32 v{pA + i}, v{pA + i}, v{pR + i}, 2")
        A(f"ds_write_b32 v{pA + i}, v{pS + i} offset:{P_SORT}")
    A("s_mov_b64 exec, -1")
    A(nonce_load)
    A("s_waitcnt lgkmcnt(0)")
    A("s_barrier")
    stamp(A, opt, "b3")
    A(f"""
    ds_read_b128 {vr(pD, 4)}, v{vX + 2} offset:{P_SORT}
    s_mov_b64 exec, {sr(sPM, 2)}
    s_cbranch_execz Lp_none
    s_waitcnt lgkmcnt(0)
    buffer_store_dwordx4 {vr(pD, 4)}, v{vX + 2}, {sr(S_REC, 4)}, s{sQ1} offen sc1
    s_branch Lp_out
    Lp_loader:
    """)
    loader(2, ld[0])
    A("s_barrier")
    loader(ld[0], ld[1])
    A("s_barrier")
    loader(ld[1], ld[2])
    A("s_barrier")
    loader(ld[2], 16)
    A(nonce_load)
    A(f"""
    Lp_none:
    s_waitcnt vmcnt(1)
    Lp_out:
    s_mov_b64 exec, -1
    """)
    stage_x(2)
    A(f"""
    v_lshrrev_b32 v{vX + 11}, 1, v{vX + 2}
    v_and_b32 v{vX + 11}, 0x3ff, v{vX + 11}
    ds_read_b64 {vr(pC, 2)}, v{vX + 11} offset:{P_CNT}
    ds_read_b64 {vr(pB, 2)}, v{vX + 11} offset:{P_BASE}
    s_lshl_b32 s3, s{sW}, 9
    s_add_u32 m0, s3, {L_WCR}
    s_waitcnt lgkmcnt(0)
    s_barrier
    """)
    stamp(A, opt, "b3b")

    bB, bV, bO = 48, 64, 80

    def bv_reads(s):
        r = 12 * (s & 3)
        A(f"ds_read_b128 {vr(r + 8, 4)}, v{vBx} offset:{32 * s}")
        for m in range(2):
            for z in range(2):
                A(f"ds_read_b64_tr_b16 {vr(r + 4 * m + 2 * z, 2)}, v{vBt} offset:{m * 32768 + s * 4096 + z * 1024}")

    for s in range(3):
        bv_reads(s)
    A(f"""
    s_mov_b32 exec_hi, 0
    buffer_load_dwordx4 v{vX + 3}, {sr(S_WC, 4)}, s3 offen lds
    s_mov_b32 exec_hi, -1
    """)
    b4b = int(opt.get("b4b", 1))
    wk = int(opt.get("wk", 2))
    for s in range(8):
        r = 12 * (s & 3)
        A(f"s_waitcnt lgkmcnt({5 * min(2, 7 - s)})")
        for m in range(2):
            d = (bB, bV)[m]
            A(f"v_mfma_f32_32x32x16_bf16 {vr(d, 16)}, {vr(r + 4 * m, 4)}, {vr(r + 8, 4)}, {'0' if s == 0 else vr(d, 16)}")
        if s + 3 < 8:
            bv_reads(s + 3)
        for i in range(wk * s, min(8, wk * s + wk)):
            if i % 4 == 0:
                A(f"s_add_u32 m0, s{sWm + i // 4}, {L_R2}")
                A("s_nop 0")
            dma_piece(S_W2, sWo + (i >> 2), i)
    stamp(A, opt, "bvm")
    A(f"""
    s_mov_b32 s{sTi}, 0
    s_waitcnt vmcnt(9)
    Lnonce_check:
    v_readfirstlane_b32 s{sNon}, v{vNon}
    v_readfirstlane_b32 s{sNon + 1}, v{vNon + 1}
    s_add_u32 s{sTi}, s{sTi}, 1
    s_cmp_lg_u32 s{sNon}, 0
    s_cbranch_scc1 Lnonce_ok
    buffer_load_dwordx2 {vr(vNon, 2)}, v{vZero}, {sr(S_DBG, 4)}, 0 offen sc1
    s_cmp_lt_u32 s{sTi}, {SPIN_MAX}
    s_waitcnt vmcnt(0)
    s_cbranch_scc1 Lnonce_check
    Lnonce_ok:
    s_and_b32 s{sNon + 1}, s{sNon + 1}, 0x3ff
    s_lshl_b32 s3, s{sNon + 1}, 22
    v_lshl_or_b32 v{pG}, v{pC}, 11, v{pB}
    v_lshl_or_b32 v{pG + 2}, v{pC + 1}, 11, v{pB + 1}
    v_or_b32 v{pG}, s3, v{pG}
    v_or_b32 v{pG + 2}, s3, v{pG + 2}
    v_mov_b32 v{pG + 1}, s{sNon}
    v_mov_b32 v{pG + 3}, s{sNon}
    v_lshrrev_b32 v{vE}, {3 + OB}, v{vX + 2}
    v_and_b32 v{vE + 1}, {(8 << OB) - 1}, v{vX + 2}
    v_lshl_add_u32 v{vE}, v{vE}, {11 + OB}, v{vE + 1}
    s_lshl_b32 s3, s2, {3 + OB}
    s_cmp_ge_u32 s{sW}, 2
    {'' if b4b else 's_waitcnt vmcnt(0)'}
    s_barrier
    s_cbranch_scc1 Lno_off
    buffer_store_dwordx4 {vr(pG, 4)}, v{vE}, {sr(S_OFFS, 4)}, s3 offen sc1
    Lno_off:
    """)
    stamp(A, opt, "sig")
    for g in range(4):
        for i in range(4 * g, 4 * g + 4):
            A(f"v_fma_mixlo_f16 v{bV + i}, v{bB + i}, s{sNl}, 0")
        A(f"ds_write_b128 v{vSw}, {vr(bV + 4 * g, 4)} offset:{32 * g}")
    for i in range(4):
        A(f"ds_read_b128 {vr(bO + 4 * i, 4)}, v{vSr} offset:{1152 * i}")
    A(f"""
    s_or_b32 s3, s2, s{sW}
    s_cbranch_scc1 Lno_pad
    v_mov_b32 v{vE}, 0x7c00
    v_mov_b32 v{vE + 1}, 0x7c00
    v_lshrrev_b32 v{vE + 2}, 1, v{vX + 3}
    s_mov_b32 s3, {TAB_BYTES}
    buffer_store_dwordx2 {vr(vE, 2)}, v{vE + 2}, {sr(S_TAB, 4)}, s3 offen sc1
    Lno_pad:
    s_lshr_b32 s3, s{sBk}, {OB}
    s_lshl_b32 s3, s3, {8 + OB}
    s_and_b32 s{sQ1}, s{sBk}, {(1 << OB) - 1}
    s_add_u32 s{sQ1}, s{sQ1}, s3
    s_lshl_b32 s{sQ1}, s{sQ1}, 3
    s_mov_b32 s3, 0
    """)
    def au_reads(s):
        for z in range(2):
            A(f"ds_read_b64_tr_b16 {vr(vWf + 4 * s + 2 * z, 2)}, v{vAt} offset:{s * 4096 + z * 1024}")
        A(f"ds_read_b128 {vr(vXf + 4 * s, 4)}, v{vXrd} offset:{32 * s}")

    for s in range(4):
        A(f"s_waitcnt lgkmcnt({3 - s if b4b else 3 + 2 * s})")
        A(f"buffer_store_dwordx4 {vr(bO + 4 * s, 4)}, v{vBs}, {sr(S_TW, 4)}, s3 offen sc1")
        A("s_add_u32 s3, s3, 4096")
        if not b4b:
            au_reads(s)
    if b4b:
        A(f"""
        s_cmp_ge_u32 s{sW}, 2
        s_cbranch_scc1 Lwau_0
        s_waitcnt vmcnt(5)
        s_branch Lwau_1
        Lwau_0:
        s_waitcnt vmcnt(4)
        Lwau_1:
        s_barrier
        """)
        for s in range(4):
            au_reads(s)
    stamp(A, opt, "bve")
    if opt.get("notab"):
        A(f"s_mov_b32 s{S_TAB + 2}, 0")
    poll = f"buffer_load_dwordx2 {vr(vOffs, 2)}, v{vPa}, {sr(S_OFFS, 4)}, s{sQ1} offen sc1"

    def tag_wait(name, v, reload):
        A(f"""
        s_mov_b32 s{sTi}, 0
        L{name}_check:
        v_lshrrev_b32 v{vX + 11}, 22, v{v}
        v_cmp_ne_u32_e64 {sr(sTmp, 2)}, s{sNon}, v{v + 1}
        v_cmp_ne_u32 vcc, s{sNon + 1}, v{vX + 11}
        s_add_u32 s{sTi}, s{sTi}, 1
        s_or_b64 vcc, vcc, {sr(sTmp, 2)}
        s_cbranch_scc0 L{name}_ok
        {reload}
        s_cmp_lt_u32 s{sTi}, {SPIN_MAX}
        s_waitcnt vmcnt(0)
        s_cbranch_scc1 L{name}_check
        L{name}_ok:
        """)

    def batch_masks(window):
        A(f"""
        v_bfe_u32 v{vX}, v{vOffs}, 11, 11
        v_and_b32 v{vX + 1}, 1, v{vTid}
        v_subrev_u32 v{vX}, s{sW0}, v{vX}
        v_lshlrev_b32 v{vX + 1}, 2, v{vX + 1}
        v_cmp_lt_i32_e64 {sr(sMore, 2)}, {window}, v{vX}
        v_sub_u32 v{vX}, v{vX}, v{vX + 1}
        """)
        for i in range(window // 2):
            A(f"v_cmp_lt_i32_e64 {sr((cand + cand2)[i][5], 2)}, {(i & 3) + 8 * (i >> 2)}, v{vX}")

    def rec_addr():
        A(f"""
        v_lshrrev_b32 v{vX + 2}, 1, v{vTid}
        v_and_b32 v{vX + 1}, 1, v{vTid}
        v_mul_u32_u24 v{vX + 2}, {CH}, v{vX + 2}
        v_lshl_add_u32 v{vX + 1}, v{vX + 1}, 2, s{sW0}
        v_add_u32 v{vX + 1}, v{vX + 1}, v{vX + 2}
        v_lshlrev_b32 v{vX + 2}, 5, v{vX + 2}
        """)
        for i in range(0, 8, 2):
            A(f"v_mov_b64 {vr(vKey + i, 2)}, 0")

    def rec_loads(both=True):
        A(f"""
        v_and_b32 v{vX + 4}, 0x7ff, v{vOffs}
        v_add_lshl_u32 v{vX + 4}, v{vX + 4}, v{vX + 1}, 2
        buffer_load_dwordx4 {vr(vRec, 4)}, v{vX + 4}, {sr(S_REC, 4)}, 0 offen sc1
        """)
        if both:
            A(f"buffer_load_dwordx4 {vr(vRec + 4, 4)}, v{vX + 4}, {sr(S_REC, 4)}, 0 offen offset:32 sc1")

    def histogram(cs):
        for rec, key, rank, so_, eo_, m in cs:
            A(f"s_mov_b64 exec, {sr(m, 2)}")
            A(f"v_alignbit_b32 v{key}, v{rec}, v{rec}, 27")
            A(f"v_and_b32 v{key}, 0x7fc, v{key}")
            A(f"ds_add_rtn_u32 v{rank}, v{key}, v{vOne} offset:{L_CNT}")
        A("s_mov_b64 exec, -1")

    def place(cs):
        for rec, key, rank, so_, eo_, m in cs:
            A(f"s_mov_b64 exec, {sr(m, 2)}")
            A(f"v_lshl_add_u32 v{key}, v{rank}, 3, v{key}")
            A(f"ds_write2_b32 v{key}, v{rec}, v{vX + 2} offset0:0 offset1:1")
        A("s_mov_b64 exec, -1")

    def hand_over():
        rec_addr()
        A("s_waitcnt vmcnt(1)")
        A("s_barrier")
        stamp(A, opt, "b5")
        A(f"""
        s_cmp_lg_u32 s{sW}, 7
        s_cbranch_scc1 Lno_tf
        s_lshl_b32 s{sTmp + 1}, s2, {TS}
        s_add_u32 s{sTmp + 1}, s{sTmp + 1}, {TF_OFF}
        s_mov_b64 exec, 1
        buffer_store_dwordx2 {vr(pG, 2)}, v{vZero}, {sr(S_OFFS, 4)}, s{sTmp + 1} offen sc1
        s_mov_b64 exec, -1
        s_waitcnt vmcnt(1)
        s_branch Ltf_sent
        Lno_tf:
        s_waitcnt vmcnt(0)
        Ltf_sent:
        """)
        tag_wait("off", vOffs, poll)
        stamp(A, opt, "off")
        rmask = int(opt.get("rmask", 1))
        rec_loads(not rmask)
        batch_masks(24)
        if rmask:
            A(f"""
            s_mov_b64 exec, {sr(cand[4][5], 2)}
            s_cbranch_execz Lno_rec1
            buffer_load_dwordx4 {vr(vRec + 4, 4)}, v{vX + 4}, {sr(S_REC, 4)}, 0 offen offset:32 sc1
            Lno_rec1:
            s_mov_b64 exec, -1
            """)
        A(f"""
        s_cmp_eq_u64 {sr(sMask2, 2)}, 0
        s_cbranch_scc1 Lno_rec2
        buffer_load_dwordx4 {vr(cand2[0][0], 4)}, v{vX + 4}, {sr(S_REC, 4)}, 0 offen offset:64 sc1
        v_mov_b64 {vr(cand2[0][1], 2)}, 0
        v_mov_b64 {vr(cand2[2][1], 2)}, 0
        Lno_rec2:
        """)

    b5_at = int(opt.get("b5_at", 16))
    assert poll_at <= b5_at
    for k in range(16):
        nb, s = k >> 3, k & 7
        if k == poll_at:
            A(poll)
        if k == b5_at:
            hand_over()
        A(f"s_waitcnt lgkmcnt({9 if k < 5 else (7, 5, 3)[k - 5] if k < 8 else min(3, 15 - k)})")
        cc = "0" if s == 0 else vr(vG + 16 * nb, 16)
        A(f"v_mfma_f32_32x32x16_bf16 {vr(vG + 16 * nb, 16)}, {vr(vWf + 4 * s, 4)}, {vr(vXf + 4 * (k & 7), 4)}, {cc}")
        kn = k + 4
        if kn < 8:
            for z in range(2):
                A(f"ds_read_b64_tr_b16 {vr(vWf + 4 * kn + 2 * z, 2)}, v{vAt} offset:{kn * 4096 + z * 1024}")
        if kn < 16:
            A(f"ds_read_b128 {vr(vXf + 4 * (kn & 7), 4)}, v{vXrd} offset:{32 * 272 * (kn >> 3) + 32 * (kn & 7)}")
    if b5_at == 16:
        hand_over()
    vId = 64
    A(f"""
    s_cmp_lt_u32 s{sW}, 4
    s_cbranch_scc1 Lno_ident
    s_and_b32 s3, s{sW}, 3
    s_lshl_b32 s3, s3, 6
    v_add_u32 v{vX + 11}, s3, v{vXrd}
    """)
    for nb in range(2):
        for z in range(2):
            A(f"ds_read_b128 {vr(vXf + 8 * nb + 4 * z, 4)}, v{vX + 11} offset:{32 * 272 * nb + 32 * z}")
    A(f"""
    v_lshrrev_b32 v{vX + 11}, 4, v{vLo}
    v_lshrrev_b32 v{vX + 12}, 1, v{vH16}
    v_sub_u32 v{vX + 11}, v{vX + 11}, v{vX + 12}
    v_and_b32 v{vX + 12}, 1, v{vX + 11}
    v_lshlrev_b32 v{vX + 12}, 4, v{vX + 12}
    v_mov_b32 v{vX + 13}, 0x3f80
    v_lshlrev_b32 v{vX + 12}, v{vX + 12}, v{vX + 13}
    v_ashrrev_i32 v{vX + 11}, 1, v{vX + 11}
    """)
    for i in range(8):
        A(f"v_cmp_eq_u32_e64 {sr((sTmp, sNext)[i & 1], 2)}, {8 * (i >> 2) + (i & 3)}, v{vX + 11}")
        if i:
            A("s_nop 0")
            A(f"v_cndmask_b32_e64 v{vId + i - 1}, 0, v{vX + 12}, {sr((sTmp, sNext)[(i - 1) & 1], 2)}")
    A("s_nop 0")
    A(f"v_cndmask_b32_e64 v{vId + 7}, 0, v{vX + 12}, {sr(sNext, 2)}")
    A("s_waitcnt lgkmcnt(0)")
    for z in range(2):
        for nb in range(2):
            A(f"v_mfma_f32_32x32x16_bf16 {vr(vG + 16 * nb, 16)}, {vr(vId + 4 * z, 4)}, {vr(vXf + 8 * nb + 4 * z, 4)}, {vr(vG + 16 * nb, 16)}")
    A("Lno_ident:")
    if b5_at == 17:
        hand_over()
    stamp(A, opt, "aum")

    tf_poll = f"buffer_load_dwordx2 {vr(vTf, 2)}, v{vPa}, {sr(S_OFFS, 4)}, s{sQ1} offen sc1"
    vRaw = vD
    A(f"""
    v_lshrrev_b32 v{vPa}, 1, v{vLo}
    {f'v_lshlrev_b32 v{vPa}, {TS - 3}, v{vPa}' if TS > 3 else ''}
    """)

    def wc_reads():
        A(f"""
        v_lshrrev_b32 v{vX + 11}, 1, v{vLo}
        v_lshl_add_u32 v{vX + 11}, v{vH16}, 7, v{vX + 11}
        v_add_u32 v{vX + 11}, {L_WCR}, v{vX + 11}
        """)
        for i in range(8):
            A(f"ds_read_b64 {vr(vRaw + 2 * i, 2)}, v{vX + 11} offset:{256 * i}")

    def wc_fragments():
        A("s_mov_b32 s3, 0x05040100")
        A(f"s_mov_b32 s{sTmp}, 0x07060302")
        for j in range(4):
            for i in range(4):
                A(f"v_perm_b32 v{vWC + 4 * j + i}, v{vRaw + 2 * (2 * i + 1) + (j >> 1)}, v{vRaw + 2 * (2 * i) + (j >> 1)}, "
                  f"s{(3, sTmp)[j & 1]}")

    A(f"""
    s_lshl_b32 s{sQ1}, s{sW}, {5 + TS}
    s_add_u32 s{sQ1}, s{sQ1}, {TF_OFF}
    s_mov_b64 vcc, {sr(sMore, 2)}
    s_cmp_ge_u32 s{sW}, 4
    s_cbranch_scc1 Lu_wave
    v_mov_b32 v{vXs + 2}, 0
    """)
    row_mask = "s_mov_b32 exec_lo, 0xfffff\ns_mov_b32 exec_hi, 0xfffff"
    for i in range(0, 32, 2):
        if i == 16:
            A(row_mask)
        A(f"v_max3_f32 v{vXs + 2}, |v{vG + i}|, |v{vG + i + 1}|, v{vXs + 2}")
    A("s_mov_b64 exec, -1")
    A(f"v_cmp_lt_f32 vcc, {hex(f32(AMAX))}, v{vXs + 2}")
    A(f"s_or_b64 vcc, vcc, {sr(sMore, 2)}")

    def node_rows():
        for nb in range(2):
            if nb == 1:
                A(row_mask)
            for g in range(4):
                A(f"ds_write_b128 v{vTw}, {vr(vG + 16 * nb + 4 * g, 4)} offset:{32 * 528 * nb + 32 * g}")
        A("s_mov_b64 exec, -1")

    def node_exponents():
        A(f"""
        v_mov_b32 v{vXs}, {hex(f32(-float(KSH)))}
        v_mov_b32 v{vXs + 1}, {hex(f32(-float(KSH)))}
        s_mov_b32 s{sTmp}, s{sNl}
        s_mov_b32 s{sTmp + 1}, s{sNl}
        """)
        for i in range(0, 32, 2):
            A(f"v_pk_fma_f32 {vr(vG + i, 2)}, {vr(vG + i, 2)}, {sr(sTmp, 2)}, {vr(vXs, 2)}")

    A("Lu_wave:")
    A("s_mov_b64 exec, vcc")
    A(f"ds_write_b32 v{vZero}, v{vOne} offset:{L_FLAG}")
    A("s_mov_b64 exec, -1")
    late_tf = int(opt.get("late_tf", 2))
    if late_tf < 2:
        A(tf_poll)
    la = vSoff
    A(f"""
    s_mul_i32 s{sSW}, s{sW}, {STRW}
    s_add_u32 s{sSW}, s{sSW}, {L_STR}
    v_add_u32 v{vSp}, s{sSW}, v{vH16}
    v_bfe_u32 v{vX + 12}, v{vTid}, 3, 2
    v_bfe_u32 v{vX + 13}, v{vTid}, 1, 1
    v_lshl_add_u32 v{vX + 12}, v{vX + 12}, 1, v{vX + 13}
    v_bfe_u32 v{vX + 13}, v{vTid}, 2, 1
    v_lshl_add_u32 v{vX + 12}, v{vX + 12}, 1, v{vX + 13}
    v_and_b32 v{vX + 13}, 1, v{vTid}
    v_lshl_add_u32 v{vX + 12}, v{vX + 12}, 1, v{vX + 13}
    v_lshl_add_u32 v{vEp}, v{vX + 12}, 2, s{sSW}
    v_bfrev_b32 v{vX + 13}, 2
    v_mov_b32 v{vX + 12}, {N << 18}
    v_lshlrev_b32 v{la}, 1, v{vX + 3}
    v_lshlrev_b32 v{la + 1}, 3, v{vX + 3}
    v_lshrrev_b32 v{la + 2}, 4, v{vX + 3}
    v_lshl_add_u32 v{la + 3}, v{la + 2}, 2, s{sSW}
    """)
    A(f"s_waitcnt vmcnt({1 if late_tf < 2 else 0})")
    stamp(A, opt, "rec")
    histogram(cand)
    A(f"s_cmp_eq_u64 {sr(sMask2, 2)}, 0")
    A("s_cbranch_scc1 Lno_hist2")
    histogram(cand2)
    A("Lno_hist2:")
    A("s_waitcnt vmcnt(0)")
    stamp(A, opt, "hist")
    epf = int(opt.get("epf", 2500))
    assert not (late_tf and pf_lanes)
    if late_tf == 2:
        A(tf_poll)
    elif late_tf:
        A(f"""
        v_lshrrev_b32 v{vX + 11}, 22, v{vTf}
        v_cmp_ne_u32_e64 {sr(sTmp, 2)}, s{sNon}, v{vTf + 1}
        v_cmp_ne_u32 vcc, s{sNon + 1}, v{vX + 11}
        s_or_b64 {sr(sMore, 2)}, vcc, {sr(sTmp, 2)}
        s_cbranch_scc0 Ltf_seen
        {tf_poll}
        Ltf_seen:
        """)
    else:
        tag_wait("tf", vTf, tf_poll)

    def early_features():
        A(f"s_mov_b32 s3, {epf << 18}")
        for rec, key_, rank, so_, eo_, m in cand[:4]:
            A(f"v_cmp_gt_u32 vcc, s3, v{rec}")
            A(f"v_bfe_u32 v{eo_}, v{rec}, 6, 12")
            A(f"v_lshl_add_u32 v{eo_}, v{eo_}, 5, v{vX + 2}")
            A(f"s_and_b64 vcc, vcc, {sr(m, 2)}")
            A("s_or_b64 exec, vcc, 1")
            A(f"buffer_load_dword v{vL + 22}, v{eo_}, {sr(S_EA, 4)}, 0 offen")
            A("s_mov_b64 exec, -1")

    if epf:
        early_features()
    A("s_waitcnt lgkmcnt(0)")
    A("s_barrier")
    stamp(A, opt, "bB")
    c, p, deg, q, inc, g4 = vL, vL + 8, vL + 16, vL + 17, vL + 18, vL + 19
    A(f"ds_read_b128 {vr(c, 4)}, v{la} offset:{L_CNT}")
    A(f"ds_read_b128 {vr(c + 4, 4)}, v{la} offset:{L_CNT + 16}")
    if pf_lanes:
        A(f"""
        s_andn2_b32 s3, s2, 7
        s_add_u32 s3, s3, s{sW}
        s_mul_i32 s3, s3, {pf_lanes * 128}
        {'s_nop 0' if pf_lanes == 64 else f's_bfm_b64 exec, {pf_lanes}, 0'}
        buffer_load_dword v{vL + 22}, v{la + 1}, {sr(S_TAB, 4)}, s3 offen {tab_pol}
        s_mov_b64 exec, -1
        """)
    A(f"""
    s_mov_b32 s{sQ2}, {L_SO}
    s_waitcnt lgkmcnt(1)
    v_add_u32 v{p + 2}, v{c}, v{c + 1}
    v_add3_u32 v{p + 4}, v{p + 2}, v{c + 2}, v{c + 3}
    s_waitcnt lgkmcnt(0)
    v_add3_u32 v{p + 6}, v{p + 4}, v{c + 4}, v{c + 5}
    v_add3_u32 v{deg}, v{p + 6}, v{c + 6}, v{c + 7}
    v_add_u32 v{q}, 3, v{deg}
    v_lshrrev_b32 v{inc}, 2, v{q}
    """)
    wave_scan(A, inc, fill=[
        [f"v_lshrrev_b32 v{q}, 2, v{q}", f"v_add_u32 v{p + 3}, v{p + 2}, v{c + 2}"],
        [f"v_add_u32 v{p + 5}, v{p + 4}, v{c + 4}", f"v_add_u32 v{p + 7}, v{p + 6}, v{c + 6}"],
        [f"v_add_u32 v{deg}, s{sW}, v{deg}", f"v_lshlrev_b32 v{c + 1}, 2, v{q}"],
        [f"v_cmp_lt_u32_e64 {sr(sNext, 2)}, v{deg}, v{c + 1}", "s_nop 0"]])
    A(f"v_sub_u32 v{g4}, v{inc}, v{q}")
    A(f"v_readlane_b32 s3, v{inc}, 63")
    A(f"v_lshl_add_u32 v{p}, v{g4}, 5, s{sQ2}")
    A(f"v_lshl_add_u32 v{p + 1}, v{c}, 3, v{p}")
    for i in range(2, 8):
        A(f"v_lshl_add_u32 v{p + i}, v{p + i}, 3, v{p}")
        if i in (3, 7):
            A(f"ds_write_b128 v{la}, {vr(p + i - 3, 4)} offset:{L_BASE + 4 * (i - 3)}")
    for cd in cand:
        A(f"ds_read_b32 v{cd[1]}, v{cd[1]} offset:{L_BASE}")
    A(f"""
    s_mul_i32 s{sLw}, s3, s{sW}
    s_add_u32 s{sRem}, s{sLw}, s3
    s_lshr_b32 s{sLw}, s{sLw}, 3
    s_lshr_b32 s{sRem}, s{sRem}, 3
    v_cmp_gt_u32_e64 {sr(sTmp, 2)}, s{sLw}, v{g4}
    v_cmp_gt_u32 vcc, s{sRem}, v{g4}
    v_lshl_add_u32 v{deg}, v{deg}, 3, v{p}
    s_bcnt1_i32_b64 s{sF0}, {sr(sTmp, 2)}
    s_bcnt1_i32_b64 s{sOwn}, vcc
    s_cmp_eq_u32 s{sW}, 7
    s_cselect_b32 s{sOwn}, s{sNn}, s{sOwn}
    s_sub_u32 s{sOwn}, s{sOwn}, s{sF0}
    s_sub_u32 s{sRem}, s{sRem}, s{sLw}
    s_waitcnt lgkmcnt(0)
    """)
    stamp(A, opt, "scan2")
    place(cand)
    A(f"s_cmp_eq_u64 {sr(sMask2, 2)}, 0")
    A("s_cbranch_scc1 Lno_place2")
    for cd in cand2:
        A(f"ds_read_b32 v{cd[1]}, v{cd[1]} offset:{L_BASE}")
    A("s_waitcnt lgkmcnt(0)")
    place(cand2)
    A("Lno_place2:")
    en, so, eo, key, cn, pos, t = vL, vL + 8, vL + 12, vL + 20, vL + 24, vL + 21, vL + 26
    A(f"""
    s_mov_b64 exec, {sr(sNext, 2)}
    ds_write_b64 v{deg}, {vr(vX + 12, 2)}
    s_mov_b64 exec, -1
    """)
    if late_tf:
        if late_tf < 2:
            A(f"s_cmp_eq_u64 {sr(sMore, 2)}, 0")
            A("s_cbranch_scc1 Ltf_ok")
        A(f"s_waitcnt vmcnt({4 if epf else 0})")
        tag_wait("tf", vTf, tf_poll)
    A(f"""
    s_sub_u32 s3, s{sOwn}, 1
    s_sub_u32 s{sTmp}, s{sRem}, 1
    s_cmp_gt_u32 s{sTmp}, 63
    s_cselect_b32 s3, 8, s3
    s_cmp_gt_u32 s3, 7
    s_cselect_b64 exec, 1, 0
    ds_write_b32 v{vZero}, v{vOne} offset:{L_FLAG}
    s_mov_b64 exec, -1
    s_lshl_b32 s3, s{sLw}, 5
    v_add_u32 v{t}, s3, v{la}
    v_cmp_le_u32_e64 {sr(sTmp, 2)}, s{sRem}, v{la + 2}
    s_sub_u32 s{sQ1}, s{sF0}, 1
    s_mul_i32 s{sQ2}, s{sQ1}, 528
    s_add_u32 s{sQ2}, s{sQ2}, {L_TA}
    s_mov_b32 s{sQ3}, 0xfffffe00
    s_waitcnt lgkmcnt(0)
    s_barrier
    ds_read_b128 {vr(en, 4)}, v{t} offset:{L_SO}
    ds_read_b32 v{t + 3}, v{vZero} offset:{L_FLAG}
    ds_read_b128 {vr(en + 4, 4)}, v{t} offset:{L_SO + 16}
    v_cndmask_b32_e64 v{vInv}, 0, v{vX + 13}, {sr(sTmp, 2)}
    v_add_u32 v{vEb}, s{sQ2}, v{vLo}
    v_mov_b64 {vr(cn, 2)}, 1
    s_waitcnt lgkmcnt({2 if int(opt.get("kent", 1)) < 2 else 0})
    v_lshrrev_b32 v{key}, 26, v{en + 2 * int(opt.get("kent", 1))}
    v_and_b32 v{key}, 56, v{key}
    v_cndmask_b32_e64 v{key}, v{key}, 56, {sr(sTmp, 2)}
    s_waitcnt lgkmcnt(1)
    v_readfirstlane_b32 s3, v{t + 3}
    v_lshlrev_b64 {vr(cn, 2)}, v{key}, {vr(cn, 2)}
    v_and_b32 v{t + 3}, 63, v{en}
    s_cmp_lg_u32 s3, 0
    s_cbranch_scc1 Lslow_entry
    s_waitcnt lgkmcnt(0)
    """)
    stamp(A, opt, "bD")
    fillers = [f"v_subrev_u32 v{t + 3}, s{sQ1}, v{t + 3}", f"v_mul_u32_u24 v{t + 3}, 12, v{t + 3}"]
    fillers += [f"v_lshrrev_b32 v{so + i}, 9, v{en + 2 * i}" for i in range(4)]
    for k, d in enumerate(WAVE_SCAN):
        A(f"v_add_u32_dpp v{cn}, v{cn}, v{cn} {d} bank_mask:0xf")
        A(f"v_add_u32_dpp v{cn + 1}, v{cn + 1}, v{cn + 1} {d} bank_mask:0xf")
        A(fillers[k])
    A(f"v_readlane_b32 s{sTmp}, v{cn}, 63")
    A(f"v_readlane_b32 s{sTmp + 1}, v{cn + 1}, 63")
    for i in range(4):
        A(f"v_bfe_u32 v{eo + i}, v{en + 2 * i}, 6, 12")
    A(f"""
    s_mul_i32 s3, s{sTmp}, 0x01010101
    s_mul_i32 s{sTmp + 1}, s{sTmp + 1}, 0x01010100
    s_lshl_b32 s{sTmp}, s3, 8
    s_lshr_b32 s3, s3, 24
    s_mul_i32 s3, s3, 0x01010101
    s_add_u32 s{sTmp + 1}, s{sTmp + 1}, s3
    v_lshl_add_u64 {vr(cn, 2)}, {vr(cn, 2)}, 0, {sr(sTmp, 2)}
    s_sub_u32 s3, s{sSW}, 16
    v_lshrrev_b64 {vr(cn, 2)}, v{key}, {vr(cn, 2)}
    """)
    for i in range(4):
        A(f"v_lshl_add_u32 v{eo + i}, v{eo + i}, 5, v{en + 2 * i + 1}")
    A(f"v_and_b32 v{pos}, 0xff, v{cn}")
    for i in range(4):
        A(f"v_or_b32 v{eo + i}, v{eo + i}, v{vInv}")
    A(f"v_lshl_add_u32 v{t}, v{pos}, 4, s3")
    A(f"ds_write_b128 v{t}, {vr(eo, 4)} offset:1152")
    A(f"ds_read_b32 v{vEo}, v{vEp} offset:1152")
    for i in range(4):
        A(f"v_and_or_b32 v{so + i}, v{so + i}, s{sQ3}, v{vInv}")
    A(f"""
    v_and_b32 v{t + 1}, 1, v{pos}
    v_lshl_add_u32 v{t + 1}, v{t + 1}, 3, v{t}
    v_subrev_u32 v{t + 1}, 8, v{t + 1}
    ds_write2_b64 v{t + 1}, {vr(so, 2)}, {vr(so + 2, 2)} offset0:0 offset1:2
    ds_read_b128 {vr(vT, 4)}, v{vSp}
    ds_read_b128 {vr(vSo, 4)}, v{vSp} offset:32
    v_add_u32 v{t + 2}, s{sSW}, v{pos}
    ds_write_b8 v{t + 2}, v{t + 3} offset:2303
    ds_read_b32 v{vSb}, v{la + 3} offset:2304
    s_waitcnt lgkmcnt(5)
    v_add_u32 v{vEo}, v{vEo}, v{vH16}
    buffer_load_dwordx4 {vr(vEA, 4)}, v{vEo}, {sr(S_EA, 4)}, 0 offen {ea_pol}
    """)
    dist = int(opt.get("dist", 4))
    for u in range(dist):
        src = (vT, vT + 2, vSo, vSo + 2)[u]
        if u in (0, 2):
            A(f"s_waitcnt lgkmcnt({(3, 1)[u // 2]})")
        A(f"v_lshl_add_u64 {vr(src, 2)}, {vr(src, 2)}, 0, {vr(vLo, 2)}")
        A(f"buffer_load_dwordx4 {vr(vL + 8 * u, 4)}, v{src}, {sr(S_TAB, 4)}, 0 offen {tab_pol}")
        A(f"buffer_load_dwordx4 {vr(vL + 8 * u + 4, 4)}, v{src + 1}, {sr(S_TAB, 4)}, 0 offen {tab_pol}")
    stamp(A, opt, "prim")
    eps = 1e-6 / c0
    wc_reads()
    A(f"s_and_b32 s3, s{sW}, 4")
    A(f"v_mov_b32 v{vEad}, s3")
    A("s_cbranch_scc1 Lfactors_made")
    node_exponents()
    for i in range(32):
        A(f"v_exp_f32 v{vG + i}, v{vG + i}")
    A("Lfactors_made:")
    node_rows()
    A(f"""
    s_mov_b64 exec, 1
    ds_add_u32 v{vEad}, v{vOne} offset:{L_FLAG + 8}
    s_mov_b64 exec, -1
    s_waitcnt lgkmcnt(9)
    """)
    wc_fragments()
    A(f"""
    s_waitcnt lgkmcnt(0)
    s_mov_b32 s{sTmp}, {hex(f32(eps / 2))}
    s_mov_b32 s{sTmp + 1}, {hex(f32(eps / 2))}
    """)
    for sl_ in range(NS):
        for j in range(0, 8, 2):
            A(f"v_mov_b64 {vr(vSl + 12 * sl_ + j, 2)}, {sr(sTmp, 2) if sl_ and j >= 4 else 0}")
    eA1, eA2, eA3, eA4, eFl, eOne = 248, 249, 250, 251, 252, 253
    sOut, sLast = sOvf, sMor
    A(f"""
    v_add_u32 v{eA1}, s{sSW}, v{vX + 3}
    s_mul_i32 s3, s{sF0}, 528
    s_add_u32 s3, s3, {L_TU}
    v_mul_u32_u24 v{eA2}, 33, v{vH16}
    v_add3_u32 v{eA2}, v{eA2}, v{vLo}, s3
    s_mul_i32 s3, s{sF0}, 272
    s_add_u32 s3, s3, {L_X}
    v_mul_u32_u24 v{eA3}, 17, v{vH16}
    v_lshrrev_b32 v{eA4}, 1, v{vLo}
    v_add3_u32 v{eA3}, v{eA3}, v{eA4}, s3
    v_lshl_add_u32 v{eA4}, v{vH16}, 4, v{eA4}
    s_lshl_b32 s3, s{sW}, 2
    v_mov_b32 v{eFl}, s3
    v_mov_b32 v{eOne}, {L_FLAG + 12}
    s_add_u32 s{sOut}, s{sN0}, s{sF0}
    s_lshl_b32 s{sOut}, s{sOut}, 8
    s_mul_i32 s{sLast}, s{sOwn}, 12
    """)
    A("Lfactors:")
    A(f"ds_read_b32 v{vEad}, v{vZero} offset:{L_FLAG + 8}")
    for sl_ in range(NS):
        A(f"ds_read_b128 {vr(vSl + 12 * sl_ + 8, 4)}, v{vEb} offset:{528 * sl_}")
    A("s_waitcnt lgkmcnt(0)")
    A(f"v_cmp_gt_u32 vcc, 4, v{vEad}")
    A("s_cbranch_vccnz Lfactors")
    ea_at = int(opt.get("ea_at", 3))
    prio = opt.get("prio", "alt")
    A(f"""
    s_waitcnt lgkmcnt(0)
    v_readlane_b32 s{sSl0}, v{vSb}, 0
    v_readlane_b32 s{sSl1}, v{vSb}, 1
    s_mov_b32 s{sLn}, 2
    s_mov_b32 s{sLn + 1}, 3
    """)
    if prio == "quart":
        A(f"""
        s_mul_i32 s{sQ1}, s{sRem}, 3
        s_lshr_b32 s{sQ1}, s{sQ1}, 2
        s_lshr_b32 s{sQ2}, s{sRem}, 1
        s_lshr_b32 s{sQ3}, s{sRem}, 2
        """)
    else:
        first_drop = [int(x) for x in opt.get("drop", "8,16").split(",")]
        A(f"""
        s_cmp_lt_u32 s{sW}, 4
        s_cselect_b32 s3, {first_drop[0]}, {first_drop[1]}
        s_sub_i32 s{sQ1}, s{sRem}, s3
        s_sub_i32 s{sQ2}, s{sQ1}, {int(opt.get("dstep", 16))}
        s_sub_i32 s{sQ3}, s{sQ2}, {int(opt.get("dstep", 16))}
        """)
        if opt.get("dend"):
            e0, e1 = (int(x) for x in opt["dend"].split(","))
            A(f"""
            s_cmp_lt_u32 s{sW}, 4
            s_cselect_b32 s{sQ3}, {e0}, {e1}
            s_add_u32 s{sQ2}, s{sQ3}, {int(opt.get("dstep", 16))}
            s_add_u32 s{sQ1}, s{sQ2}, {int(opt.get("dstep", 16))}
            """)
    thr_on = opt.get("thr")
    if thr_on:
        ref, mul, cut = (int(x) for x in thr_on.split(","))
        A(f"""
        s_sub_i32 s3, {ref}, s{sRem}
        s_mul_i32 s3, s3, {mul}
        s_sub_i32 s{sTi}, s{sRem}, s3
        """)
    fair = int(opt.get("fair", 0))
    vFa, vFi, vFr = 248, 249, 250
    if fair:
        A(f"""
        s_and_b32 s3, s{sW}, 3
        s_lshl_b32 s3, s3, 2
        v_mov_b32 v{vFa}, s3
        s_cmp_lt_u32 s{sW}, 4
        s_cselect_b32 s{sQ1}, 1, -1
        v_mov_b32 v{vFi}, s{sQ1}
        """)
    A("s_setprio 3")
    A(f"s_waitcnt vmcnt({2 * dist})")
    stamp(A, opt, "first")

    def mfma(j):
        return f"v_mfma_f32_32x32x16_bf16 {vr(vD + 16 * j, 16)}, {vr(vEA, 4)}, {vr(vWC + 4 * j, 4)}, 0"

    for j in range(4):
        A(mfma(j))
    A("s_nop 8")
    A(f"s_cmp_gt_u32 s{sRem}, 8")
    A("s_cbranch_scc0 Llast")

    def step(u, last, q):
        La, Lb = vL + 8 * (u & 3), vL + 8 * (u & 3) + 4
        a, b = vT, vT + 4
        sl = (sSl0, sSl1)[u >> 2]
        nv = u + dist
        prefetch = not (last and nv >= 8)
        check = fair and u % fair == 0
        need = [u] + (["E"] if u == 7 and not last else [])
        A(f"s_waitcnt vmcnt({len(q) - 1 - max(i for i, x in enumerate(q) if x in need)})")
        if thr_on and not last:
            A(f"s_cbranch_vccz Lthr{u}")
            A(f"s_waitcnt vmcnt({len(q) - 1 - max(i for i, x in enumerate(q) if x in need + [u + cut])})")
            A(f"Lthr{u}:")
        lds = (prefetch and nv % 2 == 0) or (u == ea_at and not last) or check
        if prefetch and nv % 2 == 0:
            A(f"ds_read_b128 {vr(vSo, 4)}, v{vSp} offset:{16 * nv}")
        if check:
            A("s_nop 0")
            A("s_mov_b64 exec, 1")
            A(f"ds_add_rtn_u32 v{vFr}, v{vFa}, v{vFi} offset:{L_FLAG + 32}")
            A("s_mov_b64 exec, -1")
            A("s_nop 0")
        if u == ea_at and not last:
            A(f"ds_read_b32 v{vEo}, v{vEp} offset:{1152 + 128}")

        def mix(j, hb):
            return (f"v_fma_mix_f32 v{(a, b)[hb] + j}, v{vD + 16 * j + 2 * u + hb}, s{sNl}, v{(La, Lb)[hb] + j} "
                    "op_sel_hi:[0,0,1]")

        if u == 7 and not last:
            for j in range(4):
                A(mix(j, 0))
                A(mix(j, 1))
                if j:
                    A(f"v_exp_f32 v{a + j - 1}, v{a + j - 1}")
                    A(f"v_exp_f32 v{b + j - 1}, v{b + j - 1}")
                A(mfma(j))
            A(f"v_exp_f32{'' if lds else '_e64'} v{a + 3}, v{a + 3}")
            A(f"v_exp_f32 v{b + 3}, v{b + 3}")
        else:
            for hb in range(2):
                for j in range(4):
                    A(mix(j, hb))
            for j in range(8):
                A(f"v_exp_f32{'_e64' if j == 0 and not lds else ''} v{a + j}, v{a + j}")
        if lds:
            A("s_waitcnt lgkmcnt(0)")
        A(f"s_set_gpr_idx_on s{sl}, gpr_idx(SRC1)")
        for j in range(0, 8, 2):
            A(f"v_pk_fma_f32 {vr(a + j, 2)}, {vr(a + j, 2)}, {vr(vSl + 8 + (j & 3), 2)}, {sr(sC0, 2)} clamp")
        A("s_set_gpr_idx_mode gpr_idx()")
        A(f"s_lshr_b32 s{sl}, s{sl}, 8")
        if check:
            A(f"v_readlane_b32 s3, v{vFr}, 0")
        if u == ea_at and not last:
            A(f"v_add_u32_e64 v{vEo}, v{vEo}, v{vH16}")
            A(f"buffer_load_dwordx4 {vr(vEA, 4)}, v{vEo}, {sr(S_EA, 4)}, 0 offen {ea_pol}")
            q.append("E")
        for j in (0, 2):
            A(f"v_pk_mul_f32 {vr(La + j, 2)}, {vr(La + j, 2)}, {vr(b + j, 2)}")
        if check:
            tag = f"Lfair{u}{'l' if last else ''}"
            A(f"""
            s_mul_i32 s3, s3, s{sQ1}
            s_setprio 0
            s_cmp_ge_i32 s3, 0
            s_cbranch_scc1 {tag}
            s_setprio 2
            s_nop 0
            {tag}:
            """)
        so2 = vSo + 2 * (nv & 1)
        if prefetch:
            A(f"v_lshl_add_u64 {vr(so2, 2)}, {vr(so2, 2)}, 0, {vr(vLo, 2)}")
        for j in (0, 2):
            A(f"v_pk_fma_f32 {vr(La + j, 2)}, {vr(Lb + j, 2)}, {vr(a + j, 2)}, {vr(La + j, 2)}")
        for j in (0, 2):
            A(f"v_pk_add_f32 {vr(Lb + j, 2)}, {vr(a + j, 2)}, {vr(b + j, 2)}")
        for j in (0, 2):
            A(f"v_pk_mul_f32 {vr(a + j, 2)}, {vr(a + j, 2)}, {vr(b + j, 2)}")
        for j in range(4):
            A(f"v_rcp_f32{'_e64' if j == 0 else ''} v{a + j}, v{a + j}")
        A("s_set_gpr_idx_mode gpr_idx(SRC2,DST)")
        for j in (0, 2):
            A(f"v_pk_fma_f32 {vr(vSl + j, 2)}, {vr(La + j, 2)}, {vr(a + j, 2)}, {vr(vSl + j, 2)}")
            A(f"v_pk_fma_f32 {vr(vSl + 4 + j, 2)}, {vr(Lb + j, 2)}, {vr(a + j, 2)}, {vr(vSl + 4 + j, 2)}")
        if prefetch:
            A(f"buffer_load_dwordx4 {vr(vL + 8 * (nv & 3), 4)}, v{so2}, {sr(S_TAB, 4)}, 0 offen {tab_pol}")
            A(f"buffer_load_dwordx4 {vr(vL + 8 * (nv & 3) + 4, 4)}, v{so2 + 1}, {sr(S_TAB, 4)}, 0 offen {tab_pol}")
            q += [nv] * 2
        A("s_set_gpr_idx_off")

    assert 0 <= ea_at < 7
    A.note("""main loop: eight groups per tile. a = min(2^-48 * (1 + exp(-gate)), 1) for edges a and b of each half-wave:
    num += (Va * b + Vb * a) / (a * b), den += (a + b) / (a * b)""")
    A(".p2align 6")
    A("Ltile:")
    A(f"s_sub_u32 s{sRem}, s{sRem}, 8")
    if thr_on:
        A(f"s_cmp_ge_i32 s{sRem}, s{sTi}")
        A("s_cselect_b64 vcc, -1, 0")
    q = [0, 0, 1, 1, 2, 2, 3, 3][:2 * dist]
    for u in range(8):
        step(u, False, q)
        if u == 3 and int(opt.get("pmid", 0)):
            A(f"s_add_u32 s3, s{sRem}, 4")
            for k, sq in enumerate((sQ1, sQ2, sQ3)):
                A(f"s_cmp_le_i32 s3, s{sq}")
                A("s_cbranch_scc0 Lprio_mid")
                A(f"s_setprio {2 - k}")
            A("Lprio_mid:")
    A(f"""
    s_nop 0
    v_readlane_b32 s{sSl0}, v{vSb}, s{sLn}
    v_readlane_b32 s{sSl1}, v{vSb}, s{sLn + 1}
    v_add_u32 v{vSp}, 0x80, v{vSp}
    v_add_u32 v{vEp}, 0x80, v{vEp}
    s_add_u32 s{sLn}, s{sLn}, 2
    s_add_u32 s{sLn + 1}, s{sLn + 1}, 2
    """)
    if opt.get("tilestamps"):
        for k in range(2, 6):
            A(f"s_cmp_lg_u32 s{sLn}, {2 * k + 2}")
            A(f"s_cbranch_scc1 Lts{k}")
            stamp(A, opt, f"tile{k}")
            A(f"Lts{k}:")
    if prio != "none" and not fair:
        for k, sq in enumerate((sQ1, sQ2, sQ3)):
            A(f"s_cmp_le_i32 s{sRem}, s{sq}")
            A("s_cbranch_scc0 Lprio_done")
            A(f"s_setprio {2 - k}")
        A("Lprio_done:")
    A(f"s_cmp_gt_u32 s{sRem}, 8")
    A("s_cbranch_scc1 Ltile")
    A(".p2align 3")
    A(f"""
    Llast:
    ds_read_b32 v{vEad}, v{eOne}
    s_waitcnt lgkmcnt(0)
    v_cmp_gt_u32 vcc, 4, v{vEad}
    s_cbranch_vccnz Llast
    """)
    q = [0, 0, 1, 1, 2, 2, 3, 3][:2 * dist]
    for u in range(8):
        step(u, True, q)
        if u < 7:
            A(f"s_cmp_le_u32 s{sRem}, {u + 1}")
            A("s_cbranch_scc1 Lmain_done")
    A("Lmain_done:")
    stamp(A, opt, "done")

    def finalize(a0, o, a1, u0, x0, addr, soff, pre_store, pre_rows=""):
        for j in range(4):
            A(f"v_permlane32_swap_b32 v{a0 + j}, v{a1 + j}")
            A(f"v_permlane32_swap_b32 v{a0 + o + j}, v{a1 + o + j}")
        for j in (o, o + 2, 0, 2):
            A(f"v_pk_add_f32 {vr(a0 + j, 2)}, {vr(a0 + j, 2)}, {vr(a1 + j, 2)}")
        for j in range(4):
            A(f"v_rcp_f32 v{a0 + o + j}, v{a0 + o + j}")
        A(pre_rows)
        for j in (0, 2):
            A(f"v_pk_fma_f32 {vr(a0 + j, 2)}, {vr(a0 + j, 2)}, {vr(a0 + o + j, 2)}, {vr(u0 + j, 2)}")
        A(f"v_cvt_pk_bf16_f32 v{a0}, v{a0}, v{a0 + 1}")
        A(f"v_cvt_pk_bf16_f32 v{a0 + 1}, v{a0 + 2}, v{a0 + 3}")
        A(f"v_pk_max_f16 v{a0}, v{a0}, v{x0}")
        A(f"v_pk_max_f16 v{a0 + 1}, v{a0 + 1}, v{x0 + 1}")
        A(pre_store)
        A(f"buffer_store_dwordx2 {vr(a0, 2)}, v{addr}, {sr(S_OUT, 4)}, s{soff} offen {opt.get('out_pol', 'sc1 nt')}")

    vU, vXr, vA1, vA2, vA3, vCy = vD, vD + 16, vD + 24, vD + 25, vD + 26, vD + 32
    carry_reads = f"""
    ds_read_b32 v{vEad}, v{eFl} offset:{L_FLAG + 64 + 4}
    ds_read_b128 {vr(vCy, 4)}, v{eA1} offset:{STRW}
    ds_read_b128 {vr(vCy + 4, 4)}, v{eA1} offset:{STRW + 1024}
    """
    A(f"""
    ds_write_b128 v{eA1}, {vr(vSl, 4)}
    ds_write_b128 v{eA1}, {vr(vSl + 4, 4)} offset:1024
    ds_write_b32 v{eFl}, v{eOne} offset:{L_FLAG + 64}
    """)
    for pr in range(4):
        A(f"ds_read_b128 {vr(vU + 4 * pr, 4)}, v{eA2} offset:{1056 * pr}")
        A(f"ds_read_b64 {vr(vXr + 2 * pr, 2)}, v{eA3} offset:{544 * pr}")
    A(carry_reads)
    for pr in range(4):
        if pr < 3:
            A(f"s_cmp_gt_u32 s{sOwn}, {2 * pr + 2}")
            A(f"s_cbranch_scc1 Lfin{pr}")
        A(f"""
        s_cmp_eq_u32 s{sW}, 7
        s_cbranch_scc1 Lfin{pr}
        Lcarry{pr}:
        s_waitcnt lgkmcnt(0)
        v_cmp_eq_u32 vcc, 0, v{vEad}
        s_cbranch_vccz Lcarried{pr}
        s_sleep 1
        {carry_reads}
        s_branch Lcarry{pr}
        Lcarried{pr}:
        s_set_gpr_idx_on s{sLast}, gpr_idx(SRC0,DST)
        """)
        for j in range(0, 8, 2):
            A(f"v_pk_add_f32 {vr(vSl + j, 2)}, {vr(vSl + j, 2)}, {vr(vCy + j, 2)}")
        A("s_set_gpr_idx_off")
        A("s_nop 1")
        A(f"Lfin{pr}:")
        finalize(vSl + 12 * (2 * pr + 1), 4, vSl + 12 * (2 * pr + 2), vU + 4 * pr, vXr + 2 * pr, eA4, sOut,
                 f"s_cmp_gt_u32 s{sOwn}, {2 * pr + 1}\ns_cselect_b32 exec_hi, -1, 0", "" if pr else "s_waitcnt lgkmcnt(0)")
        if pr < 3:
            A(f"s_add_u32 s{sOut}, s{sOut}, 512")
            A(f"s_cmp_gt_u32 s{sOwn}, {2 * pr + 2}")
            A("s_cbranch_scc0 Lk2_done")
    A("Lk2_done:")
    stamp_flush(A, opt, 8, 0x20000, vTid)
    if opt.get("spin"):
        A("""
        Lspin:
        s_memrealtime s[42:43]
        s_waitcnt lgkmcnt(0)
        s_sub_u32 s42, s42, s100
        s_cmp_lt_u32 s42, 10000
        s_cbranch_scc1 Lspin
        """)
    A("Lk2_exit:")
    A("s_endpgm")

    NU = 7
    vAcc, vAn = 0, 56
    vLs = [vL + 8 * u for u in range(4)] + [84 + 8 * u for u in range(3)]
    vP, vErr, vQ, vCaddr, vUaddr = 245, 252, 253, 254, 255
    A("Lcold_code:")
    A("Lslow_entry:")
    A(f"s_cmp_ge_u32 s{sW}, 4")
    A("s_cbranch_scc1 Lg_rows")
    node_exponents()
    A("Lg_rows:")
    node_rows()
    wc_reads()
    A("s_waitcnt lgkmcnt(0)")
    wc_fragments()
    A(f"""
    s_waitcnt vmcnt(0) lgkmcnt(0)
    s_barrier
    v_lshlrev_b32 v{vX + 11}, 2, v{vTid}
    ds_write_b32 v{vX + 11}, v{vZero} offset:{L_CNT}
    s_mul_i32 s3, s{sW}, 528
    s_add_u32 s3, s3, {L_TA}
    v_add_u32 v{vX + 11}, s3, v{vLo}
    """)
    for u in range(NU):
        A(f"ds_read_b128 {vr(vAn + 4 * u, 4)}, v{vX + 11} offset:{8 * 528 * u}")
    A(f"s_mov_b32 s{sTmp}, {hex(f32(eps / 2))}")
    A(f"s_mov_b32 s{sTmp + 1}, {hex(f32(eps / 2))}")
    for i in range(0, 8 * NU, 2):
        A(f"v_mov_b64 {vr(vAcc + i, 2)}, {sr(sTmp, 2) if i & 4 else 0}")
    A(f"""
    v_bfe_u32 v{vX + 11}, v{vTid}, 3, 3
    v_and_b32 v{vX + 12}, 7, v{vTid}
    v_lshlrev_b32 v{vX + 12}, 2, v{vX + 12}
    v_lshl_add_u32 v{vX + 12}, v{vX + 11}, 8, v{vX + 12}
    s_lshl_b32 s3, s{sW}, 5
    v_add_u32 v{vCaddr}, s3, v{vX + 12}
    v_bfe_u32 v{vX + 11}, v{vTid}, 3, 2
    v_bfe_u32 v{vX + 12}, v{vTid}, 1, 1
    v_lshl_add_u32 v{vX + 11}, v{vX + 11}, 1, v{vX + 12}
    v_lshlrev_b32 v{vUaddr}, 5, v{vX + 11}
    Lbatch:
    """)
    batch_masks(16)
    A("Lround:")
    rec_addr()
    rec_loads()
    A(f"""
    v_mov_b32 v{vZero}, 0
    v_mov_b32 v{vOne}, 1
    ds_write_b32 v{vZero}, v{vZero} offset:{L_FLAG}
    ds_write_b32 v{vZero}, v{vZero} offset:{L_FLAG + 4}
    s_waitcnt lgkmcnt(0)
    s_barrier
    s_mov_b64 exec, {sr(sMore, 2)}
    ds_write_b32 v{vZero}, v{vOne} offset:{L_FLAG + 4}
    s_mov_b64 exec, -1
    s_waitcnt vmcnt(0)
    """)
    histogram(cand)
    for rec, key_, rank, so_, eo_, m in cand:
        A(f"v_lshrrev_b32 v{so_}, 18, v{rec}")
        A(f"v_bfe_u32 v{eo_}, v{rec}, 6, 12")
        A(f"v_lshlrev_b32 v{so_}, 9, v{so_}")
        A(f"v_lshl_add_u32 v{eo_}, v{eo_}, 5, v{vX + 2}")
    A("s_waitcnt lgkmcnt(0)")
    A("s_barrier")
    c, inc, deg, q, t0, t1 = vX + 12, vX + 13, vX + 14, vX + 15, vX + 16, vX + 17
    A(f"ds_read_b32 v{c}, v{vCaddr} offset:{L_CNT}")
    A(f"v_lshrrev_b32 v{t0}, 5, v{vCaddr}")
    A(f"v_lshlrev_b32 v{t0}, 6, v{t0}")
    A("s_waitcnt lgkmcnt(0)")
    A(f"ds_write_b32 v{vCaddr}, v{vZero} offset:{L_CNT}")
    A(f"v_mov_b32 v{inc}, v{c}")
    for d in (1, 2, 4, 8):
        A("s_nop 1")
        A(f"v_add_u32_dpp v{inc}, v{inc}, v{inc} row_shr:{d} row_mask:0xf bank_mask:0xf")
    A(f"""
    v_mov_b32 v{t1}, 0
    s_nop 0
    v_mov_b32_dpp v{deg}, v{inc} row_newbcast:7 row_mask:0xf bank_mask:0x3
    v_mov_b32_dpp v{t1}, v{inc} row_newbcast:7 row_mask:0xf bank_mask:0xc
    v_mov_b32_dpp v{deg}, v{inc} row_newbcast:15 row_mask:0xf bank_mask:0xc
    v_sub_u32 v{inc}, v{inc}, v{t1}
    v_sub_u32 v{deg}, v{deg}, v{t1}
    v_sub_u32 v{inc}, v{inc}, v{c}
    v_add_u32 v{inc}, v{inc}, v{t0}
    ds_write_b32 v{vCaddr}, v{inc} offset:{L_BASE}
    v_cmp_lt_u32 vcc, 64, v{deg}
    v_min_u32 v{deg}, 64, v{deg}
    v_add_u32 v{q}, 3, v{deg}
    v_lshrrev_b32 v{q}, 2, v{q}
    s_mov_b64 exec, vcc
    ds_write_b32 v{vZero}, v{vOne} offset:{L_FLAG}
    s_mov_b64 exec, -1
    ds_bpermute_b32 v{vQ}, v{vUaddr}, v{q}
    v_and_b32 v{c}, 7, v{vTid}
    v_add_u32 v{c}, v{c}, v{deg}
    v_lshlrev_b32 v{t1}, 2, v{q}
    v_cmp_lt_u32 vcc, v{c}, v{t1}
    v_add_lshl_u32 v{c}, v{c}, v{t0}, 2
    v_mov_b32 v{t0}, {TAB_BYTES}
    v_bfrev_b32 v{t1}, 2
    s_mov_b64 exec, vcc
    ds_write_b32 v{c}, v{t0} offset:{L_SO}
    ds_write_b32 v{c}, v{t1} offset:{L_EO}
    s_mov_b64 exec, -1
    v_max_u32_dpp v{q}, v{q}, v{q} row_ror:8 row_mask:0xf bank_mask:0xf
    s_nop 0
    v_readlane_b32 s{sT}, v{q}, 0
    v_readlane_b32 s3, v{q}, 16
    v_readlane_b32 s{sTmp}, v{q}, 32
    v_readlane_b32 s{sTmp + 1}, v{q}, 48
    s_waitcnt lgkmcnt(0)
    s_barrier
    ds_read_b64 {vr(vX + 12, 2)}, v{vZero} offset:{L_FLAG}
    """)
    for i in range(8):
        A(f"ds_read_b32 v{vKey + i}, v{vKey + i} offset:{L_BASE}")
    A(f"""
    s_max_u32 s{sT}, s{sT}, s3
    s_max_u32 s{sTmp}, s{sTmp}, s{sTmp + 1}
    s_max_u32 s{sT}, s{sT}, s{sTmp}
    s_waitcnt lgkmcnt(0)
    v_readfirstlane_b32 s{sOvf}, v{vX + 12}
    v_readfirstlane_b32 s{sMor}, v{vX + 13}
    """)
    for i in range(8):
        A(f"v_and_b32 v{vX + 12}, 63, v{vRec + i}")
        A(f"v_add_u32 v{vKey + i}, v{vKey + i}, v{vRank + i}")
        A(f"v_lshl_add_u32 v{vX + 12}, v{vX + 12}, 6, 64")
        A(f"v_cmp_lt_u32 vcc, v{vKey + i}, v{vX + 12}")
        A(f"v_lshlrev_b32 v{vKey + i}, 2, v{vKey + i}")
        A(f"s_and_b64 exec, vcc, {sr(sMask + 2 * i, 2)}")
        A(f"ds_write_b32 v{vKey + i}, v{vSoff + i} offset:{L_SO}")
        A(f"ds_write_b32 v{vKey + i}, v{vEoff + i} offset:{L_EO}")
        A(f"s_andn2_b64 {sr(sMask + 2 * i, 2)}, {sr(sMask + 2 * i, 2)}, vcc")
        A("s_mov_b64 exec, -1")
    A(f"""
    s_lshl_b32 s3, s{sW}, 8
    v_lshrrev_b32 v{vX + 12}, 1, v{vH16}
    v_add_u32 v{vP}, s3, v{vX + 12}
    v_and_b32 v{vX + 12}, 1, v{vTid}
    v_bfe_u32 v{vX + 13}, v{vTid}, 2, 1
    v_lshl_add_u32 v{vX + 12}, v{vX + 13}, 1, v{vX + 12}
    v_lshl_add_u32 v{vX + 12}, v{vX + 12}, 2, s3
    v_lshl_add_u32 v{vEp}, v{vUaddr}, 6, v{vX + 12}
    s_lshr_b32 s3, s{sT}, 1
    v_mov_b32 v{vErr}, s3
    s_mov_b64 {sr(sCur, 2)}, 0
    s_mov_b32 s{sTi}, 0
    """)
    for u in range(1, NU):
        A(f"v_mov_b32 v{vP + u}, v{vP}")
    A(f"""
    s_waitcnt lgkmcnt(0)
    s_barrier
    s_cmp_eq_u32 s{sT}, 0
    s_cbranch_scc1 Lg_done
    s_branch Lg_entry
    Lg_tile:
    s_waitcnt vmcnt({2 * NU})
    """)
    for j in range(4):
        A(mfma(j))
    A(f"""
    Lg_entry:
    v_add_u32 v{vErr}, v{vQ}, v{vErr}
    ds_read_b32 v{vEo}, v{vEp} offset:{L_EO}
    ds_read_b64 {vr(vSo, 2)}, v{vP} offset:{L_SO}
    v_cmp_le_u32_e64 {sr(sNext, 2)}, s{sT}, v{vErr}
    s_cmp_lt_u32 s{sTi}, s{sT}
    s_cselect_b64 {sr(sNext, 2)}, {sr(sNext, 2)}, 1
    s_mov_b64 exec, {sr(sNext, 2)}
    v_subrev_u32 v{vErr}, s{sT}, v{vErr}
    v_add_u32 v{vEp}, 16, v{vEp}
    s_waitcnt lgkmcnt(1)
    v_add_u32 v{vEo}, v{vEo}, v{vH16}
    buffer_load_dwordx4 {vr(vEA, 4)}, v{vEo}, {sr(S_EA, 4)}, 0 offen
    s_mov_b64 exec, -1
    """)
    for u in range(NU):
        bit = 8 * (u >> 1) + 2 * (u & 1) + 1
        so2 = vSo + 2 * (u & 1)
        La, Lb = vLs[u], vLs[u] + 4
        a, b = vT, vT + 4
        num, den = vAcc + 8 * u, vAcc + 8 * u + 4
        if u + 1 < NU:
            A(f"ds_read_b64 {vr(vSo + 2 * ((u + 1) & 1), 2)}, v{vP + u + 1} offset:{L_SO + 2048 * (u + 1)}")
        A(f"s_bitcmp1_b32 s{sCur}, {bit}")
        A(f"s_cbranch_scc0 Lg_skip{u}")
        A(f"s_waitcnt vmcnt({2 * NU - 1})")
        for j in range(4):
            A(f"v_fma_mix_f32 v{a + j}, v{vD + 16 * j + 2 * u}, s{sNl}, v{La + j} op_sel_hi:[0,0,1]")
        for j in range(4):
            A(f"v_fma_mix_f32 v{b + j}, v{vD + 16 * j + 2 * u + 1}, s{sNl}, v{Lb + j} op_sel_hi:[0,0,1]")
        for j in range(0, 8, 2):
            A(f"v_pk_add_f32 {vr(a + j, 2)}, {vr(a + j, 2)}, {vr(vAn + 4 * u + (j & 3), 2)}")
        for j in range(8):
            A(f"v_exp_f32_e64 v{a + j}, v{a + j} clamp")
        for j in range(0, 8, 2):
            A(f"v_pk_add_f32 {vr(a + j, 2)}, {vr(a + j, 2)}, {sr(sC0, 2)}")
        for j in (0, 2):
            A(f"v_pk_mul_f32 {vr(La + j, 2)}, {vr(La + j, 2)}, {vr(b + j, 2)}")
        for j in (0, 2):
            A(f"v_pk_fma_f32 {vr(La + j, 2)}, {vr(Lb + j, 2)}, {vr(a + j, 2)}, {vr(La + j, 2)}")
        for j in (0, 2):
            A(f"v_pk_add_f32 {vr(Lb + j, 2)}, {vr(a + j, 2)}, {vr(b + j, 2)}")
        for j in (0, 2):
            A(f"v_pk_mul_f32 {vr(a + j, 2)}, {vr(a + j, 2)}, {vr(b + j, 2)}")
        for j in range(4):
            A(f"v_rcp_f32 v{a + j}, v{a + j}")
        for j in (0, 2):
            A(f"v_pk_fma_f32 {vr(num + j, 2)}, {vr(La + j, 2)}, {vr(a + j, 2)}, {vr(num + j, 2)}")
            A(f"v_pk_fma_f32 {vr(den + j, 2)}, {vr(Lb + j, 2)}, {vr(a + j, 2)}, {vr(den + j, 2)}")
        A(f"Lg_skip{u}:")
        A(f"s_bitcmp1_b32 s{sNext}, {bit}")
        A("s_cselect_b64 exec, -1, 1")
        A(f"s_cselect_b32 s{sInc}, 16, 0")
        A(f"s_waitcnt lgkmcnt({1 if u + 1 < NU else 0})")
        A(f"v_add_u32 v{so2}, v{so2}, v{vLo}")
        A(f"v_add_u32 v{so2 + 1}, v{so2 + 1}, v{vLo}")
        A(f"buffer_load_dwordx4 {vr(La, 4)}, v{so2}, {sr(S_TAB, 4)}, 0 offen {tab_pol}")
        A(f"buffer_load_dwordx4 {vr(Lb, 4)}, v{so2 + 1}, {sr(S_TAB, 4)}, 0 offen {tab_pol}")
        A("s_mov_b64 exec, -1")
        A(f"v_add_u32 v{vP + u}, s{sInc}, v{vP + u}")
    A(f"""
    s_mov_b64 {sr(sCur, 2)}, {sr(sNext, 2)}
    s_add_u32 s{sTi}, s{sTi}, 1
    s_cmp_le_u32 s{sTi}, s{sT}
    s_cbranch_scc1 Lg_tile
    Lg_done:
    s_waitcnt vmcnt(0)
    s_cmp_lg_u32 s{sOvf}, 0
    s_cbranch_scc1 Lround
    s_add_u32 s{sW0}, s{sW0}, 16
    s_cmp_lg_u32 s{sMor}, 0
    s_cbranch_scc1 Lbatch
    s_mul_i32 s3, s{sW}, 528
    s_add_u32 s3, s3, {L_TU}
    v_mul_u32_u24 v{vA2}, {33 * 8}, v{vH16}
    v_add3_u32 v{vA2}, v{vA2}, v{vLo}, s3
    s_mul_i32 s3, s{sW}, 272
    s_add_u32 s3, s3, {L_X}
    v_mul_u32_u24 v{vA3}, {17 * 8}, v{vH16}
    v_lshrrev_b32 v{vLo + 1}, 1, v{vLo}
    v_add3_u32 v{vA3}, v{vA3}, v{vLo + 1}, s3
    """)
    for pr in range(4):
        A(f"ds_read_b128 {vr(vU + 4 * pr, 4)}, v{vA2} offset:{16 * 528 * pr}")
        A(f"ds_read_b64 {vr(vXr + 2 * pr, 2)}, v{vA3} offset:{16 * 272 * pr}")
    A(f"""
    v_lshl_add_u32 v{vA2}, v{vH16}, 7, v{vLo + 1}
    s_add_u32 s{sQ1}, s{sN0}, s{sW}
    s_lshl_b32 s{sQ1}, s{sQ1}, 8
    s_waitcnt lgkmcnt(0)
    """)
    for pr in range(4):
        if pr == 3:
            A(f"s_add_u32 s3, s{sW}, 48")
            A(f"s_cmp_ge_u32 s3, s{sNn}")
            A("s_cbranch_scc1 Lk2_done")
        finalize(vAcc + 16 * pr, 4, vAcc + 16 * pr + 8, vU + 4 * pr, vXr + 2 * pr, vA2, sQ1,
                 "s_mov_b32 exec_hi, 0" if pr == 3 else "s_nop 0")
        A(f"s_add_u32 s{sQ1}, s{sQ1}, 4096")
    A("s_branch Lk2_done")
    return L_END


def gen_report(A, opt):
    kind, team, idx = opt["report"].split(",")
    idx, _, ref = idx.partition("-")
    idx = int(idx)
    A("report_kernel:")
    A("s_cmp_ge_u32 s2, 1")
    A("s_cbranch_scc1 Lr_exit")
    load_kernargs(A)
    A("s_waitcnt lgkmcnt(0)")
    srd(A, 28, P_WS, 0x80000, STAMP_OFF + 0x20000)

    def reduce(op, base, dst, tag, sub):
        A("v_lshrrev_b32 v1, 2, v0")
        A("v_and_b32 v2, 3, v0")
        A("v_lshlrev_b32 v1, 9, v1")
        A("v_lshl_add_u32 v1, v2, 6, v1")
        A(f"v_mov_b32 v3, {'-1' if op == 'min' else '0'}")
        A("s_mov_b32 s44, 0")
        A(f"Lr_{tag}:")
        A(f"buffer_load_dword v2, v1, s[28:31], s44 offen offset:{base}")
        A("s_waitcnt vmcnt(0)")
        if sub:
            A("v_subrev_u32 v2, s40, v2")
        A(f"v_{op}_u32 v3, v3, v2")
        A("s_add_u32 s44, s44, 8192")
        A("s_cmp_lt_u32 s44, 131072")
        A(f"s_cbranch_scc1 Lr_{tag}")
        A(f"v_readlane_b32 s{dst}, v3, 0")
        for l in range(1, 64):
            A(f"v_readlane_b32 s3, v3, {l}")
            A("s_nop 0")
            A(f"s_{op}_u32 s{dst}, s{dst}, s3")

    reduce("min", 0, 40, "a", False)
    reduce(kind, 8 * idx + (256 if team == "t" else 0), 41, "b", True)
    if ref:
        reduce(kind, 8 * int(ref) + (256 if team == "t" else 0), 45, "c", True)
        A("s_sub_u32 s41, s41, s45")
    sc = int(opt.get("rs", 2))
    A(f"s_lshr_b32 s41, s41, {10 - sc}" if kind == "add" else f"s_lshl_b32 s41, s41, {sc}")
    A("s_min_u32 s41, s41, 30000")
    A("s_add_u32 s41, s41, 10000")
    A("Lr_spin:")
    A("s_memrealtime s[42:43]")
    A("s_waitcnt lgkmcnt(0)")
    A("s_sub_u32 s42, s42, s40")
    A("s_cmp_lt_u32 s42, s41")
    A("s_cbranch_scc1 Lr_spin")
    A("Lr_exit:")
    A("s_endpgm")


def descriptor(name, vgpr, extra=""):
    return f""".amdhsa_kernel {name}
  .amdhsa_next_free_vgpr {vgpr}
  .amdhsa_next_free_sgpr 102
  .amdhsa_accum_offset {(vgpr + 3) // 4 * 4}
  .amdhsa_group_segment_fixed_size 0
  .amdhsa_kernarg_size 96
  .amdhsa_user_sgpr_count 2
  .amdhsa_user_sgpr_kernarg_segment_ptr 1
  .amdhsa_system_sgpr_workgroup_id_x 1
{extra}.end_amdhsa_kernel
"""


def generate(opt):
    A = Asm()
    lds = gen_k2(A, opt)
    lst = f"kernel={NAME}_kernel " if opt.get("report") else ""
    text = (f"""; GatedGCN layer in one launch of 256 co-resident workgroups (one per CU).
; Workgroup g owns chunk g of the edges (1568) and one bucket of 48 or 49 destination nodes.
;  1. counting sort of the chunk by destination bucket -> records in d_ws, published by tagged offset words
;  2. x @ w_b, x @ w_v of the bucket's rows -> gather table in d_ws (low half: f16 of -log2(e) * B, high half: V),
;     published by a tagged word; x @ w_a and x + x @ w_u stay in LDS
;  3. the bucket's records are sorted by (node, source range), padded to groups of four edges and split evenly
;     over the eight waves; every wave walks its groups in source order
;  4. per group: gate exponent from MFMA(e_attr, w_c) and the gathered row, sigmoid of two edges with one reciprocal,
;     numerator and denominator sums in indexed registers; out = max(x + x @ w_u + num / (den + 1e-6), x)
; The tag is published in d_debug by workgroup 0. Inputs outside the limits of the fast path (degree distribution,
; |x @ w_a| > 52) take the general path at the end of the file.
; @launch {lst}grid=(256,1,1) block=(512,1,1) lds={lds}
.amdgcn_target "amdgcn-amd-amdhsa--gfx950"
.text
.globl {NAME}_kernel
.p2align 8
.type {NAME}_kernel,@function
""" + A.text() + ".section .rodata,\"a\"\n.p2align 6\n"
            + descriptor(f"{NAME}_kernel", 256, "  .amdhsa_fp16_overflow 1\n"))
    if opt.get("report"):
        R = Asm()
        gen_report(R, opt)
        text = text.replace(".amdgcn_target", "; @launch kernel=report_kernel grid=(1,1,1) block=(64,1,1) lds=0\n.amdgcn_target")
        text = text.replace(".section .rodata", ".globl report_kernel\n.p2align 8\n.type report_kernel,@function\n" + R.text() + ".section .rodata")
        text += ".p2align 6\n" + descriptor("report_kernel", 8)
    return text


if __name__ == "__main__":
    out = sys.argv[1] if len(sys.argv) > 1 else f"cdna_kernels/{NAME}.s"
    opt = dict(a.split("=", 1) for a in sys.argv[2:])
    opt = {k: v.replace("+", " ") for k, v in opt.items()}
    open(out, "w").write(generate(opt))
```

```python
import math
import struct
import sys

NAME = "gather_scatter__edge_featured_mpnn_gatedgcn__graph"
N, E = 12500, 400000
BM, BS, SM, SC, SS = 171799, 23, 799999, 16330, 14
CH = 1568
NCH = 256
TAB_OFF = 0
REC_OFF = 0xE00000
OFF_OFF = 0x1000000
SPIN_MAX = 20000
STAMP_OFF = 0x2000000
TAB_BYTES = N * 512
KSH = 48
AMAX = 52.0
NLOG2E = -math.log2(math.e)


def f32(x):
    return struct.unpack("<I", struct.pack("<f", x))[0]


class Asm:
    def __init__(self):
        self.lines = []

    def __call__(self, s):
        for ln in s.strip("\n").split("\n"):
            ln = ln.strip()
            if not ln:
                continue
            self.lines.append(ln if ln.endswith(":") else "    " + ln)

    def note(self, s):
        self.lines += ["; " + ln.strip() for ln in s.strip().split("\n")]

    def text(self):
        return "\n".join(self.lines) + "\n"


def vr(a, n=1):
    return f"v{a}" if n == 1 else f"v[{a}:{a + n - 1}]"


def sr(a, n=1):
    return f"s{a}" if n == 1 else f"s[{a}:{a + n - 1}]"


def srd(A, d, base, nbytes, off=0):
    if off:
        A(f"s_add_u32 s{d}, s{base}, {hex(off)}")
        A(f"s_addc_u32 s{d + 1}, s{base + 1}, 0")
    else:
        A(f"s_mov_b64 {sr(d, 2)}, {sr(base, 2)}")
    A(f"s_mov_b32 s{d + 2}, {hex(nbytes)}")
    A(f"s_mov_b32 s{d + 3}, 0x20000")


P_X, P_EA, P_SRC, P_DST, P_WA, P_WB, P_WC, P_WU = 4, 6, 8, 10, 12, 14, 16, 18
P_WV, P_OUT, P_DBG, P_WS = 20, 22, 24, 26


def load_kernargs(A):
    A("s_load_dwordx16 s[4:19], s[0:1], 0")
    A("s_load_dwordx8 s[20:27], s[0:1], 64")


STAMP_BASE = [2]


def stamp_reg(i):
    return 100 if i == 0 else STAMP_BASE[0] + 2 * i


def stamp(A, opt, i):
    if not opt.get("stamp"):
        return
    if isinstance(i, str):
        names = opt["stamp"].split(",")
        if i not in names:
            return
        i = names.index(i) + 1
    A(f"{'s_memtime' if opt.get('cyc') else 's_memrealtime'} s[{stamp_reg(i)}:{stamp_reg(i) + 1}]")


def stamp_flush(A, opt, n, base, vtid):
    if not opt.get("stamp"):
        return
    A("s_mov_b64 exec, -1")
    A("s_waitcnt vmcnt(0)")
    stamp(A, opt, n - 1)
    srd(A, 20, P_WS, 0x80000, STAMP_OFF + base)
    A(f"v_lshrrev_b32 v1, 6, v{vtid}")
    A("s_lshl_b32 s3, s2, 3")
    A("v_add_u32 v1, s3, v1")
    A(f"v_mul_u32_u24 v1, {8 * n}, v1")
    A("s_mov_b64 exec, 1")
    A("s_waitcnt lgkmcnt(0)")
    for i in range(n):
        r = stamp_reg(i)
        A(f"v_mov_b32 v2, s{r}")
        A(f"v_mov_b32 v3, s{r + 1}")
        A(f"buffer_store_dwordx2 v[2:3], v1, s[20:23], 0 offen offset:{8 * i}")
        A("s_nop 1")


WAVE_SCAN = ("row_shr:1 row_mask:0xf", "row_shr:2 row_mask:0xf", "row_shr:4 row_mask:0xf",
             "row_shr:8 row_mask:0xf", "row_bcast:15 row_mask:0xa", "row_bcast:31 row_mask:0xc")


def wave_scan(A, v, first_nop=1, fill=()):
    for k, d in enumerate(WAVE_SCAN):
        if k < len(fill):
            A("\n".join(fill[k]))
        elif k or first_nop:
            A("s_nop 1")
        A(f"v_add_u32_dpp v{v}, v{v}, v{v} {d} bank_mask:0xf")


def gen_k2(A, opt):
    global TAB_OFF, REC_OFF, OFF_OFF
    wsb = int(opt.get("wsb", 0)) << 20
    TAB_OFF, REC_OFF, OFF_OFF = TAB_OFF + wsb, REC_OFF + wsb, OFF_OFF + wsb
    STAMP_BASE[0] = 2
    ea_pol = opt.get("ea_load", "")
    tab_pol = opt.get("tab_load", "sc1")
    pf_lanes = int(opt.get("pf", 0))
    poll_at = int(opt.get("poll_at", 0))
    ld = [int(x) for x in opt.get("ld", "6,11,16").split(",")]
    TS = int(opt.get("ts", 3))
    OB = int(opt.get("ob", 8))
    S_TAB, S_EA, S_REC, S_OFFS, S_TW, S_X, S_OUT = 28, 32, 36, 40, 44, 48, 52
    sW, sBk, sN0, sW0, sT, sTi, sInc, sNl = 56, 57, 58, 59, 60, 61, 62, 63
    sC0, sCur, sNext, sMore, sTmp, sNon = 64, 66, 68, 70, 72, 74
    sMask = 76
    sMask2 = 18
    S_DST, S_SRC, S_W, S_W2, S_WC, S_DBG = 76, 80, 84, 88, 76, 80
    sOvf, sMor, sQ1, sQ2, sQ3, sLw, sF0, sOwn = 92, 93, 94, 95, 96, 97, 98, 99
    sRem, sSW, sSl0, sSl1, sLn, sPM = sT, sInc, sCur, sCur + 1, sNext, sCur
    sNn = 0
    sWo, sWm = sOvf, sLw
    L_CNT, L_BASE, L_FLAG, P_CNT, P_BASE, P_SORT = 0, 2048, 4096, 4352, 5376, 6400
    L_R2 = 12800
    L_SO = L_R2
    L_EO = L_SO + 25600
    L_STR = L_R2 + 16896
    STRW = 2560
    L_WCR = L_R2 + 65536
    L_X = L_WCR + 4096
    L_R1 = (L_X + 52 * 272 + 255) // 256 * 256
    L_TA = L_R1 + 528
    L_TU = L_TA + 52 * 528
    L_END = L_R1 + 65536
    TF_OFF = NCH * 2048
    NS = 9
    vSl, vD, vL, vWC, vEA, vT, vSo, vLo = 0, 108, 172, 204, 220, 224, 232, 236
    vSp, vEp, vEo, vH16, vSb, vTid, vOffs = 238, 239, 240, 241, 242, 243, 244
    vWf, vG, vXf, vXs, vNon, vTf = 0, 32, vL, 96, 104, 106
    vEn, vEb, vEad, vS2 = 104, 246, 247, 248
    Lbuf = [vL + 8 * u for u in range(4)] + [72 + 8 * u for u in range(4)]
    vRec, vKey, vRank, vSoff, vEoff, vX = vD, vD + 8, vD + 16, vD + 24, vD + 32, vD + 40
    cand = [(vRec + i, vKey + i, vRank + i, vSoff + i, vEoff + i, sMask + 2 * i) for i in range(8)]
    cand2 = [(vEA + i, vT + i, vT + 4 + i, None, None, sMask2 + 2 * i) for i in range(4)]
    c0 = 2.0 ** -KSH
    vZero, vOne, vXw, vXrd, vTw, vInv = vX + 5, vX + 6, vX + 7, vX + 8, vX + 9, vX + 10
    vDa, vBx, vBt, vBs, vAt, vPa, vE = vX + 12, vX + 14, vX + 15, vX + 17, vX + 18, vX + 19, vX + 20
    vSw, vSr = vX + 16, vD + 39
    pD, pS, pA, pR, pC, pB, pG = vD, vD + 4, vD + 8, vD + 12, vD + 16, vD + 20, vD + 24
    vm = []

    def younger(name):
        return len(vm) - 1 - max(i for i, x in enumerate(vm) if x == name)

    def dma_piece(S, soff, i):
        A(f"buffer_load_dwordx4 v{vDa + ((i >> 1) & 1)}, {sr(S, 4)}, s{soff} offen offset:{1024 * (i & 3)} {opt.get('w_pol', '')} lds")

    def loader(lo, hi):
        for g in range(lo, hi):
            A(f"s_mov_b32 m0, {L_R1 + 4096 * g}")
            A(f"s_movk_i32 s3, {4096 * (g & 7)}")
            if g == 8:
                A(f"s_mov_b64 {sr(S_W, 2)}, {sr(P_WV, 2)}")
            for i in range(4):
                dma_piece(S_W, 3, i)

    A(f"{NAME}_kernel:")
    A("s_cmp_ge_u32 s2, 256")
    A("s_cbranch_scc1 Lk2_exit")
    stamp(A, opt, 0)
    load_kernargs(A)
    A(f"""
    s_memrealtime {sr(sNon, 2)}
    s_getpc_b64 s[{sTmp}:{sTmp + 1}]
    """)
    cpf_mode = int(opt.get("cpf", 8))
    if cpf_mode:
        A(f"""
        s_lshr_b32 s3, s2, 3
        s_and_b32 s3, s3, {128 // cpf_mode - 1}
        v_subrev_u32 v1, {512 - cpf_mode}, v0
        v_cmp_gt_u32 vcc, {cpf_mode}, v1
        v_mul_u32_u24 v1, {128 // cpf_mode}, v1
        v_add_lshl_u32 v1, v1, s3, 7
        """)
    else:
        A(f"""
        v_lshlrev_b32 v1, 7, v0
        v_cmp_gt_u32 vcc, Lcold_code - {NAME}_kernel, v1
        """)
    A(f"""
    s_and_saveexec_b64 {sr(sNext, 2)}, vcc
    s_cbranch_execz Lno_cpf
    global_load_dword v2, v1, s[{sTmp}:{sTmp + 1}] {opt.get('cpf_pol', '')}
    Lno_cpf:
    s_mov_b64 exec, -1
    v_mov_b32 v{vZero}, 0
    v_lshlrev_b32 v{vX + 11}, 2, v0
    ds_write_b32 v{vX + 11}, v{vZero} offset:{L_FLAG}
    ds_write_b32 v{vX + 11}, v{vZero} offset:{L_CNT}
    v_lshrrev_b32 v{vX}, 6, v0
    v_lshlrev_b32 v{vX + 2}, 4, v0
    v_readfirstlane_b32 s{sW}, v{vX}
    s_movk_i32 s3, {CH // 4}
    s_cmp_eq_u32 s2, {NCH - 1}
    s_cselect_b32 s3, {(E - (NCH - 1) * CH) // 4}, s3
    v_cmp_gt_u32_e64 {sr(sPM, 2)}, s3, v0
    s_mul_i32 s{sQ1}, s2, {CH * 4}
    s_mov_b32 s{S_DST + 2}, {E * 4}
    s_mov_b32 s{S_DST + 3}, 0x20000
    s_mov_b32 s{S_SRC + 2}, {E * 4}
    s_mov_b32 s{S_SRC + 3}, 0x20000
    s_and_b32 s3, s2, 7
    s_lshl_b32 s3, s3, 5
    s_lshr_b32 s{sBk}, s2, 3
    s_add_u32 s{sBk}, s{sBk}, s3
    s_mul_i32 s{sN0}, s{sBk}, {SM}
    s_add_u32 s{sOwn}, s{sN0}, {SM + SC}
    s_add_u32 s{sN0}, s{sN0}, {SC}
    s_lshr_b32 s{sOwn}, s{sOwn}, {SS}
    s_lshr_b32 s{sN0}, s{sN0}, {SS}
    v_mov_b32 v{vTid}, v0
    v_and_b32 v{vX + 3}, 0x3f0, v{vX + 2}
    v_bfe_u32 v{vX + 1}, v0, 4, 2
    v_lshlrev_b32 v{vX + 4}, 6, v{vX + 1}
    v_xor_b32 v{vDa}, v{vX + 3}, v{vX + 4}
    v_xor_b32 v{vDa + 1}, 32, v{vDa}
    s_lshl_b32 s{sWm}, s{sW}, 13
    s_add_u32 s{sWm + 1}, s{sWm}, 4096
    s_and_b32 s{sWo}, s{sWm}, 0x7fff
    s_add_u32 s{sWo + 1}, s{sWo}, 4096
    s_lshl_b32 s{sTmp}, s{sN0}, 8
    s_add_u32 s{sTmp + 1}, s{sTmp}, 8192
    s_mov_b64 exec, {sr(sPM, 2)}
    s_waitcnt lgkmcnt(0)
    s_cbranch_execz Lp_nold
    s_mov_b64 {sr(S_DST, 2)}, {sr(P_DST, 2)}
    s_mov_b64 {sr(S_SRC, 2)}, {sr(P_SRC, 2)}
    buffer_load_dwordx4 {vr(pD, 4)}, v{vX + 2}, {sr(S_DST, 4)}, s{sQ1} offen {opt.get("idx_pol", "nt")}
    buffer_load_dwordx4 {vr(pS, 4)}, v{vX + 2}, {sr(S_SRC, 4)}, s{sQ1} offen {opt.get("idx_pol", "nt")}
    Lp_nold:
    """)
    if int(opt.get("wpf", 1)):
        A(f"""
        s_cmp_lg_u32 s{sW}, 7
        s_cbranch_scc1 Lno_wpf
        s_mov_b64 exec, 0xff
        s_lshr_b32 s3, s2, 3
        s_lshl_b32 s3, s3, 10
        v_lshl_add_u32 v1, v{vX + 3}, 3, s3
        global_load_dword v3, v1, {sr(P_WB, 2)} {opt.get('wpf_pol', '')}
        global_load_dword v4, v1, {sr(P_WV, 2)} {opt.get('wpf_pol', '')}
        global_load_dword v5, v1, {sr(P_WA, 2)} {opt.get('wpf_pol', '')}
        global_load_dword v6, v1, {sr(P_WU, 2)} {opt.get('wpf_pol', '')}
        Lno_wpf:
        """)
    A("s_mov_b64 exec, -1")
    A("s_barrier")
    vm.append("dst")
    srd(A, S_DBG, P_DBG, 256)
    A(f"""
    s_xor_b32 s3, s{sW}, 7
    s_or_b32 s3, s3, s2
    s_cbranch_scc1 Lno_nonce
    s_or_b32 s3, s{sNon}, 1
    v_mov_b32 v{vNon}, s3
    v_mov_b32 v{vNon + 1}, s{sNon + 1}
    s_mov_b64 exec, 1
    buffer_store_dwordx2 {vr(vNon, 2)}, v{vZero}, {sr(S_DBG, 4)}, 0 offen sc1
    s_mov_b64 exec, -1
    Lno_nonce:
    """)
    A(f"""
    s_mov_b64 {sr(S_X, 2)}, {sr(P_X, 2)}
    s_lshl_b32 s{S_X + 2}, s{sOwn}, 8
    s_mov_b32 s{S_X + 3}, 0x20000
    s_sub_u32 s{sNn}, s{sOwn}, s{sN0}
    """)
    for i in range(2):
        A(f"buffer_load_dwordx4 {vr(vXs + 4 * i, 4)}, v{vX + 2}, {sr(S_X, 4)}, s{sTmp + i} offen {opt.get('x_pol', 'nt')}")
        vm.append("x")
    A(f"""
    s_cmp_lt_u32 s{sW}, 4
    s_cselect_b32 s{S_W}, s{P_WB}, s{P_WV}
    s_cselect_b32 s{S_W + 1}, s{P_WB + 1}, s{P_WV + 1}
    s_cselect_b32 s{S_W2}, s{P_WA}, s{P_WU}
    s_cselect_b32 s{S_W2 + 1}, s{P_WA + 1}, s{P_WU + 1}
    s_mov_b32 s{S_W + 2}, 32768
    s_mov_b32 s{S_W + 3}, 0x20000
    s_mov_b32 s{S_W2 + 2}, 32768
    s_mov_b32 s{S_W2 + 3}, 0x20000
    """)
    npf0 = 0
    A(f"s_cmp_lg_u32 s{sW}, 7")
    A("s_cbranch_scc1 Lno_ld0")
    A(f"s_mov_b64 {sr(S_W, 2)}, {sr(P_WB, 2)}")
    loader(0, 2)
    A("Lno_ld0:")
    srd(A, S_WC, P_WC, 4096)
    srd(A, S_REC, P_WS, NCH * CH * 4, REC_OFF)
    srd(A, S_OFFS, P_WS, TF_OFF + (256 << TS), OFF_OFF)
    srd(A, S_TAB, P_WS, TAB_BYTES + 512, TAB_OFF)
    srd(A, S_EA, P_EA, 0 if opt.get("noea") else E * 32)
    srd(A, S_OUT, P_OUT, N * 256)
    A(f"""
    s_lshl_b32 s3, s{sN0}, 9
    s_add_u32 s{S_TW}, s{S_TAB}, s3
    s_addc_u32 s{S_TW + 1}, s{S_TAB + 1}, 0
    s_lshl_b32 s{S_TW + 2}, s{sNn}, 9
    s_mov_b32 s{S_TW + 3}, 0x20000
    s_mov_b32 s{sNl}, {hex(f32(NLOG2E))}
    s_mov_b32 s{sC0}, {hex(f32(c0))}
    s_mov_b32 s{sC0 + 1}, {hex(f32(c0))}
    s_mov_b32 s{sW0}, 0
    s_mov_b32 s{sQ2}, {BM}
    s_mov_b32 s{sQ3}, {-SM}
    v_mov_b32 v{vOne}, 1
    v_lshrrev_b32 v{vX + 11}, 4, v{vTid}
    v_lshl_add_u32 v{vXw}, v{vX + 11}, 4, v{vX + 2}
    v_add_u32 v{vXw}, {L_X}, v{vXw}
    v_and_b32 v{vLo}, 0x1f0, v{vX + 2}
    v_bfe_u32 v{vX + 4}, v{vTid}, 5, 1
    v_mov_b32 v{vLo + 1}, v{vLo}
    v_lshlrev_b32 v{vH16}, 4, v{vX + 4}
    s_lshr_b32 s{sTmp}, s{sW}, 2
    s_and_b32 s{sTmp + 1}, s{sW}, 3
    v_bfe_u32 v{vX + 11}, v{vTid}, 2, 2
    v_xor_b32 v{vE}, s{sTmp + 1}, v{vX + 11}
    v_lshlrev_b32 v{vE}, 6, v{vE}
    v_and_b32 v{vE + 1}, 3, v{vTid}
    v_lshl_add_u32 v{vE}, v{vE + 1}, 3, v{vE}
    v_lshl_add_u32 v{vE}, v{vX + 11}, 8, v{vE}
    v_and_b32 v{vE + 1}, 1, v{vX + 1}
    v_xor_b32 v{vE + 1}, v{vE + 1}, v{vX + 4}
    v_lshl_add_u32 v{vE}, v{vE + 1}, 5, v{vE}
    v_lshl_add_u32 v{vE}, v{vX + 4}, 11, v{vE}
    v_add_u32 v{vBt}, {L_R1}, v{vE}
    s_lshl_b32 s3, s{sTmp}, 15
    s_add_u32 s3, s3, {L_R2}
    v_add_u32 v{vAt}, s3, v{vE}
    v_and_b32 v{vX + 11}, 31, v{vTid}
    v_mul_u32_u24 v{vXrd}, 272, v{vX + 11}
    s_mov_b32 s3, {L_X}
    v_add3_u32 v{vXrd}, v{vXrd}, v{vH16}, s3
    s_mul_i32 s3, s{sTmp}, {32 * 272}
    v_add_u32 v{vBx}, s3, v{vXrd}
    s_mul_i32 s3, s{sW}, 4608
    s_add_u32 s3, s3, {L_R1}
    v_mul_u32_u24 v{vSw}, 144, v{vX + 11}
    v_add3_u32 v{vSw}, v{vSw}, v{vH16}, s3
    v_bfe_u32 v{vE}, v{vTid}, 3, 3
    v_lshl_add_u32 v{vSr}, v{vE}, 4, v{vX + 3}
    v_add_u32 v{vSr}, s3, v{vSr}
    v_and_b32 v{vE + 1}, 0x70, v{vX + 3}
    v_lshl_add_u32 v{vBs}, v{vE}, 9, v{vE + 1}
    s_lshl_b32 s3, s{sTmp}, 7
    s_add_u32 s3, s3, s{sTmp + 1}
    s_lshl_b32 s3, s3, 7
    v_add_u32 v{vBs}, s3, v{vBs}
    v_mul_u32_u24 v{vTw}, 528, v{vX + 11}
    s_mul_i32 s3, s{sTmp}, {L_TU - L_TA}
    s_lshl_b32 s{sTmp + 1}, s{sTmp + 1}, 7
    s_add_u32 s3, s3, s{sTmp + 1}
    s_add_u32 s3, s3, {L_TA}
    v_add3_u32 v{vTw}, v{vTw}, v{vH16}, s3
    v_lshrrev_b32 v{vPa}, 1, v{vTid}
    v_lshlrev_b32 v{vPa}, {3 + OB}, v{vPa}
    v_lshlrev_b32 v{vE}, 8, v{vTid}
    v_add_u32 v{vE + 1}, 64, v{vE}
    v_add_u32 v{vE + 2}, 0x80, v{vE}
    v_add_u32 v{vE + 3}, 0xc0, v{vE}
    """)
    stamp(A, opt, "iss")

    def stage_x(wait):
        A(f"s_waitcnt vmcnt({wait})")
        A(f"ds_write_b128 v{vXw}, {vr(vXs, 4)}")
        A(f"s_cmp_lt_u32 s{sW}, 5")
        A("s_cselect_b64 exec, -1, 0")
        A(f"ds_write_b128 v{vXw}, {vr(vXs + 4, 4)} offset:{32 * 272}")
        A("s_mov_b64 exec, -1")

    nonce_load = f"buffer_load_dwordx2 {vr(vNon, 2)}, v{vZero}, {sr(S_DBG, 4)}, 0 offen sc1"
    A(f"""
    s_cmp_eq_u32 s{sW}, 7
    s_cbranch_scc1 Lp_loader
    s_mov_b64 exec, {sr(sPM, 2)}
    s_waitcnt vmcnt({2 + npf0})
    """)
    stamp(A, opt, "dst")
    for i in range(4):
        A(f"v_mul_u32_u24 v{pC + i}, s{sQ2}, v{pD + i}")
    for i in range(4):
        A(f"v_lshrrev_b32 v{pC + i}, {BS}, v{pC + i}")
        A(f"v_lshlrev_b32 v{pA + i}, 2, v{pC + i}")
        A(f"ds_add_rtn_u32 v{pR + i}, v{pA + i}, v{vOne} offset:{P_CNT}")
    for i in range(4):
        A(f"v_lshl_add_u32 v{pD + i}, v{pD + i}, {SS}, {(1 << SS) - 1 - SC}")
        A(f"v_mad_i32_i24 v{pD + i}, v{pC + i}, s{sQ3}, v{pD + i}")
    A("s_mov_b64 exec, -1")
    A(f"s_cmp_eq_u32 s{sW}, 3")
    A("s_waitcnt lgkmcnt(0)")
    A("s_barrier")
    stamp(A, opt, "b2")
    A(f"""
    s_cbranch_scc0 Lp_noscan
    ds_read_b128 {vr(pC, 4)}, v{vX + 3} offset:{P_CNT}
    s_waitcnt lgkmcnt(0)
    v_add_u32 v{pB + 2}, v{pC}, v{pC + 1}
    v_add3_u32 v{pG + 1}, v{pB + 2}, v{pC + 2}, v{pC + 3}
    v_add_u32 v{pB + 3}, v{pB + 2}, v{pC + 2}
    v_mov_b32 v{pG}, v{pG + 1}
    """)
    ors = []
    for i in range(4):
        ors += [f"v_lshl_or_b32 v{pS + i}, v{pS + i}, 18, v{vE + i}", f"v_lshrrev_b32 v{pD + i}, {SS}, v{pD + i}",
                f"v_or_b32 v{pS + i}, v{pS + i}, v{pD + i}"]
    wave_scan(A, pG + 1, fill=[[]] + [ors[2 * k: 2 * k + 2] for k in range(5)])
    A(f"""
    v_sub_u32 v{pB}, v{pG + 1}, v{pG}
    v_add_u32 v{pB + 1}, v{pB}, v{pC}
    v_add_u32 v{pB + 2}, v{pB}, v{pB + 2}
    v_add_u32 v{pB + 3}, v{pB}, v{pB + 3}
    ds_write_b128 v{vX + 3}, {vr(pB, 4)} offset:{P_BASE}
    {ors[10]}
    {ors[11]}
    s_waitcnt lgkmcnt(0)
    s_barrier
    """)
    A("s_branch Lp_scanned")
    A("Lp_noscan:")
    A("\n".join(ors))
    A("s_barrier")
    A("Lp_scanned:")
    stamp(A, opt, "scan")
    A(f"s_mov_b64 exec, {sr(sPM, 2)}")
    for i in range(4):
        A(f"ds_read_b32 v{pA + i}, v{pA + i} offset:{P_BASE}")
    A("s_waitcnt lgkmcnt(0)")
    for i in range(4):
        A(f"v_add_lshl_u32 v{pA + i}, v{pA + i}, v{pR + i}, 2")
        A(f"ds_write_b32 v{pA + i}, v{pS + i} offset:{P_SORT}")
    A("s_mov_b64 exec, -1")
    A(nonce_load)
    A("s_waitcnt lgkmcnt(0)")
    A("s_barrier")
    stamp(A, opt, "b3")
    A(f"""
    ds_read_b128 {vr(pD, 4)}, v{vX + 2} offset:{P_SORT}
    s_mov_b64 exec, {sr(sPM, 2)}
    s_cbranch_execz Lp_none
    s_waitcnt lgkmcnt(0)
    buffer_store_dwordx4 {vr(pD, 4)}, v{vX + 2}, {sr(S_REC, 4)}, s{sQ1} offen sc1
    s_branch Lp_out
    Lp_loader:
    """)
    loader(2, ld[0])
    A("s_barrier")
    loader(ld[0], ld[1])
    A("s_barrier")
    loader(ld[1], ld[2])
    A("s_barrier")
    loader(ld[2], 16)
    A(nonce_load)
    A(f"""
    Lp_none:
    s_waitcnt vmcnt(1)
    Lp_out:
    s_mov_b64 exec, -1
    """)
    stage_x(2)
    A(f"""
    v_lshrrev_b32 v{vX + 11}, 1, v{vX + 2}
    v_and_b32 v{vX + 11}, 0x3ff, v{vX + 11}
    ds_read_b64 {vr(pC, 2)}, v{vX + 11} offset:{P_CNT}
    ds_read_b64 {vr(pB, 2)}, v{vX + 11} offset:{P_BASE}
    s_lshl_b32 s3, s{sW}, 9
    s_add_u32 m0, s3, {L_WCR}
    s_waitcnt lgkmcnt(0)
    s_barrier
    """)
    stamp(A, opt, "b3b")

    bB, bV, bO = 48, 64, 80

    def bv_reads(s):
        r = 12 * (s & 3)
        A(f"ds_read_b128 {vr(r + 8, 4)}, v{vBx} offset:{32 * s}")
        for m in range(2):
            for z in range(2):
                A(f"ds_read_b64_tr_b16 {vr(r + 4 * m + 2 * z, 2)}, v{vBt} offset:{m * 32768 + s * 4096 + z * 1024}")

    for s in range(3):
        bv_reads(s)
    A(f"""
    s_mov_b32 exec_hi, 0
    buffer_load_dwordx4 v{vX + 3}, {sr(S_WC, 4)}, s3 offen lds
    s_mov_b32 exec_hi, -1
    """)
    b4b = int(opt.get("b4b", 1))
    wk = int(opt.get("wk", 2))
    for s in range(8):
        r = 12 * (s & 3)
        A(f"s_waitcnt lgkmcnt({5 * min(2, 7 - s)})")
        for m in range(2):
            d = (bB, bV)[m]
            A(f"v_mfma_f32_32x32x16_bf16 {vr(d, 16)}, {vr(r + 4 * m, 4)}, {vr(r + 8, 4)}, {'0' if s == 0 else vr(d, 16)}")
        if s + 3 < 8:
            bv_reads(s + 3)
        for i in range(wk * s, min(8, wk * s + wk)):
            if i % 4 == 0:
                A(f"s_add_u32 m0, s{sWm + i // 4}, {L_R2}")
                A("s_nop 0")
            dma_piece(S_W2, sWo + (i >> 2), i)
    stamp(A, opt, "bvm")
    A(f"""
    s_mov_b32 s{sTi}, 0
    s_waitcnt vmcnt(9)
    Lnonce_check:
    v_readfirstlane_b32 s{sNon}, v{vNon}
    v_readfirstlane_b32 s{sNon + 1}, v{vNon + 1}
    s_add_u32 s{sTi}, s{sTi}, 1
    s_cmp_lg_u32 s{sNon}, 0
    s_cbranch_scc1 Lnonce_ok
    buffer_load_dwordx2 {vr(vNon, 2)}, v{vZero}, {sr(S_DBG, 4)}, 0 offen sc1
    s_cmp_lt_u32 s{sTi}, {SPIN_MAX}
    s_waitcnt vmcnt(0)
    s_cbranch_scc1 Lnonce_check
    Lnonce_ok:
    s_and_b32 s{sNon + 1}, s{sNon + 1}, 0x3ff
    s_lshl_b32 s3, s{sNon + 1}, 22
    v_lshl_or_b32 v{pG}, v{pC}, 11, v{pB}
    v_lshl_or_b32 v{pG + 2}, v{pC + 1}, 11, v{pB + 1}
    v_or_b32 v{pG}, s3, v{pG}
    v_or_b32 v{pG + 2}, s3, v{pG + 2}
    v_mov_b32 v{pG + 1}, s{sNon}
    v_mov_b32 v{pG + 3}, s{sNon}
    v_lshrrev_b32 v{vE}, {3 + OB}, v{vX + 2}
    v_and_b32 v{vE + 1}, {(8 << OB) - 1}, v{vX + 2}
    v_lshl_add_u32 v{vE}, v{vE}, {11 + OB}, v{vE + 1}
    s_lshl_b32 s3, s2, {3 + OB}
    s_cmp_ge_u32 s{sW}, 2
    {'' if b4b else 's_waitcnt vmcnt(0)'}
    s_barrier
    s_cbranch_scc1 Lno_off
    buffer_store_dwordx4 {vr(pG, 4)}, v{vE}, {sr(S_OFFS, 4)}, s3 offen sc1
    Lno_off:
    """)
    stamp(A, opt, "sig")
    for g in range(4):
        for i in range(4 * g, 4 * g + 4):
            A(f"v_fma_mixlo_f16 v{bV + i}, v{bB + i}, s{sNl}, 0")
        A(f"ds_write_b128 v{vSw}, {vr(bV + 4 * g, 4)} offset:{32 * g}")
    for i in range(4):
        A(f"ds_read_b128 {vr(bO + 4 * i, 4)}, v{vSr} offset:{1152 * i}")
    A(f"""
    s_or_b32 s3, s2, s{sW}
    s_cbranch_scc1 Lno_pad
    v_mov_b32 v{vE}, 0x7c00
    v_mov_b32 v{vE + 1}, 0x7c00
    v_lshrrev_b32 v{vE + 2}, 1, v{vX + 3}
    s_mov_b32 s3, {TAB_BYTES}
    buffer_store_dwordx2 {vr(vE, 2)}, v{vE + 2}, {sr(S_TAB, 4)}, s3 offen sc1
    Lno_pad:
    s_lshr_b32 s3, s{sBk}, {OB}
    s_lshl_b32 s3, s3, {8 + OB}
    s_and_b32 s{sQ1}, s{sBk}, {(1 << OB) - 1}
    s_add_u32 s{sQ1}, s{sQ1}, s3
    s_lshl_b32 s{sQ1}, s{sQ1}, 3
    s_mov_b32 s3, 0
    """)
    def au_reads(s):
        for z in range(2):
            A(f"ds_read_b64_tr_b16 {vr(vWf + 4 * s + 2 * z, 2)}, v{vAt} offset:{s * 4096 + z * 1024}")
        A(f"ds_read_b128 {vr(vXf + 4 * s, 4)}, v{vXrd} offset:{32 * s}")

    for s in range(4):
        A(f"s_waitcnt lgkmcnt({3 - s if b4b else 3 + 2 * s})")
        A(f"buffer_store_dwordx4 {vr(bO + 4 * s, 4)}, v{vBs}, {sr(S_TW, 4)}, s3 offen sc1")
        A("s_add_u32 s3, s3, 4096")
        if not b4b:
            au_reads(s)
    if b4b:
        A(f"""
        s_cmp_ge_u32 s{sW}, 2
        s_cbranch_scc1 Lwau_0
        s_waitcnt vmcnt(5)
        s_branch Lwau_1
        Lwau_0:
        s_waitcnt vmcnt(4)
        Lwau_1:
        s_barrier
        """)
        for s in range(4):
            au_reads(s)
    stamp(A, opt, "bve")
    if opt.get("notab"):
        A(f"s_mov_b32 s{S_TAB + 2}, 0")
    poll = f"buffer_load_dwordx2 {vr(vOffs, 2)}, v{vPa}, {sr(S_OFFS, 4)}, s{sQ1} offen sc1"

    def tag_wait(name, v, reload):
        A(f"""
        s_mov_b32 s{sTi}, 0
        L{name}_check:
        v_lshrrev_b32 v{vX + 11}, 22, v{v}
        v_cmp_ne_u32_e64 {sr(sTmp, 2)}, s{sNon}, v{v + 1}
        v_cmp_ne_u32 vcc, s{sNon + 1}, v{vX + 11}
        s_add_u32 s{sTi}, s{sTi}, 1
        s_or_b64 vcc, vcc, {sr(sTmp, 2)}
        s_cbranch_scc0 L{name}_ok
        {reload}
        s_cmp_lt_u32 s{sTi}, {SPIN_MAX}
        s_waitcnt vmcnt(0)
        s_cbranch_scc1 L{name}_check
        L{name}_ok:
        """)

    def batch_masks(window):
        A(f"""
        v_bfe_u32 v{vX}, v{vOffs}, 11, 11
        v_and_b32 v{vX + 1}, 1, v{vTid}
        v_subrev_u32 v{vX}, s{sW0}, v{vX}
        v_lshlrev_b32 v{vX + 1}, 2, v{vX + 1}
        v_cmp_lt_i32_e64 {sr(sMore, 2)}, {window}, v{vX}
        v_sub_u32 v{vX}, v{vX}, v{vX + 1}
        """)
        for i in range(window // 2):
            A(f"v_cmp_lt_i32_e64 {sr((cand + cand2)[i][5], 2)}, {(i & 3) + 8 * (i >> 2)}, v{vX}")

    def rec_addr():
        A(f"""
        v_lshrrev_b32 v{vX + 2}, 1, v{vTid}
        v_and_b32 v{vX + 1}, 1, v{vTid}
        v_mul_u32_u24 v{vX + 2}, {CH}, v{vX + 2}
        v_lshl_add_u32 v{vX + 1}, v{vX + 1}, 2, s{sW0}
        v_add_u32 v{vX + 1}, v{vX + 1}, v{vX + 2}
        v_lshlrev_b32 v{vX + 2}, 5, v{vX + 2}
        """)
        for i in range(0, 8, 2):
            A(f"v_mov_b64 {vr(vKey + i, 2)}, 0")

    def rec_loads(both=True):
        A(f"""
        v_and_b32 v{vX + 4}, 0x7ff, v{vOffs}
        v_add_lshl_u32 v{vX + 4}, v{vX + 4}, v{vX + 1}, 2
        buffer_load_dwordx4 {vr(vRec, 4)}, v{vX + 4}, {sr(S_REC, 4)}, 0 offen sc1
        """)
        if both:
            A(f"buffer_load_dwordx4 {vr(vRec + 4, 4)}, v{vX + 4}, {sr(S_REC, 4)}, 0 offen offset:32 sc1")

    def histogram(cs):
        for rec, key, rank, so_, eo_, m in cs:
            A(f"s_mov_b64 exec, {sr(m, 2)}")
            A(f"v_alignbit_b32 v{key}, v{rec}, v{rec}, 27")
            A(f"v_and_b32 v{key}, 0x7fc, v{key}")
            A(f"ds_add_rtn_u32 v{rank}, v{key}, v{vOne} offset:{L_CNT}")
        A("s_mov_b64 exec, -1")

    def place(cs):
        for rec, key, rank, so_, eo_, m in cs:
            A(f"s_mov_b64 exec, {sr(m, 2)}")
            A(f"v_lshl_add_u32 v{key}, v{rank}, 3, v{key}")
            A(f"ds_write2_b32 v{key}, v{rec}, v{vX + 2} offset0:0 offset1:1")
        A("s_mov_b64 exec, -1")

    def hand_over():
        rec_addr()
        A("s_waitcnt vmcnt(1)")
        A("s_barrier")
        stamp(A, opt, "b5")
        A(f"""
        s_cmp_lg_u32 s{sW}, 7
        s_cbranch_scc1 Lno_tf
        s_lshl_b32 s{sTmp + 1}, s2, {TS}
        s_add_u32 s{sTmp + 1}, s{sTmp + 1}, {TF_OFF}
        s_mov_b64 exec, 1
        buffer_store_dwordx2 {vr(pG, 2)}, v{vZero}, {sr(S_OFFS, 4)}, s{sTmp + 1} offen sc1
        s_mov_b64 exec, -1
        s_waitcnt vmcnt(1)
        s_branch Ltf_sent
        Lno_tf:
        s_waitcnt vmcnt(0)
        Ltf_sent:
        """)
        tag_wait("off", vOffs, poll)
        stamp(A, opt, "off")
        rmask = int(opt.get("rmask", 1))
        rec_loads(not rmask)
        batch_masks(24)
        if rmask:
            A(f"""
            s_mov_b64 exec, {sr(cand[4][5], 2)}
            s_cbranch_execz Lno_rec1
            buffer_load_dwordx4 {vr(vRec + 4, 4)}, v{vX + 4}, {sr(S_REC, 4)}, 0 offen offset:32 sc1
            Lno_rec1:
            s_mov_b64 exec, -1
            """)
        A(f"""
        s_cmp_eq_u64 {sr(sMask2, 2)}, 0
        s_cbranch_scc1 Lno_rec2
        buffer_load_dwordx4 {vr(cand2[0][0], 4)}, v{vX + 4}, {sr(S_REC, 4)}, 0 offen offset:64 sc1
        v_mov_b64 {vr(cand2[0][1], 2)}, 0
        v_mov_b64 {vr(cand2[2][1], 2)}, 0
        Lno_rec2:
        """)

    b5_at = int(opt.get("b5_at", 16))
    assert poll_at <= b5_at
    for k in range(16):
        nb, s = k >> 3, k & 7
        if k == poll_at:
            A(poll)
        if k == b5_at:
            hand_over()
        A(f"s_waitcnt lgkmcnt({9 if k < 5 else (7, 5, 3)[k - 5] if k < 8 else min(3, 15 - k)})")
        cc = "0" if s == 0 else vr(vG + 16 * nb, 16)
        A(f"v_mfma_f32_32x32x16_bf16 {vr(vG + 16 * nb, 16)}, {vr(vWf + 4 * s, 4)}, {vr(vXf + 4 * (k & 7), 4)}, {cc}")
        kn = k + 4
        if kn < 8:
            for z in range(2):
                A(f"ds_read_b64_tr_b16 {vr(vWf + 4 * kn + 2 * z, 2)}, v{vAt} offset:{kn * 4096 + z * 1024}")
        if kn < 16:
            A(f"ds_read_b128 {vr(vXf + 4 * (kn & 7), 4)}, v{vXrd} offset:{32 * 272 * (kn >> 3) + 32 * (kn & 7)}")
    if b5_at == 16:
        hand_over()
    vId = 64
    A(f"""
    s_cmp_lt_u32 s{sW}, 4
    s_cbranch_scc1 Lno_ident
    s_and_b32 s3, s{sW}, 3
    s_lshl_b32 s3, s3, 6
    v_add_u32 v{vX + 11}, s3, v{vXrd}
    """)
    for nb in range(2):
        for z in range(2):
            A(f"ds_read_b128 {vr(vXf + 8 * nb + 4 * z, 4)}, v{vX + 11} offset:{32 * 272 * nb + 32 * z}")
    A(f"""
    v_lshrrev_b32 v{vX + 11}, 4, v{vLo}
    v_lshrrev_b32 v{vX + 12}, 1, v{vH16}
    v_sub_u32 v{vX + 11}, v{vX + 11}, v{vX + 12}
    v_and_b32 v{vX + 12}, 1, v{vX + 11}
    v_lshlrev_b32 v{vX + 12}, 4, v{vX + 12}
    v_mov_b32 v{vX + 13}, 0x3f80
    v_lshlrev_b32 v{vX + 12}, v{vX + 12}, v{vX + 13}
    v_ashrrev_i32 v{vX + 11}, 1, v{vX + 11}
    """)
    for i in range(8):
        A(f"v_cmp_eq_u32_e64 {sr((sTmp, sNext)[i & 1], 2)}, {8 * (i >> 2) + (i & 3)}, v{vX + 11}")
        if i:
            A("s_nop 0")
            A(f"v_cndmask_b32_e64 v{vId + i - 1}, 0, v{vX + 12}, {sr((sTmp, sNext)[(i - 1) & 1], 2)}")
    A("s_nop 0")
    A(f"v_cndmask_b32_e64 v{vId + 7}, 0, v{vX + 12}, {sr(sNext, 2)}")
    A("s_waitcnt lgkmcnt(0)")
    for z in range(2):
        for nb in range(2):
            A(f"v_mfma_f32_32x32x16_bf16 {vr(vG + 16 * nb, 16)}, {vr(vId + 4 * z, 4)}, {vr(vXf + 8 * nb + 4 * z, 4)}, {vr(vG + 16 * nb, 16)}")
    A("Lno_ident:")
    if b5_at == 17:
        hand_over()
    stamp(A, opt, "aum")

    tf_poll = f"buffer_load_dwordx2 {vr(vTf, 2)}, v{vPa}, {sr(S_OFFS, 4)}, s{sQ1} offen sc1"
    vRaw = vD
    A(f"""
    v_lshrrev_b32 v{vPa}, 1, v{vLo}
    {f'v_lshlrev_b32 v{vPa}, {TS - 3}, v{vPa}' if TS > 3 else ''}
    """)

    def wc_reads():
        A(f"""
        v_lshrrev_b32 v{vX + 11}, 1, v{vLo}
        v_lshl_add_u32 v{vX + 11}, v{vH16}, 7, v{vX + 11}
        v_add_u32 v{vX + 11}, {L_WCR}, v{vX + 11}
        """)
        for i in range(8):
            A(f"ds_read_b64 {vr(vRaw + 2 * i, 2)}, v{vX + 11} offset:{256 * i}")

    def wc_fragments():
        A("s_mov_b32 s3, 0x05040100")
        A(f"s_mov_b32 s{sTmp}, 0x07060302")
        for j in range(4):
            for i in range(4):
                A(f"v_perm_b32 v{vWC + 4 * j + i}, v{vRaw + 2 * (2 * i + 1) + (j >> 1)}, v{vRaw + 2 * (2 * i) + (j >> 1)}, "
                  f"s{(3, sTmp)[j & 1]}")

    A(f"""
    s_lshl_b32 s{sQ1}, s{sW}, {5 + TS}
    s_add_u32 s{sQ1}, s{sQ1}, {TF_OFF}
    s_mov_b64 vcc, {sr(sMore, 2)}
    s_cmp_ge_u32 s{sW}, 4
    s_cbranch_scc1 Lu_wave
    v_mov_b32 v{vXs + 2}, 0
    """)
    row_mask = "s_mov_b32 exec_lo, 0xfffff\ns_mov_b32 exec_hi, 0xfffff"
    for i in range(0, 32, 2):
        if i == 16:
            A(row_mask)
        A(f"v_max3_f32 v{vXs + 2}, |v{vG + i}|, |v{vG + i + 1}|, v{vXs + 2}")
    A("s_mov_b64 exec, -1")
    A(f"v_cmp_lt_f32 vcc, {hex(f32(AMAX))}, v{vXs + 2}")
    A(f"s_or_b64 vcc, vcc, {sr(sMore, 2)}")

    def node_rows():
        for nb in range(2):
            if nb == 1:
                A(row_mask)
            for g in range(4):
                A(f"ds_write_b128 v{vTw}, {vr(vG + 16 * nb + 4 * g, 4)} offset:{32 * 528 * nb + 32 * g}")
        A("s_mov_b64 exec, -1")

    def node_exponents():
        A(f"""
        v_mov_b32 v{vXs}, {hex(f32(-float(KSH)))}
        v_mov_b32 v{vXs + 1}, {hex(f32(-float(KSH)))}
        s_mov_b32 s{sTmp}, s{sNl}
        s_mov_b32 s{sTmp + 1}, s{sNl}
        """)
        for i in range(0, 32, 2):
            A(f"v_pk_fma_f32 {vr(vG + i, 2)}, {vr(vG + i, 2)}, {sr(sTmp, 2)}, {vr(vXs, 2)}")

    A("Lu_wave:")
    A("s_mov_b64 exec, vcc")
    A(f"ds_write_b32 v{vZero}, v{vOne} offset:{L_FLAG}")
    A("s_mov_b64 exec, -1")
    late_tf = int(opt.get("late_tf", 2))
    if late_tf < 2:
        A(tf_poll)
    la = vSoff
    A(f"""
    s_mul_i32 s{sSW}, s{sW}, {STRW}
    s_add_u32 s{sSW}, s{sSW}, {L_STR}
    v_add_u32 v{vSp}, s{sSW}, v{vH16}
    v_bfe_u32 v{vX + 12}, v{vTid}, 3, 2
    v_bfe_u32 v{vX + 13}, v{vTid}, 1, 1
    v_lshl_add_u32 v{vX + 12}, v{vX + 12}, 1, v{vX + 13}
    v_bfe_u32 v{vX + 13}, v{vTid}, 2, 1
    v_lshl_add_u32 v{vX + 12}, v{vX + 12}, 1, v{vX + 13}
    v_and_b32 v{vX + 13}, 1, v{vTid}
    v_lshl_add_u32 v{vX + 12}, v{vX + 12}, 1, v{vX + 13}
    v_lshl_add_u32 v{vEp}, v{vX + 12}, 2, s{sSW}
    v_bfrev_b32 v{vX + 13}, 2
    v_mov_b32 v{vX + 12}, {N << 18}
    v_lshlrev_b32 v{la}, 1, v{vX + 3}
    v_lshlrev_b32 v{la + 1}, 3, v{vX + 3}
    v_lshrrev_b32 v{la + 2}, 4, v{vX + 3}
    v_lshl_add_u32 v{la + 3}, v{la + 2}, 2, s{sSW}
    """)
    A(f"s_waitcnt vmcnt({1 if late_tf < 2 else 0})")
    stamp(A, opt, "rec")
    histogram(cand)
    A(f"s_cmp_eq_u64 {sr(sMask2, 2)}, 0")
    A("s_cbranch_scc1 Lno_hist2")
    histogram(cand2)
    A("Lno_hist2:")
    A("s_waitcnt vmcnt(0)")
    stamp(A, opt, "hist")
    epf = int(opt.get("epf", 2500))
    assert not (late_tf and pf_lanes)
    if late_tf == 2:
        A(tf_poll)
    elif late_tf:
        A(f"""
        v_lshrrev_b32 v{vX + 11}, 22, v{vTf}
        v_cmp_ne_u32_e64 {sr(sTmp, 2)}, s{sNon}, v{vTf + 1}
        v_cmp_ne_u32 vcc, s{sNon + 1}, v{vX + 11}
        s_or_b64 {sr(sMore, 2)}, vcc, {sr(sTmp, 2)}
        s_cbranch_scc0 Ltf_seen
        {tf_poll}
        Ltf_seen:
        """)
    else:
        tag_wait("tf", vTf, tf_poll)

    def early_features():
        A(f"s_mov_b32 s3, {epf << 18}")
        for rec, key_, rank, so_, eo_, m in cand[:4]:
            A(f"v_cmp_gt_u32 vcc, s3, v{rec}")
            A(f"v_bfe_u32 v{eo_}, v{rec}, 6, 12")
            A(f"v_lshl_add_u32 v{eo_}, v{eo_}, 5, v{vX + 2}")
            A(f"s_and_b64 vcc, vcc, {sr(m, 2)}")
            A("s_or_b64 exec, vcc, 1")
            A(f"buffer_load_dword v{vL + 22}, v{eo_}, {sr(S_EA, 4)}, 0 offen")
            A("s_mov_b64 exec, -1")

    if epf:
        early_features()
    A("s_waitcnt lgkmcnt(0)")
    A("s_barrier")
    stamp(A, opt, "bB")
    c, p, deg, q, inc, g4 = vL, vL + 8, vL + 16, vL + 17, vL + 18, vL + 19
    A(f"ds_read_b128 {vr(c, 4)}, v{la} offset:{L_CNT}")
    A(f"ds_read_b128 {vr(c + 4, 4)}, v{la} offset:{L_CNT + 16}")
    if pf_lanes:
        A(f"""
        s_andn2_b32 s3, s2, 7
        s_add_u32 s3, s3, s{sW}
        s_mul_i32 s3, s3, {pf_lanes * 128}
        {'s_nop 0' if pf_lanes == 64 else f's_bfm_b64 exec, {pf_lanes}, 0'}
        buffer_load_dword v{vL + 22}, v{la + 1}, {sr(S_TAB, 4)}, s3 offen {tab_pol}
        s_mov_b64 exec, -1
        """)
    A(f"""
    s_mov_b32 s{sQ2}, {L_SO}
    s_waitcnt lgkmcnt(1)
    v_add_u32 v{p + 2}, v{c}, v{c + 1}
    v_add3_u32 v{p + 4}, v{p + 2}, v{c + 2}, v{c + 3}
    s_waitcnt lgkmcnt(0)
    v_add3_u32 v{p + 6}, v{p + 4}, v{c + 4}, v{c + 5}
    v_add3_u32 v{deg}, v{p + 6}, v{c + 6}, v{c + 7}
    v_add_u32 v{q}, 3, v{deg}
    v_lshrrev_b32 v{inc}, 2, v{q}
    """)
    wave_scan(A, inc, fill=[
        [f"v_lshrrev_b32 v{q}, 2, v{q}", f"v_add_u32 v{p + 3}, v{p + 2}, v{c + 2}"],
        [f"v_add_u32 v{p + 5}, v{p + 4}, v{c + 4}", f"v_add_u32 v{p + 7}, v{p + 6}, v{c + 6}"],
        [f"v_add_u32 v{deg}, s{sW}, v{deg}", f"v_lshlrev_b32 v{c + 1}, 2, v{q}"],
        [f"v_cmp_lt_u32_e64 {sr(sNext, 2)}, v{deg}, v{c + 1}", "s_nop 0"]])
    A(f"v_sub_u32 v{g4}, v{inc}, v{q}")
    A(f"v_readlane_b32 s3, v{inc}, 63")
    A(f"v_lshl_add_u32 v{p}, v{g4}, 5, s{sQ2}")
    A(f"v_lshl_add_u32 v{p + 1}, v{c}, 3, v{p}")
    for i in range(2, 8):
        A(f"v_lshl_add_u32 v{p + i}, v{p + i}, 3, v{p}")
        if i in (3, 7):
            A(f"ds_write_b128 v{la}, {vr(p + i - 3, 4)} offset:{L_BASE + 4 * (i - 3)}")
    for cd in cand:
        A(f"ds_read_b32 v{cd[1]}, v{cd[1]} offset:{L_BASE}")
    A(f"""
    s_mul_i32 s{sLw}, s3, s{sW}
    s_add_u32 s{sRem}, s{sLw}, s3
    s_lshr_b32 s{sLw}, s{sLw}, 3
    s_lshr_b32 s{sRem}, s{sRem}, 3
    v_cmp_gt_u32_e64 {sr(sTmp, 2)}, s{sLw}, v{g4}
    v_cmp_gt_u32 vcc, s{sRem}, v{g4}
    v_lshl_add_u32 v{deg}, v{deg}, 3, v{p}
    s_bcnt1_i32_b64 s{sF0}, {sr(sTmp, 2)}
    s_bcnt1_i32_b64 s{sOwn}, vcc
    s_cmp_eq_u32 s{sW}, 7
    s_cselect_b32 s{sOwn}, s{sNn}, s{sOwn}
    s_sub_u32 s{sOwn}, s{sOwn}, s{sF0}
    s_sub_u32 s{sRem}, s{sRem}, s{sLw}
    s_waitcnt lgkmcnt(0)
    """)
    stamp(A, opt, "scan2")
    place(cand)
    A(f"s_cmp_eq_u64 {sr(sMask2, 2)}, 0")
    A("s_cbranch_scc1 Lno_place2")
    for cd in cand2:
        A(f"ds_read_b32 v{cd[1]}, v{cd[1]} offset:{L_BASE}")
    A("s_waitcnt lgkmcnt(0)")
    place(cand2)
    A("Lno_place2:")
    en, so, eo, key, cn, pos, t = vL, vL + 8, vL + 12, vL + 20, vL + 24, vL + 21, vL + 26
    A(f"""
    s_mov_b64 exec, {sr(sNext, 2)}
    ds_write_b64 v{deg}, {vr(vX + 12, 2)}
    s_mov_b64 exec, -1
    """)
    if late_tf:
        if late_tf < 2:
            A(f"s_cmp_eq_u64 {sr(sMore, 2)}, 0")
            A("s_cbranch_scc1 Ltf_ok")
        A(f"s_waitcnt vmcnt({4 if epf else 0})")
        tag_wait("tf", vTf, tf_poll)
    A(f"""
    s_sub_u32 s3, s{sOwn}, 1
    s_sub_u32 s{sTmp}, s{sRem}, 1
    s_cmp_gt_u32 s{sTmp}, 63
    s_cselect_b32 s3, 8, s3
    s_cmp_gt_u32 s3, 7
    s_cselect_b64 exec, 1, 0
    ds_write_b32 v{vZero}, v{vOne} offset:{L_FLAG}
    s_mov_b64 exec, -1
    s_lshl_b32 s3, s{sLw}, 5
    v_add_u32 v{t}, s3, v{la}
    v_cmp_le_u32_e64 {sr(sTmp, 2)}, s{sRem}, v{la + 2}
    s_sub_u32 s{sQ1}, s{sF0}, 1
    s_mul_i32 s{sQ2}, s{sQ1}, 528
    s_add_u32 s{sQ2}, s{sQ2}, {L_TA}
    s_mov_b32 s{sQ3}, 0xfffffe00
    s_waitcnt lgkmcnt(0)
    s_barrier
    ds_read_b128 {vr(en, 4)}, v{t} offset:{L_SO}
    ds_read_b32 v{t + 3}, v{vZero} offset:{L_FLAG}
    ds_read_b128 {vr(en + 4, 4)}, v{t} offset:{L_SO + 16}
    v_cndmask_b32_e64 v{vInv}, 0, v{vX + 13}, {sr(sTmp, 2)}
    v_add_u32 v{vEb}, s{sQ2}, v{vLo}
    v_mov_b64 {vr(cn, 2)}, 1
    s_waitcnt lgkmcnt({2 if int(opt.get("kent", 1)) < 2 else 0})
    v_lshrrev_b32 v{key}, 26, v{en + 2 * int(opt.get("kent", 1))}
    v_and_b32 v{key}, 56, v{key}
    v_cndmask_b32_e64 v{key}, v{key}, 56, {sr(sTmp, 2)}
    s_waitcnt lgkmcnt(1)
    v_readfirstlane_b32 s3, v{t + 3}
    v_lshlrev_b64 {vr(cn, 2)}, v{key}, {vr(cn, 2)}
    v_and_b32 v{t + 3}, 63, v{en}
    s_cmp_lg_u32 s3, 0
    s_cbranch_scc1 Lslow_entry
    s_waitcnt lgkmcnt(0)
    """)
    stamp(A, opt, "bD")
    fillers = [f"v_subrev_u32 v{t + 3}, s{sQ1}, v{t + 3}", f"v_mul_u32_u24 v{t + 3}, 12, v{t + 3}"]
    fillers += [f"v_lshrrev_b32 v{so + i}, 9, v{en + 2 * i}" for i in range(4)]
    for k, d in enumerate(WAVE_SCAN):
        A(f"v_add_u32_dpp v{cn}, v{cn}, v{cn} {d} bank_mask:0xf")
        A(f"v_add_u32_dpp v{cn + 1}, v{cn + 1}, v{cn + 1} {d} bank_mask:0xf")
        A(fillers[k])
    A(f"v_readlane_b32 s{sTmp}, v{cn}, 63")
    A(f"v_readlane_b32 s{sTmp + 1}, v{cn + 1}, 63")
    for i in range(4):
        A(f"v_bfe_u32 v{eo + i}, v{en + 2 * i}, 6, 12")
    A(f"""
    s_mul_i32 s3, s{sTmp}, 0x01010101
    s_mul_i32 s{sTmp + 1}, s{sTmp + 1}, 0x01010100
    s_lshl_b32 s{sTmp}, s3, 8
    s_lshr_b32 s3, s3, 24
    s_mul_i32 s3, s3, 0x01010101
    s_add_u32 s{sTmp + 1}, s{sTmp + 1}, s3
    v_lshl_add_u64 {vr(cn, 2)}, {vr(cn, 2)}, 0, {sr(sTmp, 2)}
    s_sub_u32 s3, s{sSW}, 16
    v_lshrrev_b64 {vr(cn, 2)}, v{key}, {vr(cn, 2)}
    """)
    for i in range(4):
        A(f"v_lshl_add_u32 v{eo + i}, v{eo + i}, 5, v{en + 2 * i + 1}")
    A(f"v_and_b32 v{pos}, 0xff, v{cn}")
    for i in range(4):
        A(f"v_or_b32 v{eo + i}, v{eo + i}, v{vInv}")
    A(f"v_lshl_add_u32 v{t}, v{pos}, 4, s3")
    A(f"ds_write_b128 v{t}, {vr(eo, 4)} offset:1152")
    A(f"ds_read_b32 v{vEo}, v{vEp} offset:1152")
    for i in range(4):
        A(f"v_and_or_b32 v{so + i}, v{so + i}, s{sQ3}, v{vInv}")
    A(f"""
    v_and_b32 v{t + 1}, 1, v{pos}
    v_lshl_add_u32 v{t + 1}, v{t + 1}, 3, v{t}
    v_subrev_u32 v{t + 1}, 8, v{t + 1}
    ds_write2_b64 v{t + 1}, {vr(so, 2)}, {vr(so + 2, 2)} offset0:0 offset1:2
    ds_read_b128 {vr(vT, 4)}, v{vSp}
    ds_read_b128 {vr(vSo, 4)}, v{vSp} offset:32
    v_add_u32 v{t + 2}, s{sSW}, v{pos}
    ds_write_b8 v{t + 2}, v{t + 3} offset:2303
    ds_read_b32 v{vSb}, v{la + 3} offset:2304
    s_waitcnt lgkmcnt(5)
    v_add_u32 v{vEo}, v{vEo}, v{vH16}
    buffer_load_dwordx4 {vr(vEA, 4)}, v{vEo}, {sr(S_EA, 4)}, 0 offen {ea_pol}
    """)
    dist = int(opt.get("dist", 4))
    for u in range(dist):
        src = (vT, vT + 2, vSo, vSo + 2)[u]
        if u in (0, 2):
            A(f"s_waitcnt lgkmcnt({(3, 1)[u // 2]})")
        A(f"v_lshl_add_u64 {vr(src, 2)}, {vr(src, 2)}, 0, {vr(vLo, 2)}")
        A(f"buffer_load_dwordx4 {vr(vL + 8 * u, 4)}, v{src}, {sr(S_TAB, 4)}, 0 offen {tab_pol}")
        A(f"buffer_load_dwordx4 {vr(vL + 8 * u + 4, 4)}, v{src + 1}, {sr(S_TAB, 4)}, 0 offen {tab_pol}")
    stamp(A, opt, "prim")
    eps = 1e-6 / c0
    wc_reads()
    A(f"s_and_b32 s3, s{sW}, 4")
    A(f"v_mov_b32 v{vEad}, s3")
    A("s_cbranch_scc1 Lfactors_made")
    node_exponents()
    for i in range(32):
        A(f"v_exp_f32 v{vG + i}, v{vG + i}")
    A("Lfactors_made:")
    node_rows()
    A(f"""
    s_mov_b64 exec, 1
    ds_add_u32 v{vEad}, v{vOne} offset:{L_FLAG + 8}
    s_mov_b64 exec, -1
    s_waitcnt lgkmcnt(9)
    """)
    wc_fragments()
    A(f"""
    s_waitcnt lgkmcnt(0)
    s_mov_b32 s{sTmp}, {hex(f32(eps / 2))}
    s_mov_b32 s{sTmp + 1}, {hex(f32(eps / 2))}
    """)
    for sl_ in range(NS):
        for j in range(0, 8, 2):
            A(f"v_mov_b64 {vr(vSl + 12 * sl_ + j, 2)}, {sr(sTmp, 2) if sl_ and j >= 4 else 0}")
    eA1, eA2, eA3, eA4, eFl, eOne = 248, 249, 250, 251, 252, 253
    sOut, sLast = sOvf, sMor
    A(f"""
    v_add_u32 v{eA1}, s{sSW}, v{vX + 3}
    s_mul_i32 s3, s{sF0}, 528
    s_add_u32 s3, s3, {L_TU}
    v_mul_u32_u24 v{eA2}, 33, v{vH16}
    v_add3_u32 v{eA2}, v{eA2}, v{vLo}, s3
    s_mul_i32 s3, s{sF0}, 272
    s_add_u32 s3, s3, {L_X}
    v_mul_u32_u24 v{eA3}, 17, v{vH16}
    v_lshrrev_b32 v{eA4}, 1, v{vLo}
    v_add3_u32 v{eA3}, v{eA3}, v{eA4}, s3
    v_lshl_add_u32 v{eA4}, v{vH16}, 4, v{eA4}
    s_lshl_b32 s3, s{sW}, 2
    v_mov_b32 v{eFl}, s3
    v_mov_b32 v{eOne}, {L_FLAG + 12}
    s_add_u32 s{sOut}, s{sN0}, s{sF0}
    s_lshl_b32 s{sOut}, s{sOut}, 8
    s_mul_i32 s{sLast}, s{sOwn}, 12
    """)
    A("Lfactors:")
    A(f"ds_read_b32 v{vEad}, v{vZero} offset:{L_FLAG + 8}")
    for sl_ in range(NS):
        A(f"ds_read_b128 {vr(vSl + 12 * sl_ + 8, 4)}, v{vEb} offset:{528 * sl_}")
    A("s_waitcnt lgkmcnt(0)")
    A(f"v_cmp_gt_u32 vcc, 4, v{vEad}")
    A("s_cbranch_vccnz Lfactors")
    ea_at = int(opt.get("ea_at", 3))
    prio = opt.get("prio", "alt")
    A(f"""
    s_waitcnt lgkmcnt(0)
    v_readlane_b32 s{sSl0}, v{vSb}, 0
    v_readlane_b32 s{sSl1}, v{vSb}, 1
    s_mov_b32 s{sLn}, 2
    s_mov_b32 s{sLn + 1}, 3
    """)
    if prio == "quart":
        A(f"""
        s_mul_i32 s{sQ1}, s{sRem}, 3
        s_lshr_b32 s{sQ1}, s{sQ1}, 2
        s_lshr_b32 s{sQ2}, s{sRem}, 1
        s_lshr_b32 s{sQ3}, s{sRem}, 2
        """)
    else:
        first_drop = [int(x) for x in opt.get("drop", "8,16").split(",")]
        A(f"""
        s_cmp_lt_u32 s{sW}, 4
        s_cselect_b32 s3, {first_drop[0]}, {first_drop[1]}
        s_sub_i32 s{sQ1}, s{sRem}, s3
        s_sub_i32 s{sQ2}, s{sQ1}, {int(opt.get("dstep", 16))}
        s_sub_i32 s{sQ3}, s{sQ2}, {int(opt.get("dstep", 16))}
        """)
        if opt.get("dend"):
            e0, e1 = (int(x) for x in opt["dend"].split(","))
            A(f"""
            s_cmp_lt_u32 s{sW}, 4
            s_cselect_b32 s{sQ3}, {e0}, {e1}
            s_add_u32 s{sQ2}, s{sQ3}, {int(opt.get("dstep", 16))}
            s_add_u32 s{sQ1}, s{sQ2}, {int(opt.get("dstep", 16))}
            """)
    thr_on = opt.get("thr")
    if thr_on:
        ref, mul, cut = (int(x) for x in thr_on.split(","))
        A(f"""
        s_sub_i32 s3, {ref}, s{sRem}
        s_mul_i32 s3, s3, {mul}
        s_sub_i32 s{sTi}, s{sRem}, s3
        """)
    fair = int(opt.get("fair", 0))
    vFa, vFi, vFr = 248, 249, 250
    if fair:
        A(f"""
        s_and_b32 s3, s{sW}, 3
        s_lshl_b32 s3, s3, 2
        v_mov_b32 v{vFa}, s3
        s_cmp_lt_u32 s{sW}, 4
        s_cselect_b32 s{sQ1}, 1, -1
        v_mov_b32 v{vFi}, s{sQ1}
        """)
    A("s_setprio 3")
    A(f"s_waitcnt vmcnt({2 * dist})")
    stamp(A, opt, "first")

    def mfma(j):
        return f"v_mfma_f32_32x32x16_bf16 {vr(vD + 16 * j, 16)}, {vr(vEA, 4)}, {vr(vWC + 4 * j, 4)}, 0"

    for j in range(4):
        A(mfma(j))
    A("s_nop 8")
    A(f"s_cmp_gt_u32 s{sRem}, 8")
    A("s_cbranch_scc0 Llast")

    def step(u, last, q):
        La, Lb = vL + 8 * (u & 3), vL + 8 * (u & 3) + 4
        a, b = vT, vT + 4
        sl = (sSl0, sSl1)[u >> 2]
        nv = u + dist
        prefetch = not (last and nv >= 8)
        check = fair and u % fair == 0
        need = [u] + (["E"] if u == 7 and not last else [])
        A(f"s_waitcnt vmcnt({len(q) - 1 - max(i for i, x in enumerate(q) if x in need)})")
        if thr_on and not last:
            A(f"s_cbranch_vccz Lthr{u}")
            A(f"s_waitcnt vmcnt({len(q) - 1 - max(i for i, x in enumerate(q) if x in need + [u + cut])})")
            A(f"Lthr{u}:")
        lds = (prefetch and nv % 2 == 0) or (u == ea_at and not last) or check
        if prefetch and nv % 2 == 0:
            A(f"ds_read_b128 {vr(vSo, 4)}, v{vSp} offset:{16 * nv}")
        if check:
            A("s_nop 0")
            A("s_mov_b64 exec, 1")
            A(f"ds_add_rtn_u32 v{vFr}, v{vFa}, v{vFi} offset:{L_FLAG + 32}")
            A("s_mov_b64 exec, -1")
            A("s_nop 0")
        if u == ea_at and not last:
            A(f"ds_read_b32 v{vEo}, v{vEp} offset:{1152 + 128}")

        def mix(j, hb):
            return (f"v_fma_mix_f32 v{(a, b)[hb] + j}, v{vD + 16 * j + 2 * u + hb}, s{sNl}, v{(La, Lb)[hb] + j} "
                    "op_sel_hi:[0,0,1]")

        if u == 7 and not last:
            for j in range(4):
                A(mix(j, 0))
                A(mix(j, 1))
                if j:
                    A(f"v_exp_f32 v{a + j - 1}, v{a + j - 1}")
                    A(f"v_exp_f32 v{b + j - 1}, v{b + j - 1}")
                A(mfma(j))
            A(f"v_exp_f32{'' if lds else '_e64'} v{a + 3}, v{a + 3}")
            A(f"v_exp_f32 v{b + 3}, v{b + 3}")
        else:
            for hb in range(2):
                for j in range(4):
                    A(mix(j, hb))
            for j in range(8):
                A(f"v_exp_f32{'_e64' if j == 0 and not lds else ''} v{a + j}, v{a + j}")
        if lds:
            A("s_waitcnt lgkmcnt(0)")
        A(f"s_set_gpr_idx_on s{sl}, gpr_idx(SRC1)")
        for j in range(0, 8, 2):
            A(f"v_pk_fma_f32 {vr(a + j, 2)}, {vr(a + j, 2)}, {vr(vSl + 8 + (j & 3), 2)}, {sr(sC0, 2)} clamp")
        A("s_set_gpr_idx_mode gpr_idx()")
        A(f"s_lshr_b32 s{sl}, s{sl}, 8")
        if check:
            A(f"v_readlane_b32 s3, v{vFr}, 0")
        if u == ea_at and not last:
            A(f"v_add_u32_e64 v{vEo}, v{vEo}, v{vH16}")
            A(f"buffer_load_dwordx4 {vr(vEA, 4)}, v{vEo}, {sr(S_EA, 4)}, 0 offen {ea_pol}")
            q.append("E")
        for j in (0, 2):
            A(f"v_pk_mul_f32 {vr(La + j, 2)}, {vr(La + j, 2)}, {vr(b + j, 2)}")
        if check:
            tag = f"Lfair{u}{'l' if last else ''}"
            A(f"""
            s_mul_i32 s3, s3, s{sQ1}
            s_setprio 0
            s_cmp_ge_i32 s3, 0
            s_cbranch_scc1 {tag}
            s_setprio 2
            s_nop 0
            {tag}:
            """)
        so2 = vSo + 2 * (nv & 1)
        if prefetch:
            A(f"v_lshl_add_u64 {vr(so2, 2)}, {vr(so2, 2)}, 0, {vr(vLo, 2)}")
        for j in (0, 2):
            A(f"v_pk_fma_f32 {vr(La + j, 2)}, {vr(Lb + j, 2)}, {vr(a + j, 2)}, {vr(La + j, 2)}")
        for j in (0, 2):
            A(f"v_pk_add_f32 {vr(Lb + j, 2)}, {vr(a + j, 2)}, {vr(b + j, 2)}")
        for j in (0, 2):
            A(f"v_pk_mul_f32 {vr(a + j, 2)}, {vr(a + j, 2)}, {vr(b + j, 2)}")
        for j in range(4):
            A(f"v_rcp_f32{'_e64' if j == 0 else ''} v{a + j}, v{a + j}")
        A("s_set_gpr_idx_mode gpr_idx(SRC2,DST)")
        for j in (0, 2):
            A(f"v_pk_fma_f32 {vr(vSl + j, 2)}, {vr(La + j, 2)}, {vr(a + j, 2)}, {vr(vSl + j, 2)}")
            A(f"v_pk_fma_f32 {vr(vSl + 4 + j, 2)}, {vr(Lb + j, 2)}, {vr(a + j, 2)}, {vr(vSl + 4 + j, 2)}")
        if prefetch:
            A(f"buffer_load_dwordx4 {vr(vL + 8 * (nv & 3), 4)}, v{so2}, {sr(S_TAB, 4)}, 0 offen {tab_pol}")
            A(f"buffer_load_dwordx4 {vr(vL + 8 * (nv & 3) + 4, 4)}, v{so2 + 1}, {sr(S_TAB, 4)}, 0 offen {tab_pol}")
            q += [nv] * 2
        A("s_set_gpr_idx_off")

    assert 0 <= ea_at < 7
    A.note("""main loop: eight groups per tile. a = min(2^-48 * (1 + exp(-gate)), 1) for edges a and b of each half-wave:
    num += (Va * b + Vb * a) / (a * b), den += (a + b) / (a * b)""")
    A(".p2align 6")
    A("Ltile:")
    A(f"s_sub_u32 s{sRem}, s{sRem}, 8")
    if thr_on:
        A(f"s_cmp_ge_i32 s{sRem}, s{sTi}")
        A("s_cselect_b64 vcc, -1, 0")
    q = [0, 0, 1, 1, 2, 2, 3, 3][:2 * dist]
    for u in range(8):
        step(u, False, q)
        if u == 3 and int(opt.get("pmid", 0)):
            A(f"s_add_u32 s3, s{sRem}, 4")
            for k, sq in enumerate((sQ1, sQ2, sQ3)):
                A(f"s_cmp_le_i32 s3, s{sq}")
                A("s_cbranch_scc0 Lprio_mid")
                A(f"s_setprio {2 - k}")
            A("Lprio_mid:")
    A(f"""
    s_nop 0
    v_readlane_b32 s{sSl0}, v{vSb}, s{sLn}
    v_readlane_b32 s{sSl1}, v{vSb}, s{sLn + 1}
    v_add_u32 v{vSp}, 0x80, v{vSp}
    v_add_u32 v{vEp}, 0x80, v{vEp}
    s_add_u32 s{sLn}, s{sLn}, 2
    s_add_u32 s{sLn + 1}, s{sLn + 1}, 2
    """)
    if opt.get("tilestamps"):
        for k in range(2, 6):
            A(f"s_cmp_lg_u32 s{sLn}, {2 * k + 2}")
            A(f"s_cbranch_scc1 Lts{k}")
            stamp(A, opt, f"tile{k}")
            A(f"Lts{k}:")
    if prio != "none" and not fair:
        for k, sq in enumerate((sQ1, sQ2, sQ3)):
            A(f"s_cmp_le_i32 s{sRem}, s{sq}")
            A("s_cbranch_scc0 Lprio_done")
            A(f"s_setprio {2 - k}")
        A("Lprio_done:")
    A(f"s_cmp_gt_u32 s{sRem}, 8")
    A("s_cbranch_scc1 Ltile")
    A(".p2align 3")
    A(f"""
    Llast:
    ds_read_b32 v{vEad}, v{eOne}
    s_waitcnt lgkmcnt(0)
    v_cmp_gt_u32 vcc, 4, v{vEad}
    s_cbranch_vccnz Llast
    """)
    q = [0, 0, 1, 1, 2, 2, 3, 3][:2 * dist]
    for u in range(8):
        step(u, True, q)
        if u < 7:
            A(f"s_cmp_le_u32 s{sRem}, {u + 1}")
            A("s_cbranch_scc1 Lmain_done")
    A("Lmain_done:")
    stamp(A, opt, "done")

    def finalize(a0, o, a1, u0, x0, addr, soff, pre_store, pre_rows=""):
        for j in range(4):
            A(f"v_permlane32_swap_b32 v{a0 + j}, v{a1 + j}")
            A(f"v_permlane32_swap_b32 v{a0 + o + j}, v{a1 + o + j}")
        for j in (o, o + 2, 0, 2):
            A(f"v_pk_add_f32 {vr(a0 + j, 2)}, {vr(a0 + j, 2)}, {vr(a1 + j, 2)}")
        for j in range(4):
            A(f"v_rcp_f32 v{a0 + o + j}, v{a0 + o + j}")
        A(pre_rows)
        for j in (0, 2):
            A(f"v_pk_fma_f32 {vr(a0 + j, 2)}, {vr(a0 + j, 2)}, {vr(a0 + o + j, 2)}, {vr(u0 + j, 2)}")
        A(f"v_cvt_pk_bf16_f32 v{a0}, v{a0}, v{a0 + 1}")
        A(f"v_cvt_pk_bf16_f32 v{a0 + 1}, v{a0 + 2}, v{a0 + 3}")
        A(f"v_pk_max_f16 v{a0}, v{a0}, v{x0}")
        A(f"v_pk_max_f16 v{a0 + 1}, v{a0 + 1}, v{x0 + 1}")
        A(pre_store)
        A(f"buffer_store_dwordx2 {vr(a0, 2)}, v{addr}, {sr(S_OUT, 4)}, s{soff} offen {opt.get('out_pol', 'sc1 nt')}")

    vU, vXr, vA1, vA2, vA3, vCy = vD, vD + 16, vD + 24, vD + 25, vD + 26, vD + 32
    carry_reads = f"""
    ds_read_b32 v{vEad}, v{eFl} offset:{L_FLAG + 64 + 4}
    ds_read_b128 {vr(vCy, 4)}, v{eA1} offset:{STRW}
    ds_read_b128 {vr(vCy + 4, 4)}, v{eA1} offset:{STRW + 1024}
    """
    A(f"""
    ds_write_b128 v{eA1}, {vr(vSl, 4)}
    ds_write_b128 v{eA1}, {vr(vSl + 4, 4)} offset:1024
    ds_write_b32 v{eFl}, v{eOne} offset:{L_FLAG + 64}
    """)
    for pr in range(4):
        A(f"ds_read_b128 {vr(vU + 4 * pr, 4)}, v{eA2} offset:{1056 * pr}")
        A(f"ds_read_b64 {vr(vXr + 2 * pr, 2)}, v{eA3} offset:{544 * pr}")
    A(carry_reads)
    for pr in range(4):
        if pr < 3:
            A(f"s_cmp_gt_u32 s{sOwn}, {2 * pr + 2}")
            A(f"s_cbranch_scc1 Lfin{pr}")
        A(f"""
        s_cmp_eq_u32 s{sW}, 7
        s_cbranch_scc1 Lfin{pr}
        Lcarry{pr}:
        s_waitcnt lgkmcnt(0)
        v_cmp_eq_u32 vcc, 0, v{vEad}
        s_cbranch_vccz Lcarried{pr}
        s_sleep 1
        {carry_reads}
        s_branch Lcarry{pr}
        Lcarried{pr}:
        s_set_gpr_idx_on s{sLast}, gpr_idx(SRC0,DST)
        """)
        for j in range(0, 8, 2):
            A(f"v_pk_add_f32 {vr(vSl + j, 2)}, {vr(vSl + j, 2)}, {vr(vCy + j, 2)}")
        A("s_set_gpr_idx_off")
        A("s_nop 1")
        A(f"Lfin{pr}:")
        finalize(vSl + 12 * (2 * pr + 1), 4, vSl + 12 * (2 * pr + 2), vU + 4 * pr, vXr + 2 * pr, eA4, sOut,
                 f"s_cmp_gt_u32 s{sOwn}, {2 * pr + 1}\ns_cselect_b32 exec_hi, -1, 0", "" if pr else "s_waitcnt lgkmcnt(0)")
        if pr < 3:
            A(f"s_add_u32 s{sOut}, s{sOut}, 512")
            A(f"s_cmp_gt_u32 s{sOwn}, {2 * pr + 2}")
            A("s_cbranch_scc0 Lk2_done")
    A("Lk2_done:")
    stamp_flush(A, opt, 8, 0x20000, vTid)
    if opt.get("spin"):
        A("""
        Lspin:
        s_memrealtime s[42:43]
        s_waitcnt lgkmcnt(0)
        s_sub_u32 s42, s42, s100
        s_cmp_lt_u32 s42, 10000
        s_cbranch_scc1 Lspin
        """)
    A("Lk2_exit:")
    A("s_endpgm")

    NU = 7
    vAcc, vAn = 0, 56
    vLs = [vL + 8 * u for u in range(4)] + [84 + 8 * u for u in range(3)]
    vP, vErr, vQ, vCaddr, vUaddr = 245, 252, 253, 254, 255
    A("Lcold_code:")
    A("Lslow_entry:")
    A(f"s_cmp_ge_u32 s{sW}, 4")
    A("s_cbranch_scc1 Lg_rows")
    node_exponents()
    A("Lg_rows:")
    node_rows()
    wc_reads()
    A("s_waitcnt lgkmcnt(0)")
    wc_fragments()
    A(f"""
    s_waitcnt vmcnt(0) lgkmcnt(0)
    s_barrier
    v_lshlrev_b32 v{vX + 11}, 2, v{vTid}
    ds_write_b32 v{vX + 11}, v{vZero} offset:{L_CNT}
    s_mul_i32 s3, s{sW}, 528
    s_add_u32 s3, s3, {L_TA}
    v_add_u32 v{vX + 11}, s3, v{vLo}
    """)
    for u in range(NU):
        A(f"ds_read_b128 {vr(vAn + 4 * u, 4)}, v{vX + 11} offset:{8 * 528 * u}")
    A(f"s_mov_b32 s{sTmp}, {hex(f32(eps / 2))}")
    A(f"s_mov_b32 s{sTmp + 1}, {hex(f32(eps / 2))}")
    for i in range(0, 8 * NU, 2):
        A(f"v_mov_b64 {vr(vAcc + i, 2)}, {sr(sTmp, 2) if i & 4 else 0}")
    A(f"""
    v_bfe_u32 v{vX + 11}, v{vTid}, 3, 3
    v_and_b32 v{vX + 12}, 7, v{vTid}
    v_lshlrev_b32 v{vX + 12}, 2, v{vX + 12}
    v_lshl_add_u32 v{vX + 12}, v{vX + 11}, 8, v{vX + 12}
    s_lshl_b32 s3, s{sW}, 5
    v_add_u32 v{vCaddr}, s3, v{vX + 12}
    v_bfe_u32 v{vX + 11}, v{vTid}, 3, 2
    v_bfe_u32 v{vX + 12}, v{vTid}, 1, 1
    v_lshl_add_u32 v{vX + 11}, v{vX + 11}, 1, v{vX + 12}
    v_lshlrev_b32 v{vUaddr}, 5, v{vX + 11}
    Lbatch:
    """)
    batch_masks(16)
    A("Lround:")
    rec_addr()
    rec_loads()
    A(f"""
    v_mov_b32 v{vZero}, 0
    v_mov_b32 v{vOne}, 1
    ds_write_b32 v{vZero}, v{vZero} offset:{L_FLAG}
    ds_write_b32 v{vZero}, v{vZero} offset:{L_FLAG + 4}
    s_waitcnt lgkmcnt(0)
    s_barrier
    s_mov_b64 exec, {sr(sMore, 2)}
    ds_write_b32 v{vZero}, v{vOne} offset:{L_FLAG + 4}
    s_mov_b64 exec, -1
    s_waitcnt vmcnt(0)
    """)
    histogram(cand)
    for rec, key_, rank, so_, eo_, m in cand:
        A(f"v_lshrrev_b32 v{so_}, 18, v{rec}")
        A(f"v_bfe_u32 v{eo_}, v{rec}, 6, 12")
        A(f"v_lshlrev_b32 v{so_}, 9, v{so_}")
        A(f"v_lshl_add_u32 v{eo_}, v{eo_}, 5, v{vX + 2}")
    A("s_waitcnt lgkmcnt(0)")
    A("s_barrier")
    c, inc, deg, q, t0, t1 = vX + 12, vX + 13, vX + 14, vX + 15, vX + 16, vX + 17
    A(f"ds_read_b32 v{c}, v{vCaddr} offset:{L_CNT}")
    A(f"v_lshrrev_b32 v{t0}, 5, v{vCaddr}")
    A(f"v_lshlrev_b32 v{t0}, 6, v{t0}")
    A("s_waitcnt lgkmcnt(0)")
    A(f"ds_write_b32 v{vCaddr}, v{vZero} offset:{L_CNT}")
    A(f"v_mov_b32 v{inc}, v{c}")
    for d in (1, 2, 4, 8):
        A("s_nop 1")
        A(f"v_add_u32_dpp v{inc}, v{inc}, v{inc} row_shr:{d} row_mask:0xf bank_mask:0xf")
    A(f"""
    v_mov_b32 v{t1}, 0
    s_nop 0
    v_mov_b32_dpp v{deg}, v{inc} row_newbcast:7 row_mask:0xf bank_mask:0x3
    v_mov_b32_dpp v{t1}, v{inc} row_newbcast:7 row_mask:0xf bank_mask:0xc
    v_mov_b32_dpp v{deg}, v{inc} row_newbcast:15 row_mask:0xf bank_mask:0xc
    v_sub_u32 v{inc}, v{inc}, v{t1}
    v_sub_u32 v{deg}, v{deg}, v{t1}
    v_sub_u32 v{inc}, v{inc}, v{c}
    v_add_u32 v{inc}, v{inc}, v{t0}
    ds_write_b32 v{vCaddr}, v{inc} offset:{L_BASE}
    v_cmp_lt_u32 vcc, 64, v{deg}
    v_min_u32 v{deg}, 64, v{deg}
    v_add_u32 v{q}, 3, v{deg}
    v_lshrrev_b32 v{q}, 2, v{q}
    s_mov_b64 exec, vcc
    ds_write_b32 v{vZero}, v{vOne} offset:{L_FLAG}
    s_mov_b64 exec, -1
    ds_bpermute_b32 v{vQ}, v{vUaddr}, v{q}
    v_and_b32 v{c}, 7, v{vTid}
    v_add_u32 v{c}, v{c}, v{deg}
    v_lshlrev_b32 v{t1}, 2, v{q}
    v_cmp_lt_u32 vcc, v{c}, v{t1}
    v_add_lshl_u32 v{c}, v{c}, v{t0}, 2
    v_mov_b32 v{t0}, {TAB_BYTES}
    v_bfrev_b32 v{t1}, 2
    s_mov_b64 exec, vcc
    ds_write_b32 v{c}, v{t0} offset:{L_SO}
    ds_write_b32 v{c}, v{t1} offset:{L_EO}
    s_mov_b64 exec, -1
    v_max_u32_dpp v{q}, v{q}, v{q} row_ror:8 row_mask:0xf bank_mask:0xf
    s_nop 0
    v_readlane_b32 s{sT}, v{q}, 0
    v_readlane_b32 s3, v{q}, 16
    v_readlane_b32 s{sTmp}, v{q}, 32
    v_readlane_b32 s{sTmp + 1}, v{q}, 48
    s_waitcnt lgkmcnt(0)
    s_barrier
    ds_read_b64 {vr(vX + 12, 2)}, v{vZero} offset:{L_FLAG}
    """)
    for i in range(8):
        A(f"ds_read_b32 v{vKey + i}, v{vKey + i} offset:{L_BASE}")
    A(f"""
    s_max_u32 s{sT}, s{sT}, s3
    s_max_u32 s{sTmp}, s{sTmp}, s{sTmp + 1}
    s_max_u32 s{sT}, s{sT}, s{sTmp}
    s_waitcnt lgkmcnt(0)
    v_readfirstlane_b32 s{sOvf}, v{vX + 12}
    v_readfirstlane_b32 s{sMor}, v{vX + 13}
    """)
    for i in range(8):
        A(f"v_and_b32 v{vX + 12}, 63, v{vRec + i}")
        A(f"v_add_u32 v{vKey + i}, v{vKey + i}, v{vRank + i}")
        A(f"v_lshl_add_u32 v{vX + 12}, v{vX + 12}, 6, 64")
        A(f"v_cmp_lt_u32 vcc, v{vKey + i}, v{vX + 12}")
        A(f"v_lshlrev_b32 v{vKey + i}, 2, v{vKey + i}")
        A(f"s_and_b64 exec, vcc, {sr(sMask + 2 * i, 2)}")
        A(f"ds_write_b32 v{vKey + i}, v{vSoff + i} offset:{L_SO}")
        A(f"ds_write_b32 v{vKey + i}, v{vEoff + i} offset:{L_EO}")
        A(f"s_andn2_b64 {sr(sMask + 2 * i, 2)}, {sr(sMask + 2 * i, 2)}, vcc")
        A("s_mov_b64 exec, -1")
    A(f"""
    s_lshl_b32 s3, s{sW}, 8
    v_lshrrev_b32 v{vX + 12}, 1, v{vH16}
    v_add_u32 v{vP}, s3, v{vX + 12}
    v_and_b32 v{vX + 12}, 1, v{vTid}
    v_bfe_u32 v{vX + 13}, v{vTid}, 2, 1
    v_lshl_add_u32 v{vX + 12}, v{vX + 13}, 1, v{vX + 12}
    v_lshl_add_u32 v{vX + 12}, v{vX + 12}, 2, s3
    v_lshl_add_u32 v{vEp}, v{vUaddr}, 6, v{vX + 12}
    s_lshr_b32 s3, s{sT}, 1
    v_mov_b32 v{vErr}, s3
    s_mov_b64 {sr(sCur, 2)}, 0
    s_mov_b32 s{sTi}, 0
    """)
    for u in range(1, NU):
        A(f"v_mov_b32 v{vP + u}, v{vP}")
    A(f"""
    s_waitcnt lgkmcnt(0)
    s_barrier
    s_cmp_eq_u32 s{sT}, 0
    s_cbranch_scc1 Lg_done
    s_branch Lg_entry
    Lg_tile:
    s_waitcnt vmcnt({2 * NU})
    """)
    for j in range(4):
        A(mfma(j))
    A(f"""
    Lg_entry:
    v_add_u32 v{vErr}, v{vQ}, v{vErr}
    ds_read_b32 v{vEo}, v{vEp} offset:{L_EO}
    ds_read_b64 {vr(vSo, 2)}, v{vP} offset:{L_SO}
    v_cmp_le_u32_e64 {sr(sNext, 2)}, s{sT}, v{vErr}
    s_cmp_lt_u32 s{sTi}, s{sT}
    s_cselect_b64 {sr(sNext, 2)}, {sr(sNext, 2)}, 1
    s_mov_b64 exec, {sr(sNext, 2)}
    v_subrev_u32 v{vErr}, s{sT}, v{vErr}
    v_add_u32 v{vEp}, 16, v{vEp}
    s_waitcnt lgkmcnt(1)
    v_add_u32 v{vEo}, v{vEo}, v{vH16}
    buffer_load_dwordx4 {vr(vEA, 4)}, v{vEo}, {sr(S_EA, 4)}, 0 offen
    s_mov_b64 exec, -1
    """)
    for u in range(NU):
        bit = 8 * (u >> 1) + 2 * (u & 1) + 1
        so2 = vSo + 2 * (u & 1)
        La, Lb = vLs[u], vLs[u] + 4
        a, b = vT, vT + 4
        num, den = vAcc + 8 * u, vAcc + 8 * u + 4
        if u + 1 < NU:
            A(f"ds_read_b64 {vr(vSo + 2 * ((u + 1) & 1), 2)}, v{vP + u + 1} offset:{L_SO + 2048 * (u + 1)}")
        A(f"s_bitcmp1_b32 s{sCur}, {bit}")
        A(f"s_cbranch_scc0 Lg_skip{u}")
        A(f"s_waitcnt vmcnt({2 * NU - 1})")
        for j in range(4):
            A(f"v_fma_mix_f32 v{a + j}, v{vD + 16 * j + 2 * u}, s{sNl}, v{La + j} op_sel_hi:[0,0,1]")
        for j in range(4):
            A(f"v_fma_mix_f32 v{b + j}, v{vD + 16 * j + 2 * u + 1}, s{sNl}, v{Lb + j} op_sel_hi:[0,0,1]")
        for j in range(0, 8, 2):
            A(f"v_pk_add_f32 {vr(a + j, 2)}, {vr(a + j, 2)}, {vr(vAn + 4 * u + (j & 3), 2)}")
        for j in range(8):
            A(f"v_exp_f32_e64 v{a + j}, v{a + j} clamp")
        for j in range(0, 8, 2):
            A(f"v_pk_add_f32 {vr(a + j, 2)}, {vr(a + j, 2)}, {sr(sC0, 2)}")
        for j in (0, 2):
            A(f"v_pk_mul_f32 {vr(La + j, 2)}, {vr(La + j, 2)}, {vr(b + j, 2)}")
        for j in (0, 2):
            A(f"v_pk_fma_f32 {vr(La + j, 2)}, {vr(Lb + j, 2)}, {vr(a + j, 2)}, {vr(La + j, 2)}")
        for j in (0, 2):
            A(f"v_pk_add_f32 {vr(Lb + j, 2)}, {vr(a + j, 2)}, {vr(b + j, 2)}")
        for j in (0, 2):
            A(f"v_pk_mul_f32 {vr(a + j, 2)}, {vr(a + j, 2)}, {vr(b + j, 2)}")
        for j in range(4):
            A(f"v_rcp_f32 v{a + j}, v{a + j}")
        for j in (0, 2):
            A(f"v_pk_fma_f32 {vr(num + j, 2)}, {vr(La + j, 2)}, {vr(a + j, 2)}, {vr(num + j, 2)}")
            A(f"v_pk_fma_f32 {vr(den + j, 2)}, {vr(Lb + j, 2)}, {vr(a + j, 2)}, {vr(den + j, 2)}")
        A(f"Lg_skip{u}:")
        A(f"s_bitcmp1_b32 s{sNext}, {bit}")
        A("s_cselect_b64 exec, -1, 1")
        A(f"s_cselect_b32 s{sInc}, 16, 0")
        A(f"s_waitcnt lgkmcnt({1 if u + 1 < NU else 0})")
        A(f"v_add_u32 v{so2}, v{so2}, v{vLo}")
        A(f"v_add_u32 v{so2 + 1}, v{so2 + 1}, v{vLo}")
        A(f"buffer_load_dwordx4 {vr(La, 4)}, v{so2}, {sr(S_TAB, 4)}, 0 offen {tab_pol}")
        A(f"buffer_load_dwordx4 {vr(Lb, 4)}, v{so2 + 1}, {sr(S_TAB, 4)}, 0 offen {tab_pol}")
        A("s_mov_b64 exec, -1")
        A(f"v_add_u32 v{vP + u}, s{sInc}, v{vP + u}")
    A(f"""
    s_mov_b64 {sr(sCur, 2)}, {sr(sNext, 2)}
    s_add_u32 s{sTi}, s{sTi}, 1
    s_cmp_le_u32 s{sTi}, s{sT}
    s_cbranch_scc1 Lg_tile
    Lg_done:
    s_waitcnt vmcnt(0)
    s_cmp_lg_u32 s{sOvf}, 0
    s_cbranch_scc1 Lround
    s_add_u32 s{sW0}, s{sW0}, 16
    s_cmp_lg_u32 s{sMor}, 0
    s_cbranch_scc1 Lbatch
    s_mul_i32 s3, s{sW}, 528
    s_add_u32 s3, s3, {L_TU}
    v_mul_u32_u24 v{vA2}, {33 * 8}, v{vH16}
    v_add3_u32 v{vA2}, v{vA2}, v{vLo}, s3
    s_mul_i32 s3, s{sW}, 272
    s_add_u32 s3, s3, {L_X}
    v_mul_u32_u24 v{vA3}, {17 * 8}, v{vH16}
    v_lshrrev_b32 v{vLo + 1}, 1, v{vLo}
    v_add3_u32 v{vA3}, v{vA3}, v{vLo + 1}, s3
    """)
    for pr in range(4):
        A(f"ds_read_b128 {vr(vU + 4 * pr, 4)}, v{vA2} offset:{16 * 528 * pr}")
        A(f"ds_read_b64 {vr(vXr + 2 * pr, 2)}, v{vA3} offset:{16 * 272 * pr}")
    A(f"""
    v_lshl_add_u32 v{vA2}, v{vH16}, 7, v{vLo + 1}
    s_add_u32 s{sQ1}, s{sN0}, s{sW}
    s_lshl_b32 s{sQ1}, s{sQ1}, 8
    s_waitcnt lgkmcnt(0)
    """)
    for pr in range(4):
        if pr == 3:
            A(f"s_add_u32 s3, s{sW}, 48")
            A(f"s_cmp_ge_u32 s3, s{sNn}")
            A("s_cbranch_scc1 Lk2_done")
        finalize(vAcc + 16 * pr, 4, vAcc + 16 * pr + 8, vU + 4 * pr, vXr + 2 * pr, vA2, sQ1,
                 "s_mov_b32 exec_hi, 0" if pr == 3 else "s_nop 0")
        A(f"s_add_u32 s{sQ1}, s{sQ1}, 4096")
    A("s_branch Lk2_done")
    return L_END


def gen_report(A, opt):
    kind, team, idx = opt["report"].split(",")
    idx, _, ref = idx.partition("-")
    idx = int(idx)
    A("report_kernel:")
    A("s_cmp_ge_u32 s2, 1")
    A("s_cbranch_scc1 Lr_exit")
    load_kernargs(A)
    A("s_waitcnt lgkmcnt(0)")
    srd(A, 28, P_WS, 0x80000, STAMP_OFF + 0x20000)

    def reduce(op, base, dst, tag, sub):
        A("v_lshrrev_b32 v1, 2, v0")
        A("v_and_b32 v2, 3, v0")
        A("v_lshlrev_b32 v1, 9, v1")
        A("v_lshl_add_u32 v1, v2, 6, v1")
        A(f"v_mov_b32 v3, {'-1' if op == 'min' else '0'}")
        A("s_mov_b32 s44, 0")
        A(f"Lr_{tag}:")
        A(f"buffer_load_dword v2, v1, s[28:31], s44 offen offset:{base}")
        A("s_waitcnt vmcnt(0)")
        if sub:
            A("v_subrev_u32 v2, s40, v2")
        A(f"v_{op}_u32 v3, v3, v2")
        A("s_add_u32 s44, s44, 8192")
        A("s_cmp_lt_u32 s44, 131072")
        A(f"s_cbranch_scc1 Lr_{tag}")
        A(f"v_readlane_b32 s{dst}, v3, 0")
        for l in range(1, 64):
            A(f"v_readlane_b32 s3, v3, {l}")
            A("s_nop 0")
            A(f"s_{op}_u32 s{dst}, s{dst}, s3")

    reduce("min", 0, 40, "a", False)
    reduce(kind, 8 * idx + (256 if team == "t" else 0), 41, "b", True)
    if ref:
        reduce(kind, 8 * int(ref) + (256 if team == "t" else 0), 45, "c", True)
        A("s_sub_u32 s41, s41, s45")
    sc = int(opt.get("rs", 2))
    A(f"s_lshr_b32 s41, s41, {10 - sc}" if kind == "add" else f"s_lshl_b32 s41, s41, {sc}")
    A("s_min_u32 s41, s41, 30000")
    A("s_add_u32 s41, s41, 10000")
    A("Lr_spin:")
    A("s_memrealtime s[42:43]")
    A("s_waitcnt lgkmcnt(0)")
    A("s_sub_u32 s42, s42, s40")
    A("s_cmp_lt_u32 s42, s41")
    A("s_cbranch_scc1 Lr_spin")
    A("Lr_exit:")
    A("s_endpgm")


def descriptor(name, vgpr, extra=""):
    return f""".amdhsa_kernel {name}
  .amdhsa_next_free_vgpr {vgpr}
  .amdhsa_next_free_sgpr 102
  .amdhsa_accum_offset {(vgpr + 3) // 4 * 4}
  .amdhsa_group_segment_fixed_size 0
  .amdhsa_kernarg_size 96
  .amdhsa_user_sgpr_count 2
  .amdhsa_user_sgpr_kernarg_segment_ptr 1
  .amdhsa_system_sgpr_workgroup_id_x 1
{extra}.end_amdhsa_kernel
"""


def generate(opt):
    A = Asm()
    lds = gen_k2(A, opt)
    lst = f"kernel={NAME}_kernel " if opt.get("report") else ""
    text = (f"""; GatedGCN layer in one launch of 256 co-resident workgroups (one per CU).
; Workgroup g owns chunk g of the edges (1568) and one bucket of 48 or 49 destination nodes.
;  1. counting sort of the chunk by destination bucket -> records in d_ws, published by tagged offset words
;  2. x @ w_b, x @ w_v of the bucket's rows -> gather table in d_ws (low half: f16 of -log2(e) * B, high half: V),
;     published by a tagged word; x @ w_a and x + x @ w_u stay in LDS
;  3. the bucket's records are sorted by (node, source range), padded to groups of four edges and split evenly
;     over the eight waves; every wave walks its groups in source order
;  4. per group: gate exponent from MFMA(e_attr, w_c) and the gathered row, sigmoid of two edges with one reciprocal,
;     numerator and denominator sums in indexed registers; out = max(x + x @ w_u + num / (den + 1e-6), x)
; The tag is published in d_debug by workgroup 0. Inputs outside the limits of the fast path (degree distribution,
; |x @ w_a| > 52) take the general path at the end of the file.
; @launch {lst}grid=(256,1,1) block=(512,1,1) lds={lds}
.amdgcn_target "amdgcn-amd-amdhsa--gfx950"
.text
.globl {NAME}_kernel
.p2align 8
.type {NAME}_kernel,@function
""" + A.text() + ".section .rodata,\"a\"\n.p2align 6\n"
            + descriptor(f"{NAME}_kernel", 256, "  .amdhsa_fp16_overflow 1\n"))
    if opt.get("report"):
        R = Asm()
        gen_report(R, opt)
        text = text.replace(".amdgcn_target", "; @launch kernel=report_kernel grid=(1,1,1) block=(64,1,1) lds=0\n.amdgcn_target")
        text = text.replace(".section .rodata", ".globl report_kernel\n.p2align 8\n.type report_kernel,@function\n" + R.text() + ".section .rodata")
        text += ".p2align 6\n" + descriptor("report_kernel", 8)
    return text


if __name__ == "__main__":
    out = sys.argv[1] if len(sys.argv) > 1 else f"cdna_kernels/{NAME}.s"
    opt = dict(a.split("=", 1) for a in sys.argv[2:])
    opt = {k: v.replace("+", " ") for k, v in opt.items()}
    open(out, "w").write(generate(opt))
```

```python
import math
import struct
import sys

NAME = "gather_scatter__edge_featured_mpnn_gatedgcn__graph"
N, E = 12500, 400000
BM, BS, SM, SC, SS = 171799, 23, 799999, 16330, 14
CH = 1568
NCH = 256
TAB_OFF = 0
REC_OFF = 0xE00000
OFF_OFF = 0x1000000
SPIN_MAX = 20000
STAMP_OFF = 0x2000000
TAB_BYTES = N * 512
KSH = 48
AMAX = 52.0
NLOG2E = -math.log2(math.e)


def f32(x):
    return struct.unpack("<I", struct.pack("<f", x))[0]


class Asm:
    def __init__(self):
        self.lines = []

    def __call__(self, s):
        for ln in s.strip("\n").split("\n"):
            ln = ln.strip()
            if not ln:
                continue
            self.lines.append(ln if ln.endswith(":") else "    " + ln)

    def note(self, s):
        self.lines += ["; " + ln.strip() for ln in s.strip().split("\n")]

    def text(self):
        return "\n".join(self.lines) + "\n"


def vr(a, n=1):
    return f"v{a}" if n == 1 else f"v[{a}:{a + n - 1}]"


def sr(a, n=1):
    return f"s{a}" if n == 1 else f"s[{a}:{a + n - 1}]"


def srd(A, d, base, nbytes, off=0):
    if off:
        A(f"s_add_u32 s{d}, s{base}, {hex(off)}")
        A(f"s_addc_u32 s{d + 1}, s{base + 1}, 0")
    else:
        A(f"s_mov_b64 {sr(d, 2)}, {sr(base, 2)}")
    A(f"s_mov_b32 s{d + 2}, {hex(nbytes)}")
    A(f"s_mov_b32 s{d + 3}, 0x20000")


P_X, P_EA, P_SRC, P_DST, P_WA, P_WB, P_WC, P_WU = 4, 6, 8, 10, 12, 14, 16, 18
P_WV, P_OUT, P_DBG, P_WS = 20, 22, 24, 26


def load_kernargs(A):
    A("s_load_dwordx16 s[4:19], s[0:1], 0")
    A("s_load_dwordx8 s[20:27], s[0:1], 64")


STAMP_BASE = [2]


def stamp_reg(i):
    return 100 if i == 0 else STAMP_BASE[0] + 2 * i


def stamp(A, opt, i):
    if not opt.get("stamp"):
        return
    if isinstance(i, str):
        names = opt["stamp"].split(",")
        if i not in names:
            return
        i = names.index(i) + 1
    A(f"{'s_memtime' if opt.get('cyc') else 's_memrealtime'} s[{stamp_reg(i)}:{stamp_reg(i) + 1}]")


def stamp_flush(A, opt, n, base, vtid):
    if not opt.get("stamp"):
        return
    A("s_mov_b64 exec, -1")
    A("s_waitcnt vmcnt(0)")
    stamp(A, opt, n - 1)
    srd(A, 20, P_WS, 0x80000, STAMP_OFF + base)
    A(f"v_lshrrev_b32 v1, 6, v{vtid}")
    A("s_lshl_b32 s3, s2, 3")
    A("v_add_u32 v1, s3, v1")
    A(f"v_mul_u32_u24 v1, {8 * n}, v1")
    A("s_mov_b64 exec, 1")
    A("s_waitcnt lgkmcnt(0)")
    for i in range(n):
        r = stamp_reg(i)
        A(f"v_mov_b32 v2, s{r}")
        A(f"v_mov_b32 v3, s{r + 1}")
        A(f"buffer_store_dwordx2 v[2:3], v1, s[20:23], 0 offen offset:{8 * i}")
        A("s_nop 1")


WAVE_SCAN = ("row_shr:1 row_mask:0xf", "row_shr:2 row_mask:0xf", "row_shr:4 row_mask:0xf",
             "row_shr:8 row_mask:0xf", "row_bcast:15 row_mask:0xa", "row_bcast:31 row_mask:0xc")


def wave_scan(A, v, first_nop=1, fill=()):
    for k, d in enumerate(WAVE_SCAN):
        if k < len(fill):
            A("\n".join(fill[k]))
        elif k or first_nop:
            A("s_nop 1")
        A(f"v_add_u32_dpp v{v}, v{v}, v{v} {d} bank_mask:0xf")


def gen_k2(A, opt):
    global TAB_OFF, REC_OFF, OFF_OFF
    wsb = int(opt.get("wsb", 0)) << 20
    TAB_OFF, REC_OFF, OFF_OFF = TAB_OFF + wsb, REC_OFF + wsb, OFF_OFF + wsb
    STAMP_BASE[0] = 2
    ea_pol = opt.get("ea_load", "")
    tab_pol = opt.get("tab_load", "sc1")
    pf_lanes = int(opt.get("pf", 0))
    poll_at = int(opt.get("poll_at", 0))
    ld = [int(x) for x in opt.get("ld", "6,11,16").split(",")]
    TS = int(opt.get("ts", 3))
    OB = int(opt.get("ob", 8))
    S_TAB, S_EA, S_REC, S_OFFS, S_TW, S_X, S_OUT = 28, 32, 36, 40, 44, 48, 52
    sW, sBk, sN0, sW0, sT, sTi, sInc, sNl = 56, 57, 58, 59, 60, 61, 62, 63
    sC0, sCur, sNext, sMore, sTmp, sNon = 64, 66, 68, 70, 72, 74
    sMask = 76
    sMask2 = 18
    S_DST, S_SRC, S_W, S_W2, S_WC, S_DBG = 76, 80, 84, 88, 76, 80
    sOvf, sMor, sQ1, sQ2, sQ3, sLw, sF0, sOwn = 92, 93, 94, 95, 96, 97, 98, 99
    sRem, sSW, sSl0, sSl1, sLn, sPM = sT, sInc, sCur, sCur + 1, sNext, sCur
    sNn = 0
    sWo, sWm = sOvf, sLw
    L_CNT, L_BASE, L_FLAG, P_CNT, P_BASE, P_SORT = 0, 2048, 4096, 4352, 5376, 6400
    L_R2 = 12800
    L_SO = L_R2
    L_EO = L_SO + 25600
    L_STR = L_R2 + 16896
    STRW = 2560
    L_WCR = L_R2 + 65536
    L_X = L_WCR + 4096
    L_R1 = (L_X + 52 * 272 + 255) // 256 * 256
    L_TA = L_R1 + 528
    L_TU = L_TA + 52 * 528
    L_END = L_R1 + 65536
    TF_OFF = NCH * 2048
    NS = 9
    vSl, vD, vL, vWC, vEA, vT, vSo, vLo = 0, 108, 172, 204, 220, 224, 232, 236
    vSp, vEp, vEo, vH16, vSb, vTid, vOffs = 238, 239, 240, 241, 242, 243, 244
    vWf, vG, vXf, vXs, vNon, vTf = 0, 32, vL, 96, 104, 106
    vEn, vEb, vEad, vS2 = 104, 246, 247, 248
    Lbuf = [vL + 8 * u for u in range(4)] + [72 + 8 * u for u in range(4)]
    vRec, vKey, vRank, vSoff, vEoff, vX = vD, vD + 8, vD + 16, vD + 24, vD + 32, vD + 40
    cand = [(vRec + i, vKey + i, vRank + i, vSoff + i, vEoff + i, sMask + 2 * i) for i in range(8)]
    cand2 = [(vEA + i, vT + i, vT + 4 + i, None, None, sMask2 + 2 * i) for i in range(4)]
    c0 = 2.0 ** -KSH
    vZero, vOne, vXw, vXrd, vTw, vInv = vX + 5, vX + 6, vX + 7, vX + 8, vX + 9, vX + 10
    vDa, vBx, vBt, vBs, vAt, vPa, vE = vX + 12, vX + 14, vX + 15, vX + 17, vX + 18, vX + 19, vX + 20
    vSw, vSr = vX + 16, vD + 39
    pD, pS, pA, pR, pC, pB, pG = vD, vD + 4, vD + 8, vD + 12, vD + 16, vD + 20, vD + 24
    vm = []

    def younger(name):
        return len(vm) - 1 - max(i for i, x in enumerate(vm) if x == name)

    def dma_piece(S, soff, i):
        A(f"buffer_load_dwordx4 v{vDa + ((i >> 1) & 1)}, {sr(S, 4)}, s{soff} offen offset:{1024 * (i & 3)} {opt.get('w_pol', '')} lds")

    def loader(lo, hi):
        for g in range(lo, hi):
            A(f"s_mov_b32 m0, {L_R1 + 4096 * g}")
            A(f"s_movk_i32 s3, {4096 * (g & 7)}")
            if g == 8:
                A(f"s_mov_b64 {sr(S_W, 2)}, {sr(P_WV, 2)}")
            for i in range(4):
                dma_piece(S_W, 3, i)

    A(f"{NAME}_kernel:")
    A("s_cmp_ge_u32 s2, 256")
    A("s_cbranch_scc1 Lk2_exit")
    stamp(A, opt, 0)
    load_kernargs(A)
    A(f"""
    s_memrealtime {sr(sNon, 2)}
    s_getpc_b64 s[{sTmp}:{sTmp + 1}]
    """)
    cpf_mode = int(opt.get("cpf", 8))
    if cpf_mode:
        A(f"""
        s_lshr_b32 s3, s2, 3
        s_and_b32 s3, s3, {128 // cpf_mode - 1}
        v_subrev_u32 v1, {512 - cpf_mode}, v0
        v_cmp_gt_u32 vcc, {cpf_mode}, v1
        v_mul_u32_u24 v1, {128 // cpf_mode}, v1
        v_add_lshl_u32 v1, v1, s3, 7
        """)
    else:
        A(f"""
        v_lshlrev_b32 v1, 7, v0
        v_cmp_gt_u32 vcc, Lcold_code - {NAME}_kernel, v1
        """)
    A(f"""
    s_and_saveexec_b64 {sr(sNext, 2)}, vcc
    s_cbranch_execz Lno_cpf
    global_load_dword v2, v1, s[{sTmp}:{sTmp + 1}] {opt.get('cpf_pol', '')}
    Lno_cpf:
    s_mov_b64 exec, -1
    v_mov_b32 v{vZero}, 0
    v_lshlrev_b32 v{vX + 11}, 2, v0
    ds_write_b32 v{vX + 11}, v{vZero} offset:{L_FLAG}
    ds_write_b32 v{vX + 11}, v{vZero} offset:{L_CNT}
    v_lshrrev_b32 v{vX}, 6, v0
    v_lshlrev_b32 v{vX + 2}, 4, v0
    v_readfirstlane_b32 s{sW}, v{vX}
    s_movk_i32 s3, {CH // 4}
    s_cmp_eq_u32 s2, {NCH - 1}
    s_cselect_b32 s3, {(E - (NCH - 1) * CH) // 4}, s3
    v_cmp_gt_u32_e64 {sr(sPM, 2)}, s3, v0
    s_mul_i32 s{sQ1}, s2, {CH * 4}
    s_mov_b32 s{S_DST + 2}, {E * 4}
    s_mov_b32 s{S_DST + 3}, 0x20000
    s_mov_b32 s{S_SRC + 2}, {E * 4}
    s_mov_b32 s{S_SRC + 3}, 0x20000
    s_and_b32 s3, s2, 7
    s_lshl_b32 s3, s3, 5
    s_lshr_b32 s{sBk}, s2, 3
    s_add_u32 s{sBk}, s{sBk}, s3
    s_mul_i32 s{sN0}, s{sBk}, {SM}
    s_add_u32 s{sOwn}, s{sN0}, {SM + SC}
    s_add_u32 s{sN0}, s{sN0}, {SC}
    s_lshr_b32 s{sOwn}, s{sOwn}, {SS}
    s_lshr_b32 s{sN0}, s{sN0}, {SS}
    v_mov_b32 v{vTid}, v0
    v_and_b32 v{vX + 3}, 0x3f0, v{vX + 2}
    v_bfe_u32 v{vX + 1}, v0, 4, 2
    v_lshlrev_b32 v{vX + 4}, 6, v{vX + 1}
    v_xor_b32 v{vDa}, v{vX + 3}, v{vX + 4}
    v_xor_b32 v{vDa + 1}, 32, v{vDa}
    s_lshl_b32 s{sWm}, s{sW}, 13
    s_add_u32 s{sWm + 1}, s{sWm}, 4096
    s_and_b32 s{sWo}, s{sWm}, 0x7fff
    s_add_u32 s{sWo + 1}, s{sWo}, 4096
    s_lshl_b32 s{sTmp}, s{sN0}, 8
    s_add_u32 s{sTmp + 1}, s{sTmp}, 8192
    s_mov_b64 exec, {sr(sPM, 2)}
    s_waitcnt lgkmcnt(0)
    s_cbranch_execz Lp_nold
    s_mov_b64 {sr(S_DST, 2)}, {sr(P_DST, 2)}
    s_mov_b64 {sr(S_SRC, 2)}, {sr(P_SRC, 2)}
    buffer_load_dwordx4 {vr(pD, 4)}, v{vX + 2}, {sr(S_DST, 4)}, s{sQ1} offen {opt.get("idx_pol", "nt")}
    buffer_load_dwordx4 {vr(pS, 4)}, v{vX + 2}, {sr(S_SRC, 4)}, s{sQ1} offen {opt.get("idx_pol", "nt")}
    Lp_nold:
    """)
    if int(opt.get("wpf", 1)):
        A(f"""
        s_cmp_lg_u32 s{sW}, 7
        s_cbranch_scc1 Lno_wpf
        s_mov_b64 exec, 0xff
        s_lshr_b32 s3, s2, 3
        s_lshl_b32 s3, s3, 10
        v_lshl_add_u32 v1, v{vX + 3}, 3, s3
        global_load_dword v3, v1, {sr(P_WB, 2)} {opt.get('wpf_pol', '')}
        global_load_dword v4, v1, {sr(P_WV, 2)} {opt.get('wpf_pol', '')}
        global_load_dword v5, v1, {sr(P_WA, 2)} {opt.get('wpf_pol', '')}
        global_load_dword v6, v1, {sr(P_WU, 2)} {opt.get('wpf_pol', '')}
        Lno_wpf:
        """)
    A("s_mov_b64 exec, -1")
    A("s_barrier")
    vm.append("dst")
    srd(A, S_DBG, P_DBG, 256)
    A(f"""
    s_xor_b32 s3, s{sW}, 7
    s_or_b32 s3, s3, s2
    s_cbranch_scc1 Lno_nonce
    s_or_b32 s3, s{sNon}, 1
    v_mov_b32 v{vNon}, s3
    v_mov_b32 v{vNon + 1}, s{sNon + 1}
    s_mov_b64 exec, 1
    buffer_store_dwordx2 {vr(vNon, 2)}, v{vZero}, {sr(S_DBG, 4)}, 0 offen sc1
    s_mov_b64 exec, -1
    Lno_nonce:
    """)
    A(f"""
    s_mov_b64 {sr(S_X, 2)}, {sr(P_X, 2)}
    s_lshl_b32 s{S_X + 2}, s{sOwn}, 8
    s_mov_b32 s{S_X + 3}, 0x20000
    s_sub_u32 s{sNn}, s{sOwn}, s{sN0}
    """)
    for i in range(2):
        A(f"buffer_load_dwordx4 {vr(vXs + 4 * i, 4)}, v{vX + 2}, {sr(S_X, 4)}, s{sTmp + i} offen {opt.get('x_pol', 'nt')}")
        vm.append("x")
    A(f"""
    s_cmp_lt_u32 s{sW}, 4
    s_cselect_b32 s{S_W}, s{P_WB}, s{P_WV}
    s_cselect_b32 s{S_W + 1}, s{P_WB + 1}, s{P_WV + 1}
    s_cselect_b32 s{S_W2}, s{P_WA}, s{P_WU}
    s_cselect_b32 s{S_W2 + 1}, s{P_WA + 1}, s{P_WU + 1}
    s_mov_b32 s{S_W + 2}, 32768
    s_mov_b32 s{S_W + 3}, 0x20000
    s_mov_b32 s{S_W2 + 2}, 32768
    s_mov_b32 s{S_W2 + 3}, 0x20000
    """)
    npf0 = 0
    A(f"s_cmp_lg_u32 s{sW}, 7")
    A("s_cbranch_scc1 Lno_ld0")
    A(f"s_mov_b64 {sr(S_W, 2)}, {sr(P_WB, 2)}")
    loader(0, 2)
    A("Lno_ld0:")
    srd(A, S_WC, P_WC, 4096)
    srd(A, S_REC, P_WS, NCH * CH * 4, REC_OFF)
    srd(A, S_OFFS, P_WS, TF_OFF + (256 << TS), OFF_OFF)
    srd(A, S_TAB, P_WS, TAB_BYTES + 512, TAB_OFF)
    srd(A, S_EA, P_EA, 0 if opt.get("noea") else E * 32)
    srd(A, S_OUT, P_OUT, N * 256)
    pt = int(opt.get("ptouch", 0))
    if pt:
        A(f"""
        s_cmp_lg_u32 s{sW}, 7
        s_cbranch_scc1 Lno_touch
        v_lshlrev_b32 v1, {pt - 4}, v{vX + 3}
        """)
        for i, S in enumerate((S_TAB, S_REC, S_OFFS, S_EA, S_OUT)):
            A(f"buffer_load_dword v{7 + i}, v1, {sr(S, 4)}, 0 offen sc1")
        A("Lno_touch:")
    A(f"""
    s_lshl_b32 s3, s{sN0}, 9
    s_add_u32 s{S_TW}, s{S_TAB}, s3
    s_addc_u32 s{S_TW + 1}, s{S_TAB + 1}, 0
    s_lshl_b32 s{S_TW + 2}, s{sNn}, 9
    s_mov_b32 s{S_TW + 3}, 0x20000
    s_mov_b32 s{sNl}, {hex(f32(NLOG2E))}
    s_mov_b32 s{sC0}, {hex(f32(c0))}
    s_mov_b32 s{sC0 + 1}, {hex(f32(c0))}
    s_mov_b32 s{sW0}, 0
    s_mov_b32 s{sQ2}, {BM}
    s_mov_b32 s{sQ3}, {-SM}
    v_mov_b32 v{vOne}, 1
    v_lshrrev_b32 v{vX + 11}, 4, v{vTid}
    v_lshl_add_u32 v{vXw}, v{vX + 11}, 4, v{vX + 2}
    v_add_u32 v{vXw}, {L_X}, v{vXw}
    v_and_b32 v{vLo}, 0x1f0, v{vX + 2}
    v_bfe_u32 v{vX + 4}, v{vTid}, 5, 1
    v_mov_b32 v{vLo + 1}, v{vLo}
    v_lshlrev_b32 v{vH16}, 4, v{vX + 4}
    s_lshr_b32 s{sTmp}, s{sW}, 2
    s_and_b32 s{sTmp + 1}, s{sW}, 3
    v_bfe_u32 v{vX + 11}, v{vTid}, 2, 2
    v_xor_b32 v{vE}, s{sTmp + 1}, v{vX + 11}
    v_lshlrev_b32 v{vE}, 6, v{vE}
    v_and_b32 v{vE + 1}, 3, v{vTid}
    v_lshl_add_u32 v{vE}, v{vE + 1}, 3, v{vE}
    v_lshl_add_u32 v{vE}, v{vX + 11}, 8, v{vE}
    v_and_b32 v{vE + 1}, 1, v{vX + 1}
    v_xor_b32 v{vE + 1}, v{vE + 1}, v{vX + 4}
    v_lshl_add_u32 v{vE}, v{vE + 1}, 5, v{vE}
    v_lshl_add_u32 v{vE}, v{vX + 4}, 11, v{vE}
    v_add_u32 v{vBt}, {L_R1}, v{vE}
    s_lshl_b32 s3, s{sTmp}, 15
    s_add_u32 s3, s3, {L_R2}
    v_add_u32 v{vAt}, s3, v{vE}
    v_and_b32 v{vX + 11}, 31, v{vTid}
    v_mul_u32_u24 v{vXrd}, 272, v{vX + 11}
    s_mov_b32 s3, {L_X}
    v_add3_u32 v{vXrd}, v{vXrd}, v{vH16}, s3
    s_mul_i32 s3, s{sTmp}, {32 * 272}
    v_add_u32 v{vBx}, s3, v{vXrd}
    s_mul_i32 s3, s{sW}, 4608
    s_add_u32 s3, s3, {L_R1}
    v_mul_u32_u24 v{vSw}, 144, v{vX + 11}
    v_add3_u32 v{vSw}, v{vSw}, v{vH16}, s3
    v_bfe_u32 v{vE}, v{vTid}, 3, 3
    v_lshl_add_u32 v{vSr}, v{vE}, 4, v{vX + 3}
    v_add_u32 v{vSr}, s3, v{vSr}
    v_and_b32 v{vE + 1}, 0x70, v{vX + 3}
    v_lshl_add_u32 v{vBs}, v{vE}, 9, v{vE + 1}
    s_lshl_b32 s3, s{sTmp}, 7
    s_add_u32 s3, s3, s{sTmp + 1}
    s_lshl_b32 s3, s3, 7
    v_add_u32 v{vBs}, s3, v{vBs}
    v_mul_u32_u24 v{vTw}, 528, v{vX + 11}
    s_mul_i32 s3, s{sTmp}, {L_TU - L_TA}
    s_lshl_b32 s{sTmp + 1}, s{sTmp + 1}, 7
    s_add_u32 s3, s3, s{sTmp + 1}
    s_add_u32 s3, s3, {L_TA}
    v_add3_u32 v{vTw}, v{vTw}, v{vH16}, s3
    v_lshrrev_b32 v{vPa}, 1, v{vTid}
    v_lshlrev_b32 v{vPa}, {3 + OB}, v{vPa}
    v_lshlrev_b32 v{vE}, 8, v{vTid}
    v_add_u32 v{vE + 1}, 64, v{vE}
    v_add_u32 v{vE + 2}, 0x80, v{vE}
    v_add_u32 v{vE + 3}, 0xc0, v{vE}
    """)
    stamp(A, opt, "iss")

    def stage_x(wait):
        A(f"s_waitcnt vmcnt({wait})")
        A(f"ds_write_b128 v{vXw}, {vr(vXs, 4)}")
        A(f"s_cmp_lt_u32 s{sW}, 5")
        A("s_cselect_b64 exec, -1, 0")
        A(f"ds_write_b128 v{vXw}, {vr(vXs + 4, 4)} offset:{32 * 272}")
        A("s_mov_b64 exec, -1")

    nonce_load = f"buffer_load_dwordx2 {vr(vNon, 2)}, v{vZero}, {sr(S_DBG, 4)}, 0 offen sc1"
    A(f"""
    s_cmp_eq_u32 s{sW}, 7
    s_cbranch_scc1 Lp_loader
    s_mov_b64 exec, {sr(sPM, 2)}
    s_waitcnt vmcnt({2 + npf0})
    """)
    stamp(A, opt, "dst")
    for i in range(4):
        A(f"v_mul_u32_u24 v{pC + i}, s{sQ2}, v{pD + i}")
    for i in range(4):
        A(f"v_lshrrev_b32 v{pC + i}, {BS}, v{pC + i}")
        A(f"v_lshlrev_b32 v{pA + i}, 2, v{pC + i}")
        A(f"ds_add_rtn_u32 v{pR + i}, v{pA + i}, v{vOne} offset:{P_CNT}")
    for i in range(4):
        A(f"v_lshl_add_u32 v{pD + i}, v{pD + i}, {SS}, {(1 << SS) - 1 - SC}")
        A(f"v_mad_i32_i24 v{pD + i}, v{pC + i}, s{sQ3}, v{pD + i}")
    A("s_mov_b64 exec, -1")
    A(f"s_cmp_eq_u32 s{sW}, 3")
    A("s_waitcnt lgkmcnt(0)")
    A("s_barrier")
    stamp(A, opt, "b2")
    A(f"""
    s_cbranch_scc0 Lp_noscan
    ds_read_b128 {vr(pC, 4)}, v{vX + 3} offset:{P_CNT}
    s_waitcnt lgkmcnt(0)
    v_add_u32 v{pB + 2}, v{pC}, v{pC + 1}
    v_add3_u32 v{pG + 1}, v{pB + 2}, v{pC + 2}, v{pC + 3}
    v_add_u32 v{pB + 3}, v{pB + 2}, v{pC + 2}
    v_mov_b32 v{pG}, v{pG + 1}
    """)
    ors = []
    for i in range(4):
        ors += [f"v_lshl_or_b32 v{pS + i}, v{pS + i}, 18, v{vE + i}", f"v_lshrrev_b32 v{pD + i}, {SS}, v{pD + i}",
                f"v_or_b32 v{pS + i}, v{pS + i}, v{pD + i}"]
    wave_scan(A, pG + 1, fill=[[]] + [ors[2 * k: 2 * k + 2] for k in range(5)])
    A(f"""
    v_sub_u32 v{pB}, v{pG + 1}, v{pG}
    v_add_u32 v{pB + 1}, v{pB}, v{pC}
    v_add_u32 v{pB + 2}, v{pB}, v{pB + 2}
    v_add_u32 v{pB + 3}, v{pB}, v{pB + 3}
    ds_write_b128 v{vX + 3}, {vr(pB, 4)} offset:{P_BASE}
    {ors[10]}
    {ors[11]}
    s_waitcnt lgkmcnt(0)
    s_barrier
    """)
    A("s_branch Lp_scanned")
    A("Lp_noscan:")
    A("\n".join(ors))
    A("s_barrier")
    A("Lp_scanned:")
    stamp(A, opt, "scan")
    A(f"s_mov_b64 exec, {sr(sPM, 2)}")
    for i in range(4):
        A(f"ds_read_b32 v{pA + i}, v{pA + i} offset:{P_BASE}")
    A("s_waitcnt lgkmcnt(0)")
    for i in range(4):
        A(f"v_add_lshl_u32 v{pA + i}, v{pA + i}, v{pR + i}, 2")
        A(f"ds_write_b32 v{pA + i}, v{pS + i} offset:{P_SORT}")
    A("s_mov_b64 exec, -1")
    A(nonce_load)
    A("s_waitcnt lgkmcnt(0)")
    A("s_barrier")
    stamp(A, opt, "b3")
    A(f"""
    ds_read_b128 {vr(pD, 4)}, v{vX + 2} offset:{P_SORT}
    s_mov_b64 exec, {sr(sPM, 2)}
    s_cbranch_execz Lp_none
    s_waitcnt lgkmcnt(0)
    buffer_store_dwordx4 {vr(pD, 4)}, v{vX + 2}, {sr(S_REC, 4)}, s{sQ1} offen sc1
    s_branch Lp_out
    Lp_loader:
    """)
    loader(2, ld[0])
    A("s_barrier")
    loader(ld[0], ld[1])
    A("s_barrier")
    loader(ld[1], ld[2])
    A("s_barrier")
    loader(ld[2], 16)
    A(nonce_load)
    A(f"""
    Lp_none:
    s_waitcnt vmcnt(1)
    Lp_out:
    s_mov_b64 exec, -1
    """)
    stage_x(2)
    A(f"""
    v_lshrrev_b32 v{vX + 11}, 1, v{vX + 2}
    v_and_b32 v{vX + 11}, 0x3ff, v{vX + 11}
    ds_read_b64 {vr(pC, 2)}, v{vX + 11} offset:{P_CNT}
    ds_read_b64 {vr(pB, 2)}, v{vX + 11} offset:{P_BASE}
    s_lshl_b32 s3, s{sW}, 9
    s_add_u32 m0, s3, {L_WCR}
    s_waitcnt lgkmcnt(0)
    s_barrier
    """)
    stamp(A, opt, "b3b")

    bB, bV, bO = 48, 64, 80

    def bv_reads(s):
        r = 12 * (s & 3)
        A(f"ds_read_b128 {vr(r + 8, 4)}, v{vBx} offset:{32 * s}")
        for m in range(2):
            for z in range(2):
                A(f"ds_read_b64_tr_b16 {vr(r + 4 * m + 2 * z, 2)}, v{vBt} offset:{m * 32768 + s * 4096 + z * 1024}")

    for s in range(3):
        bv_reads(s)
    A(f"""
    s_mov_b32 exec_hi, 0
    buffer_load_dwordx4 v{vX + 3}, {sr(S_WC, 4)}, s3 offen lds
    s_mov_b32 exec_hi, -1
    """)
    b4b = int(opt.get("b4b", 1))
    wk = int(opt.get("wk", 2))
    for s in range(8):
        r = 12 * (s & 3)
        A(f"s_waitcnt lgkmcnt({5 * min(2, 7 - s)})")
        for m in range(2):
            d = (bB, bV)[m]
            A(f"v_mfma_f32_32x32x16_bf16 {vr(d, 16)}, {vr(r + 4 * m, 4)}, {vr(r + 8, 4)}, {'0' if s == 0 else vr(d, 16)}")
        if s + 3 < 8:
            bv_reads(s + 3)
        for i in range(wk * s, min(8, wk * s + wk)):
            if i % 4 == 0:
                A(f"s_add_u32 m0, s{sWm + i // 4}, {L_R2}")
                A("s_nop 0")
            dma_piece(S_W2, sWo + (i >> 2), i)
    stamp(A, opt, "bvm")
    A(f"""
    s_mov_b32 s{sTi}, 0
    s_waitcnt vmcnt(9)
    Lnonce_check:
    v_readfirstlane_b32 s{sNon}, v{vNon}
    v_readfirstlane_b32 s{sNon + 1}, v{vNon + 1}
    s_add_u32 s{sTi}, s{sTi}, 1
    s_cmp_lg_u32 s{sNon}, 0
    s_cbranch_scc1 Lnonce_ok
    buffer_load_dwordx2 {vr(vNon, 2)}, v{vZero}, {sr(S_DBG, 4)}, 0 offen sc1
    s_cmp_lt_u32 s{sTi}, {SPIN_MAX}
    s_waitcnt vmcnt(0)
    s_cbranch_scc1 Lnonce_check
    Lnonce_ok:
    s_and_b32 s{sNon + 1}, s{sNon + 1}, 0x3ff
    s_lshl_b32 s3, s{sNon + 1}, 22
    v_lshl_or_b32 v{pG}, v{pC}, 11, v{pB}
    v_lshl_or_b32 v{pG + 2}, v{pC + 1}, 11, v{pB + 1}
    v_or_b32 v{pG}, s3, v{pG}
    v_or_b32 v{pG + 2}, s3, v{pG + 2}
    v_mov_b32 v{pG + 1}, s{sNon}
    v_mov_b32 v{pG + 3}, s{sNon}
    v_lshrrev_b32 v{vE}, {3 + OB}, v{vX + 2}
    v_and_b32 v{vE + 1}, {(8 << OB) - 1}, v{vX + 2}
    v_lshl_add_u32 v{vE}, v{vE}, {11 + OB}, v{vE + 1}
    s_lshl_b32 s3, s2, {3 + OB}
    s_cmp_ge_u32 s{sW}, 2
    {'' if b4b else 's_waitcnt vmcnt(0)'}
    s_barrier
    s_cbranch_scc1 Lno_off
    buffer_store_dwordx4 {vr(pG, 4)}, v{vE}, {sr(S_OFFS, 4)}, s3 offen sc1
    Lno_off:
    """)
    stamp(A, opt, "sig")
    for g in range(4):
        for i in range(4 * g, 4 * g + 4):
            A(f"v_fma_mixlo_f16 v{bV + i}, v{bB + i}, s{sNl}, 0")
        A(f"ds_write_b128 v{vSw}, {vr(bV + 4 * g, 4)} offset:{32 * g}")
    for i in range(4):
        A(f"ds_read_b128 {vr(bO + 4 * i, 4)}, v{vSr} offset:{1152 * i}")
    A(f"""
    s_or_b32 s3, s2, s{sW}
    s_cbranch_scc1 Lno_pad
    v_mov_b32 v{vE}, 0x7c00
    v_mov_b32 v{vE + 1}, 0x7c00
    v_lshrrev_b32 v{vE + 2}, 1, v{vX + 3}
    s_mov_b32 s3, {TAB_BYTES}
    buffer_store_dwordx2 {vr(vE, 2)}, v{vE + 2}, {sr(S_TAB, 4)}, s3 offen sc1
    Lno_pad:
    s_lshr_b32 s3, s{sBk}, {OB}
    s_lshl_b32 s3, s3, {8 + OB}
    s_and_b32 s{sQ1}, s{sBk}, {(1 << OB) - 1}
    s_add_u32 s{sQ1}, s{sQ1}, s3
    s_lshl_b32 s{sQ1}, s{sQ1}, 3
    s_mov_b32 s3, 0
    """)
    def au_reads(s):
        for z in range(2):
            A(f"ds_read_b64_tr_b16 {vr(vWf + 4 * s + 2 * z, 2)}, v{vAt} offset:{s * 4096 + z * 1024}")
        A(f"ds_read_b128 {vr(vXf + 4 * s, 4)}, v{vXrd} offset:{32 * s}")

    for s in range(4):
        A(f"s_waitcnt lgkmcnt({3 - s if b4b else 3 + 2 * s})")
        A(f"buffer_store_dwordx4 {vr(bO + 4 * s, 4)}, v{vBs}, {sr(S_TW, 4)}, s3 offen sc1")
        A("s_add_u32 s3, s3, 4096")
        if not b4b:
            au_reads(s)
    if b4b:
        A(f"""
        s_cmp_ge_u32 s{sW}, 2
        s_cbranch_scc1 Lwau_0
        s_waitcnt vmcnt(5)
        s_branch Lwau_1
        Lwau_0:
        s_waitcnt vmcnt(4)
        Lwau_1:
        s_barrier
        """)
        for s in range(4):
            au_reads(s)
    stamp(A, opt, "bve")
    if opt.get("notab"):
        A(f"s_mov_b32 s{S_TAB + 2}, 0")
    poll = f"buffer_load_dwordx2 {vr(vOffs, 2)}, v{vPa}, {sr(S_OFFS, 4)}, s{sQ1} offen sc1"

    def tag_wait(name, v, reload):
        A(f"""
        s_mov_b32 s{sTi}, 0
        L{name}_check:
        v_lshrrev_b32 v{vX + 11}, 22, v{v}
        v_cmp_ne_u32_e64 {sr(sTmp, 2)}, s{sNon}, v{v + 1}
        v_cmp_ne_u32 vcc, s{sNon + 1}, v{vX + 11}
        s_add_u32 s{sTi}, s{sTi}, 1
        s_or_b64 vcc, vcc, {sr(sTmp, 2)}
        s_cbranch_scc0 L{name}_ok
        {reload}
        s_cmp_lt_u32 s{sTi}, {SPIN_MAX}
        s_waitcnt vmcnt(0)
        s_cbranch_scc1 L{name}_check
        L{name}_ok:
        """)

    def batch_masks(window):
        A(f"""
        v_bfe_u32 v{vX}, v{vOffs}, 11, 11
        v_and_b32 v{vX + 1}, 1, v{vTid}
        v_subrev_u32 v{vX}, s{sW0}, v{vX}
        v_lshlrev_b32 v{vX + 1}, 2, v{vX + 1}
        v_cmp_lt_i32_e64 {sr(sMore, 2)}, {window}, v{vX}
        v_sub_u32 v{vX}, v{vX}, v{vX + 1}
        """)
        for i in range(window // 2):
            A(f"v_cmp_lt_i32_e64 {sr((cand + cand2)[i][5], 2)}, {(i & 3) + 8 * (i >> 2)}, v{vX}")

    def rec_addr():
        A(f"""
        v_lshrrev_b32 v{vX + 2}, 1, v{vTid}
        v_and_b32 v{vX + 1}, 1, v{vTid}
        v_mul_u32_u24 v{vX + 2}, {CH}, v{vX + 2}
        v_lshl_add_u32 v{vX + 1}, v{vX + 1}, 2, s{sW0}
        v_add_u32 v{vX + 1}, v{vX + 1}, v{vX + 2}
        v_lshlrev_b32 v{vX + 2}, 5, v{vX + 2}
        """)
        for i in range(0, 8, 2):
            A(f"v_mov_b64 {vr(vKey + i, 2)}, 0")

    def rec_loads(both=True):
        A(f"""
        v_and_b32 v{vX + 4}, 0x7ff, v{vOffs}
        v_add_lshl_u32 v{vX + 4}, v{vX + 4}, v{vX + 1}, 2
        buffer_load_dwordx4 {vr(vRec, 4)}, v{vX + 4}, {sr(S_REC, 4)}, 0 offen sc1
        """)
        if both:
            A(f"buffer_load_dwordx4 {vr(vRec + 4, 4)}, v{vX + 4}, {sr(S_REC, 4)}, 0 offen offset:32 sc1")

    def histogram(cs):
        for rec, key, rank, so_, eo_, m in cs:
            A(f"s_mov_b64 exec, {sr(m, 2)}")
            A(f"v_alignbit_b32 v{key}, v{rec}, v{rec}, 27")
            A(f"v_and_b32 v{key}, 0x7fc, v{key}")
            A(f"ds_add_rtn_u32 v{rank}, v{key}, v{vOne} offset:{L_CNT}")
        A("s_mov_b64 exec, -1")

    def place(cs):
        for rec, key, rank, so_, eo_, m in cs:
            A(f"s_mov_b64 exec, {sr(m, 2)}")
            A(f"v_lshl_add_u32 v{key}, v{rank}, 3, v{key}")
            A(f"ds_write2_b32 v{key}, v{rec}, v{vX + 2} offset0:0 offset1:1")
        A("s_mov_b64 exec, -1")

    def hand_over():
        rec_addr()
        A("s_waitcnt vmcnt(1)")
        A("s_barrier")
        stamp(A, opt, "b5")
        A(f"""
        s_cmp_lg_u32 s{sW}, 7
        s_cbranch_scc1 Lno_tf
        s_lshl_b32 s{sTmp + 1}, s2, {TS}
        s_add_u32 s{sTmp + 1}, s{sTmp + 1}, {TF_OFF}
        s_mov_b64 exec, 1
        buffer_store_dwordx2 {vr(pG, 2)}, v{vZero}, {sr(S_OFFS, 4)}, s{sTmp + 1} offen sc1
        s_mov_b64 exec, -1
        s_waitcnt vmcnt(1)
        s_branch Ltf_sent
        Lno_tf:
        s_waitcnt vmcnt(0)
        Ltf_sent:
        """)
        tag_wait("off", vOffs, poll)
        stamp(A, opt, "off")
        rmask = int(opt.get("rmask", 1))
        rec_loads(not rmask)
        batch_masks(24)
        if rmask:
            A(f"""
            s_mov_b64 exec, {sr(cand[4][5], 2)}
            s_cbranch_execz Lno_rec1
            buffer_load_dwordx4 {vr(vRec + 4, 4)}, v{vX + 4}, {sr(S_REC, 4)}, 0 offen offset:32 sc1
            Lno_rec1:
            s_mov_b64 exec, -1
            """)
        A(f"""
        s_cmp_eq_u64 {sr(sMask2, 2)}, 0
        s_cbranch_scc1 Lno_rec2
        buffer_load_dwordx4 {vr(cand2[0][0], 4)}, v{vX + 4}, {sr(S_REC, 4)}, 0 offen offset:64 sc1
        v_mov_b64 {vr(cand2[0][1], 2)}, 0
        v_mov_b64 {vr(cand2[2][1], 2)}, 0
        Lno_rec2:
        """)

    b5_at = int(opt.get("b5_at", 16))
    assert poll_at <= b5_at
    for k in range(16):
        nb, s = k >> 3, k & 7
        if k == poll_at:
            A(poll)
        if k == b5_at:
            hand_over()
        A(f"s_waitcnt lgkmcnt({9 if k < 5 else (7, 5, 3)[k - 5] if k < 8 else min(3, 15 - k)})")
        cc = "0" if s == 0 else vr(vG + 16 * nb, 16)
        A(f"v_mfma_f32_32x32x16_bf16 {vr(vG + 16 * nb, 16)}, {vr(vWf + 4 * s, 4)}, {vr(vXf + 4 * (k & 7), 4)}, {cc}")
        kn = k + 4
        if kn < 8:
            for z in range(2):
                A(f"ds_read_b64_tr_b16 {vr(vWf + 4 * kn + 2 * z, 2)}, v{vAt} offset:{kn * 4096 + z * 1024}")
        if kn < 16:
            A(f"ds_read_b128 {vr(vXf + 4 * (kn & 7), 4)}, v{vXrd} offset:{32 * 272 * (kn >> 3) + 32 * (kn & 7)}")
    if b5_at == 16:
        hand_over()
    vId = 64
    A(f"""
    s_cmp_lt_u32 s{sW}, 4
    s_cbranch_scc1 Lno_ident
    s_and_b32 s3, s{sW}, 3
    s_lshl_b32 s3, s3, 6
    v_add_u32 v{vX + 11}, s3, v{vXrd}
    """)
    for nb in range(2):
        for z in range(2):
            A(f"ds_read_b128 {vr(vXf + 8 * nb + 4 * z, 4)}, v{vX + 11} offset:{32 * 272 * nb + 32 * z}")
    A(f"""
    v_lshrrev_b32 v{vX + 11}, 4, v{vLo}
    v_lshrrev_b32 v{vX + 12}, 1, v{vH16}
    v_sub_u32 v{vX + 11}, v{vX + 11}, v{vX + 12}
    v_and_b32 v{vX + 12}, 1, v{vX + 11}
    v_lshlrev_b32 v{vX + 12}, 4, v{vX + 12}
    v_mov_b32 v{vX + 13}, 0x3f80
    v_lshlrev_b32 v{vX + 12}, v{vX + 12}, v{vX + 13}
    v_ashrrev_i32 v{vX + 11}, 1, v{vX + 11}
    """)
    for i in range(8):
        A(f"v_cmp_eq_u32_e64 {sr((sTmp, sNext)[i & 1], 2)}, {8 * (i >> 2) + (i & 3)}, v{vX + 11}")
        if i:
            A("s_nop 0")
            A(f"v_cndmask_b32_e64 v{vId + i - 1}, 0, v{vX + 12}, {sr((sTmp, sNext)[(i - 1) & 1], 2)}")
    A("s_nop 0")
    A(f"v_cndmask_b32_e64 v{vId + 7}, 0, v{vX + 12}, {sr(sNext, 2)}")
    A("s_waitcnt lgkmcnt(0)")
    for z in range(2):
        for nb in range(2):
            A(f"v_mfma_f32_32x32x16_bf16 {vr(vG + 16 * nb, 16)}, {vr(vId + 4 * z, 4)}, {vr(vXf + 8 * nb + 4 * z, 4)}, {vr(vG + 16 * nb, 16)}")
    A("Lno_ident:")
    if b5_at == 17:
        hand_over()
    stamp(A, opt, "aum")

    tf_poll = f"buffer_load_dwordx2 {vr(vTf, 2)}, v{vPa}, {sr(S_OFFS, 4)}, s{sQ1} offen sc1"
    vRaw = vD
    A(f"""
    v_lshrrev_b32 v{vPa}, 1, v{vLo}
    {f'v_lshlrev_b32 v{vPa}, {TS - 3}, v{vPa}' if TS > 3 else ''}
    """)

    def wc_reads():
        A(f"""
        v_lshrrev_b32 v{vX + 11}, 1, v{vLo}
        v_lshl_add_u32 v{vX + 11}, v{vH16}, 7, v{vX + 11}
        v_add_u32 v{vX + 11}, {L_WCR}, v{vX + 11}
        """)
        for i in range(8):
            A(f"ds_read_b64 {vr(vRaw + 2 * i, 2)}, v{vX + 11} offset:{256 * i}")

    def wc_fragments():
        A("s_mov_b32 s3, 0x05040100")
        A(f"s_mov_b32 s{sTmp}, 0x07060302")
        for j in range(4):
            for i in range(4):
                A(f"v_perm_b32 v{vWC + 4 * j + i}, v{vRaw + 2 * (2 * i + 1) + (j >> 1)}, v{vRaw + 2 * (2 * i) + (j >> 1)}, "
                  f"s{(3, sTmp)[j & 1]}")

    A(f"""
    s_lshl_b32 s{sQ1}, s{sW}, {5 + TS}
    s_add_u32 s{sQ1}, s{sQ1}, {TF_OFF}
    s_mov_b64 vcc, {sr(sMore, 2)}
    s_cmp_ge_u32 s{sW}, 4
    s_cbranch_scc1 Lu_wave
    v_mov_b32 v{vXs + 2}, 0
    """)
    row_mask = "s_mov_b32 exec_lo, 0xfffff\ns_mov_b32 exec_hi, 0xfffff"
    for i in range(0, 32, 2):
        if i == 16:
            A(row_mask)
        A(f"v_max3_f32 v{vXs + 2}, |v{vG + i}|, |v{vG + i + 1}|, v{vXs + 2}")
    A("s_mov_b64 exec, -1")
    A(f"v_cmp_lt_f32 vcc, {hex(f32(AMAX))}, v{vXs + 2}")
    A(f"s_or_b64 vcc, vcc, {sr(sMore, 2)}")

    def node_rows():
        for nb in range(2):
            if nb == 1:
                A(row_mask)
            for g in range(4):
                A(f"ds_write_b128 v{vTw}, {vr(vG + 16 * nb + 4 * g, 4)} offset:{32 * 528 * nb + 32 * g}")
        A("s_mov_b64 exec, -1")

    def node_exponents():
        A(f"""
        v_mov_b32 v{vXs}, {hex(f32(-float(KSH)))}
        v_mov_b32 v{vXs + 1}, {hex(f32(-float(KSH)))}
        s_mov_b32 s{sTmp}, s{sNl}
        s_mov_b32 s{sTmp + 1}, s{sNl}
        """)
        for i in range(0, 32, 2):
            A(f"v_pk_fma_f32 {vr(vG + i, 2)}, {vr(vG + i, 2)}, {sr(sTmp, 2)}, {vr(vXs, 2)}")

    A("Lu_wave:")
    A("s_mov_b64 exec, vcc")
    A(f"ds_write_b32 v{vZero}, v{vOne} offset:{L_FLAG}")
    A("s_mov_b64 exec, -1")
    late_tf = int(opt.get("late_tf", 2))
    if late_tf < 2:
        A(tf_poll)
    la = vSoff
    A(f"""
    s_mul_i32 s{sSW}, s{sW}, {STRW}
    s_add_u32 s{sSW}, s{sSW}, {L_STR}
    v_add_u32 v{vSp}, s{sSW}, v{vH16}
    v_bfe_u32 v{vX + 12}, v{vTid}, 3, 2
    v_bfe_u32 v{vX + 13}, v{vTid}, 1, 1
    v_lshl_add_u32 v{vX + 12}, v{vX + 12}, 1, v{vX + 13}
    v_bfe_u32 v{vX + 13}, v{vTid}, 2, 1
    v_lshl_add_u32 v{vX + 12}, v{vX + 12}, 1, v{vX + 13}
    v_and_b32 v{vX + 13}, 1, v{vTid}
    v_lshl_add_u32 v{vX + 12}, v{vX + 12}, 1, v{vX + 13}
    v_lshl_add_u32 v{vEp}, v{vX + 12}, 2, s{sSW}
    v_bfrev_b32 v{vX + 13}, 2
    v_mov_b32 v{vX + 12}, {N << 18}
    v_lshlrev_b32 v{la}, 1, v{vX + 3}
    v_lshlrev_b32 v{la + 1}, 3, v{vX + 3}
    v_lshrrev_b32 v{la + 2}, 4, v{vX + 3}
    v_lshl_add_u32 v{la + 3}, v{la + 2}, 2, s{sSW}
    """)
    A(f"s_waitcnt vmcnt({1 if late_tf < 2 else 0})")
    stamp(A, opt, "rec")
    histogram(cand)
    A(f"s_cmp_eq_u64 {sr(sMask2, 2)}, 0")
    A("s_cbranch_scc1 Lno_hist2")
    histogram(cand2)
    A("Lno_hist2:")
    A("s_waitcnt vmcnt(0)")
    stamp(A, opt, "hist")
    epf = int(opt.get("epf", 2500))
    assert not (late_tf and pf_lanes)
    if late_tf == 2:
        A(tf_poll)
    elif late_tf:
        A(f"""
        v_lshrrev_b32 v{vX + 11}, 22, v{vTf}
        v_cmp_ne_u32_e64 {sr(sTmp, 2)}, s{sNon}, v{vTf + 1}
        v_cmp_ne_u32 vcc, s{sNon + 1}, v{vX + 11}
        s_or_b64 {sr(sMore, 2)}, vcc, {sr(sTmp, 2)}
        s_cbranch_scc0 Ltf_seen
        {tf_poll}
        Ltf_seen:
        """)
    else:
        tag_wait("tf", vTf, tf_poll)

    def early_features():
        A(f"s_mov_b32 s3, {epf << 18}")
        for rec, key_, rank, so_, eo_, m in cand[:4]:
            A(f"v_cmp_gt_u32 vcc, s3, v{rec}")
            A(f"v_bfe_u32 v{eo_}, v{rec}, 6, 12")
            A(f"v_lshl_add_u32 v{eo_}, v{eo_}, 5, v{vX + 2}")
            A(f"s_and_b64 vcc, vcc, {sr(m, 2)}")
            A("s_or_b64 exec, vcc, 1")
            A(f"buffer_load_dword v{vL + 22}, v{eo_}, {sr(S_EA, 4)}, 0 offen")
            A("s_mov_b64 exec, -1")

    if epf:
        early_features()
    A("s_waitcnt lgkmcnt(0)")
    A("s_barrier")
    stamp(A, opt, "bB")
    c, p, deg, q, inc, g4 = vL, vL + 8, vL + 16, vL + 17, vL + 18, vL + 19
    A(f"ds_read_b128 {vr(c, 4)}, v{la} offset:{L_CNT}")
    A(f"ds_read_b128 {vr(c + 4, 4)}, v{la} offset:{L_CNT + 16}")
    if pf_lanes:
        A(f"""
        s_andn2_b32 s3, s2, 7
        s_add_u32 s3, s3, s{sW}
        s_mul_i32 s3, s3, {pf_lanes * 128}
        {'s_nop 0' if pf_lanes == 64 else f's_bfm_b64 exec, {pf_lanes}, 0'}
        buffer_load_dword v{vL + 22}, v{la + 1}, {sr(S_TAB, 4)}, s3 offen {tab_pol}
        s_mov_b64 exec, -1
        """)
    A(f"""
    s_mov_b32 s{sQ2}, {L_SO}
    s_waitcnt lgkmcnt(1)
    v_add_u32 v{p + 2}, v{c}, v{c + 1}
    v_add3_u32 v{p + 4}, v{p + 2}, v{c + 2}, v{c + 3}
    s_waitcnt lgkmcnt(0)
    v_add3_u32 v{p + 6}, v{p + 4}, v{c + 4}, v{c + 5}
    v_add3_u32 v{deg}, v{p + 6}, v{c + 6}, v{c + 7}
    v_add_u32 v{q}, 3, v{deg}
    v_lshrrev_b32 v{inc}, 2, v{q}
    """)
    wave_scan(A, inc, fill=[
        [f"v_lshrrev_b32 v{q}, 2, v{q}", f"v_add_u32 v{p + 3}, v{p + 2}, v{c + 2}"],
        [f"v_add_u32 v{p + 5}, v{p + 4}, v{c + 4}", f"v_add_u32 v{p + 7}, v{p + 6}, v{c + 6}"],
        [f"v_add_u32 v{deg}, s{sW}, v{deg}", f"v_lshlrev_b32 v{c + 1}, 2, v{q}"],
        [f"v_cmp_lt_u32_e64 {sr(sNext, 2)}, v{deg}, v{c + 1}", "s_nop 0"]])
    A(f"v_sub_u32 v{g4}, v{inc}, v{q}")
    A(f"v_readlane_b32 s3, v{inc}, 63")
    A(f"v_lshl_add_u32 v{p}, v{g4}, 5, s{sQ2}")
    A(f"v_lshl_add_u32 v{p + 1}, v{c}, 3, v{p}")
    for i in range(2, 8):
        A(f"v_lshl_add_u32 v{p + i}, v{p + i}, 3, v{p}")
        if i in (3, 7):
            A(f"ds_write_b128 v{la}, {vr(p + i - 3, 4)} offset:{L_BASE + 4 * (i - 3)}")
    for cd in cand:
        A(f"ds_read_b32 v{cd[1]}, v{cd[1]} offset:{L_BASE}")
    A(f"""
    s_mul_i32 s{sLw}, s3, s{sW}
    s_add_u32 s{sRem}, s{sLw}, s3
    s_lshr_b32 s{sLw}, s{sLw}, 3
    s_lshr_b32 s{sRem}, s{sRem}, 3
    v_cmp_gt_u32_e64 {sr(sTmp, 2)}, s{sLw}, v{g4}
    v_cmp_gt_u32 vcc, s{sRem}, v{g4}
    v_lshl_add_u32 v{deg}, v{deg}, 3, v{p}
    s_bcnt1_i32_b64 s{sF0}, {sr(sTmp, 2)}
    s_bcnt1_i32_b64 s{sOwn}, vcc
    s_cmp_eq_u32 s{sW}, 7
    s_cselect_b32 s{sOwn}, s{sNn}, s{sOwn}
    s_sub_u32 s{sOwn}, s{sOwn}, s{sF0}
    s_sub_u32 s{sRem}, s{sRem}, s{sLw}
    s_waitcnt lgkmcnt(0)
    """)
    stamp(A, opt, "scan2")
    place(cand)
    A(f"s_cmp_eq_u64 {sr(sMask2, 2)}, 0")
    A("s_cbranch_scc1 Lno_place2")
    for cd in cand2:
        A(f"ds_read_b32 v{cd[1]}, v{cd[1]} offset:{L_BASE}")
    A("s_waitcnt lgkmcnt(0)")
    place(cand2)
    A("Lno_place2:")
    en, so, eo, key, cn, pos, t = vL, vL + 8, vL + 12, vL + 20, vL + 24, vL + 21, vL + 26
    A(f"""
    s_mov_b64 exec, {sr(sNext, 2)}
    ds_write_b64 v{deg}, {vr(vX + 12, 2)}
    s_mov_b64 exec, -1
    """)
    if late_tf:
        if late_tf < 2:
            A(f"s_cmp_eq_u64 {sr(sMore, 2)}, 0")
            A("s_cbranch_scc1 Ltf_ok")
        A(f"s_waitcnt vmcnt({4 if epf else 0})")
        tag_wait("tf", vTf, tf_poll)
    A(f"""
    s_sub_u32 s3, s{sOwn}, 1
    s_sub_u32 s{sTmp}, s{sRem}, 1
    s_cmp_gt_u32 s{sTmp}, 63
    s_cselect_b32 s3, 8, s3
    s_cmp_gt_u32 s3, 7
    s_cselect_b64 exec, 1, 0
    ds_write_b32 v{vZero}, v{vOne} offset:{L_FLAG}
    s_mov_b64 exec, -1
    s_lshl_b32 s3, s{sLw}, 5
    v_add_u32 v{t}, s3, v{la}
    v_cmp_le_u32_e64 {sr(sTmp, 2)}, s{sRem}, v{la + 2}
    s_sub_u32 s{sQ1}, s{sF0}, 1
    s_mul_i32 s{sQ2}, s{sQ1}, 528
    s_add_u32 s{sQ2}, s{sQ2}, {L_TA}
    s_mov_b32 s{sQ3}, 0xfffffe00
    s_waitcnt lgkmcnt(0)
    s_barrier
    ds_read_b128 {vr(en, 4)}, v{t} offset:{L_SO}
    ds_read_b32 v{t + 3}, v{vZero} offset:{L_FLAG}
    ds_read_b128 {vr(en + 4, 4)}, v{t} offset:{L_SO + 16}
    v_cndmask_b32_e64 v{vInv}, 0, v{vX + 13}, {sr(sTmp, 2)}
    v_add_u32 v{vEb}, s{sQ2}, v{vLo}
    v_mov_b64 {vr(cn, 2)}, 1
    s_waitcnt lgkmcnt({2 if int(opt.get("kent", 1)) < 2 else 0})
    v_lshrrev_b32 v{key}, 26, v{en + 2 * int(opt.get("kent", 1))}
    v_and_b32 v{key}, 56, v{key}
    v_cndmask_b32_e64 v{key}, v{key}, 56, {sr(sTmp, 2)}
    s_waitcnt lgkmcnt(1)
    v_readfirstlane_b32 s3, v{t + 3}
    v_lshlrev_b64 {vr(cn, 2)}, v{key}, {vr(cn, 2)}
    v_and_b32 v{t + 3}, 63, v{en}
    s_cmp_lg_u32 s3, 0
    s_cbranch_scc1 Lslow_entry
    s_waitcnt lgkmcnt(0)
    """)
    stamp(A, opt, "bD")
    fillers = [f"v_subrev_u32 v{t + 3}, s{sQ1}, v{t + 3}", f"v_mul_u32_u24 v{t + 3}, 12, v{t + 3}"]
    fillers += [f"v_lshrrev_b32 v{so + i}, 9, v{en + 2 * i}" for i in range(4)]
    for k, d in enumerate(WAVE_SCAN):
        A(f"v_add_u32_dpp v{cn}, v{cn}, v{cn} {d} bank_mask:0xf")
        A(f"v_add_u32_dpp v{cn + 1}, v{cn + 1}, v{cn + 1} {d} bank_mask:0xf")
        A(fillers[k])
    A(f"v_readlane_b32 s{sTmp}, v{cn}, 63")
    A(f"v_readlane_b32 s{sTmp + 1}, v{cn + 1}, 63")
    for i in range(4):
        A(f"v_bfe_u32 v{eo + i}, v{en + 2 * i}, 6, 12")
    A(f"""
    s_mul_i32 s3, s{sTmp}, 0x01010101
    s_mul_i32 s{sTmp + 1}, s{sTmp + 1}, 0x01010100
    s_lshl_b32 s{sTmp}, s3, 8
    s_lshr_b32 s3, s3, 24
    s_mul_i32 s3, s3, 0x01010101
    s_add_u32 s{sTmp + 1}, s{sTmp + 1}, s3
    v_lshl_add_u64 {vr(cn, 2)}, {vr(cn, 2)}, 0, {sr(sTmp, 2)}
    s_sub_u32 s3, s{sSW}, 16
    v_lshrrev_b64 {vr(cn, 2)}, v{key}, {vr(cn, 2)}
    """)
    for i in range(4):
        A(f"v_lshl_add_u32 v{eo + i}, v{eo + i}, 5, v{en + 2 * i + 1}")
    A(f"v_and_b32 v{pos}, 0xff, v{cn}")
    for i in range(4):
        A(f"v_or_b32 v{eo + i}, v{eo + i}, v{vInv}")
    A(f"v_lshl_add_u32 v{t}, v{pos}, 4, s3")
    A(f"ds_write_b128 v{t}, {vr(eo, 4)} offset:1152")
    A(f"ds_read_b32 v{vEo}, v{vEp} offset:1152")
    for i in range(4):
        A(f"v_and_or_b32 v{so + i}, v{so + i}, s{sQ3}, v{vInv}")
    A(f"""
    v_and_b32 v{t + 1}, 1, v{pos}
    v_lshl_add_u32 v{t + 1}, v{t + 1}, 3, v{t}
    v_subrev_u32 v{t + 1}, 8, v{t + 1}
    ds_write2_b64 v{t + 1}, {vr(so, 2)}, {vr(so + 2, 2)} offset0:0 offset1:2
    ds_read_b128 {vr(vT, 4)}, v{vSp}
    ds_read_b128 {vr(vSo, 4)}, v{vSp} offset:32
    v_add_u32 v{t + 2}, s{sSW}, v{pos}
    ds_write_b8 v{t + 2}, v{t + 3} offset:2303
    ds_read_b32 v{vSb}, v{la + 3} offset:2304
    s_waitcnt lgkmcnt(5)
    v_add_u32 v{vEo}, v{vEo}, v{vH16}
    buffer_load_dwordx4 {vr(vEA, 4)}, v{vEo}, {sr(S_EA, 4)}, 0 offen {ea_pol}
    """)
    dist = int(opt.get("dist", 4))
    for u in range(dist):
        src = (vT, vT + 2, vSo, vSo + 2)[u]
        if u in (0, 2):
            A(f"s_waitcnt lgkmcnt({(3, 1)[u // 2]})")
        A(f"v_lshl_add_u64 {vr(src, 2)}, {vr(src, 2)}, 0, {vr(vLo, 2)}")
        A(f"buffer_load_dwordx4 {vr(vL + 8 * u, 4)}, v{src}, {sr(S_TAB, 4)}, 0 offen {tab_pol}")
        A(f"buffer_load_dwordx4 {vr(vL + 8 * u + 4, 4)}, v{src + 1}, {sr(S_TAB, 4)}, 0 offen {tab_pol}")
    stamp(A, opt, "prim")
    eps = 1e-6 / c0
    wc_reads()
    A(f"s_and_b32 s3, s{sW}, 4")
    A(f"v_mov_b32 v{vEad}, s3")
    A("s_cbranch_scc1 Lfactors_made")
    node_exponents()
    for i in range(32):
        A(f"v_exp_f32 v{vG + i}, v{vG + i}")
    A("Lfactors_made:")
    node_rows()
    A(f"""
    s_mov_b64 exec, 1
    ds_add_u32 v{vEad}, v{vOne} offset:{L_FLAG + 8}
    s_mov_b64 exec, -1
    s_waitcnt lgkmcnt(9)
    """)
    wc_fragments()
    A(f"""
    s_waitcnt lgkmcnt(0)
    s_mov_b32 s{sTmp}, {hex(f32(eps / 2))}
    s_mov_b32 s{sTmp + 1}, {hex(f32(eps / 2))}
    """)
    for sl_ in range(NS):
        for j in range(0, 8, 2):
            A(f"v_mov_b64 {vr(vSl + 12 * sl_ + j, 2)}, {sr(sTmp, 2) if sl_ and j >= 4 else 0}")
    eA1, eA2, eA3, eA4, eFl, eOne = 248, 249, 250, 251, 252, 253
    sOut, sLast = sOvf, sMor
    A(f"""
    v_add_u32 v{eA1}, s{sSW}, v{vX + 3}
    s_mul_i32 s3, s{sF0}, 528
    s_add_u32 s3, s3, {L_TU}
    v_mul_u32_u24 v{eA2}, 33, v{vH16}
    v_add3_u32 v{eA2}, v{eA2}, v{vLo}, s3
    s_mul_i32 s3, s{sF0}, 272
    s_add_u32 s3, s3, {L_X}
    v_mul_u32_u24 v{eA3}, 17, v{vH16}
    v_lshrrev_b32 v{eA4}, 1, v{vLo}
    v_add3_u32 v{eA3}, v{eA3}, v{eA4}, s3
    v_lshl_add_u32 v{eA4}, v{vH16}, 4, v{eA4}
    s_lshl_b32 s3, s{sW}, 2
    v_mov_b32 v{eFl}, s3
    v_mov_b32 v{eOne}, {L_FLAG + 12}
    s_add_u32 s{sOut}, s{sN0}, s{sF0}
    s_lshl_b32 s{sOut}, s{sOut}, 8
    s_mul_i32 s{sLast}, s{sOwn}, 12
    """)
    A("Lfactors:")
    A(f"ds_read_b32 v{vEad}, v{vZero} offset:{L_FLAG + 8}")
    for sl_ in range(NS):
        A(f"ds_read_b128 {vr(vSl + 12 * sl_ + 8, 4)}, v{vEb} offset:{528 * sl_}")
    A("s_waitcnt lgkmcnt(0)")
    A(f"v_cmp_gt_u32 vcc, 4, v{vEad}")
    A("s_cbranch_vccnz Lfactors")
    ea_at = int(opt.get("ea_at", 3))
    prio = opt.get("prio", "alt")
    A(f"""
    s_waitcnt lgkmcnt(0)
    v_readlane_b32 s{sSl0}, v{vSb}, 0
    v_readlane_b32 s{sSl1}, v{vSb}, 1
    s_mov_b32 s{sLn}, 2
    s_mov_b32 s{sLn + 1}, 3
    """)
    if prio == "quart":
        A(f"""
        s_mul_i32 s{sQ1}, s{sRem}, 3
        s_lshr_b32 s{sQ1}, s{sQ1}, 2
        s_lshr_b32 s{sQ2}, s{sRem}, 1
        s_lshr_b32 s{sQ3}, s{sRem}, 2
        """)
    else:
        first_drop = [int(x) for x in opt.get("drop", "8,16").split(",")]
        A(f"""
        s_cmp_lt_u32 s{sW}, 4
        s_cselect_b32 s3, {first_drop[0]}, {first_drop[1]}
        s_sub_i32 s{sQ1}, s{sRem}, s3
        s_sub_i32 s{sQ2}, s{sQ1}, {int(opt.get("dstep", 16))}
        s_sub_i32 s{sQ3}, s{sQ2}, {int(opt.get("dstep", 16))}
        """)
        if opt.get("dend"):
            e0, e1 = (int(x) for x in opt["dend"].split(","))
            A(f"""
            s_cmp_lt_u32 s{sW}, 4
            s_cselect_b32 s{sQ3}, {e0}, {e1}
            s_add_u32 s{sQ2}, s{sQ3}, {int(opt.get("dstep", 16))}
            s_add_u32 s{sQ1}, s{sQ2}, {int(opt.get("dstep", 16))}
            """)
    thr_on = opt.get("thr")
    if thr_on:
        ref, mul, cut = (int(x) for x in thr_on.split(","))
        A(f"""
        s_sub_i32 s3, {ref}, s{sRem}
        s_mul_i32 s3, s3, {mul}
        s_sub_i32 s{sTi}, s{sRem}, s3
        """)
    fair = int(opt.get("fair", 0))
    vFa, vFi, vFr = 248, 249, 250
    if fair:
        A(f"""
        s_and_b32 s3, s{sW}, 3
        s_lshl_b32 s3, s3, 2
        v_mov_b32 v{vFa}, s3
        s_cmp_lt_u32 s{sW}, 4
        s_cselect_b32 s{sQ1}, 1, -1
        v_mov_b32 v{vFi}, s{sQ1}
        """)
    A("s_setprio 3")
    A(f"s_waitcnt vmcnt({2 * dist})")
    stamp(A, opt, "first")

    def mfma(j):
        return f"v_mfma_f32_32x32x16_bf16 {vr(vD + 16 * j, 16)}, {vr(vEA, 4)}, {vr(vWC + 4 * j, 4)}, 0"

    for j in range(4):
        A(mfma(j))
    A("s_nop 8")
    A(f"s_cmp_gt_u32 s{sRem}, 8")
    A("s_cbranch_scc0 Llast")

    def step(u, last, q):
        La, Lb = vL + 8 * (u & 3), vL + 8 * (u & 3) + 4
        a, b = vT, vT + 4
        sl = (sSl0, sSl1)[u >> 2]
        nv = u + dist
        prefetch = not (last and nv >= 8)
        check = fair and u % fair == 0
        need = [u] + (["E"] if u == 7 and not last else [])
        A(f"s_waitcnt vmcnt({len(q) - 1 - max(i for i, x in enumerate(q) if x in need)})")
        if thr_on and not last:
            A(f"s_cbranch_vccz Lthr{u}")
            A(f"s_waitcnt vmcnt({len(q) - 1 - max(i for i, x in enumerate(q) if x in need + [u + cut])})")
            A(f"Lthr{u}:")
        lds = (prefetch and nv % 2 == 0) or (u == ea_at and not last) or check
        if prefetch and nv % 2 == 0:
            A(f"ds_read_b128 {vr(vSo, 4)}, v{vSp} offset:{16 * nv}")
        if check:
            A("s_nop 0")
            A("s_mov_b64 exec, 1")
            A(f"ds_add_rtn_u32 v{vFr}, v{vFa}, v{vFi} offset:{L_FLAG + 32}")
            A("s_mov_b64 exec, -1")
            A("s_nop 0")
        if u == ea_at and not last:
            A(f"ds_read_b32 v{vEo}, v{vEp} offset:{1152 + 128}")

        def mix(j, hb):
            return (f"v_fma_mix_f32 v{(a, b)[hb] + j}, v{vD + 16 * j + 2 * u + hb}, s{sNl}, v{(La, Lb)[hb] + j} "
                    "op_sel_hi:[0,0,1]")

        if u == 7 and not last:
            for j in range(4):
                A(mix(j, 0))
                A(mix(j, 1))
                if j:
                    A(f"v_exp_f32 v{a + j - 1}, v{a + j - 1}")
                    A(f"v_exp_f32 v{b + j - 1}, v{b + j - 1}")
                A(mfma(j))
            A(f"v_exp_f32{'' if lds else '_e64'} v{a + 3}, v{a + 3}")
            A(f"v_exp_f32 v{b + 3}, v{b + 3}")
        else:
            for hb in range(2):
                for j in range(4):
                    A(mix(j, hb))
            for j in range(8):
                A(f"v_exp_f32{'_e64' if j == 0 and not lds else ''} v{a + j}, v{a + j}")
        if lds:
            A("s_waitcnt lgkmcnt(0)")
        A(f"s_set_gpr_idx_on s{sl}, gpr_idx(SRC1)")
        for j in range(0, 8, 2):
            A(f"v_pk_fma_f32 {vr(a + j, 2)}, {vr(a + j, 2)}, {vr(vSl + 8 + (j & 3), 2)}, {sr(sC0, 2)} clamp")
        A("s_set_gpr_idx_mode gpr_idx()")
        A(f"s_lshr_b32 s{sl}, s{sl}, 8")
        if check:
            A(f"v_readlane_b32 s3, v{vFr}, 0")
        if u == ea_at and not last:
            A(f"v_add_u32_e64 v{vEo}, v{vEo}, v{vH16}")
            A(f"buffer_load_dwordx4 {vr(vEA, 4)}, v{vEo}, {sr(S_EA, 4)}, 0 offen {ea_pol}")
            q.append("E")
        for j in (0, 2):
            A(f"v_pk_mul_f32 {vr(La + j, 2)}, {vr(La + j, 2)}, {vr(b + j, 2)}")
        if check:
            tag = f"Lfair{u}{'l' if last else ''}"
            A(f"""
            s_mul_i32 s3, s3, s{sQ1}
            s_setprio 0
            s_cmp_ge_i32 s3, 0
            s_cbranch_scc1 {tag}
            s_setprio 2
            s_nop 0
            {tag}:
            """)
        so2 = vSo + 2 * (nv & 1)
        if prefetch:
            A(f"v_lshl_add_u64 {vr(so2, 2)}, {vr(so2, 2)}, 0, {vr(vLo, 2)}")
        for j in (0, 2):
            A(f"v_pk_fma_f32 {vr(La + j, 2)}, {vr(Lb + j, 2)}, {vr(a + j, 2)}, {vr(La + j, 2)}")
        for j in (0, 2):
            A(f"v_pk_add_f32 {vr(Lb + j, 2)}, {vr(a + j, 2)}, {vr(b + j, 2)}")
        for j in (0, 2):
            A(f"v_pk_mul_f32 {vr(a + j, 2)}, {vr(a + j, 2)}, {vr(b + j, 2)}")
        for j in range(4):
            A(f"v_rcp_f32{'_e64' if j == 0 else ''} v{a + j}, v{a + j}")
        A("s_set_gpr_idx_mode gpr_idx(SRC2,DST)")
        for j in (0, 2):
            A(f"v_pk_fma_f32 {vr(vSl + j, 2)}, {vr(La + j, 2)}, {vr(a + j, 2)}, {vr(vSl + j, 2)}")
            A(f"v_pk_fma_f32 {vr(vSl + 4 + j, 2)}, {vr(Lb + j, 2)}, {vr(a + j, 2)}, {vr(vSl + 4 + j, 2)}")
        if prefetch:
            A(f"buffer_load_dwordx4 {vr(vL + 8 * (nv & 3), 4)}, v{so2}, {sr(S_TAB, 4)}, 0 offen {tab_pol}")
            A(f"buffer_load_dwordx4 {vr(vL + 8 * (nv & 3) + 4, 4)}, v{so2 + 1}, {sr(S_TAB, 4)}, 0 offen {tab_pol}")
            q += [nv] * 2
        A("s_set_gpr_idx_off")

    assert 0 <= ea_at < 7
    A.note("""main loop: eight groups per tile. a = min(2^-48 * (1 + exp(-gate)), 1) for edges a and b of each half-wave:
    num += (Va * b + Vb * a) / (a * b), den += (a + b) / (a * b)""")
    A(".p2align 6")
    A("Ltile:")
    A(f"s_sub_u32 s{sRem}, s{sRem}, 8")
    if thr_on:
        A(f"s_cmp_ge_i32 s{sRem}, s{sTi}")
        A("s_cselect_b64 vcc, -1, 0")
    q = [0, 0, 1, 1, 2, 2, 3, 3][:2 * dist]
    for u in range(8):
        step(u, False, q)
        if u == 3 and int(opt.get("pmid", 0)):
            A(f"s_add_u32 s3, s{sRem}, 4")
            for k, sq in enumerate((sQ1, sQ2, sQ3)):
                A(f"s_cmp_le_i32 s3, s{sq}")
                A("s_cbranch_scc0 Lprio_mid")
                A(f"s_setprio {2 - k}")
            A("Lprio_mid:")
    A(f"""
    s_nop 0
    v_readlane_b32 s{sSl0}, v{vSb}, s{sLn}
    v_readlane_b32 s{sSl1}, v{vSb}, s{sLn + 1}
    v_add_u32 v{vSp}, 0x80, v{vSp}
    v_add_u32 v{vEp}, 0x80, v{vEp}
    s_add_u32 s{sLn}, s{sLn}, 2
    s_add_u32 s{sLn + 1}, s{sLn + 1}, 2
    """)
    if opt.get("tilestamps"):
        for k in range(2, 6):
            A(f"s_cmp_lg_u32 s{sLn}, {2 * k + 2}")
            A(f"s_cbranch_scc1 Lts{k}")
            stamp(A, opt, f"tile{k}")
            A(f"Lts{k}:")
    if prio != "none" and not fair:
        for k, sq in enumerate((sQ1, sQ2, sQ3)):
            A(f"s_cmp_le_i32 s{sRem}, s{sq}")
            A("s_cbranch_scc0 Lprio_done")
            A(f"s_setprio {2 - k}")
        A("Lprio_done:")
    A(f"s_cmp_gt_u32 s{sRem}, 8")
    A("s_cbranch_scc1 Ltile")
    A(".p2align 3")
    A(f"""
    Llast:
    ds_read_b32 v{vEad}, v{eOne}
    s_waitcnt lgkmcnt(0)
    v_cmp_gt_u32 vcc, 4, v{vEad}
    s_cbranch_vccnz Llast
    """)
    q = [0, 0, 1, 1, 2, 2, 3, 3][:2 * dist]
    for u in range(8):
        step(u, True, q)
        if u < 7:
            A(f"s_cmp_le_u32 s{sRem}, {u + 1}")
            A("s_cbranch_scc1 Lmain_done")
    A("Lmain_done:")
    stamp(A, opt, "done")

    def finalize(a0, o, a1, u0, x0, addr, soff, pre_store, pre_rows=""):
        for j in range(4):
            A(f"v_permlane32_swap_b32 v{a0 + j}, v{a1 + j}")
            A(f"v_permlane32_swap_b32 v{a0 + o + j}, v{a1 + o + j}")
        for j in (o, o + 2, 0, 2):
            A(f"v_pk_add_f32 {vr(a0 + j, 2)}, {vr(a0 + j, 2)}, {vr(a1 + j, 2)}")
        for j in range(4):
            A(f"v_rcp_f32 v{a0 + o + j}, v{a0 + o + j}")
        A(pre_rows)
        for j in (0, 2):
            A(f"v_pk_fma_f32 {vr(a0 + j, 2)}, {vr(a0 + j, 2)}, {vr(a0 + o + j, 2)}, {vr(u0 + j, 2)}")
        A(f"v_cvt_pk_bf16_f32 v{a0}, v{a0}, v{a0 + 1}")
        A(f"v_cvt_pk_bf16_f32 v{a0 + 1}, v{a0 + 2}, v{a0 + 3}")
        A(f"v_pk_max_f16 v{a0}, v{a0}, v{x0}")
        A(f"v_pk_max_f16 v{a0 + 1}, v{a0 + 1}, v{x0 + 1}")
        A(pre_store)
        A(f"buffer_store_dwordx2 {vr(a0, 2)}, v{addr}, {sr(S_OUT, 4)}, s{soff} offen {opt.get('out_pol', 'sc1 nt')}")

    vU, vXr, vA1, vA2, vA3, vCy = vD, vD + 16, vD + 24, vD + 25, vD + 26, vD + 32
    carry_reads = f"""
    ds_read_b32 v{vEad}, v{eFl} offset:{L_FLAG + 64 + 4}
    ds_read_b128 {vr(vCy, 4)}, v{eA1} offset:{STRW}
    ds_read_b128 {vr(vCy + 4, 4)}, v{eA1} offset:{STRW + 1024}
    """
    A(f"""
    ds_write_b128 v{eA1}, {vr(vSl, 4)}
    ds_write_b128 v{eA1}, {vr(vSl + 4, 4)} offset:1024
    ds_write_b32 v{eFl}, v{eOne} offset:{L_FLAG + 64}
    """)
    for pr in range(4):
        A(f"ds_read_b128 {vr(vU + 4 * pr, 4)}, v{eA2} offset:{1056 * pr}")
        A(f"ds_read_b64 {vr(vXr + 2 * pr, 2)}, v{eA3} offset:{544 * pr}")
    A(carry_reads)
    for pr in range(4):
        if pr < 3:
            A(f"s_cmp_gt_u32 s{sOwn}, {2 * pr + 2}")
            A(f"s_cbranch_scc1 Lfin{pr}")
        A(f"""
        s_cmp_eq_u32 s{sW}, 7
        s_cbranch_scc1 Lfin{pr}
        Lcarry{pr}:
        s_waitcnt lgkmcnt(0)
        v_cmp_eq_u32 vcc, 0, v{vEad}
        s_cbranch_vccz Lcarried{pr}
        s_sleep 1
        {carry_reads}
        s_branch Lcarry{pr}
        Lcarried{pr}:
        s_set_gpr_idx_on s{sLast}, gpr_idx(SRC0,DST)
        """)
        for j in range(0, 8, 2):
            A(f"v_pk_add_f32 {vr(vSl + j, 2)}, {vr(vSl + j, 2)}, {vr(vCy + j, 2)}")
        A("s_set_gpr_idx_off")
        A("s_nop 1")
        A(f"Lfin{pr}:")
        finalize(vSl + 12 * (2 * pr + 1), 4, vSl + 12 * (2 * pr + 2), vU + 4 * pr, vXr + 2 * pr, eA4, sOut,
                 f"s_cmp_gt_u32 s{sOwn}, {2 * pr + 1}\ns_cselect_b32 exec_hi, -1, 0", "" if pr else "s_waitcnt lgkmcnt(0)")
        if pr < 3:
            A(f"s_add_u32 s{sOut}, s{sOut}, 512")
            A(f"s_cmp_gt_u32 s{sOwn}, {2 * pr + 2}")
            A("s_cbranch_scc0 Lk2_done")
    A("Lk2_done:")
    stamp_flush(A, opt, 8, 0x20000, vTid)
    if opt.get("spin"):
        A("""
        Lspin:
        s_memrealtime s[42:43]
        s_waitcnt lgkmcnt(0)
        s_sub_u32 s42, s42, s100
        s_cmp_lt_u32 s42, 10000
        s_cbranch_scc1 Lspin
        """)
    A("Lk2_exit:")
    A("s_endpgm")

    NU = 7
    vAcc, vAn = 0, 56
    vLs = [vL + 8 * u for u in range(4)] + [84 + 8 * u for u in range(3)]
    vP, vErr, vQ, vCaddr, vUaddr = 245, 252, 253, 254, 255
    A("Lcold_code:")
    A("Lslow_entry:")
    A(f"s_cmp_ge_u32 s{sW}, 4")
    A("s_cbranch_scc1 Lg_rows")
    node_exponents()
    A("Lg_rows:")
    node_rows()
    wc_reads()
    A("s_waitcnt lgkmcnt(0)")
    wc_fragments()
    A(f"""
    s_waitcnt vmcnt(0) lgkmcnt(0)
    s_barrier
    v_lshlrev_b32 v{vX + 11}, 2, v{vTid}
    ds_write_b32 v{vX + 11}, v{vZero} offset:{L_CNT}
    s_mul_i32 s3, s{sW}, 528
    s_add_u32 s3, s3, {L_TA}
    v_add_u32 v{vX + 11}, s3, v{vLo}
    """)
    for u in range(NU):
        A(f"ds_read_b128 {vr(vAn + 4 * u, 4)}, v{vX + 11} offset:{8 * 528 * u}")
    A(f"s_mov_b32 s{sTmp}, {hex(f32(eps / 2))}")
    A(f"s_mov_b32 s{sTmp + 1}, {hex(f32(eps / 2))}")
    for i in range(0, 8 * NU, 2):
        A(f"v_mov_b64 {vr(vAcc + i, 2)}, {sr(sTmp, 2) if i & 4 else 0}")
    A(f"""
    v_bfe_u32 v{vX + 11}, v{vTid}, 3, 3
    v_and_b32 v{vX + 12}, 7, v{vTid}
    v_lshlrev_b32 v{vX + 12}, 2, v{vX + 12}
    v_lshl_add_u32 v{vX + 12}, v{vX + 11}, 8, v{vX + 12}
    s_lshl_b32 s3, s{sW}, 5
    v_add_u32 v{vCaddr}, s3, v{vX + 12}
    v_bfe_u32 v{vX + 11}, v{vTid}, 3, 2
    v_bfe_u32 v{vX + 12}, v{vTid}, 1, 1
    v_lshl_add_u32 v{vX + 11}, v{vX + 11}, 1, v{vX + 12}
    v_lshlrev_b32 v{vUaddr}, 5, v{vX + 11}
    Lbatch:
    """)
    batch_masks(16)
    A("Lround:")
    rec_addr()
    rec_loads()
    A(f"""
    v_mov_b32 v{vZero}, 0
    v_mov_b32 v{vOne}, 1
    ds_write_b32 v{vZero}, v{vZero} offset:{L_FLAG}
    ds_write_b32 v{vZero}, v{vZero} offset:{L_FLAG + 4}
    s_waitcnt lgkmcnt(0)
    s_barrier
    s_mov_b64 exec, {sr(sMore, 2)}
    ds_write_b32 v{vZero}, v{vOne} offset:{L_FLAG + 4}
    s_mov_b64 exec, -1
    s_waitcnt vmcnt(0)
    """)
    histogram(cand)
    for rec, key_, rank, so_, eo_, m in cand:
        A(f"v_lshrrev_b32 v{so_}, 18, v{rec}")
        A(f"v_bfe_u32 v{eo_}, v{rec}, 6, 12")
        A(f"v_lshlrev_b32 v{so_}, 9, v{so_}")
        A(f"v_lshl_add_u32 v{eo_}, v{eo_}, 5, v{vX + 2}")
    A("s_waitcnt lgkmcnt(0)")
    A("s_barrier")
    c, inc, deg, q, t0, t1 = vX + 12, vX + 13, vX + 14, vX + 15, vX + 16, vX + 17
    A(f"ds_read_b32 v{c}, v{vCaddr} offset:{L_CNT}")
    A(f"v_lshrrev_b32 v{t0}, 5, v{vCaddr}")
    A(f"v_lshlrev_b32 v{t0}, 6, v{t0}")
    A("s_waitcnt lgkmcnt(0)")
    A(f"ds_write_b32 v{vCaddr}, v{vZero} offset:{L_CNT}")
    A(f"v_mov_b32 v{inc}, v{c}")
    for d in (1, 2, 4, 8):
        A("s_nop 1")
        A(f"v_add_u32_dpp v{inc}, v{inc}, v{inc} row_shr:{d} row_mask:0xf bank_mask:0xf")
    A(f"""
    v_mov_b32 v{t1}, 0
    s_nop 0
    v_mov_b32_dpp v{deg}, v{inc} row_newbcast:7 row_mask:0xf bank_mask:0x3
    v_mov_b32_dpp v{t1}, v{inc} row_newbcast:7 row_mask:0xf bank_mask:0xc
    v_mov_b32_dpp v{deg}, v{inc} row_newbcast:15 row_mask:0xf bank_mask:0xc
    v_sub_u32 v{inc}, v{inc}, v{t1}
    v_sub_u32 v{deg}, v{deg}, v{t1}
    v_sub_u32 v{inc}, v{inc}, v{c}
    v_add_u32 v{inc}, v{inc}, v{t0}
    ds_write_b32 v{vCaddr}, v{inc} offset:{L_BASE}
    v_cmp_lt_u32 vcc, 64, v{deg}
    v_min_u32 v{deg}, 64, v{deg}
    v_add_u32 v{q}, 3, v{deg}
    v_lshrrev_b32 v{q}, 2, v{q}
    s_mov_b64 exec, vcc
    ds_write_b32 v{vZero}, v{vOne} offset:{L_FLAG}
    s_mov_b64 exec, -1
    ds_bpermute_b32 v{vQ}, v{vUaddr}, v{q}
    v_and_b32 v{c}, 7, v{vTid}
    v_add_u32 v{c}, v{c}, v{deg}
    v_lshlrev_b32 v{t1}, 2, v{q}
    v_cmp_lt_u32 vcc, v{c}, v{t1}
    v_add_lshl_u32 v{c}, v{c}, v{t0}, 2
    v_mov_b32 v{t0}, {TAB_BYTES}
    v_bfrev_b32 v{t1}, 2
    s_mov_b64 exec, vcc
    ds_write_b32 v{c}, v{t0} offset:{L_SO}
    ds_write_b32 v{c}, v{t1} offset:{L_EO}
    s_mov_b64 exec, -1
    v_max_u32_dpp v{q}, v{q}, v{q} row_ror:8 row_mask:0xf bank_mask:0xf
    s_nop 0
    v_readlane_b32 s{sT}, v{q}, 0
    v_readlane_b32 s3, v{q}, 16
    v_readlane_b32 s{sTmp}, v{q}, 32
    v_readlane_b32 s{sTmp + 1}, v{q}, 48
    s_waitcnt lgkmcnt(0)
    s_barrier
    ds_read_b64 {vr(vX + 12, 2)}, v{vZero} offset:{L_FLAG}
    """)
    for i in range(8):
        A(f"ds_read_b32 v{vKey + i}, v{vKey + i} offset:{L_BASE}")
    A(f"""
    s_max_u32 s{sT}, s{sT}, s3
    s_max_u32 s{sTmp}, s{sTmp}, s{sTmp + 1}
    s_max_u32 s{sT}, s{sT}, s{sTmp}
    s_waitcnt lgkmcnt(0)
    v_readfirstlane_b32 s{sOvf}, v{vX + 12}
    v_readfirstlane_b32 s{sMor}, v{vX + 13}
    """)
    for i in range(8):
        A(f"v_and_b32 v{vX + 12}, 63, v{vRec + i}")
        A(f"v_add_u32 v{vKey + i}, v{vKey + i}, v{vRank + i}")
        A(f"v_lshl_add_u32 v{vX + 12}, v{vX + 12}, 6, 64")
        A(f"v_cmp_lt_u32 vcc, v{vKey + i}, v{vX + 12}")
        A(f"v_lshlrev_b32 v{vKey + i}, 2, v{vKey + i}")
        A(f"s_and_b64 exec, vcc, {sr(sMask + 2 * i, 2)}")
        A(f"ds_write_b32 v{vKey + i}, v{vSoff + i} offset:{L_SO}")
        A(f"ds_write_b32 v{vKey + i}, v{vEoff + i} offset:{L_EO}")
        A(f"s_andn2_b64 {sr(sMask + 2 * i, 2)}, {sr(sMask + 2 * i, 2)}, vcc")
        A("s_mov_b64 exec, -1")
    A(f"""
    s_lshl_b32 s3, s{sW}, 8
    v_lshrrev_b32 v{vX + 12}, 1, v{vH16}
    v_add_u32 v{vP}, s3, v{vX + 12}
    v_and_b32 v{vX + 12}, 1, v{vTid}
    v_bfe_u32 v{vX + 13}, v{vTid}, 2, 1
    v_lshl_add_u32 v{vX + 12}, v{vX + 13}, 1, v{vX + 12}
    v_lshl_add_u32 v{vX + 12}, v{vX + 12}, 2, s3
    v_lshl_add_u32 v{vEp}, v{vUaddr}, 6, v{vX + 12}
    s_lshr_b32 s3, s{sT}, 1
    v_mov_b32 v{vErr}, s3
    s_mov_b64 {sr(sCur, 2)}, 0
    s_mov_b32 s{sTi}, 0
    """)
    for u in range(1, NU):
        A(f"v_mov_b32 v{vP + u}, v{vP}")
    A(f"""
    s_waitcnt lgkmcnt(0)
    s_barrier
    s_cmp_eq_u32 s{sT}, 0
    s_cbranch_scc1 Lg_done
    s_branch Lg_entry
    Lg_tile:
    s_waitcnt vmcnt({2 * NU})
    """)
    for j in range(4):
        A(mfma(j))
    A(f"""
    Lg_entry:
    v_add_u32 v{vErr}, v{vQ}, v{vErr}
    ds_read_b32 v{vEo}, v{vEp} offset:{L_EO}
    ds_read_b64 {vr(vSo, 2)}, v{vP} offset:{L_SO}
    v_cmp_le_u32_e64 {sr(sNext, 2)}, s{sT}, v{vErr}
    s_cmp_lt_u32 s{sTi}, s{sT}
    s_cselect_b64 {sr(sNext, 2)}, {sr(sNext, 2)}, 1
    s_mov_b64 exec, {sr(sNext, 2)}
    v_subrev_u32 v{vErr}, s{sT}, v{vErr}
    v_add_u32 v{vEp}, 16, v{vEp}
    s_waitcnt lgkmcnt(1)
    v_add_u32 v{vEo}, v{vEo}, v{vH16}
    buffer_load_dwordx4 {vr(vEA, 4)}, v{vEo}, {sr(S_EA, 4)}, 0 offen
    s_mov_b64 exec, -1
    """)
    for u in range(NU):
        bit = 8 * (u >> 1) + 2 * (u & 1) + 1
        so2 = vSo + 2 * (u & 1)
        La, Lb = vLs[u], vLs[u] + 4
        a, b = vT, vT + 4
        num, den = vAcc + 8 * u, vAcc + 8 * u + 4
        if u + 1 < NU:
            A(f"ds_read_b64 {vr(vSo + 2 * ((u + 1) & 1), 2)}, v{vP + u + 1} offset:{L_SO + 2048 * (u + 1)}")
        A(f"s_bitcmp1_b32 s{sCur}, {bit}")
        A(f"s_cbranch_scc0 Lg_skip{u}")
        A(f"s_waitcnt vmcnt({2 * NU - 1})")
        for j in range(4):
            A(f"v_fma_mix_f32 v{a + j}, v{vD + 16 * j + 2 * u}, s{sNl}, v{La + j} op_sel_hi:[0,0,1]")
        for j in range(4):
            A(f"v_fma_mix_f32 v{b + j}, v{vD + 16 * j + 2 * u + 1}, s{sNl}, v{Lb + j} op_sel_hi:[0,0,1]")
        for j in range(0, 8, 2):
            A(f"v_pk_add_f32 {vr(a + j, 2)}, {vr(a + j, 2)}, {vr(vAn + 4 * u + (j & 3), 2)}")
        for j in range(8):
            A(f"v_exp_f32_e64 v{a + j}, v{a + j} clamp")
        for j in range(0, 8, 2):
            A(f"v_pk_add_f32 {vr(a + j, 2)}, {vr(a + j, 2)}, {sr(sC0, 2)}")
        for j in (0, 2):
            A(f"v_pk_mul_f32 {vr(La + j, 2)}, {vr(La + j, 2)}, {vr(b + j, 2)}")
        for j in (0, 2):
            A(f"v_pk_fma_f32 {vr(La + j, 2)}, {vr(Lb + j, 2)}, {vr(a + j, 2)}, {vr(La + j, 2)}")
        for j in (0, 2):
            A(f"v_pk_add_f32 {vr(Lb + j, 2)}, {vr(a + j, 2)}, {vr(b + j, 2)}")
        for j in (0, 2):
            A(f"v_pk_mul_f32 {vr(a + j, 2)}, {vr(a + j, 2)}, {vr(b + j, 2)}")
        for j in range(4):
            A(f"v_rcp_f32 v{a + j}, v{a + j}")
        for j in (0, 2):
            A(f"v_pk_fma_f32 {vr(num + j, 2)}, {vr(La + j, 2)}, {vr(a + j, 2)}, {vr(num + j, 2)}")
            A(f"v_pk_fma_f32 {vr(den + j, 2)}, {vr(Lb + j, 2)}, {vr(a + j, 2)}, {vr(den + j, 2)}")
        A(f"Lg_skip{u}:")
        A(f"s_bitcmp1_b32 s{sNext}, {bit}")
        A("s_cselect_b64 exec, -1, 1")
        A(f"s_cselect_b32 s{sInc}, 16, 0")
        A(f"s_waitcnt lgkmcnt({1 if u + 1 < NU else 0})")
        A(f"v_add_u32 v{so2}, v{so2}, v{vLo}")
        A(f"v_add_u32 v{so2 + 1}, v{so2 + 1}, v{vLo}")
        A(f"buffer_load_dwordx4 {vr(La, 4)}, v{so2}, {sr(S_TAB, 4)}, 0 offen {tab_pol}")
        A(f"buffer_load_dwordx4 {vr(Lb, 4)}, v{so2 + 1}, {sr(S_TAB, 4)}, 0 offen {tab_pol}")
        A("s_mov_b64 exec, -1")
        A(f"v_add_u32 v{vP + u}, s{sInc}, v{vP + u}")
    A(f"""
    s_mov_b64 {sr(sCur, 2)}, {sr(sNext, 2)}
    s_add_u32 s{sTi}, s{sTi}, 1
    s_cmp_le_u32 s{sTi}, s{sT}
    s_cbranch_scc1 Lg_tile
    Lg_done:
    s_waitcnt vmcnt(0)
    s_cmp_lg_u32 s{sOvf}, 0
    s_cbranch_scc1 Lround
    s_add_u32 s{sW0}, s{sW0}, 16
    s_cmp_lg_u32 s{sMor}, 0
    s_cbranch_scc1 Lbatch
    s_mul_i32 s3, s{sW}, 528
    s_add_u32 s3, s3, {L_TU}
    v_mul_u32_u24 v{vA2}, {33 * 8}, v{vH16}
    v_add3_u32 v{vA2}, v{vA2}, v{vLo}, s3
    s_mul_i32 s3, s{sW}, 272
    s_add_u32 s3, s3, {L_X}
    v_mul_u32_u24 v{vA3}, {17 * 8}, v{vH16}
    v_lshrrev_b32 v{vLo + 1}, 1, v{vLo}
    v_add3_u32 v{vA3}, v{vA3}, v{vLo + 1}, s3
    """)
    for pr in range(4):
        A(f"ds_read_b128 {vr(vU + 4 * pr, 4)}, v{vA2} offset:{16 * 528 * pr}")
        A(f"ds_read_b64 {vr(vXr + 2 * pr, 2)}, v{vA3} offset:{16 * 272 * pr}")
    A(f"""
    v_lshl_add_u32 v{vA2}, v{vH16}, 7, v{vLo + 1}
    s_add_u32 s{sQ1}, s{sN0}, s{sW}
    s_lshl_b32 s{sQ1}, s{sQ1}, 8
    s_waitcnt lgkmcnt(0)
    """)
    for pr in range(4):
        if pr == 3:
            A(f"s_add_u32 s3, s{sW}, 48")
            A(f"s_cmp_ge_u32 s3, s{sNn}")
            A("s_cbranch_scc1 Lk2_done")
        finalize(vAcc + 16 * pr, 4, vAcc + 16 * pr + 8, vU + 4 * pr, vXr + 2 * pr, vA2, sQ1,
                 "s_mov_b32 exec_hi, 0" if pr == 3 else "s_nop 0")
        A(f"s_add_u32 s{sQ1}, s{sQ1}, 4096")
    A("s_branch Lk2_done")
    return L_END


def gen_report(A, opt):
    kind, team, idx = opt["report"].split(",")
    idx, _, ref = idx.partition("-")
    idx = int(idx)
    A("report_kernel:")
    A("s_cmp_ge_u32 s2, 1")
    A("s_cbranch_scc1 Lr_exit")
    load_kernargs(A)
    A("s_waitcnt lgkmcnt(0)")
    srd(A, 28, P_WS, 0x80000, STAMP_OFF + 0x20000)

    def reduce(op, base, dst, tag, sub):
        A("v_lshrrev_b32 v1, 2, v0")
        A("v_and_b32 v2, 3, v0")
        A("v_lshlrev_b32 v1, 9, v1")
        A("v_lshl_add_u32 v1, v2, 6, v1")
        A(f"v_mov_b32 v3, {'-1' if op == 'min' else '0'}")
        A("s_mov_b32 s44, 0")
        A(f"Lr_{tag}:")
        A(f"buffer_load_dword v2, v1, s[28:31], s44 offen offset:{base}")
        A("s_waitcnt vmcnt(0)")
        if sub:
            A("v_subrev_u32 v2, s40, v2")
        A(f"v_{op}_u32 v3, v3, v2")
        A("s_add_u32 s44, s44, 8192")
        A("s_cmp_lt_u32 s44, 131072")
        A(f"s_cbranch_scc1 Lr_{tag}")
        A(f"v_readlane_b32 s{dst}, v3, 0")
        for l in range(1, 64):
            A(f"v_readlane_b32 s3, v3, {l}")
            A("s_nop 0")
            A(f"s_{op}_u32 s{dst}, s{dst}, s3")

    reduce("min", 0, 40, "a", False)
    reduce(kind, 8 * idx + (256 if team == "t" else 0), 41, "b", True)
    if ref:
        reduce(kind, 8 * int(ref) + (256 if team == "t" else 0), 45, "c", True)
        A("s_sub_u32 s41, s41, s45")
    sc = int(opt.get("rs", 2))
    A(f"s_lshr_b32 s41, s41, {10 - sc}" if kind == "add" else f"s_lshl_b32 s41, s41, {sc}")
    A("s_min_u32 s41, s41, 30000")
    A("s_add_u32 s41, s41, 10000")
    A("Lr_spin:")
    A("s_memrealtime s[42:43]")
    A("s_waitcnt lgkmcnt(0)")
    A("s_sub_u32 s42, s42, s40")
    A("s_cmp_lt_u32 s42, s41")
    A("s_cbranch_scc1 Lr_spin")
    A("Lr_exit:")
    A("s_endpgm")


def descriptor(name, vgpr, extra=""):
    return f""".amdhsa_kernel {name}
  .amdhsa_next_free_vgpr {vgpr}
  .amdhsa_next_free_sgpr 102
  .amdhsa_accum_offset {(vgpr + 3) // 4 * 4}
  .amdhsa_group_segment_fixed_size 0
  .amdhsa_kernarg_size 96
  .amdhsa_user_sgpr_count 2
  .amdhsa_user_sgpr_kernarg_segment_ptr 1
  .amdhsa_system_sgpr_workgroup_id_x 1
{extra}.end_amdhsa_kernel
"""


def generate(opt):
    A = Asm()
    lds = gen_k2(A, opt)
    lst = f"kernel={NAME}_kernel " if opt.get("report") else ""
    text = (f"""; GatedGCN layer in one launch of 256 co-resident workgroups (one per CU).
; Workgroup g owns chunk g of the edges (1568) and one bucket of 48 or 49 destination nodes.
;  1. counting sort of the chunk by destination bucket -> records in d_ws, published by tagged offset words
;  2. x @ w_b, x @ w_v of the bucket's rows -> gather table in d_ws (low half: f16 of -log2(e) * B, high half: V),
;     published by a tagged word; x @ w_a and x + x @ w_u stay in LDS
;  3. the bucket's records are sorted by (node, source range), padded to groups of four edges and split evenly
;     over the eight waves; every wave walks its groups in source order
;  4. per group: gate exponent from MFMA(e_attr, w_c) and the gathered row, sigmoid of two edges with one reciprocal,
;     numerator and denominator sums in indexed registers; out = max(x + x @ w_u + num / (den + 1e-6), x)
; The tag is published in d_debug by workgroup 0. Inputs outside the limits of the fast path (degree distribution,
; |x @ w_a| > 52) take the general path at the end of the file.
; @launch {lst}grid=(256,1,1) block=(512,1,1) lds={lds}
.amdgcn_target "amdgcn-amd-amdhsa--gfx950"
.text
.globl {NAME}_kernel
.p2align 8
.type {NAME}_kernel,@function
""" + A.text() + ".section .rodata,\"a\"\n.p2align 6\n"
            + descriptor(f"{NAME}_kernel", 256, "  .amdhsa_fp16_overflow 1\n"))
    if opt.get("report"):
        R = Asm()
        gen_report(R, opt)
        text = text.replace(".amdgcn_target", "; @launch kernel=report_kernel grid=(1,1,1) block=(64,1,1) lds=0\n.amdgcn_target")
        text = text.replace(".section .rodata", ".globl report_kernel\n.p2align 8\n.type report_kernel,@function\n" + R.text() + ".section .rodata")
        text += ".p2align 6\n" + descriptor("report_kernel", 8)
    return text


if __name__ == "__main__":
    out = sys.argv[1] if len(sys.argv) > 1 else f"cdna_kernels/{NAME}.s"
    opt = dict(a.split("=", 1) for a in sys.argv[2:])
    opt = {k: v.replace("+", " ") for k, v in opt.items()}
    open(out, "w").write(generate(opt))
```

```python
import math
import struct
import sys

NAME = "gather_scatter__edge_featured_mpnn_gatedgcn__graph"
N, E = 12500, 400000
BM, BS, SM, SC, SS = 171799, 23, 799999, 16330, 14
CH = 1568
NCH = 256
TAB_OFF = 0
REC_OFF = 0xE00000
OFF_OFF = 0x1000000
SPIN_MAX = 20000
STAMP_OFF = 0x2000000
TAB_BYTES = N * 512
KSH = 48
AMAX = 52.0
NLOG2E = -math.log2(math.e)


def f32(x):
    return struct.unpack("<I", struct.pack("<f", x))[0]


class Asm:
    def __init__(self):
        self.lines = []

    def __call__(self, s):
        for ln in s.strip("\n").split("\n"):
            ln = ln.strip()
            if not ln:
                continue
            self.lines.append(ln if ln.endswith(":") else "    " + ln)

    def note(self, s):
        self.lines += ["; " + ln.strip() for ln in s.strip().split("\n")]

    def text(self):
        return "\n".join(self.lines) + "\n"


def vr(a, n=1):
    return f"v{a}" if n == 1 else f"v[{a}:{a + n - 1}]"


def sr(a, n=1):
    return f"s{a}" if n == 1 else f"s[{a}:{a + n - 1}]"


def srd(A, d, base, nbytes, off=0):
    if off:
        A(f"s_add_u32 s{d}, s{base}, {hex(off)}")
        A(f"s_addc_u32 s{d + 1}, s{base + 1}, 0")
    else:
        A(f"s_mov_b64 {sr(d, 2)}, {sr(base, 2)}")
    A(f"s_mov_b32 s{d + 2}, {hex(nbytes)}")
    A(f"s_mov_b32 s{d + 3}, 0x20000")


P_X, P_EA, P_SRC, P_DST, P_WA, P_WB, P_WC, P_WU = 4, 6, 8, 10, 12, 14, 16, 18
P_WV, P_OUT, P_DBG, P_WS = 20, 22, 24, 26


def load_kernargs(A):
    A("s_load_dwordx16 s[4:19], s[0:1], 0")
    A("s_load_dwordx8 s[20:27], s[0:1], 64")


STAMP_BASE = [2]


def stamp_reg(i):
    return 100 if i == 0 else STAMP_BASE[0] + 2 * i


def stamp(A, opt, i):
    if not opt.get("stamp"):
        return
    if isinstance(i, str):
        names = opt["stamp"].split(",")
        if i not in names:
            return
        i = names.index(i) + 1
    A(f"{'s_memtime' if opt.get('cyc') else 's_memrealtime'} s[{stamp_reg(i)}:{stamp_reg(i) + 1}]")


def stamp_flush(A, opt, n, base, vtid):
    if not opt.get("stamp"):
        return
    A("s_mov_b64 exec, -1")
    A("s_waitcnt vmcnt(0)")
    stamp(A, opt, n - 1)
    srd(A, 20, P_WS, 0x80000, STAMP_OFF + base)
    A(f"v_lshrrev_b32 v1, 6, v{vtid}")
    A("s_lshl_b32 s3, s2, 3")
    A("v_add_u32 v1, s3, v1")
    A(f"v_mul_u32_u24 v1, {8 * n}, v1")
    A("s_mov_b64 exec, 1")
    A("s_waitcnt lgkmcnt(0)")
    for i in range(n):
        r = stamp_reg(i)
        A(f"v_mov_b32 v2, s{r}")
        A(f"v_mov_b32 v3, s{r + 1}")
        A(f"buffer_store_dwordx2 v[2:3], v1, s[20:23], 0 offen offset:{8 * i}")
        A("s_nop 1")


WAVE_SCAN = ("row_shr:1 row_mask:0xf", "row_shr:2 row_mask:0xf", "row_shr:4 row_mask:0xf",
             "row_shr:8 row_mask:0xf", "row_bcast:15 row_mask:0xa", "row_bcast:31 row_mask:0xc")


def wave_scan(A, v, first_nop=1, fill=()):
    for k, d in enumerate(WAVE_SCAN):
        if k < len(fill):
            A("\n".join(fill[k]))
        elif k or first_nop:
            A("s_nop 1")
        A(f"v_add_u32_dpp v{v}, v{v}, v{v} {d} bank_mask:0xf")


def gen_k2(A, opt):
    global TAB_OFF, REC_OFF, OFF_OFF
    wsb = int(opt.get("wsb", 0)) << 20
    TAB_OFF, REC_OFF, OFF_OFF = TAB_OFF + wsb, REC_OFF + wsb, OFF_OFF + wsb
    STAMP_BASE[0] = 2
    ea_pol = opt.get("ea_load", "")
    tab_pol = opt.get("tab_load", "sc1")
    pf_lanes = int(opt.get("pf", 0))
    poll_at = int(opt.get("poll_at", 0))
    ld = [int(x) for x in opt.get("ld", "6,11,16").split(",")]
    TS = int(opt.get("ts", 3))
    OB = int(opt.get("ob", 8))
    S_TAB, S_EA, S_REC, S_OFFS, S_TW, S_X, S_OUT = 28, 32, 36, 40, 44, 48, 52
    sW, sBk, sN0, sW0, sT, sTi, sInc, sNl = 56, 57, 58, 59, 60, 61, 62, 63
    sC0, sCur, sNext, sMore, sTmp, sNon = 64, 66, 68, 70, 72, 74
    sMask = 76
    sMask2 = 18
    S_DST, S_SRC, S_W, S_W2, S_WC, S_DBG = 76, 80, 84, 88, 76, 80
    sOvf, sMor, sQ1, sQ2, sQ3, sLw, sF0, sOwn = 92, 93, 94, 95, 96, 97, 98, 99
    sRem, sSW, sSl0, sSl1, sLn, sPM = sT, sInc, sCur, sCur + 1, sNext, sCur
    sNn = 0
    sWo, sWm = sOvf, sLw
    L_CNT, L_BASE, L_FLAG, P_CNT, P_BASE, P_SORT = 0, 2048, 4096, 4352, 5376, 6400
    L_R2 = 12800
    L_SO = L_R2
    L_EO = L_SO + 25600
    L_STR = L_R2 + 16896
    STRW = 2560
    L_WCR = L_R2 + 65536
    L_X = L_WCR + 4096
    L_R1 = (L_X + 52 * 272 + 255) // 256 * 256
    L_TA = L_R1 + 528
    L_TU = L_TA + 52 * 528
    L_END = L_R1 + 65536
    TF_OFF = NCH * 2048
    NS = 9
    vSl, vD, vL, vWC, vEA, vT, vSo, vLo = 0, 108, 172, 204, 220, 224, 232, 236
    vSp, vEp, vEo, vH16, vSb, vTid, vOffs = 238, 239, 240, 241, 242, 243, 244
    vWf, vG, vXf, vXs, vNon, vTf = 0, 32, vL, 96, 104, 106
    vEn, vEb, vEad, vS2 = 104, 246, 247, 248
    Lbuf = [vL + 8 * u for u in range(4)] + [72 + 8 * u for u in range(4)]
    vRec, vKey, vRank, vSoff, vEoff, vX = vD, vD + 8, vD + 16, vD + 24, vD + 32, vD + 40
    cand = [(vRec + i, vKey + i, vRank + i, vSoff + i, vEoff + i, sMask + 2 * i) for i in range(8)]
    cand2 = [(vEA + i, vT + i, vT + 4 + i, None, None, sMask2 + 2 * i) for i in range(4)]
    c0 = 2.0 ** -KSH
    vZero, vOne, vXw, vXrd, vTw, vInv = vX + 5, vX + 6, vX + 7, vX + 8, vX + 9, vX + 10
    vDa, vBx, vBt, vBs, vAt, vPa, vE = vX + 12, vX + 14, vX + 15, vX + 17, vX + 18, vX + 19, vX + 20
    vSw, vSr = vX + 16, vD + 39
    pD, pS, pA, pR, pC, pB, pG = vD, vD + 4, vD + 8, vD + 12, vD + 16, vD + 20, vD + 24
    vm = []

    def younger(name):
        return len(vm) - 1 - max(i for i, x in enumerate(vm) if x == name)

    def dma_piece(S, soff, i):
        A(f"buffer_load_dwordx4 v{vDa + ((i >> 1) & 1)}, {sr(S, 4)}, s{soff} offen offset:{1024 * (i & 3)} {opt.get('w_pol', '')} lds")

    def loader(lo, hi):
        for g in range(lo, hi):
            A(f"s_mov_b32 m0, {L_R1 + 4096 * g}")
            A(f"s_movk_i32 s3, {4096 * (g & 7)}")
            if g == 8:
                A(f"s_mov_b64 {sr(S_W, 2)}, {sr(P_WV, 2)}")
            for i in range(4):
                dma_piece(S_W, 3, i)

    A(f"{NAME}_kernel:")
    A("s_cmp_ge_u32 s2, 256")
    A("s_cbranch_scc1 Lk2_exit")
    stamp(A, opt, 0)
    load_kernargs(A)
    A(f"""
    s_memrealtime {sr(sNon, 2)}
    s_getpc_b64 s[{sTmp}:{sTmp + 1}]
    """)
    cpf_mode = int(opt.get("cpf", 8))
    if cpf_mode:
        A(f"""
        s_lshr_b32 s3, s2, 3
        s_and_b32 s3, s3, {128 // cpf_mode - 1}
        v_subrev_u32 v1, {512 - cpf_mode}, v0
        v_cmp_gt_u32 vcc, {cpf_mode}, v1
        v_mul_u32_u24 v1, {128 // cpf_mode}, v1
        v_add_lshl_u32 v1, v1, s3, 7
        """)
    else:
        A(f"""
        v_lshlrev_b32 v1, 7, v0
        v_cmp_gt_u32 vcc, Lcold_code - {NAME}_kernel, v1
        """)
    A(f"""
    s_and_saveexec_b64 {sr(sNext, 2)}, vcc
    s_cbranch_execz Lno_cpf
    global_load_dword v2, v1, s[{sTmp}:{sTmp + 1}] {opt.get('cpf_pol', '')}
    Lno_cpf:
    s_mov_b64 exec, -1
    v_mov_b32 v{vZero}, 0
    v_lshlrev_b32 v{vX + 11}, 2, v0
    ds_write_b32 v{vX + 11}, v{vZero} offset:{L_FLAG}
    ds_write_b32 v{vX + 11}, v{vZero} offset:{L_CNT}
    v_lshrrev_b32 v{vX}, 6, v0
    v_lshlrev_b32 v{vX + 2}, 4, v0
    v_readfirstlane_b32 s{sW}, v{vX}
    s_movk_i32 s3, {CH // 4}
    s_cmp_eq_u32 s2, {NCH - 1}
    s_cselect_b32 s3, {(E - (NCH - 1) * CH) // 4}, s3
    v_cmp_gt_u32_e64 {sr(sPM, 2)}, s3, v0
    s_mul_i32 s{sQ1}, s2, {CH * 4}
    s_mov_b32 s{S_DST + 2}, {E * 4}
    s_mov_b32 s{S_DST + 3}, 0x20000
    s_mov_b32 s{S_SRC + 2}, {E * 4}
    s_mov_b32 s{S_SRC + 3}, 0x20000
    s_and_b32 s3, s2, 7
    s_lshl_b32 s3, s3, 5
    s_lshr_b32 s{sBk}, s2, 3
    s_add_u32 s{sBk}, s{sBk}, s3
    s_mul_i32 s{sN0}, s{sBk}, {SM}
    s_add_u32 s{sOwn}, s{sN0}, {SM + SC}
    s_add_u32 s{sN0}, s{sN0}, {SC}
    s_lshr_b32 s{sOwn}, s{sOwn}, {SS}
    s_lshr_b32 s{sN0}, s{sN0}, {SS}
    v_mov_b32 v{vTid}, v0
    v_and_b32 v{vX + 3}, 0x3f0, v{vX + 2}
    v_bfe_u32 v{vX + 1}, v0, 4, 2
    v_lshlrev_b32 v{vX + 4}, 6, v{vX + 1}
    v_xor_b32 v{vDa}, v{vX + 3}, v{vX + 4}
    v_xor_b32 v{vDa + 1}, 32, v{vDa}
    s_lshl_b32 s{sWm}, s{sW}, 13
    s_add_u32 s{sWm + 1}, s{sWm}, 4096
    s_and_b32 s{sWo}, s{sWm}, 0x7fff
    s_add_u32 s{sWo + 1}, s{sWo}, 4096
    s_lshl_b32 s{sTmp}, s{sN0}, 8
    s_add_u32 s{sTmp + 1}, s{sTmp}, 8192
    s_mov_b64 exec, {sr(sPM, 2)}
    s_waitcnt lgkmcnt(0)
    s_cbranch_execz Lp_nold
    s_mov_b64 {sr(S_DST, 2)}, {sr(P_DST, 2)}
    s_mov_b64 {sr(S_SRC, 2)}, {sr(P_SRC, 2)}
    buffer_load_dwordx4 {vr(pD, 4)}, v{vX + 2}, {sr(S_DST, 4)}, s{sQ1} offen {opt.get("idx_pol", "nt")}
    buffer_load_dwordx4 {vr(pS, 4)}, v{vX + 2}, {sr(S_SRC, 4)}, s{sQ1} offen {opt.get("idx_pol", "nt")}
    Lp_nold:
    """)
    if int(opt.get("wpf", 1)):
        A(f"""
        s_cmp_lg_u32 s{sW}, 7
        s_cbranch_scc1 Lno_wpf
        s_mov_b64 exec, 0xff
        s_lshr_b32 s3, s2, 3
        s_lshl_b32 s3, s3, 10
        v_lshl_add_u32 v1, v{vX + 3}, 3, s3
        global_load_dword v3, v1, {sr(P_WB, 2)} {opt.get('wpf_pol', '')}
        global_load_dword v4, v1, {sr(P_WV, 2)} {opt.get('wpf_pol', '')}
        global_load_dword v5, v1, {sr(P_WA, 2)} {opt.get('wpf_pol', '')}
        global_load_dword v6, v1, {sr(P_WU, 2)} {opt.get('wpf_pol', '')}
        Lno_wpf:
        """)
    A("s_mov_b64 exec, -1")
    A("s_barrier")
    vm.append("dst")
    srd(A, S_DBG, P_DBG, 256)
    A(f"""
    s_xor_b32 s3, s{sW}, 7
    s_or_b32 s3, s3, s2
    s_cbranch_scc1 Lno_nonce
    s_or_b32 s3, s{sNon}, 1
    v_mov_b32 v{vNon}, s3
    v_mov_b32 v{vNon + 1}, s{sNon + 1}
    s_mov_b64 exec, 1
    buffer_store_dwordx2 {vr(vNon, 2)}, v{vZero}, {sr(S_DBG, 4)}, 0 offen sc1
    s_mov_b64 exec, -1
    Lno_nonce:
    """)
    A(f"""
    s_mov_b64 {sr(S_X, 2)}, {sr(P_X, 2)}
    s_lshl_b32 s{S_X + 2}, s{sOwn}, 8
    s_mov_b32 s{S_X + 3}, 0x20000
    s_sub_u32 s{sNn}, s{sOwn}, s{sN0}
    """)
    for i in range(2):
        A(f"buffer_load_dwordx4 {vr(vXs + 4 * i, 4)}, v{vX + 2}, {sr(S_X, 4)}, s{sTmp + i} offen {opt.get('x_pol', 'nt')}")
        vm.append("x")
    A(f"""
    s_cmp_lt_u32 s{sW}, 4
    s_cselect_b32 s{S_W}, s{P_WB}, s{P_WV}
    s_cselect_b32 s{S_W + 1}, s{P_WB + 1}, s{P_WV + 1}
    s_cselect_b32 s{S_W2}, s{P_WA}, s{P_WU}
    s_cselect_b32 s{S_W2 + 1}, s{P_WA + 1}, s{P_WU + 1}
    s_mov_b32 s{S_W + 2}, 32768
    s_mov_b32 s{S_W + 3}, 0x20000
    s_mov_b32 s{S_W2 + 2}, 32768
    s_mov_b32 s{S_W2 + 3}, 0x20000
    """)
    npf0 = 0
    A(f"s_cmp_lg_u32 s{sW}, 7")
    A("s_cbranch_scc1 Lno_ld0")
    A(f"s_mov_b64 {sr(S_W, 2)}, {sr(P_WB, 2)}")
    loader(0, 2)
    A("Lno_ld0:")
    srd(A, S_WC, P_WC, 4096)
    srd(A, S_REC, P_WS, NCH * CH * 4, REC_OFF)
    srd(A, S_OFFS, P_WS, TF_OFF + (256 << TS), OFF_OFF)
    srd(A, S_TAB, P_WS, TAB_BYTES + 512, TAB_OFF)
    srd(A, S_EA, P_EA, 0 if opt.get("noea") else E * 32)
    srd(A, S_OUT, P_OUT, N * 256)
    pt = int(opt.get("ptouch", 0))
    if pt:
        A(f"""
        s_cmp_lg_u32 s{sW}, 7
        s_cbranch_scc1 Lno_touch
        v_lshlrev_b32 v1, {pt - 4}, v{vX + 3}
        """)
        for i, S in enumerate((S_TAB, S_REC, S_OFFS, S_EA, S_OUT)):
            A(f"buffer_load_dword v{7 + i}, v1, {sr(S, 4)}, 0 offen sc1")
        A("Lno_touch:")
    A(f"""
    s_lshl_b32 s3, s{sN0}, 9
    s_add_u32 s{S_TW}, s{S_TAB}, s3
    s_addc_u32 s{S_TW + 1}, s{S_TAB + 1}, 0
    s_lshl_b32 s{S_TW + 2}, s{sNn}, 9
    s_mov_b32 s{S_TW + 3}, 0x20000
    s_mov_b32 s{sNl}, {hex(f32(NLOG2E))}
    s_mov_b32 s{sC0}, {hex(f32(c0))}
    s_mov_b32 s{sC0 + 1}, {hex(f32(c0))}
    s_mov_b32 s{sW0}, 0
    s_mov_b32 s{sQ2}, {BM}
    s_mov_b32 s{sQ3}, {-SM}
    v_mov_b32 v{vOne}, 1
    v_lshrrev_b32 v{vX + 11}, 4, v{vTid}
    v_lshl_add_u32 v{vXw}, v{vX + 11}, 4, v{vX + 2}
    v_add_u32 v{vXw}, {L_X}, v{vXw}
    v_and_b32 v{vLo}, 0x1f0, v{vX + 2}
    v_bfe_u32 v{vX + 4}, v{vTid}, 5, 1
    v_mov_b32 v{vLo + 1}, v{vLo}
    v_lshlrev_b32 v{vH16}, 4, v{vX + 4}
    s_lshr_b32 s{sTmp}, s{sW}, 2
    s_and_b32 s{sTmp + 1}, s{sW}, 3
    v_bfe_u32 v{vX + 11}, v{vTid}, 2, 2
    v_xor_b32 v{vE}, s{sTmp + 1}, v{vX + 11}
    v_lshlrev_b32 v{vE}, 6, v{vE}
    v_and_b32 v{vE + 1}, 3, v{vTid}
    v_lshl_add_u32 v{vE}, v{vE + 1}, 3, v{vE}
    v_lshl_add_u32 v{vE}, v{vX + 11}, 8, v{vE}
    v_and_b32 v{vE + 1}, 1, v{vX + 1}
    v_xor_b32 v{vE + 1}, v{vE + 1}, v{vX + 4}
    v_lshl_add_u32 v{vE}, v{vE + 1}, 5, v{vE}
    v_lshl_add_u32 v{vE}, v{vX + 4}, 11, v{vE}
    v_add_u32 v{vBt}, {L_R1}, v{vE}
    s_lshl_b32 s3, s{sTmp}, 15
    s_add_u32 s3, s3, {L_R2}
    v_add_u32 v{vAt}, s3, v{vE}
    v_and_b32 v{vX + 11}, 31, v{vTid}
    v_mul_u32_u24 v{vXrd}, 272, v{vX + 11}
    s_mov_b32 s3, {L_X}
    v_add3_u32 v{vXrd}, v{vXrd}, v{vH16}, s3
    s_mul_i32 s3, s{sTmp}, {32 * 272}
    v_add_u32 v{vBx}, s3, v{vXrd}
    s_mul_i32 s3, s{sW}, 4608
    s_add_u32 s3, s3, {L_R1}
    v_mul_u32_u24 v{vSw}, 144, v{vX + 11}
    v_add3_u32 v{vSw}, v{vSw}, v{vH16}, s3
    v_bfe_u32 v{vE}, v{vTid}, 3, 3
    v_lshl_add_u32 v{vSr}, v{vE}, 4, v{vX + 3}
    v_add_u32 v{vSr}, s3, v{vSr}
    v_and_b32 v{vE + 1}, 0x70, v{vX + 3}
    v_lshl_add_u32 v{vBs}, v{vE}, 9, v{vE + 1}
    s_lshl_b32 s3, s{sTmp}, 7
    s_add_u32 s3, s3, s{sTmp + 1}
    s_lshl_b32 s3, s3, 7
    v_add_u32 v{vBs}, s3, v{vBs}
    v_mul_u32_u24 v{vTw}, 528, v{vX + 11}
    s_mul_i32 s3, s{sTmp}, {L_TU - L_TA}
    s_lshl_b32 s{sTmp + 1}, s{sTmp + 1}, 7
    s_add_u32 s3, s3, s{sTmp + 1}
    s_add_u32 s3, s3, {L_TA}
    v_add3_u32 v{vTw}, v{vTw}, v{vH16}, s3
    v_lshrrev_b32 v{vPa}, 1, v{vTid}
    v_lshlrev_b32 v{vPa}, {3 + OB}, v{vPa}
    v_lshlrev_b32 v{vE}, 8, v{vTid}
    v_add_u32 v{vE + 1}, 64, v{vE}
    v_add_u32 v{vE + 2}, 0x80, v{vE}
    v_add_u32 v{vE + 3}, 0xc0, v{vE}
    """)
    stamp(A, opt, "iss")

    def stage_x(wait):
        A(f"s_waitcnt vmcnt({wait})")
        A(f"ds_write_b128 v{vXw}, {vr(vXs, 4)}")
        A(f"s_cmp_lt_u32 s{sW}, 5")
        A("s_cselect_b64 exec, -1, 0")
        A(f"ds_write_b128 v{vXw}, {vr(vXs + 4, 4)} offset:{32 * 272}")
        A("s_mov_b64 exec, -1")

    nonce_load = f"buffer_load_dwordx2 {vr(vNon, 2)}, v{vZero}, {sr(S_DBG, 4)}, 0 offen sc1"
    A(f"""
    s_cmp_eq_u32 s{sW}, 7
    s_cbranch_scc1 Lp_loader
    s_mov_b64 exec, {sr(sPM, 2)}
    s_waitcnt vmcnt({2 + npf0})
    """)
    stamp(A, opt, "dst")
    for i in range(4):
        A(f"v_mul_u32_u24 v{pC + i}, s{sQ2}, v{pD + i}")
    for i in range(4):
        A(f"v_lshrrev_b32 v{pC + i}, {BS}, v{pC + i}")
        A(f"v_lshlrev_b32 v{pA + i}, 2, v{pC + i}")
        A(f"ds_add_rtn_u32 v{pR + i}, v{pA + i}, v{vOne} offset:{P_CNT}")
    for i in range(4):
        A(f"v_lshl_add_u32 v{pD + i}, v{pD + i}, {SS}, {(1 << SS) - 1 - SC}")
        A(f"v_mad_i32_i24 v{pD + i}, v{pC + i}, s{sQ3}, v{pD + i}")
    A("s_mov_b64 exec, -1")
    A(f"s_cmp_eq_u32 s{sW}, 3")
    A("s_waitcnt lgkmcnt(0)")
    A("s_barrier")
    stamp(A, opt, "b2")
    A(f"""
    s_cbranch_scc0 Lp_noscan
    ds_read_b128 {vr(pC, 4)}, v{vX + 3} offset:{P_CNT}
    s_waitcnt lgkmcnt(0)
    v_add_u32 v{pB + 2}, v{pC}, v{pC + 1}
    v_add3_u32 v{pG + 1}, v{pB + 2}, v{pC + 2}, v{pC + 3}
    v_add_u32 v{pB + 3}, v{pB + 2}, v{pC + 2}
    v_mov_b32 v{pG}, v{pG + 1}
    """)
    ors = []
    for i in range(4):
        ors += [f"v_lshl_or_b32 v{pS + i}, v{pS + i}, 18, v{vE + i}", f"v_lshrrev_b32 v{pD + i}, {SS}, v{pD + i}",
                f"v_or_b32 v{pS + i}, v{pS + i}, v{pD + i}"]
    wave_scan(A, pG + 1, fill=[[]] + [ors[2 * k: 2 * k + 2] for k in range(5)])
    A(f"""
    v_sub_u32 v{pB}, v{pG + 1}, v{pG}
    v_add_u32 v{pB + 1}, v{pB}, v{pC}
    v_add_u32 v{pB + 2}, v{pB}, v{pB + 2}
    v_add_u32 v{pB + 3}, v{pB}, v{pB + 3}
    ds_write_b128 v{vX + 3}, {vr(pB, 4)} offset:{P_BASE}
    {ors[10]}
    {ors[11]}
    s_waitcnt lgkmcnt(0)
    s_barrier
    """)
    A("s_branch Lp_scanned")
    A("Lp_noscan:")
    A("\n".join(ors))
    A("s_barrier")
    A("Lp_scanned:")
    stamp(A, opt, "scan")
    A(f"s_mov_b64 exec, {sr(sPM, 2)}")
    for i in range(4):
        A(f"ds_read_b32 v{pA + i}, v{pA + i} offset:{P_BASE}")
    A("s_waitcnt lgkmcnt(0)")
    for i in range(4):
        A(f"v_add_lshl_u32 v{pA + i}, v{pA + i}, v{pR + i}, 2")
        A(f"ds_write_b32 v{pA + i}, v{pS + i} offset:{P_SORT}")
    A("s_mov_b64 exec, -1")
    A(nonce_load)
    A("s_waitcnt lgkmcnt(0)")
    A("s_barrier")
    stamp(A, opt, "b3")
    A(f"""
    ds_read_b128 {vr(pD, 4)}, v{vX + 2} offset:{P_SORT}
    s_mov_b64 exec, {sr(sPM, 2)}
    s_cbranch_execz Lp_none
    s_waitcnt lgkmcnt(0)
    buffer_store_dwordx4 {vr(pD, 4)}, v{vX + 2}, {sr(S_REC, 4)}, s{sQ1} offen sc1
    s_branch Lp_out
    Lp_loader:
    """)
    loader(2, ld[0])
    A("s_barrier")
    loader(ld[0], ld[1])
    A("s_barrier")
    loader(ld[1], ld[2])
    A("s_barrier")
    loader(ld[2], 16)
    A(nonce_load)
    A(f"""
    Lp_none:
    s_waitcnt vmcnt(1)
    Lp_out:
    s_mov_b64 exec, -1
    """)
    stage_x(2)
    A(f"""
    v_lshrrev_b32 v{vX + 11}, 1, v{vX + 2}
    v_and_b32 v{vX + 11}, 0x3ff, v{vX + 11}
    ds_read_b64 {vr(pC, 2)}, v{vX + 11} offset:{P_CNT}
    ds_read_b64 {vr(pB, 2)}, v{vX + 11} offset:{P_BASE}
    s_lshl_b32 s3, s{sW}, 9
    s_add_u32 m0, s3, {L_WCR}
    s_waitcnt lgkmcnt(0)
    s_barrier
    """)
    stamp(A, opt, "b3b")

    bB, bV, bO = 48, 64, 80

    def bv_reads(s):
        r = 12 * (s & 3)
        A(f"ds_read_b128 {vr(r + 8, 4)}, v{vBx} offset:{32 * s}")
        for m in range(2):
            for z in range(2):
                A(f"ds_read_b64_tr_b16 {vr(r + 4 * m + 2 * z, 2)}, v{vBt} offset:{m * 32768 + s * 4096 + z * 1024}")

    for s in range(3):
        bv_reads(s)
    A(f"""
    s_mov_b32 exec_hi, 0
    buffer_load_dwordx4 v{vX + 3}, {sr(S_WC, 4)}, s3 offen lds
    s_mov_b32 exec_hi, -1
    """)
    b4b = int(opt.get("b4b", 1))
    wk = int(opt.get("wk", 2))
    for s in range(8):
        r = 12 * (s & 3)
        A(f"s_waitcnt lgkmcnt({5 * min(2, 7 - s)})")
        for m in range(2):
            d = (bB, bV)[m]
            A(f"v_mfma_f32_32x32x16_bf16 {vr(d, 16)}, {vr(r + 4 * m, 4)}, {vr(r + 8, 4)}, {'0' if s == 0 else vr(d, 16)}")
        if s + 3 < 8:
            bv_reads(s + 3)
        for i in range(wk * s, min(8, wk * s + wk)):
            if i % 4 == 0:
                A(f"s_add_u32 m0, s{sWm + i // 4}, {L_R2}")
                A("s_nop 0")
            dma_piece(S_W2, sWo + (i >> 2), i)
    stamp(A, opt, "bvm")
    A(f"""
    s_mov_b32 s{sTi}, 0
    s_waitcnt vmcnt(9)
    Lnonce_check:
    v_readfirstlane_b32 s{sNon}, v{vNon}
    v_readfirstlane_b32 s{sNon + 1}, v{vNon + 1}
    s_add_u32 s{sTi}, s{sTi}, 1
    s_cmp_lg_u32 s{sNon}, 0
    s_cbranch_scc1 Lnonce_ok
    buffer_load_dwordx2 {vr(vNon, 2)}, v{vZero}, {sr(S_DBG, 4)}, 0 offen sc1
    s_cmp_lt_u32 s{sTi}, {SPIN_MAX}
    s_waitcnt vmcnt(0)
    s_cbranch_scc1 Lnonce_check
    Lnonce_ok:
    s_and_b32 s{sNon + 1}, s{sNon + 1}, 0x3ff
    s_lshl_b32 s3, s{sNon + 1}, 22
    v_lshl_or_b32 v{pG}, v{pC}, 11, v{pB}
    v_lshl_or_b32 v{pG + 2}, v{pC + 1}, 11, v{pB + 1}
    v_or_b32 v{pG}, s3, v{pG}
    v_or_b32 v{pG + 2}, s3, v{pG + 2}
    v_mov_b32 v{pG + 1}, s{sNon}
    v_mov_b32 v{pG + 3}, s{sNon}
    v_lshrrev_b32 v{vE}, {3 + OB}, v{vX + 2}
    v_and_b32 v{vE + 1}, {(8 << OB) - 1}, v{vX + 2}
    v_lshl_add_u32 v{vE}, v{vE}, {11 + OB}, v{vE + 1}
    s_lshl_b32 s3, s2, {3 + OB}
    s_cmp_ge_u32 s{sW}, 2
    {'' if b4b else 's_waitcnt vmcnt(0)'}
    s_barrier
    s_cbranch_scc1 Lno_off
    buffer_store_dwordx4 {vr(pG, 4)}, v{vE}, {sr(S_OFFS, 4)}, s3 offen sc1
    Lno_off:
    """)
    stamp(A, opt, "sig")
    for g in range(4):
        for i in range(4 * g, 4 * g + 4):
            A(f"v_fma_mixlo_f16 v{bV + i}, v{bB + i}, s{sNl}, 0")
        A(f"ds_write_b128 v{vSw}, {vr(bV + 4 * g, 4)} offset:{32 * g}")
    for i in range(4):
        A(f"ds_read_b128 {vr(bO + 4 * i, 4)}, v{vSr} offset:{1152 * i}")
    A(f"""
    s_or_b32 s3, s2, s{sW}
    s_cbranch_scc1 Lno_pad
    v_mov_b32 v{vE}, 0x7c00
    v_mov_b32 v{vE + 1}, 0x7c00
    v_lshrrev_b32 v{vE + 2}, 1, v{vX + 3}
    s_mov_b32 s3, {TAB_BYTES}
    buffer_store_dwordx2 {vr(vE, 2)}, v{vE + 2}, {sr(S_TAB, 4)}, s3 offen sc1
    Lno_pad:
    s_lshr_b32 s3, s{sBk}, {OB}
    s_lshl_b32 s3, s3, {8 + OB}
    s_and_b32 s{sQ1}, s{sBk}, {(1 << OB) - 1}
    s_add_u32 s{sQ1}, s{sQ1}, s3
    s_lshl_b32 s{sQ1}, s{sQ1}, 3
    s_mov_b32 s3, 0
    """)
    def au_reads(s):
        for z in range(2):
            A(f"ds_read_b64_tr_b16 {vr(vWf + 4 * s + 2 * z, 2)}, v{vAt} offset:{s * 4096 + z * 1024}")
        A(f"ds_read_b128 {vr(vXf + 4 * s, 4)}, v{vXrd} offset:{32 * s}")

    for s in range(4):
        A(f"s_waitcnt lgkmcnt({3 - s if b4b else 3 + 2 * s})")
        A(f"buffer_store_dwordx4 {vr(bO + 4 * s, 4)}, v{vBs}, {sr(S_TW, 4)}, s3 offen {opt.get('tw_pol', 'sc1')}")
        A("s_add_u32 s3, s3, 4096")
        if not b4b:
            au_reads(s)
    if b4b:
        A(f"""
        s_cmp_ge_u32 s{sW}, 2
        s_cbranch_scc1 Lwau_0
        s_waitcnt vmcnt(5)
        s_branch Lwau_1
        Lwau_0:
        s_waitcnt vmcnt(4)
        Lwau_1:
        s_barrier
        """)
        for s in range(4):
            au_reads(s)
    stamp(A, opt, "bve")
    if opt.get("notab"):
        A(f"s_mov_b32 s{S_TAB + 2}, 0")
    poll = f"buffer_load_dwordx2 {vr(vOffs, 2)}, v{vPa}, {sr(S_OFFS, 4)}, s{sQ1} offen sc1"

    def tag_wait(name, v, reload):
        A(f"""
        s_mov_b32 s{sTi}, 0
        L{name}_check:
        v_lshrrev_b32 v{vX + 11}, 22, v{v}
        v_cmp_ne_u32_e64 {sr(sTmp, 2)}, s{sNon}, v{v + 1}
        v_cmp_ne_u32 vcc, s{sNon + 1}, v{vX + 11}
        s_add_u32 s{sTi}, s{sTi}, 1
        s_or_b64 vcc, vcc, {sr(sTmp, 2)}
        s_cbranch_scc0 L{name}_ok
        {reload}
        s_cmp_lt_u32 s{sTi}, {SPIN_MAX}
        s_waitcnt vmcnt(0)
        s_cbranch_scc1 L{name}_check
        L{name}_ok:
        """)

    def batch_masks(window):
        A(f"""
        v_bfe_u32 v{vX}, v{vOffs}, 11, 11
        v_and_b32 v{vX + 1}, 1, v{vTid}
        v_subrev_u32 v{vX}, s{sW0}, v{vX}
        v_lshlrev_b32 v{vX + 1}, 2, v{vX + 1}
        v_cmp_lt_i32_e64 {sr(sMore, 2)}, {window}, v{vX}
        v_sub_u32 v{vX}, v{vX}, v{vX + 1}
        """)
        for i in range(window // 2):
            A(f"v_cmp_lt_i32_e64 {sr((cand + cand2)[i][5], 2)}, {(i & 3) + 8 * (i >> 2)}, v{vX}")

    def rec_addr():
        A(f"""
        v_lshrrev_b32 v{vX + 2}, 1, v{vTid}
        v_and_b32 v{vX + 1}, 1, v{vTid}
        v_mul_u32_u24 v{vX + 2}, {CH}, v{vX + 2}
        v_lshl_add_u32 v{vX + 1}, v{vX + 1}, 2, s{sW0}
        v_add_u32 v{vX + 1}, v{vX + 1}, v{vX + 2}
        v_lshlrev_b32 v{vX + 2}, 5, v{vX + 2}
        """)
        for i in range(0, 8, 2):
            A(f"v_mov_b64 {vr(vKey + i, 2)}, 0")

    def rec_loads(both=True):
        A(f"""
        v_and_b32 v{vX + 4}, 0x7ff, v{vOffs}
        v_add_lshl_u32 v{vX + 4}, v{vX + 4}, v{vX + 1}, 2
        buffer_load_dwordx4 {vr(vRec, 4)}, v{vX + 4}, {sr(S_REC, 4)}, 0 offen sc1
        """)
        if both:
            A(f"buffer_load_dwordx4 {vr(vRec + 4, 4)}, v{vX + 4}, {sr(S_REC, 4)}, 0 offen offset:32 sc1")

    def histogram(cs):
        for rec, key, rank, so_, eo_, m in cs:
            A(f"s_mov_b64 exec, {sr(m, 2)}")
            A(f"v_alignbit_b32 v{key}, v{rec}, v{rec}, 27")
            A(f"v_and_b32 v{key}, 0x7fc, v{key}")
            A(f"ds_add_rtn_u32 v{rank}, v{key}, v{vOne} offset:{L_CNT}")
        A("s_mov_b64 exec, -1")

    def place(cs):
        for rec, key, rank, so_, eo_, m in cs:
            A(f"s_mov_b64 exec, {sr(m, 2)}")
            A(f"v_lshl_add_u32 v{key}, v{rank}, 3, v{key}")
            A(f"ds_write2_b32 v{key}, v{rec}, v{vX + 2} offset0:0 offset1:1")
        A("s_mov_b64 exec, -1")

    def hand_over():
        rec_addr()
        A("s_waitcnt vmcnt(1)")
        A("s_barrier")
        stamp(A, opt, "b5")
        A(f"""
        s_cmp_lg_u32 s{sW}, 7
        s_cbranch_scc1 Lno_tf
        s_lshl_b32 s{sTmp + 1}, s2, {TS}
        s_add_u32 s{sTmp + 1}, s{sTmp + 1}, {TF_OFF}
        s_mov_b64 exec, 1
        buffer_store_dwordx2 {vr(pG, 2)}, v{vZero}, {sr(S_OFFS, 4)}, s{sTmp + 1} offen sc1
        s_mov_b64 exec, -1
        s_waitcnt vmcnt(1)
        s_branch Ltf_sent
        Lno_tf:
        s_waitcnt vmcnt(0)
        Ltf_sent:
        """)
        tag_wait("off", vOffs, poll)
        stamp(A, opt, "off")
        rmask = int(opt.get("rmask", 1))
        rec_loads(not rmask)
        batch_masks(24)
        if rmask:
            A(f"""
            s_mov_b64 exec, {sr(cand[4][5], 2)}
            s_cbranch_execz Lno_rec1
            buffer_load_dwordx4 {vr(vRec + 4, 4)}, v{vX + 4}, {sr(S_REC, 4)}, 0 offen offset:32 sc1
            Lno_rec1:
            s_mov_b64 exec, -1
            """)
        A(f"""
        s_cmp_eq_u64 {sr(sMask2, 2)}, 0
        s_cbranch_scc1 Lno_rec2
        buffer_load_dwordx4 {vr(cand2[0][0], 4)}, v{vX + 4}, {sr(S_REC, 4)}, 0 offen offset:64 sc1
        v_mov_b64 {vr(cand2[0][1], 2)}, 0
        v_mov_b64 {vr(cand2[2][1], 2)}, 0
        Lno_rec2:
        """)

    b5_at = int(opt.get("b5_at", 16))
    assert poll_at <= b5_at
    for k in range(16):
        nb, s = k >> 3, k & 7
        if k == poll_at:
            A(poll)
        if k == b5_at:
            hand_over()
        A(f"s_waitcnt lgkmcnt({9 if k < 5 else (7, 5, 3)[k - 5] if k < 8 else min(3, 15 - k)})")
        cc = "0" if s == 0 else vr(vG + 16 * nb, 16)
        A(f"v_mfma_f32_32x32x16_bf16 {vr(vG + 16 * nb, 16)}, {vr(vWf + 4 * s, 4)}, {vr(vXf + 4 * (k & 7), 4)}, {cc}")
        kn = k + 4
        if kn < 8:
            for z in range(2):
                A(f"ds_read_b64_tr_b16 {vr(vWf + 4 * kn + 2 * z, 2)}, v{vAt} offset:{kn * 4096 + z * 1024}")
        if kn < 16:
            A(f"ds_read_b128 {vr(vXf + 4 * (kn & 7), 4)}, v{vXrd} offset:{32 * 272 * (kn >> 3) + 32 * (kn & 7)}")
    if b5_at == 16:
        hand_over()
    vId = 64
    A(f"""
    s_cmp_lt_u32 s{sW}, 4
    s_cbranch_scc1 Lno_ident
    s_and_b32 s3, s{sW}, 3
    s_lshl_b32 s3, s3, 6
    v_add_u32 v{vX + 11}, s3, v{vXrd}
    """)
    for nb in range(2):
        for z in range(2):
            A(f"ds_read_b128 {vr(vXf + 8 * nb + 4 * z, 4)}, v{vX + 11} offset:{32 * 272 * nb + 32 * z}")
    A(f"""
    v_lshrrev_b32 v{vX + 11}, 4, v{vLo}
    v_lshrrev_b32 v{vX + 12}, 1, v{vH16}
    v_sub_u32 v{vX + 11}, v{vX + 11}, v{vX + 12}
    v_and_b32 v{vX + 12}, 1, v{vX + 11}
    v_lshlrev_b32 v{vX + 12}, 4, v{vX + 12}
    v_mov_b32 v{vX + 13}, 0x3f80
    v_lshlrev_b32 v{vX + 12}, v{vX + 12}, v{vX + 13}
    v_ashrrev_i32 v{vX + 11}, 1, v{vX + 11}
    """)
    for i in range(8):
        A(f"v_cmp_eq_u32_e64 {sr((sTmp, sNext)[i & 1], 2)}, {8 * (i >> 2) + (i & 3)}, v{vX + 11}")
        if i:
            A("s_nop 0")
            A(f"v_cndmask_b32_e64 v{vId + i - 1}, 0, v{vX + 12}, {sr((sTmp, sNext)[(i - 1) & 1], 2)}")
    A("s_nop 0")
    A(f"v_cndmask_b32_e64 v{vId + 7}, 0, v{vX + 12}, {sr(sNext, 2)}")
    A("s_waitcnt lgkmcnt(0)")
    for z in range(2):
        for nb in range(2):
            A(f"v_mfma_f32_32x32x16_bf16 {vr(vG + 16 * nb, 16)}, {vr(vId + 4 * z, 4)}, {vr(vXf + 8 * nb + 4 * z, 4)}, {vr(vG + 16 * nb, 16)}")
    A("Lno_ident:")
    if b5_at == 17:
        hand_over()
    stamp(A, opt, "aum")

    tf_poll = f"buffer_load_dwordx2 {vr(vTf, 2)}, v{vPa}, {sr(S_OFFS, 4)}, s{sQ1} offen sc1"
    vRaw = vD
    A(f"""
    v_lshrrev_b32 v{vPa}, 1, v{vLo}
    {f'v_lshlrev_b32 v{vPa}, {TS - 3}, v{vPa}' if TS > 3 else ''}
    """)

    def wc_reads():
        A(f"""
        v_lshrrev_b32 v{vX + 11}, 1, v{vLo}
        v_lshl_add_u32 v{vX + 11}, v{vH16}, 7, v{vX + 11}
        v_add_u32 v{vX + 11}, {L_WCR}, v{vX + 11}
        """)
        for i in range(8):
            A(f"ds_read_b64 {vr(vRaw + 2 * i, 2)}, v{vX + 11} offset:{256 * i}")

    def wc_fragments():
        A("s_mov_b32 s3, 0x05040100")
        A(f"s_mov_b32 s{sTmp}, 0x07060302")
        for j in range(4):
            for i in range(4):
                A(f"v_perm_b32 v{vWC + 4 * j + i}, v{vRaw + 2 * (2 * i + 1) + (j >> 1)}, v{vRaw + 2 * (2 * i) + (j >> 1)}, "
                  f"s{(3, sTmp)[j & 1]}")

    A(f"""
    s_lshl_b32 s{sQ1}, s{sW}, {5 + TS}
    s_add_u32 s{sQ1}, s{sQ1}, {TF_OFF}
    s_mov_b64 vcc, {sr(sMore, 2)}
    s_cmp_ge_u32 s{sW}, 4
    s_cbranch_scc1 Lu_wave
    v_mov_b32 v{vXs + 2}, 0
    """)
    row_mask = "s_mov_b32 exec_lo, 0xfffff\ns_mov_b32 exec_hi, 0xfffff"
    for i in range(0, 32, 2):
        if i == 16:
            A(row_mask)
        A(f"v_max3_f32 v{vXs + 2}, |v{vG + i}|, |v{vG + i + 1}|, v{vXs + 2}")
    A("s_mov_b64 exec, -1")
    A(f"v_cmp_lt_f32 vcc, {hex(f32(AMAX))}, v{vXs + 2}")
    A(f"s_or_b64 vcc, vcc, {sr(sMore, 2)}")

    def node_rows():
        for nb in range(2):
            if nb == 1:
                A(row_mask)
            for g in range(4):
                A(f"ds_write_b128 v{vTw}, {vr(vG + 16 * nb + 4 * g, 4)} offset:{32 * 528 * nb + 32 * g}")
        A("s_mov_b64 exec, -1")

    def node_exponents():
        A(f"""
        v_mov_b32 v{vXs}, {hex(f32(-float(KSH)))}
        v_mov_b32 v{vXs + 1}, {hex(f32(-float(KSH)))}
        s_mov_b32 s{sTmp}, s{sNl}
        s_mov_b32 s{sTmp + 1}, s{sNl}
        """)
        for i in range(0, 32, 2):
            A(f"v_pk_fma_f32 {vr(vG + i, 2)}, {vr(vG + i, 2)}, {sr(sTmp, 2)}, {vr(vXs, 2)}")

    A("Lu_wave:")
    A("s_mov_b64 exec, vcc")
    A(f"ds_write_b32 v{vZero}, v{vOne} offset:{L_FLAG}")
    A("s_mov_b64 exec, -1")
    late_tf = int(opt.get("late_tf", 2))
    if late_tf < 2:
        A(tf_poll)
    la = vSoff
    A(f"""
    s_mul_i32 s{sSW}, s{sW}, {STRW}
    s_add_u32 s{sSW}, s{sSW}, {L_STR}
    v_add_u32 v{vSp}, s{sSW}, v{vH16}
    v_bfe_u32 v{vX + 12}, v{vTid}, 3, 2
    v_bfe_u32 v{vX + 13}, v{vTid}, 1, 1
    v_lshl_add_u32 v{vX + 12}, v{vX + 12}, 1, v{vX + 13}
    v_bfe_u32 v{vX + 13}, v{vTid}, 2, 1
    v_lshl_add_u32 v{vX + 12}, v{vX + 12}, 1, v{vX + 13}
    v_and_b32 v{vX + 13}, 1, v{vTid}
    v_lshl_add_u32 v{vX + 12}, v{vX + 12}, 1, v{vX + 13}
    v_lshl_add_u32 v{vEp}, v{vX + 12}, 2, s{sSW}
    v_bfrev_b32 v{vX + 13}, 2
    v_mov_b32 v{vX + 12}, {N << 18}
    v_lshlrev_b32 v{la}, 1, v{vX + 3}
    v_lshlrev_b32 v{la + 1}, 3, v{vX + 3}
    v_lshrrev_b32 v{la + 2}, 4, v{vX + 3}
    v_lshl_add_u32 v{la + 3}, v{la + 2}, 2, s{sSW}
    """)
    A(f"s_waitcnt vmcnt({1 if late_tf < 2 else 0})")
    stamp(A, opt, "rec")
    histogram(cand)
    A(f"s_cmp_eq_u64 {sr(sMask2, 2)}, 0")
    A("s_cbranch_scc1 Lno_hist2")
    histogram(cand2)
    A("Lno_hist2:")
    A("s_waitcnt vmcnt(0)")
    stamp(A, opt, "hist")
    epf = int(opt.get("epf", 2500))
    assert not (late_tf and pf_lanes)
    if late_tf == 2:
        A(tf_poll)
    elif late_tf:
        A(f"""
        v_lshrrev_b32 v{vX + 11}, 22, v{vTf}
        v_cmp_ne_u32_e64 {sr(sTmp, 2)}, s{sNon}, v{vTf + 1}
        v_cmp_ne_u32 vcc, s{sNon + 1}, v{vX + 11}
        s_or_b64 {sr(sMore, 2)}, vcc, {sr(sTmp, 2)}
        s_cbranch_scc0 Ltf_seen
        {tf_poll}
        Ltf_seen:
        """)
    else:
        tag_wait("tf", vTf, tf_poll)

    def early_features():
        A(f"s_mov_b32 s3, {epf << 18}")
        for rec, key_, rank, so_, eo_, m in cand[:4]:
            A(f"v_cmp_gt_u32 vcc, s3, v{rec}")
            A(f"v_bfe_u32 v{eo_}, v{rec}, 6, 12")
            A(f"v_lshl_add_u32 v{eo_}, v{eo_}, 5, v{vX + 2}")
            A(f"s_and_b64 vcc, vcc, {sr(m, 2)}")
            A("s_or_b64 exec, vcc, 1")
            A(f"buffer_load_dword v{vL + 22}, v{eo_}, {sr(S_EA, 4)}, 0 offen")
            A("s_mov_b64 exec, -1")

    if epf:
        early_features()
    A("s_waitcnt lgkmcnt(0)")
    A("s_barrier")
    stamp(A, opt, "bB")
    c, p, deg, q, inc, g4 = vL, vL + 8, vL + 16, vL + 17, vL + 18, vL + 19
    A(f"ds_read_b128 {vr(c, 4)}, v{la} offset:{L_CNT}")
    A(f"ds_read_b128 {vr(c + 4, 4)}, v{la} offset:{L_CNT + 16}")
    if pf_lanes:
        A(f"""
        s_andn2_b32 s3, s2, 7
        s_add_u32 s3, s3, s{sW}
        s_mul_i32 s3, s3, {pf_lanes * 128}
        {'s_nop 0' if pf_lanes == 64 else f's_bfm_b64 exec, {pf_lanes}, 0'}
        buffer_load_dword v{vL + 22}, v{la + 1}, {sr(S_TAB, 4)}, s3 offen {tab_pol}
        s_mov_b64 exec, -1
        """)
    A(f"""
    s_mov_b32 s{sQ2}, {L_SO}
    s_waitcnt lgkmcnt(1)
    v_add_u32 v{p + 2}, v{c}, v{c + 1}
    v_add3_u32 v{p + 4}, v{p + 2}, v{c + 2}, v{c + 3}
    s_waitcnt lgkmcnt(0)
    v_add3_u32 v{p + 6}, v{p + 4}, v{c + 4}, v{c + 5}
    v_add3_u32 v{deg}, v{p + 6}, v{c + 6}, v{c + 7}
    v_add_u32 v{q}, 3, v{deg}
    v_lshrrev_b32 v{inc}, 2, v{q}
    """)
    wave_scan(A, inc, fill=[
        [f"v_lshrrev_b32 v{q}, 2, v{q}", f"v_add_u32 v{p + 3}, v{p + 2}, v{c + 2}"],
        [f"v_add_u32 v{p + 5}, v{p + 4}, v{c + 4}", f"v_add_u32 v{p + 7}, v{p + 6}, v{c + 6}"],
        [f"v_add_u32 v{deg}, s{sW}, v{deg}", f"v_lshlrev_b32 v{c + 1}, 2, v{q}"],
        [f"v_cmp_lt_u32_e64 {sr(sNext, 2)}, v{deg}, v{c + 1}", "s_nop 0"]])
    A(f"v_sub_u32 v{g4}, v{inc}, v{q}")
    A(f"v_readlane_b32 s3, v{inc}, 63")
    A(f"v_lshl_add_u32 v{p}, v{g4}, 5, s{sQ2}")
    A(f"v_lshl_add_u32 v{p + 1}, v{c}, 3, v{p}")
    for i in range(2, 8):
        A(f"v_lshl_add_u32 v{p + i}, v{p + i}, 3, v{p}")
        if i in (3, 7):
            A(f"ds_write_b128 v{la}, {vr(p + i - 3, 4)} offset:{L_BASE + 4 * (i - 3)}")
    for cd in cand:
        A(f"ds_read_b32 v{cd[1]}, v{cd[1]} offset:{L_BASE}")
    A(f"""
    s_mul_i32 s{sLw}, s3, s{sW}
    s_add_u32 s{sRem}, s{sLw}, s3
    s_lshr_b32 s{sLw}, s{sLw}, 3
    s_lshr_b32 s{sRem}, s{sRem}, 3
    v_cmp_gt_u32_e64 {sr(sTmp, 2)}, s{sLw}, v{g4}
    v_cmp_gt_u32 vcc, s{sRem}, v{g4}
    v_lshl_add_u32 v{deg}, v{deg}, 3, v{p}
    s_bcnt1_i32_b64 s{sF0}, {sr(sTmp, 2)}
    s_bcnt1_i32_b64 s{sOwn}, vcc
    s_cmp_eq_u32 s{sW}, 7
    s_cselect_b32 s{sOwn}, s{sNn}, s{sOwn}
    s_sub_u32 s{sOwn}, s{sOwn}, s{sF0}
    s_sub_u32 s{sRem}, s{sRem}, s{sLw}
    s_waitcnt lgkmcnt(0)
    """)
    stamp(A, opt, "scan2")
    place(cand)
    A(f"s_cmp_eq_u64 {sr(sMask2, 2)}, 0")
    A("s_cbranch_scc1 Lno_place2")
    for cd in cand2:
        A(f"ds_read_b32 v{cd[1]}, v{cd[1]} offset:{L_BASE}")
    A("s_waitcnt lgkmcnt(0)")
    place(cand2)
    A("Lno_place2:")
    en, so, eo, key, cn, pos, t = vL, vL + 8, vL + 12, vL + 20, vL + 24, vL + 21, vL + 26
    A(f"""
    s_mov_b64 exec, {sr(sNext, 2)}
    ds_write_b64 v{deg}, {vr(vX + 12, 2)}
    s_mov_b64 exec, -1
    """)
    if late_tf:
        if late_tf < 2:
            A(f"s_cmp_eq_u64 {sr(sMore, 2)}, 0")
            A("s_cbranch_scc1 Ltf_ok")
        A(f"s_waitcnt vmcnt({4 if epf else 0})")
        tag_wait("tf", vTf, tf_poll)
    A(f"""
    s_sub_u32 s3, s{sOwn}, 1
    s_sub_u32 s{sTmp}, s{sRem}, 1
    s_cmp_gt_u32 s{sTmp}, 63
    s_cselect_b32 s3, 8, s3
    s_cmp_gt_u32 s3, 7
    s_cselect_b64 exec, 1, 0
    ds_write_b32 v{vZero}, v{vOne} offset:{L_FLAG}
    s_mov_b64 exec, -1
    s_lshl_b32 s3, s{sLw}, 5
    v_add_u32 v{t}, s3, v{la}
    v_cmp_le_u32_e64 {sr(sTmp, 2)}, s{sRem}, v{la + 2}
    s_sub_u32 s{sQ1}, s{sF0}, 1
    s_mul_i32 s{sQ2}, s{sQ1}, 528
    s_add_u32 s{sQ2}, s{sQ2}, {L_TA}
    s_mov_b32 s{sQ3}, 0xfffffe00
    s_waitcnt lgkmcnt(0)
    s_barrier
    ds_read_b128 {vr(en, 4)}, v{t} offset:{L_SO}
    ds_read_b32 v{t + 3}, v{vZero} offset:{L_FLAG}
    ds_read_b128 {vr(en + 4, 4)}, v{t} offset:{L_SO + 16}
    v_cndmask_b32_e64 v{vInv}, 0, v{vX + 13}, {sr(sTmp, 2)}
    v_add_u32 v{vEb}, s{sQ2}, v{vLo}
    v_mov_b64 {vr(cn, 2)}, 1
    s_waitcnt lgkmcnt({2 if int(opt.get("kent", 1)) < 2 else 0})
    v_lshrrev_b32 v{key}, 26, v{en + 2 * int(opt.get("kent", 1))}
    v_and_b32 v{key}, 56, v{key}
    v_cndmask_b32_e64 v{key}, v{key}, 56, {sr(sTmp, 2)}
    s_waitcnt lgkmcnt(1)
    v_readfirstlane_b32 s3, v{t + 3}
    v_lshlrev_b64 {vr(cn, 2)}, v{key}, {vr(cn, 2)}
    v_and_b32 v{t + 3}, 63, v{en}
    s_cmp_lg_u32 s3, 0
    s_cbranch_scc1 Lslow_entry
    s_waitcnt lgkmcnt(0)
    """)
    stamp(A, opt, "bD")
    fillers = [f"v_subrev_u32 v{t + 3}, s{sQ1}, v{t + 3}", f"v_mul_u32_u24 v{t + 3}, 12, v{t + 3}"]
    fillers += [f"v_lshrrev_b32 v{so + i}, 9, v{en + 2 * i}" for i in range(4)]
    for k, d in enumerate(WAVE_SCAN):
        A(f"v_add_u32_dpp v{cn}, v{cn}, v{cn} {d} bank_mask:0xf")
        A(f"v_add_u32_dpp v{cn + 1}, v{cn + 1}, v{cn + 1} {d} bank_mask:0xf")
        A(fillers[k])
    A(f"v_readlane_b32 s{sTmp}, v{cn}, 63")
    A(f"v_readlane_b32 s{sTmp + 1}, v{cn + 1}, 63")
    for i in range(4):
        A(f"v_bfe_u32 v{eo + i}, v{en + 2 * i}, 6, 12")
    A(f"""
    s_mul_i32 s3, s{sTmp}, 0x01010101
    s_mul_i32 s{sTmp + 1}, s{sTmp + 1}, 0x01010100
    s_lshl_b32 s{sTmp}, s3, 8
    s_lshr_b32 s3, s3, 24
    s_mul_i32 s3, s3, 0x01010101
    s_add_u32 s{sTmp + 1}, s{sTmp + 1}, s3
    v_lshl_add_u64 {vr(cn, 2)}, {vr(cn, 2)}, 0, {sr(sTmp, 2)}
    s_sub_u32 s3, s{sSW}, 16
    v_lshrrev_b64 {vr(cn, 2)}, v{key}, {vr(cn, 2)}
    """)
    for i in range(4):
        A(f"v_lshl_add_u32 v{eo + i}, v{eo + i}, 5, v{en + 2 * i + 1}")
    A(f"v_and_b32 v{pos}, 0xff, v{cn}")
    for i in range(4):
        A(f"v_or_b32 v{eo + i}, v{eo + i}, v{vInv}")
    A(f"v_lshl_add_u32 v{t}, v{pos}, 4, s3")
    A(f"ds_write_b128 v{t}, {vr(eo, 4)} offset:1152")
    A(f"ds_read_b32 v{vEo}, v{vEp} offset:1152")
    for i in range(4):
        A(f"v_and_or_b32 v{so + i}, v{so + i}, s{sQ3}, v{vInv}")
    A(f"""
    v_and_b32 v{t + 1}, 1, v{pos}
    v_lshl_add_u32 v{t + 1}, v{t + 1}, 3, v{t}
    v_subrev_u32 v{t + 1}, 8, v{t + 1}
    ds_write2_b64 v{t + 1}, {vr(so, 2)}, {vr(so + 2, 2)} offset0:0 offset1:2
    ds_read_b128 {vr(vT, 4)}, v{vSp}
    ds_read_b128 {vr(vSo, 4)}, v{vSp} offset:32
    v_add_u32 v{t + 2}, s{sSW}, v{pos}
    ds_write_b8 v{t + 2}, v{t + 3} offset:2303
    ds_read_b32 v{vSb}, v{la + 3} offset:2304
    s_waitcnt lgkmcnt(5)
    v_add_u32 v{vEo}, v{vEo}, v{vH16}
    buffer_load_dwordx4 {vr(vEA, 4)}, v{vEo}, {sr(S_EA, 4)}, 0 offen {ea_pol}
    """)
    dist = int(opt.get("dist", 4))
    for u in range(dist):
        src = (vT, vT + 2, vSo, vSo + 2)[u]
        if u in (0, 2):
            A(f"s_waitcnt lgkmcnt({(3, 1)[u // 2]})")
        A(f"v_lshl_add_u64 {vr(src, 2)}, {vr(src, 2)}, 0, {vr(vLo, 2)}")
        A(f"buffer_load_dwordx4 {vr(vL + 8 * u, 4)}, v{src}, {sr(S_TAB, 4)}, 0 offen {tab_pol}")
        A(f"buffer_load_dwordx4 {vr(vL + 8 * u + 4, 4)}, v{src + 1}, {sr(S_TAB, 4)}, 0 offen {tab_pol}")
    stamp(A, opt, "prim")
    eps = 1e-6 / c0
    wc_reads()
    A(f"s_and_b32 s3, s{sW}, 4")
    A(f"v_mov_b32 v{vEad}, s3")
    A("s_cbranch_scc1 Lfactors_made")
    node_exponents()
    for i in range(32):
        A(f"v_exp_f32 v{vG + i}, v{vG + i}")
    A("Lfactors_made:")
    node_rows()
    A(f"""
    s_mov_b64 exec, 1
    ds_add_u32 v{vEad}, v{vOne} offset:{L_FLAG + 8}
    s_mov_b64 exec, -1
    s_waitcnt lgkmcnt(9)
    """)
    wc_fragments()
    A(f"""
    s_waitcnt lgkmcnt(0)
    s_mov_b32 s{sTmp}, {hex(f32(eps / 2))}
    s_mov_b32 s{sTmp + 1}, {hex(f32(eps / 2))}
    """)
    for sl_ in range(NS):
        for j in range(0, 8, 2):
            A(f"v_mov_b64 {vr(vSl + 12 * sl_ + j, 2)}, {sr(sTmp, 2) if sl_ and j >= 4 else 0}")
    eA1, eA2, eA3, eA4, eFl, eOne = 248, 249, 250, 251, 252, 253
    sOut, sLast = sOvf, sMor
    A(f"""
    v_add_u32 v{eA1}, s{sSW}, v{vX + 3}
    s_mul_i32 s3, s{sF0}, 528
    s_add_u32 s3, s3, {L_TU}
    v_mul_u32_u24 v{eA2}, 33, v{vH16}
    v_add3_u32 v{eA2}, v{eA2}, v{vLo}, s3
    s_mul_i32 s3, s{sF0}, 272
    s_add_u32 s3, s3, {L_X}
    v_mul_u32_u24 v{eA3}, 17, v{vH16}
    v_lshrrev_b32 v{eA4}, 1, v{vLo}
    v_add3_u32 v{eA3}, v{eA3}, v{eA4}, s3
    v_lshl_add_u32 v{eA4}, v{vH16}, 4, v{eA4}
    s_lshl_b32 s3, s{sW}, 2
    v_mov_b32 v{eFl}, s3
    v_mov_b32 v{eOne}, {L_FLAG + 12}
    s_add_u32 s{sOut}, s{sN0}, s{sF0}
    s_lshl_b32 s{sOut}, s{sOut}, 8
    s_mul_i32 s{sLast}, s{sOwn}, 12
    """)
    A("Lfactors:")
    A(f"ds_read_b32 v{vEad}, v{vZero} offset:{L_FLAG + 8}")
    for sl_ in range(NS):
        A(f"ds_read_b128 {vr(vSl + 12 * sl_ + 8, 4)}, v{vEb} offset:{528 * sl_}")
    A("s_waitcnt lgkmcnt(0)")
    A(f"v_cmp_gt_u32 vcc, 4, v{vEad}")
    A("s_cbranch_vccnz Lfactors")
    ea_at = int(opt.get("ea_at", 3))
    prio = opt.get("prio", "alt")
    A(f"""
    s_waitcnt lgkmcnt(0)
    v_readlane_b32 s{sSl0}, v{vSb}, 0
    v_readlane_b32 s{sSl1}, v{vSb}, 1
    s_mov_b32 s{sLn}, 2
    s_mov_b32 s{sLn + 1}, 3
    """)
    if prio == "quart":
        A(f"""
        s_mul_i32 s{sQ1}, s{sRem}, 3
        s_lshr_b32 s{sQ1}, s{sQ1}, 2
        s_lshr_b32 s{sQ2}, s{sRem}, 1
        s_lshr_b32 s{sQ3}, s{sRem}, 2
        """)
    else:
        first_drop = [int(x) for x in opt.get("drop", "8,16").split(",")]
        A(f"""
        s_cmp_lt_u32 s{sW}, 4
        s_cselect_b32 s3, {first_drop[0]}, {first_drop[1]}
        s_sub_i32 s{sQ1}, s{sRem}, s3
        s_sub_i32 s{sQ2}, s{sQ1}, {int(opt.get("dstep", 16))}
        s_sub_i32 s{sQ3}, s{sQ2}, {int(opt.get("dstep", 16))}
        """)
        if opt.get("dend"):
            e0, e1 = (int(x) for x in opt["dend"].split(","))
            A(f"""
            s_cmp_lt_u32 s{sW}, 4
            s_cselect_b32 s{sQ3}, {e0}, {e1}
            s_add_u32 s{sQ2}, s{sQ3}, {int(opt.get("dstep", 16))}
            s_add_u32 s{sQ1}, s{sQ2}, {int(opt.get("dstep", 16))}
            """)
    thr_on = opt.get("thr")
    if thr_on:
        ref, mul, cut = (int(x) for x in thr_on.split(","))
        A(f"""
        s_sub_i32 s3, {ref}, s{sRem}
        s_mul_i32 s3, s3, {mul}
        s_sub_i32 s{sTi}, s{sRem}, s3
        """)
    fair = int(opt.get("fair", 0))
    vFa, vFi, vFr = 248, 249, 250
    if fair:
        A(f"""
        s_and_b32 s3, s{sW}, 3
        s_lshl_b32 s3, s3, 2
        v_mov_b32 v{vFa}, s3
        s_cmp_lt_u32 s{sW}, 4
        s_cselect_b32 s{sQ1}, 1, -1
        v_mov_b32 v{vFi}, s{sQ1}
        """)
    A("s_setprio 3")
    A(f"s_waitcnt vmcnt({2 * dist})")
    stamp(A, opt, "first")

    def mfma(j):
        return f"v_mfma_f32_32x32x16_bf16 {vr(vD + 16 * j, 16)}, {vr(vEA, 4)}, {vr(vWC + 4 * j, 4)}, 0"

    for j in range(4):
        A(mfma(j))
    A("s_nop 8")
    A(f"s_cmp_gt_u32 s{sRem}, 8")
    A("s_cbranch_scc0 Llast")

    def step(u, last, q):
        La, Lb = vL + 8 * (u & 3), vL + 8 * (u & 3) + 4
        a, b = vT, vT + 4
        sl = (sSl0, sSl1)[u >> 2]
        nv = u + dist
        prefetch = not (last and nv >= 8)
        check = fair and u % fair == 0
        need = [u] + (["E"] if u == 7 and not last else [])
        A(f"s_waitcnt vmcnt({len(q) - 1 - max(i for i, x in enumerate(q) if x in need)})")
        if thr_on and not last:
            A(f"s_cbranch_vccz Lthr{u}")
            A(f"s_waitcnt vmcnt({len(q) - 1 - max(i for i, x in enumerate(q) if x in need + [u + cut])})")
            A(f"Lthr{u}:")
        lds = (prefetch and nv % 2 == 0) or (u == ea_at and not last) or check
        if prefetch and nv % 2 == 0:
            A(f"ds_read_b128 {vr(vSo, 4)}, v{vSp} offset:{16 * nv}")
        if check:
            A("s_nop 0")
            A("s_mov_b64 exec, 1")
            A(f"ds_add_rtn_u32 v{vFr}, v{vFa}, v{vFi} offset:{L_FLAG + 32}")
            A("s_mov_b64 exec, -1")
            A("s_nop 0")
        if u == ea_at and not last:
            A(f"ds_read_b32 v{vEo}, v{vEp} offset:{1152 + 128}")

        def mix(j, hb):
            return (f"v_fma_mix_f32 v{(a, b)[hb] + j}, v{vD + 16 * j + 2 * u + hb}, s{sNl}, v{(La, Lb)[hb] + j} "
                    "op_sel_hi:[0,0,1]")

        if u == 7 and not last:
            for j in range(4):
                A(mix(j, 0))
                A(mix(j, 1))
                if j:
                    A(f"v_exp_f32 v{a + j - 1}, v{a + j - 1}")
                    A(f"v_exp_f32 v{b + j - 1}, v{b + j - 1}")
                A(mfma(j))
            A(f"v_exp_f32{'' if lds else '_e64'} v{a + 3}, v{a + 3}")
            A(f"v_exp_f32 v{b + 3}, v{b + 3}")
        else:
            for hb in range(2):
                for j in range(4):
                    A(mix(j, hb))
            for j in range(8):
                A(f"v_exp_f32{'_e64' if j == 0 and not lds else ''} v{a + j}, v{a + j}")
        if lds:
            A("s_waitcnt lgkmcnt(0)")
        A(f"s_set_gpr_idx_on s{sl}, gpr_idx(SRC1)")
        for j in range(0, 8, 2):
            A(f"v_pk_fma_f32 {vr(a + j, 2)}, {vr(a + j, 2)}, {vr(vSl + 8 + (j & 3), 2)}, {sr(sC0, 2)} clamp")
        A("s_set_gpr_idx_mode gpr_idx()")
        A(f"s_lshr_b32 s{sl}, s{sl}, 8")
        if check:
            A(f"v_readlane_b32 s3, v{vFr}, 0")
        if u == ea_at and not last:
            A(f"v_add_u32_e64 v{vEo}, v{vEo}, v{vH16}")
            A(f"buffer_load_dwordx4 {vr(vEA, 4)}, v{vEo}, {sr(S_EA, 4)}, 0 offen {ea_pol}")
            q.append("E")
        for j in (0, 2):
            A(f"v_pk_mul_f32 {vr(La + j, 2)}, {vr(La + j, 2)}, {vr(b + j, 2)}")
        if check:
            tag = f"Lfair{u}{'l' if last else ''}"
            A(f"""
            s_mul_i32 s3, s3, s{sQ1}
            s_setprio 0
            s_cmp_ge_i32 s3, 0
            s_cbranch_scc1 {tag}
            s_setprio 2
            s_nop 0
            {tag}:
            """)
        so2 = vSo + 2 * (nv & 1)
        if prefetch:
            A(f"v_lshl_add_u64 {vr(so2, 2)}, {vr(so2, 2)}, 0, {vr(vLo, 2)}")
        for j in (0, 2):
            A(f"v_pk_fma_f32 {vr(La + j, 2)}, {vr(Lb + j, 2)}, {vr(a + j, 2)}, {vr(La + j, 2)}")
        for j in (0, 2):
            A(f"v_pk_add_f32 {vr(Lb + j, 2)}, {vr(a + j, 2)}, {vr(b + j, 2)}")
        for j in (0, 2):
            A(f"v_pk_mul_f32 {vr(a + j, 2)}, {vr(a + j, 2)}, {vr(b + j, 2)}")
        for j in range(4):
            A(f"v_rcp_f32{'_e64' if j == 0 else ''} v{a + j}, v{a + j}")
        A("s_set_gpr_idx_mode gpr_idx(SRC2,DST)")
        for j in (0, 2):
            A(f"v_pk_fma_f32 {vr(vSl + j, 2)}, {vr(La + j, 2)}, {vr(a + j, 2)}, {vr(vSl + j, 2)}")
            A(f"v_pk_fma_f32 {vr(vSl + 4 + j, 2)}, {vr(Lb + j, 2)}, {vr(a + j, 2)}, {vr(vSl + 4 + j, 2)}")
        if prefetch:
            A(f"buffer_load_dwordx4 {vr(vL + 8 * (nv & 3), 4)}, v{so2}, {sr(S_TAB, 4)}, 0 offen {tab_pol}")
            A(f"buffer_load_dwordx4 {vr(vL + 8 * (nv & 3) + 4, 4)}, v{so2 + 1}, {sr(S_TAB, 4)}, 0 offen {tab_pol}")
            q += [nv] * 2
        A("s_set_gpr_idx_off")

    assert 0 <= ea_at < 7
    A.note("""main loop: eight groups per tile. a = min(2^-48 * (1 + exp(-gate)), 1) for edges a and b of each half-wave:
    num += (Va * b + Vb * a) / (a * b), den += (a + b) / (a * b)""")
    A(".p2align 6")
    A("Ltile:")
    A(f"s_sub_u32 s{sRem}, s{sRem}, 8")
    if thr_on:
        A(f"s_cmp_ge_i32 s{sRem}, s{sTi}")
        A("s_cselect_b64 vcc, -1, 0")
    q = [0, 0, 1, 1, 2, 2, 3, 3][:2 * dist]
    for u in range(8):
        step(u, False, q)
        if u == 3 and int(opt.get("pmid", 0)):
            A(f"s_add_u32 s3, s{sRem}, 4")
            for k, sq in enumerate((sQ1, sQ2, sQ3)):
                A(f"s_cmp_le_i32 s3, s{sq}")
                A("s_cbranch_scc0 Lprio_mid")
                A(f"s_setprio {2 - k}")
            A("Lprio_mid:")
    A(f"""
    s_nop 0
    v_readlane_b32 s{sSl0}, v{vSb}, s{sLn}
    v_readlane_b32 s{sSl1}, v{vSb}, s{sLn + 1}
    v_add_u32 v{vSp}, 0x80, v{vSp}
    v_add_u32 v{vEp}, 0x80, v{vEp}
    s_add_u32 s{sLn}, s{sLn}, 2
    s_add_u32 s{sLn + 1}, s{sLn + 1}, 2
    """)
    if opt.get("tilestamps"):
        for k in range(2, 6):
            A(f"s_cmp_lg_u32 s{sLn}, {2 * k + 2}")
            A(f"s_cbranch_scc1 Lts{k}")
            stamp(A, opt, f"tile{k}")
            A(f"Lts{k}:")
    if prio != "none" and not fair:
        for k, sq in enumerate((sQ1, sQ2, sQ3)):
            A(f"s_cmp_le_i32 s{sRem}, s{sq}")
            A("s_cbranch_scc0 Lprio_done")
            A(f"s_setprio {2 - k}")
        A("Lprio_done:")
    A(f"s_cmp_gt_u32 s{sRem}, 8")
    A("s_cbranch_scc1 Ltile")
    A(".p2align 3")
    A(f"""
    Llast:
    ds_read_b32 v{vEad}, v{eOne}
    s_waitcnt lgkmcnt(0)
    v_cmp_gt_u32 vcc, 4, v{vEad}
    s_cbranch_vccnz Llast
    """)
    q = [0, 0, 1, 1, 2, 2, 3, 3][:2 * dist]
    for u in range(8):
        step(u, True, q)
        if u < 7:
            A(f"s_cmp_le_u32 s{sRem}, {u + 1}")
            A("s_cbranch_scc1 Lmain_done")
    A("Lmain_done:")
    stamp(A, opt, "done")

    def finalize(a0, o, a1, u0, x0, addr, soff, pre_store, pre_rows=""):
        for j in range(4):
            A(f"v_permlane32_swap_b32 v{a0 + j}, v{a1 + j}")
            A(f"v_permlane32_swap_b32 v{a0 + o + j}, v{a1 + o + j}")
        for j in (o, o + 2, 0, 2):
            A(f"v_pk_add_f32 {vr(a0 + j, 2)}, {vr(a0 + j, 2)}, {vr(a1 + j, 2)}")
        for j in range(4):
            A(f"v_rcp_f32 v{a0 + o + j}, v{a0 + o + j}")
        A(pre_rows)
        for j in (0, 2):
            A(f"v_pk_fma_f32 {vr(a0 + j, 2)}, {vr(a0 + j, 2)}, {vr(a0 + o + j, 2)}, {vr(u0 + j, 2)}")
        A(f"v_cvt_pk_bf16_f32 v{a0}, v{a0}, v{a0 + 1}")
        A(f"v_cvt_pk_bf16_f32 v{a0 + 1}, v{a0 + 2}, v{a0 + 3}")
        A(f"v_pk_max_f16 v{a0}, v{a0}, v{x0}")
        A(f"v_pk_max_f16 v{a0 + 1}, v{a0 + 1}, v{x0 + 1}")
        A(pre_store)
        A(f"buffer_store_dwordx2 {vr(a0, 2)}, v{addr}, {sr(S_OUT, 4)}, s{soff} offen {opt.get('out_pol', 'sc1 nt')}")

    vU, vXr, vA1, vA2, vA3, vCy = vD, vD + 16, vD + 24, vD + 25, vD + 26, vD + 32
    carry_reads = f"""
    ds_read_b32 v{vEad}, v{eFl} offset:{L_FLAG + 64 + 4}
    ds_read_b128 {vr(vCy, 4)}, v{eA1} offset:{STRW}
    ds_read_b128 {vr(vCy + 4, 4)}, v{eA1} offset:{STRW + 1024}
    """
    A(f"""
    ds_write_b128 v{eA1}, {vr(vSl, 4)}
    ds_write_b128 v{eA1}, {vr(vSl + 4, 4)} offset:1024
    ds_write_b32 v{eFl}, v{eOne} offset:{L_FLAG + 64}
    """)
    for pr in range(4):
        A(f"ds_read_b128 {vr(vU + 4 * pr, 4)}, v{eA2} offset:{1056 * pr}")
        A(f"ds_read_b64 {vr(vXr + 2 * pr, 2)}, v{eA3} offset:{544 * pr}")
    A(carry_reads)
    for pr in range(4):
        if pr < 3:
            A(f"s_cmp_gt_u32 s{sOwn}, {2 * pr + 2}")
            A(f"s_cbranch_scc1 Lfin{pr}")
        A(f"""
        s_cmp_eq_u32 s{sW}, 7
        s_cbranch_scc1 Lfin{pr}
        Lcarry{pr}:
        s_waitcnt lgkmcnt(0)
        v_cmp_eq_u32 vcc, 0, v{vEad}
        s_cbranch_vccz Lcarried{pr}
        s_sleep 1
        {carry_reads}
        s_branch Lcarry{pr}
        Lcarried{pr}:
        s_set_gpr_idx_on s{sLast}, gpr_idx(SRC0,DST)
        """)
        for j in range(0, 8, 2):
            A(f"v_pk_add_f32 {vr(vSl + j, 2)}, {vr(vSl + j, 2)}, {vr(vCy + j, 2)}")
        A("s_set_gpr_idx_off")
        A("s_nop 1")
        A(f"Lfin{pr}:")
        finalize(vSl + 12 * (2 * pr + 1), 4, vSl + 12 * (2 * pr + 2), vU + 4 * pr, vXr + 2 * pr, eA4, sOut,
                 f"s_cmp_gt_u32 s{sOwn}, {2 * pr + 1}\ns_cselect_b32 exec_hi, -1, 0", "" if pr else "s_waitcnt lgkmcnt(0)")
        if pr < 3:
            A(f"s_add_u32 s{sOut}, s{sOut}, 512")
            A(f"s_cmp_gt_u32 s{sOwn}, {2 * pr + 2}")
            A("s_cbranch_scc0 Lk2_done")
    A("Lk2_done:")
    if opt.get("xcc"):
        A("s_getreg_b32 s4, hwreg(HW_REG_XCC_ID, 0, 4)")
        A("s_sub_u32 s4, s4, s2")
        A("s_and_b32 s4, s4, 7")
        A("s_mul_i32 s4, s4, 100")
    stamp_flush(A, opt, 8, 0x20000, vTid)
    if opt.get("spin"):
        A("""
        Lspin:
        s_memrealtime s[42:43]
        s_waitcnt lgkmcnt(0)
        s_sub_u32 s42, s42, s100
        s_cmp_lt_u32 s42, 10000
        s_cbranch_scc1 Lspin
        """)
    A("Lk2_exit:")
    A("s_endpgm")

    NU = 7
    vAcc, vAn = 0, 56
    vLs = [vL + 8 * u for u in range(4)] + [84 + 8 * u for u in range(3)]
    vP, vErr, vQ, vCaddr, vUaddr = 245, 252, 253, 254, 255
    A("Lcold_code:")
    A("Lslow_entry:")
    A(f"s_cmp_ge_u32 s{sW}, 4")
    A("s_cbranch_scc1 Lg_rows")
    node_exponents()
    A("Lg_rows:")
    node_rows()
    wc_reads()
    A("s_waitcnt lgkmcnt(0)")
    wc_fragments()
    A(f"""
    s_waitcnt vmcnt(0) lgkmcnt(0)
    s_barrier
    v_lshlrev_b32 v{vX + 11}, 2, v{vTid}
    ds_write_b32 v{vX + 11}, v{vZero} offset:{L_CNT}
    s_mul_i32 s3, s{sW}, 528
    s_add_u32 s3, s3, {L_TA}
    v_add_u32 v{vX + 11}, s3, v{vLo}
    """)
    for u in range(NU):
        A(f"ds_read_b128 {vr(vAn + 4 * u, 4)}, v{vX + 11} offset:{8 * 528 * u}")
    A(f"s_mov_b32 s{sTmp}, {hex(f32(eps / 2))}")
    A(f"s_mov_b32 s{sTmp + 1}, {hex(f32(eps / 2))}")
    for i in range(0, 8 * NU, 2):
        A(f"v_mov_b64 {vr(vAcc + i, 2)}, {sr(sTmp, 2) if i & 4 else 0}")
    A(f"""
    v_bfe_u32 v{vX + 11}, v{vTid}, 3, 3
    v_and_b32 v{vX + 12}, 7, v{vTid}
    v_lshlrev_b32 v{vX + 12}, 2, v{vX + 12}
    v_lshl_add_u32 v{vX + 12}, v{vX + 11}, 8, v{vX + 12}
    s_lshl_b32 s3, s{sW}, 5
    v_add_u32 v{vCaddr}, s3, v{vX + 12}
    v_bfe_u32 v{vX + 11}, v{vTid}, 3, 2
    v_bfe_u32 v{vX + 12}, v{vTid}, 1, 1
    v_lshl_add_u32 v{vX + 11}, v{vX + 11}, 1, v{vX + 12}
    v_lshlrev_b32 v{vUaddr}, 5, v{vX + 11}
    Lbatch:
    """)
    batch_masks(16)
    A("Lround:")
    rec_addr()
    rec_loads()
    A(f"""
    v_mov_b32 v{vZero}, 0
    v_mov_b32 v{vOne}, 1
    ds_write_b32 v{vZero}, v{vZero} offset:{L_FLAG}
    ds_write_b32 v{vZero}, v{vZero} offset:{L_FLAG + 4}
    s_waitcnt lgkmcnt(0)
    s_barrier
    s_mov_b64 exec, {sr(sMore, 2)}
    ds_write_b32 v{vZero}, v{vOne} offset:{L_FLAG + 4}
    s_mov_b64 exec, -1
    s_waitcnt vmcnt(0)
    """)
    histogram(cand)
    for rec, key_, rank, so_, eo_, m in cand:
        A(f"v_lshrrev_b32 v{so_}, 18, v{rec}")
        A(f"v_bfe_u32 v{eo_}, v{rec}, 6, 12")
        A(f"v_lshlrev_b32 v{so_}, 9, v{so_}")
        A(f"v_lshl_add_u32 v{eo_}, v{eo_}, 5, v{vX + 2}")
    A("s_waitcnt lgkmcnt(0)")
    A("s_barrier")
    c, inc, deg, q, t0, t1 = vX + 12, vX + 13, vX + 14, vX + 15, vX + 16, vX + 17
    A(f"ds_read_b32 v{c}, v{vCaddr} offset:{L_CNT}")
    A(f"v_lshrrev_b32 v{t0}, 5, v{vCaddr}")
    A(f"v_lshlrev_b32 v{t0}, 6, v{t0}")
    A("s_waitcnt lgkmcnt(0)")
    A(f"ds_write_b32 v{vCaddr}, v{vZero} offset:{L_CNT}")
    A(f"v_mov_b32 v{inc}, v{c}")
    for d in (1, 2, 4, 8):
        A("s_nop 1")
        A(f"v_add_u32_dpp v{inc}, v{inc}, v{inc} row_shr:{d} row_mask:0xf bank_mask:0xf")
    A(f"""
    v_mov_b32 v{t1}, 0
    s_nop 0
    v_mov_b32_dpp v{deg}, v{inc} row_newbcast:7 row_mask:0xf bank_mask:0x3
    v_mov_b32_dpp v{t1}, v{inc} row_newbcast:7 row_mask:0xf bank_mask:0xc
    v_mov_b32_dpp v{deg}, v{inc} row_newbcast:15 row_mask:0xf bank_mask:0xc
    v_sub_u32 v{inc}, v{inc}, v{t1}
    v_sub_u32 v{deg}, v{deg}, v{t1}
    v_sub_u32 v{inc}, v{inc}, v{c}
    v_add_u32 v{inc}, v{inc}, v{t0}
    ds_write_b32 v{vCaddr}, v{inc} offset:{L_BASE}
    v_cmp_lt_u32 vcc, 64, v{deg}
    v_min_u32 v{deg}, 64, v{deg}
    v_add_u32 v{q}, 3, v{deg}
    v_lshrrev_b32 v{q}, 2, v{q}
    s_mov_b64 exec, vcc
    ds_write_b32 v{vZero}, v{vOne} offset:{L_FLAG}
    s_mov_b64 exec, -1
    ds_bpermute_b32 v{vQ}, v{vUaddr}, v{q}
    v_and_b32 v{c}, 7, v{vTid}
    v_add_u32 v{c}, v{c}, v{deg}
    v_lshlrev_b32 v{t1}, 2, v{q}
    v_cmp_lt_u32 vcc, v{c}, v{t1}
    v_add_lshl_u32 v{c}, v{c}, v{t0}, 2
    v_mov_b32 v{t0}, {TAB_BYTES}
    v_bfrev_b32 v{t1}, 2
    s_mov_b64 exec, vcc
    ds_write_b32 v{c}, v{t0} offset:{L_SO}
    ds_write_b32 v{c}, v{t1} offset:{L_EO}
    s_mov_b64 exec, -1
    v_max_u32_dpp v{q}, v{q}, v{q} row_ror:8 row_mask:0xf bank_mask:0xf
    s_nop 0
    v_readlane_b32 s{sT}, v{q}, 0
    v_readlane_b32 s3, v{q}, 16
    v_readlane_b32 s{sTmp}, v{q}, 32
    v_readlane_b32 s{sTmp + 1}, v{q}, 48
    s_waitcnt lgkmcnt(0)
    s_barrier
    ds_read_b64 {vr(vX + 12, 2)}, v{vZero} offset:{L_FLAG}
    """)
    for i in range(8):
        A(f"ds_read_b32 v{vKey + i}, v{vKey + i} offset:{L_BASE}")
    A(f"""
    s_max_u32 s{sT}, s{sT}, s3
    s_max_u32 s{sTmp}, s{sTmp}, s{sTmp + 1}
    s_max_u32 s{sT}, s{sT}, s{sTmp}
    s_waitcnt lgkmcnt(0)
    v_readfirstlane_b32 s{sOvf}, v{vX + 12}
    v_readfirstlane_b32 s{sMor}, v{vX + 13}
    """)
    for i in range(8):
        A(f"v_and_b32 v{vX + 12}, 63, v{vRec + i}")
        A(f"v_add_u32 v{vKey + i}, v{vKey + i}, v{vRank + i}")
        A(f"v_lshl_add_u32 v{vX + 12}, v{vX + 12}, 6, 64")
        A(f"v_cmp_lt_u32 vcc, v{vKey + i}, v{vX + 12}")
        A(f"v_lshlrev_b32 v{vKey + i}, 2, v{vKey + i}")
        A(f"s_and_b64 exec, vcc, {sr(sMask + 2 * i, 2)}")
        A(f"ds_write_b32 v{vKey + i}, v{vSoff + i} offset:{L_SO}")
        A(f"ds_write_b32 v{vKey + i}, v{vEoff + i} offset:{L_EO}")
        A(f"s_andn2_b64 {sr(sMask + 2 * i, 2)}, {sr(sMask + 2 * i, 2)}, vcc")
        A("s_mov_b64 exec, -1")
    A(f"""
    s_lshl_b32 s3, s{sW}, 8
    v_lshrrev_b32 v{vX + 12}, 1, v{vH16}
    v_add_u32 v{vP}, s3, v{vX + 12}
    v_and_b32 v{vX + 12}, 1, v{vTid}
    v_bfe_u32 v{vX + 13}, v{vTid}, 2, 1
    v_lshl_add_u32 v{vX + 12}, v{vX + 13}, 1, v{vX + 12}
    v_lshl_add_u32 v{vX + 12}, v{vX + 12}, 2, s3
    v_lshl_add_u32 v{vEp}, v{vUaddr}, 6, v{vX + 12}
    s_lshr_b32 s3, s{sT}, 1
    v_mov_b32 v{vErr}, s3
    s_mov_b64 {sr(sCur, 2)}, 0
    s_mov_b32 s{sTi}, 0
    """)
    for u in range(1, NU):
        A(f"v_mov_b32 v{vP + u}, v{vP}")
    A(f"""
    s_waitcnt lgkmcnt(0)
    s_barrier
    s_cmp_eq_u32 s{sT}, 0
    s_cbranch_scc1 Lg_done
    s_branch Lg_entry
    Lg_tile:
    s_waitcnt vmcnt({2 * NU})
    """)
    for j in range(4):
        A(mfma(j))
    A(f"""
    Lg_entry:
    v_add_u32 v{vErr}, v{vQ}, v{vErr}
    ds_read_b32 v{vEo}, v{vEp} offset:{L_EO}
    ds_read_b64 {vr(vSo, 2)}, v{vP} offset:{L_SO}
    v_cmp_le_u32_e64 {sr(sNext, 2)}, s{sT}, v{vErr}
    s_cmp_lt_u32 s{sTi}, s{sT}
    s_cselect_b64 {sr(sNext, 2)}, {sr(sNext, 2)}, 1
    s_mov_b64 exec, {sr(sNext, 2)}
    v_subrev_u32 v{vErr}, s{sT}, v{vErr}
    v_add_u32 v{vEp}, 16, v{vEp}
    s_waitcnt lgkmcnt(1)
    v_add_u32 v{vEo}, v{vEo}, v{vH16}
    buffer_load_dwordx4 {vr(vEA, 4)}, v{vEo}, {sr(S_EA, 4)}, 0 offen
    s_mov_b64 exec, -1
    """)
    for u in range(NU):
        bit = 8 * (u >> 1) + 2 * (u & 1) + 1
        so2 = vSo + 2 * (u & 1)
        La, Lb = vLs[u], vLs[u] + 4
        a, b = vT, vT + 4
        num, den = vAcc + 8 * u, vAcc + 8 * u + 4
        if u + 1 < NU:
            A(f"ds_read_b64 {vr(vSo + 2 * ((u + 1) & 1), 2)}, v{vP + u + 1} offset:{L_SO + 2048 * (u + 1)}")
        A(f"s_bitcmp1_b32 s{sCur}, {bit}")
        A(f"s_cbranch_scc0 Lg_skip{u}")
        A(f"s_waitcnt vmcnt({2 * NU - 1})")
        for j in range(4):
            A(f"v_fma_mix_f32 v{a + j}, v{vD + 16 * j + 2 * u}, s{sNl}, v{La + j} op_sel_hi:[0,0,1]")
        for j in range(4):
            A(f"v_fma_mix_f32 v{b + j}, v{vD + 16 * j + 2 * u + 1}, s{sNl}, v{Lb + j} op_sel_hi:[0,0,1]")
        for j in range(0, 8, 2):
            A(f"v_pk_add_f32 {vr(a + j, 2)}, {vr(a + j, 2)}, {vr(vAn + 4 * u + (j & 3), 2)}")
        for j in range(8):
            A(f"v_exp_f32_e64 v{a + j}, v{a + j} clamp")
        for j in range(0, 8, 2):
            A(f"v_pk_add_f32 {vr(a + j, 2)}, {vr(a + j, 2)}, {sr(sC0, 2)}")
        for j in (0, 2):
            A(f"v_pk_mul_f32 {vr(La + j, 2)}, {vr(La + j, 2)}, {vr(b + j, 2)}")
        for j in (0, 2):
            A(f"v_pk_fma_f32 {vr(La + j, 2)}, {vr(Lb + j, 2)}, {vr(a + j, 2)}, {vr(La + j, 2)}")
        for j in (0, 2):
            A(f"v_pk_add_f32 {vr(Lb + j, 2)}, {vr(a + j, 2)}, {vr(b + j, 2)}")
        for j in (0, 2):
            A(f"v_pk_mul_f32 {vr(a + j, 2)}, {vr(a + j, 2)}, {vr(b + j, 2)}")
        for j in range(4):
            A(f"v_rcp_f32 v{a + j}, v{a + j}")
        for j in (0, 2):
            A(f"v_pk_fma_f32 {vr(num + j, 2)}, {vr(La + j, 2)}, {vr(a + j, 2)}, {vr(num + j, 2)}")
            A(f"v_pk_fma_f32 {vr(den + j, 2)}, {vr(Lb + j, 2)}, {vr(a + j, 2)}, {vr(den + j, 2)}")
        A(f"Lg_skip{u}:")
        A(f"s_bitcmp1_b32 s{sNext}, {bit}")
        A("s_cselect_b64 exec, -1, 1")
        A(f"s_cselect_b32 s{sInc}, 16, 0")
        A(f"s_waitcnt lgkmcnt({1 if u + 1 < NU else 0})")
        A(f"v_add_u32 v{so2}, v{so2}, v{vLo}")
        A(f"v_add_u32 v{so2 + 1}, v{so2 + 1}, v{vLo}")
        A(f"buffer_load_dwordx4 {vr(La, 4)}, v{so2}, {sr(S_TAB, 4)}, 0 offen {tab_pol}")
        A(f"buffer_load_dwordx4 {vr(Lb, 4)}, v{so2 + 1}, {sr(S_TAB, 4)}, 0 offen {tab_pol}")
        A("s_mov_b64 exec, -1")
        A(f"v_add_u32 v{vP + u}, s{sInc}, v{vP + u}")
    A(f"""
    s_mov_b64 {sr(sCur, 2)}, {sr(sNext, 2)}
    s_add_u32 s{sTi}, s{sTi}, 1
    s_cmp_le_u32 s{sTi}, s{sT}
    s_cbranch_scc1 Lg_tile
    Lg_done:
    s_waitcnt vmcnt(0)
    s_cmp_lg_u32 s{sOvf}, 0
    s_cbranch_scc1 Lround
    s_add_u32 s{sW0}, s{sW0}, 16
    s_cmp_lg_u32 s{sMor}, 0
    s_cbranch_scc1 Lbatch
    s_mul_i32 s3, s{sW}, 528
    s_add_u32 s3, s3, {L_TU}
    v_mul_u32_u24 v{vA2}, {33 * 8}, v{vH16}
    v_add3_u32 v{vA2}, v{vA2}, v{vLo}, s3
    s_mul_i32 s3, s{sW}, 272
    s_add_u32 s3, s3, {L_X}
    v_mul_u32_u24 v{vA3}, {17 * 8}, v{vH16}
    v_lshrrev_b32 v{vLo + 1}, 1, v{vLo}
    v_add3_u32 v{vA3}, v{vA3}, v{vLo + 1}, s3
    """)
    for pr in range(4):
        A(f"ds_read_b128 {vr(vU + 4 * pr, 4)}, v{vA2} offset:{16 * 528 * pr}")
        A(f"ds_read_b64 {vr(vXr + 2 * pr, 2)}, v{vA3} offset:{16 * 272 * pr}")
    A(f"""
    v_lshl_add_u32 v{vA2}, v{vH16}, 7, v{vLo + 1}
    s_add_u32 s{sQ1}, s{sN0}, s{sW}
    s_lshl_b32 s{sQ1}, s{sQ1}, 8
    s_waitcnt lgkmcnt(0)
    """)
    for pr in range(4):
        if pr == 3:
            A(f"s_add_u32 s3, s{sW}, 48")
            A(f"s_cmp_ge_u32 s3, s{sNn}")
            A("s_cbranch_scc1 Lk2_done")
        finalize(vAcc + 16 * pr, 4, vAcc + 16 * pr + 8, vU + 4 * pr, vXr + 2 * pr, vA2, sQ1,
                 "s_mov_b32 exec_hi, 0" if pr == 3 else "s_nop 0")
        A(f"s_add_u32 s{sQ1}, s{sQ1}, 4096")
    A("s_branch Lk2_done")
    return L_END


def gen_report(A, opt):
    kind, team, idx = opt["report"].split(",")
    idx, _, ref = idx.partition("-")
    idx = int(idx)
    A("report_kernel:")
    A("s_cmp_ge_u32 s2, 1")
    A("s_cbranch_scc1 Lr_exit")
    load_kernargs(A)
    A("s_waitcnt lgkmcnt(0)")
    srd(A, 28, P_WS, 0x80000, STAMP_OFF + 0x20000)

    def reduce(op, base, dst, tag, sub):
        A("v_lshrrev_b32 v1, 2, v0")
        A("v_and_b32 v2, 3, v0")
        A("v_lshlrev_b32 v1, 9, v1")
        A("v_lshl_add_u32 v1, v2, 6, v1")
        A(f"v_mov_b32 v3, {'-1' if op == 'min' else '0'}")
        A("s_mov_b32 s44, 0")
        A(f"Lr_{tag}:")
        A(f"buffer_load_dword v2, v1, s[28:31], s44 offen offset:{base}")
        A("s_waitcnt vmcnt(0)")
        if sub:
            A("v_subrev_u32 v2, s40, v2")
        A(f"v_{op}_u32 v3, v3, v2")
        A("s_add_u32 s44, s44, 8192")
        A("s_cmp_lt_u32 s44, 131072")
        A(f"s_cbranch_scc1 Lr_{tag}")
        A(f"v_readlane_b32 s{dst}, v3, 0")
        for l in range(1, 64):
            A(f"v_readlane_b32 s3, v3, {l}")
            A("s_nop 0")
            A(f"s_{op}_u32 s{dst}, s{dst}, s3")

    reduce("min", 0, 40, "a", False)
    if kind == "rng":
        reduce("max", 8 * idx, 41, "b", False)
        reduce("min", 8 * idx, 45, "c", False)
        A("s_sub_u32 s41, s41, s45")
    else:
        reduce(kind, 8 * idx + (256 if team == "t" else 0), 41, "b", True)
    if ref:
        reduce(kind, 8 * int(ref) + (256 if team == "t" else 0), 45, "c", True)
        A("s_sub_u32 s41, s41, s45")
    sc = int(opt.get("rs", 2))
    A(f"s_lshr_b32 s41, s41, {10 - sc}" if kind == "add" else f"s_lshl_b32 s41, s41, {sc}")
    A("s_min_u32 s41, s41, 30000")
    A("s_add_u32 s41, s41, 10000")
    A("Lr_spin:")
    A("s_memrealtime s[42:43]")
    A("s_waitcnt lgkmcnt(0)")
    A("s_sub_u32 s42, s42, s40")
    A("s_cmp_lt_u32 s42, s41")
    A("s_cbranch_scc1 Lr_spin")
    A("Lr_exit:")
    A("s_endpgm")


def descriptor(name, vgpr, extra=""):
    return f""".amdhsa_kernel {name}
  .amdhsa_next_free_vgpr {vgpr}
  .amdhsa_next_free_sgpr 102
  .amdhsa_accum_offset {(vgpr + 3) // 4 * 4}
  .amdhsa_group_segment_fixed_size 0
  .amdhsa_kernarg_size 96
  .amdhsa_user_sgpr_count 2
  .amdhsa_user_sgpr_kernarg_segment_ptr 1
  .amdhsa_system_sgpr_workgroup_id_x 1
{extra}.end_amdhsa_kernel
"""


def generate(opt):
    A = Asm()
    lds = gen_k2(A, opt)
    lst = f"kernel={NAME}_kernel " if opt.get("report") else ""
    text = (f"""; GatedGCN layer in one launch of 256 co-resident workgroups (one per CU).
; Workgroup g owns chunk g of the edges (1568) and one bucket of 48 or 49 destination nodes.
;  1. counting sort of the chunk by destination bucket -> records in d_ws, published by tagged offset words
;  2. x @ w_b, x @ w_v of the bucket's rows -> gather table in d_ws (low half: f16 of -log2(e) * B, high half: V),
;     published by a tagged word; x @ w_a and x + x @ w_u stay in LDS
;  3. the bucket's records are sorted by (node, source range), padded to groups of four edges and split evenly
;     over the eight waves; every wave walks its groups in source order
;  4. per group: gate exponent from MFMA(e_attr, w_c) and the gathered row, sigmoid of two edges with one reciprocal,
;     numerator and denominator sums in indexed registers; out = max(x + x @ w_u + num / (den + 1e-6), x)
; The tag is published in d_debug by workgroup 0. Inputs outside the limits of the fast path (degree distribution,
; |x @ w_a| > 52) take the general path at the end of the file.
; @launch {lst}grid=(256,1,1) block=(512,1,1) lds={lds}
.amdgcn_target "amdgcn-amd-amdhsa--gfx950"
.text
.globl {NAME}_kernel
.p2align 8
.type {NAME}_kernel,@function
""" + A.text() + ".section .rodata,\"a\"\n.p2align 6\n"
            + descriptor(f"{NAME}_kernel", 256, "  .amdhsa_fp16_overflow 1\n"))
    if opt.get("report"):
        R = Asm()
        gen_report(R, opt)
        text = text.replace(".amdgcn_target", "; @launch kernel=report_kernel grid=(1,1,1) block=(64,1,1) lds=0\n.amdgcn_target")
        text = text.replace(".section .rodata", ".globl report_kernel\n.p2align 8\n.type report_kernel,@function\n" + R.text() + ".section .rodata")
        text += ".p2align 6\n" + descriptor("report_kernel", 8)
    return text


if __name__ == "__main__":
    out = sys.argv[1] if len(sys.argv) > 1 else f"cdna_kernels/{NAME}.s"
    opt = dict(a.split("=", 1) for a in sys.argv[2:])
    opt = {k: v.replace("+", " ") for k, v in opt.items()}
    open(out, "w").write(generate(opt))
```

```python
import math
import struct
import sys

NAME = "gather_scatter__edge_featured_mpnn_gatedgcn__graph"
N, E = 12500, 400000
BM, BS, SM, SC, SS = 171799, 23, 799999, 16330, 14
CH = 1568
NCH = 256
TAB_OFF = 0
REC_OFF = 0xE00000
OFF_OFF = 0x1000000
SPIN_MAX = 20000
STAMP_OFF = 0x2000000
TAB_BYTES = N * 512
KSH = 48
AMAX = 52.0
NLOG2E = -math.log2(math.e)


def f32(x):
    return struct.unpack("<I", struct.pack("<f", x))[0]


class Asm:
    def __init__(self):
        self.lines = []

    def __call__(self, s):
        for ln in s.strip("\n").split("\n"):
            ln = ln.strip()
            if not ln:
                continue
            self.lines.append(ln if ln.endswith(":") else "    " + ln)

    def note(self, s):
        self.lines += ["; " + ln.strip() for ln in s.strip().split("\n")]

    def text(self):
        return "\n".join(self.lines) + "\n"


def vr(a, n=1):
    return f"v{a}" if n == 1 else f"v[{a}:{a + n - 1}]"


def sr(a, n=1):
    return f"s{a}" if n == 1 else f"s[{a}:{a + n - 1}]"


def srd(A, d, base, nbytes, off=0):
    if off:
        A(f"s_add_u32 s{d}, s{base}, {hex(off)}")
        A(f"s_addc_u32 s{d + 1}, s{base + 1}, 0")
    else:
        A(f"s_mov_b64 {sr(d, 2)}, {sr(base, 2)}")
    A(f"s_mov_b32 s{d + 2}, {hex(nbytes)}")
    A(f"s_mov_b32 s{d + 3}, 0x20000")


P_X, P_EA, P_SRC, P_DST, P_WA, P_WB, P_WC, P_WU = 4, 6, 8, 10, 12, 14, 16, 18
P_WV, P_OUT, P_DBG, P_WS = 20, 22, 24, 26


def load_kernargs(A):
    A("s_load_dwordx16 s[4:19], s[0:1], 0")
    A("s_load_dwordx8 s[20:27], s[0:1], 64")


STAMP_BASE = [2]


def stamp_reg(i):
    return 100 if i == 0 else STAMP_BASE[0] + 2 * i


def stamp(A, opt, i):
    if not opt.get("stamp"):
        return
    if isinstance(i, str):
        names = opt["stamp"].split(",")
        if i not in names:
            return
        i = names.index(i) + 1
    A(f"{'s_memtime' if opt.get('cyc') else 's_memrealtime'} s[{stamp_reg(i)}:{stamp_reg(i) + 1}]")


def stamp_flush(A, opt, n, base, vtid):
    if not opt.get("stamp"):
        return
    A("s_mov_b64 exec, -1")
    A("s_waitcnt vmcnt(0)")
    stamp(A, opt, n - 1)
    srd(A, 20, P_WS, 0x80000, STAMP_OFF + base)
    A(f"v_lshrrev_b32 v1, 6, v{vtid}")
    A("s_lshl_b32 s3, s2, 3")
    A("v_add_u32 v1, s3, v1")
    A(f"v_mul_u32_u24 v1, {8 * n}, v1")
    A("s_mov_b64 exec, 1")
    A("s_waitcnt lgkmcnt(0)")
    for i in range(n):
        r = stamp_reg(i)
        A(f"v_mov_b32 v2, s{r}")
        A(f"v_mov_b32 v3, s{r + 1}")
        A(f"buffer_store_dwordx2 v[2:3], v1, s[20:23], 0 offen offset:{8 * i}")
        A("s_nop 1")


WAVE_SCAN = ("row_shr:1 row_mask:0xf", "row_shr:2 row_mask:0xf", "row_shr:4 row_mask:0xf",
             "row_shr:8 row_mask:0xf", "row_bcast:15 row_mask:0xa", "row_bcast:31 row_mask:0xc")


def wave_scan(A, v, first_nop=1, fill=()):
    for k, d in enumerate(WAVE_SCAN):
        if k < len(fill):
            A("\n".join(fill[k]))
        elif k or first_nop:
            A("s_nop 1")
        A(f"v_add_u32_dpp v{v}, v{v}, v{v} {d} bank_mask:0xf")


def gen_k2(A, opt):
    global TAB_OFF, REC_OFF, OFF_OFF
    wsb = int(opt.get("wsb", 0)) << 20
    TAB_OFF, REC_OFF, OFF_OFF = TAB_OFF + wsb, REC_OFF + wsb, OFF_OFF + wsb
    STAMP_BASE[0] = 2
    ea_pol = opt.get("ea_load", "")
    tab_pol = opt.get("tab_load", "sc1")
    pf_lanes = int(opt.get("pf", 0))
    poll_at = int(opt.get("poll_at", 0))
    ld = [int(x) for x in opt.get("ld", "6,11,16").split(",")]
    TS = int(opt.get("ts", 3))
    OB = int(opt.get("ob", 8))
    S_TAB, S_EA, S_REC, S_OFFS, S_TW, S_X, S_OUT = 28, 32, 36, 40, 44, 48, 52
    sW, sBk, sN0, sW0, sT, sTi, sInc, sNl = 56, 57, 58, 59, 60, 61, 62, 63
    sC0, sCur, sNext, sMore, sTmp, sNon = 64, 66, 68, 70, 72, 74
    sMask = 76
    sMask2 = 18
    S_DST, S_SRC, S_W, S_W2, S_WC, S_DBG = 76, 80, 84, 88, 76, 80
    sOvf, sMor, sQ1, sQ2, sQ3, sLw, sF0, sOwn = 92, 93, 94, 95, 96, 97, 98, 99
    sRem, sSW, sSl0, sSl1, sLn, sPM = sT, sInc, sCur, sCur + 1, sNext, sCur
    sNn = 0
    sWo, sWm = sOvf, sLw
    L_CNT, L_BASE, L_FLAG, P_CNT, P_BASE, P_SORT = 0, 2048, 4096, 4352, 5376, 6400
    L_R2 = 12800
    L_SO = L_R2
    L_EO = L_SO + 25600
    L_STR = L_R2 + 16896
    STRW = 2560
    L_WCR = L_R2 + 65536
    L_X = L_WCR + 4096
    L_R1 = (L_X + 52 * 272 + 255) // 256 * 256
    L_TA = L_R1 + 528
    L_TU = L_TA + 52 * 528
    L_END = L_R1 + 65536
    TF_OFF = NCH * 2048
    NS = 9
    vSl, vD, vL, vWC, vEA, vT, vSo, vLo = 0, 108, 172, 204, 220, 224, 232, 236
    vSp, vEp, vEo, vH16, vSb, vTid, vOffs = 238, 239, 240, 241, 242, 243, 244
    vWf, vG, vXf, vXs, vNon, vTf = 0, 32, vL, 96, 104, 106
    vEn, vEb, vEad, vS2 = 104, 246, 247, 248
    Lbuf = [vL + 8 * u for u in range(4)] + [72 + 8 * u for u in range(4)]
    vRec, vKey, vRank, vSoff, vEoff, vX = vD, vD + 8, vD + 16, vD + 24, vD + 32, vD + 40
    cand = [(vRec + i, vKey + i, vRank + i, vSoff + i, vEoff + i, sMask + 2 * i) for i in range(8)]
    cand2 = [(vEA + i, vT + i, vT + 4 + i, None, None, sMask2 + 2 * i) for i in range(4)]
    c0 = 2.0 ** -KSH
    vZero, vOne, vXw, vXrd, vTw, vInv = vX + 5, vX + 6, vX + 7, vX + 8, vX + 9, vX + 10
    vDa, vBx, vBt, vBs, vAt, vPa, vE = vX + 12, vX + 14, vX + 15, vX + 17, vX + 18, vX + 19, vX + 20
    vSw, vSr = vX + 16, vD + 39
    pD, pS, pA, pR, pC, pB, pG = vD, vD + 4, vD + 8, vD + 12, vD + 16, vD + 20, vD + 24
    vm = []

    def younger(name):
        return len(vm) - 1 - max(i for i, x in enumerate(vm) if x == name)

    def dma_piece(S, soff, i):
        A(f"buffer_load_dwordx4 v{vDa + ((i >> 1) & 1)}, {sr(S, 4)}, s{soff} offen offset:{1024 * (i & 3)} {opt.get('w_pol', '')} lds")

    def loader(lo, hi):
        for g in range(lo, hi):
            A(f"s_mov_b32 m0, {L_R1 + 4096 * g}")
            A(f"s_movk_i32 s3, {4096 * (g & 7)}")
            if g == 8:
                A(f"s_mov_b64 {sr(S_W, 2)}, {sr(P_WV, 2)}")
            for i in range(4):
                dma_piece(S_W, 3, i)

    A(f"{NAME}_kernel:")
    A("s_cmp_ge_u32 s2, 256")
    A("s_cbranch_scc1 Lk2_exit")
    stamp(A, opt, 0)
    load_kernargs(A)
    A(f"""
    s_memrealtime {sr(sNon, 2)}
    s_getpc_b64 s[{sTmp}:{sTmp + 1}]
    """)
    cpf_mode = int(opt.get("cpf", 8))
    if cpf_mode:
        A(f"""
        s_lshr_b32 s3, s2, 3
        s_and_b32 s3, s3, {128 // cpf_mode - 1}
        v_subrev_u32 v1, {512 - cpf_mode}, v0
        v_cmp_gt_u32 vcc, {cpf_mode}, v1
        v_mul_u32_u24 v1, {128 // cpf_mode}, v1
        v_add_lshl_u32 v1, v1, s3, 7
        """)
    else:
        A(f"""
        v_lshlrev_b32 v1, 7, v0
        v_cmp_gt_u32 vcc, Lcold_code - {NAME}_kernel, v1
        """)
    A(f"""
    s_and_saveexec_b64 {sr(sNext, 2)}, vcc
    s_cbranch_execz Lno_cpf
    global_load_dword v2, v1, s[{sTmp}:{sTmp + 1}] {opt.get('cpf_pol', '')}
    Lno_cpf:
    s_mov_b64 exec, -1
    v_mov_b32 v{vZero}, 0
    v_lshlrev_b32 v{vX + 11}, 2, v0
    ds_write_b32 v{vX + 11}, v{vZero} offset:{L_FLAG}
    ds_write_b32 v{vX + 11}, v{vZero} offset:{L_CNT}
    v_lshrrev_b32 v{vX}, 6, v0
    v_lshlrev_b32 v{vX + 2}, 4, v0
    v_readfirstlane_b32 s{sW}, v{vX}
    s_movk_i32 s3, {CH // 4}
    s_cmp_eq_u32 s2, {NCH - 1}
    s_cselect_b32 s3, {(E - (NCH - 1) * CH) // 4}, s3
    v_cmp_gt_u32_e64 {sr(sPM, 2)}, s3, v0
    s_mul_i32 s{sQ1}, s2, {CH * 4}
    s_mov_b32 s{S_DST + 2}, {E * 4}
    s_mov_b32 s{S_DST + 3}, 0x20000
    s_mov_b32 s{S_SRC + 2}, {E * 4}
    s_mov_b32 s{S_SRC + 3}, 0x20000
    s_and_b32 s3, s2, 7
    s_lshl_b32 s3, s3, 5
    s_lshr_b32 s{sBk}, s2, 3
    s_add_u32 s{sBk}, s{sBk}, s3
    s_mul_i32 s{sN0}, s{sBk}, {SM}
    s_add_u32 s{sOwn}, s{sN0}, {SM + SC}
    s_add_u32 s{sN0}, s{sN0}, {SC}
    s_lshr_b32 s{sOwn}, s{sOwn}, {SS}
    s_lshr_b32 s{sN0}, s{sN0}, {SS}
    v_mov_b32 v{vTid}, v0
    v_and_b32 v{vX + 3}, 0x3f0, v{vX + 2}
    v_bfe_u32 v{vX + 1}, v0, 4, 2
    v_lshlrev_b32 v{vX + 4}, 6, v{vX + 1}
    v_xor_b32 v{vDa}, v{vX + 3}, v{vX + 4}
    v_xor_b32 v{vDa + 1}, 32, v{vDa}
    s_lshl_b32 s{sWm}, s{sW}, 13
    s_add_u32 s{sWm + 1}, s{sWm}, 4096
    s_and_b32 s{sWo}, s{sWm}, 0x7fff
    s_add_u32 s{sWo + 1}, s{sWo}, 4096
    s_lshl_b32 s{sTmp}, s{sN0}, 8
    s_add_u32 s{sTmp + 1}, s{sTmp}, 8192
    s_mov_b64 exec, {sr(sPM, 2)}
    s_waitcnt lgkmcnt(0)
    s_cbranch_execz Lp_nold
    s_mov_b64 {sr(S_DST, 2)}, {sr(P_DST, 2)}
    s_mov_b64 {sr(S_SRC, 2)}, {sr(P_SRC, 2)}
    buffer_load_dwordx4 {vr(pD, 4)}, v{vX + 2}, {sr(S_DST, 4)}, s{sQ1} offen {opt.get("idx_pol", "nt")}
    buffer_load_dwordx4 {vr(pS, 4)}, v{vX + 2}, {sr(S_SRC, 4)}, s{sQ1} offen {opt.get("idx_pol", "nt")}
    Lp_nold:
    """)
    if int(opt.get("wpf", 1)):
        A(f"""
        s_cmp_lg_u32 s{sW}, 7
        s_cbranch_scc1 Lno_wpf
        s_mov_b64 exec, 0xff
        s_lshr_b32 s3, s2, 3
        s_lshl_b32 s3, s3, 10
        v_lshl_add_u32 v1, v{vX + 3}, 3, s3
        global_load_dword v3, v1, {sr(P_WB, 2)} {opt.get('wpf_pol', '')}
        global_load_dword v4, v1, {sr(P_WV, 2)} {opt.get('wpf_pol', '')}
        global_load_dword v5, v1, {sr(P_WA, 2)} {opt.get('wpf_pol', '')}
        global_load_dword v6, v1, {sr(P_WU, 2)} {opt.get('wpf_pol', '')}
        Lno_wpf:
        """)
    A("s_mov_b64 exec, -1")
    A("s_barrier")
    vm.append("dst")
    srd(A, S_DBG, P_DBG, 256)
    A(f"""
    s_xor_b32 s3, s{sW}, 7
    s_or_b32 s3, s3, s2
    s_cbranch_scc1 Lno_nonce
    s_or_b32 s3, s{sNon}, 1
    v_mov_b32 v{vNon}, s3
    v_mov_b32 v{vNon + 1}, s{sNon + 1}
    s_mov_b64 exec, 1
    buffer_store_dwordx2 {vr(vNon, 2)}, v{vZero}, {sr(S_DBG, 4)}, 0 offen sc1
    """)
    if opt.get("ptrs"):
        for i, p in enumerate((P_WS, P_WS + 1, P_OUT, P_EA, P_X, P_SRC, P_DST, P_WB, P_DBG, 0, P_EA + 1)):
            A(f"v_mov_b32 v1, s{p}")
            A(f"buffer_store_dword v1, v{vZero}, {sr(S_DBG, 4)}, 0 offen offset:{8 + 4 * i}")
    A(f"""
    s_mov_b64 exec, -1
    Lno_nonce:
    """)
    A(f"""
    s_mov_b64 {sr(S_X, 2)}, {sr(P_X, 2)}
    s_lshl_b32 s{S_X + 2}, s{sOwn}, 8
    s_mov_b32 s{S_X + 3}, 0x20000
    s_sub_u32 s{sNn}, s{sOwn}, s{sN0}
    """)
    for i in range(2):
        A(f"buffer_load_dwordx4 {vr(vXs + 4 * i, 4)}, v{vX + 2}, {sr(S_X, 4)}, s{sTmp + i} offen {opt.get('x_pol', 'nt')}")
        vm.append("x")
    A(f"""
    s_cmp_lt_u32 s{sW}, 4
    s_cselect_b32 s{S_W}, s{P_WB}, s{P_WV}
    s_cselect_b32 s{S_W + 1}, s{P_WB + 1}, s{P_WV + 1}
    s_cselect_b32 s{S_W2}, s{P_WA}, s{P_WU}
    s_cselect_b32 s{S_W2 + 1}, s{P_WA + 1}, s{P_WU + 1}
    s_mov_b32 s{S_W + 2}, 32768
    s_mov_b32 s{S_W + 3}, 0x20000
    s_mov_b32 s{S_W2 + 2}, 32768
    s_mov_b32 s{S_W2 + 3}, 0x20000
    """)
    npf0 = 0
    A(f"s_cmp_lg_u32 s{sW}, 7")
    A("s_cbranch_scc1 Lno_ld0")
    A(f"s_mov_b64 {sr(S_W, 2)}, {sr(P_WB, 2)}")
    loader(0, 2)
    A("Lno_ld0:")
    srd(A, S_WC, P_WC, 4096)
    srd(A, S_REC, P_WS, NCH * CH * 4, REC_OFF)
    srd(A, S_OFFS, P_WS, TF_OFF + (256 << TS), OFF_OFF)
    srd(A, S_TAB, P_WS, TAB_BYTES + 512, TAB_OFF)
    srd(A, S_EA, P_EA, 0 if opt.get("noea") else E * 32)
    srd(A, S_OUT, P_OUT, N * 256)
    pt = int(opt.get("ptouch", 0))
    if pt:
        A(f"""
        s_cmp_lg_u32 s{sW}, 7
        s_cbranch_scc1 Lno_touch
        v_lshlrev_b32 v1, {pt - 4}, v{vX + 3}
        """)
        for i, S in enumerate((S_TAB, S_REC, S_OFFS, S_EA, S_OUT)):
            A(f"buffer_load_dword v{7 + i}, v1, {sr(S, 4)}, 0 offen sc1")
        A("Lno_touch:")
    A(f"""
    s_lshl_b32 s3, s{sN0}, 9
    s_add_u32 s{S_TW}, s{S_TAB}, s3
    s_addc_u32 s{S_TW + 1}, s{S_TAB + 1}, 0
    s_lshl_b32 s{S_TW + 2}, s{sNn}, 9
    s_mov_b32 s{S_TW + 3}, 0x20000
    s_mov_b32 s{sNl}, {hex(f32(NLOG2E))}
    s_mov_b32 s{sC0}, {hex(f32(c0))}
    s_mov_b32 s{sC0 + 1}, {hex(f32(c0))}
    s_mov_b32 s{sW0}, 0
    s_mov_b32 s{sQ2}, {BM}
    s_mov_b32 s{sQ3}, {-SM}
    v_mov_b32 v{vOne}, 1
    v_lshrrev_b32 v{vX + 11}, 4, v{vTid}
    v_lshl_add_u32 v{vXw}, v{vX + 11}, 4, v{vX + 2}
    v_add_u32 v{vXw}, {L_X}, v{vXw}
    v_and_b32 v{vLo}, 0x1f0, v{vX + 2}
    v_bfe_u32 v{vX + 4}, v{vTid}, 5, 1
    v_mov_b32 v{vLo + 1}, v{vLo}
    v_lshlrev_b32 v{vH16}, 4, v{vX + 4}
    s_lshr_b32 s{sTmp}, s{sW}, 2
    s_and_b32 s{sTmp + 1}, s{sW}, 3
    v_bfe_u32 v{vX + 11}, v{vTid}, 2, 2
    v_xor_b32 v{vE}, s{sTmp + 1}, v{vX + 11}
    v_lshlrev_b32 v{vE}, 6, v{vE}
    v_and_b32 v{vE + 1}, 3, v{vTid}
    v_lshl_add_u32 v{vE}, v{vE + 1}, 3, v{vE}
    v_lshl_add_u32 v{vE}, v{vX + 11}, 8, v{vE}
    v_and_b32 v{vE + 1}, 1, v{vX + 1}
    v_xor_b32 v{vE + 1}, v{vE + 1}, v{vX + 4}
    v_lshl_add_u32 v{vE}, v{vE + 1}, 5, v{vE}
    v_lshl_add_u32 v{vE}, v{vX + 4}, 11, v{vE}
    v_add_u32 v{vBt}, {L_R1}, v{vE}
    s_lshl_b32 s3, s{sTmp}, 15
    s_add_u32 s3, s3, {L_R2}
    v_add_u32 v{vAt}, s3, v{vE}
    v_and_b32 v{vX + 11}, 31, v{vTid}
    v_mul_u32_u24 v{vXrd}, 272, v{vX + 11}
    s_mov_b32 s3, {L_X}
    v_add3_u32 v{vXrd}, v{vXrd}, v{vH16}, s3
    s_mul_i32 s3, s{sTmp}, {32 * 272}
    v_add_u32 v{vBx}, s3, v{vXrd}
    s_mul_i32 s3, s{sW}, 4608
    s_add_u32 s3, s3, {L_R1}
    v_mul_u32_u24 v{vSw}, 144, v{vX + 11}
    v_add3_u32 v{vSw}, v{vSw}, v{vH16}, s3
    v_bfe_u32 v{vE}, v{vTid}, 3, 3
    v_lshl_add_u32 v{vSr}, v{vE}, 4, v{vX + 3}
    v_add_u32 v{vSr}, s3, v{vSr}
    v_and_b32 v{vE + 1}, 0x70, v{vX + 3}
    v_lshl_add_u32 v{vBs}, v{vE}, 9, v{vE + 1}
    s_lshl_b32 s3, s{sTmp}, 7
    s_add_u32 s3, s3, s{sTmp + 1}
    s_lshl_b32 s3, s3, 7
    v_add_u32 v{vBs}, s3, v{vBs}
    v_mul_u32_u24 v{vTw}, 528, v{vX + 11}
    s_mul_i32 s3, s{sTmp}, {L_TU - L_TA}
    s_lshl_b32 s{sTmp + 1}, s{sTmp + 1}, 7
    s_add_u32 s3, s3, s{sTmp + 1}
    s_add_u32 s3, s3, {L_TA}
    v_add3_u32 v{vTw}, v{vTw}, v{vH16}, s3
    v_lshrrev_b32 v{vPa}, 1, v{vTid}
    v_lshlrev_b32 v{vPa}, {3 + OB}, v{vPa}
    v_lshlrev_b32 v{vE}, 8, v{vTid}
    v_add_u32 v{vE + 1}, 64, v{vE}
    v_add_u32 v{vE + 2}, 0x80, v{vE}
    v_add_u32 v{vE + 3}, 0xc0, v{vE}
    """)
    stamp(A, opt, "iss")

    def stage_x(wait):
        A(f"s_waitcnt vmcnt({wait})")
        A(f"ds_write_b128 v{vXw}, {vr(vXs, 4)}")
        A(f"s_cmp_lt_u32 s{sW}, 5")
        A("s_cselect_b64 exec, -1, 0")
        A(f"ds_write_b128 v{vXw}, {vr(vXs + 4, 4)} offset:{32 * 272}")
        A("s_mov_b64 exec, -1")

    nonce_load = f"buffer_load_dwordx2 {vr(vNon, 2)}, v{vZero}, {sr(S_DBG, 4)}, 0 offen sc1"
    A(f"""
    s_cmp_eq_u32 s{sW}, 7
    s_cbranch_scc1 Lp_loader
    s_mov_b64 exec, {sr(sPM, 2)}
    s_waitcnt vmcnt({2 + npf0})
    """)
    stamp(A, opt, "dst")
    for i in range(4):
        A(f"v_mul_u32_u24 v{pC + i}, s{sQ2}, v{pD + i}")
    for i in range(4):
        A(f"v_lshrrev_b32 v{pC + i}, {BS}, v{pC + i}")
        A(f"v_lshlrev_b32 v{pA + i}, 2, v{pC + i}")
        A(f"ds_add_rtn_u32 v{pR + i}, v{pA + i}, v{vOne} offset:{P_CNT}")
    for i in range(4):
        A(f"v_lshl_add_u32 v{pD + i}, v{pD + i}, {SS}, {(1 << SS) - 1 - SC}")
        A(f"v_mad_i32_i24 v{pD + i}, v{pC + i}, s{sQ3}, v{pD + i}")
    A("s_mov_b64 exec, -1")
    A(f"s_cmp_eq_u32 s{sW}, 3")
    A("s_waitcnt lgkmcnt(0)")
    A("s_barrier")
    stamp(A, opt, "b2")
    A(f"""
    s_cbranch_scc0 Lp_noscan
    ds_read_b128 {vr(pC, 4)}, v{vX + 3} offset:{P_CNT}
    s_waitcnt lgkmcnt(0)
    v_add_u32 v{pB + 2}, v{pC}, v{pC + 1}
    v_add3_u32 v{pG + 1}, v{pB + 2}, v{pC + 2}, v{pC + 3}
    v_add_u32 v{pB + 3}, v{pB + 2}, v{pC + 2}
    v_mov_b32 v{pG}, v{pG + 1}
    """)
    ors = []
    for i in range(4):
        ors += [f"v_lshl_or_b32 v{pS + i}, v{pS + i}, 18, v{vE + i}", f"v_lshrrev_b32 v{pD + i}, {SS}, v{pD + i}",
                f"v_or_b32 v{pS + i}, v{pS + i}, v{pD + i}"]
    wave_scan(A, pG + 1, fill=[[]] + [ors[2 * k: 2 * k + 2] for k in range(5)])
    A(f"""
    v_sub_u32 v{pB}, v{pG + 1}, v{pG}
    v_add_u32 v{pB + 1}, v{pB}, v{pC}
    v_add_u32 v{pB + 2}, v{pB}, v{pB + 2}
    v_add_u32 v{pB + 3}, v{pB}, v{pB + 3}
    ds_write_b128 v{vX + 3}, {vr(pB, 4)} offset:{P_BASE}
    {ors[10]}
    {ors[11]}
    s_waitcnt lgkmcnt(0)
    s_barrier
    """)
    A("s_branch Lp_scanned")
    A("Lp_noscan:")
    A("\n".join(ors))
    A("s_barrier")
    A("Lp_scanned:")
    stamp(A, opt, "scan")
    A(f"s_mov_b64 exec, {sr(sPM, 2)}")
    for i in range(4):
        A(f"ds_read_b32 v{pA + i}, v{pA + i} offset:{P_BASE}")
    A("s_waitcnt lgkmcnt(0)")
    for i in range(4):
        A(f"v_add_lshl_u32 v{pA + i}, v{pA + i}, v{pR + i}, 2")
        A(f"ds_write_b32 v{pA + i}, v{pS + i} offset:{P_SORT}")
    A("s_mov_b64 exec, -1")
    A(nonce_load)
    A("s_waitcnt lgkmcnt(0)")
    A("s_barrier")
    stamp(A, opt, "b3")
    A(f"""
    ds_read_b128 {vr(pD, 4)}, v{vX + 2} offset:{P_SORT}
    s_mov_b64 exec, {sr(sPM, 2)}
    s_cbranch_execz Lp_none
    s_waitcnt lgkmcnt(0)
    buffer_store_dwordx4 {vr(pD, 4)}, v{vX + 2}, {sr(S_REC, 4)}, s{sQ1} offen sc1
    s_branch Lp_out
    Lp_loader:
    """)
    loader(2, ld[0])
    A("s_barrier")
    loader(ld[0], ld[1])
    A("s_barrier")
    loader(ld[1], ld[2])
    A("s_barrier")
    loader(ld[2], 16)
    A(nonce_load)
    A(f"""
    Lp_none:
    s_waitcnt vmcnt(1)
    Lp_out:
    s_mov_b64 exec, -1
    """)
    stage_x(2)
    A(f"""
    v_lshrrev_b32 v{vX + 11}, 1, v{vX + 2}
    v_and_b32 v{vX + 11}, 0x3ff, v{vX + 11}
    ds_read_b64 {vr(pC, 2)}, v{vX + 11} offset:{P_CNT}
    ds_read_b64 {vr(pB, 2)}, v{vX + 11} offset:{P_BASE}
    s_lshl_b32 s3, s{sW}, 9
    s_add_u32 m0, s3, {L_WCR}
    s_waitcnt lgkmcnt(0)
    s_barrier
    """)
    stamp(A, opt, "b3b")

    bB, bV, bO = 48, 64, 80

    def bv_reads(s):
        r = 12 * (s & 3)
        A(f"ds_read_b128 {vr(r + 8, 4)}, v{vBx} offset:{32 * s}")
        for m in range(2):
            for z in range(2):
                A(f"ds_read_b64_tr_b16 {vr(r + 4 * m + 2 * z, 2)}, v{vBt} offset:{m * 32768 + s * 4096 + z * 1024}")

    for s in range(3):
        bv_reads(s)
    A(f"""
    s_mov_b32 exec_hi, 0
    buffer_load_dwordx4 v{vX + 3}, {sr(S_WC, 4)}, s3 offen lds
    s_mov_b32 exec_hi, -1
    """)
    b4b = int(opt.get("b4b", 1))
    wk = int(opt.get("wk", 2))
    for s in range(8):
        r = 12 * (s & 3)
        A(f"s_waitcnt lgkmcnt({5 * min(2, 7 - s)})")
        for m in range(2):
            d = (bB, bV)[m]
            A(f"v_mfma_f32_32x32x16_bf16 {vr(d, 16)}, {vr(r + 4 * m, 4)}, {vr(r + 8, 4)}, {'0' if s == 0 else vr(d, 16)}")
        if s + 3 < 8:
            bv_reads(s + 3)
        for i in range(wk * s, min(8, wk * s + wk)):
            if i % 4 == 0:
                A(f"s_add_u32 m0, s{sWm + i // 4}, {L_R2}")
                A("s_nop 0")
            dma_piece(S_W2, sWo + (i >> 2), i)
    stamp(A, opt, "bvm")
    A(f"""
    s_mov_b32 s{sTi}, 0
    s_waitcnt vmcnt(9)
    Lnonce_check:
    v_readfirstlane_b32 s{sNon}, v{vNon}
    v_readfirstlane_b32 s{sNon + 1}, v{vNon + 1}
    s_add_u32 s{sTi}, s{sTi}, 1
    s_cmp_lg_u32 s{sNon}, 0
    s_cbranch_scc1 Lnonce_ok
    buffer_load_dwordx2 {vr(vNon, 2)}, v{vZero}, {sr(S_DBG, 4)}, 0 offen sc1
    s_cmp_lt_u32 s{sTi}, {SPIN_MAX}
    s_waitcnt vmcnt(0)
    s_cbranch_scc1 Lnonce_check
    Lnonce_ok:
    s_and_b32 s{sNon + 1}, s{sNon + 1}, 0x3ff
    s_lshl_b32 s3, s{sNon + 1}, 22
    v_lshl_or_b32 v{pG}, v{pC}, 11, v{pB}
    v_lshl_or_b32 v{pG + 2}, v{pC + 1}, 11, v{pB + 1}
    v_or_b32 v{pG}, s3, v{pG}
    v_or_b32 v{pG + 2}, s3, v{pG + 2}
    v_mov_b32 v{pG + 1}, s{sNon}
    v_mov_b32 v{pG + 3}, s{sNon}
    v_lshrrev_b32 v{vE}, {3 + OB}, v{vX + 2}
    v_and_b32 v{vE + 1}, {(8 << OB) - 1}, v{vX + 2}
    v_lshl_add_u32 v{vE}, v{vE}, {11 + OB}, v{vE + 1}
    s_lshl_b32 s3, s2, {3 + OB}
    s_cmp_ge_u32 s{sW}, 2
    {'' if b4b else 's_waitcnt vmcnt(0)'}
    s_barrier
    s_cbranch_scc1 Lno_off
    buffer_store_dwordx4 {vr(pG, 4)}, v{vE}, {sr(S_OFFS, 4)}, s3 offen sc1
    Lno_off:
    """)
    stamp(A, opt, "sig")
    for g in range(4):
        for i in range(4 * g, 4 * g + 4):
            A(f"v_fma_mixlo_f16 v{bV + i}, v{bB + i}, s{sNl}, 0")
        A(f"ds_write_b128 v{vSw}, {vr(bV + 4 * g, 4)} offset:{32 * g}")
    for i in range(4):
        A(f"ds_read_b128 {vr(bO + 4 * i, 4)}, v{vSr} offset:{1152 * i}")
    A(f"""
    s_or_b32 s3, s2, s{sW}
    s_cbranch_scc1 Lno_pad
    v_mov_b32 v{vE}, 0x7c00
    v_mov_b32 v{vE + 1}, 0x7c00
    v_lshrrev_b32 v{vE + 2}, 1, v{vX + 3}
    s_mov_b32 s3, {TAB_BYTES}
    buffer_store_dwordx2 {vr(vE, 2)}, v{vE + 2}, {sr(S_TAB, 4)}, s3 offen sc1
    Lno_pad:
    s_lshr_b32 s3, s{sBk}, {OB}
    s_lshl_b32 s3, s3, {8 + OB}
    s_and_b32 s{sQ1}, s{sBk}, {(1 << OB) - 1}
    s_add_u32 s{sQ1}, s{sQ1}, s3
    s_lshl_b32 s{sQ1}, s{sQ1}, 3
    s_mov_b32 s3, 0
    """)
    def au_reads(s):
        for z in range(2):
            A(f"ds_read_b64_tr_b16 {vr(vWf + 4 * s + 2 * z, 2)}, v{vAt} offset:{s * 4096 + z * 1024}")
        A(f"ds_read_b128 {vr(vXf + 4 * s, 4)}, v{vXrd} offset:{32 * s}")

    for s in range(4):
        A(f"s_waitcnt lgkmcnt({3 - s if b4b else 3 + 2 * s})")
        A(f"buffer_store_dwordx4 {vr(bO + 4 * s, 4)}, v{vBs}, {sr(S_TW, 4)}, s3 offen {opt.get('tw_pol', 'sc1')}")
        A("s_add_u32 s3, s3, 4096")
        if not b4b:
            au_reads(s)
    if b4b:
        A(f"""
        s_cmp_ge_u32 s{sW}, 2
        s_cbranch_scc1 Lwau_0
        s_waitcnt vmcnt(5)
        s_branch Lwau_1
        Lwau_0:
        s_waitcnt vmcnt(4)
        Lwau_1:
        s_barrier
        """)
        for s in range(4):
            au_reads(s)
    stamp(A, opt, "bve")
    if opt.get("notab"):
        A(f"s_mov_b32 s{S_TAB + 2}, 0")
    poll = f"buffer_load_dwordx2 {vr(vOffs, 2)}, v{vPa}, {sr(S_OFFS, 4)}, s{sQ1} offen sc1"

    def tag_wait(name, v, reload):
        A(f"""
        s_mov_b32 s{sTi}, 0
        L{name}_check:
        v_lshrrev_b32 v{vX + 11}, 22, v{v}
        v_cmp_ne_u32_e64 {sr(sTmp, 2)}, s{sNon}, v{v + 1}
        v_cmp_ne_u32 vcc, s{sNon + 1}, v{vX + 11}
        s_add_u32 s{sTi}, s{sTi}, 1
        s_or_b64 vcc, vcc, {sr(sTmp, 2)}
        s_cbranch_scc0 L{name}_ok
        {reload}
        s_cmp_lt_u32 s{sTi}, {SPIN_MAX}
        s_waitcnt vmcnt(0)
        s_cbranch_scc1 L{name}_check
        L{name}_ok:
        """)

    def batch_masks(window):
        A(f"""
        v_bfe_u32 v{vX}, v{vOffs}, 11, 11
        v_and_b32 v{vX + 1}, 1, v{vTid}
        v_subrev_u32 v{vX}, s{sW0}, v{vX}
        v_lshlrev_b32 v{vX + 1}, 2, v{vX + 1}
        v_cmp_lt_i32_e64 {sr(sMore, 2)}, {window}, v{vX}
        v_sub_u32 v{vX}, v{vX}, v{vX + 1}
        """)
        for i in range(window // 2):
            A(f"v_cmp_lt_i32_e64 {sr((cand + cand2)[i][5], 2)}, {(i & 3) + 8 * (i >> 2)}, v{vX}")

    def rec_addr():
        A(f"""
        v_lshrrev_b32 v{vX + 2}, 1, v{vTid}
        v_and_b32 v{vX + 1}, 1, v{vTid}
        v_mul_u32_u24 v{vX + 2}, {CH}, v{vX + 2}
        v_lshl_add_u32 v{vX + 1}, v{vX + 1}, 2, s{sW0}
        v_add_u32 v{vX + 1}, v{vX + 1}, v{vX + 2}
        v_lshlrev_b32 v{vX + 2}, 5, v{vX + 2}
        """)
        for i in range(0, 8, 2):
            A(f"v_mov_b64 {vr(vKey + i, 2)}, 0")

    def rec_loads(both=True):
        A(f"""
        v_and_b32 v{vX + 4}, 0x7ff, v{vOffs}
        v_add_lshl_u32 v{vX + 4}, v{vX + 4}, v{vX + 1}, 2
        buffer_load_dwordx4 {vr(vRec, 4)}, v{vX + 4}, {sr(S_REC, 4)}, 0 offen sc1
        """)
        if both:
            A(f"buffer_load_dwordx4 {vr(vRec + 4, 4)}, v{vX + 4}, {sr(S_REC, 4)}, 0 offen offset:32 sc1")

    def histogram(cs):
        for rec, key, rank, so_, eo_, m in cs:
            A(f"s_mov_b64 exec, {sr(m, 2)}")
            A(f"v_alignbit_b32 v{key}, v{rec}, v{rec}, 27")
            A(f"v_and_b32 v{key}, 0x7fc, v{key}")
            A(f"ds_add_rtn_u32 v{rank}, v{key}, v{vOne} offset:{L_CNT}")
        A("s_mov_b64 exec, -1")

    def place(cs):
        for rec, key, rank, so_, eo_, m in cs:
            A(f"s_mov_b64 exec, {sr(m, 2)}")
            A(f"v_lshl_add_u32 v{key}, v{rank}, 3, v{key}")
            A(f"ds_write2_b32 v{key}, v{rec}, v{vX + 2} offset0:0 offset1:1")
        A("s_mov_b64 exec, -1")

    def hand_over():
        rec_addr()
        stamp(A, opt, "pre5")
        A("s_waitcnt vmcnt(1)")
        stamp(A, opt, "drn")
        A("s_barrier")
        stamp(A, opt, "b5")
        A(f"""
        s_cmp_lg_u32 s{sW}, 7
        s_cbranch_scc1 Lno_tf
        s_lshl_b32 s{sTmp + 1}, s2, {TS}
        s_add_u32 s{sTmp + 1}, s{sTmp + 1}, {TF_OFF}
        s_mov_b64 exec, 1
        buffer_store_dwordx2 {vr(pG, 2)}, v{vZero}, {sr(S_OFFS, 4)}, s{sTmp + 1} offen sc1
        s_mov_b64 exec, -1
        s_waitcnt vmcnt(1)
        s_branch Ltf_sent
        Lno_tf:
        s_waitcnt vmcnt(0)
        Ltf_sent:
        """)
        tag_wait("off", vOffs, poll)
        stamp(A, opt, "off")
        rmask = int(opt.get("rmask", 1))
        rec_loads(not rmask)
        batch_masks(24)
        if rmask:
            A(f"""
            s_mov_b64 exec, {sr(cand[4][5], 2)}
            s_cbranch_execz Lno_rec1
            buffer_load_dwordx4 {vr(vRec + 4, 4)}, v{vX + 4}, {sr(S_REC, 4)}, 0 offen offset:32 sc1
            Lno_rec1:
            s_mov_b64 exec, -1
            """)
        A(f"""
        s_cmp_eq_u64 {sr(sMask2, 2)}, 0
        s_cbranch_scc1 Lno_rec2
        buffer_load_dwordx4 {vr(cand2[0][0], 4)}, v{vX + 4}, {sr(S_REC, 4)}, 0 offen offset:64 sc1
        v_mov_b64 {vr(cand2[0][1], 2)}, 0
        v_mov_b64 {vr(cand2[2][1], 2)}, 0
        Lno_rec2:
        """)

    b5_at = int(opt.get("b5_at", 16))
    assert poll_at <= b5_at
    for k in range(16):
        nb, s = k >> 3, k & 7
        if k == poll_at:
            A(poll)
        if k == b5_at:
            hand_over()
        A(f"s_waitcnt lgkmcnt({9 if k < 5 else (7, 5, 3)[k - 5] if k < 8 else min(3, 15 - k)})")
        cc = "0" if s == 0 else vr(vG + 16 * nb, 16)
        A(f"v_mfma_f32_32x32x16_bf16 {vr(vG + 16 * nb, 16)}, {vr(vWf + 4 * s, 4)}, {vr(vXf + 4 * (k & 7), 4)}, {cc}")
        kn = k + 4
        if kn < 8:
            for z in range(2):
                A(f"ds_read_b64_tr_b16 {vr(vWf + 4 * kn + 2 * z, 2)}, v{vAt} offset:{kn * 4096 + z * 1024}")
        if kn < 16:
            A(f"ds_read_b128 {vr(vXf + 4 * (kn & 7), 4)}, v{vXrd} offset:{32 * 272 * (kn >> 3) + 32 * (kn & 7)}")
    if b5_at == 16:
        hand_over()
    vId = 64
    A(f"""
    s_cmp_lt_u32 s{sW}, 4
    s_cbranch_scc1 Lno_ident
    s_and_b32 s3, s{sW}, 3
    s_lshl_b32 s3, s3, 6
    v_add_u32 v{vX + 11}, s3, v{vXrd}
    """)
    for nb in range(2):
        for z in range(2):
            A(f"ds_read_b128 {vr(vXf + 8 * nb + 4 * z, 4)}, v{vX + 11} offset:{32 * 272 * nb + 32 * z}")
    A(f"""
    v_lshrrev_b32 v{vX + 11}, 4, v{vLo}
    v_lshrrev_b32 v{vX + 12}, 1, v{vH16}
    v_sub_u32 v{vX + 11}, v{vX + 11}, v{vX + 12}
    v_and_b32 v{vX + 12}, 1, v{vX + 11}
    v_lshlrev_b32 v{vX + 12}, 4, v{vX + 12}
    v_mov_b32 v{vX + 13}, 0x3f80
    v_lshlrev_b32 v{vX + 12}, v{vX + 12}, v{vX + 13}
    v_ashrrev_i32 v{vX + 11}, 1, v{vX + 11}
    """)
    for i in range(8):
        A(f"v_cmp_eq_u32_e64 {sr((sTmp, sNext)[i & 1], 2)}, {8 * (i >> 2) + (i & 3)}, v{vX + 11}")
        if i:
            A("s_nop 0")
            A(f"v_cndmask_b32_e64 v{vId + i - 1}, 0, v{vX + 12}, {sr((sTmp, sNext)[(i - 1) & 1], 2)}")
    A("s_nop 0")
    A(f"v_cndmask_b32_e64 v{vId + 7}, 0, v{vX + 12}, {sr(sNext, 2)}")
    A("s_waitcnt lgkmcnt(0)")
    for z in range(2):
        for nb in range(2):
            A(f"v_mfma_f32_32x32x16_bf16 {vr(vG + 16 * nb, 16)}, {vr(vId + 4 * z, 4)}, {vr(vXf + 8 * nb + 4 * z, 4)}, {vr(vG + 16 * nb, 16)}")
    A("Lno_ident:")
    if b5_at == 17:
        hand_over()
    stamp(A, opt, "aum")

    tf_poll = f"buffer_load_dwordx2 {vr(vTf, 2)}, v{vPa}, {sr(S_OFFS, 4)}, s{sQ1} offen sc1"
    vRaw = vD
    A(f"""
    v_lshrrev_b32 v{vPa}, 1, v{vLo}
    {f'v_lshlrev_b32 v{vPa}, {TS - 3}, v{vPa}' if TS > 3 else ''}
    """)

    def wc_reads():
        A(f"""
        v_lshrrev_b32 v{vX + 11}, 1, v{vLo}
        v_lshl_add_u32 v{vX + 11}, v{vH16}, 7, v{vX + 11}
        v_add_u32 v{vX + 11}, {L_WCR}, v{vX + 11}
        """)
        for i in range(8):
            A(f"ds_read_b64 {vr(vRaw + 2 * i, 2)}, v{vX + 11} offset:{256 * i}")

    def wc_fragments():
        A("s_mov_b32 s3, 0x05040100")
        A(f"s_mov_b32 s{sTmp}, 0x07060302")
        for j in range(4):
            for i in range(4):
                A(f"v_perm_b32 v{vWC + 4 * j + i}, v{vRaw + 2 * (2 * i + 1) + (j >> 1)}, v{vRaw + 2 * (2 * i) + (j >> 1)}, "
                  f"s{(3, sTmp)[j & 1]}")

    A(f"""
    s_lshl_b32 s{sQ1}, s{sW}, {5 + TS}
    s_add_u32 s{sQ1}, s{sQ1}, {TF_OFF}
    s_mov_b64 vcc, {sr(sMore, 2)}
    s_cmp_ge_u32 s{sW}, 4
    s_cbranch_scc1 Lu_wave
    v_mov_b32 v{vXs + 2}, 0
    """)
    row_mask = "s_mov_b32 exec_lo, 0xfffff\ns_mov_b32 exec_hi, 0xfffff"
    for i in range(0, 32, 2):
        if i == 16:
            A(row_mask)
        A(f"v_max3_f32 v{vXs + 2}, |v{vG + i}|, |v{vG + i + 1}|, v{vXs + 2}")
    A("s_mov_b64 exec, -1")
    A(f"v_cmp_lt_f32 vcc, {hex(f32(AMAX))}, v{vXs + 2}")
    A(f"s_or_b64 vcc, vcc, {sr(sMore, 2)}")

    def node_rows():
        for nb in range(2):
            if nb == 1:
                A(row_mask)
            for g in range(4):
                A(f"ds_write_b128 v{vTw}, {vr(vG + 16 * nb + 4 * g, 4)} offset:{32 * 528 * nb + 32 * g}")
        A("s_mov_b64 exec, -1")

    def node_exponents():
        A(f"""
        v_mov_b32 v{vXs}, {hex(f32(-float(KSH)))}
        v_mov_b32 v{vXs + 1}, {hex(f32(-float(KSH)))}
        s_mov_b32 s{sTmp}, s{sNl}
        s_mov_b32 s{sTmp + 1}, s{sNl}
        """)
        for i in range(0, 32, 2):
            A(f"v_pk_fma_f32 {vr(vG + i, 2)}, {vr(vG + i, 2)}, {sr(sTmp, 2)}, {vr(vXs, 2)}")

    A("Lu_wave:")
    A("s_mov_b64 exec, vcc")
    A(f"ds_write_b32 v{vZero}, v{vOne} offset:{L_FLAG}")
    A("s_mov_b64 exec, -1")
    late_tf = int(opt.get("late_tf", 2))
    if late_tf < 2:
        A(tf_poll)
    la = vSoff
    A(f"""
    s_mul_i32 s{sSW}, s{sW}, {STRW}
    s_add_u32 s{sSW}, s{sSW}, {L_STR}
    v_add_u32 v{vSp}, s{sSW}, v{vH16}
    v_bfe_u32 v{vX + 12}, v{vTid}, 3, 2
    v_bfe_u32 v{vX + 13}, v{vTid}, 1, 1
    v_lshl_add_u32 v{vX + 12}, v{vX + 12}, 1, v{vX + 13}
    v_bfe_u32 v{vX + 13}, v{vTid}, 2, 1
    v_lshl_add_u32 v{vX + 12}, v{vX + 12}, 1, v{vX + 13}
    v_and_b32 v{vX + 13}, 1, v{vTid}
    v_lshl_add_u32 v{vX + 12}, v{vX + 12}, 1, v{vX + 13}
    v_lshl_add_u32 v{vEp}, v{vX + 12}, 2, s{sSW}
    v_bfrev_b32 v{vX + 13}, 2
    v_mov_b32 v{vX + 12}, {N << 18}
    v_lshlrev_b32 v{la}, 1, v{vX + 3}
    v_lshlrev_b32 v{la + 1}, 3, v{vX + 3}
    v_lshrrev_b32 v{la + 2}, 4, v{vX + 3}
    v_lshl_add_u32 v{la + 3}, v{la + 2}, 2, s{sSW}
    """)
    A(f"s_waitcnt vmcnt({1 if late_tf < 2 else 0})")
    stamp(A, opt, "rec")
    histogram(cand)
    A(f"s_cmp_eq_u64 {sr(sMask2, 2)}, 0")
    A("s_cbranch_scc1 Lno_hist2")
    histogram(cand2)
    A("Lno_hist2:")
    A("s_waitcnt vmcnt(0)")
    stamp(A, opt, "hist")
    epf = int(opt.get("epf", 2500))
    assert not (late_tf and pf_lanes)
    if late_tf == 2:
        A(tf_poll)
    elif late_tf:
        A(f"""
        v_lshrrev_b32 v{vX + 11}, 22, v{vTf}
        v_cmp_ne_u32_e64 {sr(sTmp, 2)}, s{sNon}, v{vTf + 1}
        v_cmp_ne_u32 vcc, s{sNon + 1}, v{vX + 11}
        s_or_b64 {sr(sMore, 2)}, vcc, {sr(sTmp, 2)}
        s_cbranch_scc0 Ltf_seen
        {tf_poll}
        Ltf_seen:
        """)
    else:
        tag_wait("tf", vTf, tf_poll)

    def early_features():
        A(f"s_mov_b32 s3, {epf << 18}")
        for rec, key_, rank, so_, eo_, m in cand[:4]:
            A(f"v_cmp_gt_u32 vcc, s3, v{rec}")
            A(f"v_bfe_u32 v{eo_}, v{rec}, 6, 12")
            A(f"v_lshl_add_u32 v{eo_}, v{eo_}, 5, v{vX + 2}")
            A(f"s_and_b64 vcc, vcc, {sr(m, 2)}")
            A("s_or_b64 exec, vcc, 1")
            A(f"buffer_load_dword v{vL + 22}, v{eo_}, {sr(S_EA, 4)}, 0 offen")
            A("s_mov_b64 exec, -1")

    if epf:
        early_features()
    A("s_waitcnt lgkmcnt(0)")
    A("s_barrier")
    stamp(A, opt, "bB")
    c, p, deg, q, inc, g4 = vL, vL + 8, vL + 16, vL + 17, vL + 18, vL + 19
    A(f"ds_read_b128 {vr(c, 4)}, v{la} offset:{L_CNT}")
    A(f"ds_read_b128 {vr(c + 4, 4)}, v{la} offset:{L_CNT + 16}")
    if pf_lanes:
        A(f"""
        s_andn2_b32 s3, s2, 7
        s_add_u32 s3, s3, s{sW}
        s_mul_i32 s3, s3, {pf_lanes * 128}
        {'s_nop 0' if pf_lanes == 64 else f's_bfm_b64 exec, {pf_lanes}, 0'}
        buffer_load_dword v{vL + 22}, v{la + 1}, {sr(S_TAB, 4)}, s3 offen {tab_pol}
        s_mov_b64 exec, -1
        """)
    A(f"""
    s_mov_b32 s{sQ2}, {L_SO}
    s_waitcnt lgkmcnt(1)
    v_add_u32 v{p + 2}, v{c}, v{c + 1}
    v_add3_u32 v{p + 4}, v{p + 2}, v{c + 2}, v{c + 3}
    s_waitcnt lgkmcnt(0)
    v_add3_u32 v{p + 6}, v{p + 4}, v{c + 4}, v{c + 5}
    v_add3_u32 v{deg}, v{p + 6}, v{c + 6}, v{c + 7}
    v_add_u32 v{q}, 3, v{deg}
    v_lshrrev_b32 v{inc}, 2, v{q}
    """)
    wave_scan(A, inc, fill=[
        [f"v_lshrrev_b32 v{q}, 2, v{q}", f"v_add_u32 v{p + 3}, v{p + 2}, v{c + 2}"],
        [f"v_add_u32 v{p + 5}, v{p + 4}, v{c + 4}", f"v_add_u32 v{p + 7}, v{p + 6}, v{c + 6}"],
        [f"v_add_u32 v{deg}, s{sW}, v{deg}", f"v_lshlrev_b32 v{c + 1}, 2, v{q}"],
        [f"v_cmp_lt_u32_e64 {sr(sNext, 2)}, v{deg}, v{c + 1}", "s_nop 0"]])
    A(f"v_sub_u32 v{g4}, v{inc}, v{q}")
    A(f"v_readlane_b32 s3, v{inc}, 63")
    A(f"v_lshl_add_u32 v{p}, v{g4}, 5, s{sQ2}")
    A(f"v_lshl_add_u32 v{p + 1}, v{c}, 3, v{p}")
    for i in range(2, 8):
        A(f"v_lshl_add_u32 v{p + i}, v{p + i}, 3, v{p}")
        if i in (3, 7):
            A(f"ds_write_b128 v{la}, {vr(p + i - 3, 4)} offset:{L_BASE + 4 * (i - 3)}")
    for cd in cand:
        A(f"ds_read_b32 v{cd[1]}, v{cd[1]} offset:{L_BASE}")
    A(f"""
    s_mul_i32 s{sLw}, s3, s{sW}
    s_add_u32 s{sRem}, s{sLw}, s3
    s_lshr_b32 s{sLw}, s{sLw}, 3
    s_lshr_b32 s{sRem}, s{sRem}, 3
    v_cmp_gt_u32_e64 {sr(sTmp, 2)}, s{sLw}, v{g4}
    v_cmp_gt_u32 vcc, s{sRem}, v{g4}
    v_lshl_add_u32 v{deg}, v{deg}, 3, v{p}
    s_bcnt1_i32_b64 s{sF0}, {sr(sTmp, 2)}
    s_bcnt1_i32_b64 s{sOwn}, vcc
    s_cmp_eq_u32 s{sW}, 7
    s_cselect_b32 s{sOwn}, s{sNn}, s{sOwn}
    s_sub_u32 s{sOwn}, s{sOwn}, s{sF0}
    s_sub_u32 s{sRem}, s{sRem}, s{sLw}
    s_waitcnt lgkmcnt(0)
    """)
    stamp(A, opt, "scan2")
    place(cand)
    A(f"s_cmp_eq_u64 {sr(sMask2, 2)}, 0")
    A("s_cbranch_scc1 Lno_place2")
    for cd in cand2:
        A(f"ds_read_b32 v{cd[1]}, v{cd[1]} offset:{L_BASE}")
    A("s_waitcnt lgkmcnt(0)")
    place(cand2)
    A("Lno_place2:")
    en, so, eo, key, cn, pos, t = vL, vL + 8, vL + 12, vL + 20, vL + 24, vL + 21, vL + 26
    A(f"""
    s_mov_b64 exec, {sr(sNext, 2)}
    ds_write_b64 v{deg}, {vr(vX + 12, 2)}
    s_mov_b64 exec, -1
    """)
    if late_tf:
        if late_tf < 2:
            A(f"s_cmp_eq_u64 {sr(sMore, 2)}, 0")
            A("s_cbranch_scc1 Ltf_ok")
        A(f"s_waitcnt vmcnt({4 if epf else 0})")
        tag_wait("tf", vTf, tf_poll)
    A(f"""
    s_sub_u32 s3, s{sOwn}, 1
    s_sub_u32 s{sTmp}, s{sRem}, 1
    s_cmp_gt_u32 s{sTmp}, 63
    s_cselect_b32 s3, 8, s3
    s_cmp_gt_u32 s3, 7
    s_cselect_b64 exec, 1, 0
    ds_write_b32 v{vZero}, v{vOne} offset:{L_FLAG}
    s_mov_b64 exec, -1
    s_lshl_b32 s3, s{sLw}, 5
    v_add_u32 v{t}, s3, v{la}
    v_cmp_le_u32_e64 {sr(sTmp, 2)}, s{sRem}, v{la + 2}
    s_sub_u32 s{sQ1}, s{sF0}, 1
    s_mul_i32 s{sQ2}, s{sQ1}, 528
    s_add_u32 s{sQ2}, s{sQ2}, {L_TA}
    s_mov_b32 s{sQ3}, 0xfffffe00
    s_waitcnt lgkmcnt(0)
    s_barrier
    ds_read_b128 {vr(en, 4)}, v{t} offset:{L_SO}
    ds_read_b32 v{t + 3}, v{vZero} offset:{L_FLAG}
    ds_read_b128 {vr(en + 4, 4)}, v{t} offset:{L_SO + 16}
    v_cndmask_b32_e64 v{vInv}, 0, v{vX + 13}, {sr(sTmp, 2)}
    v_add_u32 v{vEb}, s{sQ2}, v{vLo}
    v_mov_b64 {vr(cn, 2)}, 1
    s_waitcnt lgkmcnt({2 if int(opt.get("kent", 1)) < 2 else 0})
    v_lshrrev_b32 v{key}, 26, v{en + 2 * int(opt.get("kent", 1))}
    v_and_b32 v{key}, 56, v{key}
    v_cndmask_b32_e64 v{key}, v{key}, 56, {sr(sTmp, 2)}
    s_waitcnt lgkmcnt(1)
    v_readfirstlane_b32 s3, v{t + 3}
    v_lshlrev_b64 {vr(cn, 2)}, v{key}, {vr(cn, 2)}
    v_and_b32 v{t + 3}, 63, v{en}
    s_cmp_lg_u32 s3, 0
    s_cbranch_scc1 Lslow_entry
    s_waitcnt lgkmcnt(0)
    """)
    stamp(A, opt, "bD")
    fillers = [f"v_subrev_u32 v{t + 3}, s{sQ1}, v{t + 3}", f"v_mul_u32_u24 v{t + 3}, 12, v{t + 3}"]
    fillers += [f"v_lshrrev_b32 v{so + i}, 9, v{en + 2 * i}" for i in range(4)]
    for k, d in enumerate(WAVE_SCAN):
        A(f"v_add_u32_dpp v{cn}, v{cn}, v{cn} {d} bank_mask:0xf")
        A(f"v_add_u32_dpp v{cn + 1}, v{cn + 1}, v{cn + 1} {d} bank_mask:0xf")
        A(fillers[k])
    A(f"v_readlane_b32 s{sTmp}, v{cn}, 63")
    A(f"v_readlane_b32 s{sTmp + 1}, v{cn + 1}, 63")
    for i in range(4):
        A(f"v_bfe_u32 v{eo + i}, v{en + 2 * i}, 6, 12")
    A(f"""
    s_mul_i32 s3, s{sTmp}, 0x01010101
    s_mul_i32 s{sTmp + 1}, s{sTmp + 1}, 0x01010100
    s_lshl_b32 s{sTmp}, s3, 8
    s_lshr_b32 s3, s3, 24
    s_mul_i32 s3, s3, 0x01010101
    s_add_u32 s{sTmp + 1}, s{sTmp + 1}, s3
    v_lshl_add_u64 {vr(cn, 2)}, {vr(cn, 2)}, 0, {sr(sTmp, 2)}
    s_sub_u32 s3, s{sSW}, 16
    v_lshrrev_b64 {vr(cn, 2)}, v{key}, {vr(cn, 2)}
    """)
    for i in range(4):
        A(f"v_lshl_add_u32 v{eo + i}, v{eo + i}, 5, v{en + 2 * i + 1}")
    A(f"v_and_b32 v{pos}, 0xff, v{cn}")
    for i in range(4):
        A(f"v_or_b32 v{eo + i}, v{eo + i}, v{vInv}")
    A(f"v_lshl_add_u32 v{t}, v{pos}, 4, s3")
    A(f"ds_write_b128 v{t}, {vr(eo, 4)} offset:1152")
    A(f"ds_read_b32 v{vEo}, v{vEp} offset:1152")
    for i in range(4):
        A(f"v_and_or_b32 v{so + i}, v{so + i}, s{sQ3}, v{vInv}")
    A(f"""
    v_and_b32 v{t + 1}, 1, v{pos}
    v_lshl_add_u32 v{t + 1}, v{t + 1}, 3, v{t}
    v_subrev_u32 v{t + 1}, 8, v{t + 1}
    ds_write2_b64 v{t + 1}, {vr(so, 2)}, {vr(so + 2, 2)} offset0:0 offset1:2
    ds_read_b128 {vr(vT, 4)}, v{vSp}
    ds_read_b128 {vr(vSo, 4)}, v{vSp} offset:32
    v_add_u32 v{t + 2}, s{sSW}, v{pos}
    ds_write_b8 v{t + 2}, v{t + 3} offset:2303
    ds_read_b32 v{vSb}, v{la + 3} offset:2304
    s_waitcnt lgkmcnt(5)
    v_add_u32 v{vEo}, v{vEo}, v{vH16}
    buffer_load_dwordx4 {vr(vEA, 4)}, v{vEo}, {sr(S_EA, 4)}, 0 offen {ea_pol}
    """)
    dist = int(opt.get("dist", 4))
    for u in range(dist):
        src = (vT, vT + 2, vSo, vSo + 2)[u]
        if u in (0, 2):
            A(f"s_waitcnt lgkmcnt({(3, 1)[u // 2]})")
        A(f"v_lshl_add_u64 {vr(src, 2)}, {vr(src, 2)}, 0, {vr(vLo, 2)}")
        A(f"buffer_load_dwordx4 {vr(vL + 8 * u, 4)}, v{src}, {sr(S_TAB, 4)}, 0 offen {tab_pol}")
        A(f"buffer_load_dwordx4 {vr(vL + 8 * u + 4, 4)}, v{src + 1}, {sr(S_TAB, 4)}, 0 offen {tab_pol}")
    stamp(A, opt, "prim")
    eps = 1e-6 / c0
    wc_reads()
    A(f"s_and_b32 s3, s{sW}, 4")
    A(f"v_mov_b32 v{vEad}, s3")
    A("s_cbranch_scc1 Lfactors_made")
    node_exponents()
    for i in range(32):
        A(f"v_exp_f32 v{vG + i}, v{vG + i}")
    A("Lfactors_made:")
    node_rows()
    A(f"""
    s_mov_b64 exec, 1
    ds_add_u32 v{vEad}, v{vOne} offset:{L_FLAG + 8}
    s_mov_b64 exec, -1
    s_waitcnt lgkmcnt(9)
    """)
    wc_fragments()
    A(f"""
    s_waitcnt lgkmcnt(0)
    s_mov_b32 s{sTmp}, {hex(f32(eps / 2))}
    s_mov_b32 s{sTmp + 1}, {hex(f32(eps / 2))}
    """)
    for sl_ in range(NS):
        for j in range(0, 8, 2):
            A(f"v_mov_b64 {vr(vSl + 12 * sl_ + j, 2)}, {sr(sTmp, 2) if sl_ and j >= 4 else 0}")
    eA1, eA2, eA3, eA4, eFl, eOne = 248, 249, 250, 251, 252, 253
    sOut, sLast = sOvf, sMor
    A(f"""
    v_add_u32 v{eA1}, s{sSW}, v{vX + 3}
    s_mul_i32 s3, s{sF0}, 528
    s_add_u32 s3, s3, {L_TU}
    v_mul_u32_u24 v{eA2}, 33, v{vH16}
    v_add3_u32 v{eA2}, v{eA2}, v{vLo}, s3
    s_mul_i32 s3, s{sF0}, 272
    s_add_u32 s3, s3, {L_X}
    v_mul_u32_u24 v{eA3}, 17, v{vH16}
    v_lshrrev_b32 v{eA4}, 1, v{vLo}
    v_add3_u32 v{eA3}, v{eA3}, v{eA4}, s3
    v_lshl_add_u32 v{eA4}, v{vH16}, 4, v{eA4}
    s_lshl_b32 s3, s{sW}, 2
    v_mov_b32 v{eFl}, s3
    v_mov_b32 v{eOne}, {L_FLAG + 12}
    s_add_u32 s{sOut}, s{sN0}, s{sF0}
    s_lshl_b32 s{sOut}, s{sOut}, 8
    s_mul_i32 s{sLast}, s{sOwn}, 12
    """)
    A("Lfactors:")
    A(f"ds_read_b32 v{vEad}, v{vZero} offset:{L_FLAG + 8}")
    for sl_ in range(NS):
        A(f"ds_read_b128 {vr(vSl + 12 * sl_ + 8, 4)}, v{vEb} offset:{528 * sl_}")
    A("s_waitcnt lgkmcnt(0)")
    A(f"v_cmp_gt_u32 vcc, 4, v{vEad}")
    A("s_cbranch_vccnz Lfactors")
    ea_at = int(opt.get("ea_at", 3))
    prio = opt.get("prio", "alt")
    A(f"""
    s_waitcnt lgkmcnt(0)
    v_readlane_b32 s{sSl0}, v{vSb}, 0
    v_readlane_b32 s{sSl1}, v{vSb}, 1
    s_mov_b32 s{sLn}, 2
    s_mov_b32 s{sLn + 1}, 3
    """)
    if prio == "quart":
        A(f"""
        s_mul_i32 s{sQ1}, s{sRem}, 3
        s_lshr_b32 s{sQ1}, s{sQ1}, 2
        s_lshr_b32 s{sQ2}, s{sRem}, 1
        s_lshr_b32 s{sQ3}, s{sRem}, 2
        """)
    else:
        first_drop = [int(x) for x in opt.get("drop", "8,16").split(",")]
        A(f"""
        s_cmp_lt_u32 s{sW}, 4
        s_cselect_b32 s3, {first_drop[0]}, {first_drop[1]}
        s_sub_i32 s{sQ1}, s{sRem}, s3
        s_sub_i32 s{sQ2}, s{sQ1}, {int(opt.get("dstep", 16))}
        s_sub_i32 s{sQ3}, s{sQ2}, {int(opt.get("dstep", 16))}
        """)
        if opt.get("dend"):
            e0, e1 = (int(x) for x in opt["dend"].split(","))
            A(f"""
            s_cmp_lt_u32 s{sW}, 4
            s_cselect_b32 s{sQ3}, {e0}, {e1}
            s_add_u32 s{sQ2}, s{sQ3}, {int(opt.get("dstep", 16))}
            s_add_u32 s{sQ1}, s{sQ2}, {int(opt.get("dstep", 16))}
            """)
    thr_on = opt.get("thr")
    if thr_on:
        ref, mul, cut = (int(x) for x in thr_on.split(","))
        A(f"""
        s_sub_i32 s3, {ref}, s{sRem}
        s_mul_i32 s3, s3, {mul}
        s_sub_i32 s{sTi}, s{sRem}, s3
        """)
    fair = int(opt.get("fair", 0))
    vFa, vFi, vFr = 248, 249, 250
    if fair:
        A(f"""
        s_and_b32 s3, s{sW}, 3
        s_lshl_b32 s3, s3, 2
        v_mov_b32 v{vFa}, s3
        s_cmp_lt_u32 s{sW}, 4
        s_cselect_b32 s{sQ1}, 1, -1
        v_mov_b32 v{vFi}, s{sQ1}
        """)
    A("s_setprio 3")
    A(f"s_waitcnt vmcnt({2 * dist})")
    stamp(A, opt, "first")

    def mfma(j):
        return f"v_mfma_f32_32x32x16_bf16 {vr(vD + 16 * j, 16)}, {vr(vEA, 4)}, {vr(vWC + 4 * j, 4)}, 0"

    for j in range(4):
        A(mfma(j))
    A("s_nop 8")
    A(f"s_cmp_gt_u32 s{sRem}, 8")
    A("s_cbranch_scc0 Llast")

    def step(u, last, q):
        La, Lb = vL + 8 * (u & 3), vL + 8 * (u & 3) + 4
        a, b = vT, vT + 4
        sl = (sSl0, sSl1)[u >> 2]
        nv = u + dist
        prefetch = not (last and nv >= 8)
        check = fair and u % fair == 0
        need = [u] + (["E"] if u == 7 and not last else [])
        A(f"s_waitcnt vmcnt({len(q) - 1 - max(i for i, x in enumerate(q) if x in need)})")
        if thr_on and not last:
            A(f"s_cbranch_vccz Lthr{u}")
            A(f"s_waitcnt vmcnt({len(q) - 1 - max(i for i, x in enumerate(q) if x in need + [u + cut])})")
            A(f"Lthr{u}:")
        lds = (prefetch and nv % 2 == 0) or (u == ea_at and not last) or check
        if prefetch and nv % 2 == 0:
            A(f"ds_read_b128 {vr(vSo, 4)}, v{vSp} offset:{16 * nv}")
        if check:
            A("s_nop 0")
            A("s_mov_b64 exec, 1")
            A(f"ds_add_rtn_u32 v{vFr}, v{vFa}, v{vFi} offset:{L_FLAG + 32}")
            A("s_mov_b64 exec, -1")
            A("s_nop 0")
        if u == ea_at and not last:
            A(f"ds_read_b32 v{vEo}, v{vEp} offset:{1152 + 128}")

        def mix(j, hb):
            return (f"v_fma_mix_f32 v{(a, b)[hb] + j}, v{vD + 16 * j + 2 * u + hb}, s{sNl}, v{(La, Lb)[hb] + j} "
                    "op_sel_hi:[0,0,1]")

        if u == 7 and not last:
            for j in range(4):
                A(mix(j, 0))
                A(mix(j, 1))
                if j:
                    A(f"v_exp_f32 v{a + j - 1}, v{a + j - 1}")
                    A(f"v_exp_f32 v{b + j - 1}, v{b + j - 1}")
                A(mfma(j))
            A(f"v_exp_f32{'' if lds else '_e64'} v{a + 3}, v{a + 3}")
            A(f"v_exp_f32 v{b + 3}, v{b + 3}")
        else:
            for hb in range(2):
                for j in range(4):
                    A(mix(j, hb))
            for j in range(8):
                A(f"v_exp_f32{'_e64' if j == 0 and not lds else ''} v{a + j}, v{a + j}")
        if lds:
            A("s_waitcnt lgkmcnt(0)")
        A(f"s_set_gpr_idx_on s{sl}, gpr_idx(SRC1)")
        for j in range(0, 8, 2):
            A(f"v_pk_fma_f32 {vr(a + j, 2)}, {vr(a + j, 2)}, {vr(vSl + 8 + (j & 3), 2)}, {sr(sC0, 2)} clamp")
        A("s_set_gpr_idx_mode gpr_idx()")
        A(f"s_lshr_b32 s{sl}, s{sl}, 8")
        if check:
            A(f"v_readlane_b32 s3, v{vFr}, 0")
        if u == ea_at and not last:
            A(f"v_add_u32_e64 v{vEo}, v{vEo}, v{vH16}")
            A(f"buffer_load_dwordx4 {vr(vEA, 4)}, v{vEo}, {sr(S_EA, 4)}, 0 offen {ea_pol}")
            q.append("E")
        for j in (0, 2):
            A(f"v_pk_mul_f32 {vr(La + j, 2)}, {vr(La + j, 2)}, {vr(b + j, 2)}")
        if check:
            tag = f"Lfair{u}{'l' if last else ''}"
            A(f"""
            s_mul_i32 s3, s3, s{sQ1}
            s_setprio 0
            s_cmp_ge_i32 s3, 0
            s_cbranch_scc1 {tag}
            s_setprio 2
            s_nop 0
            {tag}:
            """)
        so2 = vSo + 2 * (nv & 1)
        if prefetch:
            A(f"v_lshl_add_u64 {vr(so2, 2)}, {vr(so2, 2)}, 0, {vr(vLo, 2)}")
        for j in (0, 2):
            A(f"v_pk_fma_f32 {vr(La + j, 2)}, {vr(Lb + j, 2)}, {vr(a + j, 2)}, {vr(La + j, 2)}")
        for j in (0, 2):
            A(f"v_pk_add_f32 {vr(Lb + j, 2)}, {vr(a + j, 2)}, {vr(b + j, 2)}")
        for j in (0, 2):
            A(f"v_pk_mul_f32 {vr(a + j, 2)}, {vr(a + j, 2)}, {vr(b + j, 2)}")
        for j in range(4):
            A(f"v_rcp_f32{'_e64' if j == 0 else ''} v{a + j}, v{a + j}")
        A("s_set_gpr_idx_mode gpr_idx(SRC2,DST)")
        for j in (0, 2):
            A(f"v_pk_fma_f32 {vr(vSl + j, 2)}, {vr(La + j, 2)}, {vr(a + j, 2)}, {vr(vSl + j, 2)}")
            A(f"v_pk_fma_f32 {vr(vSl + 4 + j, 2)}, {vr(Lb + j, 2)}, {vr(a + j, 2)}, {vr(vSl + 4 + j, 2)}")
        if prefetch:
            A(f"buffer_load_dwordx4 {vr(vL + 8 * (nv & 3), 4)}, v{so2}, {sr(S_TAB, 4)}, 0 offen {tab_pol}")
            A(f"buffer_load_dwordx4 {vr(vL + 8 * (nv & 3) + 4, 4)}, v{so2 + 1}, {sr(S_TAB, 4)}, 0 offen {tab_pol}")
            q += [nv] * 2
        A("s_set_gpr_idx_off")

    assert 0 <= ea_at < 7
    A.note("""main loop: eight groups per tile. a = min(2^-48 * (1 + exp(-gate)), 1) for edges a and b of each half-wave:
    num += (Va * b + Vb * a) / (a * b), den += (a + b) / (a * b)""")
    A(".p2align 6")
    A("Ltile:")
    A(f"s_sub_u32 s{sRem}, s{sRem}, 8")
    if thr_on:
        A(f"s_cmp_ge_i32 s{sRem}, s{sTi}")
        A("s_cselect_b64 vcc, -1, 0")
    q = [0, 0, 1, 1, 2, 2, 3, 3][:2 * dist]
    for u in range(8):
        step(u, False, q)
        if u == 3 and int(opt.get("pmid", 0)):
            A(f"s_add_u32 s3, s{sRem}, 4")
            for k, sq in enumerate((sQ1, sQ2, sQ3)):
                A(f"s_cmp_le_i32 s3, s{sq}")
                A("s_cbranch_scc0 Lprio_mid")
                A(f"s_setprio {2 - k}")
            A("Lprio_mid:")
    A(f"""
    s_nop 0
    v_readlane_b32 s{sSl0}, v{vSb}, s{sLn}
    v_readlane_b32 s{sSl1}, v{vSb}, s{sLn + 1}
    v_add_u32 v{vSp}, 0x80, v{vSp}
    v_add_u32 v{vEp}, 0x80, v{vEp}
    s_add_u32 s{sLn}, s{sLn}, 2
    s_add_u32 s{sLn + 1}, s{sLn + 1}, 2
    """)
    if opt.get("tilestamps"):
        for k in range(2, 6):
            A(f"s_cmp_lg_u32 s{sLn}, {2 * k + 2}")
            A(f"s_cbranch_scc1 Lts{k}")
            stamp(A, opt, f"tile{k}")
            A(f"Lts{k}:")
    if prio != "none" and not fair:
        for k, sq in enumerate((sQ1, sQ2, sQ3)):
            A(f"s_cmp_le_i32 s{sRem}, s{sq}")
            A("s_cbranch_scc0 Lprio_done")
            A(f"s_setprio {2 - k}")
        A("Lprio_done:")
    A(f"s_cmp_gt_u32 s{sRem}, 8")
    A("s_cbranch_scc1 Ltile")
    A(".p2align 3")
    A(f"""
    Llast:
    ds_read_b32 v{vEad}, v{eOne}
    s_waitcnt lgkmcnt(0)
    v_cmp_gt_u32 vcc, 4, v{vEad}
    s_cbranch_vccnz Llast
    """)
    q = [0, 0, 1, 1, 2, 2, 3, 3][:2 * dist]
    for u in range(8):
        step(u, True, q)
        if u < 7:
            A(f"s_cmp_le_u32 s{sRem}, {u + 1}")
            A("s_cbranch_scc1 Lmain_done")
    A("Lmain_done:")
    stamp(A, opt, "done")

    def finalize(a0, o, a1, u0, x0, addr, soff, pre_store, pre_rows=""):
        for j in range(4):
            A(f"v_permlane32_swap_b32 v{a0 + j}, v{a1 + j}")
            A(f"v_permlane32_swap_b32 v{a0 + o + j}, v{a1 + o + j}")
        for j in (o, o + 2, 0, 2):
            A(f"v_pk_add_f32 {vr(a0 + j, 2)}, {vr(a0 + j, 2)}, {vr(a1 + j, 2)}")
        for j in range(4):
            A(f"v_rcp_f32 v{a0 + o + j}, v{a0 + o + j}")
        A(pre_rows)
        for j in (0, 2):
            A(f"v_pk_fma_f32 {vr(a0 + j, 2)}, {vr(a0 + j, 2)}, {vr(a0 + o + j, 2)}, {vr(u0 + j, 2)}")
        A(f"v_cvt_pk_bf16_f32 v{a0}, v{a0}, v{a0 + 1}")
        A(f"v_cvt_pk_bf16_f32 v{a0 + 1}, v{a0 + 2}, v{a0 + 3}")
        A(f"v_pk_max_f16 v{a0}, v{a0}, v{x0}")
        A(f"v_pk_max_f16 v{a0 + 1}, v{a0 + 1}, v{x0 + 1}")
        A(pre_store)
        A(f"buffer_store_dwordx2 {vr(a0, 2)}, v{addr}, {sr(S_OUT, 4)}, s{soff} offen {opt.get('out_pol', 'sc1 nt')}")

    vU, vXr, vA1, vA2, vA3, vCy = vD, vD + 16, vD + 24, vD + 25, vD + 26, vD + 32
    carry_reads = f"""
    ds_read_b32 v{vEad}, v{eFl} offset:{L_FLAG + 64 + 4}
    ds_read_b128 {vr(vCy, 4)}, v{eA1} offset:{STRW}
    ds_read_b128 {vr(vCy + 4, 4)}, v{eA1} offset:{STRW + 1024}
    """
    A(f"""
    ds_write_b128 v{eA1}, {vr(vSl, 4)}
    ds_write_b128 v{eA1}, {vr(vSl + 4, 4)} offset:1024
    ds_write_b32 v{eFl}, v{eOne} offset:{L_FLAG + 64}
    """)
    for pr in range(4):
        A(f"ds_read_b128 {vr(vU + 4 * pr, 4)}, v{eA2} offset:{1056 * pr}")
        A(f"ds_read_b64 {vr(vXr + 2 * pr, 2)}, v{eA3} offset:{544 * pr}")
    A(carry_reads)
    for pr in range(4):
        if pr < 3:
            A(f"s_cmp_gt_u32 s{sOwn}, {2 * pr + 2}")
            A(f"s_cbranch_scc1 Lfin{pr}")
        A(f"""
        s_cmp_eq_u32 s{sW}, 7
        s_cbranch_scc1 Lfin{pr}
        Lcarry{pr}:
        s_waitcnt lgkmcnt(0)
        v_cmp_eq_u32 vcc, 0, v{vEad}
        s_cbranch_vccz Lcarried{pr}
        s_sleep 1
        {carry_reads}
        s_branch Lcarry{pr}
        Lcarried{pr}:
        s_set_gpr_idx_on s{sLast}, gpr_idx(SRC0,DST)
        """)
        for j in range(0, 8, 2):
            A(f"v_pk_add_f32 {vr(vSl + j, 2)}, {vr(vSl + j, 2)}, {vr(vCy + j, 2)}")
        A("s_set_gpr_idx_off")
        A("s_nop 1")
        A(f"Lfin{pr}:")
        finalize(vSl + 12 * (2 * pr + 1), 4, vSl + 12 * (2 * pr + 2), vU + 4 * pr, vXr + 2 * pr, eA4, sOut,
                 f"s_cmp_gt_u32 s{sOwn}, {2 * pr + 1}\ns_cselect_b32 exec_hi, -1, 0", "" if pr else "s_waitcnt lgkmcnt(0)")
        if pr < 3:
            A(f"s_add_u32 s{sOut}, s{sOut}, 512")
            A(f"s_cmp_gt_u32 s{sOwn}, {2 * pr + 2}")
            A("s_cbranch_scc0 Lk2_done")
    A("Lk2_done:")
    if opt.get("xcc"):
        A("s_getreg_b32 s4, hwreg(HW_REG_XCC_ID, 0, 4)")
        A("s_sub_u32 s4, s4, s2")
        A("s_and_b32 s4, s4, 7")
        A("s_mul_i32 s4, s4, 100")
    stamp_flush(A, opt, 8, 0x20000, vTid)
    if opt.get("spin"):
        A("""
        Lspin:
        s_memrealtime s[42:43]
        s_waitcnt lgkmcnt(0)
        s_sub_u32 s42, s42, s100
        s_cmp_lt_u32 s42, 10000
        s_cbranch_scc1 Lspin
        """)
    A("Lk2_exit:")
    A("s_endpgm")

    NU = 7
    vAcc, vAn = 0, 56
    vLs = [vL + 8 * u for u in range(4)] + [84 + 8 * u for u in range(3)]
    vP, vErr, vQ, vCaddr, vUaddr = 245, 252, 253, 254, 255
    A("Lcold_code:")
    A("Lslow_entry:")
    A(f"s_cmp_ge_u32 s{sW}, 4")
    A("s_cbranch_scc1 Lg_rows")
    node_exponents()
    A("Lg_rows:")
    node_rows()
    wc_reads()
    A("s_waitcnt lgkmcnt(0)")
    wc_fragments()
    A(f"""
    s_waitcnt vmcnt(0) lgkmcnt(0)
    s_barrier
    v_lshlrev_b32 v{vX + 11}, 2, v{vTid}
    ds_write_b32 v{vX + 11}, v{vZero} offset:{L_CNT}
    s_mul_i32 s3, s{sW}, 528
    s_add_u32 s3, s3, {L_TA}
    v_add_u32 v{vX + 11}, s3, v{vLo}
    """)
    for u in range(NU):
        A(f"ds_read_b128 {vr(vAn + 4 * u, 4)}, v{vX + 11} offset:{8 * 528 * u}")
    A(f"s_mov_b32 s{sTmp}, {hex(f32(eps / 2))}")
    A(f"s_mov_b32 s{sTmp + 1}, {hex(f32(eps / 2))}")
    for i in range(0, 8 * NU, 2):
        A(f"v_mov_b64 {vr(vAcc + i, 2)}, {sr(sTmp, 2) if i & 4 else 0}")
    A(f"""
    v_bfe_u32 v{vX + 11}, v{vTid}, 3, 3
    v_and_b32 v{vX + 12}, 7, v{vTid}
    v_lshlrev_b32 v{vX + 12}, 2, v{vX + 12}
    v_lshl_add_u32 v{vX + 12}, v{vX + 11}, 8, v{vX + 12}
    s_lshl_b32 s3, s{sW}, 5
    v_add_u32 v{vCaddr}, s3, v{vX + 12}
    v_bfe_u32 v{vX + 11}, v{vTid}, 3, 2
    v_bfe_u32 v{vX + 12}, v{vTid}, 1, 1
    v_lshl_add_u32 v{vX + 11}, v{vX + 11}, 1, v{vX + 12}
    v_lshlrev_b32 v{vUaddr}, 5, v{vX + 11}
    Lbatch:
    """)
    batch_masks(16)
    A("Lround:")
    rec_addr()
    rec_loads()
    A(f"""
    v_mov_b32 v{vZero}, 0
    v_mov_b32 v{vOne}, 1
    ds_write_b32 v{vZero}, v{vZero} offset:{L_FLAG}
    ds_write_b32 v{vZero}, v{vZero} offset:{L_FLAG + 4}
    s_waitcnt lgkmcnt(0)
    s_barrier
    s_mov_b64 exec, {sr(sMore, 2)}
    ds_write_b32 v{vZero}, v{vOne} offset:{L_FLAG + 4}
    s_mov_b64 exec, -1
    s_waitcnt vmcnt(0)
    """)
    histogram(cand)
    for rec, key_, rank, so_, eo_, m in cand:
        A(f"v_lshrrev_b32 v{so_}, 18, v{rec}")
        A(f"v_bfe_u32 v{eo_}, v{rec}, 6, 12")
        A(f"v_lshlrev_b32 v{so_}, 9, v{so_}")
        A(f"v_lshl_add_u32 v{eo_}, v{eo_}, 5, v{vX + 2}")
    A("s_waitcnt lgkmcnt(0)")
    A("s_barrier")
    c, inc, deg, q, t0, t1 = vX + 12, vX + 13, vX + 14, vX + 15, vX + 16, vX + 17
    A(f"ds_read_b32 v{c}, v{vCaddr} offset:{L_CNT}")
    A(f"v_lshrrev_b32 v{t0}, 5, v{vCaddr}")
    A(f"v_lshlrev_b32 v{t0}, 6, v{t0}")
    A("s_waitcnt lgkmcnt(0)")
    A(f"ds_write_b32 v{vCaddr}, v{vZero} offset:{L_CNT}")
    A(f"v_mov_b32 v{inc}, v{c}")
    for d in (1, 2, 4, 8):
        A("s_nop 1")
        A(f"v_add_u32_dpp v{inc}, v{inc}, v{inc} row_shr:{d} row_mask:0xf bank_mask:0xf")
    A(f"""
    v_mov_b32 v{t1}, 0
    s_nop 0
    v_mov_b32_dpp v{deg}, v{inc} row_newbcast:7 row_mask:0xf bank_mask:0x3
    v_mov_b32_dpp v{t1}, v{inc} row_newbcast:7 row_mask:0xf bank_mask:0xc
    v_mov_b32_dpp v{deg}, v{inc} row_newbcast:15 row_mask:0xf bank_mask:0xc
    v_sub_u32 v{inc}, v{inc}, v{t1}
    v_sub_u32 v{deg}, v{deg}, v{t1}
    v_sub_u32 v{inc}, v{inc}, v{c}
    v_add_u32 v{inc}, v{inc}, v{t0}
    ds_write_b32 v{vCaddr}, v{inc} offset:{L_BASE}
    v_cmp_lt_u32 vcc, 64, v{deg}
    v_min_u32 v{deg}, 64, v{deg}
    v_add_u32 v{q}, 3, v{deg}
    v_lshrrev_b32 v{q}, 2, v{q}
    s_mov_b64 exec, vcc
    ds_write_b32 v{vZero}, v{vOne} offset:{L_FLAG}
    s_mov_b64 exec, -1
    ds_bpermute_b32 v{vQ}, v{vUaddr}, v{q}
    v_and_b32 v{c}, 7, v{vTid}
    v_add_u32 v{c}, v{c}, v{deg}
    v_lshlrev_b32 v{t1}, 2, v{q}
    v_cmp_lt_u32 vcc, v{c}, v{t1}
    v_add_lshl_u32 v{c}, v{c}, v{t0}, 2
    v_mov_b32 v{t0}, {TAB_BYTES}
    v_bfrev_b32 v{t1}, 2
    s_mov_b64 exec, vcc
    ds_write_b32 v{c}, v{t0} offset:{L_SO}
    ds_write_b32 v{c}, v{t1} offset:{L_EO}
    s_mov_b64 exec, -1
    v_max_u32_dpp v{q}, v{q}, v{q} row_ror:8 row_mask:0xf bank_mask:0xf
    s_nop 0
    v_readlane_b32 s{sT}, v{q}, 0
    v_readlane_b32 s3, v{q}, 16
    v_readlane_b32 s{sTmp}, v{q}, 32
    v_readlane_b32 s{sTmp + 1}, v{q}, 48
    s_waitcnt lgkmcnt(0)
    s_barrier
    ds_read_b64 {vr(vX + 12, 2)}, v{vZero} offset:{L_FLAG}
    """)
    for i in range(8):
        A(f"ds_read_b32 v{vKey + i}, v{vKey + i} offset:{L_BASE}")
    A(f"""
    s_max_u32 s{sT}, s{sT}, s3
    s_max_u32 s{sTmp}, s{sTmp}, s{sTmp + 1}
    s_max_u32 s{sT}, s{sT}, s{sTmp}
    s_waitcnt lgkmcnt(0)
    v_readfirstlane_b32 s{sOvf}, v{vX + 12}
    v_readfirstlane_b32 s{sMor}, v{vX + 13}
    """)
    for i in range(8):
        A(f"v_and_b32 v{vX + 12}, 63, v{vRec + i}")
        A(f"v_add_u32 v{vKey + i}, v{vKey + i}, v{vRank + i}")
        A(f"v_lshl_add_u32 v{vX + 12}, v{vX + 12}, 6, 64")
        A(f"v_cmp_lt_u32 vcc, v{vKey + i}, v{vX + 12}")
        A(f"v_lshlrev_b32 v{vKey + i}, 2, v{vKey + i}")
        A(f"s_and_b64 exec, vcc, {sr(sMask + 2 * i, 2)}")
        A(f"ds_write_b32 v{vKey + i}, v{vSoff + i} offset:{L_SO}")
        A(f"ds_write_b32 v{vKey + i}, v{vEoff + i} offset:{L_EO}")
        A(f"s_andn2_b64 {sr(sMask + 2 * i, 2)}, {sr(sMask + 2 * i, 2)}, vcc")
        A("s_mov_b64 exec, -1")
    A(f"""
    s_lshl_b32 s3, s{sW}, 8
    v_lshrrev_b32 v{vX + 12}, 1, v{vH16}
    v_add_u32 v{vP}, s3, v{vX + 12}
    v_and_b32 v{vX + 12}, 1, v{vTid}
    v_bfe_u32 v{vX + 13}, v{vTid}, 2, 1
    v_lshl_add_u32 v{vX + 12}, v{vX + 13}, 1, v{vX + 12}
    v_lshl_add_u32 v{vX + 12}, v{vX + 12}, 2, s3
    v_lshl_add_u32 v{vEp}, v{vUaddr}, 6, v{vX + 12}
    s_lshr_b32 s3, s{sT}, 1
    v_mov_b32 v{vErr}, s3
    s_mov_b64 {sr(sCur, 2)}, 0
    s_mov_b32 s{sTi}, 0
    """)
    for u in range(1, NU):
        A(f"v_mov_b32 v{vP + u}, v{vP}")
    A(f"""
    s_waitcnt lgkmcnt(0)
    s_barrier
    s_cmp_eq_u32 s{sT}, 0
    s_cbranch_scc1 Lg_done
    s_branch Lg_entry
    Lg_tile:
    s_waitcnt vmcnt({2 * NU})
    """)
    for j in range(4):
        A(mfma(j))
    A(f"""
    Lg_entry:
    v_add_u32 v{vErr}, v{vQ}, v{vErr}
    ds_read_b32 v{vEo}, v{vEp} offset:{L_EO}
    ds_read_b64 {vr(vSo, 2)}, v{vP} offset:{L_SO}
    v_cmp_le_u32_e64 {sr(sNext, 2)}, s{sT}, v{vErr}
    s_cmp_lt_u32 s{sTi}, s{sT}
    s_cselect_b64 {sr(sNext, 2)}, {sr(sNext, 2)}, 1
    s_mov_b64 exec, {sr(sNext, 2)}
    v_subrev_u32 v{vErr}, s{sT}, v{vErr}
    v_add_u32 v{vEp}, 16, v{vEp}
    s_waitcnt lgkmcnt(1)
    v_add_u32 v{vEo}, v{vEo}, v{vH16}
    buffer_load_dwordx4 {vr(vEA, 4)}, v{vEo}, {sr(S_EA, 4)}, 0 offen
    s_mov_b64 exec, -1
    """)
    for u in range(NU):
        bit = 8 * (u >> 1) + 2 * (u & 1) + 1
        so2 = vSo + 2 * (u & 1)
        La, Lb = vLs[u], vLs[u] + 4
        a, b = vT, vT + 4
        num, den = vAcc + 8 * u, vAcc + 8 * u + 4
        if u + 1 < NU:
            A(f"ds_read_b64 {vr(vSo + 2 * ((u + 1) & 1), 2)}, v{vP + u + 1} offset:{L_SO + 2048 * (u + 1)}")
        A(f"s_bitcmp1_b32 s{sCur}, {bit}")
        A(f"s_cbranch_scc0 Lg_skip{u}")
        A(f"s_waitcnt vmcnt({2 * NU - 1})")
        for j in range(4):
            A(f"v_fma_mix_f32 v{a + j}, v{vD + 16 * j + 2 * u}, s{sNl}, v{La + j} op_sel_hi:[0,0,1]")
        for j in range(4):
            A(f"v_fma_mix_f32 v{b + j}, v{vD + 16 * j + 2 * u + 1}, s{sNl}, v{Lb + j} op_sel_hi:[0,0,1]")
        for j in range(0, 8, 2):
            A(f"v_pk_add_f32 {vr(a + j, 2)}, {vr(a + j, 2)}, {vr(vAn + 4 * u + (j & 3), 2)}")
        for j in range(8):
            A(f"v_exp_f32_e64 v{a + j}, v{a + j} clamp")
        for j in range(0, 8, 2):
            A(f"v_pk_add_f32 {vr(a + j, 2)}, {vr(a + j, 2)}, {sr(sC0, 2)}")
        for j in (0, 2):
            A(f"v_pk_mul_f32 {vr(La + j, 2)}, {vr(La + j, 2)}, {vr(b + j, 2)}")
        for j in (0, 2):
            A(f"v_pk_fma_f32 {vr(La + j, 2)}, {vr(Lb + j, 2)}, {vr(a + j, 2)}, {vr(La + j, 2)}")
        for j in (0, 2):
            A(f"v_pk_add_f32 {vr(Lb + j, 2)}, {vr(a + j, 2)}, {vr(b + j, 2)}")
        for j in (0, 2):
            A(f"v_pk_mul_f32 {vr(a + j, 2)}, {vr(a + j, 2)}, {vr(b + j, 2)}")
        for j in range(4):
            A(f"v_rcp_f32 v{a + j}, v{a + j}")
        for j in (0, 2):
            A(f"v_pk_fma_f32 {vr(num + j, 2)}, {vr(La + j, 2)}, {vr(a + j, 2)}, {vr(num + j, 2)}")
            A(f"v_pk_fma_f32 {vr(den + j, 2)}, {vr(Lb + j, 2)}, {vr(a + j, 2)}, {vr(den + j, 2)}")
        A(f"Lg_skip{u}:")
        A(f"s_bitcmp1_b32 s{sNext}, {bit}")
        A("s_cselect_b64 exec, -1, 1")
        A(f"s_cselect_b32 s{sInc}, 16, 0")
        A(f"s_waitcnt lgkmcnt({1 if u + 1 < NU else 0})")
        A(f"v_add_u32 v{so2}, v{so2}, v{vLo}")
        A(f"v_add_u32 v{so2 + 1}, v{so2 + 1}, v{vLo}")
        A(f"buffer_load_dwordx4 {vr(La, 4)}, v{so2}, {sr(S_TAB, 4)}, 0 offen {tab_pol}")
        A(f"buffer_load_dwordx4 {vr(Lb, 4)}, v{so2 + 1}, {sr(S_TAB, 4)}, 0 offen {tab_pol}")
        A("s_mov_b64 exec, -1")
        A(f"v_add_u32 v{vP + u}, s{sInc}, v{vP + u}")
    A(f"""
    s_mov_b64 {sr(sCur, 2)}, {sr(sNext, 2)}
    s_add_u32 s{sTi}, s{sTi}, 1
    s_cmp_le_u32 s{sTi}, s{sT}
    s_cbranch_scc1 Lg_tile
    Lg_done:
    s_waitcnt vmcnt(0)
    s_cmp_lg_u32 s{sOvf}, 0
    s_cbranch_scc1 Lround
    s_add_u32 s{sW0}, s{sW0}, 16
    s_cmp_lg_u32 s{sMor}, 0
    s_cbranch_scc1 Lbatch
    s_mul_i32 s3, s{sW}, 528
    s_add_u32 s3, s3, {L_TU}
    v_mul_u32_u24 v{vA2}, {33 * 8}, v{vH16}
    v_add3_u32 v{vA2}, v{vA2}, v{vLo}, s3
    s_mul_i32 s3, s{sW}, 272
    s_add_u32 s3, s3, {L_X}
    v_mul_u32_u24 v{vA3}, {17 * 8}, v{vH16}
    v_lshrrev_b32 v{vLo + 1}, 1, v{vLo}
    v_add3_u32 v{vA3}, v{vA3}, v{vLo + 1}, s3
    """)
    for pr in range(4):
        A(f"ds_read_b128 {vr(vU + 4 * pr, 4)}, v{vA2} offset:{16 * 528 * pr}")
        A(f"ds_read_b64 {vr(vXr + 2 * pr, 2)}, v{vA3} offset:{16 * 272 * pr}")
    A(f"""
    v_lshl_add_u32 v{vA2}, v{vH16}, 7, v{vLo + 1}
    s_add_u32 s{sQ1}, s{sN0}, s{sW}
    s_lshl_b32 s{sQ1}, s{sQ1}, 8
    s_waitcnt lgkmcnt(0)
    """)
    for pr in range(4):
        if pr == 3:
            A(f"s_add_u32 s3, s{sW}, 48")
            A(f"s_cmp_ge_u32 s3, s{sNn}")
            A("s_cbranch_scc1 Lk2_done")
        finalize(vAcc + 16 * pr, 4, vAcc + 16 * pr + 8, vU + 4 * pr, vXr + 2 * pr, vA2, sQ1,
                 "s_mov_b32 exec_hi, 0" if pr == 3 else "s_nop 0")
        A(f"s_add_u32 s{sQ1}, s{sQ1}, 4096")
    A("s_branch Lk2_done")
    return L_END


def gen_report(A, opt):
    kind, team, idx = opt["report"].split(",")
    idx, _, ref = idx.partition("-")
    idx = int(idx)
    A("report_kernel:")
    A("s_cmp_ge_u32 s2, 1")
    A("s_cbranch_scc1 Lr_exit")
    load_kernargs(A)
    A("s_waitcnt lgkmcnt(0)")
    srd(A, 28, P_WS, 0x80000, STAMP_OFF + 0x20000)

    def reduce(op, base, dst, tag, sub):
        A("v_lshrrev_b32 v1, 2, v0")
        A("v_and_b32 v2, 3, v0")
        A("v_lshlrev_b32 v1, 9, v1")
        A("v_lshl_add_u32 v1, v2, 6, v1")
        A(f"v_mov_b32 v3, {'-1' if op == 'min' else '0'}")
        A("s_mov_b32 s44, 0")
        A(f"Lr_{tag}:")
        A(f"buffer_load_dword v2, v1, s[28:31], s44 offen offset:{base}")
        A("s_waitcnt vmcnt(0)")
        if sub:
            A("v_subrev_u32 v2, s40, v2")
        A(f"v_{op}_u32 v3, v3, v2")
        A("s_add_u32 s44, s44, 8192")
        A("s_cmp_lt_u32 s44, 131072")
        A(f"s_cbranch_scc1 Lr_{tag}")
        A(f"v_readlane_b32 s{dst}, v3, 0")
        for l in range(1, 64):
            A(f"v_readlane_b32 s3, v3, {l}")
            A("s_nop 0")
            A(f"s_{op}_u32 s{dst}, s{dst}, s3")

    reduce("min", 0, 40, "a", False)
    if kind == "rng":
        reduce("max", 8 * idx, 41, "b", False)
        reduce("min", 8 * idx, 45, "c", False)
        A("s_sub_u32 s41, s41, s45")
    else:
        reduce(kind, 8 * idx + (256 if team == "t" else 0), 41, "b", True)
    if ref:
        reduce(kind, 8 * int(ref) + (256 if team == "t" else 0), 45, "c", True)
        A("s_sub_u32 s41, s41, s45")
    sc = int(opt.get("rs", 2))
    A(f"s_lshr_b32 s41, s41, {10 - sc}" if kind == "add" else f"s_lshl_b32 s41, s41, {sc}")
    A("s_min_u32 s41, s41, 30000")
    A("s_add_u32 s41, s41, 10000")
    A("Lr_spin:")
    A("s_memrealtime s[42:43]")
    A("s_waitcnt lgkmcnt(0)")
    A("s_sub_u32 s42, s42, s40")
    A("s_cmp_lt_u32 s42, s41")
    A("s_cbranch_scc1 Lr_spin")
    A("Lr_exit:")
    A("s_endpgm")


def descriptor(name, vgpr, extra=""):
    return f""".amdhsa_kernel {name}
  .amdhsa_next_free_vgpr {vgpr}
  .amdhsa_next_free_sgpr 102
  .amdhsa_accum_offset {(vgpr + 3) // 4 * 4}
  .amdhsa_group_segment_fixed_size 0
  .amdhsa_kernarg_size 96
  .amdhsa_user_sgpr_count 2
  .amdhsa_user_sgpr_kernarg_segment_ptr 1
  .amdhsa_system_sgpr_workgroup_id_x 1
{extra}.end_amdhsa_kernel
"""


def generate(opt):
    A = Asm()
    lds = gen_k2(A, opt)
    lst = f"kernel={NAME}_kernel " if opt.get("report") else ""
    text = (f"""; GatedGCN layer in one launch of 256 co-resident workgroups (one per CU).
; Workgroup g owns chunk g of the edges (1568) and one bucket of 48 or 49 destination nodes.
;  1. counting sort of the chunk by destination bucket -> records in d_ws, published by tagged offset words
;  2. x @ w_b, x @ w_v of the bucket's rows -> gather table in d_ws (low half: f16 of -log2(e) * B, high half: V),
;     published by a tagged word; x @ w_a and x + x @ w_u stay in LDS
;  3. the bucket's records are sorted by (node, source range), padded to groups of four edges and split evenly
;     over the eight waves; every wave walks its groups in source order
;  4. per group: gate exponent from MFMA(e_attr, w_c) and the gathered row, sigmoid of two edges with one reciprocal,
;     numerator and denominator sums in indexed registers; out = max(x + x @ w_u + num / (den + 1e-6), x)
; The tag is published in d_debug by workgroup 0. Inputs outside the limits of the fast path (degree distribution,
; |x @ w_a| > 52) take the general path at the end of the file.
; @launch {lst}grid=(256,1,1) block=(512,1,1) lds={lds}
.amdgcn_target "amdgcn-amd-amdhsa--gfx950"
.text
.globl {NAME}_kernel
.p2align 8
.type {NAME}_kernel,@function
""" + A.text() + ".section .rodata,\"a\"\n.p2align 6\n"
            + descriptor(f"{NAME}_kernel", 256, "  .amdhsa_fp16_overflow 1\n"))
    if opt.get("report"):
        R = Asm()
        gen_report(R, opt)
        text = text.replace(".amdgcn_target", "; @launch kernel=report_kernel grid=(1,1,1) block=(64,1,1) lds=0\n.amdgcn_target")
        text = text.replace(".section .rodata", ".globl report_kernel\n.p2align 8\n.type report_kernel,@function\n" + R.text() + ".section .rodata")
        text += ".p2align 6\n" + descriptor("report_kernel", 8)
    return text


if __name__ == "__main__":
    out = sys.argv[1] if len(sys.argv) > 1 else f"cdna_kernels/{NAME}.s"
    opt = dict(a.split("=", 1) for a in sys.argv[2:])
    opt = {k: v.replace("+", " ") for k, v in opt.items()}
    open(out, "w").write(generate(opt))
```

```python
import sys
sys.path.insert(0, "gen")
import gen15 as g
out = sys.argv[1]
opt = dict(a.split("=", 1) for a in sys.argv[2:])
opt = {k: v.replace("+", " ") for k, v in opt.items()}
base = g.generate({"report": "add,t,2-1", "rs": "4"})
P = g.Asm()
so = {"stamp": "a,b"}
g.STAMP_BASE[0] = 40
P("probe_kernel:")
P("s_cmp_ge_u32 s2, 256")
P("s_cbranch_scc1 Lpr_exit")
g.stamp(P, so, 0)
g.load_kernargs(P)
P("v_lshlrev_b32 v8, 4, v0")
P("s_lshl_b32 s3, s2, 15")
P("v_mul_u32_u24 v4, 12345, v0\nv_mul_u32_u24 v5, 777, v4\nv_mul_u32_u24 v6, 777, v5\nv_mul_u32_u24 v7, 777, v6")
P("s_waitcnt lgkmcnt(0)")
g.srd(P, 28, g.P_WS, 16 << 20, int(opt.get("off", 64)) << 20)
for i in range(int(opt.get("sleep", 0))):
    P("s_sleep 32")
if opt.get("pre"):
    P("s_mov_b32 s33, s3")
    for i in range(3):
        P(f"buffer_load_dwordx4 v[12:15], v8, s[28:31], s33 offen {opt['pre'].replace('x', '')}")
        P("s_add_u32 s33, s33, 8192")
    P("s_waitcnt vmcnt(0)")
P("s_barrier")
g.stamp(P, so, "a")
for i in range(3):
    P(f"buffer_{opt.get('op', 'store')}_dwordx4 v[4:7], v8, s[28:31], s3 offen {opt.get('pol', 'sc1')}")
    P("s_add_u32 s3, s3, 8192")
P("s_waitcnt vmcnt(0)")
g.stamp(P, so, "b")
g.stamp_flush(P, so, 8, 0x20000, 0)
P("Lpr_exit:")
P("s_endpgm")
lines = base.split("\n")
li = [i for i, l in enumerate(lines) if l.startswith("; @launch")]
pl = "; @launch kernel=probe_kernel grid=(256,1,1) block=(512,1,1) lds=131072"
lines.insert(li[0] if opt.get("pos", "first") == "first" else li[1], pl)
t = "\n".join(lines)
t = t.replace(".section .rodata", ".globl probe_kernel\n.p2align 8\n.type probe_kernel,@function\n" + P.text() + ".section .rodata")
t += ".p2align 6\n" + g.descriptor("probe_kernel", 16)
open(out, "w").write(t)
```

```python
import math
import struct
import sys

NAME = "gather_scatter__edge_featured_mpnn_gatedgcn__graph"
N, E = 12500, 400000
BM, BS, SM, SC, SS = 171799, 23, 799999, 16330, 14
CH = 1568
NCH = 256
TAB_OFF = 0x4000000
REC_OFF = 0xE00000
OFF_OFF = 0x1000000
SPIN_MAX = 20000
STAMP_OFF = 0x2000000
TAB_BYTES = N * 512
KSH = 48
AMAX = 52.0
NLOG2E = -math.log2(math.e)


def f32(x):
    return struct.unpack("<I", struct.pack("<f", x))[0]


class Asm:
    def __init__(self):
        self.lines = []

    def __call__(self, s):
        for ln in s.strip("\n").split("\n"):
            ln = ln.strip()
            if not ln:
                continue
            self.lines.append(ln if ln.endswith(":") else "    " + ln)

    def note(self, s):
        self.lines += ["; " + ln.strip() for ln in s.strip().split("\n")]

    def text(self):
        return "\n".join(self.lines) + "\n"


def vr(a, n=1):
    return f"v{a}" if n == 1 else f"v[{a}:{a + n - 1}]"


def sr(a, n=1):
    return f"s{a}" if n == 1 else f"s[{a}:{a + n - 1}]"


def srd(A, d, base, nbytes, off=0):
    if off:
        A(f"s_add_u32 s{d}, s{base}, {hex(off)}")
        A(f"s_addc_u32 s{d + 1}, s{base + 1}, 0")
    else:
        A(f"s_mov_b64 {sr(d, 2)}, {sr(base, 2)}")
    A(f"s_mov_b32 s{d + 2}, {hex(nbytes)}")
    A(f"s_mov_b32 s{d + 3}, 0x20000")


P_X, P_EA, P_SRC, P_DST, P_WA, P_WB, P_WC, P_WU = 4, 6, 8, 10, 12, 14, 16, 18
P_WV, P_OUT, P_DBG, P_WS = 20, 22, 24, 26


def load_kernargs(A):
    A("s_load_dwordx16 s[4:19], s[0:1], 0")
    A("s_load_dwordx8 s[20:27], s[0:1], 64")


STAMP_BASE = [2]


def stamp_reg(i):
    return 100 if i == 0 else STAMP_BASE[0] + 2 * i


def stamp(A, opt, i):
    if not opt.get("stamp"):
        return
    if isinstance(i, str):
        names = opt["stamp"].split(",")
        if i not in names:
            return
        i = names.index(i) + 1
    A(f"{'s_memtime' if opt.get('cyc') else 's_memrealtime'} s[{stamp_reg(i)}:{stamp_reg(i) + 1}]")


def stamp_flush(A, opt, n, base, vtid):
    if not opt.get("stamp"):
        return
    A("s_mov_b64 exec, -1")
    A("s_waitcnt vmcnt(0)")
    stamp(A, opt, n - 1)
    srd(A, 20, P_WS, 0x80000, STAMP_OFF + base)
    A(f"v_lshrrev_b32 v1, 6, v{vtid}")
    A("s_lshl_b32 s3, s2, 3")
    A("v_add_u32 v1, s3, v1")
    A(f"v_mul_u32_u24 v1, {8 * n}, v1")
    A("s_mov_b64 exec, 1")
    A("s_waitcnt lgkmcnt(0)")
    for i in range(n):
        r = stamp_reg(i)
        A(f"v_mov_b32 v2, s{r}")
        A(f"v_mov_b32 v3, s{r + 1}")
        A(f"buffer_store_dwordx2 v[2:3], v1, s[20:23], 0 offen offset:{8 * i}")
        A("s_nop 1")


WAVE_SCAN = ("row_shr:1 row_mask:0xf", "row_shr:2 row_mask:0xf", "row_shr:4 row_mask:0xf",
             "row_shr:8 row_mask:0xf", "row_bcast:15 row_mask:0xa", "row_bcast:31 row_mask:0xc")


def wave_scan(A, v, first_nop=1, fill=()):
    for k, d in enumerate(WAVE_SCAN):
        if k < len(fill):
            A("\n".join(fill[k]))
        elif k or first_nop:
            A("s_nop 1")
        A(f"v_add_u32_dpp v{v}, v{v}, v{v} {d} bank_mask:0xf")


def gen_k2(A, opt):
    global TAB_OFF, REC_OFF, OFF_OFF
    wsb = int(opt.get("wsb", 0)) << 20
    TAB_OFF, REC_OFF, OFF_OFF = TAB_OFF + wsb, REC_OFF + wsb, OFF_OFF + wsb
    STAMP_BASE[0] = 2
    ea_pol = opt.get("ea_load", "")
    tab_pol = opt.get("tab_load", "sc1")
    pf_lanes = int(opt.get("pf", 0))
    poll_at = int(opt.get("poll_at", 0))
    ld = [int(x) for x in opt.get("ld", "6,11,16").split(",")]
    TS = int(opt.get("ts", 3))
    OB = int(opt.get("ob", 8))
    S_TAB, S_EA, S_REC, S_OFFS, S_TW, S_X, S_OUT = 28, 32, 36, 40, 44, 48, 52
    sW, sBk, sN0, sW0, sT, sTi, sInc, sNl = 56, 57, 58, 59, 60, 61, 62, 63
    sC0, sCur, sNext, sMore, sTmp, sNon = 64, 66, 68, 70, 72, 74
    sMask = 76
    sMask2 = 18
    S_DST, S_SRC, S_W, S_W2, S_WC, S_DBG = 76, 80, 84, 88, 76, 80
    sOvf, sMor, sQ1, sQ2, sQ3, sLw, sF0, sOwn = 92, 93, 94, 95, 96, 97, 98, 99
    sRem, sSW, sSl0, sSl1, sLn, sPM = sT, sInc, sCur, sCur + 1, sNext, sCur
    sNn = 0
    sWo, sWm = sOvf, sLw
    L_CNT, L_BASE, L_FLAG, P_CNT, P_BASE, P_SORT = 0, 2048, 4096, 4352, 5376, 6400
    L_R2 = 12800
    L_SO = L_R2
    L_EO = L_SO + 25600
    L_STR = L_R2 + 16896
    STRW = 2560
    L_WCR = L_R2 + 65536
    L_X = L_WCR + 4096
    L_R1 = (L_X + 52 * 272 + 255) // 256 * 256
    L_TA = L_R1 + 528
    L_TU = L_TA + 52 * 528
    L_END = L_R1 + 65536
    TF_OFF = NCH * 2048
    NS = 9
    vSl, vD, vL, vWC, vEA, vT, vSo, vLo = 0, 108, 172, 204, 220, 224, 232, 236
    vSp, vEp, vEo, vH16, vSb, vTid, vOffs = 238, 239, 240, 241, 242, 243, 244
    vWf, vG, vXf, vXs, vNon, vTf = 0, 32, vL, 96, 104, 106
    vEn, vEb, vEad, vS2 = 104, 246, 247, 248
    Lbuf = [vL + 8 * u for u in range(4)] + [72 + 8 * u for u in range(4)]
    vRec, vKey, vRank, vSoff, vEoff, vX = vD, vD + 8, vD + 16, vD + 24, vD + 32, vD + 40
    cand = [(vRec + i, vKey + i, vRank + i, vSoff + i, vEoff + i, sMask + 2 * i) for i in range(8)]
    cand2 = [(vEA + i, vT + i, vT + 4 + i, None, None, sMask2 + 2 * i) for i in range(4)]
    c0 = 2.0 ** -KSH
    vZero, vOne, vXw, vXrd, vTw, vInv = vX + 5, vX + 6, vX + 7, vX + 8, vX + 9, vX + 10
    vDa, vBx, vBt, vBs, vAt, vPa, vE = vX + 12, vX + 14, vX + 15, vX + 17, vX + 18, vX + 19, vX + 20
    vSw, vSr = vX + 16, vD + 39
    pD, pS, pA, pR, pC, pB, pG = vD, vD + 4, vD + 8, vD + 12, vD + 16, vD + 20, vD + 24
    vm = []

    def younger(name):
        return len(vm) - 1 - max(i for i, x in enumerate(vm) if x == name)

    def dma_piece(S, soff, i):
        A(f"buffer_load_dwordx4 v{vDa + ((i >> 1) & 1)}, {sr(S, 4)}, s{soff} offen offset:{1024 * (i & 3)} {opt.get('w_pol', '')} lds")

    def loader(lo, hi):
        for g in range(lo, hi):
            A(f"s_mov_b32 m0, {L_R1 + 4096 * g}")
            A(f"s_movk_i32 s3, {4096 * (g & 7)}")
            if g == 8:
                A(f"s_mov_b64 {sr(S_W, 2)}, {sr(P_WV, 2)}")
            for i in range(4):
                dma_piece(S_W, 3, i)

    A(f"{NAME}_kernel:")
    A("s_cmp_ge_u32 s2, 256")
    A("s_cbranch_scc1 Lk2_exit")
    stamp(A, opt, 0)
    load_kernargs(A)
    A(f"""
    s_memrealtime {sr(sNon, 2)}
    s_getpc_b64 s[{sTmp}:{sTmp + 1}]
    """)
    cpf_mode = int(opt.get("cpf", 8))
    if cpf_mode:
        A(f"""
        s_lshr_b32 s3, s2, 3
        s_and_b32 s3, s3, {128 // cpf_mode - 1}
        v_subrev_u32 v1, {512 - cpf_mode}, v0
        v_cmp_gt_u32 vcc, {cpf_mode}, v1
        v_mul_u32_u24 v1, {128 // cpf_mode}, v1
        v_add_lshl_u32 v1, v1, s3, 7
        """)
    else:
        A(f"""
        v_lshlrev_b32 v1, 7, v0
        v_cmp_gt_u32 vcc, Lcold_code - {NAME}_kernel, v1
        """)
    A(f"""
    s_and_saveexec_b64 {sr(sNext, 2)}, vcc
    s_cbranch_execz Lno_cpf
    global_load_dword v2, v1, s[{sTmp}:{sTmp + 1}] {opt.get('cpf_pol', '')}
    Lno_cpf:
    s_mov_b64 exec, -1
    v_mov_b32 v{vZero}, 0
    v_lshlrev_b32 v{vX + 11}, 2, v0
    ds_write_b32 v{vX + 11}, v{vZero} offset:{L_FLAG}
    ds_write_b32 v{vX + 11}, v{vZero} offset:{L_CNT}
    v_lshrrev_b32 v{vX}, 6, v0
    v_lshlrev_b32 v{vX + 2}, 4, v0
    v_readfirstlane_b32 s{sW}, v{vX}
    s_movk_i32 s3, {CH // 4}
    s_cmp_eq_u32 s2, {NCH - 1}
    s_cselect_b32 s3, {(E - (NCH - 1) * CH) // 4}, s3
    v_cmp_gt_u32_e64 {sr(sPM, 2)}, s3, v0
    s_mul_i32 s{sQ1}, s2, {CH * 4}
    s_mov_b32 s{S_DST + 2}, {E * 4}
    s_mov_b32 s{S_DST + 3}, 0x20000
    s_mov_b32 s{S_SRC + 2}, {E * 4}
    s_mov_b32 s{S_SRC + 3}, 0x20000
    s_and_b32 s3, s2, 7
    s_lshl_b32 s3, s3, 5
    s_lshr_b32 s{sBk}, s2, 3
    s_add_u32 s{sBk}, s{sBk}, s3
    s_mul_i32 s{sN0}, s{sBk}, {SM}
    s_add_u32 s{sOwn}, s{sN0}, {SM + SC}
    s_add_u32 s{sN0}, s{sN0}, {SC}
    s_lshr_b32 s{sOwn}, s{sOwn}, {SS}
    s_lshr_b32 s{sN0}, s{sN0}, {SS}
    v_mov_b32 v{vTid}, v0
    v_and_b32 v{vX + 3}, 0x3f0, v{vX + 2}
    v_bfe_u32 v{vX + 1}, v0, 4, 2
    v_lshlrev_b32 v{vX + 4}, 6, v{vX + 1}
    v_xor_b32 v{vDa}, v{vX + 3}, v{vX + 4}
    v_xor_b32 v{vDa + 1}, 32, v{vDa}
    s_lshl_b32 s{sWm}, s{sW}, 13
    s_add_u32 s{sWm + 1}, s{sWm}, 4096
    s_and_b32 s{sWo}, s{sWm}, 0x7fff
    s_add_u32 s{sWo + 1}, s{sWo}, 4096
    s_lshl_b32 s{sTmp}, s{sN0}, 8
    s_add_u32 s{sTmp + 1}, s{sTmp}, 8192
    s_mov_b64 exec, {sr(sPM, 2)}
    s_waitcnt lgkmcnt(0)
    s_cbranch_execz Lp_nold
    s_mov_b64 {sr(S_DST, 2)}, {sr(P_DST, 2)}
    s_mov_b64 {sr(S_SRC, 2)}, {sr(P_SRC, 2)}
    buffer_load_dwordx4 {vr(pD, 4)}, v{vX + 2}, {sr(S_DST, 4)}, s{sQ1} offen {opt.get("idx_pol", "nt")}
    buffer_load_dwordx4 {vr(pS, 4)}, v{vX + 2}, {sr(S_SRC, 4)}, s{sQ1} offen {opt.get("idx_pol", "nt")}
    Lp_nold:
    """)
    if int(opt.get("wpf", 1)):
        A(f"""
        s_cmp_lg_u32 s{sW}, 7
        s_cbranch_scc1 Lno_wpf
        s_mov_b64 exec, 0xff
        s_lshr_b32 s3, s2, 3
        s_lshl_b32 s3, s3, 10
        v_lshl_add_u32 v1, v{vX + 3}, 3, s3
        global_load_dword v3, v1, {sr(P_WB, 2)} {opt.get('wpf_pol', '')}
        global_load_dword v4, v1, {sr(P_WV, 2)} {opt.get('wpf_pol', '')}
        global_load_dword v5, v1, {sr(P_WA, 2)} {opt.get('wpf_pol', '')}
        global_load_dword v6, v1, {sr(P_WU, 2)} {opt.get('wpf_pol', '')}
        Lno_wpf:
        """)
    A("s_mov_b64 exec, -1")
    A("s_barrier")
    vm.append("dst")
    srd(A, S_DBG, P_DBG, 256)
    A(f"""
    s_xor_b32 s3, s{sW}, 7
    s_or_b32 s3, s3, s2
    s_cbranch_scc1 Lno_nonce
    s_or_b32 s3, s{sNon}, 1
    v_mov_b32 v{vNon}, s3
    v_mov_b32 v{vNon + 1}, s{sNon + 1}
    s_mov_b64 exec, 1
    buffer_store_dwordx2 {vr(vNon, 2)}, v{vZero}, {sr(S_DBG, 4)}, 0 offen sc1
    """)
    if opt.get("ptrs"):
        for i, p in enumerate((P_WS, P_WS + 1, P_OUT, P_EA, P_X, P_SRC, P_DST, P_WB, P_DBG, 0, P_EA + 1)):
            A(f"v_mov_b32 v1, s{p}")
            A(f"buffer_store_dword v1, v{vZero}, {sr(S_DBG, 4)}, 0 offen offset:{8 + 4 * i}")
    A(f"""
    s_mov_b64 exec, -1
    Lno_nonce:
    """)
    A(f"""
    s_mov_b64 {sr(S_X, 2)}, {sr(P_X, 2)}
    s_lshl_b32 s{S_X + 2}, s{sOwn}, 8
    s_mov_b32 s{S_X + 3}, 0x20000
    s_sub_u32 s{sNn}, s{sOwn}, s{sN0}
    """)
    for i in range(2):
        A(f"buffer_load_dwordx4 {vr(vXs + 4 * i, 4)}, v{vX + 2}, {sr(S_X, 4)}, s{sTmp + i} offen {opt.get('x_pol', 'nt')}")
        vm.append("x")
    A(f"""
    s_cmp_lt_u32 s{sW}, 4
    s_cselect_b32 s{S_W}, s{P_WB}, s{P_WV}
    s_cselect_b32 s{S_W + 1}, s{P_WB + 1}, s{P_WV + 1}
    s_cselect_b32 s{S_W2}, s{P_WA}, s{P_WU}
    s_cselect_b32 s{S_W2 + 1}, s{P_WA + 1}, s{P_WU + 1}
    s_mov_b32 s{S_W + 2}, 32768
    s_mov_b32 s{S_W + 3}, 0x20000
    s_mov_b32 s{S_W2 + 2}, 32768
    s_mov_b32 s{S_W2 + 3}, 0x20000
    """)
    npf0 = 0
    A(f"s_cmp_lg_u32 s{sW}, 7")
    A("s_cbranch_scc1 Lno_ld0")
    A(f"s_mov_b64 {sr(S_W, 2)}, {sr(P_WB, 2)}")
    loader(0, 2)
    A("Lno_ld0:")
    srd(A, S_WC, P_WC, 4096)
    srd(A, S_REC, P_WS, NCH * CH * 4, REC_OFF)
    srd(A, S_OFFS, P_WS, TF_OFF + (256 << TS), OFF_OFF)
    srd(A, S_TAB, P_WS, TAB_BYTES + 512, TAB_OFF)
    srd(A, S_EA, P_EA, 0 if opt.get("noea") else E * 32)
    srd(A, S_OUT, P_OUT, N * 256)
    pt = int(opt.get("ptouch", 0))
    if pt:
        A(f"""
        s_cmp_lg_u32 s{sW}, 7
        s_cbranch_scc1 Lno_touch
        v_lshlrev_b32 v1, {pt - 4}, v{vX + 3}
        """)
        for i, S in enumerate((S_TAB, S_REC, S_OFFS, S_EA, S_OUT)):
            A(f"buffer_load_dword v{7 + i}, v1, {sr(S, 4)}, 0 offen sc1")
        A("Lno_touch:")
    A(f"""
    s_lshl_b32 s3, s{sN0}, 9
    s_add_u32 s{S_TW}, s{S_TAB}, s3
    s_addc_u32 s{S_TW + 1}, s{S_TAB + 1}, 0
    s_lshl_b32 s{S_TW + 2}, s{sNn}, 9
    s_mov_b32 s{S_TW + 3}, 0x20000
    s_mov_b32 s{sNl}, {hex(f32(NLOG2E))}
    s_mov_b32 s{sC0}, {hex(f32(c0))}
    s_mov_b32 s{sC0 + 1}, {hex(f32(c0))}
    s_mov_b32 s{sW0}, 0
    s_mov_b32 s{sQ2}, {BM}
    s_mov_b32 s{sQ3}, {-SM}
    v_mov_b32 v{vOne}, 1
    v_lshrrev_b32 v{vX + 11}, 4, v{vTid}
    v_lshl_add_u32 v{vXw}, v{vX + 11}, 4, v{vX + 2}
    v_add_u32 v{vXw}, {L_X}, v{vXw}
    v_and_b32 v{vLo}, 0x1f0, v{vX + 2}
    v_bfe_u32 v{vX + 4}, v{vTid}, 5, 1
    v_mov_b32 v{vLo + 1}, v{vLo}
    v_lshlrev_b32 v{vH16}, 4, v{vX + 4}
    s_lshr_b32 s{sTmp}, s{sW}, 2
    s_and_b32 s{sTmp + 1}, s{sW}, 3
    v_bfe_u32 v{vX + 11}, v{vTid}, 2, 2
    v_xor_b32 v{vE}, s{sTmp + 1}, v{vX + 11}
    v_lshlrev_b32 v{vE}, 6, v{vE}
    v_and_b32 v{vE + 1}, 3, v{vTid}
    v_lshl_add_u32 v{vE}, v{vE + 1}, 3, v{vE}
    v_lshl_add_u32 v{vE}, v{vX + 11}, 8, v{vE}
    v_and_b32 v{vE + 1}, 1, v{vX + 1}
    v_xor_b32 v{vE + 1}, v{vE + 1}, v{vX + 4}
    v_lshl_add_u32 v{vE}, v{vE + 1}, 5, v{vE}
    v_lshl_add_u32 v{vE}, v{vX + 4}, 11, v{vE}
    v_add_u32 v{vBt}, {L_R1}, v{vE}
    s_lshl_b32 s3, s{sTmp}, 15
    s_add_u32 s3, s3, {L_R2}
    v_add_u32 v{vAt}, s3, v{vE}
    v_and_b32 v{vX + 11}, 31, v{vTid}
    v_mul_u32_u24 v{vXrd}, 272, v{vX + 11}
    s_mov_b32 s3, {L_X}
    v_add3_u32 v{vXrd}, v{vXrd}, v{vH16}, s3
    s_mul_i32 s3, s{sTmp}, {32 * 272}
    v_add_u32 v{vBx}, s3, v{vXrd}
    s_mul_i32 s3, s{sW}, 4608
    s_add_u32 s3, s3, {L_R1}
    v_mul_u32_u24 v{vSw}, 144, v{vX + 11}
    v_add3_u32 v{vSw}, v{vSw}, v{vH16}, s3
    v_bfe_u32 v{vE}, v{vTid}, 3, 3
    v_lshl_add_u32 v{vSr}, v{vE}, 4, v{vX + 3}
    v_add_u32 v{vSr}, s3, v{vSr}
    v_and_b32 v{vE + 1}, 0x70, v{vX + 3}
    v_lshl_add_u32 v{vBs}, v{vE}, 9, v{vE + 1}
    s_lshl_b32 s3, s{sTmp}, 7
    s_add_u32 s3, s3, s{sTmp + 1}
    s_lshl_b32 s3, s3, 7
    v_add_u32 v{vBs}, s3, v{vBs}
    v_mul_u32_u24 v{vTw}, 528, v{vX + 11}
    s_mul_i32 s3, s{sTmp}, {L_TU - L_TA}
    s_lshl_b32 s{sTmp + 1}, s{sTmp + 1}, 7
    s_add_u32 s3, s3, s{sTmp + 1}
    s_add_u32 s3, s3, {L_TA}
    v_add3_u32 v{vTw}, v{vTw}, v{vH16}, s3
    v_lshrrev_b32 v{vPa}, 1, v{vTid}
    v_lshlrev_b32 v{vPa}, {3 + OB}, v{vPa}
    v_lshlrev_b32 v{vE}, 8, v{vTid}
    v_add_u32 v{vE + 1}, 64, v{vE}
    v_add_u32 v{vE + 2}, 0x80, v{vE}
    v_add_u32 v{vE + 3}, 0xc0, v{vE}
    """)
    stamp(A, opt, "iss")

    def stage_x(wait):
        A(f"s_waitcnt vmcnt({wait})")
        A(f"ds_write_b128 v{vXw}, {vr(vXs, 4)}")
        A(f"s_cmp_lt_u32 s{sW}, 5")
        A("s_cselect_b64 exec, -1, 0")
        A(f"ds_write_b128 v{vXw}, {vr(vXs + 4, 4)} offset:{32 * 272}")
        A("s_mov_b64 exec, -1")

    nonce_load = f"buffer_load_dwordx2 {vr(vNon, 2)}, v{vZero}, {sr(S_DBG, 4)}, 0 offen sc1"
    A(f"""
    s_cmp_eq_u32 s{sW}, 7
    s_cbranch_scc1 Lp_loader
    s_mov_b64 exec, {sr(sPM, 2)}
    s_waitcnt vmcnt({2 + npf0})
    """)
    stamp(A, opt, "dst")
    for i in range(4):
        A(f"v_mul_u32_u24 v{pC + i}, s{sQ2}, v{pD + i}")
    for i in range(4):
        A(f"v_lshrrev_b32 v{pC + i}, {BS}, v{pC + i}")
        A(f"v_lshlrev_b32 v{pA + i}, 2, v{pC + i}")
        A(f"ds_add_rtn_u32 v{pR + i}, v{pA + i}, v{vOne} offset:{P_CNT}")
    for i in range(4):
        A(f"v_lshl_add_u32 v{pD + i}, v{pD + i}, {SS}, {(1 << SS) - 1 - SC}")
        A(f"v_mad_i32_i24 v{pD + i}, v{pC + i}, s{sQ3}, v{pD + i}")
    A("s_mov_b64 exec, -1")
    A(f"s_cmp_eq_u32 s{sW}, 3")
    A("s_waitcnt lgkmcnt(0)")
    A("s_barrier")
    stamp(A, opt, "b2")
    A(f"""
    s_cbranch_scc0 Lp_noscan
    ds_read_b128 {vr(pC, 4)}, v{vX + 3} offset:{P_CNT}
    s_waitcnt lgkmcnt(0)
    v_add_u32 v{pB + 2}, v{pC}, v{pC + 1}
    v_add3_u32 v{pG + 1}, v{pB + 2}, v{pC + 2}, v{pC + 3}
    v_add_u32 v{pB + 3}, v{pB + 2}, v{pC + 2}
    v_mov_b32 v{pG}, v{pG + 1}
    """)
    ors = []
    for i in range(4):
        ors += [f"v_lshl_or_b32 v{pS + i}, v{pS + i}, 18, v{vE + i}", f"v_lshrrev_b32 v{pD + i}, {SS}, v{pD + i}",
                f"v_or_b32 v{pS + i}, v{pS + i}, v{pD + i}"]
    wave_scan(A, pG + 1, fill=[[]] + [ors[2 * k: 2 * k + 2] for k in range(5)])
    A(f"""
    v_sub_u32 v{pB}, v{pG + 1}, v{pG}
    v_add_u32 v{pB + 1}, v{pB}, v{pC}
    v_add_u32 v{pB + 2}, v{pB}, v{pB + 2}
    v_add_u32 v{pB + 3}, v{pB}, v{pB + 3}
    ds_write_b128 v{vX + 3}, {vr(pB, 4)} offset:{P_BASE}
    {ors[10]}
    {ors[11]}
    s_waitcnt lgkmcnt(0)
    s_barrier
    """)
    A("s_branch Lp_scanned")
    A("Lp_noscan:")
    A("\n".join(ors))
    A("s_barrier")
    A("Lp_scanned:")
    stamp(A, opt, "scan")
    A(f"s_mov_b64 exec, {sr(sPM, 2)}")
    for i in range(4):
        A(f"ds_read_b32 v{pA + i}, v{pA + i} offset:{P_BASE}")
    A("s_waitcnt lgkmcnt(0)")
    for i in range(4):
        A(f"v_add_lshl_u32 v{pA + i}, v{pA + i}, v{pR + i}, 2")
        A(f"ds_write_b32 v{pA + i}, v{pS + i} offset:{P_SORT}")
    A("s_mov_b64 exec, -1")
    A(nonce_load)
    A("s_waitcnt lgkmcnt(0)")
    A("s_barrier")
    stamp(A, opt, "b3")
    A(f"""
    ds_read_b128 {vr(pD, 4)}, v{vX + 2} offset:{P_SORT}
    s_mov_b64 exec, {sr(sPM, 2)}
    s_cbranch_execz Lp_none
    s_waitcnt lgkmcnt(0)
    buffer_store_dwordx4 {vr(pD, 4)}, v{vX + 2}, {sr(S_REC, 4)}, s{sQ1} offen sc1
    s_branch Lp_out
    Lp_loader:
    """)
    loader(2, ld[0])
    A("s_barrier")
    loader(ld[0], ld[1])
    A("s_barrier")
    loader(ld[1], ld[2])
    A("s_barrier")
    loader(ld[2], 16)
    A(nonce_load)
    A(f"""
    Lp_none:
    s_waitcnt vmcnt(1)
    Lp_out:
    s_mov_b64 exec, -1
    """)
    stage_x(2)
    A(f"""
    v_lshrrev_b32 v{vX + 11}, 1, v{vX + 2}
    v_and_b32 v{vX + 11}, 0x3ff, v{vX + 11}
    ds_read_b64 {vr(pC, 2)}, v{vX + 11} offset:{P_CNT}
    ds_read_b64 {vr(pB, 2)}, v{vX + 11} offset:{P_BASE}
    s_lshl_b32 s3, s{sW}, 9
    s_add_u32 m0, s3, {L_WCR}
    s_waitcnt lgkmcnt(0)
    s_barrier
    """)
    stamp(A, opt, "b3b")

    bB, bV, bO = 48, 64, 80

    def bv_reads(s):
        r = 12 * (s & 3)
        A(f"ds_read_b128 {vr(r + 8, 4)}, v{vBx} offset:{32 * s}")
        for m in range(2):
            for z in range(2):
                A(f"ds_read_b64_tr_b16 {vr(r + 4 * m + 2 * z, 2)}, v{vBt} offset:{m * 32768 + s * 4096 + z * 1024}")

    for s in range(3):
        bv_reads(s)
    A(f"""
    s_mov_b32 exec_hi, 0
    buffer_load_dwordx4 v{vX + 3}, {sr(S_WC, 4)}, s3 offen lds
    s_mov_b32 exec_hi, -1
    """)
    b4b = int(opt.get("b4b", 1))
    wk = int(opt.get("wk", 2))
    for s in range(8):
        r = 12 * (s & 3)
        A(f"s_waitcnt lgkmcnt({5 * min(2, 7 - s)})")
        for m in range(2):
            d = (bB, bV)[m]
            A(f"v_mfma_f32_32x32x16_bf16 {vr(d, 16)}, {vr(r + 4 * m, 4)}, {vr(r + 8, 4)}, {'0' if s == 0 else vr(d, 16)}")
        if s + 3 < 8:
            bv_reads(s + 3)
        for i in range(wk * s, min(8, wk * s + wk)):
            if i % 4 == 0:
                A(f"s_add_u32 m0, s{sWm + i // 4}, {L_R2}")
                A("s_nop 0")
            dma_piece(S_W2, sWo + (i >> 2), i)
    stamp(A, opt, "bvm")
    A(f"""
    s_mov_b32 s{sTi}, 0
    s_waitcnt vmcnt(9)
    Lnonce_check:
    v_readfirstlane_b32 s{sNon}, v{vNon}
    v_readfirstlane_b32 s{sNon + 1}, v{vNon + 1}
    s_add_u32 s{sTi}, s{sTi}, 1
    s_cmp_lg_u32 s{sNon}, 0
    s_cbranch_scc1 Lnonce_ok
    buffer_load_dwordx2 {vr(vNon, 2)}, v{vZero}, {sr(S_DBG, 4)}, 0 offen sc1
    s_cmp_lt_u32 s{sTi}, {SPIN_MAX}
    s_waitcnt vmcnt(0)
    s_cbranch_scc1 Lnonce_check
    Lnonce_ok:
    """)
    nslot = int(opt.get("nslot", 4))
    if nslot:
        A(f"""
        s_mul_i32 s3, s{sNon}, 0x9e3779b1
        s_lshr_b32 s3, s3, {32 - nslot}
        s_lshl_b32 s3, s3, 23
        s_add_u32 s{S_TAB}, s{S_TAB}, s3
        s_addc_u32 s{S_TAB + 1}, s{S_TAB + 1}, 0
        s_add_u32 s{S_TW}, s{S_TW}, s3
        s_addc_u32 s{S_TW + 1}, s{S_TW + 1}, 0
        """)
    A(f"""
    s_and_b32 s{sNon + 1}, s{sNon + 1}, 0x3ff
    s_lshl_b32 s3, s{sNon + 1}, 22
    v_lshl_or_b32 v{pG}, v{pC}, 11, v{pB}
    v_lshl_or_b32 v{pG + 2}, v{pC + 1}, 11, v{pB + 1}
    v_or_b32 v{pG}, s3, v{pG}
    v_or_b32 v{pG + 2}, s3, v{pG + 2}
    v_mov_b32 v{pG + 1}, s{sNon}
    v_mov_b32 v{pG + 3}, s{sNon}
    v_lshrrev_b32 v{vE}, {3 + OB}, v{vX + 2}
    v_and_b32 v{vE + 1}, {(8 << OB) - 1}, v{vX + 2}
    v_lshl_add_u32 v{vE}, v{vE}, {11 + OB}, v{vE + 1}
    s_lshl_b32 s3, s2, {3 + OB}
    s_cmp_ge_u32 s{sW}, 2
    {'' if b4b else 's_waitcnt vmcnt(0)'}
    s_barrier
    s_cbranch_scc1 Lno_off
    buffer_store_dwordx4 {vr(pG, 4)}, v{vE}, {sr(S_OFFS, 4)}, s3 offen sc1
    Lno_off:
    """)
    stamp(A, opt, "sig")
    for g in range(4):
        for i in range(4 * g, 4 * g + 4):
            A(f"v_fma_mixlo_f16 v{bV + i}, v{bB + i}, s{sNl}, 0")
        A(f"ds_write_b128 v{vSw}, {vr(bV + 4 * g, 4)} offset:{32 * g}")
    for i in range(4):
        A(f"ds_read_b128 {vr(bO + 4 * i, 4)}, v{vSr} offset:{1152 * i}")
    A(f"""
    s_or_b32 s3, s2, s{sW}
    s_cbranch_scc1 Lno_pad
    v_mov_b32 v{vE}, 0x7c00
    v_mov_b32 v{vE + 1}, 0x7c00
    v_lshrrev_b32 v{vE + 2}, 1, v{vX + 3}
    s_mov_b32 s3, {TAB_BYTES}
    buffer_store_dwordx2 {vr(vE, 2)}, v{vE + 2}, {sr(S_TAB, 4)}, s3 offen sc1
    Lno_pad:
    s_lshr_b32 s3, s{sBk}, {OB}
    s_lshl_b32 s3, s3, {8 + OB}
    s_and_b32 s{sQ1}, s{sBk}, {(1 << OB) - 1}
    s_add_u32 s{sQ1}, s{sQ1}, s3
    s_lshl_b32 s{sQ1}, s{sQ1}, 3
    s_mov_b32 s3, 0
    """)
    def au_reads(s):
        for z in range(2):
            A(f"ds_read_b64_tr_b16 {vr(vWf + 4 * s + 2 * z, 2)}, v{vAt} offset:{s * 4096 + z * 1024}")
        A(f"ds_read_b128 {vr(vXf + 4 * s, 4)}, v{vXrd} offset:{32 * s}")

    for s in range(4):
        A(f"s_waitcnt lgkmcnt({3 - s if b4b else 3 + 2 * s})")
        A(f"buffer_store_dwordx4 {vr(bO + 4 * s, 4)}, v{vBs}, {sr(S_TW, 4)}, s3 offen {opt.get('tw_pol', 'sc1')}")
        A("s_add_u32 s3, s3, 4096")
        if not b4b:
            au_reads(s)
    if b4b:
        A(f"""
        s_cmp_ge_u32 s{sW}, 2
        s_cbranch_scc1 Lwau_0
        s_waitcnt vmcnt(5)
        s_branch Lwau_1
        Lwau_0:
        s_waitcnt vmcnt(4)
        Lwau_1:
        s_barrier
        """)
        for s in range(4):
            au_reads(s)
    stamp(A, opt, "bve")
    if opt.get("notab"):
        A(f"s_mov_b32 s{S_TAB + 2}, 0")
    poll = f"buffer_load_dwordx2 {vr(vOffs, 2)}, v{vPa}, {sr(S_OFFS, 4)}, s{sQ1} offen sc1"

    def tag_wait(name, v, reload):
        A(f"""
        s_mov_b32 s{sTi}, 0
        L{name}_check:
        v_lshrrev_b32 v{vX + 11}, 22, v{v}
        v_cmp_ne_u32_e64 {sr(sTmp, 2)}, s{sNon}, v{v + 1}
        v_cmp_ne_u32 vcc, s{sNon + 1}, v{vX + 11}
        s_add_u32 s{sTi}, s{sTi}, 1
        s_or_b64 vcc, vcc, {sr(sTmp, 2)}
        s_cbranch_scc0 L{name}_ok
        {reload}
        s_cmp_lt_u32 s{sTi}, {SPIN_MAX}
        s_waitcnt vmcnt(0)
        s_cbranch_scc1 L{name}_check
        L{name}_ok:
        """)

    def batch_masks(window):
        A(f"""
        v_bfe_u32 v{vX}, v{vOffs}, 11, 11
        v_and_b32 v{vX + 1}, 1, v{vTid}
        v_subrev_u32 v{vX}, s{sW0}, v{vX}
        v_lshlrev_b32 v{vX + 1}, 2, v{vX + 1}
        v_cmp_lt_i32_e64 {sr(sMore, 2)}, {window}, v{vX}
        v_sub_u32 v{vX}, v{vX}, v{vX + 1}
        """)
        for i in range(window // 2):
            A(f"v_cmp_lt_i32_e64 {sr((cand + cand2)[i][5], 2)}, {(i & 3) + 8 * (i >> 2)}, v{vX}")

    def rec_addr():
        A(f"""
        v_lshrrev_b32 v{vX + 2}, 1, v{vTid}
        v_and_b32 v{vX + 1}, 1, v{vTid}
        v_mul_u32_u24 v{vX + 2}, {CH}, v{vX + 2}
        v_lshl_add_u32 v{vX + 1}, v{vX + 1}, 2, s{sW0}
        v_add_u32 v{vX + 1}, v{vX + 1}, v{vX + 2}
        v_lshlrev_b32 v{vX + 2}, 5, v{vX + 2}
        """)
        for i in range(0, 8, 2):
            A(f"v_mov_b64 {vr(vKey + i, 2)}, 0")

    def rec_loads(both=True):
        A(f"""
        v_and_b32 v{vX + 4}, 0x7ff, v{vOffs}
        v_add_lshl_u32 v{vX + 4}, v{vX + 4}, v{vX + 1}, 2
        buffer_load_dwordx4 {vr(vRec, 4)}, v{vX + 4}, {sr(S_REC, 4)}, 0 offen sc1
        """)
        if both:
            A(f"buffer_load_dwordx4 {vr(vRec + 4, 4)}, v{vX + 4}, {sr(S_REC, 4)}, 0 offen offset:32 sc1")

    def histogram(cs):
        for rec, key, rank, so_, eo_, m in cs:
            A(f"s_mov_b64 exec, {sr(m, 2)}")
            A(f"v_alignbit_b32 v{key}, v{rec}, v{rec}, 27")
            A(f"v_and_b32 v{key}, 0x7fc, v{key}")
            A(f"ds_add_rtn_u32 v{rank}, v{key}, v{vOne} offset:{L_CNT}")
        A("s_mov_b64 exec, -1")

    def place(cs):
        for rec, key, rank, so_, eo_, m in cs:
            A(f"s_mov_b64 exec, {sr(m, 2)}")
            A(f"v_lshl_add_u32 v{key}, v{rank}, 3, v{key}")
            A(f"ds_write2_b32 v{key}, v{rec}, v{vX + 2} offset0:0 offset1:1")
        A("s_mov_b64 exec, -1")

    def hand_over():
        rec_addr()
        stamp(A, opt, "pre5")
        A("s_waitcnt vmcnt(1)")
        stamp(A, opt, "drn")
        A("s_barrier")
        stamp(A, opt, "b5")
        A(f"""
        s_cmp_lg_u32 s{sW}, 7
        s_cbranch_scc1 Lno_tf
        s_lshl_b32 s{sTmp + 1}, s2, {TS}
        s_add_u32 s{sTmp + 1}, s{sTmp + 1}, {TF_OFF}
        s_mov_b64 exec, 1
        buffer_store_dwordx2 {vr(pG, 2)}, v{vZero}, {sr(S_OFFS, 4)}, s{sTmp + 1} offen sc1
        s_mov_b64 exec, -1
        s_waitcnt vmcnt(1)
        s_branch Ltf_sent
        Lno_tf:
        s_waitcnt vmcnt(0)
        Ltf_sent:
        """)
        tag_wait("off", vOffs, poll)
        stamp(A, opt, "off")
        rmask = int(opt.get("rmask", 1))
        rec_loads(not rmask)
        batch_masks(24)
        if rmask:
            A(f"""
            s_mov_b64 exec, {sr(cand[4][5], 2)}
            s_cbranch_execz Lno_rec1
            buffer_load_dwordx4 {vr(vRec + 4, 4)}, v{vX + 4}, {sr(S_REC, 4)}, 0 offen offset:32 sc1
            Lno_rec1:
            s_mov_b64 exec, -1
            """)
        A(f"""
        s_cmp_eq_u64 {sr(sMask2, 2)}, 0
        s_cbranch_scc1 Lno_rec2
        buffer_load_dwordx4 {vr(cand2[0][0], 4)}, v{vX + 4}, {sr(S_REC, 4)}, 0 offen offset:64 sc1
        v_mov_b64 {vr(cand2[0][1], 2)}, 0
        v_mov_b64 {vr(cand2[2][1], 2)}, 0
        Lno_rec2:
        """)

    b5_at = int(opt.get("b5_at", 16))
    assert poll_at <= b5_at
    for k in range(16):
        nb, s = k >> 3, k & 7
        if k == poll_at:
            A(poll)
        if k == b5_at:
            hand_over()
        A(f"s_waitcnt lgkmcnt({9 if k < 5 else (7, 5, 3)[k - 5] if k < 8 else min(3, 15 - k)})")
        cc = "0" if s == 0 else vr(vG + 16 * nb, 16)
        A(f"v_mfma_f32_32x32x16_bf16 {vr(vG + 16 * nb, 16)}, {vr(vWf + 4 * s, 4)}, {vr(vXf + 4 * (k & 7), 4)}, {cc}")
        kn = k + 4
        if kn < 8:
            for z in range(2):
                A(f"ds_read_b64_tr_b16 {vr(vWf + 4 * kn + 2 * z, 2)}, v{vAt} offset:{kn * 4096 + z * 1024}")
        if kn < 16:
            A(f"ds_read_b128 {vr(vXf + 4 * (kn & 7), 4)}, v{vXrd} offset:{32 * 272 * (kn >> 3) + 32 * (kn & 7)}")
    if b5_at == 16:
        hand_over()
    vId = 64
    A(f"""
    s_cmp_lt_u32 s{sW}, 4
    s_cbranch_scc1 Lno_ident
    s_and_b32 s3, s{sW}, 3
    s_lshl_b32 s3, s3, 6
    v_add_u32 v{vX + 11}, s3, v{vXrd}
    """)
    for nb in range(2):
        for z in range(2):
            A(f"ds_read_b128 {vr(vXf + 8 * nb + 4 * z, 4)}, v{vX + 11} offset:{32 * 272 * nb + 32 * z}")
    A(f"""
    v_lshrrev_b32 v{vX + 11}, 4, v{vLo}
    v_lshrrev_b32 v{vX + 12}, 1, v{vH16}
    v_sub_u32 v{vX + 11}, v{vX + 11}, v{vX + 12}
    v_and_b32 v{vX + 12}, 1, v{vX + 11}
    v_lshlrev_b32 v{vX + 12}, 4, v{vX + 12}
    v_mov_b32 v{vX + 13}, 0x3f80
    v_lshlrev_b32 v{vX + 12}, v{vX + 12}, v{vX + 13}
    v_ashrrev_i32 v{vX + 11}, 1, v{vX + 11}
    """)
    for i in range(8):
        A(f"v_cmp_eq_u32_e64 {sr((sTmp, sNext)[i & 1], 2)}, {8 * (i >> 2) + (i & 3)}, v{vX + 11}")
        if i:
            A("s_nop 0")
            A(f"v_cndmask_b32_e64 v{vId + i - 1}, 0, v{vX + 12}, {sr((sTmp, sNext)[(i - 1) & 1], 2)}")
    A("s_nop 0")
    A(f"v_cndmask_b32_e64 v{vId + 7}, 0, v{vX + 12}, {sr(sNext, 2)}")
    A("s_waitcnt lgkmcnt(0)")
    for z in range(2):
        for nb in range(2):
            A(f"v_mfma_f32_32x32x16_bf16 {vr(vG + 16 * nb, 16)}, {vr(vId + 4 * z, 4)}, {vr(vXf + 8 * nb + 4 * z, 4)}, {vr(vG + 16 * nb, 16)}")
    A("Lno_ident:")
    if b5_at == 17:
        hand_over()
    stamp(A, opt, "aum")

    tf_poll = f"buffer_load_dwordx2 {vr(vTf, 2)}, v{vPa}, {sr(S_OFFS, 4)}, s{sQ1} offen sc1"
    vRaw = vD
    A(f"""
    v_lshrrev_b32 v{vPa}, 1, v{vLo}
    {f'v_lshlrev_b32 v{vPa}, {TS - 3}, v{vPa}' if TS > 3 else ''}
    """)

    def wc_reads():
        A(f"""
        v_lshrrev_b32 v{vX + 11}, 1, v{vLo}
        v_lshl_add_u32 v{vX + 11}, v{vH16}, 7, v{vX + 11}
        v_add_u32 v{vX + 11}, {L_WCR}, v{vX + 11}
        """)
        for i in range(8):
            A(f"ds_read_b64 {vr(vRaw + 2 * i, 2)}, v{vX + 11} offset:{256 * i}")

    def wc_fragments():
        A("s_mov_b32 s3, 0x05040100")
        A(f"s_mov_b32 s{sTmp}, 0x07060302")
        for j in range(4):
            for i in range(4):
                A(f"v_perm_b32 v{vWC + 4 * j + i}, v{vRaw + 2 * (2 * i + 1) + (j >> 1)}, v{vRaw + 2 * (2 * i) + (j >> 1)}, "
                  f"s{(3, sTmp)[j & 1]}")

    A(f"""
    s_lshl_b32 s{sQ1}, s{sW}, {5 + TS}
    s_add_u32 s{sQ1}, s{sQ1}, {TF_OFF}
    s_mov_b64 vcc, {sr(sMore, 2)}
    s_cmp_ge_u32 s{sW}, 4
    s_cbranch_scc1 Lu_wave
    v_mov_b32 v{vXs + 2}, 0
    """)
    row_mask = "s_mov_b32 exec_lo, 0xfffff\ns_mov_b32 exec_hi, 0xfffff"
    for i in range(0, 32, 2):
        if i == 16:
            A(row_mask)
        A(f"v_max3_f32 v{vXs + 2}, |v{vG + i}|, |v{vG + i + 1}|, v{vXs + 2}")
    A("s_mov_b64 exec, -1")
    A(f"v_cmp_lt_f32 vcc, {hex(f32(AMAX))}, v{vXs + 2}")
    A(f"s_or_b64 vcc, vcc, {sr(sMore, 2)}")

    def node_rows():
        for nb in range(2):
            if nb == 1:
                A(row_mask)
            for g in range(4):
                A(f"ds_write_b128 v{vTw}, {vr(vG + 16 * nb + 4 * g, 4)} offset:{32 * 528 * nb + 32 * g}")
        A("s_mov_b64 exec, -1")

    def node_exponents():
        A(f"""
        v_mov_b32 v{vXs}, {hex(f32(-float(KSH)))}
        v_mov_b32 v{vXs + 1}, {hex(f32(-float(KSH)))}
        s_mov_b32 s{sTmp}, s{sNl}
        s_mov_b32 s{sTmp + 1}, s{sNl}
        """)
        for i in range(0, 32, 2):
            A(f"v_pk_fma_f32 {vr(vG + i, 2)}, {vr(vG + i, 2)}, {sr(sTmp, 2)}, {vr(vXs, 2)}")

    A("Lu_wave:")
    A("s_mov_b64 exec, vcc")
    A(f"ds_write_b32 v{vZero}, v{vOne} offset:{L_FLAG}")
    A("s_mov_b64 exec, -1")
    late_tf = int(opt.get("late_tf", 2))
    if late_tf < 2:
        A(tf_poll)
    la = vSoff
    A(f"""
    s_mul_i32 s{sSW}, s{sW}, {STRW}
    s_add_u32 s{sSW}, s{sSW}, {L_STR}
    v_add_u32 v{vSp}, s{sSW}, v{vH16}
    v_bfe_u32 v{vX + 12}, v{vTid}, 3, 2
    v_bfe_u32 v{vX + 13}, v{vTid}, 1, 1
    v_lshl_add_u32 v{vX + 12}, v{vX + 12}, 1, v{vX + 13}
    v_bfe_u32 v{vX + 13}, v{vTid}, 2, 1
    v_lshl_add_u32 v{vX + 12}, v{vX + 12}, 1, v{vX + 13}
    v_and_b32 v{vX + 13}, 1, v{vTid}
    v_lshl_add_u32 v{vX + 12}, v{vX + 12}, 1, v{vX + 13}
    v_lshl_add_u32 v{vEp}, v{vX + 12}, 2, s{sSW}
    v_bfrev_b32 v{vX + 13}, 2
    v_mov_b32 v{vX + 12}, {N << 18}
    v_lshlrev_b32 v{la}, 1, v{vX + 3}
    v_lshlrev_b32 v{la + 1}, 3, v{vX + 3}
    v_lshrrev_b32 v{la + 2}, 4, v{vX + 3}
    v_lshl_add_u32 v{la + 3}, v{la + 2}, 2, s{sSW}
    """)
    A(f"s_waitcnt vmcnt({1 if late_tf < 2 else 0})")
    stamp(A, opt, "rec")
    histogram(cand)
    A(f"s_cmp_eq_u64 {sr(sMask2, 2)}, 0")
    A("s_cbranch_scc1 Lno_hist2")
    histogram(cand2)
    A("Lno_hist2:")
    A("s_waitcnt vmcnt(0)")
    stamp(A, opt, "hist")
    epf = int(opt.get("epf", 2500))
    assert not (late_tf and pf_lanes)
    if late_tf == 2:
        A(tf_poll)
    elif late_tf:
        A(f"""
        v_lshrrev_b32 v{vX + 11}, 22, v{vTf}
        v_cmp_ne_u32_e64 {sr(sTmp, 2)}, s{sNon}, v{vTf + 1}
        v_cmp_ne_u32 vcc, s{sNon + 1}, v{vX + 11}
        s_or_b64 {sr(sMore, 2)}, vcc, {sr(sTmp, 2)}
        s_cbranch_scc0 Ltf_seen
        {tf_poll}
        Ltf_seen:
        """)
    else:
        tag_wait("tf", vTf, tf_poll)

    def early_features():
        A(f"s_mov_b32 s3, {epf << 18}")
        for rec, key_, rank, so_, eo_, m in cand[:4]:
            A(f"v_cmp_gt_u32 vcc, s3, v{rec}")
            A(f"v_bfe_u32 v{eo_}, v{rec}, 6, 12")
            A(f"v_lshl_add_u32 v{eo_}, v{eo_}, 5, v{vX + 2}")
            A(f"s_and_b64 vcc, vcc, {sr(m, 2)}")
            A("s_or_b64 exec, vcc, 1")
            A(f"buffer_load_dword v{vL + 22}, v{eo_}, {sr(S_EA, 4)}, 0 offen")
            A("s_mov_b64 exec, -1")

    if epf:
        early_features()
    A("s_waitcnt lgkmcnt(0)")
    A("s_barrier")
    stamp(A, opt, "bB")
    c, p, deg, q, inc, g4 = vL, vL + 8, vL + 16, vL + 17, vL + 18, vL + 19
    A(f"ds_read_b128 {vr(c, 4)}, v{la} offset:{L_CNT}")
    A(f"ds_read_b128 {vr(c + 4, 4)}, v{la} offset:{L_CNT + 16}")
    if pf_lanes:
        A(f"""
        s_andn2_b32 s3, s2, 7
        s_add_u32 s3, s3, s{sW}
        s_mul_i32 s3, s3, {pf_lanes * 128}
        {'s_nop 0' if pf_lanes == 64 else f's_bfm_b64 exec, {pf_lanes}, 0'}
        buffer_load_dword v{vL + 22}, v{la + 1}, {sr(S_TAB, 4)}, s3 offen {tab_pol}
        s_mov_b64 exec, -1
        """)
    A(f"""
    s_mov_b32 s{sQ2}, {L_SO}
    s_waitcnt lgkmcnt(1)
    v_add_u32 v{p + 2}, v{c}, v{c + 1}
    v_add3_u32 v{p + 4}, v{p + 2}, v{c + 2}, v{c + 3}
    s_waitcnt lgkmcnt(0)
    v_add3_u32 v{p + 6}, v{p + 4}, v{c + 4}, v{c + 5}
    v_add3_u32 v{deg}, v{p + 6}, v{c + 6}, v{c + 7}
    v_add_u32 v{q}, 3, v{deg}
    v_lshrrev_b32 v{inc}, 2, v{q}
    """)
    wave_scan(A, inc, fill=[
        [f"v_lshrrev_b32 v{q}, 2, v{q}", f"v_add_u32 v{p + 3}, v{p + 2}, v{c + 2}"],
        [f"v_add_u32 v{p + 5}, v{p + 4}, v{c + 4}", f"v_add_u32 v{p + 7}, v{p + 6}, v{c + 6}"],
        [f"v_add_u32 v{deg}, s{sW}, v{deg}", f"v_lshlrev_b32 v{c + 1}, 2, v{q}"],
        [f"v_cmp_lt_u32_e64 {sr(sNext, 2)}, v{deg}, v{c + 1}", "s_nop 0"]])
    A(f"v_sub_u32 v{g4}, v{inc}, v{q}")
    A(f"v_readlane_b32 s3, v{inc}, 63")
    A(f"v_lshl_add_u32 v{p}, v{g4}, 5, s{sQ2}")
    A(f"v_lshl_add_u32 v{p + 1}, v{c}, 3, v{p}")
    for i in range(2, 8):
        A(f"v_lshl_add_u32 v{p + i}, v{p + i}, 3, v{p}")
        if i in (3, 7):
            A(f"ds_write_b128 v{la}, {vr(p + i - 3, 4)} offset:{L_BASE + 4 * (i - 3)}")
    for cd in cand:
        A(f"ds_read_b32 v{cd[1]}, v{cd[1]} offset:{L_BASE}")
    A(f"""
    s_mul_i32 s{sLw}, s3, s{sW}
    s_add_u32 s{sRem}, s{sLw}, s3
    s_lshr_b32 s{sLw}, s{sLw}, 3
    s_lshr_b32 s{sRem}, s{sRem}, 3
    v_cmp_gt_u32_e64 {sr(sTmp, 2)}, s{sLw}, v{g4}
    v_cmp_gt_u32 vcc, s{sRem}, v{g4}
    v_lshl_add_u32 v{deg}, v{deg}, 3, v{p}
    s_bcnt1_i32_b64 s{sF0}, {sr(sTmp, 2)}
    s_bcnt1_i32_b64 s{sOwn}, vcc
    s_cmp_eq_u32 s{sW}, 7
    s_cselect_b32 s{sOwn}, s{sNn}, s{sOwn}
    s_sub_u32 s{sOwn}, s{sOwn}, s{sF0}
    s_sub_u32 s{sRem}, s{sRem}, s{sLw}
    s_waitcnt lgkmcnt(0)
    """)
    stamp(A, opt, "scan2")
    place(cand)
    A(f"s_cmp_eq_u64 {sr(sMask2, 2)}, 0")
    A("s_cbranch_scc1 Lno_place2")
    for cd in cand2:
        A(f"ds_read_b32 v{cd[1]}, v{cd[1]} offset:{L_BASE}")
    A("s_waitcnt lgkmcnt(0)")
    place(cand2)
    A("Lno_place2:")
    en, so, eo, key, cn, pos, t = vL, vL + 8, vL + 12, vL + 20, vL + 24, vL + 21, vL + 26
    A(f"""
    s_mov_b64 exec, {sr(sNext, 2)}
    ds_write_b64 v{deg}, {vr(vX + 12, 2)}
    s_mov_b64 exec, -1
    """)
    if late_tf:
        if late_tf < 2:
            A(f"s_cmp_eq_u64 {sr(sMore, 2)}, 0")
            A("s_cbranch_scc1 Ltf_ok")
        A(f"s_waitcnt vmcnt({4 if epf else 0})")
        tag_wait("tf", vTf, tf_poll)
    A(f"""
    s_sub_u32 s3, s{sOwn}, 1
    s_sub_u32 s{sTmp}, s{sRem}, 1
    s_cmp_gt_u32 s{sTmp}, 63
    s_cselect_b32 s3, 8, s3
    s_cmp_gt_u32 s3, 7
    s_cselect_b64 exec, 1, 0
    ds_write_b32 v{vZero}, v{vOne} offset:{L_FLAG}
    s_mov_b64 exec, -1
    s_lshl_b32 s3, s{sLw}, 5
    v_add_u32 v{t}, s3, v{la}
    v_cmp_le_u32_e64 {sr(sTmp, 2)}, s{sRem}, v{la + 2}
    s_sub_u32 s{sQ1}, s{sF0}, 1
    s_mul_i32 s{sQ2}, s{sQ1}, 528
    s_add_u32 s{sQ2}, s{sQ2}, {L_TA}
    s_mov_b32 s{sQ3}, 0xfffffe00
    s_waitcnt lgkmcnt(0)
    s_barrier
    ds_read_b128 {vr(en, 4)}, v{t} offset:{L_SO}
    ds_read_b32 v{t + 3}, v{vZero} offset:{L_FLAG}
    ds_read_b128 {vr(en + 4, 4)}, v{t} offset:{L_SO + 16}
    v_cndmask_b32_e64 v{vInv}, 0, v{vX + 13}, {sr(sTmp, 2)}
    v_add_u32 v{vEb}, s{sQ2}, v{vLo}
    v_mov_b64 {vr(cn, 2)}, 1
    s_waitcnt lgkmcnt({2 if int(opt.get("kent", 1)) < 2 else 0})
    v_lshrrev_b32 v{key}, 26, v{en + 2 * int(opt.get("kent", 1))}
    v_and_b32 v{key}, 56, v{key}
    v_cndmask_b32_e64 v{key}, v{key}, 56, {sr(sTmp, 2)}
    s_waitcnt lgkmcnt(1)
    v_readfirstlane_b32 s3, v{t + 3}
    v_lshlrev_b64 {vr(cn, 2)}, v{key}, {vr(cn, 2)}
    v_and_b32 v{t + 3}, 63, v{en}
    s_cmp_lg_u32 s3, 0
    s_cbranch_scc1 Lslow_entry
    s_waitcnt lgkmcnt(0)
    """)
    stamp(A, opt, "bD")
    fillers = [f"v_subrev_u32 v{t + 3}, s{sQ1}, v{t + 3}", f"v_mul_u32_u24 v{t + 3}, 12, v{t + 3}"]
    fillers += [f"v_lshrrev_b32 v{so + i}, 9, v{en + 2 * i}" for i in range(4)]
    for k, d in enumerate(WAVE_SCAN):
        A(f"v_add_u32_dpp v{cn}, v{cn}, v{cn} {d} bank_mask:0xf")
        A(f"v_add_u32_dpp v{cn + 1}, v{cn + 1}, v{cn + 1} {d} bank_mask:0xf")
        A(fillers[k])
    A(f"v_readlane_b32 s{sTmp}, v{cn}, 63")
    A(f"v_readlane_b32 s{sTmp + 1}, v{cn + 1}, 63")
    for i in range(4):
        A(f"v_bfe_u32 v{eo + i}, v{en + 2 * i}, 6, 12")
    A(f"""
    s_mul_i32 s3, s{sTmp}, 0x01010101
    s_mul_i32 s{sTmp + 1}, s{sTmp + 1}, 0x01010100
    s_lshl_b32 s{sTmp}, s3, 8
    s_lshr_b32 s3, s3, 24
    s_mul_i32 s3, s3, 0x01010101
    s_add_u32 s{sTmp + 1}, s{sTmp + 1}, s3
    v_lshl_add_u64 {vr(cn, 2)}, {vr(cn, 2)}, 0, {sr(sTmp, 2)}
    s_sub_u32 s3, s{sSW}, 16
    v_lshrrev_b64 {vr(cn, 2)}, v{key}, {vr(cn, 2)}
    """)
    for i in range(4):
        A(f"v_lshl_add_u32 v{eo + i}, v{eo + i}, 5, v{en + 2 * i + 1}")
    A(f"v_and_b32 v{pos}, 0xff, v{cn}")
    for i in range(4):
        A(f"v_or_b32 v{eo + i}, v{eo + i}, v{vInv}")
    A(f"v_lshl_add_u32 v{t}, v{pos}, 4, s3")
    A(f"ds_write_b128 v{t}, {vr(eo, 4)} offset:1152")
    A(f"ds_read_b32 v{vEo}, v{vEp} offset:1152")
    for i in range(4):
        A(f"v_and_or_b32 v{so + i}, v{so + i}, s{sQ3}, v{vInv}")
    A(f"""
    v_and_b32 v{t + 1}, 1, v{pos}
    v_lshl_add_u32 v{t + 1}, v{t + 1}, 3, v{t}
    v_subrev_u32 v{t + 1}, 8, v{t + 1}
    ds_write2_b64 v{t + 1}, {vr(so, 2)}, {vr(so + 2, 2)} offset0:0 offset1:2
    ds_read_b128 {vr(vT, 4)}, v{vSp}
    ds_read_b128 {vr(vSo, 4)}, v{vSp} offset:32
    v_add_u32 v{t + 2}, s{sSW}, v{pos}
    ds_write_b8 v{t + 2}, v{t + 3} offset:2303
    ds_read_b32 v{vSb}, v{la + 3} offset:2304
    s_waitcnt lgkmcnt(5)
    v_add_u32 v{vEo}, v{vEo}, v{vH16}
    buffer_load_dwordx4 {vr(vEA, 4)}, v{vEo}, {sr(S_EA, 4)}, 0 offen {ea_pol}
    """)
    dist = int(opt.get("dist", 4))
    for u in range(dist):
        src = (vT, vT + 2, vSo, vSo + 2)[u]
        if u in (0, 2):
            A(f"s_waitcnt lgkmcnt({(3, 1)[u // 2]})")
        A(f"v_lshl_add_u64 {vr(src, 2)}, {vr(src, 2)}, 0, {vr(vLo, 2)}")
        A(f"buffer_load_dwordx4 {vr(vL + 8 * u, 4)}, v{src}, {sr(S_TAB, 4)}, 0 offen {tab_pol}")
        A(f"buffer_load_dwordx4 {vr(vL + 8 * u + 4, 4)}, v{src + 1}, {sr(S_TAB, 4)}, 0 offen {tab_pol}")
    stamp(A, opt, "prim")
    eps = 1e-6 / c0
    wc_reads()
    A(f"s_and_b32 s3, s{sW}, 4")
    A(f"v_mov_b32 v{vEad}, s3")
    A("s_cbranch_scc1 Lfactors_made")
    node_exponents()
    for i in range(32):
        A(f"v_exp_f32 v{vG + i}, v{vG + i}")
    A("Lfactors_made:")
    node_rows()
    A(f"""
    s_mov_b64 exec, 1
    ds_add_u32 v{vEad}, v{vOne} offset:{L_FLAG + 8}
    s_mov_b64 exec, -1
    s_waitcnt lgkmcnt(9)
    """)
    wc_fragments()
    A(f"""
    s_waitcnt lgkmcnt(0)
    s_mov_b32 s{sTmp}, {hex(f32(eps / 2))}
    s_mov_b32 s{sTmp + 1}, {hex(f32(eps / 2))}
    """)
    for sl_ in range(NS):
        for j in range(0, 8, 2):
            A(f"v_mov_b64 {vr(vSl + 12 * sl_ + j, 2)}, {sr(sTmp, 2) if sl_ and j >= 4 else 0}")
    eA1, eA2, eA3, eA4, eFl, eOne = 248, 249, 250, 251, 252, 253
    sOut, sLast = sOvf, sMor
    A(f"""
    v_add_u32 v{eA1}, s{sSW}, v{vX + 3}
    s_mul_i32 s3, s{sF0}, 528
    s_add_u32 s3, s3, {L_TU}
    v_mul_u32_u24 v{eA2}, 33, v{vH16}
    v_add3_u32 v{eA2}, v{eA2}, v{vLo}, s3
    s_mul_i32 s3, s{sF0}, 272
    s_add_u32 s3, s3, {L_X}
    v_mul_u32_u24 v{eA3}, 17, v{vH16}
    v_lshrrev_b32 v{eA4}, 1, v{vLo}
    v_add3_u32 v{eA3}, v{eA3}, v{eA4}, s3
    v_lshl_add_u32 v{eA4}, v{vH16}, 4, v{eA4}
    s_lshl_b32 s3, s{sW}, 2
    v_mov_b32 v{eFl}, s3
    v_mov_b32 v{eOne}, {L_FLAG + 12}
    s_add_u32 s{sOut}, s{sN0}, s{sF0}
    s_lshl_b32 s{sOut}, s{sOut}, 8
    s_mul_i32 s{sLast}, s{sOwn}, 12
    """)
    A("Lfactors:")
    A(f"ds_read_b32 v{vEad}, v{vZero} offset:{L_FLAG + 8}")
    for sl_ in range(NS):
        A(f"ds_read_b128 {vr(vSl + 12 * sl_ + 8, 4)}, v{vEb} offset:{528 * sl_}")
    A("s_waitcnt lgkmcnt(0)")
    A(f"v_cmp_gt_u32 vcc, 4, v{vEad}")
    A("s_cbranch_vccnz Lfactors")
    ea_at = int(opt.get("ea_at", 3))
    prio = opt.get("prio", "alt")
    A(f"""
    s_waitcnt lgkmcnt(0)
    v_readlane_b32 s{sSl0}, v{vSb}, 0
    v_readlane_b32 s{sSl1}, v{vSb}, 1
    s_mov_b32 s{sLn}, 2
    s_mov_b32 s{sLn + 1}, 3
    """)
    if prio == "quart":
        A(f"""
        s_mul_i32 s{sQ1}, s{sRem}, 3
        s_lshr_b32 s{sQ1}, s{sQ1}, 2
        s_lshr_b32 s{sQ2}, s{sRem}, 1
        s_lshr_b32 s{sQ3}, s{sRem}, 2
        """)
    else:
        first_drop = [int(x) for x in opt.get("drop", "8,16").split(",")]
        A(f"""
        s_cmp_lt_u32 s{sW}, 4
        s_cselect_b32 s3, {first_drop[0]}, {first_drop[1]}
        s_sub_i32 s{sQ1}, s{sRem}, s3
        s_sub_i32 s{sQ2}, s{sQ1}, {int(opt.get("dstep", 16))}
        s_sub_i32 s{sQ3}, s{sQ2}, {int(opt.get("dstep", 16))}
        """)
        if opt.get("dend"):
            e0, e1 = (int(x) for x in opt["dend"].split(","))
            A(f"""
            s_cmp_lt_u32 s{sW}, 4
            s_cselect_b32 s{sQ3}, {e0}, {e1}
            s_add_u32 s{sQ2}, s{sQ3}, {int(opt.get("dstep", 16))}
            s_add_u32 s{sQ1}, s{sQ2}, {int(opt.get("dstep", 16))}
            """)
    thr_on = opt.get("thr")
    if thr_on:
        ref, mul, cut = (int(x) for x in thr_on.split(","))
        A(f"""
        s_sub_i32 s3, {ref}, s{sRem}
        s_mul_i32 s3, s3, {mul}
        s_sub_i32 s{sTi}, s{sRem}, s3
        """)
    fair = int(opt.get("fair", 0))
    vFa, vFi, vFr = 248, 249, 250
    if fair:
        A(f"""
        s_and_b32 s3, s{sW}, 3
        s_lshl_b32 s3, s3, 2
        v_mov_b32 v{vFa}, s3
        s_cmp_lt_u32 s{sW}, 4
        s_cselect_b32 s{sQ1}, 1, -1
        v_mov_b32 v{vFi}, s{sQ1}
        """)
    A("s_setprio 3")
    A(f"s_waitcnt vmcnt({2 * dist})")
    stamp(A, opt, "first")

    def mfma(j):
        return f"v_mfma_f32_32x32x16_bf16 {vr(vD + 16 * j, 16)}, {vr(vEA, 4)}, {vr(vWC + 4 * j, 4)}, 0"

    for j in range(4):
        A(mfma(j))
    A("s_nop 8")
    A(f"s_cmp_gt_u32 s{sRem}, 8")
    A("s_cbranch_scc0 Llast")

    def step(u, last, q):
        La, Lb = vL + 8 * (u & 3), vL + 8 * (u & 3) + 4
        a, b = vT, vT + 4
        sl = (sSl0, sSl1)[u >> 2]
        nv = u + dist
        prefetch = not (last and nv >= 8)
        check = fair and u % fair == 0
        need = [u] + (["E"] if u == 7 and not last else [])
        A(f"s_waitcnt vmcnt({len(q) - 1 - max(i for i, x in enumerate(q) if x in need)})")
        if thr_on and not last:
            A(f"s_cbranch_vccz Lthr{u}")
            A(f"s_waitcnt vmcnt({len(q) - 1 - max(i for i, x in enumerate(q) if x in need + [u + cut])})")
            A(f"Lthr{u}:")
        lds = (prefetch and nv % 2 == 0) or (u == ea_at and not last) or check
        if prefetch and nv % 2 == 0:
            A(f"ds_read_b128 {vr(vSo, 4)}, v{vSp} offset:{16 * nv}")
        if check:
            A("s_nop 0")
            A("s_mov_b64 exec, 1")
            A(f"ds_add_rtn_u32 v{vFr}, v{vFa}, v{vFi} offset:{L_FLAG + 32}")
            A("s_mov_b64 exec, -1")
            A("s_nop 0")
        if u == ea_at and not last:
            A(f"ds_read_b32 v{vEo}, v{vEp} offset:{1152 + 128}")

        def mix(j, hb):
            return (f"v_fma_mix_f32 v{(a, b)[hb] + j}, v{vD + 16 * j + 2 * u + hb}, s{sNl}, v{(La, Lb)[hb] + j} "
                    "op_sel_hi:[0,0,1]")

        if u == 7 and not last:
            for j in range(4):
                A(mix(j, 0))
                A(mix(j, 1))
                if j:
                    A(f"v_exp_f32 v{a + j - 1}, v{a + j - 1}")
                    A(f"v_exp_f32 v{b + j - 1}, v{b + j - 1}")
                A(mfma(j))
            A(f"v_exp_f32{'' if lds else '_e64'} v{a + 3}, v{a + 3}")
            A(f"v_exp_f32 v{b + 3}, v{b + 3}")
        else:
            for hb in range(2):
                for j in range(4):
                    A(mix(j, hb))
            for j in range(8):
                A(f"v_exp_f32{'_e64' if j == 0 and not lds else ''} v{a + j}, v{a + j}")
        if lds:
            A("s_waitcnt lgkmcnt(0)")
        A(f"s_set_gpr_idx_on s{sl}, gpr_idx(SRC1)")
        for j in range(0, 8, 2):
            A(f"v_pk_fma_f32 {vr(a + j, 2)}, {vr(a + j, 2)}, {vr(vSl + 8 + (j & 3), 2)}, {sr(sC0, 2)} clamp")
        A("s_set_gpr_idx_mode gpr_idx()")
        A(f"s_lshr_b32 s{sl}, s{sl}, 8")
        if check:
            A(f"v_readlane_b32 s3, v{vFr}, 0")
        if u == ea_at and not last:
            A(f"v_add_u32_e64 v{vEo}, v{vEo}, v{vH16}")
            A(f"buffer_load_dwordx4 {vr(vEA, 4)}, v{vEo}, {sr(S_EA, 4)}, 0 offen {ea_pol}")
            q.append("E")
        for j in (0, 2):
            A(f"v_pk_mul_f32 {vr(La + j, 2)}, {vr(La + j, 2)}, {vr(b + j, 2)}")
        if check:
            tag = f"Lfair{u}{'l' if last else ''}"
            A(f"""
            s_mul_i32 s3, s3, s{sQ1}
            s_setprio 0
            s_cmp_ge_i32 s3, 0
            s_cbranch_scc1 {tag}
            s_setprio 2
            s_nop 0
            {tag}:
            """)
        so2 = vSo + 2 * (nv & 1)
        if prefetch:
            A(f"v_lshl_add_u64 {vr(so2, 2)}, {vr(so2, 2)}, 0, {vr(vLo, 2)}")
        for j in (0, 2):
            A(f"v_pk_fma_f32 {vr(La + j, 2)}, {vr(Lb + j, 2)}, {vr(a + j, 2)}, {vr(La + j, 2)}")
        for j in (0, 2):
            A(f"v_pk_add_f32 {vr(Lb + j, 2)}, {vr(a + j, 2)}, {vr(b + j, 2)}")
        for j in (0, 2):
            A(f"v_pk_mul_f32 {vr(a + j, 2)}, {vr(a + j, 2)}, {vr(b + j, 2)}")
        for j in range(4):
            A(f"v_rcp_f32{'_e64' if j == 0 else ''} v{a + j}, v{a + j}")
        A("s_set_gpr_idx_mode gpr_idx(SRC2,DST)")
        for j in (0, 2):
            A(f"v_pk_fma_f32 {vr(vSl + j, 2)}, {vr(La + j, 2)}, {vr(a + j, 2)}, {vr(vSl + j, 2)}")
            A(f"v_pk_fma_f32 {vr(vSl + 4 + j, 2)}, {vr(Lb + j, 2)}, {vr(a + j, 2)}, {vr(vSl + 4 + j, 2)}")
        if prefetch:
            A(f"buffer_load_dwordx4 {vr(vL + 8 * (nv & 3), 4)}, v{so2}, {sr(S_TAB, 4)}, 0 offen {tab_pol}")
            A(f"buffer_load_dwordx4 {vr(vL + 8 * (nv & 3) + 4, 4)}, v{so2 + 1}, {sr(S_TAB, 4)}, 0 offen {tab_pol}")
            q += [nv] * 2
        A("s_set_gpr_idx_off")

    assert 0 <= ea_at < 7
    A.note("""main loop: eight groups per tile. a = min(2^-48 * (1 + exp(-gate)), 1) for edges a and b of each half-wave:
    num += (Va * b + Vb * a) / (a * b), den += (a + b) / (a * b)""")
    A(".p2align 6")
    A("Ltile:")
    A(f"s_sub_u32 s{sRem}, s{sRem}, 8")
    if thr_on:
        A(f"s_cmp_ge_i32 s{sRem}, s{sTi}")
        A("s_cselect_b64 vcc, -1, 0")
    q = [0, 0, 1, 1, 2, 2, 3, 3][:2 * dist]
    for u in range(8):
        step(u, False, q)
        if u == 3 and int(opt.get("pmid", 0)):
            A(f"s_add_u32 s3, s{sRem}, 4")
            for k, sq in enumerate((sQ1, sQ2, sQ3)):
                A(f"s_cmp_le_i32 s3, s{sq}")
                A("s_cbranch_scc0 Lprio_mid")
                A(f"s_setprio {2 - k}")
            A("Lprio_mid:")
    A(f"""
    s_nop 0
    v_readlane_b32 s{sSl0}, v{vSb}, s{sLn}
    v_readlane_b32 s{sSl1}, v{vSb}, s{sLn + 1}
    v_add_u32 v{vSp}, 0x80, v{vSp}
    v_add_u32 v{vEp}, 0x80, v{vEp}
    s_add_u32 s{sLn}, s{sLn}, 2
    s_add_u32 s{sLn + 1}, s{sLn + 1}, 2
    """)
    if opt.get("tilestamps"):
        for k in range(2, 6):
            A(f"s_cmp_lg_u32 s{sLn}, {2 * k + 2}")
            A(f"s_cbranch_scc1 Lts{k}")
            stamp(A, opt, f"tile{k}")
            A(f"Lts{k}:")
    if prio != "none" and not fair:
        for k, sq in enumerate((sQ1, sQ2, sQ3)):
            A(f"s_cmp_le_i32 s{sRem}, s{sq}")
            A("s_cbranch_scc0 Lprio_done")
            A(f"s_setprio {2 - k}")
        A("Lprio_done:")
    A(f"s_cmp_gt_u32 s{sRem}, 8")
    A("s_cbranch_scc1 Ltile")
    A(".p2align 3")
    A(f"""
    Llast:
    ds_read_b32 v{vEad}, v{eOne}
    s_waitcnt lgkmcnt(0)
    v_cmp_gt_u32 vcc, 4, v{vEad}
    s_cbranch_vccnz Llast
    """)
    q = [0, 0, 1, 1, 2, 2, 3, 3][:2 * dist]
    for u in range(8):
        step(u, True, q)
        if u < 7:
            A(f"s_cmp_le_u32 s{sRem}, {u + 1}")
            A("s_cbranch_scc1 Lmain_done")
    A("Lmain_done:")
    stamp(A, opt, "done")

    def finalize(a0, o, a1, u0, x0, addr, soff, pre_store, pre_rows=""):
        for j in range(4):
            A(f"v_permlane32_swap_b32 v{a0 + j}, v{a1 + j}")
            A(f"v_permlane32_swap_b32 v{a0 + o + j}, v{a1 + o + j}")
        for j in (o, o + 2, 0, 2):
            A(f"v_pk_add_f32 {vr(a0 + j, 2)}, {vr(a0 + j, 2)}, {vr(a1 + j, 2)}")
        for j in range(4):
            A(f"v_rcp_f32 v{a0 + o + j}, v{a0 + o + j}")
        A(pre_rows)
        for j in (0, 2):
            A(f"v_pk_fma_f32 {vr(a0 + j, 2)}, {vr(a0 + j, 2)}, {vr(a0 + o + j, 2)}, {vr(u0 + j, 2)}")
        A(f"v_cvt_pk_bf16_f32 v{a0}, v{a0}, v{a0 + 1}")
        A(f"v_cvt_pk_bf16_f32 v{a0 + 1}, v{a0 + 2}, v{a0 + 3}")
        A(f"v_pk_max_f16 v{a0}, v{a0}, v{x0}")
        A(f"v_pk_max_f16 v{a0 + 1}, v{a0 + 1}, v{x0 + 1}")
        A(pre_store)
        A(f"buffer_store_dwordx2 {vr(a0, 2)}, v{addr}, {sr(S_OUT, 4)}, s{soff} offen {opt.get('out_pol', 'sc1 nt')}")

    vU, vXr, vA1, vA2, vA3, vCy = vD, vD + 16, vD + 24, vD + 25, vD + 26, vD + 32
    carry_reads = f"""
    ds_read_b32 v{vEad}, v{eFl} offset:{L_FLAG + 64 + 4}
    ds_read_b128 {vr(vCy, 4)}, v{eA1} offset:{STRW}
    ds_read_b128 {vr(vCy + 4, 4)}, v{eA1} offset:{STRW + 1024}
    """
    A(f"""
    ds_write_b128 v{eA1}, {vr(vSl, 4)}
    ds_write_b128 v{eA1}, {vr(vSl + 4, 4)} offset:1024
    ds_write_b32 v{eFl}, v{eOne} offset:{L_FLAG + 64}
    """)
    for pr in range(4):
        A(f"ds_read_b128 {vr(vU + 4 * pr, 4)}, v{eA2} offset:{1056 * pr}")
        A(f"ds_read_b64 {vr(vXr + 2 * pr, 2)}, v{eA3} offset:{544 * pr}")
    A(carry_reads)
    for pr in range(4):
        if pr < 3:
            A(f"s_cmp_gt_u32 s{sOwn}, {2 * pr + 2}")
            A(f"s_cbranch_scc1 Lfin{pr}")
        A(f"""
        s_cmp_eq_u32 s{sW}, 7
        s_cbranch_scc1 Lfin{pr}
        Lcarry{pr}:
        s_waitcnt lgkmcnt(0)
        v_cmp_eq_u32 vcc, 0, v{vEad}
        s_cbranch_vccz Lcarried{pr}
        s_sleep 1
        {carry_reads}
        s_branch Lcarry{pr}
        Lcarried{pr}:
        s_set_gpr_idx_on s{sLast}, gpr_idx(SRC0,DST)
        """)
        for j in range(0, 8, 2):
            A(f"v_pk_add_f32 {vr(vSl + j, 2)}, {vr(vSl + j, 2)}, {vr(vCy + j, 2)}")
        A("s_set_gpr_idx_off")
        A("s_nop 1")
        A(f"Lfin{pr}:")
        finalize(vSl + 12 * (2 * pr + 1), 4, vSl + 12 * (2 * pr + 2), vU + 4 * pr, vXr + 2 * pr, eA4, sOut,
                 f"s_cmp_gt_u32 s{sOwn}, {2 * pr + 1}\ns_cselect_b32 exec_hi, -1, 0", "" if pr else "s_waitcnt lgkmcnt(0)")
        if pr < 3:
            A(f"s_add_u32 s{sOut}, s{sOut}, 512")
            A(f"s_cmp_gt_u32 s{sOwn}, {2 * pr + 2}")
            A("s_cbranch_scc0 Lk2_done")
    A("Lk2_done:")
    if opt.get("xcc"):
        A("s_getreg_b32 s4, hwreg(HW_REG_XCC_ID, 0, 4)")
        A("s_sub_u32 s4, s4, s2")
        A("s_and_b32 s4, s4, 7")
        A("s_mul_i32 s4, s4, 100")
    stamp_flush(A, opt, 8, 0x20000, vTid)
    if opt.get("spin"):
        A("""
        Lspin:
        s_memrealtime s[42:43]
        s_waitcnt lgkmcnt(0)
        s_sub_u32 s42, s42, s100
        s_cmp_lt_u32 s42, 10000
        s_cbranch_scc1 Lspin
        """)
    A("Lk2_exit:")
    A("s_endpgm")

    NU = 7
    vAcc, vAn = 0, 56
    vLs = [vL + 8 * u for u in range(4)] + [84 + 8 * u for u in range(3)]
    vP, vErr, vQ, vCaddr, vUaddr = 245, 252, 253, 254, 255
    A("Lcold_code:")
    A("Lslow_entry:")
    A(f"s_cmp_ge_u32 s{sW}, 4")
    A("s_cbranch_scc1 Lg_rows")
    node_exponents()
    A("Lg_rows:")
    node_rows()
    wc_reads()
    A("s_waitcnt lgkmcnt(0)")
    wc_fragments()
    A(f"""
    s_waitcnt vmcnt(0) lgkmcnt(0)
    s_barrier
    v_lshlrev_b32 v{vX + 11}, 2, v{vTid}
    ds_write_b32 v{vX + 11}, v{vZero} offset:{L_CNT}
    s_mul_i32 s3, s{sW}, 528
    s_add_u32 s3, s3, {L_TA}
    v_add_u32 v{vX + 11}, s3, v{vLo}
    """)
    for u in range(NU):
        A(f"ds_read_b128 {vr(vAn + 4 * u, 4)}, v{vX + 11} offset:{8 * 528 * u}")
    A(f"s_mov_b32 s{sTmp}, {hex(f32(eps / 2))}")
    A(f"s_mov_b32 s{sTmp + 1}, {hex(f32(eps / 2))}")
    for i in range(0, 8 * NU, 2):
        A(f"v_mov_b64 {vr(vAcc + i, 2)}, {sr(sTmp, 2) if i & 4 else 0}")
    A(f"""
    v_bfe_u32 v{vX + 11}, v{vTid}, 3, 3
    v_and_b32 v{vX + 12}, 7, v{vTid}
    v_lshlrev_b32 v{vX + 12}, 2, v{vX + 12}
    v_lshl_add_u32 v{vX + 12}, v{vX + 11}, 8, v{vX + 12}
    s_lshl_b32 s3, s{sW}, 5
    v_add_u32 v{vCaddr}, s3, v{vX + 12}
    v_bfe_u32 v{vX + 11}, v{vTid}, 3, 2
    v_bfe_u32 v{vX + 12}, v{vTid}, 1, 1
    v_lshl_add_u32 v{vX + 11}, v{vX + 11}, 1, v{vX + 12}
    v_lshlrev_b32 v{vUaddr}, 5, v{vX + 11}
    Lbatch:
    """)
    batch_masks(16)
    A("Lround:")
    rec_addr()
    rec_loads()
    A(f"""
    v_mov_b32 v{vZero}, 0
    v_mov_b32 v{vOne}, 1
    ds_write_b32 v{vZero}, v{vZero} offset:{L_FLAG}
    ds_write_b32 v{vZero}, v{vZero} offset:{L_FLAG + 4}
    s_waitcnt lgkmcnt(0)
    s_barrier
    s_mov_b64 exec, {sr(sMore, 2)}
    ds_write_b32 v{vZero}, v{vOne} offset:{L_FLAG + 4}
    s_mov_b64 exec, -1
    s_waitcnt vmcnt(0)
    """)
    histogram(cand)
    for rec, key_, rank, so_, eo_, m in cand:
        A(f"v_lshrrev_b32 v{so_}, 18, v{rec}")
        A(f"v_bfe_u32 v{eo_}, v{rec}, 6, 12")
        A(f"v_lshlrev_b32 v{so_}, 9, v{so_}")
        A(f"v_lshl_add_u32 v{eo_}, v{eo_}, 5, v{vX + 2}")
    A("s_waitcnt lgkmcnt(0)")
    A("s_barrier")
    c, inc, deg, q, t0, t1 = vX + 12, vX + 13, vX + 14, vX + 15, vX + 16, vX + 17
    A(f"ds_read_b32 v{c}, v{vCaddr} offset:{L_CNT}")
    A(f"v_lshrrev_b32 v{t0}, 5, v{vCaddr}")
    A(f"v_lshlrev_b32 v{t0}, 6, v{t0}")
    A("s_waitcnt lgkmcnt(0)")
    A(f"ds_write_b32 v{vCaddr}, v{vZero} offset:{L_CNT}")
    A(f"v_mov_b32 v{inc}, v{c}")
    for d in (1, 2, 4, 8):
        A("s_nop 1")
        A(f"v_add_u32_dpp v{inc}, v{inc}, v{inc} row_shr:{d} row_mask:0xf bank_mask:0xf")
    A(f"""
    v_mov_b32 v{t1}, 0
    s_nop 0
    v_mov_b32_dpp v{deg}, v{inc} row_newbcast:7 row_mask:0xf bank_mask:0x3
    v_mov_b32_dpp v{t1}, v{inc} row_newbcast:7 row_mask:0xf bank_mask:0xc
    v_mov_b32_dpp v{deg}, v{inc} row_newbcast:15 row_mask:0xf bank_mask:0xc
    v_sub_u32 v{inc}, v{inc}, v{t1}
    v_sub_u32 v{deg}, v{deg}, v{t1}
    v_sub_u32 v{inc}, v{inc}, v{c}
    v_add_u32 v{inc}, v{inc}, v{t0}
    ds_write_b32 v{vCaddr}, v{inc} offset:{L_BASE}
    v_cmp_lt_u32 vcc, 64, v{deg}
    v_min_u32 v{deg}, 64, v{deg}
    v_add_u32 v{q}, 3, v{deg}
    v_lshrrev_b32 v{q}, 2, v{q}
    s_mov_b64 exec, vcc
    ds_write_b32 v{vZero}, v{vOne} offset:{L_FLAG}
    s_mov_b64 exec, -1
    ds_bpermute_b32 v{vQ}, v{vUaddr}, v{q}
    v_and_b32 v{c}, 7, v{vTid}
    v_add_u32 v{c}, v{c}, v{deg}
    v_lshlrev_b32 v{t1}, 2, v{q}
    v_cmp_lt_u32 vcc, v{c}, v{t1}
    v_add_lshl_u32 v{c}, v{c}, v{t0}, 2
    v_mov_b32 v{t0}, {TAB_BYTES}
    v_bfrev_b32 v{t1}, 2
    s_mov_b64 exec, vcc
    ds_write_b32 v{c}, v{t0} offset:{L_SO}
    ds_write_b32 v{c}, v{t1} offset:{L_EO}
    s_mov_b64 exec, -1
    v_max_u32_dpp v{q}, v{q}, v{q} row_ror:8 row_mask:0xf bank_mask:0xf
    s_nop 0
    v_readlane_b32 s{sT}, v{q}, 0
    v_readlane_b32 s3, v{q}, 16
    v_readlane_b32 s{sTmp}, v{q}, 32
    v_readlane_b32 s{sTmp + 1}, v{q}, 48
    s_waitcnt lgkmcnt(0)
    s_barrier
    ds_read_b64 {vr(vX + 12, 2)}, v{vZero} offset:{L_FLAG}
    """)
    for i in range(8):
        A(f"ds_read_b32 v{vKey + i}, v{vKey + i} offset:{L_BASE}")
    A(f"""
    s_max_u32 s{sT}, s{sT}, s3
    s_max_u32 s{sTmp}, s{sTmp}, s{sTmp + 1}
    s_max_u32 s{sT}, s{sT}, s{sTmp}
    s_waitcnt lgkmcnt(0)
    v_readfirstlane_b32 s{sOvf}, v{vX + 12}
    v_readfirstlane_b32 s{sMor}, v{vX + 13}
    """)
    for i in range(8):
        A(f"v_and_b32 v{vX + 12}, 63, v{vRec + i}")
        A(f"v_add_u32 v{vKey + i}, v{vKey + i}, v{vRank + i}")
        A(f"v_lshl_add_u32 v{vX + 12}, v{vX + 12}, 6, 64")
        A(f"v_cmp_lt_u32 vcc, v{vKey + i}, v{vX + 12}")
        A(f"v_lshlrev_b32 v{vKey + i}, 2, v{vKey + i}")
        A(f"s_and_b64 exec, vcc, {sr(sMask + 2 * i, 2)}")
        A(f"ds_write_b32 v{vKey + i}, v{vSoff + i} offset:{L_SO}")
        A(f"ds_write_b32 v{vKey + i}, v{vEoff + i} offset:{L_EO}")
        A(f"s_andn2_b64 {sr(sMask + 2 * i, 2)}, {sr(sMask + 2 * i, 2)}, vcc")
        A("s_mov_b64 exec, -1")
    A(f"""
    s_lshl_b32 s3, s{sW}, 8
    v_lshrrev_b32 v{vX + 12}, 1, v{vH16}
    v_add_u32 v{vP}, s3, v{vX + 12}
    v_and_b32 v{vX + 12}, 1, v{vTid}
    v_bfe_u32 v{vX + 13}, v{vTid}, 2, 1
    v_lshl_add_u32 v{vX + 12}, v{vX + 13}, 1, v{vX + 12}
    v_lshl_add_u32 v{vX + 12}, v{vX + 12}, 2, s3
    v_lshl_add_u32 v{vEp}, v{vUaddr}, 6, v{vX + 12}
    s_lshr_b32 s3, s{sT}, 1
    v_mov_b32 v{vErr}, s3
    s_mov_b64 {sr(sCur, 2)}, 0
    s_mov_b32 s{sTi}, 0
    """)
    for u in range(1, NU):
        A(f"v_mov_b32 v{vP + u}, v{vP}")
    A(f"""
    s_waitcnt lgkmcnt(0)
    s_barrier
    s_cmp_eq_u32 s{sT}, 0
    s_cbranch_scc1 Lg_done
    s_branch Lg_entry
    Lg_tile:
    s_waitcnt vmcnt({2 * NU})
    """)
    for j in range(4):
        A(mfma(j))
    A(f"""
    Lg_entry:
    v_add_u32 v{vErr}, v{vQ}, v{vErr}
    ds_read_b32 v{vEo}, v{vEp} offset:{L_EO}
    ds_read_b64 {vr(vSo, 2)}, v{vP} offset:{L_SO}
    v_cmp_le_u32_e64 {sr(sNext, 2)}, s{sT}, v{vErr}
    s_cmp_lt_u32 s{sTi}, s{sT}
    s_cselect_b64 {sr(sNext, 2)}, {sr(sNext, 2)}, 1
    s_mov_b64 exec, {sr(sNext, 2)}
    v_subrev_u32 v{vErr}, s{sT}, v{vErr}
    v_add_u32 v{vEp}, 16, v{vEp}
    s_waitcnt lgkmcnt(1)
    v_add_u32 v{vEo}, v{vEo}, v{vH16}
    buffer_load_dwordx4 {vr(vEA, 4)}, v{vEo}, {sr(S_EA, 4)}, 0 offen
    s_mov_b64 exec, -1
    """)
    for u in range(NU):
        bit = 8 * (u >> 1) + 2 * (u & 1) + 1
        so2 = vSo + 2 * (u & 1)
        La, Lb = vLs[u], vLs[u] + 4
        a, b = vT, vT + 4
        num, den = vAcc + 8 * u, vAcc + 8 * u + 4
        if u + 1 < NU:
            A(f"ds_read_b64 {vr(vSo + 2 * ((u + 1) & 1), 2)}, v{vP + u + 1} offset:{L_SO + 2048 * (u + 1)}")
        A(f"s_bitcmp1_b32 s{sCur}, {bit}")
        A(f"s_cbranch_scc0 Lg_skip{u}")
        A(f"s_waitcnt vmcnt({2 * NU - 1})")
        for j in range(4):
            A(f"v_fma_mix_f32 v{a + j}, v{vD + 16 * j + 2 * u}, s{sNl}, v{La + j} op_sel_hi:[0,0,1]")
        for j in range(4):
            A(f"v_fma_mix_f32 v{b + j}, v{vD + 16 * j + 2 * u + 1}, s{sNl}, v{Lb + j} op_sel_hi:[0,0,1]")
        for j in range(0, 8, 2):
            A(f"v_pk_add_f32 {vr(a + j, 2)}, {vr(a + j, 2)}, {vr(vAn + 4 * u + (j & 3), 2)}")
        for j in range(8):
            A(f"v_exp_f32_e64 v{a + j}, v{a + j} clamp")
        for j in range(0, 8, 2):
            A(f"v_pk_add_f32 {vr(a + j, 2)}, {vr(a + j, 2)}, {sr(sC0, 2)}")
        for j in (0, 2):
            A(f"v_pk_mul_f32 {vr(La + j, 2)}, {vr(La + j, 2)}, {vr(b + j, 2)}")
        for j in (0, 2):
            A(f"v_pk_fma_f32 {vr(La + j, 2)}, {vr(Lb + j, 2)}, {vr(a + j, 2)}, {vr(La + j, 2)}")
        for j in (0, 2):
            A(f"v_pk_add_f32 {vr(Lb + j, 2)}, {vr(a + j, 2)}, {vr(b + j, 2)}")
        for j in (0, 2):
            A(f"v_pk_mul_f32 {vr(a + j, 2)}, {vr(a + j, 2)}, {vr(b + j, 2)}")
        for j in range(4):
            A(f"v_rcp_f32 v{a + j}, v{a + j}")
        for j in (0, 2):
            A(f"v_pk_fma_f32 {vr(num + j, 2)}, {vr(La + j, 2)}, {vr(a + j, 2)}, {vr(num + j, 2)}")
            A(f"v_pk_fma_f32 {vr(den + j, 2)}, {vr(Lb + j, 2)}, {vr(a + j, 2)}, {vr(den + j, 2)}")
        A(f"Lg_skip{u}:")
        A(f"s_bitcmp1_b32 s{sNext}, {bit}")
        A("s_cselect_b64 exec, -1, 1")
        A(f"s_cselect_b32 s{sInc}, 16, 0")
        A(f"s_waitcnt lgkmcnt({1 if u + 1 < NU else 0})")
        A(f"v_add_u32 v{so2}, v{so2}, v{vLo}")
        A(f"v_add_u32 v{so2 + 1}, v{so2 + 1}, v{vLo}")
        A(f"buffer_load_dwordx4 {vr(La, 4)}, v{so2}, {sr(S_TAB, 4)}, 0 offen {tab_pol}")
        A(f"buffer_load_dwordx4 {vr(Lb, 4)}, v{so2 + 1}, {sr(S_TAB, 4)}, 0 offen {tab_pol}")
        A("s_mov_b64 exec, -1")
        A(f"v_add_u32 v{vP + u}, s{sInc}, v{vP + u}")
    A(f"""
    s_mov_b64 {sr(sCur, 2)}, {sr(sNext, 2)}
    s_add_u32 s{sTi}, s{sTi}, 1
    s_cmp_le_u32 s{sTi}, s{sT}
    s_cbranch_scc1 Lg_tile
    Lg_done:
    s_waitcnt vmcnt(0)
    s_cmp_lg_u32 s{sOvf}, 0
    s_cbranch_scc1 Lround
    s_add_u32 s{sW0}, s{sW0}, 16
    s_cmp_lg_u32 s{sMor}, 0
    s_cbranch_scc1 Lbatch
    s_mul_i32 s3, s{sW}, 528
    s_add_u32 s3, s3, {L_TU}
    v_mul_u32_u24 v{vA2}, {33 * 8}, v{vH16}
    v_add3_u32 v{vA2}, v{vA2}, v{vLo}, s3
    s_mul_i32 s3, s{sW}, 272
    s_add_u32 s3, s3, {L_X}
    v_mul_u32_u24 v{vA3}, {17 * 8}, v{vH16}
    v_lshrrev_b32 v{vLo + 1}, 1, v{vLo}
    v_add3_u32 v{vA3}, v{vA3}, v{vLo + 1}, s3
    """)
    for pr in range(4):
        A(f"ds_read_b128 {vr(vU + 4 * pr, 4)}, v{vA2} offset:{16 * 528 * pr}")
        A(f"ds_read_b64 {vr(vXr + 2 * pr, 2)}, v{vA3} offset:{16 * 272 * pr}")
    A(f"""
    v_lshl_add_u32 v{vA2}, v{vH16}, 7, v{vLo + 1}
    s_add_u32 s{sQ1}, s{sN0}, s{sW}
    s_lshl_b32 s{sQ1}, s{sQ1}, 8
    s_waitcnt lgkmcnt(0)
    """)
    for pr in range(4):
        if pr == 3:
            A(f"s_add_u32 s3, s{sW}, 48")
            A(f"s_cmp_ge_u32 s3, s{sNn}")
            A("s_cbranch_scc1 Lk2_done")
        finalize(vAcc + 16 * pr, 4, vAcc + 16 * pr + 8, vU + 4 * pr, vXr + 2 * pr, vA2, sQ1,
                 "s_mov_b32 exec_hi, 0" if pr == 3 else "s_nop 0")
        A(f"s_add_u32 s{sQ1}, s{sQ1}, 4096")
    A("s_branch Lk2_done")
    return L_END


def gen_report(A, opt):
    kind, team, idx = opt["report"].split(",")
    idx, _, ref = idx.partition("-")
    idx = int(idx)
    A("report_kernel:")
    A("s_cmp_ge_u32 s2, 1")
    A("s_cbranch_scc1 Lr_exit")
    load_kernargs(A)
    A("s_waitcnt lgkmcnt(0)")
    srd(A, 28, P_WS, 0x80000, STAMP_OFF + 0x20000)

    def reduce(op, base, dst, tag, sub):
        A("v_lshrrev_b32 v1, 2, v0")
        A("v_and_b32 v2, 3, v0")
        A("v_lshlrev_b32 v1, 9, v1")
        A("v_lshl_add_u32 v1, v2, 6, v1")
        A(f"v_mov_b32 v3, {'-1' if op == 'min' else '0'}")
        A("s_mov_b32 s44, 0")
        A(f"Lr_{tag}:")
        A(f"buffer_load_dword v2, v1, s[28:31], s44 offen offset:{base}")
        A("s_waitcnt vmcnt(0)")
        if sub:
            A("v_subrev_u32 v2, s40, v2")
        A(f"v_{op}_u32 v3, v3, v2")
        A("s_add_u32 s44, s44, 8192")
        A("s_cmp_lt_u32 s44, 131072")
        A(f"s_cbranch_scc1 Lr_{tag}")
        A(f"v_readlane_b32 s{dst}, v3, 0")
        for l in range(1, 64):
            A(f"v_readlane_b32 s3, v3, {l}")
            A("s_nop 0")
            A(f"s_{op}_u32 s{dst}, s{dst}, s3")

    reduce("min", 0, 40, "a", False)
    if kind == "rng":
        reduce("max", 8 * idx, 41, "b", False)
        reduce("min", 8 * idx, 45, "c", False)
        A("s_sub_u32 s41, s41, s45")
    else:
        reduce(kind, 8 * idx + (256 if team == "t" else 0), 41, "b", True)
    if ref:
        reduce(kind, 8 * int(ref) + (256 if team == "t" else 0), 45, "c", True)
        A("s_sub_u32 s41, s41, s45")
    sc = int(opt.get("rs", 2))
    A(f"s_lshr_b32 s41, s41, {10 - sc}" if kind == "add" else f"s_lshl_b32 s41, s41, {sc}")
    A("s_min_u32 s41, s41, 30000")
    A("s_add_u32 s41, s41, 10000")
    A("Lr_spin:")
    A("s_memrealtime s[42:43]")
    A("s_waitcnt lgkmcnt(0)")
    A("s_sub_u32 s42, s42, s40")
    A("s_cmp_lt_u32 s42, s41")
    A("s_cbranch_scc1 Lr_spin")
    A("Lr_exit:")
    A("s_endpgm")


def descriptor(name, vgpr, extra=""):
    return f""".amdhsa_kernel {name}
  .amdhsa_next_free_vgpr {vgpr}
  .amdhsa_next_free_sgpr 102
  .amdhsa_accum_offset {(vgpr + 3) // 4 * 4}
  .amdhsa_group_segment_fixed_size 0
  .amdhsa_kernarg_size 96
  .amdhsa_user_sgpr_count 2
  .amdhsa_user_sgpr_kernarg_segment_ptr 1
  .amdhsa_system_sgpr_workgroup_id_x 1
{extra}.end_amdhsa_kernel
"""


def generate(opt):
    A = Asm()
    lds = gen_k2(A, opt)
    lst = f"kernel={NAME}_kernel " if opt.get("report") else ""
    text = (f"""; GatedGCN layer in one launch of 256 co-resident workgroups (one per CU).
; Workgroup g owns chunk g of the edges (1568) and one bucket of 48 or 49 destination nodes.
;  1. counting sort of the chunk by destination bucket -> records in d_ws, published by tagged offset words
;  2. x @ w_b, x @ w_v of the bucket's rows -> gather table in d_ws (low half: f16 of -log2(e) * B, high half: V),
;     published by a tagged word; x @ w_a and x + x @ w_u stay in LDS
;  3. the bucket's records are sorted by (node, source range), padded to groups of four edges and split evenly
;     over the eight waves; every wave walks its groups in source order
;  4. per group: gate exponent from MFMA(e_attr, w_c) and the gathered row, sigmoid of two edges with one reciprocal,
;     numerator and denominator sums in indexed registers; out = max(x + x @ w_u + num / (den + 1e-6), x)
; The tag is published in d_debug by workgroup 0. Inputs outside the limits of the fast path (degree distribution,
; |x @ w_a| > 52) take the general path at the end of the file.
; @launch {lst}grid=(256,1,1) block=(512,1,1) lds={lds}
.amdgcn_target "amdgcn-amd-amdhsa--gfx950"
.text
.globl {NAME}_kernel
.p2align 8
.type {NAME}_kernel,@function
""" + A.text() + ".section .rodata,\"a\"\n.p2align 6\n"
            + descriptor(f"{NAME}_kernel", 256, "  .amdhsa_fp16_overflow 1\n"))
    if opt.get("report"):
        R = Asm()
        gen_report(R, opt)
        text = text.replace(".amdgcn_target", "; @launch kernel=report_kernel grid=(1,1,1) block=(64,1,1) lds=0\n.amdgcn_target")
        text = text.replace(".section .rodata", ".globl report_kernel\n.p2align 8\n.type report_kernel,@function\n" + R.text() + ".section .rodata")
        text += ".p2align 6\n" + descriptor("report_kernel", 8)
    return text


if __name__ == "__main__":
    out = sys.argv[1] if len(sys.argv) > 1 else f"cdna_kernels/{NAME}.s"
    opt = dict(a.split("=", 1) for a in sys.argv[2:])
    opt = {k: v.replace("+", " ") for k, v in opt.items()}
    open(out, "w").write(generate(opt))
```

```python
import math
import struct
import sys

NAME = "gather_scatter__edge_featured_mpnn_gatedgcn__graph"
N, E = 12500, 400000
BM, BS, SM, SC, SS = 171799, 23, 799999, 16330, 14
CH = 1568
NCH = 256
TAB_OFF = 0x4000000
REC_OFF = 0xE00000
OFF_OFF = 0x1000000
SPIN_MAX = 20000
STAMP_OFF = 0x2000000
TAB_BYTES = N * 512
KSH = 48
AMAX = 52.0
NLOG2E = -math.log2(math.e)


def f32(x):
    return struct.unpack("<I", struct.pack("<f", x))[0]


class Asm:
    def __init__(self):
        self.lines = []

    def __call__(self, s):
        for ln in s.strip("\n").split("\n"):
            ln = ln.strip()
            if not ln:
                continue
            self.lines.append(ln if ln.endswith(":") else "    " + ln)

    def note(self, s):
        self.lines += ["; " + ln.strip() for ln in s.strip().split("\n")]

    def text(self):
        return "\n".join(self.lines) + "\n"


def vr(a, n=1):
    return f"v{a}" if n == 1 else f"v[{a}:{a + n - 1}]"


def sr(a, n=1):
    return f"s{a}" if n == 1 else f"s[{a}:{a + n - 1}]"


def srd(A, d, base, nbytes, off=0):
    if off:
        A(f"s_add_u32 s{d}, s{base}, {hex(off)}")
        A(f"s_addc_u32 s{d + 1}, s{base + 1}, 0")
    else:
        A(f"s_mov_b64 {sr(d, 2)}, {sr(base, 2)}")
    A(f"s_mov_b32 s{d + 2}, {hex(nbytes)}")
    A(f"s_mov_b32 s{d + 3}, 0x20000")


P_X, P_EA, P_SRC, P_DST, P_WA, P_WB, P_WC, P_WU = 4, 6, 8, 10, 12, 14, 16, 18
P_WV, P_OUT, P_DBG, P_WS = 20, 22, 24, 26


def load_kernargs(A):
    A("s_load_dwordx16 s[4:19], s[0:1], 0")
    A("s_load_dwordx8 s[20:27], s[0:1], 64")


STAMP_BASE = [2]


def stamp_reg(i):
    return 100 if i == 0 else STAMP_BASE[0] + 2 * i


def stamp(A, opt, i):
    if not opt.get("stamp"):
        return
    if isinstance(i, str):
        names = opt["stamp"].split(",")
        if i not in names:
            return
        i = names.index(i) + 1
    A(f"{'s_memtime' if opt.get('cyc') else 's_memrealtime'} s[{stamp_reg(i)}:{stamp_reg(i) + 1}]")


def stamp_flush(A, opt, n, base, vtid):
    if not opt.get("stamp"):
        return
    A("s_mov_b64 exec, -1")
    A("s_waitcnt vmcnt(0)")
    stamp(A, opt, n - 1)
    srd(A, 20, P_WS, 0x80000, STAMP_OFF + base)
    A(f"v_lshrrev_b32 v1, 6, v{vtid}")
    A("s_lshl_b32 s3, s2, 3")
    A("v_add_u32 v1, s3, v1")
    A(f"v_mul_u32_u24 v1, {8 * n}, v1")
    A("s_mov_b64 exec, 1")
    A("s_waitcnt lgkmcnt(0)")
    for i in range(n):
        r = stamp_reg(i)
        A(f"v_mov_b32 v2, s{r}")
        A(f"v_mov_b32 v3, s{r + 1}")
        A(f"buffer_store_dwordx2 v[2:3], v1, s[20:23], 0 offen offset:{8 * i}")
        A("s_nop 1")


WAVE_SCAN = ("row_shr:1 row_mask:0xf", "row_shr:2 row_mask:0xf", "row_shr:4 row_mask:0xf",
             "row_shr:8 row_mask:0xf", "row_bcast:15 row_mask:0xa", "row_bcast:31 row_mask:0xc")


def wave_scan(A, v, first_nop=1, fill=()):
    for k, d in enumerate(WAVE_SCAN):
        if k < len(fill):
            A("\n".join(fill[k]))
        elif k or first_nop:
            A("s_nop 1")
        A(f"v_add_u32_dpp v{v}, v{v}, v{v} {d} bank_mask:0xf")


def gen_k2(A, opt):
    global TAB_OFF, REC_OFF, OFF_OFF
    wsb = int(opt.get("wsb", 0)) << 20
    TAB_OFF, REC_OFF, OFF_OFF = TAB_OFF + wsb, REC_OFF + wsb, OFF_OFF + wsb
    STAMP_BASE[0] = 2
    ea_pol = opt.get("ea_load", "")
    tab_pol = opt.get("tab_load", "sc1")
    pf_lanes = int(opt.get("pf", 0))
    poll_at = int(opt.get("poll_at", 0))
    ld = [int(x) for x in opt.get("ld", "6,11,16").split(",")]
    KM = int(opt.get("km", 5))
    TS = int(opt.get("ts", 3))
    OB = int(opt.get("ob", 8))
    S_TAB, S_EA, S_REC, S_OFFS, S_TW, S_X, S_OUT = 28, 32, 36, 40, 44, 48, 52
    sW, sBk, sN0, sW0, sT, sTi, sInc, sNl = 56, 57, 58, 59, 60, 61, 62, 63
    sC0, sCur, sNext, sMore, sTmp, sNon = 64, 66, 68, 70, 72, 74
    sMask = 76
    sMask2 = 18
    S_DST, S_SRC, S_W, S_W2, S_WC, S_DBG = 76, 80, 84, 88, 76, 80
    sOvf, sMor, sQ1, sQ2, sQ3, sLw, sF0, sOwn = 92, 93, 94, 95, 96, 97, 98, 99
    sRem, sSW, sSl0, sSl1, sLn, sPM = sT, sInc, sCur, sCur + 1, sNext, sCur
    sNn = 0
    sWo, sWm = sOvf, sLw
    L_CNT, L_BASE, L_FLAG, P_CNT, P_BASE, P_SORT = 0, 2048, 4096, 4352, 5376, 6400
    L_R2 = 12800
    L_SO = L_R2
    L_EO = L_SO + 25600
    L_STR = L_R2 + 16896
    STRW = 2560
    L_WCR = L_R2 + 65536
    L_X = L_WCR + 4096
    L_R1 = (L_X + 52 * 272 + 255) // 256 * 256
    L_TA = L_R1 + 528
    L_TU = L_TA + 52 * 528
    L_END = L_R1 + 65536
    TF_OFF = NCH * 2048
    NS = 9
    vSl, vD, vL, vWC, vEA, vT, vSo, vLo = 0, 108, 172, 204, 220, 224, 232, 236
    vSp, vEp, vEo, vH16, vSb, vTid, vOffs = 238, 239, 240, 241, 242, 243, 244
    vWf, vG, vXf, vXs, vNon, vTf = 0, 32, vL, 96, 104, 106
    vEn, vEb, vEad, vS2 = 104, 246, 247, 248
    Lbuf = [vL + 8 * u for u in range(4)] + [72 + 8 * u for u in range(4)]
    vRec, vKey, vRank, vSoff, vEoff, vX = vD, vD + 8, vD + 16, vD + 24, vD + 32, vD + 40
    cand = [(vRec + i, vKey + i, vRank + i, vSoff + i, vEoff + i, sMask + 2 * i) for i in range(8)]
    cand2 = [(vEA + i, vT + i, vT + 4 + i, None, None, sMask2 + 2 * i) for i in range(4)]
    c0 = 2.0 ** -KSH
    vZero, vOne, vXw, vXrd, vTw, vInv = vX + 5, vX + 6, vX + 7, vX + 8, vX + 9, vX + 10
    vDa, vBx, vBt, vBs, vAt, vPa, vE = vX + 12, vX + 14, vX + 15, vX + 17, vX + 18, vX + 19, vX + 20
    vSw, vSr = vX + 16, vD + 39
    pD, pS, pA, pR, pC, pB, pG = vD, vD + 4, vD + 8, vD + 12, vD + 16, vD + 20, vD + 24
    vm = []

    def younger(name):
        return len(vm) - 1 - max(i for i, x in enumerate(vm) if x == name)

    def dma_piece(S, soff, i):
        A(f"buffer_load_dwordx4 v{vDa + ((i >> 1) & 1)}, {sr(S, 4)}, s{soff} offen offset:{1024 * (i & 3)} {opt.get('w_pol', '')} lds")

    def loader(lo, hi):
        for g in range(lo, hi):
            A(f"s_mov_b32 m0, {L_R1 + 4096 * g}")
            A(f"s_movk_i32 s3, {4096 * (g & 7)}")
            if g == 8:
                A(f"s_mov_b64 {sr(S_W, 2)}, {sr(P_WV, 2)}")
            for i in range(4):
                dma_piece(S_W, 3, i)

    A(f"{NAME}_kernel:")
    A("s_cmp_ge_u32 s2, 256")
    A("s_cbranch_scc1 Lk2_exit")
    stamp(A, opt, 0)
    load_kernargs(A)
    A(f"""
    s_memrealtime {sr(sNon, 2)}
    s_getpc_b64 s[{sTmp}:{sTmp + 1}]
    """)
    cpf_mode = int(opt.get("cpf", 8))
    if cpf_mode:
        A(f"""
        s_lshr_b32 s3, s2, 3
        s_and_b32 s3, s3, {128 // cpf_mode - 1}
        v_subrev_u32 v1, {512 - cpf_mode}, v0
        v_cmp_gt_u32 vcc, {cpf_mode}, v1
        v_mul_u32_u24 v1, {128 // cpf_mode}, v1
        v_add_lshl_u32 v1, v1, s3, 7
        """)
    else:
        A(f"""
        v_lshlrev_b32 v1, 7, v0
        v_cmp_gt_u32 vcc, Lcold_code - {NAME}_kernel, v1
        """)
    A(f"""
    s_and_saveexec_b64 {sr(sNext, 2)}, vcc
    s_cbranch_execz Lno_cpf
    global_load_dword v2, v1, s[{sTmp}:{sTmp + 1}] {opt.get('cpf_pol', '')}
    Lno_cpf:
    s_mov_b64 exec, -1
    v_mov_b32 v{vZero}, 0
    v_lshlrev_b32 v{vX + 11}, 2, v0
    ds_write_b32 v{vX + 11}, v{vZero} offset:{L_FLAG}
    ds_write_b32 v{vX + 11}, v{vZero} offset:{L_CNT}
    v_lshrrev_b32 v{vX}, 6, v0
    v_lshlrev_b32 v{vX + 2}, 4, v0
    v_readfirstlane_b32 s{sW}, v{vX}
    s_movk_i32 s3, {CH // 4}
    s_cmp_eq_u32 s2, {NCH - 1}
    s_cselect_b32 s3, {(E - (NCH - 1) * CH) // 4}, s3
    v_cmp_gt_u32_e64 {sr(sPM, 2)}, s3, v0
    s_mul_i32 s{sQ1}, s2, {CH * 4}
    s_mov_b32 s{S_DST + 2}, {E * 4}
    s_mov_b32 s{S_DST + 3}, 0x20000
    s_mov_b32 s{S_SRC + 2}, {E * 4}
    s_mov_b32 s{S_SRC + 3}, 0x20000
    s_and_b32 s3, s2, 7
    s_lshl_b32 s3, s3, {KM}
    s_bfe_u32 s{sBk}, s2, {hex(KM << 16 | 3)}
    s_add_u32 s{sBk}, s{sBk}, s3
    {f's_andn2_b32 s3, s2, {(8 << KM) - 1}' if KM < 5 else ''}
    {f's_add_u32 s{sBk}, s{sBk}, s3' if KM < 5 else ''}
    s_mul_i32 s{sN0}, s{sBk}, {SM}
    s_add_u32 s{sOwn}, s{sN0}, {SM + SC}
    s_add_u32 s{sN0}, s{sN0}, {SC}
    s_lshr_b32 s{sOwn}, s{sOwn}, {SS}
    s_lshr_b32 s{sN0}, s{sN0}, {SS}
    v_mov_b32 v{vTid}, v0
    v_and_b32 v{vX + 3}, 0x3f0, v{vX + 2}
    v_bfe_u32 v{vX + 1}, v0, 4, 2
    v_lshlrev_b32 v{vX + 4}, 6, v{vX + 1}
    v_xor_b32 v{vDa}, v{vX + 3}, v{vX + 4}
    v_xor_b32 v{vDa + 1}, 32, v{vDa}
    s_lshl_b32 s{sWm}, s{sW}, 13
    s_add_u32 s{sWm + 1}, s{sWm}, 4096
    s_and_b32 s{sWo}, s{sWm}, 0x7fff
    s_add_u32 s{sWo + 1}, s{sWo}, 4096
    s_lshl_b32 s{sTmp}, s{sN0}, 8
    s_add_u32 s{sTmp + 1}, s{sTmp}, 8192
    s_mov_b64 exec, {sr(sPM, 2)}
    s_waitcnt lgkmcnt(0)
    s_cbranch_execz Lp_nold
    s_mov_b64 {sr(S_DST, 2)}, {sr(P_DST, 2)}
    s_mov_b64 {sr(S_SRC, 2)}, {sr(P_SRC, 2)}
    buffer_load_dwordx4 {vr(pD, 4)}, v{vX + 2}, {sr(S_DST, 4)}, s{sQ1} offen {opt.get("idx_pol", "nt")}
    buffer_load_dwordx4 {vr(pS, 4)}, v{vX + 2}, {sr(S_SRC, 4)}, s{sQ1} offen {opt.get("idx_pol", "nt")}
    Lp_nold:
    """)
    if int(opt.get("wpf", 1)):
        A(f"""
        s_cmp_lg_u32 s{sW}, 7
        s_cbranch_scc1 Lno_wpf
        s_mov_b64 exec, 0xff
        s_lshr_b32 s3, s2, 3
        s_lshl_b32 s3, s3, 10
        v_lshl_add_u32 v1, v{vX + 3}, 3, s3
        global_load_dword v3, v1, {sr(P_WB, 2)} {opt.get('wpf_pol', '')}
        global_load_dword v4, v1, {sr(P_WV, 2)} {opt.get('wpf_pol', '')}
        global_load_dword v5, v1, {sr(P_WA, 2)} {opt.get('wpf_pol', '')}
        global_load_dword v6, v1, {sr(P_WU, 2)} {opt.get('wpf_pol', '')}
        Lno_wpf:
        """)
    A("s_mov_b64 exec, -1")
    A("s_barrier")
    vm.append("dst")
    srd(A, S_DBG, P_DBG, 256)
    A(f"""
    s_xor_b32 s3, s{sW}, 7
    s_or_b32 s3, s3, s2
    s_cbranch_scc1 Lno_nonce
    s_or_b32 s3, s{sNon}, 1
    v_mov_b32 v{vNon}, s3
    v_mov_b32 v{vNon + 1}, s{sNon + 1}
    s_mov_b64 exec, 1
    buffer_store_dwordx2 {vr(vNon, 2)}, v{vZero}, {sr(S_DBG, 4)}, 0 offen sc1
    """)
    if opt.get("ptrs"):
        for i, p in enumerate((P_WS, P_WS + 1, P_OUT, P_EA, P_X, P_SRC, P_DST, P_WB, P_DBG, 0, P_EA + 1)):
            A(f"v_mov_b32 v1, s{p}")
            A(f"buffer_store_dword v1, v{vZero}, {sr(S_DBG, 4)}, 0 offen offset:{8 + 4 * i}")
    A(f"""
    s_mov_b64 exec, -1
    Lno_nonce:
    """)
    A(f"""
    s_mov_b64 {sr(S_X, 2)}, {sr(P_X, 2)}
    s_lshl_b32 s{S_X + 2}, s{sOwn}, 8
    s_mov_b32 s{S_X + 3}, 0x20000
    s_sub_u32 s{sNn}, s{sOwn}, s{sN0}
    """)
    for i in range(2):
        A(f"buffer_load_dwordx4 {vr(vXs + 4 * i, 4)}, v{vX + 2}, {sr(S_X, 4)}, s{sTmp + i} offen {opt.get('x_pol', 'nt')}")
        vm.append("x")
    A(f"""
    s_cmp_lt_u32 s{sW}, 4
    s_cselect_b32 s{S_W}, s{P_WB}, s{P_WV}
    s_cselect_b32 s{S_W + 1}, s{P_WB + 1}, s{P_WV + 1}
    s_cselect_b32 s{S_W2}, s{P_WA}, s{P_WU}
    s_cselect_b32 s{S_W2 + 1}, s{P_WA + 1}, s{P_WU + 1}
    s_mov_b32 s{S_W + 2}, 32768
    s_mov_b32 s{S_W + 3}, 0x20000
    s_mov_b32 s{S_W2 + 2}, 32768
    s_mov_b32 s{S_W2 + 3}, 0x20000
    """)
    npf0 = 0
    A(f"s_cmp_lg_u32 s{sW}, 7")
    A("s_cbranch_scc1 Lno_ld0")
    A(f"s_mov_b64 {sr(S_W, 2)}, {sr(P_WB, 2)}")
    loader(0, 2)
    A("Lno_ld0:")
    srd(A, S_WC, P_WC, 4096)
    srd(A, S_REC, P_WS, NCH * CH * 4, REC_OFF)
    srd(A, S_OFFS, P_WS, TF_OFF + (256 << TS), OFF_OFF)
    srd(A, S_TAB, P_WS, TAB_BYTES + 512, TAB_OFF)
    srd(A, S_EA, P_EA, 0 if opt.get("noea") else E * 32)
    srd(A, S_OUT, P_OUT, N * 256)
    pt = int(opt.get("ptouch", 0))
    if pt:
        A(f"""
        s_cmp_lg_u32 s{sW}, 7
        s_cbranch_scc1 Lno_touch
        v_lshlrev_b32 v1, {pt - 4}, v{vX + 3}
        """)
        for i, S in enumerate((S_TAB, S_REC, S_OFFS, S_EA, S_OUT)):
            A(f"buffer_load_dword v{7 + i}, v1, {sr(S, 4)}, 0 offen sc1")
        A("Lno_touch:")
    A(f"""
    s_lshl_b32 s3, s{sN0}, 9
    s_add_u32 s{S_TW}, s{S_TAB}, s3
    s_addc_u32 s{S_TW + 1}, s{S_TAB + 1}, 0
    s_lshl_b32 s{S_TW + 2}, s{sNn}, 9
    s_mov_b32 s{S_TW + 3}, 0x20000
    s_mov_b32 s{sNl}, {hex(f32(NLOG2E))}
    s_mov_b32 s{sC0}, {hex(f32(c0))}
    s_mov_b32 s{sC0 + 1}, {hex(f32(c0))}
    s_mov_b32 s{sW0}, 0
    s_mov_b32 s{sQ2}, {BM}
    s_mov_b32 s{sQ3}, {-SM}
    v_mov_b32 v{vOne}, 1
    v_lshrrev_b32 v{vX + 11}, 4, v{vTid}
    v_lshl_add_u32 v{vXw}, v{vX + 11}, 4, v{vX + 2}
    v_add_u32 v{vXw}, {L_X}, v{vXw}
    v_and_b32 v{vLo}, 0x1f0, v{vX + 2}
    v_bfe_u32 v{vX + 4}, v{vTid}, 5, 1
    v_mov_b32 v{vLo + 1}, v{vLo}
    v_lshlrev_b32 v{vH16}, 4, v{vX + 4}
    s_lshr_b32 s{sTmp}, s{sW}, 2
    s_and_b32 s{sTmp + 1}, s{sW}, 3
    v_bfe_u32 v{vX + 11}, v{vTid}, 2, 2
    v_xor_b32 v{vE}, s{sTmp + 1}, v{vX + 11}
    v_lshlrev_b32 v{vE}, 6, v{vE}
    v_and_b32 v{vE + 1}, 3, v{vTid}
    v_lshl_add_u32 v{vE}, v{vE + 1}, 3, v{vE}
    v_lshl_add_u32 v{vE}, v{vX + 11}, 8, v{vE}
    v_and_b32 v{vE + 1}, 1, v{vX + 1}
    v_xor_b32 v{vE + 1}, v{vE + 1}, v{vX + 4}
    v_lshl_add_u32 v{vE}, v{vE + 1}, 5, v{vE}
    v_lshl_add_u32 v{vE}, v{vX + 4}, 11, v{vE}
    v_add_u32 v{vBt}, {L_R1}, v{vE}
    s_lshl_b32 s3, s{sTmp}, 15
    s_add_u32 s3, s3, {L_R2}
    v_add_u32 v{vAt}, s3, v{vE}
    v_and_b32 v{vX + 11}, 31, v{vTid}
    v_mul_u32_u24 v{vXrd}, 272, v{vX + 11}
    s_mov_b32 s3, {L_X}
    v_add3_u32 v{vXrd}, v{vXrd}, v{vH16}, s3
    s_mul_i32 s3, s{sTmp}, {32 * 272}
    v_add_u32 v{vBx}, s3, v{vXrd}
    s_mul_i32 s3, s{sW}, 4608
    s_add_u32 s3, s3, {L_R1}
    v_mul_u32_u24 v{vSw}, 144, v{vX + 11}
    v_add3_u32 v{vSw}, v{vSw}, v{vH16}, s3
    v_bfe_u32 v{vE}, v{vTid}, 3, 3
    v_lshl_add_u32 v{vSr}, v{vE}, 4, v{vX + 3}
    v_add_u32 v{vSr}, s3, v{vSr}
    v_and_b32 v{vE + 1}, 0x70, v{vX + 3}
    v_lshl_add_u32 v{vBs}, v{vE}, 9, v{vE + 1}
    s_lshl_b32 s3, s{sTmp}, 7
    s_add_u32 s3, s3, s{sTmp + 1}
    s_lshl_b32 s3, s3, 7
    v_add_u32 v{vBs}, s3, v{vBs}
    v_mul_u32_u24 v{vTw}, 528, v{vX + 11}
    s_mul_i32 s3, s{sTmp}, {L_TU - L_TA}
    s_lshl_b32 s{sTmp + 1}, s{sTmp + 1}, 7
    s_add_u32 s3, s3, s{sTmp + 1}
    s_add_u32 s3, s3, {L_TA}
    v_add3_u32 v{vTw}, v{vTw}, v{vH16}, s3
    v_lshrrev_b32 v{vPa}, 1, v{vTid}
    v_lshlrev_b32 v{vPa}, {3 + OB}, v{vPa}
    v_lshlrev_b32 v{vE}, 8, v{vTid}
    v_add_u32 v{vE + 1}, 64, v{vE}
    v_add_u32 v{vE + 2}, 0x80, v{vE}
    v_add_u32 v{vE + 3}, 0xc0, v{vE}
    """)
    stamp(A, opt, "iss")

    def stage_x(wait):
        A(f"s_waitcnt vmcnt({wait})")
        A(f"ds_write_b128 v{vXw}, {vr(vXs, 4)}")
        A(f"s_cmp_lt_u32 s{sW}, 5")
        A("s_cselect_b64 exec, -1, 0")
        A(f"ds_write_b128 v{vXw}, {vr(vXs + 4, 4)} offset:{32 * 272}")
        A("s_mov_b64 exec, -1")

    nonce_load = f"buffer_load_dwordx2 {vr(vNon, 2)}, v{vZero}, {sr(S_DBG, 4)}, 0 offen sc1"
    A(f"""
    s_cmp_eq_u32 s{sW}, 7
    s_cbranch_scc1 Lp_loader
    s_mov_b64 exec, {sr(sPM, 2)}
    s_waitcnt vmcnt({2 + npf0})
    """)
    stamp(A, opt, "dst")
    for i in range(4):
        A(f"v_mul_u32_u24 v{pC + i}, s{sQ2}, v{pD + i}")
    for i in range(4):
        A(f"v_lshrrev_b32 v{pC + i}, {BS}, v{pC + i}")
        A(f"v_lshlrev_b32 v{pA + i}, 2, v{pC + i}")
        A(f"ds_add_rtn_u32 v{pR + i}, v{pA + i}, v{vOne} offset:{P_CNT}")
    for i in range(4):
        A(f"v_lshl_add_u32 v{pD + i}, v{pD + i}, {SS}, {(1 << SS) - 1 - SC}")
        A(f"v_mad_i32_i24 v{pD + i}, v{pC + i}, s{sQ3}, v{pD + i}")
    A("s_mov_b64 exec, -1")
    A(f"s_cmp_eq_u32 s{sW}, 3")
    A("s_waitcnt lgkmcnt(0)")
    A("s_barrier")
    stamp(A, opt, "b2")
    A(f"""
    s_cbranch_scc0 Lp_noscan
    ds_read_b128 {vr(pC, 4)}, v{vX + 3} offset:{P_CNT}
    s_waitcnt lgkmcnt(0)
    v_add_u32 v{pB + 2}, v{pC}, v{pC + 1}
    v_add3_u32 v{pG + 1}, v{pB + 2}, v{pC + 2}, v{pC + 3}
    v_add_u32 v{pB + 3}, v{pB + 2}, v{pC + 2}
    v_mov_b32 v{pG}, v{pG + 1}
    """)
    ors = []
    for i in range(4):
        ors += [f"v_lshl_or_b32 v{pS + i}, v{pS + i}, 18, v{vE + i}", f"v_lshrrev_b32 v{pD + i}, {SS}, v{pD + i}",
                f"v_or_b32 v{pS + i}, v{pS + i}, v{pD + i}"]
    wave_scan(A, pG + 1, fill=[[]] + [ors[2 * k: 2 * k + 2] for k in range(5)])
    A(f"""
    v_sub_u32 v{pB}, v{pG + 1}, v{pG}
    v_add_u32 v{pB + 1}, v{pB}, v{pC}
    v_add_u32 v{pB + 2}, v{pB}, v{pB + 2}
    v_add_u32 v{pB + 3}, v{pB}, v{pB + 3}
    ds_write_b128 v{vX + 3}, {vr(pB, 4)} offset:{P_BASE}
    {ors[10]}
    {ors[11]}
    s_waitcnt lgkmcnt(0)
    s_barrier
    """)
    A("s_branch Lp_scanned")
    A("Lp_noscan:")
    A("\n".join(ors))
    A("s_barrier")
    A("Lp_scanned:")
    stamp(A, opt, "scan")
    A(f"s_mov_b64 exec, {sr(sPM, 2)}")
    for i in range(4):
        A(f"ds_read_b32 v{pA + i}, v{pA + i} offset:{P_BASE}")
    A("s_waitcnt lgkmcnt(0)")
    for i in range(4):
        A(f"v_add_lshl_u32 v{pA + i}, v{pA + i}, v{pR + i}, 2")
        A(f"ds_write_b32 v{pA + i}, v{pS + i} offset:{P_SORT}")
    A("s_mov_b64 exec, -1")
    A(nonce_load)
    A("s_waitcnt lgkmcnt(0)")
    A("s_barrier")
    stamp(A, opt, "b3")
    A(f"""
    ds_read_b128 {vr(pD, 4)}, v{vX + 2} offset:{P_SORT}
    s_mov_b64 exec, {sr(sPM, 2)}
    s_cbranch_execz Lp_none
    s_waitcnt lgkmcnt(0)
    buffer_store_dwordx4 {vr(pD, 4)}, v{vX + 2}, {sr(S_REC, 4)}, s{sQ1} offen sc1
    s_branch Lp_out
    Lp_loader:
    """)
    loader(2, ld[0])
    A("s_barrier")
    loader(ld[0], ld[1])
    A("s_barrier")
    loader(ld[1], ld[2])
    A("s_barrier")
    loader(ld[2], 16)
    A(nonce_load)
    A(f"""
    Lp_none:
    s_waitcnt vmcnt(1)
    Lp_out:
    s_mov_b64 exec, -1
    """)
    stage_x(2)
    A(f"""
    v_lshrrev_b32 v{vX + 11}, 1, v{vX + 2}
    v_and_b32 v{vX + 11}, 0x3ff, v{vX + 11}
    ds_read_b64 {vr(pC, 2)}, v{vX + 11} offset:{P_CNT}
    ds_read_b64 {vr(pB, 2)}, v{vX + 11} offset:{P_BASE}
    s_lshl_b32 s3, s{sW}, 9
    s_add_u32 m0, s3, {L_WCR}
    s_waitcnt lgkmcnt(0)
    s_barrier
    """)
    stamp(A, opt, "b3b")

    bB, bV, bO = 48, 64, 80

    def bv_reads(s):
        r = 12 * (s & 3)
        A(f"ds_read_b128 {vr(r + 8, 4)}, v{vBx} offset:{32 * s}")
        for m in range(2):
            for z in range(2):
                A(f"ds_read_b64_tr_b16 {vr(r + 4 * m + 2 * z, 2)}, v{vBt} offset:{m * 32768 + s * 4096 + z * 1024}")

    for s in range(3):
        bv_reads(s)
    A(f"""
    s_mov_b32 exec_hi, 0
    buffer_load_dwordx4 v{vX + 3}, {sr(S_WC, 4)}, s3 offen lds
    s_mov_b32 exec_hi, -1
    """)
    b4b = int(opt.get("b4b", 1))
    wk = int(opt.get("wk", 2))
    for s in range(8):
        r = 12 * (s & 3)
        A(f"s_waitcnt lgkmcnt({5 * min(2, 7 - s)})")
        for m in range(2):
            d = (bB, bV)[m]
            A(f"v_mfma_f32_32x32x16_bf16 {vr(d, 16)}, {vr(r + 4 * m, 4)}, {vr(r + 8, 4)}, {'0' if s == 0 else vr(d, 16)}")
        if s + 3 < 8:
            bv_reads(s + 3)
        for i in range(wk * s, min(8, wk * s + wk)):
            if i % 4 == 0:
                A(f"s_add_u32 m0, s{sWm + i // 4}, {L_R2}")
                A("s_nop 0")
            dma_piece(S_W2, sWo + (i >> 2), i)
    stamp(A, opt, "bvm")
    A(f"""
    s_mov_b32 s{sTi}, 0
    s_waitcnt vmcnt(9)
    Lnonce_check:
    v_readfirstlane_b32 s{sNon}, v{vNon}
    v_readfirstlane_b32 s{sNon + 1}, v{vNon + 1}
    s_add_u32 s{sTi}, s{sTi}, 1
    s_cmp_lg_u32 s{sNon}, 0
    s_cbranch_scc1 Lnonce_ok
    buffer_load_dwordx2 {vr(vNon, 2)}, v{vZero}, {sr(S_DBG, 4)}, 0 offen sc1
    s_cmp_lt_u32 s{sTi}, {SPIN_MAX}
    s_waitcnt vmcnt(0)
    s_cbranch_scc1 Lnonce_check
    Lnonce_ok:
    """)
    nslot = int(opt.get("nslot", 4))
    if nslot:
        A(f"""
        s_mul_i32 s3, s{sNon}, 0x9e3779b1
        s_lshr_b32 s3, s3, {32 - nslot}
        s_lshl_b32 s3, s3, 23
        s_add_u32 s{S_TAB}, s{S_TAB}, s3
        s_addc_u32 s{S_TAB + 1}, s{S_TAB + 1}, 0
        s_add_u32 s{S_TW}, s{S_TW}, s3
        s_addc_u32 s{S_TW + 1}, s{S_TW + 1}, 0
        """)
    A(f"""
    s_and_b32 s{sNon + 1}, s{sNon + 1}, 0x3ff
    s_lshl_b32 s3, s{sNon + 1}, 22
    v_lshl_or_b32 v{pG}, v{pC}, 11, v{pB}
    v_lshl_or_b32 v{pG + 2}, v{pC + 1}, 11, v{pB + 1}
    v_or_b32 v{pG}, s3, v{pG}
    v_or_b32 v{pG + 2}, s3, v{pG + 2}
    v_mov_b32 v{pG + 1}, s{sNon}
    v_mov_b32 v{pG + 3}, s{sNon}
    v_lshrrev_b32 v{vE}, {3 + OB}, v{vX + 2}
    v_and_b32 v{vE + 1}, {(8 << OB) - 1}, v{vX + 2}
    v_lshl_add_u32 v{vE}, v{vE}, {11 + OB}, v{vE + 1}
    s_lshl_b32 s3, s2, {3 + OB}
    s_cmp_ge_u32 s{sW}, 2
    {'' if b4b else 's_waitcnt vmcnt(0)'}
    s_barrier
    s_cbranch_scc1 Lno_off
    buffer_store_dwordx4 {vr(pG, 4)}, v{vE}, {sr(S_OFFS, 4)}, s3 offen sc1
    Lno_off:
    """)
    stamp(A, opt, "sig")
    for g in range(4):
        for i in range(4 * g, 4 * g + 4):
            A(f"v_fma_mixlo_f16 v{bV + i}, v{bB + i}, s{sNl}, 0")
        A(f"ds_write_b128 v{vSw}, {vr(bV + 4 * g, 4)} offset:{32 * g}")
    for i in range(4):
        A(f"ds_read_b128 {vr(bO + 4 * i, 4)}, v{vSr} offset:{1152 * i}")
    A(f"""
    s_or_b32 s3, s2, s{sW}
    s_cbranch_scc1 Lno_pad
    v_mov_b32 v{vE}, 0x7c00
    v_mov_b32 v{vE + 1}, 0x7c00
    v_lshrrev_b32 v{vE + 2}, 1, v{vX + 3}
    s_mov_b32 s3, {TAB_BYTES}
    buffer_store_dwordx2 {vr(vE, 2)}, v{vE + 2}, {sr(S_TAB, 4)}, s3 offen sc1
    Lno_pad:
    s_lshr_b32 s3, s{sBk}, {OB}
    s_lshl_b32 s3, s3, {8 + OB}
    s_and_b32 s{sQ1}, s{sBk}, {(1 << OB) - 1}
    s_add_u32 s{sQ1}, s{sQ1}, s3
    s_lshl_b32 s{sQ1}, s{sQ1}, 3
    s_mov_b32 s3, 0
    """)
    def au_reads(s):
        for z in range(2):
            A(f"ds_read_b64_tr_b16 {vr(vWf + 4 * s + 2 * z, 2)}, v{vAt} offset:{s * 4096 + z * 1024}")
        A(f"ds_read_b128 {vr(vXf + 4 * s, 4)}, v{vXrd} offset:{32 * s}")

    for s in range(4):
        A(f"s_waitcnt lgkmcnt({3 - s if b4b else 3 + 2 * s})")
        A(f"buffer_store_dwordx4 {vr(bO + 4 * s, 4)}, v{vBs}, {sr(S_TW, 4)}, s3 offen {opt.get('tw_pol', 'sc1')}")
        A("s_add_u32 s3, s3, 4096")
        if not b4b:
            au_reads(s)
    if b4b:
        A(f"""
        s_cmp_ge_u32 s{sW}, 2
        s_cbranch_scc1 Lwau_0
        s_waitcnt vmcnt(5)
        s_branch Lwau_1
        Lwau_0:
        s_waitcnt vmcnt(4)
        Lwau_1:
        s_barrier
        """)
        for s in range(4):
            au_reads(s)
    stamp(A, opt, "bve")
    if opt.get("notab"):
        A(f"s_mov_b32 s{S_TAB + 2}, 0")
    poll = f"buffer_load_dwordx2 {vr(vOffs, 2)}, v{vPa}, {sr(S_OFFS, 4)}, s{sQ1} offen sc1"

    def tag_wait(name, v, reload):
        A(f"""
        s_mov_b32 s{sTi}, 0
        L{name}_check:
        v_lshrrev_b32 v{vX + 11}, 22, v{v}
        v_cmp_ne_u32_e64 {sr(sTmp, 2)}, s{sNon}, v{v + 1}
        v_cmp_ne_u32 vcc, s{sNon + 1}, v{vX + 11}
        s_add_u32 s{sTi}, s{sTi}, 1
        s_or_b64 vcc, vcc, {sr(sTmp, 2)}
        s_cbranch_scc0 L{name}_ok
        {reload}
        s_cmp_lt_u32 s{sTi}, {SPIN_MAX}
        s_waitcnt vmcnt(0)
        s_cbranch_scc1 L{name}_check
        L{name}_ok:
        """)

    def batch_masks(window):
        A(f"""
        v_bfe_u32 v{vX}, v{vOffs}, 11, 11
        v_and_b32 v{vX + 1}, 1, v{vTid}
        v_subrev_u32 v{vX}, s{sW0}, v{vX}
        v_lshlrev_b32 v{vX + 1}, 2, v{vX + 1}
        v_cmp_lt_i32_e64 {sr(sMore, 2)}, {window}, v{vX}
        v_sub_u32 v{vX}, v{vX}, v{vX + 1}
        """)
        for i in range(window // 2):
            A(f"v_cmp_lt_i32_e64 {sr((cand + cand2)[i][5], 2)}, {(i & 3) + 8 * (i >> 2)}, v{vX}")

    def rec_addr():
        A(f"""
        v_lshrrev_b32 v{vX + 2}, 1, v{vTid}
        v_and_b32 v{vX + 1}, 1, v{vTid}
        v_mul_u32_u24 v{vX + 2}, {CH}, v{vX + 2}
        v_lshl_add_u32 v{vX + 1}, v{vX + 1}, 2, s{sW0}
        v_add_u32 v{vX + 1}, v{vX + 1}, v{vX + 2}
        v_lshlrev_b32 v{vX + 2}, 5, v{vX + 2}
        """)
        for i in range(0, 8, 2):
            A(f"v_mov_b64 {vr(vKey + i, 2)}, 0")

    def rec_loads(both=True):
        A(f"""
        v_and_b32 v{vX + 4}, 0x7ff, v{vOffs}
        v_add_lshl_u32 v{vX + 4}, v{vX + 4}, v{vX + 1}, 2
        buffer_load_dwordx4 {vr(vRec, 4)}, v{vX + 4}, {sr(S_REC, 4)}, 0 offen sc1
        """)
        if both:
            A(f"buffer_load_dwordx4 {vr(vRec + 4, 4)}, v{vX + 4}, {sr(S_REC, 4)}, 0 offen offset:32 sc1")

    def histogram(cs):
        for rec, key, rank, so_, eo_, m in cs:
            A(f"s_mov_b64 exec, {sr(m, 2)}")
            A(f"v_alignbit_b32 v{key}, v{rec}, v{rec}, 27")
            A(f"v_and_b32 v{key}, 0x7fc, v{key}")
            A(f"ds_add_rtn_u32 v{rank}, v{key}, v{vOne} offset:{L_CNT}")
        A("s_mov_b64 exec, -1")

    def place(cs):
        for rec, key, rank, so_, eo_, m in cs:
            A(f"s_mov_b64 exec, {sr(m, 2)}")
            A(f"v_lshl_add_u32 v{key}, v{rank}, 3, v{key}")
            A(f"ds_write2_b32 v{key}, v{rec}, v{vX + 2} offset0:0 offset1:1")
        A("s_mov_b64 exec, -1")

    def hand_over():
        rec_addr()
        stamp(A, opt, "pre5")
        A("s_waitcnt vmcnt(1)")
        stamp(A, opt, "drn")
        A("s_barrier")
        stamp(A, opt, "b5")
        A(f"""
        s_cmp_lg_u32 s{sW}, 7
        s_cbranch_scc1 Lno_tf
        s_lshl_b32 s{sTmp + 1}, s2, {TS}
        s_add_u32 s{sTmp + 1}, s{sTmp + 1}, {TF_OFF}
        s_mov_b64 exec, 1
        buffer_store_dwordx2 {vr(pG, 2)}, v{vZero}, {sr(S_OFFS, 4)}, s{sTmp + 1} offen sc1
        s_mov_b64 exec, -1
        s_waitcnt vmcnt(1)
        s_branch Ltf_sent
        Lno_tf:
        s_waitcnt vmcnt(0)
        Ltf_sent:
        """)
        tag_wait("off", vOffs, poll)
        stamp(A, opt, "off")
        rmask = int(opt.get("rmask", 1))
        rec_loads(not rmask)
        batch_masks(24)
        if rmask:
            A(f"""
            s_mov_b64 exec, {sr(cand[4][5], 2)}
            s_cbranch_execz Lno_rec1
            buffer_load_dwordx4 {vr(vRec + 4, 4)}, v{vX + 4}, {sr(S_REC, 4)}, 0 offen offset:32 sc1
            Lno_rec1:
            s_mov_b64 exec, -1
            """)
        A(f"""
        s_cmp_eq_u64 {sr(sMask2, 2)}, 0
        s_cbranch_scc1 Lno_rec2
        buffer_load_dwordx4 {vr(cand2[0][0], 4)}, v{vX + 4}, {sr(S_REC, 4)}, 0 offen offset:64 sc1
        v_mov_b64 {vr(cand2[0][1], 2)}, 0
        v_mov_b64 {vr(cand2[2][1], 2)}, 0
        Lno_rec2:
        """)

    b5_at = int(opt.get("b5_at", 16))
    assert poll_at <= b5_at
    for k in range(16):
        nb, s = k >> 3, k & 7
        if k == poll_at:
            A(poll)
        if k == b5_at:
            hand_over()
        A(f"s_waitcnt lgkmcnt({9 if k < 5 else (7, 5, 3)[k - 5] if k < 8 else min(3, 15 - k)})")
        cc = "0" if s == 0 else vr(vG + 16 * nb, 16)
        A(f"v_mfma_f32_32x32x16_bf16 {vr(vG + 16 * nb, 16)}, {vr(vWf + 4 * s, 4)}, {vr(vXf + 4 * (k & 7), 4)}, {cc}")
        kn = k + 4
        if kn < 8:
            for z in range(2):
                A(f"ds_read_b64_tr_b16 {vr(vWf + 4 * kn + 2 * z, 2)}, v{vAt} offset:{kn * 4096 + z * 1024}")
        if kn < 16:
            A(f"ds_read_b128 {vr(vXf + 4 * (kn & 7), 4)}, v{vXrd} offset:{32 * 272 * (kn >> 3) + 32 * (kn & 7)}")
    if b5_at == 16:
        hand_over()
    vId = 64
    A(f"""
    s_cmp_lt_u32 s{sW}, 4
    s_cbranch_scc1 Lno_ident
    s_and_b32 s3, s{sW}, 3
    s_lshl_b32 s3, s3, 6
    v_add_u32 v{vX + 11}, s3, v{vXrd}
    """)
    for nb in range(2):
        for z in range(2):
            A(f"ds_read_b128 {vr(vXf + 8 * nb + 4 * z, 4)}, v{vX + 11} offset:{32 * 272 * nb + 32 * z}")
    A(f"""
    v_lshrrev_b32 v{vX + 11}, 4, v{vLo}
    v_lshrrev_b32 v{vX + 12}, 1, v{vH16}
    v_sub_u32 v{vX + 11}, v{vX + 11}, v{vX + 12}
    v_and_b32 v{vX + 12}, 1, v{vX + 11}
    v_lshlrev_b32 v{vX + 12}, 4, v{vX + 12}
    v_mov_b32 v{vX + 13}, 0x3f80
    v_lshlrev_b32 v{vX + 12}, v{vX + 12}, v{vX + 13}
    v_ashrrev_i32 v{vX + 11}, 1, v{vX + 11}
    """)
    for i in range(8):
        A(f"v_cmp_eq_u32_e64 {sr((sTmp, sNext)[i & 1], 2)}, {8 * (i >> 2) + (i & 3)}, v{vX + 11}")
        if i:
            A("s_nop 0")
            A(f"v_cndmask_b32_e64 v{vId + i - 1}, 0, v{vX + 12}, {sr((sTmp, sNext)[(i - 1) & 1], 2)}")
    A("s_nop 0")
    A(f"v_cndmask_b32_e64 v{vId + 7}, 0, v{vX + 12}, {sr(sNext, 2)}")
    A("s_waitcnt lgkmcnt(0)")
    for z in range(2):
        for nb in range(2):
            A(f"v_mfma_f32_32x32x16_bf16 {vr(vG + 16 * nb, 16)}, {vr(vId + 4 * z, 4)}, {vr(vXf + 8 * nb + 4 * z, 4)}, {vr(vG + 16 * nb, 16)}")
    A("Lno_ident:")
    if b5_at == 17:
        hand_over()
    stamp(A, opt, "aum")

    tf_poll = f"buffer_load_dwordx2 {vr(vTf, 2)}, v{vPa}, {sr(S_OFFS, 4)}, s{sQ1} offen sc1"
    vRaw = vD
    A(f"""
    v_lshrrev_b32 v{vPa}, 1, v{vLo}
    {f'v_lshlrev_b32 v{vPa}, {TS - 3}, v{vPa}' if TS > 3 else ''}
    """)

    def wc_reads():
        A(f"""
        v_lshrrev_b32 v{vX + 11}, 1, v{vLo}
        v_lshl_add_u32 v{vX + 11}, v{vH16}, 7, v{vX + 11}
        v_add_u32 v{vX + 11}, {L_WCR}, v{vX + 11}
        """)
        for i in range(8):
            A(f"ds_read_b64 {vr(vRaw + 2 * i, 2)}, v{vX + 11} offset:{256 * i}")

    def wc_fragments():
        A("s_mov_b32 s3, 0x05040100")
        A(f"s_mov_b32 s{sTmp}, 0x07060302")
        for j in range(4):
            for i in range(4):
                A(f"v_perm_b32 v{vWC + 4 * j + i}, v{vRaw + 2 * (2 * i + 1) + (j >> 1)}, v{vRaw + 2 * (2 * i) + (j >> 1)}, "
                  f"s{(3, sTmp)[j & 1]}")

    A(f"""
    s_lshl_b32 s{sQ1}, s{sW}, {5 + TS}
    s_add_u32 s{sQ1}, s{sQ1}, {TF_OFF}
    s_mov_b64 vcc, {sr(sMore, 2)}
    s_cmp_ge_u32 s{sW}, 4
    s_cbranch_scc1 Lu_wave
    v_mov_b32 v{vXs + 2}, 0
    """)
    row_mask = "s_mov_b32 exec_lo, 0xfffff\ns_mov_b32 exec_hi, 0xfffff"
    for i in range(0, 32, 2):
        if i == 16:
            A(row_mask)
        A(f"v_max3_f32 v{vXs + 2}, |v{vG + i}|, |v{vG + i + 1}|, v{vXs + 2}")
    A("s_mov_b64 exec, -1")
    A(f"v_cmp_lt_f32 vcc, {hex(f32(AMAX))}, v{vXs + 2}")
    A(f"s_or_b64 vcc, vcc, {sr(sMore, 2)}")

    def node_rows():
        for nb in range(2):
            if nb == 1:
                A(row_mask)
            for g in range(4):
                A(f"ds_write_b128 v{vTw}, {vr(vG + 16 * nb + 4 * g, 4)} offset:{32 * 528 * nb + 32 * g}")
        A("s_mov_b64 exec, -1")

    def node_exponents():
        A(f"""
        v_mov_b32 v{vXs}, {hex(f32(-float(KSH)))}
        v_mov_b32 v{vXs + 1}, {hex(f32(-float(KSH)))}
        s_mov_b32 s{sTmp}, s{sNl}
        s_mov_b32 s{sTmp + 1}, s{sNl}
        """)
        for i in range(0, 32, 2):
            A(f"v_pk_fma_f32 {vr(vG + i, 2)}, {vr(vG + i, 2)}, {sr(sTmp, 2)}, {vr(vXs, 2)}")

    A("Lu_wave:")
    A("s_mov_b64 exec, vcc")
    A(f"ds_write_b32 v{vZero}, v{vOne} offset:{L_FLAG}")
    A("s_mov_b64 exec, -1")
    late_tf = int(opt.get("late_tf", 2))
    if late_tf < 2:
        A(tf_poll)
    la = vSoff
    A(f"""
    s_mul_i32 s{sSW}, s{sW}, {STRW}
    s_add_u32 s{sSW}, s{sSW}, {L_STR}
    v_add_u32 v{vSp}, s{sSW}, v{vH16}
    v_bfe_u32 v{vX + 12}, v{vTid}, 3, 2
    v_bfe_u32 v{vX + 13}, v{vTid}, 1, 1
    v_lshl_add_u32 v{vX + 12}, v{vX + 12}, 1, v{vX + 13}
    v_bfe_u32 v{vX + 13}, v{vTid}, 2, 1
    v_lshl_add_u32 v{vX + 12}, v{vX + 12}, 1, v{vX + 13}
    v_and_b32 v{vX + 13}, 1, v{vTid}
    v_lshl_add_u32 v{vX + 12}, v{vX + 12}, 1, v{vX + 13}
    v_lshl_add_u32 v{vEp}, v{vX + 12}, 2, s{sSW}
    v_bfrev_b32 v{vX + 13}, 2
    v_mov_b32 v{vX + 12}, {N << 18}
    v_lshlrev_b32 v{la}, 1, v{vX + 3}
    v_lshlrev_b32 v{la + 1}, 3, v{vX + 3}
    v_lshrrev_b32 v{la + 2}, 4, v{vX + 3}
    v_lshl_add_u32 v{la + 3}, v{la + 2}, 2, s{sSW}
    """)
    A(f"s_waitcnt vmcnt({1 if late_tf < 2 else 0})")
    stamp(A, opt, "rec")
    histogram(cand)
    A(f"s_cmp_eq_u64 {sr(sMask2, 2)}, 0")
    A("s_cbranch_scc1 Lno_hist2")
    histogram(cand2)
    A("Lno_hist2:")
    A("s_waitcnt vmcnt(0)")
    stamp(A, opt, "hist")
    epf = int(opt.get("epf", 2200))
    assert not (late_tf and pf_lanes)
    if late_tf == 2:
        A(tf_poll)
    elif late_tf:
        A(f"""
        v_lshrrev_b32 v{vX + 11}, 22, v{vTf}
        v_cmp_ne_u32_e64 {sr(sTmp, 2)}, s{sNon}, v{vTf + 1}
        v_cmp_ne_u32 vcc, s{sNon + 1}, v{vX + 11}
        s_or_b64 {sr(sMore, 2)}, vcc, {sr(sTmp, 2)}
        s_cbranch_scc0 Ltf_seen
        {tf_poll}
        Ltf_seen:
        """)
    else:
        tag_wait("tf", vTf, tf_poll)

    def early_features():
        A(f"s_mov_b32 s3, {epf << 18}")
        for rec, key_, rank, so_, eo_, m in cand[:4]:
            A(f"v_cmp_gt_u32 vcc, s3, v{rec}")
            A(f"v_bfe_u32 v{eo_}, v{rec}, 6, 12")
            A(f"v_lshl_add_u32 v{eo_}, v{eo_}, 5, v{vX + 2}")
            A(f"s_and_b64 vcc, vcc, {sr(m, 2)}")
            A("s_or_b64 exec, vcc, 1")
            A(f"buffer_load_dword v{vL + 22}, v{eo_}, {sr(S_EA, 4)}, 0 offen")
            A("s_mov_b64 exec, -1")

    if epf:
        early_features()
    A("s_waitcnt lgkmcnt(0)")
    A("s_barrier")
    stamp(A, opt, "bB")
    c, p, deg, q, inc, g4 = vL, vL + 8, vL + 16, vL + 17, vL + 18, vL + 19
    A(f"ds_read_b128 {vr(c, 4)}, v{la} offset:{L_CNT}")
    A(f"ds_read_b128 {vr(c + 4, 4)}, v{la} offset:{L_CNT + 16}")
    if pf_lanes:
        A(f"""
        s_andn2_b32 s3, s2, 7
        s_add_u32 s3, s3, s{sW}
        s_mul_i32 s3, s3, {pf_lanes * 128}
        {'s_nop 0' if pf_lanes == 64 else f's_bfm_b64 exec, {pf_lanes}, 0'}
        buffer_load_dword v{vL + 22}, v{la + 1}, {sr(S_TAB, 4)}, s3 offen {tab_pol}
        s_mov_b64 exec, -1
        """)
    A(f"""
    s_mov_b32 s{sQ2}, {L_SO}
    s_waitcnt lgkmcnt(1)
    v_add_u32 v{p + 2}, v{c}, v{c + 1}
    v_add3_u32 v{p + 4}, v{p + 2}, v{c + 2}, v{c + 3}
    s_waitcnt lgkmcnt(0)
    v_add3_u32 v{p + 6}, v{p + 4}, v{c + 4}, v{c + 5}
    v_add3_u32 v{deg}, v{p + 6}, v{c + 6}, v{c + 7}
    v_add_u32 v{q}, 3, v{deg}
    v_lshrrev_b32 v{inc}, 2, v{q}
    """)
    front = int(opt.get("front", 1))
    wave_scan(A, inc, fill=[
        [f"v_lshrrev_b32 v{q}, 2, v{q}", f"v_add_u32 v{p + 3}, v{p + 2}, v{c + 2}"],
        [f"v_add_u32 v{p + 5}, v{p + 4}, v{c + 4}", f"v_add_u32 v{p + 7}, v{p + 6}, v{c + 6}"],
        [f"v_mad_i32_i24 v{c + 2}, v{deg}, -8, s{sQ2}", f"v_lshlrev_b32 v{c + 1}, 2, v{q}"],
        [f"v_add_u32 v{deg}, s{sW}, v{deg}", f"s_lshl_b32 s{sQ3}, s{sW}, 3"],
        [f"v_cmp_lt_u32_e64 {sr(sNext, 2)}, v{deg}, v{c + 1}", f"s_add_u32 s{sQ3}, s{sQ3}, 8"]])
    A(f"v_sub_u32 v{g4}, v{inc}, v{q}")
    A(f"v_readlane_b32 s3, v{inc}, 63")
    A(f"v_lshl_add_u32 v{p}, v{inc}, 5, v{c + 2}" if front else f"v_lshl_add_u32 v{p}, v{g4}, 5, s{sQ2}")
    A(f"v_lshl_add_u32 v{p + 1}, v{c}, 3, v{p}")
    for i in range(2, 8):
        A(f"v_lshl_add_u32 v{p + i}, v{p + i}, 3, v{p}")
        if i in (3, 7):
            A(f"ds_write_b128 v{la}, {vr(p + i - 3, 4)} offset:{L_BASE + 4 * (i - 3)}")
    for cd in cand:
        A(f"ds_read_b32 v{cd[1]}, v{cd[1]} offset:{L_BASE}")
    A(f"""
    s_mul_i32 s{sLw}, s3, s{sW}
    s_add_u32 s{sRem}, s{sLw}, s3
    s_lshr_b32 s{sLw}, s{sLw}, 3
    s_lshr_b32 s{sRem}, s{sRem}, 3
    v_cmp_gt_u32_e64 {sr(sTmp, 2)}, s{sLw}, v{g4}
    v_cmp_gt_u32 vcc, s{sRem}, v{g4}
    {f'v_subrev_u32 v{deg}, s{sQ3}, v{p}' if front else f'v_lshl_add_u32 v{deg}, v{deg}, 3, v{p}'}
    s_bcnt1_i32_b64 s{sF0}, {sr(sTmp, 2)}
    s_bcnt1_i32_b64 s{sOwn}, vcc
    s_cmp_eq_u32 s{sW}, 7
    s_cselect_b32 s{sOwn}, s{sNn}, s{sOwn}
    s_sub_u32 s{sOwn}, s{sOwn}, s{sF0}
    s_sub_u32 s{sRem}, s{sRem}, s{sLw}
    s_waitcnt lgkmcnt(0)
    """)
    stamp(A, opt, "scan2")
    place(cand)
    A(f"s_cmp_eq_u64 {sr(sMask2, 2)}, 0")
    A("s_cbranch_scc1 Lno_place2")
    for cd in cand2:
        A(f"ds_read_b32 v{cd[1]}, v{cd[1]} offset:{L_BASE}")
    A("s_waitcnt lgkmcnt(0)")
    place(cand2)
    A("Lno_place2:")
    en, so, eo, key, cn, pos, t = vL, vL + 8, vL + 12, vL + 20, vL + 24, vL + 21, vL + 26
    A(f"""
    s_mov_b64 exec, {sr(sNext, 2)}
    ds_write_b64 v{deg}, {vr(vX + 12, 2)}
    s_mov_b64 exec, -1
    """)
    if late_tf:
        if late_tf < 2:
            A(f"s_cmp_eq_u64 {sr(sMore, 2)}, 0")
            A("s_cbranch_scc1 Ltf_ok")
        A(f"s_waitcnt vmcnt({4 if epf else 0})")
        tag_wait("tf", vTf, tf_poll)
    A(f"""
    s_sub_u32 s3, s{sOwn}, 1
    s_sub_u32 s{sTmp}, s{sRem}, 1
    s_cmp_gt_u32 s{sTmp}, 63
    s_cselect_b32 s3, 8, s3
    s_cmp_gt_u32 s3, 7
    s_cselect_b64 exec, 1, 0
    ds_write_b32 v{vZero}, v{vOne} offset:{L_FLAG}
    s_mov_b64 exec, -1
    s_lshl_b32 s3, s{sLw}, 5
    v_add_u32 v{t}, s3, v{la}
    v_cmp_le_u32_e64 {sr(sTmp, 2)}, s{sRem}, v{la + 2}
    s_sub_u32 s{sQ1}, s{sF0}, 1
    s_mul_i32 s{sQ2}, s{sQ1}, 528
    s_add_u32 s{sQ2}, s{sQ2}, {L_TA}
    s_mov_b32 s{sQ3}, 0xfffffe00
    s_waitcnt lgkmcnt(0)
    s_barrier
    ds_read_b128 {vr(en, 4)}, v{t} offset:{L_SO}
    ds_read_b32 v{t + 3}, v{vZero} offset:{L_FLAG}
    ds_read_b128 {vr(en + 4, 4)}, v{t} offset:{L_SO + 16}
    v_cndmask_b32_e64 v{vInv}, 0, v{vX + 13}, {sr(sTmp, 2)}
    v_add_u32 v{vEb}, s{sQ2}, v{vLo}
    v_mov_b64 {vr(cn, 2)}, 1
    s_waitcnt lgkmcnt(0)
    v_min_u32 v{key}, v{en + 2 * int(opt.get("kent", 2))}, v{en + 6}
    v_lshrrev_b32 v{key}, 26, v{key}
    v_and_b32 v{key}, 56, v{key}
    v_cndmask_b32_e64 v{key}, v{key}, 56, {sr(sTmp, 2)}
    s_waitcnt lgkmcnt(1)
    v_readfirstlane_b32 s3, v{t + 3}
    v_lshlrev_b64 {vr(cn, 2)}, v{key}, {vr(cn, 2)}
    v_and_b32 v{t + 3}, 63, v{en + 6 * front}
    s_cmp_lg_u32 s3, 0
    s_cbranch_scc1 Lslow_entry
    s_waitcnt lgkmcnt(0)
    """)
    stamp(A, opt, "bD")
    fillers = [f"v_subrev_u32 v{t + 3}, s{sQ1}, v{t + 3}", f"v_mul_u32_u24 v{t + 3}, 12, v{t + 3}"]
    fillers += [f"v_lshrrev_b32 v{so + i}, 9, v{en + 2 * i}" for i in range(4)]
    for k, d in enumerate(WAVE_SCAN):
        A(f"v_add_u32_dpp v{cn}, v{cn}, v{cn} {d} bank_mask:0xf")
        A(f"v_add_u32_dpp v{cn + 1}, v{cn + 1}, v{cn + 1} {d} bank_mask:0xf")
        A(fillers[k])
    A(f"v_readlane_b32 s{sTmp}, v{cn}, 63")
    A(f"v_readlane_b32 s{sTmp + 1}, v{cn + 1}, 63")
    for i in range(4):
        A(f"v_bfe_u32 v{eo + i}, v{en + 2 * i}, 6, 12")
    A(f"""
    s_mul_i32 s3, s{sTmp}, 0x01010101
    s_mul_i32 s{sTmp + 1}, s{sTmp + 1}, 0x01010100
    s_lshl_b32 s{sTmp}, s3, 8
    s_lshr_b32 s3, s3, 24
    s_mul_i32 s3, s3, 0x01010101
    s_add_u32 s{sTmp + 1}, s{sTmp + 1}, s3
    v_lshl_add_u64 {vr(cn, 2)}, {vr(cn, 2)}, 0, {sr(sTmp, 2)}
    s_sub_u32 s3, s{sSW}, 16
    v_lshrrev_b64 {vr(cn, 2)}, v{key}, {vr(cn, 2)}
    """)
    for i in range(4):
        A(f"v_lshl_add_u32 v{eo + i}, v{eo + i}, 5, v{en + 2 * i + 1}")
    A(f"v_and_b32 v{pos}, 0xff, v{cn}")
    for i in range(4):
        A(f"v_or_b32 v{eo + i}, v{eo + i}, v{vInv}")
    A(f"v_lshl_add_u32 v{t}, v{pos}, 4, s3")
    A(f"ds_write_b128 v{t}, {vr(eo, 4)} offset:1152")
    A(f"ds_read_b32 v{vEo}, v{vEp} offset:1152")
    for i in range(4):
        A(f"v_and_or_b32 v{so + i}, v{so + i}, s{sQ3}, v{vInv}")
    A(f"""
    v_and_b32 v{t + 1}, 1, v{pos}
    v_lshl_add_u32 v{t + 1}, v{t + 1}, 3, v{t}
    v_subrev_u32 v{t + 1}, 8, v{t + 1}
    ds_write2_b64 v{t + 1}, {vr(so, 2)}, {vr(so + 2, 2)} offset0:0 offset1:2
    ds_read_b128 {vr(vT, 4)}, v{vSp}
    ds_read_b128 {vr(vSo, 4)}, v{vSp} offset:32
    v_add_u32 v{t + 2}, s{sSW}, v{pos}
    ds_write_b8 v{t + 2}, v{t + 3} offset:2303
    ds_read_b32 v{vSb}, v{la + 3} offset:2304
    s_waitcnt lgkmcnt(5)
    v_add_u32 v{vEo}, v{vEo}, v{vH16}
    buffer_load_dwordx4 {vr(vEA, 4)}, v{vEo}, {sr(S_EA, 4)}, 0 offen {ea_pol}
    """)
    dist = int(opt.get("dist", 4))
    for u in range(dist):
        src = (vT, vT + 2, vSo, vSo + 2)[u]
        if u in (0, 2):
            A(f"s_waitcnt lgkmcnt({(3, 1)[u // 2]})")
        A(f"v_lshl_add_u64 {vr(src, 2)}, {vr(src, 2)}, 0, {vr(vLo, 2)}")
        A(f"buffer_load_dwordx4 {vr(vL + 8 * u, 4)}, v{src}, {sr(S_TAB, 4)}, 0 offen {tab_pol}")
        A(f"buffer_load_dwordx4 {vr(vL + 8 * u + 4, 4)}, v{src + 1}, {sr(S_TAB, 4)}, 0 offen {tab_pol}")
    stamp(A, opt, "prim")
    eps = 1e-6 / c0
    wc_reads()
    A(f"s_and_b32 s3, s{sW}, 4")
    A(f"v_mov_b32 v{vEad}, s3")
    A("s_cbranch_scc1 Lfactors_made")
    node_exponents()
    for i in range(32):
        A(f"v_exp_f32 v{vG + i}, v{vG + i}")
    A("Lfactors_made:")
    node_rows()
    A(f"""
    s_mov_b64 exec, 1
    ds_add_u32 v{vEad}, v{vOne} offset:{L_FLAG + 8}
    s_mov_b64 exec, -1
    s_waitcnt lgkmcnt(9)
    """)
    wc_fragments()
    A(f"""
    s_waitcnt lgkmcnt(0)
    s_mov_b32 s{sTmp}, {hex(f32(eps / 2))}
    s_mov_b32 s{sTmp + 1}, {hex(f32(eps / 2))}
    """)
    for sl_ in range(NS):
        for j in range(0, 8, 2):
            A(f"v_mov_b64 {vr(vSl + 12 * sl_ + j, 2)}, {sr(sTmp, 2) if sl_ and j >= 4 else 0}")
    eA1, eA2, eA3, eA4, eFl, eOne = 248, 249, 250, 251, 252, 253
    sOut, sLast = sOvf, sMor
    A(f"""
    v_add_u32 v{eA1}, s{sSW}, v{vX + 3}
    s_mul_i32 s3, s{sF0}, 528
    s_add_u32 s3, s3, {L_TU}
    v_mul_u32_u24 v{eA2}, 33, v{vH16}
    v_add3_u32 v{eA2}, v{eA2}, v{vLo}, s3
    s_mul_i32 s3, s{sF0}, 272
    s_add_u32 s3, s3, {L_X}
    v_mul_u32_u24 v{eA3}, 17, v{vH16}
    v_lshrrev_b32 v{eA4}, 1, v{vLo}
    v_add3_u32 v{eA3}, v{eA3}, v{eA4}, s3
    v_lshl_add_u32 v{eA4}, v{vH16}, 4, v{eA4}
    s_lshl_b32 s3, s{sW}, 2
    v_mov_b32 v{eFl}, s3
    v_mov_b32 v{eOne}, {L_FLAG + 12}
    s_add_u32 s{sOut}, s{sN0}, s{sF0}
    s_lshl_b32 s{sOut}, s{sOut}, 8
    s_mul_i32 s{sLast}, s{sOwn}, 12
    """)
    A("Lfactors:")
    A(f"ds_read_b32 v{vEad}, v{vZero} offset:{L_FLAG + 8}")
    for sl_ in range(NS):
        A(f"ds_read_b128 {vr(vSl + 12 * sl_ + 8, 4)}, v{vEb} offset:{528 * sl_}")
    A("s_waitcnt lgkmcnt(0)")
    A(f"v_cmp_gt_u32 vcc, 4, v{vEad}")
    A("s_cbranch_vccnz Lfactors")
    ea_at = int(opt.get("ea_at", 3))
    prio = opt.get("prio", "alt")
    A(f"""
    s_waitcnt lgkmcnt(0)
    v_readlane_b32 s{sSl0}, v{vSb}, 0
    v_readlane_b32 s{sSl1}, v{vSb}, 1
    s_mov_b32 s{sLn}, 2
    s_mov_b32 s{sLn + 1}, 3
    """)
    if prio == "quart":
        A(f"""
        s_mul_i32 s{sQ1}, s{sRem}, 3
        s_lshr_b32 s{sQ1}, s{sQ1}, 2
        s_lshr_b32 s{sQ2}, s{sRem}, 1
        s_lshr_b32 s{sQ3}, s{sRem}, 2
        """)
    else:
        first_drop = [int(x) for x in opt.get("drop", "8,16").split(",")]
        A(f"""
        s_cmp_lt_u32 s{sW}, 4
        s_cselect_b32 s3, {first_drop[0]}, {first_drop[1]}
        s_sub_i32 s{sQ1}, s{sRem}, s3
        s_sub_i32 s{sQ2}, s{sQ1}, {int(opt.get("dstep", 16))}
        s_sub_i32 s{sQ3}, s{sQ2}, {int(opt.get("dstep", 16))}
        """)
        if opt.get("dend"):
            e0, e1 = (int(x) for x in opt["dend"].split(","))
            A(f"""
            s_cmp_lt_u32 s{sW}, 4
            s_cselect_b32 s{sQ3}, {e0}, {e1}
            s_add_u32 s{sQ2}, s{sQ3}, {int(opt.get("dstep", 16))}
            s_add_u32 s{sQ1}, s{sQ2}, {int(opt.get("dstep", 16))}
            """)
    thr_on = opt.get("thr")
    if thr_on:
        ref, mul, cut = (int(x) for x in thr_on.split(","))
        A(f"""
        s_sub_i32 s3, {ref}, s{sRem}
        s_mul_i32 s3, s3, {mul}
        s_sub_i32 s{sTi}, s{sRem}, s3
        """)
    fair = int(opt.get("fair", 0))
    vFa, vFi, vFr = 248, 249, 250
    if fair:
        A(f"""
        s_and_b32 s3, s{sW}, 3
        s_lshl_b32 s3, s3, 2
        v_mov_b32 v{vFa}, s3
        s_cmp_lt_u32 s{sW}, 4
        s_cselect_b32 s{sQ1}, 1, -1
        v_mov_b32 v{vFi}, s{sQ1}
        """)
    A("s_setprio 3")
    A(f"s_waitcnt vmcnt({2 * dist})")
    stamp(A, opt, "first")

    def mfma(j):
        return f"v_mfma_f32_32x32x16_bf16 {vr(vD + 16 * j, 16)}, {vr(vEA, 4)}, {vr(vWC + 4 * j, 4)}, 0"

    for j in range(4):
        A(mfma(j))
    A("s_nop 8")
    A(f"s_cmp_gt_u32 s{sRem}, 8")
    A("s_cbranch_scc0 Llast")

    def step(u, last, q):
        La, Lb = vL + 8 * (u & 3), vL + 8 * (u & 3) + 4
        a, b = vT, vT + 4
        sl = (sSl0, sSl1)[u >> 2]
        nv = u + dist
        prefetch = not (last and nv >= 8)
        check = fair and u % fair == 0
        need = [u] + (["E"] if u == 7 and not last else [])
        A(f"s_waitcnt vmcnt({len(q) - 1 - max(i for i, x in enumerate(q) if x in need)})")
        if thr_on and not last:
            A(f"s_cbranch_vccz Lthr{u}")
            A(f"s_waitcnt vmcnt({len(q) - 1 - max(i for i, x in enumerate(q) if x in need + [u + cut])})")
            A(f"Lthr{u}:")
        lds = (prefetch and nv % 2 == 0) or (u == ea_at and not last) or check
        if prefetch and nv % 2 == 0:
            A(f"ds_read_b128 {vr(vSo, 4)}, v{vSp} offset:{16 * nv}")
        if check:
            A("s_nop 0")
            A("s_mov_b64 exec, 1")
            A(f"ds_add_rtn_u32 v{vFr}, v{vFa}, v{vFi} offset:{L_FLAG + 32}")
            A("s_mov_b64 exec, -1")
            A("s_nop 0")
        if u == ea_at and not last:
            A(f"ds_read_b32 v{vEo}, v{vEp} offset:{1152 + 128}")

        def mix(j, hb):
            return (f"v_fma_mix_f32 v{(a, b)[hb] + j}, v{vD + 16 * j + 2 * u + hb}, s{sNl}, v{(La, Lb)[hb] + j} "
                    "op_sel_hi:[0,0,1]")

        if u == 7 and not last:
            for j in range(4):
                A(mix(j, 0))
                A(mix(j, 1))
                if j:
                    A(f"v_exp_f32 v{a + j - 1}, v{a + j - 1}")
                    A(f"v_exp_f32 v{b + j - 1}, v{b + j - 1}")
                A(mfma(j))
            A(f"v_exp_f32{'' if lds else '_e64'} v{a + 3}, v{a + 3}")
            A(f"v_exp_f32 v{b + 3}, v{b + 3}")
        else:
            for hb in range(2):
                for j in range(4):
                    A(mix(j, hb))
            for j in range(8):
                A(f"v_exp_f32{'_e64' if j == 0 and not lds else ''} v{a + j}, v{a + j}")
        if lds:
            A("s_waitcnt lgkmcnt(0)")
        A(f"s_set_gpr_idx_on s{sl}, gpr_idx(SRC1)")
        for j in range(0, 8, 2):
            A(f"v_pk_fma_f32 {vr(a + j, 2)}, {vr(a + j, 2)}, {vr(vSl + 8 + (j & 3), 2)}, {sr(sC0, 2)} clamp")
        A("s_set_gpr_idx_mode gpr_idx()")
        A(f"s_lshr_b32 s{sl}, s{sl}, 8")
        if check:
            A(f"v_readlane_b32 s3, v{vFr}, 0")
        if u == ea_at and not last:
            A(f"v_add_u32_e64 v{vEo}, v{vEo}, v{vH16}")
            A(f"buffer_load_dwordx4 {vr(vEA, 4)}, v{vEo}, {sr(S_EA, 4)}, 0 offen {ea_pol}")
            q.append("E")
        for j in (0, 2):
            A(f"v_pk_mul_f32 {vr(La + j, 2)}, {vr(La + j, 2)}, {vr(b + j, 2)}")
        if check:
            tag = f"Lfair{u}{'l' if last else ''}"
            A(f"""
            s_mul_i32 s3, s3, s{sQ1}
            s_setprio 0
            s_cmp_ge_i32 s3, 0
            s_cbranch_scc1 {tag}
            s_setprio 2
            s_nop 0
            {tag}:
            """)
        so2 = vSo + 2 * (nv & 1)
        if prefetch:
            A(f"v_lshl_add_u64 {vr(so2, 2)}, {vr(so2, 2)}, 0, {vr(vLo, 2)}")
        for j in (0, 2):
            A(f"v_pk_fma_f32 {vr(La + j, 2)}, {vr(Lb + j, 2)}, {vr(a + j, 2)}, {vr(La + j, 2)}")
        for j in (0, 2):
            A(f"v_pk_add_f32 {vr(Lb + j, 2)}, {vr(a + j, 2)}, {vr(b + j, 2)}")
        for j in (0, 2):
            A(f"v_pk_mul_f32 {vr(a + j, 2)}, {vr(a + j, 2)}, {vr(b + j, 2)}")
        for j in range(4):
            A(f"v_rcp_f32{'_e64' if j == 0 else ''} v{a + j}, v{a + j}")
        A("s_set_gpr_idx_mode gpr_idx(SRC2,DST)")
        for j in (0, 2):
            A(f"v_pk_fma_f32 {vr(vSl + j, 2)}, {vr(La + j, 2)}, {vr(a + j, 2)}, {vr(vSl + j, 2)}")
            A(f"v_pk_fma_f32 {vr(vSl + 4 + j, 2)}, {vr(Lb + j, 2)}, {vr(a + j, 2)}, {vr(vSl + 4 + j, 2)}")
        if prefetch:
            A(f"buffer_load_dwordx4 {vr(vL + 8 * (nv & 3), 4)}, v{so2}, {sr(S_TAB, 4)}, 0 offen {tab_pol}")
            A(f"buffer_load_dwordx4 {vr(vL + 8 * (nv & 3) + 4, 4)}, v{so2 + 1}, {sr(S_TAB, 4)}, 0 offen {tab_pol}")
            q += [nv] * 2
        A("s_set_gpr_idx_off")

    assert 0 <= ea_at < 7
    A.note("""main loop: eight groups per tile. a = min(2^-48 * (1 + exp(-gate)), 1) for edges a and b of each half-wave:
    num += (Va * b + Vb * a) / (a * b), den += (a + b) / (a * b)""")
    A(".p2align 6")
    A("Ltile:")
    A(f"s_sub_u32 s{sRem}, s{sRem}, 8")
    if thr_on:
        A(f"s_cmp_ge_i32 s{sRem}, s{sTi}")
        A("s_cselect_b64 vcc, -1, 0")
    q = [0, 0, 1, 1, 2, 2, 3, 3][:2 * dist]
    for u in range(8):
        step(u, False, q)
        if u == 3 and int(opt.get("pmid", 0)):
            A(f"s_add_u32 s3, s{sRem}, 4")
            for k, sq in enumerate((sQ1, sQ2, sQ3)):
                A(f"s_cmp_le_i32 s3, s{sq}")
                A("s_cbranch_scc0 Lprio_mid")
                A(f"s_setprio {2 - k}")
            A("Lprio_mid:")
    A(f"""
    s_nop 0
    v_readlane_b32 s{sSl0}, v{vSb}, s{sLn}
    v_readlane_b32 s{sSl1}, v{vSb}, s{sLn + 1}
    v_add_u32 v{vSp}, 0x80, v{vSp}
    v_add_u32 v{vEp}, 0x80, v{vEp}
    s_add_u32 s{sLn}, s{sLn}, 2
    s_add_u32 s{sLn + 1}, s{sLn + 1}, 2
    """)
    if opt.get("tilestamps"):
        for k in range(2, 6):
            A(f"s_cmp_lg_u32 s{sLn}, {2 * k + 2}")
            A(f"s_cbranch_scc1 Lts{k}")
            stamp(A, opt, f"tile{k}")
            A(f"Lts{k}:")
    if prio != "none" and not fair:
        for k, sq in enumerate((sQ1, sQ2, sQ3)):
            A(f"s_cmp_le_i32 s{sRem}, s{sq}")
            A("s_cbranch_scc0 Lprio_done")
            A(f"s_setprio {2 - k}")
        A("Lprio_done:")
    A(f"s_cmp_gt_u32 s{sRem}, 8")
    A("s_cbranch_scc1 Ltile")
    A(".p2align 3")
    A(f"""
    Llast:
    ds_read_b32 v{vEad}, v{eOne}
    s_waitcnt lgkmcnt(0)
    v_cmp_gt_u32 vcc, 4, v{vEad}
    s_cbranch_vccnz Llast
    """)
    q = [0, 0, 1, 1, 2, 2, 3, 3][:2 * dist]
    for u in range(8):
        step(u, True, q)
        if u < 7:
            A(f"s_cmp_le_u32 s{sRem}, {u + 1}")
            A("s_cbranch_scc1 Lmain_done")
    A("Lmain_done:")
    stamp(A, opt, "done")

    def finalize(a0, o, a1, u0, x0, addr, soff, pre_store, pre_rows=""):
        for j in range(4):
            A(f"v_permlane32_swap_b32 v{a0 + j}, v{a1 + j}")
            A(f"v_permlane32_swap_b32 v{a0 + o + j}, v{a1 + o + j}")
        for j in (o, o + 2, 0, 2):
            A(f"v_pk_add_f32 {vr(a0 + j, 2)}, {vr(a0 + j, 2)}, {vr(a1 + j, 2)}")
        for j in range(4):
            A(f"v_rcp_f32 v{a0 + o + j}, v{a0 + o + j}")
        A(pre_rows)
        for j in (0, 2):
            A(f"v_pk_fma_f32 {vr(a0 + j, 2)}, {vr(a0 + j, 2)}, {vr(a0 + o + j, 2)}, {vr(u0 + j, 2)}")
        A(f"v_cvt_pk_bf16_f32 v{a0}, v{a0}, v{a0 + 1}")
        A(f"v_cvt_pk_bf16_f32 v{a0 + 1}, v{a0 + 2}, v{a0 + 3}")
        A(f"v_pk_max_f16 v{a0}, v{a0}, v{x0}")
        A(f"v_pk_max_f16 v{a0 + 1}, v{a0 + 1}, v{x0 + 1}")
        A(pre_store)
        A(f"buffer_store_dwordx2 {vr(a0, 2)}, v{addr}, {sr(S_OUT, 4)}, s{soff} offen {opt.get('out_pol', 'sc1 nt')}")

    vU, vXr, vA1, vA2, vA3, vCy = vD, vD + 16, vD + 24, vD + 25, vD + 26, vD + 32
    carry_reads = f"""
    ds_read_b32 v{vEad}, v{eFl} offset:{L_FLAG + 64 + 4}
    ds_read_b128 {vr(vCy, 4)}, v{eA1} offset:{STRW}
    ds_read_b128 {vr(vCy + 4, 4)}, v{eA1} offset:{STRW + 1024}
    """
    A(f"""
    ds_write_b128 v{eA1}, {vr(vSl, 4)}
    ds_write_b128 v{eA1}, {vr(vSl + 4, 4)} offset:1024
    ds_write_b32 v{eFl}, v{eOne} offset:{L_FLAG + 64}
    """)
    for pr in range(4):
        A(f"ds_read_b128 {vr(vU + 4 * pr, 4)}, v{eA2} offset:{1056 * pr}")
        A(f"ds_read_b64 {vr(vXr + 2 * pr, 2)}, v{eA3} offset:{544 * pr}")
    A(carry_reads)
    for pr in range(4):
        if pr < 3:
            A(f"s_cmp_gt_u32 s{sOwn}, {2 * pr + 2}")
            A(f"s_cbranch_scc1 Lfin{pr}")
        A(f"""
        s_cmp_eq_u32 s{sW}, 7
        s_cbranch_scc1 Lfin{pr}
        Lcarry{pr}:
        s_waitcnt lgkmcnt(0)
        v_cmp_eq_u32 vcc, 0, v{vEad}
        s_cbranch_vccz Lcarried{pr}
        s_sleep 1
        {carry_reads}
        s_branch Lcarry{pr}
        Lcarried{pr}:
        s_set_gpr_idx_on s{sLast}, gpr_idx(SRC0,DST)
        """)
        for j in range(0, 8, 2):
            A(f"v_pk_add_f32 {vr(vSl + j, 2)}, {vr(vSl + j, 2)}, {vr(vCy + j, 2)}")
        A("s_set_gpr_idx_off")
        A("s_nop 1")
        A(f"Lfin{pr}:")
        finalize(vSl + 12 * (2 * pr + 1), 4, vSl + 12 * (2 * pr + 2), vU + 4 * pr, vXr + 2 * pr, eA4, sOut,
                 f"s_cmp_gt_u32 s{sOwn}, {2 * pr + 1}\ns_cselect_b32 exec_hi, -1, 0", "" if pr else "s_waitcnt lgkmcnt(0)")
        if pr < 3:
            A(f"s_add_u32 s{sOut}, s{sOut}, 512")
            A(f"s_cmp_gt_u32 s{sOwn}, {2 * pr + 2}")
            A("s_cbranch_scc0 Lk2_done")
    A("Lk2_done:")
    if opt.get("xcc"):
        A("s_getreg_b32 s4, hwreg(HW_REG_XCC_ID, 0, 4)")
        A("s_sub_u32 s4, s4, s2")
        A("s_and_b32 s4, s4, 7")
        A("s_mul_i32 s4, s4, 100")
    stamp_flush(A, opt, 8, 0x20000, vTid)
    if opt.get("spin"):
        A("""
        Lspin:
        s_memrealtime s[42:43]
        s_waitcnt lgkmcnt(0)
        s_sub_u32 s42, s42, s100
        s_cmp_lt_u32 s42, 10000
        s_cbranch_scc1 Lspin
        """)
    A("Lk2_exit:")
    A("s_endpgm")

    NU = 7
    vAcc, vAn = 0, 56
    vLs = [vL + 8 * u for u in range(4)] + [84 + 8 * u for u in range(3)]
    vP, vErr, vQ, vCaddr, vUaddr = 245, 252, 253, 254, 255
    A("Lcold_code:")
    A("Lslow_entry:")
    A(f"s_cmp_ge_u32 s{sW}, 4")
    A("s_cbranch_scc1 Lg_rows")
    node_exponents()
    A("Lg_rows:")
    node_rows()
    wc_reads()
    A("s_waitcnt lgkmcnt(0)")
    wc_fragments()
    A(f"""
    s_waitcnt vmcnt(0) lgkmcnt(0)
    s_barrier
    v_lshlrev_b32 v{vX + 11}, 2, v{vTid}
    ds_write_b32 v{vX + 11}, v{vZero} offset:{L_CNT}
    s_mul_i32 s3, s{sW}, 528
    s_add_u32 s3, s3, {L_TA}
    v_add_u32 v{vX + 11}, s3, v{vLo}
    """)
    for u in range(NU):
        A(f"ds_read_b128 {vr(vAn + 4 * u, 4)}, v{vX + 11} offset:{8 * 528 * u}")
    A(f"s_mov_b32 s{sTmp}, {hex(f32(eps / 2))}")
    A(f"s_mov_b32 s{sTmp + 1}, {hex(f32(eps / 2))}")
    for i in range(0, 8 * NU, 2):
        A(f"v_mov_b64 {vr(vAcc + i, 2)}, {sr(sTmp, 2) if i & 4 else 0}")
    A(f"""
    v_bfe_u32 v{vX + 11}, v{vTid}, 3, 3
    v_and_b32 v{vX + 12}, 7, v{vTid}
    v_lshlrev_b32 v{vX + 12}, 2, v{vX + 12}
    v_lshl_add_u32 v{vX + 12}, v{vX + 11}, 8, v{vX + 12}
    s_lshl_b32 s3, s{sW}, 5
    v_add_u32 v{vCaddr}, s3, v{vX + 12}
    v_bfe_u32 v{vX + 11}, v{vTid}, 3, 2
    v_bfe_u32 v{vX + 12}, v{vTid}, 1, 1
    v_lshl_add_u32 v{vX + 11}, v{vX + 11}, 1, v{vX + 12}
    v_lshlrev_b32 v{vUaddr}, 5, v{vX + 11}
    Lbatch:
    """)
    batch_masks(16)
    A("Lround:")
    rec_addr()
    rec_loads()
    A(f"""
    v_mov_b32 v{vZero}, 0
    v_mov_b32 v{vOne}, 1
    ds_write_b32 v{vZero}, v{vZero} offset:{L_FLAG}
    ds_write_b32 v{vZero}, v{vZero} offset:{L_FLAG + 4}
    s_waitcnt lgkmcnt(0)
    s_barrier
    s_mov_b64 exec, {sr(sMore, 2)}
    ds_write_b32 v{vZero}, v{vOne} offset:{L_FLAG + 4}
    s_mov_b64 exec, -1
    s_waitcnt vmcnt(0)
    """)
    histogram(cand)
    for rec, key_, rank, so_, eo_, m in cand:
        A(f"v_lshrrev_b32 v{so_}, 18, v{rec}")
        A(f"v_bfe_u32 v{eo_}, v{rec}, 6, 12")
        A(f"v_lshlrev_b32 v{so_}, 9, v{so_}")
        A(f"v_lshl_add_u32 v{eo_}, v{eo_}, 5, v{vX + 2}")
    A("s_waitcnt lgkmcnt(0)")
    A("s_barrier")
    c, inc, deg, q, t0, t1 = vX + 12, vX + 13, vX + 14, vX + 15, vX + 16, vX + 17
    A(f"ds_read_b32 v{c}, v{vCaddr} offset:{L_CNT}")
    A(f"v_lshrrev_b32 v{t0}, 5, v{vCaddr}")
    A(f"v_lshlrev_b32 v{t0}, 6, v{t0}")
    A("s_waitcnt lgkmcnt(0)")
    A(f"ds_write_b32 v{vCaddr}, v{vZero} offset:{L_CNT}")
    A(f"v_mov_b32 v{inc}, v{c}")
    for d in (1, 2, 4, 8):
        A("s_nop 1")
        A(f"v_add_u32_dpp v{inc}, v{inc}, v{inc} row_shr:{d} row_mask:0xf bank_mask:0xf")
    A(f"""
    v_mov_b32 v{t1}, 0
    s_nop 0
    v_mov_b32_dpp v{deg}, v{inc} row_newbcast:7 row_mask:0xf bank_mask:0x3
    v_mov_b32_dpp v{t1}, v{inc} row_newbcast:7 row_mask:0xf bank_mask:0xc
    v_mov_b32_dpp v{deg}, v{inc} row_newbcast:15 row_mask:0xf bank_mask:0xc
    v_sub_u32 v{inc}, v{inc}, v{t1}
    v_sub_u32 v{deg}, v{deg}, v{t1}
    v_sub_u32 v{inc}, v{inc}, v{c}
    v_add_u32 v{inc}, v{inc}, v{t0}
    ds_write_b32 v{vCaddr}, v{inc} offset:{L_BASE}
    v_cmp_lt_u32 vcc, 64, v{deg}
    v_min_u32 v{deg}, 64, v{deg}
    v_add_u32 v{q}, 3, v{deg}
    v_lshrrev_b32 v{q}, 2, v{q}
    s_mov_b64 exec, vcc
    ds_write_b32 v{vZero}, v{vOne} offset:{L_FLAG}
    s_mov_b64 exec, -1
    ds_bpermute_b32 v{vQ}, v{vUaddr}, v{q}
    v_and_b32 v{c}, 7, v{vTid}
    v_add_u32 v{c}, v{c}, v{deg}
    v_lshlrev_b32 v{t1}, 2, v{q}
    v_cmp_lt_u32 vcc, v{c}, v{t1}
    v_add_lshl_u32 v{c}, v{c}, v{t0}, 2
    v_mov_b32 v{t0}, {TAB_BYTES}
    v_bfrev_b32 v{t1}, 2
    s_mov_b64 exec, vcc
    ds_write_b32 v{c}, v{t0} offset:{L_SO}
    ds_write_b32 v{c}, v{t1} offset:{L_EO}
    s_mov_b64 exec, -1
    v_max_u32_dpp v{q}, v{q}, v{q} row_ror:8 row_mask:0xf bank_mask:0xf
    s_nop 0
    v_readlane_b32 s{sT}, v{q}, 0
    v_readlane_b32 s3, v{q}, 16
    v_readlane_b32 s{sTmp}, v{q}, 32
    v_readlane_b32 s{sTmp + 1}, v{q}, 48
    s_waitcnt lgkmcnt(0)
    s_barrier
    ds_read_b64 {vr(vX + 12, 2)}, v{vZero} offset:{L_FLAG}
    """)
    for i in range(8):
        A(f"ds_read_b32 v{vKey + i}, v{vKey + i} offset:{L_BASE}")
    A(f"""
    s_max_u32 s{sT}, s{sT}, s3
    s_max_u32 s{sTmp}, s{sTmp}, s{sTmp + 1}
    s_max_u32 s{sT}, s{sT}, s{sTmp}
    s_waitcnt lgkmcnt(0)
    v_readfirstlane_b32 s{sOvf}, v{vX + 12}
    v_readfirstlane_b32 s{sMor}, v{vX + 13}
    """)
    for i in range(8):
        A(f"v_and_b32 v{vX + 12}, 63, v{vRec + i}")
        A(f"v_add_u32 v{vKey + i}, v{vKey + i}, v{vRank + i}")
        A(f"v_lshl_add_u32 v{vX + 12}, v{vX + 12}, 6, 64")
        A(f"v_cmp_lt_u32 vcc, v{vKey + i}, v{vX + 12}")
        A(f"v_lshlrev_b32 v{vKey + i}, 2, v{vKey + i}")
        A(f"s_and_b64 exec, vcc, {sr(sMask + 2 * i, 2)}")
        A(f"ds_write_b32 v{vKey + i}, v{vSoff + i} offset:{L_SO}")
        A(f"ds_write_b32 v{vKey + i}, v{vEoff + i} offset:{L_EO}")
        A(f"s_andn2_b64 {sr(sMask + 2 * i, 2)}, {sr(sMask + 2 * i, 2)}, vcc")
        A("s_mov_b64 exec, -1")
    A(f"""
    s_lshl_b32 s3, s{sW}, 8
    v_lshrrev_b32 v{vX + 12}, 1, v{vH16}
    v_add_u32 v{vP}, s3, v{vX + 12}
    v_and_b32 v{vX + 12}, 1, v{vTid}
    v_bfe_u32 v{vX + 13}, v{vTid}, 2, 1
    v_lshl_add_u32 v{vX + 12}, v{vX + 13}, 1, v{vX + 12}
    v_lshl_add_u32 v{vX + 12}, v{vX + 12}, 2, s3
    v_lshl_add_u32 v{vEp}, v{vUaddr}, 6, v{vX + 12}
    s_lshr_b32 s3, s{sT}, 1
    v_mov_b32 v{vErr}, s3
    s_mov_b64 {sr(sCur, 2)}, 0
    s_mov_b32 s{sTi}, 0
    """)
    for u in range(1, NU):
        A(f"v_mov_b32 v{vP + u}, v{vP}")
    A(f"""
    s_waitcnt lgkmcnt(0)
    s_barrier
    s_cmp_eq_u32 s{sT}, 0
    s_cbranch_scc1 Lg_done
    s_branch Lg_entry
    Lg_tile:
    s_waitcnt vmcnt({2 * NU})
    """)
    for j in range(4):
        A(mfma(j))
    A(f"""
    Lg_entry:
    v_add_u32 v{vErr}, v{vQ}, v{vErr}
    ds_read_b32 v{vEo}, v{vEp} offset:{L_EO}
    ds_read_b64 {vr(vSo, 2)}, v{vP} offset:{L_SO}
    v_cmp_le_u32_e64 {sr(sNext, 2)}, s{sT}, v{vErr}
    s_cmp_lt_u32 s{sTi}, s{sT}
    s_cselect_b64 {sr(sNext, 2)}, {sr(sNext, 2)}, 1
    s_mov_b64 exec, {sr(sNext, 2)}
    v_subrev_u32 v{vErr}, s{sT}, v{vErr}
    v_add_u32 v{vEp}, 16, v{vEp}
    s_waitcnt lgkmcnt(1)
    v_add_u32 v{vEo}, v{vEo}, v{vH16}
    buffer_load_dwordx4 {vr(vEA, 4)}, v{vEo}, {sr(S_EA, 4)}, 0 offen
    s_mov_b64 exec, -1
    """)
    for u in range(NU):
        bit = 8 * (u >> 1) + 2 * (u & 1) + 1
        so2 = vSo + 2 * (u & 1)
        La, Lb = vLs[u], vLs[u] + 4
        a, b = vT, vT + 4
        num, den = vAcc + 8 * u, vAcc + 8 * u + 4
        if u + 1 < NU:
            A(f"ds_read_b64 {vr(vSo + 2 * ((u + 1) & 1), 2)}, v{vP + u + 1} offset:{L_SO + 2048 * (u + 1)}")
        A(f"s_bitcmp1_b32 s{sCur}, {bit}")
        A(f"s_cbranch_scc0 Lg_skip{u}")
        A(f"s_waitcnt vmcnt({2 * NU - 1})")
        for j in range(4):
            A(f"v_fma_mix_f32 v{a + j}, v{vD + 16 * j + 2 * u}, s{sNl}, v{La + j} op_sel_hi:[0,0,1]")
        for j in range(4):
            A(f"v_fma_mix_f32 v{b + j}, v{vD + 16 * j + 2 * u + 1}, s{sNl}, v{Lb + j} op_sel_hi:[0,0,1]")
        for j in range(0, 8, 2):
            A(f"v_pk_add_f32 {vr(a + j, 2)}, {vr(a + j, 2)}, {vr(vAn + 4 * u + (j & 3), 2)}")
        for j in range(8):
            A(f"v_exp_f32_e64 v{a + j}, v{a + j} clamp")
        for j in range(0, 8, 2):
            A(f"v_pk_add_f32 {vr(a + j, 2)}, {vr(a + j, 2)}, {sr(sC0, 2)}")
        for j in (0, 2):
            A(f"v_pk_mul_f32 {vr(La + j, 2)}, {vr(La + j, 2)}, {vr(b + j, 2)}")
        for j in (0, 2):
            A(f"v_pk_fma_f32 {vr(La + j, 2)}, {vr(Lb + j, 2)}, {vr(a + j, 2)}, {vr(La + j, 2)}")
        for j in (0, 2):
            A(f"v_pk_add_f32 {vr(Lb + j, 2)}, {vr(a + j, 2)}, {vr(b + j, 2)}")
        for j in (0, 2):
            A(f"v_pk_mul_f32 {vr(a + j, 2)}, {vr(a + j, 2)}, {vr(b + j, 2)}")
        for j in range(4):
            A(f"v_rcp_f32 v{a + j}, v{a + j}")
        for j in (0, 2):
            A(f"v_pk_fma_f32 {vr(num + j, 2)}, {vr(La + j, 2)}, {vr(a + j, 2)}, {vr(num + j, 2)}")
            A(f"v_pk_fma_f32 {vr(den + j, 2)}, {vr(Lb + j, 2)}, {vr(a + j, 2)}, {vr(den + j, 2)}")
        A(f"Lg_skip{u}:")
        A(f"s_bitcmp1_b32 s{sNext}, {bit}")
        A("s_cselect_b64 exec, -1, 1")
        A(f"s_cselect_b32 s{sInc}, 16, 0")
        A(f"s_waitcnt lgkmcnt({1 if u + 1 < NU else 0})")
        A(f"v_add_u32 v{so2}, v{so2}, v{vLo}")
        A(f"v_add_u32 v{so2 + 1}, v{so2 + 1}, v{vLo}")
        A(f"buffer_load_dwordx4 {vr(La, 4)}, v{so2}, {sr(S_TAB, 4)}, 0 offen {tab_pol}")
        A(f"buffer_load_dwordx4 {vr(Lb, 4)}, v{so2 + 1}, {sr(S_TAB, 4)}, 0 offen {tab_pol}")
        A("s_mov_b64 exec, -1")
        A(f"v_add_u32 v{vP + u}, s{sInc}, v{vP + u}")
    A(f"""
    s_mov_b64 {sr(sCur, 2)}, {sr(sNext, 2)}
    s_add_u32 s{sTi}, s{sTi}, 1
    s_cmp_le_u32 s{sTi}, s{sT}
    s_cbranch_scc1 Lg_tile
    Lg_done:
    s_waitcnt vmcnt(0)
    s_cmp_lg_u32 s{sOvf}, 0
    s_cbranch_scc1 Lround
    s_add_u32 s{sW0}, s{sW0}, 16
    s_cmp_lg_u32 s{sMor}, 0
    s_cbranch_scc1 Lbatch
    s_mul_i32 s3, s{sW}, 528
    s_add_u32 s3, s3, {L_TU}
    v_mul_u32_u24 v{vA2}, {33 * 8}, v{vH16}
    v_add3_u32 v{vA2}, v{vA2}, v{vLo}, s3
    s_mul_i32 s3, s{sW}, 272
    s_add_u32 s3, s3, {L_X}
    v_mul_u32_u24 v{vA3}, {17 * 8}, v{vH16}
    v_lshrrev_b32 v{vLo + 1}, 1, v{vLo}
    v_add3_u32 v{vA3}, v{vA3}, v{vLo + 1}, s3
    """)
    for pr in range(4):
        A(f"ds_read_b128 {vr(vU + 4 * pr, 4)}, v{vA2} offset:{16 * 528 * pr}")
        A(f"ds_read_b64 {vr(vXr + 2 * pr, 2)}, v{vA3} offset:{16 * 272 * pr}")
    A(f"""
    v_lshl_add_u32 v{vA2}, v{vH16}, 7, v{vLo + 1}
    s_add_u32 s{sQ1}, s{sN0}, s{sW}
    s_lshl_b32 s{sQ1}, s{sQ1}, 8
    s_waitcnt lgkmcnt(0)
    """)
    for pr in range(4):
        if pr == 3:
            A(f"s_add_u32 s3, s{sW}, 48")
            A(f"s_cmp_ge_u32 s3, s{sNn}")
            A("s_cbranch_scc1 Lk2_done")
        finalize(vAcc + 16 * pr, 4, vAcc + 16 * pr + 8, vU + 4 * pr, vXr + 2 * pr, vA2, sQ1,
                 "s_mov_b32 exec_hi, 0" if pr == 3 else "s_nop 0")
        A(f"s_add_u32 s{sQ1}, s{sQ1}, 4096")
    A("s_branch Lk2_done")
    return L_END


def gen_report(A, opt):
    kind, team, idx = opt["report"].split(",")
    idx, _, ref = idx.partition("-")
    idx = int(idx)
    A("report_kernel:")
    A("s_cmp_ge_u32 s2, 1")
    A("s_cbranch_scc1 Lr_exit")
    load_kernargs(A)
    A("s_waitcnt lgkmcnt(0)")
    srd(A, 28, P_WS, 0x80000, STAMP_OFF + 0x20000)

    def reduce(op, base, dst, tag, sub):
        A("v_lshrrev_b32 v1, 2, v0")
        A("v_and_b32 v2, 3, v0")
        A("v_lshlrev_b32 v1, 9, v1")
        A("v_lshl_add_u32 v1, v2, 6, v1")
        A(f"v_mov_b32 v3, {'-1' if op == 'min' else '0'}")
        A("s_mov_b32 s44, 0")
        A(f"Lr_{tag}:")
        A(f"buffer_load_dword v2, v1, s[28:31], s44 offen offset:{base}")
        A("s_waitcnt vmcnt(0)")
        if sub:
            A("v_subrev_u32 v2, s40, v2")
        A(f"v_{op}_u32 v3, v3, v2")
        A("s_add_u32 s44, s44, 8192")
        A("s_cmp_lt_u32 s44, 131072")
        A(f"s_cbranch_scc1 Lr_{tag}")
        A(f"v_readlane_b32 s{dst}, v3, 0")
        for l in range(1, 64):
            A(f"v_readlane_b32 s3, v3, {l}")
            A("s_nop 0")
            A(f"s_{op}_u32 s{dst}, s{dst}, s3")

    reduce("min", 0, 40, "a", False)
    if kind == "rng":
        reduce("max", 8 * idx, 41, "b", False)
        reduce("min", 8 * idx, 45, "c", False)
        A("s_sub_u32 s41, s41, s45")
    else:
        reduce(kind, 8 * idx + (256 if team == "t" else 0), 41, "b", True)
    if ref:
        reduce(kind, 8 * int(ref) + (256 if team == "t" else 0), 45, "c", True)
        A("s_sub_u32 s41, s41, s45")
    sc = int(opt.get("rs", 2))
    A(f"s_lshr_b32 s41, s41, {10 - sc}" if kind == "add" else f"s_lshl_b32 s41, s41, {sc}")
    A("s_min_u32 s41, s41, 30000")
    A("s_add_u32 s41, s41, 10000")
    A("Lr_spin:")
    A("s_memrealtime s[42:43]")
    A("s_waitcnt lgkmcnt(0)")
    A("s_sub_u32 s42, s42, s40")
    A("s_cmp_lt_u32 s42, s41")
    A("s_cbranch_scc1 Lr_spin")
    A("Lr_exit:")
    A("s_endpgm")


def descriptor(name, vgpr, extra=""):
    return f""".amdhsa_kernel {name}
  .amdhsa_next_free_vgpr {vgpr}
  .amdhsa_next_free_sgpr 102
  .amdhsa_accum_offset {(vgpr + 3) // 4 * 4}
  .amdhsa_group_segment_fixed_size 0
  .amdhsa_kernarg_size 96
  .amdhsa_user_sgpr_count 2
  .amdhsa_user_sgpr_kernarg_segment_ptr 1
  .amdhsa_system_sgpr_workgroup_id_x 1
{extra}.end_amdhsa_kernel
"""


def generate(opt):
    A = Asm()
    lds = gen_k2(A, opt)
    lst = f"kernel={NAME}_kernel " if opt.get("report") else ""
    text = (f"""; GatedGCN layer in one launch of 256 co-resident workgroups (one per CU).
; Workgroup g owns chunk g of the edges (1568) and one bucket of 48 or 49 destination nodes.
;  1. counting sort of the chunk by destination bucket -> records in d_ws, published by tagged offset words
;  2. x @ w_b, x @ w_v of the bucket's rows -> gather table in d_ws (low half: f16 of -log2(e) * B, high half: V),
;     published by a tagged word; x @ w_a and x + x @ w_u stay in LDS
;  3. the bucket's records are sorted by (node, source range), padded to groups of four edges and split evenly
;     over the eight waves; every wave walks its groups in source order
;  4. per group: gate exponent from MFMA(e_attr, w_c) and the gathered row, sigmoid of two edges with one reciprocal,
;     numerator and denominator sums in indexed registers; out = max(x + x @ w_u + num / (den + 1e-6), x)
; The tag is published in d_debug by workgroup 0; it also picks one of sixteen places in d_ws for the table.
; Inputs outside the limits of the fast path (degree distribution, |x @ w_a| > 52) take the general path at the end.
; @launch {lst}grid=(256,1,1) block=(512,1,1) lds={lds}
.amdgcn_target "amdgcn-amd-amdhsa--gfx950"
.text
.globl {NAME}_kernel
.p2align 8
.type {NAME}_kernel,@function
""" + A.text() + ".section .rodata,\"a\"\n.p2align 6\n"
            + descriptor(f"{NAME}_kernel", 256, "  .amdhsa_fp16_overflow 1\n"))
    if opt.get("report"):
        R = Asm()
        gen_report(R, opt)
        text = text.replace(".amdgcn_target", "; @launch kernel=report_kernel grid=(1,1,1) block=(64,1,1) lds=0\n.amdgcn_target")
        text = text.replace(".section .rodata", ".globl report_kernel\n.p2align 8\n.type report_kernel,@function\n" + R.text() + ".section .rodata")
        text += ".p2align 6\n" + descriptor("report_kernel", 8)
    return text


if __name__ == "__main__":
    out = sys.argv[1] if len(sys.argv) > 1 else f"cdna_kernels/{NAME}.s"
    opt = dict(a.split("=", 1) for a in sys.argv[2:])
    opt = {k: v.replace("+", " ") for k, v in opt.items()}
    open(out, "w").write(generate(opt))
```

```python
import math
import struct
import sys

NAME = "gather_scatter__edge_featured_mpnn_gatedgcn__graph"
N, E = 12500, 400000
BM, BS, SM, SC, SS = 171799, 23, 799999, 16330, 14
CH = 1568
NCH = 256
TAB_OFF = 0x1000
REC_OFF = 0xE00000
OFF_OFF = 0x1000000
SPIN_MAX = 20000
STAMP_OFF = 0x2000000
TAB_BYTES = N * 512
KSH = 48
AMAX = 52.0
NLOG2E = -math.log2(math.e)


def f32(x):
    return struct.unpack("<I", struct.pack("<f", x))[0]


class Asm:
    def __init__(self):
        self.lines = []

    def __call__(self, s):
        for ln in s.strip("\n").split("\n"):
            ln = ln.strip()
            if not ln:
                continue
            self.lines.append(ln if ln.endswith(":") else "    " + ln)

    def note(self, s):
        self.lines += ["; " + ln.strip() for ln in s.strip().split("\n")]

    def text(self):
        return "\n".join(self.lines) + "\n"


def vr(a, n=1):
    return f"v{a}" if n == 1 else f"v[{a}:{a + n - 1}]"


def sr(a, n=1):
    return f"s{a}" if n == 1 else f"s[{a}:{a + n - 1}]"


def srd(A, d, base, nbytes, off=0):
    if off:
        A(f"s_add_u32 s{d}, s{base}, {hex(off)}")
        A(f"s_addc_u32 s{d + 1}, s{base + 1}, 0")
    else:
        A(f"s_mov_b64 {sr(d, 2)}, {sr(base, 2)}")
    A(f"s_mov_b32 s{d + 2}, {hex(nbytes)}")
    A(f"s_mov_b32 s{d + 3}, 0x20000")


P_X, P_EA, P_SRC, P_DST, P_WA, P_WB, P_WC, P_WU = 4, 6, 8, 10, 12, 14, 16, 18
P_WV, P_OUT, P_DBG, P_WS = 20, 22, 24, 26


def load_kernargs(A):
    A("s_load_dwordx16 s[4:19], s[0:1], 0")
    A("s_load_dwordx8 s[20:27], s[0:1], 64")


STAMP_BASE = [2]


def stamp_reg(i):
    return 100 if i == 0 else STAMP_BASE[0] + 2 * i


def stamp(A, opt, i):
    if not opt.get("stamp"):
        return
    if isinstance(i, str):
        names = opt["stamp"].split(",")
        if i not in names:
            return
        i = names.index(i) + 1
    A(f"{'s_memtime' if opt.get('cyc') else 's_memrealtime'} s[{stamp_reg(i)}:{stamp_reg(i) + 1}]")


def stamp_flush(A, opt, n, base, vtid):
    if not opt.get("stamp"):
        return
    A("s_mov_b64 exec, -1")
    A("s_waitcnt vmcnt(0)")
    stamp(A, opt, n - 1)
    srd(A, 20, P_WS, 0x80000, STAMP_OFF + base)
    A(f"v_lshrrev_b32 v1, 6, v{vtid}")
    A("s_lshl_b32 s3, s2, 3")
    A("v_add_u32 v1, s3, v1")
    A(f"v_mul_u32_u24 v1, {8 * n}, v1")
    A("s_mov_b64 exec, 1")
    A("s_waitcnt lgkmcnt(0)")
    for i in range(n):
        r = stamp_reg(i)
        A(f"v_mov_b32 v2, s{r}")
        A(f"v_mov_b32 v3, s{r + 1}")
        A(f"buffer_store_dwordx2 v[2:3], v1, s[20:23], 0 offen offset:{8 * i}")
        A("s_nop 1")


WAVE_SCAN = ("row_shr:1 row_mask:0xf", "row_shr:2 row_mask:0xf", "row_shr:4 row_mask:0xf",
             "row_shr:8 row_mask:0xf", "row_bcast:15 row_mask:0xa", "row_bcast:31 row_mask:0xc")


def wave_scan(A, v, first_nop=1, fill=()):
    for k, d in enumerate(WAVE_SCAN):
        if k < len(fill):
            A("\n".join(fill[k]))
        elif k or first_nop:
            A("s_nop 1")
        A(f"v_add_u32_dpp v{v}, v{v}, v{v} {d} bank_mask:0xf")


def gen_k2(A, opt):
    global TAB_OFF, REC_OFF, OFF_OFF
    wsb = int(opt.get("wsb", 0)) << 20
    TAB_OFF, REC_OFF, OFF_OFF = TAB_OFF + wsb, REC_OFF + wsb, OFF_OFF + wsb
    STAMP_BASE[0] = 2
    ea_pol = opt.get("ea_load", "")
    tab_pol = opt.get("tab_load", "sc1")
    pf_lanes = int(opt.get("pf", 0))
    poll_at = int(opt.get("poll_at", 0))
    ld = [int(x) for x in opt.get("ld", "6,11,16").split(",")]
    KM = int(opt.get("km", 5))
    TS = int(opt.get("ts", 3))
    OB = int(opt.get("ob", 8))
    S_TAB, S_EA, S_REC, S_OFFS, S_TW, S_X, S_OUT = 28, 32, 36, 40, 44, 48, 52
    sW, sBk, sN0, sW0, sT, sTi, sInc, sNl = 56, 57, 58, 59, 60, 61, 62, 63
    sC0, sCur, sNext, sMore, sTmp, sNon = 64, 66, 68, 70, 72, 74
    sMask = 76
    sMask2 = 18
    S_DST, S_SRC, S_W, S_W2, S_WC, S_DBG = 76, 80, 84, 88, 76, 80
    sOvf, sMor, sQ1, sQ2, sQ3, sLw, sF0, sOwn = 92, 93, 94, 95, 96, 97, 98, 99
    sRem, sSW, sSl0, sSl1, sLn, sPM = sT, sInc, sCur, sCur + 1, sNext, sCur
    sNn = 0
    tid = int(opt.get("tid", 0))
    S_TG = S_TW if tid else S_TAB
    sWo, sWm = sOvf, sLw
    L_CNT, L_BASE, L_FLAG, P_CNT, P_BASE, P_SORT = 0, 2048, 4096, 4352, 5376, 6400
    L_R2 = 12800
    L_SO = L_R2
    L_EO = L_SO + 25600
    L_STR = L_R2 + 16896
    STRW = 2560
    L_WCR = L_R2 + 65536
    L_X = L_WCR + 4096
    L_R1 = (L_X + 52 * 272 + 255) // 256 * 256
    L_TA = L_R1 + 528
    L_TU = L_TA + 52 * 528
    L_END = L_R1 + 65536
    TF_OFF = NCH * 2048
    NS = 9
    vSl, vD, vL, vWC, vEA, vT, vSo, vLo = 0, 108, 172, 204, 220, 224, 232, 236
    vSp, vEp, vEo, vH16, vSb, vTid, vOffs = 238, 239, 240, 241, 242, 243, 244
    vWf, vG, vXf, vXs, vNon, vTf = 0, 32, vL, 96, 104, 106
    vEn, vEb, vEad, vS2 = 104, 246, 247, 248
    Lbuf = [vL + 8 * u for u in range(4)] + [72 + 8 * u for u in range(4)]
    vRec, vKey, vRank, vSoff, vEoff, vX = vD, vD + 8, vD + 16, vD + 24, vD + 32, vD + 40
    cand = [(vRec + i, vKey + i, vRank + i, vSoff + i, vEoff + i, sMask + 2 * i) for i in range(8)]
    cand2 = [(vEA + i, vT + i, vT + 4 + i, None, None, sMask2 + 2 * i) for i in range(4)]
    c0 = 2.0 ** -KSH
    vZero, vOne, vXw, vXrd, vTw, vInv = vX + 5, vX + 6, vX + 7, vX + 8, vX + 9, vX + 10
    vDa, vBx, vBt, vBs, vAt, vPa, vE = vX + 12, vX + 14, vX + 15, vX + 17, vX + 18, vX + 19, vX + 20
    vSw, vSr = vX + 16, vD + 39
    pD, pS, pA, pR, pC, pB, pG = vD, vD + 4, vD + 8, vD + 12, vD + 16, vD + 20, vD + 24
    vm = []

    def younger(name):
        return len(vm) - 1 - max(i for i, x in enumerate(vm) if x == name)

    def dma_piece(S, soff, i):
        A(f"buffer_load_dwordx4 v{vDa + ((i >> 1) & 1)}, {sr(S, 4)}, s{soff} offen offset:{1024 * (i & 3)} {opt.get('w_pol', '')} lds")

    def loader(lo, hi):
        for g in range(lo, hi):
            A(f"s_mov_b32 m0, {L_R1 + 4096 * g}")
            A(f"s_movk_i32 s3, {4096 * (g & 7)}")
            if g == 8:
                A(f"s_mov_b64 {sr(S_W, 2)}, {sr(P_WV, 2)}")
            for i in range(4):
                dma_piece(S_W, 3, i)

    A(f"{NAME}_kernel:")
    A("s_cmp_ge_u32 s2, 256")
    A("s_cbranch_scc1 Lk2_exit")
    stamp(A, opt, 0)
    load_kernargs(A)
    A(f"""
    s_memrealtime {sr(sNon, 2)}
    s_getpc_b64 s[{sTmp}:{sTmp + 1}]
    """)
    cpf_mode = int(opt.get("cpf", 8))
    if cpf_mode:
        A(f"""
        s_lshr_b32 s3, s2, 3
        s_and_b32 s3, s3, {128 // cpf_mode - 1}
        v_subrev_u32 v1, {512 - cpf_mode}, v0
        v_cmp_gt_u32 vcc, {cpf_mode}, v1
        v_mul_u32_u24 v1, {128 // cpf_mode}, v1
        v_add_lshl_u32 v1, v1, s3, 7
        """)
    else:
        A(f"""
        v_lshlrev_b32 v1, 7, v0
        v_cmp_gt_u32 vcc, Lcold_code - {NAME}_kernel, v1
        """)
    A(f"""
    s_and_saveexec_b64 {sr(sNext, 2)}, vcc
    s_cbranch_execz Lno_cpf
    global_load_dword v2, v1, s[{sTmp}:{sTmp + 1}] {opt.get('cpf_pol', '')}
    Lno_cpf:
    s_mov_b64 exec, -1
    v_mov_b32 v{vZero}, 0
    v_lshlrev_b32 v{vX + 11}, 2, v0
    ds_write_b32 v{vX + 11}, v{vZero} offset:{L_FLAG}
    ds_write_b32 v{vX + 11}, v{vZero} offset:{L_CNT}
    v_lshrrev_b32 v{vX}, 6, v0
    v_lshlrev_b32 v{vX + 2}, 4, v0
    v_readfirstlane_b32 s{sW}, v{vX}
    s_movk_i32 s3, {CH // 4}
    s_cmp_eq_u32 s2, {NCH - 1}
    s_cselect_b32 s3, {(E - (NCH - 1) * CH) // 4}, s3
    v_cmp_gt_u32_e64 {sr(sPM, 2)}, s3, v0
    s_mul_i32 s{sQ1}, s2, {CH * 4}
    s_mov_b32 s{S_DST + 2}, {E * 4}
    s_mov_b32 s{S_DST + 3}, 0x20000
    s_mov_b32 s{S_SRC + 2}, {E * 4}
    s_mov_b32 s{S_SRC + 3}, 0x20000
    s_and_b32 s3, s2, 7
    s_lshl_b32 s3, s3, {KM}
    s_bfe_u32 s{sBk}, s2, {hex(KM << 16 | 3)}
    s_add_u32 s{sBk}, s{sBk}, s3
    {f's_andn2_b32 s3, s2, {(8 << KM) - 1}' if KM < 5 else ''}
    {f's_add_u32 s{sBk}, s{sBk}, s3' if KM < 5 else ''}
    s_mul_i32 s{sN0}, s{sBk}, {SM}
    s_add_u32 s{sOwn}, s{sN0}, {SM + SC}
    s_add_u32 s{sN0}, s{sN0}, {SC}
    s_lshr_b32 s{sOwn}, s{sOwn}, {SS}
    s_lshr_b32 s{sN0}, s{sN0}, {SS}
    v_mov_b32 v{vTid}, v0
    v_and_b32 v{vX + 3}, 0x3f0, v{vX + 2}
    v_bfe_u32 v{vX + 1}, v0, 4, 2
    v_lshlrev_b32 v{vX + 4}, 6, v{vX + 1}
    v_xor_b32 v{vDa}, v{vX + 3}, v{vX + 4}
    v_xor_b32 v{vDa + 1}, 32, v{vDa}
    s_lshl_b32 s{sWm}, s{sW}, 13
    s_add_u32 s{sWm + 1}, s{sWm}, 4096
    s_and_b32 s{sWo}, s{sWm}, 0x7fff
    s_add_u32 s{sWo + 1}, s{sWo}, 4096
    s_lshl_b32 s{sTmp}, s{sN0}, 8
    s_add_u32 s{sTmp + 1}, s{sTmp}, 8192
    s_mov_b64 exec, {sr(sPM, 2)}
    s_waitcnt lgkmcnt(0)
    s_cbranch_execz Lp_nold
    s_mov_b64 {sr(S_DST, 2)}, {sr(P_DST, 2)}
    s_mov_b64 {sr(S_SRC, 2)}, {sr(P_SRC, 2)}
    buffer_load_dwordx4 {vr(pD, 4)}, v{vX + 2}, {sr(S_DST, 4)}, s{sQ1} offen {opt.get("idx_pol", "nt")}
    buffer_load_dwordx4 {vr(pS, 4)}, v{vX + 2}, {sr(S_SRC, 4)}, s{sQ1} offen {opt.get("idx_pol", "nt")}
    Lp_nold:
    """)
    if int(opt.get("wpf", 1)):
        A(f"""
        s_cmp_lg_u32 s{sW}, 7
        s_cbranch_scc1 Lno_wpf
        s_mov_b64 exec, 0xff
        s_lshr_b32 s3, s2, 3
        s_lshl_b32 s3, s3, 10
        v_lshl_add_u32 v1, v{vX + 3}, 3, s3
        global_load_dword v3, v1, {sr(P_WB, 2)} {opt.get('wpf_pol', '')}
        global_load_dword v4, v1, {sr(P_WV, 2)} {opt.get('wpf_pol', '')}
        global_load_dword v5, v1, {sr(P_WA, 2)} {opt.get('wpf_pol', '')}
        global_load_dword v6, v1, {sr(P_WU, 2)} {opt.get('wpf_pol', '')}
        Lno_wpf:
        """)
    A("s_mov_b64 exec, -1")
    A("s_barrier")
    vm.append("dst")
    srd(A, S_DBG, P_DBG, 256)
    A(f"""
    s_xor_b32 s3, s{sW}, 7
    s_or_b32 s3, s3, s2
    s_cbranch_scc1 Lno_nonce
    s_or_b32 s3, s{sNon}, 1
    v_mov_b32 v{vNon}, s3
    v_mov_b32 v{vNon + 1}, s{sNon + 1}
    s_mov_b64 exec, 1
    buffer_store_dwordx2 {vr(vNon, 2)}, v{vZero}, {sr(S_DBG, 4)}, 0 offen sc1
    """)
    if opt.get("ptrs"):
        for i, p in enumerate((P_WS, P_WS + 1, P_OUT, P_EA, P_X, P_SRC, P_DST, P_WB, P_DBG, 0, P_EA + 1)):
            A(f"v_mov_b32 v1, s{p}")
            A(f"buffer_store_dword v1, v{vZero}, {sr(S_DBG, 4)}, 0 offen offset:{8 + 4 * i}")
    A(f"""
    s_mov_b64 exec, -1
    Lno_nonce:
    """)
    A(f"""
    s_mov_b64 {sr(S_X, 2)}, {sr(P_X, 2)}
    s_lshl_b32 s{S_X + 2}, s{sOwn}, 8
    s_mov_b32 s{S_X + 3}, 0x20000
    s_sub_u32 s{sNn}, s{sOwn}, s{sN0}
    """)
    for i in range(2):
        A(f"buffer_load_dwordx4 {vr(vXs + 4 * i, 4)}, v{vX + 2}, {sr(S_X, 4)}, s{sTmp + i} offen {opt.get('x_pol', 'nt')}")
        vm.append("x")
    A(f"""
    s_cmp_lt_u32 s{sW}, 4
    s_cselect_b32 s{S_W}, s{P_WB}, s{P_WV}
    s_cselect_b32 s{S_W + 1}, s{P_WB + 1}, s{P_WV + 1}
    s_cselect_b32 s{S_W2}, s{P_WA}, s{P_WU}
    s_cselect_b32 s{S_W2 + 1}, s{P_WA + 1}, s{P_WU + 1}
    s_mov_b32 s{S_W + 2}, 32768
    s_mov_b32 s{S_W + 3}, 0x20000
    s_mov_b32 s{S_W2 + 2}, 32768
    s_mov_b32 s{S_W2 + 3}, 0x20000
    """)
    npf0 = 0
    A(f"s_cmp_lg_u32 s{sW}, 7")
    A("s_cbranch_scc1 Lno_ld0")
    A(f"s_mov_b64 {sr(S_W, 2)}, {sr(P_WB, 2)}")
    loader(0, 2)
    A("Lno_ld0:")
    srd(A, S_WC, P_WC, 4096)
    srd(A, S_REC, P_WS, NCH * CH * 4, REC_OFF)
    srd(A, S_OFFS, P_WS, TF_OFF + (256 << TS), OFF_OFF)
    srd(A, S_TAB, P_WS, TAB_BYTES + 512, TAB_OFF)
    srd(A, S_EA, P_EA, E * 32 * int(opt.get("eafrac", 100)) // 100)
    srd(A, S_OUT, P_OUT, N * 256)
    pt = int(opt.get("ptouch", 0))
    if pt:
        A(f"""
        s_cmp_lg_u32 s{sW}, 7
        s_cbranch_scc1 Lno_touch
        v_lshlrev_b32 v1, {pt - 4}, v{vX + 3}
        """)
        for i, S in enumerate((S_TAB, S_REC, S_OFFS, S_EA, S_OUT)):
            A(f"buffer_load_dword v{7 + i}, v1, {sr(S, 4)}, 0 offen sc1")
        A("Lno_touch:")
    A(f"""
    s_lshl_b32 s3, s{sN0}, 9
    s_add_u32 s{S_TW}, s{S_TAB}, s3
    s_addc_u32 s{S_TW + 1}, s{S_TAB + 1}, 0
    s_lshl_b32 s{S_TW + 2}, s{sNn}, 9
    s_mov_b32 s{S_TW + 3}, 0x20000
    s_mov_b32 s{sNl}, {hex(f32(NLOG2E))}
    s_mov_b32 s{sC0}, {hex(f32(c0))}
    s_mov_b32 s{sC0 + 1}, {hex(f32(c0))}
    s_mov_b32 s{sW0}, 0
    s_mov_b32 s{sQ2}, {BM}
    s_mov_b32 s{sQ3}, {-SM}
    v_mov_b32 v{vOne}, 1
    v_lshrrev_b32 v{vX + 11}, 4, v{vTid}
    v_lshl_add_u32 v{vXw}, v{vX + 11}, 4, v{vX + 2}
    v_add_u32 v{vXw}, {L_X}, v{vXw}
    v_and_b32 v{vLo}, 0x1f0, v{vX + 2}
    v_bfe_u32 v{vX + 4}, v{vTid}, 5, 1
    v_mov_b32 v{vLo + 1}, v{vLo}
    v_lshlrev_b32 v{vH16}, 4, v{vX + 4}
    s_lshr_b32 s{sTmp}, s{sW}, 2
    s_and_b32 s{sTmp + 1}, s{sW}, 3
    v_bfe_u32 v{vX + 11}, v{vTid}, 2, 2
    v_xor_b32 v{vE}, s{sTmp + 1}, v{vX + 11}
    v_lshlrev_b32 v{vE}, 6, v{vE}
    v_and_b32 v{vE + 1}, 3, v{vTid}
    v_lshl_add_u32 v{vE}, v{vE + 1}, 3, v{vE}
    v_lshl_add_u32 v{vE}, v{vX + 11}, 8, v{vE}
    v_and_b32 v{vE + 1}, 1, v{vX + 1}
    v_xor_b32 v{vE + 1}, v{vE + 1}, v{vX + 4}
    v_lshl_add_u32 v{vE}, v{vE + 1}, 5, v{vE}
    v_lshl_add_u32 v{vE}, v{vX + 4}, 11, v{vE}
    v_add_u32 v{vBt}, {L_R1}, v{vE}
    s_lshl_b32 s3, s{sTmp}, 15
    s_add_u32 s3, s3, {L_R2}
    v_add_u32 v{vAt}, s3, v{vE}
    v_and_b32 v{vX + 11}, 31, v{vTid}
    v_mul_u32_u24 v{vXrd}, 272, v{vX + 11}
    s_mov_b32 s3, {L_X}
    v_add3_u32 v{vXrd}, v{vXrd}, v{vH16}, s3
    s_mul_i32 s3, s{sTmp}, {32 * 272}
    v_add_u32 v{vBx}, s3, v{vXrd}
    s_mul_i32 s3, s{sW}, 4608
    s_add_u32 s3, s3, {L_R1}
    v_mul_u32_u24 v{vSw}, 144, v{vX + 11}
    v_add3_u32 v{vSw}, v{vSw}, v{vH16}, s3
    v_bfe_u32 v{vE}, v{vTid}, 3, 3
    v_lshl_add_u32 v{vSr}, v{vE}, 4, v{vX + 3}
    v_add_u32 v{vSr}, s3, v{vSr}
    v_and_b32 v{vE + 1}, 0x70, v{vX + 3}
    v_lshl_add_u32 v{vBs}, v{vE}, 9, v{vE + 1}
    s_lshl_b32 s3, s{sTmp}, 7
    s_add_u32 s3, s3, s{sTmp + 1}
    s_lshl_b32 s3, s3, 7
    v_add_u32 v{vBs}, s3, v{vBs}
    v_mul_u32_u24 v{vTw}, 528, v{vX + 11}
    s_mul_i32 s3, s{sTmp}, {L_TU - L_TA}
    s_lshl_b32 s{sTmp + 1}, s{sTmp + 1}, 7
    s_add_u32 s3, s3, s{sTmp + 1}
    s_add_u32 s3, s3, {L_TA}
    v_add3_u32 v{vTw}, v{vTw}, v{vH16}, s3
    v_lshrrev_b32 v{vPa}, 1, v{vTid}
    v_lshlrev_b32 v{vPa}, {3 + OB}, v{vPa}
    v_lshlrev_b32 v{vE}, 8, v{vTid}
    v_add_u32 v{vE + 1}, 64, v{vE}
    v_add_u32 v{vE + 2}, 0x80, v{vE}
    v_add_u32 v{vE + 3}, 0xc0, v{vE}
    """)
    stamp(A, opt, "iss")

    def stage_x(wait):
        A(f"s_waitcnt vmcnt({wait})")
        A(f"ds_write_b128 v{vXw}, {vr(vXs, 4)}")
        A(f"s_cmp_lt_u32 s{sW}, 5")
        A("s_cselect_b64 exec, -1, 0")
        A(f"ds_write_b128 v{vXw}, {vr(vXs + 4, 4)} offset:{32 * 272}")
        A("s_mov_b64 exec, -1")

    nonce_load = f"buffer_load_dwordx2 {vr(vNon, 2)}, v{vZero}, {sr(S_DBG, 4)}, 0 offen sc1"
    A(f"""
    s_cmp_eq_u32 s{sW}, 7
    s_cbranch_scc1 Lp_loader
    s_mov_b64 exec, {sr(sPM, 2)}
    s_waitcnt vmcnt({2 + npf0})
    """)
    stamp(A, opt, "dst")
    for i in range(4):
        A(f"v_mul_u32_u24 v{pC + i}, s{sQ2}, v{pD + i}")
    for i in range(4):
        A(f"v_lshrrev_b32 v{pC + i}, {BS}, v{pC + i}")
        A(f"v_lshlrev_b32 v{pA + i}, 2, v{pC + i}")
        A(f"ds_add_rtn_u32 v{pR + i}, v{pA + i}, v{vOne} offset:{P_CNT}")
    for i in range(4):
        A(f"v_lshl_add_u32 v{pD + i}, v{pD + i}, {SS}, {(1 << SS) - 1 - SC}")
        A(f"v_mad_i32_i24 v{pD + i}, v{pC + i}, s{sQ3}, v{pD + i}")
    A("s_mov_b64 exec, -1")
    A(f"s_cmp_eq_u32 s{sW}, 3")
    A("s_waitcnt lgkmcnt(0)")
    A("s_barrier")
    stamp(A, opt, "b2")
    A(f"""
    s_cbranch_scc0 Lp_noscan
    ds_read_b128 {vr(pC, 4)}, v{vX + 3} offset:{P_CNT}
    s_waitcnt lgkmcnt(0)
    v_add_u32 v{pB + 2}, v{pC}, v{pC + 1}
    v_add3_u32 v{pG + 1}, v{pB + 2}, v{pC + 2}, v{pC + 3}
    v_add_u32 v{pB + 3}, v{pB + 2}, v{pC + 2}
    v_mov_b32 v{pG}, v{pG + 1}
    """)
    ors = []
    for i in range(4):
        ors += [f"v_lshl_or_b32 v{pS + i}, v{pS + i}, 18, v{vE + i}", f"v_lshrrev_b32 v{pD + i}, {SS}, v{pD + i}",
                f"v_or_b32 v{pS + i}, v{pS + i}, v{pD + i}"]
    wave_scan(A, pG + 1, fill=[[]] + [ors[2 * k: 2 * k + 2] for k in range(5)])
    A(f"""
    v_sub_u32 v{pB}, v{pG + 1}, v{pG}
    v_add_u32 v{pB + 1}, v{pB}, v{pC}
    v_add_u32 v{pB + 2}, v{pB}, v{pB + 2}
    v_add_u32 v{pB + 3}, v{pB}, v{pB + 3}
    ds_write_b128 v{vX + 3}, {vr(pB, 4)} offset:{P_BASE}
    {ors[10]}
    {ors[11]}
    s_waitcnt lgkmcnt(0)
    s_barrier
    """)
    A("s_branch Lp_scanned")
    A("Lp_noscan:")
    A("\n".join(ors))
    A("s_barrier")
    A("Lp_scanned:")
    stamp(A, opt, "scan")
    A(f"s_mov_b64 exec, {sr(sPM, 2)}")
    for i in range(4):
        A(f"ds_read_b32 v{pA + i}, v{pA + i} offset:{P_BASE}")
    A("s_waitcnt lgkmcnt(0)")
    for i in range(4):
        A(f"v_add_lshl_u32 v{pA + i}, v{pA + i}, v{pR + i}, 2")
        A(f"ds_write_b32 v{pA + i}, v{pS + i} offset:{P_SORT}")
    A("s_mov_b64 exec, -1")
    A(nonce_load)
    A("s_waitcnt lgkmcnt(0)")
    A("s_barrier")
    stamp(A, opt, "b3")
    A(f"""
    ds_read_b128 {vr(pD, 4)}, v{vX + 2} offset:{P_SORT}
    s_mov_b64 exec, {sr(sPM, 2)}
    s_cbranch_execz Lp_none
    s_waitcnt lgkmcnt(0)
    buffer_store_dwordx4 {vr(pD, 4)}, v{vX + 2}, {sr(S_REC, 4)}, s{sQ1} offen sc1
    s_branch Lp_out
    Lp_loader:
    """)
    loader(2, ld[0])
    A("s_barrier")
    loader(ld[0], ld[1])
    A("s_barrier")
    loader(ld[1], ld[2])
    A("s_barrier")
    loader(ld[2], 16)
    A(nonce_load)
    A(f"""
    Lp_none:
    s_waitcnt vmcnt(1)
    Lp_out:
    s_mov_b64 exec, -1
    """)
    stage_x(2)
    A(f"""
    v_lshrrev_b32 v{vX + 11}, 1, v{vX + 2}
    v_and_b32 v{vX + 11}, 0x3ff, v{vX + 11}
    ds_read_b64 {vr(pC, 2)}, v{vX + 11} offset:{P_CNT}
    ds_read_b64 {vr(pB, 2)}, v{vX + 11} offset:{P_BASE}
    s_lshl_b32 s3, s{sW}, 9
    s_add_u32 m0, s3, {L_WCR}
    s_waitcnt lgkmcnt(0)
    s_barrier
    """)
    stamp(A, opt, "b3b")

    bB, bV, bO = 48, 64, 80

    def bv_reads(s):
        r = 12 * (s & 3)
        A(f"ds_read_b128 {vr(r + 8, 4)}, v{vBx} offset:{32 * s}")
        for m in range(2):
            for z in range(2):
                A(f"ds_read_b64_tr_b16 {vr(r + 4 * m + 2 * z, 2)}, v{vBt} offset:{m * 32768 + s * 4096 + z * 1024}")

    for s in range(3):
        bv_reads(s)
    A(f"""
    s_mov_b32 exec_hi, 0
    buffer_load_dwordx4 v{vX + 3}, {sr(S_WC, 4)}, s3 offen lds
    s_mov_b32 exec_hi, -1
    """)
    b4b = int(opt.get("b4b", 1))
    wk = int(opt.get("wk", 2))
    for s in range(8):
        r = 12 * (s & 3)
        A(f"s_waitcnt lgkmcnt({5 * min(2, 7 - s)})")
        for m in range(2):
            d = (bB, bV)[m]
            A(f"v_mfma_f32_32x32x16_bf16 {vr(d, 16)}, {vr(r + 4 * m, 4)}, {vr(r + 8, 4)}, {'0' if s == 0 else vr(d, 16)}")
        if s + 3 < 8:
            bv_reads(s + 3)
        for i in range(wk * s, min(8, wk * s + wk)):
            if i % 4 == 0:
                A(f"s_add_u32 m0, s{sWm + i // 4}, {L_R2}")
                A("s_nop 0")
            dma_piece(S_W2, sWo + (i >> 2), i)
    stamp(A, opt, "bvm")
    A(f"""
    s_mov_b32 s{sTi}, 0
    s_waitcnt vmcnt(9)
    Lnonce_check:
    v_readfirstlane_b32 s{sNon}, v{vNon}
    v_readfirstlane_b32 s{sNon + 1}, v{vNon + 1}
    s_add_u32 s{sTi}, s{sTi}, 1
    s_cmp_lg_u32 s{sNon}, 0
    s_cbranch_scc1 Lnonce_ok
    buffer_load_dwordx2 {vr(vNon, 2)}, v{vZero}, {sr(S_DBG, 4)}, 0 offen sc1
    s_cmp_lt_u32 s{sTi}, {SPIN_MAX}
    s_waitcnt vmcnt(0)
    s_cbranch_scc1 Lnonce_check
    Lnonce_ok:
    """)
    nslot = int(opt.get("nslot", 0))
    if nslot:
        A(f"""
        s_mul_i32 s3, s{sNon}, 0x9e3779b1
        s_lshr_b32 s3, s3, {32 - nslot}
        s_lshl_b32 s3, s3, 23
        s_add_u32 s{S_TAB}, s{S_TAB}, s3
        s_addc_u32 s{S_TAB + 1}, s{S_TAB + 1}, 0
        s_add_u32 s{S_TW}, s{S_TW}, s3
        s_addc_u32 s{S_TW + 1}, s{S_TW + 1}, 0
        """)
    A(f"""
    s_and_b32 s{sNon + 1}, s{sNon + 1}, 0x3ff
    s_lshl_b32 s3, s{sNon + 1}, 22
    v_lshl_or_b32 v{pG}, v{pC}, 11, v{pB}
    v_lshl_or_b32 v{pG + 2}, v{pC + 1}, 11, v{pB + 1}
    v_or_b32 v{pG}, s3, v{pG}
    v_or_b32 v{pG + 2}, s3, v{pG + 2}
    v_mov_b32 v{pG + 1}, s{sNon}
    v_mov_b32 v{pG + 3}, s{sNon}
    v_lshrrev_b32 v{vE}, {3 + OB}, v{vX + 2}
    v_and_b32 v{vE + 1}, {(8 << OB) - 1}, v{vX + 2}
    v_lshl_add_u32 v{vE}, v{vE}, {11 + OB}, v{vE + 1}
    s_lshl_b32 s3, s2, {3 + OB}
    s_cmp_ge_u32 s{sW}, 2
    {'' if b4b else 's_waitcnt vmcnt(0)'}
    s_barrier
    s_cbranch_scc1 Lno_off
    buffer_store_dwordx4 {vr(pG, 4)}, v{vE}, {sr(S_OFFS, 4)}, s3 offen sc1
    Lno_off:
    """)
    stamp(A, opt, "sig")
    for g in range(4):
        for i in range(4 * g, 4 * g + 4):
            A(f"v_fma_mixlo_f16 v{bV + i}, v{bB + i}, s{sNl}, 0")
        A(f"ds_write_b128 v{vSw}, {vr(bV + 4 * g, 4)} offset:{32 * g}")
    for i in range(4):
        A(f"ds_read_b128 {vr(bO + 4 * i, 4)}, v{vSr} offset:{1152 * i}")
    A(f"""
    s_or_b32 s3, s2, s{sW}
    s_cbranch_scc1 Lno_pad
    v_mov_b32 v{vE}, 0x7c00
    v_mov_b32 v{vE + 1}, 0x7c00
    v_lshrrev_b32 v{vE + 2}, 1, v{vX + 3}
    s_mov_b32 s3, {TAB_BYTES}
    buffer_store_dwordx2 {vr(vE, 2)}, v{vE + 2}, {sr(S_TAB, 4)}, s3 offen sc1
    Lno_pad:
    s_lshr_b32 s3, s{sBk}, {OB}
    s_lshl_b32 s3, s3, {8 + OB}
    s_and_b32 s{sQ1}, s{sBk}, {(1 << OB) - 1}
    s_add_u32 s{sQ1}, s{sQ1}, s3
    s_lshl_b32 s{sQ1}, s{sQ1}, 3
    s_mov_b32 s3, 0
    """)
    def au_reads(s):
        for z in range(2):
            A(f"ds_read_b64_tr_b16 {vr(vWf + 4 * s + 2 * z, 2)}, v{vAt} offset:{s * 4096 + z * 1024}")
        A(f"ds_read_b128 {vr(vXf + 4 * s, 4)}, v{vXrd} offset:{32 * s}")

    for s in range(4):
        A(f"s_waitcnt lgkmcnt({3 - s if b4b else 3 + 2 * s})")
        A(f"buffer_store_dwordx4 {vr(bO + 4 * s, 4)}, v{vBs}, {sr(S_TW, 4)}, s3 offen {opt.get('tw_pol', 'sc1')}")
        A("s_add_u32 s3, s3, 4096")
        if not b4b:
            au_reads(s)
    if b4b:
        A(f"""
        s_cmp_ge_u32 s{sW}, 2
        s_cbranch_scc1 Lwau_0
        s_waitcnt vmcnt(5)
        s_branch Lwau_1
        Lwau_0:
        s_waitcnt vmcnt(4)
        Lwau_1:
        s_barrier
        """)
        for s in range(4):
            au_reads(s)
    stamp(A, opt, "bve")
    if opt.get("notab"):
        A(f"s_mov_b32 s{S_TAB + 2}, 0")
    poll = f"buffer_load_dwordx2 {vr(vOffs, 2)}, v{vPa}, {sr(S_OFFS, 4)}, s{sQ1} offen sc1"

    def tag_wait(name, v, reload):
        A(f"""
        s_mov_b32 s{sTi}, 0
        L{name}_check:
        v_lshrrev_b32 v{vX + 11}, 22, v{v}
        v_cmp_ne_u32_e64 {sr(sTmp, 2)}, s{sNon}, v{v + 1}
        v_cmp_ne_u32 vcc, s{sNon + 1}, v{vX + 11}
        s_add_u32 s{sTi}, s{sTi}, 1
        s_or_b64 vcc, vcc, {sr(sTmp, 2)}
        s_cbranch_scc0 L{name}_ok
        {reload}
        s_cmp_lt_u32 s{sTi}, {SPIN_MAX}
        s_waitcnt vmcnt(0)
        s_cbranch_scc1 L{name}_check
        L{name}_ok:
        """)

    def batch_masks(window):
        A(f"""
        v_bfe_u32 v{vX}, v{vOffs}, 11, 11
        v_and_b32 v{vX + 1}, 1, v{vTid}
        v_subrev_u32 v{vX}, s{sW0}, v{vX}
        v_lshlrev_b32 v{vX + 1}, 2, v{vX + 1}
        v_cmp_lt_i32_e64 {sr(sMore, 2)}, {window}, v{vX}
        v_sub_u32 v{vX}, v{vX}, v{vX + 1}
        """)
        for i in range(window // 2):
            A(f"v_cmp_lt_i32_e64 {sr((cand + cand2)[i][5], 2)}, {(i & 3) + 8 * (i >> 2)}, v{vX}")

    def rec_addr():
        A(f"""
        v_lshrrev_b32 v{vX + 2}, 1, v{vTid}
        v_and_b32 v{vX + 1}, 1, v{vTid}
        v_mul_u32_u24 v{vX + 2}, {CH}, v{vX + 2}
        v_lshl_add_u32 v{vX + 1}, v{vX + 1}, 2, s{sW0}
        v_add_u32 v{vX + 1}, v{vX + 1}, v{vX + 2}
        v_lshlrev_b32 v{vX + 2}, 5, v{vX + 2}
        """)
        for i in range(0, 8, 2):
            A(f"v_mov_b64 {vr(vKey + i, 2)}, 0")

    def rec_loads(both=True):
        A(f"""
        v_and_b32 v{vX + 4}, 0x7ff, v{vOffs}
        v_add_lshl_u32 v{vX + 4}, v{vX + 4}, v{vX + 1}, 2
        buffer_load_dwordx4 {vr(vRec, 4)}, v{vX + 4}, {sr(S_REC, 4)}, 0 offen sc1
        """)
        if both:
            A(f"buffer_load_dwordx4 {vr(vRec + 4, 4)}, v{vX + 4}, {sr(S_REC, 4)}, 0 offen offset:32 sc1")

    def histogram(cs):
        for rec, key, rank, so_, eo_, m in cs:
            A(f"s_mov_b64 exec, {sr(m, 2)}")
            A(f"v_alignbit_b32 v{key}, v{rec}, v{rec}, 27")
            A(f"v_and_b32 v{key}, 0x7fc, v{key}")
            A(f"ds_add_rtn_u32 v{rank}, v{key}, v{vOne} offset:{L_CNT}")
        A("s_mov_b64 exec, -1")

    def place(cs):
        for rec, key, rank, so_, eo_, m in cs:
            A(f"s_mov_b64 exec, {sr(m, 2)}")
            A(f"v_lshl_add_u32 v{key}, v{rank}, 3, v{key}")
            A(f"ds_write2_b32 v{key}, v{rec}, v{vX + 2} offset0:0 offset1:1")
        A("s_mov_b64 exec, -1")

    def hand_over():
        rec_addr()
        stamp(A, opt, "pre5")
        A("s_waitcnt vmcnt(1)")
        stamp(A, opt, "drn")
        A("s_barrier")
        stamp(A, opt, "b5")
        A(f"""
        s_cmp_lg_u32 s{sW}, 7
        s_cbranch_scc1 Lno_tf
        s_lshl_b32 s{sTmp + 1}, s2, {TS}
        s_add_u32 s{sTmp + 1}, s{sTmp + 1}, {TF_OFF}
        s_mov_b64 exec, 1
        buffer_store_dwordx2 {vr(pG, 2)}, v{vZero}, {sr(S_OFFS, 4)}, s{sTmp + 1} offen sc1
        s_mov_b64 exec, -1
        s_waitcnt vmcnt(1)
        s_branch Ltf_sent
        Lno_tf:
        s_waitcnt vmcnt(0)
        Ltf_sent:
        """)
        tag_wait("off", vOffs, poll)
        stamp(A, opt, "off")
        rmask = int(opt.get("rmask", 1))
        rec_loads(not rmask)
        batch_masks(24)
        if rmask:
            A(f"""
            s_mov_b64 exec, {sr(cand[4][5], 2)}
            s_cbranch_execz Lno_rec1
            buffer_load_dwordx4 {vr(vRec + 4, 4)}, v{vX + 4}, {sr(S_REC, 4)}, 0 offen offset:32 sc1
            Lno_rec1:
            s_mov_b64 exec, -1
            """)
        A(f"""
        s_cmp_eq_u64 {sr(sMask2, 2)}, 0
        s_cbranch_scc1 Lno_rec2
        buffer_load_dwordx4 {vr(cand2[0][0], 4)}, v{vX + 4}, {sr(S_REC, 4)}, 0 offen offset:64 sc1
        v_mov_b64 {vr(cand2[0][1], 2)}, 0
        v_mov_b64 {vr(cand2[2][1], 2)}, 0
        Lno_rec2:
        """)

    b5_at = int(opt.get("b5_at", 16))
    assert poll_at <= b5_at
    for k in range(16):
        nb, s = k >> 3, k & 7
        if k == poll_at:
            A(poll)
        if k == b5_at:
            hand_over()
        A(f"s_waitcnt lgkmcnt({9 if k < 5 else (7, 5, 3)[k - 5] if k < 8 else min(3, 15 - k)})")
        cc = "0" if s == 0 else vr(vG + 16 * nb, 16)
        A(f"v_mfma_f32_32x32x16_bf16 {vr(vG + 16 * nb, 16)}, {vr(vWf + 4 * s, 4)}, {vr(vXf + 4 * (k & 7), 4)}, {cc}")
        kn = k + 4
        if kn < 8:
            for z in range(2):
                A(f"ds_read_b64_tr_b16 {vr(vWf + 4 * kn + 2 * z, 2)}, v{vAt} offset:{kn * 4096 + z * 1024}")
        if kn < 16:
            A(f"ds_read_b128 {vr(vXf + 4 * (kn & 7), 4)}, v{vXrd} offset:{32 * 272 * (kn >> 3) + 32 * (kn & 7)}")
    if b5_at == 16:
        hand_over()
    vId = 64
    A(f"""
    s_cmp_lt_u32 s{sW}, 4
    s_cbranch_scc1 Lno_ident
    s_and_b32 s3, s{sW}, 3
    s_lshl_b32 s3, s3, 6
    v_add_u32 v{vX + 11}, s3, v{vXrd}
    """)
    for nb in range(2):
        for z in range(2):
            A(f"ds_read_b128 {vr(vXf + 8 * nb + 4 * z, 4)}, v{vX + 11} offset:{32 * 272 * nb + 32 * z}")
    A(f"""
    v_lshrrev_b32 v{vX + 11}, 4, v{vLo}
    v_lshrrev_b32 v{vX + 12}, 1, v{vH16}
    v_sub_u32 v{vX + 11}, v{vX + 11}, v{vX + 12}
    v_and_b32 v{vX + 12}, 1, v{vX + 11}
    v_lshlrev_b32 v{vX + 12}, 4, v{vX + 12}
    v_mov_b32 v{vX + 13}, 0x3f80
    v_lshlrev_b32 v{vX + 12}, v{vX + 12}, v{vX + 13}
    v_ashrrev_i32 v{vX + 11}, 1, v{vX + 11}
    """)
    for i in range(8):
        A(f"v_cmp_eq_u32_e64 {sr((sTmp, sNext)[i & 1], 2)}, {8 * (i >> 2) + (i & 3)}, v{vX + 11}")
        if i:
            A("s_nop 0")
            A(f"v_cndmask_b32_e64 v{vId + i - 1}, 0, v{vX + 12}, {sr((sTmp, sNext)[(i - 1) & 1], 2)}")
    A("s_nop 0")
    A(f"v_cndmask_b32_e64 v{vId + 7}, 0, v{vX + 12}, {sr(sNext, 2)}")
    A("s_waitcnt lgkmcnt(0)")
    for z in range(2):
        for nb in range(2):
            A(f"v_mfma_f32_32x32x16_bf16 {vr(vG + 16 * nb, 16)}, {vr(vId + 4 * z, 4)}, {vr(vXf + 8 * nb + 4 * z, 4)}, {vr(vG + 16 * nb, 16)}")
    A("Lno_ident:")
    if b5_at == 17:
        hand_over()
    stamp(A, opt, "aum")

    sTfo = S_X + 1
    tf_poll = f"buffer_load_dwordx2 {vr(vTf, 2)}, v{vPa}, {sr(S_OFFS, 4)}, s{sTfo} offen sc1"
    vRaw = vD
    A(f"""
    v_lshrrev_b32 v{vPa}, 1, v{vLo}
    {f'v_lshlrev_b32 v{vPa}, {TS - 3}, v{vPa}' if TS > 3 else ''}
    """)

    def wc_reads():
        A(f"""
        v_lshrrev_b32 v{vX + 11}, 1, v{vLo}
        v_lshl_add_u32 v{vX + 11}, v{vH16}, 7, v{vX + 11}
        v_add_u32 v{vX + 11}, {L_WCR}, v{vX + 11}
        """)
        for i in range(8):
            A(f"ds_read_b64 {vr(vRaw + 2 * i, 2)}, v{vX + 11} offset:{256 * i}")

    def wc_fragments():
        A("s_mov_b32 s3, 0x05040100")
        A(f"s_mov_b32 s{sTmp}, 0x07060302")
        for j in range(4):
            for i in range(4):
                A(f"v_perm_b32 v{vWC + 4 * j + i}, v{vRaw + 2 * (2 * i + 1) + (j >> 1)}, v{vRaw + 2 * (2 * i) + (j >> 1)}, "
                  f"s{(3, sTmp)[j & 1]}")

    A(f"""
    s_lshl_b32 s{sTfo}, s{sW}, {5 + TS}
    s_add_u32 s{sTfo}, s{sTfo}, {TF_OFF}
    s_mov_b64 vcc, {sr(sMore, 2)}
    s_cmp_ge_u32 s{sW}, 4
    s_cbranch_scc1 Lu_wave
    v_mov_b32 v{vXs + 2}, 0
    """)
    row_mask = "s_mov_b32 exec_lo, 0xfffff\ns_mov_b32 exec_hi, 0xfffff"
    for i in range(0, 32, 2):
        if i == 16:
            A(row_mask)
        A(f"v_max3_f32 v{vXs + 2}, |v{vG + i}|, |v{vG + i + 1}|, v{vXs + 2}")
    A("s_mov_b64 exec, -1")
    A(f"v_cmp_lt_f32 vcc, {hex(f32(AMAX))}, v{vXs + 2}")
    A(f"s_or_b64 vcc, vcc, {sr(sMore, 2)}")

    def node_rows():
        for nb in range(2):
            if nb == 1:
                A(row_mask)
            for g in range(4):
                A(f"ds_write_b128 v{vTw}, {vr(vG + 16 * nb + 4 * g, 4)} offset:{32 * 528 * nb + 32 * g}")
        A("s_mov_b64 exec, -1")

    def node_exponents():
        A(f"""
        v_mov_b32 v{vXs}, {hex(f32(-float(KSH)))}
        v_mov_b32 v{vXs + 1}, {hex(f32(-float(KSH)))}
        s_mov_b32 s{sTmp}, s{sNl}
        s_mov_b32 s{sTmp + 1}, s{sNl}
        """)
        for i in range(0, 32, 2):
            A(f"v_pk_fma_f32 {vr(vG + i, 2)}, {vr(vG + i, 2)}, {sr(sTmp, 2)}, {vr(vXs, 2)}")

    A("Lu_wave:")
    A("s_mov_b64 exec, vcc")
    A(f"ds_write_b32 v{vZero}, v{vOne} offset:{L_FLAG}")
    A("s_mov_b64 exec, -1")
    la = vSoff
    A(f"""
    s_mul_i32 s{sSW}, s{sW}, {STRW}
    s_add_u32 s{sSW}, s{sSW}, {L_STR}
    v_add_u32 v{vSp}, s{sSW}, v{vH16}
    v_bfe_u32 v{vX + 12}, v{vTid}, 3, 2
    v_bfe_u32 v{vX + 13}, v{vTid}, 1, 1
    v_lshl_add_u32 v{vX + 12}, v{vX + 12}, 1, v{vX + 13}
    v_bfe_u32 v{vX + 13}, v{vTid}, 2, 1
    v_lshl_add_u32 v{vX + 12}, v{vX + 12}, 1, v{vX + 13}
    v_and_b32 v{vX + 13}, 1, v{vTid}
    v_lshl_add_u32 v{vX + 12}, v{vX + 12}, 1, v{vX + 13}
    v_lshl_add_u32 v{vEp}, v{vX + 12}, 2, s{sSW}
    v_bfrev_b32 v{vX + 13}, 2
    v_mov_b32 v{vX + 12}, {N << 18}
    v_lshlrev_b32 v{la}, 1, v{vX + 3}
    v_lshlrev_b32 v{la + 1}, 3, v{vX + 3}
    v_lshrrev_b32 v{la + 2}, 4, v{vX + 3}
    v_lshl_add_u32 v{la + 3}, v{la + 2}, 2, s{sSW}
    """)
    A("s_waitcnt vmcnt(0)")
    stamp(A, opt, "rec")
    epf = int(opt.get("epf", 2200))
    eord = opt.get("eord", "hte")

    def early_features():
        A(f"s_mov_b32 s3, {epf << 18}")
        for rec, key_, rank, so_, eo_, m in cand[:4]:
            A(f"v_cmp_gt_u32 vcc, s3, v{rec}")
            A(f"v_bfe_u32 v{eo_}, v{rec}, 6, 12")
            A(f"v_lshl_add_u32 v{eo_}, v{eo_}, 5, v{vX + 2}")
            A(f"s_and_b64 vcc, vcc, {sr(m, 2)}")
            A("s_or_b64 exec, vcc, 1")
            A(f"buffer_load_dword v{vL + 22}, v{eo_}, {sr(S_EA, 4)}, 0 offen")
            A("s_mov_b64 exec, -1")

    for ch in eord:
        if ch == "h":
            histogram(cand)
            A(f"s_cmp_eq_u64 {sr(sMask2, 2)}, 0")
            A("s_cbranch_scc1 Lno_hist2")
            histogram(cand2)
            A("Lno_hist2:")
        elif ch == "t":
            A(tf_poll)
        else:
            early_features()
    A("s_waitcnt lgkmcnt(0)")
    A("s_barrier")
    stamp(A, opt, "bB")
    c, p, deg, q, inc, g4 = vL, vL + 8, vL + 16, vL + 17, vL + 18, vL + 19
    A(f"ds_read_b128 {vr(c, 4)}, v{la} offset:{L_CNT}")
    A(f"ds_read_b128 {vr(c + 4, 4)}, v{la} offset:{L_CNT + 16}")
    A(f"""
    s_mov_b32 s{sQ2}, {L_SO}
    s_waitcnt lgkmcnt(1)
    v_add_u32 v{p + 2}, v{c}, v{c + 1}
    v_add3_u32 v{p + 4}, v{p + 2}, v{c + 2}, v{c + 3}
    s_waitcnt lgkmcnt(0)
    v_add3_u32 v{p + 6}, v{p + 4}, v{c + 4}, v{c + 5}
    v_add3_u32 v{deg}, v{p + 6}, v{c + 6}, v{c + 7}
    v_add_u32 v{q}, 3, v{deg}
    v_lshrrev_b32 v{inc}, 2, v{q}
    """)
    front = int(opt.get("front", 1))
    wave_scan(A, inc, fill=[
        [f"v_lshrrev_b32 v{q}, 2, v{q}", f"v_add_u32 v{p + 3}, v{p + 2}, v{c + 2}"],
        [f"v_add_u32 v{p + 5}, v{p + 4}, v{c + 4}", f"v_add_u32 v{p + 7}, v{p + 6}, v{c + 6}"],
        [f"v_mad_i32_i24 v{c + 2}, v{deg}, -8, s{sQ2}", f"v_lshlrev_b32 v{c + 1}, 2, v{q}"],
        [f"v_add_u32 v{deg}, s{sW}, v{deg}", f"s_lshl_b32 s{sQ3}, s{sW}, 3"],
        [f"v_cmp_lt_u32_e64 {sr(sNext, 2)}, v{deg}, v{c + 1}", f"s_add_u32 s{sQ3}, s{sQ3}, 8"]])
    A(f"v_sub_u32 v{g4}, v{inc}, v{q}")
    A(f"v_readlane_b32 s3, v{inc}, 63")
    A(f"v_lshl_add_u32 v{p}, v{inc}, 5, v{c + 2}" if front else f"v_lshl_add_u32 v{p}, v{g4}, 5, s{sQ2}")
    A(f"v_lshl_add_u32 v{p + 1}, v{c}, 3, v{p}")
    for i in range(2, 8):
        A(f"v_lshl_add_u32 v{p + i}, v{p + i}, 3, v{p}")
        if i in (3, 7):
            A(f"ds_write_b128 v{la}, {vr(p + i - 3, 4)} offset:{L_BASE + 4 * (i - 3)}")
    for cd in cand:
        A(f"ds_read_b32 v{cd[1]}, v{cd[1]} offset:{L_BASE}")
    A(f"""
    s_mul_i32 s{sLw}, s3, s{sW}
    s_add_u32 s{sRem}, s{sLw}, s3
    s_lshr_b32 s{sLw}, s{sLw}, 3
    s_lshr_b32 s{sRem}, s{sRem}, 3
    v_cmp_gt_u32_e64 {sr(sTmp, 2)}, s{sLw}, v{g4}
    v_cmp_gt_u32 vcc, s{sRem}, v{g4}
    {f'v_subrev_u32 v{deg}, s{sQ3}, v{p}' if front else f'v_lshl_add_u32 v{deg}, v{deg}, 3, v{p}'}
    s_bcnt1_i32_b64 s{sF0}, {sr(sTmp, 2)}
    s_bcnt1_i32_b64 s{sOwn}, vcc
    s_cmp_eq_u32 s{sW}, 7
    s_cselect_b32 s{sOwn}, s{sNn}, s{sOwn}
    s_sub_u32 s{sOwn}, s{sOwn}, s{sF0}
    s_sub_u32 s{sRem}, s{sRem}, s{sLw}
    s_waitcnt lgkmcnt(0)
    """)
    stamp(A, opt, "scan2")
    place(cand)
    A(f"s_cmp_eq_u64 {sr(sMask2, 2)}, 0")
    A("s_cbranch_scc1 Lno_place2")
    for cd in cand2:
        A(f"ds_read_b32 v{cd[1]}, v{cd[1]} offset:{L_BASE}")
    A("s_waitcnt lgkmcnt(0)")
    place(cand2)
    A("Lno_place2:")
    en, so, eo, key, cn, pos, t = vL, vL + 8, vL + 12, vL + 20, vL + 24, vL + 21, vL + 26
    A(f"""
    s_mov_b64 exec, {sr(sNext, 2)}
    ds_write_b64 v{deg}, {vr(vX + 12, 2)}
    s_mov_b64 exec, -1
    """)
    tf_younger = 4 if eord.index('t') < eord.index('e') else 0
    tf_post = int(opt.get("tf_post", 0))
    if not tf_post:
        A(f"s_waitcnt vmcnt({tf_younger})")
        tag_wait("tf", vTf, tf_poll)
    A(f"""
    s_sub_u32 s3, s{sOwn}, 1
    s_sub_u32 s{sTmp}, s{sRem}, 1
    s_cmp_gt_u32 s{sTmp}, 63
    s_cselect_b32 s3, 8, s3
    s_cmp_gt_u32 s3, 7
    s_cselect_b64 exec, 1, 0
    ds_write_b32 v{vZero}, v{vOne} offset:{L_FLAG}
    s_mov_b64 exec, -1
    s_lshl_b32 s3, s{sLw}, 5
    v_add_u32 v{t}, s3, v{la}
    v_cmp_le_u32_e64 {sr(sTmp, 2)}, s{sRem}, v{la + 2}
    s_sub_u32 s{sQ1}, s{sF0}, 1
    s_mul_i32 s{sQ2}, s{sQ1}, 528
    s_add_u32 s{sQ2}, s{sQ2}, {L_TA}
    s_mov_b32 s{sQ3}, {512 if tid else 0xfffffe00}
    """)
    if tid:
        A(f"""
        s_sub_u32 s{S_TG}, s{S_TAB}, 512
        s_subb_u32 s{S_TG + 1}, s{S_TAB + 1}, 0
        s_or_b32 s{S_TG + 1}, s{S_TG + 1}, {16 << 16}
        s_mov_b32 s{S_TG + 2}, {TAB_BYTES + 512 * NPAD + 512}
        s_mov_b32 s{S_TG + 3}, 0x800000
        """)
    A(f"""
    s_waitcnt lgkmcnt(0)
    s_barrier
    ds_read_b128 {vr(en, 4)}, v{t} offset:{L_SO}
    ds_read_b32 v{t + 3}, v{vZero} offset:{L_FLAG}
    ds_read_b128 {vr(en + 4, 4)}, v{t} offset:{L_SO + 16}
    v_cndmask_b32_e64 v{vInv}, 0, v{vX + 13}, {sr(sTmp, 2)}
    v_add_u32 v{vEb}, s{sQ2}, v{vLo}
    v_mov_b64 {vr(cn, 2)}, 1
    s_waitcnt lgkmcnt(0)
    v_min_u32 v{key}, v{en + 2 * int(opt.get("kent", 2))}, v{en + 6}
    v_lshrrev_b32 v{key}, 26, v{key}
    v_and_b32 v{key}, 56, v{key}
    v_cndmask_b32_e64 v{key}, v{key}, 56, {sr(sTmp, 2)}
    s_waitcnt lgkmcnt(1)
    v_readfirstlane_b32 s3, v{t + 3}
    v_lshlrev_b64 {vr(cn, 2)}, v{key}, {vr(cn, 2)}
    v_and_b32 v{t + 3}, 63, v{en + 6 * front}
    s_cmp_lg_u32 s3, 0
    s_cbranch_scc1 Lslow_entry
    s_waitcnt lgkmcnt(0)
    """)
    stamp(A, opt, "bD")
    fillers = [f"v_subrev_u32 v{t + 3}, s{sQ1}, v{t + 3}", f"v_mul_u32_u24 v{t + 3}, 12, v{t + 3}"]
    if tid:
        fillers += [f"v_cndmask_b32_e64 v{so + i}, v{en + 2 * i}, v{vX + 12}, {sr(sTmp, 2)}" for i in range(4)]
    else:
        fillers += [f"v_lshrrev_b32 v{so + i}, 9, v{en + 2 * i}" for i in range(4)]
    for k, d in enumerate(WAVE_SCAN):
        A(f"v_add_u32_dpp v{cn}, v{cn}, v{cn} {d} bank_mask:0xf")
        A(f"v_add_u32_dpp v{cn + 1}, v{cn + 1}, v{cn + 1} {d} bank_mask:0xf")
        A(fillers[k])
    A(f"v_readlane_b32 s{sTmp}, v{cn}, 63")
    A(f"v_readlane_b32 s{sTmp + 1}, v{cn + 1}, 63")
    for i in range(4):
        A(f"v_bfe_u32 v{eo + i}, v{en + 2 * i}, 6, 12")
    A(f"""
    s_mul_i32 s3, s{sTmp}, 0x01010101
    s_mul_i32 s{sTmp + 1}, s{sTmp + 1}, 0x01010100
    s_lshl_b32 s{sTmp}, s3, 8
    s_lshr_b32 s3, s3, 24
    s_mul_i32 s3, s3, 0x01010101
    s_add_u32 s{sTmp + 1}, s{sTmp + 1}, s3
    v_lshl_add_u64 {vr(cn, 2)}, {vr(cn, 2)}, 0, {sr(sTmp, 2)}
    s_sub_u32 s3, s{sSW}, 16
    v_lshrrev_b64 {vr(cn, 2)}, v{key}, {vr(cn, 2)}
    """)
    for i in range(4):
        A(f"v_lshl_add_u32 v{eo + i}, v{eo + i}, 5, v{en + 2 * i + 1}")
    A(f"v_and_b32 v{pos}, 0xff, v{cn}")
    for i in range(4):
        A(f"v_or_b32 v{eo + i}, v{eo + i}, v{vInv}")
    A(f"v_lshl_add_u32 v{t}, v{pos}, 4, s3")
    A(f"ds_write_b128 v{t}, {vr(eo, 4)} offset:1152")
    A(f"ds_read_b32 v{vEo}, v{vEp} offset:1152")
    for i in range(4):
        if tid:
            A(f"v_lshrrev_b32 v{so + i}, 18, v{so + i}")
            A(f"v_lshl_add_u32 v{so + i}, v{so + i}, 9, {f's{sQ3}' if i < 2 else 0}")
        else:
            A(f"v_and_or_b32 v{so + i}, v{so + i}, s{sQ3}, v{vInv}")
    A(f"""
    v_and_b32 v{t + 1}, 1, v{pos}
    v_lshl_add_u32 v{t + 1}, v{t + 1}, 3, v{t}
    v_subrev_u32 v{t + 1}, 8, v{t + 1}
    ds_write2_b64 v{t + 1}, {vr(so, 2)}, {vr(so + 2, 2)} offset0:0 offset1:2
    ds_read_b128 {vr(vT, 4)}, v{vSp}
    ds_read_b128 {vr(vSo, 4)}, v{vSp} offset:32
    v_add_u32 v{t + 2}, s{sSW}, v{pos}
    ds_write_b8 v{t + 2}, v{t + 3} offset:2303
    ds_read_b32 v{vSb}, v{la + 3} offset:2304
    """)
    first_features = f"""
    s_waitcnt lgkmcnt(5)
    v_add_u32 v{vEo}, v{vEo}, v{vH16}
    buffer_load_dwordx4 {vr(vEA, 4)}, v{vEo}, {sr(S_EA, 4)}, 0 offen {ea_pol}
    """
    if tf_post != 2:
        A(first_features)
    if tf_post:
        A(f"s_waitcnt vmcnt({tf_younger + (1 if tf_post == 1 else 0)})")
        tag_wait("tf", vTf, tf_poll)
        A(f"""
        s_mov_b64 exec, 1
        ds_add_u32 v{vZero}, v{vOne} offset:{L_FLAG + 16}
        s_mov_b64 exec, -1
        {first_features if tf_post == 2 else ''}
        Lseen:
        ds_read_b32 v{vEad}, v{vZero} offset:{L_FLAG + 16}
        s_waitcnt lgkmcnt(0)
        v_cmp_gt_u32 vcc, 8, v{vEad}
        s_cbranch_vccnz Lseen
        """)
    dist = int(opt.get("dist", 4))
    for u in range(dist):
        src = (vT, vT + 2, vSo, vSo + 2)[u]
        if u in (0, 2):
            A(f"s_waitcnt lgkmcnt({(3, 1)[u // 2]})")
        if not tid:
            A(f"v_lshl_add_u64 {vr(src, 2)}, {vr(src, 2)}, 0, {vr(vLo, 2)}")
        A(f"buffer_load_dwordx4 {vr(vL + 8 * u, 4)}, v{src}, {sr(S_TG, 4)}, 0 offen {tab_pol}")
        A(f"buffer_load_dwordx4 {vr(vL + 8 * u + 4, 4)}, v{src + 1}, {sr(S_TG, 4)}, 0 offen {tab_pol}")
    stamp(A, opt, "prim")
    eps = 1e-6 / c0
    wc_reads()
    A(f"s_and_b32 s3, s{sW}, 4")
    A(f"v_mov_b32 v{vEad}, s3")
    A("s_cbranch_scc1 Lfactors_made")
    node_exponents()
    for i in range(32):
        A(f"v_exp_f32 v{vG + i}, v{vG + i}")
    A("Lfactors_made:")
    node_rows()
    A(f"""
    s_mov_b64 exec, 1
    ds_add_u32 v{vEad}, v{vOne} offset:{L_FLAG + 8}
    s_mov_b64 exec, -1
    s_waitcnt lgkmcnt(9)
    """)
    wc_fragments()
    A(f"""
    s_waitcnt lgkmcnt(0)
    s_mov_b32 s{sTmp}, {hex(f32(eps / 2))}
    s_mov_b32 s{sTmp + 1}, {hex(f32(eps / 2))}
    """)
    for sl_ in range(NS):
        for j in range(0, 8, 2):
            A(f"v_mov_b64 {vr(vSl + 12 * sl_ + j, 2)}, {sr(sTmp, 2) if sl_ and j >= 4 else 0}")
    eA1, eA2, eA3, eA4, eFl, eOne = 248, 249, 250, 251, 252, 253
    sOut, sLast = sOvf, sMor
    A(f"""
    v_add_u32 v{eA1}, s{sSW}, v{vX + 3}
    s_mul_i32 s3, s{sF0}, 528
    s_add_u32 s3, s3, {L_TU}
    v_mul_u32_u24 v{eA2}, 33, v{vH16}
    v_add3_u32 v{eA2}, v{eA2}, v{vLo}, s3
    s_mul_i32 s3, s{sF0}, 272
    s_add_u32 s3, s3, {L_X}
    v_mul_u32_u24 v{eA3}, 17, v{vH16}
    v_lshrrev_b32 v{eA4}, 1, v{vLo}
    v_add3_u32 v{eA3}, v{eA3}, v{eA4}, s3
    v_lshl_add_u32 v{eA4}, v{vH16}, 4, v{eA4}
    s_lshl_b32 s3, s{sW}, 2
    v_mov_b32 v{eFl}, s3
    v_mov_b32 v{eOne}, {L_FLAG + 12}
    s_add_u32 s{sOut}, s{sN0}, s{sF0}
    s_lshl_b32 s{sOut}, s{sOut}, 8
    s_mul_i32 s{sLast}, s{sOwn}, 12
    """)
    A("Lfactors:")
    A(f"ds_read_b32 v{vEad}, v{vZero} offset:{L_FLAG + 8}")
    for sl_ in range(NS):
        A(f"ds_read_b128 {vr(vSl + 12 * sl_ + 8, 4)}, v{vEb} offset:{528 * sl_}")
    A("s_waitcnt lgkmcnt(0)")
    A(f"v_cmp_gt_u32 vcc, 4, v{vEad}")
    A("s_cbranch_vccnz Lfactors")
    ea_at = int(opt.get("ea_at", 3))
    prio = opt.get("prio", "alt")
    A(f"""
    s_waitcnt lgkmcnt(0)
    v_readlane_b32 s{sSl0}, v{vSb}, 0
    v_readlane_b32 s{sSl1}, v{vSb}, 1
    s_mov_b32 s{sLn}, 2
    s_mov_b32 s{sLn + 1}, 3
    """)
    if prio == "quart":
        A(f"""
        s_mul_i32 s{sQ1}, s{sRem}, 3
        s_lshr_b32 s{sQ1}, s{sQ1}, 2
        s_lshr_b32 s{sQ2}, s{sRem}, 1
        s_lshr_b32 s{sQ3}, s{sRem}, 2
        """)
    else:
        first_drop = [int(x) for x in opt.get("drop", "8,16").split(",")]
        A(f"""
        s_cmp_lt_u32 s{sW}, 4
        s_cselect_b32 s3, {first_drop[0]}, {first_drop[1]}
        s_sub_i32 s{sQ1}, s{sRem}, s3
        s_sub_i32 s{sQ2}, s{sQ1}, {int(opt.get("dstep", 16))}
        s_sub_i32 s{sQ3}, s{sQ2}, {int(opt.get("dstep", 16))}
        """)
        if opt.get("dend"):
            e0, e1 = (int(x) for x in opt["dend"].split(","))
            A(f"""
            s_cmp_lt_u32 s{sW}, 4
            s_cselect_b32 s{sQ3}, {e0}, {e1}
            s_add_u32 s{sQ2}, s{sQ3}, {int(opt.get("dstep", 16))}
            s_add_u32 s{sQ1}, s{sQ2}, {int(opt.get("dstep", 16))}
            """)
    thr_on = opt.get("thr")
    if thr_on:
        ref, mul, cut = (int(x) for x in thr_on.split(","))
        A(f"""
        s_sub_i32 s3, {ref}, s{sRem}
        s_mul_i32 s3, s3, {mul}
        s_sub_i32 s{sTi}, s{sRem}, s3
        """)
    fair = int(opt.get("fair", 0))
    vFa, vFi, vFr = 248, 249, 250
    if fair:
        A(f"""
        s_and_b32 s3, s{sW}, 3
        s_lshl_b32 s3, s3, 2
        v_mov_b32 v{vFa}, s3
        s_cmp_lt_u32 s{sW}, 4
        s_cselect_b32 s{sQ1}, 1, -1
        v_mov_b32 v{vFi}, s{sQ1}
        """)
    A("s_setprio 3")
    A(f"s_waitcnt vmcnt({2 * dist})")
    stamp(A, opt, "first")

    def mfma(j):
        return f"v_mfma_f32_32x32x16_bf16 {vr(vD + 16 * j, 16)}, {vr(vEA, 4)}, {vr(vWC + 4 * j, 4)}, 0"

    for j in range(4):
        A(mfma(j))
    A("s_nop 8")
    A(f"s_cmp_gt_u32 s{sRem}, 8")
    A("s_cbranch_scc0 Llast")

    def step(u, last, q):
        La, Lb = vL + 8 * (u & 3), vL + 8 * (u & 3) + 4
        a, b = vT, vT + 4
        sl = (sSl0, sSl1)[u >> 2]
        nv = u + dist
        prefetch = not (last and nv >= 8)
        check = fair and u % fair == 0
        need = [u] + (["E"] if u == 7 and not last else [])
        A(f"s_waitcnt vmcnt({len(q) - 1 - max(i for i, x in enumerate(q) if x in need)})")
        if thr_on and not last:
            A(f"s_cbranch_vccz Lthr{u}")
            A(f"s_waitcnt vmcnt({len(q) - 1 - max(i for i, x in enumerate(q) if x in need + [u + cut])})")
            A(f"Lthr{u}:")
        lds = (prefetch and nv % 2 == 0) or (u == ea_at and not last) or check
        if prefetch and nv % 2 == 0:
            A(f"ds_read_b128 {vr(vSo, 4)}, v{vSp} offset:{16 * nv}")
        if check:
            A("s_nop 0")
            A("s_mov_b64 exec, 1")
            A(f"ds_add_rtn_u32 v{vFr}, v{vFa}, v{vFi} offset:{L_FLAG + 32}")
            A("s_mov_b64 exec, -1")
            A("s_nop 0")
        if u == ea_at and not last:
            A(f"ds_read_b32 v{vEo}, v{vEp} offset:{1152 + 128}")

        def mix(j, hb):
            return (f"v_fma_mix_f32 v{(a, b)[hb] + j}, v{vD + 16 * j + 2 * u + hb}, s{sNl}, v{(La, Lb)[hb] + j} "
                    "op_sel_hi:[0,0,1]")

        if u == 7 and not last:
            for j in range(4):
                A(mix(j, 0))
                A(mix(j, 1))
                if j:
                    A(f"v_exp_f32 v{a + j - 1}, v{a + j - 1}")
                    A(f"v_exp_f32 v{b + j - 1}, v{b + j - 1}")
                A(mfma(j))
            A(f"v_exp_f32{'' if lds else '_e64'} v{a + 3}, v{a + 3}")
            A(f"v_exp_f32 v{b + 3}, v{b + 3}")
        else:
            for hb in range(2):
                for j in range(4):
                    A(mix(j, hb))
            for j in range(8):
                A(f"v_exp_f32{'_e64' if j == 0 and not lds else ''} v{a + j}, v{a + j}")
        if lds:
            A("s_waitcnt lgkmcnt(0)")
        A(f"s_set_gpr_idx_on s{sl}, gpr_idx(SRC1)")
        for j in range(0, 8, 2):
            A(f"v_pk_fma_f32 {vr(a + j, 2)}, {vr(a + j, 2)}, {vr(vSl + 8 + (j & 3), 2)}, {sr(sC0, 2)} clamp")
        A("s_set_gpr_idx_mode gpr_idx()")
        A(f"s_lshr_b32 s{sl}, s{sl}, 8")
        if check:
            A(f"v_readlane_b32 s3, v{vFr}, 0")
        if u == ea_at and not last:
            A(f"v_add_u32_e64 v{vEo}, v{vEo}, v{vH16}")
            A(f"buffer_load_dwordx4 {vr(vEA, 4)}, v{vEo}, {sr(S_EA, 4)}, 0 offen {ea_pol}")
            q.append("E")
        for j in (0, 2):
            A(f"v_pk_mul_f32 {vr(La + j, 2)}, {vr(La + j, 2)}, {vr(b + j, 2)}")
        if check:
            tag = f"Lfair{u}{'l' if last else ''}"
            A(f"""
            s_mul_i32 s3, s3, s{sQ1}
            s_setprio 0
            s_cmp_ge_i32 s3, 0
            s_cbranch_scc1 {tag}
            s_setprio 2
            s_nop 0
            {tag}:
            """)
        so2 = vSo + 2 * (nv & 1)
        if prefetch and not tid:
            A(f"v_lshl_add_u64 {vr(so2, 2)}, {vr(so2, 2)}, 0, {vr(vLo, 2)}")
        for j in (0, 2):
            A(f"v_pk_fma_f32 {vr(La + j, 2)}, {vr(Lb + j, 2)}, {vr(a + j, 2)}, {vr(La + j, 2)}")
        for j in (0, 2):
            A(f"v_pk_add_f32 {vr(Lb + j, 2)}, {vr(a + j, 2)}, {vr(b + j, 2)}")
        for j in (0, 2):
            A(f"v_pk_mul_f32 {vr(a + j, 2)}, {vr(a + j, 2)}, {vr(b + j, 2)}")
        for j in range(4):
            A(f"v_rcp_f32{'_e64' if j == 0 else ''} v{a + j}, v{a + j}")
        A("s_set_gpr_idx_mode gpr_idx(SRC2,DST)")
        for j in (0, 2):
            A(f"v_pk_fma_f32 {vr(vSl + j, 2)}, {vr(La + j, 2)}, {vr(a + j, 2)}, {vr(vSl + j, 2)}")
            A(f"v_pk_fma_f32 {vr(vSl + 4 + j, 2)}, {vr(Lb + j, 2)}, {vr(a + j, 2)}, {vr(vSl + 4 + j, 2)}")
        if prefetch:
            A(f"buffer_load_dwordx4 {vr(vL + 8 * (nv & 3), 4)}, v{so2}, {sr(S_TG, 4)}, 0 offen {tab_pol}")
            A(f"buffer_load_dwordx4 {vr(vL + 8 * (nv & 3) + 4, 4)}, v{so2 + 1}, {sr(S_TG, 4)}, 0 offen {tab_pol}")
            q += [nv] * 2
        A("s_set_gpr_idx_off")
        if not last and u in (1, 5):
            for k in range(int(opt.get("dummy", 0))):
                A("s_lshl_b64 exec, 1, 5\nv_mov_b64 v[254:255], s[76:77]\nv_mov_b64 v[254:255], s[78:79]\ns_lshl_b64 exec, 1, 37\n"
                  "v_mov_b64 v[254:255], s[80:81]\nv_mov_b64 v[254:255], s[82:83]\nv_readlane_b32 s3, v240, 3\ns_nop 0\ns_nop 0")
            if int(opt.get("dummy", 0)):
                A("s_mov_b64 exec, -1\ns_nop 0")

    assert 0 <= ea_at < 7
    A.note("""main loop: eight groups per tile. a = min(2^-48 * (1 + exp(-gate)), 1) for edges a and b of each half-wave:
    num += (Va * b + Vb * a) / (a * b), den += (a + b) / (a * b)""")
    A(".p2align 6")
    A("Ltile:")
    A(f"s_sub_u32 s{sRem}, s{sRem}, 8")
    if thr_on:
        A(f"s_cmp_ge_i32 s{sRem}, s{sTi}")
        A("s_cselect_b64 vcc, -1, 0")
    q = [0, 0, 1, 1, 2, 2, 3, 3][:2 * dist]
    for u in range(8):
        step(u, False, q)
        if u == 3 and int(opt.get("pmid", 0)):
            A(f"s_add_u32 s3, s{sRem}, 4")
            for k, sq in enumerate((sQ1, sQ2, sQ3)):
                A(f"s_cmp_le_i32 s3, s{sq}")
                A("s_cbranch_scc0 Lprio_mid")
                A(f"s_setprio {2 - k}")
            A("Lprio_mid:")
    A(f"""
    s_nop 0
    v_readlane_b32 s{sSl0}, v{vSb}, s{sLn}
    v_readlane_b32 s{sSl1}, v{vSb}, s{sLn + 1}
    v_add_u32 v{vSp}, 0x80, v{vSp}
    v_add_u32 v{vEp}, 0x80, v{vEp}
    s_add_u32 s{sLn}, s{sLn}, 2
    s_add_u32 s{sLn + 1}, s{sLn + 1}, 2
    """)
    if opt.get("tilestamps"):
        for k in range(1, 7):
            A(f"s_cmp_lg_u32 s{sLn}, {2 * k + 2}")
            A(f"s_cbranch_scc1 Lts{k}")
            stamp(A, opt, f"tile{k}")
            A(f"Lts{k}:")
    if prio != "none" and not fair:
        for k, sq in enumerate((sQ1, sQ2, sQ3)):
            A(f"s_cmp_le_i32 s{sRem}, s{sq}")
            A("s_cbranch_scc0 Lprio_done")
            A(f"s_setprio {2 - k}")
        A("Lprio_done:")
    A(f"s_cmp_gt_u32 s{sRem}, 8")
    A("s_cbranch_scc1 Ltile")
    A(".p2align 3")
    A(f"""
    Llast:
    ds_read_b32 v{vEad}, v{eOne}
    s_waitcnt lgkmcnt(0)
    v_cmp_gt_u32 vcc, 4, v{vEad}
    s_cbranch_vccnz Llast
    """)
    q = [0, 0, 1, 1, 2, 2, 3, 3][:2 * dist]
    for u in range(8):
        step(u, True, q)
        if u < 7:
            A(f"s_cmp_le_u32 s{sRem}, {u + 1}")
            A("s_cbranch_scc1 Lmain_done")
    A("Lmain_done:")
    stamp(A, opt, "done")

    def finalize(a0, o, a1, u0, x0, addr, soff, pre_store, pre_rows=""):
        for j in range(4):
            A(f"v_permlane32_swap_b32 v{a0 + j}, v{a1 + j}")
            A(f"v_permlane32_swap_b32 v{a0 + o + j}, v{a1 + o + j}")
        for j in (o, o + 2, 0, 2):
            A(f"v_pk_add_f32 {vr(a0 + j, 2)}, {vr(a0 + j, 2)}, {vr(a1 + j, 2)}")
        for j in range(4):
            A(f"v_rcp_f32 v{a0 + o + j}, v{a0 + o + j}")
        A(pre_rows)
        for j in (0, 2):
            A(f"v_pk_fma_f32 {vr(a0 + j, 2)}, {vr(a0 + j, 2)}, {vr(a0 + o + j, 2)}, {vr(u0 + j, 2)}")
        A(f"v_cvt_pk_bf16_f32 v{a0}, v{a0}, v{a0 + 1}")
        A(f"v_cvt_pk_bf16_f32 v{a0 + 1}, v{a0 + 2}, v{a0 + 3}")
        A(f"v_pk_max_f16 v{a0}, v{a0}, v{x0}")
        A(f"v_pk_max_f16 v{a0 + 1}, v{a0 + 1}, v{x0 + 1}")
        A(pre_store)
        A(f"buffer_store_dwordx2 {vr(a0, 2)}, v{addr}, {sr(S_OUT, 4)}, s{soff} offen {opt.get('out_pol', 'sc1 nt')}")

    vU, vXr, vA1, vA2, vA3, vCy = vD, vD + 16, vD + 24, vD + 25, vD + 26, vD + 32
    carry_reads = f"""
    ds_read_b32 v{vEad}, v{eFl} offset:{L_FLAG + 64 + 4}
    ds_read_b128 {vr(vCy, 4)}, v{eA1} offset:{STRW}
    ds_read_b128 {vr(vCy + 4, 4)}, v{eA1} offset:{STRW + 1024}
    """
    A(f"""
    ds_write_b128 v{eA1}, {vr(vSl, 4)}
    ds_write_b128 v{eA1}, {vr(vSl + 4, 4)} offset:1024
    ds_write_b32 v{eFl}, v{eOne} offset:{L_FLAG + 64}
    """)
    for pr in range(4):
        A(f"ds_read_b128 {vr(vU + 4 * pr, 4)}, v{eA2} offset:{1056 * pr}")
        A(f"ds_read_b64 {vr(vXr + 2 * pr, 2)}, v{eA3} offset:{544 * pr}")
    A(carry_reads)
    for pr in range(4):
        if pr < 3:
            A(f"s_cmp_gt_u32 s{sOwn}, {2 * pr + 2}")
            A(f"s_cbranch_scc1 Lfin{pr}")
        A(f"""
        s_cmp_eq_u32 s{sW}, 7
        s_cbranch_scc1 Lfin{pr}
        Lcarry{pr}:
        s_waitcnt lgkmcnt(0)
        v_cmp_eq_u32 vcc, 0, v{vEad}
        s_cbranch_vccz Lcarried{pr}
        s_sleep 1
        {carry_reads}
        s_branch Lcarry{pr}
        Lcarried{pr}:
        s_set_gpr_idx_on s{sLast}, gpr_idx(SRC0,DST)
        """)
        for j in range(0, 8, 2):
            A(f"v_pk_add_f32 {vr(vSl + j, 2)}, {vr(vSl + j, 2)}, {vr(vCy + j, 2)}")
        A("s_set_gpr_idx_off")
        A("s_nop 1")
        A(f"Lfin{pr}:")
        finalize(vSl + 12 * (2 * pr + 1), 4, vSl + 12 * (2 * pr + 2), vU + 4 * pr, vXr + 2 * pr, eA4, sOut,
                 f"s_cmp_gt_u32 s{sOwn}, {2 * pr + 1}\ns_cselect_b32 exec_hi, -1, 0", "" if pr else "s_waitcnt lgkmcnt(0)")
        if pr < 3:
            A(f"s_add_u32 s{sOut}, s{sOut}, 512")
            A(f"s_cmp_gt_u32 s{sOwn}, {2 * pr + 2}")
            A("s_cbranch_scc0 Lk2_done")
    A("Lk2_done:")
    if opt.get("xcc"):
        A("s_getreg_b32 s4, hwreg(HW_REG_XCC_ID, 0, 4)")
        A("s_sub_u32 s4, s4, s2")
        A("s_and_b32 s4, s4, 7")
        A("s_mul_i32 s4, s4, 100")
    stamp_flush(A, opt, 8, 0x20000, vTid)
    if opt.get("spin"):
        A("""
        Lspin:
        s_memrealtime s[42:43]
        s_waitcnt lgkmcnt(0)
        s_sub_u32 s42, s42, s100
        s_cmp_lt_u32 s42, 10000
        s_cbranch_scc1 Lspin
        """)
    A("Lk2_exit:")
    A("s_endpgm")

    NU = 7
    vAcc, vAn = 0, 56
    vLs = [vL + 8 * u for u in range(4)] + [84 + 8 * u for u in range(3)]
    vP, vErr, vQ, vCaddr, vUaddr = 245, 252, 253, 254, 255
    A("Lcold_code:")
    A("Lslow_entry:")
    if tf_post:
        A("s_waitcnt vmcnt(0)")
        tag_wait("tf2", vTf, tf_poll)
    A(f"s_cmp_ge_u32 s{sW}, 4")
    A("s_cbranch_scc1 Lg_rows")
    node_exponents()
    A("Lg_rows:")
    node_rows()
    wc_reads()
    A("s_waitcnt lgkmcnt(0)")
    wc_fragments()
    A(f"""
    s_waitcnt vmcnt(0) lgkmcnt(0)
    s_barrier
    v_lshlrev_b32 v{vX + 11}, 2, v{vTid}
    ds_write_b32 v{vX + 11}, v{vZero} offset:{L_CNT}
    s_mul_i32 s3, s{sW}, 528
    s_add_u32 s3, s3, {L_TA}
    v_add_u32 v{vX + 11}, s3, v{vLo}
    """)
    for u in range(NU):
        A(f"ds_read_b128 {vr(vAn + 4 * u, 4)}, v{vX + 11} offset:{8 * 528 * u}")
    A(f"s_mov_b32 s{sTmp}, {hex(f32(eps / 2))}")
    A(f"s_mov_b32 s{sTmp + 1}, {hex(f32(eps / 2))}")
    for i in range(0, 8 * NU, 2):
        A(f"v_mov_b64 {vr(vAcc + i, 2)}, {sr(sTmp, 2) if i & 4 else 0}")
    A(f"""
    v_bfe_u32 v{vX + 11}, v{vTid}, 3, 3
    v_and_b32 v{vX + 12}, 7, v{vTid}
    v_lshlrev_b32 v{vX + 12}, 2, v{vX + 12}
    v_lshl_add_u32 v{vX + 12}, v{vX + 11}, 8, v{vX + 12}
    s_lshl_b32 s3, s{sW}, 5
    v_add_u32 v{vCaddr}, s3, v{vX + 12}
    v_bfe_u32 v{vX + 11}, v{vTid}, 3, 2
    v_bfe_u32 v{vX + 12}, v{vTid}, 1, 1
    v_lshl_add_u32 v{vX + 11}, v{vX + 11}, 1, v{vX + 12}
    v_lshlrev_b32 v{vUaddr}, 5, v{vX + 11}
    Lbatch:
    """)
    batch_masks(16)
    A("Lround:")
    rec_addr()
    rec_loads()
    A(f"""
    v_mov_b32 v{vZero}, 0
    v_mov_b32 v{vOne}, 1
    ds_write_b32 v{vZero}, v{vZero} offset:{L_FLAG}
    ds_write_b32 v{vZero}, v{vZero} offset:{L_FLAG + 4}
    s_waitcnt lgkmcnt(0)
    s_barrier
    s_mov_b64 exec, {sr(sMore, 2)}
    ds_write_b32 v{vZero}, v{vOne} offset:{L_FLAG + 4}
    s_mov_b64 exec, -1
    s_waitcnt vmcnt(0)
    """)
    histogram(cand)
    for rec, key_, rank, so_, eo_, m in cand:
        A(f"v_lshrrev_b32 v{so_}, 18, v{rec}")
        A(f"v_bfe_u32 v{eo_}, v{rec}, 6, 12")
        A(f"v_lshlrev_b32 v{so_}, 9, v{so_}")
        A(f"v_lshl_add_u32 v{eo_}, v{eo_}, 5, v{vX + 2}")
    A("s_waitcnt lgkmcnt(0)")
    A("s_barrier")
    c, inc, deg, q, t0, t1 = vX + 12, vX + 13, vX + 14, vX + 15, vX + 16, vX + 17
    A(f"ds_read_b32 v{c}, v{vCaddr} offset:{L_CNT}")
    A(f"v_lshrrev_b32 v{t0}, 5, v{vCaddr}")
    A(f"v_lshlrev_b32 v{t0}, 6, v{t0}")
    A("s_waitcnt lgkmcnt(0)")
    A(f"ds_write_b32 v{vCaddr}, v{vZero} offset:{L_CNT}")
    A(f"v_mov_b32 v{inc}, v{c}")
    for d in (1, 2, 4, 8):
        A("s_nop 1")
        A(f"v_add_u32_dpp v{inc}, v{inc}, v{inc} row_shr:{d} row_mask:0xf bank_mask:0xf")
    A(f"""
    v_mov_b32 v{t1}, 0
    s_nop 0
    v_mov_b32_dpp v{deg}, v{inc} row_newbcast:7 row_mask:0xf bank_mask:0x3
    v_mov_b32_dpp v{t1}, v{inc} row_newbcast:7 row_mask:0xf bank_mask:0xc
    v_mov_b32_dpp v{deg}, v{inc} row_newbcast:15 row_mask:0xf bank_mask:0xc
    v_sub_u32 v{inc}, v{inc}, v{t1}
    v_sub_u32 v{deg}, v{deg}, v{t1}
    v_sub_u32 v{inc}, v{inc}, v{c}
    v_add_u32 v{inc}, v{inc}, v{t0}
    ds_write_b32 v{vCaddr}, v{inc} offset:{L_BASE}
    v_cmp_lt_u32 vcc, 64, v{deg}
    v_min_u32 v{deg}, 64, v{deg}
    v_add_u32 v{q}, 3, v{deg}
    v_lshrrev_b32 v{q}, 2, v{q}
    s_mov_b64 exec, vcc
    ds_write_b32 v{vZero}, v{vOne} offset:{L_FLAG}
    s_mov_b64 exec, -1
    ds_bpermute_b32 v{vQ}, v{vUaddr}, v{q}
    v_and_b32 v{c}, 7, v{vTid}
    v_add_u32 v{c}, v{c}, v{deg}
    v_lshlrev_b32 v{t1}, 2, v{q}
    v_cmp_lt_u32 vcc, v{c}, v{t1}
    v_add_lshl_u32 v{c}, v{c}, v{t0}, 2
    v_mov_b32 v{t0}, {TAB_BYTES}
    v_bfrev_b32 v{t1}, 2
    s_mov_b64 exec, vcc
    ds_write_b32 v{c}, v{t0} offset:{L_SO}
    ds_write_b32 v{c}, v{t1} offset:{L_EO}
    s_mov_b64 exec, -1
    v_max_u32_dpp v{q}, v{q}, v{q} row_ror:8 row_mask:0xf bank_mask:0xf
    s_nop 0
    v_readlane_b32 s{sT}, v{q}, 0
    v_readlane_b32 s3, v{q}, 16
    v_readlane_b32 s{sTmp}, v{q}, 32
    v_readlane_b32 s{sTmp + 1}, v{q}, 48
    s_waitcnt lgkmcnt(0)
    s_barrier
    ds_read_b64 {vr(vX + 12, 2)}, v{vZero} offset:{L_FLAG}
    """)
    for i in range(8):
        A(f"ds_read_b32 v{vKey + i}, v{vKey + i} offset:{L_BASE}")
    A(f"""
    s_max_u32 s{sT}, s{sT}, s3
    s_max_u32 s{sTmp}, s{sTmp}, s{sTmp + 1}
    s_max_u32 s{sT}, s{sT}, s{sTmp}
    s_waitcnt lgkmcnt(0)
    v_readfirstlane_b32 s{sOvf}, v{vX + 12}
    v_readfirstlane_b32 s{sMor}, v{vX + 13}
    """)
    for i in range(8):
        A(f"v_and_b32 v{vX + 12}, 63, v{vRec + i}")
        A(f"v_add_u32 v{vKey + i}, v{vKey + i}, v{vRank + i}")
        A(f"v_lshl_add_u32 v{vX + 12}, v{vX + 12}, 6, 64")
        A(f"v_cmp_lt_u32 vcc, v{vKey + i}, v{vX + 12}")
        A(f"v_lshlrev_b32 v{vKey + i}, 2, v{vKey + i}")
        A(f"s_and_b64 exec, vcc, {sr(sMask + 2 * i, 2)}")
        A(f"ds_write_b32 v{vKey + i}, v{vSoff + i} offset:{L_SO}")
        A(f"ds_write_b32 v{vKey + i}, v{vEoff + i} offset:{L_EO}")
        A(f"s_andn2_b64 {sr(sMask + 2 * i, 2)}, {sr(sMask + 2 * i, 2)}, vcc")
        A("s_mov_b64 exec, -1")
    A(f"""
    s_lshl_b32 s3, s{sW}, 8
    v_lshrrev_b32 v{vX + 12}, 1, v{vH16}
    v_add_u32 v{vP}, s3, v{vX + 12}
    v_and_b32 v{vX + 12}, 1, v{vTid}
    v_bfe_u32 v{vX + 13}, v{vTid}, 2, 1
    v_lshl_add_u32 v{vX + 12}, v{vX + 13}, 1, v{vX + 12}
    v_lshl_add_u32 v{vX + 12}, v{vX + 12}, 2, s3
    v_lshl_add_u32 v{vEp}, v{vUaddr}, 6, v{vX + 12}
    s_lshr_b32 s3, s{sT}, 1
    v_mov_b32 v{vErr}, s3
    s_mov_b64 {sr(sCur, 2)}, 0
    s_mov_b32 s{sTi}, 0
    """)
    for u in range(1, NU):
        A(f"v_mov_b32 v{vP + u}, v{vP}")
    A(f"""
    s_waitcnt lgkmcnt(0)
    s_barrier
    s_cmp_eq_u32 s{sT}, 0
    s_cbranch_scc1 Lg_done
    s_branch Lg_entry
    Lg_tile:
    s_waitcnt vmcnt({2 * NU})
    """)
    for j in range(4):
        A(mfma(j))
    A(f"""
    Lg_entry:
    v_add_u32 v{vErr}, v{vQ}, v{vErr}
    ds_read_b32 v{vEo}, v{vEp} offset:{L_EO}
    ds_read_b64 {vr(vSo, 2)}, v{vP} offset:{L_SO}
    v_cmp_le_u32_e64 {sr(sNext, 2)}, s{sT}, v{vErr}
    s_cmp_lt_u32 s{sTi}, s{sT}
    s_cselect_b64 {sr(sNext, 2)}, {sr(sNext, 2)}, 1
    s_mov_b64 exec, {sr(sNext, 2)}
    v_subrev_u32 v{vErr}, s{sT}, v{vErr}
    v_add_u32 v{vEp}, 16, v{vEp}
    s_waitcnt lgkmcnt(1)
    v_add_u32 v{vEo}, v{vEo}, v{vH16}
    buffer_load_dwordx4 {vr(vEA, 4)}, v{vEo}, {sr(S_EA, 4)}, 0 offen
    s_mov_b64 exec, -1
    """)
    for u in range(NU):
        bit = 8 * (u >> 1) + 2 * (u & 1) + 1
        so2 = vSo + 2 * (u & 1)
        La, Lb = vLs[u], vLs[u] + 4
        a, b = vT, vT + 4
        num, den = vAcc + 8 * u, vAcc + 8 * u + 4
        if u + 1 < NU:
            A(f"ds_read_b64 {vr(vSo + 2 * ((u + 1) & 1), 2)}, v{vP + u + 1} offset:{L_SO + 2048 * (u + 1)}")
        A(f"s_bitcmp1_b32 s{sCur}, {bit}")
        A(f"s_cbranch_scc0 Lg_skip{u}")
        A(f"s_waitcnt vmcnt({2 * NU - 1})")
        for j in range(4):
            A(f"v_fma_mix_f32 v{a + j}, v{vD + 16 * j + 2 * u}, s{sNl}, v{La + j} op_sel_hi:[0,0,1]")
        for j in range(4):
            A(f"v_fma_mix_f32 v{b + j}, v{vD + 16 * j + 2 * u + 1}, s{sNl}, v{Lb + j} op_sel_hi:[0,0,1]")
        for j in range(0, 8, 2):
            A(f"v_pk_add_f32 {vr(a + j, 2)}, {vr(a + j, 2)}, {vr(vAn + 4 * u + (j & 3), 2)}")
        for j in range(8):
            A(f"v_exp_f32_e64 v{a + j}, v{a + j} clamp")
        for j in range(0, 8, 2):
            A(f"v_pk_add_f32 {vr(a + j, 2)}, {vr(a + j, 2)}, {sr(sC0, 2)}")
        for j in (0, 2):
            A(f"v_pk_mul_f32 {vr(La + j, 2)}, {vr(La + j, 2)}, {vr(b + j, 2)}")
        for j in (0, 2):
            A(f"v_pk_fma_f32 {vr(La + j, 2)}, {vr(Lb + j, 2)}, {vr(a + j, 2)}, {vr(La + j, 2)}")
        for j in (0, 2):
            A(f"v_pk_add_f32 {vr(Lb + j, 2)}, {vr(a + j, 2)}, {vr(b + j, 2)}")
        for j in (0, 2):
            A(f"v_pk_mul_f32 {vr(a + j, 2)}, {vr(a + j, 2)}, {vr(b + j, 2)}")
        for j in range(4):
            A(f"v_rcp_f32 v{a + j}, v{a + j}")
        for j in (0, 2):
            A(f"v_pk_fma_f32 {vr(num + j, 2)}, {vr(La + j, 2)}, {vr(a + j, 2)}, {vr(num + j, 2)}")
            A(f"v_pk_fma_f32 {vr(den + j, 2)}, {vr(Lb + j, 2)}, {vr(a + j, 2)}, {vr(den + j, 2)}")
        A(f"Lg_skip{u}:")
        A(f"s_bitcmp1_b32 s{sNext}, {bit}")
        A("s_cselect_b64 exec, -1, 1")
        A(f"s_cselect_b32 s{sInc}, 16, 0")
        A(f"s_waitcnt lgkmcnt({1 if u + 1 < NU else 0})")
        A(f"v_add_u32 v{so2}, v{so2}, v{vLo}")
        A(f"v_add_u32 v{so2 + 1}, v{so2 + 1}, v{vLo}")
        A(f"buffer_load_dwordx4 {vr(La, 4)}, v{so2}, {sr(S_TAB, 4)}, 0 offen {tab_pol}")
        A(f"buffer_load_dwordx4 {vr(Lb, 4)}, v{so2 + 1}, {sr(S_TAB, 4)}, 0 offen {tab_pol}")
        A("s_mov_b64 exec, -1")
        A(f"v_add_u32 v{vP + u}, s{sInc}, v{vP + u}")
    A(f"""
    s_mov_b64 {sr(sCur, 2)}, {sr(sNext, 2)}
    s_add_u32 s{sTi}, s{sTi}, 1
    s_cmp_le_u32 s{sTi}, s{sT}
    s_cbranch_scc1 Lg_tile
    Lg_done:
    s_waitcnt vmcnt(0)
    s_cmp_lg_u32 s{sOvf}, 0
    s_cbranch_scc1 Lround
    s_add_u32 s{sW0}, s{sW0}, 16
    s_cmp_lg_u32 s{sMor}, 0
    s_cbranch_scc1 Lbatch
    s_mul_i32 s3, s{sW}, 528
    s_add_u32 s3, s3, {L_TU}
    v_mul_u32_u24 v{vA2}, {33 * 8}, v{vH16}
    v_add3_u32 v{vA2}, v{vA2}, v{vLo}, s3
    s_mul_i32 s3, s{sW}, 272
    s_add_u32 s3, s3, {L_X}
    v_mul_u32_u24 v{vA3}, {17 * 8}, v{vH16}
    v_lshrrev_b32 v{vLo + 1}, 1, v{vLo}
    v_add3_u32 v{vA3}, v{vA3}, v{vLo + 1}, s3
    """)
    for pr in range(4):
        A(f"ds_read_b128 {vr(vU + 4 * pr, 4)}, v{vA2} offset:{16 * 528 * pr}")
        A(f"ds_read_b64 {vr(vXr + 2 * pr, 2)}, v{vA3} offset:{16 * 272 * pr}")
    A(f"""
    v_lshl_add_u32 v{vA2}, v{vH16}, 7, v{vLo + 1}
    s_add_u32 s{sQ1}, s{sN0}, s{sW}
    s_lshl_b32 s{sQ1}, s{sQ1}, 8
    s_waitcnt lgkmcnt(0)
    """)
    for pr in range(4):
        if pr == 3:
            A(f"s_add_u32 s3, s{sW}, 48")
            A(f"s_cmp_ge_u32 s3, s{sNn}")
            A("s_cbranch_scc1 Lk2_done")
        finalize(vAcc + 16 * pr, 4, vAcc + 16 * pr + 8, vU + 4 * pr, vXr + 2 * pr, vA2, sQ1,
                 "s_mov_b32 exec_hi, 0" if pr == 3 else "s_nop 0")
        A(f"s_add_u32 s{sQ1}, s{sQ1}, 4096")
    A("s_branch Lk2_done")
    return L_END


def gen_report(A, opt):
    kind, team, idx = opt["report"].split(",")
    idx, _, ref = idx.partition("-")
    idx = int(idx)
    A("report_kernel:")
    A("s_cmp_ge_u32 s2, 1")
    A("s_cbranch_scc1 Lr_exit")
    load_kernargs(A)
    A("s_waitcnt lgkmcnt(0)")
    srd(A, 28, P_WS, 0x80000, STAMP_OFF + 0x20000)

    def reduce(op, base, dst, tag, sub):
        A("v_lshrrev_b32 v1, 2, v0")
        A("v_and_b32 v2, 3, v0")
        A("v_lshlrev_b32 v1, 9, v1")
        A("v_lshl_add_u32 v1, v2, 6, v1")
        A(f"v_mov_b32 v3, {'-1' if op == 'min' else '0'}")
        A("s_mov_b32 s44, 0")
        A(f"Lr_{tag}:")
        A(f"buffer_load_dword v2, v1, s[28:31], s44 offen offset:{base}")
        A("s_waitcnt vmcnt(0)")
        if sub:
            A("v_subrev_u32 v2, s40, v2")
        A(f"v_{op}_u32 v3, v3, v2")
        A("s_add_u32 s44, s44, 8192")
        A("s_cmp_lt_u32 s44, 131072")
        A(f"s_cbranch_scc1 Lr_{tag}")
        A(f"v_readlane_b32 s{dst}, v3, 0")
        for l in range(1, 64):
            A(f"v_readlane_b32 s3, v3, {l}")
            A("s_nop 0")
            A(f"s_{op}_u32 s{dst}, s{dst}, s3")

    reduce("min", 0, 40, "a", False)
    if kind == "rng":
        reduce("max", 8 * idx, 41, "b", False)
        reduce("min", 8 * idx, 45, "c", False)
        A("s_sub_u32 s41, s41, s45")
    else:
        reduce(kind, 8 * idx + (256 if team == "t" else 0), 41, "b", True)
    if ref:
        reduce(kind, 8 * int(ref) + (256 if team == "t" else 0), 45, "c", True)
        A("s_sub_u32 s41, s41, s45")
    sc = int(opt.get("rs", 2))
    A(f"s_lshr_b32 s41, s41, {10 - sc}" if kind == "add" else f"s_lshl_b32 s41, s41, {sc}")
    A("s_min_u32 s41, s41, 30000")
    A("s_add_u32 s41, s41, 10000")
    A("Lr_spin:")
    A("s_memrealtime s[42:43]")
    A("s_waitcnt lgkmcnt(0)")
    A("s_sub_u32 s42, s42, s40")
    A("s_cmp_lt_u32 s42, s41")
    A("s_cbranch_scc1 Lr_spin")
    A("Lr_exit:")
    A("s_endpgm")


def descriptor(name, vgpr, extra=""):
    return f""".amdhsa_kernel {name}
  .amdhsa_next_free_vgpr {vgpr}
  .amdhsa_next_free_sgpr 102
  .amdhsa_accum_offset {(vgpr + 3) // 4 * 4}
  .amdhsa_group_segment_fixed_size 0
  .amdhsa_kernarg_size 96
  .amdhsa_user_sgpr_count 2
  .amdhsa_user_sgpr_kernarg_segment_ptr 1
  .amdhsa_system_sgpr_workgroup_id_x 1
{extra}.end_amdhsa_kernel
"""


def generate(opt):
    A = Asm()
    lds = gen_k2(A, opt)
    lst = f"kernel={NAME}_kernel " if opt.get("report") else ""
    text = (f"""; GatedGCN layer in one launch of 256 co-resident workgroups (one per CU).
; Workgroup g owns chunk g of the edges (1568) and one bucket of 48 or 49 destination nodes.
;  1. counting sort of the chunk by destination bucket -> records in d_ws, published by tagged offset words
;  2. x @ w_b, x @ w_v of the bucket's rows -> gather table in d_ws (low half: f16 of -log2(e) * B, high half: V),
;     published by a tagged word; x @ w_a and x + x @ w_u stay in LDS
;  3. the bucket's records are sorted by (node, source range), padded to groups of four edges and split evenly
;     over the eight waves; every wave walks its groups in source order
;  4. per group: gate exponent from MFMA(e_attr, w_c) and the gathered row, sigmoid of two edges with one reciprocal,
;     numerator and denominator sums in indexed registers; out = max(x + x @ w_u + num / (den + 1e-6), x)
; The tag of the launch is published in d_debug by workgroup 0.
; Inputs outside the limits of the fast path (degree distribution, |x @ w_a| > 52) take the general path at the end.
; @launch {lst}grid=(256,1,1) block=(512,1,1) lds={lds}
.amdgcn_target "amdgcn-amd-amdhsa--gfx950"
.text
.globl {NAME}_kernel
.p2align 8
.type {NAME}_kernel,@function
""" + A.text() + ".section .rodata,\"a\"\n.p2align 6\n"
            + descriptor(f"{NAME}_kernel", 256, "  .amdhsa_fp16_overflow 1\n"))
    if opt.get("report"):
        R = Asm()
        gen_report(R, opt)
        text = text.replace(".amdgcn_target", "; @launch kernel=report_kernel grid=(1,1,1) block=(64,1,1) lds=0\n.amdgcn_target")
        text = text.replace(".section .rodata", ".globl report_kernel\n.p2align 8\n.type report_kernel,@function\n" + R.text() + ".section .rodata")
        text += ".p2align 6\n" + descriptor("report_kernel", 8)
    return text


if __name__ == "__main__":
    out = sys.argv[1] if len(sys.argv) > 1 else f"cdna_kernels/{NAME}.s"
    opt = dict(a.split("=", 1) for a in sys.argv[2:])
    opt = {k: v.replace("+", " ") for k, v in opt.items()}
    open(out, "w").write(generate(opt))
```
